```python
import torch

def _softmax(x, axis=-1):
    return torch.softmax(x, dim=axis)
def _gelu(x):
    return torch.nn.functional.gelu(x, approximate="tanh")
def _silu(x):
    return torch.nn.functional.silu(x)
def _sigmoid(x):
    return torch.sigmoid(x)
def _layernorm(x, axis=-1, eps=1e-5):
    m = x.mean(dim=axis, keepdim=True)
    v = x.var(dim=axis, keepdim=True, unbiased=False)
    return (x - m) / torch.sqrt(v + eps)
def _scatter_add(tgt, idx, src, axis=0):
    return tgt.clone().index_add_(axis, idx, src)
def _segment_sum(src, seg, n):
    out = torch.zeros((n,) + src.shape[1:], dtype=src.dtype)
    return out.index_add_(0, seg, src)
def _pad(x, pw):
    flat = tuple(v for pair in reversed(pw) for v in pair)
    return torch.nn.functional.pad(x, flat)

kernel_name = 'concat_heads__spectral_gfnet__ssm_conv_h3__prompt'

def setup_inputs():

    _w = (lambda a: (lambda t: t.to(torch.bfloat16) if t.is_floating_point() else t)(torch.as_tensor(a)))
    def _A_setup():
        B, S, D = 1, 2048, 1024
        Df = D // 2 + 1
        return {
            "x": _w((lambda *s: torch.randn(*s, dtype=torch.bfloat16) * 0.05)(B, S, D)),
            "w_r": _w((lambda *s: torch.randn(*s, dtype=torch.bfloat16) * 0.05)(S, Df) * 0.02),
            "w_i": _w((lambda *s: torch.randn(*s, dtype=torch.bfloat16) * 0.05)(S, Df) * 0.02),
        }
    _A_in = _A_setup()

    def _B_setup():
        B, S, D = 1, 2048, 1024
        ks = 4
        return {
            "q": _w((lambda *s: torch.randn(*s, dtype=torch.bfloat16) * 0.05)(B, S, D)),
            "k": _w((lambda *s: torch.randn(*s, dtype=torch.bfloat16) * 0.1)(B, S, D)),
            "v": _w((lambda *s: torch.randn(*s, dtype=torch.bfloat16) * 0.1)(B, S, D)),
            "shift_k": _w((lambda *s: torch.randn(*s, dtype=torch.bfloat16) * 0.1)(D, ks) * 0.5),
            "ssm_k": _w((lambda *s: torch.randn(*s, dtype=torch.bfloat16) * 0.1)(D, S) * (1.0 / S ** 0.5)),
            "ssm_D": _w((lambda *s: torch.randn(*s, dtype=torch.bfloat16) * 0.1)(D)),
        }
    _B_in = _B_setup()

    return {
        "A_x": _A_in["x"],
        "A_w_r": _A_in["w_r"],
        "A_w_i": _A_in["w_i"],
        "B_q": _B_in["q"],
        "B_k": _B_in["k"],
        "B_v": _B_in["v"],
        "B_shift_k": _B_in["shift_k"],
        "B_ssm_k": _B_in["ssm_k"],
        "B_ssm_D": _B_in["ssm_D"],
    }

def reference(A_x, A_w_r, A_w_i, B_q, B_k, B_v, B_shift_k, B_ssm_k, B_ssm_D):
    def _A_ref(x, w_r, w_i):
        B, S, D = x.shape
        X = (lambda x, axes=(-2,-1): torch.fft.rfft2(x.float(), dim=axes))(x, axes=(-2, -1))
        W = w_r + 1j * w_i
        X = X * W
        y = (lambda x, s, axes=(-2,-1): torch.fft.irfft2(x, s=s, dim=axes).to(torch.bfloat16))(X, (S, D), axes=(-2, -1))
        return y

    def _B_ref(q, k, v, shift_k, ssm_k, ssm_D):
        B, S, D = q.shape
        ks = shift_k.shape[-1]
        k_pad = _pad(k, ((0, 0), (ks - 1, 0), (0, 0)))
        k_shift = torch.zeros_like(k)
        for t in range(ks):
            k_shift = k_shift + k_pad[:, t:t + S, :] * shift_k[:, ks - 1 - t][None, None, :]
        kv = k_shift * v
        L = 2 * S
        kv_pad = _pad(kv, ((0, 0), (0, S), (0, 0)))
        kf_pad = _pad(ssm_k, ((0, 0), (0, S)))
        kv_f = (lambda x, axes=(-2,-1): torch.fft.rfft2(x.float(), dim=axes))(kv_pad[:, None, :, :], axes=(1, 2))
        kf_f = (lambda x, axes=(-2,-1): torch.fft.rfft2(x.float(), dim=axes))(kf_pad[:, None, :], axes=(1, 2))
        kf_f = (lambda x, *d: x.permute(*d))(kf_f, 1, 2, 0)
        y_f = kv_f * kf_f[None, :, :, :]
        y = (lambda x, s, axes=(-2,-1): torch.fft.irfft2(x, s=s, dim=axes).to(torch.bfloat16))(y_f, (1, L), axes=(1, 2))[:, 0, :S, :]
        y = y + kv * ssm_D[None, None, :]
        return q * y

    a = _A_ref(A_x, A_w_r, A_w_i)
    b = _B_ref(B_q, B_k, B_v, B_shift_k, B_ssm_k, B_ssm_D)
    return torch.concatenate([a, b], axis=-1)
```

```python
import re

TRANS = ("v_exp_f32","v_log_f32","v_rcp_f32","v_rsq_f32","v_sqrt_f32","v_sin_f32","v_cos_f32")
_reg_re = re.compile(r'^-?\|?(?:abs\()?([vsa])(?:(\d+)|\[(\d+):(\d+)\])\)?\|?$')

def parse_regs(tok):
    tok = tok.strip()
    m = _reg_re.match(tok)
    if m:
        k = m.group(1)
        if m.group(2) is not None:
            return {(k, int(m.group(2)))}
        return {(k, i) for i in range(int(m.group(3)), int(m.group(4)) + 1)}
    if tok in ("vcc", "vcc_lo", "vcc_hi"): return {("vcc", 0)}
    if tok in ("exec", "exec_lo", "exec_hi"): return {("exec", 0)}
    if tok == "m0": return {("m0", 0)}
    return set()

def split_ops(s):
    out, depth, cur = [], 0, ""
    for ch in s:
        if ch in "[(": depth += 1
        if ch in "])": depth -= 1
        if ch == "," and depth == 0:
            out.append(cur.strip()); cur = ""
        else:
            cur += ch
    if cur.strip(): out.append(cur.strip())
    return out

class Ins:
    def __init__(self, text):
        self.text = text
        t = text.split(";")[0].strip()
        self.is_label = t.endswith(":")
        self.is_dir = t.startswith(".") and not self.is_label
        self.kind = None
        self.w = set(); self.r = set()
        self.srcA = set(); self.srcB = set(); self.srcC = set(); self.passes = 0
        self.nop = 0
        if not t or self.is_label or self.is_dir:
            self.kind = "none"; self.mn = ""; return
        parts = t.split(None, 1)
        mn = parts[0]; self.mn = mn
        rest = parts[1] if len(parts) > 1 else ""
        ops = split_ops(rest)
        if ops:
            last = ops[-1].split()
            self.mods = " ".join(last[1:]) if len(last) > 1 else ""
            if last and re.match(r'^[a-z_0-9]+:', last[0]) and not _reg_re.match(last[0]):
                self.mods = " ".join(last); ops = ops[:-1]
            else:
                ops[-1] = last[0]
        else:
            self.mods = ""
        self.ops = ops
        R = [parse_regs(o) for o in ops]
        if mn.startswith("v_mfma"):
            self.kind = "mfma"
            self.w = R[0]; self.srcA = R[1]; self.srcB = R[2]; self.srcC = R[3]
            self.r = R[1] | R[2] | R[3]
            self.passes = 8 if "32x32" in mn else 4
            self.cexact = (ops[0] == ops[3])
        elif mn.startswith("v_"):
            self.kind = "valu"
            self.trans = mn.replace("_e32", "").replace("_e64", "") in TRANS
            self.dpp = ("quad_perm" in text or "row_" in text.split(";")[0] or "wave_" in text.split(";")[0])
            if mn.startswith("v_cmp"):
                self.w = R[0]; self.r = set().union(*R[1:])
                if mn.startswith("v_cmpx"): self.w = self.w | {("exec", 0)}
            elif mn.startswith(("v_add_co", "v_sub_co", "v_addc_co", "v_subb_co", "v_subrev_co")):
                self.w = R[0] | R[1]; self.r = set().union(*R[2:])
            elif mn.startswith(("v_permlane16_swap", "v_permlane32_swap")):
                self.w = R[0] | R[1]; self.r = R[0] | R[1]
            else:
                self.w = R[0]; self.r = set().union(*R[1:]) if len(R) > 1 else set()
                if mn.startswith(("v_fmac", "v_pk_fmac", "v_dot2c", "v_writelane")): self.r |= R[0]
                if "dpp" in mn or self.dpp: self.r |= R[0]
        elif mn.startswith("ds_"):
            self.kind = "ds"
            if mn.startswith(("ds_read", "ds_bpermute", "ds_permute", "ds_swizzle")):
                self.w = R[0]; self.r = set().union(*R[1:])
            else:
                self.r = set().union(*R)
        elif mn.startswith("buffer_wbl2"):
            self.kind = "salu"
        elif mn.startswith(("buffer_", "global_")):
            self.kind = "vmem"
            self.wide_store = False
            if "load" in mn:
                if re.search(r'\blds\b', self.mods):
                    self.r = set().union(*R) | {("m0", 0)}; self.ldsdma = True
                else:
                    self.w = R[0]; self.r = set().union(*R[1:])
            else:
                self.r = set().union(*R)
                if mn.startswith("global_store"):
                    self.data = R[1]
                else:
                    self.data = R[0]
                if "x4" in mn or "x3" in mn: self.wide_store = True
        elif mn.startswith("s_"):
            self.kind = "salu"
            if mn == "s_nop":
                self.nop = int(ops[0], 0) + 1
            elif mn.startswith(("s_cmp", "s_cbranch", "s_branch", "s_waitcnt", "s_barrier", "s_endpgm", "s_setprio", "s_sleep", "s_bitcmp")):
                self.r = set().union(*R) if R else set()
            else:
                self.w = R[0] if R else set(); self.r = set().union(*R[1:]) if len(R) > 1 else set()
                if "saveexec" in mn: self.w = self.w | {("exec", 0)}
        else:
            raise ValueError("unknown instr: " + text)

def vonly(s): return {x for x in s if x[0] in "va" and x[0] != "vcc"}
def sonly(s): return {x for x in s if x[0] in ("s", "vcc")}

def need(prod, cons):
    n = 0
    if prod.kind == "valu":
        pv = vonly(prod.w); ps = sonly(prod.w)
        if cons.kind == "mfma" and pv & cons.r: n = max(n, 2)
        if cons.kind == "valu":
            if getattr(prod, "trans", False) and not cons.trans and pv & cons.r: n = max(n, 1)
            if cons.mn.startswith(("v_readfirstlane", "v_readlane")) and pv & cons.r: n = max(n, 1)
            if cons.mn.startswith("v_permlane") and pv & cons.r: n = max(n, 2)
            if cons.dpp and pv & cons.r: n = max(n, 2)
            if ps & cons.r: n = max(n, 2)
            if ("exec", 0) in prod.w and cons.dpp: n = max(n, 5)
        if cons.kind == "vmem" and ps & cons.r: n = max(n, 5)
        if cons.kind == "mfma" and ("exec", 0) in prod.w: n = max(n, 4)
        if cons.kind == "salu" and ps & cons.r: n = max(n, 4)
    if prod.kind == "mfma":
        D = prod.w
        p = prod.passes
        if cons.kind == "mfma":
            if D & cons.srcC:
                if not (cons.srcC == D and cons.passes == p): n = max(n, 6 if p == 4 else 10)
            if D & (cons.srcA | cons.srcB): n = max(n, 8 if p == 4 else 12)
            if (D & cons.w) and not (D & cons.srcC):
                n = max(n, 8 if p == 4 else 12) if cons.passes < p else n
        elif cons.kind in ("valu", "ds", "vmem"):
            if D & (cons.r | cons.w): n = max(n, 8 if p == 4 else 12)
        if cons.kind == "valu" and (prod.srcC & cons.w): n = max(n, 3 if p == 4 else 7)
    if prod.kind == "vmem" and getattr(prod, "wide_store", False):
        if cons.kind == "valu" and (prod.data & cons.w): n = max(n, 2)
        elif prod.data & cons.w: n = max(n, 1)
    if prod.kind == "salu" and ("m0", 0) in prod.w:
        if cons.kind == "vmem" and getattr(cons, "ldsdma", False): n = max(n, 1)
    return n

def hazard_pass(lines, window=24):
    out = []
    total = 0
    for text in lines:
        for t in text.split("\n"):
            ins = Ins(t)
            if ins.kind in ("none",):
                out.append(ins); continue
            dist = 0; req = 0
            for prev in reversed(out):
                if prev.kind == "none": continue
                nn = need(prev, ins)
                if nn > dist: req = max(req, nn - dist)
                dist += prev.nop if prev.mn == "s_nop" else 1
                if dist >= window: break
            while req > 0:
                k = min(req, 16)
                out.append(Ins(f"    s_nop {k-1}"))
                total += k
                req -= k
            out.append(ins)
    return [i.text for i in out], total

class Asm:
    def __init__(self):
        self.lines = []
    def e(self, *txt):
        for t in txt:
            for l in t.split("\n"):
                l = l.rstrip()
                if l.strip():
                    self.lines.append(l if l.endswith(":") or l.startswith(".") else "    " + l.strip())
    def label(self, n): self.lines.append(n + ":")
    def c(self, t): self.lines.append("    ; " + t)
    def text(self, hazards=True):
        if hazards:
            l, tot = hazard_pass(self.lines)
            return "\n".join(l) + "\n"
        return "\n".join(self.lines) + "\n"

def v(b, n=1): return f"v{b}" if n == 1 else f"v[{b}:{b+n-1}]"
def s(b, n=1): return f"s{b}" if n == 1 else f"s[{b}:{b+n-1}]"
def f32hex(x):
    import struct
    return "0x%08x" % struct.unpack("<I", struct.pack("<f", x))[0]
```

```python
import sys, math
from asmgen import *

MB = 1 << 20
WS_I1, WS_KVT, WS_I2, WS_TT = 0, 4*MB, 8*MB, 12*MB
KA = dict(x=0, wr=8, wi=16, q=24, k=32, v=40, shk=48, ssmk=56, ssmD=64, out=72, dbg=80, ws=88)

def srd(a, dst, base_lo, base_hi, nbytes, add=0):
    if add:
        a.e(f"s_add_u32 s{dst}, s{base_lo}, {add}", f"s_addc_u32 s{dst+1}, s{base_hi}, 0")
    else:
        a.e(f"s_mov_b32 s{dst}, s{base_lo}", f"s_mov_b32 s{dst+1}, s{base_hi}")
    a.e(f"s_mov_b32 s{dst+2}, {nbytes}", f"s_mov_b32 s{dst+3}, 0x00020000")

def header(name):
    return f""".text
.globl {name}
.p2align 8
.type {name},@function
{name}:
"""
def descriptor(name, nv, ns):
    acc = (nv + 3)//4*4
    return f""".section .rodata,"a"
.p2align 6
.amdhsa_kernel {name}
  .amdhsa_next_free_vgpr {nv}
  .amdhsa_next_free_sgpr {ns}
  .amdhsa_accum_offset {acc}
  .amdhsa_group_segment_fixed_size 0
  .amdhsa_kernarg_size 96
  .amdhsa_user_sgpr_count 2
  .amdhsa_user_sgpr_kernarg_segment_ptr 1
  .amdhsa_system_sgpr_workgroup_id_x 1
.end_amdhsa_kernel
"""

def fft512_tile(a, pfx, SIN, SOUT, s_w, s_sa, s_cb, orow, ostr, neg_im):
    S_INB, S_OUTB = 40, 41
    S_IOFF = 44
    S_OOFF = 60
    V_M, V_G, V_IN_OFF, V_OUT_OFF, V_WR, V_RD0, V_RD1, V_MM = 2, 3, 4, 5, 6, 7, 8, 9
    T = 10
    IN = 16; F16RE = 32; F16IM = 36; TWC = 40; TWS = 56; DRE = 72; DIM = 88; P = 104; TMP = 120
    F32RE = 128; F32IM = 144
    a.c("---- fft512 tile setup")
    a.e(f"v_and_b32 v{V_M}, 15, v1", f"v_lshrrev_b32 v{V_G}, 4, v1")
    a.e(f"s_lshl_b32 s{S_INB}, s{s_sa}, 11", f"s_lshl_b32 s42, s{s_cb}, 6", f"s_add_u32 s{S_INB}, s{S_INB}, s42",
        f"s_lshl_b32 s43, s{s_w}, 15", f"s_add_u32 s{S_INB}, s{S_INB}, s43")
    a.e(f"v_lshlrev_b32 v{V_IN_OFF}, 20, v{V_G}", f"v_lshl_add_u32 v{V_IN_OFF}, v{V_M}, 2, v{V_IN_OFF}")
    for aa in range(4):
        for i in range(4):
            a.e(f"s_add_u32 s{S_IOFF+4*aa+i}, s{S_INB}, {(32*i+aa)*8192}")
    for aa in range(4):
        for i in range(4):
            a.e(f"buffer_load_dword v{IN+4*aa+i}, v{V_IN_OFF}, s[{SIN}:{SIN+3}], s{S_IOFF+4*aa+i} offen")
    a.e(f"s_mul_i32 s{S_OUTB}, s{s_sa}, {orow}", f"s_add_u32 s{S_OUTB}, s{S_OUTB}, s42",
        f"s_mul_i32 s43, s{s_w}, {2*ostr}", f"s_add_u32 s{S_OUTB}, s{S_OUTB}, s43")
    for b in range(2):
        for h in range(2):
            for r in range(4):
                a.e(f"s_add_u32 s{S_OOFF+8*b+4*h+r}, s{S_OUTB}, {(b+256*h+16*r)*ostr}")
    a.e(f"v_mul_u32_u24 v{V_OUT_OFF}, {64*ostr}, v{V_G}" if 64*ostr < (1 << 24) else "")
    a.e(f"v_lshl_add_u32 v{V_OUT_OFF}, v{V_M}, 2, v{V_OUT_OFF}")
    a.e(f"v_and_b32 v{T}, 7, v{V_M}",
        f"v_xor_b32 v{T+1}, s{s_w}, v{T}",
        f"v_lshlrev_b32 v{V_WR}, 4, v{T+1}",
        f"v_lshl_add_u32 v{V_WR}, v{V_M}, 7, v{V_WR}",
        f"v_lshl_add_u32 v{V_WR}, v{V_G}, 13, v{V_WR}",
        f"v_xor_b32 v{T+1}, v{V_G}, v{T}",
        f"v_lshlrev_b32 v{V_RD0}, 4, v{T+1}",
        f"v_lshl_add_u32 v{V_RD0}, v{V_M}, 7, v{V_RD0}",
        f"s_lshl_b32 s43, s{s_w}, 12",
        f"v_add_u32 v{V_RD0}, s43, v{V_RD0}",
        f"v_xor_b32 v{V_RD1}, 64, v{V_RD0}")
    a.c("---- constants: F16 / F32 fragments")
    XS, XB = T, T+1
    a.e(f"v_cvt_f32_u32 v{XS}, v{V_M}", f"v_mul_f32 v{XS}, {f32hex(1/32)}, v{XS}",
        f"v_cvt_f32_u32 v{T+2}, v{V_G}", f"v_mul_f32 v{T+2}, 4.0, v{T+2}",
        f"v_mul_f32 v{XB}, v{T+2}, v{XS}")
    a.e(f"v_and_b32 v{V_MM}, 1, v{V_M}", f"v_mul_u32_u24 v{V_MM}, 0x8000, v{V_MM}",
        f"v_lshl_or_b32 v{V_MM}, v{V_MM}, 16, v{V_MM}")
    a.e("s_mov_b32 s42, 0x80008000")
    for i in range(4):
        x = TMP; cs = TMP+1; sn = TMP+2; x2 = TMP+3
        a.e(f"v_fmamk_f32 v{x}, v{XS}, {f32hex(float(i))}, v{XB}" if i else f"v_mov_b32 v{x}, v{XB}")
        a.e(f"v_add_f32 v{x2}, v{x}, v{x}")
        a.e(f"v_cos_f32 v{cs}, v{x}", f"v_sin_f32 v{sn}, v{x}")
        a.e(f"v_cvt_pk_bf16_f32 v{F32RE+i}, v{cs}, v{sn}", f"v_cvt_pk_bf16_f32 v{F32IM+i}, -v{sn}, v{cs}")
        a.e(f"v_cos_f32 v{cs}, v{x2}", f"v_sin_f32 v{sn}, v{x2}")
        a.e(f"v_cvt_pk_bf16_f32 v{F16RE+i}, v{cs}, v{sn}", f"v_cvt_pk_bf16_f32 v{F16IM+i}, -v{sn}, v{cs}")
    for base in (F32RE, F32IM):
        for i in range(4):
            a.e(f"v_xor_b32 v{base+4+i}, v{V_MM}, v{base+i}")
        for t in range(2):
            for i in range(4):
                src = base+4*t+i
                if i & 1: a.e(f"v_xor_b32 v{base+8+4*t+i}, s42, v{src}")
                else:     a.e(f"v_mov_b32 v{base+8+4*t+i}, v{src}")
    a.c("---- twiddles w512^(n0*k1), n0=4w+a, k1=4g+r")
    a.e(f"v_cvt_f32_u32 v{TMP}, s{s_w}", f"v_mul_f32 v{TMP}, {f32hex(4/512)}, v{TMP}")
    for r in range(4):
        a.e(f"v_add_f32 v{TMP+4+r}, {f32hex(float(r)) if r else 0}, v{T+2}")
    for aa in range(4):
        a.e(f"v_add_f32 v{TMP+1}, {f32hex(aa/512) if aa else 0}, v{TMP}")
        for r in range(4):
            a.e(f"v_mul_f32 v{TMP+2}, v{TMP+1}, v{TMP+4+r}",
                f"v_cos_f32 v{TWC+4*aa+r}, v{TMP+2}", f"v_sin_f32 v{TWS+4*aa+r}, v{TMP+2}")
    a.c("---- stage 1")
    for aa in range(4):
        a.e(f"s_waitcnt vmcnt({12-4*aa})")
        a.e(f"v_mfma_f32_16x16x32_bf16 {v(DRE+4*aa,4)}, {v(F16RE,4)}, {v(IN+4*aa,4)}, 0",
            f"v_mfma_f32_16x16x32_bf16 {v(DIM+4*aa,4)}, {v(F16IM,4)}, {v(IN+4*aa,4)}, 0")
    for aa in range(4):
        for p in range(2):
            re, im = DRE+4*aa+2*p, DIM+4*aa+2*p
            tc, ts = TWC+4*aa+2*p, TWS+4*aa+2*p
            t0, t1 = TMP+4*(p), TMP+4*(p)+2
            a.e(f"v_pk_mul_f32 {v(t0,2)}, {v(re,2)}, {v(tc,2)}",
                f"v_pk_mul_f32 {v(t1,2)}, {v(im,2)}, {v(tc,2)}",
                f"v_pk_fma_f32 {v(t0,2)}, {v(im,2)}, {v(ts,2)}, {v(t0,2)}",
                f"v_pk_fma_f32 {v(t1,2)}, {v(re,2)}, {v(ts,2)}, {v(t1,2)} neg_lo:[1,0,0] neg_hi:[1,0,0]")
            for e in range(2):
                r = 2*p+e
                a.e(f"v_cvt_pk_bf16_f32 v{P+4*r+aa}, v{t0+e}, v{t1+e}")
    for r in range(4):
        a.e(f"ds_write_b128 v{V_WR}, {v(P+4*r,4)} offset:{r*2048}")
    a.e("s_waitcnt lgkmcnt(0)", "s_barrier")
    a.c("---- stage 2")
    for b in range(2):
        a.e(f"ds_read_b128 {v(IN+8*b,4)}, v{V_RD0} offset:{b*2048}",
            f"ds_read_b128 {v(IN+8*b+4,4)}, v{V_RD1} offset:{b*2048}")
    for b in range(2):
        a.e(f"s_waitcnt lgkmcnt({2-2*b})")
        for h in range(2):
            for (D_, F_) in ((DRE, F32RE), (DIM, F32IM)):
                d = D_+8*b+4*h
                a.e(f"v_mfma_f32_16x16x32_bf16 {v(d,4)}, {v(F_+8*h,4)}, {v(IN+8*b,4)}, 0")
        for h in range(2):
            for (D_, F_) in ((DRE, F32RE), (DIM, F32IM)):
                d = D_+8*b+4*h
                a.e(f"v_mfma_f32_16x16x32_bf16 {v(d,4)}, {v(F_+8*h+4,4)}, {v(IN+8*b+4,4)}, {v(d,4)}")
    for b in range(2):
        for h in range(2):
            for r in range(4):
                idx = 8*b+4*h+r
                sg = "-" if neg_im else ""
                a.e(f"v_cvt_pk_bf16_f32 v{P+idx}, v{DRE+idx}, {sg}v{DIM+idx}")
                a.e(f"buffer_store_dword v{P+idx}, v{V_OUT_OFF}, s[{SOUT}:{SOUT+3}], s{S_OOFF+idx} offen")
    a.e("s_endpgm")

def tile_coords(a, s_id, s_sa, s_cb):
    a.e(f"s_lshr_b32 s30, s{s_id}, 3", f"s_and_b32 s31, s{s_id}, 7",
        f"s_lshr_b32 s{s_sa}, s30, 2",
        f"s_bfe_u32 s32, s30, 0x10001",
        f"s_lshl_b32 s32, s32, 3", f"s_add_u32 s32, s32, s31", f"s_lshl_b32 s32, s32, 1",
        f"s_and_b32 s33, s30, 1", f"s_add_u32 s{s_cb}, s32, s33")

def common_prologue(a, nwg, ptrs):
    a.e(f"s_cmp_ge_u32 s2, {nwg}", "s_cbranch_scc1 L_exit_%s" % a.name)
    for n, r in ptrs:
        a.e(f"s_load_dwordx2 s[{r}:{r+1}], s[0:1], {KA[n]}")
    a.e("v_lshrrev_b32 v1, 6, v0", "v_readfirstlane_b32 s3, v1", "v_and_b32 v1, 63, v0", "s_waitcnt lgkmcnt(0)")

def gen_b1(a):
    SK, SV, SSH, SO = 16, 20, 24, 28
    srd(a, SK, 6, 7, 4*MB); srd(a, SV, 8, 9, 4*MB); srd(a, SSH, 10, 11, 8192); srd(a, SO, 12, 13, 4*MB, add=WS_KVT)
    a.e("s_sub_u32 s34, s2, 128",
        "s_and_b32 s35, s34, 15",
        "s_lshr_b32 s36, s34, 4",
        "s_lshl_b32 s36, s36, 8", "s_lshl_b32 s37, s3, 5", "s_add_u32 s36, s36, s37",
        "s_lshl_b32 s35, s35, 6")
    CG, RG, S0, CH0, VOFF, VH, VST, VSH = 2, 3, 4, 5, 6, 7, 8, 9
    a.e(f"v_and_b32 v{CG}, 15, v1", f"v_lshrrev_b32 v{RG}, 4, v1",
        f"v_lshl_add_u32 v{S0}, v{RG}, 3, s36",
        f"v_lshl_add_u32 v{CH0}, v{CG}, 2, s35",
        f"v_lshlrev_b32 v{VOFF}, 11, v{S0}", f"v_lshl_add_u32 v{VOFF}, v{CH0}, 1, v{VOFF}",
        f"v_subrev_u32 v{VH}, 6144, v{VOFF}",
        f"v_lshlrev_b32 v{VST}, 12, v{CH0}", f"v_lshl_add_u32 v{VST}, v{S0}, 1, v{VST}",
        f"v_lshlrev_b32 v{VSH}, 3, v{CH0}")
    a.e("s_mov_b32 s38, 4096", "s_mov_b32 s39, 8192", "s_mov_b32 s40, 12288")
    soff = ["0", "s38", "s39", "s40"]
    KR = 16
    VR = 38
    SHR = 54
    KF = 64
    SH = 108
    KV = 124
    TMP = 156
    PK = 16
    a.e(f"buffer_load_dwordx4 {v(SHR,4)}, v{VSH}, s[{SSH}:{SSH+3}], 0 offen",
        f"buffer_load_dwordx4 {v(SHR+4,4)}, v{VSH}, s[{SSH}:{SSH+3}], 0 offen offset:16")
    for i in range(3):
        a.e(f"buffer_load_dwordx2 {v(KR+2*i,2)}, v{VH}, s[{SK}:{SK+3}], {soff[i>>1]} offen" + (" offset:2048" if i & 1 else ""))
    for i in range(8):
        a.e(f"buffer_load_dwordx2 {v(KR+6+2*i,2)}, v{VOFF}, s[{SK}:{SK+3}], {soff[i>>1]} offen" + (" offset:2048" if i & 1 else ""))
    for i in range(8):
        a.e(f"buffer_load_dwordx2 {v(VR+2*i,2)}, v{VOFF}, s[{SV}:{SV+3}], {soff[i>>1]} offen" + (" offset:2048" if i & 1 else ""))
    a.e("s_mov_b32 s41, 0xffff0000")
    a.e("s_waitcnt vmcnt(19)")
    for ch in range(4):
        for j in range(4):
            src = SHR + 2*ch + (j >> 1)
            if j & 1: a.e(f"v_and_b32 v{SH+4*j+ch}, s41, v{src}")
            else:     a.e(f"v_lshlrev_b32 v{SH+4*j+ch}, 16, v{src}")
    for i in range(11):
        a.e(f"s_waitcnt vmcnt({18-i})")
        for hf in range(2):
            a.e(f"v_lshlrev_b32 v{KF+4*i+2*hf}, 16, v{KR+2*i+hf}", f"v_and_b32 v{KF+4*i+2*hf+1}, s41, v{KR+2*i+hf}")
    for i in range(8):
        a.e(f"s_waitcnt vmcnt({7-i})")
        for hf in range(2):
            a.e(f"v_lshlrev_b32 v{TMP+2*hf}, 16, v{VR+2*i+hf}", f"v_and_b32 v{TMP+2*hf+1}, s41, v{VR+2*i+hf}")
        for hf in range(2):
            acc = KV+4*i+2*hf
            a.e(f"v_pk_mul_f32 {v(acc,2)}, {v(KF+4*(i+3)+2*hf,2)}, {v(SH+2*hf,2)}")
            for j in range(1, 4):
                a.e(f"v_pk_fma_f32 {v(acc,2)}, {v(KF+4*(i+3-j)+2*hf,2)}, {v(SH+4*j+2*hf,2)}, {v(acc,2)}")
            a.e(f"v_pk_mul_f32 {v(acc,2)}, {v(acc,2)}, {v(TMP+2*hf,2)}")
    for ch in range(4):
        for m in range(4):
            a.e(f"v_cvt_pk_bf16_f32 v{PK+4*ch+m}, v{KV+4*(7-2*m)+ch}, v{KV+4*(6-2*m)+ch}")
        a.e(f"buffer_store_dwordx4 {v(PK+4*ch,4)}, v{VST}, s[{SO}:{SO+3}], {soff[ch]} offen")
    a.e("s_endpgm")

def gen_k1():
    a = Asm(); a.name = "k1"
    common_prologue(a, 256, [("x", 4), ("k", 6), ("v", 8), ("shk", 10), ("ws", 12)])
    a.e("s_cmp_ge_u32 s2, 128", "s_cbranch_scc1 L_b1")
    srd(a, 16, 4, 5, 4*MB); srd(a, 20, 12, 13, 4*MB, add=WS_I1)
    tile_coords(a, 2, 34, 35)
    fft512_tile(a, "a1", 16, 20, 3, 34, 35, 2048, 8192, False)
    a.label("L_b1")
    gen_b1(a)
    a.label("L_exit_k1")
    a.e("s_endpgm")
    return a

def build(kernels, launches):
    s = ""
    s += open("concat_heads__spectral_gfnet__ssm_conv_h3__prompt.s.ref").read().split("; Override")[0]
    for (name, grid, block, lds) in launches:
        s += f"; @launch kernel={name} grid=({grid},1,1) block=({block},1,1) lds={lds}\n"
    s += '.amdgcn_target "amdgcn-amd-amdhsa--gfx950"\n'
    for name, a, nv, ns in kernels:
        s += header(name) + a.text()
    for name, a, nv, ns in kernels:
        s += descriptor(name, nv, ns)
    return s

if __name__ == "__main__":
    k1 = gen_k1()
    txt = build([("gf_k1_kernel", k1, 160, 96)], [("gf_k1_kernel", 256, 512, 32768)])
    open("k1_test.s", "w").write(txt)
    print(len(txt))
```

```python
from asmgen import *
from gen import srd, common_prologue, MB, WS_I1, WS_KVT, WS_I2, WS_TT

WBYTES = 2048*513*2
LB_STRIDE = 12896
K2_LDS = 4*LB_STRIDE

def gen_b2(a):
    SH, SU, SO = 16, 20, 24
    srd(a, SH, 10, 11, 4*MB); srd(a, SU, 14, 15, 4*MB, add=WS_KVT); srd(a, SO, 14, 15, 4*MB, add=WS_TT)
    a.e("s_lshl_b32 s28, s2, 2", "s_add_u32 s28, s28, s3",
        "s_lshl_b32 s29, s28, 12",
        f"s_mul_i32 s30, s3, {LB_STRIDE}")
    a.e("s_and_b32 s31, s28, 0xfffffffe", "s_lshl_b32 s31, s31, 1", "s_load_dword s32, s[12:13], s31")
    LN16, B_, G_, VA, VB, VE, VST, T = 2, 3, 4, 5, 9, 10, 11, 12
    a.e(f"v_lshlrev_b32 v{LN16}, 4, v1")
    a.e("s_add_u32 s33, s30, 32", "s_mov_b32 m0, s33")
    for ch in range(4):
        a.e(f"buffer_load_dwordx4 v{LN16}, s[{SH}:{SH+3}], s29 offen offset:{1024*ch} lds")
    a.e("s_add_u32 s33, s30, 4192", "s_add_u32 s34, s29, 2", "s_mov_b32 m0, s33")
    for ch in range(4):
        a.e(f"buffer_load_dwordx4 v{LN16}, s[{SH}:{SH+3}], s34 offen offset:{1024*ch} lds")
    a.e("s_add_u32 s33, s30, 8800", "s_mov_b32 m0, s33")
    for ch in range(4):
        a.e(f"buffer_load_dwordx4 v{LN16}, s[{SU}:{SU+3}], s29 offen offset:{1024*ch} lds")
    a.e(f"v_mov_b32 v{T}, 0x7ffffff0", f"v_mov_b32 v{T+1}, s29", "v_cmp_eq_u32 vcc, 15, v1",
        f"v_cndmask_b32 v{T}, v{T}, v{T+1}, vcc",
        f"buffer_load_short_d16_hi v{T+2}, v{T}, s[{SH}:{SH+3}], 0 offen")
    a.e(f"v_lshlrev_b32 v{T}, 2, v1",
        f"v_add_u32 v{T+1}, {4160-32}, v{T}", "v_cmp_le_u32 vcc, 8, v1", f"v_cndmask_b32 v{T+3}, v{T}, v{T+1}, vcc",
        f"v_add_u32 v{T+1}, 8288, v{T}", "v_cmp_le_u32 vcc, 16, v1", f"v_cndmask_b32 v{T+3}, v{T+3}, v{T+1}, vcc",
        f"v_add_u32 v{T+3}, s30, v{T+3}")
    a.e(f"v_lshlrev_b32 v{T}, 3, v1", f"v_add_u32 v{T}, s30, v{T}", "v_mov_b32 v14, 0", "v_mov_b32 v15, 0")
    a.lines = a.lines[:-2]
    a.e("v_mov_b32 v16, 0", "v_mov_b32 v17, 0", f"ds_write_b64 v{T}, v[16:17] offset:8288")
    a.e(f"v_and_b32 v{B_}, 15, v1", f"v_lshrrev_b32 v{G_}, 4, v1")
    a.e(f"v_and_b32 v{VA}, 1, v{B_}", f"v_xor_b32 v{VA}, 1, v{VA}", f"v_mul_u32_u24 v{VA}, 4160, v{VA}",
        f"v_add_u32 v{VA+1}, 1, v{B_}", f"v_lshrrev_b32 v{VA+1}, 1, v{VA+1}", f"v_lshl_add_u32 v{VA}, v{VA+1}, 2, v{VA}",
        f"v_lshlrev_b32 v{VA+1}, 4, v{G_}", f"v_sub_u32 v{VA}, v{VA}, v{VA+1}",
        "s_add_u32 s33, s30, 16", f"v_add_u32 v{VA}, s33, v{VA}")
    for pp in range(1, 4):
        a.e(f"v_add_u32 v{VA+pp}, {1024*pp}, v{VA}")
    a.e(f"v_lshlrev_b32 v{VB}, 5, v{B_}", f"v_lshl_add_u32 v{VB}, v{G_}, 4, v{VB}",
        f"s_add_u32 s33, s30, {8800-480}", f"v_add_u32 v{VB}, s33, v{VB}")
    a.e(f"v_lshrrev_b32 v{VE}, 1, v{G_}", f"v_lshlrev_b32 v{VE}, 4, v{VE}", f"v_lshl_add_u32 v{VE}, v{B_}, 5, v{VE}",
        f"v_and_b32 v18, 1, v{G_}", f"v_xor_b32 v18, 1, v18", f"v_lshl_add_u32 v{VE}, v18, 3, v{VE}",
        "s_add_u32 s33, s30, 8800", f"v_add_u32 v{VE}, s33, v{VE}")
    a.e(f"v_lshlrev_b32 v{VST}, 5, v{B_}", f"v_lshl_add_u32 v{VST}, v{G_}, 3, v{VST}", f"v_add_u32 v{VST}, s29, v{VST}")
    a.e("s_waitcnt lgkmcnt(0)",
        "s_and_b32 s33, s28, 1", "s_lshl_b32 s34, s32, 16", "s_and_b32 s35, s32, 0xffff0000",
        "s_cmp_eq_u32 s33, 1", "s_cselect_b32 s36, s35, s34")
    a.e("s_waitcnt vmcnt(0)", f"ds_write_b32 v{T+3}, v{T+2}", "s_waitcnt lgkmcnt(0)")
    ACC = 20
    SETS = [(52, 84), (116, 148)]
    def reads(rho, st):
        A, B = SETS[st]
        out = []
        for p in range(8):
            o = 8*rho + 128*(p & 1)
            out.append(f"ds_read2_b32 {v(A+4*p,2)}, v{VA+(p>>1)} offset0:{o} offset1:{o+1}")
            out.append(f"ds_read2_b32 {v(A+4*p+2,2)}, v{VA+(p>>1)} offset0:{o+2} offset1:{o+3}")
        outb = [f"ds_read_b128 {v(B+4*q,4)}, v{VB} offset:{512*q+32*(15-rho)}" for q in range(8)]
        return out[0:2] + outb + out[2:]
    rhos = list(range(1, 16, 2))
    for r in reads(rhos[0], 0): a.e(r)
    for ci, rho in enumerate(rhos):
        st = ci & 1
        A, B = SETS[st]
        nxt = reads(rhos[ci+1], st ^ 1) if ci+1 < len(rhos) else \
              [f"ds_read_b64 {v(SETS[st^1][0]+2*j,2)}, v{VE} offset:{512*j}" for j in range(8)]
        a.e("s_waitcnt lgkmcnt(0)")
        n = 0
        for p in range(8):
            for q in range(8-p):
                j = p+q
                c = "0" if (ci == 0 and p == 0) else v(ACC+4*j, 4)
                a.e(f"v_mfma_f32_16x16x32_bf16 {v(ACC+4*j,4)}, {v(A+4*p,4)}, {v(B+4*q,4)}, {c}")
                if n < len(nxt): a.e(nxt[n])
                n += 1
    KVR = SETS[0][0] if (len(rhos) & 1) == 0 else SETS[1][0]
    TM = 180
    a.e("s_mov_b32 s37, 0xffff0000", "s_waitcnt lgkmcnt(0)")
    for j in range(8):
        w0, w1 = KVR+2*j, KVR+2*j+1
        t = TM + 6*(j & 1)
        a.e(f"v_and_b32 v{t}, s37, v{w1}", f"v_lshlrev_b32 v{t+1}, 16, v{w1}",
            f"v_and_b32 v{t+2}, s37, v{w0}", f"v_lshlrev_b32 v{t+3}, 16, v{w0}")
        for r in range(4):
            a.e(f"v_fma_f32 v{t+r}, v{t+r}, s36, v{ACC+4*j+r}")
        a.e(f"v_cvt_pk_bf16_f32 v{t+4}, v{t}, v{t+1}", f"v_cvt_pk_bf16_f32 v{t+5}, v{t+2}, v{t+3}")
        a.e(f"buffer_store_dwordx2 {v(t+4,2)}, v{VST}, s[{SO}:{SO+3}], 0 offen offset:{512*j}")
    a.e("s_endpgm")

IDX, G_, VWLO, VWHI, VG, VGW, VRR, VHR, VST = 2, 3, 4, 5, 6, 7, 8, 12, 13
CRE, CIM, TWC, TWS, WR, WI, ARE, AIM, DF, GA, HA, GB, TMP = 16, 32, 48, 64, 80, 96, 112, 128, 144, 160, 164, 168, 184
W2R, W2I, SP = 200, 216, 232
def eidx(r): return (r & 3) + 8*(r >> 2)

def load_w(a, SWR, SWI, vlo, vhi, dr, di):
    for (srd_, dst) in ((SWR, dr), (SWI, di)):
        for r in range(16):
            e = eidx(r)
            if r < 8: a.e(f"buffer_load_short_d16_hi v{dst+r}, v{vlo}, s[{srd_}:{srd_+3}], 0 offen offset:{64*e}")
            else:     a.e(f"buffer_load_short_d16_hi v{dst+r}, v{vhi}, s[{srd_}:{srd_+3}], 0 offen offset:{64*(27-e)}")

def fix_w(a, dr, di, pf):
    a.e("v_cmp_eq_u32 vcc, 0, v1")
    for (r, o) in ((0, 0), (8, 2)):
        a.e(f"v_add_f32 v{TMP}, v{dr+r}, v{pf+o}", f"v_mul_f32 v{TMP}, 0.5, v{TMP}",
            f"v_sub_f32 v{TMP+1}, v{di+r}, v{pf+o+1}", f"v_mul_f32 v{TMP+1}, 0.5, v{TMP+1}",
            f"v_cndmask_b32 v{dr+r}, v{dr+r}, v{TMP}, vcc", f"v_cndmask_b32 v{di+r}, v{di+r}, v{TMP+1}, vcc")

def fft1024(a):
    for t in range(4):
        c0 = "0" if t == 0 else v(ARE, 16); c1 = "0" if t == 0 else v(AIM, 16)
        a.e(f"v_mfma_f32_32x32x16_bf16 {v(ARE,16)}, {v(DF+4*t,4)}, {v(CRE+4*t,4)}, {c0}",
            f"v_mfma_f32_32x32x16_bf16 {v(AIM,16)}, {v(DF+4*t,4)}, {v(CIM+4*t,4)}, {c1}")
    for p in range(8):
        re, im, tc, ts = ARE+2*p, AIM+2*p, TWC+2*p, TWS+2*p
        t0 = TMP+4*(p & 1); t1 = t0+2
        a.e(f"v_pk_mul_f32 {v(t0,2)}, {v(re,2)}, {v(tc,2)}",
            f"v_pk_mul_f32 {v(t1,2)}, {v(im,2)}, {v(tc,2)}",
            f"v_pk_fma_f32 {v(t0,2)}, {v(im,2)}, {v(ts,2)}, {v(t0,2)}",
            f"v_pk_fma_f32 {v(t1,2)}, {v(re,2)}, {v(ts,2)}, {v(t1,2)} neg_lo:[1,0,0] neg_hi:[1,0,0]")
        for e in range(2):
            a.e(f"v_cvt_pk_bf16_f32 v{DF+2*p+e}, v{t0+e}, v{t1+e}")
    for t in range(4):
        c0 = "0" if t == 0 else v(ARE, 16); c1 = "0" if t == 0 else v(AIM, 16)
        a.e(f"v_mfma_f32_32x32x16_bf16 {v(ARE,16)}, {v(CRE+4*t,4)}, {v(DF+4*t,4)}, {c0}",
            f"v_mfma_f32_32x32x16_bf16 {v(AIM,16)}, {v(CIM+4*t,4)}, {v(DF+4*t,4)}, {c1}")

def gen_a2(a):
    SWR, SWI, SI1, SI2 = 16, 20, 24, 28
    srd(a, SWR, 4, 5, WBYTES); srd(a, SWI, 6, 7, WBYTES); srd(a, SI1, 14, 15, 4*MB, add=WS_I1); srd(a, SI2, 14, 15, 4*MB, add=WS_I2)
    sT, sJ, sJM, sJP, sJQ = 32, 33, 34, 35, 36
    a.e(f"s_sub_u32 s{sT}, s2, 256",
        f"s_lshl_b32 s37, s3, 9", f"s_add_u32 s{sJ}, s{sT}, s37",
        f"s_mov_b32 s{sJP}, s{sT}", f"s_sub_u32 s{sJQ}, 512, s{sT}",
        f"s_cmp_lg_u32 s{sT}, 0", "s_cbranch_scc1 L_a2_reg0",
        f"s_mov_b32 s{sJQ}, 256",
        f"s_mov_b32 s37, 0x03000100", "s_lshl_b32 s38, s3, 3",
        )
    a.lines = a.lines[:-2]
    a.e("s_lshl_b32 s38, s3, 2", "s_lshr_b32 s37, 0x3120, s38", "s_and_b32 s37, s37, 15", f"s_lshl_b32 s{sJ}, s37, 8")
    a.label("L_a2_reg0")
    a.e(f"s_sub_u32 s{sJM}, 2048, s{sJ}", f"s_and_b32 s{sJM}, s{sJM}, 2047",
        f"s_mul_i32 s37, s{sJ}, 1026", f"s_mul_i32 s38, s{sJM}, 1026")
    a.e(f"v_and_b32 v{IDX}, 31, v1", f"v_lshrrev_b32 v{G_}, 5, v1")
    a.e(f"v_lshl_add_u32 v{TMP}, v{G_}, 7, v{IDX}",
        f"v_lshl_add_u32 v{VWLO}, v{TMP}, 1, s37",
        f"v_sub_u32 v{TMP}, 160, v{TMP}", f"v_lshl_add_u32 v{VWHI}, v{TMP}, 1, s38")
    a.e(f"v_lshlrev_b32 v{VG}, 12, v{G_}", f"v_lshl_add_u32 v{VG}, v{IDX}, 2, v{VG}",
        "s_lshl_b32 s39, s3, 9",
        f"s_lshl_b32 s40, s{sJP}, 13", "s_add_u32 s40, s40, s39",
        f"s_lshl_b32 s41, s{sJQ}, 13", "s_add_u32 s41, s41, s39")
    for u in range(4):
        for sl in range(2):
            for pq in range(2):
                a.e(f"buffer_load_dword v{GB+4*u+2*sl+pq}, v{VG}, s[{SI1}:{SI1+3}], s{40+pq} offen offset:{2048*sl+128*u}")
    load_w(a, SWR, SWI, VWLO, VWHI, WR, WI)
    PF = 248
    a.e(f"v_mov_b32 v{TMP}, s38", f"v_add_u32 v{TMP+1}, 1024, v{TMP}", f"v_mov_b32 v{TMP+1}, s37", f"v_add_u32 v{TMP+1}, 1024, v{TMP+1}")
    a.e(f"buffer_load_short_d16_hi v{PF}, v{TMP}, s[{SWR}:{SWR+3}], 0 offen",
        f"buffer_load_short_d16_hi v{PF+1}, v{TMP}, s[{SWI}:{SWI+3}], 0 offen",
        f"buffer_load_short_d16_hi v{PF+2}, v{TMP+1}, s[{SWR}:{SWR+3}], 0 offen",
        f"buffer_load_short_d16_hi v{PF+3}, v{TMP+1}, s[{SWI}:{SWI+3}], 0 offen")
    NW = 36
    a.e(f"s_or_b32 s42, s{sT}, s3", "s_cmp_lg_u32 s42, 0", "s_cbranch_scc1 L_a2_now2")
    a.e(f"s_mov_b32 s43, {1024*1026}",
        f"v_lshl_add_u32 v{TMP+2}, v{G_}, 7, v{IDX}",
        f"v_lshl_add_u32 v{TMP+3}, v{TMP+2}, 1, s43",
        f"v_sub_u32 v{TMP+2}, 160, v{TMP+2}", f"v_lshl_add_u32 v{TMP+2}, v{TMP+2}, 1, s43")
    load_w(a, SWR, SWI, TMP+3, TMP+2, W2R, W2I)
    a.e(f"v_mov_b32 v{TMP+4}, s43", f"v_add_u32 v{TMP+5}, 1024, v{TMP+4}")
    a.e(f"buffer_load_short_d16_hi v{SP}, v{TMP+4}, s[{SWR}:{SWR+3}], 0 offen",
        f"buffer_load_short_d16_hi v{SP+1}, v{TMP+4}, s[{SWI}:{SWI+3}], 0 offen",
        f"buffer_load_short_d16_hi v{SP+2}, v{TMP+5}, s[{SWR}:{SWR+3}], 0 offen",
        f"buffer_load_short_d16_hi v{SP+3}, v{TMP+5}, s[{SWI}:{SWI+3}], 0 offen",
        "s_waitcnt vmcnt(0)")
    a.label("L_a2_now2")
    a.c("---- constants")
    XS, XB = TMP, TMP+1
    a.e(f"v_cvt_f32_u32 v{TMP+2}, v{IDX}", f"v_cvt_f32_u32 v{TMP+3}, v{G_}", f"v_mul_f32 v{TMP+3}, 4.0, v{TMP+3}",
        f"v_mul_f32 v{XS}, {f32hex(1/32)}, v{TMP+2}", f"v_mul_f32 v{XB}, v{TMP+3}, v{XS}")
    a.e(f"v_and_b32 v{TMP+4}, 1, v{IDX}", f"v_mul_u32_u24 v{TMP+4}, 0x8000, v{TMP+4}", f"v_lshl_or_b32 v{TMP+4}, v{TMP+4}, 16, v{TMP+4}")
    for t in range(2):
        for i in range(4):
            c = float(8*t+i)
            a.e(f"v_fmamk_f32 v{TMP+5}, v{XS}, {f32hex(c)}, v{XB}" if c else f"v_mov_b32 v{TMP+5}, v{XB}")
            a.e(f"v_cos_f32 v{TMP+6}, v{TMP+5}", f"v_sin_f32 v{TMP+7}, v{TMP+5}")
            a.e(f"v_cvt_pk_bf16_f32 v{CRE+4*t+i}, v{TMP+6}, v{TMP+7}", f"v_cvt_pk_bf16_f32 v{CIM+4*t+i}, -v{TMP+7}, v{TMP+6}")
    for base in (CRE, CIM):
        for i in range(8):
            a.e(f"v_xor_b32 v{base+8+i}, v{TMP+4}, v{base+i}")
    a.e(f"v_mul_f32 v{XS}, {f32hex(1/1024)}, v{TMP+2}", f"v_mul_f32 v{XB}, v{TMP+3}, v{XS}")
    for r in range(16):
        c = float(eidx(r))
        a.e(f"v_fmamk_f32 v{TMP+5}, v{XS}, {f32hex(c)}, v{XB}" if c else f"v_mov_b32 v{TMP+5}, v{XB}")
        a.e(f"v_cos_f32 v{TWC+r}, v{TMP+5}", f"v_sin_f32 v{TWS+r}, v{TMP+5}")
    a.c("---- G / H matrices")
    LO, HI, Q, AV, XA0, XA1, E0, E1 = TMP, TMP+1, TMP+2, TMP+3, TMP+4, TMP+5, TMP+6, TMP+7
    JF = TMP+8; KEY = TMP+9; T2 = TMP+10
    GF = TMP+3
    a.e(f"v_and_b32 v{LO}, 3, v{IDX}", f"v_bfe_u32 v{HI}, v{IDX}, 2, 2")
    a.e(f"s_cmp_eq_u32 s{sT}, 0", "s_cbranch_scc1 L_a2_ghspec")
    a.e(f"v_cvt_f32_u32 v{T2}, s{sT}", f"v_cvt_f32_u32 v{JF}, v{HI}", f"v_fmamk_f32 v{JF}, v{JF}, {f32hex(512.0)}, v{T2}",
        f"v_mul_f32 v{JF}, {f32hex(1/2048)}, v{JF}",
        f"v_cvt_f32_u32 v{XA0}, v{G_}", f"v_add_f32 v{XA0}, v{XA0}, v{XA0}", f"v_add_f32 v{XA1}, 1.0, v{XA0}",
        f"v_mul_f32 v{XA0}, v{XA0}, v{JF}", f"v_mul_f32 v{XA1}, v{XA1}, v{JF}",
        f"v_lshlrev_b32 v{Q}, 3, v{LO}", f"v_lshrrev_b32 v{Q}, v{Q}, s44" if False else "s_mov_b32 s44, 0x4631914C",
        f"v_lshrrev_b32 v{Q}, v{Q}, s44",
        f"v_mov_b32 v{AV}, 0.5", f"v_cmp_gt_u32 vcc, 16, v{IDX}", f"v_cndmask_b32 v{AV}, 0, v{AV}, vcc")
    for jj2 in range(4):
        for e in range(2):
            jj = 2*jj2+e
            xa = XA1 if jj >> 2 else XA0
            a.e(f"v_bfe_u32 v{E0+e}, v{Q}, {2*(jj&3)}, 2", f"v_cvt_f32_u32 v{E0+e}, v{E0+e}",
                f"v_fmamk_f32 v{E0+e}, v{E0+e}, {f32hex(0.25)}, v{xa}", f"v_cos_f32 v{E0+e}, v{E0+e}",
                f"v_mul_f32 v{E0+e}, v{E0+e}, v{AV}")
        a.e(f"v_cvt_pk_bf16_f32 v{GA+jj2}, v{E0}, v{E1}")
    a.e(f"v_cvt_f32_u32 v{JF}, v{G_}", f"v_fmamk_f32 v{JF}, v{JF}, {f32hex(1024.0)}, v{T2}",
        f"v_add_f32 v{XA1}, {f32hex(512.0)}, v{JF}",
        f"v_cvt_f32_u32 v{KEY}, v{HI}", f"v_mul_f32 v{KEY}, {f32hex(1/2048)}, v{KEY}",
        f"v_mul_f32 v{XA0}, v{JF}, v{KEY}", f"v_mul_f32 v{XA1}, v{XA1}, v{KEY}",
        f"v_lshlrev_b32 v{Q}, 3, v{LO}", "s_mov_b32 s44, 0x6BBC611C", f"v_lshrrev_b32 v{Q}, v{Q}, s44",
        f"v_mov_b32 v{AV}, {f32hex(2.0**-21)}", f"v_cndmask_b32 v{AV}, 0, v{AV}, vcc")
    for jj2 in range(4):
        for e in range(2):
            jj = 2*jj2+e
            xa = XA1 if jj >> 2 else XA0
            a.e(f"v_bfe_u32 v{E0+e}, v{Q}, {2*(jj&3)}, 2", f"v_cvt_f32_u32 v{E0+e}, v{E0+e}",
                f"v_fmamk_f32 v{E0+e}, v{E0+e}, {f32hex(0.25)}, v{xa}", f"v_cos_f32 v{E0+e}, v{E0+e}",
                f"v_mul_f32 v{E0+e}, v{E0+e}, v{AV}")
        a.e(f"v_cvt_pk_bf16_f32 v{HA+jj2}, v{E0}, v{E1}")
    a.e("s_branch L_a2_ghdone")
    a.label("L_a2_ghspec")
    PO, PAR = TMP+11, TMP+12
    a.e(f"v_and_b32 v{PO}, 1, v{LO}", f"v_lshrrev_b32 v{PAR}, 1, v{LO}")
    a.e(f"v_lshlrev_b32 v{JF}, 2, v{HI}", "s_mov_b32 s44, 0x3120", f"v_lshrrev_b32 v{JF}, v{JF}, s44", f"v_and_b32 v{JF}, 15, v{JF}",
        f"v_lshlrev_b32 v{JF}, 8, v{JF}", f"v_lshlrev_b32 v{T2}, 10, v{PO}",
        f"v_cmp_eq_u32 vcc, 0, v{HI}", f"v_cndmask_b32 v{JF}, v{JF}, v{T2}, vcc", f"v_cndmask_b32 v{Q}, v{PO}, 0, vcc" if False else f"v_mov_b32 v{T2}, 0",
        f"v_cndmask_b32 v{Q}, v{PO}, v{T2}, vcc",
        f"v_cvt_f32_u32 v{JF}, v{JF}", f"v_mul_f32 v{JF}, {f32hex(1/2048)}, v{JF}",
        f"v_cvt_f32_u32 v{Q}, v{Q}", f"v_mul_f32 v{Q}, {f32hex(0.25)}, v{Q}",
        f"v_cvt_f32_u32 v{XA0}, v{G_}", f"v_add_f32 v{XA0}, v{XA0}, v{XA0}", f"v_add_f32 v{XA1}, 1.0, v{XA0}",
        f"v_fma_f32 v{XA0}, v{XA0}, v{JF}, v{Q}", f"v_fma_f32 v{XA1}, v{XA1}, v{JF}, v{Q}",
        f"v_cos_f32 v{XA0}, v{XA0}", f"v_cos_f32 v{XA1}, v{XA1}",
        f"v_lshrrev_b32 v{KEY}, 1, v{HI}", f"v_lshl_add_u32 v{KEY}, v{KEY}, 1, v{PAR}",
        f"v_lshrrev_b32 v{T2}, 4, v{IDX}", f"v_lshl_add_u32 v{KEY}, v{T2}, 2, v{KEY}", f"v_mov_b32 v{T2}, 0")
    for jj2 in range(4):
        for e in range(2):
            jj = 2*jj2+e
            xa = XA1 if jj >> 2 else XA0
            a.e(f"v_cmp_eq_u32 vcc, {jj&3}, v{KEY}", f"v_cndmask_b32 v{E0+e}, v{T2}, v{xa}, vcc")
        a.e(f"v_cvt_pk_bf16_f32 v{GA+jj2}, v{E0}, v{E1}")
    SAF = JF
    a.e(f"v_cvt_f32_u32 v{SAF}, v{HI}", f"v_mul_f32 v{SAF}, {f32hex(1/2048)}, v{SAF}")
    a.e(f"v_cmp_eq_u32 vcc, v{G_}, v{PAR}", f"v_mov_b32 v{T2}, 2", f"v_cndmask_b32 v{KEY}, v{T2}, v{PO}, vcc",
        f"v_cmp_gt_u32 vcc, 16, v{IDX}", f"v_cndmask_b32 v{KEY}, v{T2}, v{KEY}, vcc")
    a.e(f"v_cvt_f32_u32 v{Q}, v{PO}", f"v_mul_f32 v{Q}, 0.5, v{Q}")
    a.e(f"v_cmp_eq_u32 s[46:47], 0, v{G_}")
    for jj in range(8):
        sl, par, pi = jj >> 2, (jj >> 1) & 1, jj & 1
        e = E0 + (jj & 1)
        if sl == 0:
            j0, q0, a0 = 1024.0*pi, 0.5*pi, 2.0**-21
            j1, q1, a1 = 256.0, 0.75*pi, 2.0**-20
        else:
            j0, q0, a0 = 512.0, 0.75*pi, 2.0**-20
            j1, q1, a1 = 768.0, 0.75*pi, 2.0**-20
        def sel(dst, x0, x1):
            a.e(f"v_mov_b32 v{dst}, {f32hex(x1)}", f"v_mov_b32 v{AV}, {f32hex(x0)}", f"v_cndmask_b32 v{dst}, v{dst}, v{AV}, s[46:47]")
        sel(XA0, j0, j1); sel(XA1, q0, q1)
        a.e(f"v_add_f32 v{XA1}, v{XA1}, v{Q}", f"v_fma_f32 v{XA0}, v{XA0}, v{SAF}, v{XA1}", f"v_cos_f32 v{XA0}, v{XA0}")
        sel(XA1, a0, a1)
        a.e(f"v_mul_f32 v{XA0}, v{XA0}, v{XA1}", f"v_mov_b32 v{XA1}, 0",
            f"v_cmp_eq_u32 vcc, {par}, v{KEY}", f"v_cndmask_b32 v{e}, v{XA1}, v{XA0}, vcc")
        if jj & 1: a.e(f"v_cvt_pk_bf16_f32 v{HA+(jj>>1)}, v{E0}, v{E1}")
    a.label("L_a2_ghdone")
    a.e("s_nop 1")
    a.e(f"v_lshlrev_b32 v{VGW}, 12, v{G_}", f"v_lshl_add_u32 v{VGW}, v{IDX}, 3, v{VGW}", "s_lshl_b32 s44, s3, 10", f"v_add_u32 v{VGW}, s44, v{VGW}",
        f"v_lshlrev_b32 v{VRR}, 9, v{G_}", f"v_lshl_add_u32 v{VRR}, v{IDX}, 2, v{VRR}", "s_lshl_b32 s45, s3, 12", f"v_add_u32 v{VRR}, s45, v{VRR}")
    for t in range(1, 4): a.e(f"v_add_u32 v{VRR+t}, {1024*t}, v{VRR}")
    a.e(f"v_lshlrev_b32 v{VHR}, 13, v{G_}", f"v_lshl_add_u32 v{VHR}, v{IDX}, 3, v{VHR}", f"v_add_u32 v{VHR}, s44, v{VHR}",
        f"v_lshlrev_b32 v{VST}, 11, v{G_}", f"v_lshl_add_u32 v{VST}, v{IDX}, 2, v{VST}")
    a.c("---- G stage")
    a.e(f"s_waitcnt vmcnt({NW})")
    for rnd in range(2):
        for uu in range(2):
            u = 2*rnd+uu
            a.e(f"v_mfma_f32_32x32x16_bf16 {v(ARE if uu == 0 else AIM,16)}, {v(GA,4)}, {v(GB+4*u,4)}, 0")
        for uu in range(2):
            u = 2*rnd+uu
            D = ARE if uu == 0 else AIM
            t = TMP+4*uu
            for h in range(2):
                a.e(f"v_cvt_pk_bf16_f32 v{t}, v{D+4*h}, v{D+4*h+1}", f"v_cvt_pk_bf16_f32 v{t+1}, v{D+4*h+2}, v{D+4*h+3}",
                    f"ds_write_b64 v{VGW}, {v(t,2)} offset:{256*u+8192*h}")
                t += 2
    a.e("s_waitcnt lgkmcnt(0)", "s_barrier")
    a.c("---- forward row FFT")
    for t in range(4):
        a.e(f"ds_read2_b32 {v(DF+4*t,2)}, v{VRR+t} offset0:0 offset1:32", f"ds_read2_b32 {v(DF+4*t+2,2)}, v{VRR+t} offset0:64 offset1:96")
    a.e("s_waitcnt vmcnt(0)")
    fix_w(a, WR, WI, PF)
    a.e("s_waitcnt lgkmcnt(0)")
    fft1024(a)
    a.c("---- filter multiply")
    a.e("s_cmp_eq_u32 s42, 0", "s_cbranch_scc1 L_a2_special")
    for p in range(8):
        xr, xi, wr, wi = ARE+2*p, AIM+2*p, WR+2*p, WI+2*p
        t0 = TMP+4*(p & 1); t1 = t0+2
        n0 = " neg_lo:[1,0,0] neg_hi:[1,0,0]" if p < 4 else ""
        n1 = "" if p < 4 else " neg_lo:[1,0,0] neg_hi:[1,0,0]"
        a.e(f"v_pk_mul_f32 {v(t0,2)}, {v(xr,2)}, {v(wr,2)}", f"v_pk_mul_f32 {v(t1,2)}, {v(xi,2)}, {v(wr,2)}",
            f"v_pk_fma_f32 {v(t0,2)}, {v(xi,2)}, {v(wi,2)}, {v(t0,2)}{n0}",
            f"v_pk_fma_f32 {v(t1,2)}, {v(xr,2)}, {v(wi,2)}, {v(t1,2)}{n1}")
        for e in range(2):
            a.e(f"v_cvt_pk_bf16_f32 v{DF+2*p+e}, v{t0+e}, -v{t1+e}")
    a.label("L_a2_inv")
    a.e("s_nop 1")
    a.c("---- inverse row FFT (forward on conjugated data)")
    fft1024(a)
    for r in range(16):
        t = TMP + (r & 7)
        a.e(f"v_cvt_pk_bf16_f32 v{t}, v{ARE+r}, v{AIM+r}", f"ds_write_b32 v{VRR}, v{t} offset:{128*eidx(r)}")
    a.e("s_waitcnt lgkmcnt(0)", "s_barrier")
    a.c("---- H stage")
    for u in range(4):
        for sl in range(2):
            a.e(f"ds_read_b64 {v(GB+4*u+2*sl,2)}, v{VHR} offset:{4096*sl+256*u}")
    a.e("s_lshl_b32 s39, s3, 9",
        f"s_lshl_b32 s40, s{sJP}, 13", "s_add_u32 s40, s40, s39", "s_add_u32 s41, s40, 4096",
        f"s_lshl_b32 s46, s{sJQ}, 13", "s_add_u32 s46, s46, s39", "s_add_u32 s47, s46, 4096")
    for rnd in range(2):
        a.e(f"s_waitcnt lgkmcnt({4-4*rnd})")
        for uu in range(2):
            u = 2*rnd+uu
            a.e(f"v_mfma_f32_32x32x16_bf16 {v(ARE if uu == 0 else AIM,16)}, {v(HA,4)}, {v(GB+4*u,4)}, 0")
        for uu in range(2):
            u = 2*rnd+uu
            D = ARE if uu == 0 else AIM
            for h in range(2):
                t = TMP+4*uu+2*h
                a.e(f"v_cvt_pk_bf16_f32 v{t}, v{D+4*h}, v{D+4*h+1}", f"v_cvt_pk_bf16_f32 v{t+1}, v{D+4*h+2}, v{D+4*h+3}",
                    f"buffer_store_dword v{t}, v{VST}, s[{SI2}:{SI2+3}], s{40+h} offen offset:{128*u}",
                    f"buffer_store_dword v{t+1}, v{VST}, s[{SI2}:{SI2+3}], s{46+h} offen offset:{128*u}")
    a.e("s_endpgm")
    a.label("L_a2_special")
    SC = 16384
    fix_w(a, W2R, W2I, SP)
    VS = SP; K0 = SP+1
    a.e(f"v_lshlrev_b32 v{VS}, 9, v{G_}", f"v_lshl_add_u32 v{VS}, v{IDX}, 2, v{VS}")
    for r in range(16):
        a.e(f"ds_write_b32 v{VS}, v{ARE+r} offset:{SC+128*eidx(r)}", f"ds_write_b32 v{VS}, v{AIM+r} offset:{SC+4096+128*eidx(r)}")
    a.e(f"v_lshl_add_u32 v{K0}, v{G_}, 7, v{IDX}", f"v_sub_u32 v{K0}, 1024, v{K0}", "s_waitcnt lgkmcnt(0)")
    for r in range(16):
        ad, rr, ri, ur, ui, vr, vi, o0, o1 = [SP+2+i for i in range(9)]
        a.e(f"v_subrev_u32 v{ad}, {32*eidx(r)}, v{K0}", f"v_and_b32 v{ad}, 1023, v{ad}", f"v_lshlrev_b32 v{ad}, 2, v{ad}",
            f"ds_read_b32 v{rr}, v{ad} offset:{SC}", f"ds_read_b32 v{ri}, v{ad} offset:{SC+4096}", "s_waitcnt lgkmcnt(0)")
        pr, pi_ = ARE+r, AIM+r
        a.e(f"v_add_f32 v{ur}, v{pr}, v{rr}", f"v_sub_f32 v{ui}, v{pi_}, v{ri}",
            f"v_sub_f32 v{vr}, v{pr}, v{rr}", f"v_add_f32 v{vi}, v{pi_}, v{ri}")
        sg = "-" if r < 8 else ""
        ns = "" if r < 8 else "-"
        ar, ai, br, bi = WR+r, WI+r, W2R+r, W2I+r
        a.e(f"v_mul_f32 v{o0}, v{ur}, v{ar}", f"v_fma_f32 v{o0}, {sg}v{ui}, v{ai}, v{o0}",
            f"v_fma_f32 v{o0}, v{vr}, v{br}, v{o0}", f"v_fma_f32 v{o0}, {sg}v{vi}, v{bi}, v{o0}",
            f"v_mul_f32 v{o1}, v{ui}, v{ar}", f"v_fma_f32 v{o1}, {ns}v{ur}, v{ai}, v{o1}",
            f"v_fma_f32 v{o1}, v{vi}, v{br}, v{o1}", f"v_fma_f32 v{o1}, {ns}v{vr}, v{bi}, v{o1}",
            f"v_mul_f32 v{o0}, 0.5, v{o0}", f"v_mul_f32 v{o1}, 0.5, v{o1}",
            f"v_cvt_pk_bf16_f32 v{DF+r}, v{o0}, -v{o1}")
    a.e("s_branch L_a2_inv")

def gen_k2():
    a = Asm(); a.name = "k2"
    common_prologue(a, 512, [("wr", 4), ("wi", 6), ("ssmk", 10), ("ssmD", 12), ("ws", 14)])
    a.e("s_cmp_ge_u32 s2, 256", "s_cbranch_scc1 L_a2")
    gen_b2(a)
    a.label("L_a2")
    gen_a2(a)
    a.label("L_exit_k2")
    a.e("s_endpgm")
    return a
```

```python
from asmgen import *
from gen import srd, common_prologue, fft512_tile, tile_coords, MB, WS_I2, WS_TT

def gen_b3(a):
    SQ, ST, SO = 16, 20, 24
    srd(a, SQ, 6, 7, 4*MB); srd(a, ST, 12, 13, 4*MB, add=WS_TT); srd(a, SO, 8, 9, 8*MB)
    a.e("s_sub_u32 s34, s2, 128",
        "s_and_b32 s35, s34, 15", "s_lshr_b32 s36, s34, 4",
        "s_lshl_b32 s36, s36, 8", "s_lshl_b32 s37, s3, 5", "s_add_u32 s36, s36, s37",
        "s_lshl_b32 s35, s35, 6")
    CG, RG, S0, CH0, VQ, VT, VO = 2, 3, 4, 5, 6, 7, 8
    a.e(f"v_and_b32 v{CG}, 15, v1", f"v_lshrrev_b32 v{RG}, 4, v1",
        f"v_lshl_add_u32 v{S0}, v{RG}, 3, s36", f"v_lshl_add_u32 v{CH0}, v{CG}, 2, s35",
        f"v_lshlrev_b32 v{VQ}, 11, v{S0}", f"v_lshl_add_u32 v{VQ}, v{CH0}, 1, v{VQ}",
        f"v_lshlrev_b32 v{VT}, 12, v{CH0}", f"v_lshl_add_u32 v{VT}, v{S0}, 1, v{VT}",
        f"v_lshlrev_b32 v{VO}, 12, v{S0}", f"v_lshl_add_u32 v{VO}, v{CH0}, 1, v{VO}", f"v_add_u32 v{VO}, 2048, v{VO}")
    a.e("s_mov_b32 s38, 4096", "s_mov_b32 s39, 8192", "s_mov_b32 s40, 12288")
    for i in range(4, 8): a.e(f"s_mov_b32 s{41+i-4}, {4096*i}")
    soff = ["0", "s38", "s39", "s40", "s41", "s42", "s43", "s44"]
    TR, QR, TF, QF, PK = 16, 32, 48, 80, 88
    for ch in range(4):
        a.e(f"buffer_load_dwordx4 {v(TR+4*ch,4)}, v{VT}, s[{ST}:{ST+3}], {soff[ch]} offen")
    for i in range(8):
        a.e(f"buffer_load_dwordx2 {v(QR+2*i,2)}, v{VQ}, s[{SQ}:{SQ+3}], {soff[i>>1]} offen" + (" offset:2048" if i & 1 else ""))
    a.e("s_mov_b32 s45, 0xffff0000", "s_waitcnt vmcnt(8)")
    for ch in range(4):
        for e in range(8):
            src = TR+4*ch+(e >> 1)
            if e & 1: a.e(f"v_and_b32 v{TF+4*e+ch}, s45, v{src}")
            else:     a.e(f"v_lshlrev_b32 v{TF+4*e+ch}, 16, v{src}")
    for e in range(8):
        a.e(f"s_waitcnt vmcnt({7-e+e})") if False else None
    for e in range(8):
        a.e(f"s_waitcnt vmcnt(7)")
        qf = QF + 4*(e & 1)
        for hf in range(2):
            a.e(f"v_lshlrev_b32 v{qf+2*hf}, 16, v{QR+2*e+hf}", f"v_and_b32 v{qf+2*hf+1}, s45, v{QR+2*e+hf}")
        for hf in range(2):
            a.e(f"v_pk_mul_f32 {v(qf+2*hf,2)}, {v(qf+2*hf,2)}, {v(TF+4*e+2*hf,2)}")
        pk = PK+2*(e & 3)
        for hf in range(2):
            a.e(f"v_cvt_pk_bf16_f32 v{pk+hf}, v{qf+2*hf}, v{qf+2*hf+1}")
        a.e(f"buffer_store_dwordx2 {v(pk,2)}, v{VO}, s[{SO}:{SO+3}], {soff[e]} offen")
    a.e("s_endpgm")

def gen_k3():
    a = Asm(); a.name = "k3"
    common_prologue(a, 256, [("q", 6), ("out", 8), ("ws", 12)])
    a.e("s_cmp_ge_u32 s2, 128", "s_cbranch_scc1 L_b3")
    srd(a, 16, 12, 13, 4*MB, add=WS_I2); srd(a, 20, 8, 9, 8*MB)
    tile_coords(a, 2, 34, 35)
    fft512_tile(a, "a3", 16, 20, 3, 34, 35, 4096, 16384, True)
    a.label("L_b3")
    gen_b3(a)
    a.label("L_exit_k3")
    a.e("s_endpgm")
    return a
```

```python
import sys
import gen, gen_k2, gen_k3
k1 = gen.gen_k1(); k2 = gen_k2.gen_k2(); k3 = gen_k3.gen_k3()
txt = gen.build([("gf_k1_kernel", k1, 160, 96), ("gf_k2_kernel", k2, 256, 96), ("gf_k3_kernel", k3, 160, 96)],
                [("gf_k1_kernel", 256, 512, 32768), ("gf_k2_kernel", 512, 256, gen_k2.K2_LDS), ("gf_k3_kernel", 256, 512, 32768)])
out = sys.argv[1] if len(sys.argv) > 1 else "full.s"
open(out, "w").write(txt)
print(out, len(txt))
```

```python
import sys, math
from asmgen import *

MB = 1 << 20
WS_I1, WS_KVT, WS_I2, WS_TT = 0, 4*MB, 8*MB, 12*MB
KA = dict(x=0, wr=8, wi=16, q=24, k=32, v=40, shk=48, ssmk=56, ssmD=64, out=72, dbg=80, ws=88)

def srd(a, dst, base_lo, base_hi, nbytes, add=0):
    if add:
        a.e(f"s_add_u32 s{dst}, s{base_lo}, {add}", f"s_addc_u32 s{dst+1}, s{base_hi}, 0")
    else:
        a.e(f"s_mov_b32 s{dst}, s{base_lo}", f"s_mov_b32 s{dst+1}, s{base_hi}")
    a.e(f"s_mov_b32 s{dst+2}, {nbytes}", f"s_mov_b32 s{dst+3}, 0x00020000")

PROF = False
WS_PROF = 32*MB
def stamp(a, i, real=False):
    if not PROF: return
    a.e(f"s_memrealtime s[{76+2*i}:{77+2*i}]" if real else f"s_memtime s[{76+2*i}:{77+2*i}]", "s_waitcnt lgkmcnt(0)")
def dump_stamps(a, kidx, n, wsreg):
    if not PROF: return
    a.e(f"s_add_u32 s72, s{wsreg}, {WS_PROF + kidx*MB}", f"s_addc_u32 s73, s{wsreg+1}, 0", f"s_mov_b32 s74, {MB}", "s_mov_b32 s75, 0x00020000")
    a.e("s_lshl_b32 s70, s2, 3", "s_add_u32 s70, s70, s3", "s_lshl_b32 s70, s70, 6", "v_mov_b32 v250, s70")
    for i in range(n):
        a.e(f"v_mov_b32 v251, s{76+2*i}", f"buffer_store_dword v251, v250, s[72:75], 0 offen offset:{4*i}")
    a.e("s_waitcnt vmcnt(0)")

def header(name):
    return f""".text
.globl {name}
.p2align 8
.type {name},@function
{name}:
"""
def descriptor(name, nv, ns):
    acc = (nv + 3)//4*4
    return f""".section .rodata,"a"
.p2align 6
.amdhsa_kernel {name}
  .amdhsa_next_free_vgpr {nv}
  .amdhsa_next_free_sgpr {ns}
  .amdhsa_accum_offset {acc}
  .amdhsa_group_segment_fixed_size 0
  .amdhsa_kernarg_size 96
  .amdhsa_user_sgpr_count 2
  .amdhsa_user_sgpr_kernarg_segment_ptr 1
  .amdhsa_system_sgpr_workgroup_id_x 1
.end_amdhsa_kernel
"""

def fft512_tile(a, pfx, SIN, SOUT, s_w, s_sa, s_cb, orow, ostr, neg_im):
    S_INB, S_OUTB = 40, 41
    S_IOFF = 44
    S_OOFF = 60
    V_M, V_G, V_IN_OFF, V_OUT_OFF, V_WR, V_RD0, V_RD1, V_MM = 2, 3, 4, 5, 6, 7, 8, 9
    T = 10
    IN = 16; F16RE = 32; F16IM = 36; TWC = 40; TWS = 56; DRE = 72; DIM = 88; P = 104; TMP = 120
    F32RE = 128; F32IM = 144
    a.c("---- fft512 tile setup")
    stamp(a, 0, True); stamp(a, 1)
    a.e(f"v_and_b32 v{V_M}, 15, v1", f"v_lshrrev_b32 v{V_G}, 4, v1")
    a.e(f"s_lshl_b32 s{S_INB}, s{s_sa}, 11", f"s_lshl_b32 s42, s{s_cb}, 6", f"s_add_u32 s{S_INB}, s{S_INB}, s42",
        f"s_lshl_b32 s43, s{s_w}, 15", f"s_add_u32 s{S_INB}, s{S_INB}, s43")
    a.e(f"v_lshlrev_b32 v{V_IN_OFF}, 20, v{V_G}", f"v_lshl_add_u32 v{V_IN_OFF}, v{V_M}, 2, v{V_IN_OFF}")
    for aa in range(4):
        for i in range(4):
            a.e(f"s_add_u32 s{S_IOFF+4*aa+i}, s{S_INB}, {(32*i+aa)*8192}")
    for aa in range(4):
        for i in range(4):
            a.e(f"buffer_load_dword v{IN+4*aa+i}, v{V_IN_OFF}, s[{SIN}:{SIN+3}], s{S_IOFF+4*aa+i} offen")
    a.e(f"s_mul_i32 s{S_OUTB}, s{s_sa}, {orow}", f"s_add_u32 s{S_OUTB}, s{S_OUTB}, s42",
        f"s_mul_i32 s43, s{s_w}, {2*ostr}", f"s_add_u32 s{S_OUTB}, s{S_OUTB}, s43")
    for b in range(2):
        for h in range(2):
            for r in range(4):
                a.e(f"s_add_u32 s{S_OOFF+8*b+4*h+r}, s{S_OUTB}, {(b+256*h+16*r)*ostr}")
    a.e(f"v_mul_u32_u24 v{V_OUT_OFF}, {64*ostr}, v{V_G}" if 64*ostr < (1 << 24) else "")
    a.e(f"v_lshl_add_u32 v{V_OUT_OFF}, v{V_M}, 2, v{V_OUT_OFF}")
    a.e(f"v_and_b32 v{T}, 7, v{V_M}",
        f"v_xor_b32 v{T+1}, s{s_w}, v{T}",
        f"v_lshlrev_b32 v{V_WR}, 4, v{T+1}",
        f"v_lshl_add_u32 v{V_WR}, v{V_M}, 7, v{V_WR}",
        f"v_lshl_add_u32 v{V_WR}, v{V_G}, 13, v{V_WR}",
        f"v_xor_b32 v{T+1}, v{V_G}, v{T}",
        f"v_lshlrev_b32 v{V_RD0}, 4, v{T+1}",
        f"v_lshl_add_u32 v{V_RD0}, v{V_M}, 7, v{V_RD0}",
        f"s_lshl_b32 s43, s{s_w}, 12",
        f"v_add_u32 v{V_RD0}, s43, v{V_RD0}",
        f"v_xor_b32 v{V_RD1}, 64, v{V_RD0}")
    a.c("---- constants: F16 / F32 fragments")
    XS, XB = T, T+1
    a.e(f"v_cvt_f32_u32 v{XS}, v{V_M}", f"v_mul_f32 v{XS}, {f32hex(1/32)}, v{XS}",
        f"v_cvt_f32_u32 v{T+2}, v{V_G}", f"v_mul_f32 v{T+2}, 4.0, v{T+2}",
        f"v_mul_f32 v{XB}, v{T+2}, v{XS}")
    a.e(f"v_and_b32 v{V_MM}, 1, v{V_M}", f"v_mul_u32_u24 v{V_MM}, 0x8000, v{V_MM}",
        f"v_lshl_or_b32 v{V_MM}, v{V_MM}, 16, v{V_MM}")
    a.e("s_mov_b32 s42, 0x80008000")
    for i in range(4):
        x = TMP; cs = TMP+1; sn = TMP+2; x2 = TMP+3
        a.e(f"v_fmamk_f32 v{x}, v{XS}, {f32hex(float(i))}, v{XB}" if i else f"v_mov_b32 v{x}, v{XB}")
        a.e(f"v_add_f32 v{x2}, v{x}, v{x}")
        a.e(f"v_cos_f32 v{cs}, v{x}", f"v_sin_f32 v{sn}, v{x}")
        a.e(f"v_cvt_pk_bf16_f32 v{F32RE+i}, v{cs}, v{sn}", f"v_cvt_pk_bf16_f32 v{F32IM+i}, -v{sn}, v{cs}")
        a.e(f"v_cos_f32 v{cs}, v{x2}", f"v_sin_f32 v{sn}, v{x2}")
        a.e(f"v_cvt_pk_bf16_f32 v{F16RE+i}, v{cs}, v{sn}", f"v_cvt_pk_bf16_f32 v{F16IM+i}, -v{sn}, v{cs}")
    for base in (F32RE, F32IM):
        for i in range(4):
            a.e(f"v_xor_b32 v{base+4+i}, v{V_MM}, v{base+i}")
        for t in range(2):
            for i in range(4):
                src = base+4*t+i
                if i & 1: a.e(f"v_xor_b32 v{base+8+4*t+i}, s42, v{src}")
                else:     a.e(f"v_mov_b32 v{base+8+4*t+i}, v{src}")
    a.c("---- twiddles w512^(n0*k1), n0=4w+a, k1=4g+r")
    a.e(f"v_cvt_f32_u32 v{TMP}, s{s_w}", f"v_mul_f32 v{TMP}, {f32hex(4/512)}, v{TMP}")
    for r in range(4):
        a.e(f"v_add_f32 v{TMP+4+r}, {f32hex(float(r)) if r else 0}, v{T+2}")
    for aa in range(4):
        a.e(f"v_add_f32 v{TMP+1}, {f32hex(aa/512) if aa else 0}, v{TMP}")
        for r in range(4):
            a.e(f"v_mul_f32 v{TMP+2}, v{TMP+1}, v{TMP+4+r}",
                f"v_cos_f32 v{TWC+4*aa+r}, v{TMP+2}", f"v_sin_f32 v{TWS+4*aa+r}, v{TMP+2}")
    a.c("---- stage 1")
    stamp(a, 2)
    for aa in range(4):
        a.e(f"s_waitcnt vmcnt({12-4*aa})")
        a.e(f"v_mfma_f32_16x16x32_bf16 {v(DRE+4*aa,4)}, {v(F16RE,4)}, {v(IN+4*aa,4)}, 0",
            f"v_mfma_f32_16x16x32_bf16 {v(DIM+4*aa,4)}, {v(F16IM,4)}, {v(IN+4*aa,4)}, 0")
    stamp(a, 3)
    for aa in range(4):
        for p in range(2):
            re, im = DRE+4*aa+2*p, DIM+4*aa+2*p
            tc, ts = TWC+4*aa+2*p, TWS+4*aa+2*p
            t0, t1 = TMP+4*(p), TMP+4*(p)+2
            a.e(f"v_pk_mul_f32 {v(t0,2)}, {v(re,2)}, {v(tc,2)}",
                f"v_pk_mul_f32 {v(t1,2)}, {v(im,2)}, {v(tc,2)}",
                f"v_pk_fma_f32 {v(t0,2)}, {v(im,2)}, {v(ts,2)}, {v(t0,2)}",
                f"v_pk_fma_f32 {v(t1,2)}, {v(re,2)}, {v(ts,2)}, {v(t1,2)} neg_lo:[1,0,0] neg_hi:[1,0,0]")
            for e in range(2):
                r = 2*p+e
                a.e(f"v_cvt_pk_bf16_f32 v{P+4*r+aa}, v{t0+e}, v{t1+e}")
    for r in range(4):
        a.e(f"ds_write_b128 v{V_WR}, {v(P+4*r,4)} offset:{r*2048}")
    a.e("s_waitcnt lgkmcnt(0)", "s_barrier")
    stamp(a, 4)
    a.c("---- stage 2")
    for b in range(2):
        a.e(f"ds_read_b128 {v(IN+8*b,4)}, v{V_RD0} offset:{b*2048}",
            f"ds_read_b128 {v(IN+8*b+4,4)}, v{V_RD1} offset:{b*2048}")
    for b in range(2):
        a.e(f"s_waitcnt lgkmcnt({2-2*b})")
        for h in range(2):
            for (D_, F_) in ((DRE, F32RE), (DIM, F32IM)):
                d = D_+8*b+4*h
                a.e(f"v_mfma_f32_16x16x32_bf16 {v(d,4)}, {v(F_+8*h,4)}, {v(IN+8*b,4)}, 0")
        for h in range(2):
            for (D_, F_) in ((DRE, F32RE), (DIM, F32IM)):
                d = D_+8*b+4*h
                a.e(f"v_mfma_f32_16x16x32_bf16 {v(d,4)}, {v(F_+8*h+4,4)}, {v(IN+8*b+4,4)}, {v(d,4)}")
    for b in range(2):
        for h in range(2):
            for r in range(4):
                idx = 8*b+4*h+r
                sg = "-" if neg_im else ""
                a.e(f"v_cvt_pk_bf16_f32 v{P+idx}, v{DRE+idx}, {sg}v{DIM+idx}")
                a.e(f"buffer_store_dword v{P+idx}, v{V_OUT_OFF}, s[{SOUT}:{SOUT+3}], s{S_OOFF+idx} offen")
    if PROF:
        stamp(a, 5); a.e("s_waitcnt vmcnt(0)"); stamp(a, 6); stamp(a, 7, True); dump_stamps(a, a.kidx, 8, a.wsreg)
    a.e("s_endpgm")

def tile_coords(a, s_id, s_sa, s_cb):
    a.e(f"s_lshr_b32 s30, s{s_id}, 3", f"s_and_b32 s31, s{s_id}, 7",
        f"s_lshr_b32 s{s_sa}, s30, 2",
        f"s_bfe_u32 s32, s30, 0x10001",
        f"s_lshl_b32 s32, s32, 3", f"s_add_u32 s32, s32, s31", f"s_lshl_b32 s32, s32, 1",
        f"s_and_b32 s33, s30, 1", f"s_add_u32 s{s_cb}, s32, s33")

def common_prologue(a, nwg, ptrs):
    a.e(f"s_cmp_ge_u32 s2, {nwg}", "s_cbranch_scc1 L_exit_%s" % a.name)
    for n, r in ptrs:
        a.e(f"s_load_dwordx2 s[{r}:{r+1}], s[0:1], {KA[n]}")
    a.e("v_lshrrev_b32 v1, 6, v0", "v_readfirstlane_b32 s3, v1", "v_and_b32 v1, 63, v0", "s_waitcnt lgkmcnt(0)")

def gen_b1(a):
    SK, SV, SSH, SO = 16, 20, 24, 28
    stamp(a, 0, True); stamp(a, 1)
    srd(a, SK, 6, 7, 4*MB); srd(a, SV, 8, 9, 4*MB); srd(a, SSH, 10, 11, 8192); srd(a, SO, 12, 13, 4*MB, add=WS_KVT)
    a.e("s_sub_u32 s34, s2, 128",
        "s_and_b32 s35, s34, 15",
        "s_lshr_b32 s36, s34, 4",
        "s_lshl_b32 s36, s36, 8", "s_lshl_b32 s37, s3, 5", "s_add_u32 s36, s36, s37",
        "s_lshl_b32 s35, s35, 6")
    CG, RG, S0, CH0, VOFF, VH, VST, VSH = 2, 3, 4, 5, 6, 7, 8, 9
    a.e(f"v_and_b32 v{CG}, 15, v1", f"v_lshrrev_b32 v{RG}, 4, v1",
        f"v_lshl_add_u32 v{S0}, v{RG}, 3, s36",
        f"v_lshl_add_u32 v{CH0}, v{CG}, 2, s35",
        f"v_lshlrev_b32 v{VOFF}, 11, v{S0}", f"v_lshl_add_u32 v{VOFF}, v{CH0}, 1, v{VOFF}",
        f"v_subrev_u32 v{VH}, 6144, v{VOFF}",
        f"v_lshlrev_b32 v{VST}, 12, v{CH0}", f"v_lshl_add_u32 v{VST}, v{S0}, 1, v{VST}",
        f"v_lshlrev_b32 v{VSH}, 3, v{CH0}")
    a.e("s_mov_b32 s38, 4096", "s_mov_b32 s39, 8192", "s_mov_b32 s40, 12288")
    soff = ["0", "s38", "s39", "s40"]
    KR = 16
    VR = 38
    SHR = 54
    KF = 64
    SH = 108
    KV = 124
    TMP = 156
    PK = 16
    a.e(f"buffer_load_dwordx4 {v(SHR,4)}, v{VSH}, s[{SSH}:{SSH+3}], 0 offen",
        f"buffer_load_dwordx4 {v(SHR+4,4)}, v{VSH}, s[{SSH}:{SSH+3}], 0 offen offset:16")
    for i in range(3):
        a.e(f"buffer_load_dwordx2 {v(KR+2*i,2)}, v{VH}, s[{SK}:{SK+3}], {soff[i>>1]} offen" + (" offset:2048" if i & 1 else ""))
    for i in range(8):
        a.e(f"buffer_load_dwordx2 {v(KR+6+2*i,2)}, v{VOFF}, s[{SK}:{SK+3}], {soff[i>>1]} offen" + (" offset:2048" if i & 1 else ""))
    for i in range(8):
        a.e(f"buffer_load_dwordx2 {v(VR+2*i,2)}, v{VOFF}, s[{SV}:{SV+3}], {soff[i>>1]} offen" + (" offset:2048" if i & 1 else ""))
    stamp(a, 2)
    a.e("s_mov_b32 s41, 0xffff0000")
    a.e("s_waitcnt vmcnt(19)")
    for ch in range(4):
        for j in range(4):
            src = SHR + 2*ch + (j >> 1)
            if j & 1: a.e(f"v_and_b32 v{SH+4*j+ch}, s41, v{src}")
            else:     a.e(f"v_lshlrev_b32 v{SH+4*j+ch}, 16, v{src}")
    for i in range(11):
        a.e(f"s_waitcnt vmcnt({18-i})")
        for hf in range(2):
            a.e(f"v_lshlrev_b32 v{KF+4*i+2*hf}, 16, v{KR+2*i+hf}", f"v_and_b32 v{KF+4*i+2*hf+1}, s41, v{KR+2*i+hf}")
    for i in range(8):
        a.e(f"s_waitcnt vmcnt({7-i})")
        for hf in range(2):
            a.e(f"v_lshlrev_b32 v{TMP+2*hf}, 16, v{VR+2*i+hf}", f"v_and_b32 v{TMP+2*hf+1}, s41, v{VR+2*i+hf}")
        for hf in range(2):
            acc = KV+4*i+2*hf
            a.e(f"v_pk_mul_f32 {v(acc,2)}, {v(KF+4*(i+3)+2*hf,2)}, {v(SH+2*hf,2)}")
            for j in range(1, 4):
                a.e(f"v_pk_fma_f32 {v(acc,2)}, {v(KF+4*(i+3-j)+2*hf,2)}, {v(SH+4*j+2*hf,2)}, {v(acc,2)}")
            a.e(f"v_pk_mul_f32 {v(acc,2)}, {v(acc,2)}, {v(TMP+2*hf,2)}")
    stamp(a, 3); stamp(a, 4)
    for ch in range(4):
        for m in range(4):
            a.e(f"v_cvt_pk_bf16_f32 v{PK+4*ch+m}, v{KV+4*(7-2*m)+ch}, v{KV+4*(6-2*m)+ch}")
        a.e(f"buffer_store_dwordx4 {v(PK+4*ch,4)}, v{VST}, s[{SO}:{SO+3}], {soff[ch]} offen")
    if PROF:
        stamp(a, 5); a.e("s_waitcnt vmcnt(0)"); stamp(a, 6); stamp(a, 7, True); dump_stamps(a, a.kidx, 8, a.wsreg)
    a.e("s_endpgm")

def gen_k1():
    a = Asm(); a.name = "k1"; a.kidx = 0; a.wsreg = 12
    common_prologue(a, 256, [("x", 4), ("k", 6), ("v", 8), ("shk", 10), ("ws", 12)])
    a.e("s_cmp_ge_u32 s2, 128", "s_cbranch_scc1 L_b1")
    srd(a, 16, 4, 5, 4*MB); srd(a, 20, 12, 13, 4*MB, add=WS_I1)
    tile_coords(a, 2, 34, 35)
    fft512_tile(a, "a1", 16, 20, 3, 34, 35, 2048, 8192, False)
    a.label("L_b1")
    gen_b1(a)
    a.label("L_exit_k1")
    a.e("s_endpgm")
    return a

def build(kernels, launches):
    s = ""
    s += open("concat_heads__spectral_gfnet__ssm_conv_h3__prompt.s.ref").read().split("; Override")[0]
    for (name, grid, block, lds) in launches:
        s += f"; @launch kernel={name} grid=({grid},1,1) block=({block},1,1) lds={lds}\n"
    s += '.amdgcn_target "amdgcn-amd-amdhsa--gfx950"\n'
    for name, a, nv, ns in kernels:
        s += header(name) + a.text()
    for name, a, nv, ns in kernels:
        s += descriptor(name, nv, ns)
    return s

if __name__ == "__main__":
    k1 = gen_k1()
    txt = build([("gf_k1_kernel", k1, 160, 96)], [("gf_k1_kernel", 256, 512, 32768)])
    open("k1_test.s", "w").write(txt)
    print(len(txt))
```

```python
import sys
from asmgen import *
import gen
from gen import srd, MB, WS_I1, WS_KVT, WS_I2, WS_TT, KA

def stamp(a, i, real=False):
    if not gen.PROF: return
    a.e('s_memrealtime s[96:97]' if real else 's_memtime s[96:97]', 's_waitcnt lgkmcnt(0)', f'v_writelane_b32 v247, s96, {i}')

WBYTES = 2048*513*2
LB_STRIDE = 12896
LDS_BYTES = 4*LB_STRIDE
SPIN_LIMIT = 400000
OPT = dict(prioA=0, prioB=0, sleep=0)

P_X, P_WR, P_WI, P_Q, P_K, P_V, P_SHK, P_SSMK, P_SSMD, P_OUT, P_DBG, P_WS = 4, 6, 8, 10, 12, 14, 16, 18, 20, 22, 24, 26
S_DBG = 28
def eidx(r): return (r & 3) + 8*(r >> 2)

_lbl = [0]
def newlbl(p):
    _lbl[0] += 1
    return f"L_{p}_{_lbl[0]}"

WS_SYNC = 20*MB
S_SYN = 28
S_TGT = 101
SY_EA, SY_EB, SY_A1, SY_A2, SY_B1, SY_B2 = 0, 128, 4096, 4096+16384, 4096+32768, 4096+49152
def signal(a, s_off, vt, nafter=0):
    L = newlbl("sig")
    a.e(f"s_waitcnt vmcnt({nafter})", "s_barrier", "s_cmp_lg_u32 s3, 0", f"s_cbranch_scc1 {L}",
        f"v_mov_b32 v{vt}, s{s_off}", f"v_mov_b32 v{vt+1}, s{S_TGT}", "s_mov_b64 exec, 1",
        f"buffer_store_dword v{vt+1}, v{vt}, s[{S_SYN}:{S_SYN+3}], 0 offen sc1", "s_mov_b64 exec, -1")
    a.label(L)

def wait_flags(a, vaddr, nload, vt, s_cnt, pre_barrier=None):
    L = newlbl("poll"); Ls = newlbl("pdone")
    a.e("s_cmp_lg_u32 s3, 0", f"s_cbranch_scc1 {Ls}", f"s_mov_b32 s{s_cnt}, 0")
    a.label(L)
    offs = ["0", "s98", "s99", "s100"]
    for i in range(nload):
        a.e(f"buffer_load_dword v{vt+i}, v{vaddr}, s[{S_SYN}:{S_SYN+3}], {offs[i]} offen sc1")
    a.e(f"s_add_u32 s{s_cnt}, s{s_cnt}, 1", "s_waitcnt vmcnt(0)")
    for i in range(nload):
        a.e(f"v_xor_b32 v{vt+i}, s{S_TGT}, v{vt+i}")
    for i in range(1, nload):
        a.e(f"v_or_b32 v{vt}, v{vt}, v{vt+i}")
    a.e(f"v_cmp_ne_u32 vcc, 0, v{vt}", f"s_cbranch_vccz {Ls}")
    if OPT["sleep"]: a.e(f"s_sleep {OPT['sleep']}")
    a.e(f"s_cmp_lt_u32 s{s_cnt}, {SPIN_LIMIT}", f"s_cbranch_scc1 {L}")
    a.label(Ls)
    if pre_barrier: a.e(pre_barrier)
    a.e("s_barrier")

def bump(a, s_off, vt):
    a.e(f"v_mov_b32 v{vt}, s{s_off}", f"v_mov_b32 v{vt+1}, s{S_TGT}", "s_mov_b64 exec, 1",
        f"buffer_store_dword v{vt+1}, v{vt}, s[{S_SYN}:{S_SYN+3}], 0 offen sc1", "s_mov_b64 exec, -1")

F_M, F_G, F_IN0, F_IN1, F_OUTOFF, F_WR, F_RD0, F_RD1, F_MM = 2, 3, 4, 5, 6, 7, 8, 9, 10
F_T = 11
F_IN, F16RE, F16IM, F_TWC, F_TWS, F_DRE, F_DIM, F_P, F_TMP, F32RE, F32IM = 16, 48, 52, 56, 88, 120, 136, 152, 168, 176, 192
SI_OFF, SO_OFF = 52, 68
SO_LIST = [68, 69, 70, 71, 76, 77, 78, 79]

def fft512_addr(a, s_sa, s_cb):
    a.e(f"v_and_b32 v{F_M}, 15, v1", f"v_lshrrev_b32 v{F_G}, 4, v1")
    a.e(f"v_lshlrev_b32 v{F_IN0}, 20, v{F_G}", f"v_lshl_add_u32 v{F_IN0}, v{F_M}, 2, v{F_IN0}", f"v_add_u32 v{F_IN1}, {4*8192}, v{F_IN0}")
    a.e(f"s_lshl_b32 s48, s{s_sa}, 11", f"s_lshl_b32 s49, s{s_cb}, 6", "s_add_u32 s48, s48, s49",
        "s_lshl_b32 s50, s3, 16", "s_add_u32 s48, s48, s50")
    for aa in range(4):
        for i in range(4):
            a.e(f"s_add_u32 s{SI_OFF+4*aa+i}, s48, {(32*i+aa)*8192}")

def fft512_loads(a, SIN, mod=""):
    for hh in range(2):
        for aa in range(4):
            for i in range(4):
                a.e(f"buffer_load_dword v{F_IN+16*hh+4*aa+i}, v{F_IN0+hh}, s[{SIN}:{SIN+3}], s{SI_OFF+4*aa+i} offen {mod}")

def fft512_addr2(a, s_sa, s_cb, orow, ostr):
    a.e(f"s_mov_b32 s51, {16*ostr}", f"v_mul_lo_u32 v{F_OUTOFF}, v{F_M}, s51", f"v_lshl_add_u32 v{F_OUTOFF}, v{F_G}, 4, v{F_OUTOFF}")
    a.e(f"s_mul_i32 s48, s{s_sa}, {orow}", f"s_lshl_b32 s49, s{s_cb}, 6", "s_add_u32 s48, s48, s49",
        f"s_mul_i32 s50, s3, {4*ostr}", "s_add_u32 s48, s48, s50")
    for b in range(4):
        for h in range(2):
            a.e(f"s_add_u32 s{SO_LIST[2*b+h]}, s48, {(b+256*h)*ostr}")
    a.e(f"v_and_b32 v{F_T}, 7, v{F_M}", "s_lshl_b32 s50, s3, 1", f"v_xor_b32 v{F_T+1}, s50, v{F_T}",
        f"v_lshlrev_b32 v{F_WR}, 4, v{F_T+1}", f"v_lshl_add_u32 v{F_WR}, v{F_M}, 7, v{F_WR}",
        f"v_lshl_add_u32 v{F_WR}, v{F_G}, 13, v{F_WR}")
    a.e(f"v_xor_b32 v{F_T+1}, v{F_G}, v{F_T}", f"v_lshlrev_b32 v{F_RD0}, 4, v{F_T+1}",
        f"v_lshl_add_u32 v{F_RD0}, v{F_M}, 7, v{F_RD0}", "s_lshl_b32 s50, s3, 13",
        f"v_add_u32 v{F_RD0}, s50, v{F_RD0}", f"v_xor_b32 v{F_RD1}, 64, v{F_RD0}")

def fft512_consts(a):
    T, TMP = F_T, F_TMP
    XS, XB = T, T+1
    a.e(f"v_cvt_f32_u32 v{XS}, v{F_M}", f"v_mul_f32 v{XS}, {f32hex(1/32)}, v{XS}",
        f"v_cvt_f32_u32 v{T+2}, v{F_G}", f"v_mul_f32 v{T+2}, 4.0, v{T+2}",
        f"v_mul_f32 v{XB}, v{T+2}, v{XS}")
    a.e(f"v_and_b32 v{F_MM}, 1, v{F_M}", f"v_mul_u32_u24 v{F_MM}, 0x8000, v{F_MM}",
        f"v_lshl_or_b32 v{F_MM}, v{F_MM}, 16, v{F_MM}", "s_mov_b32 s50, 0x80008000")
    for i in range(4):
        x = TMP; cs = TMP+1; sn = TMP+2; x2 = TMP+3; cs2 = TMP+4; sn2 = TMP+5
        a.e(f"v_fmamk_f32 v{x}, v{XS}, {f32hex(float(i))}, v{XB}" if i else f"v_mov_b32 v{x}, v{XB}")
        a.e(f"v_add_f32 v{x2}, v{x}, v{x}")
        a.e(f"v_cos_f32 v{cs}, v{x}", f"v_sin_f32 v{sn}, v{x}", f"v_cos_f32 v{cs2}, v{x2}", f"v_sin_f32 v{sn2}, v{x2}")
        a.e(f"v_cvt_pk_bf16_f32 v{F32RE+i}, v{cs}, v{sn}", f"v_cvt_pk_bf16_f32 v{F32IM+i}, -v{sn}, v{cs}",
            f"v_cvt_pk_bf16_f32 v{F16RE+i}, v{cs2}, v{sn2}", f"v_cvt_pk_bf16_f32 v{F16IM+i}, -v{sn2}, v{cs2}")
    for base in (F32RE, F32IM):
        for i in range(4):
            a.e(f"v_xor_b32 v{base+4+i}, v{F_MM}, v{base+i}")
        for t in range(2):
            for i in range(4):
                src = base+4*t+i
                if i & 1: a.e(f"v_xor_b32 v{base+8+4*t+i}, s50, v{src}")
                else:     a.e(f"v_mov_b32 v{base+8+4*t+i}, v{src}")
    a.e(f"v_cvt_f32_u32 v{TMP}, s3", f"v_mul_f32 v{TMP}, {f32hex(8/512)}, v{TMP}")
    for r in range(4):
        a.e(f"v_add_f32 v{TMP+4+r}, {f32hex(float(r)) if r else 0}, v{T+2}")
    for aa in range(8):
        a.e(f"v_add_f32 v{TMP+1}, {f32hex(aa/512) if aa else 0}, v{TMP}")
        for r in range(4):
            a.e(f"v_mul_f32 v{T+3+(r&1)}, v{TMP+1}, v{TMP+4+r}",
                f"v_cos_f32 v{F_TWC+4*aa+r}, v{T+3+(r&1)}", f"v_sin_f32 v{F_TWS+4*aa+r}, v{T+3+(r&1)}")

def fft512_compute(a, SOUT, neg_im, nafter, stmod, st0):
    TMP = F_TMP
    stamp(a, st0)
    for hh in range(2):
        for aa in range(4):
            a.e(f"s_waitcnt vmcnt({28-16*hh-4*aa+nafter})")
            a.e(f"v_mfma_f32_16x16x32_bf16 {v(F_DRE+4*aa,4)}, {v(F16RE,4)}, {v(F_IN+16*hh+4*aa,4)}, 0",
                f"v_mfma_f32_16x16x32_bf16 {v(F_DIM+4*aa,4)}, {v(F16IM,4)}, {v(F_IN+16*hh+4*aa,4)}, 0")
        if hh == 1: stamp(a, st0+1)
        for aa in range(4):
            for p in range(2):
                re, im = F_DRE+4*aa+2*p, F_DIM+4*aa+2*p
                tc, ts = F_TWC+16*hh+4*aa+2*p, F_TWS+16*hh+4*aa+2*p
                t0, t1 = TMP+4*p, TMP+4*p+2
                a.e(f"v_pk_mul_f32 {v(t0,2)}, {v(re,2)}, {v(tc,2)}",
                    f"v_pk_mul_f32 {v(t1,2)}, {v(im,2)}, {v(tc,2)}",
                    f"v_pk_fma_f32 {v(t0,2)}, {v(im,2)}, {v(ts,2)}, {v(t0,2)}",
                    f"v_pk_fma_f32 {v(t1,2)}, {v(re,2)}, {v(ts,2)}, {v(t1,2)} neg_lo:[1,0,0] neg_hi:[1,0,0]")
                for e in range(2):
                    r = 2*p+e
                    a.e(f"v_cvt_pk_bf16_f32 v{F_P+4*r+aa}, v{t0+e}, v{t1+e}")
        if hh == 1: a.e(f"v_xor_b32 v{F_WR}, 16, v{F_WR}")
        for r in range(4):
            a.e(f"ds_write_b128 v{F_WR}, {v(F_P+4*r,4)} offset:{r*2048}")
    a.e("s_waitcnt lgkmcnt(0)", "s_barrier")
    for b in range(4):
        a.e(f"ds_read_b128 {v(F_IN+8*b,4)}, v{F_RD0} offset:{b*2048}",
            f"ds_read_b128 {v(F_IN+8*b+4,4)}, v{F_RD1} offset:{b*2048}")
    sg = "-" if neg_im else ""
    for bb in range(2):
        D0 = [F_DRE, F_DIM] if bb == 0 else [F_TWC, F_TWC+16]
        for bl in range(2):
            b = 2*bb+bl
            a.e(f"s_waitcnt lgkmcnt({6-2*b})")
            for t in range(2):
                for h in range(2):
                    for (D_, F_) in ((D0[0], F32RE), (D0[1], F32IM)):
                        d = D_+8*bl+4*h
                        c = "0" if t == 0 else v(d, 4)
                        a.e(f"v_mfma_f32_16x16x32_bf16 {v(d,4)}, {v(F_IN+8*b+4*t,4)}, {v(F_+8*h+4*t,4)}, {c}")
    for bb in range(2):
        D0 = [F_DRE, F_DIM] if bb == 0 else [F_TWC, F_TWC+16]
        PB = F_P if bb == 0 else F_TWS
        for bl in range(2):
            b = 2*bb+bl
            for h in range(2):
                idx = 8*bl+4*h
                for r in range(4):
                    a.e(f"v_cvt_pk_bf16_f32 v{PB+idx+r}, v{D0[0]+idx+r}, {sg}v{D0[1]+idx+r}")
                a.e(f"buffer_store_dwordx4 {v(PB+idx,4)}, v{F_OUTOFF}, s[{SOUT}:{SOUT+3}], s{SO_LIST[2*b+h]} offen {stmod}")

IDX, G_, VG, VGW, VRR, VHR, VST, VW = 2, 3, 6, 7, 8, 12, 13, 14
CRE, CIM, TWC, TWS, WR, WI, ARE, AIM, DF, GA, HRE, HIM, GB, TMP = 16, 32, 48, 64, 80, 96, 112, 128, 144, 160, 164, 168, 172, 188
W2R, W2I, SP, PF, PF2 = 204, 220, 236, 248, 252
LW = 32768; LSC = 16384; LW2 = 24576

def w_dma(a, SWR, SWI, s_rowoff, s_mirroff, s_ldsbase, vlane16):
    a.e(f"s_mov_b32 m0, s{s_ldsbase}", f"buffer_load_dwordx4 v{vlane16}, s[{SWR}:{SWR+3}], s{s_rowoff} offen lds")
    a.e(f"s_add_u32 s51, s{s_ldsbase}, 1024", "s_mov_b32 m0, s51", f"buffer_load_dwordx4 v{vlane16}, s[{SWI}:{SWI+3}], s{s_rowoff} offen lds")
    a.e(f"s_add_u32 s50, s{s_mirroff}, 2")
    a.e(f"s_add_u32 s51, s{s_ldsbase}, 2048", "s_mov_b32 m0, s51", f"buffer_load_dwordx4 v{vlane16}, s[{SWR}:{SWR+3}], s50 offen lds")
    a.e(f"s_add_u32 s51, s{s_ldsbase}, 3072", "s_mov_b32 m0, s51", f"buffer_load_dwordx4 v{vlane16}, s[{SWI}:{SWI+3}], s50 offen lds")

def pf_loads(a, SWR, SWI, s_rowoff, s_mirroff, dst, vt):
    a.e(f"v_mov_b32 v{vt}, s{s_mirroff}", f"v_mov_b32 v{vt+1}, s{s_rowoff}", f"v_add_u32 v{vt+1}, 1024, v{vt+1}")
    a.e(f"buffer_load_short_d16_hi v{dst}, v{vt}, s[{SWR}:{SWR+3}], 0 offen",
        f"buffer_load_short_d16_hi v{dst+1}, v{vt}, s[{SWI}:{SWI+3}], 0 offen",
        f"buffer_load_short_d16_hi v{dst+2}, v{vt+1}, s[{SWR}:{SWR+3}], 0 offen",
        f"buffer_load_short_d16_hi v{dst+3}, v{vt+1}, s[{SWI}:{SWI+3}], 0 offen")

def w_lds_reads(a, vlo, vhi, dr, di):
    for (dst, o) in ((dr, 0), (di, 1024)):
        for r in range(16):
            e = eidx(r)
            if r < 8: a.e(f"ds_read_u16_d16_hi v{dst+r}, v{vlo} offset:{o+64*e}")
            else:     a.e(f"ds_read_u16_d16_hi v{dst+r}, v{vhi} offset:{o+64*(27-e)}")

def fix_w(a, dr, di, pf):
    a.e("v_cmp_eq_u32 vcc, 0, v1")
    for (r, o) in ((0, 0), (8, 2)):
        a.e(f"v_add_f32 v{TMP}, v{dr+r}, v{pf+o}", f"v_mul_f32 v{TMP}, 0.5, v{TMP}",
            f"v_sub_f32 v{TMP+1}, v{di+r}, v{pf+o+1}", f"v_mul_f32 v{TMP+1}, 0.5, v{TMP+1}",
            f"v_cndmask_b32 v{dr+r}, v{dr+r}, v{TMP}, vcc", f"v_cndmask_b32 v{di+r}, v{di+r}, v{TMP+1}, vcc")

def fft1024(a):
    for t in range(4):
        c0 = "0" if t == 0 else v(ARE, 16); c1 = "0" if t == 0 else v(AIM, 16)
        a.e(f"v_mfma_f32_32x32x16_bf16 {v(ARE,16)}, {v(DF+4*t,4)}, {v(CRE+4*t,4)}, {c0}",
            f"v_mfma_f32_32x32x16_bf16 {v(AIM,16)}, {v(DF+4*t,4)}, {v(CIM+4*t,4)}, {c1}")
    for p in range(8):
        re, im, tc, ts = ARE+2*p, AIM+2*p, TWC+2*p, TWS+2*p
        t0 = TMP+4*(p & 1); t1 = t0+2
        a.e(f"v_pk_mul_f32 {v(t0,2)}, {v(re,2)}, {v(tc,2)}",
            f"v_pk_mul_f32 {v(t1,2)}, {v(im,2)}, {v(tc,2)}",
            f"v_pk_fma_f32 {v(t0,2)}, {v(im,2)}, {v(ts,2)}, {v(t0,2)}",
            f"v_pk_fma_f32 {v(t1,2)}, {v(re,2)}, {v(ts,2)}, {v(t1,2)} neg_lo:[1,0,0] neg_hi:[1,0,0]")
        for e in range(2):
            a.e(f"v_cvt_pk_bf16_f32 v{DF+2*p+e}, v{t0+e}, v{t1+e}")
    for t in range(4):
        c0 = "0" if t == 0 else v(ARE, 16); c1 = "0" if t == 0 else v(AIM, 16)
        a.e(f"v_mfma_f32_32x32x16_bf16 {v(ARE,16)}, {v(CRE+4*t,4)}, {v(DF+4*t,4)}, {c0}",
            f"v_mfma_f32_32x32x16_bf16 {v(AIM,16)}, {v(CIM+4*t,4)}, {v(DF+4*t,4)}, {c1}")

def a2_consts(a, sT):
    a.e(f"v_and_b32 v{IDX}, 31, v1", f"v_lshrrev_b32 v{G_}, 5, v1")
    XS, XB = TMP, TMP+1
    a.e(f"v_cvt_f32_u32 v{TMP+2}, v{IDX}", f"v_cvt_f32_u32 v{TMP+3}, v{G_}", f"v_mul_f32 v{TMP+3}, 4.0, v{TMP+3}",
        f"v_mul_f32 v{XS}, {f32hex(1/32)}, v{TMP+2}", f"v_mul_f32 v{XB}, v{TMP+3}, v{XS}")
    a.e(f"v_and_b32 v{TMP+4}, 1, v{IDX}", f"v_mul_u32_u24 v{TMP+4}, 0x8000, v{TMP+4}", f"v_lshl_or_b32 v{TMP+4}, v{TMP+4}, 16, v{TMP+4}")
    for t in range(2):
        for i in range(4):
            c = float(8*t+i); x = TMP+5+3*(i & 1)
            a.e(f"v_fmamk_f32 v{x}, v{XS}, {f32hex(c)}, v{XB}" if c else f"v_mov_b32 v{x}, v{XB}")
            a.e(f"v_cos_f32 v{x+1}, v{x}", f"v_sin_f32 v{x+2}, v{x}")
            a.e(f"v_cvt_pk_bf16_f32 v{CRE+4*t+i}, v{x+1}, v{x+2}", f"v_cvt_pk_bf16_f32 v{CIM+4*t+i}, -v{x+2}, v{x+1}")
    for base in (CRE, CIM):
        for i in range(8):
            a.e(f"v_xor_b32 v{base+8+i}, v{TMP+4}, v{base+i}")
    a.e(f"v_mul_f32 v{XS}, {f32hex(1/1024)}, v{TMP+2}", f"v_mul_f32 v{XB}, v{TMP+3}, v{XS}")
    for r in range(16):
        c = float(eidx(r)); x = TMP+5+(r & 1)
        a.e(f"v_fmamk_f32 v{x}, v{XS}, {f32hex(c)}, v{XB}" if c else f"v_mov_b32 v{x}, v{XB}")
        a.e(f"v_cos_f32 v{TWC+r}, v{x}", f"v_sin_f32 v{TWS+r}, v{x}")
    LO, HI, Q, AV, XA0, XA1, E0, E1 = TMP, TMP+1, TMP+2, TMP+3, TMP+4, TMP+5, TMP+6, TMP+7
    JF, KEY, T2, PO, PAR, N16, G4, CS = [TMP+8+i for i in range(8)]
    Lspec, Ldone = newlbl("ghspec"), newlbl("ghdone")
    a.e(f"v_and_b32 v{LO}, 3, v{IDX}", f"v_bfe_u32 v{HI}, v{IDX}, 2, 2")
    a.e(f"v_and_b32 v{N16}, 15, v1", f"v_lshrrev_b32 v{G4}, 4, v1")
    a.e(f"s_cmp_eq_u32 s{sT}, 0", f"s_cbranch_scc1 {Lspec}")
    a.e(f"v_cvt_f32_u32 v{T2}, s{sT}", f"v_cvt_f32_u32 v{JF}, v{HI}", f"v_fmamk_f32 v{JF}, v{JF}, {f32hex(512.0)}, v{T2}",
        f"v_mul_f32 v{JF}, {f32hex(1/2048)}, v{JF}",
        f"v_cvt_f32_u32 v{XA0}, v{G_}", f"v_add_f32 v{XA0}, v{XA0}, v{XA0}", f"v_add_f32 v{XA1}, 1.0, v{XA0}",
        f"v_mul_f32 v{XA0}, v{XA0}, v{JF}", f"v_mul_f32 v{XA1}, v{XA1}, v{JF}",
        f"v_lshlrev_b32 v{Q}, 3, v{LO}", "s_mov_b32 s50, 0x4631914C", f"v_lshrrev_b32 v{Q}, v{Q}, s50",
        f"v_mov_b32 v{AV}, 0.5", f"v_cmp_gt_u32 vcc, 16, v{IDX}", f"v_cndmask_b32 v{AV}, 0, v{AV}, vcc")
    for jj2 in range(4):
        for e in range(2):
            jj = 2*jj2+e
            xa = XA1 if jj >> 2 else XA0
            a.e(f"v_bfe_u32 v{E0+e}, v{Q}, {2*(jj&3)}, 2", f"v_cvt_f32_u32 v{E0+e}, v{E0+e}",
                f"v_fmamk_f32 v{E0+e}, v{E0+e}, {f32hex(0.25)}, v{xa}", f"v_cos_f32 v{E0+e}, v{E0+e}",
                f"v_mul_f32 v{E0+e}, v{E0+e}, v{AV}")
        a.e(f"v_cvt_pk_bf16_f32 v{GA+jj2}, v{E0}, v{E1}")
    a.e(f"v_bfe_u32 v{HI}, v{N16}, 1, 2", f"v_cvt_f32_u32 v{KEY}, v{HI}", f"v_mul_f32 v{KEY}, {f32hex(1/2048)}, v{KEY}",
        f"v_and_b32 v{JF}, 1, v{G4}", f"v_cvt_f32_u32 v{JF}, v{JF}", f"v_fmamk_f32 v{JF}, v{JF}, {f32hex(1024.0)}, v{T2}",
        f"v_add_f32 v{XA1}, {f32hex(512.0)}, v{JF}", f"v_mul_f32 v{XA0}, v{JF}, v{KEY}", f"v_mul_f32 v{XA1}, v{XA1}, v{KEY}",
        f"v_lshrrev_b32 v{CS}, 1, v{G4}", f"v_lshrrev_b32 v{AV}, 3, v{N16}", f"v_cmp_eq_u32 vcc, v{CS}, v{AV}",
        f"v_mov_b32 v{AV}, {f32hex(2.0**-21)}", f"v_cndmask_b32 v{AV}, 0, v{AV}, vcc",
        f"v_and_b32 v{PO}, 1, v{N16}")
    for part, Hd in ((0, HRE), (1, HIM)):
        w0, w1 = (0x1C, 0xBC) if part == 0 else (0x61, 0x6B)
        a.e(f"v_mov_b32 v{Q}, {w0}", f"v_mov_b32 v{PAR}, {w1}", f"v_cmp_eq_u32 vcc, 1, v{PO}", f"v_cndmask_b32 v{Q}, v{Q}, v{PAR}, vcc")
        for jj2 in range(4):
            for e in range(2):
                jj = 2*jj2+e
                xa = XA1 if jj >> 2 else XA0
                a.e(f"v_bfe_u32 v{E0+e}, v{Q}, {2*(jj&3)}, 2", f"v_cvt_f32_u32 v{E0+e}, v{E0+e}",
                    f"v_fmamk_f32 v{E0+e}, v{E0+e}, {f32hex(0.25)}, v{xa}", f"v_cos_f32 v{E0+e}, v{E0+e}",
                    f"v_mul_f32 v{E0+e}, v{E0+e}, v{AV}")
            a.e(f"v_cvt_pk_bf16_f32 v{Hd+jj2}, v{E0}, v{E1}")
    a.e(f"s_branch {Ldone}")
    a.label(Lspec)
    a.e(f"v_and_b32 v{PO}, 1, v{LO}", f"v_lshrrev_b32 v{PAR}, 1, v{LO}")
    a.e(f"v_lshlrev_b32 v{JF}, 2, v{HI}", "s_mov_b32 s50, 0x3120", f"v_lshrrev_b32 v{JF}, v{JF}, s50", f"v_and_b32 v{JF}, 15, v{JF}",
        f"v_lshlrev_b32 v{JF}, 8, v{JF}", f"v_lshlrev_b32 v{T2}, 10, v{PO}",
        f"v_cmp_eq_u32 vcc, 0, v{HI}", f"v_cndmask_b32 v{JF}, v{JF}, v{T2}, vcc", f"v_mov_b32 v{T2}, 0",
        f"v_cndmask_b32 v{Q}, v{PO}, v{T2}, vcc",
        f"v_cvt_f32_u32 v{JF}, v{JF}", f"v_mul_f32 v{JF}, {f32hex(1/2048)}, v{JF}",
        f"v_cvt_f32_u32 v{Q}, v{Q}", f"v_mul_f32 v{Q}, {f32hex(0.25)}, v{Q}",
        f"v_cvt_f32_u32 v{XA0}, v{G_}", f"v_add_f32 v{XA0}, v{XA0}, v{XA0}", f"v_add_f32 v{XA1}, 1.0, v{XA0}",
        f"v_fma_f32 v{XA0}, v{XA0}, v{JF}, v{Q}", f"v_fma_f32 v{XA1}, v{XA1}, v{JF}, v{Q}",
        f"v_cos_f32 v{XA0}, v{XA0}", f"v_cos_f32 v{XA1}, v{XA1}",
        f"v_lshrrev_b32 v{KEY}, 1, v{HI}", f"v_lshl_add_u32 v{KEY}, v{KEY}, 1, v{PAR}",
        f"v_lshrrev_b32 v{T2}, 4, v{IDX}", f"v_lshl_add_u32 v{KEY}, v{T2}, 2, v{KEY}", f"v_mov_b32 v{T2}, 0")
    for jj2 in range(4):
        for e in range(2):
            jj = 2*jj2+e
            xa = XA1 if jj >> 2 else XA0
            a.e(f"v_cmp_eq_u32 vcc, {jj&3}, v{KEY}", f"v_cndmask_b32 v{E0+e}, v{T2}, v{xa}, vcc")
        a.e(f"v_cvt_pk_bf16_f32 v{GA+jj2}, v{E0}, v{E1}")
    SAF, GS = JF, PAR
    a.e(f"v_bfe_u32 v{HI}, v{N16}, 1, 2", f"v_cvt_f32_u32 v{SAF}, v{HI}", f"v_mul_f32 v{SAF}, {f32hex(1/2048)}, v{SAF}",
        f"v_and_b32 v{GS}, 1, v{G4}", f"v_and_b32 v{PO}, 1, v{N16}",
        f"v_lshrrev_b32 v{CS}, 1, v{G4}", f"v_lshrrev_b32 v{T2}, 3, v{N16}",
        f"v_cmp_eq_u32 s[44:45], v{CS}, v{T2}", f"v_cmp_eq_u32 s[46:47], v{GS}, v{PO}", "s_and_b64 s[44:45], s[44:45], s[46:47]",
        f"v_cmp_eq_u32 s[46:47], 0, v{GS}")
    for part, Hd in ((0, HRE), (1, HIM)):
        for jj in range(8):
            sl, par, pi = jj >> 2, (jj >> 1) & 1, jj & 1
            e = E0 + (jj & 1)
            if par != part:
                a.e(f"v_mov_b32 v{e}, 0")
            else:
                if sl == 0:
                    j0, q0, a0 = 1024.0*pi, 0.5*pi, 2.0**-21
                    j1, q1, a1 = 256.0, 0.75*pi, 2.0**-20
                else:
                    j0, q0, a0 = 512.0, 0.75*pi, 2.0**-20
                    j1, q1, a1 = 768.0, 0.75*pi, 2.0**-20
                def sel(dst, x0, x1):
                    a.e(f"v_mov_b32 v{dst}, {f32hex(x1)}", f"v_mov_b32 v{AV}, {f32hex(x0)}", f"v_cndmask_b32 v{dst}, v{dst}, v{AV}, s[46:47]")
                sel(XA0, j0, j1); sel(XA1, q0 + 0.5*part, q1 + 0.5*part)
                a.e(f"v_fma_f32 v{XA0}, v{XA0}, v{SAF}, v{XA1}", f"v_cos_f32 v{XA0}, v{XA0}")
                sel(XA1, a0, a1)
                a.e(f"v_mul_f32 v{XA0}, v{XA0}, v{XA1}", f"v_mov_b32 v{XA1}, 0", f"v_cndmask_b32 v{e}, v{XA1}, v{XA0}, s[44:45]")
            if jj & 1: a.e(f"v_cvt_pk_bf16_f32 v{Hd+(jj>>1)}, v{E0}, v{E1}")
    a.label(Ldone)
    a.e("s_nop 1")

def gen_A(a):
    SX, SI1, SI2, SOUT, SWR, SWI = 32, 36, 40, 40, 44, 48
    SX, SI1, SWR, SWI, SI2, SOUT = 32, 36, 80, 84, 88, 92
    if gen.PROF: pass
    a.e(f"s_setprio {OPT['prioA']}") if OPT['prioA'] else None
    srd(a, SX, P_X, P_X+1, 4*MB); srd(a, SI1, P_WS, P_WS+1, 4*MB, add=WS_I1)
    srd(a, SWR, P_WR, P_WR+1, WBYTES); srd(a, SWI, P_WI, P_WI+1, WBYTES)
    srd(a, SI2, P_WS, P_WS+1, 4*MB, add=WS_I2); srd(a, SOUT, P_OUT, P_OUT+1, 8*MB)
    sT, sSA, sCB, sJ, sJM, sJP, sJQ, sTL = 40, 41, 42, 43, 72, 73, 74, 44
    a.e(f"s_sub_u32 s{sT}, s2, 256", f"s_lshr_b32 s48, s{sT}, 4", f"s_and_b32 s49, s{sT}, 7",
        f"s_lshr_b32 s{sSA}, s48, 2", "s_bfe_u32 s50, s48, 0x10001", "s_lshl_b32 s50, s50, 3", "s_add_u32 s50, s50, s49",
        "s_lshl_b32 s50, s50, 1", "s_and_b32 s51, s48, 1", f"s_add_u32 s{sCB}, s50, s51",
        "s_lshl_b32 s48, s48, 3", f"s_add_u32 s{sTL}, s48, s49")
    Lr = newlbl("reg")
    a.e("s_lshl_b32 s48, s3, 9", f"s_add_u32 s{sJ}, s{sT}, s48", f"s_mov_b32 s{sJP}, s{sT}", f"s_sub_u32 s{sJQ}, 512, s{sT}",
        f"s_cmp_lg_u32 s{sT}, 0", f"s_cbranch_scc1 {Lr}",
        f"s_mov_b32 s{sJQ}, 256", "s_lshl_b32 s48, s3, 2", "s_lshr_b32 s49, 0x3120, s48", "s_and_b32 s49, s49, 15", f"s_lshl_b32 s{sJ}, s49, 8")
    a.label(Lr)
    a.e(f"s_sub_u32 s{sJM}, 2048, s{sJ}", f"s_and_b32 s{sJM}, s{sJM}, 2047",
        f"s_mul_i32 s{sJ}, s{sJ}, 1026", f"s_mul_i32 s{sJM}, s{sJM}, 1026")
    a.e(f"s_or_b32 s75, s{sT}, s3")
    a.e(f"s_mov_b32 s48, {WS_SYNC+SY_EA}", f"s_load_dword s{S_TGT}, s[{P_WS}:{P_WS+1}], s48")
    stamp(a, 0, True); stamp(a, 1)
    Lp1 = newlbl("nop1")
    a.e("s_mov_b32 s98, 4096", "s_mov_b32 s99, 8192", "s_mov_b32 s100, 12288")
    Ln = newlbl("now2")
    a.e("s_cmp_lg_u32 s75, 0", f"s_cbranch_scc1 {Ln}")
    a.e(f"s_mov_b32 s48, {1024*1026}")
    pf_loads(a, SWR, SWI, 48, 48, PF2, F_TMP)
    a.label(Ln)
    a.e(f"s_bitcmp1_b32 s{sT}, 3", f"s_cbranch_scc1 {Lp1}_in")
    fft512_addr(a, sSA, sCB)
    fft512_loads(a, SX)
    pf_loads(a, SWR, SWI, sJ, sJM, PF, F_TMP)
    fft512_addr2(a, sSA, sCB, 2048, 8192)
    fft512_consts(a)
    a.e("s_waitcnt lgkmcnt(0)", f"s_add_u32 s{S_TGT}, s{S_TGT}, 1")
    fft512_compute(a, SI1, False, 4, "sc1", 2)
    stamp(a, 4)
    a.e(f"s_lshl_b32 s48, s{sTL}, 6", f"s_add_u32 s48, s48, {SY_A1}")
    signal(a, 48, F_TMP)
    a.e(f"s_branch {Lp1}")
    a.label(f"{Lp1}_in")
    pf_loads(a, SWR, SWI, sJ, sJM, PF, F_TMP)
    a.e("s_waitcnt lgkmcnt(0)", f"s_add_u32 s{S_TGT}, s{S_TGT}, 1")
    stamp(a, 2); stamp(a, 3); stamp(a, 4)
    a.label(Lp1)
    stamp(a, 5)
    a.e("v_lshlrev_b32 v15, 4, v1")
    Lw0, Lw1 = newlbl("w0"), newlbl("w1")
    a.e("s_cmp_eq_u32 s3, 0", f"s_cbranch_scc1 {Lw0}")
    a.e("s_lshl_b32 s48, s3, 12", f"s_add_u32 s48, s48, {LW}")
    w_dma(a, SWR, SWI, sJ, sJM, 48, 15)
    a.e("s_cmp_lg_u32 s3, 1", f"s_cbranch_scc1 {Lw0}")
    a.e(f"s_sub_u32 s49, 2048, s{sT}", "s_and_b32 s49, s49, 2047", "s_mul_i32 s49, s49, 1026", f"s_mul_i32 s48, s{sT}, 1026",
        f"s_mov_b32 s76, {LW}")
    w_dma(a, SWR, SWI, 48, 49, 76, 15)
    a.e(f"s_cmp_lg_u32 s{sT}, 0", f"s_cbranch_scc1 {Lw0}")
    a.e(f"s_mov_b32 s48, {1024*1026}", f"s_mov_b32 s76, {LW2}")
    w_dma(a, SWR, SWI, 48, 48, 76, 15)
    a.label(Lw0)
    a2_consts(a, sT)
    a.e(f"v_lshl_add_u32 v{TMP}, v{G_}, 7, v{IDX}",
        "s_lshl_b32 s48, s3, 12", f"s_add_u32 s48, s48, {LW}",
        f"v_lshl_add_u32 v{VW}, v{TMP}, 1, s48",
        f"v_sub_u32 v{TMP+1}, {1023-32*27}, v{TMP}", f"s_add_u32 s49, s48, 2048", f"v_lshl_add_u32 v{VW+1}, v{TMP+1}, 1, s49")
    a.e(f"v_lshlrev_b32 v{VG}, 12, v{G_}", f"v_lshl_add_u32 v{VG}, v{IDX}, 2, v{VG}",
        "s_lshl_b32 s49, s3, 9",
        f"s_lshl_b32 s52, s{sJP}, 13", "s_add_u32 s52, s52, s49",
        f"s_lshl_b32 s53, s{sJQ}, 13", "s_add_u32 s53, s53, s49")
    a.e(f"v_lshlrev_b32 v{VGW}, 12, v{G_}", f"v_lshl_add_u32 v{VGW}, v{IDX}, 3, v{VGW}", "s_lshl_b32 s50, s3, 10", f"v_add_u32 v{VGW}, s50, v{VGW}",
        f"v_lshlrev_b32 v{VRR}, 9, v{G_}", f"v_lshl_add_u32 v{VRR}, v{IDX}, 2, v{VRR}", "s_lshl_b32 s51, s3, 12", f"v_add_u32 v{VRR}, s51, v{VRR}")
    for t in range(1, 4): a.e(f"v_add_u32 v{VRR+t}, {1024*t}, v{VRR}")
    a.e(f"v_lshrrev_b32 v{TMP}, 4, v1", f"v_and_b32 v{TMP+1}, 1, v{TMP}", f"v_lshlrev_b32 v{VHR}, 13, v{TMP+1}",
        f"v_lshrrev_b32 v{TMP+1}, 1, v{TMP}", f"v_lshl_add_u32 v{VHR}, v{TMP+1}, 7, v{VHR}",
        f"v_and_b32 v{TMP+1}, 15, v1", f"v_lshl_add_u32 v{VHR}, v{TMP+1}, 3, v{VHR}", f"v_add_u32 v{VHR}, s50, v{VHR}")
    a.e(f"v_and_b32 v{TMP+2}, 1, v{TMP+1}", f"v_mov_b32 v{TMP+3}, s52", f"v_mov_b32 v{TMP+4}, s53",
        f"v_cmp_eq_u32 vcc, 1, v{TMP+2}", f"v_cndmask_b32 v{VST}, v{TMP+3}, v{TMP+4}, vcc",
        f"v_bfe_u32 v{TMP+2}, v{TMP+1}, 1, 2", f"v_lshl_add_u32 v{VST}, v{TMP+2}, 11, v{VST}",
        f"v_lshrrev_b32 v{TMP+2}, 3, v{TMP+1}", f"v_lshl_add_u32 v{VST}, v{TMP+2}, 6, v{VST}",
        f"v_lshl_add_u32 v{VST}, v{TMP}, 4, v{VST}")
    a.e(f"v_lshlrev_b32 v{TMP}, 6, v1", f"v_add_u32 v{TMP}, {SY_A1}, v{TMP}")
    stamp(a, 6)
    wait_flags(a, TMP, 2, TMP+1, 48)
    stamp(a, 7)
    for u in range(4):
        for sl in range(2):
            for pq in range(2):
                a.e(f"buffer_load_dword v{GB+4*u+2*sl+pq}, v{VG}, s[{SI1}:{SI1+3}], s{52+pq} offen offset:{2048*sl+128*u} sc1")
    for rnd in range(2):
        a.e(f"s_waitcnt vmcnt({8-8*rnd})")
        for uu in range(2):
            u = 2*rnd+uu
            a.e(f"v_mfma_f32_32x32x16_bf16 {v(ARE if uu == 0 else AIM,16)}, {v(GA,4)}, {v(GB+4*u,4)}, 0")
        for uu in range(2):
            u = 2*rnd+uu
            D = ARE if uu == 0 else AIM
            t = TMP+4*uu
            for h in range(2):
                a.e(f"v_cvt_pk_bf16_f32 v{t}, v{D+4*h}, v{D+4*h+1}", f"v_cvt_pk_bf16_f32 v{t+1}, v{D+4*h+2}, v{D+4*h+3}",
                    f"ds_write_b64 v{VGW}, {v(t,2)} offset:{256*u+8192*h}")
                t += 2
    a.e("s_waitcnt lgkmcnt(0)", "s_barrier")
    stamp(a, 8)
    for t in range(4):
        a.e(f"ds_read2_b32 {v(DF+4*t,2)}, v{VRR+t} offset0:0 offset1:32", f"ds_read2_b32 {v(DF+4*t+2,2)}, v{VRR+t} offset0:64 offset1:96")
    a.e("s_waitcnt lgkmcnt(0)")
    w_lds_reads(a, VW, VW+1, WR, WI)
    fft1024(a)
    a.e("s_waitcnt lgkmcnt(0)")
    fix_w(a, WR, WI, PF)
    Lsp, Linv = newlbl("special"), newlbl("inv")
    a.e("s_cmp_eq_u32 s75, 0", f"s_cbranch_scc1 {Lsp}")
    for p in range(8):
        xr, xi, wr, wi = ARE+2*p, AIM+2*p, WR+2*p, WI+2*p
        t0 = TMP+4*(p & 1); t1 = t0+2
        n0 = " neg_lo:[1,0,0] neg_hi:[1,0,0]" if p < 4 else ""
        n1 = "" if p < 4 else " neg_lo:[1,0,0] neg_hi:[1,0,0]"
        a.e(f"v_pk_mul_f32 {v(t0,2)}, {v(xr,2)}, {v(wr,2)}", f"v_pk_mul_f32 {v(t1,2)}, {v(xi,2)}, {v(wr,2)}",
            f"v_pk_fma_f32 {v(t0,2)}, {v(xi,2)}, {v(wi,2)}, {v(t0,2)}{n0}",
            f"v_pk_fma_f32 {v(t1,2)}, {v(xr,2)}, {v(wi,2)}, {v(t1,2)}{n1}")
        for e in range(2):
            a.e(f"v_cvt_pk_bf16_f32 v{DF+2*p+e}, v{t0+e}, -v{t1+e}")
    a.label(Linv)
    a.e("s_nop 1")
    fft1024(a)
    for r in range(16):
        t = TMP + (r & 7)
        a.e(f"v_cvt_pk_bf16_f32 v{t}, v{ARE+r}, v{AIM+r}", f"ds_write_b32 v{VRR}, v{t} offset:{128*eidx(r)}")
    a.e("s_waitcnt lgkmcnt(0)", "s_barrier")
    stamp(a, 9)
    for u in range(4):
        for sl in range(2):
            a.e(f"ds_read_b64 {v(GB+4*u+2*sl,2)}, v{VHR} offset:{4096*sl+256*u}")
    a.e("s_lshl_b32 s49, s3, 9")
    for u in range(4):
        a.e(f"s_waitcnt lgkmcnt({6-2*u})")
        a.e(f"v_mfma_f32_16x16x32_bf16 {v(ARE+4*u,4)}, {v(GB+4*u,4)}, {v(HRE,4)}, 0",
            f"v_mfma_f32_16x16x32_bf16 {v(AIM+4*u,4)}, {v(GB+4*u,4)}, {v(HIM,4)}, 0")
    for u in range(4):
        for r in range(4):
            a.e(f"v_cvt_pk_bf16_f32 v{DF+4*u+r}, v{ARE+4*u+r}, v{AIM+4*u+r}")
        a.e(f"buffer_store_dwordx4 {v(DF+4*u,4)}, v{VST}, s[{SI2}:{SI2+3}], 0 offen offset:{128*u} sc1")
    a.e(f"s_lshl_b32 s48, s{sT}, 6", f"s_add_u32 s48, s48, {SY_A2}")
    signal(a, 48, TMP)
    stamp(a, 10)
    Lb = newlbl("nobump")
    a.e(f"s_bitcmp1_b32 s{sT}, 3", "s_cbranch_scc1 L_fin")
    fft512_addr(a, sSA, sCB)
    fft512_addr2(a, sSA, sCB, 4096, 16384)
    fft512_consts(a)
    a.e(f"v_lshlrev_b32 v{F_TMP}, 6, v1", f"v_add_u32 v{F_TMP}, {SY_A2}, v{F_TMP}")
    wait_flags(a, F_TMP, 4, F_TMP+1, 48)
    stamp(a, 11)
    a.e("s_cmp_lg_u32 s75, 0", f"s_cbranch_scc1 {Lb}", f"s_mov_b32 s48, {SY_EA}")
    bump(a, 48, F_TMP)
    a.label(Lb)
    fft512_loads(a, SI2, "sc1")
    save = gen.PROF; gen.PROF = False
    fft512_compute(a, SOUT, True, 0, "", 0)
    gen.PROF = save
    if gen.PROF:
        a.e("s_waitcnt vmcnt(0)")
    a.e("s_branch L_fin")
    a.label(Lsp)
    a.e(f"v_lshl_add_u32 v{TMP}, v{G_}, 7, v{IDX}", f"v_sub_u32 v{TMP+1}, {1023-32*27}, v{TMP}",
        f"s_mov_b32 s48, {LW2}", f"v_lshl_add_u32 v{TMP+2}, v{TMP}, 1, s48", f"s_mov_b32 s49, {LW2+2048}", f"v_lshl_add_u32 v{TMP+3}, v{TMP+1}, 1, s49")
    w_lds_reads(a, TMP+2, TMP+3, W2R, W2I)
    a.e("s_waitcnt lgkmcnt(0)")
    fix_w(a, W2R, W2I, PF2)
    VS = SP; K0 = SP+1
    a.e(f"v_lshlrev_b32 v{VS}, 9, v{G_}", f"v_lshl_add_u32 v{VS}, v{IDX}, 2, v{VS}")
    for r in range(16):
        a.e(f"ds_write_b32 v{VS}, v{ARE+r} offset:{LSC+128*eidx(r)}", f"ds_write_b32 v{VS}, v{AIM+r} offset:{LSC+4096+128*eidx(r)}")
    a.e(f"v_lshl_add_u32 v{K0}, v{G_}, 7, v{IDX}", f"v_sub_u32 v{K0}, 1024, v{K0}", "s_waitcnt lgkmcnt(0)")
    for r in range(16):
        ad, rr, ri, ur, ui, vr, vi, o0, o1 = [SP+2+i for i in range(9)]
        a.e(f"v_subrev_u32 v{ad}, {32*eidx(r)}, v{K0}", f"v_and_b32 v{ad}, 1023, v{ad}", f"v_lshlrev_b32 v{ad}, 2, v{ad}",
            f"ds_read_b32 v{rr}, v{ad} offset:{LSC}", f"ds_read_b32 v{ri}, v{ad} offset:{LSC+4096}", "s_waitcnt lgkmcnt(0)")
        pr, pi_ = ARE+r, AIM+r
        a.e(f"v_add_f32 v{ur}, v{pr}, v{rr}", f"v_sub_f32 v{ui}, v{pi_}, v{ri}",
            f"v_sub_f32 v{vr}, v{pr}, v{rr}", f"v_add_f32 v{vi}, v{pi_}, v{ri}")
        sg = "-" if r < 8 else ""; ns = "" if r < 8 else "-"
        ar, ai, br, bi = WR+r, WI+r, W2R+r, W2I+r
        a.e(f"v_mul_f32 v{o0}, v{ur}, v{ar}", f"v_fma_f32 v{o0}, {sg}v{ui}, v{ai}, v{o0}",
            f"v_fma_f32 v{o0}, v{vr}, v{br}, v{o0}", f"v_fma_f32 v{o0}, {sg}v{vi}, v{bi}, v{o0}",
            f"v_mul_f32 v{o1}, v{ui}, v{ar}", f"v_fma_f32 v{o1}, {ns}v{ur}, v{ai}, v{o1}",
            f"v_fma_f32 v{o1}, v{vi}, v{br}, v{o1}", f"v_fma_f32 v{o1}, {ns}v{vr}, v{bi}, v{o1}",
            f"v_mul_f32 v{o0}, 0.5, v{o0}", f"v_mul_f32 v{o1}, 0.5, v{o1}",
            f"v_cvt_pk_bf16_f32 v{DF+r}, v{o0}, -v{o1}")
    a.e(f"s_branch {Linv}")

def gen_B(a):
    SK, SV, SSH, SKVT, SH, STT, SQ, SOUT = 32, 36, 40, 44, 80, 84, 88, 92
    a.e(f"s_setprio {OPT['prioB']}") if OPT['prioB'] else None
    srd(a, SK, P_K, P_K+1, 4*MB); srd(a, SV, P_V, P_V+1, 4*MB); srd(a, SSH, P_SHK, P_SHK+1, 8192)
    srd(a, SKVT, P_WS, P_WS+1, 4*MB, add=WS_KVT); srd(a, SH, P_SSMK, P_SSMK+1, 4*MB)
    srd(a, STT, P_WS, P_WS+1, 4*MB, add=WS_TT); srd(a, SQ, P_Q, P_Q+1, 4*MB); srd(a, SOUT, P_OUT, P_OUT+1, 8*MB)
    sCBK, sSUB, sD, sD4K, sLB, sROW, sCH = 48, 49, 50, 51, 52, 53, 54
    a.e(f"s_and_b32 s{sCBK}, s2, 7", f"s_lshl_b32 s{sCBK}, s{sCBK}, 1", "s_bfe_u32 s55, s2, 0x10003", f"s_add_u32 s{sCBK}, s{sCBK}, s55",
        f"s_lshr_b32 s{sSUB}, s2, 4",
        f"s_lshl_b32 s{sD}, s{sCBK}, 4", f"s_add_u32 s{sD}, s{sD}, s{sSUB}", f"s_lshl_b32 s{sD}, s{sD}, 2", f"s_add_u32 s{sD}, s{sD}, s3",
        f"s_lshl_b32 s{sD4K}, s{sD}, 12", f"s_mul_i32 s{sLB}, s3, {LB_STRIDE}",
        f"s_lshl_b32 s{sROW}, s{sSUB}, 7", "s_lshl_b32 s55, s3, 5", f"s_add_u32 s{sROW}, s{sROW}, s55",
        f"s_lshl_b32 s{sCH}, s{sCBK}, 6")
    a.e(f"s_lshl_b32 s55, s{sCBK}, 7", f"s_add_u32 s55, s55, {WS_SYNC+SY_EB}", f"s_load_dword s{S_TGT}, s[{P_WS}:{P_WS+1}], s55")
    stamp(a, 0, True); stamp(a, 1)
    a.e(f"s_and_b32 s55, s{sD}, 0xfffffffe", "s_lshl_b32 s55, s55, 1", f"s_load_dword s56, s[{P_SSMD}:{P_SSMD+1}], s55")
    CG, RG, S0, CH0, VOFF, VH, VST, VSH = 2, 3, 4, 5, 6, 7, 8, 9
    VQO = 208; QR = 192
    VT = 209
    a.e(f"v_and_b32 v{CG}, 15, v1", f"v_lshrrev_b32 v{RG}, 4, v1",
        f"v_lshl_add_u32 v{S0}, v{RG}, 3, s{sROW}", f"v_lshl_add_u32 v{CH0}, v{CG}, 2, s{sCH}",
        f"v_lshlrev_b32 v{VOFF}, 11, v{S0}", f"v_lshl_add_u32 v{VOFF}, v{CH0}, 1, v{VOFF}",
        f"v_subrev_u32 v{VH}, 6144, v{VOFF}",
        f"v_lshlrev_b32 v{VST}, 12, v{CH0}", f"v_lshl_add_u32 v{VST}, v{S0}, 1, v{VST}",
        f"v_lshlrev_b32 v{VSH}, 3, v{CH0}")
    for i in range(1, 8): a.e(f"s_mov_b32 s{57+i-1}, {4096*i}")
    soff = ["0"] + [f"s{57+i}" for i in range(7)]
    KR, VR, SHR, KF, SHF, KV, TM, PK = 16, 38, 54, 64, 108, 124, 156, 16
    a.e(f"buffer_load_dwordx4 {v(SHR,4)}, v{VSH}, s[{SSH}:{SSH+3}], 0 offen",
        f"buffer_load_dwordx4 {v(SHR+4,4)}, v{VSH}, s[{SSH}:{SSH+3}], 0 offen offset:16")
    for i in range(3):
        a.e(f"buffer_load_dwordx2 {v(KR+2*i,2)}, v{VH}, s[{SK}:{SK+3}], {soff[i>>1]} offen" + (" offset:2048" if i & 1 else ""))
    for i in range(8):
        a.e(f"buffer_load_dwordx2 {v(KR+6+2*i,2)}, v{VOFF}, s[{SK}:{SK+3}], {soff[i>>1]} offen" + (" offset:2048" if i & 1 else ""))
    for i in range(8):
        a.e(f"buffer_load_dwordx2 {v(VR+2*i,2)}, v{VOFF}, s[{SV}:{SV+3}], {soff[i>>1]} offen" + (" offset:2048" if i & 1 else ""))
    NA = 0
    a.e(f"v_lshlrev_b32 v{VQO}, 12, v{S0}", f"v_lshl_add_u32 v{VQO}, v{CH0}, 1, v{VQO}", f"v_add_u32 v{VQO}, 2048, v{VQO}", f"v_mov_b32 v{VT}, v{VST}", f"v_mov_b32 v212, v{VOFF}")
    stamp(a, 2)
    a.e("s_mov_b32 s66, 0xffff0000")
    a.e(f"s_waitcnt vmcnt({19+NA})")
    for ch in range(4):
        for j in range(4):
            src = SHR + 2*ch + (j >> 1)
            if j & 1: a.e(f"v_and_b32 v{SHF+4*j+ch}, s66, v{src}")
            else:     a.e(f"v_lshlrev_b32 v{SHF+4*j+ch}, 16, v{src}")
    for i in range(11):
        a.e(f"s_waitcnt vmcnt({18-i+NA})")
        for hf in range(2):
            a.e(f"v_lshlrev_b32 v{KF+4*i+2*hf}, 16, v{KR+2*i+hf}", f"v_and_b32 v{KF+4*i+2*hf+1}, s66, v{KR+2*i+hf}")
    for i in range(8):
        a.e(f"s_waitcnt vmcnt({7-i+NA})")
        for hf in range(2):
            a.e(f"v_lshlrev_b32 v{TM+2*hf}, 16, v{VR+2*i+hf}", f"v_and_b32 v{TM+2*hf+1}, s66, v{VR+2*i+hf}")
        for hf in range(2):
            acc = KV+4*i+2*hf
            a.e(f"v_pk_mul_f32 {v(acc,2)}, {v(KF+4*(i+3)+2*hf,2)}, {v(SHF+2*hf,2)}")
            for j in range(1, 4):
                a.e(f"v_pk_fma_f32 {v(acc,2)}, {v(KF+4*(i+3-j)+2*hf,2)}, {v(SHF+4*j+2*hf,2)}, {v(acc,2)}")
            a.e(f"v_pk_mul_f32 {v(acc,2)}, {v(acc,2)}, {v(TM+2*hf,2)}")
    stamp(a, 3)
    for ch in range(4):
        for m in range(4):
            a.e(f"v_cvt_pk_bf16_f32 v{PK+4*ch+m}, v{KV+4*(7-2*m)+ch}, v{KV+4*(6-2*m)+ch}")
        a.e(f"buffer_store_dwordx4 {v(PK+4*ch,4)}, v{VST}, s[{SKVT}:{SKVT+3}], {soff[ch]} offen sc1")
    a.e(f"s_lshl_b32 s64, s{sCBK}, 10", f"s_lshl_b32 s65, s{sSUB}, 6", "s_add_u32 s65, s65, s64",
        f"s_add_u32 s67, s65, {SY_B1}", f"s_add_u32 s68, s65, {SY_B2}", f"s_add_u32 s69, s64, {SY_B1}", f"s_add_u32 s70, s64, {SY_B2}")
    a.e("s_waitcnt lgkmcnt(0)", f"s_add_u32 s{S_TGT}, s{S_TGT}, 1")
    signal(a, 67, 14)
    stamp(a, 4)
    a.e("v_lshlrev_b32 v10, 4, v1")
    a.e(f"s_add_u32 s64, s{sLB}, 32", "s_mov_b32 m0, s64")
    for ch in range(4): a.e(f"buffer_load_dwordx4 v10, s[{SH}:{SH+3}], s{sD4K} offen offset:{1024*ch} lds")
    a.e(f"s_add_u32 s64, s{sLB}, 4192", f"s_add_u32 s65, s{sD4K}, 2", "s_mov_b32 m0, s64")
    for ch in range(4): a.e(f"buffer_load_dwordx4 v10, s[{SH}:{SH+3}], s65 offen offset:{1024*ch} lds")
    a.e("v_mov_b32 v11, 0x7ffffff0", f"v_mov_b32 v12, s{sD4K}", "v_cmp_eq_u32 vcc, 15, v1", "v_cndmask_b32 v11, v11, v12, vcc",
        f"buffer_load_short_d16_hi v210, v11, s[{SH}:{SH+3}], 0 offen")

    LN16, B_, G4, VA, VB, VE, VS2, T = 2, 3, 4, 5, 9, 10, 11, 12
    a.e(f"v_lshlrev_b32 v{T}, 2, v1",
        f"v_add_u32 v{T+1}, {4160-32}, v{T}", "v_cmp_le_u32 vcc, 8, v1", f"v_cndmask_b32 v{T+3}, v{T}, v{T+1}, vcc",
        f"v_add_u32 v{T+1}, 8288, v{T}", "v_cmp_le_u32 vcc, 16, v1", f"v_cndmask_b32 v{T+3}, v{T+3}, v{T+1}, vcc",
        f"v_add_u32 v211, s{sLB}, v{T+3}")
    a.e(f"v_lshlrev_b32 v{T}, 3, v1", f"v_add_u32 v{T}, s{sLB}, v{T}", "v_mov_b32 v16, 0", "v_mov_b32 v17, 0", f"ds_write_b64 v{T}, v[16:17] offset:8288")
    a.e(f"v_and_b32 v{B_}, 15, v1", f"v_lshrrev_b32 v{G4}, 4, v1")
    a.e(f"v_and_b32 v{VA}, 1, v{B_}", f"v_xor_b32 v{VA}, 1, v{VA}", f"v_mul_u32_u24 v{VA}, 4160, v{VA}",
        f"v_add_u32 v{VA+1}, 1, v{B_}", f"v_lshrrev_b32 v{VA+1}, 1, v{VA+1}", f"v_lshl_add_u32 v{VA}, v{VA+1}, 2, v{VA}",
        f"v_lshlrev_b32 v{VA+1}, 4, v{G4}", f"v_sub_u32 v{VA}, v{VA}, v{VA+1}",
        f"s_add_u32 s64, s{sLB}, 16", f"v_add_u32 v{VA}, s64, v{VA}")
    for pp in range(1, 4): a.e(f"v_add_u32 v{VA+pp}, {1024*pp}, v{VA}")
    a.e(f"v_lshlrev_b32 v{VB}, 5, v{B_}", f"v_lshl_add_u32 v{VB}, v{G4}, 4, v{VB}",
        f"s_add_u32 s64, s{sLB}, {8800-480}", f"v_add_u32 v{VB}, s64, v{VB}")
    a.e(f"v_lshrrev_b32 v{VE}, 1, v{G4}", f"v_lshlrev_b32 v{VE}, 4, v{VE}", f"v_lshl_add_u32 v{VE}, v{B_}, 5, v{VE}",
        f"v_and_b32 v18, 1, v{G4}", "v_xor_b32 v18, 1, v18", f"v_lshl_add_u32 v{VE}, v18, 3, v{VE}",
        f"s_add_u32 s64, s{sLB}, 8800", f"v_add_u32 v{VE}, s64, v{VE}")
    a.e(f"v_and_b32 v18, 1, v{G4}", f"v_lshlrev_b32 v{VS2}, 9, v18", f"v_lshl_add_u32 v{VS2}, v{B_}, 5, v{VS2}",
        f"v_lshrrev_b32 v18, 1, v{G4}", f"v_lshl_add_u32 v{VS2}, v18, 4, v{VS2}", f"v_add_u32 v{VS2}, s{sD4K}, v{VS2}")
    a.e(f"v_lshlrev_b32 v{LN16}, 4, v1", f"s_add_u32 s64, s{sLB}, 8800", f"v_add_u32 v19, s64, v{LN16}")
    a.e("s_waitcnt lgkmcnt(0)",
        f"s_and_b32 s64, s{sD}, 1", "s_lshl_b32 s65, s56, 16", "s_and_b32 s71, s56, 0xffff0000",
        "s_cmp_eq_u32 s64, 1", "s_cselect_b32 s56, s71, s65")
    a.e(f"v_and_b32 v{T}, 15, v1", f"v_lshlrev_b32 v{T}, 6, v{T}", f"v_add_u32 v{T}, s69, v{T}")
    stamp(a, 5)
    wait_flags(a, T, 1, T+1, 64)
    stamp(a, 6)
    ACC = 20
    SETS = [(52, 84), (116, 148)]
    U = SETS[1][1]
    for ch in range(4):
        a.e(f"buffer_load_dwordx4 {v(U+4*ch,4)}, v{LN16}, s[{SKVT}:{SKVT+3}], s{sD4K} offen offset:{1024*ch} sc1")
    def reads(rho, st):
        A, B = SETS[st]
        out = []
        for p in range(8):
            o = 8*rho + 128*(p & 1)
            out.append(f"ds_read2_b32 {v(A+4*p,2)}, v{VA+(p>>1)} offset0:{o} offset1:{o+1}")
            out.append(f"ds_read2_b32 {v(A+4*p+2,2)}, v{VA+(p>>1)} offset0:{o+2} offset1:{o+3}")
        outb = [f"ds_read_b128 {v(B+4*q,4)}, v{VB} offset:{512*q+32*(15-rho)}" for q in range(8)]
        return out, outb
    rhos = list(range(1, 16, 2))
    ra, rb = reads(rhos[0], 0)
    for i in range(8):
        a.e(f"buffer_load_dwordx2 {v(QR+2*i,2)}, v212, s[{SQ}:{SQ+3}], {soff[i>>1]} offen" + (" offset:2048" if i & 1 else ""))
    a.e("s_waitcnt vmcnt(11)", "ds_write_b32 v211, v210")
    a.e("s_waitcnt lgkmcnt(0)")
    for r in ra: a.e(r)
    for ch in range(4):
        a.e(f"s_waitcnt vmcnt({3-ch+8})", f"ds_write_b128 v19, {v(U+4*ch,4)} offset:{1024*ch}")
    a.e("s_waitcnt lgkmcnt(0)")
    for r in rb: a.e(r)
    stamp(a, 7)
    for ci, rho in enumerate(rhos):
        st = ci & 1
        A, B = SETS[st]
        if ci+1 < len(rhos):
            ra, rb = reads(rhos[ci+1], st ^ 1); nxt = ra[0:2] + rb + ra[2:]
        else:
            nxt = [f"ds_read_b64 {v(SETS[st^1][0]+2*j,2)}, v{VE} offset:{512*j}" for j in range(8)]
        a.e("s_waitcnt lgkmcnt(0)")
        n = 0
        for p in range(8):
            for q in range(8-p):
                j = p+q
                c = "0" if (ci == 0 and p == 0) else v(ACC+4*j, 4)
                a.e(f"v_mfma_f32_16x16x32_bf16 {v(ACC+4*j,4)}, {v(A+4*p,4)}, {v(B+4*q,4)}, {c}")
                if n < len(nxt): a.e(nxt[n])
                n += 1
    KVR = SETS[0][0]; TMv = 116
    a.e("s_waitcnt lgkmcnt(0)")
    stamp(a, 8)
    for jp in range(4):
        base = TMv + 16*(jp & 1)
        for hh in range(2):
            j = 2*jp+hh
            w0, w1 = KVR+2*j, KVR+2*j+1
            t = base+4
            a.e(f"v_and_b32 v{t}, s66, v{w1}", f"v_lshlrev_b32 v{t+1}, 16, v{w1}",
                f"v_and_b32 v{t+2}, s66, v{w0}", f"v_lshlrev_b32 v{t+3}, 16, v{w0}")
            for r in range(4):
                a.e(f"v_fma_f32 v{t+r}, v{t+r}, s56, v{ACC+4*j+r}")
            a.e(f"v_cvt_pk_bf16_f32 v{base+2*hh}, v{t}, v{t+1}", f"v_cvt_pk_bf16_f32 v{base+2*hh+1}, v{t+2}, v{t+3}")
        a.e(f"v_permlane16_swap_b32 v{base}, v{base+2}", f"v_permlane16_swap_b32 v{base+1}, v{base+3}")
        a.e(f"buffer_store_dwordx4 {v(base,4)}, v{VS2}, s[{STT}:{STT+3}], 0 offen offset:{1024*jp} sc1")
    signal(a, 68, 12)
    stamp(a, 9)
    TR, TF, QF, PKo = 16, 48, 80, 88
    a.e("v_and_b32 v12, 15, v1", "v_lshlrev_b32 v12, 6, v12", "v_add_u32 v12, s70, v12")
    wait_flags(a, 12, 1, 13, 64)
    stamp(a, 10)
    Lb = newlbl("nobumpB")
    a.e(f"s_or_b32 s64, s{sSUB}, s3", "s_cmp_lg_u32 s64, 0", f"s_cbranch_scc1 {Lb}",
        f"s_lshl_b32 s64, s{sCBK}, 7", f"s_add_u32 s64, s64, {SY_EB}")
    bump(a, 64, 12)
    a.label(Lb)
    for ch in range(4):
        a.e(f"buffer_load_dwordx4 {v(TR+4*ch,4)}, v{VT}, s[{STT}:{STT+3}], {soff[ch]} offen sc1")
    for e in range(8):
        qf = QF + 4*e
        for hf in range(2):
            a.e(f"v_lshlrev_b32 v{qf+2*hf}, 16, v{QR+2*e+hf}", f"v_and_b32 v{qf+2*hf+1}, s66, v{QR+2*e+hf}")
    QF2 = QF
    for ch in range(4):
        a.e(f"s_waitcnt vmcnt({3-ch})")
        for e in range(8):
            src = TR+4*ch+(e >> 1)
            if e & 1: a.e(f"v_and_b32 v{TF+4*e+ch}, s66, v{src}")
            else:     a.e(f"v_lshlrev_b32 v{TF+4*e+ch}, 16, v{src}")
    for e in range(8):
        qf = QF + 4*e
        for hf in range(2):
            a.e(f"v_pk_mul_f32 {v(qf+2*hf,2)}, {v(qf+2*hf,2)}, {v(TF+4*e+2*hf,2)}")
        pk = 112+2*e
        for hf in range(2):
            a.e(f"v_cvt_pk_bf16_f32 v{pk+hf}, v{qf+2*hf}, v{qf+2*hf+1}")
        a.e(f"buffer_store_dwordx2 {v(pk,2)}, v{VQO}, s[{SOUT}:{SOUT+3}], {soff[e]} offen")
    if gen.PROF:
        a.e("s_waitcnt vmcnt(0)")
    a.e("s_branch L_fin")

def gen_kernel():
    a = Asm(); a.name = "p"
    a.e("s_cmp_ge_u32 s2, 512", "s_cbranch_scc1 L_exit")
    if gen.PROF: a.e("s_memrealtime s[98:99]", "s_waitcnt lgkmcnt(0)", "v_writelane_b32 v247, s98, 13")
    a.e(f"s_load_dwordx16 s[4:19], s[0:1], 0", f"s_load_dwordx8 s[20:27], s[0:1], 64")
    a.e("v_lshrrev_b32 v1, 6, v0", "v_readfirstlane_b32 s3, v1", "v_and_b32 v1, 63, v0", "s_waitcnt lgkmcnt(0)")
    srd(a, S_SYN, P_WS, P_WS+1, 1*MB, add=WS_SYNC)
    a.e("s_cmp_ge_u32 s2, 256", "s_cbranch_scc1 L_A")
    gen_B(a)
    a.label("L_A")
    gen_A(a)
    a.label("L_fin")
    if gen.PROF:
        stamp(a, 14); stamp(a, 15, True)
        prof_dump(a)
    a.label("L_exit")
    a.e("s_endpgm")
    return a

def prof_dump(a):
    a.e(f"s_add_u32 s32, s{P_WS}, {gen.WS_PROF}", f"s_addc_u32 s33, s{P_WS+1}, 0", f"s_mov_b32 s34, {MB}", "s_mov_b32 s35, 0x00020000")
    a.e("s_lshl_b32 s36, s2, 2", "s_add_u32 s36, s36, s3", "s_lshl_b32 s36, s36, 6",
        "v_lshlrev_b32 v250, 2, v1", "v_add_u32 v250, s36, v250", "s_mov_b64 exec, 0xffff",
        "buffer_store_dword v247, v250, s[32:35], 0 offen", "s_waitcnt vmcnt(0)")
PROFREGS = []

def build(path):
    a = gen_kernel()
    name = "concat_heads__spectral_gfnet__ssm_conv_h3__prompt_kernel"
    s = open("concat_heads__spectral_gfnet__ssm_conv_h3__prompt.s.ref").read().split("; Override")[0]
    s += f"; @launch grid=(512,1,1) block=(256,1,1) lds={LDS_BYTES}\n"
    s += '.amdgcn_target "amdgcn-amd-amdhsa--gfx950"\n' + gen.header(name) + a.text() + gen.descriptor(name, 256, 102)
    open(path, "w").write(s)
    return s

if __name__ == "__main__":
    out = sys.argv[1] if len(sys.argv) > 1 else "pers.s"
    gen.PROF = "prof" in sys.argv[2:]
    for x in sys.argv[2:]:
        if "=" in x:
            k, val = x.split("="); OPT[k] = int(val)
    s = build(out)
    print(out, len(s))
```

```python
import sys
from asmgen import *
import gen
from gen import srd, MB, WS_I1, WS_KVT, WS_I2, WS_TT, KA

def stamp(a, i, real=False):
    if not gen.PROF: return
    a.e('s_memrealtime s[96:97]' if real else 's_memtime s[96:97]', 's_waitcnt lgkmcnt(0)', f'v_writelane_b32 v247, s96, {i}')

WBYTES = 2048*513*2
LB_STRIDE = 12896
LDS_BYTES = 4*LB_STRIDE
SPIN_LIMIT = 400000
OPT = dict(prioA=0, prioB=0, sleep=0, nt=1, wsend=0, ntout=0, ntw=1)
def NT(): return ' nt' if OPT['nt'] else ''
def NTO(): return ' nt' if OPT['ntout'] else ''

P_X, P_WR, P_WI, P_Q, P_K, P_V, P_SHK, P_SSMK, P_SSMD, P_OUT, P_DBG, P_WS = 4, 6, 8, 10, 12, 14, 16, 18, 20, 22, 24, 26
S_DBG = 28
def eidx(r): return (r & 3) + 8*(r >> 2)

_lbl = [0]
def newlbl(p):
    _lbl[0] += 1
    return f"L_{p}_{_lbl[0]}"

WS_SYNC = 20*MB
S_SYN = 28
S_TGT = 101
SY_EA, SY_EB, SY_A1, SY_A2, SY_B1, SY_B2 = 0, 128, 4096, 4096+16384, 4096+32768, 4096+49152
def signal(a, s_off, vt, nafter=0):
    L = newlbl("sig")
    a.e(f"s_waitcnt vmcnt({nafter})", "s_barrier", "s_cmp_lg_u32 s3, 0", f"s_cbranch_scc1 {L}",
        f"v_mov_b32 v{vt}, s{s_off}", f"v_mov_b32 v{vt+1}, s{S_TGT}", "s_mov_b64 exec, 1",
        f"buffer_store_dword v{vt+1}, v{vt}, s[{S_SYN}:{S_SYN+3}], 0 offen sc1", "s_mov_b64 exec, -1")
    a.label(L)

def wait_flags(a, vaddr, nload, vt, s_cnt, pre_barrier=None):
    L = newlbl("poll"); Ls = newlbl("pdone")
    a.e("s_cmp_lg_u32 s3, 0", f"s_cbranch_scc1 {Ls}", f"s_mov_b32 s{s_cnt}, 0")
    a.label(L)
    offs = ["0", "s98", "s99", "s100"]
    for i in range(nload):
        a.e(f"buffer_load_dword v{vt+i}, v{vaddr}, s[{S_SYN}:{S_SYN+3}], {offs[i]} offen sc1")
    a.e(f"s_add_u32 s{s_cnt}, s{s_cnt}, 1", "s_waitcnt vmcnt(0)")
    for i in range(nload):
        a.e(f"v_xor_b32 v{vt+i}, s{S_TGT}, v{vt+i}")
    for i in range(1, nload):
        a.e(f"v_or_b32 v{vt}, v{vt}, v{vt+i}")
    a.e(f"v_cmp_ne_u32 vcc, 0, v{vt}", f"s_cbranch_vccz {Ls}")
    if OPT["sleep"]: a.e(f"s_sleep {OPT['sleep']}")
    a.e(f"s_cmp_lt_u32 s{s_cnt}, {SPIN_LIMIT}", f"s_cbranch_scc1 {L}")
    a.label(Ls)
    if pre_barrier: a.e(pre_barrier)
    a.e("s_barrier")

def bump(a, s_off, vt):
    a.e(f"v_mov_b32 v{vt}, s{s_off}", f"v_mov_b32 v{vt+1}, s{S_TGT}", "s_mov_b64 exec, 1",
        f"buffer_store_dword v{vt+1}, v{vt}, s[{S_SYN}:{S_SYN+3}], 0 offen sc1", "s_mov_b64 exec, -1")

F_M, F_G, F_IN0, F_IN1, F_OUTOFF, F_WR, F_RD0, F_RD1, F_MM = 2, 3, 4, 5, 6, 7, 8, 9, 10
F_T = 11
F_IN, F16RE, F16IM, F_TWC, F_TWS, F_DRE, F_DIM, F_P, F_TMP, F32RE, F32IM = 16, 48, 52, 56, 88, 120, 136, 152, 168, 176, 192
SI_OFF, SO_OFF = 52, 68
SO_LIST = [68, 69, 70, 71, 76, 77, 78, 79]

def fft512_addr(a, s_sa, s_cb):
    a.e(f"v_and_b32 v{F_M}, 15, v1", f"v_lshrrev_b32 v{F_G}, 4, v1")
    a.e(f"v_lshlrev_b32 v{F_IN0}, 20, v{F_G}", f"v_lshl_add_u32 v{F_IN0}, v{F_M}, 2, v{F_IN0}", f"v_add_u32 v{F_IN1}, {4*8192}, v{F_IN0}")
    a.e(f"s_lshl_b32 s48, s{s_sa}, 11", f"s_lshl_b32 s49, s{s_cb}, 6", "s_add_u32 s48, s48, s49",
        "s_lshl_b32 s50, s3, 16", "s_add_u32 s48, s48, s50")
    for aa in range(4):
        for i in range(4):
            a.e(f"s_add_u32 s{SI_OFF+4*aa+i}, s48, {(32*i+aa)*8192}")

def fft512_loads(a, SIN, mod=""):
    for hh in range(2):
        for aa in range(4):
            for i in range(4):
                a.e(f"buffer_load_dword v{F_IN+16*hh+4*aa+i}, v{F_IN0+hh}, s[{SIN}:{SIN+3}], s{SI_OFF+4*aa+i} offen {mod}")

def fft512_addr2(a, s_sa, s_cb, orow, ostr):
    a.e(f"s_mov_b32 s51, {16*ostr}", f"v_mul_lo_u32 v{F_OUTOFF}, v{F_M}, s51", f"v_lshl_add_u32 v{F_OUTOFF}, v{F_G}, 4, v{F_OUTOFF}")
    a.e(f"s_mul_i32 s48, s{s_sa}, {orow}", f"s_lshl_b32 s49, s{s_cb}, 6", "s_add_u32 s48, s48, s49",
        f"s_mul_i32 s50, s3, {4*ostr}", "s_add_u32 s48, s48, s50")
    for b in range(4):
        for h in range(2):
            a.e(f"s_add_u32 s{SO_LIST[2*b+h]}, s48, {(b+256*h)*ostr}")
    a.e(f"v_and_b32 v{F_T}, 7, v{F_M}", "s_lshl_b32 s50, s3, 1", f"v_xor_b32 v{F_T+1}, s50, v{F_T}",
        f"v_lshlrev_b32 v{F_WR}, 4, v{F_T+1}", f"v_lshl_add_u32 v{F_WR}, v{F_M}, 7, v{F_WR}",
        f"v_lshl_add_u32 v{F_WR}, v{F_G}, 13, v{F_WR}")
    a.e(f"v_xor_b32 v{F_T+1}, v{F_G}, v{F_T}", f"v_lshlrev_b32 v{F_RD0}, 4, v{F_T+1}",
        f"v_lshl_add_u32 v{F_RD0}, v{F_M}, 7, v{F_RD0}", "s_lshl_b32 s50, s3, 13",
        f"v_add_u32 v{F_RD0}, s50, v{F_RD0}", f"v_xor_b32 v{F_RD1}, 64, v{F_RD0}")

def fft512_consts(a):
    T, TMP = F_T, F_TMP
    XS, XB = T, T+1
    a.e(f"v_cvt_f32_u32 v{XS}, v{F_M}", f"v_mul_f32 v{XS}, {f32hex(1/32)}, v{XS}",
        f"v_cvt_f32_u32 v{T+2}, v{F_G}", f"v_mul_f32 v{T+2}, 4.0, v{T+2}",
        f"v_mul_f32 v{XB}, v{T+2}, v{XS}")
    a.e(f"v_and_b32 v{F_MM}, 1, v{F_M}", f"v_mul_u32_u24 v{F_MM}, 0x8000, v{F_MM}",
        f"v_lshl_or_b32 v{F_MM}, v{F_MM}, 16, v{F_MM}", "s_mov_b32 s50, 0x80008000")
    for i in range(4):
        x = TMP; cs = TMP+1; sn = TMP+2; x2 = TMP+3; cs2 = TMP+4; sn2 = TMP+5
        a.e(f"v_fmamk_f32 v{x}, v{XS}, {f32hex(float(i))}, v{XB}" if i else f"v_mov_b32 v{x}, v{XB}")
        a.e(f"v_add_f32 v{x2}, v{x}, v{x}")
        a.e(f"v_cos_f32 v{cs}, v{x}", f"v_sin_f32 v{sn}, v{x}", f"v_cos_f32 v{cs2}, v{x2}", f"v_sin_f32 v{sn2}, v{x2}")
        a.e(f"v_cvt_pk_bf16_f32 v{F32RE+i}, v{cs}, v{sn}", f"v_cvt_pk_bf16_f32 v{F32IM+i}, -v{sn}, v{cs}",
            f"v_cvt_pk_bf16_f32 v{F16RE+i}, v{cs2}, v{sn2}", f"v_cvt_pk_bf16_f32 v{F16IM+i}, -v{sn2}, v{cs2}")
    for base in (F32RE, F32IM):
        for i in range(4):
            a.e(f"v_xor_b32 v{base+4+i}, v{F_MM}, v{base+i}")
        for t in range(2):
            for i in range(4):
                src = base+4*t+i
                if i & 1: a.e(f"v_xor_b32 v{base+8+4*t+i}, s50, v{src}")
                else:     a.e(f"v_mov_b32 v{base+8+4*t+i}, v{src}")
    a.e(f"v_cvt_f32_u32 v{TMP}, s3", f"v_mul_f32 v{TMP}, {f32hex(8/512)}, v{TMP}")
    for r in range(4):
        a.e(f"v_add_f32 v{TMP+4+r}, {f32hex(float(r)) if r else 0}, v{T+2}")
    for aa in range(8):
        a.e(f"v_add_f32 v{TMP+1}, {f32hex(aa/512) if aa else 0}, v{TMP}")
        for r in range(4):
            a.e(f"v_mul_f32 v{T+3+(r&1)}, v{TMP+1}, v{TMP+4+r}",
                f"v_cos_f32 v{F_TWC+4*aa+r}, v{T+3+(r&1)}", f"v_sin_f32 v{F_TWS+4*aa+r}, v{T+3+(r&1)}")

def fft512_compute(a, SOUT, neg_im, nafter, stmod, st0):
    TMP = F_TMP
    stamp(a, st0)
    for hh in range(2):
        for aa in range(4):
            a.e(f"s_waitcnt vmcnt({28-16*hh-4*aa+nafter})")
            a.e(f"v_mfma_f32_16x16x32_bf16 {v(F_DRE+4*aa,4)}, {v(F16RE,4)}, {v(F_IN+16*hh+4*aa,4)}, 0",
                f"v_mfma_f32_16x16x32_bf16 {v(F_DIM+4*aa,4)}, {v(F16IM,4)}, {v(F_IN+16*hh+4*aa,4)}, 0")
        if hh == 1: stamp(a, st0+1)
        for aa in range(4):
            for p in range(2):
                re, im = F_DRE+4*aa+2*p, F_DIM+4*aa+2*p
                tc, ts = F_TWC+16*hh+4*aa+2*p, F_TWS+16*hh+4*aa+2*p
                t0, t1 = TMP+4*p, TMP+4*p+2
                a.e(f"v_pk_mul_f32 {v(t0,2)}, {v(re,2)}, {v(tc,2)}",
                    f"v_pk_mul_f32 {v(t1,2)}, {v(im,2)}, {v(tc,2)}",
                    f"v_pk_fma_f32 {v(t0,2)}, {v(im,2)}, {v(ts,2)}, {v(t0,2)}",
                    f"v_pk_fma_f32 {v(t1,2)}, {v(re,2)}, {v(ts,2)}, {v(t1,2)} neg_lo:[1,0,0] neg_hi:[1,0,0]")
                for e in range(2):
                    r = 2*p+e
                    a.e(f"v_cvt_pk_bf16_f32 v{F_P+4*r+aa}, v{t0+e}, v{t1+e}")
        if hh == 1: a.e(f"v_xor_b32 v{F_WR}, 16, v{F_WR}")
        for r in range(4):
            a.e(f"ds_write_b128 v{F_WR}, {v(F_P+4*r,4)} offset:{r*2048}")
    a.e("s_waitcnt lgkmcnt(0)", "s_barrier")
    for b in range(4):
        a.e(f"ds_read_b128 {v(F_IN+8*b,4)}, v{F_RD0} offset:{b*2048}",
            f"ds_read_b128 {v(F_IN+8*b+4,4)}, v{F_RD1} offset:{b*2048}")
    sg = "-" if neg_im else ""
    for bb in range(2):
        D0 = [F_DRE, F_DIM] if bb == 0 else [F_TWC, F_TWC+16]
        for bl in range(2):
            b = 2*bb+bl
            a.e(f"s_waitcnt lgkmcnt({6-2*b})")
            for t in range(2):
                for h in range(2):
                    for (D_, F_) in ((D0[0], F32RE), (D0[1], F32IM)):
                        d = D_+8*bl+4*h
                        c = "0" if t == 0 else v(d, 4)
                        a.e(f"v_mfma_f32_16x16x32_bf16 {v(d,4)}, {v(F_IN+8*b+4*t,4)}, {v(F_+8*h+4*t,4)}, {c}")
    for bb in range(2):
        D0 = [F_DRE, F_DIM] if bb == 0 else [F_TWC, F_TWC+16]
        PB = F_P if bb == 0 else F_TWS
        for bl in range(2):
            b = 2*bb+bl
            for h in range(2):
                idx = 8*bl+4*h
                for r in range(4):
                    a.e(f"v_cvt_pk_bf16_f32 v{PB+idx+r}, v{D0[0]+idx+r}, {sg}v{D0[1]+idx+r}")
                a.e(f"buffer_store_dwordx4 {v(PB+idx,4)}, v{F_OUTOFF}, s[{SOUT}:{SOUT+3}], s{SO_LIST[2*b+h]} offen {stmod}")

IDX, G_, VG, VGW, VRR, VHR, VST, VW = 2, 3, 6, 7, 8, 12, 13, 14
CRE, CIM, TWC, TWS, WR, WI, ARE, AIM, DF, GA, HRE, HIM, GB, TMP = 16, 32, 48, 64, 80, 96, 112, 128, 144, 160, 164, 168, 172, 188
W2R, W2I, SP, PF, PF2 = 204, 220, 236, 248, 252
LW = 32768; LSC = 16384; LW2 = 24576

def w_dma(a, SWR, SWI, s_rowoff, s_mirroff, s_ldsbase, vlane16):
    a.e(f"s_mov_b32 m0, s{s_ldsbase}", f"buffer_load_dwordx4 v{vlane16}, s[{SWR}:{SWR+3}], s{s_rowoff} offen lds" + NT())
    a.e(f"s_add_u32 s51, s{s_ldsbase}, 1024", "s_mov_b32 m0, s51", f"buffer_load_dwordx4 v{vlane16}, s[{SWI}:{SWI+3}], s{s_rowoff} offen lds" + NT())
    a.e(f"s_add_u32 s50, s{s_mirroff}, 2")
    a.e(f"s_add_u32 s51, s{s_ldsbase}, 2048", "s_mov_b32 m0, s51", f"buffer_load_dwordx4 v{vlane16}, s[{SWR}:{SWR+3}], s50 offen lds" + NT())
    a.e(f"s_add_u32 s51, s{s_ldsbase}, 3072", "s_mov_b32 m0, s51", f"buffer_load_dwordx4 v{vlane16}, s[{SWI}:{SWI+3}], s50 offen lds" + NT())

def pf_loads(a, SWR, SWI, s_rowoff, s_mirroff, dst, vt):
    a.e(f"v_mov_b32 v{vt}, s{s_mirroff}", f"v_mov_b32 v{vt+1}, s{s_rowoff}", f"v_add_u32 v{vt+1}, 1024, v{vt+1}")
    a.e(f"buffer_load_short_d16_hi v{dst}, v{vt}, s[{SWR}:{SWR+3}], 0 offen",
        f"buffer_load_short_d16_hi v{dst+1}, v{vt}, s[{SWI}:{SWI+3}], 0 offen",
        f"buffer_load_short_d16_hi v{dst+2}, v{vt+1}, s[{SWR}:{SWR+3}], 0 offen",
        f"buffer_load_short_d16_hi v{dst+3}, v{vt+1}, s[{SWI}:{SWI+3}], 0 offen")

def w_lds_reads(a, vlo, vhi, dr, di):
    for (dst, o) in ((dr, 0), (di, 1024)):
        for r in range(16):
            e = eidx(r)
            if r < 8: a.e(f"ds_read_u16_d16_hi v{dst+r}, v{vlo} offset:{o+64*e}")
            else:     a.e(f"ds_read_u16_d16_hi v{dst+r}, v{vhi} offset:{o+64*(27-e)}")

def fix_w(a, dr, di, pf):
    a.e("v_cmp_eq_u32 vcc, 0, v1")
    for (r, o) in ((0, 0), (8, 2)):
        a.e(f"v_add_f32 v{TMP}, v{dr+r}, v{pf+o}", f"v_mul_f32 v{TMP}, 0.5, v{TMP}",
            f"v_sub_f32 v{TMP+1}, v{di+r}, v{pf+o+1}", f"v_mul_f32 v{TMP+1}, 0.5, v{TMP+1}",
            f"v_cndmask_b32 v{dr+r}, v{dr+r}, v{TMP}, vcc", f"v_cndmask_b32 v{di+r}, v{di+r}, v{TMP+1}, vcc")

def fft1024(a):
    for t in range(4):
        c0 = "0" if t == 0 else v(ARE, 16); c1 = "0" if t == 0 else v(AIM, 16)
        a.e(f"v_mfma_f32_32x32x16_bf16 {v(ARE,16)}, {v(DF+4*t,4)}, {v(CRE+4*t,4)}, {c0}",
            f"v_mfma_f32_32x32x16_bf16 {v(AIM,16)}, {v(DF+4*t,4)}, {v(CIM+4*t,4)}, {c1}")
    for p in range(8):
        re, im, tc, ts = ARE+2*p, AIM+2*p, TWC+2*p, TWS+2*p
        t0 = TMP+4*(p & 1); t1 = t0+2
        a.e(f"v_pk_mul_f32 {v(t0,2)}, {v(re,2)}, {v(tc,2)}",
            f"v_pk_mul_f32 {v(t1,2)}, {v(im,2)}, {v(tc,2)}",
            f"v_pk_fma_f32 {v(t0,2)}, {v(im,2)}, {v(ts,2)}, {v(t0,2)}",
            f"v_pk_fma_f32 {v(t1,2)}, {v(re,2)}, {v(ts,2)}, {v(t1,2)} neg_lo:[1,0,0] neg_hi:[1,0,0]")
        for e in range(2):
            a.e(f"v_cvt_pk_bf16_f32 v{DF+2*p+e}, v{t0+e}, v{t1+e}")
    for t in range(4):
        c0 = "0" if t == 0 else v(ARE, 16); c1 = "0" if t == 0 else v(AIM, 16)
        a.e(f"v_mfma_f32_32x32x16_bf16 {v(ARE,16)}, {v(CRE+4*t,4)}, {v(DF+4*t,4)}, {c0}",
            f"v_mfma_f32_32x32x16_bf16 {v(AIM,16)}, {v(CIM+4*t,4)}, {v(DF+4*t,4)}, {c1}")

def a2_consts(a, sT):
    a.e(f"v_and_b32 v{IDX}, 31, v1", f"v_lshrrev_b32 v{G_}, 5, v1")
    XS, XB = TMP, TMP+1
    a.e(f"v_cvt_f32_u32 v{TMP+2}, v{IDX}", f"v_cvt_f32_u32 v{TMP+3}, v{G_}", f"v_mul_f32 v{TMP+3}, 4.0, v{TMP+3}",
        f"v_mul_f32 v{XS}, {f32hex(1/32)}, v{TMP+2}", f"v_mul_f32 v{XB}, v{TMP+3}, v{XS}")
    a.e(f"v_and_b32 v{TMP+4}, 1, v{IDX}", f"v_mul_u32_u24 v{TMP+4}, 0x8000, v{TMP+4}", f"v_lshl_or_b32 v{TMP+4}, v{TMP+4}, 16, v{TMP+4}")
    for t in range(2):
        for i in range(4):
            c = float(8*t+i); x = TMP+5+3*(i & 1)
            a.e(f"v_fmamk_f32 v{x}, v{XS}, {f32hex(c)}, v{XB}" if c else f"v_mov_b32 v{x}, v{XB}")
            a.e(f"v_cos_f32 v{x+1}, v{x}", f"v_sin_f32 v{x+2}, v{x}")
            a.e(f"v_cvt_pk_bf16_f32 v{CRE+4*t+i}, v{x+1}, v{x+2}", f"v_cvt_pk_bf16_f32 v{CIM+4*t+i}, -v{x+2}, v{x+1}")
    for base in (CRE, CIM):
        for i in range(8):
            a.e(f"v_xor_b32 v{base+8+i}, v{TMP+4}, v{base+i}")
    a.e(f"v_mul_f32 v{XS}, {f32hex(1/1024)}, v{TMP+2}", f"v_mul_f32 v{XB}, v{TMP+3}, v{XS}")
    for r in range(16):
        c = float(eidx(r)); x = TMP+5+(r & 1)
        a.e(f"v_fmamk_f32 v{x}, v{XS}, {f32hex(c)}, v{XB}" if c else f"v_mov_b32 v{x}, v{XB}")
        a.e(f"v_cos_f32 v{TWC+r}, v{x}", f"v_sin_f32 v{TWS+r}, v{x}")
    LO, HI, Q, AV, XA0, XA1, E0, E1 = TMP, TMP+1, TMP+2, TMP+3, TMP+4, TMP+5, TMP+6, TMP+7
    JF, KEY, T2, PO, PAR, N16, G4, CS = [TMP+8+i for i in range(8)]
    Lspec, Ldone = newlbl("ghspec"), newlbl("ghdone")
    a.e(f"v_and_b32 v{LO}, 3, v{IDX}", f"v_bfe_u32 v{HI}, v{IDX}, 2, 2")
    a.e(f"v_and_b32 v{N16}, 15, v1", f"v_lshrrev_b32 v{G4}, 4, v1")
    a.e(f"s_cmp_eq_u32 s{sT}, 0", f"s_cbranch_scc1 {Lspec}")
    a.e(f"v_cvt_f32_u32 v{T2}, s{sT}", f"v_cvt_f32_u32 v{JF}, v{HI}", f"v_fmamk_f32 v{JF}, v{JF}, {f32hex(512.0)}, v{T2}",
        f"v_mul_f32 v{JF}, {f32hex(1/2048)}, v{JF}",
        f"v_cvt_f32_u32 v{XA0}, v{G_}", f"v_add_f32 v{XA0}, v{XA0}, v{XA0}", f"v_add_f32 v{XA1}, 1.0, v{XA0}",
        f"v_mul_f32 v{XA0}, v{XA0}, v{JF}", f"v_mul_f32 v{XA1}, v{XA1}, v{JF}",
        f"v_lshlrev_b32 v{Q}, 3, v{LO}", "s_mov_b32 s50, 0x4631914C", f"v_lshrrev_b32 v{Q}, v{Q}, s50",
        f"v_mov_b32 v{AV}, 0.5", f"v_cmp_gt_u32 vcc, 16, v{IDX}", f"v_cndmask_b32 v{AV}, 0, v{AV}, vcc")
    for jj2 in range(4):
        for e in range(2):
            jj = 2*jj2+e
            xa = XA1 if jj >> 2 else XA0
            a.e(f"v_bfe_u32 v{E0+e}, v{Q}, {2*(jj&3)}, 2", f"v_cvt_f32_u32 v{E0+e}, v{E0+e}",
                f"v_fmamk_f32 v{E0+e}, v{E0+e}, {f32hex(0.25)}, v{xa}", f"v_cos_f32 v{E0+e}, v{E0+e}",
                f"v_mul_f32 v{E0+e}, v{E0+e}, v{AV}")
        a.e(f"v_cvt_pk_bf16_f32 v{GA+jj2}, v{E0}, v{E1}")
    a.e(f"v_bfe_u32 v{HI}, v{N16}, 1, 2", f"v_cvt_f32_u32 v{KEY}, v{HI}", f"v_mul_f32 v{KEY}, {f32hex(1/2048)}, v{KEY}",
        f"v_and_b32 v{JF}, 1, v{G4}", f"v_cvt_f32_u32 v{JF}, v{JF}", f"v_fmamk_f32 v{JF}, v{JF}, {f32hex(1024.0)}, v{T2}",
        f"v_add_f32 v{XA1}, {f32hex(512.0)}, v{JF}", f"v_mul_f32 v{XA0}, v{JF}, v{KEY}", f"v_mul_f32 v{XA1}, v{XA1}, v{KEY}",
        f"v_lshrrev_b32 v{CS}, 1, v{G4}", f"v_lshrrev_b32 v{AV}, 3, v{N16}", f"v_cmp_eq_u32 vcc, v{CS}, v{AV}",
        f"v_mov_b32 v{AV}, {f32hex(2.0**-21)}", f"v_cndmask_b32 v{AV}, 0, v{AV}, vcc",
        f"v_and_b32 v{PO}, 1, v{N16}")
    for part, Hd in ((0, HRE), (1, HIM)):
        w0, w1 = (0x1C, 0xBC) if part == 0 else (0x61, 0x6B)
        a.e(f"v_mov_b32 v{Q}, {w0}", f"v_mov_b32 v{PAR}, {w1}", f"v_cmp_eq_u32 vcc, 1, v{PO}", f"v_cndmask_b32 v{Q}, v{Q}, v{PAR}, vcc")
        for jj2 in range(4):
            for e in range(2):
                jj = 2*jj2+e
                xa = XA1 if jj >> 2 else XA0
                a.e(f"v_bfe_u32 v{E0+e}, v{Q}, {2*(jj&3)}, 2", f"v_cvt_f32_u32 v{E0+e}, v{E0+e}",
                    f"v_fmamk_f32 v{E0+e}, v{E0+e}, {f32hex(0.25)}, v{xa}", f"v_cos_f32 v{E0+e}, v{E0+e}",
                    f"v_mul_f32 v{E0+e}, v{E0+e}, v{AV}")
            a.e(f"v_cvt_pk_bf16_f32 v{Hd+jj2}, v{E0}, v{E1}")
    a.e(f"s_branch {Ldone}")
    a.label(Lspec)
    a.e(f"v_and_b32 v{PO}, 1, v{LO}", f"v_lshrrev_b32 v{PAR}, 1, v{LO}")
    a.e(f"v_lshlrev_b32 v{JF}, 2, v{HI}", "s_mov_b32 s50, 0x3120", f"v_lshrrev_b32 v{JF}, v{JF}, s50", f"v_and_b32 v{JF}, 15, v{JF}",
        f"v_lshlrev_b32 v{JF}, 8, v{JF}", f"v_lshlrev_b32 v{T2}, 10, v{PO}",
        f"v_cmp_eq_u32 vcc, 0, v{HI}", f"v_cndmask_b32 v{JF}, v{JF}, v{T2}, vcc", f"v_mov_b32 v{T2}, 0",
        f"v_cndmask_b32 v{Q}, v{PO}, v{T2}, vcc",
        f"v_cvt_f32_u32 v{JF}, v{JF}", f"v_mul_f32 v{JF}, {f32hex(1/2048)}, v{JF}",
        f"v_cvt_f32_u32 v{Q}, v{Q}", f"v_mul_f32 v{Q}, {f32hex(0.25)}, v{Q}",
        f"v_cvt_f32_u32 v{XA0}, v{G_}", f"v_add_f32 v{XA0}, v{XA0}, v{XA0}", f"v_add_f32 v{XA1}, 1.0, v{XA0}",
        f"v_fma_f32 v{XA0}, v{XA0}, v{JF}, v{Q}", f"v_fma_f32 v{XA1}, v{XA1}, v{JF}, v{Q}",
        f"v_cos_f32 v{XA0}, v{XA0}", f"v_cos_f32 v{XA1}, v{XA1}",
        f"v_lshrrev_b32 v{KEY}, 1, v{HI}", f"v_lshl_add_u32 v{KEY}, v{KEY}, 1, v{PAR}",
        f"v_lshrrev_b32 v{T2}, 4, v{IDX}", f"v_lshl_add_u32 v{KEY}, v{T2}, 2, v{KEY}", f"v_mov_b32 v{T2}, 0")
    for jj2 in range(4):
        for e in range(2):
            jj = 2*jj2+e
            xa = XA1 if jj >> 2 else XA0
            a.e(f"v_cmp_eq_u32 vcc, {jj&3}, v{KEY}", f"v_cndmask_b32 v{E0+e}, v{T2}, v{xa}, vcc")
        a.e(f"v_cvt_pk_bf16_f32 v{GA+jj2}, v{E0}, v{E1}")
    SAF, GS = JF, PAR
    a.e(f"v_bfe_u32 v{HI}, v{N16}, 1, 2", f"v_cvt_f32_u32 v{SAF}, v{HI}", f"v_mul_f32 v{SAF}, {f32hex(1/2048)}, v{SAF}",
        f"v_and_b32 v{GS}, 1, v{G4}", f"v_and_b32 v{PO}, 1, v{N16}",
        f"v_lshrrev_b32 v{CS}, 1, v{G4}", f"v_lshrrev_b32 v{T2}, 3, v{N16}",
        f"v_cmp_eq_u32 s[44:45], v{CS}, v{T2}", f"v_cmp_eq_u32 s[46:47], v{GS}, v{PO}", "s_and_b64 s[44:45], s[44:45], s[46:47]",
        f"v_cmp_eq_u32 s[46:47], 0, v{GS}")
    for part, Hd in ((0, HRE), (1, HIM)):
        for jj in range(8):
            sl, par, pi = jj >> 2, (jj >> 1) & 1, jj & 1
            e = E0 + (jj & 1)
            if par != part:
                a.e(f"v_mov_b32 v{e}, 0")
            else:
                if sl == 0:
                    j0, q0, a0 = 1024.0*pi, 0.5*pi, 2.0**-21
                    j1, q1, a1 = 256.0, 0.75*pi, 2.0**-20
                else:
                    j0, q0, a0 = 512.0, 0.75*pi, 2.0**-20
                    j1, q1, a1 = 768.0, 0.75*pi, 2.0**-20
                def sel(dst, x0, x1):
                    a.e(f"v_mov_b32 v{dst}, {f32hex(x1)}", f"v_mov_b32 v{AV}, {f32hex(x0)}", f"v_cndmask_b32 v{dst}, v{dst}, v{AV}, s[46:47]")
                sel(XA0, j0, j1); sel(XA1, q0 + 0.5*part, q1 + 0.5*part)
                a.e(f"v_fma_f32 v{XA0}, v{XA0}, v{SAF}, v{XA1}", f"v_cos_f32 v{XA0}, v{XA0}")
                sel(XA1, a0, a1)
                a.e(f"v_mul_f32 v{XA0}, v{XA0}, v{XA1}", f"v_mov_b32 v{XA1}, 0", f"v_cndmask_b32 v{e}, v{XA1}, v{XA0}, s[44:45]")
            if jj & 1: a.e(f"v_cvt_pk_bf16_f32 v{Hd+(jj>>1)}, v{E0}, v{E1}")
    a.label(Ldone)
    a.e("s_nop 1")

def gen_A(a):
    SX, SI1, SI2, SOUT, SWR, SWI = 32, 36, 40, 40, 44, 48
    SX, SI1, SWR, SWI, SI2, SOUT = 32, 36, 80, 84, 88, 92
    if gen.PROF: pass
    a.e(f"s_setprio {OPT['prioA']}") if OPT['prioA'] else None
    srd(a, SX, P_X, P_X+1, 4*MB); srd(a, SI1, P_WS, P_WS+1, 4*MB, add=WS_I1)
    srd(a, SWR, P_WR, P_WR+1, WBYTES); srd(a, SWI, P_WI, P_WI+1, WBYTES)
    srd(a, SI2, P_WS, P_WS+1, 4*MB, add=WS_I2); srd(a, SOUT, P_OUT, P_OUT+1, 8*MB)
    sT, sSA, sCB, sJ, sJM, sJP, sJQ, sTL = 40, 41, 42, 43, 72, 73, 74, 44
    a.e(f"s_sub_u32 s{sT}, s2, 256", f"s_lshr_b32 s48, s{sT}, 4", f"s_and_b32 s49, s{sT}, 7",
        f"s_lshr_b32 s{sSA}, s48, 2", "s_bfe_u32 s50, s48, 0x10001", "s_lshl_b32 s50, s50, 3", "s_add_u32 s50, s50, s49",
        "s_lshl_b32 s50, s50, 1", "s_and_b32 s51, s48, 1", f"s_add_u32 s{sCB}, s50, s51",
        "s_lshl_b32 s48, s48, 3", f"s_add_u32 s{sTL}, s48, s49")
    Lr = newlbl("reg")
    a.e("s_lshl_b32 s48, s3, 9", f"s_add_u32 s{sJ}, s{sT}, s48", f"s_mov_b32 s{sJP}, s{sT}", f"s_sub_u32 s{sJQ}, 512, s{sT}",
        f"s_cmp_lg_u32 s{sT}, 0", f"s_cbranch_scc1 {Lr}",
        f"s_mov_b32 s{sJQ}, 256", "s_lshl_b32 s48, s3, 2", "s_lshr_b32 s49, 0x3120, s48", "s_and_b32 s49, s49, 15", f"s_lshl_b32 s{sJ}, s49, 8")
    a.label(Lr)
    a.e(f"s_sub_u32 s{sJM}, 2048, s{sJ}", f"s_and_b32 s{sJM}, s{sJM}, 2047",
        f"s_mul_i32 s{sJ}, s{sJ}, 1026", f"s_mul_i32 s{sJM}, s{sJM}, 1026")
    a.e(f"s_or_b32 s75, s{sT}, s3")
    a.e(f"s_mov_b32 s48, {WS_SYNC+SY_EA}", f"s_load_dword s{S_TGT}, s[{P_WS}:{P_WS+1}], s48")
    stamp(a, 0, True); stamp(a, 1)
    Lp1 = newlbl("nop1")
    a.e("s_mov_b32 s98, 4096", "s_mov_b32 s99, 8192", "s_mov_b32 s100, 12288")
    Ln = newlbl("now2")
    a.e("s_cmp_lg_u32 s75, 0", f"s_cbranch_scc1 {Ln}")
    a.e(f"s_mov_b32 s48, {1024*1026}")
    pf_loads(a, SWR, SWI, 48, 48, PF2, F_TMP)
    a.label(Ln)
    a.e(f"s_bitcmp1_b32 s{sT}, 3", f"s_cbranch_scc1 {Lp1}_in")
    fft512_addr(a, sSA, sCB)
    fft512_loads(a, SX, NT())
    pf_loads(a, SWR, SWI, sJ, sJM, PF, F_TMP)
    stamp(a, 12)
    fft512_addr2(a, sSA, sCB, 2048, 8192)
    fft512_consts(a)
    a.e("s_waitcnt lgkmcnt(0)", f"s_add_u32 s{S_TGT}, s{S_TGT}, 1")
    fft512_compute(a, SI1, False, 4, "sc1", 2)
    stamp(a, 4)
    a.e(f"s_lshl_b32 s48, s{sTL}, 6", f"s_add_u32 s48, s48, {SY_A1}")
    signal(a, 48, F_TMP)
    a.e(f"s_branch {Lp1}")
    a.label(f"{Lp1}_in")
    pf_loads(a, SWR, SWI, sJ, sJM, PF, F_TMP)
    a.e("s_waitcnt lgkmcnt(0)", f"s_add_u32 s{S_TGT}, s{S_TGT}, 1")
    stamp(a, 12); stamp(a, 2); stamp(a, 3); stamp(a, 4)
    a.label(Lp1)
    stamp(a, 5)
    a.e("v_lshlrev_b32 v15, 4, v1")
    Lw0, Lw1 = newlbl("w0"), newlbl("w1")
    a.e("s_cmp_eq_u32 s3, 0", f"s_cbranch_scc1 {Lw0}")
    a.e("s_lshl_b32 s48, s3, 12", f"s_add_u32 s48, s48, {LW}")
    w_dma(a, SWR, SWI, sJ, sJM, 48, 15)
    a.e("s_cmp_lg_u32 s3, 1", f"s_cbranch_scc1 {Lw0}")
    a.e(f"s_sub_u32 s49, 2048, s{sT}", "s_and_b32 s49, s49, 2047", "s_mul_i32 s49, s49, 1026", f"s_mul_i32 s48, s{sT}, 1026",
        f"s_mov_b32 s76, {LW}")
    w_dma(a, SWR, SWI, 48, 49, 76, 15)
    a.e(f"s_cmp_lg_u32 s{sT}, 0", f"s_cbranch_scc1 {Lw0}")
    a.e(f"s_mov_b32 s48, {1024*1026}", f"s_mov_b32 s76, {LW2}")
    w_dma(a, SWR, SWI, 48, 48, 76, 15)
    a.label(Lw0)
    a2_consts(a, sT)
    a.e(f"v_lshl_add_u32 v{TMP}, v{G_}, 7, v{IDX}",
        "s_lshl_b32 s48, s3, 12", f"s_add_u32 s48, s48, {LW}",
        f"v_lshl_add_u32 v{VW}, v{TMP}, 1, s48",
        f"v_sub_u32 v{TMP+1}, {1023-32*27}, v{TMP}", f"s_add_u32 s49, s48, 2048", f"v_lshl_add_u32 v{VW+1}, v{TMP+1}, 1, s49")
    a.e(f"v_lshlrev_b32 v{VG}, 12, v{G_}", f"v_lshl_add_u32 v{VG}, v{IDX}, 2, v{VG}",
        "s_lshl_b32 s49, s3, 9",
        f"s_lshl_b32 s52, s{sJP}, 13", "s_add_u32 s52, s52, s49",
        f"s_lshl_b32 s53, s{sJQ}, 13", "s_add_u32 s53, s53, s49")
    a.e(f"v_lshlrev_b32 v{VGW}, 12, v{G_}", f"v_lshl_add_u32 v{VGW}, v{IDX}, 3, v{VGW}", "s_lshl_b32 s50, s3, 10", f"v_add_u32 v{VGW}, s50, v{VGW}",
        f"v_lshlrev_b32 v{VRR}, 9, v{G_}", f"v_lshl_add_u32 v{VRR}, v{IDX}, 2, v{VRR}", "s_lshl_b32 s51, s3, 12", f"v_add_u32 v{VRR}, s51, v{VRR}")
    for t in range(1, 4): a.e(f"v_add_u32 v{VRR+t}, {1024*t}, v{VRR}")
    a.e(f"v_lshrrev_b32 v{TMP}, 4, v1", f"v_and_b32 v{TMP+1}, 1, v{TMP}", f"v_lshlrev_b32 v{VHR}, 13, v{TMP+1}",
        f"v_lshrrev_b32 v{TMP+1}, 1, v{TMP}", f"v_lshl_add_u32 v{VHR}, v{TMP+1}, 7, v{VHR}",
        f"v_and_b32 v{TMP+1}, 15, v1", f"v_lshl_add_u32 v{VHR}, v{TMP+1}, 3, v{VHR}", f"v_add_u32 v{VHR}, s50, v{VHR}")
    a.e(f"v_and_b32 v{TMP+2}, 1, v{TMP+1}", f"v_mov_b32 v{TMP+3}, s52", f"v_mov_b32 v{TMP+4}, s53",
        f"v_cmp_eq_u32 vcc, 1, v{TMP+2}", f"v_cndmask_b32 v{VST}, v{TMP+3}, v{TMP+4}, vcc",
        f"v_bfe_u32 v{TMP+2}, v{TMP+1}, 1, 2", f"v_lshl_add_u32 v{VST}, v{TMP+2}, 11, v{VST}",
        f"v_lshrrev_b32 v{TMP+2}, 3, v{TMP+1}", f"v_lshl_add_u32 v{VST}, v{TMP+2}, 6, v{VST}",
        f"v_lshl_add_u32 v{VST}, v{TMP}, 4, v{VST}")
    a.e(f"v_lshlrev_b32 v{TMP}, 6, v1", f"v_add_u32 v{TMP}, {SY_A1}, v{TMP}")
    stamp(a, 6)
    wait_flags(a, TMP, 2, TMP+1, 48)
    stamp(a, 7)
    for u in range(4):
        for sl in range(2):
            for pq in range(2):
                a.e(f"buffer_load_dword v{GB+4*u+2*sl+pq}, v{VG}, s[{SI1}:{SI1+3}], s{52+pq} offen offset:{2048*sl+128*u} sc1")
    for rnd in range(2):
        a.e(f"s_waitcnt vmcnt({8-8*rnd})")
        for uu in range(2):
            u = 2*rnd+uu
            a.e(f"v_mfma_f32_32x32x16_bf16 {v(ARE if uu == 0 else AIM,16)}, {v(GA,4)}, {v(GB+4*u,4)}, 0")
        for uu in range(2):
            u = 2*rnd+uu
            D = ARE if uu == 0 else AIM
            t = TMP+4*uu
            for h in range(2):
                a.e(f"v_cvt_pk_bf16_f32 v{t}, v{D+4*h}, v{D+4*h+1}", f"v_cvt_pk_bf16_f32 v{t+1}, v{D+4*h+2}, v{D+4*h+3}",
                    f"ds_write_b64 v{VGW}, {v(t,2)} offset:{256*u+8192*h}")
                t += 2
    a.e("s_waitcnt lgkmcnt(0)", "s_barrier")
    stamp(a, 8)
    for t in range(4):
        a.e(f"ds_read2_b32 {v(DF+4*t,2)}, v{VRR+t} offset0:0 offset1:32", f"ds_read2_b32 {v(DF+4*t+2,2)}, v{VRR+t} offset0:64 offset1:96")
    a.e("s_waitcnt lgkmcnt(0)")
    w_lds_reads(a, VW, VW+1, WR, WI)
    fft1024(a)
    a.e("s_waitcnt lgkmcnt(0)")
    fix_w(a, WR, WI, PF)
    Lsp, Linv = newlbl("special"), newlbl("inv")
    a.e("s_cmp_eq_u32 s75, 0", f"s_cbranch_scc1 {Lsp}")
    for p in range(8):
        xr, xi, wr, wi = ARE+2*p, AIM+2*p, WR+2*p, WI+2*p
        t0 = TMP+4*(p & 1); t1 = t0+2
        n0 = " neg_lo:[1,0,0] neg_hi:[1,0,0]" if p < 4 else ""
        n1 = "" if p < 4 else " neg_lo:[1,0,0] neg_hi:[1,0,0]"
        a.e(f"v_pk_mul_f32 {v(t0,2)}, {v(xr,2)}, {v(wr,2)}", f"v_pk_mul_f32 {v(t1,2)}, {v(xi,2)}, {v(wr,2)}",
            f"v_pk_fma_f32 {v(t0,2)}, {v(xi,2)}, {v(wi,2)}, {v(t0,2)}{n0}",
            f"v_pk_fma_f32 {v(t1,2)}, {v(xr,2)}, {v(wi,2)}, {v(t1,2)}{n1}")
        for e in range(2):
            a.e(f"v_cvt_pk_bf16_f32 v{DF+2*p+e}, v{t0+e}, -v{t1+e}")
    a.label(Linv)
    a.e("s_nop 1")
    fft1024(a)
    for r in range(16):
        t = TMP + (r & 7)
        a.e(f"v_cvt_pk_bf16_f32 v{t}, v{ARE+r}, v{AIM+r}", f"ds_write_b32 v{VRR}, v{t} offset:{128*eidx(r)}")
    a.e("s_waitcnt lgkmcnt(0)", "s_barrier")
    stamp(a, 9)
    for u in range(4):
        for sl in range(2):
            a.e(f"ds_read_b64 {v(GB+4*u+2*sl,2)}, v{VHR} offset:{4096*sl+256*u}")
    a.e("s_lshl_b32 s49, s3, 9")
    for u in range(4):
        a.e(f"s_waitcnt lgkmcnt({6-2*u})")
        a.e(f"v_mfma_f32_16x16x32_bf16 {v(ARE+4*u,4)}, {v(GB+4*u,4)}, {v(HRE,4)}, 0",
            f"v_mfma_f32_16x16x32_bf16 {v(AIM+4*u,4)}, {v(GB+4*u,4)}, {v(HIM,4)}, 0")
    for u in range(4):
        for r in range(4):
            a.e(f"v_cvt_pk_bf16_f32 v{DF+4*u+r}, v{ARE+4*u+r}, v{AIM+4*u+r}")
        a.e(f"buffer_store_dwordx4 {v(DF+4*u,4)}, v{VST}, s[{SI2}:{SI2+3}], 0 offen offset:{128*u} sc1")
    a.e(f"s_lshl_b32 s48, s{sT}, 6", f"s_add_u32 s48, s48, {SY_A2}")
    signal(a, 48, TMP)
    stamp(a, 10)
    Lb = newlbl("nobump")
    a.e(f"s_bitcmp1_b32 s{sT}, 3", "s_cbranch_scc1 L_fin")
    fft512_addr(a, sSA, sCB)
    fft512_addr2(a, sSA, sCB, 4096, 16384)
    fft512_consts(a)
    a.e(f"v_lshlrev_b32 v{F_TMP}, 6, v1", f"v_add_u32 v{F_TMP}, {SY_A2}, v{F_TMP}")
    wait_flags(a, F_TMP, 4, F_TMP+1, 48)
    stamp(a, 11)
    a.e("s_cmp_lg_u32 s75, 0", f"s_cbranch_scc1 {Lb}", f"s_mov_b32 s48, {SY_EA}")
    bump(a, 48, F_TMP)
    a.label(Lb)
    fft512_loads(a, SI2, "sc1")
    save = gen.PROF; gen.PROF = False
    fft512_compute(a, SOUT, True, 0, NTO(), 0)
    gen.PROF = save
    if gen.PROF:
        a.e("s_waitcnt vmcnt(0)")
    a.e("s_branch L_fin")
    a.label(Lsp)
    a.e(f"v_lshl_add_u32 v{TMP}, v{G_}, 7, v{IDX}", f"v_sub_u32 v{TMP+1}, {1023-32*27}, v{TMP}",
        f"s_mov_b32 s48, {LW2}", f"v_lshl_add_u32 v{TMP+2}, v{TMP}, 1, s48", f"s_mov_b32 s49, {LW2+2048}", f"v_lshl_add_u32 v{TMP+3}, v{TMP+1}, 1, s49")
    w_lds_reads(a, TMP+2, TMP+3, W2R, W2I)
    a.e("s_waitcnt lgkmcnt(0)")
    fix_w(a, W2R, W2I, PF2)
    VS = SP; K0 = SP+1
    a.e(f"v_lshlrev_b32 v{VS}, 9, v{G_}", f"v_lshl_add_u32 v{VS}, v{IDX}, 2, v{VS}")
    for r in range(16):
        a.e(f"ds_write_b32 v{VS}, v{ARE+r} offset:{LSC+128*eidx(r)}", f"ds_write_b32 v{VS}, v{AIM+r} offset:{LSC+4096+128*eidx(r)}")
    a.e(f"v_lshl_add_u32 v{K0}, v{G_}, 7, v{IDX}", f"v_sub_u32 v{K0}, 1024, v{K0}", "s_waitcnt lgkmcnt(0)")
    for r in range(16):
        ad, rr, ri, ur, ui, vr, vi, o0, o1 = [SP+2+i for i in range(9)]
        a.e(f"v_subrev_u32 v{ad}, {32*eidx(r)}, v{K0}", f"v_and_b32 v{ad}, 1023, v{ad}", f"v_lshlrev_b32 v{ad}, 2, v{ad}",
            f"ds_read_b32 v{rr}, v{ad} offset:{LSC}", f"ds_read_b32 v{ri}, v{ad} offset:{LSC+4096}", "s_waitcnt lgkmcnt(0)")
        pr, pi_ = ARE+r, AIM+r
        a.e(f"v_add_f32 v{ur}, v{pr}, v{rr}", f"v_sub_f32 v{ui}, v{pi_}, v{ri}",
            f"v_sub_f32 v{vr}, v{pr}, v{rr}", f"v_add_f32 v{vi}, v{pi_}, v{ri}")
        sg = "-" if r < 8 else ""; ns = "" if r < 8 else "-"
        ar, ai, br, bi = WR+r, WI+r, W2R+r, W2I+r
        a.e(f"v_mul_f32 v{o0}, v{ur}, v{ar}", f"v_fma_f32 v{o0}, {sg}v{ui}, v{ai}, v{o0}",
            f"v_fma_f32 v{o0}, v{vr}, v{br}, v{o0}", f"v_fma_f32 v{o0}, {sg}v{vi}, v{bi}, v{o0}",
            f"v_mul_f32 v{o1}, v{ui}, v{ar}", f"v_fma_f32 v{o1}, {ns}v{ur}, v{ai}, v{o1}",
            f"v_fma_f32 v{o1}, v{vi}, v{br}, v{o1}", f"v_fma_f32 v{o1}, {ns}v{vr}, v{bi}, v{o1}",
            f"v_mul_f32 v{o0}, 0.5, v{o0}", f"v_mul_f32 v{o1}, 0.5, v{o1}",
            f"v_cvt_pk_bf16_f32 v{DF+r}, v{o0}, -v{o1}")
    a.e(f"s_branch {Linv}")

def gen_B(a):
    SK, SV, SSH, SKVT, SH, STT, SQ, SOUT = 32, 36, 40, 44, 80, 84, 88, 92
    a.e(f"s_setprio {OPT['prioB']}") if OPT['prioB'] else None
    srd(a, SK, P_K, P_K+1, 4*MB); srd(a, SV, P_V, P_V+1, 4*MB); srd(a, SSH, P_SHK, P_SHK+1, 8192)
    srd(a, SKVT, P_WS, P_WS+1, 4*MB, add=WS_KVT); srd(a, SH, P_SSMK, P_SSMK+1, 4*MB)
    srd(a, STT, P_WS, P_WS+1, 4*MB, add=WS_TT); srd(a, SQ, P_Q, P_Q+1, 4*MB); srd(a, SOUT, P_OUT, P_OUT+1, 8*MB)
    sCBK, sSUB, sD, sD4K, sLB, sROW, sCH = 48, 49, 50, 51, 52, 53, 54
    a.e(f"s_and_b32 s{sCBK}, s2, 7", f"s_lshl_b32 s{sCBK}, s{sCBK}, 1", "s_bfe_u32 s55, s2, 0x10003", f"s_add_u32 s{sCBK}, s{sCBK}, s55",
        f"s_lshr_b32 s{sSUB}, s2, 4",
        f"s_lshl_b32 s{sD}, s{sCBK}, 4", f"s_add_u32 s{sD}, s{sD}, s{sSUB}", f"s_lshl_b32 s{sD}, s{sD}, 2", f"s_add_u32 s{sD}, s{sD}, s3",
        f"s_lshl_b32 s{sD4K}, s{sD}, 12", f"s_mul_i32 s{sLB}, s3, {LB_STRIDE}",
        f"s_lshl_b32 s{sROW}, s{sSUB}, 7", "s_lshl_b32 s55, s3, 5", f"s_add_u32 s{sROW}, s{sROW}, s55",
        f"s_lshl_b32 s{sCH}, s{sCBK}, 6")
    a.e(f"s_lshl_b32 s55, s{sCBK}, 7", f"s_add_u32 s55, s55, {WS_SYNC+SY_EB}", f"s_load_dword s{S_TGT}, s[{P_WS}:{P_WS+1}], s55")
    stamp(a, 0, True); stamp(a, 1)
    a.e(f"s_and_b32 s55, s{sD}, 0xfffffffe", "s_lshl_b32 s55, s55, 1", f"s_load_dword s56, s[{P_SSMD}:{P_SSMD+1}], s55")
    CG, RG, S0, CH0, VOFF, VH, VST, VSH = 2, 3, 4, 5, 6, 7, 8, 9
    VQO = 208; QR = 192
    VT = 209
    a.e(f"v_and_b32 v{CG}, 15, v1", f"v_lshrrev_b32 v{RG}, 4, v1",
        f"v_lshl_add_u32 v{S0}, v{RG}, 3, s{sROW}", f"v_lshl_add_u32 v{CH0}, v{CG}, 2, s{sCH}",
        f"v_lshlrev_b32 v{VOFF}, 11, v{S0}", f"v_lshl_add_u32 v{VOFF}, v{CH0}, 1, v{VOFF}",
        f"v_subrev_u32 v{VH}, 6144, v{VOFF}",
        f"v_lshlrev_b32 v{VST}, 12, v{CH0}", f"v_lshl_add_u32 v{VST}, v{S0}, 1, v{VST}",
        f"v_lshlrev_b32 v{VSH}, 3, v{CH0}")
    for i in range(1, 8): a.e(f"s_mov_b32 s{57+i-1}, {4096*i}")
    soff = ["0"] + [f"s{57+i}" for i in range(7)]
    KR, VR, SHR, KF, SHF, KV, TM, PK = 16, 38, 54, 64, 108, 124, 156, 16
    a.e(f"buffer_load_dwordx4 {v(SHR,4)}, v{VSH}, s[{SSH}:{SSH+3}], 0 offen",
        f"buffer_load_dwordx4 {v(SHR+4,4)}, v{VSH}, s[{SSH}:{SSH+3}], 0 offen offset:16")
    for i in range(3):
        a.e(f"buffer_load_dwordx2 {v(KR+2*i,2)}, v{VH}, s[{SK}:{SK+3}], {soff[i>>1]} offen" + (" offset:2048" if i & 1 else "") + NT())
    for i in range(8):
        a.e(f"buffer_load_dwordx2 {v(KR+6+2*i,2)}, v{VOFF}, s[{SK}:{SK+3}], {soff[i>>1]} offen" + (" offset:2048" if i & 1 else "") + NT())
    for i in range(8):
        a.e(f"buffer_load_dwordx2 {v(VR+2*i,2)}, v{VOFF}, s[{SV}:{SV+3}], {soff[i>>1]} offen" + (" offset:2048" if i & 1 else "") + NT())
    NA = 0
    a.e(f"v_lshlrev_b32 v{VQO}, 12, v{S0}", f"v_lshl_add_u32 v{VQO}, v{CH0}, 1, v{VQO}", f"v_add_u32 v{VQO}, 2048, v{VQO}", f"v_mov_b32 v{VT}, v{VST}", f"v_mov_b32 v212, v{VOFF}")
    stamp(a, 2)
    a.e("s_mov_b32 s66, 0xffff0000")
    a.e(f"s_waitcnt vmcnt({19+NA})")
    for ch in range(4):
        for j in range(4):
            src = SHR + 2*ch + (j >> 1)
            if j & 1: a.e(f"v_and_b32 v{SHF+4*j+ch}, s66, v{src}")
            else:     a.e(f"v_lshlrev_b32 v{SHF+4*j+ch}, 16, v{src}")
    for i in range(11):
        a.e(f"s_waitcnt vmcnt({18-i+NA})")
        for hf in range(2):
            a.e(f"v_lshlrev_b32 v{KF+4*i+2*hf}, 16, v{KR+2*i+hf}", f"v_and_b32 v{KF+4*i+2*hf+1}, s66, v{KR+2*i+hf}")
    for i in range(8):
        a.e(f"s_waitcnt vmcnt({7-i+NA})")
        for hf in range(2):
            a.e(f"v_lshlrev_b32 v{TM+2*hf}, 16, v{VR+2*i+hf}", f"v_and_b32 v{TM+2*hf+1}, s66, v{VR+2*i+hf}")
        for hf in range(2):
            acc = KV+4*i+2*hf
            a.e(f"v_pk_mul_f32 {v(acc,2)}, {v(KF+4*(i+3)+2*hf,2)}, {v(SHF+2*hf,2)}")
            for j in range(1, 4):
                a.e(f"v_pk_fma_f32 {v(acc,2)}, {v(KF+4*(i+3-j)+2*hf,2)}, {v(SHF+4*j+2*hf,2)}, {v(acc,2)}")
            a.e(f"v_pk_mul_f32 {v(acc,2)}, {v(acc,2)}, {v(TM+2*hf,2)}")
    stamp(a, 3)
    for ch in range(4):
        for m in range(4):
            a.e(f"v_cvt_pk_bf16_f32 v{PK+4*ch+m}, v{KV+4*(7-2*m)+ch}, v{KV+4*(6-2*m)+ch}")
        a.e(f"buffer_store_dwordx4 {v(PK+4*ch,4)}, v{VST}, s[{SKVT}:{SKVT+3}], {soff[ch]} offen sc1")
    a.e(f"s_lshl_b32 s64, s{sCBK}, 10", f"s_lshl_b32 s65, s{sSUB}, 6", "s_add_u32 s65, s65, s64",
        f"s_add_u32 s67, s65, {SY_B1}", f"s_add_u32 s68, s65, {SY_B2}", f"s_add_u32 s69, s64, {SY_B1}", f"s_add_u32 s70, s64, {SY_B2}")
    a.e("s_waitcnt lgkmcnt(0)", f"s_add_u32 s{S_TGT}, s{S_TGT}, 1")
    signal(a, 67, 14)
    stamp(a, 4)
    a.e("v_lshlrev_b32 v10, 4, v1")
    a.e(f"s_add_u32 s64, s{sLB}, 32", "s_mov_b32 m0, s64")
    for ch in range(4): a.e(f"buffer_load_dwordx4 v10, s[{SH}:{SH+3}], s{sD4K} offen offset:{1024*ch} lds" + NT())
    a.e(f"s_add_u32 s64, s{sLB}, 4192", f"s_add_u32 s65, s{sD4K}, 2", "s_mov_b32 m0, s64")
    for ch in range(4): a.e(f"buffer_load_dwordx4 v10, s[{SH}:{SH+3}], s65 offen offset:{1024*ch} lds" + NT())
    a.e("v_mov_b32 v11, 0x7ffffff0", f"v_mov_b32 v12, s{sD4K}", "v_cmp_eq_u32 vcc, 15, v1", "v_cndmask_b32 v11, v11, v12, vcc",
        f"buffer_load_short_d16_hi v210, v11, s[{SH}:{SH+3}], 0 offen")

    LN16, B_, G4, VA, VB, VE, VS2, T = 2, 3, 4, 5, 9, 10, 11, 12
    a.e(f"v_lshlrev_b32 v{T}, 2, v1",
        f"v_add_u32 v{T+1}, {4160-32}, v{T}", "v_cmp_le_u32 vcc, 8, v1", f"v_cndmask_b32 v{T+3}, v{T}, v{T+1}, vcc",
        f"v_add_u32 v{T+1}, 8288, v{T}", "v_cmp_le_u32 vcc, 16, v1", f"v_cndmask_b32 v{T+3}, v{T+3}, v{T+1}, vcc",
        f"v_add_u32 v211, s{sLB}, v{T+3}")
    a.e(f"v_lshlrev_b32 v{T}, 3, v1", f"v_add_u32 v{T}, s{sLB}, v{T}", "v_mov_b32 v16, 0", "v_mov_b32 v17, 0", f"ds_write_b64 v{T}, v[16:17] offset:8288")
    a.e(f"v_and_b32 v{B_}, 15, v1", f"v_lshrrev_b32 v{G4}, 4, v1")
    a.e(f"v_and_b32 v{VA}, 1, v{B_}", f"v_xor_b32 v{VA}, 1, v{VA}", f"v_mul_u32_u24 v{VA}, 4160, v{VA}",
        f"v_add_u32 v{VA+1}, 1, v{B_}", f"v_lshrrev_b32 v{VA+1}, 1, v{VA+1}", f"v_lshl_add_u32 v{VA}, v{VA+1}, 2, v{VA}",
        f"v_lshlrev_b32 v{VA+1}, 4, v{G4}", f"v_sub_u32 v{VA}, v{VA}, v{VA+1}",
        f"s_add_u32 s64, s{sLB}, 16", f"v_add_u32 v{VA}, s64, v{VA}")
    for pp in range(1, 4): a.e(f"v_add_u32 v{VA+pp}, {1024*pp}, v{VA}")
    a.e(f"v_lshlrev_b32 v{VB}, 5, v{B_}", f"v_lshl_add_u32 v{VB}, v{G4}, 4, v{VB}",
        f"s_add_u32 s64, s{sLB}, {8800-480}", f"v_add_u32 v{VB}, s64, v{VB}")
    a.e(f"v_lshrrev_b32 v{VE}, 1, v{G4}", f"v_lshlrev_b32 v{VE}, 4, v{VE}", f"v_lshl_add_u32 v{VE}, v{B_}, 5, v{VE}",
        f"v_and_b32 v18, 1, v{G4}", "v_xor_b32 v18, 1, v18", f"v_lshl_add_u32 v{VE}, v18, 3, v{VE}",
        f"s_add_u32 s64, s{sLB}, 8800", f"v_add_u32 v{VE}, s64, v{VE}")
    a.e(f"v_and_b32 v18, 1, v{G4}", f"v_lshlrev_b32 v{VS2}, 9, v18", f"v_lshl_add_u32 v{VS2}, v{B_}, 5, v{VS2}",
        f"v_lshrrev_b32 v18, 1, v{G4}", f"v_lshl_add_u32 v{VS2}, v18, 4, v{VS2}", f"v_add_u32 v{VS2}, s{sD4K}, v{VS2}")
    a.e(f"v_lshlrev_b32 v{LN16}, 4, v1", f"s_add_u32 s64, s{sLB}, 8800", f"v_add_u32 v19, s64, v{LN16}")
    a.e("s_waitcnt lgkmcnt(0)",
        f"s_and_b32 s64, s{sD}, 1", "s_lshl_b32 s65, s56, 16", "s_and_b32 s71, s56, 0xffff0000",
        "s_cmp_eq_u32 s64, 1", "s_cselect_b32 s56, s71, s65")
    a.e(f"v_and_b32 v{T}, 15, v1", f"v_lshlrev_b32 v{T}, 6, v{T}", f"v_add_u32 v{T}, s69, v{T}")
    stamp(a, 5)
    wait_flags(a, T, 1, T+1, 64)
    stamp(a, 6)
    ACC = 20
    SETS = [(52, 84), (116, 148)]
    U = SETS[1][1]
    for ch in range(4):
        a.e(f"buffer_load_dwordx4 {v(U+4*ch,4)}, v{LN16}, s[{SKVT}:{SKVT+3}], s{sD4K} offen offset:{1024*ch} sc1")
    def reads(rho, st):
        A, B = SETS[st]
        out = []
        for p in range(8):
            o = 8*rho + 128*(p & 1)
            out.append(f"ds_read2_b32 {v(A+4*p,2)}, v{VA+(p>>1)} offset0:{o} offset1:{o+1}")
            out.append(f"ds_read2_b32 {v(A+4*p+2,2)}, v{VA+(p>>1)} offset0:{o+2} offset1:{o+3}")
        outb = [f"ds_read_b128 {v(B+4*q,4)}, v{VB} offset:{512*q+32*(15-rho)}" for q in range(8)]
        return out, outb
    rhos = list(range(1, 16, 2))
    ra, rb = reads(rhos[0], 0)
    for i in range(8):
        a.e(f"buffer_load_dwordx2 {v(QR+2*i,2)}, v212, s[{SQ}:{SQ+3}], {soff[i>>1]} offen" + (" offset:2048" if i & 1 else "") + NT())
    a.e("s_waitcnt vmcnt(11)", "ds_write_b32 v211, v210")
    a.e("s_waitcnt lgkmcnt(0)")
    for r in ra: a.e(r)
    for ch in range(4):
        a.e(f"s_waitcnt vmcnt({3-ch+8})", f"ds_write_b128 v19, {v(U+4*ch,4)} offset:{1024*ch}")
    a.e("s_waitcnt lgkmcnt(0)")
    for r in rb: a.e(r)
    stamp(a, 7)
    for ci, rho in enumerate(rhos):
        st = ci & 1
        A, B = SETS[st]
        if ci+1 < len(rhos):
            ra, rb = reads(rhos[ci+1], st ^ 1); nxt = ra[0:2] + rb + ra[2:]
        else:
            nxt = [f"ds_read_b64 {v(SETS[st^1][0]+2*j,2)}, v{VE} offset:{512*j}" for j in range(8)]
        a.e("s_waitcnt lgkmcnt(0)")
        n = 0
        for p in range(8):
            for q in range(8-p):
                j = p+q
                c = "0" if (ci == 0 and p == 0) else v(ACC+4*j, 4)
                a.e(f"v_mfma_f32_16x16x32_bf16 {v(ACC+4*j,4)}, {v(A+4*p,4)}, {v(B+4*q,4)}, {c}")
                if n < len(nxt): a.e(nxt[n])
                n += 1
    KVR = SETS[0][0]; TMv = 116
    a.e("s_waitcnt lgkmcnt(0)")
    stamp(a, 8)
    for jp in range(4):
        base = TMv + 16*(jp & 1)
        for hh in range(2):
            j = 2*jp+hh
            w0, w1 = KVR+2*j, KVR+2*j+1
            t = base+4
            a.e(f"v_and_b32 v{t}, s66, v{w1}", f"v_lshlrev_b32 v{t+1}, 16, v{w1}",
                f"v_and_b32 v{t+2}, s66, v{w0}", f"v_lshlrev_b32 v{t+3}, 16, v{w0}")
            for r in range(4):
                a.e(f"v_fma_f32 v{t+r}, v{t+r}, s56, v{ACC+4*j+r}")
            a.e(f"v_cvt_pk_bf16_f32 v{base+2*hh}, v{t}, v{t+1}", f"v_cvt_pk_bf16_f32 v{base+2*hh+1}, v{t+2}, v{t+3}")
        a.e(f"v_permlane16_swap_b32 v{base}, v{base+2}", f"v_permlane16_swap_b32 v{base+1}, v{base+3}")
        a.e(f"buffer_store_dwordx4 {v(base,4)}, v{VS2}, s[{STT}:{STT+3}], 0 offen offset:{1024*jp} sc1")
    signal(a, 68, 12)
    stamp(a, 9)
    TR, TF, QF, PKo = 16, 48, 80, 88
    a.e("v_and_b32 v12, 15, v1", "v_lshlrev_b32 v12, 6, v12", "v_add_u32 v12, s70, v12")
    wait_flags(a, 12, 1, 13, 64)
    stamp(a, 10)
    Lb = newlbl("nobumpB")
    a.e(f"s_or_b32 s64, s{sSUB}, s3", "s_cmp_lg_u32 s64, 0", f"s_cbranch_scc1 {Lb}",
        f"s_lshl_b32 s64, s{sCBK}, 7", f"s_add_u32 s64, s64, {SY_EB}")
    bump(a, 64, 12)
    a.label(Lb)
    for ch in range(4):
        a.e(f"buffer_load_dwordx4 {v(TR+4*ch,4)}, v{VT}, s[{STT}:{STT+3}], {soff[ch]} offen sc1")
    for e in range(8):
        qf = QF + 4*e
        for hf in range(2):
            a.e(f"v_lshlrev_b32 v{qf+2*hf}, 16, v{QR+2*e+hf}", f"v_and_b32 v{qf+2*hf+1}, s66, v{QR+2*e+hf}")
    QF2 = QF
    for ch in range(4):
        a.e(f"s_waitcnt vmcnt({3-ch})")
        for e in range(8):
            src = TR+4*ch+(e >> 1)
            if e & 1: a.e(f"v_and_b32 v{TF+4*e+ch}, s66, v{src}")
            else:     a.e(f"v_lshlrev_b32 v{TF+4*e+ch}, 16, v{src}")
    for e in range(8):
        qf = QF + 4*e
        for hf in range(2):
            a.e(f"v_pk_mul_f32 {v(qf+2*hf,2)}, {v(qf+2*hf,2)}, {v(TF+4*e+2*hf,2)}")
        pk = 112+2*e
        for hf in range(2):
            a.e(f"v_cvt_pk_bf16_f32 v{pk+hf}, v{qf+2*hf}, v{qf+2*hf+1}")
        a.e(f"buffer_store_dwordx2 {v(pk,2)}, v{VQO}, s[{SOUT}:{SOUT+3}], {soff[e]} offen" + NTO())
    if gen.PROF:
        a.e("s_waitcnt vmcnt(0)")
    a.e("s_branch L_fin")

def gen_kernel():
    a = Asm(); a.name = "p"
    a.e("s_cmp_ge_u32 s2, 512", "s_cbranch_scc1 L_exit")
    if gen.PROF: a.e("s_memrealtime s[98:99]", "s_waitcnt lgkmcnt(0)", "v_writelane_b32 v247, s98, 13")
    a.e(f"s_load_dwordx16 s[4:19], s[0:1], 0", f"s_load_dwordx8 s[20:27], s[0:1], 64")
    a.e("v_lshrrev_b32 v1, 6, v0", "v_readfirstlane_b32 s3, v1", "v_and_b32 v1, 63, v0", "s_waitcnt lgkmcnt(0)")
    srd(a, S_SYN, P_WS, P_WS+1, 1*MB, add=WS_SYNC)
    a.e("s_cmp_ge_u32 s2, 256", "s_cbranch_scc1 L_A")
    gen_B(a)
    a.label("L_A")
    gen_A(a)
    a.label("L_fin")
    if gen.PROF:
        stamp(a, 14); stamp(a, 15, True)
        prof_dump(a)
    a.label("L_exit")
    a.e("s_endpgm")
    return a

def prof_dump(a):
    a.e(f"s_add_u32 s32, s{P_WS}, {gen.WS_PROF}", f"s_addc_u32 s33, s{P_WS+1}, 0", f"s_mov_b32 s34, {MB}", "s_mov_b32 s35, 0x00020000")
    a.e("s_lshl_b32 s36, s2, 2", "s_add_u32 s36, s36, s3", "s_lshl_b32 s36, s36, 6",
        "v_lshlrev_b32 v250, 2, v1", "v_add_u32 v250, s36, v250", "s_mov_b64 exec, 0xffff",
        "buffer_store_dword v247, v250, s[32:35], 0 offen", "s_waitcnt vmcnt(0)")
PROFREGS = []

def build(path):
    a = gen_kernel()
    name = "concat_heads__spectral_gfnet__ssm_conv_h3__prompt_kernel"
    s = open("concat_heads__spectral_gfnet__ssm_conv_h3__prompt.s.ref").read().split("; Override")[0]
    s += f"; @launch grid=(512,1,1) block=(256,1,1) lds={LDS_BYTES}\n"
    s += '.amdgcn_target "amdgcn-amd-amdhsa--gfx950"\n' + gen.header(name) + a.text() + gen.descriptor(name, 256, 102)
    s = s.replace(" lds nt", " nt lds")
    open(path, "w").write(s)
    return s

if __name__ == "__main__":
    out = sys.argv[1] if len(sys.argv) > 1 else "pers.s"
    gen.PROF = "prof" in sys.argv[2:]
    for x in sys.argv[2:]:
        if "=" in x:
            k, val = x.split("="); OPT[k] = int(val)
    if OPT["wsend"]:
        base = OPT["wsend"]*MB
        WS_I1, WS_KVT, WS_I2, WS_TT, WS_SYNC = base, base+4*MB, base+8*MB, base+12*MB, base+20*MB
    s = build(out)
    print(out, len(s))
```

```python
import sys
from asmgen import *
import gen
from gen import srd, MB, WS_I1, WS_KVT, WS_I2, WS_TT, KA

def stamp(a, i, real=False):
    if not gen.PROF: return
    a.e('s_memrealtime s[96:97]' if real else 's_memtime s[96:97]', 's_waitcnt lgkmcnt(0)', f'v_writelane_b32 v247, s96, {i}')

WBYTES = 2048*513*2
LB_STRIDE = 12896
LDS_BYTES = 4*LB_STRIDE
SPIN_LIMIT = 400000
OPT = dict(prioA=0, prioB=0, sleep=0, nt=1, wsend=0, ntout=0, ntw=1)
def NT(): return ' nt' if OPT['nt'] else ''
def NTO(): return ' nt' if OPT['ntout'] else ''

P_X, P_WR, P_WI, P_Q, P_K, P_V, P_SHK, P_SSMK, P_SSMD, P_OUT, P_DBG, P_WS = 4, 6, 8, 10, 12, 14, 16, 18, 20, 22, 24, 26
S_DBG = 28
def eidx(r): return (r & 3) + 8*(r >> 2)

_lbl = [0]
def newlbl(p):
    _lbl[0] += 1
    return f"L_{p}_{_lbl[0]}"

WS_SYNC = 20*MB
S_SYN = 28
S_TGT = 101
SY_EA, SY_EB, SY_A1, SY_A2, SY_B1, SY_B2 = 0, 128, 4096, 4096+16384, 4096+32768, 4096+49152
def signal(a, s_off, vt, nafter=0):
    L = newlbl("sig")
    a.e(f"s_waitcnt vmcnt({nafter})", "s_barrier", "s_cmp_lg_u32 s3, 0", f"s_cbranch_scc1 {L}",
        f"v_mov_b32 v{vt}, s{s_off}", f"v_mov_b32 v{vt+1}, s{S_TGT}", "s_mov_b64 exec, 1",
        f"buffer_store_dword v{vt+1}, v{vt}, s[{S_SYN}:{S_SYN+3}], 0 offen sc1", "s_mov_b64 exec, -1")
    a.label(L)

def wait_flags(a, vaddr, nload, vt, s_cnt, pre_barrier=None):
    L = newlbl("poll"); Ls = newlbl("pdone")
    a.e("s_cmp_lg_u32 s3, 0", f"s_cbranch_scc1 {Ls}", f"s_mov_b32 s{s_cnt}, 0")
    a.label(L)
    offs = ["0", "s98", "s99", "s100"]
    for i in range(nload):
        a.e(f"buffer_load_dword v{vt+i}, v{vaddr}, s[{S_SYN}:{S_SYN+3}], {offs[i]} offen sc1")
    a.e(f"s_add_u32 s{s_cnt}, s{s_cnt}, 1", "s_waitcnt vmcnt(0)")
    for i in range(nload):
        a.e(f"v_xor_b32 v{vt+i}, s{S_TGT}, v{vt+i}")
    for i in range(1, nload):
        a.e(f"v_or_b32 v{vt}, v{vt}, v{vt+i}")
    a.e(f"v_cmp_ne_u32 vcc, 0, v{vt}", f"s_cbranch_vccz {Ls}")
    if OPT["sleep"]: a.e(f"s_sleep {OPT['sleep']}")
    a.e(f"s_cmp_lt_u32 s{s_cnt}, {SPIN_LIMIT}", f"s_cbranch_scc1 {L}")
    a.label(Ls)
    if pre_barrier: a.e(pre_barrier)
    a.e("s_barrier")

def bump(a, s_off, vt):
    a.e(f"v_mov_b32 v{vt}, s{s_off}", f"v_mov_b32 v{vt+1}, s{S_TGT}", "s_mov_b64 exec, 1",
        f"buffer_store_dword v{vt+1}, v{vt}, s[{S_SYN}:{S_SYN+3}], 0 offen sc1", "s_mov_b64 exec, -1")

F_M, F_G, F_IN0, F_IN1, F_OUTOFF, F_WR, F_RD0, F_RD1, F_MM = 2, 3, 4, 5, 6, 7, 8, 9, 10
F_T = 11
F_IN, F16RE, F16IM, F_TWC, F_TWS, F_DRE, F_DIM, F_P, F_TMP, F32RE, F32IM = 16, 48, 52, 56, 88, 120, 136, 152, 168, 176, 192
SI_OFF, SO_OFF = 52, 68
SO_LIST = [68, 69, 70, 71, 76, 77, 78, 79]

def fft512_addr(a, s_sa, s_cb):
    a.e(f"v_and_b32 v{F_M}, 15, v1", f"v_lshrrev_b32 v{F_G}, 4, v1")
    a.e(f"v_lshlrev_b32 v{F_IN0}, 20, v{F_G}", f"v_lshl_add_u32 v{F_IN0}, v{F_M}, 2, v{F_IN0}", f"v_add_u32 v{F_IN1}, {4*8192}, v{F_IN0}")
    a.e(f"s_lshl_b32 s48, s{s_sa}, 11", f"s_lshl_b32 s49, s{s_cb}, 6", "s_add_u32 s48, s48, s49",
        "s_lshl_b32 s50, s3, 16", "s_add_u32 s48, s48, s50")
    for aa in range(4):
        for i in range(4):
            a.e(f"s_add_u32 s{SI_OFF+4*aa+i}, s48, {(32*i+aa)*8192}")

def fft512_loads(a, SIN, mod=""):
    for hh in range(2):
        for aa in range(4):
            for i in range(4):
                a.e(f"buffer_load_dword v{F_IN+16*hh+4*aa+i}, v{F_IN0+hh}, s[{SIN}:{SIN+3}], s{SI_OFF+4*aa+i} offen {mod}")

def fft512_addr2(a, s_sa, s_cb, orow, ostr):
    a.e(f"s_mov_b32 s51, {16*ostr}", f"v_mul_lo_u32 v{F_OUTOFF}, v{F_M}, s51", f"v_lshl_add_u32 v{F_OUTOFF}, v{F_G}, 4, v{F_OUTOFF}")
    a.e(f"s_mul_i32 s48, s{s_sa}, {orow}", f"s_lshl_b32 s49, s{s_cb}, 6", "s_add_u32 s48, s48, s49",
        f"s_mul_i32 s50, s3, {4*ostr}", "s_add_u32 s48, s48, s50")
    for b in range(4):
        for h in range(2):
            a.e(f"s_add_u32 s{SO_LIST[2*b+h]}, s48, {(b+256*h)*ostr}")
    a.e(f"v_and_b32 v{F_T}, 7, v{F_M}", "s_lshl_b32 s50, s3, 1", f"v_xor_b32 v{F_T+1}, s50, v{F_T}",
        f"v_lshlrev_b32 v{F_WR}, 4, v{F_T+1}", f"v_lshl_add_u32 v{F_WR}, v{F_M}, 7, v{F_WR}",
        f"v_lshl_add_u32 v{F_WR}, v{F_G}, 13, v{F_WR}")
    a.e(f"v_xor_b32 v{F_T+1}, v{F_G}, v{F_T}", f"v_lshlrev_b32 v{F_RD0}, 4, v{F_T+1}",
        f"v_lshl_add_u32 v{F_RD0}, v{F_M}, 7, v{F_RD0}", "s_lshl_b32 s50, s3, 13",
        f"v_add_u32 v{F_RD0}, s50, v{F_RD0}", f"v_xor_b32 v{F_RD1}, 64, v{F_RD0}")

def fft512_consts(a):
    T, TMP = F_T, F_TMP
    XS, XB = T, T+1
    a.e(f"v_cvt_f32_u32 v{XS}, v{F_M}", f"v_mul_f32 v{XS}, {f32hex(1/32)}, v{XS}",
        f"v_cvt_f32_u32 v{T+2}, v{F_G}", f"v_mul_f32 v{T+2}, 4.0, v{T+2}",
        f"v_mul_f32 v{XB}, v{T+2}, v{XS}")
    a.e(f"v_and_b32 v{F_MM}, 1, v{F_M}", f"v_mul_u32_u24 v{F_MM}, 0x8000, v{F_MM}",
        f"v_lshl_or_b32 v{F_MM}, v{F_MM}, 16, v{F_MM}", "s_mov_b32 s50, 0x80008000")
    for i in range(4):
        x = TMP; cs = TMP+1; sn = TMP+2; x2 = TMP+3; cs2 = TMP+4; sn2 = TMP+5
        a.e(f"v_fmamk_f32 v{x}, v{XS}, {f32hex(float(i))}, v{XB}" if i else f"v_mov_b32 v{x}, v{XB}")
        a.e(f"v_add_f32 v{x2}, v{x}, v{x}")
        a.e(f"v_cos_f32 v{cs}, v{x}", f"v_sin_f32 v{sn}, v{x}", f"v_cos_f32 v{cs2}, v{x2}", f"v_sin_f32 v{sn2}, v{x2}")
        a.e(f"v_cvt_pk_bf16_f32 v{F32RE+i}, v{cs}, v{sn}", f"v_cvt_pk_bf16_f32 v{F32IM+i}, -v{sn}, v{cs}",
            f"v_cvt_pk_bf16_f32 v{F16RE+i}, v{cs2}, v{sn2}", f"v_cvt_pk_bf16_f32 v{F16IM+i}, -v{sn2}, v{cs2}")
    for base in (F32RE, F32IM):
        for i in range(4):
            a.e(f"v_xor_b32 v{base+4+i}, v{F_MM}, v{base+i}")
        for t in range(2):
            for i in range(4):
                src = base+4*t+i
                if i & 1: a.e(f"v_xor_b32 v{base+8+4*t+i}, s50, v{src}")
                else:     a.e(f"v_mov_b32 v{base+8+4*t+i}, v{src}")
    a.e(f"v_cvt_f32_u32 v{TMP}, s3", f"v_mul_f32 v{TMP}, {f32hex(8/512)}, v{TMP}")
    for r in range(4):
        a.e(f"v_add_f32 v{TMP+4+r}, {f32hex(float(r)) if r else 0}, v{T+2}")
    for aa in range(8):
        a.e(f"v_add_f32 v{TMP+1}, {f32hex(aa/512) if aa else 0}, v{TMP}")
        for r in range(4):
            a.e(f"v_mul_f32 v{T+3+(r&1)}, v{TMP+1}, v{TMP+4+r}",
                f"v_cos_f32 v{F_TWC+4*aa+r}, v{T+3+(r&1)}", f"v_sin_f32 v{F_TWS+4*aa+r}, v{T+3+(r&1)}")

def fft512_compute(a, SOUT, neg_im, nafter, stmod, st0):
    TMP = F_TMP
    stamp(a, st0)
    for hh in range(2):
        for aa in range(4):
            a.e(f"s_waitcnt vmcnt({28-16*hh-4*aa+nafter})")
            a.e(f"v_mfma_f32_16x16x32_bf16 {v(F_DRE+4*aa,4)}, {v(F16RE,4)}, {v(F_IN+16*hh+4*aa,4)}, 0",
                f"v_mfma_f32_16x16x32_bf16 {v(F_DIM+4*aa,4)}, {v(F16IM,4)}, {v(F_IN+16*hh+4*aa,4)}, 0")
        if hh == 1: stamp(a, st0+1)
        for aa in range(4):
            for p in range(2):
                re, im = F_DRE+4*aa+2*p, F_DIM+4*aa+2*p
                tc, ts = F_TWC+16*hh+4*aa+2*p, F_TWS+16*hh+4*aa+2*p
                t0, t1 = TMP+4*p, TMP+4*p+2
                a.e(f"v_pk_mul_f32 {v(t0,2)}, {v(re,2)}, {v(tc,2)}",
                    f"v_pk_mul_f32 {v(t1,2)}, {v(im,2)}, {v(tc,2)}",
                    f"v_pk_fma_f32 {v(t0,2)}, {v(im,2)}, {v(ts,2)}, {v(t0,2)}",
                    f"v_pk_fma_f32 {v(t1,2)}, {v(re,2)}, {v(ts,2)}, {v(t1,2)} neg_lo:[1,0,0] neg_hi:[1,0,0]")
                for e in range(2):
                    r = 2*p+e
                    a.e(f"v_cvt_pk_bf16_f32 v{F_P+4*r+aa}, v{t0+e}, v{t1+e}")
        if hh == 1: a.e(f"v_xor_b32 v{F_WR}, 16, v{F_WR}")
        for r in range(4):
            a.e(f"ds_write_b128 v{F_WR}, {v(F_P+4*r,4)} offset:{r*2048}")
    a.e("s_waitcnt lgkmcnt(0)", "s_barrier")
    for b in range(4):
        a.e(f"ds_read_b128 {v(F_IN+8*b,4)}, v{F_RD0} offset:{b*2048}",
            f"ds_read_b128 {v(F_IN+8*b+4,4)}, v{F_RD1} offset:{b*2048}")
    sg = "-" if neg_im else ""
    for bb in range(2):
        D0 = [F_DRE, F_DIM] if bb == 0 else [F_TWC, F_TWC+16]
        for bl in range(2):
            b = 2*bb+bl
            a.e(f"s_waitcnt lgkmcnt({6-2*b})")
            for t in range(2):
                for h in range(2):
                    for (D_, F_) in ((D0[0], F32RE), (D0[1], F32IM)):
                        d = D_+8*bl+4*h
                        c = "0" if t == 0 else v(d, 4)
                        a.e(f"v_mfma_f32_16x16x32_bf16 {v(d,4)}, {v(F_IN+8*b+4*t,4)}, {v(F_+8*h+4*t,4)}, {c}")
    for bb in range(2):
        D0 = [F_DRE, F_DIM] if bb == 0 else [F_TWC, F_TWC+16]
        PB = F_P if bb == 0 else F_TWS
        for bl in range(2):
            b = 2*bb+bl
            for h in range(2):
                idx = 8*bl+4*h
                for r in range(4):
                    a.e(f"v_cvt_pk_bf16_f32 v{PB+idx+r}, v{D0[0]+idx+r}, {sg}v{D0[1]+idx+r}")
                a.e(f"buffer_store_dwordx4 {v(PB+idx,4)}, v{F_OUTOFF}, s[{SOUT}:{SOUT+3}], s{SO_LIST[2*b+h]} offen {stmod}")

IDX, G_, VG, VGW, VRR, VHR, VST, VW = 2, 3, 6, 7, 8, 12, 13, 14
CRE, CIM, TWC, TWS, WR, WI, ARE, AIM, DF, GA, HRE, HIM, GB, TMP = 16, 32, 48, 64, 80, 96, 112, 128, 144, 160, 164, 168, 172, 188
W2R, W2I, SP, PF, PF2 = 204, 220, 236, 248, 252
LW = 32768; LSC = 16384; LW2 = 24576

def w_dma(a, SWR, SWI, s_rowoff, s_mirroff, s_ldsbase, vlane16):
    a.e(f"s_mov_b32 m0, s{s_ldsbase}", f"buffer_load_dwordx4 v{vlane16}, s[{SWR}:{SWR+3}], s{s_rowoff} offen lds" + NT())
    a.e(f"s_add_u32 s51, s{s_ldsbase}, 1024", "s_mov_b32 m0, s51", f"buffer_load_dwordx4 v{vlane16}, s[{SWI}:{SWI+3}], s{s_rowoff} offen lds" + NT())
    a.e(f"s_add_u32 s50, s{s_mirroff}, 2")
    a.e(f"s_add_u32 s51, s{s_ldsbase}, 2048", "s_mov_b32 m0, s51", f"buffer_load_dwordx4 v{vlane16}, s[{SWR}:{SWR+3}], s50 offen lds" + NT())
    a.e(f"s_add_u32 s51, s{s_ldsbase}, 3072", "s_mov_b32 m0, s51", f"buffer_load_dwordx4 v{vlane16}, s[{SWI}:{SWI+3}], s50 offen lds" + NT())

def pf_loads(a, SWR, SWI, s_rowoff, s_mirroff, dst, vt):
    a.e(f"v_mov_b32 v{vt}, s{s_mirroff}", f"v_mov_b32 v{vt+1}, s{s_rowoff}", f"v_add_u32 v{vt+1}, 1024, v{vt+1}")
    a.e(f"buffer_load_short_d16_hi v{dst}, v{vt}, s[{SWR}:{SWR+3}], 0 offen",
        f"buffer_load_short_d16_hi v{dst+1}, v{vt}, s[{SWI}:{SWI+3}], 0 offen",
        f"buffer_load_short_d16_hi v{dst+2}, v{vt+1}, s[{SWR}:{SWR+3}], 0 offen",
        f"buffer_load_short_d16_hi v{dst+3}, v{vt+1}, s[{SWI}:{SWI+3}], 0 offen")

def w_lds_reads(a, vlo, vhi, dr, di):
    for (dst, o) in ((dr, 0), (di, 1024)):
        for r in range(16):
            e = eidx(r)
            if r < 8: a.e(f"ds_read_u16_d16_hi v{dst+r}, v{vlo} offset:{o+64*e}")
            else:     a.e(f"ds_read_u16_d16_hi v{dst+r}, v{vhi} offset:{o+64*(27-e)}")

def fix_w(a, dr, di, pf):
    a.e("v_cmp_eq_u32 vcc, 0, v1")
    for (r, o) in ((0, 0), (8, 2)):
        a.e(f"v_add_f32 v{TMP}, v{dr+r}, v{pf+o}", f"v_mul_f32 v{TMP}, 0.5, v{TMP}",
            f"v_sub_f32 v{TMP+1}, v{di+r}, v{pf+o+1}", f"v_mul_f32 v{TMP+1}, 0.5, v{TMP+1}",
            f"v_cndmask_b32 v{dr+r}, v{dr+r}, v{TMP}, vcc", f"v_cndmask_b32 v{di+r}, v{di+r}, v{TMP+1}, vcc")

def fft1024(a):
    for t in range(4):
        c0 = "0" if t == 0 else v(ARE, 16); c1 = "0" if t == 0 else v(AIM, 16)
        a.e(f"v_mfma_f32_32x32x16_bf16 {v(ARE,16)}, {v(DF+4*t,4)}, {v(CRE+4*t,4)}, {c0}",
            f"v_mfma_f32_32x32x16_bf16 {v(AIM,16)}, {v(DF+4*t,4)}, {v(CIM+4*t,4)}, {c1}")
    for p in range(8):
        re, im, tc, ts = ARE+2*p, AIM+2*p, TWC+2*p, TWS+2*p
        t0 = TMP+4*(p & 1); t1 = t0+2
        a.e(f"v_pk_mul_f32 {v(t0,2)}, {v(re,2)}, {v(tc,2)}",
            f"v_pk_mul_f32 {v(t1,2)}, {v(im,2)}, {v(tc,2)}",
            f"v_pk_fma_f32 {v(t0,2)}, {v(im,2)}, {v(ts,2)}, {v(t0,2)}",
            f"v_pk_fma_f32 {v(t1,2)}, {v(re,2)}, {v(ts,2)}, {v(t1,2)} neg_lo:[1,0,0] neg_hi:[1,0,0]")
        for e in range(2):
            a.e(f"v_cvt_pk_bf16_f32 v{DF+2*p+e}, v{t0+e}, v{t1+e}")
    for t in range(4):
        c0 = "0" if t == 0 else v(ARE, 16); c1 = "0" if t == 0 else v(AIM, 16)
        a.e(f"v_mfma_f32_32x32x16_bf16 {v(ARE,16)}, {v(CRE+4*t,4)}, {v(DF+4*t,4)}, {c0}",
            f"v_mfma_f32_32x32x16_bf16 {v(AIM,16)}, {v(CIM+4*t,4)}, {v(DF+4*t,4)}, {c1}")

def a2_consts(a, sT):
    a.e(f"v_and_b32 v{IDX}, 31, v1", f"v_lshrrev_b32 v{G_}, 5, v1")
    XS, XB = TMP, TMP+1
    a.e(f"v_cvt_f32_u32 v{TMP+2}, v{IDX}", f"v_cvt_f32_u32 v{TMP+3}, v{G_}", f"v_mul_f32 v{TMP+3}, 4.0, v{TMP+3}",
        f"v_mul_f32 v{XS}, {f32hex(1/32)}, v{TMP+2}", f"v_mul_f32 v{XB}, v{TMP+3}, v{XS}")
    a.e(f"v_and_b32 v{TMP+4}, 1, v{IDX}", f"v_mul_u32_u24 v{TMP+4}, 0x8000, v{TMP+4}", f"v_lshl_or_b32 v{TMP+4}, v{TMP+4}, 16, v{TMP+4}")
    for t in range(2):
        for i in range(4):
            c = float(8*t+i); x = TMP+5+3*(i & 1)
            a.e(f"v_fmamk_f32 v{x}, v{XS}, {f32hex(c)}, v{XB}" if c else f"v_mov_b32 v{x}, v{XB}")
            a.e(f"v_cos_f32 v{x+1}, v{x}", f"v_sin_f32 v{x+2}, v{x}")
            a.e(f"v_cvt_pk_bf16_f32 v{CRE+4*t+i}, v{x+1}, v{x+2}", f"v_cvt_pk_bf16_f32 v{CIM+4*t+i}, -v{x+2}, v{x+1}")
    for base in (CRE, CIM):
        for i in range(8):
            a.e(f"v_xor_b32 v{base+8+i}, v{TMP+4}, v{base+i}")
    a.e(f"v_mul_f32 v{XS}, {f32hex(1/1024)}, v{TMP+2}", f"v_mul_f32 v{XB}, v{TMP+3}, v{XS}")
    for r in range(16):
        c = float(eidx(r)); x = TMP+5+(r & 1)
        a.e(f"v_fmamk_f32 v{x}, v{XS}, {f32hex(c)}, v{XB}" if c else f"v_mov_b32 v{x}, v{XB}")
        a.e(f"v_cos_f32 v{TWC+r}, v{x}", f"v_sin_f32 v{TWS+r}, v{x}")
    LO, HI, Q, AV, XA0, XA1, E0, E1 = TMP, TMP+1, TMP+2, TMP+3, TMP+4, TMP+5, TMP+6, TMP+7
    JF, KEY, T2, PO, PAR, N16, G4, CS = [TMP+8+i for i in range(8)]
    Lspec, Ldone = newlbl("ghspec"), newlbl("ghdone")
    a.e(f"v_and_b32 v{LO}, 3, v{IDX}", f"v_bfe_u32 v{HI}, v{IDX}, 2, 2")
    a.e(f"v_and_b32 v{N16}, 15, v1", f"v_lshrrev_b32 v{G4}, 4, v1")
    a.e(f"s_cmp_eq_u32 s{sT}, 0", f"s_cbranch_scc1 {Lspec}")
    a.e(f"v_cvt_f32_u32 v{T2}, s{sT}", f"v_cvt_f32_u32 v{JF}, v{HI}", f"v_fmamk_f32 v{JF}, v{JF}, {f32hex(512.0)}, v{T2}",
        f"v_mul_f32 v{JF}, {f32hex(1/2048)}, v{JF}",
        f"v_cvt_f32_u32 v{XA0}, v{G_}", f"v_add_f32 v{XA0}, v{XA0}, v{XA0}", f"v_add_f32 v{XA1}, 1.0, v{XA0}",
        f"v_mul_f32 v{XA0}, v{XA0}, v{JF}", f"v_mul_f32 v{XA1}, v{XA1}, v{JF}",
        f"v_lshlrev_b32 v{Q}, 3, v{LO}", "s_mov_b32 s50, 0x4631914C", f"v_lshrrev_b32 v{Q}, v{Q}, s50",
        f"v_mov_b32 v{AV}, 0.5", f"v_cmp_gt_u32 vcc, 16, v{IDX}", f"v_cndmask_b32 v{AV}, 0, v{AV}, vcc")
    for jj2 in range(4):
        for e in range(2):
            jj = 2*jj2+e
            xa = XA1 if jj >> 2 else XA0
            a.e(f"v_bfe_u32 v{E0+e}, v{Q}, {2*(jj&3)}, 2", f"v_cvt_f32_u32 v{E0+e}, v{E0+e}",
                f"v_fmamk_f32 v{E0+e}, v{E0+e}, {f32hex(0.25)}, v{xa}", f"v_cos_f32 v{E0+e}, v{E0+e}",
                f"v_mul_f32 v{E0+e}, v{E0+e}, v{AV}")
        a.e(f"v_cvt_pk_bf16_f32 v{GA+jj2}, v{E0}, v{E1}")
    a.e(f"v_bfe_u32 v{HI}, v{N16}, 1, 2", f"v_cvt_f32_u32 v{KEY}, v{HI}", f"v_mul_f32 v{KEY}, {f32hex(1/2048)}, v{KEY}",
        f"v_and_b32 v{JF}, 1, v{G4}", f"v_cvt_f32_u32 v{JF}, v{JF}", f"v_fmamk_f32 v{JF}, v{JF}, {f32hex(1024.0)}, v{T2}",
        f"v_add_f32 v{XA1}, {f32hex(512.0)}, v{JF}", f"v_mul_f32 v{XA0}, v{JF}, v{KEY}", f"v_mul_f32 v{XA1}, v{XA1}, v{KEY}",
        f"v_lshrrev_b32 v{CS}, 1, v{G4}", f"v_lshrrev_b32 v{AV}, 3, v{N16}", f"v_cmp_eq_u32 vcc, v{CS}, v{AV}",
        f"v_mov_b32 v{AV}, {f32hex(2.0**-21)}", f"v_cndmask_b32 v{AV}, 0, v{AV}, vcc",
        f"v_and_b32 v{PO}, 1, v{N16}")
    for part, Hd in ((0, HRE), (1, HIM)):
        w0, w1 = (0x1C, 0xBC) if part == 0 else (0x61, 0x6B)
        a.e(f"v_mov_b32 v{Q}, {w0}", f"v_mov_b32 v{PAR}, {w1}", f"v_cmp_eq_u32 vcc, 1, v{PO}", f"v_cndmask_b32 v{Q}, v{Q}, v{PAR}, vcc")
        for jj2 in range(4):
            for e in range(2):
                jj = 2*jj2+e
                xa = XA1 if jj >> 2 else XA0
                a.e(f"v_bfe_u32 v{E0+e}, v{Q}, {2*(jj&3)}, 2", f"v_cvt_f32_u32 v{E0+e}, v{E0+e}",
                    f"v_fmamk_f32 v{E0+e}, v{E0+e}, {f32hex(0.25)}, v{xa}", f"v_cos_f32 v{E0+e}, v{E0+e}",
                    f"v_mul_f32 v{E0+e}, v{E0+e}, v{AV}")
            a.e(f"v_cvt_pk_bf16_f32 v{Hd+jj2}, v{E0}, v{E1}")
    a.e(f"s_branch {Ldone}")
    a.label(Lspec)
    a.e(f"v_and_b32 v{PO}, 1, v{LO}", f"v_lshrrev_b32 v{PAR}, 1, v{LO}")
    a.e(f"v_lshlrev_b32 v{JF}, 2, v{HI}", "s_mov_b32 s50, 0x3120", f"v_lshrrev_b32 v{JF}, v{JF}, s50", f"v_and_b32 v{JF}, 15, v{JF}",
        f"v_lshlrev_b32 v{JF}, 8, v{JF}", f"v_lshlrev_b32 v{T2}, 10, v{PO}",
        f"v_cmp_eq_u32 vcc, 0, v{HI}", f"v_cndmask_b32 v{JF}, v{JF}, v{T2}, vcc", f"v_mov_b32 v{T2}, 0",
        f"v_cndmask_b32 v{Q}, v{PO}, v{T2}, vcc",
        f"v_cvt_f32_u32 v{JF}, v{JF}", f"v_mul_f32 v{JF}, {f32hex(1/2048)}, v{JF}",
        f"v_cvt_f32_u32 v{Q}, v{Q}", f"v_mul_f32 v{Q}, {f32hex(0.25)}, v{Q}",
        f"v_cvt_f32_u32 v{XA0}, v{G_}", f"v_add_f32 v{XA0}, v{XA0}, v{XA0}", f"v_add_f32 v{XA1}, 1.0, v{XA0}",
        f"v_fma_f32 v{XA0}, v{XA0}, v{JF}, v{Q}", f"v_fma_f32 v{XA1}, v{XA1}, v{JF}, v{Q}",
        f"v_cos_f32 v{XA0}, v{XA0}", f"v_cos_f32 v{XA1}, v{XA1}",
        f"v_lshrrev_b32 v{KEY}, 1, v{HI}", f"v_lshl_add_u32 v{KEY}, v{KEY}, 1, v{PAR}",
        f"v_lshrrev_b32 v{T2}, 4, v{IDX}", f"v_lshl_add_u32 v{KEY}, v{T2}, 2, v{KEY}", f"v_mov_b32 v{T2}, 0")
    for jj2 in range(4):
        for e in range(2):
            jj = 2*jj2+e
            xa = XA1 if jj >> 2 else XA0
            a.e(f"v_cmp_eq_u32 vcc, {jj&3}, v{KEY}", f"v_cndmask_b32 v{E0+e}, v{T2}, v{xa}, vcc")
        a.e(f"v_cvt_pk_bf16_f32 v{GA+jj2}, v{E0}, v{E1}")
    SAF, GS = JF, PAR
    a.e(f"v_bfe_u32 v{HI}, v{N16}, 1, 2", f"v_cvt_f32_u32 v{SAF}, v{HI}", f"v_mul_f32 v{SAF}, {f32hex(1/2048)}, v{SAF}",
        f"v_and_b32 v{GS}, 1, v{G4}", f"v_and_b32 v{PO}, 1, v{N16}",
        f"v_lshrrev_b32 v{CS}, 1, v{G4}", f"v_lshrrev_b32 v{T2}, 3, v{N16}",
        f"v_cmp_eq_u32 s[44:45], v{CS}, v{T2}", f"v_cmp_eq_u32 s[46:47], v{GS}, v{PO}", "s_and_b64 s[44:45], s[44:45], s[46:47]",
        f"v_cmp_eq_u32 s[46:47], 0, v{GS}")
    for part, Hd in ((0, HRE), (1, HIM)):
        for jj in range(8):
            sl, par, pi = jj >> 2, (jj >> 1) & 1, jj & 1
            e = E0 + (jj & 1)
            if par != part:
                a.e(f"v_mov_b32 v{e}, 0")
            else:
                if sl == 0:
                    j0, q0, a0 = 1024.0*pi, 0.5*pi, 2.0**-21
                    j1, q1, a1 = 256.0, 0.75*pi, 2.0**-20
                else:
                    j0, q0, a0 = 512.0, 0.75*pi, 2.0**-20
                    j1, q1, a1 = 768.0, 0.75*pi, 2.0**-20
                def sel(dst, x0, x1):
                    a.e(f"v_mov_b32 v{dst}, {f32hex(x1)}", f"v_mov_b32 v{AV}, {f32hex(x0)}", f"v_cndmask_b32 v{dst}, v{dst}, v{AV}, s[46:47]")
                sel(XA0, j0, j1); sel(XA1, q0 + 0.5*part, q1 + 0.5*part)
                a.e(f"v_fma_f32 v{XA0}, v{XA0}, v{SAF}, v{XA1}", f"v_cos_f32 v{XA0}, v{XA0}")
                sel(XA1, a0, a1)
                a.e(f"v_mul_f32 v{XA0}, v{XA0}, v{XA1}", f"v_mov_b32 v{XA1}, 0", f"v_cndmask_b32 v{e}, v{XA1}, v{XA0}, s[44:45]")
            if jj & 1: a.e(f"v_cvt_pk_bf16_f32 v{Hd+(jj>>1)}, v{E0}, v{E1}")
    a.label(Ldone)
    a.e("s_nop 1")

def gen_A(a):
    SX, SI1, SI2, SOUT, SWR, SWI = 32, 36, 40, 40, 44, 48
    SX, SI1, SWR, SWI, SI2, SOUT = 32, 36, 80, 84, 88, 92
    if gen.PROF: pass
    a.e(f"s_setprio {OPT['prioA']}") if OPT['prioA'] else None
    srd(a, SX, P_X, P_X+1, 4*MB); srd(a, SI1, P_WS, P_WS+1, 4*MB, add=WS_I1)
    srd(a, SWR, P_WR, P_WR+1, WBYTES); srd(a, SWI, P_WI, P_WI+1, WBYTES)
    srd(a, SI2, P_WS, P_WS+1, 4*MB, add=WS_I2); srd(a, SOUT, P_OUT, P_OUT+1, 8*MB)
    sT, sSA, sCB, sJ, sJM, sJP, sJQ, sTL = 40, 41, 42, 43, 72, 73, 74, 44
    a.e(f"s_sub_u32 s{sT}, s2, 256", f"s_lshr_b32 s48, s{sT}, 4", f"s_and_b32 s49, s{sT}, 7",
        f"s_lshr_b32 s{sSA}, s48, 2", "s_bfe_u32 s50, s48, 0x10001", "s_lshl_b32 s50, s50, 3", "s_add_u32 s50, s50, s49",
        "s_lshl_b32 s50, s50, 1", "s_and_b32 s51, s48, 1", f"s_add_u32 s{sCB}, s50, s51",
        "s_lshl_b32 s48, s48, 3", f"s_add_u32 s{sTL}, s48, s49")
    Lr = newlbl("reg")
    a.e("s_lshl_b32 s48, s3, 9", f"s_add_u32 s{sJ}, s{sT}, s48", f"s_mov_b32 s{sJP}, s{sT}", f"s_sub_u32 s{sJQ}, 512, s{sT}",
        f"s_cmp_lg_u32 s{sT}, 0", f"s_cbranch_scc1 {Lr}",
        f"s_mov_b32 s{sJQ}, 256", "s_lshl_b32 s48, s3, 2", "s_lshr_b32 s49, 0x3120, s48", "s_and_b32 s49, s49, 15", f"s_lshl_b32 s{sJ}, s49, 8")
    a.label(Lr)
    a.e(f"s_sub_u32 s{sJM}, 2048, s{sJ}", f"s_and_b32 s{sJM}, s{sJM}, 2047",
        f"s_mul_i32 s{sJ}, s{sJ}, 1026", f"s_mul_i32 s{sJM}, s{sJM}, 1026")
    a.e(f"s_or_b32 s75, s{sT}, s3")
    a.e(f"s_mov_b32 s48, {WS_SYNC+SY_EA}", f"s_load_dword s{S_TGT}, s[{P_WS}:{P_WS+1}], s48")
    stamp(a, 0, True); stamp(a, 1)
    Lp1 = newlbl("nop1")
    a.e("s_mov_b32 s98, 4096", "s_mov_b32 s99, 8192", "s_mov_b32 s100, 12288")
    Ln = newlbl("now2")
    a.e("s_cmp_lg_u32 s75, 0", f"s_cbranch_scc1 {Ln}")
    a.e(f"s_mov_b32 s48, {1024*1026}")
    pf_loads(a, SWR, SWI, 48, 48, PF2, F_TMP)
    a.label(Ln)
    a.e(f"s_bitcmp1_b32 s{sT}, 3", f"s_cbranch_scc1 {Lp1}_in")
    fft512_addr(a, sSA, sCB)
    fft512_loads(a, SX, NT())
    pf_loads(a, SWR, SWI, sJ, sJM, PF, F_TMP)
    stamp(a, 12)
    fft512_addr2(a, sSA, sCB, 2048, 8192)
    fft512_consts(a)
    a.e("s_waitcnt lgkmcnt(0)", f"s_add_u32 s{S_TGT}, s{S_TGT}, 1")
    fft512_compute(a, SI1, False, 4, "sc1", 2)
    stamp(a, 4)
    a.e(f"s_lshl_b32 s48, s{sTL}, 6", f"s_add_u32 s48, s48, {SY_A1}")
    signal(a, 48, F_TMP)
    a.e(f"s_branch {Lp1}")
    a.label(f"{Lp1}_in")
    pf_loads(a, SWR, SWI, sJ, sJM, PF, F_TMP)
    a.e("s_waitcnt lgkmcnt(0)", f"s_add_u32 s{S_TGT}, s{S_TGT}, 1")
    stamp(a, 12); stamp(a, 2); stamp(a, 3); stamp(a, 4)
    a.label(Lp1)
    stamp(a, 5)
    a.e("v_lshlrev_b32 v15, 4, v1")
    Lw0, Lw1 = newlbl("w0"), newlbl("w1")
    a.e("s_cmp_eq_u32 s3, 0", f"s_cbranch_scc1 {Lw0}")
    a.e("s_lshl_b32 s48, s3, 12", f"s_add_u32 s48, s48, {LW}")
    w_dma(a, SWR, SWI, sJ, sJM, 48, 15)
    a.e("s_cmp_lg_u32 s3, 1", f"s_cbranch_scc1 {Lw0}")
    a.e(f"s_sub_u32 s49, 2048, s{sT}", "s_and_b32 s49, s49, 2047", "s_mul_i32 s49, s49, 1026", f"s_mul_i32 s48, s{sT}, 1026",
        f"s_mov_b32 s76, {LW}")
    w_dma(a, SWR, SWI, 48, 49, 76, 15)
    a.e(f"s_cmp_lg_u32 s{sT}, 0", f"s_cbranch_scc1 {Lw0}")
    a.e(f"s_mov_b32 s48, {1024*1026}", f"s_mov_b32 s76, {LW2}")
    w_dma(a, SWR, SWI, 48, 48, 76, 15)
    a.label(Lw0)
    a2_consts(a, sT)
    a.e(f"v_lshl_add_u32 v{TMP}, v{G_}, 7, v{IDX}",
        "s_lshl_b32 s48, s3, 12", f"s_add_u32 s48, s48, {LW}",
        f"v_lshl_add_u32 v{VW}, v{TMP}, 1, s48",
        f"v_sub_u32 v{TMP+1}, {1023-32*27}, v{TMP}", f"s_add_u32 s49, s48, 2048", f"v_lshl_add_u32 v{VW+1}, v{TMP+1}, 1, s49")
    a.e(f"v_lshlrev_b32 v{VG}, 12, v{G_}", f"v_lshl_add_u32 v{VG}, v{IDX}, 2, v{VG}",
        "s_lshl_b32 s49, s3, 9",
        f"s_lshl_b32 s52, s{sJP}, 13", "s_add_u32 s52, s52, s49",
        f"s_lshl_b32 s53, s{sJQ}, 13", "s_add_u32 s53, s53, s49")
    a.e(f"v_lshlrev_b32 v{VGW}, 12, v{G_}", f"v_lshl_add_u32 v{VGW}, v{IDX}, 3, v{VGW}", "s_lshl_b32 s50, s3, 10", f"v_add_u32 v{VGW}, s50, v{VGW}",
        f"v_lshlrev_b32 v{VRR}, 9, v{G_}", f"v_lshl_add_u32 v{VRR}, v{IDX}, 2, v{VRR}", "s_lshl_b32 s51, s3, 12", f"v_add_u32 v{VRR}, s51, v{VRR}")
    for t in range(1, 4): a.e(f"v_add_u32 v{VRR+t}, {1024*t}, v{VRR}")
    a.e(f"v_lshrrev_b32 v{TMP}, 4, v1", f"v_and_b32 v{TMP+1}, 1, v{TMP}", f"v_lshlrev_b32 v{VHR}, 13, v{TMP+1}",
        f"v_lshrrev_b32 v{TMP+1}, 1, v{TMP}", f"v_lshl_add_u32 v{VHR}, v{TMP+1}, 7, v{VHR}",
        f"v_and_b32 v{TMP+1}, 15, v1", f"v_lshl_add_u32 v{VHR}, v{TMP+1}, 3, v{VHR}", f"v_add_u32 v{VHR}, s50, v{VHR}")
    a.e(f"v_and_b32 v{TMP+2}, 1, v{TMP+1}", f"v_mov_b32 v{TMP+3}, s52", f"v_mov_b32 v{TMP+4}, s53",
        f"v_cmp_eq_u32 vcc, 1, v{TMP+2}", f"v_cndmask_b32 v{VST}, v{TMP+3}, v{TMP+4}, vcc",
        f"v_bfe_u32 v{TMP+2}, v{TMP+1}, 1, 2", f"v_lshl_add_u32 v{VST}, v{TMP+2}, 11, v{VST}",
        f"v_lshrrev_b32 v{TMP+2}, 3, v{TMP+1}", f"v_lshl_add_u32 v{VST}, v{TMP+2}, 6, v{VST}",
        f"v_lshl_add_u32 v{VST}, v{TMP}, 4, v{VST}")
    a.e(f"v_lshlrev_b32 v{TMP}, 6, v1", f"v_add_u32 v{TMP}, {SY_A1}, v{TMP}")
    stamp(a, 6)
    wait_flags(a, TMP, 2, TMP+1, 48)
    stamp(a, 7)
    for u in range(4):
        for sl in range(2):
            for pq in range(2):
                a.e(f"buffer_load_dword v{GB+4*u+2*sl+pq}, v{VG}, s[{SI1}:{SI1+3}], s{52+pq} offen offset:{2048*sl+128*u} sc1")
    for rnd in range(2):
        a.e(f"s_waitcnt vmcnt({8-8*rnd})")
        for uu in range(2):
            u = 2*rnd+uu
            a.e(f"v_mfma_f32_32x32x16_bf16 {v(ARE if uu == 0 else AIM,16)}, {v(GA,4)}, {v(GB+4*u,4)}, 0")
        for uu in range(2):
            u = 2*rnd+uu
            D = ARE if uu == 0 else AIM
            t = TMP+4*uu
            for h in range(2):
                a.e(f"v_cvt_pk_bf16_f32 v{t}, v{D+4*h}, v{D+4*h+1}", f"v_cvt_pk_bf16_f32 v{t+1}, v{D+4*h+2}, v{D+4*h+3}",
                    f"ds_write_b64 v{VGW}, {v(t,2)} offset:{256*u+8192*h}")
                t += 2
    a.e("s_waitcnt lgkmcnt(0)", "s_barrier")
    stamp(a, 8)
    for t in range(4):
        a.e(f"ds_read2_b32 {v(DF+4*t,2)}, v{VRR+t} offset0:0 offset1:32", f"ds_read2_b32 {v(DF+4*t+2,2)}, v{VRR+t} offset0:64 offset1:96")
    a.e("s_waitcnt lgkmcnt(0)")
    w_lds_reads(a, VW, VW+1, WR, WI)
    fft1024(a)
    a.e("s_waitcnt lgkmcnt(0)")
    fix_w(a, WR, WI, PF)
    Lsp, Linv = newlbl("special"), newlbl("inv")
    a.e("s_cmp_eq_u32 s75, 0", f"s_cbranch_scc1 {Lsp}")
    for p in range(8):
        xr, xi, wr, wi = ARE+2*p, AIM+2*p, WR+2*p, WI+2*p
        t0 = TMP+4*(p & 1); t1 = t0+2
        n0 = " neg_lo:[1,0,0] neg_hi:[1,0,0]" if p < 4 else ""
        n1 = "" if p < 4 else " neg_lo:[1,0,0] neg_hi:[1,0,0]"
        a.e(f"v_pk_mul_f32 {v(t0,2)}, {v(xr,2)}, {v(wr,2)}", f"v_pk_mul_f32 {v(t1,2)}, {v(xi,2)}, {v(wr,2)}",
            f"v_pk_fma_f32 {v(t0,2)}, {v(xi,2)}, {v(wi,2)}, {v(t0,2)}{n0}",
            f"v_pk_fma_f32 {v(t1,2)}, {v(xr,2)}, {v(wi,2)}, {v(t1,2)}{n1}")
        for e in range(2):
            a.e(f"v_cvt_pk_bf16_f32 v{DF+2*p+e}, v{t0+e}, -v{t1+e}")
    a.label(Linv)
    a.e("s_nop 1")
    fft1024(a)
    for r in range(16):
        t = TMP + (r & 7)
        a.e(f"v_cvt_pk_bf16_f32 v{t}, v{ARE+r}, v{AIM+r}", f"ds_write_b32 v{VRR}, v{t} offset:{128*eidx(r)}")
    a.e("s_waitcnt lgkmcnt(0)", "s_barrier")
    stamp(a, 9)
    for u in range(4):
        for sl in range(2):
            a.e(f"ds_read_b64 {v(GB+4*u+2*sl,2)}, v{VHR} offset:{4096*sl+256*u}")
    a.e("s_lshl_b32 s49, s3, 9")
    for u in range(4):
        a.e(f"s_waitcnt lgkmcnt({6-2*u})")
        a.e(f"v_mfma_f32_16x16x32_bf16 {v(ARE+4*u,4)}, {v(GB+4*u,4)}, {v(HRE,4)}, 0",
            f"v_mfma_f32_16x16x32_bf16 {v(AIM+4*u,4)}, {v(GB+4*u,4)}, {v(HIM,4)}, 0")
    for u in range(4):
        for r in range(4):
            a.e(f"v_cvt_pk_bf16_f32 v{DF+4*u+r}, v{ARE+4*u+r}, v{AIM+4*u+r}")
        a.e(f"buffer_store_dwordx4 {v(DF+4*u,4)}, v{VST}, s[{SI2}:{SI2+3}], 0 offen offset:{128*u} sc1")
    a.e(f"s_lshl_b32 s48, s{sT}, 6", f"s_add_u32 s48, s48, {SY_A2}")
    signal(a, 48, TMP)
    stamp(a, 10)
    Lb = newlbl("nobump")
    a.e(f"s_bitcmp1_b32 s{sT}, 3", "s_cbranch_scc1 L_fin")
    fft512_addr(a, sSA, sCB)
    fft512_addr2(a, sSA, sCB, 4096, 16384)
    fft512_consts(a)
    a.e(f"v_lshlrev_b32 v{F_TMP}, 6, v1", f"v_add_u32 v{F_TMP}, {SY_A2}, v{F_TMP}")
    wait_flags(a, F_TMP, 4, F_TMP+1, 48)
    stamp(a, 11)
    a.e("s_cmp_lg_u32 s75, 0", f"s_cbranch_scc1 {Lb}", f"s_mov_b32 s48, {SY_EA}")
    bump(a, 48, F_TMP)
    a.label(Lb)
    fft512_loads(a, SI2, "sc1")
    save = gen.PROF; gen.PROF = False
    fft512_compute(a, SOUT, True, 0, NTO(), 0)
    gen.PROF = save
    if gen.PROF:
        a.e("s_waitcnt vmcnt(0)")
    a.e("s_branch L_fin")
    a.label(Lsp)
    a.e(f"v_lshl_add_u32 v{TMP}, v{G_}, 7, v{IDX}", f"v_sub_u32 v{TMP+1}, {1023-32*27}, v{TMP}",
        f"s_mov_b32 s48, {LW2}", f"v_lshl_add_u32 v{TMP+2}, v{TMP}, 1, s48", f"s_mov_b32 s49, {LW2+2048}", f"v_lshl_add_u32 v{TMP+3}, v{TMP+1}, 1, s49")
    w_lds_reads(a, TMP+2, TMP+3, W2R, W2I)
    a.e("s_waitcnt lgkmcnt(0)")
    fix_w(a, W2R, W2I, PF2)
    VS = SP; K0 = SP+1
    a.e(f"v_lshlrev_b32 v{VS}, 9, v{G_}", f"v_lshl_add_u32 v{VS}, v{IDX}, 2, v{VS}")
    for r in range(16):
        a.e(f"ds_write_b32 v{VS}, v{ARE+r} offset:{LSC+128*eidx(r)}", f"ds_write_b32 v{VS}, v{AIM+r} offset:{LSC+4096+128*eidx(r)}")
    a.e(f"v_lshl_add_u32 v{K0}, v{G_}, 7, v{IDX}", f"v_sub_u32 v{K0}, 1024, v{K0}", "s_waitcnt lgkmcnt(0)")
    for r in range(16):
        ad, rr, ri, ur, ui, vr, vi, o0, o1 = [SP+2+i for i in range(9)]
        a.e(f"v_subrev_u32 v{ad}, {32*eidx(r)}, v{K0}", f"v_and_b32 v{ad}, 1023, v{ad}", f"v_lshlrev_b32 v{ad}, 2, v{ad}",
            f"ds_read_b32 v{rr}, v{ad} offset:{LSC}", f"ds_read_b32 v{ri}, v{ad} offset:{LSC+4096}", "s_waitcnt lgkmcnt(0)")
        pr, pi_ = ARE+r, AIM+r
        a.e(f"v_add_f32 v{ur}, v{pr}, v{rr}", f"v_sub_f32 v{ui}, v{pi_}, v{ri}",
            f"v_sub_f32 v{vr}, v{pr}, v{rr}", f"v_add_f32 v{vi}, v{pi_}, v{ri}")
        sg = "-" if r < 8 else ""; ns = "" if r < 8 else "-"
        ar, ai, br, bi = WR+r, WI+r, W2R+r, W2I+r
        a.e(f"v_mul_f32 v{o0}, v{ur}, v{ar}", f"v_fma_f32 v{o0}, {sg}v{ui}, v{ai}, v{o0}",
            f"v_fma_f32 v{o0}, v{vr}, v{br}, v{o0}", f"v_fma_f32 v{o0}, {sg}v{vi}, v{bi}, v{o0}",
            f"v_mul_f32 v{o1}, v{ui}, v{ar}", f"v_fma_f32 v{o1}, {ns}v{ur}, v{ai}, v{o1}",
            f"v_fma_f32 v{o1}, v{vi}, v{br}, v{o1}", f"v_fma_f32 v{o1}, {ns}v{vr}, v{bi}, v{o1}",
            f"v_mul_f32 v{o0}, 0.5, v{o0}", f"v_mul_f32 v{o1}, 0.5, v{o1}",
            f"v_cvt_pk_bf16_f32 v{DF+r}, v{o0}, -v{o1}")
    a.e(f"s_branch {Linv}")

def gen_B(a):
    SK, SV, SSH, SKVT, SH, STT, SQ, SOUT = 32, 36, 40, 44, 80, 84, 88, 92
    a.e(f"s_setprio {OPT['prioB']}") if OPT['prioB'] else None
    srd(a, SK, P_K, P_K+1, 4*MB); srd(a, SV, P_V, P_V+1, 4*MB); srd(a, SSH, P_SHK, P_SHK+1, 8192)
    srd(a, SKVT, P_WS, P_WS+1, 4*MB, add=WS_KVT); srd(a, SH, P_SSMK, P_SSMK+1, 4*MB)
    srd(a, STT, P_WS, P_WS+1, 4*MB, add=WS_TT); srd(a, SQ, P_Q, P_Q+1, 4*MB); srd(a, SOUT, P_OUT, P_OUT+1, 8*MB)
    sCBK, sSUB, sD, sD4K, sLB, sROW, sCH = 48, 49, 50, 51, 52, 53, 54
    a.e(f"s_and_b32 s{sCBK}, s2, 7", f"s_lshl_b32 s{sCBK}, s{sCBK}, 1", "s_bfe_u32 s55, s2, 0x10003", f"s_add_u32 s{sCBK}, s{sCBK}, s55",
        f"s_lshr_b32 s{sSUB}, s2, 4",
        f"s_lshl_b32 s{sD}, s{sCBK}, 4", f"s_add_u32 s{sD}, s{sD}, s{sSUB}", f"s_lshl_b32 s{sD}, s{sD}, 2", f"s_add_u32 s{sD}, s{sD}, s3",
        f"s_lshl_b32 s{sD4K}, s{sD}, 12", f"s_mul_i32 s{sLB}, s3, {LB_STRIDE}",
        f"s_lshl_b32 s{sROW}, s{sSUB}, 7", "s_lshl_b32 s55, s3, 5", f"s_add_u32 s{sROW}, s{sROW}, s55",
        f"s_lshl_b32 s{sCH}, s{sCBK}, 6")
    a.e(f"s_lshl_b32 s55, s{sCBK}, 7", f"s_add_u32 s55, s55, {WS_SYNC+SY_EB}", f"s_load_dword s{S_TGT}, s[{P_WS}:{P_WS+1}], s55")
    stamp(a, 0, True); stamp(a, 1)
    a.e(f"s_and_b32 s55, s{sD}, 0xfffffffe", "s_lshl_b32 s55, s55, 1", f"s_load_dword s56, s[{P_SSMD}:{P_SSMD+1}], s55")
    CG, RG, S0, CH0, VOFF, VH, VST, VSH = 2, 3, 4, 5, 6, 7, 8, 9
    VQO = 208; QR = 192
    VT = 209
    a.e(f"v_and_b32 v{CG}, 15, v1", f"v_lshrrev_b32 v{RG}, 4, v1",
        f"v_lshl_add_u32 v{S0}, v{RG}, 3, s{sROW}", f"v_lshl_add_u32 v{CH0}, v{CG}, 2, s{sCH}",
        f"v_lshlrev_b32 v{VOFF}, 11, v{S0}", f"v_lshl_add_u32 v{VOFF}, v{CH0}, 1, v{VOFF}",
        f"v_subrev_u32 v{VH}, 6144, v{VOFF}",
        f"v_lshlrev_b32 v{VST}, 12, v{CH0}", f"v_lshl_add_u32 v{VST}, v{S0}, 1, v{VST}",
        f"v_lshlrev_b32 v{VSH}, 3, v{CH0}")
    for i in range(1, 8): a.e(f"s_mov_b32 s{57+i-1}, {4096*i}")
    soff = ["0"] + [f"s{57+i}" for i in range(7)]
    KR, VR, SHR, KF, SHF, KV, TM, PK = 16, 38, 54, 64, 108, 124, 156, 16
    a.e(f"buffer_load_dwordx4 {v(SHR,4)}, v{VSH}, s[{SSH}:{SSH+3}], 0 offen",
        f"buffer_load_dwordx4 {v(SHR+4,4)}, v{VSH}, s[{SSH}:{SSH+3}], 0 offen offset:16")
    for i in range(3):
        a.e(f"buffer_load_dwordx2 {v(KR+2*i,2)}, v{VH}, s[{SK}:{SK+3}], {soff[i>>1]} offen" + (" offset:2048" if i & 1 else "") + NT())
    for i in range(8):
        a.e(f"buffer_load_dwordx2 {v(KR+6+2*i,2)}, v{VOFF}, s[{SK}:{SK+3}], {soff[i>>1]} offen" + (" offset:2048" if i & 1 else "") + NT())
    for i in range(8):
        a.e(f"buffer_load_dwordx2 {v(VR+2*i,2)}, v{VOFF}, s[{SV}:{SV+3}], {soff[i>>1]} offen" + (" offset:2048" if i & 1 else "") + NT())
    NA = 0
    a.e(f"v_lshlrev_b32 v{VQO}, 12, v{S0}", f"v_lshl_add_u32 v{VQO}, v{CH0}, 1, v{VQO}", f"v_add_u32 v{VQO}, 2048, v{VQO}", f"v_mov_b32 v{VT}, v{VST}", f"v_mov_b32 v212, v{VOFF}")
    stamp(a, 2)
    a.e("s_mov_b32 s66, 0xffff0000")
    a.e(f"s_waitcnt vmcnt({19+NA})")
    for ch in range(4):
        for j in range(4):
            src = SHR + 2*ch + (j >> 1)
            if j & 1: a.e(f"v_and_b32 v{SHF+4*j+ch}, s66, v{src}")
            else:     a.e(f"v_lshlrev_b32 v{SHF+4*j+ch}, 16, v{src}")
    for i in range(11):
        a.e(f"s_waitcnt vmcnt({18-i+NA})")
        for hf in range(2):
            a.e(f"v_lshlrev_b32 v{KF+4*i+2*hf}, 16, v{KR+2*i+hf}", f"v_and_b32 v{KF+4*i+2*hf+1}, s66, v{KR+2*i+hf}")
    for i in range(8):
        a.e(f"s_waitcnt vmcnt({7-i+NA})")
        for hf in range(2):
            a.e(f"v_lshlrev_b32 v{TM+2*hf}, 16, v{VR+2*i+hf}", f"v_and_b32 v{TM+2*hf+1}, s66, v{VR+2*i+hf}")
        for hf in range(2):
            acc = KV+4*i+2*hf
            a.e(f"v_pk_mul_f32 {v(acc,2)}, {v(KF+4*(i+3)+2*hf,2)}, {v(SHF+2*hf,2)}")
            for j in range(1, 4):
                a.e(f"v_pk_fma_f32 {v(acc,2)}, {v(KF+4*(i+3-j)+2*hf,2)}, {v(SHF+4*j+2*hf,2)}, {v(acc,2)}")
            a.e(f"v_pk_mul_f32 {v(acc,2)}, {v(acc,2)}, {v(TM+2*hf,2)}")
    stamp(a, 3)
    for ch in range(4):
        for m in range(4):
            a.e(f"v_cvt_pk_bf16_f32 v{PK+4*ch+m}, v{KV+4*(7-2*m)+ch}, v{KV+4*(6-2*m)+ch}")
        a.e(f"buffer_store_dwordx4 {v(PK+4*ch,4)}, v{VST}, s[{SKVT}:{SKVT+3}], {soff[ch]} offen sc1")
    a.e(f"s_lshl_b32 s64, s{sCBK}, 10", f"s_lshl_b32 s65, s{sSUB}, 6", "s_add_u32 s65, s65, s64",
        f"s_add_u32 s67, s65, {SY_B1}", f"s_add_u32 s68, s65, {SY_B2}", f"s_add_u32 s69, s64, {SY_B1}", f"s_add_u32 s70, s64, {SY_B2}")
    a.e("s_waitcnt lgkmcnt(0)", f"s_add_u32 s{S_TGT}, s{S_TGT}, 1")
    signal(a, 67, 14)
    stamp(a, 4)
    a.e("v_lshlrev_b32 v10, 4, v1")
    a.e(f"s_add_u32 s64, s{sLB}, 32", "s_mov_b32 m0, s64")
    for ch in range(4): a.e(f"buffer_load_dwordx4 v10, s[{SH}:{SH+3}], s{sD4K} offen offset:{1024*ch} lds" + NT())
    a.e(f"s_add_u32 s64, s{sLB}, 4192", f"s_add_u32 s65, s{sD4K}, 2", "s_mov_b32 m0, s64")
    for ch in range(4): a.e(f"buffer_load_dwordx4 v10, s[{SH}:{SH+3}], s65 offen offset:{1024*ch} lds" + NT())
    a.e("v_mov_b32 v11, 0x7ffffff0", f"v_mov_b32 v12, s{sD4K}", "v_cmp_eq_u32 vcc, 15, v1", "v_cndmask_b32 v11, v11, v12, vcc",
        f"buffer_load_short_d16_hi v210, v11, s[{SH}:{SH+3}], 0 offen")

    LN16, B_, G4, VA, VB, VE, VS2, T = 2, 3, 4, 5, 9, 10, 11, 12
    a.e(f"v_lshlrev_b32 v{T}, 2, v1",
        f"v_add_u32 v{T+1}, {4160-32}, v{T}", "v_cmp_le_u32 vcc, 8, v1", f"v_cndmask_b32 v{T+3}, v{T}, v{T+1}, vcc",
        f"v_add_u32 v{T+1}, 8288, v{T}", "v_cmp_le_u32 vcc, 16, v1", f"v_cndmask_b32 v{T+3}, v{T+3}, v{T+1}, vcc",
        f"v_add_u32 v211, s{sLB}, v{T+3}")
    a.e(f"v_lshlrev_b32 v{T}, 3, v1", f"v_add_u32 v{T}, s{sLB}, v{T}", "v_mov_b32 v16, 0", "v_mov_b32 v17, 0", f"ds_write_b64 v{T}, v[16:17] offset:8288")
    a.e(f"v_and_b32 v{B_}, 15, v1", f"v_lshrrev_b32 v{G4}, 4, v1")
    a.e(f"v_and_b32 v{VA}, 1, v{B_}", f"v_xor_b32 v{VA}, 1, v{VA}", f"v_mul_u32_u24 v{VA}, 4160, v{VA}",
        f"v_add_u32 v{VA+1}, 1, v{B_}", f"v_lshrrev_b32 v{VA+1}, 1, v{VA+1}", f"v_lshl_add_u32 v{VA}, v{VA+1}, 2, v{VA}",
        f"v_lshlrev_b32 v{VA+1}, 4, v{G4}", f"v_sub_u32 v{VA}, v{VA}, v{VA+1}",
        f"s_add_u32 s64, s{sLB}, 16", f"v_add_u32 v{VA}, s64, v{VA}")
    for pp in range(1, 4): a.e(f"v_add_u32 v{VA+pp}, {1024*pp}, v{VA}")
    a.e(f"v_lshlrev_b32 v{VB}, 5, v{B_}", f"v_lshl_add_u32 v{VB}, v{G4}, 4, v{VB}",
        f"s_add_u32 s64, s{sLB}, {8800-480}", f"v_add_u32 v{VB}, s64, v{VB}")
    a.e(f"v_lshrrev_b32 v{VE}, 1, v{G4}", f"v_lshlrev_b32 v{VE}, 4, v{VE}", f"v_lshl_add_u32 v{VE}, v{B_}, 5, v{VE}",
        f"v_and_b32 v18, 1, v{G4}", "v_xor_b32 v18, 1, v18", f"v_lshl_add_u32 v{VE}, v18, 3, v{VE}",
        f"s_add_u32 s64, s{sLB}, 8800", f"v_add_u32 v{VE}, s64, v{VE}")
    a.e(f"v_and_b32 v18, 1, v{G4}", f"v_lshlrev_b32 v{VS2}, 9, v18", f"v_lshl_add_u32 v{VS2}, v{B_}, 5, v{VS2}",
        f"v_lshrrev_b32 v18, 1, v{G4}", f"v_lshl_add_u32 v{VS2}, v18, 4, v{VS2}", f"v_add_u32 v{VS2}, s{sD4K}, v{VS2}")
    a.e(f"v_lshlrev_b32 v{LN16}, 4, v1", f"s_add_u32 s64, s{sLB}, 8800", f"v_add_u32 v19, s64, v{LN16}")
    a.e("s_waitcnt lgkmcnt(0)",
        f"s_and_b32 s64, s{sD}, 1", "s_lshl_b32 s65, s56, 16", "s_and_b32 s71, s56, 0xffff0000",
        "s_cmp_eq_u32 s64, 1", "s_cselect_b32 s56, s71, s65")
    a.e(f"v_and_b32 v{T}, 15, v1", f"v_lshlrev_b32 v{T}, 6, v{T}", f"v_add_u32 v{T}, s69, v{T}")
    stamp(a, 5)
    wait_flags(a, T, 1, T+1, 64)
    stamp(a, 6)
    ACC = 20
    SETS = [(52, 84), (116, 148)]
    U = SETS[1][1]
    for ch in range(4):
        a.e(f"buffer_load_dwordx4 {v(U+4*ch,4)}, v{LN16}, s[{SKVT}:{SKVT+3}], s{sD4K} offen offset:{1024*ch} sc1")
    def reads(rho, st):
        A, B = SETS[st]
        out = []
        for p in range(8):
            o = 8*rho + 128*(p & 1)
            out.append(f"ds_read2_b32 {v(A+4*p,2)}, v{VA+(p>>1)} offset0:{o} offset1:{o+1}")
            out.append(f"ds_read2_b32 {v(A+4*p+2,2)}, v{VA+(p>>1)} offset0:{o+2} offset1:{o+3}")
        outb = [f"ds_read_b128 {v(B+4*q,4)}, v{VB} offset:{512*q+32*(15-rho)}" for q in range(8)]
        return out, outb
    rhos = list(range(1, 16, 2))
    ra, rb = reads(rhos[0], 0)
    for i in range(8):
        a.e(f"buffer_load_dwordx2 {v(QR+2*i,2)}, v212, s[{SQ}:{SQ+3}], {soff[i>>1]} offen" + (" offset:2048" if i & 1 else "") + NT())
    a.e("s_waitcnt vmcnt(11)", "ds_write_b32 v211, v210")
    a.e("s_waitcnt lgkmcnt(0)")
    for r in ra: a.e(r)
    for ch in range(4):
        a.e(f"s_waitcnt vmcnt({3-ch+8})", f"ds_write_b128 v19, {v(U+4*ch,4)} offset:{1024*ch}")
    a.e("s_waitcnt lgkmcnt(0)")
    for r in rb: a.e(r)
    stamp(a, 7)
    for ci, rho in enumerate(rhos):
        st = ci & 1
        A, B = SETS[st]
        if ci+1 < len(rhos):
            ra, rb = reads(rhos[ci+1], st ^ 1); nxt = ra[0:2] + rb + ra[2:]
        else:
            nxt = [f"ds_read_b64 {v(SETS[st^1][0]+2*j,2)}, v{VE} offset:{512*j}" for j in range(8)]
        a.e("s_waitcnt lgkmcnt(0)")
        n = 0
        for p in range(8):
            for q in range(8-p):
                j = p+q
                c = "0" if (ci == 0 and p == 0) else v(ACC+4*j, 4)
                a.e(f"v_mfma_f32_16x16x32_bf16 {v(ACC+4*j,4)}, {v(A+4*p,4)}, {v(B+4*q,4)}, {c}")
                if n < len(nxt): a.e(nxt[n])
                n += 1
    KVR = SETS[0][0]; TMv = 116
    a.e("s_waitcnt lgkmcnt(0)")
    stamp(a, 8)
    for jp in range(4):
        base = TMv + 16*(jp & 1)
        for hh in range(2):
            j = 2*jp+hh
            w0, w1 = KVR+2*j, KVR+2*j+1
            t = base+4
            a.e(f"v_and_b32 v{t}, s66, v{w1}", f"v_lshlrev_b32 v{t+1}, 16, v{w1}",
                f"v_and_b32 v{t+2}, s66, v{w0}", f"v_lshlrev_b32 v{t+3}, 16, v{w0}")
            for r in range(4):
                a.e(f"v_fma_f32 v{t+r}, v{t+r}, s56, v{ACC+4*j+r}")
            a.e(f"v_cvt_pk_bf16_f32 v{base+2*hh}, v{t}, v{t+1}", f"v_cvt_pk_bf16_f32 v{base+2*hh+1}, v{t+2}, v{t+3}")
        a.e(f"v_permlane16_swap_b32 v{base}, v{base+2}", f"v_permlane16_swap_b32 v{base+1}, v{base+3}")
        a.e(f"buffer_store_dwordx4 {v(base,4)}, v{VS2}, s[{STT}:{STT+3}], 0 offen offset:{1024*jp} sc1")
    signal(a, 68, 12)
    stamp(a, 9)
    TR, TF, QF, PKo = 16, 48, 80, 88
    a.e("v_and_b32 v12, 15, v1", "v_lshlrev_b32 v12, 6, v12", "v_add_u32 v12, s70, v12")
    wait_flags(a, 12, 1, 13, 64)
    stamp(a, 10)
    Lb = newlbl("nobumpB")
    a.e(f"s_or_b32 s64, s{sSUB}, s3", "s_cmp_lg_u32 s64, 0", f"s_cbranch_scc1 {Lb}",
        f"s_lshl_b32 s64, s{sCBK}, 7", f"s_add_u32 s64, s64, {SY_EB}")
    bump(a, 64, 12)
    a.label(Lb)
    for ch in range(4):
        a.e(f"buffer_load_dwordx4 {v(TR+4*ch,4)}, v{VT}, s[{STT}:{STT+3}], {soff[ch]} offen sc1")
    for e in range(8):
        qf = QF + 4*e
        for hf in range(2):
            a.e(f"v_lshlrev_b32 v{qf+2*hf}, 16, v{QR+2*e+hf}", f"v_and_b32 v{qf+2*hf+1}, s66, v{QR+2*e+hf}")
    QF2 = QF
    for ch in range(4):
        a.e(f"s_waitcnt vmcnt({3-ch})")
        for e in range(8):
            src = TR+4*ch+(e >> 1)
            if e & 1: a.e(f"v_and_b32 v{TF+4*e+ch}, s66, v{src}")
            else:     a.e(f"v_lshlrev_b32 v{TF+4*e+ch}, 16, v{src}")
    for e in range(8):
        qf = QF + 4*e
        for hf in range(2):
            a.e(f"v_pk_mul_f32 {v(qf+2*hf,2)}, {v(qf+2*hf,2)}, {v(TF+4*e+2*hf,2)}")
        pk = 112+2*e
        for hf in range(2):
            a.e(f"v_cvt_pk_bf16_f32 v{pk+hf}, v{qf+2*hf}, v{qf+2*hf+1}")
        a.e(f"buffer_store_dwordx2 {v(pk,2)}, v{VQO}, s[{SOUT}:{SOUT+3}], {soff[e]} offen" + NTO())
    if gen.PROF:
        a.e("s_waitcnt vmcnt(0)")
    a.e("s_branch L_fin")

def gen_kernel():
    a = Asm(); a.name = "p"
    a.e("s_cmp_ge_u32 s2, 512", "s_cbranch_scc1 L_exit")
    if gen.PROF: a.e("s_memrealtime s[98:99]", "s_waitcnt lgkmcnt(0)", "v_writelane_b32 v247, s98, 13")
    a.e(f"s_load_dwordx16 s[4:19], s[0:1], 0", f"s_load_dwordx8 s[20:27], s[0:1], 64")
    a.e("v_lshrrev_b32 v1, 6, v0", "v_readfirstlane_b32 s3, v1", "v_and_b32 v1, 63, v0", "s_waitcnt lgkmcnt(0)")
    srd(a, S_SYN, P_WS, P_WS+1, 1*MB, add=WS_SYNC)
    a.e("s_cmp_ge_u32 s2, 256", "s_cbranch_scc1 L_A")
    gen_B(a)
    a.label("L_A")
    gen_A(a)
    a.label("L_fin")
    if gen.PROF:
        stamp(a, 14); stamp(a, 15, True)
        prof_dump(a)
    a.label("L_exit")
    a.e("s_endpgm")
    return a

def prof_dump(a):
    if OPT.get("dbgwg", -1) >= 0:
        L = newlbl("nodbg")
        a.e(f"s_cmp_lg_u32 s2, {OPT['dbgwg']}", f"s_cbranch_scc1 {L}", "s_cmp_lg_u32 s3, 0", f"s_cbranch_scc1 {L}")
        a.e("v_readlane_b32 s36, v247, 1", "v_readlane_b32 s37, v247, 13", "v_mov_b32 v250, s36", "v_mov_b32 v251, s37",
            "v_cmp_eq_u32 vcc, 0, v1", "v_cndmask_b32 v250, v250, v251, vcc", "v_cmp_eq_u32 vcc, 13, v1", "v_cndmask_b32 v250, v250, v251, vcc",
            "v_cmp_eq_u32 vcc, 15, v1", "v_cndmask_b32 v250, v250, v251, vcc", "v_sub_u32 v250, v247, v250",
            f"s_mov_b32 s32, s{P_DBG}", f"s_mov_b32 s33, s{P_DBG+1}", "s_mov_b32 s34, 256", "s_mov_b32 s35, 0x00020000",
            "v_lshlrev_b32 v251, 2, v1", "s_mov_b64 exec, 0xffff", "buffer_store_dword v250, v251, s[32:35], 0 offen", "s_waitcnt vmcnt(0)", "s_mov_b64 exec, -1")
        a.label(L)
        return

    a.e(f"s_add_u32 s32, s{P_WS}, {gen.WS_PROF}", f"s_addc_u32 s33, s{P_WS+1}, 0", f"s_mov_b32 s34, {MB}", "s_mov_b32 s35, 0x00020000")
    a.e("s_lshl_b32 s36, s2, 2", "s_add_u32 s36, s36, s3", "s_lshl_b32 s36, s36, 6",
        "v_lshlrev_b32 v250, 2, v1", "v_add_u32 v250, s36, v250", "s_mov_b64 exec, 0xffff",
        "buffer_store_dword v247, v250, s[32:35], 0 offen", "s_waitcnt vmcnt(0)")
PROFREGS = []

def build(path):
    a = gen_kernel()
    name = "concat_heads__spectral_gfnet__ssm_conv_h3__prompt_kernel"
    s = open("concat_heads__spectral_gfnet__ssm_conv_h3__prompt.s.ref").read().split("; Override")[0]
    s += f"; @launch grid=(512,1,1) block=(256,1,1) lds={LDS_BYTES}\n"
    s += '.amdgcn_target "amdgcn-amd-amdhsa--gfx950"\n' + gen.header(name) + a.text() + gen.descriptor(name, 256, 102)
    s = s.replace(" lds nt", " nt lds")
    open(path, "w").write(s)
    return s

if __name__ == "__main__":
    out = sys.argv[1] if len(sys.argv) > 1 else "pers.s"
    gen.PROF = "prof" in sys.argv[2:]
    for x in sys.argv[2:]:
        if "=" in x:
            k, val = x.split("="); OPT[k] = int(val)
    if OPT["wsend"]:
        base = OPT["wsend"]*MB
        WS_I1, WS_KVT, WS_I2, WS_TT, WS_SYNC = base, base+4*MB, base+8*MB, base+12*MB, base+20*MB
    s = build(out)
    print(out, len(s))
```

```python
import sys
from asmgen import *
import gen
from gen import srd, MB, WS_I1, WS_KVT, WS_I2, WS_TT, KA

def fstamp(a, i):
    if not (gen.PROF and OPT.get("fine")): return
    a.e('s_memtime s[96:97]', 's_waitcnt lgkmcnt(0)', f'v_writelane_b32 v246, s96, {i}')
def stamp(a, i, real=False):
    if not gen.PROF: return
    a.e('s_memrealtime s[96:97]' if real else 's_memtime s[96:97]', 's_waitcnt lgkmcnt(0)', f'v_writelane_b32 v247, s96, {i}')

WBYTES = 2048*513*2
LB_STRIDE = 12896
LDS_BYTES = 53248
SPIN_LIMIT = 400000
OPT = dict(prioA=0, prioB=0, sleep=0, nt=1, wsend=0, ntout=0, ntw=1)
def NT(): return ' nt' if OPT['nt'] else ''
def NTO(): return {0: '', 1: ' nt', 2: ' sc1', 3: ' sc1 nt'}[OPT['ntout']]

P_X, P_WR, P_WI, P_Q, P_K, P_V, P_SHK, P_SSMK, P_SSMD, P_OUT, P_DBG, P_WS = 4, 6, 8, 10, 12, 14, 16, 18, 20, 22, 24, 26
S_DBG = 28
def eidx(r): return (r & 3) + 8*(r >> 2)

_lbl = [0]
def newlbl(p):
    _lbl[0] += 1
    return f"L_{p}_{_lbl[0]}"

WS_SYNC = 20*MB
S_SYN = 28
S_TGT = 101
SY_E, SY_A1, SY_A2, SY_B1, SY_B2 = 0, 4096, 4096+16384, 4096+32768, 4096+49152
sACT, sCBKT, sSUBT, sCU = 88, 89, 90, 91
def signal(a, s_off, vt, nafter=0):
    L = newlbl("sig")
    a.e(f"s_waitcnt vmcnt({nafter})", "s_barrier", "s_cmp_lg_u32 s3, 0", f"s_cbranch_scc1 {L}",
        f"v_mov_b32 v{vt}, s{s_off}", f"v_mov_b32 v{vt+1}, s{S_TGT}", "s_mov_b64 exec, 1",
        f"buffer_store_dword v{vt+1}, v{vt}, s[{S_SYN}:{S_SYN+3}], 0 offen sc1", "s_mov_b64 exec, -1")
    a.label(L)

def wait_flags(a, vaddr, nload, vt, s_cnt, pre_barrier=None, solo=False):
    L = newlbl("poll"); Ls = newlbl("pdone")
    if not solo: a.e("s_cmp_lg_u32 s3, 0", f"s_cbranch_scc1 {Ls}")
    a.e(f"s_mov_b32 s{s_cnt}, 0")
    a.label(L)
    offs = ["0", "s98", "s99", "s100"]
    for i in range(nload):
        a.e(f"buffer_load_dword v{vt+i}, v{vaddr}, s[{S_SYN}:{S_SYN+3}], {offs[i]} offen sc1")
    a.e(f"s_add_u32 s{s_cnt}, s{s_cnt}, 1", "s_waitcnt vmcnt(0)")
    for i in range(nload):
        a.e(f"v_xor_b32 v{vt+i}, s{S_TGT}, v{vt+i}")
    for i in range(1, nload):
        a.e(f"v_or_b32 v{vt}, v{vt}, v{vt+i}")
    a.e(f"v_cmp_ne_u32 vcc, 0, v{vt}", f"s_cbranch_vccz {Ls}")
    if OPT["sleep"]: a.e(f"s_sleep {OPT['sleep']}")
    a.e(f"s_cmp_lt_u32 s{s_cnt}, {SPIN_LIMIT}", f"s_cbranch_scc1 {L}")
    a.label(Ls)
    if pre_barrier: a.e(pre_barrier)
    if not solo: a.e("s_barrier")

def fin_epoch(a):
    a.e("s_waitcnt lgkmcnt(0)", f"s_add_u32 s{S_TGT}, s{S_TGT}, 1")

def bump(a, s_off, vt):
    a.e(f"v_mov_b32 v{vt}, s{s_off}", f"v_mov_b32 v{vt+1}, s{S_TGT}", "s_mov_b64 exec, 1",
        f"buffer_store_dword v{vt+1}, v{vt}, s[{S_SYN}:{S_SYN+3}], 0 offen sc1", "s_mov_b64 exec, -1")

F_M, F_G, F_IN0, F_IN1, F_OUTOFF, F_WR, F_RD0, F_RD1, F_MM = 2, 3, 4, 5, 6, 7, 8, 9, 10
F_T = 11
F_IN, F16RE, F16IM, F_TWC, F_TWS, F_DRE, F_DIM, F_P, F_TMP, F32RE, F32IM = 16, 48, 52, 56, 88, 120, 136, 152, 168, 176, 192
SI_OFF, SO_OFF = 52, 68
SO_LIST = [68, 69, 70, 71, 76, 77, 78, 79]

def fft512_addr(a, s_sa, s_cb):
    a.e(f"v_and_b32 v{F_M}, 15, v1", f"v_lshrrev_b32 v{F_G}, 4, v1")
    a.e(f"v_lshlrev_b32 v{F_IN0}, 20, v{F_G}", f"v_lshl_add_u32 v{F_IN0}, v{F_M}, 2, v{F_IN0}", f"v_add_u32 v{F_IN1}, {4*8192}, v{F_IN0}")
    a.e(f"s_lshl_b32 s48, s{s_sa}, 11", f"s_lshl_b32 s49, s{s_cb}, 6", "s_add_u32 s48, s48, s49",
        "s_lshl_b32 s50, s3, 16", "s_add_u32 s48, s48, s50")
    for aa in range(4):
        for i in range(4):
            a.e(f"s_add_u32 s{SI_OFF+4*aa+i}, s48, {(32*i+aa)*8192}")

def fft512_loads(a, SIN, mod=""):
    for hh in range(2):
        for aa in range(4):
            for i in range(4):
                a.e(f"buffer_load_dword v{F_IN+16*hh+4*aa+i}, v{F_IN0+hh}, s[{SIN}:{SIN+3}], s{SI_OFF+4*aa+i} offen {mod}")

def fft512_addr2(a, s_sa, s_cb, orow, ostr):
    a.e(f"s_mov_b32 s51, {16*ostr}", f"v_mul_lo_u32 v{F_OUTOFF}, v{F_M}, s51", f"v_lshl_add_u32 v{F_OUTOFF}, v{F_G}, 4, v{F_OUTOFF}")
    a.e(f"s_mul_i32 s48, s{s_sa}, {orow}", f"s_lshl_b32 s49, s{s_cb}, 6", "s_add_u32 s48, s48, s49",
        f"s_mul_i32 s50, s3, {4*ostr}", "s_add_u32 s48, s48, s50")
    for b in range(4):
        for h in range(2):
            a.e(f"s_add_u32 s{SO_LIST[2*b+h]}, s48, {(b+256*h)*ostr}")
    a.e(f"v_and_b32 v{F_T}, 7, v{F_M}", "s_lshl_b32 s50, s3, 1", f"v_xor_b32 v{F_T+1}, s50, v{F_T}",
        f"v_lshlrev_b32 v{F_WR}, 4, v{F_T+1}", f"v_lshl_add_u32 v{F_WR}, v{F_M}, 7, v{F_WR}",
        f"v_lshl_add_u32 v{F_WR}, v{F_G}, 13, v{F_WR}")
    a.e(f"v_xor_b32 v{F_T+1}, v{F_G}, v{F_T}", f"v_lshlrev_b32 v{F_RD0}, 4, v{F_T+1}",
        f"v_lshl_add_u32 v{F_RD0}, v{F_M}, 7, v{F_RD0}", "s_lshl_b32 s50, s3, 13",
        f"v_add_u32 v{F_RD0}, s50, v{F_RD0}", f"v_xor_b32 v{F_RD1}, 64, v{F_RD0}")

def fft512_consts(a):
    T, TMP = F_T, F_TMP
    XS, XB = T, T+1
    a.e(f"v_cvt_f32_u32 v{XS}, v{F_M}", f"v_mul_f32 v{XS}, {f32hex(1/32)}, v{XS}",
        f"v_cvt_f32_u32 v{T+2}, v{F_G}", f"v_mul_f32 v{T+2}, 4.0, v{T+2}",
        f"v_mul_f32 v{XB}, v{T+2}, v{XS}")
    a.e(f"v_and_b32 v{F_MM}, 1, v{F_M}", f"v_mul_u32_u24 v{F_MM}, 0x8000, v{F_MM}",
        f"v_lshl_or_b32 v{F_MM}, v{F_MM}, 16, v{F_MM}", "s_mov_b32 s50, 0x80008000")
    for i in range(4):
        x = TMP; cs = TMP+1; sn = TMP+2; x2 = TMP+3; cs2 = TMP+4; sn2 = TMP+5
        a.e(f"v_fmamk_f32 v{x}, v{XS}, {f32hex(float(i))}, v{XB}" if i else f"v_mov_b32 v{x}, v{XB}")
        a.e(f"v_add_f32 v{x2}, v{x}, v{x}")
        a.e(f"v_cos_f32 v{cs}, v{x}", f"v_sin_f32 v{sn}, v{x}", f"v_cos_f32 v{cs2}, v{x2}", f"v_sin_f32 v{sn2}, v{x2}")
        a.e(f"v_cvt_pk_bf16_f32 v{F32RE+i}, v{cs}, v{sn}", f"v_cvt_pk_bf16_f32 v{F32IM+i}, -v{sn}, v{cs}",
            f"v_cvt_pk_bf16_f32 v{F16RE+i}, v{cs2}, v{sn2}", f"v_cvt_pk_bf16_f32 v{F16IM+i}, -v{sn2}, v{cs2}")
    for base in (F32RE, F32IM):
        for i in range(4):
            a.e(f"v_xor_b32 v{base+4+i}, v{F_MM}, v{base+i}")
        for t in range(2):
            for i in range(4):
                src = base+4*t+i
                if i & 1: a.e(f"v_xor_b32 v{base+8+4*t+i}, s50, v{src}")
                else:     a.e(f"v_mov_b32 v{base+8+4*t+i}, v{src}")
    a.e(f"v_cvt_f32_u32 v{TMP}, s3", f"v_mul_f32 v{TMP}, {f32hex(8/512)}, v{TMP}")
    for r in range(4):
        a.e(f"v_add_f32 v{TMP+4+r}, {f32hex(float(r)) if r else 0}, v{T+2}")
    for aa in range(8):
        a.e(f"v_add_f32 v{TMP+1}, {f32hex(aa/512) if aa else 0}, v{TMP}")
        for r in range(4):
            a.e(f"v_mul_f32 v{T+3+(r&1)}, v{TMP+1}, v{TMP+4+r}",
                f"v_cos_f32 v{F_TWC+4*aa+r}, v{T+3+(r&1)}", f"v_sin_f32 v{F_TWS+4*aa+r}, v{T+3+(r&1)}")

def fft512_compute(a, SOUT, neg_im, nafter, stmod, st0, fs=0, hook=None):
    TMP = F_TMP
    stamp(a, st0)
    for hh in range(2):
        fstamp(a, fs+5*hh)
        for aa in range(4):
            a.e(f"s_waitcnt vmcnt({28-16*hh-4*aa+nafter})")
            a.e(f"v_mfma_f32_16x16x32_bf16 {v(F_DRE+4*aa,4)}, {v(F16RE,4)}, {v(F_IN+16*hh+4*aa,4)}, 0",
                f"v_mfma_f32_16x16x32_bf16 {v(F_DIM+4*aa,4)}, {v(F16IM,4)}, {v(F_IN+16*hh+4*aa,4)}, 0")
        if hh == 1:
            stamp(a, st0+1)
            if hook: hook()
        fstamp(a, fs+5*hh+1)
        for aa in range(4):
            for p in range(2):
                re, im = F_DRE+4*aa+2*p, F_DIM+4*aa+2*p
                tc, ts = F_TWC+16*hh+4*aa+2*p, F_TWS+16*hh+4*aa+2*p
                t0, t1 = TMP+4*p, TMP+4*p+2
                a.e(f"v_pk_mul_f32 {v(t0,2)}, {v(re,2)}, {v(tc,2)}",
                    f"v_pk_mul_f32 {v(t1,2)}, {v(im,2)}, {v(tc,2)}",
                    f"v_pk_fma_f32 {v(t0,2)}, {v(im,2)}, {v(ts,2)}, {v(t0,2)}",
                    f"v_pk_fma_f32 {v(t1,2)}, {v(re,2)}, {v(ts,2)}, {v(t1,2)} neg_lo:[1,0,0] neg_hi:[1,0,0]")
                for e in range(2):
                    r = 2*p+e
                    a.e(f"v_cvt_pk_bf16_f32 v{F_P+4*r+aa}, v{t0+e}, v{t1+e}")
        fstamp(a, fs+5*hh+2)
        if hh == 1: a.e(f"v_xor_b32 v{F_WR}, 16, v{F_WR}")
        for r in range(4):
            a.e(f"ds_write_b128 v{F_WR}, {v(F_P+4*r,4)} offset:{r*2048}")
    a.e("s_waitcnt lgkmcnt(0)")
    fstamp(a, fs+8)
    a.e("s_barrier")
    fstamp(a, fs+9)
    for b in range(4):
        a.e(f"ds_read_b128 {v(F_IN+8*b,4)}, v{F_RD0} offset:{b*2048}",
            f"ds_read_b128 {v(F_IN+8*b+4,4)}, v{F_RD1} offset:{b*2048}")
    sg = "-" if neg_im else ""
    def mf(bb):
        D0 = [F_DRE, F_DIM] if bb == 0 else [F_TWC, F_TWC+16]
        for bl in range(2):
            b = 2*bb+bl
            a.e(f"s_waitcnt lgkmcnt({6-2*b})")
            for t in range(2):
                for h in range(2):
                    for (D_, F_) in ((D0[0], F32RE), (D0[1], F32IM)):
                        d = D_+8*bl+4*h
                        c = "0" if t == 0 else v(d, 4)
                        a.e(f"v_mfma_f32_16x16x32_bf16 {v(d,4)}, {v(F_IN+8*b+4*t,4)}, {v(F_+8*h+4*t,4)}, {c}")
    def st(bb):
        D0 = [F_DRE, F_DIM] if bb == 0 else [F_TWC, F_TWC+16]
        PB = F_P if bb == 0 else F_TWS
        out = []
        for bl in range(2):
            b = 2*bb+bl
            for h in range(2):
                idx = 8*bl+4*h
                for r in range(4):
                    out.append(f"v_cvt_pk_bf16_f32 v{PB+idx+r}, v{D0[0]+idx+r}, {sg}v{D0[1]+idx+r}")
                out.append(f"buffer_store_dwordx4 {v(PB+idx,4)}, v{F_OUTOFF}, s[{SOUT}:{SOUT+3}], s{SO_LIST[2*b+h]} offen {stmod}")
        return out
    mf(0)
    n0 = len(a.lines)
    mf(1)
    m1 = a.lines[n0:]; del a.lines[n0:]
    s0 = st(0)
    k = 0
    seen = 0
    for l in m1:
        a.lines.append(l)
        if "v_mfma" in l:
            seen += 1
            if seen > 4:
                for _ in range(2):
                    if k < len(s0): a.e(s0[k]); k += 1
    while k < len(s0): a.e(s0[k]); k += 1
    fstamp(a, fs+10)
    for l in st(1): a.e(l)

IDX, G_, VG, VGW, VRR, VHR, VST, VW = 2, 3, 6, 7, 8, 12, 13, 14
CRE, CIM, TWC, TWS, WR, WI, ARE, AIM, DF, GA, HRE, HIM, GB, TMP = 16, 32, 48, 64, 80, 96, 112, 128, 144, 160, 164, 168, 172, 188
W2R, W2I, SP, PF, PF2 = 204, 220, 236, 248, 252
LW = 32768; LSC = 16384; LW2 = 49152

def w_dma(a, SWR, SWI, s_rowoff, s_mirroff, s_ldsbase, vlane16):
    a.e(f"s_mov_b32 m0, s{s_ldsbase}", f"buffer_load_dwordx4 v{vlane16}, s[{SWR}:{SWR+3}], s{s_rowoff} offen lds" + NT())
    a.e(f"s_add_u32 s93, s{s_ldsbase}, 1024", "s_mov_b32 m0, s93", f"buffer_load_dwordx4 v{vlane16}, s[{SWI}:{SWI+3}], s{s_rowoff} offen lds" + NT())
    a.e(f"s_add_u32 s92, s{s_mirroff}, 2")
    a.e(f"s_add_u32 s93, s{s_ldsbase}, 2048", "s_mov_b32 m0, s93", f"buffer_load_dwordx4 v{vlane16}, s[{SWR}:{SWR+3}], s92 offen lds" + NT())
    a.e(f"s_add_u32 s93, s{s_ldsbase}, 3072", "s_mov_b32 m0, s93", f"buffer_load_dwordx4 v{vlane16}, s[{SWI}:{SWI+3}], s92 offen lds" + NT())

def pf_loads(a, SWR, SWI, s_rowoff, s_mirroff, dst, vt):
    a.e(f"v_mov_b32 v{vt}, s{s_mirroff}", f"v_mov_b32 v{vt+1}, s{s_rowoff}", f"v_add_u32 v{vt+1}, 1024, v{vt+1}")
    a.e(f"buffer_load_short_d16_hi v{dst}, v{vt}, s[{SWR}:{SWR+3}], 0 offen",
        f"buffer_load_short_d16_hi v{dst+1}, v{vt}, s[{SWI}:{SWI+3}], 0 offen",
        f"buffer_load_short_d16_hi v{dst+2}, v{vt+1}, s[{SWR}:{SWR+3}], 0 offen",
        f"buffer_load_short_d16_hi v{dst+3}, v{vt+1}, s[{SWI}:{SWI+3}], 0 offen")

def w_lds_reads(a, vlo, vhi, dr, di):
    for (dst, o) in ((dr, 0), (di, 1024)):
        for r in range(16):
            e = eidx(r)
            if r < 8: a.e(f"ds_read_u16_d16_hi v{dst+r}, v{vlo} offset:{o+64*e}")
            else:     a.e(f"ds_read_u16_d16_hi v{dst+r}, v{vhi} offset:{o+64*(27-e)}")

def fix_w(a, dr, di, pf):
    a.e("v_cmp_eq_u32 vcc, 0, v1")
    for (r, o) in ((0, 0), (8, 2)):
        a.e(f"v_add_f32 v{TMP}, v{dr+r}, v{pf+o}", f"v_mul_f32 v{TMP}, 0.5, v{TMP}",
            f"v_sub_f32 v{TMP+1}, v{di+r}, v{pf+o+1}", f"v_mul_f32 v{TMP+1}, 0.5, v{TMP+1}",
            f"v_cndmask_b32 v{dr+r}, v{dr+r}, v{TMP}, vcc", f"v_cndmask_b32 v{di+r}, v{di+r}, v{TMP+1}, vcc")

def fft1024(a):
    for t in range(4):
        c0 = "0" if t == 0 else v(ARE, 16); c1 = "0" if t == 0 else v(AIM, 16)
        a.e(f"v_mfma_f32_32x32x16_bf16 {v(ARE,16)}, {v(DF+4*t,4)}, {v(CRE+4*t,4)}, {c0}",
            f"v_mfma_f32_32x32x16_bf16 {v(AIM,16)}, {v(DF+4*t,4)}, {v(CIM+4*t,4)}, {c1}")
    for p in range(8):
        re, im, tc, ts = ARE+2*p, AIM+2*p, TWC+2*p, TWS+2*p
        t0 = TMP+4*(p & 1); t1 = t0+2
        a.e(f"v_pk_mul_f32 {v(t0,2)}, {v(re,2)}, {v(tc,2)}",
            f"v_pk_mul_f32 {v(t1,2)}, {v(im,2)}, {v(tc,2)}",
            f"v_pk_fma_f32 {v(t0,2)}, {v(im,2)}, {v(ts,2)}, {v(t0,2)}",
            f"v_pk_fma_f32 {v(t1,2)}, {v(re,2)}, {v(ts,2)}, {v(t1,2)} neg_lo:[1,0,0] neg_hi:[1,0,0]")
        for e in range(2):
            a.e(f"v_cvt_pk_bf16_f32 v{DF+2*p+e}, v{t0+e}, v{t1+e}")
    for t in range(4):
        c0 = "0" if t == 0 else v(ARE, 16); c1 = "0" if t == 0 else v(AIM, 16)
        a.e(f"v_mfma_f32_32x32x16_bf16 {v(ARE,16)}, {v(CRE+4*t,4)}, {v(DF+4*t,4)}, {c0}",
            f"v_mfma_f32_32x32x16_bf16 {v(AIM,16)}, {v(CIM+4*t,4)}, {v(DF+4*t,4)}, {c1}")

def a2_consts(a, sT):
    a.e(f"v_and_b32 v{IDX}, 31, v1", f"v_lshrrev_b32 v{G_}, 5, v1")
    XS, XB = TMP, TMP+1
    a.e(f"v_cvt_f32_u32 v{TMP+2}, v{IDX}", f"v_cvt_f32_u32 v{TMP+3}, v{G_}", f"v_mul_f32 v{TMP+3}, 4.0, v{TMP+3}",
        f"v_mul_f32 v{XS}, {f32hex(1/32)}, v{TMP+2}", f"v_mul_f32 v{XB}, v{TMP+3}, v{XS}")
    a.e(f"v_and_b32 v{TMP+4}, 1, v{IDX}", f"v_mul_u32_u24 v{TMP+4}, 0x8000, v{TMP+4}", f"v_lshl_or_b32 v{TMP+4}, v{TMP+4}, 16, v{TMP+4}")
    for t in range(2):
        for i in range(4):
            c = float(8*t+i); x = TMP+5+3*(i & 1)
            a.e(f"v_fmamk_f32 v{x}, v{XS}, {f32hex(c)}, v{XB}" if c else f"v_mov_b32 v{x}, v{XB}")
            a.e(f"v_cos_f32 v{x+1}, v{x}", f"v_sin_f32 v{x+2}, v{x}")
            a.e(f"v_cvt_pk_bf16_f32 v{CRE+4*t+i}, v{x+1}, v{x+2}", f"v_cvt_pk_bf16_f32 v{CIM+4*t+i}, -v{x+2}, v{x+1}")
    for base in (CRE, CIM):
        for i in range(8):
            a.e(f"v_xor_b32 v{base+8+i}, v{TMP+4}, v{base+i}")
    a.e(f"v_mul_f32 v{XS}, {f32hex(1/1024)}, v{TMP+2}", f"v_mul_f32 v{XB}, v{TMP+3}, v{XS}")
    for r in range(16):
        c = float(eidx(r)); x = TMP+5+(r & 1)
        a.e(f"v_fmamk_f32 v{x}, v{XS}, {f32hex(c)}, v{XB}" if c else f"v_mov_b32 v{x}, v{XB}")
        a.e(f"v_cos_f32 v{TWC+r}, v{x}", f"v_sin_f32 v{TWS+r}, v{x}")
    LO, HI, Q, AV, XA0, XA1, E0, E1 = TMP, TMP+1, TMP+2, TMP+3, TMP+4, TMP+5, TMP+6, TMP+7
    JF, KEY, T2, PO, PAR, N16, G4, CS = [TMP+8+i for i in range(8)]
    Lspec, Ldone = newlbl("ghspec"), newlbl("ghdone")
    a.e(f"v_and_b32 v{LO}, 3, v{IDX}", f"v_bfe_u32 v{HI}, v{IDX}, 2, 2")
    a.e(f"v_and_b32 v{N16}, 15, v1", f"v_lshrrev_b32 v{G4}, 4, v1")
    a.e(f"s_cmp_eq_u32 s{sT}, 0", f"s_cbranch_scc1 {Lspec}")
    a.e(f"v_cvt_f32_u32 v{T2}, s{sT}", f"v_cvt_f32_u32 v{JF}, v{HI}", f"v_fmamk_f32 v{JF}, v{JF}, {f32hex(512.0)}, v{T2}",
        f"v_mul_f32 v{JF}, {f32hex(1/2048)}, v{JF}",
        f"v_cvt_f32_u32 v{XA0}, v{G_}", f"v_add_f32 v{XA0}, v{XA0}, v{XA0}", f"v_add_f32 v{XA1}, 1.0, v{XA0}",
        f"v_mul_f32 v{XA0}, v{XA0}, v{JF}", f"v_mul_f32 v{XA1}, v{XA1}, v{JF}",
        f"v_lshlrev_b32 v{Q}, 3, v{LO}", "s_mov_b32 s50, 0x4631914C", f"v_lshrrev_b32 v{Q}, v{Q}, s50",
        f"v_mov_b32 v{AV}, 0.5", f"v_cmp_gt_u32 vcc, 16, v{IDX}", f"v_cndmask_b32 v{AV}, 0, v{AV}, vcc")
    for jj2 in range(4):
        for e in range(2):
            jj = 2*jj2+e
            xa = XA1 if jj >> 2 else XA0
            a.e(f"v_bfe_u32 v{E0+e}, v{Q}, {2*(jj&3)}, 2", f"v_cvt_f32_u32 v{E0+e}, v{E0+e}",
                f"v_fmamk_f32 v{E0+e}, v{E0+e}, {f32hex(0.25)}, v{xa}", f"v_cos_f32 v{E0+e}, v{E0+e}",
                f"v_mul_f32 v{E0+e}, v{E0+e}, v{AV}")
        a.e(f"v_cvt_pk_bf16_f32 v{GA+jj2}, v{E0}, v{E1}")
    a.e(f"v_bfe_u32 v{HI}, v{N16}, 1, 2", f"v_cvt_f32_u32 v{KEY}, v{HI}", f"v_mul_f32 v{KEY}, {f32hex(1/2048)}, v{KEY}",
        f"v_and_b32 v{JF}, 1, v{G4}", f"v_cvt_f32_u32 v{JF}, v{JF}", f"v_fmamk_f32 v{JF}, v{JF}, {f32hex(1024.0)}, v{T2}",
        f"v_add_f32 v{XA1}, {f32hex(512.0)}, v{JF}", f"v_mul_f32 v{XA0}, v{JF}, v{KEY}", f"v_mul_f32 v{XA1}, v{XA1}, v{KEY}",
        f"v_lshrrev_b32 v{CS}, 1, v{G4}", f"v_lshrrev_b32 v{AV}, 3, v{N16}", f"v_cmp_eq_u32 vcc, v{CS}, v{AV}",
        f"v_mov_b32 v{AV}, {f32hex(2.0**-21)}", f"v_cndmask_b32 v{AV}, 0, v{AV}, vcc",
        f"v_and_b32 v{PO}, 1, v{N16}")
    for part, Hd in ((0, HRE), (1, HIM)):
        w0, w1 = (0x1C, 0xBC) if part == 0 else (0x61, 0x6B)
        a.e(f"v_mov_b32 v{Q}, {w0}", f"v_mov_b32 v{PAR}, {w1}", f"v_cmp_eq_u32 vcc, 1, v{PO}", f"v_cndmask_b32 v{Q}, v{Q}, v{PAR}, vcc")
        for jj2 in range(4):
            for e in range(2):
                jj = 2*jj2+e
                xa = XA1 if jj >> 2 else XA0
                a.e(f"v_bfe_u32 v{E0+e}, v{Q}, {2*(jj&3)}, 2", f"v_cvt_f32_u32 v{E0+e}, v{E0+e}",
                    f"v_fmamk_f32 v{E0+e}, v{E0+e}, {f32hex(0.25)}, v{xa}", f"v_cos_f32 v{E0+e}, v{E0+e}",
                    f"v_mul_f32 v{E0+e}, v{E0+e}, v{AV}")
            a.e(f"v_cvt_pk_bf16_f32 v{Hd+jj2}, v{E0}, v{E1}")
    a.e(f"s_branch {Ldone}")
    a.label(Lspec)
    a.e(f"v_and_b32 v{PO}, 1, v{LO}", f"v_lshrrev_b32 v{PAR}, 1, v{LO}")
    a.e(f"v_lshlrev_b32 v{JF}, 2, v{HI}", "s_mov_b32 s50, 0x3120", f"v_lshrrev_b32 v{JF}, v{JF}, s50", f"v_and_b32 v{JF}, 15, v{JF}",
        f"v_lshlrev_b32 v{JF}, 8, v{JF}", f"v_lshlrev_b32 v{T2}, 10, v{PO}",
        f"v_cmp_eq_u32 vcc, 0, v{HI}", f"v_cndmask_b32 v{JF}, v{JF}, v{T2}, vcc", f"v_mov_b32 v{T2}, 0",
        f"v_cndmask_b32 v{Q}, v{PO}, v{T2}, vcc",
        f"v_cvt_f32_u32 v{JF}, v{JF}", f"v_mul_f32 v{JF}, {f32hex(1/2048)}, v{JF}",
        f"v_cvt_f32_u32 v{Q}, v{Q}", f"v_mul_f32 v{Q}, {f32hex(0.25)}, v{Q}",
        f"v_cvt_f32_u32 v{XA0}, v{G_}", f"v_add_f32 v{XA0}, v{XA0}, v{XA0}", f"v_add_f32 v{XA1}, 1.0, v{XA0}",
        f"v_fma_f32 v{XA0}, v{XA0}, v{JF}, v{Q}", f"v_fma_f32 v{XA1}, v{XA1}, v{JF}, v{Q}",
        f"v_cos_f32 v{XA0}, v{XA0}", f"v_cos_f32 v{XA1}, v{XA1}",
        f"v_lshrrev_b32 v{KEY}, 1, v{HI}", f"v_lshl_add_u32 v{KEY}, v{KEY}, 1, v{PAR}",
        f"v_lshrrev_b32 v{T2}, 4, v{IDX}", f"v_lshl_add_u32 v{KEY}, v{T2}, 2, v{KEY}", f"v_mov_b32 v{T2}, 0")
    for jj2 in range(4):
        for e in range(2):
            jj = 2*jj2+e
            xa = XA1 if jj >> 2 else XA0
            a.e(f"v_cmp_eq_u32 vcc, {jj&3}, v{KEY}", f"v_cndmask_b32 v{E0+e}, v{T2}, v{xa}, vcc")
        a.e(f"v_cvt_pk_bf16_f32 v{GA+jj2}, v{E0}, v{E1}")
    SAF, GS = JF, PAR
    a.e(f"v_bfe_u32 v{HI}, v{N16}, 1, 2", f"v_cvt_f32_u32 v{SAF}, v{HI}", f"v_mul_f32 v{SAF}, {f32hex(1/2048)}, v{SAF}",
        f"v_and_b32 v{GS}, 1, v{G4}", f"v_and_b32 v{PO}, 1, v{N16}",
        f"v_lshrrev_b32 v{CS}, 1, v{G4}", f"v_lshrrev_b32 v{T2}, 3, v{N16}",
        f"v_cmp_eq_u32 s[44:45], v{CS}, v{T2}", f"v_cmp_eq_u32 s[46:47], v{GS}, v{PO}", "s_and_b64 s[44:45], s[44:45], s[46:47]",
        f"v_cmp_eq_u32 s[46:47], 0, v{GS}")
    for part, Hd in ((0, HRE), (1, HIM)):
        for jj in range(8):
            sl, par, pi = jj >> 2, (jj >> 1) & 1, jj & 1
            e = E0 + (jj & 1)
            if par != part:
                a.e(f"v_mov_b32 v{e}, 0")
            else:
                if sl == 0:
                    j0, q0, a0 = 1024.0*pi, 0.5*pi, 2.0**-21
                    j1, q1, a1 = 256.0, 0.75*pi, 2.0**-20
                else:
                    j0, q0, a0 = 512.0, 0.75*pi, 2.0**-20
                    j1, q1, a1 = 768.0, 0.75*pi, 2.0**-20
                def sel(dst, x0, x1):
                    a.e(f"v_mov_b32 v{dst}, {f32hex(x1)}", f"v_mov_b32 v{AV}, {f32hex(x0)}", f"v_cndmask_b32 v{dst}, v{dst}, v{AV}, s[46:47]")
                sel(XA0, j0, j1); sel(XA1, q0 + 0.5*part, q1 + 0.5*part)
                a.e(f"v_fma_f32 v{XA0}, v{XA0}, v{SAF}, v{XA1}", f"v_cos_f32 v{XA0}, v{XA0}")
                sel(XA1, a0, a1)
                a.e(f"v_mul_f32 v{XA0}, v{XA0}, v{XA1}", f"v_mov_b32 v{XA1}, 0", f"v_cndmask_b32 v{e}, v{XA1}, v{XA0}, s[44:45]")
            if jj & 1: a.e(f"v_cvt_pk_bf16_f32 v{Hd+(jj>>1)}, v{E0}, v{E1}")
    a.label(Ldone)
    a.e("s_nop 1")


BT_S0, BT_S1, BT_S2, BT_S3 = 52, 56, 60, 64
BT_SOFF = ["0", "s68", "s69", "s70", "s71", "s76", "s77", "s78"]
BT_ROW, BT_CH, BT_MASK = 48, 49, 50
def bt_setup(a):
    a.e(f"s_lshl_b32 s{BT_ROW}, s{sSUBT}, 7", "s_lshl_b32 s51, s3, 5", f"s_add_u32 s{BT_ROW}, s{BT_ROW}, s51", f"s_lshl_b32 s{BT_CH}, s{sCBKT}, 6")
    for i in range(1, 8): a.e(f"s_mov_b32 {BT_SOFF[i]}, {4096*i}")
    a.e(f"s_mov_b32 s{BT_MASK}, 0xffff0000")

def emit_B1(a, shadow=None, hook=None):
    SK, SV, SSH, SKVT = BT_S0, BT_S1, BT_S2, BT_S3
    srd(a, SK, P_K, P_K+1, 4*MB); srd(a, SV, P_V, P_V+1, 4*MB); srd(a, SSH, P_SHK, P_SHK+1, 8192); srd(a, SKVT, P_WS, P_WS+1, 4*MB, add=WS_KVT)
    bt_setup(a)
    soff = BT_SOFF; M = BT_MASK
    CG, RG, S0, CH0, VOFF, VH, VST, VSH = 2, 3, 4, 5, 6, 7, 8, 9
    a.e(f"v_and_b32 v{CG}, 15, v1", f"v_lshrrev_b32 v{RG}, 4, v1",
        f"v_lshl_add_u32 v{S0}, v{RG}, 3, s{BT_ROW}", f"v_lshl_add_u32 v{CH0}, v{CG}, 2, s{BT_CH}",
        f"v_lshlrev_b32 v{VOFF}, 11, v{S0}", f"v_lshl_add_u32 v{VOFF}, v{CH0}, 1, v{VOFF}",
        f"v_subrev_u32 v{VH}, 6144, v{VOFF}",
        f"v_lshlrev_b32 v{VST}, 12, v{CH0}", f"v_lshl_add_u32 v{VST}, v{S0}, 1, v{VST}",
        f"v_lshlrev_b32 v{VSH}, 3, v{CH0}")
    KR, VR, SHR, KF, SHF, KV, TM, PK = 16, 38, 54, 64, 108, 124, 156, 16
    a.e(f"buffer_load_dwordx4 {v(SHR,4)}, v{VSH}, s[{SSH}:{SSH+3}], 0 offen",
        f"buffer_load_dwordx4 {v(SHR+4,4)}, v{VSH}, s[{SSH}:{SSH+3}], 0 offen offset:16")
    for i in range(3):
        a.e(f"buffer_load_dwordx2 {v(KR+2*i,2)}, v{VH}, s[{SK}:{SK+3}], {soff[i>>1]} offen" + (" offset:2048" if i & 1 else "") + NT())
    for i in range(8):
        a.e(f"buffer_load_dwordx2 {v(KR+6+2*i,2)}, v{VOFF}, s[{SK}:{SK+3}], {soff[i>>1]} offen" + (" offset:2048" if i & 1 else "") + NT())
    for i in range(8):
        a.e(f"buffer_load_dwordx2 {v(VR+2*i,2)}, v{VOFF}, s[{SV}:{SV+3}], {soff[i>>1]} offen" + (" offset:2048" if i & 1 else "") + NT())
    stamp(a, 2)
    if shadow: shadow()
    a.e("s_waitcnt vmcnt(19)")
    for ch in range(4):
        for j in range(4):
            src = SHR + 2*ch + (j >> 1)
            if j & 1: a.e(f"v_and_b32 v{SHF+4*j+ch}, s{M}, v{src}")
            else:     a.e(f"v_lshlrev_b32 v{SHF+4*j+ch}, 16, v{src}")
    for i in range(11):
        a.e(f"s_waitcnt vmcnt({18-i})")
        for hf in range(2):
            a.e(f"v_lshlrev_b32 v{KF+4*i+2*hf}, 16, v{KR+2*i+hf}", f"v_and_b32 v{KF+4*i+2*hf+1}, s{M}, v{KR+2*i+hf}")
    for i in range(8):
        a.e(f"s_waitcnt vmcnt({7-i})")
        if i == 7 and hook: hook()
        for hf in range(2):
            a.e(f"v_lshlrev_b32 v{TM+2*hf}, 16, v{VR+2*i+hf}", f"v_and_b32 v{TM+2*hf+1}, s{M}, v{VR+2*i+hf}")
        for hf in range(2):
            acc = KV+4*i+2*hf
            a.e(f"v_pk_mul_f32 {v(acc,2)}, {v(KF+4*(i+3)+2*hf,2)}, {v(SHF+2*hf,2)}")
            for j in range(1, 4):
                a.e(f"v_pk_fma_f32 {v(acc,2)}, {v(KF+4*(i+3-j)+2*hf,2)}, {v(SHF+4*j+2*hf,2)}, {v(acc,2)}")
            a.e(f"v_pk_mul_f32 {v(acc,2)}, {v(acc,2)}, {v(TM+2*hf,2)}")
    stamp(a, 3)
    for ch in range(4):
        for m in range(4):
            a.e(f"v_cvt_pk_bf16_f32 v{PK+4*ch+m}, v{KV+4*(7-2*m)+ch}, v{KV+4*(6-2*m)+ch}")
        a.e(f"buffer_store_dwordx4 {v(PK+4*ch,4)}, v{VST}, s[{SKVT}:{SKVT+3}], {soff[ch]} offen sc1")
    stamp(a, 4)
    a.e(f"s_lshl_b32 s51, s{sCBKT}, 4", f"s_add_u32 s51, s51, s{sSUBT}", "s_lshl_b32 s51, s51, 6", f"s_add_u32 s51, s51, {SY_B1}")
    fin_epoch(a)
    signal(a, 51, 14)

B3_QR, B3_VQ, B3_VT, B3_VO = 192, 208, 209, 212
def emit_B3_pre(a):
    SQ, STT, SOUT = BT_S0, BT_S1, BT_S2
    srd(a, SQ, P_Q, P_Q+1, 4*MB); srd(a, STT, P_WS, P_WS+1, 4*MB, add=WS_TT); srd(a, SOUT, P_OUT, P_OUT+1, 8*MB)
    bt_setup(a)
    t = 215
    a.e(f"v_and_b32 v{t}, 15, v1", f"v_lshrrev_b32 v{t+1}, 4, v1",
        f"v_lshl_add_u32 v{t+1}, v{t+1}, 3, s{BT_ROW}", f"v_lshl_add_u32 v{t}, v{t}, 2, s{BT_CH}",
        f"v_lshlrev_b32 v{B3_VQ}, 11, v{t+1}", f"v_lshl_add_u32 v{B3_VQ}, v{t}, 1, v{B3_VQ}",
        f"v_lshlrev_b32 v{B3_VT}, 12, v{t}", f"v_lshl_add_u32 v{B3_VT}, v{t+1}, 1, v{B3_VT}",
        f"v_lshlrev_b32 v{B3_VO}, 12, v{t+1}", f"v_lshl_add_u32 v{B3_VO}, v{t}, 1, v{B3_VO}", f"v_add_u32 v{B3_VO}, 2048, v{B3_VO}")
    for i in range(8):
        a.e(f"buffer_load_dwordx2 {v(B3_QR+2*i,2)}, v{B3_VQ}, s[{SQ}:{SQ+3}], {BT_SOFF[i>>1]} offen" + (" offset:2048" if i & 1 else "") + NT())

def emit_B3(a):
    SQ, STT, SOUT = BT_S0, BT_S1, BT_S2
    soff = BT_SOFF; M = BT_MASK
    TR, TF, QF = 16, 48, 80
    a.e(f"s_lshl_b32 s51, s{sCBKT}, 10", f"s_add_u32 s51, s51, {SY_B2}",
        "v_and_b32 v12, 15, v1", "v_lshlrev_b32 v12, 6, v12", "v_add_u32 v12, s51, v12")
    a.e("s_waitcnt vmcnt(0)")
    for e in range(8):
        qf = QF + 4*e
        for hf in range(2):
            a.e(f"v_lshlrev_b32 v{qf+2*hf}, 16, v{B3_QR+2*e+hf}", f"v_and_b32 v{qf+2*hf+1}, s{M}, v{B3_QR+2*e+hf}")
    wait_flags(a, 12, 1, 13, 51)
    stamp(a, 10)
    for ch in range(4):
        a.e(f"buffer_load_dwordx4 {v(TR+4*ch,4)}, v{B3_VT}, s[{STT}:{STT+3}], {soff[ch]} offen sc1")
    for ch in range(4):
        a.e(f"s_waitcnt vmcnt({3-ch})")
        for e in range(8):
            src = TR+4*ch+(e >> 1)
            if e & 1: a.e(f"v_and_b32 v{TF+4*e+ch}, s{M}, v{src}")
            else:     a.e(f"v_lshlrev_b32 v{TF+4*e+ch}, 16, v{src}")
    for e in range(8):
        qf = QF + 4*e
        for hf in range(2):
            a.e(f"v_pk_mul_f32 {v(qf+2*hf,2)}, {v(qf+2*hf,2)}, {v(TF+4*e+2*hf,2)}")
        pk = 112+2*e
        for hf in range(2):
            a.e(f"v_cvt_pk_bf16_f32 v{pk+hf}, v{qf+2*hf}, v{qf+2*hf+1}")
        a.e(f"buffer_store_dwordx2 {v(pk,2)}, v{B3_VO}, s[{SOUT}:{SOUT+3}], {soff[e]} offen" + NTO())

def gen_A(a):
    SX, SI1, SWR, SWI, SI2, SOUT = 32, 36, 80, 84, 32, 36
    a.e(f"s_setprio {OPT['prioA']}") if OPT['prioA'] else None
    sT, sSA, sCB, sJ, sJM, sJP, sJQ, sTL = 40, 41, 42, 43, 72, 73, 74, 44
    def rows():
        srd(a, SI1, P_WS, P_WS+1, 4*MB, add=WS_I1)
        srd(a, SWR, P_WR, P_WR+1, WBYTES); srd(a, SWI, P_WI, P_WI+1, WBYTES)
        Lr = newlbl("reg")
        a.e("s_lshl_b32 s47, s3, 9", f"s_add_u32 s{sJ}, s{sT}, s47", f"s_mov_b32 s{sJP}, s{sT}", f"s_sub_u32 s{sJQ}, 512, s{sT}",
            f"s_cmp_lg_u32 s{sT}, 0", f"s_cbranch_scc1 {Lr}",
            f"s_mov_b32 s{sJQ}, 256", "s_lshl_b32 s47, s3, 2", "s_lshr_b32 s46, 0x3120, s47", "s_and_b32 s46, s46, 15", f"s_lshl_b32 s{sJ}, s46, 8")
        a.label(Lr)
        a.e(f"s_sub_u32 s{sJM}, 2048, s{sJ}", f"s_and_b32 s{sJM}, s{sJM}, 2047",
            f"s_mul_i32 s{sJ}, s{sJ}, 1026", f"s_mul_i32 s{sJM}, s{sJM}, 1026")
        a.e(f"s_or_b32 s75, s{sT}, s3")
    def wstage():
        a.e("v_lshlrev_b32 v15, 4, v1", "s_lshl_b32 s46, s3, 12", f"s_add_u32 s46, s46, {LW}")
        w_dma(a, SWR, SWI, sJ, sJM, 46, 15)
        pf_loads(a, SWR, SWI, sJ, sJM, PF, 244)
        Ln = newlbl("now2")
        a.e("s_cmp_lg_u32 s75, 0", f"s_cbranch_scc1 {Ln}")
        a.e(f"s_mov_b32 s47, {1024*1026}", f"s_mov_b32 s46, {LW2}")
        w_dma(a, SWR, SWI, 47, 47, 46, 15)
        pf_loads(a, SWR, SWI, 47, 47, PF2, 244)
        a.label(Ln)
    a.e(f"s_mov_b32 s{sT}, s{sCU}")
    stamp(a, 0, True); stamp(a, 1)
    Lp1 = newlbl("nop1")
    a.e(f"s_cmp_eq_u32 s{sACT}, 0", f"s_cbranch_scc1 {Lp1}_in")
    srd(a, SX, P_X, P_X+1, 4*MB)
    a.e(f"s_lshr_b32 s48, s{sT}, 4", f"s_and_b32 s49, s{sT}, 7",
        f"s_lshr_b32 s{sSA}, s48, 2", "s_bfe_u32 s50, s48, 0x10001", "s_lshl_b32 s50, s50, 3", "s_add_u32 s50, s50, s49",
        "s_lshl_b32 s50, s50, 1", "s_and_b32 s51, s48, 1", f"s_add_u32 s{sCB}, s50, s51",
        "s_lshl_b32 s48, s48, 3", f"s_add_u32 s{sTL}, s48, s49")
    fft512_addr(a, sSA, sCB)
    fft512_loads(a, SX, NT())
    stamp(a, 12)
    rows()
    fft512_addr2(a, sSA, sCB, 2048, 8192)
    fft512_consts(a)
    fft512_compute(a, SI1, False, 0, "sc1", 2, hook=wstage)
    stamp(a, 4)
    a.e(f"s_lshl_b32 s48, s{sTL}, 6", f"s_add_u32 s48, s48, {SY_A1}")
    fin_epoch(a)
    signal(a, 48, F_TMP)
    a.e(f"s_branch {Lp1}")
    a.label(f"{Lp1}_in")
    stamp(a, 12)
    emit_B1(a, shadow=rows, hook=wstage)
    a.label(Lp1)
    stamp(a, 5)
    srd(a, SI2, P_WS, P_WS+1, 4*MB, add=WS_I2)
    a2_consts(a, sT)
    a.e(f"v_lshl_add_u32 v{TMP}, v{G_}, 7, v{IDX}",
        "s_lshl_b32 s48, s3, 12", f"s_add_u32 s48, s48, {LW}",
        f"v_lshl_add_u32 v{VW}, v{TMP}, 1, s48",
        f"v_sub_u32 v{TMP+1}, {1023-32*27}, v{TMP}", f"s_add_u32 s49, s48, 2048", f"v_lshl_add_u32 v{VW+1}, v{TMP+1}, 1, s49")
    a.e(f"v_lshlrev_b32 v{VG}, 12, v{G_}", f"v_lshl_add_u32 v{VG}, v{IDX}, 2, v{VG}",
        "s_lshl_b32 s49, s3, 9",
        f"s_lshl_b32 s52, s{sJP}, 13", "s_add_u32 s52, s52, s49",
        f"s_lshl_b32 s53, s{sJQ}, 13", "s_add_u32 s53, s53, s49")
    a.e(f"v_lshlrev_b32 v{VGW}, 12, v{G_}", f"v_lshl_add_u32 v{VGW}, v{IDX}, 3, v{VGW}", "s_lshl_b32 s50, s3, 10", f"v_add_u32 v{VGW}, s50, v{VGW}",
        f"v_lshlrev_b32 v{VRR}, 9, v{G_}", f"v_lshl_add_u32 v{VRR}, v{IDX}, 2, v{VRR}", "s_lshl_b32 s51, s3, 12", f"v_add_u32 v{VRR}, s51, v{VRR}")
    for t in range(1, 4): a.e(f"v_add_u32 v{VRR+t}, {1024*t}, v{VRR}")
    a.e(f"v_lshrrev_b32 v{TMP}, 4, v1", f"v_and_b32 v{TMP+1}, 1, v{TMP}", f"v_lshlrev_b32 v{VHR}, 13, v{TMP+1}",
        f"v_lshrrev_b32 v{TMP+1}, 1, v{TMP}", f"v_lshl_add_u32 v{VHR}, v{TMP+1}, 7, v{VHR}",
        f"v_and_b32 v{TMP+1}, 15, v1", f"v_lshl_add_u32 v{VHR}, v{TMP+1}, 3, v{VHR}", f"v_add_u32 v{VHR}, s50, v{VHR}")
    a.e(f"v_and_b32 v{TMP+2}, 1, v{TMP+1}", f"v_mov_b32 v{TMP+3}, s52", f"v_mov_b32 v{TMP+4}, s53",
        f"v_cmp_eq_u32 vcc, 1, v{TMP+2}", f"v_cndmask_b32 v{VST}, v{TMP+3}, v{TMP+4}, vcc",
        f"v_bfe_u32 v{TMP+2}, v{TMP+1}, 1, 2", f"v_lshl_add_u32 v{VST}, v{TMP+2}, 11, v{VST}",
        f"v_lshrrev_b32 v{TMP+2}, 3, v{TMP+1}", f"v_lshl_add_u32 v{VST}, v{TMP+2}, 6, v{VST}",
        f"v_lshl_add_u32 v{VST}, v{TMP}, 4, v{VST}")
    a.e(f"v_lshlrev_b32 v{TMP}, 6, v1", f"v_add_u32 v{TMP}, {SY_A1}, v{TMP}")
    stamp(a, 6)
    wait_flags(a, TMP, 2, TMP+1, 48)
    stamp(a, 7)
    for u in range(4):
        for sl in range(2):
            for pq in range(2):
                a.e(f"buffer_load_dword v{GB+4*u+2*sl+pq}, v{VG}, s[{SI1}:{SI1+3}], s{52+pq} offen offset:{2048*sl+128*u} sc1")
    for rnd in range(2):
        a.e(f"s_waitcnt vmcnt({8-8*rnd})")
        for uu in range(2):
            u = 2*rnd+uu
            a.e(f"v_mfma_f32_32x32x16_bf16 {v(ARE if uu == 0 else AIM,16)}, {v(GA,4)}, {v(GB+4*u,4)}, 0")
        for uu in range(2):
            u = 2*rnd+uu
            D = ARE if uu == 0 else AIM
            t = TMP+4*uu
            for h in range(2):
                a.e(f"v_cvt_pk_bf16_f32 v{t}, v{D+4*h}, v{D+4*h+1}", f"v_cvt_pk_bf16_f32 v{t+1}, v{D+4*h+2}, v{D+4*h+3}",
                    f"ds_write_b64 v{VGW}, {v(t,2)} offset:{256*u+8192*h}")
                t += 2
    a.e("s_waitcnt lgkmcnt(0)", "s_barrier")
    stamp(a, 8)
    for t in range(4):
        a.e(f"ds_read2_b32 {v(DF+4*t,2)}, v{VRR+t} offset0:0 offset1:32", f"ds_read2_b32 {v(DF+4*t+2,2)}, v{VRR+t} offset0:64 offset1:96")
    a.e("s_waitcnt lgkmcnt(0)")
    w_lds_reads(a, VW, VW+1, WR, WI)
    fft1024(a)
    a.e("s_waitcnt lgkmcnt(0)")
    fix_w(a, WR, WI, PF)
    Lsp, Linv = newlbl("special"), newlbl("inv")
    a.e("s_cmp_eq_u32 s75, 0", f"s_cbranch_scc1 {Lsp}")
    for p in range(8):
        xr, xi, wr, wi = ARE+2*p, AIM+2*p, WR+2*p, WI+2*p
        t0 = TMP+4*(p & 1); t1 = t0+2
        n0 = " neg_lo:[1,0,0] neg_hi:[1,0,0]" if p < 4 else ""
        n1 = "" if p < 4 else " neg_lo:[1,0,0] neg_hi:[1,0,0]"
        a.e(f"v_pk_mul_f32 {v(t0,2)}, {v(xr,2)}, {v(wr,2)}", f"v_pk_mul_f32 {v(t1,2)}, {v(xi,2)}, {v(wr,2)}",
            f"v_pk_fma_f32 {v(t0,2)}, {v(xi,2)}, {v(wi,2)}, {v(t0,2)}{n0}",
            f"v_pk_fma_f32 {v(t1,2)}, {v(xr,2)}, {v(wi,2)}, {v(t1,2)}{n1}")
        for e in range(2):
            a.e(f"v_cvt_pk_bf16_f32 v{DF+2*p+e}, v{t0+e}, -v{t1+e}")
    a.label(Linv)
    a.e("s_nop 1")
    fft1024(a)
    for r in range(16):
        t = TMP + (r & 7)
        a.e(f"v_cvt_pk_bf16_f32 v{t}, v{ARE+r}, v{AIM+r}", f"ds_write_b32 v{VRR}, v{t} offset:{128*eidx(r)}")
    a.e("s_waitcnt lgkmcnt(0)", "s_barrier")
    stamp(a, 9)
    for u in range(4):
        for sl in range(2):
            a.e(f"ds_read_b64 {v(GB+4*u+2*sl,2)}, v{VHR} offset:{4096*sl+256*u}")
    a.e("s_lshl_b32 s49, s3, 9")
    for u in range(4):
        a.e(f"s_waitcnt lgkmcnt({6-2*u})")
        a.e(f"v_mfma_f32_16x16x32_bf16 {v(ARE+4*u,4)}, {v(GB+4*u,4)}, {v(HRE,4)}, 0",
            f"v_mfma_f32_16x16x32_bf16 {v(AIM+4*u,4)}, {v(GB+4*u,4)}, {v(HIM,4)}, 0")
    for u in range(4):
        for r in range(4):
            a.e(f"v_cvt_pk_bf16_f32 v{DF+4*u+r}, v{ARE+4*u+r}, v{AIM+4*u+r}")
        a.e(f"buffer_store_dwordx4 {v(DF+4*u,4)}, v{VST}, s[{SI2}:{SI2+3}], 0 offen offset:{128*u} sc1")
    a.e(f"s_lshl_b32 s48, s{sT}, 6", f"s_add_u32 s48, s48, {SY_A2}")
    signal(a, 48, TMP)
    stamp(a, 10)
    Lb3 = newlbl("b3")
    a.e(f"s_cmp_eq_u32 s{sACT}, 0", f"s_cbranch_scc1 {Lb3}")
    srd(a, SOUT, P_OUT, P_OUT+1, 8*MB)
    fft512_addr(a, sSA, sCB)
    fft512_addr2(a, sSA, sCB, 4096, 16384)
    fft512_consts(a)
    a.e(f"v_lshlrev_b32 v{F_TMP}, 6, v1", f"v_add_u32 v{F_TMP}, {SY_A2}, v{F_TMP}")
    wait_flags(a, F_TMP, 4, F_TMP+1, 48)
    stamp(a, 11)
    fft512_loads(a, SI2, "sc1")
    save = gen.PROF; gen.PROF = False
    fft512_compute(a, SOUT, True, 0, NTO(), 0)
    gen.PROF = save
    a.e("s_cmp_lg_u32 s75, 0", "s_cbranch_scc1 L_fin")
    a.e(f"v_lshlrev_b32 v2, 6, v1", f"v_add_u32 v2, {SY_B2}, v2")
    wait_flags(a, 2, 4, 4, 48, solo=True)
    a.e(f"s_mov_b32 s48, {SY_E}")
    bump(a, 48, 2)
    a.e("s_branch L_fin")
    a.label(Lb3)
    emit_B3_pre(a)
    emit_B3(a)
    a.e("s_branch L_fin")
    a.label(Lsp)
    a.e(f"v_lshl_add_u32 v{TMP}, v{G_}, 7, v{IDX}", f"v_sub_u32 v{TMP+1}, {1023-32*27}, v{TMP}",
        f"s_mov_b32 s48, {LW2}", f"v_lshl_add_u32 v{TMP+2}, v{TMP}, 1, s48", f"s_mov_b32 s49, {LW2+2048}", f"v_lshl_add_u32 v{TMP+3}, v{TMP+1}, 1, s49")
    w_lds_reads(a, TMP+2, TMP+3, W2R, W2I)
    a.e("s_waitcnt lgkmcnt(0)")
    fix_w(a, W2R, W2I, PF2)
    VS = SP; K0 = SP+1
    a.e(f"v_lshlrev_b32 v{VS}, 9, v{G_}", f"v_lshl_add_u32 v{VS}, v{IDX}, 2, v{VS}")
    for r in range(16):
        a.e(f"ds_write_b32 v{VS}, v{ARE+r} offset:{LSC+128*eidx(r)}", f"ds_write_b32 v{VS}, v{AIM+r} offset:{LSC+4096+128*eidx(r)}")
    a.e(f"v_lshl_add_u32 v{K0}, v{G_}, 7, v{IDX}", f"v_sub_u32 v{K0}, 1024, v{K0}", "s_waitcnt lgkmcnt(0)")
    for r in range(16):
        ad, rr, ri, ur, ui, vr, vi, o0, o1 = [SP+2+i for i in range(9)]
        a.e(f"v_subrev_u32 v{ad}, {32*eidx(r)}, v{K0}", f"v_and_b32 v{ad}, 1023, v{ad}", f"v_lshlrev_b32 v{ad}, 2, v{ad}",
            f"ds_read_b32 v{rr}, v{ad} offset:{LSC}", f"ds_read_b32 v{ri}, v{ad} offset:{LSC+4096}", "s_waitcnt lgkmcnt(0)")
        pr, pi_ = ARE+r, AIM+r
        a.e(f"v_add_f32 v{ur}, v{pr}, v{rr}", f"v_sub_f32 v{ui}, v{pi_}, v{ri}",
            f"v_sub_f32 v{vr}, v{pr}, v{rr}", f"v_add_f32 v{vi}, v{pi_}, v{ri}")
        sg = "-" if r < 8 else ""; ns = "" if r < 8 else "-"
        ar, ai, br, bi = WR+r, WI+r, W2R+r, W2I+r
        a.e(f"v_mul_f32 v{o0}, v{ur}, v{ar}", f"v_fma_f32 v{o0}, {sg}v{ui}, v{ai}, v{o0}",
            f"v_fma_f32 v{o0}, v{vr}, v{br}, v{o0}", f"v_fma_f32 v{o0}, {sg}v{vi}, v{bi}, v{o0}",
            f"v_mul_f32 v{o1}, v{ui}, v{ar}", f"v_fma_f32 v{o1}, {ns}v{ur}, v{ai}, v{o1}",
            f"v_fma_f32 v{o1}, v{vi}, v{br}, v{o1}", f"v_fma_f32 v{o1}, {ns}v{vr}, v{bi}, v{o1}",
            f"v_mul_f32 v{o0}, 0.5, v{o0}", f"v_mul_f32 v{o1}, 0.5, v{o1}",
            f"v_cvt_pk_bf16_f32 v{DF+r}, v{o0}, -v{o1}")
    a.e(f"s_branch {Linv}")

def h_dma(a, SH, sLB, sD4K):
    a.e("v_lshlrev_b32 v217, 4, v1")
    a.e(f"s_add_u32 s74, s{sLB}, 32", "s_mov_b32 m0, s74")
    for ch in range(4): a.e(f"buffer_load_dwordx4 v217, s[{SH}:{SH+3}], s{sD4K} offen offset:{1024*ch} lds" + NT())
    a.e(f"s_add_u32 s74, s{sLB}, 4192", f"s_add_u32 s75, s{sD4K}, 2", "s_mov_b32 m0, s74")
    for ch in range(4): a.e(f"buffer_load_dwordx4 v217, s[{SH}:{SH+3}], s75 offen offset:{1024*ch} lds" + NT())
    a.e("v_mov_b32 v215, 0x7ffffff0", f"v_mov_b32 v216, s{sD4K}", "v_cmp_eq_u32 vcc, 15, v1", "v_cndmask_b32 v215, v215, v216, vcc",
        f"buffer_load_short_d16_hi v210, v215, s[{SH}:{SH+3}], 0 offen")

def gen_B(a):
    SH, STT, SKVT = 80, 84, 32
    a.e(f"s_setprio {OPT['prioB']}") if OPT['prioB'] else None
    srd(a, SH, P_SSMK, P_SSMK+1, 4*MB); srd(a, STT, P_WS, P_WS+1, 4*MB, add=WS_TT); srd(a, SKVT, P_WS, P_WS+1, 4*MB, add=WS_KVT)
    sCBK, sSUB, sD, sD4K, sLB, sDV, sF1, sF2, sMASK = 40, 41, 42, 43, 44, 45, 46, 47, 72
    a.e(f"s_and_b32 s{sCBK}, s2, 7", f"s_lshl_b32 s{sCBK}, s{sCBK}, 1", "s_bfe_u32 s73, s2, 0x10003", f"s_add_u32 s{sCBK}, s{sCBK}, s73",
        f"s_lshr_b32 s{sSUB}, s2, 4",
        f"s_lshl_b32 s{sD}, s{sCBK}, 4", f"s_add_u32 s{sD}, s{sD}, s{sSUB}", f"s_lshl_b32 s{sD}, s{sD}, 2", f"s_add_u32 s{sD}, s{sD}, s3",
        f"s_lshl_b32 s{sD4K}, s{sD}, 12", f"s_mul_i32 s{sLB}, s3, {LB_STRIDE}", f"s_mov_b32 s{sMASK}, 0xffff0000")
    a.e(f"s_lshl_b32 s73, s{sCBK}, 10", f"s_add_u32 s{sF1}, s73, {SY_B1}", f"s_lshl_b32 s74, s{sSUB}, 6", "s_add_u32 s73, s73, s74", f"s_add_u32 s{sF2}, s73, {SY_B2}")
    a.e(f"s_and_b32 s73, s{sD}, 0xfffffffe", "s_lshl_b32 s73, s73, 1", f"s_load_dword s{sDV}, s[{P_SSMD}:{P_SSMD+1}], s73")
    stamp(a, 0, True); stamp(a, 1)
    Lidle, Lsetup = newlbl("bidle"), newlbl("bsetup")
    a.e(f"s_cmp_lg_u32 s{sACT}, 0", f"s_cbranch_scc1 {Lidle}")
    emit_B1(a)
    h_dma(a, SH, sLB, sD4K)
    a.e(f"s_branch {Lsetup}")
    a.label(Lidle)
    fin_epoch(a)
    a.e("v_and_b32 v12, 15, v1", "v_lshlrev_b32 v12, 6, v12", f"v_add_u32 v12, s{sF1}, v12",
        f"buffer_load_dword v13, v12, s[{S_SYN}:{S_SYN+3}], 0 offen sc1", "s_waitcnt vmcnt(0)")
    h_dma(a, SH, sLB, sD4K)
    a.label(Lsetup)
    stamp(a, 12)
    LN16, B_, G4, VA, VB, VE, VS2, T = 2, 3, 4, 5, 9, 10, 11, 12
    a.e(f"v_lshlrev_b32 v{T}, 2, v1",
        f"v_add_u32 v{T+1}, {4160-32}, v{T}", "v_cmp_le_u32 vcc, 8, v1", f"v_cndmask_b32 v{T+3}, v{T}, v{T+1}, vcc",
        f"v_add_u32 v{T+1}, 8288, v{T}", "v_cmp_le_u32 vcc, 16, v1", f"v_cndmask_b32 v{T+3}, v{T+3}, v{T+1}, vcc",
        f"v_add_u32 v211, s{sLB}, v{T+3}")
    a.e(f"v_lshlrev_b32 v{T}, 3, v1", f"v_add_u32 v{T}, s{sLB}, v{T}", "v_mov_b32 v16, 0", "v_mov_b32 v17, 0", f"ds_write_b64 v{T}, v[16:17] offset:8288")
    a.e(f"v_and_b32 v{B_}, 15, v1", f"v_lshrrev_b32 v{G4}, 4, v1")
    a.e(f"v_and_b32 v{VA}, 1, v{B_}", f"v_xor_b32 v{VA}, 1, v{VA}", f"v_mul_u32_u24 v{VA}, 4160, v{VA}",
        f"v_add_u32 v{VA+1}, 1, v{B_}", f"v_lshrrev_b32 v{VA+1}, 1, v{VA+1}", f"v_lshl_add_u32 v{VA}, v{VA+1}, 2, v{VA}",
        f"v_lshlrev_b32 v{VA+1}, 4, v{G4}", f"v_sub_u32 v{VA}, v{VA}, v{VA+1}",
        f"s_add_u32 s73, s{sLB}, 16", f"v_add_u32 v{VA}, s73, v{VA}")
    for pp in range(1, 4): a.e(f"v_add_u32 v{VA+pp}, {1024*pp}, v{VA}")
    a.e(f"v_lshlrev_b32 v{VB}, 5, v{B_}", f"v_lshl_add_u32 v{VB}, v{G4}, 4, v{VB}",
        f"s_add_u32 s73, s{sLB}, {8800-480}", f"v_add_u32 v{VB}, s73, v{VB}")
    a.e(f"v_lshrrev_b32 v18, 1, v{G4}", f"v_lshlrev_b32 v19, 4, v18", f"v_lshl_add_u32 v19, v{B_}, 5, v19",
        f"v_and_b32 v18, 1, v{G4}", "v_xor_b32 v18, 1, v18", f"v_lshl_add_u32 v19, v18, 3, v19",
        f"s_add_u32 s73, s{sLB}, 8800", f"v_add_u32 v214, s73, v19")
    a.e(f"v_and_b32 v18, 1, v{G4}", f"v_lshlrev_b32 v{VS2}, 9, v18", f"v_lshl_add_u32 v{VS2}, v{B_}, 5, v{VS2}",
        f"v_lshrrev_b32 v18, 1, v{G4}", f"v_lshl_add_u32 v{VS2}, v18, 4, v{VS2}", f"v_add_u32 v{VS2}, s{sD4K}, v{VS2}")
    a.e(f"v_lshlrev_b32 v{LN16}, 4, v1", f"s_add_u32 s73, s{sLB}, 8800", f"v_add_u32 v19, s73, v{LN16}")
    a.e("s_waitcnt lgkmcnt(0)",
        f"s_and_b32 s73, s{sD}, 1", f"s_lshl_b32 s74, s{sDV}, 16", f"s_and_b32 s75, s{sDV}, 0xffff0000",
        "s_cmp_eq_u32 s73, 1", f"s_cselect_b32 s{sDV}, s75, s74")
    a.e(f"v_and_b32 v{T}, 15, v1", f"v_lshlrev_b32 v{T}, 6, v{T}", f"v_add_u32 v{T}, s{sF1}, v{T}")
    stamp(a, 5)
    wait_flags(a, T, 1, T+1, 73)
    stamp(a, 6)
    VE = 214
    ACC = 20
    SETS = [(52, 84), (116, 148)]
    U = SETS[1][1]
    for ch in range(4):
        a.e(f"buffer_load_dwordx4 {v(U+4*ch,4)}, v{LN16}, s[{SKVT}:{SKVT+3}], s{sD4K} offen offset:{1024*ch} sc1")
    def reads(rho, st):
        A, B = SETS[st]
        out = []
        for p in range(8):
            o = 8*rho + 128*(p & 1)
            out.append(f"ds_read2_b32 {v(A+4*p,2)}, v{VA+(p>>1)} offset0:{o} offset1:{o+1}")
            out.append(f"ds_read2_b32 {v(A+4*p+2,2)}, v{VA+(p>>1)} offset0:{o+2} offset1:{o+3}")
        outb = [f"ds_read_b128 {v(B+4*q,4)}, v{VB} offset:{512*q+32*(15-rho)}" for q in range(8)]
        return out, outb
    rhos = list(range(1, 16, 2))
    ra, rb = reads(rhos[0], 0)
    a.e("s_waitcnt vmcnt(4)", "ds_write_b32 v211, v210")
    a.e("s_waitcnt lgkmcnt(0)")
    for r in ra: a.e(r)
    for ch in range(4):
        a.e(f"s_waitcnt vmcnt({3-ch})", f"ds_write_b128 v19, {v(U+4*ch,4)} offset:{1024*ch}")
    a.e("s_waitcnt lgkmcnt(0)")
    for r in rb: a.e(r)
    Lnq = newlbl("noq")
    a.e(f"s_cmp_lg_u32 s{sACT}, 0", f"s_cbranch_scc1 {Lnq}")
    emit_B3_pre(a)
    a.label(Lnq)
    stamp(a, 7)
    for ci, rho in enumerate(rhos):
        st = ci & 1
        A, B = SETS[st]
        if ci+1 < len(rhos):
            ra, rb = reads(rhos[ci+1], st ^ 1); nxt = ra[0:2] + rb + ra[2:]
        else:
            nxt = [f"ds_read_b64 {v(SETS[st^1][0]+2*j,2)}, v{VE} offset:{512*j}" for j in range(8)]
        a.e("s_waitcnt lgkmcnt(0)")
        n = 0
        for p in range(8):
            for q in range(8-p):
                j = p+q
                c = "0" if (ci == 0 and p == 0) else v(ACC+4*j, 4)
                a.e(f"v_mfma_f32_16x16x32_bf16 {v(ACC+4*j,4)}, {v(A+4*p,4)}, {v(B+4*q,4)}, {c}")
                if n < len(nxt): a.e(nxt[n])
                n += 1
    KVR = SETS[0][0]; TMv = 116
    a.e("s_waitcnt lgkmcnt(0)")
    stamp(a, 8)
    for jp in range(4):
        base = TMv + 16*(jp & 1)
        for hh in range(2):
            j = 2*jp+hh
            w0, w1 = KVR+2*j, KVR+2*j+1
            t = base+4
            a.e(f"v_and_b32 v{t}, s{sMASK}, v{w1}", f"v_lshlrev_b32 v{t+1}, 16, v{w1}",
                f"v_and_b32 v{t+2}, s{sMASK}, v{w0}", f"v_lshlrev_b32 v{t+3}, 16, v{w0}")
            for r in range(4):
                a.e(f"v_fma_f32 v{t+r}, v{t+r}, s{sDV}, v{ACC+4*j+r}")
            a.e(f"v_cvt_pk_bf16_f32 v{base+2*hh}, v{t}, v{t+1}", f"v_cvt_pk_bf16_f32 v{base+2*hh+1}, v{t+2}, v{t+3}")
        a.e(f"v_permlane16_swap_b32 v{base}, v{base+2}", f"v_permlane16_swap_b32 v{base+1}, v{base+3}")
        a.e(f"buffer_store_dwordx4 {v(base,4)}, v{VS2}, s[{STT}:{STT+3}], 0 offen offset:{1024*jp} sc1")
    signal(a, sF2, 12)
    stamp(a, 9)
    a.e(f"s_cmp_lg_u32 s{sACT}, 0", "s_cbranch_scc1 L_fin")
    emit_B3(a)
    a.e("s_branch L_fin")

def gen_kernel():
    a = Asm(); a.name = "p"
    a.e("s_cmp_ge_u32 s2, 512", "s_cbranch_scc1 L_exit")
    if gen.PROF: a.e("s_memrealtime s[98:99]", "s_waitcnt lgkmcnt(0)", "v_writelane_b32 v247, s98, 13")
    a.e(f"s_load_dwordx16 s[4:19], s[0:1], 0", f"s_load_dwordx8 s[20:27], s[0:1], 64")
    a.e("v_lshrrev_b32 v1, 6, v0", "v_readfirstlane_b32 s3, v1", "v_and_b32 v1, 63, v0", "s_waitcnt lgkmcnt(0)")
    srd(a, S_SYN, P_WS, P_WS+1, 1*MB, add=WS_SYNC)
    a.e(f"s_mov_b32 s48, {WS_SYNC+SY_E}", f"s_load_dword s{S_TGT}, s[{P_WS}:{P_WS+1}], s48")
    a.e("s_mov_b32 s98, 4096", "s_mov_b32 s99, 8192", "s_mov_b32 s100, 12288")
    a.e(f"s_and_b32 s{sCU}, s2, 255", f"s_bitcmp0_b32 s2, 3", f"s_cselect_b32 s{sACT}, 1, 0",
        f"s_lshr_b32 s48, s{sCU}, 4", "s_lshl_b32 s48, s48, 3", f"s_and_b32 s49, s{sCU}, 7", "s_add_u32 s48, s48, s49",
        f"s_and_b32 s{sCBKT}, s48, 15", "s_lshr_b32 s48, s48, 4", "s_lshl_b32 s48, s48, 1", "s_lshr_b32 s49, s2, 8", f"s_add_u32 s{sSUBT}, s48, s49")
    a.e("s_cmp_ge_u32 s2, 256", "s_cbranch_scc1 L_A")
    gen_B(a)
    a.label("L_A")
    gen_A(a)
    a.label("L_fin")
    if gen.PROF:
        a.e("s_waitcnt vmcnt(0)")
        stamp(a, 14); stamp(a, 15, True)
        prof_dump(a)
    a.label("L_exit")
    a.e("s_endpgm")
    return a

def prof_dump(a):
    if OPT.get("dbgwg", -1) >= 0:
        L = newlbl("nodbg")
        a.e(f"s_cmp_lg_u32 s2, {OPT['dbgwg']}", f"s_cbranch_scc1 {L}", "s_cmp_lg_u32 s3, 0", f"s_cbranch_scc1 {L}")
        a.e("v_readlane_b32 s36, v247, 1", "v_readlane_b32 s37, v247, 13", "v_mov_b32 v250, s36", "v_mov_b32 v251, s37",
            "v_cmp_eq_u32 vcc, 0, v1", "v_cndmask_b32 v250, v250, v251, vcc", "v_cmp_eq_u32 vcc, 13, v1", "v_cndmask_b32 v250, v250, v251, vcc",
            "v_cmp_eq_u32 vcc, 15, v1", "v_cndmask_b32 v250, v250, v251, vcc", "v_sub_u32 v250, v247, v250",
            f"s_mov_b32 s32, s{P_DBG}", f"s_mov_b32 s33, s{P_DBG+1}", "s_mov_b32 s34, 256", "s_mov_b32 s35, 0x00020000",
            "v_lshlrev_b32 v251, 2, v1", "s_mov_b64 exec, 0xffff", "buffer_store_dword v250, v251, s[32:35], 0 offen", "s_waitcnt vmcnt(0)", "s_mov_b64 exec, -1")
        a.label(L)
        return

    a.e(f"s_add_u32 s32, s{P_WS}, {gen.WS_PROF}", f"s_addc_u32 s33, s{P_WS+1}, 0", f"s_mov_b32 s34, {MB}", "s_mov_b32 s35, 0x00020000")
    a.e("s_lshl_b32 s36, s2, 2", "s_add_u32 s36, s36, s3", "s_lshl_b32 s36, s36, 6",
        "v_lshlrev_b32 v250, 2, v1", "v_add_u32 v250, s36, v250", "s_mov_b64 exec, 0xffff",
        "buffer_store_dword v247, v250, s[32:35], 0 offen")
    if OPT.get("fine"):
        a.e("v_add_u32 v250, 0x40000, v250", "buffer_store_dword v246, v250, s[32:35], 0 offen")
    a.e("s_waitcnt vmcnt(0)")
PROFREGS = []

def build(path):
    a = gen_kernel()
    name = "concat_heads__spectral_gfnet__ssm_conv_h3__prompt_kernel"
    s = open("concat_heads__spectral_gfnet__ssm_conv_h3__prompt.s.ref").read().split("; Override")[0]
    s += f"; @launch grid=(512,1,1) block=(256,1,1) lds={LDS_BYTES}\n"
    s += '.amdgcn_target "amdgcn-amd-amdhsa--gfx950"\n' + gen.header(name) + a.text() + gen.descriptor(name, 256, 102)
    s = s.replace(" lds nt", " nt lds")
    open(path, "w").write(s)
    return s

if __name__ == "__main__":
    out = sys.argv[1] if len(sys.argv) > 1 else "pers.s"
    gen.PROF = "prof" in sys.argv[2:]
    for x in sys.argv[2:]:
        if "=" in x:
            k, val = x.split("="); OPT[k] = int(val)
    if OPT["wsend"]:
        base = OPT["wsend"]*MB
        WS_I1, WS_KVT, WS_I2, WS_TT, WS_SYNC = base, base+4*MB, base+8*MB, base+12*MB, base+20*MB
    s = build(out)
    print(out, len(s))
```

```python
import sys
from asmgen import *
import gen
from gen import srd, MB, WS_I1, WS_KVT, WS_I2, WS_TT, KA

def fstamp(a, i):
    if not (gen.PROF and OPT.get("fine")): return
    a.e('s_memtime s[96:97]', 's_waitcnt lgkmcnt(0)', f'v_writelane_b32 v246, s96, {i}')
def stamp(a, i, real=False):
    if not gen.PROF: return
    a.e('s_memrealtime s[96:97]' if real else 's_memtime s[96:97]', 's_waitcnt lgkmcnt(0)', f'v_writelane_b32 v247, s96, {i}')

WBYTES = 2048*513*2
LB_STRIDE = 12896
LDS_BYTES = 53248
SPIN_LIMIT = 400000
OPT = dict(prioA=0, prioB=0, sleep=0, nt=1, wsend=0, ntout=0, ntw=1)
def NT(): return ' nt' if OPT['nt'] else ''
def NTO(): return {0: '', 1: ' nt', 2: ' sc1', 3: ' sc1 nt'}[OPT['ntout']]

P_X, P_WR, P_WI, P_Q, P_K, P_V, P_SHK, P_SSMK, P_SSMD, P_OUT, P_DBG, P_WS = 4, 6, 8, 10, 12, 14, 16, 18, 20, 22, 24, 26
S_DBG = 28
def eidx(r): return (r & 3) + 8*(r >> 2)

_lbl = [0]
def newlbl(p):
    _lbl[0] += 1
    return f"L_{p}_{_lbl[0]}"

WS_SYNC = 20*MB
S_SYN = 28
S_TGT = 101
SY_E, SY_A1, SY_A2, SY_B1, SY_B2 = 0, 4096, 4096+16384, 4096+32768, 4096+49152
sACT, sCBKT, sSUBT, sCU = 88, 89, 90, 91
def signal(a, s_off, vt, nafter=0):
    L = newlbl("sig")
    a.e(f"s_waitcnt vmcnt({nafter})", "s_barrier", "s_cmp_lg_u32 s3, 0", f"s_cbranch_scc1 {L}",
        f"v_mov_b32 v{vt}, s{s_off}", f"v_mov_b32 v{vt+1}, s{S_TGT}", "s_mov_b64 exec, 1",
        f"buffer_store_dword v{vt+1}, v{vt}, s[{S_SYN}:{S_SYN+3}], 0 offen sc1", "s_mov_b64 exec, -1")
    a.label(L)

def wait_flags(a, vaddr, nload, vt, s_cnt, pre_barrier=None, solo=False):
    L = newlbl("poll"); Ls = newlbl("pdone")
    if not solo: a.e("s_cmp_lg_u32 s3, 0", f"s_cbranch_scc1 {Ls}")
    a.e(f"s_mov_b32 s{s_cnt}, 0")
    a.label(L)
    offs = ["0", "s98", "s99", "s100"]
    for i in range(nload):
        a.e(f"buffer_load_dword v{vt+i}, v{vaddr}, s[{S_SYN}:{S_SYN+3}], {offs[i]} offen sc1")
    a.e(f"s_add_u32 s{s_cnt}, s{s_cnt}, 1", "s_waitcnt vmcnt(0)")
    for i in range(nload):
        a.e(f"v_xor_b32 v{vt+i}, s{S_TGT}, v{vt+i}")
    for i in range(1, nload):
        a.e(f"v_or_b32 v{vt}, v{vt}, v{vt+i}")
    a.e(f"v_cmp_ne_u32 vcc, 0, v{vt}", f"s_cbranch_vccz {Ls}")
    if OPT["sleep"]: a.e(f"s_sleep {OPT['sleep']}")
    a.e(f"s_cmp_lt_u32 s{s_cnt}, {SPIN_LIMIT}", f"s_cbranch_scc1 {L}")
    a.label(Ls)
    if pre_barrier: a.e(pre_barrier)
    if not solo: a.e("s_barrier")

def fin_epoch(a):
    a.e("s_waitcnt lgkmcnt(0)", f"s_add_u32 s{S_TGT}, s{S_TGT}, 1")

def bump(a, s_off, vt):
    a.e(f"v_mov_b32 v{vt}, s{s_off}", f"v_mov_b32 v{vt+1}, s{S_TGT}", "s_mov_b64 exec, 1",
        f"buffer_store_dword v{vt+1}, v{vt}, s[{S_SYN}:{S_SYN+3}], 0 offen sc1", "s_mov_b64 exec, -1")

F_M, F_G, F_IN0, F_IN1, F_OUTOFF, F_WR, F_RD0, F_RD1, F_MM = 2, 3, 4, 5, 6, 7, 8, 9, 10
F_T = 11
F_IN, F16RE, F16IM, F_TWC, F_TWS, F_DRE, F_DIM, F_P, F_TMP, F32RE, F32IM = 16, 48, 52, 56, 88, 120, 136, 152, 168, 176, 192
SI_OFF, SO_OFF = 52, 68
SO_LIST = [68, 69, 70, 71, 76, 77, 78, 79]

def fft512_addr(a, s_sa, s_cb):
    a.e(f"v_and_b32 v{F_M}, 15, v1", f"v_lshrrev_b32 v{F_G}, 4, v1")
    a.e(f"v_lshlrev_b32 v{F_IN0}, 20, v{F_G}", f"v_lshl_add_u32 v{F_IN0}, v{F_M}, 2, v{F_IN0}", f"v_add_u32 v{F_IN1}, {4*8192}, v{F_IN0}")
    a.e(f"s_lshl_b32 s48, s{s_sa}, 11", f"s_lshl_b32 s49, s{s_cb}, 6", "s_add_u32 s48, s48, s49",
        "s_lshl_b32 s50, s3, 16", "s_add_u32 s48, s48, s50")
    for aa in range(4):
        for i in range(4):
            a.e(f"s_add_u32 s{SI_OFF+4*aa+i}, s48, {(32*i+aa)*8192}")

def fft512_loads(a, SIN, mod=""):
    for hh in range(2):
        for aa in range(4):
            for i in range(4):
                a.e(f"buffer_load_dword v{F_IN+16*hh+4*aa+i}, v{F_IN0+hh}, s[{SIN}:{SIN+3}], s{SI_OFF+4*aa+i} offen {mod}")

def fft512_addr2(a, s_sa, s_cb, orow, ostr):
    a.e(f"s_mov_b32 s51, {16*ostr}", f"v_mul_lo_u32 v{F_OUTOFF}, v{F_M}, s51", f"v_lshl_add_u32 v{F_OUTOFF}, v{F_G}, 4, v{F_OUTOFF}")
    a.e(f"s_mul_i32 s48, s{s_sa}, {orow}", f"s_lshl_b32 s49, s{s_cb}, 6", "s_add_u32 s48, s48, s49",
        f"s_mul_i32 s50, s3, {4*ostr}", "s_add_u32 s48, s48, s50")
    for b in range(4):
        for h in range(2):
            a.e(f"s_add_u32 s{SO_LIST[2*b+h]}, s48, {(b+256*h)*ostr}")
    a.e(f"v_and_b32 v{F_T}, 7, v{F_M}", "s_lshl_b32 s50, s3, 1", f"v_xor_b32 v{F_T+1}, s50, v{F_T}",
        f"v_lshlrev_b32 v{F_WR}, 4, v{F_T+1}", f"v_lshl_add_u32 v{F_WR}, v{F_M}, 7, v{F_WR}",
        f"v_lshl_add_u32 v{F_WR}, v{F_G}, 13, v{F_WR}")
    a.e(f"v_xor_b32 v{F_T+1}, v{F_G}, v{F_T}", f"v_lshlrev_b32 v{F_RD0}, 4, v{F_T+1}",
        f"v_lshl_add_u32 v{F_RD0}, v{F_M}, 7, v{F_RD0}", "s_lshl_b32 s50, s3, 13",
        f"v_add_u32 v{F_RD0}, s50, v{F_RD0}", f"v_xor_b32 v{F_RD1}, 64, v{F_RD0}")

def fft512_consts(a):
    T, TMP = F_T, F_TMP
    XS, XB = T, T+1
    a.e(f"v_cvt_f32_u32 v{XS}, v{F_M}", f"v_mul_f32 v{XS}, {f32hex(1/32)}, v{XS}",
        f"v_cvt_f32_u32 v{T+2}, v{F_G}", f"v_mul_f32 v{T+2}, 4.0, v{T+2}",
        f"v_mul_f32 v{XB}, v{T+2}, v{XS}")
    a.e(f"v_and_b32 v{F_MM}, 1, v{F_M}", f"v_mul_u32_u24 v{F_MM}, 0x8000, v{F_MM}",
        f"v_lshl_or_b32 v{F_MM}, v{F_MM}, 16, v{F_MM}", "s_mov_b32 s50, 0x80008000")
    for i in range(4):
        x = TMP; cs = TMP+1; sn = TMP+2; x2 = TMP+3; cs2 = TMP+4; sn2 = TMP+5
        a.e(f"v_fmamk_f32 v{x}, v{XS}, {f32hex(float(i))}, v{XB}" if i else f"v_mov_b32 v{x}, v{XB}")
        a.e(f"v_add_f32 v{x2}, v{x}, v{x}")
        a.e(f"v_cos_f32 v{cs}, v{x}", f"v_sin_f32 v{sn}, v{x}", f"v_cos_f32 v{cs2}, v{x2}", f"v_sin_f32 v{sn2}, v{x2}")
        a.e(f"v_cvt_pk_bf16_f32 v{F32RE+i}, v{cs}, v{sn}", f"v_cvt_pk_bf16_f32 v{F32IM+i}, -v{sn}, v{cs}",
            f"v_cvt_pk_bf16_f32 v{F16RE+i}, v{cs2}, v{sn2}", f"v_cvt_pk_bf16_f32 v{F16IM+i}, -v{sn2}, v{cs2}")
    for base in (F32RE, F32IM):
        for i in range(4):
            a.e(f"v_xor_b32 v{base+4+i}, v{F_MM}, v{base+i}")
        for t in range(2):
            for i in range(4):
                src = base+4*t+i
                if i & 1: a.e(f"v_xor_b32 v{base+8+4*t+i}, s50, v{src}")
                else:     a.e(f"v_mov_b32 v{base+8+4*t+i}, v{src}")
    a.e(f"v_cvt_f32_u32 v{TMP}, s3", f"v_mul_f32 v{TMP}, {f32hex(8/512)}, v{TMP}")
    for r in range(4):
        a.e(f"v_add_f32 v{TMP+4+r}, {f32hex(float(r)) if r else 0}, v{T+2}")
    for aa in range(8):
        a.e(f"v_add_f32 v{TMP+1}, {f32hex(aa/512) if aa else 0}, v{TMP}")
        for r in range(4):
            a.e(f"v_mul_f32 v{T+3+(r&1)}, v{TMP+1}, v{TMP+4+r}",
                f"v_cos_f32 v{F_TWC+4*aa+r}, v{T+3+(r&1)}", f"v_sin_f32 v{F_TWS+4*aa+r}, v{T+3+(r&1)}")

def fft512_compute(a, SOUT, neg_im, nafter, stmod, st0, fs=0, hook=None):
    TMP = F_TMP
    stamp(a, st0)
    for hh in range(2):
        fstamp(a, fs+5*hh)
        for aa in range(4):
            a.e(f"s_waitcnt vmcnt({28-16*hh-4*aa+nafter})")
            a.e(f"v_mfma_f32_16x16x32_bf16 {v(F_DRE+4*aa,4)}, {v(F16RE,4)}, {v(F_IN+16*hh+4*aa,4)}, 0",
                f"v_mfma_f32_16x16x32_bf16 {v(F_DIM+4*aa,4)}, {v(F16IM,4)}, {v(F_IN+16*hh+4*aa,4)}, 0")
        if hh == 1:
            stamp(a, st0+1)
            if hook: hook()
        fstamp(a, fs+5*hh+1)
        for aa in range(4):
            for p in range(2):
                re, im = F_DRE+4*aa+2*p, F_DIM+4*aa+2*p
                tc, ts = F_TWC+16*hh+4*aa+2*p, F_TWS+16*hh+4*aa+2*p
                t0, t1 = TMP+4*p, TMP+4*p+2
                a.e(f"v_pk_mul_f32 {v(t0,2)}, {v(re,2)}, {v(tc,2)}",
                    f"v_pk_mul_f32 {v(t1,2)}, {v(im,2)}, {v(tc,2)}",
                    f"v_pk_fma_f32 {v(t0,2)}, {v(im,2)}, {v(ts,2)}, {v(t0,2)}",
                    f"v_pk_fma_f32 {v(t1,2)}, {v(re,2)}, {v(ts,2)}, {v(t1,2)} neg_lo:[1,0,0] neg_hi:[1,0,0]")
                for e in range(2):
                    r = 2*p+e
                    a.e(f"v_cvt_pk_bf16_f32 v{F_P+4*r+aa}, v{t0+e}, v{t1+e}")
        fstamp(a, fs+5*hh+2)
        if hh == 1: a.e(f"v_xor_b32 v{F_WR}, 16, v{F_WR}")
        for r in range(4):
            a.e(f"ds_write_b128 v{F_WR}, {v(F_P+4*r,4)} offset:{r*2048}")
    a.e("s_waitcnt lgkmcnt(0)")
    fstamp(a, fs+8)
    a.e("s_barrier")
    fstamp(a, fs+9)
    for b in range(4):
        a.e(f"ds_read_b128 {v(F_IN+8*b,4)}, v{F_RD0} offset:{b*2048}",
            f"ds_read_b128 {v(F_IN+8*b+4,4)}, v{F_RD1} offset:{b*2048}")
    sg = "-" if neg_im else ""
    def mf(bb):
        D0 = [F_DRE, F_DIM] if bb == 0 else [F_TWC, F_TWC+16]
        for bl in range(2):
            b = 2*bb+bl
            a.e(f"s_waitcnt lgkmcnt({6-2*b})")
            for t in range(2):
                for h in range(2):
                    for (D_, F_) in ((D0[0], F32RE), (D0[1], F32IM)):
                        d = D_+8*bl+4*h
                        c = "0" if t == 0 else v(d, 4)
                        a.e(f"v_mfma_f32_16x16x32_bf16 {v(d,4)}, {v(F_IN+8*b+4*t,4)}, {v(F_+8*h+4*t,4)}, {c}")
    def st(bb):
        D0 = [F_DRE, F_DIM] if bb == 0 else [F_TWC, F_TWC+16]
        PB = F_P if bb == 0 else F_TWS
        out = []
        for bl in range(2):
            b = 2*bb+bl
            for h in range(2):
                idx = 8*bl+4*h
                for r in range(4):
                    out.append(f"v_cvt_pk_bf16_f32 v{PB+idx+r}, v{D0[0]+idx+r}, {sg}v{D0[1]+idx+r}")
                out.append(f"buffer_store_dwordx4 {v(PB+idx,4)}, v{F_OUTOFF}, s[{SOUT}:{SOUT+3}], s{SO_LIST[2*b+h]} offen {stmod}")
        return out
    mf(0)
    n0 = len(a.lines)
    mf(1)
    m1 = a.lines[n0:]; del a.lines[n0:]
    s0 = st(0)
    k = 0
    seen = 0
    for l in m1:
        a.lines.append(l)
        if "v_mfma" in l:
            seen += 1
            if seen > 4:
                for _ in range(2):
                    if k < len(s0): a.e(s0[k]); k += 1
    while k < len(s0): a.e(s0[k]); k += 1
    fstamp(a, fs+10)
    for l in st(1): a.e(l)

IDX, G_, VG, VGW, VRR, VHR, VST, VW = 2, 3, 6, 7, 8, 12, 13, 14
CRE, CIM, TWC, TWS, WR, WI, ARE, AIM, DF, GA, HRE, HIM, GB, TMP = 16, 32, 48, 64, 80, 96, 112, 128, 144, 160, 164, 168, 172, 188
W2R, W2I, SP, PF, PF2 = 204, 220, 236, 248, 252
LW = 32768; LSC = 16384; LW2 = 49152

def w_dma(a, SWR, SWI, s_rowoff, s_mirroff, s_ldsbase, vlane16):
    a.e(f"s_mov_b32 m0, s{s_ldsbase}", f"buffer_load_dwordx4 v{vlane16}, s[{SWR}:{SWR+3}], s{s_rowoff} offen lds" + NT())
    a.e(f"s_add_u32 s93, s{s_ldsbase}, 1024", "s_mov_b32 m0, s93", f"buffer_load_dwordx4 v{vlane16}, s[{SWI}:{SWI+3}], s{s_rowoff} offen lds" + NT())
    a.e(f"s_add_u32 s92, s{s_mirroff}, 2")
    a.e(f"s_add_u32 s93, s{s_ldsbase}, 2048", "s_mov_b32 m0, s93", f"buffer_load_dwordx4 v{vlane16}, s[{SWR}:{SWR+3}], s92 offen lds" + NT())
    a.e(f"s_add_u32 s93, s{s_ldsbase}, 3072", "s_mov_b32 m0, s93", f"buffer_load_dwordx4 v{vlane16}, s[{SWI}:{SWI+3}], s92 offen lds" + NT())

def pf_loads(a, SWR, SWI, s_rowoff, s_mirroff, dst, vt):
    a.e(f"v_mov_b32 v{vt}, s{s_mirroff}", f"v_mov_b32 v{vt+1}, s{s_rowoff}", f"v_add_u32 v{vt+1}, 1024, v{vt+1}")
    a.e(f"buffer_load_short_d16_hi v{dst}, v{vt}, s[{SWR}:{SWR+3}], 0 offen",
        f"buffer_load_short_d16_hi v{dst+1}, v{vt}, s[{SWI}:{SWI+3}], 0 offen",
        f"buffer_load_short_d16_hi v{dst+2}, v{vt+1}, s[{SWR}:{SWR+3}], 0 offen",
        f"buffer_load_short_d16_hi v{dst+3}, v{vt+1}, s[{SWI}:{SWI+3}], 0 offen")

def w_lds_reads(a, vlo, vhi, dr, di):
    for (dst, o) in ((dr, 0), (di, 1024)):
        for r in range(16):
            e = eidx(r)
            if r < 8: a.e(f"ds_read_u16_d16_hi v{dst+r}, v{vlo} offset:{o+64*e}")
            else:     a.e(f"ds_read_u16_d16_hi v{dst+r}, v{vhi} offset:{o+64*(27-e)}")

def fix_w(a, dr, di, pf):
    a.e("v_cmp_eq_u32 vcc, 0, v1")
    for (r, o) in ((0, 0), (8, 2)):
        a.e(f"v_add_f32 v{TMP}, v{dr+r}, v{pf+o}", f"v_mul_f32 v{TMP}, 0.5, v{TMP}",
            f"v_sub_f32 v{TMP+1}, v{di+r}, v{pf+o+1}", f"v_mul_f32 v{TMP+1}, 0.5, v{TMP+1}",
            f"v_cndmask_b32 v{dr+r}, v{dr+r}, v{TMP}, vcc", f"v_cndmask_b32 v{di+r}, v{di+r}, v{TMP+1}, vcc")

def fft1024(a):
    for t in range(4):
        c0 = "0" if t == 0 else v(ARE, 16); c1 = "0" if t == 0 else v(AIM, 16)
        a.e(f"v_mfma_f32_32x32x16_bf16 {v(ARE,16)}, {v(DF+4*t,4)}, {v(CRE+4*t,4)}, {c0}",
            f"v_mfma_f32_32x32x16_bf16 {v(AIM,16)}, {v(DF+4*t,4)}, {v(CIM+4*t,4)}, {c1}")
    for p in range(8):
        re, im, tc, ts = ARE+2*p, AIM+2*p, TWC+2*p, TWS+2*p
        t0 = TMP+4*(p & 1); t1 = t0+2
        a.e(f"v_pk_mul_f32 {v(t0,2)}, {v(re,2)}, {v(tc,2)}",
            f"v_pk_mul_f32 {v(t1,2)}, {v(im,2)}, {v(tc,2)}",
            f"v_pk_fma_f32 {v(t0,2)}, {v(im,2)}, {v(ts,2)}, {v(t0,2)}",
            f"v_pk_fma_f32 {v(t1,2)}, {v(re,2)}, {v(ts,2)}, {v(t1,2)} neg_lo:[1,0,0] neg_hi:[1,0,0]")
        for e in range(2):
            a.e(f"v_cvt_pk_bf16_f32 v{DF+2*p+e}, v{t0+e}, v{t1+e}")
    for t in range(4):
        c0 = "0" if t == 0 else v(ARE, 16); c1 = "0" if t == 0 else v(AIM, 16)
        a.e(f"v_mfma_f32_32x32x16_bf16 {v(ARE,16)}, {v(CRE+4*t,4)}, {v(DF+4*t,4)}, {c0}",
            f"v_mfma_f32_32x32x16_bf16 {v(AIM,16)}, {v(CIM+4*t,4)}, {v(DF+4*t,4)}, {c1}")

def a2_consts(a, sT):
    a.e(f"v_and_b32 v{IDX}, 31, v1", f"v_lshrrev_b32 v{G_}, 5, v1")
    XS, XB = TMP, TMP+1
    a.e(f"v_cvt_f32_u32 v{TMP+2}, v{IDX}", f"v_cvt_f32_u32 v{TMP+3}, v{G_}", f"v_mul_f32 v{TMP+3}, 4.0, v{TMP+3}",
        f"v_mul_f32 v{XS}, {f32hex(1/32)}, v{TMP+2}", f"v_mul_f32 v{XB}, v{TMP+3}, v{XS}")
    a.e(f"v_and_b32 v{TMP+4}, 1, v{IDX}", f"v_mul_u32_u24 v{TMP+4}, 0x8000, v{TMP+4}", f"v_lshl_or_b32 v{TMP+4}, v{TMP+4}, 16, v{TMP+4}")
    for t in range(2):
        for i in range(4):
            c = float(8*t+i); x = TMP+5+3*(i & 1)
            a.e(f"v_fmamk_f32 v{x}, v{XS}, {f32hex(c)}, v{XB}" if c else f"v_mov_b32 v{x}, v{XB}")
            a.e(f"v_cos_f32 v{x+1}, v{x}", f"v_sin_f32 v{x+2}, v{x}")
            a.e(f"v_cvt_pk_bf16_f32 v{CRE+4*t+i}, v{x+1}, v{x+2}", f"v_cvt_pk_bf16_f32 v{CIM+4*t+i}, -v{x+2}, v{x+1}")
    for base in (CRE, CIM):
        for i in range(8):
            a.e(f"v_xor_b32 v{base+8+i}, v{TMP+4}, v{base+i}")
    a.e(f"v_mul_f32 v{XS}, {f32hex(1/1024)}, v{TMP+2}", f"v_mul_f32 v{XB}, v{TMP+3}, v{XS}")
    for r in range(16):
        c = float(eidx(r)); x = TMP+5+(r & 1)
        a.e(f"v_fmamk_f32 v{x}, v{XS}, {f32hex(c)}, v{XB}" if c else f"v_mov_b32 v{x}, v{XB}")
        a.e(f"v_cos_f32 v{TWC+r}, v{x}", f"v_sin_f32 v{TWS+r}, v{x}")
    LO, HI, Q, AV, XA0, XA1, E0, E1 = TMP, TMP+1, TMP+2, TMP+3, TMP+4, TMP+5, TMP+6, TMP+7
    JF, KEY, T2, PO, PAR, N16, G4, CS = [TMP+8+i for i in range(8)]
    Lspec, Ldone = newlbl("ghspec"), newlbl("ghdone")
    a.e(f"v_and_b32 v{LO}, 3, v{IDX}", f"v_bfe_u32 v{HI}, v{IDX}, 2, 2")
    a.e(f"v_and_b32 v{N16}, 15, v1", f"v_lshrrev_b32 v{G4}, 4, v1")
    a.e(f"s_cmp_eq_u32 s{sT}, 0", f"s_cbranch_scc1 {Lspec}")
    a.e(f"v_cvt_f32_u32 v{T2}, s{sT}", f"v_cvt_f32_u32 v{JF}, v{HI}", f"v_fmamk_f32 v{JF}, v{JF}, {f32hex(512.0)}, v{T2}",
        f"v_mul_f32 v{JF}, {f32hex(1/2048)}, v{JF}",
        f"v_cvt_f32_u32 v{XA0}, v{G_}", f"v_add_f32 v{XA0}, v{XA0}, v{XA0}", f"v_add_f32 v{XA1}, 1.0, v{XA0}",
        f"v_mul_f32 v{XA0}, v{XA0}, v{JF}", f"v_mul_f32 v{XA1}, v{XA1}, v{JF}",
        f"v_lshlrev_b32 v{Q}, 3, v{LO}", "s_mov_b32 s50, 0x4631914C", f"v_lshrrev_b32 v{Q}, v{Q}, s50",
        f"v_mov_b32 v{AV}, 0.5", f"v_cmp_gt_u32 vcc, 16, v{IDX}", f"v_cndmask_b32 v{AV}, 0, v{AV}, vcc")
    for jj2 in range(4):
        for e in range(2):
            jj = 2*jj2+e
            xa = XA1 if jj >> 2 else XA0
            a.e(f"v_bfe_u32 v{E0+e}, v{Q}, {2*(jj&3)}, 2", f"v_cvt_f32_u32 v{E0+e}, v{E0+e}",
                f"v_fmamk_f32 v{E0+e}, v{E0+e}, {f32hex(0.25)}, v{xa}", f"v_cos_f32 v{E0+e}, v{E0+e}",
                f"v_mul_f32 v{E0+e}, v{E0+e}, v{AV}")
        a.e(f"v_cvt_pk_bf16_f32 v{GA+jj2}, v{E0}, v{E1}")
    a.e(f"v_bfe_u32 v{HI}, v{N16}, 1, 2", f"v_cvt_f32_u32 v{KEY}, v{HI}", f"v_mul_f32 v{KEY}, {f32hex(1/2048)}, v{KEY}",
        f"v_and_b32 v{JF}, 1, v{G4}", f"v_cvt_f32_u32 v{JF}, v{JF}", f"v_fmamk_f32 v{JF}, v{JF}, {f32hex(1024.0)}, v{T2}",
        f"v_add_f32 v{XA1}, {f32hex(512.0)}, v{JF}", f"v_mul_f32 v{XA0}, v{JF}, v{KEY}", f"v_mul_f32 v{XA1}, v{XA1}, v{KEY}",
        f"v_lshrrev_b32 v{CS}, 1, v{G4}", f"v_lshrrev_b32 v{AV}, 3, v{N16}", f"v_cmp_eq_u32 vcc, v{CS}, v{AV}",
        f"v_mov_b32 v{AV}, {f32hex(2.0**-21)}", f"v_cndmask_b32 v{AV}, 0, v{AV}, vcc",
        f"v_and_b32 v{PO}, 1, v{N16}")
    for part, Hd in ((0, HRE), (1, HIM)):
        w0, w1 = (0x1C, 0xBC) if part == 0 else (0x61, 0x6B)
        a.e(f"v_mov_b32 v{Q}, {w0}", f"v_mov_b32 v{PAR}, {w1}", f"v_cmp_eq_u32 vcc, 1, v{PO}", f"v_cndmask_b32 v{Q}, v{Q}, v{PAR}, vcc")
        for jj2 in range(4):
            for e in range(2):
                jj = 2*jj2+e
                xa = XA1 if jj >> 2 else XA0
                a.e(f"v_bfe_u32 v{E0+e}, v{Q}, {2*(jj&3)}, 2", f"v_cvt_f32_u32 v{E0+e}, v{E0+e}",
                    f"v_fmamk_f32 v{E0+e}, v{E0+e}, {f32hex(0.25)}, v{xa}", f"v_cos_f32 v{E0+e}, v{E0+e}",
                    f"v_mul_f32 v{E0+e}, v{E0+e}, v{AV}")
            a.e(f"v_cvt_pk_bf16_f32 v{Hd+jj2}, v{E0}, v{E1}")
    a.e(f"s_branch {Ldone}")
    a.label(Lspec)
    a.e(f"v_and_b32 v{PO}, 1, v{LO}", f"v_lshrrev_b32 v{PAR}, 1, v{LO}")
    a.e(f"v_lshlrev_b32 v{JF}, 2, v{HI}", "s_mov_b32 s50, 0x3120", f"v_lshrrev_b32 v{JF}, v{JF}, s50", f"v_and_b32 v{JF}, 15, v{JF}",
        f"v_lshlrev_b32 v{JF}, 8, v{JF}", f"v_lshlrev_b32 v{T2}, 10, v{PO}",
        f"v_cmp_eq_u32 vcc, 0, v{HI}", f"v_cndmask_b32 v{JF}, v{JF}, v{T2}, vcc", f"v_mov_b32 v{T2}, 0",
        f"v_cndmask_b32 v{Q}, v{PO}, v{T2}, vcc",
        f"v_cvt_f32_u32 v{JF}, v{JF}", f"v_mul_f32 v{JF}, {f32hex(1/2048)}, v{JF}",
        f"v_cvt_f32_u32 v{Q}, v{Q}", f"v_mul_f32 v{Q}, {f32hex(0.25)}, v{Q}",
        f"v_cvt_f32_u32 v{XA0}, v{G_}", f"v_add_f32 v{XA0}, v{XA0}, v{XA0}", f"v_add_f32 v{XA1}, 1.0, v{XA0}",
        f"v_fma_f32 v{XA0}, v{XA0}, v{JF}, v{Q}", f"v_fma_f32 v{XA1}, v{XA1}, v{JF}, v{Q}",
        f"v_cos_f32 v{XA0}, v{XA0}", f"v_cos_f32 v{XA1}, v{XA1}",
        f"v_lshrrev_b32 v{KEY}, 1, v{HI}", f"v_lshl_add_u32 v{KEY}, v{KEY}, 1, v{PAR}",
        f"v_lshrrev_b32 v{T2}, 4, v{IDX}", f"v_lshl_add_u32 v{KEY}, v{T2}, 2, v{KEY}", f"v_mov_b32 v{T2}, 0")
    for jj2 in range(4):
        for e in range(2):
            jj = 2*jj2+e
            xa = XA1 if jj >> 2 else XA0
            a.e(f"v_cmp_eq_u32 vcc, {jj&3}, v{KEY}", f"v_cndmask_b32 v{E0+e}, v{T2}, v{xa}, vcc")
        a.e(f"v_cvt_pk_bf16_f32 v{GA+jj2}, v{E0}, v{E1}")
    SAF, GS = JF, PAR
    a.e(f"v_bfe_u32 v{HI}, v{N16}, 1, 2", f"v_cvt_f32_u32 v{SAF}, v{HI}", f"v_mul_f32 v{SAF}, {f32hex(1/2048)}, v{SAF}",
        f"v_and_b32 v{GS}, 1, v{G4}", f"v_and_b32 v{PO}, 1, v{N16}",
        f"v_lshrrev_b32 v{CS}, 1, v{G4}", f"v_lshrrev_b32 v{T2}, 3, v{N16}",
        f"v_cmp_eq_u32 s[44:45], v{CS}, v{T2}", f"v_cmp_eq_u32 s[46:47], v{GS}, v{PO}", "s_and_b64 s[44:45], s[44:45], s[46:47]",
        f"v_cmp_eq_u32 s[46:47], 0, v{GS}")
    for part, Hd in ((0, HRE), (1, HIM)):
        for jj in range(8):
            sl, par, pi = jj >> 2, (jj >> 1) & 1, jj & 1
            e = E0 + (jj & 1)
            if par != part:
                a.e(f"v_mov_b32 v{e}, 0")
            else:
                if sl == 0:
                    j0, q0, a0 = 1024.0*pi, 0.5*pi, 2.0**-21
                    j1, q1, a1 = 256.0, 0.75*pi, 2.0**-20
                else:
                    j0, q0, a0 = 512.0, 0.75*pi, 2.0**-20
                    j1, q1, a1 = 768.0, 0.75*pi, 2.0**-20
                def sel(dst, x0, x1):
                    a.e(f"v_mov_b32 v{dst}, {f32hex(x1)}", f"v_mov_b32 v{AV}, {f32hex(x0)}", f"v_cndmask_b32 v{dst}, v{dst}, v{AV}, s[46:47]")
                sel(XA0, j0, j1); sel(XA1, q0 + 0.5*part, q1 + 0.5*part)
                a.e(f"v_fma_f32 v{XA0}, v{XA0}, v{SAF}, v{XA1}", f"v_cos_f32 v{XA0}, v{XA0}")
                sel(XA1, a0, a1)
                a.e(f"v_mul_f32 v{XA0}, v{XA0}, v{XA1}", f"v_mov_b32 v{XA1}, 0", f"v_cndmask_b32 v{e}, v{XA1}, v{XA0}, s[44:45]")
            if jj & 1: a.e(f"v_cvt_pk_bf16_f32 v{Hd+(jj>>1)}, v{E0}, v{E1}")
    a.label(Ldone)
    a.e("s_nop 1")


BT_S0, BT_S1, BT_S2, BT_S3 = 52, 56, 60, 64
BT_SOFF = ["0", "s68", "s69", "s70", "s71", "s76", "s77", "s78"]
BT_ROW, BT_CH, BT_MASK = 48, 49, 50
def bt_setup(a):
    a.e(f"s_lshl_b32 s{BT_ROW}, s{sSUBT}, 7", "s_lshl_b32 s51, s3, 5", f"s_add_u32 s{BT_ROW}, s{BT_ROW}, s51", f"s_lshl_b32 s{BT_CH}, s{sCBKT}, 6")
    for i in range(1, 8): a.e(f"s_mov_b32 {BT_SOFF[i]}, {4096*i}")
    a.e(f"s_mov_b32 s{BT_MASK}, 0xffff0000")

def emit_B1(a, shadow=None, hook=None):
    SK, SV, SSH, SKVT = BT_S0, BT_S1, BT_S2, BT_S3
    srd(a, SK, P_K, P_K+1, 4*MB); srd(a, SV, P_V, P_V+1, 4*MB); srd(a, SSH, P_SHK, P_SHK+1, 8192); srd(a, SKVT, P_WS, P_WS+1, 4*MB, add=WS_KVT)
    bt_setup(a)
    soff = BT_SOFF; M = BT_MASK
    CG, RG, S0, CH0, VOFF, VH, VST, VSH = 2, 3, 4, 5, 6, 7, 8, 9
    a.e(f"v_and_b32 v{CG}, 15, v1", f"v_lshrrev_b32 v{RG}, 4, v1",
        f"v_lshl_add_u32 v{S0}, v{RG}, 3, s{BT_ROW}", f"v_lshl_add_u32 v{CH0}, v{CG}, 2, s{BT_CH}",
        f"v_lshlrev_b32 v{VOFF}, 11, v{S0}", f"v_lshl_add_u32 v{VOFF}, v{CH0}, 1, v{VOFF}",
        f"v_subrev_u32 v{VH}, 6144, v{VOFF}",
        f"v_lshlrev_b32 v{VST}, 12, v{CH0}", f"v_lshl_add_u32 v{VST}, v{S0}, 1, v{VST}",
        f"v_lshlrev_b32 v{VSH}, 3, v{CH0}")
    KR, VR, SHR, KF, SHF, KV, TM, PK = 16, 38, 54, 64, 108, 124, 156, 16
    a.e(f"buffer_load_dwordx4 {v(SHR,4)}, v{VSH}, s[{SSH}:{SSH+3}], 0 offen",
        f"buffer_load_dwordx4 {v(SHR+4,4)}, v{VSH}, s[{SSH}:{SSH+3}], 0 offen offset:16")
    for i in range(3):
        a.e(f"buffer_load_dwordx2 {v(KR+2*i,2)}, v{VH}, s[{SK}:{SK+3}], {soff[i>>1]} offen" + (" offset:2048" if i & 1 else "") + NT())
    for i in range(8):
        a.e(f"buffer_load_dwordx2 {v(KR+6+2*i,2)}, v{VOFF}, s[{SK}:{SK+3}], {soff[i>>1]} offen" + (" offset:2048" if i & 1 else "") + NT())
    for i in range(8):
        a.e(f"buffer_load_dwordx2 {v(VR+2*i,2)}, v{VOFF}, s[{SV}:{SV+3}], {soff[i>>1]} offen" + (" offset:2048" if i & 1 else "") + NT())
    stamp(a, 2)
    if shadow: shadow()
    a.e("s_waitcnt vmcnt(19)")
    for ch in range(4):
        for j in range(4):
            src = SHR + 2*ch + (j >> 1)
            if j & 1: a.e(f"v_and_b32 v{SHF+4*j+ch}, s{M}, v{src}")
            else:     a.e(f"v_lshlrev_b32 v{SHF+4*j+ch}, 16, v{src}")
    for i in range(11):
        a.e(f"s_waitcnt vmcnt({18-i})")
        for hf in range(2):
            a.e(f"v_lshlrev_b32 v{KF+4*i+2*hf}, 16, v{KR+2*i+hf}", f"v_and_b32 v{KF+4*i+2*hf+1}, s{M}, v{KR+2*i+hf}")
    for i in range(8):
        a.e(f"s_waitcnt vmcnt({7-i})")
        if i == 7 and hook: hook()
        for hf in range(2):
            a.e(f"v_lshlrev_b32 v{TM+2*hf}, 16, v{VR+2*i+hf}", f"v_and_b32 v{TM+2*hf+1}, s{M}, v{VR+2*i+hf}")
        for hf in range(2):
            acc = KV+4*i+2*hf
            a.e(f"v_pk_mul_f32 {v(acc,2)}, {v(KF+4*(i+3)+2*hf,2)}, {v(SHF+2*hf,2)}")
            for j in range(1, 4):
                a.e(f"v_pk_fma_f32 {v(acc,2)}, {v(KF+4*(i+3-j)+2*hf,2)}, {v(SHF+4*j+2*hf,2)}, {v(acc,2)}")
            a.e(f"v_pk_mul_f32 {v(acc,2)}, {v(acc,2)}, {v(TM+2*hf,2)}")
    stamp(a, 3)
    for ch in range(4):
        for m in range(4):
            a.e(f"v_cvt_pk_bf16_f32 v{PK+4*ch+m}, v{KV+4*(7-2*m)+ch}, v{KV+4*(6-2*m)+ch}")
        a.e(f"buffer_store_dwordx4 {v(PK+4*ch,4)}, v{VST}, s[{SKVT}:{SKVT+3}], {soff[ch]} offen sc1")
    stamp(a, 4)
    a.e(f"s_lshl_b32 s51, s{sCBKT}, 4", f"s_add_u32 s51, s51, s{sSUBT}", "s_lshl_b32 s51, s51, 6", f"s_add_u32 s51, s51, {SY_B1}")
    fin_epoch(a)
    signal(a, 51, 14)

B3_QR, B3_VQ, B3_VT, B3_VO = 192, 208, 209, 212
def emit_B3_pre(a):
    SQ, STT, SOUT = BT_S0, BT_S1, BT_S2
    srd(a, SQ, P_Q, P_Q+1, 4*MB); srd(a, STT, P_WS, P_WS+1, 4*MB, add=WS_TT); srd(a, SOUT, P_OUT, P_OUT+1, 8*MB)
    bt_setup(a)
    t = 215
    a.e(f"v_and_b32 v{t}, 15, v1", f"v_lshrrev_b32 v{t+1}, 4, v1",
        f"v_lshl_add_u32 v{t+1}, v{t+1}, 3, s{BT_ROW}", f"v_lshl_add_u32 v{t}, v{t}, 2, s{BT_CH}",
        f"v_lshlrev_b32 v{B3_VQ}, 11, v{t+1}", f"v_lshl_add_u32 v{B3_VQ}, v{t}, 1, v{B3_VQ}",
        f"v_lshlrev_b32 v{B3_VT}, 12, v{t}", f"v_lshl_add_u32 v{B3_VT}, v{t+1}, 1, v{B3_VT}",
        f"v_lshlrev_b32 v{B3_VO}, 12, v{t+1}", f"v_lshl_add_u32 v{B3_VO}, v{t}, 1, v{B3_VO}", f"v_add_u32 v{B3_VO}, 2048, v{B3_VO}")
    for i in range(8):
        a.e(f"buffer_load_dwordx2 {v(B3_QR+2*i,2)}, v{B3_VQ}, s[{SQ}:{SQ+3}], {BT_SOFF[i>>1]} offen" + (" offset:2048" if i & 1 else "") + NT())

def emit_B3(a):
    SQ, STT, SOUT = BT_S0, BT_S1, BT_S2
    soff = BT_SOFF; M = BT_MASK
    TR, TF, QF = 16, 48, 80
    a.e(f"s_lshl_b32 s51, s{sCBKT}, 10", f"s_add_u32 s51, s51, {SY_B2}",
        "v_and_b32 v12, 15, v1", "v_lshlrev_b32 v12, 6, v12", "v_add_u32 v12, s51, v12")
    a.e("s_waitcnt vmcnt(0)")
    for e in range(8):
        qf = QF + 4*e
        for hf in range(2):
            a.e(f"v_lshlrev_b32 v{qf+2*hf}, 16, v{B3_QR+2*e+hf}", f"v_and_b32 v{qf+2*hf+1}, s{M}, v{B3_QR+2*e+hf}")
    wait_flags(a, 12, 1, 13, 51)
    stamp(a, 10)
    for ch in range(4):
        a.e(f"buffer_load_dwordx4 {v(TR+4*ch,4)}, v{B3_VT}, s[{STT}:{STT+3}], {soff[ch]} offen sc1")
    for ch in range(4):
        a.e(f"s_waitcnt vmcnt({3-ch})")
        for e in range(8):
            src = TR+4*ch+(e >> 1)
            if e & 1: a.e(f"v_and_b32 v{TF+4*e+ch}, s{M}, v{src}")
            else:     a.e(f"v_lshlrev_b32 v{TF+4*e+ch}, 16, v{src}")
    for e in range(8):
        qf = QF + 4*e
        for hf in range(2):
            a.e(f"v_pk_mul_f32 {v(qf+2*hf,2)}, {v(qf+2*hf,2)}, {v(TF+4*e+2*hf,2)}")
        pk = 112+2*e
        for hf in range(2):
            a.e(f"v_cvt_pk_bf16_f32 v{pk+hf}, v{qf+2*hf}, v{qf+2*hf+1}")
        a.e(f"buffer_store_dwordx2 {v(pk,2)}, v{B3_VO}, s[{SOUT}:{SOUT+3}], {soff[e]} offen" + NTO())

def gen_A(a):
    SX, SI1, SWR, SWI, SI2, SOUT = 32, 36, 80, 84, 32, 36
    a.e(f"s_setprio {OPT['prioA']}") if OPT['prioA'] else None
    sT, sSA, sCB, sJ, sJM, sJP, sJQ, sTL = 40, 41, 42, 43, 72, 73, 74, 44
    def rows():
        srd(a, SI1, P_WS, P_WS+1, 4*MB, add=WS_I1)
        srd(a, SWR, P_WR, P_WR+1, WBYTES); srd(a, SWI, P_WI, P_WI+1, WBYTES)
        Lr = newlbl("reg")
        a.e("s_lshl_b32 s47, s3, 9", f"s_add_u32 s{sJ}, s{sT}, s47", f"s_mov_b32 s{sJP}, s{sT}", f"s_sub_u32 s{sJQ}, 512, s{sT}",
            f"s_cmp_lg_u32 s{sT}, 0", f"s_cbranch_scc1 {Lr}",
            f"s_mov_b32 s{sJQ}, 256", "s_lshl_b32 s47, s3, 2", "s_lshr_b32 s46, 0x3120, s47", "s_and_b32 s46, s46, 15", f"s_lshl_b32 s{sJ}, s46, 8")
        a.label(Lr)
        a.e(f"s_sub_u32 s{sJM}, 2048, s{sJ}", f"s_and_b32 s{sJM}, s{sJM}, 2047",
            f"s_mul_i32 s{sJ}, s{sJ}, 1026", f"s_mul_i32 s{sJM}, s{sJM}, 1026")
        a.e(f"s_or_b32 s75, s{sT}, s3")
    def wstage():
        a.e("v_lshlrev_b32 v15, 4, v1", "s_lshl_b32 s46, s3, 12", f"s_add_u32 s46, s46, {LW}")
        w_dma(a, SWR, SWI, sJ, sJM, 46, 15)
        pf_loads(a, SWR, SWI, sJ, sJM, PF, 244)
        Ln = newlbl("now2")
        a.e("s_cmp_lg_u32 s75, 0", f"s_cbranch_scc1 {Ln}")
        a.e(f"s_mov_b32 s47, {1024*1026}", f"s_mov_b32 s46, {LW2}")
        w_dma(a, SWR, SWI, 47, 47, 46, 15)
        pf_loads(a, SWR, SWI, 47, 47, PF2, 244)
        a.label(Ln)
    a.e(f"s_mov_b32 s{sT}, s{sCU}")
    stamp(a, 0, True); stamp(a, 1)
    Lp1 = newlbl("nop1")
    a.e(f"s_cmp_eq_u32 s{sACT}, 0", f"s_cbranch_scc1 {Lp1}_in")
    srd(a, SX, P_X, P_X+1, 4*MB)
    a.e(f"s_lshr_b32 s48, s{sT}, 4", f"s_and_b32 s49, s{sT}, 7",
        f"s_lshr_b32 s{sSA}, s48, 2", "s_bfe_u32 s50, s48, 0x10001", "s_lshl_b32 s50, s50, 3", "s_add_u32 s50, s50, s49",
        "s_lshl_b32 s50, s50, 1", "s_and_b32 s51, s48, 1", f"s_add_u32 s{sCB}, s50, s51",
        "s_lshl_b32 s48, s48, 3", f"s_add_u32 s{sTL}, s48, s49")
    fft512_addr(a, sSA, sCB)
    fft512_loads(a, SX, NT())
    stamp(a, 12)
    rows()
    fft512_addr2(a, sSA, sCB, 2048, 8192)
    fft512_consts(a)
    fft512_compute(a, SI1, False, 0, "sc1", 2, hook=wstage)
    stamp(a, 4)
    a.e(f"s_lshl_b32 s48, s{sTL}, 6", f"s_add_u32 s48, s48, {SY_A1}")
    fin_epoch(a)
    signal(a, 48, F_TMP)
    a.e(f"s_branch {Lp1}")
    a.label(f"{Lp1}_in")
    stamp(a, 12)
    emit_B1(a, shadow=rows, hook=wstage)
    a.label(Lp1)
    stamp(a, 5)
    srd(a, SI2, P_WS, P_WS+1, 4*MB, add=WS_I2)
    a2_consts(a, sT)
    a.e(f"v_lshl_add_u32 v{TMP}, v{G_}, 7, v{IDX}",
        "s_lshl_b32 s48, s3, 12", f"s_add_u32 s48, s48, {LW}",
        f"v_lshl_add_u32 v{VW}, v{TMP}, 1, s48",
        f"v_sub_u32 v{TMP+1}, {1023-32*27}, v{TMP}", f"s_add_u32 s49, s48, 2048", f"v_lshl_add_u32 v{VW+1}, v{TMP+1}, 1, s49")
    a.e(f"v_lshlrev_b32 v{VG}, 12, v{G_}", f"v_lshl_add_u32 v{VG}, v{IDX}, 2, v{VG}",
        "s_lshl_b32 s49, s3, 9",
        f"s_lshl_b32 s52, s{sJP}, 13", "s_add_u32 s52, s52, s49",
        f"s_lshl_b32 s53, s{sJQ}, 13", "s_add_u32 s53, s53, s49")
    a.e(f"v_lshlrev_b32 v{VGW}, 12, v{G_}", f"v_lshl_add_u32 v{VGW}, v{IDX}, 3, v{VGW}", "s_lshl_b32 s50, s3, 10", f"v_add_u32 v{VGW}, s50, v{VGW}",
        f"v_lshlrev_b32 v{VRR}, 9, v{G_}", f"v_lshl_add_u32 v{VRR}, v{IDX}, 2, v{VRR}", "s_lshl_b32 s51, s3, 12", f"v_add_u32 v{VRR}, s51, v{VRR}")
    for t in range(1, 4): a.e(f"v_add_u32 v{VRR+t}, {1024*t}, v{VRR}")
    a.e(f"v_lshrrev_b32 v{TMP}, 4, v1", f"v_and_b32 v{TMP+1}, 1, v{TMP}", f"v_lshlrev_b32 v{VHR}, 13, v{TMP+1}",
        f"v_lshrrev_b32 v{TMP+1}, 1, v{TMP}", f"v_lshl_add_u32 v{VHR}, v{TMP+1}, 7, v{VHR}",
        f"v_and_b32 v{TMP+1}, 15, v1", f"v_lshl_add_u32 v{VHR}, v{TMP+1}, 3, v{VHR}", f"v_add_u32 v{VHR}, s50, v{VHR}")
    a.e(f"v_and_b32 v{TMP+2}, 1, v{TMP+1}", f"v_mov_b32 v{TMP+3}, s52", f"v_mov_b32 v{TMP+4}, s53",
        f"v_cmp_eq_u32 vcc, 1, v{TMP+2}", f"v_cndmask_b32 v{VST}, v{TMP+3}, v{TMP+4}, vcc",
        f"v_bfe_u32 v{TMP+2}, v{TMP+1}, 1, 2", f"v_lshl_add_u32 v{VST}, v{TMP+2}, 11, v{VST}",
        f"v_lshrrev_b32 v{TMP+2}, 3, v{TMP+1}", f"v_lshl_add_u32 v{VST}, v{TMP+2}, 6, v{VST}",
        f"v_lshl_add_u32 v{VST}, v{TMP}, 4, v{VST}")
    a.e(f"v_lshlrev_b32 v{TMP}, 6, v1", f"v_add_u32 v{TMP}, {SY_A1}, v{TMP}")
    stamp(a, 6)
    wait_flags(a, TMP, 2, TMP+1, 48)
    stamp(a, 7)
    for u in range(4):
        for sl in range(2):
            for pq in range(2):
                a.e(f"buffer_load_dword v{GB+4*u+2*sl+pq}, v{VG}, s[{SI1}:{SI1+3}], s{52+pq} offen offset:{2048*sl+128*u} sc1")
    for rnd in range(2):
        a.e(f"s_waitcnt vmcnt({8-8*rnd})")
        for uu in range(2):
            u = 2*rnd+uu
            a.e(f"v_mfma_f32_32x32x16_bf16 {v(ARE if uu == 0 else AIM,16)}, {v(GA,4)}, {v(GB+4*u,4)}, 0")
        for uu in range(2):
            u = 2*rnd+uu
            D = ARE if uu == 0 else AIM
            t = TMP+4*uu
            for h in range(2):
                a.e(f"v_cvt_pk_bf16_f32 v{t}, v{D+4*h}, v{D+4*h+1}", f"v_cvt_pk_bf16_f32 v{t+1}, v{D+4*h+2}, v{D+4*h+3}",
                    f"ds_write_b64 v{VGW}, {v(t,2)} offset:{256*u+8192*h}")
                t += 2
    a.e("s_waitcnt lgkmcnt(0)", "s_barrier")
    stamp(a, 8)
    for t in range(4):
        a.e(f"ds_read2_b32 {v(DF+4*t,2)}, v{VRR+t} offset0:0 offset1:32", f"ds_read2_b32 {v(DF+4*t+2,2)}, v{VRR+t} offset0:64 offset1:96")
    a.e("s_waitcnt lgkmcnt(0)")
    w_lds_reads(a, VW, VW+1, WR, WI)
    fft1024(a)
    a.e("s_waitcnt lgkmcnt(0)")
    fix_w(a, WR, WI, PF)
    Lsp, Linv = newlbl("special"), newlbl("inv")
    a.e("s_cmp_eq_u32 s75, 0", f"s_cbranch_scc1 {Lsp}")
    for p in range(8):
        xr, xi, wr, wi = ARE+2*p, AIM+2*p, WR+2*p, WI+2*p
        t0 = TMP+4*(p & 1); t1 = t0+2
        n0 = " neg_lo:[1,0,0] neg_hi:[1,0,0]" if p < 4 else ""
        n1 = "" if p < 4 else " neg_lo:[1,0,0] neg_hi:[1,0,0]"
        a.e(f"v_pk_mul_f32 {v(t0,2)}, {v(xr,2)}, {v(wr,2)}", f"v_pk_mul_f32 {v(t1,2)}, {v(xi,2)}, {v(wr,2)}",
            f"v_pk_fma_f32 {v(t0,2)}, {v(xi,2)}, {v(wi,2)}, {v(t0,2)}{n0}",
            f"v_pk_fma_f32 {v(t1,2)}, {v(xr,2)}, {v(wi,2)}, {v(t1,2)}{n1}")
        for e in range(2):
            a.e(f"v_cvt_pk_bf16_f32 v{DF+2*p+e}, v{t0+e}, -v{t1+e}")
    a.label(Linv)
    a.e("s_nop 1")
    fft1024(a)
    for r in range(16):
        t = TMP + (r & 7)
        a.e(f"v_cvt_pk_bf16_f32 v{t}, v{ARE+r}, v{AIM+r}", f"ds_write_b32 v{VRR}, v{t} offset:{128*eidx(r)}")
    a.e("s_waitcnt lgkmcnt(0)", "s_barrier")
    stamp(a, 9)
    for u in range(4):
        for sl in range(2):
            a.e(f"ds_read_b64 {v(GB+4*u+2*sl,2)}, v{VHR} offset:{4096*sl+256*u}")
    a.e("s_lshl_b32 s49, s3, 9")
    for u in range(4):
        a.e(f"s_waitcnt lgkmcnt({6-2*u})")
        a.e(f"v_mfma_f32_16x16x32_bf16 {v(ARE+4*u,4)}, {v(GB+4*u,4)}, {v(HRE,4)}, 0",
            f"v_mfma_f32_16x16x32_bf16 {v(AIM+4*u,4)}, {v(GB+4*u,4)}, {v(HIM,4)}, 0")
    for u in range(4):
        for r in range(4):
            a.e(f"v_cvt_pk_bf16_f32 v{DF+4*u+r}, v{ARE+4*u+r}, v{AIM+4*u+r}")
        a.e(f"buffer_store_dwordx4 {v(DF+4*u,4)}, v{VST}, s[{SI2}:{SI2+3}], 0 offen offset:{128*u} sc1")
    a.e(f"s_lshl_b32 s48, s{sT}, 6", f"s_add_u32 s48, s48, {SY_A2}")
    signal(a, 48, TMP)
    stamp(a, 10)
    Lb3 = newlbl("b3")
    a.e(f"s_cmp_eq_u32 s{sACT}, 0", f"s_cbranch_scc1 {Lb3}")
    srd(a, SOUT, P_OUT, P_OUT+1, 8*MB)
    fft512_addr(a, sSA, sCB)
    fft512_addr2(a, sSA, sCB, 4096, 16384)
    fft512_consts(a)
    a.e(f"v_lshlrev_b32 v{F_TMP}, 6, v1", f"v_add_u32 v{F_TMP}, {SY_A2}, v{F_TMP}")
    wait_flags(a, F_TMP, 4, F_TMP+1, 48)
    stamp(a, 11)
    fft512_loads(a, SI2, "sc1")
    save = gen.PROF; gen.PROF = False
    fft512_compute(a, SOUT, True, 0, NTO(), 0)
    gen.PROF = save
    a.e("s_cmp_lg_u32 s75, 0", "s_cbranch_scc1 L_fin")
    a.e(f"v_lshlrev_b32 v2, 6, v1", f"v_add_u32 v2, {SY_B2}, v2")
    wait_flags(a, 2, 4, 4, 48, solo=True)
    a.e(f"s_mov_b32 s48, {SY_E}")
    bump(a, 48, 2)
    a.e("s_branch L_fin")
    a.label(Lb3)
    emit_B3_pre(a)
    emit_B3(a)
    a.e("s_branch L_fin")
    a.label(Lsp)
    a.e(f"v_lshl_add_u32 v{TMP}, v{G_}, 7, v{IDX}", f"v_sub_u32 v{TMP+1}, {1023-32*27}, v{TMP}",
        f"s_mov_b32 s48, {LW2}", f"v_lshl_add_u32 v{TMP+2}, v{TMP}, 1, s48", f"s_mov_b32 s49, {LW2+2048}", f"v_lshl_add_u32 v{TMP+3}, v{TMP+1}, 1, s49")
    w_lds_reads(a, TMP+2, TMP+3, W2R, W2I)
    a.e("s_waitcnt lgkmcnt(0)")
    fix_w(a, W2R, W2I, PF2)
    VS = SP; K0 = SP+1
    a.e(f"v_lshlrev_b32 v{VS}, 9, v{G_}", f"v_lshl_add_u32 v{VS}, v{IDX}, 2, v{VS}")
    for r in range(16):
        a.e(f"ds_write_b32 v{VS}, v{ARE+r} offset:{LSC+128*eidx(r)}", f"ds_write_b32 v{VS}, v{AIM+r} offset:{LSC+4096+128*eidx(r)}")
    a.e(f"v_lshl_add_u32 v{K0}, v{G_}, 7, v{IDX}", f"v_sub_u32 v{K0}, 1024, v{K0}", "s_waitcnt lgkmcnt(0)")
    for r in range(16):
        ad, rr, ri, ur, ui, vr, vi, o0, o1 = [SP+2+i for i in range(9)]
        a.e(f"v_subrev_u32 v{ad}, {32*eidx(r)}, v{K0}", f"v_and_b32 v{ad}, 1023, v{ad}", f"v_lshlrev_b32 v{ad}, 2, v{ad}",
            f"ds_read_b32 v{rr}, v{ad} offset:{LSC}", f"ds_read_b32 v{ri}, v{ad} offset:{LSC+4096}", "s_waitcnt lgkmcnt(0)")
        pr, pi_ = ARE+r, AIM+r
        a.e(f"v_add_f32 v{ur}, v{pr}, v{rr}", f"v_sub_f32 v{ui}, v{pi_}, v{ri}",
            f"v_sub_f32 v{vr}, v{pr}, v{rr}", f"v_add_f32 v{vi}, v{pi_}, v{ri}")
        sg = "-" if r < 8 else ""; ns = "" if r < 8 else "-"
        ar, ai, br, bi = WR+r, WI+r, W2R+r, W2I+r
        a.e(f"v_mul_f32 v{o0}, v{ur}, v{ar}", f"v_fma_f32 v{o0}, {sg}v{ui}, v{ai}, v{o0}",
            f"v_fma_f32 v{o0}, v{vr}, v{br}, v{o0}", f"v_fma_f32 v{o0}, {sg}v{vi}, v{bi}, v{o0}",
            f"v_mul_f32 v{o1}, v{ui}, v{ar}", f"v_fma_f32 v{o1}, {ns}v{ur}, v{ai}, v{o1}",
            f"v_fma_f32 v{o1}, v{vi}, v{br}, v{o1}", f"v_fma_f32 v{o1}, {ns}v{vr}, v{bi}, v{o1}",
            f"v_mul_f32 v{o0}, 0.5, v{o0}", f"v_mul_f32 v{o1}, 0.5, v{o1}",
            f"v_cvt_pk_bf16_f32 v{DF+r}, v{o0}, -v{o1}")
    a.e(f"s_branch {Linv}")

def h_dma(a, SH, sLB, sD4K):
    a.e("v_lshlrev_b32 v217, 4, v1")
    a.e(f"s_add_u32 s74, s{sLB}, 32", "s_mov_b32 m0, s74")
    for ch in range(4): a.e(f"buffer_load_dwordx4 v217, s[{SH}:{SH+3}], s{sD4K} offen offset:{1024*ch} lds" + NT())
    a.e(f"s_add_u32 s74, s{sLB}, 4192", f"s_add_u32 s75, s{sD4K}, 2", "s_mov_b32 m0, s74")
    for ch in range(4): a.e(f"buffer_load_dwordx4 v217, s[{SH}:{SH+3}], s75 offen offset:{1024*ch} lds" + NT())
    a.e("v_mov_b32 v215, 0x7ffffff0", f"v_mov_b32 v216, s{sD4K}", "v_cmp_eq_u32 vcc, 15, v1", "v_cndmask_b32 v215, v215, v216, vcc",
        f"buffer_load_short_d16_hi v210, v215, s[{SH}:{SH+3}], 0 offen")

def gen_B(a):
    SH, STT, SKVT = 80, 84, 32
    a.e(f"s_setprio {OPT['prioB']}") if OPT['prioB'] else None
    srd(a, SH, P_SSMK, P_SSMK+1, 4*MB); srd(a, STT, P_WS, P_WS+1, 4*MB, add=WS_TT); srd(a, SKVT, P_WS, P_WS+1, 4*MB, add=WS_KVT)
    sCBK, sSUB, sD, sD4K, sLB, sDV, sF1, sF2, sMASK = 40, 41, 42, 43, 44, 45, 46, 47, 72
    a.e(f"s_and_b32 s{sCBK}, s2, 7", f"s_lshl_b32 s{sCBK}, s{sCBK}, 1", "s_bfe_u32 s73, s2, 0x10003", f"s_add_u32 s{sCBK}, s{sCBK}, s73",
        f"s_lshr_b32 s{sSUB}, s2, 4",
        f"s_lshl_b32 s{sD}, s{sCBK}, 4", f"s_add_u32 s{sD}, s{sD}, s{sSUB}", f"s_lshl_b32 s{sD}, s{sD}, 2", f"s_add_u32 s{sD}, s{sD}, s3",
        f"s_lshl_b32 s{sD4K}, s{sD}, 12", f"s_mul_i32 s{sLB}, s3, {LB_STRIDE}", f"s_mov_b32 s{sMASK}, 0xffff0000")
    a.e(f"s_lshl_b32 s73, s{sCBK}, 10", f"s_add_u32 s{sF1}, s73, {SY_B1}", f"s_lshl_b32 s74, s{sSUB}, 6", "s_add_u32 s73, s73, s74", f"s_add_u32 s{sF2}, s73, {SY_B2}")
    a.e(f"s_and_b32 s73, s{sD}, 0xfffffffe", "s_lshl_b32 s73, s73, 1", f"s_load_dword s{sDV}, s[{P_SSMD}:{P_SSMD+1}], s73")
    stamp(a, 0, True); stamp(a, 1)
    Lidle, Lsetup = newlbl("bidle"), newlbl("bsetup")
    a.e(f"s_cmp_lg_u32 s{sACT}, 0", f"s_cbranch_scc1 {Lidle}")
    emit_B1(a)
    h_dma(a, SH, sLB, sD4K)
    a.e(f"s_branch {Lsetup}")
    a.label(Lidle)
    fin_epoch(a)
    a.e("v_and_b32 v12, 15, v1", "v_lshlrev_b32 v12, 6, v12", f"v_add_u32 v12, s{sF1}, v12",
        f"buffer_load_dword v13, v12, s[{S_SYN}:{S_SYN+3}], 0 offen sc1", "s_waitcnt vmcnt(0)")
    h_dma(a, SH, sLB, sD4K)
    a.label(Lsetup)
    stamp(a, 12)
    LN16, B_, G4, VA, VB, VE, VS2, T = 2, 3, 4, 5, 9, 10, 11, 12
    a.e(f"v_lshlrev_b32 v{T}, 2, v1",
        f"v_add_u32 v{T+1}, {4160-32}, v{T}", "v_cmp_le_u32 vcc, 8, v1", f"v_cndmask_b32 v{T+3}, v{T}, v{T+1}, vcc",
        f"v_add_u32 v{T+1}, 8288, v{T}", "v_cmp_le_u32 vcc, 16, v1", f"v_cndmask_b32 v{T+3}, v{T+3}, v{T+1}, vcc",
        f"v_add_u32 v211, s{sLB}, v{T+3}")
    a.e(f"v_lshlrev_b32 v{T}, 3, v1", f"v_add_u32 v{T}, s{sLB}, v{T}", "v_mov_b32 v16, 0", "v_mov_b32 v17, 0", f"ds_write_b64 v{T}, v[16:17] offset:8288")
    a.e(f"v_and_b32 v{B_}, 15, v1", f"v_lshrrev_b32 v{G4}, 4, v1")
    a.e(f"v_and_b32 v{VA}, 1, v{B_}", f"v_xor_b32 v{VA}, 1, v{VA}", f"v_mul_u32_u24 v{VA}, 4160, v{VA}",
        f"v_add_u32 v{VA+1}, 1, v{B_}", f"v_lshrrev_b32 v{VA+1}, 1, v{VA+1}", f"v_lshl_add_u32 v{VA}, v{VA+1}, 2, v{VA}",
        f"v_lshlrev_b32 v{VA+1}, 4, v{G4}", f"v_sub_u32 v{VA}, v{VA}, v{VA+1}",
        f"s_add_u32 s73, s{sLB}, 16", f"v_add_u32 v{VA}, s73, v{VA}")
    for pp in range(1, 4): a.e(f"v_add_u32 v{VA+pp}, {1024*pp}, v{VA}")
    a.e(f"v_lshlrev_b32 v{VB}, 5, v{B_}", f"v_lshl_add_u32 v{VB}, v{G4}, 4, v{VB}",
        f"s_add_u32 s73, s{sLB}, {8800-480}", f"v_add_u32 v{VB}, s73, v{VB}")
    a.e(f"v_lshrrev_b32 v18, 1, v{G4}", f"v_lshlrev_b32 v19, 4, v18", f"v_lshl_add_u32 v19, v{B_}, 5, v19",
        f"v_and_b32 v18, 1, v{G4}", "v_xor_b32 v18, 1, v18", f"v_lshl_add_u32 v19, v18, 3, v19",
        f"s_add_u32 s73, s{sLB}, 8800", f"v_add_u32 v214, s73, v19")
    a.e(f"v_and_b32 v18, 1, v{G4}", f"v_lshlrev_b32 v{VS2}, 9, v18", f"v_lshl_add_u32 v{VS2}, v{B_}, 5, v{VS2}",
        f"v_lshrrev_b32 v18, 1, v{G4}", f"v_lshl_add_u32 v{VS2}, v18, 4, v{VS2}", f"v_add_u32 v{VS2}, s{sD4K}, v{VS2}")
    a.e(f"v_lshlrev_b32 v{LN16}, 4, v1", f"s_add_u32 s73, s{sLB}, 8800", f"v_add_u32 v19, s73, v{LN16}")
    a.e("s_waitcnt lgkmcnt(0)",
        f"s_and_b32 s73, s{sD}, 1", f"s_lshl_b32 s74, s{sDV}, 16", f"s_and_b32 s75, s{sDV}, 0xffff0000",
        "s_cmp_eq_u32 s73, 1", f"s_cselect_b32 s{sDV}, s75, s74")
    a.e(f"v_and_b32 v{T}, 15, v1", f"v_lshlrev_b32 v{T}, 6, v{T}", f"v_add_u32 v{T}, s{sF1}, v{T}")
    stamp(a, 5)
    wait_flags(a, T, 1, T+1, 73)
    stamp(a, 6)
    VE = 214
    ACC = 20
    SETS = [(52, 84), (116, 148)]
    U = SETS[1][1]
    for ch in range(4):
        a.e(f"buffer_load_dwordx4 {v(U+4*ch,4)}, v{LN16}, s[{SKVT}:{SKVT+3}], s{sD4K} offen offset:{1024*ch} sc1")
    def reads(rho, st):
        A, B = SETS[st]
        out = []
        for p in range(8):
            o = 8*rho + 128*(p & 1)
            out.append(f"ds_read2_b32 {v(A+4*p,2)}, v{VA+(p>>1)} offset0:{o} offset1:{o+1}")
            out.append(f"ds_read2_b32 {v(A+4*p+2,2)}, v{VA+(p>>1)} offset0:{o+2} offset1:{o+3}")
        outb = [f"ds_read_b128 {v(B+4*q,4)}, v{VB} offset:{512*q+32*(15-rho)}" for q in range(8)]
        return out, outb
    rhos = list(range(1, 16, 2))
    ra, rb = reads(rhos[0], 0)
    a.e("s_waitcnt vmcnt(4)", "ds_write_b32 v211, v210")
    a.e("s_waitcnt lgkmcnt(0)")
    for r in ra: a.e(r)
    for ch in range(4):
        a.e(f"s_waitcnt vmcnt({3-ch})", f"ds_write_b128 v19, {v(U+4*ch,4)} offset:{1024*ch}")
    a.e("s_waitcnt lgkmcnt(0)")
    for r in rb: a.e(r)
    Lnq = newlbl("noq")
    a.e(f"s_cmp_lg_u32 s{sACT}, 0", f"s_cbranch_scc1 {Lnq}")
    emit_B3_pre(a)
    a.label(Lnq)
    stamp(a, 7)
    for ci, rho in enumerate(rhos):
        st = ci & 1
        A, B = SETS[st]
        if ci+1 < len(rhos):
            ra, rb = reads(rhos[ci+1], st ^ 1); nxt = ra[0:2] + rb + ra[2:]
        else:
            nxt = [f"ds_read_b64 {v(SETS[st^1][0]+2*j,2)}, v{VE} offset:{512*j}" for j in range(8)]
        a.e("s_waitcnt lgkmcnt(0)")
        n = 0
        for p in range(8):
            for q in range(8-p):
                j = p+q
                c = "0" if (ci == 0 and p == 0) else v(ACC+4*j, 4)
                a.e(f"v_mfma_f32_16x16x32_bf16 {v(ACC+4*j,4)}, {v(A+4*p,4)}, {v(B+4*q,4)}, {c}")
                if n < len(nxt): a.e(nxt[n])
                n += 1
    KVR = SETS[0][0]; TMv = 116
    a.e("s_waitcnt lgkmcnt(0)")
    stamp(a, 8)
    for jp in range(4):
        base = TMv + 16*(jp & 1)
        for hh in range(2):
            j = 2*jp+hh
            w0, w1 = KVR+2*j, KVR+2*j+1
            t = base+4
            a.e(f"v_and_b32 v{t}, s{sMASK}, v{w1}", f"v_lshlrev_b32 v{t+1}, 16, v{w1}",
                f"v_and_b32 v{t+2}, s{sMASK}, v{w0}", f"v_lshlrev_b32 v{t+3}, 16, v{w0}")
            for r in range(4):
                a.e(f"v_fma_f32 v{t+r}, v{t+r}, s{sDV}, v{ACC+4*j+r}")
            a.e(f"v_cvt_pk_bf16_f32 v{base+2*hh}, v{t}, v{t+1}", f"v_cvt_pk_bf16_f32 v{base+2*hh+1}, v{t+2}, v{t+3}")
        a.e(f"v_permlane16_swap_b32 v{base}, v{base+2}", f"v_permlane16_swap_b32 v{base+1}, v{base+3}")
        a.e(f"buffer_store_dwordx4 {v(base,4)}, v{VS2}, s[{STT}:{STT+3}], 0 offen offset:{1024*jp} sc1")
    signal(a, sF2, 12)
    stamp(a, 9)
    a.e(f"s_cmp_lg_u32 s{sACT}, 0", "s_cbranch_scc1 L_fin")
    emit_B3(a)
    a.e("s_branch L_fin")

def gen_kernel():
    a = Asm(); a.name = "p"
    a.e("s_cmp_ge_u32 s2, 512", "s_cbranch_scc1 L_exit")
    if OPT.get("spinT"): a.e("s_memrealtime s[94:95]")
    if gen.PROF: a.e("s_memrealtime s[98:99]", "s_waitcnt lgkmcnt(0)", "v_writelane_b32 v247, s98, 13")
    a.e(f"s_load_dwordx16 s[4:19], s[0:1], 0", f"s_load_dwordx8 s[20:27], s[0:1], 64")
    a.e("v_lshrrev_b32 v1, 6, v0", "v_readfirstlane_b32 s3, v1", "v_and_b32 v1, 63, v0", "s_waitcnt lgkmcnt(0)")
    srd(a, S_SYN, P_WS, P_WS+1, 1*MB, add=WS_SYNC)
    a.e(f"s_mov_b32 s48, {WS_SYNC+SY_E}", f"s_load_dword s{S_TGT}, s[{P_WS}:{P_WS+1}], s48")
    a.e("s_mov_b32 s98, 4096", "s_mov_b32 s99, 8192", "s_mov_b32 s100, 12288")
    a.e(f"s_and_b32 s{sCU}, s2, 255", f"s_bitcmp0_b32 s2, 3", f"s_cselect_b32 s{sACT}, 1, 0",
        f"s_lshr_b32 s48, s{sCU}, 4", "s_lshl_b32 s48, s48, 3", f"s_and_b32 s49, s{sCU}, 7", "s_add_u32 s48, s48, s49",
        f"s_and_b32 s{sCBKT}, s48, 15", "s_lshr_b32 s48, s48, 4", "s_lshl_b32 s48, s48, 1", "s_lshr_b32 s49, s2, 8", f"s_add_u32 s{sSUBT}, s48, s49")
    a.e("s_cmp_ge_u32 s2, 256", "s_cbranch_scc1 L_A")
    gen_B(a)
    a.label("L_A")
    gen_A(a)
    a.label("L_fin")
    if gen.PROF:
        a.e("s_waitcnt vmcnt(0)")
        stamp(a, 14); stamp(a, 15, True)
        prof_dump(a)
    if OPT.get("spinT"):
        a.label("L_spin")
        a.e("s_memrealtime s[92:93]", "s_waitcnt lgkmcnt(0)", "s_sub_u32 s92, s92, s94", f"s_cmp_lt_u32 s92, {OPT['spinT']}", "s_cbranch_scc1 L_spin")
    a.label("L_exit")
    a.e("s_endpgm")
    return a

def prof_dump(a):
    if OPT.get("dbgwg", -1) >= 0:
        L = newlbl("nodbg")
        a.e(f"s_cmp_lg_u32 s2, {OPT['dbgwg']}", f"s_cbranch_scc1 {L}", "s_cmp_lg_u32 s3, 0", f"s_cbranch_scc1 {L}")
        a.e("v_readlane_b32 s36, v247, 1", "v_readlane_b32 s37, v247, 13", "v_mov_b32 v250, s36", "v_mov_b32 v251, s37",
            "v_cmp_eq_u32 vcc, 0, v1", "v_cndmask_b32 v250, v250, v251, vcc", "v_cmp_eq_u32 vcc, 13, v1", "v_cndmask_b32 v250, v250, v251, vcc",
            "v_cmp_eq_u32 vcc, 15, v1", "v_cndmask_b32 v250, v250, v251, vcc", "v_sub_u32 v250, v247, v250",
            f"s_mov_b32 s32, s{P_DBG}", f"s_mov_b32 s33, s{P_DBG+1}", "s_mov_b32 s34, 256", "s_mov_b32 s35, 0x00020000",
            "v_lshlrev_b32 v251, 2, v1", "s_mov_b64 exec, 0xffff", "buffer_store_dword v250, v251, s[32:35], 0 offen", "s_waitcnt vmcnt(0)", "s_mov_b64 exec, -1")
        a.label(L)
        return

    a.e(f"s_add_u32 s32, s{P_WS}, {gen.WS_PROF}", f"s_addc_u32 s33, s{P_WS+1}, 0", f"s_mov_b32 s34, {MB}", "s_mov_b32 s35, 0x00020000")
    a.e("s_lshl_b32 s36, s2, 2", "s_add_u32 s36, s36, s3", "s_lshl_b32 s36, s36, 6",
        "v_lshlrev_b32 v250, 2, v1", "v_add_u32 v250, s36, v250", "s_mov_b64 exec, 0xffff",
        "buffer_store_dword v247, v250, s[32:35], 0 offen")
    if OPT.get("fine"):
        a.e("v_add_u32 v250, 0x40000, v250", "buffer_store_dword v246, v250, s[32:35], 0 offen")
    a.e("s_waitcnt vmcnt(0)")
PROFREGS = []

def build(path):
    a = gen_kernel()
    name = "concat_heads__spectral_gfnet__ssm_conv_h3__prompt_kernel"
    s = open("concat_heads__spectral_gfnet__ssm_conv_h3__prompt.s.ref").read().split("; Override")[0]
    s += f"; @launch grid=(512,1,1) block=(256,1,1) lds={LDS_BYTES}\n"
    s += '.amdgcn_target "amdgcn-amd-amdhsa--gfx950"\n' + gen.header(name) + a.text() + gen.descriptor(name, 256, 102)
    s = s.replace(" lds nt", " nt lds")
    open(path, "w").write(s)
    return s

if __name__ == "__main__":
    out = sys.argv[1] if len(sys.argv) > 1 else "pers.s"
    gen.PROF = "prof" in sys.argv[2:]
    for x in sys.argv[2:]:
        if "=" in x:
            k, val = x.split("="); OPT[k] = int(val)
    if OPT["wsend"]:
        base = OPT["wsend"]*MB
        WS_I1, WS_KVT, WS_I2, WS_TT, WS_SYNC = base, base+4*MB, base+8*MB, base+12*MB, base+20*MB
    s = build(out)
    print(out, len(s))
```

```python
import sys
from asmgen import *
import gen
from gen import srd, MB, WS_I1, WS_KVT, WS_I2, WS_TT, KA

PHASE = [1]
def fstamp(a, i):
    if OPT.get("fine") != PHASE[0]: return
    a.e('s_memtime s[96:97]', 's_waitcnt lgkmcnt(0)', f'v_writelane_b32 v246, s96, {i}')
def stamp(a, i, real=False):
    if not gen.PROF: return
    a.e('s_memrealtime s[96:97]' if real else 's_memtime s[96:97]', 's_waitcnt lgkmcnt(0)', f'v_writelane_b32 v247, s96, {i}')

WBYTES = 2048*513*2
LB_STRIDE = 12896
LDS_BYTES = 53248
SPIN_LIMIT = 400000
OPT = dict(prioA=0, prioB=0, sleep=0, nt=1, wsend=0, ntout=1, ntw=1, wlate=1, hlate=1, qA=1, fsa=6, fsb=6, shrink=0, loc=1, forceloc=-1, ldloc=1, bdelay=0, earlypub=1, wpos=1, optst=1, locflag=1, hearly=1, twoflag=1, pA1i=-1, pB1=0)
def LDL(): return {0: ' sc1', 1: ' nt', 2: ' sc1 nt'}[OPT['ldloc']]
def FA(): return OPT['fsa']
def FB(): return OPT['fsb']
def NT(): return ' nt' if OPT['nt'] else ''
def NTO(): return {0: '', 1: ' nt', 2: ' sc1', 3: ' sc1 nt'}[OPT['ntout']]

P_X, P_WR, P_WI, P_Q, P_K, P_V, P_SHK, P_SSMK, P_SSMD, P_OUT, P_DBG, P_WS = 4, 6, 8, 10, 12, 14, 16, 18, 20, 22, 24, 26
S_DBG = 28
def eidx(r): return (r & 3) + 8*(r >> 2)

_lbl = [0]
def newlbl(p):
    _lbl[0] += 1
    return f"L_{p}_{_lbl[0]}"

WS_SYNC = 20*MB
S_SYN = 28
S_TGT = 101
SY_E, SY_A1, SY_A2, SY_B1, SY_B2 = 0, 4096, 4096+16384, 4096+32768, 4096+49152
sACT, sCBKT, sSUBT, sCU = 88, 89, 90, 91
sLOC, sXEXP = 79, 0
S_DBG = 12
def signal(a, s_off, vt, nafter=0, bloc=False):
    L = newlbl("sig")
    a.e(f"s_waitcnt vmcnt({nafter})", "s_barrier", "s_cmp_lg_u32 s3, 0", f"s_cbranch_scc1 {L}",
        f"v_mov_b32 v{vt}, s{s_off}", f"v_mov_b32 v{vt+1}, s{S_TGT}", "s_mov_b64 exec, 1")
    st = f"buffer_store_dword v{vt+1}, v{vt}, s[{S_SYN}:{S_SYN+3}], 0 offen"
    if bloc and OPT["locflag"]:
        dual_store(a, [st])
    else:
        a.e(st + " sc1")
    a.e("s_mov_b64 exec, -1")
    a.label(L)

def wait_flags(a, vaddr, nload, vt, s_cnt, pre_barrier=None, solo=False):
    L = newlbl("poll"); Ls = newlbl("pdone"); Lr = newlbl("prest")
    if not solo: a.e("s_cmp_lg_u32 s3, 0", f"s_cbranch_scc1 {Ls}")
    a.e(f"s_mov_b32 s{s_cnt}, 0")
    a.label(L)
    offs = ["0", "s98", "s99", "s100"]
    for i in range(nload):
        a.e(f"buffer_load_dword v{vt+i}, v{vaddr}, s[{S_SYN}:{S_SYN+3}], {offs[i]} offen sc1")
    a.e(f"s_add_u32 s{s_cnt}, s{s_cnt}, 1", "s_waitcnt vmcnt(0)")
    for i in range(nload):
        a.e(f"v_xor_b32 v{vt+i}, s{S_TGT}, v{vt+i}")
    for i in range(1, nload):
        a.e(f"v_or_b32 v{vt}, v{vt}, v{vt+i}")
    if OPT["shrink"]:
        a.e(f"v_cmp_ne_u32 vcc, 0, v{vt}", "s_and_b64 exec, exec, vcc", f"s_cbranch_execz {Lr}")
    else:
        a.e(f"v_cmp_ne_u32 vcc, 0, v{vt}", f"s_cbranch_vccz {Lr}")
    if OPT["sleep"]: a.e(f"s_sleep {OPT['sleep']}")
    a.e(f"s_cmp_lt_u32 s{s_cnt}, {SPIN_LIMIT}", f"s_cbranch_scc1 {L}")
    a.label(Lr)
    if OPT["shrink"]: a.e("s_mov_b64 exec, -1")
    a.label(Ls)
    if pre_barrier: a.e(pre_barrier)
    if not solo: a.e("s_barrier")

SY_ID = 4096 + 65536
SY_B1B = 4096 + 98304
LOCW = 53244
def loc_publish(a):
    L = newlbl("pub")
    a.e("s_getreg_b32 s92, hwreg(HW_REG_XCC_ID)", "s_and_b32 s92, s92, 15", f"s_lshl_b32 s{sXEXP}, s{S_TGT}, 4", f"s_or_b32 s{sXEXP}, s{sXEXP}, s92")
    a.e("s_cmp_lg_u32 s3, 0", f"s_cbranch_scc1 {L}")
    a.e("s_lshr_b32 s92, s2, 3", f"s_lshr_b32 s93, s{sCU}, 4", "s_add_u32 s93, s93, 32", "s_cmp_ge_u32 s2, 256", "s_cselect_b32 s92, s93, s92",
        "s_and_b32 s93, s2, 7", "s_mul_i32 s93, s93, 48", "s_add_u32 s92, s92, s93", "s_lshl_b32 s92, s92, 6", f"s_add_u32 s92, s92, {SY_ID}",
        "v_mov_b32 v10, s92", f"v_mov_b32 v11, s{sXEXP}", "s_mov_b64 exec, 1",
        f"buffer_store_dword v11, v10, s[{S_SYN}:{S_SYN+3}], 0 offen sc1", "s_mov_b64 exec, -1")
    a.label(L)

def loc_issue(a, vt):
    a.e(f"v_min_u32 v{vt}, 47, v1", "s_and_b32 s93, s2, 7", "s_mul_i32 s93, s93, 48", f"v_add_u32 v{vt}, s93, v{vt}",
        f"v_lshlrev_b32 v{vt}, 6, v{vt}", f"v_add_u32 v{vt}, {SY_ID}, v{vt}")
    L = newlbl("li")
    a.e("s_cmp_lg_u32 s3, 0", f"s_cbranch_scc1 {L}")
    a.e(f"buffer_load_dword v{vt+1}, v{vt}, s[{S_SYN}:{S_SYN+3}], 0 offen sc1")
    a.label(L)

def loc_resolve(a, vt, barrier=True, nafter=0):
    L, Ld, Ls = newlbl("locp"), newlbl("locd"), newlbl("locs")
    a.e("s_cmp_lg_u32 s3, 0", f"s_cbranch_scc1 {Ls}")
    if OPT["forceloc"] >= 0:
        a.e(f"s_waitcnt vmcnt({nafter})", f"s_mov_b32 s93, {OPT['forceloc']}")
    else:
        a.e("s_mov_b32 s92, 0", f"s_waitcnt vmcnt({nafter})")
        a.label(L)
        a.e(f"v_xor_b32 v{vt+2}, s{sXEXP}, v{vt+1}", f"v_lshrrev_b32 v{vt+3}, 4, v{vt+2}", "s_add_u32 s92, s92, 1",
            f"v_cmp_ne_u32 vcc, 0, v{vt+3}", f"s_cbranch_vccz {Ld}",
            f"s_cmp_ge_u32 s92, {SPIN_LIMIT}", f"s_cbranch_scc1 {Ld}",
            f"buffer_load_dword v{vt+1}, v{vt}, s[{S_SYN}:{S_SYN+3}], 0 offen sc1", "s_waitcnt vmcnt(0)", f"s_branch {L}")
        a.label(Ld)
        a.e(f"v_cmp_ne_u32 vcc, 0, v{vt+2}", "s_cmp_eq_u64 vcc, 0", "s_cselect_b32 s93, 1, 0")
    a.e(f"s_mov_b32 s{sLOC}, s93", f"v_mov_b32 v{vt+2}, {LOCW}", f"v_mov_b32 v{vt+3}, s93", f"ds_write_b32 v{vt+2}, v{vt+3}", "s_waitcnt lgkmcnt(0)")
    a.label(Ls)
    if barrier:
        a.e("s_barrier")
        loc_read(a, vt)

def loc_read(a, vt):
    a.e(f"v_mov_b32 v{vt+2}, {LOCW}", f"ds_read_b32 v{vt+3}, v{vt+2}", "s_waitcnt lgkmcnt(0)", f"v_readfirstlane_b32 s{sLOC}, v{vt+3}")

def dual_store(a, lines):
    L1, L2 = newlbl("stg"), newlbl("stl")
    a.e(f"s_cmp_eq_u32 s{sLOC}, 0", f"s_cbranch_scc1 {L1}")
    for l in lines: a.e(l)
    a.e(f"s_branch {L2}")
    a.label(L1)
    for l in lines: a.e(l + " sc1" if "buffer_store" in l else l)
    a.label(L2)

def fin_epoch(a):
    a.e("s_waitcnt lgkmcnt(0)", f"s_add_u32 s{S_TGT}, s{S_TGT}, 1")

def bump(a, s_off, vt):
    a.e(f"v_mov_b32 v{vt}, s{s_off}", f"v_mov_b32 v{vt+1}, s{S_TGT}", "s_mov_b64 exec, 1",
        f"buffer_store_dword v{vt+1}, v{vt}, s[{S_SYN}:{S_SYN+3}], 0 offen sc1", "s_mov_b64 exec, -1")

F_M, F_G, F_IN0, F_IN1, F_OUTOFF, F_WR, F_RD0, F_RD1, F_MM = 2, 3, 4, 5, 6, 7, 8, 9, 10
F_T = 11
F_IN, F16RE, F16IM, F_TWC, F_TWS, F_DRE, F_DIM, F_P, F_TMP, F32RE, F32IM = 16, 48, 52, 56, 88, 120, 136, 152, 168, 176, 192
SI_OFF, SO_OFF = 52, 68
SO_LIST = [68, 69, 70, 71, 76, 77, 78, 79]

def fft512_addr(a, s_sa, s_cb):
    a.e(f"v_and_b32 v{F_M}, 15, v1", f"v_lshrrev_b32 v{F_G}, 4, v1")
    a.e(f"v_lshlrev_b32 v{F_IN0}, 20, v{F_G}", f"v_lshl_add_u32 v{F_IN0}, v{F_M}, 2, v{F_IN0}", f"v_add_u32 v{F_IN1}, {4*8192}, v{F_IN0}")
    a.e(f"s_lshl_b32 s48, s{s_sa}, 11", f"s_lshl_b32 s49, s{s_cb}, 6", "s_add_u32 s48, s48, s49",
        "s_lshl_b32 s50, s3, 16", "s_add_u32 s48, s48, s50")
    for aa in range(4):
        for i in range(4):
            a.e(f"s_add_u32 s{SI_OFF+4*aa+i}, s48, {(32*i+aa)*8192}")

def fft512_loads(a, SIN, mod=""):
    for hh in range(2):
        for aa in range(4):
            for i in range(4):
                a.e(f"buffer_load_dword v{F_IN+16*hh+4*aa+i}, v{F_IN0+hh}, s[{SIN}:{SIN+3}], s{SI_OFF+4*aa+i} offen {mod}")

def fft512_addr2(a, s_sa, s_cb, orow, ostr):
    a.e(f"s_mov_b32 s51, {16*ostr}", f"v_mul_lo_u32 v{F_OUTOFF}, v{F_M}, s51", f"v_lshl_add_u32 v{F_OUTOFF}, v{F_G}, 4, v{F_OUTOFF}")
    a.e(f"s_mul_i32 s48, s{s_sa}, {orow}", f"s_lshl_b32 s49, s{s_cb}, 6", "s_add_u32 s48, s48, s49",
        f"s_mul_i32 s50, s3, {4*ostr}", "s_add_u32 s48, s48, s50")
    for b in range(4):
        for h in range(2):
            a.e(f"s_add_u32 s{SO_LIST[2*b+h]}, s48, {(b+256*h)*ostr}")
    a.e(f"v_and_b32 v{F_T}, 7, v{F_M}", "s_lshl_b32 s50, s3, 1", f"v_xor_b32 v{F_T+1}, s50, v{F_T}",
        f"v_lshlrev_b32 v{F_WR}, 4, v{F_T+1}", f"v_lshl_add_u32 v{F_WR}, v{F_M}, 7, v{F_WR}",
        f"v_lshl_add_u32 v{F_WR}, v{F_G}, 13, v{F_WR}")
    a.e(f"v_xor_b32 v{F_T+1}, v{F_G}, v{F_T}", f"v_lshlrev_b32 v{F_RD0}, 4, v{F_T+1}",
        f"v_lshl_add_u32 v{F_RD0}, v{F_M}, 7, v{F_RD0}", "s_lshl_b32 s50, s3, 13",
        f"v_add_u32 v{F_RD0}, s50, v{F_RD0}", f"v_xor_b32 v{F_RD1}, 64, v{F_RD0}")

def fft512_consts(a):
    T, TMP = F_T, F_TMP
    XS, XB = T, T+1
    a.e(f"v_cvt_f32_u32 v{XS}, v{F_M}", f"v_mul_f32 v{XS}, {f32hex(1/32)}, v{XS}",
        f"v_cvt_f32_u32 v{T+2}, v{F_G}", f"v_mul_f32 v{T+2}, 4.0, v{T+2}",
        f"v_mul_f32 v{XB}, v{T+2}, v{XS}")
    a.e(f"v_and_b32 v{F_MM}, 1, v{F_M}", f"v_mul_u32_u24 v{F_MM}, 0x8000, v{F_MM}",
        f"v_lshl_or_b32 v{F_MM}, v{F_MM}, 16, v{F_MM}", "s_mov_b32 s50, 0x80008000")
    for i in range(4):
        x = TMP; cs = TMP+1; sn = TMP+2; x2 = TMP+3; cs2 = TMP+4; sn2 = TMP+5
        a.e(f"v_fmamk_f32 v{x}, v{XS}, {f32hex(float(i))}, v{XB}" if i else f"v_mov_b32 v{x}, v{XB}")
        a.e(f"v_add_f32 v{x2}, v{x}, v{x}")
        a.e(f"v_cos_f32 v{cs}, v{x}", f"v_sin_f32 v{sn}, v{x}", f"v_cos_f32 v{cs2}, v{x2}", f"v_sin_f32 v{sn2}, v{x2}")
        a.e(f"v_cvt_pk_bf16_f32 v{F32RE+i}, v{cs}, v{sn}", f"v_cvt_pk_bf16_f32 v{F32IM+i}, -v{sn}, v{cs}",
            f"v_cvt_pk_bf16_f32 v{F16RE+i}, v{cs2}, v{sn2}", f"v_cvt_pk_bf16_f32 v{F16IM+i}, -v{sn2}, v{cs2}")
    for base in (F32RE, F32IM):
        for i in range(4):
            a.e(f"v_xor_b32 v{base+4+i}, v{F_MM}, v{base+i}")
        for t in range(2):
            for i in range(4):
                src = base+4*t+i
                if i & 1: a.e(f"v_xor_b32 v{base+8+4*t+i}, s50, v{src}")
                else:     a.e(f"v_mov_b32 v{base+8+4*t+i}, v{src}")
    a.e(f"v_cvt_f32_u32 v{TMP}, s3", f"v_mul_f32 v{TMP}, {f32hex(8/512)}, v{TMP}")
    for r in range(4):
        a.e(f"v_add_f32 v{TMP+4+r}, {f32hex(float(r)) if r else 0}, v{T+2}")
    for aa in range(8):
        a.e(f"v_add_f32 v{TMP+1}, {f32hex(aa/512) if aa else 0}, v{TMP}")
        for r in range(4):
            a.e(f"v_mul_f32 v{T+3+(r&1)}, v{TMP+1}, v{TMP+4+r}",
                f"v_cos_f32 v{F_TWC+4*aa+r}, v{T+3+(r&1)}", f"v_sin_f32 v{F_TWS+4*aa+r}, v{T+3+(r&1)}")

def fft512_compute(a, SOUT, neg_im, nafter, stmod, st0, fs=0, hook=None):
    TMP = F_TMP
    stamp(a, st0)
    for hh in range(2):
        fstamp(a, fs+5*hh)
        for aa in range(4):
            a.e(f"s_waitcnt vmcnt({28-16*hh-4*aa+nafter})")
            a.e(f"v_mfma_f32_16x16x32_bf16 {v(F_DRE+4*aa,4)}, {v(F16RE,4)}, {v(F_IN+16*hh+4*aa,4)}, 0",
                f"v_mfma_f32_16x16x32_bf16 {v(F_DIM+4*aa,4)}, {v(F16IM,4)}, {v(F_IN+16*hh+4*aa,4)}, 0")
        if hh == 1:
            stamp(a, st0+1)
            if hook: hook()
        fstamp(a, fs+5*hh+1)
        for aa in range(4):
            for p in range(2):
                re, im = F_DRE+4*aa+2*p, F_DIM+4*aa+2*p
                tc, ts = F_TWC+16*hh+4*aa+2*p, F_TWS+16*hh+4*aa+2*p
                t0, t1 = TMP+4*p, TMP+4*p+2
                a.e(f"v_pk_mul_f32 {v(t0,2)}, {v(re,2)}, {v(tc,2)}",
                    f"v_pk_mul_f32 {v(t1,2)}, {v(im,2)}, {v(tc,2)}",
                    f"v_pk_fma_f32 {v(t0,2)}, {v(im,2)}, {v(ts,2)}, {v(t0,2)}",
                    f"v_pk_fma_f32 {v(t1,2)}, {v(re,2)}, {v(ts,2)}, {v(t1,2)} neg_lo:[1,0,0] neg_hi:[1,0,0]")
                for e in range(2):
                    r = 2*p+e
                    a.e(f"v_cvt_pk_bf16_f32 v{F_P+4*r+aa}, v{t0+e}, v{t1+e}")
        fstamp(a, fs+5*hh+2)
        if hh == 1: a.e(f"v_xor_b32 v{F_WR}, 16, v{F_WR}")
        for r in range(4):
            a.e(f"ds_write_b128 v{F_WR}, {v(F_P+4*r,4)} offset:{r*2048}")
    a.e("s_waitcnt lgkmcnt(0)")
    fstamp(a, fs+8)
    a.e("s_barrier")
    fstamp(a, fs+9)
    for b in range(4):
        a.e(f"ds_read_b128 {v(F_IN+8*b,4)}, v{F_RD0} offset:{b*2048}",
            f"ds_read_b128 {v(F_IN+8*b+4,4)}, v{F_RD1} offset:{b*2048}")
    sg = "-" if neg_im else ""
    def mf(bb):
        D0 = [F_DRE, F_DIM] if bb == 0 else [F_TWC, F_TWC+16]
        for bl in range(2):
            b = 2*bb+bl
            a.e(f"s_waitcnt lgkmcnt({6-2*b})")
            for t in range(2):
                for h in range(2):
                    for (D_, F_) in ((D0[0], F32RE), (D0[1], F32IM)):
                        d = D_+8*bl+4*h
                        c = "0" if t == 0 else v(d, 4)
                        a.e(f"v_mfma_f32_16x16x32_bf16 {v(d,4)}, {v(F_IN+8*b+4*t,4)}, {v(F_+8*h+4*t,4)}, {c}")
    def st(bb):
        D0 = [F_DRE, F_DIM] if bb == 0 else [F_TWC, F_TWC+16]
        PB = F_P if bb == 0 else F_TWS
        out = []
        for bl in range(2):
            b = 2*bb+bl
            for h in range(2):
                idx = 8*bl+4*h
                for r in range(4):
                    out.append(f"v_cvt_pk_bf16_f32 v{PB+idx+r}, v{D0[0]+idx+r}, {sg}v{D0[1]+idx+r}")
                out.append(f"buffer_store_dwordx4 {v(PB+idx,4)}, v{F_OUTOFF}, s[{SOUT}:{SOUT+3}], s{SO_LIST[2*b+h]} offen {stmod}")
        return out
    mf(0)
    n0 = len(a.lines)
    mf(1)
    m1 = a.lines[n0:]; del a.lines[n0:]
    s0 = st(0)
    k = 0
    seen = 0
    for l in m1:
        a.lines.append(l)
        if "v_mfma" in l:
            seen += 1
            if seen > 4:
                for _ in range(2):
                    if k < len(s0): a.e(s0[k]); k += 1
    while k < len(s0): a.e(s0[k]); k += 1
    fstamp(a, fs+10)
    for l in st(1): a.e(l)

IDX, G_, VG, VGW, VRR, VHR, VST, VW = 2, 3, 6, 7, 8, 12, 13, 14
CRE, CIM, TWC, TWS, WR, WI, ARE, AIM, DF, GA, HRE, HIM, GB, TMP = 16, 32, 48, 64, 80, 96, 112, 128, 144, 160, 164, 168, 172, 188
W2R, W2I, SP, PF, PF2 = 204, 220, 236, 248, 252
LW = 32768; LSC = 16384; LW2 = 49152

def w_dma(a, SWR, SWI, s_rowoff, s_mirroff, s_ldsbase, vlane16):
    a.e(f"s_mov_b32 m0, s{s_ldsbase}", f"buffer_load_dwordx4 v{vlane16}, s[{SWR}:{SWR+3}], s{s_rowoff} offen lds" + NT())
    a.e(f"s_add_u32 s93, s{s_ldsbase}, 1024", "s_mov_b32 m0, s93", f"buffer_load_dwordx4 v{vlane16}, s[{SWI}:{SWI+3}], s{s_rowoff} offen lds" + NT())
    a.e(f"s_add_u32 s92, s{s_mirroff}, 2")
    a.e(f"s_add_u32 s93, s{s_ldsbase}, 2048", "s_mov_b32 m0, s93", f"buffer_load_dwordx4 v{vlane16}, s[{SWR}:{SWR+3}], s92 offen lds" + NT())
    a.e(f"s_add_u32 s93, s{s_ldsbase}, 3072", "s_mov_b32 m0, s93", f"buffer_load_dwordx4 v{vlane16}, s[{SWI}:{SWI+3}], s92 offen lds" + NT())

def pf_loads(a, SWR, SWI, s_rowoff, s_mirroff, dst, vt):
    a.e(f"v_mov_b32 v{vt}, s{s_mirroff}", f"v_mov_b32 v{vt+1}, s{s_rowoff}", f"v_add_u32 v{vt+1}, 1024, v{vt+1}")
    a.e(f"buffer_load_short_d16_hi v{dst}, v{vt}, s[{SWR}:{SWR+3}], 0 offen",
        f"buffer_load_short_d16_hi v{dst+1}, v{vt}, s[{SWI}:{SWI+3}], 0 offen",
        f"buffer_load_short_d16_hi v{dst+2}, v{vt+1}, s[{SWR}:{SWR+3}], 0 offen",
        f"buffer_load_short_d16_hi v{dst+3}, v{vt+1}, s[{SWI}:{SWI+3}], 0 offen")

def w_lds_reads(a, vlo, vhi, dr, di):
    for (dst, o) in ((dr, 0), (di, 1024)):
        for r in range(16):
            e = eidx(r)
            if r < 8: a.e(f"ds_read_u16_d16_hi v{dst+r}, v{vlo} offset:{o+64*e}")
            else:     a.e(f"ds_read_u16_d16_hi v{dst+r}, v{vhi} offset:{o+64*(27-e)}")

def fix_w(a, dr, di, pf):
    a.e("v_cmp_eq_u32 vcc, 0, v1")
    for (r, o) in ((0, 0), (8, 2)):
        a.e(f"v_add_f32 v{TMP}, v{dr+r}, v{pf+o}", f"v_mul_f32 v{TMP}, 0.5, v{TMP}",
            f"v_sub_f32 v{TMP+1}, v{di+r}, v{pf+o+1}", f"v_mul_f32 v{TMP+1}, 0.5, v{TMP+1}",
            f"v_cndmask_b32 v{dr+r}, v{dr+r}, v{TMP}, vcc", f"v_cndmask_b32 v{di+r}, v{di+r}, v{TMP+1}, vcc")

def fft1024(a, mid=None):
    for t in range(4):
        c0 = "0" if t == 0 else v(ARE, 16); c1 = "0" if t == 0 else v(AIM, 16)
        a.e(f"v_mfma_f32_32x32x16_bf16 {v(ARE,16)}, {v(DF+4*t,4)}, {v(CRE+4*t,4)}, {c0}",
            f"v_mfma_f32_32x32x16_bf16 {v(AIM,16)}, {v(DF+4*t,4)}, {v(CIM+4*t,4)}, {c1}")
    for p in range(8):
        re, im, tc, ts = ARE+2*p, AIM+2*p, TWC+2*p, TWS+2*p
        t0 = TMP+4*(p & 1); t1 = t0+2
        a.e(f"v_pk_mul_f32 {v(t0,2)}, {v(re,2)}, {v(tc,2)}",
            f"v_pk_mul_f32 {v(t1,2)}, {v(im,2)}, {v(tc,2)}",
            f"v_pk_fma_f32 {v(t0,2)}, {v(im,2)}, {v(ts,2)}, {v(t0,2)}",
            f"v_pk_fma_f32 {v(t1,2)}, {v(re,2)}, {v(ts,2)}, {v(t1,2)} neg_lo:[1,0,0] neg_hi:[1,0,0]")
        for e in range(2):
            a.e(f"v_cvt_pk_bf16_f32 v{DF+2*p+e}, v{t0+e}, v{t1+e}")
    for t in range(4):
        if mid and t == 1: mid()
        c0 = "0" if t == 0 else v(ARE, 16); c1 = "0" if t == 0 else v(AIM, 16)
        a.e(f"v_mfma_f32_32x32x16_bf16 {v(ARE,16)}, {v(CRE+4*t,4)}, {v(DF+4*t,4)}, {c0}",
            f"v_mfma_f32_32x32x16_bf16 {v(AIM,16)}, {v(CIM+4*t,4)}, {v(DF+4*t,4)}, {c1}")

def a2_consts(a, sT):
    a.e(f"v_and_b32 v{IDX}, 31, v1", f"v_lshrrev_b32 v{G_}, 5, v1")
    XS, XB = TMP, TMP+1
    a.e(f"v_cvt_f32_u32 v{TMP+2}, v{IDX}", f"v_cvt_f32_u32 v{TMP+3}, v{G_}", f"v_mul_f32 v{TMP+3}, 4.0, v{TMP+3}",
        f"v_mul_f32 v{XS}, {f32hex(1/32)}, v{TMP+2}", f"v_mul_f32 v{XB}, v{TMP+3}, v{XS}")
    a.e(f"v_and_b32 v{TMP+4}, 1, v{IDX}", f"v_mul_u32_u24 v{TMP+4}, 0x8000, v{TMP+4}", f"v_lshl_or_b32 v{TMP+4}, v{TMP+4}, 16, v{TMP+4}")
    for t in range(2):
        for i in range(4):
            c = float(8*t+i); x = TMP+5+3*(i & 1)
            a.e(f"v_fmamk_f32 v{x}, v{XS}, {f32hex(c)}, v{XB}" if c else f"v_mov_b32 v{x}, v{XB}")
            a.e(f"v_cos_f32 v{x+1}, v{x}", f"v_sin_f32 v{x+2}, v{x}")
            a.e(f"v_cvt_pk_bf16_f32 v{CRE+4*t+i}, v{x+1}, v{x+2}", f"v_cvt_pk_bf16_f32 v{CIM+4*t+i}, -v{x+2}, v{x+1}")
    for base in (CRE, CIM):
        for i in range(8):
            a.e(f"v_xor_b32 v{base+8+i}, v{TMP+4}, v{base+i}")
    a.e(f"v_mul_f32 v{XS}, {f32hex(1/1024)}, v{TMP+2}", f"v_mul_f32 v{XB}, v{TMP+3}, v{XS}")
    for r in range(16):
        c = float(eidx(r)); x = TMP+5+(r & 1)
        a.e(f"v_fmamk_f32 v{x}, v{XS}, {f32hex(c)}, v{XB}" if c else f"v_mov_b32 v{x}, v{XB}")
        a.e(f"v_cos_f32 v{TWC+r}, v{x}", f"v_sin_f32 v{TWS+r}, v{x}")
    LO, HI, Q, AV, XA0, XA1, E0, E1 = TMP, TMP+1, TMP+2, TMP+3, TMP+4, TMP+5, TMP+6, TMP+7
    JF, KEY, T2, PO, PAR, N16, G4, CS = [TMP+8+i for i in range(8)]
    Lspec, Ldone = newlbl("ghspec"), newlbl("ghdone")
    a.e(f"v_and_b32 v{LO}, 3, v{IDX}", f"v_bfe_u32 v{HI}, v{IDX}, 2, 2")
    a.e(f"v_and_b32 v{N16}, 15, v1", f"v_lshrrev_b32 v{G4}, 4, v1")
    a.e(f"s_cmp_eq_u32 s{sT}, 0", f"s_cbranch_scc1 {Lspec}")
    a.e(f"v_cvt_f32_u32 v{T2}, s{sT}", f"v_cvt_f32_u32 v{JF}, v{HI}", f"v_fmamk_f32 v{JF}, v{JF}, {f32hex(512.0)}, v{T2}",
        f"v_mul_f32 v{JF}, {f32hex(1/2048)}, v{JF}",
        f"v_cvt_f32_u32 v{XA0}, v{G_}", f"v_add_f32 v{XA0}, v{XA0}, v{XA0}", f"v_add_f32 v{XA1}, 1.0, v{XA0}",
        f"v_mul_f32 v{XA0}, v{XA0}, v{JF}", f"v_mul_f32 v{XA1}, v{XA1}, v{JF}",
        f"v_lshlrev_b32 v{Q}, 3, v{LO}", "s_mov_b32 s50, 0x4631914C", f"v_lshrrev_b32 v{Q}, v{Q}, s50",
        f"v_mov_b32 v{AV}, 0.5", f"v_cmp_gt_u32 vcc, 16, v{IDX}", f"v_cndmask_b32 v{AV}, 0, v{AV}, vcc")
    for jj2 in range(4):
        for e in range(2):
            jj = 2*jj2+e
            xa = XA1 if jj >> 2 else XA0
            a.e(f"v_bfe_u32 v{E0+e}, v{Q}, {2*(jj&3)}, 2", f"v_cvt_f32_u32 v{E0+e}, v{E0+e}",
                f"v_fmamk_f32 v{E0+e}, v{E0+e}, {f32hex(0.25)}, v{xa}", f"v_cos_f32 v{E0+e}, v{E0+e}",
                f"v_mul_f32 v{E0+e}, v{E0+e}, v{AV}")
        a.e(f"v_cvt_pk_bf16_f32 v{GA+jj2}, v{E0}, v{E1}")
    a.e(f"v_bfe_u32 v{HI}, v{N16}, 1, 2", f"v_cvt_f32_u32 v{KEY}, v{HI}", f"v_mul_f32 v{KEY}, {f32hex(1/2048)}, v{KEY}",
        f"v_and_b32 v{JF}, 1, v{G4}", f"v_cvt_f32_u32 v{JF}, v{JF}", f"v_fmamk_f32 v{JF}, v{JF}, {f32hex(1024.0)}, v{T2}",
        f"v_add_f32 v{XA1}, {f32hex(512.0)}, v{JF}", f"v_mul_f32 v{XA0}, v{JF}, v{KEY}", f"v_mul_f32 v{XA1}, v{XA1}, v{KEY}",
        f"v_lshrrev_b32 v{CS}, 1, v{G4}", f"v_lshrrev_b32 v{AV}, 3, v{N16}", f"v_cmp_eq_u32 vcc, v{CS}, v{AV}",
        f"v_mov_b32 v{AV}, {f32hex(2.0**-21)}", f"v_cndmask_b32 v{AV}, 0, v{AV}, vcc",
        f"v_and_b32 v{PO}, 1, v{N16}")
    for part, Hd in ((0, HRE), (1, HIM)):
        w0, w1 = (0x1C, 0xBC) if part == 0 else (0x61, 0x6B)
        a.e(f"v_mov_b32 v{Q}, {w0}", f"v_mov_b32 v{PAR}, {w1}", f"v_cmp_eq_u32 vcc, 1, v{PO}", f"v_cndmask_b32 v{Q}, v{Q}, v{PAR}, vcc")
        for jj2 in range(4):
            for e in range(2):
                jj = 2*jj2+e
                xa = XA1 if jj >> 2 else XA0
                a.e(f"v_bfe_u32 v{E0+e}, v{Q}, {2*(jj&3)}, 2", f"v_cvt_f32_u32 v{E0+e}, v{E0+e}",
                    f"v_fmamk_f32 v{E0+e}, v{E0+e}, {f32hex(0.25)}, v{xa}", f"v_cos_f32 v{E0+e}, v{E0+e}",
                    f"v_mul_f32 v{E0+e}, v{E0+e}, v{AV}")
            a.e(f"v_cvt_pk_bf16_f32 v{Hd+jj2}, v{E0}, v{E1}")
    a.e(f"s_branch {Ldone}")
    a.label(Lspec)
    a.e(f"v_and_b32 v{PO}, 1, v{LO}", f"v_lshrrev_b32 v{PAR}, 1, v{LO}")
    a.e(f"v_lshlrev_b32 v{JF}, 2, v{HI}", "s_mov_b32 s50, 0x3120", f"v_lshrrev_b32 v{JF}, v{JF}, s50", f"v_and_b32 v{JF}, 15, v{JF}",
        f"v_lshlrev_b32 v{JF}, 8, v{JF}", f"v_lshlrev_b32 v{T2}, 10, v{PO}",
        f"v_cmp_eq_u32 vcc, 0, v{HI}", f"v_cndmask_b32 v{JF}, v{JF}, v{T2}, vcc", f"v_mov_b32 v{T2}, 0",
        f"v_cndmask_b32 v{Q}, v{PO}, v{T2}, vcc",
        f"v_cvt_f32_u32 v{JF}, v{JF}", f"v_mul_f32 v{JF}, {f32hex(1/2048)}, v{JF}",
        f"v_cvt_f32_u32 v{Q}, v{Q}", f"v_mul_f32 v{Q}, {f32hex(0.25)}, v{Q}",
        f"v_cvt_f32_u32 v{XA0}, v{G_}", f"v_add_f32 v{XA0}, v{XA0}, v{XA0}", f"v_add_f32 v{XA1}, 1.0, v{XA0}",
        f"v_fma_f32 v{XA0}, v{XA0}, v{JF}, v{Q}", f"v_fma_f32 v{XA1}, v{XA1}, v{JF}, v{Q}",
        f"v_cos_f32 v{XA0}, v{XA0}", f"v_cos_f32 v{XA1}, v{XA1}",
        f"v_lshrrev_b32 v{KEY}, 1, v{HI}", f"v_lshl_add_u32 v{KEY}, v{KEY}, 1, v{PAR}",
        f"v_lshrrev_b32 v{T2}, 4, v{IDX}", f"v_lshl_add_u32 v{KEY}, v{T2}, 2, v{KEY}", f"v_mov_b32 v{T2}, 0")
    for jj2 in range(4):
        for e in range(2):
            jj = 2*jj2+e
            xa = XA1 if jj >> 2 else XA0
            a.e(f"v_cmp_eq_u32 vcc, {jj&3}, v{KEY}", f"v_cndmask_b32 v{E0+e}, v{T2}, v{xa}, vcc")
        a.e(f"v_cvt_pk_bf16_f32 v{GA+jj2}, v{E0}, v{E1}")
    SAF, GS = JF, PAR
    a.e(f"v_bfe_u32 v{HI}, v{N16}, 1, 2", f"v_cvt_f32_u32 v{SAF}, v{HI}", f"v_mul_f32 v{SAF}, {f32hex(1/2048)}, v{SAF}",
        f"v_and_b32 v{GS}, 1, v{G4}", f"v_and_b32 v{PO}, 1, v{N16}",
        f"v_lshrrev_b32 v{CS}, 1, v{G4}", f"v_lshrrev_b32 v{T2}, 3, v{N16}",
        f"v_cmp_eq_u32 s[44:45], v{CS}, v{T2}", f"v_cmp_eq_u32 s[46:47], v{GS}, v{PO}", "s_and_b64 s[44:45], s[44:45], s[46:47]",
        f"v_cmp_eq_u32 s[46:47], 0, v{GS}")
    for part, Hd in ((0, HRE), (1, HIM)):
        for jj in range(8):
            sl, par, pi = jj >> 2, (jj >> 1) & 1, jj & 1
            e = E0 + (jj & 1)
            if par != part:
                a.e(f"v_mov_b32 v{e}, 0")
            else:
                if sl == 0:
                    j0, q0, a0 = 1024.0*pi, 0.5*pi, 2.0**-21
                    j1, q1, a1 = 256.0, 0.75*pi, 2.0**-20
                else:
                    j0, q0, a0 = 512.0, 0.75*pi, 2.0**-20
                    j1, q1, a1 = 768.0, 0.75*pi, 2.0**-20
                def sel(dst, x0, x1):
                    a.e(f"v_mov_b32 v{dst}, {f32hex(x1)}", f"v_mov_b32 v{AV}, {f32hex(x0)}", f"v_cndmask_b32 v{dst}, v{dst}, v{AV}, s[46:47]")
                sel(XA0, j0, j1); sel(XA1, q0 + 0.5*part, q1 + 0.5*part)
                a.e(f"v_fma_f32 v{XA0}, v{XA0}, v{SAF}, v{XA1}", f"v_cos_f32 v{XA0}, v{XA0}")
                sel(XA1, a0, a1)
                a.e(f"v_mul_f32 v{XA0}, v{XA0}, v{XA1}", f"v_mov_b32 v{XA1}, 0", f"v_cndmask_b32 v{e}, v{XA1}, v{XA0}, s[44:45]")
            if jj & 1: a.e(f"v_cvt_pk_bf16_f32 v{Hd+(jj>>1)}, v{E0}, v{E1}")
    a.label(Ldone)
    a.e("s_nop 1")


BT_S0, BT_S1, BT_S2, BT_S3 = 52, 56, 60, 64
BT_SOFF = ["0", "s68", "s69", "s70", "s71", "s76", "s77", "s78"]
BT_ROW, BT_CH, BT_MASK = 48, 49, 50
def bt_setup(a):
    a.e(f"s_lshl_b32 s{BT_ROW}, s{sSUBT}, 7", "s_lshl_b32 s51, s3, 5", f"s_add_u32 s{BT_ROW}, s{BT_ROW}, s51", f"s_lshl_b32 s{BT_CH}, s{sCBKT}, 6")
    for i in range(1, 8): a.e(f"s_mov_b32 {BT_SOFF[i]}, {4096*i}")
    a.e(f"s_mov_b32 s{BT_MASK}, 0xffff0000")

def scratch_addr(a, vdst, vcg, vrg):
    a.e(f"s_lshl_b32 s51, s{sSUBT}, 7", "s_lshr_b32 s92, s3, 1", "s_add_u32 s51, s51, s92", "s_lshl_b32 s51, s51, 12",
        f"s_lshl_b32 s92, s{sCBKT}, 7", "s_add_u32 s51, s51, s92", "s_and_b32 s92, s3, 1", "s_lshl_b32 s92, s92, 6", "s_add_u32 s51, s51, s92",
        "s_add_u32 s51, s51, 2048",
        f"v_lshlrev_b32 v{vdst}, 15, v{vcg}", f"v_lshl_add_u32 v{vdst}, v{vrg}, 4, v{vdst}", f"v_add_u32 v{vdst}, s51, v{vdst}")
SCR_SOFF = ["0", "s69", "s71", "s77"]

def emit_B1(a, shadow=None, hook=None, post_mode=None, after_stores=None, nafter=0):
    SK, SV, SSH, SKVT = BT_S0, BT_S1, BT_S2, BT_S3
    srd(a, SK, P_K, P_K+1, 4*MB); srd(a, SV, P_V, P_V+1, 4*MB); srd(a, SSH, P_SHK, P_SHK+1, 8192); srd(a, SKVT, P_OUT, P_OUT+1, 8*MB)
    bt_setup(a)
    soff = BT_SOFF; M = BT_MASK
    CG, RG, S0, CH0, VOFF, VH, VST, VSH = 2, 3, 4, 5, 6, 7, 8, 9
    a.e(f"v_and_b32 v{CG}, 15, v1", f"v_lshrrev_b32 v{RG}, 4, v1",
        f"v_lshl_add_u32 v{S0}, v{RG}, 3, s{BT_ROW}", f"v_lshl_add_u32 v{CH0}, v{CG}, 2, s{BT_CH}",
        f"v_lshlrev_b32 v{VOFF}, 11, v{S0}", f"v_lshl_add_u32 v{VOFF}, v{CH0}, 1, v{VOFF}",
        f"v_subrev_u32 v{VH}, 6144, v{VOFF}",
        f"v_lshlrev_b32 v{VSH}, 3, v{CH0}")
    scratch_addr(a, VST, CG, RG)
    KR, VR, SHR, KF, SHF, KV, TM, PK = 16, 38, 54, 64, 108, 124, 156, 16
    if OPT["earlypub"]:
        Lp = newlbl("epub")
        a.e("s_cmp_lg_u32 s3, 0", f"s_cbranch_scc1 {Lp}")
        fin_epoch(a); loc_publish(a)
        a.label(Lp)
    a.e(f"buffer_load_dwordx4 {v(SHR,4)}, v{VSH}, s[{SSH}:{SSH+3}], 0 offen",
        f"buffer_load_dwordx4 {v(SHR+4,4)}, v{VSH}, s[{SSH}:{SSH+3}], 0 offen offset:16")
    for i in range(3):
        a.e(f"buffer_load_dwordx2 {v(KR+2*i,2)}, v{VH}, s[{SK}:{SK+3}], {soff[i>>1]} offen" + (" offset:2048" if i & 1 else "") + NT())
    for i in range(8):
        a.e(f"buffer_load_dwordx2 {v(KR+6+2*i,2)}, v{VOFF}, s[{SK}:{SK+3}], {soff[i>>1]} offen" + (" offset:2048" if i & 1 else "") + NT())
    for i in range(8):
        a.e(f"buffer_load_dwordx2 {v(VR+2*i,2)}, v{VOFF}, s[{SV}:{SV+3}], {soff[i>>1]} offen" + (" offset:2048" if i & 1 else "") + NT())
    stamp(a, 2)
    if OPT["earlypub"]:
        Lq = newlbl("epub2")
        a.e("s_cmp_eq_u32 s3, 0", f"s_cbranch_scc1 {Lq}")
        fin_epoch(a)
        a.label(Lq)
    else:
        fin_epoch(a)
        loc_publish(a)
    if shadow: shadow()
    def wv(n, extra):
        if extra and not OPT["earlypub"]:
            L = newlbl("wv")
            a.e(f"s_cbranch_scc1 {L}", f"s_waitcnt vmcnt({n})")
            a.label(L)
            a.e(f"s_waitcnt vmcnt({n+extra})")
        elif extra == 2 and OPT["earlypub"]:
            L = newlbl("wv")
            a.e(f"s_cbranch_scc1 {L}", f"s_waitcnt vmcnt({n})")
            a.label(L)
            a.e(f"s_waitcnt vmcnt({n+1})")
        else:
            a.e(f"s_waitcnt vmcnt({n})")
    a.e("s_cmp_eq_u32 s3, 0")
    wv(19, 1)
    for ch in range(4):
        for j in range(4):
            src = SHR + 2*ch + (j >> 1)
            if j & 1: a.e(f"v_and_b32 v{SHF+4*j+ch}, s{M}, v{src}")
            else:     a.e(f"v_lshlrev_b32 v{SHF+4*j+ch}, 16, v{src}")
    for i in range(11):
        wv(18-i, 1)
        for hf in range(2):
            a.e(f"v_lshlrev_b32 v{KF+4*i+2*hf}, 16, v{KR+2*i+hf}", f"v_and_b32 v{KF+4*i+2*hf+1}, s{M}, v{KR+2*i+hf}")
    loc_issue(a, 10)
    a.e("s_cmp_eq_u32 s3, 0")
    for i in range(8):
        wv(7-i, 2)
        if i == 7 and hook: hook()
        for hf in range(2):
            a.e(f"v_lshlrev_b32 v{TM+2*hf}, 16, v{VR+2*i+hf}", f"v_and_b32 v{TM+2*hf+1}, s{M}, v{VR+2*i+hf}")
        for hf in range(2):
            acc = KV+4*i+2*hf
            a.e(f"v_pk_mul_f32 {v(acc,2)}, {v(KF+4*(i+3)+2*hf,2)}, {v(SHF+2*hf,2)}")
            for j in range(1, 4):
                a.e(f"v_pk_fma_f32 {v(acc,2)}, {v(KF+4*(i+3-j)+2*hf,2)}, {v(SHF+4*j+2*hf,2)}, {v(acc,2)}")
            a.e(f"v_pk_mul_f32 {v(acc,2)}, {v(acc,2)}, {v(TM+2*hf,2)}")
    stamp(a, 3)
    for ch in range(4):
        for m in range(4):
            a.e(f"v_cvt_pk_bf16_f32 v{PK+4*ch+m}, v{KV+4*(7-2*m)+ch}, v{KV+4*(6-2*m)+ch}")
    sts = [f"buffer_store_dwordx4 {v(PK+4*ch,4)}, v{VST}, s[{SKVT}:{SKVT+3}], {SCR_SOFF[ch]} offen" for ch in range(4)]
    if OPT["twoflag"]:
        for l in sts: a.e(l)
        stamp(a, 4)
        a.e(f"s_lshl_b32 s51, s{sCBKT}, 4", f"s_add_u32 s51, s51, s{sSUBT}", f"s_lshl_b32 s51, s51, {FB()}", f"s_add_u32 s92, s51, {SY_B1}")
        La = newlbl("siga")
        a.e("s_waitcnt vmcnt(0)", "s_barrier", "s_cmp_lg_u32 s3, 0", f"s_cbranch_scc1 {La}",
            "v_mov_b32 v14, s92", f"v_mov_b32 v15, s{S_TGT}", "s_mov_b64 exec, 1",
            f"buffer_store_dword v15, v14, s[{S_SYN}:{S_SYN+3}], 0 offen", "s_mov_b64 exec, -1")
        a.label(La)
        if after_stores: after_stores()
        loc_resolve(a, 10, nafter=nafter + 1 if after_stores else 1)
        Lo = newlbl("opt")
        a.e(f"s_cmp_lg_u32 s{sLOC}, 0", f"s_cbranch_scc1 {Lo}", "s_waitcnt vmcnt(0)")
        for l in sts: a.e(l + " sc1")
        a.e(f"s_add_u32 s51, s51, {SY_B1B}")
        signal(a, 51, 14)
        a.label(Lo)
        return
    if OPT["optst"]:
        for l in sts: a.e(l)
        if after_stores: after_stores()
        loc_resolve(a, 10, nafter=nafter)
        Lo = newlbl("opt")
        a.e(f"s_cmp_lg_u32 s{sLOC}, 0", f"s_cbranch_scc1 {Lo}", "s_waitcnt vmcnt(0)")
        for l in sts: a.e(l + " sc1")
        a.e("s_waitcnt vmcnt(0)")
        a.label(Lo)
    else:
        loc_resolve(a, 10)
        dual_store(a, sts)
    stamp(a, 4)
    a.e(f"s_lshl_b32 s51, s{sCBKT}, 4", f"s_add_u32 s51, s51, s{sSUBT}", f"s_lshl_b32 s51, s51, {FB()}", f"s_add_u32 s51, s51, {SY_B1}")
    signal(a, 51, 14, nafter=nafter, bloc=True)

B3_QR, B3_VQ, B3_VT, B3_VO = 208, 224, 225, 226
def emit_B3_pre(a):
    SQ, STT, SOUT = BT_S0, BT_S1, BT_S2
    srd(a, SQ, P_Q, P_Q+1, 4*MB); srd(a, SOUT, P_OUT, P_OUT+1, 8*MB)
    bt_setup(a)
    t = 227
    a.e(f"v_and_b32 v{t}, 15, v1", f"v_lshrrev_b32 v{t+1}, 4, v1",
        f"v_lshl_add_u32 v{t+1}, v{t+1}, 3, s{BT_ROW}", f"v_lshl_add_u32 v{t}, v{t}, 2, s{BT_CH}",
        f"v_lshlrev_b32 v{B3_VQ}, 11, v{t+1}", f"v_lshl_add_u32 v{B3_VQ}, v{t}, 1, v{B3_VQ}",
        f"v_lshlrev_b32 v{B3_VO}, 12, v{t+1}", f"v_lshl_add_u32 v{B3_VO}, v{t}, 1, v{B3_VO}", f"v_add_u32 v{B3_VO}, 2048, v{B3_VO}")
    a.e(f"v_and_b32 v{t}, 15, v1", f"v_lshrrev_b32 v{t+1}, 4, v1")
    scratch_addr(a, B3_VT, t, t+1)
    for i in range(8):
        a.e(f"buffer_load_dwordx2 {v(B3_QR+2*i,2)}, v{B3_VQ}, s[{SQ}:{SQ+3}], {BT_SOFF[i>>1]} offen" + (" offset:2048" if i & 1 else "") + NT())

def emit_B3(a):
    SQ, STT, SOUT = BT_S0, BT_S1, BT_S2
    soff = BT_SOFF; M = BT_MASK
    TR, TF, QF = 16, 48, 80
    a.e(f"s_mov_b32 s{M}, 0xffff0000")
    a.e(f"s_lshl_b32 s51, s{sCBKT}, {4+FB()}", f"s_add_u32 s51, s51, {SY_B2}",
        "v_and_b32 v12, 15, v1", f"v_lshlrev_b32 v12, {FB()}, v12", "v_add_u32 v12, s51, v12")
    a.e("s_waitcnt vmcnt(0)")
    for e in range(8):
        qf = QF + 4*e
        for hf in range(2):
            a.e(f"v_lshlrev_b32 v{qf+2*hf}, 16, v{B3_QR+2*e+hf}", f"v_and_b32 v{qf+2*hf+1}, s{M}, v{B3_QR+2*e+hf}")
    wait_flags(a, 12, 1, 13, 51)
    stamp(a, 10)
    for ch in range(4):
        a.e(f"buffer_load_dwordx4 {v(TR+4*ch,4)}, v{B3_VT}, s[{SOUT}:{SOUT+3}], {SCR_SOFF[ch]} offen" + LDL())
    for ch in range(4):
        a.e(f"s_waitcnt vmcnt({3-ch})")
        for e in range(8):
            src = TR+4*ch+(e >> 1)
            if e & 1: a.e(f"v_and_b32 v{TF+4*e+ch}, s{M}, v{src}")
            else:     a.e(f"v_lshlrev_b32 v{TF+4*e+ch}, 16, v{src}")
    a.e("s_barrier")
    for e in range(8):
        qf = QF + 4*e
        for hf in range(2):
            a.e(f"v_pk_mul_f32 {v(qf+2*hf,2)}, {v(qf+2*hf,2)}, {v(TF+4*e+2*hf,2)}")
        pk = 112+2*e
        for hf in range(2):
            a.e(f"v_cvt_pk_bf16_f32 v{pk+hf}, v{qf+2*hf}, v{qf+2*hf+1}")
        a.e(f"buffer_store_dwordx2 {v(pk,2)}, v{B3_VO}, s[{SOUT}:{SOUT+3}], {soff[e]} offen" + NTO())

def gen_A(a):
    SX, SI1, SWR, SWI, SI2, SOUT = 32, 36, 80, 84, 32, 36
    a.e(f"s_setprio {OPT['prioA']}") if OPT['prioA'] else None
    sT, sSA, sCB, sJ, sJM, sJP, sJQ, sTL = 40, 41, 42, 43, 72, 73, 74, 44
    def rows():
        srd(a, SI1, P_WS, P_WS+1, 4*MB, add=WS_I1)
        srd(a, SWR, P_WR, P_WR+1, WBYTES); srd(a, SWI, P_WI, P_WI+1, WBYTES)
        Lr = newlbl("reg")
        a.e("s_lshl_b32 s47, s3, 9", f"s_add_u32 s{sJ}, s{sT}, s47", f"s_mov_b32 s{sJP}, s{sT}", f"s_sub_u32 s{sJQ}, 512, s{sT}",
            f"s_cmp_lg_u32 s{sT}, 0", f"s_cbranch_scc1 {Lr}",
            f"s_mov_b32 s{sJQ}, 256", "s_lshl_b32 s47, s3, 2", "s_lshr_b32 s46, 0x3120, s47", "s_and_b32 s46, s46, 15", f"s_lshl_b32 s{sJ}, s46, 8")
        a.label(Lr)
        a.e(f"s_sub_u32 s{sJM}, 2048, s{sJ}", f"s_and_b32 s{sJM}, s{sJM}, 2047",
            f"s_mul_i32 s{sJ}, s{sJ}, 1026", f"s_mul_i32 s{sJM}, s{sJM}, 1026")
        a.e(f"s_or_b32 s75, s{sT}, s3")
    def wstage():
        a.e("v_lshlrev_b32 v243, 4, v1", "s_lshl_b32 s46, s3, 12", f"s_add_u32 s46, s46, {LW}")
        w_dma(a, SWR, SWI, sJ, sJM, 46, 243)
        pf_loads(a, SWR, SWI, sJ, sJM, PF, 244)
        Ln = newlbl("now2")
        a.e("s_cmp_lg_u32 s75, 0", f"s_cbranch_scc1 {Ln}")
        a.e(f"s_mov_b32 s47, {1024*1026}", f"s_mov_b32 s46, {LW2}")
        w_dma(a, SWR, SWI, 47, 47, 46, 243)
        pf_loads(a, SWR, SWI, 47, 47, PF2, 244)
        a.label(Ln)
    a.e(f"s_mov_b32 s{sT}, s{sCU}")
    stamp(a, 0, True); stamp(a, 1)
    Lp1 = newlbl("nop1")
    a.e(f"s_cmp_eq_u32 s{sACT}, 0", f"s_cbranch_scc1 {Lp1}_in")
    srd(a, SX, P_X, P_X+1, 4*MB)
    a.e(f"s_lshr_b32 s48, s{sT}, 4", f"s_and_b32 s49, s{sT}, 7",
        f"s_lshr_b32 s{sSA}, s48, 2", "s_bfe_u32 s50, s48, 0x10001", "s_lshl_b32 s50, s50, 3", "s_add_u32 s50, s50, s49",
        "s_lshl_b32 s50, s50, 1", "s_and_b32 s51, s48, 1", f"s_add_u32 s{sCB}, s50, s51",
        "s_lshl_b32 s48, s48, 3", f"s_add_u32 s{sTL}, s48, s49")
    fft512_addr(a, sSA, sCB)
    fft512_loads(a, SX, NT())
    stamp(a, 12)
    rows()
    fft512_addr2(a, sSA, sCB, 2048, 8192)
    fft512_consts(a)
    fft512_compute(a, SI1, False, 0, "sc1", 2, hook=None if OPT["wlate"] else wstage)
    stamp(a, 4)
    a.e(f"s_lshl_b32 s48, s{sTL}, {FA()}", f"s_add_u32 s48, s48, {SY_A1}")
    fin_epoch(a)
    signal(a, 48, F_TMP)
    a.e(f"s_branch {Lp1}")
    a.label(f"{Lp1}_in")
    if OPT["pA1i"] >= 0: a.e(f"s_setprio {OPT['pA1i']}")
    stamp(a, 12)
    emit_B1(a, shadow=rows, hook=None if OPT["wlate"] else wstage)
    a.label(Lp1)
    if OPT["pA1i"] >= 0: a.e(f"s_setprio {OPT['prioA']}")
    stamp(a, 5)
    if OPT["wlate"] == 2: wstage()
    srd(a, SI2, P_WS, P_WS+1, 4*MB, add=WS_I2)
    a2_consts(a, sT)
    a.e(f"v_lshl_add_u32 v{TMP}, v{G_}, 7, v{IDX}",
        "s_lshl_b32 s48, s3, 12", f"s_add_u32 s48, s48, {LW}",
        f"v_lshl_add_u32 v{VW}, v{TMP}, 1, s48",
        f"v_sub_u32 v{TMP+1}, {1023-32*27}, v{TMP}", f"s_add_u32 s49, s48, 2048", f"v_lshl_add_u32 v{VW+1}, v{TMP+1}, 1, s49")
    a.e(f"v_lshlrev_b32 v{VG}, 12, v{G_}", f"v_lshl_add_u32 v{VG}, v{IDX}, 2, v{VG}",
        "s_lshl_b32 s49, s3, 9",
        f"s_lshl_b32 s52, s{sJP}, 13", "s_add_u32 s52, s52, s49",
        f"s_lshl_b32 s53, s{sJQ}, 13", "s_add_u32 s53, s53, s49")
    a.e(f"v_lshlrev_b32 v{VGW}, 12, v{G_}", f"v_lshl_add_u32 v{VGW}, v{IDX}, 3, v{VGW}", "s_lshl_b32 s50, s3, 10", f"v_add_u32 v{VGW}, s50, v{VGW}",
        f"v_lshlrev_b32 v{VRR}, 9, v{G_}", f"v_lshl_add_u32 v{VRR}, v{IDX}, 2, v{VRR}", "s_lshl_b32 s51, s3, 12", f"v_add_u32 v{VRR}, s51, v{VRR}")
    for t in range(1, 4): a.e(f"v_add_u32 v{VRR+t}, {1024*t}, v{VRR}")
    a.e(f"v_lshrrev_b32 v{TMP}, 4, v1", f"v_and_b32 v{TMP+1}, 1, v{TMP}", f"v_lshlrev_b32 v{VHR}, 13, v{TMP+1}",
        f"v_lshrrev_b32 v{TMP+1}, 1, v{TMP}", f"v_lshl_add_u32 v{VHR}, v{TMP+1}, 7, v{VHR}",
        f"v_and_b32 v{TMP+1}, 15, v1", f"v_lshl_add_u32 v{VHR}, v{TMP+1}, 3, v{VHR}", f"v_add_u32 v{VHR}, s50, v{VHR}")
    a.e(f"v_and_b32 v{TMP+2}, 1, v{TMP+1}", f"v_mov_b32 v{TMP+3}, s52", f"v_mov_b32 v{TMP+4}, s53",
        f"v_cmp_eq_u32 vcc, 1, v{TMP+2}", f"v_cndmask_b32 v{VST}, v{TMP+3}, v{TMP+4}, vcc",
        f"v_bfe_u32 v{TMP+2}, v{TMP+1}, 1, 2", f"v_lshl_add_u32 v{VST}, v{TMP+2}, 11, v{VST}",
        f"v_lshrrev_b32 v{TMP+2}, 3, v{TMP+1}", f"v_lshl_add_u32 v{VST}, v{TMP+2}, 6, v{VST}",
        f"v_lshl_add_u32 v{VST}, v{TMP}, 4, v{VST}")
    a.e(f"v_lshlrev_b32 v{TMP}, {FA()}, v1", f"v_add_u32 v{TMP}, {SY_A1}, v{TMP}")
    stamp(a, 6)
    wait_flags(a, TMP, 2, TMP+1, 48)
    stamp(a, 7)
    for u in range(4):
        for sl in range(2):
            for pq in range(2):
                a.e(f"buffer_load_dword v{GB+4*u+2*sl+pq}, v{VG}, s[{SI1}:{SI1+3}], s{52+pq} offen offset:{2048*sl+128*u} sc1")
    NWL = 0
    if OPT["wlate"] == 1:
        wstage(); NWL = 8
        Lsw = newlbl("spw")
        a.e("s_cmp_lg_u32 s75, 0", f"s_cbranch_scc1 {Lsw}", "s_waitcnt vmcnt(0)")
        a.label(Lsw)
    for rnd in range(2):
        a.e(f"s_waitcnt vmcnt({8-8*rnd+NWL})")
        for uu in range(2):
            u = 2*rnd+uu
            a.e(f"v_mfma_f32_32x32x16_bf16 {v(ARE if uu == 0 else AIM,16)}, {v(GA,4)}, {v(GB+4*u,4)}, 0")
        for uu in range(2):
            u = 2*rnd+uu
            D = ARE if uu == 0 else AIM
            t = TMP+4*uu
            for h in range(2):
                a.e(f"v_cvt_pk_bf16_f32 v{t}, v{D+4*h}, v{D+4*h+1}", f"v_cvt_pk_bf16_f32 v{t+1}, v{D+4*h+2}, v{D+4*h+3}",
                    f"ds_write_b64 v{VGW}, {v(t,2)} offset:{256*u+8192*h}")
                t += 2
    a.e("s_waitcnt lgkmcnt(0)", "s_barrier")
    stamp(a, 8)
    if OPT["qA"]:
        Lq = newlbl("noqA")
        a.e(f"s_cmp_lg_u32 s{sACT}, 0", f"s_cbranch_scc1 {Lq}")
        emit_B3_pre(a)
        a.label(Lq)
    for t in range(4):
        a.e(f"ds_read2_b32 {v(DF+4*t,2)}, v{VRR+t} offset0:0 offset1:32", f"ds_read2_b32 {v(DF+4*t+2,2)}, v{VRR+t} offset0:64 offset1:96")
    a.e("s_waitcnt lgkmcnt(0)")
    if OPT["wlate"] == 1:
        def wmid():
            if OPT["qA"]:
                L1, L2 = newlbl("wa"), newlbl("wb")
                a.e(f"s_cmp_lg_u32 s{sACT}, 0", f"s_cbranch_scc1 {L1}", "s_waitcnt vmcnt(8)", f"s_branch {L2}")
                a.label(L1); a.e("s_waitcnt vmcnt(0)"); a.label(L2)
            else:
                a.e("s_waitcnt vmcnt(0)")
            w_lds_reads(a, VW, VW+1, WR, WI)
        fft1024(a, mid=wmid)
    else:
        w_lds_reads(a, VW, VW+1, WR, WI)
        fft1024(a)
    a.e("s_waitcnt lgkmcnt(0)")
    fix_w(a, WR, WI, PF)
    Lsp, Linv = newlbl("special"), newlbl("inv")
    a.e("s_cmp_eq_u32 s75, 0", f"s_cbranch_scc1 {Lsp}")
    for p in range(8):
        xr, xi, wr, wi = ARE+2*p, AIM+2*p, WR+2*p, WI+2*p
        t0 = TMP+4*(p & 1); t1 = t0+2
        n0 = " neg_lo:[1,0,0] neg_hi:[1,0,0]" if p < 4 else ""
        n1 = "" if p < 4 else " neg_lo:[1,0,0] neg_hi:[1,0,0]"
        a.e(f"v_pk_mul_f32 {v(t0,2)}, {v(xr,2)}, {v(wr,2)}", f"v_pk_mul_f32 {v(t1,2)}, {v(xi,2)}, {v(wr,2)}",
            f"v_pk_fma_f32 {v(t0,2)}, {v(xi,2)}, {v(wi,2)}, {v(t0,2)}{n0}",
            f"v_pk_fma_f32 {v(t1,2)}, {v(xr,2)}, {v(wi,2)}, {v(t1,2)}{n1}")
        for e in range(2):
            a.e(f"v_cvt_pk_bf16_f32 v{DF+2*p+e}, v{t0+e}, -v{t1+e}")
    a.label(Linv)
    a.e("s_nop 1")
    fft1024(a)
    for r in range(16):
        t = TMP + (r & 7)
        a.e(f"v_cvt_pk_bf16_f32 v{t}, v{ARE+r}, v{AIM+r}", f"ds_write_b32 v{VRR}, v{t} offset:{128*eidx(r)}")
    a.e("s_waitcnt lgkmcnt(0)", "s_barrier")
    stamp(a, 9)
    for u in range(4):
        for sl in range(2):
            a.e(f"ds_read_b64 {v(GB+4*u+2*sl,2)}, v{VHR} offset:{4096*sl+256*u}")
    a.e("s_lshl_b32 s49, s3, 9")
    for u in range(4):
        a.e(f"s_waitcnt lgkmcnt({6-2*u})")
        a.e(f"v_mfma_f32_16x16x32_bf16 {v(ARE+4*u,4)}, {v(GB+4*u,4)}, {v(HRE,4)}, 0",
            f"v_mfma_f32_16x16x32_bf16 {v(AIM+4*u,4)}, {v(GB+4*u,4)}, {v(HIM,4)}, 0")
    for u in range(4):
        for r in range(4):
            a.e(f"v_cvt_pk_bf16_f32 v{DF+4*u+r}, v{ARE+4*u+r}, v{AIM+4*u+r}")
        a.e(f"buffer_store_dwordx4 {v(DF+4*u,4)}, v{VST}, s[{SI2}:{SI2+3}], 0 offen offset:{128*u} sc1")
    a.e(f"s_lshl_b32 s48, s{sT}, {FA()}", f"s_add_u32 s48, s48, {SY_A2}")
    signal(a, 48, TMP)
    stamp(a, 10)
    Lb3 = newlbl("b3")
    a.e(f"s_cmp_eq_u32 s{sACT}, 0", f"s_cbranch_scc1 {Lb3}")
    srd(a, SOUT, P_OUT, P_OUT+1, 8*MB)
    fft512_addr(a, sSA, sCB)
    fft512_addr2(a, sSA, sCB, 4096, 16384)
    fft512_consts(a)
    a.e(f"v_lshlrev_b32 v{F_TMP}, {FA()}, v1", f"v_add_u32 v{F_TMP}, {SY_A2}, v{F_TMP}")
    wait_flags(a, F_TMP, 4, F_TMP+1, 48)
    stamp(a, 11)
    PHASE[0] = 3
    fstamp(a, 11)
    fft512_loads(a, SI2, "sc1")
    fstamp(a, 3)
    save = gen.PROF; gen.PROF = False; PHASE[0] = 3
    fft512_compute(a, SOUT, True, 0, NTO(), 0)
    gen.PROF = save
    a.e("s_cmp_lg_u32 s75, 0", "s_cbranch_scc1 L_fin")
    Lb1, Lb2 = newlbl("bchk"), newlbl("bchkd")
    a.e("v_lshlrev_b32 v2, 6, v1", f"v_add_u32 v2, {SY_ID}, v2", f"s_lshl_b32 s49, s{S_TGT}, 4", "s_mov_b32 s48, 0")
    a.label(Lb1)
    for i in range(6):
        a.e(f"s_mov_b32 s50, {4096*i}", f"buffer_load_dword v{4+i}, v2, s[{S_SYN}:{S_SYN+3}], s50 offen sc1")
    a.e("s_add_u32 s48, s48, 1", "s_waitcnt vmcnt(0)")
    for i in range(6): a.e(f"v_xor_b32 v{4+i}, s49, v{4+i}")
    for i in range(1, 6): a.e(f"v_or_b32 v4, v4, v{4+i}")
    a.e("v_lshrrev_b32 v4, 4, v4", "v_cmp_ne_u32 vcc, 0, v4", f"s_cbranch_vccz {Lb2}", f"s_cmp_lt_u32 s48, {SPIN_LIMIT}", f"s_cbranch_scc1 {Lb1}")
    a.label(Lb2)
    a.e(f"s_mov_b32 s48, {SY_E}")
    bump(a, 48, 2)
    a.e("s_branch L_fin")
    a.label(Lb3)
    if not OPT["qA"]: emit_B3_pre(a)
    emit_B3(a)
    a.e("s_branch L_fin")
    a.label(Lsp)
    a.e(f"v_lshl_add_u32 v{TMP}, v{G_}, 7, v{IDX}", f"v_sub_u32 v{TMP+1}, {1023-32*27}, v{TMP}",
        f"s_mov_b32 s48, {LW2}", f"v_lshl_add_u32 v{TMP+2}, v{TMP}, 1, s48", f"s_mov_b32 s49, {LW2+2048}", f"v_lshl_add_u32 v{TMP+3}, v{TMP+1}, 1, s49")
    w_lds_reads(a, TMP+2, TMP+3, W2R, W2I)
    a.e("s_waitcnt lgkmcnt(0)")
    fix_w(a, W2R, W2I, PF2)
    VS = SP; K0 = SP+1
    a.e(f"v_lshlrev_b32 v{VS}, 9, v{G_}", f"v_lshl_add_u32 v{VS}, v{IDX}, 2, v{VS}")
    for r in range(16):
        a.e(f"ds_write_b32 v{VS}, v{ARE+r} offset:{LSC+128*eidx(r)}", f"ds_write_b32 v{VS}, v{AIM+r} offset:{LSC+4096+128*eidx(r)}")
    a.e(f"v_lshl_add_u32 v{K0}, v{G_}, 7, v{IDX}", f"v_sub_u32 v{K0}, 1024, v{K0}", "s_waitcnt lgkmcnt(0)")
    for r in range(16):
        ad, rr, ri, ur, ui, vr, vi, o0, o1 = [SP+2+i for i in range(9)]
        a.e(f"v_subrev_u32 v{ad}, {32*eidx(r)}, v{K0}", f"v_and_b32 v{ad}, 1023, v{ad}", f"v_lshlrev_b32 v{ad}, 2, v{ad}",
            f"ds_read_b32 v{rr}, v{ad} offset:{LSC}", f"ds_read_b32 v{ri}, v{ad} offset:{LSC+4096}", "s_waitcnt lgkmcnt(0)")
        pr, pi_ = ARE+r, AIM+r
        a.e(f"v_add_f32 v{ur}, v{pr}, v{rr}", f"v_sub_f32 v{ui}, v{pi_}, v{ri}",
            f"v_sub_f32 v{vr}, v{pr}, v{rr}", f"v_add_f32 v{vi}, v{pi_}, v{ri}")
        sg = "-" if r < 8 else ""; ns = "" if r < 8 else "-"
        ar, ai, br, bi = WR+r, WI+r, W2R+r, W2I+r
        a.e(f"v_mul_f32 v{o0}, v{ur}, v{ar}", f"v_fma_f32 v{o0}, {sg}v{ui}, v{ai}, v{o0}",
            f"v_fma_f32 v{o0}, v{vr}, v{br}, v{o0}", f"v_fma_f32 v{o0}, {sg}v{vi}, v{bi}, v{o0}",
            f"v_mul_f32 v{o1}, v{ui}, v{ar}", f"v_fma_f32 v{o1}, {ns}v{ur}, v{ai}, v{o1}",
            f"v_fma_f32 v{o1}, v{vi}, v{br}, v{o1}", f"v_fma_f32 v{o1}, {ns}v{vr}, v{bi}, v{o1}",
            f"v_mul_f32 v{o0}, 0.5, v{o0}", f"v_mul_f32 v{o1}, 0.5, v{o1}",
            f"v_cvt_pk_bf16_f32 v{DF+r}, v{o0}, -v{o1}")
    a.e(f"s_branch {Linv}")

def h_dma(a, SH, sLB, sD4K):
    a.e("v_lshlrev_b32 v235, 4, v1")
    a.e(f"s_add_u32 s74, s{sLB}, 32", "s_mov_b32 m0, s74")
    for ch in range(4): a.e(f"buffer_load_dwordx4 v235, s[{SH}:{SH+3}], s{sD4K} offen offset:{1024*ch} lds" + NT())
    a.e(f"s_add_u32 s74, s{sLB}, 4192", f"s_add_u32 s75, s{sD4K}, 2", "s_mov_b32 m0, s74")
    for ch in range(4): a.e(f"buffer_load_dwordx4 v235, s[{SH}:{SH+3}], s75 offen offset:{1024*ch} lds" + NT())
    a.e("v_mov_b32 v233, 0x7ffffff0", f"v_mov_b32 v234, s{sD4K}", "v_cmp_eq_u32 vcc, 15, v1", "v_cndmask_b32 v233, v233, v234, vcc",
        f"buffer_load_short_d16_hi v230, v233, s[{SH}:{SH+3}], 0 offen")

def gen_B(a):
    SH, STT, SKVT = 80, 84, 32
    a.e(f"s_setprio {OPT['prioB']}") if OPT['prioB'] else None
    srd(a, SH, P_SSMK, P_SSMK+1, 4*MB); srd(a, STT, P_OUT, P_OUT+1, 8*MB)
    sCBK, sSUB, sD, sD4K, sLB, sDV, sF1, sF2, sMASK = 40, 41, 42, 43, 44, 45, 46, 47, 72
    a.e(f"s_and_b32 s{sCBK}, s2, 15",
        f"s_lshr_b32 s{sSUB}, s2, 4",
        f"s_lshl_b32 s{sD}, s{sCBK}, 4", f"s_add_u32 s{sD}, s{sD}, s{sSUB}", f"s_lshl_b32 s{sD}, s{sD}, 2", f"s_add_u32 s{sD}, s{sD}, s3",
        f"s_lshl_b32 s{sD4K}, s{sD}, 12", f"s_mul_i32 s{sLB}, s3, {LB_STRIDE}", f"s_mov_b32 s{sMASK}, 0xffff0000")
    sSB = 36
    a.e(f"s_and_b32 s73, s{sD}, 63", "s_lshl_b32 s73, s73, 13", f"s_lshl_b32 s74, s{sCBK}, 7", "s_add_u32 s73, s73, s74", f"s_add_u32 s{sSB}, s73, 2048")
    for i in range(1, 4): a.e(f"s_add_u32 s{sSB+i}, s{sSB}, {i*2*MB}")
    a.e(f"s_lshl_b32 s73, s{sCBK}, {4+FB()}", f"s_add_u32 s{sF1}, s73, {SY_B1}", f"s_lshl_b32 s74, s{sSUB}, {FB()}", "s_add_u32 s73, s73, s74", f"s_add_u32 s{sF2}, s73, {SY_B2}")
    a.e(f"s_and_b32 s73, s{sD}, 0xfffffffe", "s_lshl_b32 s73, s73, 1", f"s_load_dword s{sDV}, s[{P_SSMD}:{P_SSMD+1}], s73")
    stamp(a, 0, True); stamp(a, 1)
    Lidle, Lsetup = newlbl("bidle"), newlbl("bsetup")
    if OPT["pB1"]: a.e(f"s_setprio {OPT['pB1']}")
    a.e(f"s_cmp_lg_u32 s{sACT}, 0", f"s_cbranch_scc1 {Lidle}")
    if OPT["hearly"] and not OPT["hlate"]:
        emit_B1(a, after_stores=lambda: h_dma(a, SH, sLB, sD4K), nafter=9)
    else:
        emit_B1(a)
        if not OPT["hlate"]: h_dma(a, SH, sLB, sD4K)
    a.e(f"s_branch {Lsetup}")
    a.label(Lidle)
    fin_epoch(a)
    loc_publish(a)
    loc_issue(a, 10)
    loc_resolve(a, 10, barrier=False)
    if not OPT["hlate"]:
        h_dma(a, SH, sLB, sD4K)
    a.label(Lsetup)
    if OPT["pB1"]: a.e(f"s_setprio {OPT['prioB']}")
    stamp(a, 12)
    LN16, B_, G4, VA, VB, VE, VS2, T = 2, 3, 4, 5, 9, 10, 11, 12
    a.e(f"v_lshlrev_b32 v{T}, 2, v1",
        f"v_add_u32 v{T+1}, {4160-32}, v{T}", "v_cmp_le_u32 vcc, 8, v1", f"v_cndmask_b32 v{T+3}, v{T}, v{T+1}, vcc",
        f"v_add_u32 v{T+1}, 8288, v{T}", "v_cmp_le_u32 vcc, 16, v1", f"v_cndmask_b32 v{T+3}, v{T+3}, v{T+1}, vcc",
        f"v_add_u32 v231, s{sLB}, v{T+3}")
    a.e(f"v_lshlrev_b32 v{T}, 3, v1", f"v_add_u32 v{T}, s{sLB}, v{T}", "v_mov_b32 v16, 0", "v_mov_b32 v17, 0", f"ds_write_b64 v{T}, v[16:17] offset:8288")
    a.e(f"v_and_b32 v{B_}, 15, v1", f"v_lshrrev_b32 v{G4}, 4, v1")
    a.e(f"v_and_b32 v{VA}, 1, v{B_}", f"v_xor_b32 v{VA}, 1, v{VA}", f"v_mul_u32_u24 v{VA}, 4160, v{VA}",
        f"v_add_u32 v{VA+1}, 1, v{B_}", f"v_lshrrev_b32 v{VA+1}, 1, v{VA+1}", f"v_lshl_add_u32 v{VA}, v{VA+1}, 2, v{VA}",
        f"v_lshlrev_b32 v{VA+1}, 4, v{G4}", f"v_sub_u32 v{VA}, v{VA}, v{VA+1}",
        f"s_add_u32 s73, s{sLB}, 16", f"v_add_u32 v{VA}, s73, v{VA}")
    for pp in range(1, 4): a.e(f"v_add_u32 v{VA+pp}, {1024*pp}, v{VA}")
    a.e(f"v_lshlrev_b32 v{VB}, 5, v{B_}", f"v_lshl_add_u32 v{VB}, v{G4}, 4, v{VB}",
        f"s_add_u32 s73, s{sLB}, {8800-480}", f"v_add_u32 v{VB}, s73, v{VB}")
    a.e(f"v_lshrrev_b32 v18, 1, v{G4}", f"v_lshlrev_b32 v19, 4, v18", f"v_lshl_add_u32 v19, v{B_}, 5, v19",
        f"v_and_b32 v18, 1, v{G4}", "v_xor_b32 v18, 1, v18", f"v_lshl_add_u32 v19, v18, 3, v19",
        f"s_add_u32 s73, s{sLB}, 8800", f"v_add_u32 v232, s73, v19")
    a.e(f"v_lshrrev_b32 v18, 3, v{B_}", f"v_lshlrev_b32 v{VS2}, 19, v18", f"v_bfe_u32 v18, v{B_}, 2, 1", f"v_lshl_add_u32 v{VS2}, v18, 12, v{VS2}",
        f"v_and_b32 v18, 1, v{G4}", f"v_lshl_add_u32 v{VS2}, v18, 20, v{VS2}", f"v_and_b32 v18, 3, v{B_}", f"v_lshl_add_u32 v{VS2}, v18, 5, v{VS2}",
        f"v_lshrrev_b32 v18, 1, v{G4}", f"v_lshl_add_u32 v{VS2}, v18, 4, v{VS2}")
    a.e(f"v_lshlrev_b32 v{LN16}, 19, v{G4}", "v_bfe_u32 v18, v1, 3, 1", f"v_lshl_add_u32 v{LN16}, v18, 12, v{LN16}",
        "v_and_b32 v18, 7, v1", f"v_lshl_add_u32 v{LN16}, v18, 4, v{LN16}")
    a.e("v_lshlrev_b32 v18, 4, v1", f"s_add_u32 s73, s{sLB}, 8800", "v_add_u32 v19, s73, v18")
    a.e("s_waitcnt lgkmcnt(0)",
        f"s_and_b32 s73, s{sD}, 1", f"s_lshl_b32 s74, s{sDV}, 16", f"s_and_b32 s75, s{sDV}, 0xffff0000",
        "s_cmp_eq_u32 s73, 1", f"s_cselect_b32 s{sDV}, s75, s74")
    if OPT["twoflag"]:
        a.e(f"s_add_u32 s73, s{sF1}, {SY_B1B-SY_B1}", f"s_cmp_lg_u32 s{sLOC}, 0", f"s_cselect_b32 s{sF1}, s{sF1}, s73")
    a.e(f"v_and_b32 v{T}, 15, v1", f"v_lshlrev_b32 v{T}, {FB()}, v{T}", f"v_add_u32 v{T}, s{sF1}, v{T}")
    stamp(a, 5)
    wait_flags(a, T, 1, T+1, 73)
    loc_read(a, 12)
    stamp(a, 6)
    VE = 232
    ACC = 20
    SETS = [(52, 84), (116, 148)]
    U = SETS[1][1]
    for ch in range(4):
        a.e(f"buffer_load_dwordx4 {v(U+4*ch,4)}, v{LN16}, s[{STT}:{STT+3}], s{sSB+ch} offen" + LDL())
    def reads(rho, st):
        A, B = SETS[st]
        out = []
        for p in range(8):
            o = 8*rho + 128*(p & 1)
            out.append(f"ds_read2_b32 {v(A+4*p,2)}, v{VA+(p>>1)} offset0:{o} offset1:{o+1}")
            out.append(f"ds_read2_b32 {v(A+4*p+2,2)}, v{VA+(p>>1)} offset0:{o+2} offset1:{o+3}")
        outb = [f"ds_read_b128 {v(B+4*q,4)}, v{VB} offset:{512*q+32*(15-rho)}" for q in range(8)]
        return out, outb
    rhos = list(range(1, 16, 2))
    ra, rb = reads(rhos[0], 0)
    if OPT["hlate"]:
        h_dma(a, SH, sLB, sD4K)
        for ch in range(4):
            a.e(f"s_waitcnt vmcnt({3-ch+9})", f"ds_write_b128 v19, {v(U+4*ch,4)} offset:{1024*ch}")
        a.e("s_waitcnt vmcnt(0)", "ds_write_b32 v231, v230", "s_waitcnt lgkmcnt(0)")
        for r in ra: a.e(r)
    else:
        a.e("s_waitcnt vmcnt(4)", "ds_write_b32 v231, v230")
        a.e("s_waitcnt lgkmcnt(0)")
        for r in ra: a.e(r)
        for ch in range(4):
            a.e(f"s_waitcnt vmcnt({3-ch})", f"ds_write_b128 v19, {v(U+4*ch,4)} offset:{1024*ch}")
    a.e("s_waitcnt lgkmcnt(0)")
    for r in rb: a.e(r)
    Lnq = newlbl("noq")
    a.e(f"s_cmp_lg_u32 s{sACT}, 0", f"s_cbranch_scc1 {Lnq}")
    emit_B3_pre(a)
    a.label(Lnq)
    stamp(a, 7)
    for ci, rho in enumerate(rhos):
        st = ci & 1
        A, B = SETS[st]
        if ci+1 < len(rhos):
            ra, rb = reads(rhos[ci+1], st ^ 1); nxt = ra[0:2] + rb + ra[2:]
        else:
            nxt = [f"ds_read_b64 {v(SETS[st^1][0]+2*j,2)}, v{VE} offset:{512*j}" for j in range(8)]
        a.e("s_waitcnt lgkmcnt(0)")
        n = 0
        for p in range(8):
            for q in range(8-p):
                j = p+q
                c = "0" if (ci == 0 and p == 0) else v(ACC+4*j, 4)
                a.e(f"v_mfma_f32_16x16x32_bf16 {v(ACC+4*j,4)}, {v(A+4*p,4)}, {v(B+4*q,4)}, {c}")
                if n < len(nxt): a.e(nxt[n])
                n += 1
    KVR = SETS[0][0]; TMv = 116
    a.e("s_waitcnt lgkmcnt(0)")
    stamp(a, 8)
    sts = []
    for jp in range(4):
        base = TMv + 8*jp
        for hh in range(2):
            j = 2*jp+hh
            w0, w1 = KVR+2*j, KVR+2*j+1
            t = 172
            a.e(f"v_and_b32 v{t}, s{sMASK}, v{w1}", f"v_lshlrev_b32 v{t+1}, 16, v{w1}",
                f"v_and_b32 v{t+2}, s{sMASK}, v{w0}", f"v_lshlrev_b32 v{t+3}, 16, v{w0}")
            for r in range(4):
                a.e(f"v_fma_f32 v{t+r}, v{t+r}, s{sDV}, v{ACC+4*j+r}")
            a.e(f"v_cvt_pk_bf16_f32 v{base+2*hh}, v{t}, v{t+1}", f"v_cvt_pk_bf16_f32 v{base+2*hh+1}, v{t+2}, v{t+3}")
        a.e(f"v_permlane16_swap_b32 v{base}, v{base+2}", f"v_permlane16_swap_b32 v{base+1}, v{base+3}")
        sts.append(f"buffer_store_dwordx4 {v(base,4)}, v{VS2}, s[{STT}:{STT+3}], s{sSB+jp} offen")
    dual_store(a, sts)
    signal(a, sF2, 12, bloc=True)
    stamp(a, 9)
    a.e(f"s_cmp_lg_u32 s{sACT}, 0", "s_cbranch_scc1 L_fin")
    emit_B3(a)
    a.e("s_branch L_fin")

def gen_kernel():
    a = Asm(); a.name = "p"
    a.e("s_cmp_ge_u32 s2, 512", "s_cbranch_scc1 L_exit")
    if OPT.get("spinT") or OPT.get("span"): a.e("s_memrealtime s[94:95]")
    if gen.PROF: a.e("s_memrealtime s[98:99]", "s_waitcnt lgkmcnt(0)", "v_writelane_b32 v247, s98, 13")
    a.e(f"s_load_dwordx16 s[4:19], s[0:1], 0", f"s_load_dwordx8 s[20:27], s[0:1], 64")
    a.e("v_lshrrev_b32 v1, 6, v0", "v_readfirstlane_b32 s3, v1", "v_and_b32 v1, 63, v0", "s_waitcnt lgkmcnt(0)")
    srd(a, S_SYN, P_WS, P_WS+1, 1*MB, add=WS_SYNC)
    a.e(f"s_mov_b32 s48, {WS_SYNC+SY_E}", f"s_load_dword s{S_TGT}, s[{P_WS}:{P_WS+1}], s48")
    a.e(f"s_mov_b32 s98, {64<<FA()}", f"s_mov_b32 s99, {128<<FA()}", f"s_mov_b32 s100, {192<<FA()}")
    a.e(f"s_and_b32 s{sCU}, s2, 255", f"s_bitcmp0_b32 s2, 3", f"s_cselect_b32 s{sACT}, 1, 0",
        f"s_lshr_b32 s48, s{sCU}, 4", "s_lshl_b32 s48, s48, 3", f"s_and_b32 s49, s{sCU}, 7", "s_add_u32 s48, s48, s49",
        f"s_and_b32 s{sCBKT}, s48, 15", "s_lshr_b32 s48, s48, 4", "s_lshl_b32 s48, s48, 1", "s_lshr_b32 s49, s2, 8", f"s_add_u32 s{sSUBT}, s48, s49")
    a.e("s_cmp_ge_u32 s2, 256", "s_cbranch_scc1 L_A")
    gen_B(a)
    a.label("L_A")
    gen_A(a)
    a.label("L_fin")
    if gen.PROF:
        a.e("s_waitcnt vmcnt(0)")
        stamp(a, 14); stamp(a, 15, True)
        prof_dump(a)
    if OPT.get("span"):
        Ls = newlbl("span")
        a.e("s_cmp_lg_u32 s3, 0", f"s_cbranch_scc1 {Ls}", "s_waitcnt vmcnt(0)", "s_memrealtime s[92:93]",
            f"s_add_u32 s32, s{P_WS}, {gen.WS_PROF}", f"s_addc_u32 s33, s{P_WS+1}, 0", f"s_mov_b32 s34, {MB}", "s_mov_b32 s35, 0x00020000",
            "s_lshl_b32 s36, s2, 3", "s_waitcnt lgkmcnt(0)", "v_mov_b32 v2, s36", "v_mov_b32 v4, s94", "v_mov_b32 v5, s92", "s_mov_b64 exec, 1",
            "buffer_store_dwordx2 v[4:5], v2, s[32:35], 0 offen", "s_waitcnt vmcnt(0)")
        a.label(Ls)
    if OPT.get("spinT"):
        a.label("L_spin")
        a.e("s_memrealtime s[92:93]", "s_waitcnt lgkmcnt(0)", "s_sub_u32 s92, s92, s94", f"s_cmp_lt_u32 s92, {OPT['spinT']}", "s_cbranch_scc1 L_spin")
    a.label("L_exit")
    a.e("s_endpgm")
    return a

def prof_dump(a):
    if OPT.get("dbgwg", -1) >= 0:
        L = newlbl("nodbg")
        a.e(f"s_cmp_lg_u32 s2, {OPT['dbgwg']}", f"s_cbranch_scc1 {L}", "s_cmp_lg_u32 s3, 0", f"s_cbranch_scc1 {L}")
        a.e("v_readlane_b32 s36, v247, 1", "v_readlane_b32 s37, v247, 13", "v_mov_b32 v250, s36", "v_mov_b32 v251, s37",
            "v_cmp_eq_u32 vcc, 0, v1", "v_cndmask_b32 v250, v250, v251, vcc", "v_cmp_eq_u32 vcc, 13, v1", "v_cndmask_b32 v250, v250, v251, vcc",
            "v_cmp_eq_u32 vcc, 15, v1", "v_cndmask_b32 v250, v250, v251, vcc", "v_sub_u32 v250, v247, v250",
            f"s_mov_b32 s32, s{P_DBG}", f"s_mov_b32 s33, s{P_DBG+1}", "s_mov_b32 s34, 256", "s_mov_b32 s35, 0x00020000",
            "v_lshlrev_b32 v251, 2, v1", "s_mov_b64 exec, 0xffff", "buffer_store_dword v250, v251, s[32:35], 0 offen", "s_waitcnt vmcnt(0)", "s_mov_b64 exec, -1")
        a.label(L)
        return

    a.e(f"s_add_u32 s32, s{P_WS}, {gen.WS_PROF}", f"s_addc_u32 s33, s{P_WS+1}, 0", f"s_mov_b32 s34, {MB}", "s_mov_b32 s35, 0x00020000")
    a.e("s_lshl_b32 s36, s2, 2", "s_add_u32 s36, s36, s3", "s_lshl_b32 s36, s36, 6",
        "v_lshlrev_b32 v250, 2, v1", "v_add_u32 v250, s36, v250", "s_mov_b64 exec, 0xffff",
        "buffer_store_dword v247, v250, s[32:35], 0 offen")
    if OPT.get("fine"):
        a.e("v_add_u32 v250, 0x40000, v250", "buffer_store_dword v246, v250, s[32:35], 0 offen")
    a.e("s_waitcnt vmcnt(0)")
PROFREGS = []

def build(path):
    a = gen_kernel()
    name = "concat_heads__spectral_gfnet__ssm_conv_h3__prompt_kernel"
    s = open("concat_heads__spectral_gfnet__ssm_conv_h3__prompt.s.ref").read().split("; Override")[0]
    s += f"; @launch grid=(512,1,1) block=(256,1,1) lds={LDS_BYTES}\n"
    s += '.amdgcn_target "amdgcn-amd-amdhsa--gfx950"\n' + gen.header(name) + a.text() + gen.descriptor(name, 256, 102)
    s = s.replace(" lds nt", " nt lds")
    open(path, "w").write(s)
    return s

if __name__ == "__main__":
    out = sys.argv[1] if len(sys.argv) > 1 else "pers.s"
    gen.PROF = "prof" in sys.argv[2:]
    for x in sys.argv[2:]:
        if "=" in x:
            k, val = x.split("="); OPT[k] = int(val)
    if OPT["wsend"]:
        base = OPT["wsend"]*MB
        WS_I1, WS_KVT, WS_I2, WS_TT, WS_SYNC = base, base+4*MB, base+8*MB, base+12*MB, base+20*MB
    s = build(out)
    print(out, len(s))
```

```python
import sys
from asmgen import *
import gen
from gen import srd, MB, WS_I1, WS_KVT, WS_I2, WS_TT, KA

PHASE = [1]
def fstamp(a, i):
    if OPT.get("fine") != PHASE[0]: return
    a.e('s_memtime s[96:97]', 's_waitcnt lgkmcnt(0)', f'v_writelane_b32 v246, s96, {i}')
def stamp(a, i, real=False):
    if not gen.PROF: return
    a.e('s_memrealtime s[96:97]' if real else 's_memtime s[96:97]', 's_waitcnt lgkmcnt(0)', f'v_writelane_b32 v247, s96, {i}')

WBYTES = 2048*513*2
LB_STRIDE = 12896
LDS_BYTES = 53248
SPIN_LIMIT = 400000
OPT = dict(prioA=0, prioB=0, sleep=0, nt=1, wsend=0, ntout=1, ntw=1, wlate=1, hlate=1, qA=1, fsa=6, fsb=6, shrink=0, loc=1, forceloc=-1, ldloc=1, bdelay=0, earlypub=1, wpos=1, optst=1, locflag=1, hearly=1, twoflag=1, pA1i=-1, pB1=0, ntscr=0, a3all=1, ntk=1, ntv=1, ntx=1, nth=1, hactdelay=0, b1all=1, bactwait=1, pA1a=-1, grp=1, yieldB=0, ylim=40)
def NMEM(): return 32 if OPT['b1all'] else 48
def LDL(): return {0: ' sc1', 1: ' nt', 2: ' sc1 nt'}[OPT['ldloc']]
def FA(): return OPT['fsa']
def FB(): return OPT['fsb']
def NT(): return ' nt' if OPT['nt'] else ''
def NTO(): return {0: '', 1: ' nt', 2: ' sc1', 3: ' sc1 nt'}[OPT['ntout']]

P_X, P_WR, P_WI, P_Q, P_K, P_V, P_SHK, P_SSMK, P_SSMD, P_OUT, P_DBG, P_WS = 4, 6, 8, 10, 12, 14, 16, 18, 20, 22, 24, 26
S_DBG = 28
def eidx(r): return (r & 3) + 8*(r >> 2)

_lbl = [0]
def newlbl(p):
    _lbl[0] += 1
    return f"L_{p}_{_lbl[0]}"

WS_SYNC = 20*MB
S_SYN = 28
S_TGT = 101
SY_E, SY_A1, SY_A2, SY_B1, SY_B2 = 0, 4096, 4096+16384, 4096+32768, 4096+49152
sACT, sCBKT, sSUBT, sCU = 88, 89, 90, 91
sLOC, sXEXP = 79, 0
S_DBG = 12
def signal(a, s_off, vt, nafter=0, bloc=False):
    L = newlbl("sig")
    a.e(f"s_waitcnt vmcnt({nafter})", "s_barrier", "s_cmp_lg_u32 s3, 0", f"s_cbranch_scc1 {L}",
        f"v_mov_b32 v{vt}, s{s_off}", f"v_mov_b32 v{vt+1}, s{S_TGT}", "s_mov_b64 exec, 1")
    st = f"buffer_store_dword v{vt+1}, v{vt}, s[{S_SYN}:{S_SYN+3}], 0 offen"
    if bloc and OPT["locflag"]:
        dual_store(a, [st])
    else:
        a.e(st + " sc1")
    a.e("s_mov_b64 exec, -1")
    a.label(L)

def wait_flags(a, vaddr, nload, vt, s_cnt, pre_barrier=None, solo=False):
    L = newlbl("poll"); Ls = newlbl("pdone"); Lr = newlbl("prest")
    if not solo: a.e("s_cmp_lg_u32 s3, 0", f"s_cbranch_scc1 {Ls}")
    a.e(f"s_mov_b32 s{s_cnt}, 0")
    a.label(L)
    offs = ["0", "s98", "s99", "s100"]
    for i in range(nload):
        a.e(f"buffer_load_dword v{vt+i}, v{vaddr}, s[{S_SYN}:{S_SYN+3}], {offs[i]} offen sc1")
    a.e(f"s_add_u32 s{s_cnt}, s{s_cnt}, 1", "s_waitcnt vmcnt(0)")
    for i in range(nload):
        a.e(f"v_xor_b32 v{vt+i}, s{S_TGT}, v{vt+i}")
    for i in range(1, nload):
        a.e(f"v_or_b32 v{vt}, v{vt}, v{vt+i}")
    if OPT["shrink"]:
        a.e(f"v_cmp_ne_u32 vcc, 0, v{vt}", "s_and_b64 exec, exec, vcc", f"s_cbranch_execz {Lr}")
    else:
        a.e(f"v_cmp_ne_u32 vcc, 0, v{vt}", f"s_cbranch_vccz {Lr}")
    if OPT["sleep"]: a.e(f"s_sleep {OPT['sleep']}")
    a.e(f"s_cmp_lt_u32 s{s_cnt}, {SPIN_LIMIT}", f"s_cbranch_scc1 {L}")
    a.label(Lr)
    if OPT["shrink"]: a.e("s_mov_b64 exec, -1")
    a.label(Ls)
    if pre_barrier: a.e(pre_barrier)
    if not solo: a.e("s_barrier")

SY_ID = 4096 + 65536
SY_B1B = 4096 + 98304
SY_AS = 4096 + 114688
LOCW = 53244
def loc_publish(a):
    L = newlbl("pub")
    a.e("s_getreg_b32 s92, hwreg(HW_REG_XCC_ID)", "s_and_b32 s92, s92, 15", f"s_lshl_b32 s{sXEXP}, s{S_TGT}, 4", f"s_or_b32 s{sXEXP}, s{sXEXP}, s92")
    a.e("s_cmp_lg_u32 s3, 0", f"s_cbranch_scc1 {L}")
    if OPT["b1all"] and OPT["grp"]:
        a.e("s_and_b32 s92, s2, 15", "s_lshl_b32 s92, s92, 4", "s_lshr_b32 s93, s2, 4", "s_add_u32 s92, s92, s93", "s_lshl_b32 s92, s92, 6", f"s_add_u32 s92, s92, {SY_ID}")
    else:
        a.e("s_lshr_b32 s92, s2, 3", f"s_lshr_b32 s93, s{sCU}, 4", "s_add_u32 s93, s93, 32", "s_cmp_ge_u32 s2, 256", "s_cselect_b32 s92, s93, s92",
            "s_and_b32 s93, s2, 7", f"s_mul_i32 s93, s93, {NMEM()}", "s_add_u32 s92, s92, s93", "s_lshl_b32 s92, s92, 6", f"s_add_u32 s92, s92, {SY_ID}")
    a.e(
        "v_mov_b32 v10, s92", f"v_mov_b32 v11, s{sXEXP}", "s_mov_b64 exec, 1",
        f"buffer_store_dword v11, v10, s[{S_SYN}:{S_SYN+3}], 0 offen sc1", "s_mov_b64 exec, -1")
    a.label(L)

def loc_issue(a, vt):
    if OPT["b1all"] and OPT["grp"]:
        a.e(f"v_min_u32 v{vt}, 15, v1", "s_and_b32 s93, s2, 15", "s_lshl_b32 s93, s93, 4")
    else:
        a.e(f"v_min_u32 v{vt}, {NMEM()-1}, v1", "s_and_b32 s93, s2, 7", f"s_mul_i32 s93, s93, {NMEM()}")
    a.e(f"v_add_u32 v{vt}, s93, v{vt}",
        f"v_lshlrev_b32 v{vt}, 6, v{vt}", f"v_add_u32 v{vt}, {SY_ID}, v{vt}")
    L = newlbl("li")
    a.e("s_cmp_lg_u32 s3, 0", f"s_cbranch_scc1 {L}")
    a.e(f"buffer_load_dword v{vt+1}, v{vt}, s[{S_SYN}:{S_SYN+3}], 0 offen sc1")
    a.label(L)

def loc_resolve(a, vt, barrier=True, nafter=0):
    L, Ld, Ls = newlbl("locp"), newlbl("locd"), newlbl("locs")
    a.e("s_cmp_lg_u32 s3, 0", f"s_cbranch_scc1 {Ls}")
    if OPT["forceloc"] >= 0:
        a.e(f"s_waitcnt vmcnt({nafter})", f"s_mov_b32 s93, {OPT['forceloc']}")
    else:
        a.e("s_mov_b32 s92, 0", f"s_waitcnt vmcnt({nafter})")
        a.label(L)
        a.e(f"v_xor_b32 v{vt+2}, s{sXEXP}, v{vt+1}", f"v_lshrrev_b32 v{vt+3}, 4, v{vt+2}", "s_add_u32 s92, s92, 1",
            f"v_cmp_ne_u32 vcc, 0, v{vt+3}", f"s_cbranch_vccz {Ld}",
            f"s_cmp_ge_u32 s92, {SPIN_LIMIT}", f"s_cbranch_scc1 {Ld}",
            f"buffer_load_dword v{vt+1}, v{vt}, s[{S_SYN}:{S_SYN+3}], 0 offen sc1", "s_waitcnt vmcnt(0)", f"s_branch {L}")
        a.label(Ld)
        a.e(f"v_cmp_ne_u32 vcc, 0, v{vt+2}", "s_cmp_eq_u64 vcc, 0", "s_cselect_b32 s93, 1, 0")
    a.e(f"s_mov_b32 s{sLOC}, s93", f"v_mov_b32 v{vt+2}, {LOCW}", f"v_mov_b32 v{vt+3}, s93", f"ds_write_b32 v{vt+2}, v{vt+3}", "s_waitcnt lgkmcnt(0)")
    a.label(Ls)
    if barrier:
        a.e("s_barrier")
        loc_read(a, vt)

def loc_read(a, vt):
    a.e(f"v_mov_b32 v{vt+2}, {LOCW}", f"ds_read_b32 v{vt+3}, v{vt+2}", "s_waitcnt lgkmcnt(0)", f"v_readfirstlane_b32 s{sLOC}, v{vt+3}")

def dual_store(a, lines):
    L1, L2 = newlbl("stg"), newlbl("stl")
    a.e(f"s_cmp_eq_u32 s{sLOC}, 0", f"s_cbranch_scc1 {L1}")
    for l in lines: a.e(l)
    a.e(f"s_branch {L2}")
    a.label(L1)
    for l in lines: a.e(l + " sc1" if "buffer_store" in l else l)
    a.label(L2)

def a_state(a, sT, done, vt):
    L = newlbl("ast")
    a.e("s_cmp_lg_u32 s3, 0", f"s_cbranch_scc1 {L}", f"s_lshl_b32 s92, s{sT}, 6", f"s_add_u32 s92, s92, {SY_AS}",
        f"s_lshl_b32 s93, s{S_TGT}, 1", f"s_or_b32 s93, s93, {done}", f"v_mov_b32 v{vt}, s92", f"v_mov_b32 v{vt+1}, s93", "s_mov_b64 exec, 1",
        f"buffer_store_dword v{vt+1}, v{vt}, s[{S_SYN}:{S_SYN+3}], 0 offen", "s_mov_b64 exec, -1")
    a.label(L)

def b_yield(a, vt):
    L, Ld = newlbl("yl"), newlbl("yd")
    a.e(f"s_lshl_b32 s92, s{sCU}, 6", f"s_add_u32 s92, s92, {SY_AS}", f"v_mov_b32 v{vt}, s92", f"s_lshl_b32 s75, s{S_TGT}, 1", "s_mov_b32 s92, 0")
    if OPT["yieldB"] == 2: a.e("s_or_b32 s75, s75, 1")
    a.label(L)
    a.e(f"buffer_load_dword v{vt+1}, v{vt}, s[{S_SYN}:{S_SYN+3}], 0 offen " + ("sc1" if OPT.get("ysc", 1) else "nt"), "s_add_u32 s92, s92, 1", "s_waitcnt vmcnt(0)",
        f"v_readfirstlane_b32 s93, v{vt+1}", "s_cmp_lg_u32 s93, s75" if OPT["yieldB"] == 1 else "s_cmp_eq_u32 s93, s75", f"s_cbranch_scc1 {Ld}",
        f"s_cmp_lt_u32 s92, {OPT['ylim']}", f"s_cbranch_scc1 {L}")
    a.label(Ld)

def fin_epoch(a):
    a.e("s_waitcnt lgkmcnt(0)", f"s_add_u32 s{S_TGT}, s{S_TGT}, 1")

def bump(a, s_off, vt):
    a.e(f"v_mov_b32 v{vt}, s{s_off}", f"v_mov_b32 v{vt+1}, s{S_TGT}", "s_mov_b64 exec, 1",
        f"buffer_store_dword v{vt+1}, v{vt}, s[{S_SYN}:{S_SYN+3}], 0 offen sc1", "s_mov_b64 exec, -1")

F_M, F_G, F_IN0, F_IN1, F_OUTOFF, F_WR, F_RD0, F_RD1, F_MM = 2, 3, 4, 5, 6, 7, 8, 9, 10
F_T = 11
F_IN, F16RE, F16IM, F_TWC, F_TWS, F_DRE, F_DIM, F_P, F_TMP, F32RE, F32IM = 16, 48, 52, 56, 88, 120, 136, 152, 168, 176, 192
SI_OFF, SO_OFF = 52, 68
SO_LIST = [68, 69, 70, 71, 76, 77, 78, 79]

def fft512_addr(a, s_sa, s_cb):
    a.e(f"v_and_b32 v{F_M}, 15, v1", f"v_lshrrev_b32 v{F_G}, 4, v1")
    a.e(f"v_lshlrev_b32 v{F_IN0}, 20, v{F_G}", f"v_lshl_add_u32 v{F_IN0}, v{F_M}, 2, v{F_IN0}", f"v_add_u32 v{F_IN1}, {4*8192}, v{F_IN0}")
    a.e(f"s_lshl_b32 s48, s{s_sa}, 11", f"s_lshl_b32 s49, s{s_cb}, 6", "s_add_u32 s48, s48, s49",
        "s_lshl_b32 s50, s3, 16", "s_add_u32 s48, s48, s50")
    for aa in range(4):
        for i in range(4):
            a.e(f"s_add_u32 s{SI_OFF+4*aa+i}, s48, {(32*i+aa)*8192}")

def fft512_loads(a, SIN, mod=""):
    for hh in range(2):
        for aa in range(4):
            for i in range(4):
                a.e(f"buffer_load_dword v{F_IN+16*hh+4*aa+i}, v{F_IN0+hh}, s[{SIN}:{SIN+3}], s{SI_OFF+4*aa+i} offen {mod}")

def fft512_addr2(a, s_sa, s_cb, orow, ostr):
    a.e(f"s_mov_b32 s51, {16*ostr}", f"v_mul_lo_u32 v{F_OUTOFF}, v{F_M}, s51", f"v_lshl_add_u32 v{F_OUTOFF}, v{F_G}, 4, v{F_OUTOFF}")
    a.e(f"s_mul_i32 s48, s{s_sa}, {orow}", f"s_lshl_b32 s49, s{s_cb}, 6", "s_add_u32 s48, s48, s49",
        f"s_mul_i32 s50, s3, {4*ostr}", "s_add_u32 s48, s48, s50")
    for b in range(4):
        for h in range(2):
            a.e(f"s_add_u32 s{SO_LIST[2*b+h]}, s48, {(b+256*h)*ostr}")
    a.e(f"v_and_b32 v{F_T}, 7, v{F_M}", "s_lshl_b32 s50, s3, 1", f"v_xor_b32 v{F_T+1}, s50, v{F_T}",
        f"v_lshlrev_b32 v{F_WR}, 4, v{F_T+1}", f"v_lshl_add_u32 v{F_WR}, v{F_M}, 7, v{F_WR}",
        f"v_lshl_add_u32 v{F_WR}, v{F_G}, 13, v{F_WR}")
    a.e(f"v_xor_b32 v{F_T+1}, v{F_G}, v{F_T}", f"v_lshlrev_b32 v{F_RD0}, 4, v{F_T+1}",
        f"v_lshl_add_u32 v{F_RD0}, v{F_M}, 7, v{F_RD0}", "s_lshl_b32 s50, s3, 13",
        f"v_add_u32 v{F_RD0}, s50, v{F_RD0}", f"v_xor_b32 v{F_RD1}, 64, v{F_RD0}")

def fft512_consts(a):
    T, TMP = F_T, F_TMP
    XS, XB = T, T+1
    a.e(f"v_cvt_f32_u32 v{XS}, v{F_M}", f"v_mul_f32 v{XS}, {f32hex(1/32)}, v{XS}",
        f"v_cvt_f32_u32 v{T+2}, v{F_G}", f"v_mul_f32 v{T+2}, 4.0, v{T+2}",
        f"v_mul_f32 v{XB}, v{T+2}, v{XS}")
    a.e(f"v_and_b32 v{F_MM}, 1, v{F_M}", f"v_mul_u32_u24 v{F_MM}, 0x8000, v{F_MM}",
        f"v_lshl_or_b32 v{F_MM}, v{F_MM}, 16, v{F_MM}", "s_mov_b32 s50, 0x80008000")
    for i in range(4):
        x = TMP; cs = TMP+1; sn = TMP+2; x2 = TMP+3; cs2 = TMP+4; sn2 = TMP+5
        a.e(f"v_fmamk_f32 v{x}, v{XS}, {f32hex(float(i))}, v{XB}" if i else f"v_mov_b32 v{x}, v{XB}")
        a.e(f"v_add_f32 v{x2}, v{x}, v{x}")
        a.e(f"v_cos_f32 v{cs}, v{x}", f"v_sin_f32 v{sn}, v{x}", f"v_cos_f32 v{cs2}, v{x2}", f"v_sin_f32 v{sn2}, v{x2}")
        a.e(f"v_cvt_pk_bf16_f32 v{F32RE+i}, v{cs}, v{sn}", f"v_cvt_pk_bf16_f32 v{F32IM+i}, -v{sn}, v{cs}",
            f"v_cvt_pk_bf16_f32 v{F16RE+i}, v{cs2}, v{sn2}", f"v_cvt_pk_bf16_f32 v{F16IM+i}, -v{sn2}, v{cs2}")
    for base in (F32RE, F32IM):
        for i in range(4):
            a.e(f"v_xor_b32 v{base+4+i}, v{F_MM}, v{base+i}")
        for t in range(2):
            for i in range(4):
                src = base+4*t+i
                if i & 1: a.e(f"v_xor_b32 v{base+8+4*t+i}, s50, v{src}")
                else:     a.e(f"v_mov_b32 v{base+8+4*t+i}, v{src}")
    a.e(f"v_cvt_f32_u32 v{TMP}, s3", f"v_mul_f32 v{TMP}, {f32hex(8/512)}, v{TMP}")
    for r in range(4):
        a.e(f"v_add_f32 v{TMP+4+r}, {f32hex(float(r)) if r else 0}, v{T+2}")
    for aa in range(8):
        a.e(f"v_add_f32 v{TMP+1}, {f32hex(aa/512) if aa else 0}, v{TMP}")
        for r in range(4):
            a.e(f"v_mul_f32 v{T+3+(r&1)}, v{TMP+1}, v{TMP+4+r}",
                f"v_cos_f32 v{F_TWC+4*aa+r}, v{T+3+(r&1)}", f"v_sin_f32 v{F_TWS+4*aa+r}, v{T+3+(r&1)}")

def fft512_compute(a, SOUT, neg_im, nafter, stmod, st0, fs=0, hook=None):
    TMP = F_TMP
    stamp(a, st0)
    for hh in range(2):
        fstamp(a, fs+5*hh)
        for aa in range(4):
            a.e(f"s_waitcnt vmcnt({28-16*hh-4*aa+nafter})")
            a.e(f"v_mfma_f32_16x16x32_bf16 {v(F_DRE+4*aa,4)}, {v(F16RE,4)}, {v(F_IN+16*hh+4*aa,4)}, 0",
                f"v_mfma_f32_16x16x32_bf16 {v(F_DIM+4*aa,4)}, {v(F16IM,4)}, {v(F_IN+16*hh+4*aa,4)}, 0")
        if hh == 1:
            stamp(a, st0+1)
            if hook: hook()
        fstamp(a, fs+5*hh+1)
        for aa in range(4):
            for p in range(2):
                re, im = F_DRE+4*aa+2*p, F_DIM+4*aa+2*p
                tc, ts = F_TWC+16*hh+4*aa+2*p, F_TWS+16*hh+4*aa+2*p
                t0, t1 = TMP+4*p, TMP+4*p+2
                a.e(f"v_pk_mul_f32 {v(t0,2)}, {v(re,2)}, {v(tc,2)}",
                    f"v_pk_mul_f32 {v(t1,2)}, {v(im,2)}, {v(tc,2)}",
                    f"v_pk_fma_f32 {v(t0,2)}, {v(im,2)}, {v(ts,2)}, {v(t0,2)}",
                    f"v_pk_fma_f32 {v(t1,2)}, {v(re,2)}, {v(ts,2)}, {v(t1,2)} neg_lo:[1,0,0] neg_hi:[1,0,0]")
                for e in range(2):
                    r = 2*p+e
                    a.e(f"v_cvt_pk_bf16_f32 v{F_P+4*r+aa}, v{t0+e}, v{t1+e}")
        fstamp(a, fs+5*hh+2)
        if hh == 1: a.e(f"v_xor_b32 v{F_WR}, 16, v{F_WR}")
        for r in range(4):
            a.e(f"ds_write_b128 v{F_WR}, {v(F_P+4*r,4)} offset:{r*2048}")
    a.e("s_waitcnt lgkmcnt(0)")
    fstamp(a, fs+8)
    a.e("s_barrier")
    fstamp(a, fs+9)
    for b in range(4):
        a.e(f"ds_read_b128 {v(F_IN+8*b,4)}, v{F_RD0} offset:{b*2048}",
            f"ds_read_b128 {v(F_IN+8*b+4,4)}, v{F_RD1} offset:{b*2048}")
    sg = "-" if neg_im else ""
    def mf(bb):
        D0 = [F_DRE, F_DIM] if bb == 0 else [F_TWC, F_TWC+16]
        for bl in range(2):
            b = 2*bb+bl
            a.e(f"s_waitcnt lgkmcnt({6-2*b})")
            for t in range(2):
                for h in range(2):
                    for (D_, F_) in ((D0[0], F32RE), (D0[1], F32IM)):
                        d = D_+8*bl+4*h
                        c = "0" if t == 0 else v(d, 4)
                        a.e(f"v_mfma_f32_16x16x32_bf16 {v(d,4)}, {v(F_IN+8*b+4*t,4)}, {v(F_+8*h+4*t,4)}, {c}")
    def st(bb):
        D0 = [F_DRE, F_DIM] if bb == 0 else [F_TWC, F_TWC+16]
        PB = F_P if bb == 0 else F_TWS
        out = []
        for bl in range(2):
            b = 2*bb+bl
            for h in range(2):
                idx = 8*bl+4*h
                for r in range(4):
                    out.append(f"v_cvt_pk_bf16_f32 v{PB+idx+r}, v{D0[0]+idx+r}, {sg}v{D0[1]+idx+r}")
                out.append(f"buffer_store_dwordx4 {v(PB+idx,4)}, v{F_OUTOFF}, s[{SOUT}:{SOUT+3}], s{SO_LIST[2*b+h]} offen {stmod}")
        return out
    mf(0)
    n0 = len(a.lines)
    mf(1)
    m1 = a.lines[n0:]; del a.lines[n0:]
    s0 = st(0)
    k = 0
    seen = 0
    for l in m1:
        a.lines.append(l)
        if "v_mfma" in l:
            seen += 1
            if seen > 4:
                for _ in range(2):
                    if k < len(s0): a.e(s0[k]); k += 1
    while k < len(s0): a.e(s0[k]); k += 1
    fstamp(a, fs+10)
    for l in st(1): a.e(l)

def f8_addr(a, s_sa, s_cb, orow, ostr):
    a.e(f"v_and_b32 v{F_M}, 15, v1", f"v_lshrrev_b32 v{F_G}, 4, v1")
    a.e(f"v_and_b32 v{F_T}, 7, v1", f"v_bfe_u32 v{F_T+1}, v1, 3, 1",
        f"v_lshlrev_b32 v{F_IN0}, 20, v{F_G}", f"v_lshl_add_u32 v{F_IN0}, v{F_T+1}, 15, v{F_IN0}",
        f"v_lshl_add_u32 v{F_IN0}, v{F_T}, 2, v{F_IN0}")
    a.e(f"s_lshl_b32 s48, s{s_sa}, 11", f"s_lshl_b32 s49, s{s_cb}, 5", "s_add_u32 s48, s48, s49",
        "s_lshl_b32 s50, s3, 16", "s_add_u32 s48, s48, s50")
    for aa in range(4):
        for i in range(4):
            a.e(f"s_add_u32 s{SI_OFF+4*aa+i}, s48, {(32*i+aa)*8192}")
    a.e(f"v_lshrrev_b32 v{F_T+2}, 1, v{F_G}", f"v_lshl_add_u32 v{F_T+2}, v{F_M}, 4, v{F_T+2}",
        f"s_mov_b32 s51, {ostr}", f"v_mul_lo_u32 v{F_OUTOFF}, v{F_T+2}, s51",
        f"v_and_b32 v{F_T+2}, 1, v{F_G}", f"v_lshl_add_u32 v{F_OUTOFF}, v{F_T+2}, 4, v{F_OUTOFF}")
    a.e(f"s_mul_i32 s48, s{s_sa}, {orow}", f"s_lshl_b32 s49, s{s_cb}, 5", "s_add_u32 s48, s48, s49",
        f"s_mul_i32 s50, s3, {4*ostr}", "s_add_u32 s48, s48, s50")
    for b in range(2):
        for h in range(2):
            a.e(f"s_add_u32 s{SO_LIST[2*b+h]}, s48, {(2*b+256*h)*ostr}")
    a.e("s_lshl_b32 s50, s3, 1", f"v_add_u32 v{F_T+2}, s50, v{F_T+1}", f"v_xor_b32 v{F_T+2}, v{F_T+2}, v{F_T}",
        f"v_lshlrev_b32 v{F_WR}, 4, v{F_T+2}", f"v_lshl_add_u32 v{F_WR}, v{F_T}, 7, v{F_WR}", f"v_lshl_add_u32 v{F_WR}, v{F_G}, 12, v{F_WR}")
    a.e(f"v_xor_b32 v{F_T+2}, v{F_G}, v{F_T}", f"v_lshlrev_b32 v{F_RD0}, 4, v{F_T+2}",
        f"v_lshl_add_u32 v{F_RD0}, v{F_T}, 7, v{F_RD0}", f"v_lshl_add_u32 v{F_RD0}, v{F_T+1}, 10, v{F_RD0}",
        "s_lshl_b32 s50, s3, 12", f"v_add_u32 v{F_RD0}, s50, v{F_RD0}", f"v_xor_b32 v{F_RD1}, 64, v{F_RD0}")

def f8_consts(a):
    T, TMP = F_T, F_TMP
    XS, XB = T, T+1
    a.e(f"v_cvt_f32_u32 v{XS}, v{F_M}", f"v_mul_f32 v{XS}, {f32hex(1/32)}, v{XS}",
        f"v_cvt_f32_u32 v{T+2}, v{F_G}", f"v_mul_f32 v{T+2}, 4.0, v{T+2}",
        f"v_mul_f32 v{XB}, v{T+2}, v{XS}")
    a.e(f"v_and_b32 v{F_MM}, 1, v{F_M}", f"v_mul_u32_u24 v{F_MM}, 0x8000, v{F_MM}",
        f"v_lshl_or_b32 v{F_MM}, v{F_MM}, 16, v{F_MM}", "s_mov_b32 s50, 0x80008000")
    for i in range(4):
        x = TMP; cs = TMP+1; sn = TMP+2; x2 = TMP+3; cs2 = TMP+4; sn2 = TMP+5
        a.e(f"v_fmamk_f32 v{x}, v{XS}, {f32hex(float(i))}, v{XB}" if i else f"v_mov_b32 v{x}, v{XB}")
        a.e(f"v_add_f32 v{x2}, v{x}, v{x}")
        a.e(f"v_cos_f32 v{cs}, v{x}", f"v_sin_f32 v{sn}, v{x}", f"v_cos_f32 v{cs2}, v{x2}", f"v_sin_f32 v{sn2}, v{x2}")
        a.e(f"v_cvt_pk_bf16_f32 v{F32RE+i}, v{cs}, v{sn}", f"v_cvt_pk_bf16_f32 v{F32IM+i}, -v{sn}, v{cs}",
            f"v_cvt_pk_bf16_f32 v{F16RE+i}, v{cs2}, v{sn2}", f"v_cvt_pk_bf16_f32 v{F16IM+i}, -v{sn2}, v{cs2}")
    for base in (F32RE, F32IM):
        for i in range(4):
            a.e(f"v_xor_b32 v{base+4+i}, v{F_MM}, v{base+i}")
        for t in range(2):
            for i in range(4):
                src = base+4*t+i
                if i & 1: a.e(f"v_xor_b32 v{base+8+4*t+i}, s50, v{src}")
                else:     a.e(f"v_mov_b32 v{base+8+4*t+i}, v{src}")
    a.e(f"v_bfe_u32 v{TMP}, v1, 3, 1", "s_lshl_b32 s50, s3, 1", f"v_add_u32 v{TMP}, s50, v{TMP}",
        f"v_cvt_f32_u32 v{TMP}, v{TMP}", f"v_mul_f32 v{TMP}, {f32hex(4/512)}, v{TMP}")
    for r in range(4):
        a.e(f"v_add_f32 v{TMP+4+r}, {f32hex(float(r)) if r else 0}, v{T+2}")
    for aa in range(4):
        a.e(f"v_add_f32 v{TMP+1}, {f32hex(aa/512) if aa else 0}, v{TMP}")
        for r in range(4):
            a.e(f"v_mul_f32 v{T+3+(r&1)}, v{TMP+1}, v{TMP+4+r}",
                f"v_cos_f32 v{F_TWC+4*aa+r}, v{T+3+(r&1)}", f"v_sin_f32 v{F_TWS+4*aa+r}, v{T+3+(r&1)}")

def f8_run(a, SIN, SOUT, ldmod, stmod):
    TMP = F_TMP
    for aa in range(4):
        for i in range(4):
            a.e(f"buffer_load_dword v{F_IN+4*aa+i}, v{F_IN0}, s[{SIN}:{SIN+3}], s{SI_OFF+4*aa+i} offen {ldmod}")
    fstamp(a, 3)
    for aa in range(4):
        a.e(f"s_waitcnt vmcnt({12-4*aa})")
        a.e(f"v_mfma_f32_16x16x32_bf16 {v(F_DRE+4*aa,4)}, {v(F16RE,4)}, {v(F_IN+4*aa,4)}, 0",
            f"v_mfma_f32_16x16x32_bf16 {v(F_DIM+4*aa,4)}, {v(F16IM,4)}, {v(F_IN+4*aa,4)}, 0")
    fstamp(a, 1)
    for aa in range(4):
        for p in range(2):
            re, im = F_DRE+4*aa+2*p, F_DIM+4*aa+2*p
            tc, ts = F_TWC+4*aa+2*p, F_TWS+4*aa+2*p
            t0, t1 = TMP+4*p, TMP+4*p+2
            a.e(f"v_pk_mul_f32 {v(t0,2)}, {v(re,2)}, {v(tc,2)}",
                f"v_pk_mul_f32 {v(t1,2)}, {v(im,2)}, {v(tc,2)}",
                f"v_pk_fma_f32 {v(t0,2)}, {v(im,2)}, {v(ts,2)}, {v(t0,2)}",
                f"v_pk_fma_f32 {v(t1,2)}, {v(re,2)}, {v(ts,2)}, {v(t1,2)} neg_lo:[1,0,0] neg_hi:[1,0,0]")
            for e in range(2):
                r = 2*p+e
                a.e(f"v_cvt_pk_bf16_f32 v{F_P+4*r+aa}, v{t0+e}, v{t1+e}")
    for r in range(4):
        a.e(f"ds_write_b128 v{F_WR}, {v(F_P+4*r,4)} offset:{r*1024}")
    a.e("s_waitcnt lgkmcnt(0)")
    fstamp(a, 8)
    a.e("s_barrier")
    fstamp(a, 9)
    for b in range(2):
        a.e(f"ds_read_b128 {v(F_IN+8*b,4)}, v{F_RD0} offset:{b*2048}",
            f"ds_read_b128 {v(F_IN+8*b+4,4)}, v{F_RD1} offset:{b*2048}")
    for b in range(2):
        a.e(f"s_waitcnt lgkmcnt({2-2*b})")
        for t in range(2):
            for h in range(2):
                for (D_, F_) in ((F_DRE, F32RE), (F_DIM, F32IM)):
                    d = D_+8*b+4*h
                    c = "0" if t == 0 else v(d, 4)
                    a.e(f"v_mfma_f32_16x16x32_bf16 {v(d,4)}, {v(F_IN+8*b+4*t,4)}, {v(F_+8*h+4*t,4)}, {c}")
    fstamp(a, 10)
    for b in range(2):
        for h in range(2):
            idx = 8*b+4*h
            for r in range(4):
                a.e(f"v_cvt_pk_bf16_f32 v{F_P+idx+r}, v{F_DRE+idx+r}, -v{F_DIM+idx+r}")
            a.e(f"buffer_store_dwordx4 {v(F_P+idx,4)}, v{F_OUTOFF}, s[{SOUT}:{SOUT+3}], s{SO_LIST[2*b+h]} offen {stmod}")

IDX, G_, VG, VGW, VRR, VHR, VST, VW = 2, 3, 6, 7, 8, 12, 13, 14
CRE, CIM, TWC, TWS, WR, WI, ARE, AIM, DF, GA, HRE, HIM, GB, TMP = 16, 32, 48, 64, 80, 96, 112, 128, 144, 160, 164, 168, 172, 188
W2R, W2I, SP, PF, PF2 = 204, 220, 236, 248, 252
LW = 32768; LSC = 16384; LW2 = 49152

def w_dma(a, SWR, SWI, s_rowoff, s_mirroff, s_ldsbase, vlane16):
    a.e(f"s_mov_b32 m0, s{s_ldsbase}", f"buffer_load_dwordx4 v{vlane16}, s[{SWR}:{SWR+3}], s{s_rowoff} offen lds" + NT())
    a.e(f"s_add_u32 s93, s{s_ldsbase}, 1024", "s_mov_b32 m0, s93", f"buffer_load_dwordx4 v{vlane16}, s[{SWI}:{SWI+3}], s{s_rowoff} offen lds" + NT())
    a.e(f"s_add_u32 s92, s{s_mirroff}, 2")
    a.e(f"s_add_u32 s93, s{s_ldsbase}, 2048", "s_mov_b32 m0, s93", f"buffer_load_dwordx4 v{vlane16}, s[{SWR}:{SWR+3}], s92 offen lds" + NT())
    a.e(f"s_add_u32 s93, s{s_ldsbase}, 3072", "s_mov_b32 m0, s93", f"buffer_load_dwordx4 v{vlane16}, s[{SWI}:{SWI+3}], s92 offen lds" + NT())

def pf_loads(a, SWR, SWI, s_rowoff, s_mirroff, dst, vt):
    a.e(f"v_mov_b32 v{vt}, s{s_mirroff}", f"v_mov_b32 v{vt+1}, s{s_rowoff}", f"v_add_u32 v{vt+1}, 1024, v{vt+1}")
    a.e(f"buffer_load_short_d16_hi v{dst}, v{vt}, s[{SWR}:{SWR+3}], 0 offen",
        f"buffer_load_short_d16_hi v{dst+1}, v{vt}, s[{SWI}:{SWI+3}], 0 offen",
        f"buffer_load_short_d16_hi v{dst+2}, v{vt+1}, s[{SWR}:{SWR+3}], 0 offen",
        f"buffer_load_short_d16_hi v{dst+3}, v{vt+1}, s[{SWI}:{SWI+3}], 0 offen")

def w_lds_reads(a, vlo, vhi, dr, di):
    for (dst, o) in ((dr, 0), (di, 1024)):
        for r in range(16):
            e = eidx(r)
            if r < 8: a.e(f"ds_read_u16_d16_hi v{dst+r}, v{vlo} offset:{o+64*e}")
            else:     a.e(f"ds_read_u16_d16_hi v{dst+r}, v{vhi} offset:{o+64*(27-e)}")

def fix_w(a, dr, di, pf):
    a.e("v_cmp_eq_u32 vcc, 0, v1")
    for (r, o) in ((0, 0), (8, 2)):
        a.e(f"v_add_f32 v{TMP}, v{dr+r}, v{pf+o}", f"v_mul_f32 v{TMP}, 0.5, v{TMP}",
            f"v_sub_f32 v{TMP+1}, v{di+r}, v{pf+o+1}", f"v_mul_f32 v{TMP+1}, 0.5, v{TMP+1}",
            f"v_cndmask_b32 v{dr+r}, v{dr+r}, v{TMP}, vcc", f"v_cndmask_b32 v{di+r}, v{di+r}, v{TMP+1}, vcc")

def fft1024(a, mid=None):
    for t in range(4):
        c0 = "0" if t == 0 else v(ARE, 16); c1 = "0" if t == 0 else v(AIM, 16)
        a.e(f"v_mfma_f32_32x32x16_bf16 {v(ARE,16)}, {v(DF+4*t,4)}, {v(CRE+4*t,4)}, {c0}",
            f"v_mfma_f32_32x32x16_bf16 {v(AIM,16)}, {v(DF+4*t,4)}, {v(CIM+4*t,4)}, {c1}")
    for p in range(8):
        re, im, tc, ts = ARE+2*p, AIM+2*p, TWC+2*p, TWS+2*p
        t0 = TMP+4*(p & 1); t1 = t0+2
        a.e(f"v_pk_mul_f32 {v(t0,2)}, {v(re,2)}, {v(tc,2)}",
            f"v_pk_mul_f32 {v(t1,2)}, {v(im,2)}, {v(tc,2)}",
            f"v_pk_fma_f32 {v(t0,2)}, {v(im,2)}, {v(ts,2)}, {v(t0,2)}",
            f"v_pk_fma_f32 {v(t1,2)}, {v(re,2)}, {v(ts,2)}, {v(t1,2)} neg_lo:[1,0,0] neg_hi:[1,0,0]")
        for e in range(2):
            a.e(f"v_cvt_pk_bf16_f32 v{DF+2*p+e}, v{t0+e}, v{t1+e}")
    for t in range(4):
        if mid and t == 1: mid()
        c0 = "0" if t == 0 else v(ARE, 16); c1 = "0" if t == 0 else v(AIM, 16)
        a.e(f"v_mfma_f32_32x32x16_bf16 {v(ARE,16)}, {v(CRE+4*t,4)}, {v(DF+4*t,4)}, {c0}",
            f"v_mfma_f32_32x32x16_bf16 {v(AIM,16)}, {v(CIM+4*t,4)}, {v(DF+4*t,4)}, {c1}")

def a2_consts(a, sT):
    a.e(f"v_and_b32 v{IDX}, 31, v1", f"v_lshrrev_b32 v{G_}, 5, v1")
    XS, XB = TMP, TMP+1
    a.e(f"v_cvt_f32_u32 v{TMP+2}, v{IDX}", f"v_cvt_f32_u32 v{TMP+3}, v{G_}", f"v_mul_f32 v{TMP+3}, 4.0, v{TMP+3}",
        f"v_mul_f32 v{XS}, {f32hex(1/32)}, v{TMP+2}", f"v_mul_f32 v{XB}, v{TMP+3}, v{XS}")
    a.e(f"v_and_b32 v{TMP+4}, 1, v{IDX}", f"v_mul_u32_u24 v{TMP+4}, 0x8000, v{TMP+4}", f"v_lshl_or_b32 v{TMP+4}, v{TMP+4}, 16, v{TMP+4}")
    for t in range(2):
        for i in range(4):
            c = float(8*t+i); x = TMP+5+3*(i & 1)
            a.e(f"v_fmamk_f32 v{x}, v{XS}, {f32hex(c)}, v{XB}" if c else f"v_mov_b32 v{x}, v{XB}")
            a.e(f"v_cos_f32 v{x+1}, v{x}", f"v_sin_f32 v{x+2}, v{x}")
            a.e(f"v_cvt_pk_bf16_f32 v{CRE+4*t+i}, v{x+1}, v{x+2}", f"v_cvt_pk_bf16_f32 v{CIM+4*t+i}, -v{x+2}, v{x+1}")
    for base in (CRE, CIM):
        for i in range(8):
            a.e(f"v_xor_b32 v{base+8+i}, v{TMP+4}, v{base+i}")
    a.e(f"v_mul_f32 v{XS}, {f32hex(1/1024)}, v{TMP+2}", f"v_mul_f32 v{XB}, v{TMP+3}, v{XS}")
    for r in range(16):
        c = float(eidx(r)); x = TMP+5+(r & 1)
        a.e(f"v_fmamk_f32 v{x}, v{XS}, {f32hex(c)}, v{XB}" if c else f"v_mov_b32 v{x}, v{XB}")
        a.e(f"v_cos_f32 v{TWC+r}, v{x}", f"v_sin_f32 v{TWS+r}, v{x}")
    LO, HI, Q, AV, XA0, XA1, E0, E1 = TMP, TMP+1, TMP+2, TMP+3, TMP+4, TMP+5, TMP+6, TMP+7
    JF, KEY, T2, PO, PAR, N16, G4, CS = [TMP+8+i for i in range(8)]
    Lspec, Ldone = newlbl("ghspec"), newlbl("ghdone")
    a.e(f"v_and_b32 v{LO}, 3, v{IDX}", f"v_bfe_u32 v{HI}, v{IDX}, 2, 2")
    a.e(f"v_and_b32 v{N16}, 15, v1", f"v_lshrrev_b32 v{G4}, 4, v1")
    a.e(f"s_cmp_eq_u32 s{sT}, 0", f"s_cbranch_scc1 {Lspec}")
    a.e(f"v_cvt_f32_u32 v{T2}, s{sT}", f"v_cvt_f32_u32 v{JF}, v{HI}", f"v_fmamk_f32 v{JF}, v{JF}, {f32hex(512.0)}, v{T2}",
        f"v_mul_f32 v{JF}, {f32hex(1/2048)}, v{JF}",
        f"v_cvt_f32_u32 v{XA0}, v{G_}", f"v_add_f32 v{XA0}, v{XA0}, v{XA0}", f"v_add_f32 v{XA1}, 1.0, v{XA0}",
        f"v_mul_f32 v{XA0}, v{XA0}, v{JF}", f"v_mul_f32 v{XA1}, v{XA1}, v{JF}",
        f"v_lshlrev_b32 v{Q}, 3, v{LO}", "s_mov_b32 s50, 0x4631914C", f"v_lshrrev_b32 v{Q}, v{Q}, s50",
        f"v_mov_b32 v{AV}, 0.5", f"v_cmp_gt_u32 vcc, 16, v{IDX}", f"v_cndmask_b32 v{AV}, 0, v{AV}, vcc")
    for jj2 in range(4):
        for e in range(2):
            jj = 2*jj2+e
            xa = XA1 if jj >> 2 else XA0
            a.e(f"v_bfe_u32 v{E0+e}, v{Q}, {2*(jj&3)}, 2", f"v_cvt_f32_u32 v{E0+e}, v{E0+e}",
                f"v_fmamk_f32 v{E0+e}, v{E0+e}, {f32hex(0.25)}, v{xa}", f"v_cos_f32 v{E0+e}, v{E0+e}",
                f"v_mul_f32 v{E0+e}, v{E0+e}, v{AV}")
        a.e(f"v_cvt_pk_bf16_f32 v{GA+jj2}, v{E0}, v{E1}")
    a.e(f"v_bfe_u32 v{HI}, v{N16}, 1, 2", f"v_cvt_f32_u32 v{KEY}, v{HI}", f"v_mul_f32 v{KEY}, {f32hex(1/2048)}, v{KEY}",
        f"v_and_b32 v{JF}, 1, v{G4}", f"v_cvt_f32_u32 v{JF}, v{JF}", f"v_fmamk_f32 v{JF}, v{JF}, {f32hex(1024.0)}, v{T2}",
        f"v_add_f32 v{XA1}, {f32hex(512.0)}, v{JF}", f"v_mul_f32 v{XA0}, v{JF}, v{KEY}", f"v_mul_f32 v{XA1}, v{XA1}, v{KEY}",
        f"v_lshrrev_b32 v{CS}, 1, v{G4}", f"v_lshrrev_b32 v{AV}, 3, v{N16}", f"v_cmp_eq_u32 vcc, v{CS}, v{AV}",
        f"v_mov_b32 v{AV}, {f32hex(2.0**-21)}", f"v_cndmask_b32 v{AV}, 0, v{AV}, vcc",
        f"v_and_b32 v{PO}, 1, v{N16}")
    for part, Hd in ((0, HRE), (1, HIM)):
        w0, w1 = (0x1C, 0xBC) if part == 0 else (0x61, 0x6B)
        a.e(f"v_mov_b32 v{Q}, {w0}", f"v_mov_b32 v{PAR}, {w1}", f"v_cmp_eq_u32 vcc, 1, v{PO}", f"v_cndmask_b32 v{Q}, v{Q}, v{PAR}, vcc")
        for jj2 in range(4):
            for e in range(2):
                jj = 2*jj2+e
                xa = XA1 if jj >> 2 else XA0
                a.e(f"v_bfe_u32 v{E0+e}, v{Q}, {2*(jj&3)}, 2", f"v_cvt_f32_u32 v{E0+e}, v{E0+e}",
                    f"v_fmamk_f32 v{E0+e}, v{E0+e}, {f32hex(0.25)}, v{xa}", f"v_cos_f32 v{E0+e}, v{E0+e}",
                    f"v_mul_f32 v{E0+e}, v{E0+e}, v{AV}")
            a.e(f"v_cvt_pk_bf16_f32 v{Hd+jj2}, v{E0}, v{E1}")
    a.e(f"s_branch {Ldone}")
    a.label(Lspec)
    a.e(f"v_and_b32 v{PO}, 1, v{LO}", f"v_lshrrev_b32 v{PAR}, 1, v{LO}")
    a.e(f"v_lshlrev_b32 v{JF}, 2, v{HI}", "s_mov_b32 s50, 0x3120", f"v_lshrrev_b32 v{JF}, v{JF}, s50", f"v_and_b32 v{JF}, 15, v{JF}",
        f"v_lshlrev_b32 v{JF}, 8, v{JF}", f"v_lshlrev_b32 v{T2}, 10, v{PO}",
        f"v_cmp_eq_u32 vcc, 0, v{HI}", f"v_cndmask_b32 v{JF}, v{JF}, v{T2}, vcc", f"v_mov_b32 v{T2}, 0",
        f"v_cndmask_b32 v{Q}, v{PO}, v{T2}, vcc",
        f"v_cvt_f32_u32 v{JF}, v{JF}", f"v_mul_f32 v{JF}, {f32hex(1/2048)}, v{JF}",
        f"v_cvt_f32_u32 v{Q}, v{Q}", f"v_mul_f32 v{Q}, {f32hex(0.25)}, v{Q}",
        f"v_cvt_f32_u32 v{XA0}, v{G_}", f"v_add_f32 v{XA0}, v{XA0}, v{XA0}", f"v_add_f32 v{XA1}, 1.0, v{XA0}",
        f"v_fma_f32 v{XA0}, v{XA0}, v{JF}, v{Q}", f"v_fma_f32 v{XA1}, v{XA1}, v{JF}, v{Q}",
        f"v_cos_f32 v{XA0}, v{XA0}", f"v_cos_f32 v{XA1}, v{XA1}",
        f"v_lshrrev_b32 v{KEY}, 1, v{HI}", f"v_lshl_add_u32 v{KEY}, v{KEY}, 1, v{PAR}",
        f"v_lshrrev_b32 v{T2}, 4, v{IDX}", f"v_lshl_add_u32 v{KEY}, v{T2}, 2, v{KEY}", f"v_mov_b32 v{T2}, 0")
    for jj2 in range(4):
        for e in range(2):
            jj = 2*jj2+e
            xa = XA1 if jj >> 2 else XA0
            a.e(f"v_cmp_eq_u32 vcc, {jj&3}, v{KEY}", f"v_cndmask_b32 v{E0+e}, v{T2}, v{xa}, vcc")
        a.e(f"v_cvt_pk_bf16_f32 v{GA+jj2}, v{E0}, v{E1}")
    SAF, GS = JF, PAR
    a.e(f"v_bfe_u32 v{HI}, v{N16}, 1, 2", f"v_cvt_f32_u32 v{SAF}, v{HI}", f"v_mul_f32 v{SAF}, {f32hex(1/2048)}, v{SAF}",
        f"v_and_b32 v{GS}, 1, v{G4}", f"v_and_b32 v{PO}, 1, v{N16}",
        f"v_lshrrev_b32 v{CS}, 1, v{G4}", f"v_lshrrev_b32 v{T2}, 3, v{N16}",
        f"v_cmp_eq_u32 s[44:45], v{CS}, v{T2}", f"v_cmp_eq_u32 s[46:47], v{GS}, v{PO}", "s_and_b64 s[44:45], s[44:45], s[46:47]",
        f"v_cmp_eq_u32 s[46:47], 0, v{GS}")
    for part, Hd in ((0, HRE), (1, HIM)):
        for jj in range(8):
            sl, par, pi = jj >> 2, (jj >> 1) & 1, jj & 1
            e = E0 + (jj & 1)
            if par != part:
                a.e(f"v_mov_b32 v{e}, 0")
            else:
                if sl == 0:
                    j0, q0, a0 = 1024.0*pi, 0.5*pi, 2.0**-21
                    j1, q1, a1 = 256.0, 0.75*pi, 2.0**-20
                else:
                    j0, q0, a0 = 512.0, 0.75*pi, 2.0**-20
                    j1, q1, a1 = 768.0, 0.75*pi, 2.0**-20
                def sel(dst, x0, x1):
                    a.e(f"v_mov_b32 v{dst}, {f32hex(x1)}", f"v_mov_b32 v{AV}, {f32hex(x0)}", f"v_cndmask_b32 v{dst}, v{dst}, v{AV}, s[46:47]")
                sel(XA0, j0, j1); sel(XA1, q0 + 0.5*part, q1 + 0.5*part)
                a.e(f"v_fma_f32 v{XA0}, v{XA0}, v{SAF}, v{XA1}", f"v_cos_f32 v{XA0}, v{XA0}")
                sel(XA1, a0, a1)
                a.e(f"v_mul_f32 v{XA0}, v{XA0}, v{XA1}", f"v_mov_b32 v{XA1}, 0", f"v_cndmask_b32 v{e}, v{XA1}, v{XA0}, s[44:45]")
            if jj & 1: a.e(f"v_cvt_pk_bf16_f32 v{Hd+(jj>>1)}, v{E0}, v{E1}")
    a.label(Ldone)
    a.e("s_nop 1")


BT_S0, BT_S1, BT_S2, BT_S3 = 52, 56, 60, 64
BT_SOFF = ["0", "s68", "s69", "s70", "s71", "s76", "s77", "s78"]
BT_ROW, BT_CH, BT_MASK = 48, 49, 50
def bt_setup(a):
    a.e(f"s_lshl_b32 s{BT_ROW}, s{sSUBT}, 7", "s_lshl_b32 s51, s3, 5", f"s_add_u32 s{BT_ROW}, s{BT_ROW}, s51", f"s_lshl_b32 s{BT_CH}, s{sCBKT}, 6")
    for i in range(1, 8): a.e(f"s_mov_b32 {BT_SOFF[i]}, {4096*i}")
    a.e(f"s_mov_b32 s{BT_MASK}, 0xffff0000")

def scratch_addr(a, vdst, vcg, vrg):
    a.e(f"s_lshl_b32 s51, s{sSUBT}, 7", "s_lshr_b32 s92, s3, 1", "s_add_u32 s51, s51, s92", "s_lshl_b32 s51, s51, 12",
        f"s_lshl_b32 s92, s{sCBKT}, 7", "s_add_u32 s51, s51, s92", "s_and_b32 s92, s3, 1", "s_lshl_b32 s92, s92, 6", "s_add_u32 s51, s51, s92",
        "s_add_u32 s51, s51, 2048",
        f"v_lshlrev_b32 v{vdst}, 15, v{vcg}", f"v_lshl_add_u32 v{vdst}, v{vrg}, 4, v{vdst}", f"v_add_u32 v{vdst}, s51, v{vdst}")
SCR_SOFF = ["0", "s69", "s71", "s77"]

def emit_B1(a, shadow=None, hook=None, post_mode=None, after_stores=None, nafter=0):
    SK, SV, SSH, SKVT = BT_S0, BT_S1, BT_S2, BT_S3
    srd(a, SK, P_K, P_K+1, 4*MB); srd(a, SV, P_V, P_V+1, 4*MB); srd(a, SSH, P_SHK, P_SHK+1, 8192); srd(a, SKVT, P_OUT, P_OUT+1, 8*MB)
    bt_setup(a)
    soff = BT_SOFF; M = BT_MASK
    CG, RG, S0, CH0, VOFF, VH, VST, VSH = 2, 3, 4, 5, 6, 7, 8, 9
    a.e(f"v_and_b32 v{CG}, 15, v1", f"v_lshrrev_b32 v{RG}, 4, v1",
        f"v_lshl_add_u32 v{S0}, v{RG}, 3, s{BT_ROW}", f"v_lshl_add_u32 v{CH0}, v{CG}, 2, s{BT_CH}",
        f"v_lshlrev_b32 v{VOFF}, 11, v{S0}", f"v_lshl_add_u32 v{VOFF}, v{CH0}, 1, v{VOFF}",
        f"v_subrev_u32 v{VH}, 6144, v{VOFF}",
        f"v_lshlrev_b32 v{VSH}, 3, v{CH0}")
    scratch_addr(a, VST, CG, RG)
    KR, VR, SHR, KF, SHF, KV, TM, PK = 16, 38, 54, 64, 108, 124, 156, 16
    if OPT["bactwait"] and OPT["b1all"]:
        Lw = newlbl("bw")
        a.e(f"s_cmp_eq_u32 s{sACT}, 0", f"s_cbranch_scc1 {Lw}", "s_waitcnt lgkmcnt(0)")
        a.label(Lw)
    if OPT["earlypub"]:
        Lp = newlbl("epub")
        a.e("s_cmp_lg_u32 s3, 0", f"s_cbranch_scc1 {Lp}")
        fin_epoch(a); loc_publish(a)
        a.label(Lp)
    a.e(f"buffer_load_dwordx4 {v(SHR,4)}, v{VSH}, s[{SSH}:{SSH+3}], 0 offen",
        f"buffer_load_dwordx4 {v(SHR+4,4)}, v{VSH}, s[{SSH}:{SSH+3}], 0 offen offset:16")
    for i in range(3):
        a.e(f"buffer_load_dwordx2 {v(KR+2*i,2)}, v{VH}, s[{SK}:{SK+3}], {soff[i>>1]} offen" + (" offset:2048" if i & 1 else "") + (NT() if OPT["ntk"] else ""))
    for i in range(8):
        a.e(f"buffer_load_dwordx2 {v(KR+6+2*i,2)}, v{VOFF}, s[{SK}:{SK+3}], {soff[i>>1]} offen" + (" offset:2048" if i & 1 else "") + (NT() if OPT["ntk"] else ""))
    for i in range(8):
        a.e(f"buffer_load_dwordx2 {v(VR+2*i,2)}, v{VOFF}, s[{SV}:{SV+3}], {soff[i>>1]} offen" + (" offset:2048" if i & 1 else "") + NT())
    stamp(a, 2)
    if OPT["earlypub"]:
        Lq = newlbl("epub2")
        a.e("s_cmp_eq_u32 s3, 0", f"s_cbranch_scc1 {Lq}")
        fin_epoch(a)
        a.label(Lq)
    else:
        fin_epoch(a)
        loc_publish(a)
    if shadow: shadow()
    def wv(n, extra):
        if extra and not OPT["earlypub"]:
            L = newlbl("wv")
            a.e(f"s_cbranch_scc1 {L}", f"s_waitcnt vmcnt({n})")
            a.label(L)
            a.e(f"s_waitcnt vmcnt({n+extra})")
        elif extra == 2 and OPT["earlypub"]:
            L = newlbl("wv")
            a.e(f"s_cbranch_scc1 {L}", f"s_waitcnt vmcnt({n})")
            a.label(L)
            a.e(f"s_waitcnt vmcnt({n+1})")
        else:
            a.e(f"s_waitcnt vmcnt({n})")
    a.e("s_cmp_eq_u32 s3, 0")
    wv(19, 1)
    for ch in range(4):
        for j in range(4):
            src = SHR + 2*ch + (j >> 1)
            if j & 1: a.e(f"v_and_b32 v{SHF+4*j+ch}, s{M}, v{src}")
            else:     a.e(f"v_lshlrev_b32 v{SHF+4*j+ch}, 16, v{src}")
    for i in range(11):
        wv(18-i, 1)
        for hf in range(2):
            a.e(f"v_lshlrev_b32 v{KF+4*i+2*hf}, 16, v{KR+2*i+hf}", f"v_and_b32 v{KF+4*i+2*hf+1}, s{M}, v{KR+2*i+hf}")
    loc_issue(a, 10)
    a.e("s_cmp_eq_u32 s3, 0")
    for i in range(8):
        wv(7-i, 2)
        if i == 7 and hook: hook()
        for hf in range(2):
            a.e(f"v_lshlrev_b32 v{TM+2*hf}, 16, v{VR+2*i+hf}", f"v_and_b32 v{TM+2*hf+1}, s{M}, v{VR+2*i+hf}")
        for hf in range(2):
            acc = KV+4*i+2*hf
            a.e(f"v_pk_mul_f32 {v(acc,2)}, {v(KF+4*(i+3)+2*hf,2)}, {v(SHF+2*hf,2)}")
            for j in range(1, 4):
                a.e(f"v_pk_fma_f32 {v(acc,2)}, {v(KF+4*(i+3-j)+2*hf,2)}, {v(SHF+4*j+2*hf,2)}, {v(acc,2)}")
            a.e(f"v_pk_mul_f32 {v(acc,2)}, {v(acc,2)}, {v(TM+2*hf,2)}")
    stamp(a, 3)
    for ch in range(4):
        for m in range(4):
            a.e(f"v_cvt_pk_bf16_f32 v{PK+4*ch+m}, v{KV+4*(7-2*m)+ch}, v{KV+4*(6-2*m)+ch}")
    sts = [f"buffer_store_dwordx4 {v(PK+4*ch,4)}, v{VST}, s[{SKVT}:{SKVT+3}], {SCR_SOFF[ch]} offen" for ch in range(4)]
    if OPT["twoflag"]:
        for l in sts: a.e(l + (" nt" if OPT["ntscr"] else ""))
        stamp(a, 4)
        a.e(f"s_lshl_b32 s51, s{sCBKT}, 4", f"s_add_u32 s51, s51, s{sSUBT}", f"s_lshl_b32 s51, s51, {FB()}", f"s_add_u32 s92, s51, {SY_B1}")
        La = newlbl("siga")
        a.e("s_waitcnt vmcnt(0)", "s_barrier", "s_cmp_lg_u32 s3, 0", f"s_cbranch_scc1 {La}",
            "v_mov_b32 v14, s92", f"v_mov_b32 v15, s{S_TGT}", "s_mov_b64 exec, 1",
            f"buffer_store_dword v15, v14, s[{S_SYN}:{S_SYN+3}], 0 offen", "s_mov_b64 exec, -1")
        a.label(La)
        if after_stores: after_stores()
        loc_resolve(a, 10, nafter=nafter + 1 if after_stores else 1)
        Lo = newlbl("opt")
        a.e(f"s_cmp_lg_u32 s{sLOC}, 0", f"s_cbranch_scc1 {Lo}", "s_waitcnt vmcnt(0)")
        for l in sts: a.e(l + " sc1")
        a.e(f"s_add_u32 s51, s51, {SY_B1B}")
        signal(a, 51, 14)
        a.label(Lo)
        return
    if OPT["optst"]:
        for l in sts: a.e(l)
        if after_stores: after_stores()
        loc_resolve(a, 10, nafter=nafter)
        Lo = newlbl("opt")
        a.e(f"s_cmp_lg_u32 s{sLOC}, 0", f"s_cbranch_scc1 {Lo}", "s_waitcnt vmcnt(0)")
        for l in sts: a.e(l + " sc1")
        a.e("s_waitcnt vmcnt(0)")
        a.label(Lo)
    else:
        loc_resolve(a, 10)
        dual_store(a, sts)
    stamp(a, 4)
    a.e(f"s_lshl_b32 s51, s{sCBKT}, 4", f"s_add_u32 s51, s51, s{sSUBT}", f"s_lshl_b32 s51, s51, {FB()}", f"s_add_u32 s51, s51, {SY_B1}")
    signal(a, 51, 14, nafter=nafter, bloc=True)

B3_QR, B3_VQ, B3_VT, B3_VO = 208, 224, 225, 226
def emit_B3_pre(a):
    SQ, STT, SOUT = BT_S0, BT_S1, BT_S2
    srd(a, SQ, P_Q, P_Q+1, 4*MB); srd(a, SOUT, P_OUT, P_OUT+1, 8*MB)
    bt_setup(a)
    t = 227
    a.e(f"v_and_b32 v{t}, 15, v1", f"v_lshrrev_b32 v{t+1}, 4, v1",
        f"v_lshl_add_u32 v{t+1}, v{t+1}, 3, s{BT_ROW}", f"v_lshl_add_u32 v{t}, v{t}, 2, s{BT_CH}",
        f"v_lshlrev_b32 v{B3_VQ}, 11, v{t+1}", f"v_lshl_add_u32 v{B3_VQ}, v{t}, 1, v{B3_VQ}",
        f"v_lshlrev_b32 v{B3_VO}, 12, v{t+1}", f"v_lshl_add_u32 v{B3_VO}, v{t}, 1, v{B3_VO}", f"v_add_u32 v{B3_VO}, 2048, v{B3_VO}")
    a.e(f"v_and_b32 v{t}, 15, v1", f"v_lshrrev_b32 v{t+1}, 4, v1")
    scratch_addr(a, B3_VT, t, t+1)
    for i in range(8):
        a.e(f"buffer_load_dwordx2 {v(B3_QR+2*i,2)}, v{B3_VQ}, s[{SQ}:{SQ+3}], {BT_SOFF[i>>1]} offen" + (" offset:2048" if i & 1 else "") + NT())

def emit_B3(a):
    SQ, STT, SOUT = BT_S0, BT_S1, BT_S2
    soff = BT_SOFF; M = BT_MASK
    TR, TF, QF = 16, 48, 80
    a.e(f"s_mov_b32 s{M}, 0xffff0000")
    a.e(f"s_lshl_b32 s51, s{sCBKT}, {4+FB()}", f"s_add_u32 s51, s51, {SY_B2}",
        "v_and_b32 v12, 15, v1", f"v_lshlrev_b32 v12, {FB()}, v12", "v_add_u32 v12, s51, v12")
    a.e("s_waitcnt vmcnt(0)")
    for e in range(8):
        qf = QF + 4*e
        for hf in range(2):
            a.e(f"v_lshlrev_b32 v{qf+2*hf}, 16, v{B3_QR+2*e+hf}", f"v_and_b32 v{qf+2*hf+1}, s{M}, v{B3_QR+2*e+hf}")
    wait_flags(a, 12, 1, 13, 51)
    stamp(a, 10)
    for ch in range(4):
        a.e(f"buffer_load_dwordx4 {v(TR+4*ch,4)}, v{B3_VT}, s[{SOUT}:{SOUT+3}], {SCR_SOFF[ch]} offen" + LDL())
    for ch in range(4):
        a.e(f"s_waitcnt vmcnt({3-ch})")
        for e in range(8):
            src = TR+4*ch+(e >> 1)
            if e & 1: a.e(f"v_and_b32 v{TF+4*e+ch}, s{M}, v{src}")
            else:     a.e(f"v_lshlrev_b32 v{TF+4*e+ch}, 16, v{src}")
    a.e("s_barrier")
    for e in range(8):
        qf = QF + 4*e
        for hf in range(2):
            a.e(f"v_pk_mul_f32 {v(qf+2*hf,2)}, {v(qf+2*hf,2)}, {v(TF+4*e+2*hf,2)}")
        pk = 112+2*e
        for hf in range(2):
            a.e(f"v_cvt_pk_bf16_f32 v{pk+hf}, v{qf+2*hf}, v{qf+2*hf+1}")
        a.e(f"buffer_store_dwordx2 {v(pk,2)}, v{B3_VO}, s[{SOUT}:{SOUT+3}], {soff[e]} offen" + NTO())

def gen_A(a):
    SX, SI1, SWR, SWI, SI2, SOUT = 32, 36, 80, 84, 32, 36
    a.e(f"s_setprio {OPT['prioA']}") if OPT['prioA'] else None
    sT, sSA, sCB, sJ, sJM, sJP, sJQ, sTL = 40, 41, 42, 43, 72, 73, 74, 44
    def rows():
        srd(a, SI1, P_WS, P_WS+1, 4*MB, add=WS_I1)
        srd(a, SWR, P_WR, P_WR+1, WBYTES); srd(a, SWI, P_WI, P_WI+1, WBYTES)
        Lr = newlbl("reg")
        a.e("s_lshl_b32 s47, s3, 9", f"s_add_u32 s{sJ}, s{sT}, s47", f"s_mov_b32 s{sJP}, s{sT}", f"s_sub_u32 s{sJQ}, 512, s{sT}",
            f"s_cmp_lg_u32 s{sT}, 0", f"s_cbranch_scc1 {Lr}",
            f"s_mov_b32 s{sJQ}, 256", "s_lshl_b32 s47, s3, 2", "s_lshr_b32 s46, 0x3120, s47", "s_and_b32 s46, s46, 15", f"s_lshl_b32 s{sJ}, s46, 8")
        a.label(Lr)
        a.e(f"s_sub_u32 s{sJM}, 2048, s{sJ}", f"s_and_b32 s{sJM}, s{sJM}, 2047",
            f"s_mul_i32 s{sJ}, s{sJ}, 1026", f"s_mul_i32 s{sJM}, s{sJM}, 1026")
        a.e(f"s_or_b32 s75, s{sT}, s3")
    def wstage():
        a.e("v_lshlrev_b32 v243, 4, v1", "s_lshl_b32 s46, s3, 12", f"s_add_u32 s46, s46, {LW}")
        w_dma(a, SWR, SWI, sJ, sJM, 46, 243)
        pf_loads(a, SWR, SWI, sJ, sJM, PF, 244)
        Ln = newlbl("now2")
        a.e("s_cmp_lg_u32 s75, 0", f"s_cbranch_scc1 {Ln}")
        a.e(f"s_mov_b32 s47, {1024*1026}", f"s_mov_b32 s46, {LW2}")
        w_dma(a, SWR, SWI, 47, 47, 46, 243)
        pf_loads(a, SWR, SWI, 47, 47, PF2, 244)
        a.label(Ln)
    a.e(f"s_mov_b32 s{sT}, s{sCU}")
    stamp(a, 0, True); stamp(a, 1)
    Lp1 = newlbl("nop1")
    a.e(f"s_cmp_eq_u32 s{sACT}, 0", f"s_cbranch_scc1 {Lp1}_in")
    if OPT["pA1a"] >= 0: a.e(f"s_setprio {OPT['pA1a']}")
    srd(a, SX, P_X, P_X+1, 4*MB)
    a.e(f"s_lshr_b32 s48, s{sT}, 4", f"s_and_b32 s49, s{sT}, 7",
        f"s_lshr_b32 s{sSA}, s48, 2", "s_bfe_u32 s50, s48, 0x10001", "s_lshl_b32 s50, s50, 3", "s_add_u32 s50, s50, s49",
        "s_lshl_b32 s50, s50, 1", "s_and_b32 s51, s48, 1", f"s_add_u32 s{sCB}, s50, s51",
        "s_lshl_b32 s48, s48, 3", f"s_add_u32 s{sTL}, s48, s49")
    fft512_addr(a, sSA, sCB)
    fft512_loads(a, SX, NT() if OPT["ntx"] else "")
    stamp(a, 12)
    rows()
    fft512_addr2(a, sSA, sCB, 2048, 8192)
    fft512_consts(a)
    fft512_compute(a, SI1, False, 0, "sc1", 2, hook=None if OPT["wlate"] else wstage)
    stamp(a, 4)
    a.e(f"s_lshl_b32 s48, s{sTL}, {FA()}", f"s_add_u32 s48, s48, {SY_A1}")
    fin_epoch(a)
    signal(a, 48, F_TMP)
    a.e(f"s_branch {Lp1}")
    a.label(f"{Lp1}_in")
    if OPT["pA1i"] >= 0: a.e(f"s_setprio {OPT['pA1i']}")
    stamp(a, 12)
    if OPT["b1all"]:
        rows()
        fin_epoch(a)
        if not OPT["wlate"]: wstage()
    else:
        emit_B1(a, shadow=rows, hook=None if OPT["wlate"] else wstage)
    a.label(Lp1)
    if OPT["pA1i"] >= 0 or OPT["pA1a"] >= 0: a.e(f"s_setprio {OPT['prioA']}")
    stamp(a, 5)
    if OPT["wlate"] == 2: wstage()
    srd(a, SI2, P_WS, P_WS+1, 4*MB, add=WS_I2)
    a2_consts(a, sT)
    a.e(f"v_lshl_add_u32 v{TMP}, v{G_}, 7, v{IDX}",
        "s_lshl_b32 s48, s3, 12", f"s_add_u32 s48, s48, {LW}",
        f"v_lshl_add_u32 v{VW}, v{TMP}, 1, s48",
        f"v_sub_u32 v{TMP+1}, {1023-32*27}, v{TMP}", f"s_add_u32 s49, s48, 2048", f"v_lshl_add_u32 v{VW+1}, v{TMP+1}, 1, s49")
    a.e(f"v_lshlrev_b32 v{VG}, 12, v{G_}", f"v_lshl_add_u32 v{VG}, v{IDX}, 2, v{VG}",
        "s_lshl_b32 s49, s3, 9",
        f"s_lshl_b32 s52, s{sJP}, 13", "s_add_u32 s52, s52, s49",
        f"s_lshl_b32 s53, s{sJQ}, 13", "s_add_u32 s53, s53, s49")
    a.e(f"v_lshlrev_b32 v{VGW}, 12, v{G_}", f"v_lshl_add_u32 v{VGW}, v{IDX}, 3, v{VGW}", "s_lshl_b32 s50, s3, 10", f"v_add_u32 v{VGW}, s50, v{VGW}",
        f"v_lshlrev_b32 v{VRR}, 9, v{G_}", f"v_lshl_add_u32 v{VRR}, v{IDX}, 2, v{VRR}", "s_lshl_b32 s51, s3, 12", f"v_add_u32 v{VRR}, s51, v{VRR}")
    for t in range(1, 4): a.e(f"v_add_u32 v{VRR+t}, {1024*t}, v{VRR}")
    a.e(f"v_lshrrev_b32 v{TMP}, 4, v1", f"v_and_b32 v{TMP+1}, 1, v{TMP}", f"v_lshlrev_b32 v{VHR}, 13, v{TMP+1}",
        f"v_lshrrev_b32 v{TMP+1}, 1, v{TMP}", f"v_lshl_add_u32 v{VHR}, v{TMP+1}, 7, v{VHR}",
        f"v_and_b32 v{TMP+1}, 15, v1", f"v_lshl_add_u32 v{VHR}, v{TMP+1}, 3, v{VHR}", f"v_add_u32 v{VHR}, s50, v{VHR}")
    a.e(f"v_and_b32 v{TMP+2}, 1, v{TMP+1}", f"v_mov_b32 v{TMP+3}, s52", f"v_mov_b32 v{TMP+4}, s53",
        f"v_cmp_eq_u32 vcc, 1, v{TMP+2}", f"v_cndmask_b32 v{VST}, v{TMP+3}, v{TMP+4}, vcc",
        f"v_bfe_u32 v{TMP+2}, v{TMP+1}, 1, 2", f"v_lshl_add_u32 v{VST}, v{TMP+2}, 11, v{VST}",
        f"v_lshrrev_b32 v{TMP+2}, 3, v{TMP+1}", f"v_lshl_add_u32 v{VST}, v{TMP+2}, 6, v{VST}",
        f"v_lshl_add_u32 v{VST}, v{TMP}, 4, v{VST}")
    a.e(f"v_lshlrev_b32 v{TMP}, {FA()}, v1", f"v_add_u32 v{TMP}, {SY_A1}, v{TMP}")
    stamp(a, 6)
    wait_flags(a, TMP, 2, TMP+1, 48)
    if OPT["yieldB"]: a_state(a, sT, 0, TMP)
    stamp(a, 7)
    for u in range(4):
        for sl in range(2):
            for pq in range(2):
                a.e(f"buffer_load_dword v{GB+4*u+2*sl+pq}, v{VG}, s[{SI1}:{SI1+3}], s{52+pq} offen offset:{2048*sl+128*u} sc1")
    NWL = 0
    if OPT["wlate"] == 1:
        wstage(); NWL = 8
        Lsw = newlbl("spw")
        a.e("s_cmp_lg_u32 s75, 0", f"s_cbranch_scc1 {Lsw}", "s_waitcnt vmcnt(0)")
        a.label(Lsw)
    for rnd in range(2):
        a.e(f"s_waitcnt vmcnt({8-8*rnd+NWL})")
        for uu in range(2):
            u = 2*rnd+uu
            a.e(f"v_mfma_f32_32x32x16_bf16 {v(ARE if uu == 0 else AIM,16)}, {v(GA,4)}, {v(GB+4*u,4)}, 0")
        for uu in range(2):
            u = 2*rnd+uu
            D = ARE if uu == 0 else AIM
            t = TMP+4*uu
            for h in range(2):
                a.e(f"v_cvt_pk_bf16_f32 v{t}, v{D+4*h}, v{D+4*h+1}", f"v_cvt_pk_bf16_f32 v{t+1}, v{D+4*h+2}, v{D+4*h+3}",
                    f"ds_write_b64 v{VGW}, {v(t,2)} offset:{256*u+8192*h}")
                t += 2
    a.e("s_waitcnt lgkmcnt(0)", "s_barrier")
    stamp(a, 8)
    if OPT["qA"] and not OPT["a3all"]:
        Lq = newlbl("noqA")
        a.e(f"s_cmp_lg_u32 s{sACT}, 0", f"s_cbranch_scc1 {Lq}")
        emit_B3_pre(a)
        a.label(Lq)
    for t in range(4):
        a.e(f"ds_read2_b32 {v(DF+4*t,2)}, v{VRR+t} offset0:0 offset1:32", f"ds_read2_b32 {v(DF+4*t+2,2)}, v{VRR+t} offset0:64 offset1:96")
    a.e("s_waitcnt lgkmcnt(0)")
    if OPT["wlate"] == 1:
        def wmid():
            if OPT["qA"] and not OPT["a3all"]:
                L1, L2 = newlbl("wa"), newlbl("wb")
                a.e(f"s_cmp_lg_u32 s{sACT}, 0", f"s_cbranch_scc1 {L1}", "s_waitcnt vmcnt(8)", f"s_branch {L2}")
                a.label(L1); a.e("s_waitcnt vmcnt(0)"); a.label(L2)
            else:
                a.e("s_waitcnt vmcnt(0)")
            w_lds_reads(a, VW, VW+1, WR, WI)
        fft1024(a, mid=wmid)
    else:
        w_lds_reads(a, VW, VW+1, WR, WI)
        fft1024(a)
    a.e("s_waitcnt lgkmcnt(0)")
    fix_w(a, WR, WI, PF)
    Lsp, Linv = newlbl("special"), newlbl("inv")
    a.e("s_cmp_eq_u32 s75, 0", f"s_cbranch_scc1 {Lsp}")
    for p in range(8):
        xr, xi, wr, wi = ARE+2*p, AIM+2*p, WR+2*p, WI+2*p
        t0 = TMP+4*(p & 1); t1 = t0+2
        n0 = " neg_lo:[1,0,0] neg_hi:[1,0,0]" if p < 4 else ""
        n1 = "" if p < 4 else " neg_lo:[1,0,0] neg_hi:[1,0,0]"
        a.e(f"v_pk_mul_f32 {v(t0,2)}, {v(xr,2)}, {v(wr,2)}", f"v_pk_mul_f32 {v(t1,2)}, {v(xi,2)}, {v(wr,2)}",
            f"v_pk_fma_f32 {v(t0,2)}, {v(xi,2)}, {v(wi,2)}, {v(t0,2)}{n0}",
            f"v_pk_fma_f32 {v(t1,2)}, {v(xr,2)}, {v(wi,2)}, {v(t1,2)}{n1}")
        for e in range(2):
            a.e(f"v_cvt_pk_bf16_f32 v{DF+2*p+e}, v{t0+e}, -v{t1+e}")
    a.label(Linv)
    a.e("s_nop 1")
    fft1024(a)
    for r in range(16):
        t = TMP + (r & 7)
        a.e(f"v_cvt_pk_bf16_f32 v{t}, v{ARE+r}, v{AIM+r}", f"ds_write_b32 v{VRR}, v{t} offset:{128*eidx(r)}")
    a.e("s_waitcnt lgkmcnt(0)", "s_barrier")
    if OPT["yieldB"]: a_state(a, sT, 1, TMP)
    stamp(a, 9)
    for u in range(4):
        for sl in range(2):
            a.e(f"ds_read_b64 {v(GB+4*u+2*sl,2)}, v{VHR} offset:{4096*sl+256*u}")
    a.e("s_lshl_b32 s49, s3, 9")
    for u in range(4):
        a.e(f"s_waitcnt lgkmcnt({6-2*u})")
        a.e(f"v_mfma_f32_16x16x32_bf16 {v(ARE+4*u,4)}, {v(GB+4*u,4)}, {v(HRE,4)}, 0",
            f"v_mfma_f32_16x16x32_bf16 {v(AIM+4*u,4)}, {v(GB+4*u,4)}, {v(HIM,4)}, 0")
    for u in range(4):
        for r in range(4):
            a.e(f"v_cvt_pk_bf16_f32 v{DF+4*u+r}, v{ARE+4*u+r}, v{AIM+4*u+r}")
        a.e(f"buffer_store_dwordx4 {v(DF+4*u,4)}, v{VST}, s[{SI2}:{SI2+3}], 0 offen offset:{128*u} sc1")
    a.e(f"s_lshl_b32 s48, s{sT}, {FA()}", f"s_add_u32 s48, s48, {SY_A2}")
    signal(a, 48, TMP)
    stamp(a, 10)
    Lb3 = newlbl("b3")
    if OPT["a3all"]:
        srd(a, SOUT, P_OUT, P_OUT+1, 8*MB)
        a.e(f"s_lshr_b32 s48, s{sT}, 3", f"s_and_b32 s49, s{sT}, 7", f"s_lshr_b32 s{sSA}, s48, 3", "s_bfe_u32 s50, s48, 0x10002",
            "s_lshl_b32 s50, s50, 3", "s_add_u32 s50, s50, s49", "s_lshl_b32 s50, s50, 2", "s_and_b32 s51, s48, 3", f"s_add_u32 s{sCB}, s50, s51")
        f8_addr(a, sSA, sCB, 4096, 16384)
        f8_consts(a)
        a.e(f"v_lshlrev_b32 v{F_TMP}, {FA()}, v1", f"v_add_u32 v{F_TMP}, {SY_A2}, v{F_TMP}")
        wait_flags(a, F_TMP, 4, F_TMP+1, 48)
        stamp(a, 11)
        PHASE[0] = 3
        fstamp(a, 11)
        f8_run(a, SI2, SOUT, "sc1", NTO())
    else:
        a.e(f"s_cmp_eq_u32 s{sACT}, 0", f"s_cbranch_scc1 {Lb3}")
        srd(a, SOUT, P_OUT, P_OUT+1, 8*MB)
        fft512_addr(a, sSA, sCB)
        fft512_addr2(a, sSA, sCB, 4096, 16384)
        fft512_consts(a)
        a.e(f"v_lshlrev_b32 v{F_TMP}, {FA()}, v1", f"v_add_u32 v{F_TMP}, {SY_A2}, v{F_TMP}")
        wait_flags(a, F_TMP, 4, F_TMP+1, 48)
        stamp(a, 11)
        PHASE[0] = 3
        fstamp(a, 11)
        fft512_loads(a, SI2, "sc1")
        fstamp(a, 3)
        save = gen.PROF; gen.PROF = False
        fft512_compute(a, SOUT, True, 0, NTO(), 0)
        gen.PROF = save
    a.e("s_cmp_lg_u32 s75, 0", "s_cbranch_scc1 L_fin")
    Lb1, Lb2 = newlbl("bchk"), newlbl("bchkd")
    a.e("v_lshlrev_b32 v2, 6, v1", f"v_add_u32 v2, {SY_ID}, v2", f"s_lshl_b32 s49, s{S_TGT}, 4", "s_mov_b32 s48, 0")
    a.label(Lb1)
    NS = NMEM()*8//64
    for i in range(NS):
        a.e(f"s_mov_b32 s50, {4096*i}", f"buffer_load_dword v{4+i}, v2, s[{S_SYN}:{S_SYN+3}], s50 offen sc1")
    a.e("s_add_u32 s48, s48, 1", "s_waitcnt vmcnt(0)")
    for i in range(NS): a.e(f"v_xor_b32 v{4+i}, s49, v{4+i}")
    for i in range(1, NS): a.e(f"v_or_b32 v4, v4, v{4+i}")
    a.e("v_lshrrev_b32 v4, 4, v4", "v_cmp_ne_u32 vcc, 0, v4", f"s_cbranch_vccz {Lb2}", f"s_cmp_lt_u32 s48, {SPIN_LIMIT}", f"s_cbranch_scc1 {Lb1}")
    a.label(Lb2)
    a.e(f"s_mov_b32 s48, {SY_E}")
    bump(a, 48, 2)
    a.e("s_branch L_fin")
    if not OPT["a3all"]:
        a.label(Lb3)
        if not OPT["qA"]: emit_B3_pre(a)
        emit_B3(a)
        a.e("s_branch L_fin")
    a.label(Lsp)
    a.e(f"v_lshl_add_u32 v{TMP}, v{G_}, 7, v{IDX}", f"v_sub_u32 v{TMP+1}, {1023-32*27}, v{TMP}",
        f"s_mov_b32 s48, {LW2}", f"v_lshl_add_u32 v{TMP+2}, v{TMP}, 1, s48", f"s_mov_b32 s49, {LW2+2048}", f"v_lshl_add_u32 v{TMP+3}, v{TMP+1}, 1, s49")
    w_lds_reads(a, TMP+2, TMP+3, W2R, W2I)
    a.e("s_waitcnt lgkmcnt(0)")
    fix_w(a, W2R, W2I, PF2)
    VS = SP; K0 = SP+1
    a.e(f"v_lshlrev_b32 v{VS}, 9, v{G_}", f"v_lshl_add_u32 v{VS}, v{IDX}, 2, v{VS}")
    for r in range(16):
        a.e(f"ds_write_b32 v{VS}, v{ARE+r} offset:{LSC+128*eidx(r)}", f"ds_write_b32 v{VS}, v{AIM+r} offset:{LSC+4096+128*eidx(r)}")
    a.e(f"v_lshl_add_u32 v{K0}, v{G_}, 7, v{IDX}", f"v_sub_u32 v{K0}, 1024, v{K0}", "s_waitcnt lgkmcnt(0)")
    for r in range(16):
        ad, rr, ri, ur, ui, vr, vi, o0, o1 = [SP+2+i for i in range(9)]
        a.e(f"v_subrev_u32 v{ad}, {32*eidx(r)}, v{K0}", f"v_and_b32 v{ad}, 1023, v{ad}", f"v_lshlrev_b32 v{ad}, 2, v{ad}",
            f"ds_read_b32 v{rr}, v{ad} offset:{LSC}", f"ds_read_b32 v{ri}, v{ad} offset:{LSC+4096}", "s_waitcnt lgkmcnt(0)")
        pr, pi_ = ARE+r, AIM+r
        a.e(f"v_add_f32 v{ur}, v{pr}, v{rr}", f"v_sub_f32 v{ui}, v{pi_}, v{ri}",
            f"v_sub_f32 v{vr}, v{pr}, v{rr}", f"v_add_f32 v{vi}, v{pi_}, v{ri}")
        sg = "-" if r < 8 else ""; ns = "" if r < 8 else "-"
        ar, ai, br, bi = WR+r, WI+r, W2R+r, W2I+r
        a.e(f"v_mul_f32 v{o0}, v{ur}, v{ar}", f"v_fma_f32 v{o0}, {sg}v{ui}, v{ai}, v{o0}",
            f"v_fma_f32 v{o0}, v{vr}, v{br}, v{o0}", f"v_fma_f32 v{o0}, {sg}v{vi}, v{bi}, v{o0}",
            f"v_mul_f32 v{o1}, v{ui}, v{ar}", f"v_fma_f32 v{o1}, {ns}v{ur}, v{ai}, v{o1}",
            f"v_fma_f32 v{o1}, v{vi}, v{br}, v{o1}", f"v_fma_f32 v{o1}, {ns}v{vr}, v{bi}, v{o1}",
            f"v_mul_f32 v{o0}, 0.5, v{o0}", f"v_mul_f32 v{o1}, 0.5, v{o1}",
            f"v_cvt_pk_bf16_f32 v{DF+r}, v{o0}, -v{o1}")
    a.e(f"s_branch {Linv}")

def h_dma(a, SH, sLB, sD4K):
    a.e("v_lshlrev_b32 v235, 4, v1")
    a.e(f"s_add_u32 s74, s{sLB}, 32", "s_mov_b32 m0, s74")
    for ch in range(4): a.e(f"buffer_load_dwordx4 v235, s[{SH}:{SH+3}], s{sD4K} offen offset:{1024*ch} lds" + (NT() if OPT["nth"] else ""))
    a.e(f"s_add_u32 s74, s{sLB}, 4192", f"s_add_u32 s75, s{sD4K}, 2", "s_mov_b32 m0, s74")
    for ch in range(4): a.e(f"buffer_load_dwordx4 v235, s[{SH}:{SH+3}], s75 offen offset:{1024*ch} lds" + (NT() if OPT["nth"] else ""))
    a.e("v_mov_b32 v233, 0x7ffffff0", f"v_mov_b32 v234, s{sD4K}", "v_cmp_eq_u32 vcc, 15, v1", "v_cndmask_b32 v233, v233, v234, vcc",
        f"buffer_load_short_d16_hi v230, v233, s[{SH}:{SH+3}], 0 offen")

def gen_B(a):
    SH, STT, SKVT = 80, 84, 32
    a.e(f"s_setprio {OPT['prioB']}") if OPT['prioB'] else None
    srd(a, SH, P_SSMK, P_SSMK+1, 4*MB); srd(a, STT, P_OUT, P_OUT+1, 8*MB)
    sCBK, sSUB, sD, sD4K, sLB, sDV, sF1, sF2, sMASK = 40, 41, 42, 43, 44, 45, 46, 47, 72
    a.e(f"s_and_b32 s{sCBK}, s2, 15",
        f"s_lshr_b32 s{sSUB}, s2, 4",
        f"s_lshl_b32 s{sD}, s{sCBK}, 4", f"s_add_u32 s{sD}, s{sD}, s{sSUB}", f"s_lshl_b32 s{sD}, s{sD}, 2", f"s_add_u32 s{sD}, s{sD}, s3",
        f"s_lshl_b32 s{sD4K}, s{sD}, 12", f"s_mul_i32 s{sLB}, s3, {LB_STRIDE}", f"s_mov_b32 s{sMASK}, 0xffff0000")
    sSB = 36
    a.e(f"s_and_b32 s73, s{sD}, 63", "s_lshl_b32 s73, s73, 13", f"s_lshl_b32 s74, s{sCBK}, 7", "s_add_u32 s73, s73, s74", f"s_add_u32 s{sSB}, s73, 2048")
    for i in range(1, 4): a.e(f"s_add_u32 s{sSB+i}, s{sSB}, {i*2*MB}")
    a.e(f"s_lshl_b32 s73, s{sCBK}, {4+FB()}", f"s_add_u32 s{sF1}, s73, {SY_B1}", f"s_lshl_b32 s74, s{sSUB}, {FB()}", "s_add_u32 s73, s73, s74", f"s_add_u32 s{sF2}, s73, {SY_B2}")
    a.e(f"s_and_b32 s73, s{sD}, 0xfffffffe", "s_lshl_b32 s73, s73, 1", f"s_load_dword s{sDV}, s[{P_SSMD}:{P_SSMD+1}], s73")
    stamp(a, 0, True); stamp(a, 1)
    Lidle, Lsetup = newlbl("bidle"), newlbl("bsetup")
    if OPT["pB1"]: a.e(f"s_setprio {OPT['pB1']}")
    if OPT["b1all"]:
        a.e(f"s_mov_b32 s{sCBKT}, s{sCBK}", f"s_mov_b32 s{sSUBT}, s{sSUB}")
        if OPT["hearly"] and not OPT["hlate"]:
            emit_B1(a, after_stores=lambda: h_dma(a, SH, sLB, sD4K), nafter=9)
        else:
            emit_B1(a)
            if not OPT["hlate"]: h_dma(a, SH, sLB, sD4K)
    else:
        a.e(f"s_cmp_lg_u32 s{sACT}, 0", f"s_cbranch_scc1 {Lidle}")
        if OPT["hearly"] and not OPT["hlate"]:
            emit_B1(a, after_stores=lambda: h_dma(a, SH, sLB, sD4K), nafter=9)
        else:
            emit_B1(a)
            if not OPT["hlate"]: h_dma(a, SH, sLB, sD4K)
        a.e(f"s_branch {Lsetup}")
        a.label(Lidle)
        fin_epoch(a)
        loc_publish(a)
        loc_issue(a, 10)
        loc_resolve(a, 10, barrier=False)
        if not OPT["hlate"]:
            for _ in range(OPT["hactdelay"]):
                a.e("v_and_b32 v12, 15, v1", f"v_lshlrev_b32 v12, {FB()}, v12", f"v_add_u32 v12, s{sF1}, v12",
                    f"buffer_load_dword v13, v12, s[{S_SYN}:{S_SYN+3}], 0 offen sc1", "s_waitcnt vmcnt(0)")
            h_dma(a, SH, sLB, sD4K)
    a.label(Lsetup)
    if OPT["pB1"]: a.e(f"s_setprio {OPT['prioB']}")
    stamp(a, 12)
    LN16, B_, G4, VA, VB, VE, VS2, T = 2, 3, 4, 5, 9, 10, 11, 12
    a.e(f"v_lshlrev_b32 v{T}, 2, v1",
        f"v_add_u32 v{T+1}, {4160-32}, v{T}", "v_cmp_le_u32 vcc, 8, v1", f"v_cndmask_b32 v{T+3}, v{T}, v{T+1}, vcc",
        f"v_add_u32 v{T+1}, 8288, v{T}", "v_cmp_le_u32 vcc, 16, v1", f"v_cndmask_b32 v{T+3}, v{T+3}, v{T+1}, vcc",
        f"v_add_u32 v231, s{sLB}, v{T+3}")
    a.e(f"v_lshlrev_b32 v{T}, 3, v1", f"v_add_u32 v{T}, s{sLB}, v{T}", "v_mov_b32 v16, 0", "v_mov_b32 v17, 0", f"ds_write_b64 v{T}, v[16:17] offset:8288")
    a.e(f"v_and_b32 v{B_}, 15, v1", f"v_lshrrev_b32 v{G4}, 4, v1")
    a.e(f"v_and_b32 v{VA}, 1, v{B_}", f"v_xor_b32 v{VA}, 1, v{VA}", f"v_mul_u32_u24 v{VA}, 4160, v{VA}",
        f"v_add_u32 v{VA+1}, 1, v{B_}", f"v_lshrrev_b32 v{VA+1}, 1, v{VA+1}", f"v_lshl_add_u32 v{VA}, v{VA+1}, 2, v{VA}",
        f"v_lshlrev_b32 v{VA+1}, 4, v{G4}", f"v_sub_u32 v{VA}, v{VA}, v{VA+1}",
        f"s_add_u32 s73, s{sLB}, 16", f"v_add_u32 v{VA}, s73, v{VA}")
    for pp in range(1, 4): a.e(f"v_add_u32 v{VA+pp}, {1024*pp}, v{VA}")
    a.e(f"v_lshlrev_b32 v{VB}, 5, v{B_}", f"v_lshl_add_u32 v{VB}, v{G4}, 4, v{VB}",
        f"s_add_u32 s73, s{sLB}, {8800-480}", f"v_add_u32 v{VB}, s73, v{VB}")
    a.e(f"v_lshrrev_b32 v18, 1, v{G4}", f"v_lshlrev_b32 v19, 4, v18", f"v_lshl_add_u32 v19, v{B_}, 5, v19",
        f"v_and_b32 v18, 1, v{G4}", "v_xor_b32 v18, 1, v18", f"v_lshl_add_u32 v19, v18, 3, v19",
        f"s_add_u32 s73, s{sLB}, 8800", f"v_add_u32 v232, s73, v19")
    a.e(f"v_lshrrev_b32 v18, 3, v{B_}", f"v_lshlrev_b32 v{VS2}, 19, v18", f"v_bfe_u32 v18, v{B_}, 2, 1", f"v_lshl_add_u32 v{VS2}, v18, 12, v{VS2}",
        f"v_and_b32 v18, 1, v{G4}", f"v_lshl_add_u32 v{VS2}, v18, 20, v{VS2}", f"v_and_b32 v18, 3, v{B_}", f"v_lshl_add_u32 v{VS2}, v18, 5, v{VS2}",
        f"v_lshrrev_b32 v18, 1, v{G4}", f"v_lshl_add_u32 v{VS2}, v18, 4, v{VS2}")
    a.e(f"v_lshlrev_b32 v{LN16}, 19, v{G4}", "v_bfe_u32 v18, v1, 3, 1", f"v_lshl_add_u32 v{LN16}, v18, 12, v{LN16}",
        "v_and_b32 v18, 7, v1", f"v_lshl_add_u32 v{LN16}, v18, 4, v{LN16}")
    a.e("v_lshlrev_b32 v18, 4, v1", f"s_add_u32 s73, s{sLB}, 8800", "v_add_u32 v19, s73, v18")
    a.e("s_waitcnt lgkmcnt(0)",
        f"s_and_b32 s73, s{sD}, 1", f"s_lshl_b32 s74, s{sDV}, 16", f"s_and_b32 s75, s{sDV}, 0xffff0000",
        "s_cmp_eq_u32 s73, 1", f"s_cselect_b32 s{sDV}, s75, s74")
    if OPT["twoflag"]:
        a.e(f"s_add_u32 s73, s{sF1}, {SY_B1B-SY_B1}", f"s_cmp_lg_u32 s{sLOC}, 0", f"s_cselect_b32 s{sF1}, s{sF1}, s73")
    a.e(f"v_and_b32 v{T}, 15, v1", f"v_lshlrev_b32 v{T}, {FB()}, v{T}", f"v_add_u32 v{T}, s{sF1}, v{T}")
    stamp(a, 5)
    wait_flags(a, T, 1, T+1, 73)
    loc_read(a, 12)
    stamp(a, 6)
    VE = 232
    ACC = 20
    SETS = [(52, 84), (116, 148)]
    U = SETS[1][1]
    for ch in range(4):
        a.e(f"buffer_load_dwordx4 {v(U+4*ch,4)}, v{LN16}, s[{STT}:{STT+3}], s{sSB+ch} offen" + LDL())
    def reads(rho, st):
        A, B = SETS[st]
        out = []
        for p in range(8):
            o = 8*rho + 128*(p & 1)
            out.append(f"ds_read2_b32 {v(A+4*p,2)}, v{VA+(p>>1)} offset0:{o} offset1:{o+1}")
            out.append(f"ds_read2_b32 {v(A+4*p+2,2)}, v{VA+(p>>1)} offset0:{o+2} offset1:{o+3}")
        outb = [f"ds_read_b128 {v(B+4*q,4)}, v{VB} offset:{512*q+32*(15-rho)}" for q in range(8)]
        return out, outb
    rhos = list(range(1, 16, 2))
    ra, rb = reads(rhos[0], 0)
    if OPT["hlate"]:
        h_dma(a, SH, sLB, sD4K)
        for ch in range(4):
            a.e(f"s_waitcnt vmcnt({3-ch+9})", f"ds_write_b128 v19, {v(U+4*ch,4)} offset:{1024*ch}")
        a.e("s_waitcnt vmcnt(0)", "ds_write_b32 v231, v230", "s_waitcnt lgkmcnt(0)")
        for r in ra: a.e(r)
    else:
        a.e("s_waitcnt vmcnt(4)", "ds_write_b32 v231, v230")
        a.e("s_waitcnt lgkmcnt(0)")
        for r in ra: a.e(r)
        for ch in range(4):
            a.e(f"s_waitcnt vmcnt({3-ch})", f"ds_write_b128 v19, {v(U+4*ch,4)} offset:{1024*ch}")
    a.e("s_waitcnt lgkmcnt(0)")
    for r in rb: a.e(r)
    if OPT["yieldB"]: b_yield(a, 233)
    Lnq = newlbl("noq")
    if OPT["a3all"]:
        a.e(f"s_mov_b32 s{sCBKT}, s{sCBK}", f"s_mov_b32 s{sSUBT}, s{sSUB}")
        emit_B3_pre(a)
    else:
        a.e(f"s_cmp_lg_u32 s{sACT}, 0", f"s_cbranch_scc1 {Lnq}")
        emit_B3_pre(a)
        a.label(Lnq)
    stamp(a, 7)
    for ci, rho in enumerate(rhos):
        st = ci & 1
        A, B = SETS[st]
        if ci+1 < len(rhos):
            ra, rb = reads(rhos[ci+1], st ^ 1); nxt = ra[0:2] + rb + ra[2:]
        else:
            nxt = [f"ds_read_b64 {v(SETS[st^1][0]+2*j,2)}, v{VE} offset:{512*j}" for j in range(8)]
        a.e("s_waitcnt lgkmcnt(0)")
        n = 0
        for p in range(8):
            for q in range(8-p):
                j = p+q
                c = "0" if (ci == 0 and p == 0) else v(ACC+4*j, 4)
                a.e(f"v_mfma_f32_16x16x32_bf16 {v(ACC+4*j,4)}, {v(A+4*p,4)}, {v(B+4*q,4)}, {c}")
                if n < len(nxt): a.e(nxt[n])
                n += 1
    KVR = SETS[0][0]; TMv = 116
    a.e("s_waitcnt lgkmcnt(0)")
    stamp(a, 8)
    sts = []
    for jp in range(4):
        base = TMv + 8*jp
        for hh in range(2):
            j = 2*jp+hh
            w0, w1 = KVR+2*j, KVR+2*j+1
            t = 172
            a.e(f"v_and_b32 v{t}, s{sMASK}, v{w1}", f"v_lshlrev_b32 v{t+1}, 16, v{w1}",
                f"v_and_b32 v{t+2}, s{sMASK}, v{w0}", f"v_lshlrev_b32 v{t+3}, 16, v{w0}")
            for r in range(4):
                a.e(f"v_fma_f32 v{t+r}, v{t+r}, s{sDV}, v{ACC+4*j+r}")
            a.e(f"v_cvt_pk_bf16_f32 v{base+2*hh}, v{t}, v{t+1}", f"v_cvt_pk_bf16_f32 v{base+2*hh+1}, v{t+2}, v{t+3}")
        a.e(f"v_permlane16_swap_b32 v{base}, v{base+2}", f"v_permlane16_swap_b32 v{base+1}, v{base+3}")
        sts.append(f"buffer_store_dwordx4 {v(base,4)}, v{VS2}, s[{STT}:{STT+3}], s{sSB+jp} offen")
    dual_store(a, sts)
    signal(a, sF2, 12, bloc=True)
    stamp(a, 9)
    if not OPT["a3all"]: a.e(f"s_cmp_lg_u32 s{sACT}, 0", "s_cbranch_scc1 L_fin")
    emit_B3(a)
    a.e("s_branch L_fin")

def gen_kernel():
    a = Asm(); a.name = "p"
    a.e("s_cmp_ge_u32 s2, 512", "s_cbranch_scc1 L_exit")
    if OPT.get("spinT") or OPT.get("span"): a.e("s_memrealtime s[94:95]")
    if gen.PROF: a.e("s_memrealtime s[98:99]", "s_waitcnt lgkmcnt(0)", "v_writelane_b32 v247, s98, 13")
    a.e(f"s_load_dwordx16 s[4:19], s[0:1], 0", f"s_load_dwordx8 s[20:27], s[0:1], 64")
    a.e("v_lshrrev_b32 v1, 6, v0", "v_readfirstlane_b32 s3, v1", "v_and_b32 v1, 63, v0", "s_waitcnt lgkmcnt(0)")
    srd(a, S_SYN, P_WS, P_WS+1, 1*MB, add=WS_SYNC)
    a.e(f"s_mov_b32 s48, {WS_SYNC+SY_E}", f"s_load_dword s{S_TGT}, s[{P_WS}:{P_WS+1}], s48")
    a.e(f"s_mov_b32 s98, {64<<FA()}", f"s_mov_b32 s99, {128<<FA()}", f"s_mov_b32 s100, {192<<FA()}")
    a.e(f"s_and_b32 s{sCU}, s2, 255", f"s_bitcmp0_b32 s2, 3", f"s_cselect_b32 s{sACT}, 1, 0",
        f"s_lshr_b32 s48, s{sCU}, 4", "s_lshl_b32 s48, s48, 3", f"s_and_b32 s49, s{sCU}, 7", "s_add_u32 s48, s48, s49",
        f"s_and_b32 s{sCBKT}, s48, 15", "s_lshr_b32 s48, s48, 4", "s_lshl_b32 s48, s48, 1", "s_lshr_b32 s49, s2, 8", f"s_add_u32 s{sSUBT}, s48, s49")
    a.e("s_cmp_ge_u32 s2, 256", "s_cbranch_scc1 L_A")
    gen_B(a)
    a.label("L_A")
    gen_A(a)
    a.label("L_fin")
    if gen.PROF:
        a.e("s_waitcnt vmcnt(0)")
        stamp(a, 14); stamp(a, 15, True)
        prof_dump(a)
    if OPT.get("span"):
        Ls = newlbl("span")
        a.e("s_cmp_lg_u32 s3, 0", f"s_cbranch_scc1 {Ls}", "s_waitcnt vmcnt(0)", "s_memrealtime s[92:93]",
            f"s_add_u32 s32, s{P_WS}, {gen.WS_PROF}", f"s_addc_u32 s33, s{P_WS+1}, 0", f"s_mov_b32 s34, {MB}", "s_mov_b32 s35, 0x00020000",
            "s_lshl_b32 s36, s2, 3", "s_waitcnt lgkmcnt(0)", "v_mov_b32 v2, s36", "v_mov_b32 v4, s94", "v_mov_b32 v5, s92", "s_mov_b64 exec, 1",
            "buffer_store_dwordx2 v[4:5], v2, s[32:35], 0 offen", "s_waitcnt vmcnt(0)")
        a.label(Ls)
    if OPT.get("spinT"):
        a.label("L_spin")
        a.e("s_memrealtime s[92:93]", "s_waitcnt lgkmcnt(0)", "s_sub_u32 s92, s92, s94", f"s_cmp_lt_u32 s92, {OPT['spinT']}", "s_cbranch_scc1 L_spin")
    a.label("L_exit")
    a.e("s_endpgm")
    return a

def prof_dump(a):
    if OPT.get("dbgwg", -1) >= 0:
        L = newlbl("nodbg")
        a.e(f"s_cmp_lg_u32 s2, {OPT['dbgwg']}", f"s_cbranch_scc1 {L}", "s_cmp_lg_u32 s3, 0", f"s_cbranch_scc1 {L}")
        a.e("v_readlane_b32 s36, v247, 1", "v_readlane_b32 s37, v247, 13", "v_mov_b32 v250, s36", "v_mov_b32 v251, s37",
            "v_cmp_eq_u32 vcc, 0, v1", "v_cndmask_b32 v250, v250, v251, vcc", "v_cmp_eq_u32 vcc, 13, v1", "v_cndmask_b32 v250, v250, v251, vcc",
            "v_cmp_eq_u32 vcc, 15, v1", "v_cndmask_b32 v250, v250, v251, vcc", "v_sub_u32 v250, v247, v250",
            f"s_mov_b32 s32, s{P_DBG}", f"s_mov_b32 s33, s{P_DBG+1}", "s_mov_b32 s34, 256", "s_mov_b32 s35, 0x00020000",
            "v_lshlrev_b32 v251, 2, v1", "s_mov_b64 exec, 0xffff", "buffer_store_dword v250, v251, s[32:35], 0 offen", "s_waitcnt vmcnt(0)", "s_mov_b64 exec, -1")
        a.label(L)
        return

    a.e(f"s_add_u32 s32, s{P_WS}, {gen.WS_PROF}", f"s_addc_u32 s33, s{P_WS+1}, 0", f"s_mov_b32 s34, {MB}", "s_mov_b32 s35, 0x00020000")
    a.e("s_lshl_b32 s36, s2, 2", "s_add_u32 s36, s36, s3", "s_lshl_b32 s36, s36, 6",
        "v_lshlrev_b32 v250, 2, v1", "v_add_u32 v250, s36, v250", "s_mov_b64 exec, 0xffff",
        "buffer_store_dword v247, v250, s[32:35], 0 offen")
    if OPT.get("fine"):
        a.e("v_add_u32 v250, 0x40000, v250", "buffer_store_dword v246, v250, s[32:35], 0 offen")
    a.e("s_waitcnt vmcnt(0)")
PROFREGS = []

def build(path):
    a = gen_kernel()
    name = "concat_heads__spectral_gfnet__ssm_conv_h3__prompt_kernel"
    s = open("concat_heads__spectral_gfnet__ssm_conv_h3__prompt.s.ref").read().split("; Override")[0]
    s += f"; @launch grid=(512,1,1) block=(256,1,1) lds={LDS_BYTES}\n"
    s += '.amdgcn_target "amdgcn-amd-amdhsa--gfx950"\n' + gen.header(name) + a.text() + gen.descriptor(name, 256, 102)
    s = s.replace(" lds nt", " nt lds")
    open(path, "w").write(s)
    return s

if __name__ == "__main__":
    out = sys.argv[1] if len(sys.argv) > 1 else "pers.s"
    gen.PROF = "prof" in sys.argv[2:]
    for x in sys.argv[2:]:
        if "=" in x:
            k, val = x.split("="); OPT[k] = int(val)
    if OPT["wsend"]:
        base = OPT["wsend"]*MB
        WS_I1, WS_KVT, WS_I2, WS_TT, WS_SYNC = base, base+4*MB, base+8*MB, base+12*MB, base+20*MB
    s = build(out)
    print(out, len(s))
```

```python
import sys
from asmgen import *
import gen
from gen import srd, MB, WS_I1, WS_KVT, WS_I2, WS_TT, KA

PHASE = [1]
def fstamp(a, i):
    if OPT.get("fine") != PHASE[0]: return
    a.e('s_memtime s[96:97]', 's_waitcnt lgkmcnt(0)', f'v_writelane_b32 v246, s96, {i}')
def stamp(a, i, real=False):
    if not gen.PROF: return
    a.e('s_memrealtime s[96:97]' if real else 's_memtime s[96:97]', 's_waitcnt lgkmcnt(0)', f'v_writelane_b32 v247, s96, {i}')

WBYTES = 2048*513*2
LB_STRIDE = 12896
LDS_BYTES = 53248
SPIN_LIMIT = 400000
OPT = dict(prioA=0, prioB=0, sleep=0, nt=1, wsend=0, ntout=1, ntw=1, wlate=1, hlate=1, qA=1, fsa=6, fsb=6, shrink=0, loc=1, forceloc=-1, ldloc=1, bdelay=0, earlypub=1, wpos=1, optst=1, locflag=1, hearly=1, twoflag=1, pA1i=-1, pB1=0, ntscr=0, a3all=1, ntk=1, ntv=1, ntx=1, nth=1, hactdelay=0, b1all=1, bactwait=1, pA1a=-1, grp=1, yieldB=0, ylim=40, tlb=0, cpf=0)
def NMEM(): return 32 if OPT['b1all'] else 48
def LDL(): return {0: ' sc1', 1: ' nt', 2: ' sc1 nt'}[OPT['ldloc']]
def FA(): return OPT['fsa']
def FB(): return OPT['fsb']
def NT(): return ' nt' if OPT['nt'] else ''
def NTO(): return {0: '', 1: ' nt', 2: ' sc1', 3: ' sc1 nt'}[OPT['ntout']]

P_X, P_WR, P_WI, P_Q, P_K, P_V, P_SHK, P_SSMK, P_SSMD, P_OUT, P_DBG, P_WS = 4, 6, 8, 10, 12, 14, 16, 18, 20, 22, 24, 26
S_DBG = 28
def eidx(r): return (r & 3) + 8*(r >> 2)

_lbl = [0]
def newlbl(p):
    _lbl[0] += 1
    return f"L_{p}_{_lbl[0]}"

WS_SYNC = 20*MB
S_SYN = 28
S_TGT = 101
SY_E, SY_A1, SY_A2, SY_B1, SY_B2 = 0, 4096, 4096+16384, 4096+32768, 4096+49152
sACT, sCBKT, sSUBT, sCU = 88, 89, 90, 91
sLOC, sXEXP = 79, 0
S_DBG = 12
def signal(a, s_off, vt, nafter=0, bloc=False):
    L = newlbl("sig")
    a.e(f"s_waitcnt vmcnt({nafter})", "s_barrier", "s_cmp_lg_u32 s3, 0", f"s_cbranch_scc1 {L}",
        f"v_mov_b32 v{vt}, s{s_off}", f"v_mov_b32 v{vt+1}, s{S_TGT}", "s_mov_b64 exec, 1")
    st = f"buffer_store_dword v{vt+1}, v{vt}, s[{S_SYN}:{S_SYN+3}], 0 offen"
    if bloc and OPT["locflag"]:
        dual_store(a, [st])
    else:
        a.e(st + " sc1")
    a.e("s_mov_b64 exec, -1")
    a.label(L)

def wait_flags(a, vaddr, nload, vt, s_cnt, pre_barrier=None, solo=False):
    L = newlbl("poll"); Ls = newlbl("pdone"); Lr = newlbl("prest")
    if not solo: a.e("s_cmp_lg_u32 s3, 0", f"s_cbranch_scc1 {Ls}")
    a.e(f"s_mov_b32 s{s_cnt}, 0")
    a.label(L)
    offs = ["0", "s98", "s99", "s100"]
    for i in range(nload):
        a.e(f"buffer_load_dword v{vt+i}, v{vaddr}, s[{S_SYN}:{S_SYN+3}], {offs[i]} offen sc1")
    a.e(f"s_add_u32 s{s_cnt}, s{s_cnt}, 1", "s_waitcnt vmcnt(0)")
    for i in range(nload):
        a.e(f"v_xor_b32 v{vt+i}, s{S_TGT}, v{vt+i}")
    for i in range(1, nload):
        a.e(f"v_or_b32 v{vt}, v{vt}, v{vt+i}")
    if OPT["shrink"]:
        a.e(f"v_cmp_ne_u32 vcc, 0, v{vt}", "s_and_b64 exec, exec, vcc", f"s_cbranch_execz {Lr}")
    else:
        a.e(f"v_cmp_ne_u32 vcc, 0, v{vt}", f"s_cbranch_vccz {Lr}")
    if OPT["sleep"]: a.e(f"s_sleep {OPT['sleep']}")
    a.e(f"s_cmp_lt_u32 s{s_cnt}, {SPIN_LIMIT}", f"s_cbranch_scc1 {L}")
    a.label(Lr)
    if OPT["shrink"]: a.e("s_mov_b64 exec, -1")
    a.label(Ls)
    if pre_barrier: a.e(pre_barrier)
    if not solo: a.e("s_barrier")

SY_ID = 4096 + 65536
SY_B1B = 4096 + 98304
SY_AS = 4096 + 114688
LOCW = 53244
def loc_publish(a):
    L = newlbl("pub")
    a.e("s_getreg_b32 s92, hwreg(HW_REG_XCC_ID)", "s_and_b32 s92, s92, 15", f"s_lshl_b32 s{sXEXP}, s{S_TGT}, 4", f"s_or_b32 s{sXEXP}, s{sXEXP}, s92")
    a.e("s_cmp_lg_u32 s3, 0", f"s_cbranch_scc1 {L}")
    if OPT["b1all"] and OPT["grp"]:
        a.e("s_and_b32 s92, s2, 15", "s_lshl_b32 s92, s92, 4", "s_lshr_b32 s93, s2, 4", "s_add_u32 s92, s92, s93", "s_lshl_b32 s92, s92, 6", f"s_add_u32 s92, s92, {SY_ID}")
    else:
        a.e("s_lshr_b32 s92, s2, 3", f"s_lshr_b32 s93, s{sCU}, 4", "s_add_u32 s93, s93, 32", "s_cmp_ge_u32 s2, 256", "s_cselect_b32 s92, s93, s92",
            "s_and_b32 s93, s2, 7", f"s_mul_i32 s93, s93, {NMEM()}", "s_add_u32 s92, s92, s93", "s_lshl_b32 s92, s92, 6", f"s_add_u32 s92, s92, {SY_ID}")
    a.e(
        "v_mov_b32 v10, s92", f"v_mov_b32 v11, s{sXEXP}", "s_mov_b64 exec, 1",
        f"buffer_store_dword v11, v10, s[{S_SYN}:{S_SYN+3}], 0 offen sc1", "s_mov_b64 exec, -1")
    a.label(L)

def loc_issue(a, vt):
    if OPT["b1all"] and OPT["grp"]:
        a.e(f"v_min_u32 v{vt}, 15, v1", "s_and_b32 s93, s2, 15", "s_lshl_b32 s93, s93, 4")
    else:
        a.e(f"v_min_u32 v{vt}, {NMEM()-1}, v1", "s_and_b32 s93, s2, 7", f"s_mul_i32 s93, s93, {NMEM()}")
    a.e(f"v_add_u32 v{vt}, s93, v{vt}",
        f"v_lshlrev_b32 v{vt}, 6, v{vt}", f"v_add_u32 v{vt}, {SY_ID}, v{vt}")
    L = newlbl("li")
    a.e("s_cmp_lg_u32 s3, 0", f"s_cbranch_scc1 {L}")
    a.e(f"buffer_load_dword v{vt+1}, v{vt}, s[{S_SYN}:{S_SYN+3}], 0 offen sc1")
    a.label(L)

def loc_resolve(a, vt, barrier=True, nafter=0):
    L, Ld, Ls = newlbl("locp"), newlbl("locd"), newlbl("locs")
    a.e("s_cmp_lg_u32 s3, 0", f"s_cbranch_scc1 {Ls}")
    if OPT["forceloc"] >= 0:
        a.e(f"s_waitcnt vmcnt({nafter})", f"s_mov_b32 s93, {OPT['forceloc']}")
    else:
        a.e("s_mov_b32 s92, 0", f"s_waitcnt vmcnt({nafter})")
        a.label(L)
        a.e(f"v_xor_b32 v{vt+2}, s{sXEXP}, v{vt+1}", f"v_lshrrev_b32 v{vt+3}, 4, v{vt+2}", "s_add_u32 s92, s92, 1",
            f"v_cmp_ne_u32 vcc, 0, v{vt+3}", f"s_cbranch_vccz {Ld}",
            f"s_cmp_ge_u32 s92, {SPIN_LIMIT}", f"s_cbranch_scc1 {Ld}",
            f"buffer_load_dword v{vt+1}, v{vt}, s[{S_SYN}:{S_SYN+3}], 0 offen sc1", "s_waitcnt vmcnt(0)", f"s_branch {L}")
        a.label(Ld)
        a.e(f"v_cmp_ne_u32 vcc, 0, v{vt+2}", "s_cmp_eq_u64 vcc, 0", "s_cselect_b32 s93, 1, 0")
    a.e(f"s_mov_b32 s{sLOC}, s93", f"v_mov_b32 v{vt+2}, {LOCW}", f"v_mov_b32 v{vt+3}, s93", f"ds_write_b32 v{vt+2}, v{vt+3}", "s_waitcnt lgkmcnt(0)")
    a.label(Ls)
    if barrier:
        a.e("s_barrier")
        loc_read(a, vt)

def loc_read(a, vt):
    a.e(f"v_mov_b32 v{vt+2}, {LOCW}", f"ds_read_b32 v{vt+3}, v{vt+2}", "s_waitcnt lgkmcnt(0)", f"v_readfirstlane_b32 s{sLOC}, v{vt+3}")

def dual_store(a, lines):
    L1, L2 = newlbl("stg"), newlbl("stl")
    a.e(f"s_cmp_eq_u32 s{sLOC}, 0", f"s_cbranch_scc1 {L1}")
    for l in lines: a.e(l)
    a.e(f"s_branch {L2}")
    a.label(L1)
    for l in lines: a.e(l + " sc1" if "buffer_store" in l else l)
    a.label(L2)

def a_state(a, sT, done, vt):
    L = newlbl("ast")
    a.e("s_cmp_lg_u32 s3, 0", f"s_cbranch_scc1 {L}", f"s_lshl_b32 s92, s{sT}, 6", f"s_add_u32 s92, s92, {SY_AS}",
        f"s_lshl_b32 s93, s{S_TGT}, 1", f"s_or_b32 s93, s93, {done}", f"v_mov_b32 v{vt}, s92", f"v_mov_b32 v{vt+1}, s93", "s_mov_b64 exec, 1",
        f"buffer_store_dword v{vt+1}, v{vt}, s[{S_SYN}:{S_SYN+3}], 0 offen", "s_mov_b64 exec, -1")
    a.label(L)

def b_yield(a, vt):
    L, Ld = newlbl("yl"), newlbl("yd")
    a.e(f"s_lshl_b32 s92, s{sCU}, 6", f"s_add_u32 s92, s92, {SY_AS}", f"v_mov_b32 v{vt}, s92", f"s_lshl_b32 s75, s{S_TGT}, 1", "s_mov_b32 s92, 0")
    if OPT["yieldB"] == 2: a.e("s_or_b32 s75, s75, 1")
    a.label(L)
    a.e(f"buffer_load_dword v{vt+1}, v{vt}, s[{S_SYN}:{S_SYN+3}], 0 offen " + ("sc1" if OPT.get("ysc", 1) else "nt"), "s_add_u32 s92, s92, 1", "s_waitcnt vmcnt(0)",
        f"v_readfirstlane_b32 s93, v{vt+1}", "s_cmp_lg_u32 s93, s75" if OPT["yieldB"] == 1 else "s_cmp_eq_u32 s93, s75", f"s_cbranch_scc1 {Ld}",
        f"s_cmp_lt_u32 s92, {OPT['ylim']}", f"s_cbranch_scc1 {L}")
    a.label(Ld)

def fin_epoch(a):
    a.e("s_waitcnt lgkmcnt(0)", f"s_add_u32 s{S_TGT}, s{S_TGT}, 1")

def bump(a, s_off, vt):
    a.e(f"v_mov_b32 v{vt}, s{s_off}", f"v_mov_b32 v{vt+1}, s{S_TGT}", "s_mov_b64 exec, 1",
        f"buffer_store_dword v{vt+1}, v{vt}, s[{S_SYN}:{S_SYN+3}], 0 offen sc1", "s_mov_b64 exec, -1")

F_M, F_G, F_IN0, F_IN1, F_OUTOFF, F_WR, F_RD0, F_RD1, F_MM = 2, 3, 4, 5, 6, 7, 8, 9, 10
F_T = 11
F_IN, F16RE, F16IM, F_TWC, F_TWS, F_DRE, F_DIM, F_P, F_TMP, F32RE, F32IM = 16, 48, 52, 56, 88, 120, 136, 152, 168, 176, 192
SI_OFF, SO_OFF = 52, 68
SO_LIST = [68, 69, 70, 71, 76, 77, 78, 79]

def fft512_addr(a, s_sa, s_cb):
    a.e(f"v_and_b32 v{F_M}, 15, v1", f"v_lshrrev_b32 v{F_G}, 4, v1")
    a.e(f"v_lshlrev_b32 v{F_IN0}, 20, v{F_G}", f"v_lshl_add_u32 v{F_IN0}, v{F_M}, 2, v{F_IN0}", f"v_add_u32 v{F_IN1}, {4*8192}, v{F_IN0}")
    a.e(f"s_lshl_b32 s48, s{s_sa}, 11", f"s_lshl_b32 s49, s{s_cb}, 6", "s_add_u32 s48, s48, s49",
        "s_lshl_b32 s50, s3, 16", "s_add_u32 s48, s48, s50")
    for aa in range(4):
        for i in range(4):
            a.e(f"s_add_u32 s{SI_OFF+4*aa+i}, s48, {(32*i+aa)*8192}")

def fft512_loads(a, SIN, mod=""):
    for hh in range(2):
        for aa in range(4):
            for i in range(4):
                a.e(f"buffer_load_dword v{F_IN+16*hh+4*aa+i}, v{F_IN0+hh}, s[{SIN}:{SIN+3}], s{SI_OFF+4*aa+i} offen {mod}")

def fft512_addr2(a, s_sa, s_cb, orow, ostr):
    a.e(f"s_mov_b32 s51, {16*ostr}", f"v_mul_lo_u32 v{F_OUTOFF}, v{F_M}, s51", f"v_lshl_add_u32 v{F_OUTOFF}, v{F_G}, 4, v{F_OUTOFF}")
    a.e(f"s_mul_i32 s48, s{s_sa}, {orow}", f"s_lshl_b32 s49, s{s_cb}, 6", "s_add_u32 s48, s48, s49",
        f"s_mul_i32 s50, s3, {4*ostr}", "s_add_u32 s48, s48, s50")
    for b in range(4):
        for h in range(2):
            a.e(f"s_add_u32 s{SO_LIST[2*b+h]}, s48, {(b+256*h)*ostr}")
    a.e(f"v_and_b32 v{F_T}, 7, v{F_M}", "s_lshl_b32 s50, s3, 1", f"v_xor_b32 v{F_T+1}, s50, v{F_T}",
        f"v_lshlrev_b32 v{F_WR}, 4, v{F_T+1}", f"v_lshl_add_u32 v{F_WR}, v{F_M}, 7, v{F_WR}",
        f"v_lshl_add_u32 v{F_WR}, v{F_G}, 13, v{F_WR}")
    a.e(f"v_xor_b32 v{F_T+1}, v{F_G}, v{F_T}", f"v_lshlrev_b32 v{F_RD0}, 4, v{F_T+1}",
        f"v_lshl_add_u32 v{F_RD0}, v{F_M}, 7, v{F_RD0}", "s_lshl_b32 s50, s3, 13",
        f"v_add_u32 v{F_RD0}, s50, v{F_RD0}", f"v_xor_b32 v{F_RD1}, 64, v{F_RD0}")

def fft512_consts(a):
    T, TMP = F_T, F_TMP
    XS, XB = T, T+1
    a.e(f"v_cvt_f32_u32 v{XS}, v{F_M}", f"v_mul_f32 v{XS}, {f32hex(1/32)}, v{XS}",
        f"v_cvt_f32_u32 v{T+2}, v{F_G}", f"v_mul_f32 v{T+2}, 4.0, v{T+2}",
        f"v_mul_f32 v{XB}, v{T+2}, v{XS}")
    a.e(f"v_and_b32 v{F_MM}, 1, v{F_M}", f"v_mul_u32_u24 v{F_MM}, 0x8000, v{F_MM}",
        f"v_lshl_or_b32 v{F_MM}, v{F_MM}, 16, v{F_MM}", "s_mov_b32 s50, 0x80008000")
    for i in range(4):
        x = TMP; cs = TMP+1; sn = TMP+2; x2 = TMP+3; cs2 = TMP+4; sn2 = TMP+5
        a.e(f"v_fmamk_f32 v{x}, v{XS}, {f32hex(float(i))}, v{XB}" if i else f"v_mov_b32 v{x}, v{XB}")
        a.e(f"v_add_f32 v{x2}, v{x}, v{x}")
        a.e(f"v_cos_f32 v{cs}, v{x}", f"v_sin_f32 v{sn}, v{x}", f"v_cos_f32 v{cs2}, v{x2}", f"v_sin_f32 v{sn2}, v{x2}")
        a.e(f"v_cvt_pk_bf16_f32 v{F32RE+i}, v{cs}, v{sn}", f"v_cvt_pk_bf16_f32 v{F32IM+i}, -v{sn}, v{cs}",
            f"v_cvt_pk_bf16_f32 v{F16RE+i}, v{cs2}, v{sn2}", f"v_cvt_pk_bf16_f32 v{F16IM+i}, -v{sn2}, v{cs2}")
    for base in (F32RE, F32IM):
        for i in range(4):
            a.e(f"v_xor_b32 v{base+4+i}, v{F_MM}, v{base+i}")
        for t in range(2):
            for i in range(4):
                src = base+4*t+i
                if i & 1: a.e(f"v_xor_b32 v{base+8+4*t+i}, s50, v{src}")
                else:     a.e(f"v_mov_b32 v{base+8+4*t+i}, v{src}")
    a.e(f"v_cvt_f32_u32 v{TMP}, s3", f"v_mul_f32 v{TMP}, {f32hex(8/512)}, v{TMP}")
    for r in range(4):
        a.e(f"v_add_f32 v{TMP+4+r}, {f32hex(float(r)) if r else 0}, v{T+2}")
    for aa in range(8):
        a.e(f"v_add_f32 v{TMP+1}, {f32hex(aa/512) if aa else 0}, v{TMP}")
        for r in range(4):
            a.e(f"v_mul_f32 v{T+3+(r&1)}, v{TMP+1}, v{TMP+4+r}",
                f"v_cos_f32 v{F_TWC+4*aa+r}, v{T+3+(r&1)}", f"v_sin_f32 v{F_TWS+4*aa+r}, v{T+3+(r&1)}")

def fft512_compute(a, SOUT, neg_im, nafter, stmod, st0, fs=0, hook=None):
    TMP = F_TMP
    stamp(a, st0)
    for hh in range(2):
        fstamp(a, fs+5*hh)
        for aa in range(4):
            a.e(f"s_waitcnt vmcnt({28-16*hh-4*aa+nafter})")
            a.e(f"v_mfma_f32_16x16x32_bf16 {v(F_DRE+4*aa,4)}, {v(F16RE,4)}, {v(F_IN+16*hh+4*aa,4)}, 0",
                f"v_mfma_f32_16x16x32_bf16 {v(F_DIM+4*aa,4)}, {v(F16IM,4)}, {v(F_IN+16*hh+4*aa,4)}, 0")
        if hh == 1:
            stamp(a, st0+1)
            if hook: hook()
        fstamp(a, fs+5*hh+1)
        for aa in range(4):
            for p in range(2):
                re, im = F_DRE+4*aa+2*p, F_DIM+4*aa+2*p
                tc, ts = F_TWC+16*hh+4*aa+2*p, F_TWS+16*hh+4*aa+2*p
                t0, t1 = TMP+4*p, TMP+4*p+2
                a.e(f"v_pk_mul_f32 {v(t0,2)}, {v(re,2)}, {v(tc,2)}",
                    f"v_pk_mul_f32 {v(t1,2)}, {v(im,2)}, {v(tc,2)}",
                    f"v_pk_fma_f32 {v(t0,2)}, {v(im,2)}, {v(ts,2)}, {v(t0,2)}",
                    f"v_pk_fma_f32 {v(t1,2)}, {v(re,2)}, {v(ts,2)}, {v(t1,2)} neg_lo:[1,0,0] neg_hi:[1,0,0]")
                for e in range(2):
                    r = 2*p+e
                    a.e(f"v_cvt_pk_bf16_f32 v{F_P+4*r+aa}, v{t0+e}, v{t1+e}")
        fstamp(a, fs+5*hh+2)
        if hh == 1: a.e(f"v_xor_b32 v{F_WR}, 16, v{F_WR}")
        for r in range(4):
            a.e(f"ds_write_b128 v{F_WR}, {v(F_P+4*r,4)} offset:{r*2048}")
    a.e("s_waitcnt lgkmcnt(0)")
    fstamp(a, fs+8)
    a.e("s_barrier")
    fstamp(a, fs+9)
    for b in range(4):
        a.e(f"ds_read_b128 {v(F_IN+8*b,4)}, v{F_RD0} offset:{b*2048}",
            f"ds_read_b128 {v(F_IN+8*b+4,4)}, v{F_RD1} offset:{b*2048}")
    sg = "-" if neg_im else ""
    def mf(bb):
        D0 = [F_DRE, F_DIM] if bb == 0 else [F_TWC, F_TWC+16]
        for bl in range(2):
            b = 2*bb+bl
            a.e(f"s_waitcnt lgkmcnt({6-2*b})")
            for t in range(2):
                for h in range(2):
                    for (D_, F_) in ((D0[0], F32RE), (D0[1], F32IM)):
                        d = D_+8*bl+4*h
                        c = "0" if t == 0 else v(d, 4)
                        a.e(f"v_mfma_f32_16x16x32_bf16 {v(d,4)}, {v(F_IN+8*b+4*t,4)}, {v(F_+8*h+4*t,4)}, {c}")
    def st(bb):
        D0 = [F_DRE, F_DIM] if bb == 0 else [F_TWC, F_TWC+16]
        PB = F_P if bb == 0 else F_TWS
        out = []
        for bl in range(2):
            b = 2*bb+bl
            for h in range(2):
                idx = 8*bl+4*h
                for r in range(4):
                    out.append(f"v_cvt_pk_bf16_f32 v{PB+idx+r}, v{D0[0]+idx+r}, {sg}v{D0[1]+idx+r}")
                out.append(f"buffer_store_dwordx4 {v(PB+idx,4)}, v{F_OUTOFF}, s[{SOUT}:{SOUT+3}], s{SO_LIST[2*b+h]} offen {stmod}")
        return out
    mf(0)
    n0 = len(a.lines)
    mf(1)
    m1 = a.lines[n0:]; del a.lines[n0:]
    s0 = st(0)
    k = 0
    seen = 0
    for l in m1:
        a.lines.append(l)
        if "v_mfma" in l:
            seen += 1
            if seen > 4:
                for _ in range(2):
                    if k < len(s0): a.e(s0[k]); k += 1
    while k < len(s0): a.e(s0[k]); k += 1
    fstamp(a, fs+10)
    for l in st(1): a.e(l)

def f8_addr(a, s_sa, s_cb, orow, ostr):
    a.e(f"v_and_b32 v{F_M}, 15, v1", f"v_lshrrev_b32 v{F_G}, 4, v1")
    a.e(f"v_and_b32 v{F_T}, 7, v1", f"v_bfe_u32 v{F_T+1}, v1, 3, 1",
        f"v_lshlrev_b32 v{F_IN0}, 20, v{F_G}", f"v_lshl_add_u32 v{F_IN0}, v{F_T+1}, 15, v{F_IN0}",
        f"v_lshl_add_u32 v{F_IN0}, v{F_T}, 2, v{F_IN0}")
    a.e(f"s_lshl_b32 s48, s{s_sa}, 11", f"s_lshl_b32 s49, s{s_cb}, 5", "s_add_u32 s48, s48, s49",
        "s_lshl_b32 s50, s3, 16", "s_add_u32 s48, s48, s50")
    for aa in range(4):
        for i in range(4):
            a.e(f"s_add_u32 s{SI_OFF+4*aa+i}, s48, {(32*i+aa)*8192}")
    a.e(f"v_lshrrev_b32 v{F_T+2}, 1, v{F_G}", f"v_lshl_add_u32 v{F_T+2}, v{F_M}, 4, v{F_T+2}",
        f"s_mov_b32 s51, {ostr}", f"v_mul_lo_u32 v{F_OUTOFF}, v{F_T+2}, s51",
        f"v_and_b32 v{F_T+2}, 1, v{F_G}", f"v_lshl_add_u32 v{F_OUTOFF}, v{F_T+2}, 4, v{F_OUTOFF}")
    a.e(f"s_mul_i32 s48, s{s_sa}, {orow}", f"s_lshl_b32 s49, s{s_cb}, 5", "s_add_u32 s48, s48, s49",
        f"s_mul_i32 s50, s3, {4*ostr}", "s_add_u32 s48, s48, s50")
    for b in range(2):
        for h in range(2):
            a.e(f"s_add_u32 s{SO_LIST[2*b+h]}, s48, {(2*b+256*h)*ostr}")
    a.e("s_lshl_b32 s50, s3, 1", f"v_add_u32 v{F_T+2}, s50, v{F_T+1}", f"v_xor_b32 v{F_T+2}, v{F_T+2}, v{F_T}",
        f"v_lshlrev_b32 v{F_WR}, 4, v{F_T+2}", f"v_lshl_add_u32 v{F_WR}, v{F_T}, 7, v{F_WR}", f"v_lshl_add_u32 v{F_WR}, v{F_G}, 12, v{F_WR}")
    a.e(f"v_xor_b32 v{F_T+2}, v{F_G}, v{F_T}", f"v_lshlrev_b32 v{F_RD0}, 4, v{F_T+2}",
        f"v_lshl_add_u32 v{F_RD0}, v{F_T}, 7, v{F_RD0}", f"v_lshl_add_u32 v{F_RD0}, v{F_T+1}, 10, v{F_RD0}",
        "s_lshl_b32 s50, s3, 12", f"v_add_u32 v{F_RD0}, s50, v{F_RD0}", f"v_xor_b32 v{F_RD1}, 64, v{F_RD0}")

def f8_consts(a):
    T, TMP = F_T, F_TMP
    XS, XB = T, T+1
    a.e(f"v_cvt_f32_u32 v{XS}, v{F_M}", f"v_mul_f32 v{XS}, {f32hex(1/32)}, v{XS}",
        f"v_cvt_f32_u32 v{T+2}, v{F_G}", f"v_mul_f32 v{T+2}, 4.0, v{T+2}",
        f"v_mul_f32 v{XB}, v{T+2}, v{XS}")
    a.e(f"v_and_b32 v{F_MM}, 1, v{F_M}", f"v_mul_u32_u24 v{F_MM}, 0x8000, v{F_MM}",
        f"v_lshl_or_b32 v{F_MM}, v{F_MM}, 16, v{F_MM}", "s_mov_b32 s50, 0x80008000")
    for i in range(4):
        x = TMP; cs = TMP+1; sn = TMP+2; x2 = TMP+3; cs2 = TMP+4; sn2 = TMP+5
        a.e(f"v_fmamk_f32 v{x}, v{XS}, {f32hex(float(i))}, v{XB}" if i else f"v_mov_b32 v{x}, v{XB}")
        a.e(f"v_add_f32 v{x2}, v{x}, v{x}")
        a.e(f"v_cos_f32 v{cs}, v{x}", f"v_sin_f32 v{sn}, v{x}", f"v_cos_f32 v{cs2}, v{x2}", f"v_sin_f32 v{sn2}, v{x2}")
        a.e(f"v_cvt_pk_bf16_f32 v{F32RE+i}, v{cs}, v{sn}", f"v_cvt_pk_bf16_f32 v{F32IM+i}, -v{sn}, v{cs}",
            f"v_cvt_pk_bf16_f32 v{F16RE+i}, v{cs2}, v{sn2}", f"v_cvt_pk_bf16_f32 v{F16IM+i}, -v{sn2}, v{cs2}")
    for base in (F32RE, F32IM):
        for i in range(4):
            a.e(f"v_xor_b32 v{base+4+i}, v{F_MM}, v{base+i}")
        for t in range(2):
            for i in range(4):
                src = base+4*t+i
                if i & 1: a.e(f"v_xor_b32 v{base+8+4*t+i}, s50, v{src}")
                else:     a.e(f"v_mov_b32 v{base+8+4*t+i}, v{src}")
    a.e(f"v_bfe_u32 v{TMP}, v1, 3, 1", "s_lshl_b32 s50, s3, 1", f"v_add_u32 v{TMP}, s50, v{TMP}",
        f"v_cvt_f32_u32 v{TMP}, v{TMP}", f"v_mul_f32 v{TMP}, {f32hex(4/512)}, v{TMP}")
    for r in range(4):
        a.e(f"v_add_f32 v{TMP+4+r}, {f32hex(float(r)) if r else 0}, v{T+2}")
    for aa in range(4):
        a.e(f"v_add_f32 v{TMP+1}, {f32hex(aa/512) if aa else 0}, v{TMP}")
        for r in range(4):
            a.e(f"v_mul_f32 v{T+3+(r&1)}, v{TMP+1}, v{TMP+4+r}",
                f"v_cos_f32 v{F_TWC+4*aa+r}, v{T+3+(r&1)}", f"v_sin_f32 v{F_TWS+4*aa+r}, v{T+3+(r&1)}")

def f8_run(a, SIN, SOUT, ldmod, stmod):
    TMP = F_TMP
    for aa in range(4):
        for i in range(4):
            a.e(f"buffer_load_dword v{F_IN+4*aa+i}, v{F_IN0}, s[{SIN}:{SIN+3}], s{SI_OFF+4*aa+i} offen {ldmod}")
    fstamp(a, 3)
    for aa in range(4):
        a.e(f"s_waitcnt vmcnt({12-4*aa})")
        a.e(f"v_mfma_f32_16x16x32_bf16 {v(F_DRE+4*aa,4)}, {v(F16RE,4)}, {v(F_IN+4*aa,4)}, 0",
            f"v_mfma_f32_16x16x32_bf16 {v(F_DIM+4*aa,4)}, {v(F16IM,4)}, {v(F_IN+4*aa,4)}, 0")
    fstamp(a, 1)
    for aa in range(4):
        for p in range(2):
            re, im = F_DRE+4*aa+2*p, F_DIM+4*aa+2*p
            tc, ts = F_TWC+4*aa+2*p, F_TWS+4*aa+2*p
            t0, t1 = TMP+4*p, TMP+4*p+2
            a.e(f"v_pk_mul_f32 {v(t0,2)}, {v(re,2)}, {v(tc,2)}",
                f"v_pk_mul_f32 {v(t1,2)}, {v(im,2)}, {v(tc,2)}",
                f"v_pk_fma_f32 {v(t0,2)}, {v(im,2)}, {v(ts,2)}, {v(t0,2)}",
                f"v_pk_fma_f32 {v(t1,2)}, {v(re,2)}, {v(ts,2)}, {v(t1,2)} neg_lo:[1,0,0] neg_hi:[1,0,0]")
            for e in range(2):
                r = 2*p+e
                a.e(f"v_cvt_pk_bf16_f32 v{F_P+4*r+aa}, v{t0+e}, v{t1+e}")
    for r in range(4):
        a.e(f"ds_write_b128 v{F_WR}, {v(F_P+4*r,4)} offset:{r*1024}")
    a.e("s_waitcnt lgkmcnt(0)")
    fstamp(a, 8)
    a.e("s_barrier")
    fstamp(a, 9)
    for b in range(2):
        a.e(f"ds_read_b128 {v(F_IN+8*b,4)}, v{F_RD0} offset:{b*2048}",
            f"ds_read_b128 {v(F_IN+8*b+4,4)}, v{F_RD1} offset:{b*2048}")
    for b in range(2):
        a.e(f"s_waitcnt lgkmcnt({2-2*b})")
        for t in range(2):
            for h in range(2):
                for (D_, F_) in ((F_DRE, F32RE), (F_DIM, F32IM)):
                    d = D_+8*b+4*h
                    c = "0" if t == 0 else v(d, 4)
                    a.e(f"v_mfma_f32_16x16x32_bf16 {v(d,4)}, {v(F_IN+8*b+4*t,4)}, {v(F_+8*h+4*t,4)}, {c}")
    fstamp(a, 10)
    for b in range(2):
        for h in range(2):
            idx = 8*b+4*h
            for r in range(4):
                a.e(f"v_cvt_pk_bf16_f32 v{F_P+idx+r}, v{F_DRE+idx+r}, -v{F_DIM+idx+r}")
            a.e(f"buffer_store_dwordx4 {v(F_P+idx,4)}, v{F_OUTOFF}, s[{SOUT}:{SOUT+3}], s{SO_LIST[2*b+h]} offen {stmod}")

IDX, G_, VG, VGW, VRR, VHR, VST, VW = 2, 3, 6, 7, 8, 12, 13, 14
CRE, CIM, TWC, TWS, WR, WI, ARE, AIM, DF, GA, HRE, HIM, GB, TMP = 16, 32, 48, 64, 80, 96, 112, 128, 144, 160, 164, 168, 172, 188
W2R, W2I, SP, PF, PF2 = 204, 220, 236, 248, 252
LW = 32768; LSC = 16384; LW2 = 49152

def w_dma(a, SWR, SWI, s_rowoff, s_mirroff, s_ldsbase, vlane16):
    a.e(f"s_mov_b32 m0, s{s_ldsbase}", f"buffer_load_dwordx4 v{vlane16}, s[{SWR}:{SWR+3}], s{s_rowoff} offen lds" + NT())
    a.e(f"s_add_u32 s93, s{s_ldsbase}, 1024", "s_mov_b32 m0, s93", f"buffer_load_dwordx4 v{vlane16}, s[{SWI}:{SWI+3}], s{s_rowoff} offen lds" + NT())
    a.e(f"s_add_u32 s92, s{s_mirroff}, 2")
    a.e(f"s_add_u32 s93, s{s_ldsbase}, 2048", "s_mov_b32 m0, s93", f"buffer_load_dwordx4 v{vlane16}, s[{SWR}:{SWR+3}], s92 offen lds" + NT())
    a.e(f"s_add_u32 s93, s{s_ldsbase}, 3072", "s_mov_b32 m0, s93", f"buffer_load_dwordx4 v{vlane16}, s[{SWI}:{SWI+3}], s92 offen lds" + NT())

def pf_loads(a, SWR, SWI, s_rowoff, s_mirroff, dst, vt):
    a.e(f"v_mov_b32 v{vt}, s{s_mirroff}", f"v_mov_b32 v{vt+1}, s{s_rowoff}", f"v_add_u32 v{vt+1}, 1024, v{vt+1}")
    a.e(f"buffer_load_short_d16_hi v{dst}, v{vt}, s[{SWR}:{SWR+3}], 0 offen",
        f"buffer_load_short_d16_hi v{dst+1}, v{vt}, s[{SWI}:{SWI+3}], 0 offen",
        f"buffer_load_short_d16_hi v{dst+2}, v{vt+1}, s[{SWR}:{SWR+3}], 0 offen",
        f"buffer_load_short_d16_hi v{dst+3}, v{vt+1}, s[{SWI}:{SWI+3}], 0 offen")

def w_lds_reads(a, vlo, vhi, dr, di):
    for (dst, o) in ((dr, 0), (di, 1024)):
        for r in range(16):
            e = eidx(r)
            if r < 8: a.e(f"ds_read_u16_d16_hi v{dst+r}, v{vlo} offset:{o+64*e}")
            else:     a.e(f"ds_read_u16_d16_hi v{dst+r}, v{vhi} offset:{o+64*(27-e)}")

def fix_w(a, dr, di, pf):
    a.e("v_cmp_eq_u32 vcc, 0, v1")
    for (r, o) in ((0, 0), (8, 2)):
        a.e(f"v_add_f32 v{TMP}, v{dr+r}, v{pf+o}", f"v_mul_f32 v{TMP}, 0.5, v{TMP}",
            f"v_sub_f32 v{TMP+1}, v{di+r}, v{pf+o+1}", f"v_mul_f32 v{TMP+1}, 0.5, v{TMP+1}",
            f"v_cndmask_b32 v{dr+r}, v{dr+r}, v{TMP}, vcc", f"v_cndmask_b32 v{di+r}, v{di+r}, v{TMP+1}, vcc")

def fft1024(a, mid=None):
    for t in range(4):
        c0 = "0" if t == 0 else v(ARE, 16); c1 = "0" if t == 0 else v(AIM, 16)
        a.e(f"v_mfma_f32_32x32x16_bf16 {v(ARE,16)}, {v(DF+4*t,4)}, {v(CRE+4*t,4)}, {c0}",
            f"v_mfma_f32_32x32x16_bf16 {v(AIM,16)}, {v(DF+4*t,4)}, {v(CIM+4*t,4)}, {c1}")
    for p in range(8):
        re, im, tc, ts = ARE+2*p, AIM+2*p, TWC+2*p, TWS+2*p
        t0 = TMP+4*(p & 1); t1 = t0+2
        a.e(f"v_pk_mul_f32 {v(t0,2)}, {v(re,2)}, {v(tc,2)}",
            f"v_pk_mul_f32 {v(t1,2)}, {v(im,2)}, {v(tc,2)}",
            f"v_pk_fma_f32 {v(t0,2)}, {v(im,2)}, {v(ts,2)}, {v(t0,2)}",
            f"v_pk_fma_f32 {v(t1,2)}, {v(re,2)}, {v(ts,2)}, {v(t1,2)} neg_lo:[1,0,0] neg_hi:[1,0,0]")
        for e in range(2):
            a.e(f"v_cvt_pk_bf16_f32 v{DF+2*p+e}, v{t0+e}, v{t1+e}")
    for t in range(4):
        if mid and t == 1: mid()
        c0 = "0" if t == 0 else v(ARE, 16); c1 = "0" if t == 0 else v(AIM, 16)
        a.e(f"v_mfma_f32_32x32x16_bf16 {v(ARE,16)}, {v(CRE+4*t,4)}, {v(DF+4*t,4)}, {c0}",
            f"v_mfma_f32_32x32x16_bf16 {v(AIM,16)}, {v(CIM+4*t,4)}, {v(DF+4*t,4)}, {c1}")

def a2_consts(a, sT):
    a.e(f"v_and_b32 v{IDX}, 31, v1", f"v_lshrrev_b32 v{G_}, 5, v1")
    XS, XB = TMP, TMP+1
    a.e(f"v_cvt_f32_u32 v{TMP+2}, v{IDX}", f"v_cvt_f32_u32 v{TMP+3}, v{G_}", f"v_mul_f32 v{TMP+3}, 4.0, v{TMP+3}",
        f"v_mul_f32 v{XS}, {f32hex(1/32)}, v{TMP+2}", f"v_mul_f32 v{XB}, v{TMP+3}, v{XS}")
    a.e(f"v_and_b32 v{TMP+4}, 1, v{IDX}", f"v_mul_u32_u24 v{TMP+4}, 0x8000, v{TMP+4}", f"v_lshl_or_b32 v{TMP+4}, v{TMP+4}, 16, v{TMP+4}")
    for t in range(2):
        for i in range(4):
            c = float(8*t+i); x = TMP+5+3*(i & 1)
            a.e(f"v_fmamk_f32 v{x}, v{XS}, {f32hex(c)}, v{XB}" if c else f"v_mov_b32 v{x}, v{XB}")
            a.e(f"v_cos_f32 v{x+1}, v{x}", f"v_sin_f32 v{x+2}, v{x}")
            a.e(f"v_cvt_pk_bf16_f32 v{CRE+4*t+i}, v{x+1}, v{x+2}", f"v_cvt_pk_bf16_f32 v{CIM+4*t+i}, -v{x+2}, v{x+1}")
    for base in (CRE, CIM):
        for i in range(8):
            a.e(f"v_xor_b32 v{base+8+i}, v{TMP+4}, v{base+i}")
    a.e(f"v_mul_f32 v{XS}, {f32hex(1/1024)}, v{TMP+2}", f"v_mul_f32 v{XB}, v{TMP+3}, v{XS}")
    for r in range(16):
        c = float(eidx(r)); x = TMP+5+(r & 1)
        a.e(f"v_fmamk_f32 v{x}, v{XS}, {f32hex(c)}, v{XB}" if c else f"v_mov_b32 v{x}, v{XB}")
        a.e(f"v_cos_f32 v{TWC+r}, v{x}", f"v_sin_f32 v{TWS+r}, v{x}")
    LO, HI, Q, AV, XA0, XA1, E0, E1 = TMP, TMP+1, TMP+2, TMP+3, TMP+4, TMP+5, TMP+6, TMP+7
    JF, KEY, T2, PO, PAR, N16, G4, CS = [TMP+8+i for i in range(8)]
    Lspec, Ldone = newlbl("ghspec"), newlbl("ghdone")
    a.e(f"v_and_b32 v{LO}, 3, v{IDX}", f"v_bfe_u32 v{HI}, v{IDX}, 2, 2")
    a.e(f"v_and_b32 v{N16}, 15, v1", f"v_lshrrev_b32 v{G4}, 4, v1")
    a.e(f"s_cmp_eq_u32 s{sT}, 0", f"s_cbranch_scc1 {Lspec}")
    a.e(f"v_cvt_f32_u32 v{T2}, s{sT}", f"v_cvt_f32_u32 v{JF}, v{HI}", f"v_fmamk_f32 v{JF}, v{JF}, {f32hex(512.0)}, v{T2}",
        f"v_mul_f32 v{JF}, {f32hex(1/2048)}, v{JF}",
        f"v_cvt_f32_u32 v{XA0}, v{G_}", f"v_add_f32 v{XA0}, v{XA0}, v{XA0}", f"v_add_f32 v{XA1}, 1.0, v{XA0}",
        f"v_mul_f32 v{XA0}, v{XA0}, v{JF}", f"v_mul_f32 v{XA1}, v{XA1}, v{JF}",
        f"v_lshlrev_b32 v{Q}, 3, v{LO}", "s_mov_b32 s50, 0x4631914C", f"v_lshrrev_b32 v{Q}, v{Q}, s50",
        f"v_mov_b32 v{AV}, 0.5", f"v_cmp_gt_u32 vcc, 16, v{IDX}", f"v_cndmask_b32 v{AV}, 0, v{AV}, vcc")
    for jj2 in range(4):
        for e in range(2):
            jj = 2*jj2+e
            xa = XA1 if jj >> 2 else XA0
            a.e(f"v_bfe_u32 v{E0+e}, v{Q}, {2*(jj&3)}, 2", f"v_cvt_f32_u32 v{E0+e}, v{E0+e}",
                f"v_fmamk_f32 v{E0+e}, v{E0+e}, {f32hex(0.25)}, v{xa}", f"v_cos_f32 v{E0+e}, v{E0+e}",
                f"v_mul_f32 v{E0+e}, v{E0+e}, v{AV}")
        a.e(f"v_cvt_pk_bf16_f32 v{GA+jj2}, v{E0}, v{E1}")
    a.e(f"v_bfe_u32 v{HI}, v{N16}, 1, 2", f"v_cvt_f32_u32 v{KEY}, v{HI}", f"v_mul_f32 v{KEY}, {f32hex(1/2048)}, v{KEY}",
        f"v_and_b32 v{JF}, 1, v{G4}", f"v_cvt_f32_u32 v{JF}, v{JF}", f"v_fmamk_f32 v{JF}, v{JF}, {f32hex(1024.0)}, v{T2}",
        f"v_add_f32 v{XA1}, {f32hex(512.0)}, v{JF}", f"v_mul_f32 v{XA0}, v{JF}, v{KEY}", f"v_mul_f32 v{XA1}, v{XA1}, v{KEY}",
        f"v_lshrrev_b32 v{CS}, 1, v{G4}", f"v_lshrrev_b32 v{AV}, 3, v{N16}", f"v_cmp_eq_u32 vcc, v{CS}, v{AV}",
        f"v_mov_b32 v{AV}, {f32hex(2.0**-21)}", f"v_cndmask_b32 v{AV}, 0, v{AV}, vcc",
        f"v_and_b32 v{PO}, 1, v{N16}")
    for part, Hd in ((0, HRE), (1, HIM)):
        w0, w1 = (0x1C, 0xBC) if part == 0 else (0x61, 0x6B)
        a.e(f"v_mov_b32 v{Q}, {w0}", f"v_mov_b32 v{PAR}, {w1}", f"v_cmp_eq_u32 vcc, 1, v{PO}", f"v_cndmask_b32 v{Q}, v{Q}, v{PAR}, vcc")
        for jj2 in range(4):
            for e in range(2):
                jj = 2*jj2+e
                xa = XA1 if jj >> 2 else XA0
                a.e(f"v_bfe_u32 v{E0+e}, v{Q}, {2*(jj&3)}, 2", f"v_cvt_f32_u32 v{E0+e}, v{E0+e}",
                    f"v_fmamk_f32 v{E0+e}, v{E0+e}, {f32hex(0.25)}, v{xa}", f"v_cos_f32 v{E0+e}, v{E0+e}",
                    f"v_mul_f32 v{E0+e}, v{E0+e}, v{AV}")
            a.e(f"v_cvt_pk_bf16_f32 v{Hd+jj2}, v{E0}, v{E1}")
    a.e(f"s_branch {Ldone}")
    a.label(Lspec)
    a.e(f"v_and_b32 v{PO}, 1, v{LO}", f"v_lshrrev_b32 v{PAR}, 1, v{LO}")
    a.e(f"v_lshlrev_b32 v{JF}, 2, v{HI}", "s_mov_b32 s50, 0x3120", f"v_lshrrev_b32 v{JF}, v{JF}, s50", f"v_and_b32 v{JF}, 15, v{JF}",
        f"v_lshlrev_b32 v{JF}, 8, v{JF}", f"v_lshlrev_b32 v{T2}, 10, v{PO}",
        f"v_cmp_eq_u32 vcc, 0, v{HI}", f"v_cndmask_b32 v{JF}, v{JF}, v{T2}, vcc", f"v_mov_b32 v{T2}, 0",
        f"v_cndmask_b32 v{Q}, v{PO}, v{T2}, vcc",
        f"v_cvt_f32_u32 v{JF}, v{JF}", f"v_mul_f32 v{JF}, {f32hex(1/2048)}, v{JF}",
        f"v_cvt_f32_u32 v{Q}, v{Q}", f"v_mul_f32 v{Q}, {f32hex(0.25)}, v{Q}",
        f"v_cvt_f32_u32 v{XA0}, v{G_}", f"v_add_f32 v{XA0}, v{XA0}, v{XA0}", f"v_add_f32 v{XA1}, 1.0, v{XA0}",
        f"v_fma_f32 v{XA0}, v{XA0}, v{JF}, v{Q}", f"v_fma_f32 v{XA1}, v{XA1}, v{JF}, v{Q}",
        f"v_cos_f32 v{XA0}, v{XA0}", f"v_cos_f32 v{XA1}, v{XA1}",
        f"v_lshrrev_b32 v{KEY}, 1, v{HI}", f"v_lshl_add_u32 v{KEY}, v{KEY}, 1, v{PAR}",
        f"v_lshrrev_b32 v{T2}, 4, v{IDX}", f"v_lshl_add_u32 v{KEY}, v{T2}, 2, v{KEY}", f"v_mov_b32 v{T2}, 0")
    for jj2 in range(4):
        for e in range(2):
            jj = 2*jj2+e
            xa = XA1 if jj >> 2 else XA0
            a.e(f"v_cmp_eq_u32 vcc, {jj&3}, v{KEY}", f"v_cndmask_b32 v{E0+e}, v{T2}, v{xa}, vcc")
        a.e(f"v_cvt_pk_bf16_f32 v{GA+jj2}, v{E0}, v{E1}")
    SAF, GS = JF, PAR
    a.e(f"v_bfe_u32 v{HI}, v{N16}, 1, 2", f"v_cvt_f32_u32 v{SAF}, v{HI}", f"v_mul_f32 v{SAF}, {f32hex(1/2048)}, v{SAF}",
        f"v_and_b32 v{GS}, 1, v{G4}", f"v_and_b32 v{PO}, 1, v{N16}",
        f"v_lshrrev_b32 v{CS}, 1, v{G4}", f"v_lshrrev_b32 v{T2}, 3, v{N16}",
        f"v_cmp_eq_u32 s[44:45], v{CS}, v{T2}", f"v_cmp_eq_u32 s[46:47], v{GS}, v{PO}", "s_and_b64 s[44:45], s[44:45], s[46:47]",
        f"v_cmp_eq_u32 s[46:47], 0, v{GS}")
    for part, Hd in ((0, HRE), (1, HIM)):
        for jj in range(8):
            sl, par, pi = jj >> 2, (jj >> 1) & 1, jj & 1
            e = E0 + (jj & 1)
            if par != part:
                a.e(f"v_mov_b32 v{e}, 0")
            else:
                if sl == 0:
                    j0, q0, a0 = 1024.0*pi, 0.5*pi, 2.0**-21
                    j1, q1, a1 = 256.0, 0.75*pi, 2.0**-20
                else:
                    j0, q0, a0 = 512.0, 0.75*pi, 2.0**-20
                    j1, q1, a1 = 768.0, 0.75*pi, 2.0**-20
                def sel(dst, x0, x1):
                    a.e(f"v_mov_b32 v{dst}, {f32hex(x1)}", f"v_mov_b32 v{AV}, {f32hex(x0)}", f"v_cndmask_b32 v{dst}, v{dst}, v{AV}, s[46:47]")
                sel(XA0, j0, j1); sel(XA1, q0 + 0.5*part, q1 + 0.5*part)
                a.e(f"v_fma_f32 v{XA0}, v{XA0}, v{SAF}, v{XA1}", f"v_cos_f32 v{XA0}, v{XA0}")
                sel(XA1, a0, a1)
                a.e(f"v_mul_f32 v{XA0}, v{XA0}, v{XA1}", f"v_mov_b32 v{XA1}, 0", f"v_cndmask_b32 v{e}, v{XA1}, v{XA0}, s[44:45]")
            if jj & 1: a.e(f"v_cvt_pk_bf16_f32 v{Hd+(jj>>1)}, v{E0}, v{E1}")
    a.label(Ldone)
    a.e("s_nop 1")


BT_S0, BT_S1, BT_S2, BT_S3 = 52, 56, 60, 64
BT_SOFF = ["0", "s68", "s69", "s70", "s71", "s76", "s77", "s78"]
BT_ROW, BT_CH, BT_MASK = 48, 49, 50
def bt_setup(a):
    a.e(f"s_lshl_b32 s{BT_ROW}, s{sSUBT}, 7", "s_lshl_b32 s51, s3, 5", f"s_add_u32 s{BT_ROW}, s{BT_ROW}, s51", f"s_lshl_b32 s{BT_CH}, s{sCBKT}, 6")
    for i in range(1, 8): a.e(f"s_mov_b32 {BT_SOFF[i]}, {4096*i}")
    a.e(f"s_mov_b32 s{BT_MASK}, 0xffff0000")

def scratch_addr(a, vdst, vcg, vrg):
    a.e(f"s_lshl_b32 s51, s{sSUBT}, 7", "s_lshr_b32 s92, s3, 1", "s_add_u32 s51, s51, s92", "s_lshl_b32 s51, s51, 12",
        f"s_lshl_b32 s92, s{sCBKT}, 7", "s_add_u32 s51, s51, s92", "s_and_b32 s92, s3, 1", "s_lshl_b32 s92, s92, 6", "s_add_u32 s51, s51, s92",
        "s_add_u32 s51, s51, 2048",
        f"v_lshlrev_b32 v{vdst}, 15, v{vcg}", f"v_lshl_add_u32 v{vdst}, v{vrg}, 4, v{vdst}", f"v_add_u32 v{vdst}, s51, v{vdst}")
SCR_SOFF = ["0", "s69", "s71", "s77"]

def emit_B1(a, shadow=None, hook=None, post_mode=None, after_stores=None, nafter=0):
    SK, SV, SSH, SKVT = BT_S0, BT_S1, BT_S2, BT_S3
    srd(a, SK, P_K, P_K+1, 4*MB); srd(a, SV, P_V, P_V+1, 4*MB); srd(a, SSH, P_SHK, P_SHK+1, 8192); srd(a, SKVT, P_OUT, P_OUT+1, 8*MB)
    bt_setup(a)
    soff = BT_SOFF; M = BT_MASK
    CG, RG, S0, CH0, VOFF, VH, VST, VSH = 2, 3, 4, 5, 6, 7, 8, 9
    a.e(f"v_and_b32 v{CG}, 15, v1", f"v_lshrrev_b32 v{RG}, 4, v1",
        f"v_lshl_add_u32 v{S0}, v{RG}, 3, s{BT_ROW}", f"v_lshl_add_u32 v{CH0}, v{CG}, 2, s{BT_CH}",
        f"v_lshlrev_b32 v{VOFF}, 11, v{S0}", f"v_lshl_add_u32 v{VOFF}, v{CH0}, 1, v{VOFF}",
        f"v_subrev_u32 v{VH}, 6144, v{VOFF}",
        f"v_lshlrev_b32 v{VSH}, 3, v{CH0}")
    scratch_addr(a, VST, CG, RG)
    KR, VR, SHR, KF, SHF, KV, TM, PK = 16, 38, 54, 64, 108, 124, 156, 16
    if OPT["bactwait"] and OPT["b1all"]:
        Lw = newlbl("bw")
        a.e(f"s_cmp_eq_u32 s{sACT}, 0", f"s_cbranch_scc1 {Lw}", "s_waitcnt lgkmcnt(0)")
        a.label(Lw)
    if OPT["earlypub"]:
        Lp = newlbl("epub")
        a.e("s_cmp_lg_u32 s3, 0", f"s_cbranch_scc1 {Lp}")
        fin_epoch(a); loc_publish(a)
        a.label(Lp)
    a.e(f"buffer_load_dwordx4 {v(SHR,4)}, v{VSH}, s[{SSH}:{SSH+3}], 0 offen",
        f"buffer_load_dwordx4 {v(SHR+4,4)}, v{VSH}, s[{SSH}:{SSH+3}], 0 offen offset:16")
    for i in range(3):
        a.e(f"buffer_load_dwordx2 {v(KR+2*i,2)}, v{VH}, s[{SK}:{SK+3}], {soff[i>>1]} offen" + (" offset:2048" if i & 1 else "") + (NT() if OPT["ntk"] else ""))
    for i in range(8):
        a.e(f"buffer_load_dwordx2 {v(KR+6+2*i,2)}, v{VOFF}, s[{SK}:{SK+3}], {soff[i>>1]} offen" + (" offset:2048" if i & 1 else "") + (NT() if OPT["ntk"] else ""))
    for i in range(8):
        a.e(f"buffer_load_dwordx2 {v(VR+2*i,2)}, v{VOFF}, s[{SV}:{SV+3}], {soff[i>>1]} offen" + (" offset:2048" if i & 1 else "") + NT())
    stamp(a, 2)
    if OPT["earlypub"]:
        Lq = newlbl("epub2")
        a.e("s_cmp_eq_u32 s3, 0", f"s_cbranch_scc1 {Lq}")
        fin_epoch(a)
        a.label(Lq)
    else:
        fin_epoch(a)
        loc_publish(a)
    if shadow: shadow()
    def wv(n, extra):
        if extra and not OPT["earlypub"]:
            L = newlbl("wv")
            a.e(f"s_cbranch_scc1 {L}", f"s_waitcnt vmcnt({n})")
            a.label(L)
            a.e(f"s_waitcnt vmcnt({n+extra})")
        elif extra == 2 and OPT["earlypub"]:
            L = newlbl("wv")
            a.e(f"s_cbranch_scc1 {L}", f"s_waitcnt vmcnt({n})")
            a.label(L)
            a.e(f"s_waitcnt vmcnt({n+1})")
        else:
            a.e(f"s_waitcnt vmcnt({n})")
    a.e("s_cmp_eq_u32 s3, 0")
    wv(19, 1)
    for ch in range(4):
        for j in range(4):
            src = SHR + 2*ch + (j >> 1)
            if j & 1: a.e(f"v_and_b32 v{SHF+4*j+ch}, s{M}, v{src}")
            else:     a.e(f"v_lshlrev_b32 v{SHF+4*j+ch}, 16, v{src}")
    for i in range(11):
        wv(18-i, 1)
        for hf in range(2):
            a.e(f"v_lshlrev_b32 v{KF+4*i+2*hf}, 16, v{KR+2*i+hf}", f"v_and_b32 v{KF+4*i+2*hf+1}, s{M}, v{KR+2*i+hf}")
    loc_issue(a, 10)
    a.e("s_cmp_eq_u32 s3, 0")
    for i in range(8):
        wv(7-i, 2)
        if i == 7 and hook: hook()
        for hf in range(2):
            a.e(f"v_lshlrev_b32 v{TM+2*hf}, 16, v{VR+2*i+hf}", f"v_and_b32 v{TM+2*hf+1}, s{M}, v{VR+2*i+hf}")
        for hf in range(2):
            acc = KV+4*i+2*hf
            a.e(f"v_pk_mul_f32 {v(acc,2)}, {v(KF+4*(i+3)+2*hf,2)}, {v(SHF+2*hf,2)}")
            for j in range(1, 4):
                a.e(f"v_pk_fma_f32 {v(acc,2)}, {v(KF+4*(i+3-j)+2*hf,2)}, {v(SHF+4*j+2*hf,2)}, {v(acc,2)}")
            a.e(f"v_pk_mul_f32 {v(acc,2)}, {v(acc,2)}, {v(TM+2*hf,2)}")
    stamp(a, 3)
    for ch in range(4):
        for m in range(4):
            a.e(f"v_cvt_pk_bf16_f32 v{PK+4*ch+m}, v{KV+4*(7-2*m)+ch}, v{KV+4*(6-2*m)+ch}")
    sts = [f"buffer_store_dwordx4 {v(PK+4*ch,4)}, v{VST}, s[{SKVT}:{SKVT+3}], {SCR_SOFF[ch]} offen" for ch in range(4)]
    if OPT["twoflag"]:
        for l in sts: a.e(l + (" nt" if OPT["ntscr"] else ""))
        stamp(a, 4)
        a.e(f"s_lshl_b32 s51, s{sCBKT}, 4", f"s_add_u32 s51, s51, s{sSUBT}", f"s_lshl_b32 s51, s51, {FB()}", f"s_add_u32 s92, s51, {SY_B1}")
        La = newlbl("siga")
        a.e("s_waitcnt vmcnt(0)", "s_barrier", "s_cmp_lg_u32 s3, 0", f"s_cbranch_scc1 {La}",
            "v_mov_b32 v14, s92", f"v_mov_b32 v15, s{S_TGT}", "s_mov_b64 exec, 1",
            f"buffer_store_dword v15, v14, s[{S_SYN}:{S_SYN+3}], 0 offen", "s_mov_b64 exec, -1")
        a.label(La)
        if after_stores: after_stores()
        loc_resolve(a, 10, nafter=nafter + 1 if after_stores else 1)
        Lo = newlbl("opt")
        a.e(f"s_cmp_lg_u32 s{sLOC}, 0", f"s_cbranch_scc1 {Lo}", "s_waitcnt vmcnt(0)")
        for l in sts: a.e(l + " sc1")
        a.e(f"s_add_u32 s51, s51, {SY_B1B}")
        signal(a, 51, 14)
        a.label(Lo)
        return
    if OPT["optst"]:
        for l in sts: a.e(l)
        if after_stores: after_stores()
        loc_resolve(a, 10, nafter=nafter)
        Lo = newlbl("opt")
        a.e(f"s_cmp_lg_u32 s{sLOC}, 0", f"s_cbranch_scc1 {Lo}", "s_waitcnt vmcnt(0)")
        for l in sts: a.e(l + " sc1")
        a.e("s_waitcnt vmcnt(0)")
        a.label(Lo)
    else:
        loc_resolve(a, 10)
        dual_store(a, sts)
    stamp(a, 4)
    a.e(f"s_lshl_b32 s51, s{sCBKT}, 4", f"s_add_u32 s51, s51, s{sSUBT}", f"s_lshl_b32 s51, s51, {FB()}", f"s_add_u32 s51, s51, {SY_B1}")
    signal(a, 51, 14, nafter=nafter, bloc=True)

B3_QR, B3_VQ, B3_VT, B3_VO = 208, 224, 225, 226
def emit_B3_pre(a):
    SQ, STT, SOUT = BT_S0, BT_S1, BT_S2
    srd(a, SQ, P_Q, P_Q+1, 4*MB); srd(a, SOUT, P_OUT, P_OUT+1, 8*MB)
    bt_setup(a)
    t = 227
    a.e(f"v_and_b32 v{t}, 15, v1", f"v_lshrrev_b32 v{t+1}, 4, v1",
        f"v_lshl_add_u32 v{t+1}, v{t+1}, 3, s{BT_ROW}", f"v_lshl_add_u32 v{t}, v{t}, 2, s{BT_CH}",
        f"v_lshlrev_b32 v{B3_VQ}, 11, v{t+1}", f"v_lshl_add_u32 v{B3_VQ}, v{t}, 1, v{B3_VQ}",
        f"v_lshlrev_b32 v{B3_VO}, 12, v{t+1}", f"v_lshl_add_u32 v{B3_VO}, v{t}, 1, v{B3_VO}", f"v_add_u32 v{B3_VO}, 2048, v{B3_VO}")
    a.e(f"v_and_b32 v{t}, 15, v1", f"v_lshrrev_b32 v{t+1}, 4, v1")
    scratch_addr(a, B3_VT, t, t+1)
    for i in range(8):
        a.e(f"buffer_load_dwordx2 {v(B3_QR+2*i,2)}, v{B3_VQ}, s[{SQ}:{SQ+3}], {BT_SOFF[i>>1]} offen" + (" offset:2048" if i & 1 else "") + NT())

def emit_B3(a):
    SQ, STT, SOUT = BT_S0, BT_S1, BT_S2
    soff = BT_SOFF; M = BT_MASK
    TR, TF, QF = 16, 48, 80
    a.e(f"s_mov_b32 s{M}, 0xffff0000")
    a.e(f"s_lshl_b32 s51, s{sCBKT}, {4+FB()}", f"s_add_u32 s51, s51, {SY_B2}",
        "v_and_b32 v12, 15, v1", f"v_lshlrev_b32 v12, {FB()}, v12", "v_add_u32 v12, s51, v12")
    a.e("s_waitcnt vmcnt(0)")
    for e in range(8):
        qf = QF + 4*e
        for hf in range(2):
            a.e(f"v_lshlrev_b32 v{qf+2*hf}, 16, v{B3_QR+2*e+hf}", f"v_and_b32 v{qf+2*hf+1}, s{M}, v{B3_QR+2*e+hf}")
    wait_flags(a, 12, 1, 13, 51)
    stamp(a, 10)
    for ch in range(4):
        a.e(f"buffer_load_dwordx4 {v(TR+4*ch,4)}, v{B3_VT}, s[{SOUT}:{SOUT+3}], {SCR_SOFF[ch]} offen" + LDL())
    for ch in range(4):
        a.e(f"s_waitcnt vmcnt({3-ch})")
        for e in range(8):
            src = TR+4*ch+(e >> 1)
            if e & 1: a.e(f"v_and_b32 v{TF+4*e+ch}, s{M}, v{src}")
            else:     a.e(f"v_lshlrev_b32 v{TF+4*e+ch}, 16, v{src}")
    a.e("s_barrier")
    for e in range(8):
        qf = QF + 4*e
        for hf in range(2):
            a.e(f"v_pk_mul_f32 {v(qf+2*hf,2)}, {v(qf+2*hf,2)}, {v(TF+4*e+2*hf,2)}")
        pk = 112+2*e
        for hf in range(2):
            a.e(f"v_cvt_pk_bf16_f32 v{pk+hf}, v{qf+2*hf}, v{qf+2*hf+1}")
        a.e(f"buffer_store_dwordx2 {v(pk,2)}, v{B3_VO}, s[{SOUT}:{SOUT+3}], {soff[e]} offen" + NTO())

def gen_A(a):
    SX, SI1, SWR, SWI, SI2, SOUT = 32, 36, 80, 84, 32, 36
    a.e(f"s_setprio {OPT['prioA']}") if OPT['prioA'] else None
    sT, sSA, sCB, sJ, sJM, sJP, sJQ, sTL = 40, 41, 42, 43, 72, 73, 74, 44
    def rows():
        srd(a, SI1, P_WS, P_WS+1, 4*MB, add=WS_I1)
        srd(a, SWR, P_WR, P_WR+1, WBYTES); srd(a, SWI, P_WI, P_WI+1, WBYTES)
        Lr = newlbl("reg")
        a.e("s_lshl_b32 s47, s3, 9", f"s_add_u32 s{sJ}, s{sT}, s47", f"s_mov_b32 s{sJP}, s{sT}", f"s_sub_u32 s{sJQ}, 512, s{sT}",
            f"s_cmp_lg_u32 s{sT}, 0", f"s_cbranch_scc1 {Lr}",
            f"s_mov_b32 s{sJQ}, 256", "s_lshl_b32 s47, s3, 2", "s_lshr_b32 s46, 0x3120, s47", "s_and_b32 s46, s46, 15", f"s_lshl_b32 s{sJ}, s46, 8")
        a.label(Lr)
        a.e(f"s_sub_u32 s{sJM}, 2048, s{sJ}", f"s_and_b32 s{sJM}, s{sJM}, 2047",
            f"s_mul_i32 s{sJ}, s{sJ}, 1026", f"s_mul_i32 s{sJM}, s{sJM}, 1026")
        a.e(f"s_or_b32 s75, s{sT}, s3")
    def wstage():
        a.e("v_lshlrev_b32 v243, 4, v1", "s_lshl_b32 s46, s3, 12", f"s_add_u32 s46, s46, {LW}")
        w_dma(a, SWR, SWI, sJ, sJM, 46, 243)
        pf_loads(a, SWR, SWI, sJ, sJM, PF, 244)
        Ln = newlbl("now2")
        a.e("s_cmp_lg_u32 s75, 0", f"s_cbranch_scc1 {Ln}")
        a.e(f"s_mov_b32 s47, {1024*1026}", f"s_mov_b32 s46, {LW2}")
        w_dma(a, SWR, SWI, 47, 47, 46, 243)
        pf_loads(a, SWR, SWI, 47, 47, PF2, 244)
        a.label(Ln)
    a.e(f"s_mov_b32 s{sT}, s{sCU}")
    stamp(a, 0, True); stamp(a, 1)
    Lp1 = newlbl("nop1")
    a.e(f"s_cmp_eq_u32 s{sACT}, 0", f"s_cbranch_scc1 {Lp1}_in")
    if OPT["pA1a"] >= 0: a.e(f"s_setprio {OPT['pA1a']}")
    srd(a, SX, P_X, P_X+1, 4*MB)
    a.e(f"s_lshr_b32 s48, s{sT}, 4", f"s_and_b32 s49, s{sT}, 7",
        f"s_lshr_b32 s{sSA}, s48, 2", "s_bfe_u32 s50, s48, 0x10001", "s_lshl_b32 s50, s50, 3", "s_add_u32 s50, s50, s49",
        "s_lshl_b32 s50, s50, 1", "s_and_b32 s51, s48, 1", f"s_add_u32 s{sCB}, s50, s51",
        "s_lshl_b32 s48, s48, 3", f"s_add_u32 s{sTL}, s48, s49")
    fft512_addr(a, sSA, sCB)
    fft512_loads(a, SX, NT() if OPT["ntx"] else "")
    stamp(a, 12)
    rows()
    fft512_addr2(a, sSA, sCB, 2048, 8192)
    fft512_consts(a)
    fft512_compute(a, SI1, False, 0, "sc1", 2, hook=None if OPT["wlate"] else wstage)
    stamp(a, 4)
    a.e(f"s_lshl_b32 s48, s{sTL}, {FA()}", f"s_add_u32 s48, s48, {SY_A1}")
    fin_epoch(a)
    signal(a, 48, F_TMP)
    a.e(f"s_branch {Lp1}")
    a.label(f"{Lp1}_in")
    if OPT["pA1i"] >= 0: a.e(f"s_setprio {OPT['pA1i']}")
    stamp(a, 12)
    if OPT["b1all"]:
        rows()
        fin_epoch(a)
        if not OPT["wlate"]: wstage()
    else:
        emit_B1(a, shadow=rows, hook=None if OPT["wlate"] else wstage)
    a.label(Lp1)
    if OPT["pA1i"] >= 0 or OPT["pA1a"] >= 0: a.e(f"s_setprio {OPT['prioA']}")
    stamp(a, 5)
    if OPT["wlate"] == 2: wstage()
    srd(a, SI2, P_WS, P_WS+1, 4*MB, add=WS_I2)
    a2_consts(a, sT)
    a.e(f"v_lshl_add_u32 v{TMP}, v{G_}, 7, v{IDX}",
        "s_lshl_b32 s48, s3, 12", f"s_add_u32 s48, s48, {LW}",
        f"v_lshl_add_u32 v{VW}, v{TMP}, 1, s48",
        f"v_sub_u32 v{TMP+1}, {1023-32*27}, v{TMP}", f"s_add_u32 s49, s48, 2048", f"v_lshl_add_u32 v{VW+1}, v{TMP+1}, 1, s49")
    a.e(f"v_lshlrev_b32 v{VG}, 12, v{G_}", f"v_lshl_add_u32 v{VG}, v{IDX}, 2, v{VG}",
        "s_lshl_b32 s49, s3, 9",
        f"s_lshl_b32 s52, s{sJP}, 13", "s_add_u32 s52, s52, s49",
        f"s_lshl_b32 s53, s{sJQ}, 13", "s_add_u32 s53, s53, s49")
    a.e(f"v_lshlrev_b32 v{VGW}, 12, v{G_}", f"v_lshl_add_u32 v{VGW}, v{IDX}, 3, v{VGW}", "s_lshl_b32 s50, s3, 10", f"v_add_u32 v{VGW}, s50, v{VGW}",
        f"v_lshlrev_b32 v{VRR}, 9, v{G_}", f"v_lshl_add_u32 v{VRR}, v{IDX}, 2, v{VRR}", "s_lshl_b32 s51, s3, 12", f"v_add_u32 v{VRR}, s51, v{VRR}")
    for t in range(1, 4): a.e(f"v_add_u32 v{VRR+t}, {1024*t}, v{VRR}")
    a.e(f"v_lshrrev_b32 v{TMP}, 4, v1", f"v_and_b32 v{TMP+1}, 1, v{TMP}", f"v_lshlrev_b32 v{VHR}, 13, v{TMP+1}",
        f"v_lshrrev_b32 v{TMP+1}, 1, v{TMP}", f"v_lshl_add_u32 v{VHR}, v{TMP+1}, 7, v{VHR}",
        f"v_and_b32 v{TMP+1}, 15, v1", f"v_lshl_add_u32 v{VHR}, v{TMP+1}, 3, v{VHR}", f"v_add_u32 v{VHR}, s50, v{VHR}")
    a.e(f"v_and_b32 v{TMP+2}, 1, v{TMP+1}", f"v_mov_b32 v{TMP+3}, s52", f"v_mov_b32 v{TMP+4}, s53",
        f"v_cmp_eq_u32 vcc, 1, v{TMP+2}", f"v_cndmask_b32 v{VST}, v{TMP+3}, v{TMP+4}, vcc",
        f"v_bfe_u32 v{TMP+2}, v{TMP+1}, 1, 2", f"v_lshl_add_u32 v{VST}, v{TMP+2}, 11, v{VST}",
        f"v_lshrrev_b32 v{TMP+2}, 3, v{TMP+1}", f"v_lshl_add_u32 v{VST}, v{TMP+2}, 6, v{VST}",
        f"v_lshl_add_u32 v{VST}, v{TMP}, 4, v{VST}")
    a.e(f"v_lshlrev_b32 v{TMP}, {FA()}, v1", f"v_add_u32 v{TMP}, {SY_A1}, v{TMP}")
    stamp(a, 6)
    wait_flags(a, TMP, 2, TMP+1, 48)
    if OPT["yieldB"]: a_state(a, sT, 0, TMP)
    stamp(a, 7)
    for u in range(4):
        for sl in range(2):
            for pq in range(2):
                a.e(f"buffer_load_dword v{GB+4*u+2*sl+pq}, v{VG}, s[{SI1}:{SI1+3}], s{52+pq} offen offset:{2048*sl+128*u} sc1")
    NWL = 0
    if OPT["wlate"] == 1:
        wstage(); NWL = 8
        Lsw = newlbl("spw")
        a.e("s_cmp_lg_u32 s75, 0", f"s_cbranch_scc1 {Lsw}", "s_waitcnt vmcnt(0)")
        a.label(Lsw)
    for rnd in range(2):
        a.e(f"s_waitcnt vmcnt({8-8*rnd+NWL})")
        for uu in range(2):
            u = 2*rnd+uu
            a.e(f"v_mfma_f32_32x32x16_bf16 {v(ARE if uu == 0 else AIM,16)}, {v(GA,4)}, {v(GB+4*u,4)}, 0")
        for uu in range(2):
            u = 2*rnd+uu
            D = ARE if uu == 0 else AIM
            t = TMP+4*uu
            for h in range(2):
                a.e(f"v_cvt_pk_bf16_f32 v{t}, v{D+4*h}, v{D+4*h+1}", f"v_cvt_pk_bf16_f32 v{t+1}, v{D+4*h+2}, v{D+4*h+3}",
                    f"ds_write_b64 v{VGW}, {v(t,2)} offset:{256*u+8192*h}")
                t += 2
    a.e("s_waitcnt lgkmcnt(0)", "s_barrier")
    stamp(a, 8)
    if OPT["qA"] and not OPT["a3all"]:
        Lq = newlbl("noqA")
        a.e(f"s_cmp_lg_u32 s{sACT}, 0", f"s_cbranch_scc1 {Lq}")
        emit_B3_pre(a)
        a.label(Lq)
    for t in range(4):
        a.e(f"ds_read2_b32 {v(DF+4*t,2)}, v{VRR+t} offset0:0 offset1:32", f"ds_read2_b32 {v(DF+4*t+2,2)}, v{VRR+t} offset0:64 offset1:96")
    a.e("s_waitcnt lgkmcnt(0)")
    if OPT["wlate"] == 1:
        def wmid():
            if OPT["qA"] and not OPT["a3all"]:
                L1, L2 = newlbl("wa"), newlbl("wb")
                a.e(f"s_cmp_lg_u32 s{sACT}, 0", f"s_cbranch_scc1 {L1}", "s_waitcnt vmcnt(8)", f"s_branch {L2}")
                a.label(L1); a.e("s_waitcnt vmcnt(0)"); a.label(L2)
            else:
                a.e("s_waitcnt vmcnt(0)")
            w_lds_reads(a, VW, VW+1, WR, WI)
        fft1024(a, mid=wmid)
    else:
        w_lds_reads(a, VW, VW+1, WR, WI)
        fft1024(a)
    a.e("s_waitcnt lgkmcnt(0)")
    fix_w(a, WR, WI, PF)
    Lsp, Linv = newlbl("special"), newlbl("inv")
    a.e("s_cmp_eq_u32 s75, 0", f"s_cbranch_scc1 {Lsp}")
    for p in range(8):
        xr, xi, wr, wi = ARE+2*p, AIM+2*p, WR+2*p, WI+2*p
        t0 = TMP+4*(p & 1); t1 = t0+2
        n0 = " neg_lo:[1,0,0] neg_hi:[1,0,0]" if p < 4 else ""
        n1 = "" if p < 4 else " neg_lo:[1,0,0] neg_hi:[1,0,0]"
        a.e(f"v_pk_mul_f32 {v(t0,2)}, {v(xr,2)}, {v(wr,2)}", f"v_pk_mul_f32 {v(t1,2)}, {v(xi,2)}, {v(wr,2)}",
            f"v_pk_fma_f32 {v(t0,2)}, {v(xi,2)}, {v(wi,2)}, {v(t0,2)}{n0}",
            f"v_pk_fma_f32 {v(t1,2)}, {v(xr,2)}, {v(wi,2)}, {v(t1,2)}{n1}")
        for e in range(2):
            a.e(f"v_cvt_pk_bf16_f32 v{DF+2*p+e}, v{t0+e}, -v{t1+e}")
    a.label(Linv)
    a.e("s_nop 1")
    fft1024(a)
    for r in range(16):
        t = TMP + (r & 7)
        a.e(f"v_cvt_pk_bf16_f32 v{t}, v{ARE+r}, v{AIM+r}", f"ds_write_b32 v{VRR}, v{t} offset:{128*eidx(r)}")
    a.e("s_waitcnt lgkmcnt(0)", "s_barrier")
    if OPT["yieldB"]: a_state(a, sT, 1, TMP)
    stamp(a, 9)
    for u in range(4):
        for sl in range(2):
            a.e(f"ds_read_b64 {v(GB+4*u+2*sl,2)}, v{VHR} offset:{4096*sl+256*u}")
    a.e("s_lshl_b32 s49, s3, 9")
    for u in range(4):
        a.e(f"s_waitcnt lgkmcnt({6-2*u})")
        a.e(f"v_mfma_f32_16x16x32_bf16 {v(ARE+4*u,4)}, {v(GB+4*u,4)}, {v(HRE,4)}, 0",
            f"v_mfma_f32_16x16x32_bf16 {v(AIM+4*u,4)}, {v(GB+4*u,4)}, {v(HIM,4)}, 0")
    for u in range(4):
        for r in range(4):
            a.e(f"v_cvt_pk_bf16_f32 v{DF+4*u+r}, v{ARE+4*u+r}, v{AIM+4*u+r}")
        a.e(f"buffer_store_dwordx4 {v(DF+4*u,4)}, v{VST}, s[{SI2}:{SI2+3}], 0 offen offset:{128*u} sc1")
    a.e(f"s_lshl_b32 s48, s{sT}, {FA()}", f"s_add_u32 s48, s48, {SY_A2}")
    signal(a, 48, TMP)
    stamp(a, 10)
    Lb3 = newlbl("b3")
    if OPT["a3all"]:
        srd(a, SOUT, P_OUT, P_OUT+1, 8*MB)
        a.e(f"s_lshr_b32 s48, s{sT}, 3", f"s_and_b32 s49, s{sT}, 7", f"s_lshr_b32 s{sSA}, s48, 3", "s_bfe_u32 s50, s48, 0x10002",
            "s_lshl_b32 s50, s50, 3", "s_add_u32 s50, s50, s49", "s_lshl_b32 s50, s50, 2", "s_and_b32 s51, s48, 3", f"s_add_u32 s{sCB}, s50, s51")
        f8_addr(a, sSA, sCB, 4096, 16384)
        f8_consts(a)
        a.e(f"v_lshlrev_b32 v{F_TMP}, {FA()}, v1", f"v_add_u32 v{F_TMP}, {SY_A2}, v{F_TMP}")
        wait_flags(a, F_TMP, 4, F_TMP+1, 48)
        stamp(a, 11)
        PHASE[0] = 3
        fstamp(a, 11)
        f8_run(a, SI2, SOUT, "sc1", NTO())
    else:
        a.e(f"s_cmp_eq_u32 s{sACT}, 0", f"s_cbranch_scc1 {Lb3}")
        srd(a, SOUT, P_OUT, P_OUT+1, 8*MB)
        fft512_addr(a, sSA, sCB)
        fft512_addr2(a, sSA, sCB, 4096, 16384)
        fft512_consts(a)
        a.e(f"v_lshlrev_b32 v{F_TMP}, {FA()}, v1", f"v_add_u32 v{F_TMP}, {SY_A2}, v{F_TMP}")
        wait_flags(a, F_TMP, 4, F_TMP+1, 48)
        stamp(a, 11)
        PHASE[0] = 3
        fstamp(a, 11)
        fft512_loads(a, SI2, "sc1")
        fstamp(a, 3)
        save = gen.PROF; gen.PROF = False
        fft512_compute(a, SOUT, True, 0, NTO(), 0)
        gen.PROF = save
    a.e("s_cmp_lg_u32 s75, 0", "s_cbranch_scc1 L_fin")
    Lb1, Lb2 = newlbl("bchk"), newlbl("bchkd")
    a.e("v_lshlrev_b32 v2, 6, v1", f"v_add_u32 v2, {SY_ID}, v2", f"s_lshl_b32 s49, s{S_TGT}, 4", "s_mov_b32 s48, 0")
    a.label(Lb1)
    NS = NMEM()*8//64
    for i in range(NS):
        a.e(f"s_mov_b32 s50, {4096*i}", f"buffer_load_dword v{4+i}, v2, s[{S_SYN}:{S_SYN+3}], s50 offen sc1")
    a.e("s_add_u32 s48, s48, 1", "s_waitcnt vmcnt(0)")
    for i in range(NS): a.e(f"v_xor_b32 v{4+i}, s49, v{4+i}")
    for i in range(1, NS): a.e(f"v_or_b32 v4, v4, v{4+i}")
    a.e("v_lshrrev_b32 v4, 4, v4", "v_cmp_ne_u32 vcc, 0, v4", f"s_cbranch_vccz {Lb2}", f"s_cmp_lt_u32 s48, {SPIN_LIMIT}", f"s_cbranch_scc1 {Lb1}")
    a.label(Lb2)
    a.e(f"s_mov_b32 s48, {SY_E}")
    bump(a, 48, 2)
    a.e("s_branch L_fin")
    if not OPT["a3all"]:
        a.label(Lb3)
        if not OPT["qA"]: emit_B3_pre(a)
        emit_B3(a)
        a.e("s_branch L_fin")
    a.label(Lsp)
    a.e(f"v_lshl_add_u32 v{TMP}, v{G_}, 7, v{IDX}", f"v_sub_u32 v{TMP+1}, {1023-32*27}, v{TMP}",
        f"s_mov_b32 s48, {LW2}", f"v_lshl_add_u32 v{TMP+2}, v{TMP}, 1, s48", f"s_mov_b32 s49, {LW2+2048}", f"v_lshl_add_u32 v{TMP+3}, v{TMP+1}, 1, s49")
    w_lds_reads(a, TMP+2, TMP+3, W2R, W2I)
    a.e("s_waitcnt lgkmcnt(0)")
    fix_w(a, W2R, W2I, PF2)
    VS = SP; K0 = SP+1
    a.e(f"v_lshlrev_b32 v{VS}, 9, v{G_}", f"v_lshl_add_u32 v{VS}, v{IDX}, 2, v{VS}")
    for r in range(16):
        a.e(f"ds_write_b32 v{VS}, v{ARE+r} offset:{LSC+128*eidx(r)}", f"ds_write_b32 v{VS}, v{AIM+r} offset:{LSC+4096+128*eidx(r)}")
    a.e(f"v_lshl_add_u32 v{K0}, v{G_}, 7, v{IDX}", f"v_sub_u32 v{K0}, 1024, v{K0}", "s_waitcnt lgkmcnt(0)")
    for r in range(16):
        ad, rr, ri, ur, ui, vr, vi, o0, o1 = [SP+2+i for i in range(9)]
        a.e(f"v_subrev_u32 v{ad}, {32*eidx(r)}, v{K0}", f"v_and_b32 v{ad}, 1023, v{ad}", f"v_lshlrev_b32 v{ad}, 2, v{ad}",
            f"ds_read_b32 v{rr}, v{ad} offset:{LSC}", f"ds_read_b32 v{ri}, v{ad} offset:{LSC+4096}", "s_waitcnt lgkmcnt(0)")
        pr, pi_ = ARE+r, AIM+r
        a.e(f"v_add_f32 v{ur}, v{pr}, v{rr}", f"v_sub_f32 v{ui}, v{pi_}, v{ri}",
            f"v_sub_f32 v{vr}, v{pr}, v{rr}", f"v_add_f32 v{vi}, v{pi_}, v{ri}")
        sg = "-" if r < 8 else ""; ns = "" if r < 8 else "-"
        ar, ai, br, bi = WR+r, WI+r, W2R+r, W2I+r
        a.e(f"v_mul_f32 v{o0}, v{ur}, v{ar}", f"v_fma_f32 v{o0}, {sg}v{ui}, v{ai}, v{o0}",
            f"v_fma_f32 v{o0}, v{vr}, v{br}, v{o0}", f"v_fma_f32 v{o0}, {sg}v{vi}, v{bi}, v{o0}",
            f"v_mul_f32 v{o1}, v{ui}, v{ar}", f"v_fma_f32 v{o1}, {ns}v{ur}, v{ai}, v{o1}",
            f"v_fma_f32 v{o1}, v{vi}, v{br}, v{o1}", f"v_fma_f32 v{o1}, {ns}v{vr}, v{bi}, v{o1}",
            f"v_mul_f32 v{o0}, 0.5, v{o0}", f"v_mul_f32 v{o1}, 0.5, v{o1}",
            f"v_cvt_pk_bf16_f32 v{DF+r}, v{o0}, -v{o1}")
    a.e(f"s_branch {Linv}")

def h_dma(a, SH, sLB, sD4K):
    a.e("v_lshlrev_b32 v235, 4, v1")
    a.e(f"s_add_u32 s74, s{sLB}, 32", "s_mov_b32 m0, s74")
    for ch in range(4): a.e(f"buffer_load_dwordx4 v235, s[{SH}:{SH+3}], s{sD4K} offen offset:{1024*ch} lds" + (NT() if OPT["nth"] else ""))
    a.e(f"s_add_u32 s74, s{sLB}, 4192", f"s_add_u32 s75, s{sD4K}, 2", "s_mov_b32 m0, s74")
    for ch in range(4): a.e(f"buffer_load_dwordx4 v235, s[{SH}:{SH+3}], s75 offen offset:{1024*ch} lds" + (NT() if OPT["nth"] else ""))
    a.e("v_mov_b32 v233, 0x7ffffff0", f"v_mov_b32 v234, s{sD4K}", "v_cmp_eq_u32 vcc, 15, v1", "v_cndmask_b32 v233, v233, v234, vcc",
        f"buffer_load_short_d16_hi v230, v233, s[{SH}:{SH+3}], 0 offen")

def gen_B(a):
    SH, STT, SKVT = 80, 84, 32
    a.e(f"s_setprio {OPT['prioB']}") if OPT['prioB'] else None
    srd(a, SH, P_SSMK, P_SSMK+1, 4*MB); srd(a, STT, P_OUT, P_OUT+1, 8*MB)
    sCBK, sSUB, sD, sD4K, sLB, sDV, sF1, sF2, sMASK = 40, 41, 42, 43, 44, 45, 46, 47, 72
    a.e(f"s_and_b32 s{sCBK}, s2, 15",
        f"s_lshr_b32 s{sSUB}, s2, 4",
        f"s_lshl_b32 s{sD}, s{sCBK}, 4", f"s_add_u32 s{sD}, s{sD}, s{sSUB}", f"s_lshl_b32 s{sD}, s{sD}, 2", f"s_add_u32 s{sD}, s{sD}, s3",
        f"s_lshl_b32 s{sD4K}, s{sD}, 12", f"s_mul_i32 s{sLB}, s3, {LB_STRIDE}", f"s_mov_b32 s{sMASK}, 0xffff0000")
    sSB = 36
    a.e(f"s_and_b32 s73, s{sD}, 63", "s_lshl_b32 s73, s73, 13", f"s_lshl_b32 s74, s{sCBK}, 7", "s_add_u32 s73, s73, s74", f"s_add_u32 s{sSB}, s73, 2048")
    for i in range(1, 4): a.e(f"s_add_u32 s{sSB+i}, s{sSB}, {i*2*MB}")
    a.e(f"s_lshl_b32 s73, s{sCBK}, {4+FB()}", f"s_add_u32 s{sF1}, s73, {SY_B1}", f"s_lshl_b32 s74, s{sSUB}, {FB()}", "s_add_u32 s73, s73, s74", f"s_add_u32 s{sF2}, s73, {SY_B2}")
    a.e(f"s_and_b32 s73, s{sD}, 0xfffffffe", "s_lshl_b32 s73, s73, 1", f"s_load_dword s{sDV}, s[{P_SSMD}:{P_SSMD+1}], s73")
    stamp(a, 0, True); stamp(a, 1)
    Lidle, Lsetup = newlbl("bidle"), newlbl("bsetup")
    if OPT["pB1"]: a.e(f"s_setprio {OPT['pB1']}")
    if OPT["b1all"]:
        a.e(f"s_mov_b32 s{sCBKT}, s{sCBK}", f"s_mov_b32 s{sSUBT}, s{sSUB}")
        if OPT["hearly"] and not OPT["hlate"]:
            emit_B1(a, after_stores=lambda: h_dma(a, SH, sLB, sD4K), nafter=9)
        else:
            emit_B1(a)
            if not OPT["hlate"]: h_dma(a, SH, sLB, sD4K)
    else:
        a.e(f"s_cmp_lg_u32 s{sACT}, 0", f"s_cbranch_scc1 {Lidle}")
        if OPT["hearly"] and not OPT["hlate"]:
            emit_B1(a, after_stores=lambda: h_dma(a, SH, sLB, sD4K), nafter=9)
        else:
            emit_B1(a)
            if not OPT["hlate"]: h_dma(a, SH, sLB, sD4K)
        a.e(f"s_branch {Lsetup}")
        a.label(Lidle)
        if OPT["tlb"] or OPT["cpf"]: warm(a)
        fin_epoch(a)
        loc_publish(a)
        loc_issue(a, 10)
        loc_resolve(a, 10, barrier=False)
        if not OPT["hlate"]:
            for _ in range(OPT["hactdelay"]):
                a.e("v_and_b32 v12, 15, v1", f"v_lshlrev_b32 v12, {FB()}, v12", f"v_add_u32 v12, s{sF1}, v12",
                    f"buffer_load_dword v13, v12, s[{S_SYN}:{S_SYN+3}], 0 offen sc1", "s_waitcnt vmcnt(0)")
            h_dma(a, SH, sLB, sD4K)
    a.label(Lsetup)
    if OPT["pB1"]: a.e(f"s_setprio {OPT['prioB']}")
    stamp(a, 12)
    LN16, B_, G4, VA, VB, VE, VS2, T = 2, 3, 4, 5, 9, 10, 11, 12
    a.e(f"v_lshlrev_b32 v{T}, 2, v1",
        f"v_add_u32 v{T+1}, {4160-32}, v{T}", "v_cmp_le_u32 vcc, 8, v1", f"v_cndmask_b32 v{T+3}, v{T}, v{T+1}, vcc",
        f"v_add_u32 v{T+1}, 8288, v{T}", "v_cmp_le_u32 vcc, 16, v1", f"v_cndmask_b32 v{T+3}, v{T+3}, v{T+1}, vcc",
        f"v_add_u32 v231, s{sLB}, v{T+3}")
    a.e(f"v_lshlrev_b32 v{T}, 3, v1", f"v_add_u32 v{T}, s{sLB}, v{T}", "v_mov_b32 v16, 0", "v_mov_b32 v17, 0", f"ds_write_b64 v{T}, v[16:17] offset:8288")
    a.e(f"v_and_b32 v{B_}, 15, v1", f"v_lshrrev_b32 v{G4}, 4, v1")
    a.e(f"v_and_b32 v{VA}, 1, v{B_}", f"v_xor_b32 v{VA}, 1, v{VA}", f"v_mul_u32_u24 v{VA}, 4160, v{VA}",
        f"v_add_u32 v{VA+1}, 1, v{B_}", f"v_lshrrev_b32 v{VA+1}, 1, v{VA+1}", f"v_lshl_add_u32 v{VA}, v{VA+1}, 2, v{VA}",
        f"v_lshlrev_b32 v{VA+1}, 4, v{G4}", f"v_sub_u32 v{VA}, v{VA}, v{VA+1}",
        f"s_add_u32 s73, s{sLB}, 16", f"v_add_u32 v{VA}, s73, v{VA}")
    for pp in range(1, 4): a.e(f"v_add_u32 v{VA+pp}, {1024*pp}, v{VA}")
    a.e(f"v_lshlrev_b32 v{VB}, 5, v{B_}", f"v_lshl_add_u32 v{VB}, v{G4}, 4, v{VB}",
        f"s_add_u32 s73, s{sLB}, {8800-480}", f"v_add_u32 v{VB}, s73, v{VB}")
    a.e(f"v_lshrrev_b32 v18, 1, v{G4}", f"v_lshlrev_b32 v19, 4, v18", f"v_lshl_add_u32 v19, v{B_}, 5, v19",
        f"v_and_b32 v18, 1, v{G4}", "v_xor_b32 v18, 1, v18", f"v_lshl_add_u32 v19, v18, 3, v19",
        f"s_add_u32 s73, s{sLB}, 8800", f"v_add_u32 v232, s73, v19")
    a.e(f"v_lshrrev_b32 v18, 3, v{B_}", f"v_lshlrev_b32 v{VS2}, 19, v18", f"v_bfe_u32 v18, v{B_}, 2, 1", f"v_lshl_add_u32 v{VS2}, v18, 12, v{VS2}",
        f"v_and_b32 v18, 1, v{G4}", f"v_lshl_add_u32 v{VS2}, v18, 20, v{VS2}", f"v_and_b32 v18, 3, v{B_}", f"v_lshl_add_u32 v{VS2}, v18, 5, v{VS2}",
        f"v_lshrrev_b32 v18, 1, v{G4}", f"v_lshl_add_u32 v{VS2}, v18, 4, v{VS2}")
    a.e(f"v_lshlrev_b32 v{LN16}, 19, v{G4}", "v_bfe_u32 v18, v1, 3, 1", f"v_lshl_add_u32 v{LN16}, v18, 12, v{LN16}",
        "v_and_b32 v18, 7, v1", f"v_lshl_add_u32 v{LN16}, v18, 4, v{LN16}")
    a.e("v_lshlrev_b32 v18, 4, v1", f"s_add_u32 s73, s{sLB}, 8800", "v_add_u32 v19, s73, v18")
    a.e("s_waitcnt lgkmcnt(0)",
        f"s_and_b32 s73, s{sD}, 1", f"s_lshl_b32 s74, s{sDV}, 16", f"s_and_b32 s75, s{sDV}, 0xffff0000",
        "s_cmp_eq_u32 s73, 1", f"s_cselect_b32 s{sDV}, s75, s74")
    if OPT["twoflag"]:
        a.e(f"s_add_u32 s73, s{sF1}, {SY_B1B-SY_B1}", f"s_cmp_lg_u32 s{sLOC}, 0", f"s_cselect_b32 s{sF1}, s{sF1}, s73")
    a.e(f"v_and_b32 v{T}, 15, v1", f"v_lshlrev_b32 v{T}, {FB()}, v{T}", f"v_add_u32 v{T}, s{sF1}, v{T}")
    stamp(a, 5)
    wait_flags(a, T, 1, T+1, 73)
    loc_read(a, 12)
    stamp(a, 6)
    VE = 232
    ACC = 20
    SETS = [(52, 84), (116, 148)]
    U = SETS[1][1]
    for ch in range(4):
        a.e(f"buffer_load_dwordx4 {v(U+4*ch,4)}, v{LN16}, s[{STT}:{STT+3}], s{sSB+ch} offen" + LDL())
    def reads(rho, st):
        A, B = SETS[st]
        out = []
        for p in range(8):
            o = 8*rho + 128*(p & 1)
            out.append(f"ds_read2_b32 {v(A+4*p,2)}, v{VA+(p>>1)} offset0:{o} offset1:{o+1}")
            out.append(f"ds_read2_b32 {v(A+4*p+2,2)}, v{VA+(p>>1)} offset0:{o+2} offset1:{o+3}")
        outb = [f"ds_read_b128 {v(B+4*q,4)}, v{VB} offset:{512*q+32*(15-rho)}" for q in range(8)]
        return out, outb
    rhos = list(range(1, 16, 2))
    ra, rb = reads(rhos[0], 0)
    if OPT["hlate"]:
        h_dma(a, SH, sLB, sD4K)
        for ch in range(4):
            a.e(f"s_waitcnt vmcnt({3-ch+9})", f"ds_write_b128 v19, {v(U+4*ch,4)} offset:{1024*ch}")
        a.e("s_waitcnt vmcnt(0)", "ds_write_b32 v231, v230", "s_waitcnt lgkmcnt(0)")
        for r in ra: a.e(r)
    else:
        a.e("s_waitcnt vmcnt(4)", "ds_write_b32 v231, v230")
        a.e("s_waitcnt lgkmcnt(0)")
        for r in ra: a.e(r)
        for ch in range(4):
            a.e(f"s_waitcnt vmcnt({3-ch})", f"ds_write_b128 v19, {v(U+4*ch,4)} offset:{1024*ch}")
    a.e("s_waitcnt lgkmcnt(0)")
    for r in rb: a.e(r)
    if OPT["yieldB"]: b_yield(a, 233)
    Lnq = newlbl("noq")
    if OPT["a3all"]:
        a.e(f"s_mov_b32 s{sCBKT}, s{sCBK}", f"s_mov_b32 s{sSUBT}, s{sSUB}")
        emit_B3_pre(a)
    else:
        a.e(f"s_cmp_lg_u32 s{sACT}, 0", f"s_cbranch_scc1 {Lnq}")
        emit_B3_pre(a)
        a.label(Lnq)
    stamp(a, 7)
    for ci, rho in enumerate(rhos):
        st = ci & 1
        A, B = SETS[st]
        if ci+1 < len(rhos):
            ra, rb = reads(rhos[ci+1], st ^ 1); nxt = ra[0:2] + rb + ra[2:]
        else:
            nxt = [f"ds_read_b64 {v(SETS[st^1][0]+2*j,2)}, v{VE} offset:{512*j}" for j in range(8)]
        a.e("s_waitcnt lgkmcnt(0)")
        n = 0
        for p in range(8):
            for q in range(8-p):
                j = p+q
                c = "0" if (ci == 0 and p == 0) else v(ACC+4*j, 4)
                a.e(f"v_mfma_f32_16x16x32_bf16 {v(ACC+4*j,4)}, {v(A+4*p,4)}, {v(B+4*q,4)}, {c}")
                if n < len(nxt): a.e(nxt[n])
                n += 1
    KVR = SETS[0][0]; TMv = 116
    a.e("s_waitcnt lgkmcnt(0)")
    stamp(a, 8)
    sts = []
    for jp in range(4):
        base = TMv + 8*jp
        for hh in range(2):
            j = 2*jp+hh
            w0, w1 = KVR+2*j, KVR+2*j+1
            t = 172
            a.e(f"v_and_b32 v{t}, s{sMASK}, v{w1}", f"v_lshlrev_b32 v{t+1}, 16, v{w1}",
                f"v_and_b32 v{t+2}, s{sMASK}, v{w0}", f"v_lshlrev_b32 v{t+3}, 16, v{w0}")
            for r in range(4):
                a.e(f"v_fma_f32 v{t+r}, v{t+r}, s{sDV}, v{ACC+4*j+r}")
            a.e(f"v_cvt_pk_bf16_f32 v{base+2*hh}, v{t}, v{t+1}", f"v_cvt_pk_bf16_f32 v{base+2*hh+1}, v{t+2}, v{t+3}")
        a.e(f"v_permlane16_swap_b32 v{base}, v{base+2}", f"v_permlane16_swap_b32 v{base+1}, v{base+3}")
        sts.append(f"buffer_store_dwordx4 {v(base,4)}, v{VS2}, s[{STT}:{STT+3}], s{sSB+jp} offen")
    dual_store(a, sts)
    signal(a, sF2, 12, bloc=True)
    stamp(a, 9)
    if not OPT["a3all"]: a.e(f"s_cmp_lg_u32 s{sACT}, 0", "s_cbranch_scc1 L_fin")
    emit_B3(a)
    a.e("s_branch L_fin")

def warm(a):
    if OPT["tlb"]:
        L = newlbl("warm")
        a.e("s_cmp_lg_u32 s3, 3", f"s_cbranch_scc1 {L}")
        pages = [(P_WS, WS_I1), (P_WS, WS_I1+2*MB), (P_WS, WS_I2), (P_WS, WS_I2+2*MB), (P_WS, WS_SYNC+512*1024),
                 (P_OUT, 0), (P_OUT, 2*MB), (P_OUT, 4*MB), (P_OUT, 6*MB),
                 (P_WR, 0), (P_WR, 2*MB), (P_WI, 0), (P_WI, 2*MB), (P_SSMK, 0), (P_SSMK, 2*MB), (P_Q, 0), (P_Q, 2*MB)]
        a.e("v_mov_b32 v240, 0", "v_mov_b32 v241, 0")
        for i, (p, off) in enumerate(pages):
            a.e(f"s_add_u32 s92, s{p}, {off}", f"s_addc_u32 s93, s{p+1}, 0", f"v_writelane_b32 v240, s92, {i}", f"v_writelane_b32 v241, s93, {i}")
        a.e(f"s_mov_b64 exec, {(1 << len(pages)) - 1}", "global_load_dword v242, v[240:241], off", "s_mov_b64 exec, -1")
        a.label(L)
    if OPT["cpf"]:
        L = newlbl("warm")
        a.e("s_cmp_ge_u32 s3, 2", f"s_cbranch_scc1 {L}")
        a.e("s_getpc_b64 s[92:93]")
        a.e("s_lshr_b32 s96, s2, 4", "s_and_b32 s96, s96, 15", "s_lshl_b32 s96, s96, 1", "s_add_u32 s96, s96, s3", "s_min_u32 s96, s96, 25",
            "s_lshl_b32 s96, s96, 10", f"s_sub_u32 s92, s92, {OPT['cpf']}", "s_subb_u32 s93, s93, 0",
            "s_add_u32 s92, s92, s96", "s_addc_u32 s93, s93, 0", "v_lshlrev_b32 v240, 4, v1",
            "global_load_dwordx4 v[236:239], v240, s[92:93]")
        a.label(L)

def gen_kernel():
    a = Asm(); a.name = "p"
    a.e("s_cmp_ge_u32 s2, 512", "s_cbranch_scc1 L_exit")
    if OPT.get("spinT") or OPT.get("span"): a.e("s_memrealtime s[94:95]")
    if gen.PROF: a.e("s_memrealtime s[98:99]", "s_waitcnt lgkmcnt(0)", "v_writelane_b32 v247, s98, 13")
    a.e(f"s_load_dwordx16 s[4:19], s[0:1], 0", f"s_load_dwordx8 s[20:27], s[0:1], 64")
    a.e("v_lshrrev_b32 v1, 6, v0", "v_readfirstlane_b32 s3, v1", "v_and_b32 v1, 63, v0", "s_waitcnt lgkmcnt(0)")
    srd(a, S_SYN, P_WS, P_WS+1, 1*MB, add=WS_SYNC)
    a.e(f"s_mov_b32 s48, {WS_SYNC+SY_E}", f"s_load_dword s{S_TGT}, s[{P_WS}:{P_WS+1}], s48")
    a.e(f"s_mov_b32 s98, {64<<FA()}", f"s_mov_b32 s99, {128<<FA()}", f"s_mov_b32 s100, {192<<FA()}")
    a.e(f"s_and_b32 s{sCU}, s2, 255", f"s_bitcmp0_b32 s2, 3", f"s_cselect_b32 s{sACT}, 1, 0",
        f"s_lshr_b32 s48, s{sCU}, 4", "s_lshl_b32 s48, s48, 3", f"s_and_b32 s49, s{sCU}, 7", "s_add_u32 s48, s48, s49",
        f"s_and_b32 s{sCBKT}, s48, 15", "s_lshr_b32 s48, s48, 4", "s_lshl_b32 s48, s48, 1", "s_lshr_b32 s49, s2, 8", f"s_add_u32 s{sSUBT}, s48, s49")
    a.e("s_cmp_ge_u32 s2, 256", "s_cbranch_scc1 L_A")
    gen_B(a)
    a.label("L_A")
    gen_A(a)
    a.label("L_fin")
    if gen.PROF:
        a.e("s_waitcnt vmcnt(0)")
        stamp(a, 14); stamp(a, 15, True)
        prof_dump(a)
    if OPT.get("span"):
        Ls = newlbl("span")
        a.e("s_cmp_lg_u32 s3, 0", f"s_cbranch_scc1 {Ls}", "s_waitcnt vmcnt(0)", "s_memrealtime s[92:93]",
            f"s_add_u32 s32, s{P_WS}, {gen.WS_PROF}", f"s_addc_u32 s33, s{P_WS+1}, 0", f"s_mov_b32 s34, {MB}", "s_mov_b32 s35, 0x00020000",
            "s_lshl_b32 s36, s2, 3", "s_waitcnt lgkmcnt(0)", "v_mov_b32 v2, s36", "v_mov_b32 v4, s94", "v_mov_b32 v5, s92", "s_mov_b64 exec, 1",
            "buffer_store_dwordx2 v[4:5], v2, s[32:35], 0 offen", "s_waitcnt vmcnt(0)")
        a.label(Ls)
    if OPT.get("spinT"):
        a.label("L_spin")
        a.e("s_memrealtime s[92:93]", "s_waitcnt lgkmcnt(0)", "s_sub_u32 s92, s92, s94", f"s_cmp_lt_u32 s92, {OPT['spinT']}", "s_cbranch_scc1 L_spin")
    a.label("L_exit")
    a.e("s_endpgm")
    return a

def prof_dump(a):
    if OPT.get("dbgwg", -1) >= 0:
        L = newlbl("nodbg")
        a.e(f"s_cmp_lg_u32 s2, {OPT['dbgwg']}", f"s_cbranch_scc1 {L}", "s_cmp_lg_u32 s3, 0", f"s_cbranch_scc1 {L}")
        a.e("v_readlane_b32 s36, v247, 1", "v_readlane_b32 s37, v247, 13", "v_mov_b32 v250, s36", "v_mov_b32 v251, s37",
            "v_cmp_eq_u32 vcc, 0, v1", "v_cndmask_b32 v250, v250, v251, vcc", "v_cmp_eq_u32 vcc, 13, v1", "v_cndmask_b32 v250, v250, v251, vcc",
            "v_cmp_eq_u32 vcc, 15, v1", "v_cndmask_b32 v250, v250, v251, vcc", "v_sub_u32 v250, v247, v250",
            f"s_mov_b32 s32, s{P_DBG}", f"s_mov_b32 s33, s{P_DBG+1}", "s_mov_b32 s34, 256", "s_mov_b32 s35, 0x00020000",
            "v_lshlrev_b32 v251, 2, v1", "s_mov_b64 exec, 0xffff", "buffer_store_dword v250, v251, s[32:35], 0 offen", "s_waitcnt vmcnt(0)", "s_mov_b64 exec, -1")
        a.label(L)
        return

    a.e(f"s_add_u32 s32, s{P_WS}, {gen.WS_PROF}", f"s_addc_u32 s33, s{P_WS+1}, 0", f"s_mov_b32 s34, {MB}", "s_mov_b32 s35, 0x00020000")
    a.e("s_lshl_b32 s36, s2, 2", "s_add_u32 s36, s36, s3", "s_lshl_b32 s36, s36, 6",
        "v_lshlrev_b32 v250, 2, v1", "v_add_u32 v250, s36, v250", "s_mov_b64 exec, 0xffff",
        "buffer_store_dword v247, v250, s[32:35], 0 offen")
    if OPT.get("fine"):
        a.e("v_add_u32 v250, 0x40000, v250", "buffer_store_dword v246, v250, s[32:35], 0 offen")
    a.e("s_waitcnt vmcnt(0)")
PROFREGS = []

def build(path):
    a = gen_kernel()
    name = "concat_heads__spectral_gfnet__ssm_conv_h3__prompt_kernel"
    s = open("concat_heads__spectral_gfnet__ssm_conv_h3__prompt.s.ref").read().split("; Override")[0]
    s += f"; @launch grid=(512,1,1) block=(256,1,1) lds={LDS_BYTES}\n"
    s += '.amdgcn_target "amdgcn-amd-amdhsa--gfx950"\n' + gen.header(name) + a.text() + gen.descriptor(name, 256, 102)
    s = s.replace(" lds nt", " nt lds")
    open(path, "w").write(s)
    return s

if __name__ == "__main__":
    out = sys.argv[1] if len(sys.argv) > 1 else "pers.s"
    gen.PROF = "prof" in sys.argv[2:]
    for x in sys.argv[2:]:
        if "=" in x:
            k, val = x.split("="); OPT[k] = int(val)
    if OPT["wsend"]:
        base = OPT["wsend"]*MB
        WS_I1, WS_KVT, WS_I2, WS_TT, WS_SYNC = base, base+4*MB, base+8*MB, base+12*MB, base+20*MB
    s = build(out)
    print(out, len(s))
```

```python
import sys
from asmgen import *
import gen
from gen import srd, MB, WS_I1, WS_KVT, WS_I2, WS_TT, KA

PHASE = [1]
def fstamp(a, i):
    if OPT.get("fine") != PHASE[0]: return
    a.e('s_memtime s[96:97]', 's_waitcnt lgkmcnt(0)', f'v_writelane_b32 v246, s96, {i}')
def stamp(a, i, real=False):
    if not gen.PROF: return
    a.e('s_memrealtime s[96:97]' if real else 's_memtime s[96:97]', 's_waitcnt lgkmcnt(0)', f'v_writelane_b32 v247, s96, {i}')

WBYTES = 2048*513*2
LB_STRIDE = 12896
LDS_BYTES = 53248
SPIN_LIMIT = 400000
OPT = dict(prioA=0, prioB=0, sleep=0, nt=1, wsend=0, ntout=1, ntw=1, wlate=1, hlate=1, qA=1, fsa=6, fsb=6, shrink=0, loc=1, forceloc=-1, ldloc=1, bdelay=0, earlypub=1, wpos=1, optst=1, locflag=1, hearly=1, twoflag=1, pA1i=-1, pB1=0, ntscr=0, a3all=1, ntk=1, ntv=1, ntx=1, nth=1, hactdelay=0, b1all=1, bactwait=1, pA1a=-1, grp=1, yieldB=0, ylim=40, tlb=0, cpf=0, spec2=1)
def NMEM(): return 32 if OPT['b1all'] else 48
def LDL(): return {0: ' sc1', 1: ' nt', 2: ' sc1 nt'}[OPT['ldloc']]
def FA(): return OPT['fsa']
def FB(): return OPT['fsb']
def NT(): return ' nt' if OPT['nt'] else ''
def NTO(): return {0: '', 1: ' nt', 2: ' sc1', 3: ' sc1 nt'}[OPT['ntout']]

P_X, P_WR, P_WI, P_Q, P_K, P_V, P_SHK, P_SSMK, P_SSMD, P_OUT, P_DBG, P_WS = 4, 6, 8, 10, 12, 14, 16, 18, 20, 22, 24, 26
S_DBG = 28
def eidx(r): return (r & 3) + 8*(r >> 2)

_lbl = [0]
def newlbl(p):
    _lbl[0] += 1
    return f"L_{p}_{_lbl[0]}"

WS_SYNC = 20*MB
S_SYN = 28
S_TGT = 101
SY_E, SY_A1, SY_A2, SY_B1, SY_B2 = 0, 4096, 4096+16384, 4096+32768, 4096+49152
sACT, sCBKT, sSUBT, sCU = 88, 89, 90, 91
sLOC, sXEXP = 79, 0
S_DBG = 12
def signal(a, s_off, vt, nafter=0, bloc=False):
    L = newlbl("sig")
    a.e(f"s_waitcnt vmcnt({nafter})", "s_barrier", "s_cmp_lg_u32 s3, 0", f"s_cbranch_scc1 {L}",
        f"v_mov_b32 v{vt}, s{s_off}", f"v_mov_b32 v{vt+1}, s{S_TGT}", "s_mov_b64 exec, 1")
    st = f"buffer_store_dword v{vt+1}, v{vt}, s[{S_SYN}:{S_SYN+3}], 0 offen"
    if bloc and OPT["locflag"]:
        dual_store(a, [st])
    else:
        a.e(st + " sc1")
    a.e("s_mov_b64 exec, -1")
    a.label(L)

def wait_flags(a, vaddr, nload, vt, s_cnt, pre_barrier=None, solo=False):
    L = newlbl("poll"); Ls = newlbl("pdone"); Lr = newlbl("prest")
    if not solo: a.e("s_cmp_lg_u32 s3, 0", f"s_cbranch_scc1 {Ls}")
    a.e(f"s_mov_b32 s{s_cnt}, 0")
    a.label(L)
    offs = ["0", "s98", "s99", "s100"]
    for i in range(nload):
        a.e(f"buffer_load_dword v{vt+i}, v{vaddr}, s[{S_SYN}:{S_SYN+3}], {offs[i]} offen sc1")
    a.e(f"s_add_u32 s{s_cnt}, s{s_cnt}, 1", "s_waitcnt vmcnt(0)")
    for i in range(nload):
        a.e(f"v_xor_b32 v{vt+i}, s{S_TGT}, v{vt+i}")
    for i in range(1, nload):
        a.e(f"v_or_b32 v{vt}, v{vt}, v{vt+i}")
    if OPT["shrink"]:
        a.e(f"v_cmp_ne_u32 vcc, 0, v{vt}", "s_and_b64 exec, exec, vcc", f"s_cbranch_execz {Lr}")
    else:
        a.e(f"v_cmp_ne_u32 vcc, 0, v{vt}", f"s_cbranch_vccz {Lr}")
    if OPT["sleep"]: a.e(f"s_sleep {OPT['sleep']}")
    a.e(f"s_cmp_lt_u32 s{s_cnt}, {SPIN_LIMIT}", f"s_cbranch_scc1 {L}")
    a.label(Lr)
    if OPT["shrink"]: a.e("s_mov_b64 exec, -1")
    a.label(Ls)
    if pre_barrier: a.e(pre_barrier)
    if not solo: a.e("s_barrier")

SY_ID = 4096 + 65536
SY_B1B = 4096 + 98304
SY_AS = 4096 + 114688
LOCW = 53244
def loc_publish(a):
    L = newlbl("pub")
    a.e("s_getreg_b32 s92, hwreg(HW_REG_XCC_ID)", "s_and_b32 s92, s92, 15", f"s_lshl_b32 s{sXEXP}, s{S_TGT}, 4", f"s_or_b32 s{sXEXP}, s{sXEXP}, s92")
    a.e("s_cmp_lg_u32 s3, 0", f"s_cbranch_scc1 {L}")
    if OPT["b1all"] and OPT["grp"]:
        a.e("s_and_b32 s92, s2, 15", "s_lshl_b32 s92, s92, 4", "s_lshr_b32 s93, s2, 4", "s_add_u32 s92, s92, s93", "s_lshl_b32 s92, s92, 6", f"s_add_u32 s92, s92, {SY_ID}")
    else:
        a.e("s_lshr_b32 s92, s2, 3", f"s_lshr_b32 s93, s{sCU}, 4", "s_add_u32 s93, s93, 32", "s_cmp_ge_u32 s2, 256", "s_cselect_b32 s92, s93, s92",
            "s_and_b32 s93, s2, 7", f"s_mul_i32 s93, s93, {NMEM()}", "s_add_u32 s92, s92, s93", "s_lshl_b32 s92, s92, 6", f"s_add_u32 s92, s92, {SY_ID}")
    a.e(
        "v_mov_b32 v10, s92", f"v_mov_b32 v11, s{sXEXP}", "s_mov_b64 exec, 1",
        f"buffer_store_dword v11, v10, s[{S_SYN}:{S_SYN+3}], 0 offen sc1", "s_mov_b64 exec, -1")
    a.label(L)

def loc_issue(a, vt):
    if OPT["b1all"] and OPT["grp"]:
        a.e(f"v_min_u32 v{vt}, 15, v1", "s_and_b32 s93, s2, 15", "s_lshl_b32 s93, s93, 4")
    else:
        a.e(f"v_min_u32 v{vt}, {NMEM()-1}, v1", "s_and_b32 s93, s2, 7", f"s_mul_i32 s93, s93, {NMEM()}")
    a.e(f"v_add_u32 v{vt}, s93, v{vt}",
        f"v_lshlrev_b32 v{vt}, 6, v{vt}", f"v_add_u32 v{vt}, {SY_ID}, v{vt}")
    L = newlbl("li")
    a.e("s_cmp_lg_u32 s3, 0", f"s_cbranch_scc1 {L}")
    a.e(f"buffer_load_dword v{vt+1}, v{vt}, s[{S_SYN}:{S_SYN+3}], 0 offen sc1")
    a.label(L)

def loc_resolve(a, vt, barrier=True, nafter=0):
    L, Ld, Ls = newlbl("locp"), newlbl("locd"), newlbl("locs")
    a.e("s_cmp_lg_u32 s3, 0", f"s_cbranch_scc1 {Ls}")
    if OPT["forceloc"] >= 0:
        a.e(f"s_waitcnt vmcnt({nafter})", f"s_mov_b32 s93, {OPT['forceloc']}")
    else:
        a.e("s_mov_b32 s92, 0", f"s_waitcnt vmcnt({nafter})")
        a.label(L)
        a.e(f"v_xor_b32 v{vt+2}, s{sXEXP}, v{vt+1}", f"v_lshrrev_b32 v{vt+3}, 4, v{vt+2}", "s_add_u32 s92, s92, 1",
            f"v_cmp_ne_u32 vcc, 0, v{vt+3}", f"s_cbranch_vccz {Ld}",
            f"s_cmp_ge_u32 s92, {SPIN_LIMIT}", f"s_cbranch_scc1 {Ld}",
            f"buffer_load_dword v{vt+1}, v{vt}, s[{S_SYN}:{S_SYN+3}], 0 offen sc1", "s_waitcnt vmcnt(0)", f"s_branch {L}")
        a.label(Ld)
        a.e(f"v_cmp_ne_u32 vcc, 0, v{vt+2}", "s_cmp_eq_u64 vcc, 0", "s_cselect_b32 s93, 1, 0")
    a.e(f"s_mov_b32 s{sLOC}, s93", f"v_mov_b32 v{vt+2}, {LOCW}", f"v_mov_b32 v{vt+3}, s93", f"ds_write_b32 v{vt+2}, v{vt+3}", "s_waitcnt lgkmcnt(0)")
    a.label(Ls)
    if barrier:
        a.e("s_barrier")
        loc_read(a, vt)

def loc_read(a, vt):
    a.e(f"v_mov_b32 v{vt+2}, {LOCW}", f"ds_read_b32 v{vt+3}, v{vt+2}", "s_waitcnt lgkmcnt(0)", f"v_readfirstlane_b32 s{sLOC}, v{vt+3}")

def dual_store(a, lines):
    L1, L2 = newlbl("stg"), newlbl("stl")
    a.e(f"s_cmp_eq_u32 s{sLOC}, 0", f"s_cbranch_scc1 {L1}")
    for l in lines: a.e(l)
    a.e(f"s_branch {L2}")
    a.label(L1)
    for l in lines: a.e(l + " sc1" if "buffer_store" in l else l)
    a.label(L2)

def a_state(a, sT, done, vt):
    L = newlbl("ast")
    a.e("s_cmp_lg_u32 s3, 0", f"s_cbranch_scc1 {L}", f"s_lshl_b32 s92, s{sT}, 6", f"s_add_u32 s92, s92, {SY_AS}",
        f"s_lshl_b32 s93, s{S_TGT}, 1", f"s_or_b32 s93, s93, {done}", f"v_mov_b32 v{vt}, s92", f"v_mov_b32 v{vt+1}, s93", "s_mov_b64 exec, 1",
        f"buffer_store_dword v{vt+1}, v{vt}, s[{S_SYN}:{S_SYN+3}], 0 offen", "s_mov_b64 exec, -1")
    a.label(L)

def b_yield(a, vt):
    L, Ld = newlbl("yl"), newlbl("yd")
    a.e(f"s_lshl_b32 s92, s{sCU}, 6", f"s_add_u32 s92, s92, {SY_AS}", f"v_mov_b32 v{vt}, s92", f"s_lshl_b32 s75, s{S_TGT}, 1", "s_mov_b32 s92, 0")
    if OPT["yieldB"] == 2: a.e("s_or_b32 s75, s75, 1")
    a.label(L)
    a.e(f"buffer_load_dword v{vt+1}, v{vt}, s[{S_SYN}:{S_SYN+3}], 0 offen " + ("sc1" if OPT.get("ysc", 1) else "nt"), "s_add_u32 s92, s92, 1", "s_waitcnt vmcnt(0)",
        f"v_readfirstlane_b32 s93, v{vt+1}", "s_cmp_lg_u32 s93, s75" if OPT["yieldB"] == 1 else "s_cmp_eq_u32 s93, s75", f"s_cbranch_scc1 {Ld}",
        f"s_cmp_lt_u32 s92, {OPT['ylim']}", f"s_cbranch_scc1 {L}")
    a.label(Ld)

def fin_epoch(a):
    a.e("s_waitcnt lgkmcnt(0)", f"s_add_u32 s{S_TGT}, s{S_TGT}, 1")

def bump(a, s_off, vt):
    a.e(f"v_mov_b32 v{vt}, s{s_off}", f"v_mov_b32 v{vt+1}, s{S_TGT}", "s_mov_b64 exec, 1",
        f"buffer_store_dword v{vt+1}, v{vt}, s[{S_SYN}:{S_SYN+3}], 0 offen sc1", "s_mov_b64 exec, -1")

F_M, F_G, F_IN0, F_IN1, F_OUTOFF, F_WR, F_RD0, F_RD1, F_MM = 2, 3, 4, 5, 6, 7, 8, 9, 10
F_T = 11
F_IN, F16RE, F16IM, F_TWC, F_TWS, F_DRE, F_DIM, F_P, F_TMP, F32RE, F32IM = 16, 48, 52, 56, 88, 120, 136, 152, 168, 176, 192
SI_OFF, SO_OFF = 52, 68
SO_LIST = [68, 69, 70, 71, 76, 77, 78, 79]

def fft512_addr(a, s_sa, s_cb):
    a.e(f"v_and_b32 v{F_M}, 15, v1", f"v_lshrrev_b32 v{F_G}, 4, v1")
    a.e(f"v_lshlrev_b32 v{F_IN0}, 20, v{F_G}", f"v_lshl_add_u32 v{F_IN0}, v{F_M}, 2, v{F_IN0}", f"v_add_u32 v{F_IN1}, {4*8192}, v{F_IN0}")
    a.e(f"s_lshl_b32 s48, s{s_sa}, 11", f"s_lshl_b32 s49, s{s_cb}, 6", "s_add_u32 s48, s48, s49",
        "s_lshl_b32 s50, s3, 16", "s_add_u32 s48, s48, s50")
    for aa in range(4):
        for i in range(4):
            a.e(f"s_add_u32 s{SI_OFF+4*aa+i}, s48, {(32*i+aa)*8192}")

def fft512_loads(a, SIN, mod=""):
    for hh in range(2):
        for aa in range(4):
            for i in range(4):
                a.e(f"buffer_load_dword v{F_IN+16*hh+4*aa+i}, v{F_IN0+hh}, s[{SIN}:{SIN+3}], s{SI_OFF+4*aa+i} offen {mod}")

def fft512_addr2(a, s_sa, s_cb, orow, ostr):
    a.e(f"s_mov_b32 s51, {16*ostr}", f"v_mul_lo_u32 v{F_OUTOFF}, v{F_M}, s51", f"v_lshl_add_u32 v{F_OUTOFF}, v{F_G}, 4, v{F_OUTOFF}")
    a.e(f"s_mul_i32 s48, s{s_sa}, {orow}", f"s_lshl_b32 s49, s{s_cb}, 6", "s_add_u32 s48, s48, s49",
        f"s_mul_i32 s50, s3, {4*ostr}", "s_add_u32 s48, s48, s50")
    for b in range(4):
        for h in range(2):
            a.e(f"s_add_u32 s{SO_LIST[2*b+h]}, s48, {(b+256*h)*ostr}")
    a.e(f"v_and_b32 v{F_T}, 7, v{F_M}", "s_lshl_b32 s50, s3, 1", f"v_xor_b32 v{F_T+1}, s50, v{F_T}",
        f"v_lshlrev_b32 v{F_WR}, 4, v{F_T+1}", f"v_lshl_add_u32 v{F_WR}, v{F_M}, 7, v{F_WR}",
        f"v_lshl_add_u32 v{F_WR}, v{F_G}, 13, v{F_WR}")
    a.e(f"v_xor_b32 v{F_T+1}, v{F_G}, v{F_T}", f"v_lshlrev_b32 v{F_RD0}, 4, v{F_T+1}",
        f"v_lshl_add_u32 v{F_RD0}, v{F_M}, 7, v{F_RD0}", "s_lshl_b32 s50, s3, 13",
        f"v_add_u32 v{F_RD0}, s50, v{F_RD0}", f"v_xor_b32 v{F_RD1}, 64, v{F_RD0}")

def fft512_consts(a):
    T, TMP = F_T, F_TMP
    XS, XB = T, T+1
    a.e(f"v_cvt_f32_u32 v{XS}, v{F_M}", f"v_mul_f32 v{XS}, {f32hex(1/32)}, v{XS}",
        f"v_cvt_f32_u32 v{T+2}, v{F_G}", f"v_mul_f32 v{T+2}, 4.0, v{T+2}",
        f"v_mul_f32 v{XB}, v{T+2}, v{XS}")
    a.e(f"v_and_b32 v{F_MM}, 1, v{F_M}", f"v_mul_u32_u24 v{F_MM}, 0x8000, v{F_MM}",
        f"v_lshl_or_b32 v{F_MM}, v{F_MM}, 16, v{F_MM}", "s_mov_b32 s50, 0x80008000")
    for i in range(4):
        x = TMP; cs = TMP+1; sn = TMP+2; x2 = TMP+3; cs2 = TMP+4; sn2 = TMP+5
        a.e(f"v_fmamk_f32 v{x}, v{XS}, {f32hex(float(i))}, v{XB}" if i else f"v_mov_b32 v{x}, v{XB}")
        a.e(f"v_add_f32 v{x2}, v{x}, v{x}")
        a.e(f"v_cos_f32 v{cs}, v{x}", f"v_sin_f32 v{sn}, v{x}", f"v_cos_f32 v{cs2}, v{x2}", f"v_sin_f32 v{sn2}, v{x2}")
        a.e(f"v_cvt_pk_bf16_f32 v{F32RE+i}, v{cs}, v{sn}", f"v_cvt_pk_bf16_f32 v{F32IM+i}, -v{sn}, v{cs}",
            f"v_cvt_pk_bf16_f32 v{F16RE+i}, v{cs2}, v{sn2}", f"v_cvt_pk_bf16_f32 v{F16IM+i}, -v{sn2}, v{cs2}")
    for base in (F32RE, F32IM):
        for i in range(4):
            a.e(f"v_xor_b32 v{base+4+i}, v{F_MM}, v{base+i}")
        for t in range(2):
            for i in range(4):
                src = base+4*t+i
                if i & 1: a.e(f"v_xor_b32 v{base+8+4*t+i}, s50, v{src}")
                else:     a.e(f"v_mov_b32 v{base+8+4*t+i}, v{src}")
    a.e(f"v_cvt_f32_u32 v{TMP}, s3", f"v_mul_f32 v{TMP}, {f32hex(8/512)}, v{TMP}")
    for r in range(4):
        a.e(f"v_add_f32 v{TMP+4+r}, {f32hex(float(r)) if r else 0}, v{T+2}")
    for aa in range(8):
        a.e(f"v_add_f32 v{TMP+1}, {f32hex(aa/512) if aa else 0}, v{TMP}")
        for r in range(4):
            a.e(f"v_mul_f32 v{T+3+(r&1)}, v{TMP+1}, v{TMP+4+r}",
                f"v_cos_f32 v{F_TWC+4*aa+r}, v{T+3+(r&1)}", f"v_sin_f32 v{F_TWS+4*aa+r}, v{T+3+(r&1)}")

def fft512_compute(a, SOUT, neg_im, nafter, stmod, st0, fs=0, hook=None):
    TMP = F_TMP
    stamp(a, st0)
    for hh in range(2):
        fstamp(a, fs+5*hh)
        for aa in range(4):
            a.e(f"s_waitcnt vmcnt({28-16*hh-4*aa+nafter})")
            a.e(f"v_mfma_f32_16x16x32_bf16 {v(F_DRE+4*aa,4)}, {v(F16RE,4)}, {v(F_IN+16*hh+4*aa,4)}, 0",
                f"v_mfma_f32_16x16x32_bf16 {v(F_DIM+4*aa,4)}, {v(F16IM,4)}, {v(F_IN+16*hh+4*aa,4)}, 0")
        if hh == 1:
            stamp(a, st0+1)
            if hook: hook()
        fstamp(a, fs+5*hh+1)
        for aa in range(4):
            for p in range(2):
                re, im = F_DRE+4*aa+2*p, F_DIM+4*aa+2*p
                tc, ts = F_TWC+16*hh+4*aa+2*p, F_TWS+16*hh+4*aa+2*p
                t0, t1 = TMP+4*p, TMP+4*p+2
                a.e(f"v_pk_mul_f32 {v(t0,2)}, {v(re,2)}, {v(tc,2)}",
                    f"v_pk_mul_f32 {v(t1,2)}, {v(im,2)}, {v(tc,2)}",
                    f"v_pk_fma_f32 {v(t0,2)}, {v(im,2)}, {v(ts,2)}, {v(t0,2)}",
                    f"v_pk_fma_f32 {v(t1,2)}, {v(re,2)}, {v(ts,2)}, {v(t1,2)} neg_lo:[1,0,0] neg_hi:[1,0,0]")
                for e in range(2):
                    r = 2*p+e
                    a.e(f"v_cvt_pk_bf16_f32 v{F_P+4*r+aa}, v{t0+e}, v{t1+e}")
        fstamp(a, fs+5*hh+2)
        if hh == 1: a.e(f"v_xor_b32 v{F_WR}, 16, v{F_WR}")
        for r in range(4):
            a.e(f"ds_write_b128 v{F_WR}, {v(F_P+4*r,4)} offset:{r*2048}")
    a.e("s_waitcnt lgkmcnt(0)")
    fstamp(a, fs+8)
    a.e("s_barrier")
    fstamp(a, fs+9)
    for b in range(4):
        a.e(f"ds_read_b128 {v(F_IN+8*b,4)}, v{F_RD0} offset:{b*2048}",
            f"ds_read_b128 {v(F_IN+8*b+4,4)}, v{F_RD1} offset:{b*2048}")
    sg = "-" if neg_im else ""
    def mf(bb):
        D0 = [F_DRE, F_DIM] if bb == 0 else [F_TWC, F_TWC+16]
        for bl in range(2):
            b = 2*bb+bl
            a.e(f"s_waitcnt lgkmcnt({6-2*b})")
            for t in range(2):
                for h in range(2):
                    for (D_, F_) in ((D0[0], F32RE), (D0[1], F32IM)):
                        d = D_+8*bl+4*h
                        c = "0" if t == 0 else v(d, 4)
                        a.e(f"v_mfma_f32_16x16x32_bf16 {v(d,4)}, {v(F_IN+8*b+4*t,4)}, {v(F_+8*h+4*t,4)}, {c}")
    def st(bb):
        D0 = [F_DRE, F_DIM] if bb == 0 else [F_TWC, F_TWC+16]
        PB = F_P if bb == 0 else F_TWS
        out = []
        for bl in range(2):
            b = 2*bb+bl
            for h in range(2):
                idx = 8*bl+4*h
                for r in range(4):
                    out.append(f"v_cvt_pk_bf16_f32 v{PB+idx+r}, v{D0[0]+idx+r}, {sg}v{D0[1]+idx+r}")
                out.append(f"buffer_store_dwordx4 {v(PB+idx,4)}, v{F_OUTOFF}, s[{SOUT}:{SOUT+3}], s{SO_LIST[2*b+h]} offen {stmod}")
        return out
    mf(0)
    n0 = len(a.lines)
    mf(1)
    m1 = a.lines[n0:]; del a.lines[n0:]
    s0 = st(0)
    k = 0
    seen = 0
    for l in m1:
        a.lines.append(l)
        if "v_mfma" in l:
            seen += 1
            if seen > 4:
                for _ in range(2):
                    if k < len(s0): a.e(s0[k]); k += 1
    while k < len(s0): a.e(s0[k]); k += 1
    fstamp(a, fs+10)
    for l in st(1): a.e(l)

def f8_addr(a, s_sa, s_cb, orow, ostr):
    a.e(f"v_and_b32 v{F_M}, 15, v1", f"v_lshrrev_b32 v{F_G}, 4, v1")
    a.e(f"v_and_b32 v{F_T}, 7, v1", f"v_bfe_u32 v{F_T+1}, v1, 3, 1",
        f"v_lshlrev_b32 v{F_IN0}, 20, v{F_G}", f"v_lshl_add_u32 v{F_IN0}, v{F_T+1}, 15, v{F_IN0}",
        f"v_lshl_add_u32 v{F_IN0}, v{F_T}, 2, v{F_IN0}")
    a.e(f"s_lshl_b32 s48, s{s_sa}, 11", f"s_lshl_b32 s49, s{s_cb}, 5", "s_add_u32 s48, s48, s49",
        "s_lshl_b32 s50, s3, 16", "s_add_u32 s48, s48, s50")
    for aa in range(4):
        for i in range(4):
            a.e(f"s_add_u32 s{SI_OFF+4*aa+i}, s48, {(32*i+aa)*8192}")
    a.e(f"v_lshrrev_b32 v{F_T+2}, 1, v{F_G}", f"v_lshl_add_u32 v{F_T+2}, v{F_M}, 4, v{F_T+2}",
        f"s_mov_b32 s51, {ostr}", f"v_mul_lo_u32 v{F_OUTOFF}, v{F_T+2}, s51",
        f"v_and_b32 v{F_T+2}, 1, v{F_G}", f"v_lshl_add_u32 v{F_OUTOFF}, v{F_T+2}, 4, v{F_OUTOFF}")
    a.e(f"s_mul_i32 s48, s{s_sa}, {orow}", f"s_lshl_b32 s49, s{s_cb}, 5", "s_add_u32 s48, s48, s49",
        f"s_mul_i32 s50, s3, {4*ostr}", "s_add_u32 s48, s48, s50")
    for b in range(2):
        for h in range(2):
            a.e(f"s_add_u32 s{SO_LIST[2*b+h]}, s48, {(2*b+256*h)*ostr}")
    a.e("s_lshl_b32 s50, s3, 1", f"v_add_u32 v{F_T+2}, s50, v{F_T+1}", f"v_xor_b32 v{F_T+2}, v{F_T+2}, v{F_T}",
        f"v_lshlrev_b32 v{F_WR}, 4, v{F_T+2}", f"v_lshl_add_u32 v{F_WR}, v{F_T}, 7, v{F_WR}", f"v_lshl_add_u32 v{F_WR}, v{F_G}, 12, v{F_WR}")
    a.e(f"v_xor_b32 v{F_T+2}, v{F_G}, v{F_T}", f"v_lshlrev_b32 v{F_RD0}, 4, v{F_T+2}",
        f"v_lshl_add_u32 v{F_RD0}, v{F_T}, 7, v{F_RD0}", f"v_lshl_add_u32 v{F_RD0}, v{F_T+1}, 10, v{F_RD0}",
        "s_lshl_b32 s50, s3, 12", f"v_add_u32 v{F_RD0}, s50, v{F_RD0}", f"v_xor_b32 v{F_RD1}, 64, v{F_RD0}")

def f8_consts(a):
    T, TMP = F_T, F_TMP
    XS, XB = T, T+1
    a.e(f"v_cvt_f32_u32 v{XS}, v{F_M}", f"v_mul_f32 v{XS}, {f32hex(1/32)}, v{XS}",
        f"v_cvt_f32_u32 v{T+2}, v{F_G}", f"v_mul_f32 v{T+2}, 4.0, v{T+2}",
        f"v_mul_f32 v{XB}, v{T+2}, v{XS}")
    a.e(f"v_and_b32 v{F_MM}, 1, v{F_M}", f"v_mul_u32_u24 v{F_MM}, 0x8000, v{F_MM}",
        f"v_lshl_or_b32 v{F_MM}, v{F_MM}, 16, v{F_MM}", "s_mov_b32 s50, 0x80008000")
    for i in range(4):
        x = TMP; cs = TMP+1; sn = TMP+2; x2 = TMP+3; cs2 = TMP+4; sn2 = TMP+5
        a.e(f"v_fmamk_f32 v{x}, v{XS}, {f32hex(float(i))}, v{XB}" if i else f"v_mov_b32 v{x}, v{XB}")
        a.e(f"v_add_f32 v{x2}, v{x}, v{x}")
        a.e(f"v_cos_f32 v{cs}, v{x}", f"v_sin_f32 v{sn}, v{x}", f"v_cos_f32 v{cs2}, v{x2}", f"v_sin_f32 v{sn2}, v{x2}")
        a.e(f"v_cvt_pk_bf16_f32 v{F32RE+i}, v{cs}, v{sn}", f"v_cvt_pk_bf16_f32 v{F32IM+i}, -v{sn}, v{cs}",
            f"v_cvt_pk_bf16_f32 v{F16RE+i}, v{cs2}, v{sn2}", f"v_cvt_pk_bf16_f32 v{F16IM+i}, -v{sn2}, v{cs2}")
    for base in (F32RE, F32IM):
        for i in range(4):
            a.e(f"v_xor_b32 v{base+4+i}, v{F_MM}, v{base+i}")
        for t in range(2):
            for i in range(4):
                src = base+4*t+i
                if i & 1: a.e(f"v_xor_b32 v{base+8+4*t+i}, s50, v{src}")
                else:     a.e(f"v_mov_b32 v{base+8+4*t+i}, v{src}")
    a.e(f"v_bfe_u32 v{TMP}, v1, 3, 1", "s_lshl_b32 s50, s3, 1", f"v_add_u32 v{TMP}, s50, v{TMP}",
        f"v_cvt_f32_u32 v{TMP}, v{TMP}", f"v_mul_f32 v{TMP}, {f32hex(4/512)}, v{TMP}")
    for r in range(4):
        a.e(f"v_add_f32 v{TMP+4+r}, {f32hex(float(r)) if r else 0}, v{T+2}")
    for aa in range(4):
        a.e(f"v_add_f32 v{TMP+1}, {f32hex(aa/512) if aa else 0}, v{TMP}")
        for r in range(4):
            a.e(f"v_mul_f32 v{T+3+(r&1)}, v{TMP+1}, v{TMP+4+r}",
                f"v_cos_f32 v{F_TWC+4*aa+r}, v{T+3+(r&1)}", f"v_sin_f32 v{F_TWS+4*aa+r}, v{T+3+(r&1)}")

def f8_run(a, SIN, SOUT, ldmod, stmod):
    TMP = F_TMP
    for aa in range(4):
        for i in range(4):
            a.e(f"buffer_load_dword v{F_IN+4*aa+i}, v{F_IN0}, s[{SIN}:{SIN+3}], s{SI_OFF+4*aa+i} offen {ldmod}")
    fstamp(a, 3)
    for aa in range(4):
        a.e(f"s_waitcnt vmcnt({12-4*aa})")
        a.e(f"v_mfma_f32_16x16x32_bf16 {v(F_DRE+4*aa,4)}, {v(F16RE,4)}, {v(F_IN+4*aa,4)}, 0",
            f"v_mfma_f32_16x16x32_bf16 {v(F_DIM+4*aa,4)}, {v(F16IM,4)}, {v(F_IN+4*aa,4)}, 0")
    fstamp(a, 1)
    for aa in range(4):
        for p in range(2):
            re, im = F_DRE+4*aa+2*p, F_DIM+4*aa+2*p
            tc, ts = F_TWC+4*aa+2*p, F_TWS+4*aa+2*p
            t0, t1 = TMP+4*p, TMP+4*p+2
            a.e(f"v_pk_mul_f32 {v(t0,2)}, {v(re,2)}, {v(tc,2)}",
                f"v_pk_mul_f32 {v(t1,2)}, {v(im,2)}, {v(tc,2)}",
                f"v_pk_fma_f32 {v(t0,2)}, {v(im,2)}, {v(ts,2)}, {v(t0,2)}",
                f"v_pk_fma_f32 {v(t1,2)}, {v(re,2)}, {v(ts,2)}, {v(t1,2)} neg_lo:[1,0,0] neg_hi:[1,0,0]")
            for e in range(2):
                r = 2*p+e
                a.e(f"v_cvt_pk_bf16_f32 v{F_P+4*r+aa}, v{t0+e}, v{t1+e}")
    for r in range(4):
        a.e(f"ds_write_b128 v{F_WR}, {v(F_P+4*r,4)} offset:{r*1024}")
    a.e("s_waitcnt lgkmcnt(0)")
    fstamp(a, 8)
    a.e("s_barrier")
    fstamp(a, 9)
    for b in range(2):
        a.e(f"ds_read_b128 {v(F_IN+8*b,4)}, v{F_RD0} offset:{b*2048}",
            f"ds_read_b128 {v(F_IN+8*b+4,4)}, v{F_RD1} offset:{b*2048}")
    for b in range(2):
        a.e(f"s_waitcnt lgkmcnt({2-2*b})")
        for t in range(2):
            for h in range(2):
                for (D_, F_) in ((F_DRE, F32RE), (F_DIM, F32IM)):
                    d = D_+8*b+4*h
                    c = "0" if t == 0 else v(d, 4)
                    a.e(f"v_mfma_f32_16x16x32_bf16 {v(d,4)}, {v(F_IN+8*b+4*t,4)}, {v(F_+8*h+4*t,4)}, {c}")
    fstamp(a, 10)
    for b in range(2):
        for h in range(2):
            idx = 8*b+4*h
            for r in range(4):
                a.e(f"v_cvt_pk_bf16_f32 v{F_P+idx+r}, v{F_DRE+idx+r}, -v{F_DIM+idx+r}")
            a.e(f"buffer_store_dwordx4 {v(F_P+idx,4)}, v{F_OUTOFF}, s[{SOUT}:{SOUT+3}], s{SO_LIST[2*b+h]} offen {stmod}")

IDX, G_, VG, VGW, VRR, VHR, VST, VW = 2, 3, 6, 7, 8, 12, 13, 14
CRE, CIM, TWC, TWS, WR, WI, ARE, AIM, DF, GA, HRE, HIM, GB, TMP = 16, 32, 48, 64, 80, 96, 112, 128, 144, 160, 164, 168, 172, 188
W2R, W2I, SP, PF, PF2 = 204, 220, 236, 248, 252
LW = 32768; LSC = 16384; LW2 = 49152

def w_dma(a, SWR, SWI, s_rowoff, s_mirroff, s_ldsbase, vlane16):
    a.e(f"s_mov_b32 m0, s{s_ldsbase}", f"buffer_load_dwordx4 v{vlane16}, s[{SWR}:{SWR+3}], s{s_rowoff} offen lds" + NT())
    a.e(f"s_add_u32 s93, s{s_ldsbase}, 1024", "s_mov_b32 m0, s93", f"buffer_load_dwordx4 v{vlane16}, s[{SWI}:{SWI+3}], s{s_rowoff} offen lds" + NT())
    a.e(f"s_add_u32 s92, s{s_mirroff}, 2")
    a.e(f"s_add_u32 s93, s{s_ldsbase}, 2048", "s_mov_b32 m0, s93", f"buffer_load_dwordx4 v{vlane16}, s[{SWR}:{SWR+3}], s92 offen lds" + NT())
    a.e(f"s_add_u32 s93, s{s_ldsbase}, 3072", "s_mov_b32 m0, s93", f"buffer_load_dwordx4 v{vlane16}, s[{SWI}:{SWI+3}], s92 offen lds" + NT())

def pf_loads(a, SWR, SWI, s_rowoff, s_mirroff, dst, vt):
    a.e(f"v_mov_b32 v{vt}, s{s_mirroff}", f"v_mov_b32 v{vt+1}, s{s_rowoff}", f"v_add_u32 v{vt+1}, 1024, v{vt+1}")
    a.e(f"buffer_load_short_d16_hi v{dst}, v{vt}, s[{SWR}:{SWR+3}], 0 offen",
        f"buffer_load_short_d16_hi v{dst+1}, v{vt}, s[{SWI}:{SWI+3}], 0 offen",
        f"buffer_load_short_d16_hi v{dst+2}, v{vt+1}, s[{SWR}:{SWR+3}], 0 offen",
        f"buffer_load_short_d16_hi v{dst+3}, v{vt+1}, s[{SWI}:{SWI+3}], 0 offen")

def w_lds_reads(a, vlo, vhi, dr, di):
    for (dst, o) in ((dr, 0), (di, 1024)):
        for r in range(16):
            e = eidx(r)
            if r < 8: a.e(f"ds_read_u16_d16_hi v{dst+r}, v{vlo} offset:{o+64*e}")
            else:     a.e(f"ds_read_u16_d16_hi v{dst+r}, v{vhi} offset:{o+64*(27-e)}")

def fix_w(a, dr, di, pf):
    a.e("v_cmp_eq_u32 vcc, 0, v1")
    for (r, o) in ((0, 0), (8, 2)):
        a.e(f"v_add_f32 v{TMP}, v{dr+r}, v{pf+o}", f"v_mul_f32 v{TMP}, 0.5, v{TMP}",
            f"v_sub_f32 v{TMP+1}, v{di+r}, v{pf+o+1}", f"v_mul_f32 v{TMP+1}, 0.5, v{TMP+1}",
            f"v_cndmask_b32 v{dr+r}, v{dr+r}, v{TMP}, vcc", f"v_cndmask_b32 v{di+r}, v{di+r}, v{TMP+1}, vcc")

def fft1024(a, mid=None):
    for t in range(4):
        c0 = "0" if t == 0 else v(ARE, 16); c1 = "0" if t == 0 else v(AIM, 16)
        a.e(f"v_mfma_f32_32x32x16_bf16 {v(ARE,16)}, {v(DF+4*t,4)}, {v(CRE+4*t,4)}, {c0}",
            f"v_mfma_f32_32x32x16_bf16 {v(AIM,16)}, {v(DF+4*t,4)}, {v(CIM+4*t,4)}, {c1}")
    for p in range(8):
        re, im, tc, ts = ARE+2*p, AIM+2*p, TWC+2*p, TWS+2*p
        t0 = TMP+4*(p & 1); t1 = t0+2
        a.e(f"v_pk_mul_f32 {v(t0,2)}, {v(re,2)}, {v(tc,2)}",
            f"v_pk_mul_f32 {v(t1,2)}, {v(im,2)}, {v(tc,2)}",
            f"v_pk_fma_f32 {v(t0,2)}, {v(im,2)}, {v(ts,2)}, {v(t0,2)}",
            f"v_pk_fma_f32 {v(t1,2)}, {v(re,2)}, {v(ts,2)}, {v(t1,2)} neg_lo:[1,0,0] neg_hi:[1,0,0]")
        for e in range(2):
            a.e(f"v_cvt_pk_bf16_f32 v{DF+2*p+e}, v{t0+e}, v{t1+e}")
    for t in range(4):
        if mid and t == 1: mid()
        c0 = "0" if t == 0 else v(ARE, 16); c1 = "0" if t == 0 else v(AIM, 16)
        a.e(f"v_mfma_f32_32x32x16_bf16 {v(ARE,16)}, {v(CRE+4*t,4)}, {v(DF+4*t,4)}, {c0}",
            f"v_mfma_f32_32x32x16_bf16 {v(AIM,16)}, {v(CIM+4*t,4)}, {v(DF+4*t,4)}, {c1}")

def a2_consts(a, sT):
    a.e(f"v_and_b32 v{IDX}, 31, v1", f"v_lshrrev_b32 v{G_}, 5, v1")
    XS, XB = TMP, TMP+1
    a.e(f"v_cvt_f32_u32 v{TMP+2}, v{IDX}", f"v_cvt_f32_u32 v{TMP+3}, v{G_}", f"v_mul_f32 v{TMP+3}, 4.0, v{TMP+3}",
        f"v_mul_f32 v{XS}, {f32hex(1/32)}, v{TMP+2}", f"v_mul_f32 v{XB}, v{TMP+3}, v{XS}")
    a.e(f"v_and_b32 v{TMP+4}, 1, v{IDX}", f"v_mul_u32_u24 v{TMP+4}, 0x8000, v{TMP+4}", f"v_lshl_or_b32 v{TMP+4}, v{TMP+4}, 16, v{TMP+4}")
    for t in range(2):
        for i in range(4):
            c = float(8*t+i); x = TMP+5+3*(i & 1)
            a.e(f"v_fmamk_f32 v{x}, v{XS}, {f32hex(c)}, v{XB}" if c else f"v_mov_b32 v{x}, v{XB}")
            a.e(f"v_cos_f32 v{x+1}, v{x}", f"v_sin_f32 v{x+2}, v{x}")
            a.e(f"v_cvt_pk_bf16_f32 v{CRE+4*t+i}, v{x+1}, v{x+2}", f"v_cvt_pk_bf16_f32 v{CIM+4*t+i}, -v{x+2}, v{x+1}")
    for base in (CRE, CIM):
        for i in range(8):
            a.e(f"v_xor_b32 v{base+8+i}, v{TMP+4}, v{base+i}")
    a.e(f"v_mul_f32 v{XS}, {f32hex(1/1024)}, v{TMP+2}", f"v_mul_f32 v{XB}, v{TMP+3}, v{XS}")
    for r in range(16):
        c = float(eidx(r)); x = TMP+5+(r & 1)
        a.e(f"v_fmamk_f32 v{x}, v{XS}, {f32hex(c)}, v{XB}" if c else f"v_mov_b32 v{x}, v{XB}")
        a.e(f"v_cos_f32 v{TWC+r}, v{x}", f"v_sin_f32 v{TWS+r}, v{x}")
    LO, HI, Q, AV, XA0, XA1, E0, E1 = TMP, TMP+1, TMP+2, TMP+3, TMP+4, TMP+5, TMP+6, TMP+7
    JF, KEY, T2, PO, PAR, N16, G4, CS = [TMP+8+i for i in range(8)]
    Lspec, Ldone = newlbl("ghspec"), newlbl("ghdone")
    a.e(f"v_and_b32 v{LO}, 3, v{IDX}", f"v_bfe_u32 v{HI}, v{IDX}, 2, 2")
    a.e(f"v_and_b32 v{N16}, 15, v1", f"v_lshrrev_b32 v{G4}, 4, v1")
    a.e(f"s_cmp_eq_u32 s{sT}, 0", f"s_cbranch_scc1 {Lspec}")
    a.e(f"v_cvt_f32_u32 v{T2}, s{sT}", f"v_cvt_f32_u32 v{JF}, v{HI}", f"v_fmamk_f32 v{JF}, v{JF}, {f32hex(512.0)}, v{T2}",
        f"v_mul_f32 v{JF}, {f32hex(1/2048)}, v{JF}",
        f"v_cvt_f32_u32 v{XA0}, v{G_}", f"v_add_f32 v{XA0}, v{XA0}, v{XA0}", f"v_add_f32 v{XA1}, 1.0, v{XA0}",
        f"v_mul_f32 v{XA0}, v{XA0}, v{JF}", f"v_mul_f32 v{XA1}, v{XA1}, v{JF}",
        f"v_lshlrev_b32 v{Q}, 3, v{LO}", "s_mov_b32 s50, 0x4631914C", f"v_lshrrev_b32 v{Q}, v{Q}, s50",
        f"v_mov_b32 v{AV}, 0.5", f"v_cmp_gt_u32 vcc, 16, v{IDX}", f"v_cndmask_b32 v{AV}, 0, v{AV}, vcc")
    for jj2 in range(4):
        for e in range(2):
            jj = 2*jj2+e
            xa = XA1 if jj >> 2 else XA0
            a.e(f"v_bfe_u32 v{E0+e}, v{Q}, {2*(jj&3)}, 2", f"v_cvt_f32_u32 v{E0+e}, v{E0+e}",
                f"v_fmamk_f32 v{E0+e}, v{E0+e}, {f32hex(0.25)}, v{xa}", f"v_cos_f32 v{E0+e}, v{E0+e}",
                f"v_mul_f32 v{E0+e}, v{E0+e}, v{AV}")
        a.e(f"v_cvt_pk_bf16_f32 v{GA+jj2}, v{E0}, v{E1}")
    a.e(f"v_bfe_u32 v{HI}, v{N16}, 1, 2", f"v_cvt_f32_u32 v{KEY}, v{HI}", f"v_mul_f32 v{KEY}, {f32hex(1/2048)}, v{KEY}",
        f"v_and_b32 v{JF}, 1, v{G4}", f"v_cvt_f32_u32 v{JF}, v{JF}", f"v_fmamk_f32 v{JF}, v{JF}, {f32hex(1024.0)}, v{T2}",
        f"v_add_f32 v{XA1}, {f32hex(512.0)}, v{JF}", f"v_mul_f32 v{XA0}, v{JF}, v{KEY}", f"v_mul_f32 v{XA1}, v{XA1}, v{KEY}",
        f"v_lshrrev_b32 v{CS}, 1, v{G4}", f"v_lshrrev_b32 v{AV}, 3, v{N16}", f"v_cmp_eq_u32 vcc, v{CS}, v{AV}",
        f"v_mov_b32 v{AV}, {f32hex(2.0**-21)}", f"v_cndmask_b32 v{AV}, 0, v{AV}, vcc",
        f"v_and_b32 v{PO}, 1, v{N16}")
    for part, Hd in ((0, HRE), (1, HIM)):
        w0, w1 = (0x1C, 0xBC) if part == 0 else (0x61, 0x6B)
        a.e(f"v_mov_b32 v{Q}, {w0}", f"v_mov_b32 v{PAR}, {w1}", f"v_cmp_eq_u32 vcc, 1, v{PO}", f"v_cndmask_b32 v{Q}, v{Q}, v{PAR}, vcc")
        for jj2 in range(4):
            for e in range(2):
                jj = 2*jj2+e
                xa = XA1 if jj >> 2 else XA0
                a.e(f"v_bfe_u32 v{E0+e}, v{Q}, {2*(jj&3)}, 2", f"v_cvt_f32_u32 v{E0+e}, v{E0+e}",
                    f"v_fmamk_f32 v{E0+e}, v{E0+e}, {f32hex(0.25)}, v{xa}", f"v_cos_f32 v{E0+e}, v{E0+e}",
                    f"v_mul_f32 v{E0+e}, v{E0+e}, v{AV}")
            a.e(f"v_cvt_pk_bf16_f32 v{Hd+jj2}, v{E0}, v{E1}")
    a.e(f"s_branch {Ldone}")
    a.label(Lspec)
    a.e(f"v_and_b32 v{PO}, 1, v{LO}", f"v_lshrrev_b32 v{PAR}, 1, v{LO}")
    a.e(f"v_lshlrev_b32 v{JF}, 2, v{HI}", "s_mov_b32 s50, 0x3120", f"v_lshrrev_b32 v{JF}, v{JF}, s50", f"v_and_b32 v{JF}, 15, v{JF}",
        f"v_lshlrev_b32 v{JF}, 8, v{JF}", f"v_lshlrev_b32 v{T2}, 10, v{PO}",
        f"v_cmp_eq_u32 vcc, 0, v{HI}", f"v_cndmask_b32 v{JF}, v{JF}, v{T2}, vcc", f"v_mov_b32 v{T2}, 0",
        f"v_cndmask_b32 v{Q}, v{PO}, v{T2}, vcc",
        f"v_cvt_f32_u32 v{JF}, v{JF}", f"v_mul_f32 v{JF}, {f32hex(1/2048)}, v{JF}",
        f"v_cvt_f32_u32 v{Q}, v{Q}", f"v_mul_f32 v{Q}, {f32hex(0.25)}, v{Q}",
        f"v_cvt_f32_u32 v{XA0}, v{G_}", f"v_add_f32 v{XA0}, v{XA0}, v{XA0}", f"v_add_f32 v{XA1}, 1.0, v{XA0}",
        f"v_fma_f32 v{XA0}, v{XA0}, v{JF}, v{Q}", f"v_fma_f32 v{XA1}, v{XA1}, v{JF}, v{Q}",
        f"v_cos_f32 v{XA0}, v{XA0}", f"v_cos_f32 v{XA1}, v{XA1}",
        f"v_lshrrev_b32 v{KEY}, 1, v{HI}", f"v_lshl_add_u32 v{KEY}, v{KEY}, 1, v{PAR}",
        f"v_lshrrev_b32 v{T2}, 4, v{IDX}", f"v_lshl_add_u32 v{KEY}, v{T2}, 2, v{KEY}", f"v_mov_b32 v{T2}, 0")
    for jj2 in range(4):
        for e in range(2):
            jj = 2*jj2+e
            xa = XA1 if jj >> 2 else XA0
            a.e(f"v_cmp_eq_u32 vcc, {jj&3}, v{KEY}", f"v_cndmask_b32 v{E0+e}, v{T2}, v{xa}, vcc")
        a.e(f"v_cvt_pk_bf16_f32 v{GA+jj2}, v{E0}, v{E1}")
    SAF, GS = JF, PAR
    a.e(f"v_bfe_u32 v{HI}, v{N16}, 1, 2", f"v_cvt_f32_u32 v{SAF}, v{HI}", f"v_mul_f32 v{SAF}, {f32hex(1/2048)}, v{SAF}",
        f"v_and_b32 v{GS}, 1, v{G4}", f"v_and_b32 v{PO}, 1, v{N16}",
        f"v_lshrrev_b32 v{CS}, 1, v{G4}", f"v_lshrrev_b32 v{T2}, 3, v{N16}",
        f"v_cmp_eq_u32 s[44:45], v{CS}, v{T2}", f"v_cmp_eq_u32 s[46:47], v{GS}, v{PO}", "s_and_b64 s[44:45], s[44:45], s[46:47]",
        f"v_cmp_eq_u32 s[46:47], 0, v{GS}")
    for part, Hd in ((0, HRE), (1, HIM)):
        for jj in range(8):
            sl, par, pi = jj >> 2, (jj >> 1) & 1, jj & 1
            e = E0 + (jj & 1)
            if par != part:
                a.e(f"v_mov_b32 v{e}, 0")
            else:
                if sl == 0:
                    j0, q0, a0 = 1024.0*pi, 0.5*pi, 2.0**-21
                    j1, q1, a1 = 256.0, 0.75*pi, 2.0**-20
                else:
                    j0, q0, a0 = 512.0, 0.75*pi, 2.0**-20
                    j1, q1, a1 = 768.0, 0.75*pi, 2.0**-20
                def sel(dst, x0, x1):
                    a.e(f"v_mov_b32 v{dst}, {f32hex(x1)}", f"v_mov_b32 v{AV}, {f32hex(x0)}", f"v_cndmask_b32 v{dst}, v{dst}, v{AV}, s[46:47]")
                sel(XA0, j0, j1); sel(XA1, q0 + 0.5*part, q1 + 0.5*part)
                a.e(f"v_fma_f32 v{XA0}, v{XA0}, v{SAF}, v{XA1}", f"v_cos_f32 v{XA0}, v{XA0}")
                sel(XA1, a0, a1)
                a.e(f"v_mul_f32 v{XA0}, v{XA0}, v{XA1}", f"v_mov_b32 v{XA1}, 0", f"v_cndmask_b32 v{e}, v{XA1}, v{XA0}, s[44:45]")
            if jj & 1: a.e(f"v_cvt_pk_bf16_f32 v{Hd+(jj>>1)}, v{E0}, v{E1}")
    a.label(Ldone)
    a.e("s_nop 1")


BT_S0, BT_S1, BT_S2, BT_S3 = 52, 56, 60, 64
BT_SOFF = ["0", "s68", "s69", "s70", "s71", "s76", "s77", "s78"]
BT_ROW, BT_CH, BT_MASK = 48, 49, 50
def bt_setup(a):
    a.e(f"s_lshl_b32 s{BT_ROW}, s{sSUBT}, 7", "s_lshl_b32 s51, s3, 5", f"s_add_u32 s{BT_ROW}, s{BT_ROW}, s51", f"s_lshl_b32 s{BT_CH}, s{sCBKT}, 6")
    for i in range(1, 8): a.e(f"s_mov_b32 {BT_SOFF[i]}, {4096*i}")
    a.e(f"s_mov_b32 s{BT_MASK}, 0xffff0000")

def scratch_addr(a, vdst, vcg, vrg):
    a.e(f"s_lshl_b32 s51, s{sSUBT}, 7", "s_lshr_b32 s92, s3, 1", "s_add_u32 s51, s51, s92", "s_lshl_b32 s51, s51, 12",
        f"s_lshl_b32 s92, s{sCBKT}, 7", "s_add_u32 s51, s51, s92", "s_and_b32 s92, s3, 1", "s_lshl_b32 s92, s92, 6", "s_add_u32 s51, s51, s92",
        "s_add_u32 s51, s51, 2048",
        f"v_lshlrev_b32 v{vdst}, 15, v{vcg}", f"v_lshl_add_u32 v{vdst}, v{vrg}, 4, v{vdst}", f"v_add_u32 v{vdst}, s51, v{vdst}")
SCR_SOFF = ["0", "s69", "s71", "s77"]

def emit_B1(a, shadow=None, hook=None, post_mode=None, after_stores=None, nafter=0):
    SK, SV, SSH, SKVT = BT_S0, BT_S1, BT_S2, BT_S3
    srd(a, SK, P_K, P_K+1, 4*MB); srd(a, SV, P_V, P_V+1, 4*MB); srd(a, SSH, P_SHK, P_SHK+1, 8192); srd(a, SKVT, P_OUT, P_OUT+1, 8*MB)
    bt_setup(a)
    soff = BT_SOFF; M = BT_MASK
    CG, RG, S0, CH0, VOFF, VH, VST, VSH = 2, 3, 4, 5, 6, 7, 8, 9
    a.e(f"v_and_b32 v{CG}, 15, v1", f"v_lshrrev_b32 v{RG}, 4, v1",
        f"v_lshl_add_u32 v{S0}, v{RG}, 3, s{BT_ROW}", f"v_lshl_add_u32 v{CH0}, v{CG}, 2, s{BT_CH}",
        f"v_lshlrev_b32 v{VOFF}, 11, v{S0}", f"v_lshl_add_u32 v{VOFF}, v{CH0}, 1, v{VOFF}",
        f"v_subrev_u32 v{VH}, 6144, v{VOFF}",
        f"v_lshlrev_b32 v{VSH}, 3, v{CH0}")
    scratch_addr(a, VST, CG, RG)
    KR, VR, SHR, KF, SHF, KV, TM, PK = 16, 38, 54, 64, 108, 124, 156, 16
    if OPT["bactwait"] and OPT["b1all"]:
        Lw = newlbl("bw")
        a.e(f"s_cmp_eq_u32 s{sACT}, 0", f"s_cbranch_scc1 {Lw}", "s_waitcnt lgkmcnt(0)")
        a.label(Lw)
    if OPT["earlypub"]:
        Lp = newlbl("epub")
        a.e("s_cmp_lg_u32 s3, 0", f"s_cbranch_scc1 {Lp}")
        fin_epoch(a); loc_publish(a)
        a.label(Lp)
    a.e(f"buffer_load_dwordx4 {v(SHR,4)}, v{VSH}, s[{SSH}:{SSH+3}], 0 offen",
        f"buffer_load_dwordx4 {v(SHR+4,4)}, v{VSH}, s[{SSH}:{SSH+3}], 0 offen offset:16")
    for i in range(3):
        a.e(f"buffer_load_dwordx2 {v(KR+2*i,2)}, v{VH}, s[{SK}:{SK+3}], {soff[i>>1]} offen" + (" offset:2048" if i & 1 else "") + (NT() if OPT["ntk"] else ""))
    for i in range(8):
        a.e(f"buffer_load_dwordx2 {v(KR+6+2*i,2)}, v{VOFF}, s[{SK}:{SK+3}], {soff[i>>1]} offen" + (" offset:2048" if i & 1 else "") + (NT() if OPT["ntk"] else ""))
    for i in range(8):
        a.e(f"buffer_load_dwordx2 {v(VR+2*i,2)}, v{VOFF}, s[{SV}:{SV+3}], {soff[i>>1]} offen" + (" offset:2048" if i & 1 else "") + NT())
    stamp(a, 2)
    if OPT["earlypub"]:
        Lq = newlbl("epub2")
        a.e("s_cmp_eq_u32 s3, 0", f"s_cbranch_scc1 {Lq}")
        fin_epoch(a)
        a.label(Lq)
    else:
        fin_epoch(a)
        loc_publish(a)
    if shadow: shadow()
    def wv(n, extra):
        if extra and not OPT["earlypub"]:
            L = newlbl("wv")
            a.e(f"s_cbranch_scc1 {L}", f"s_waitcnt vmcnt({n})")
            a.label(L)
            a.e(f"s_waitcnt vmcnt({n+extra})")
        elif extra == 2 and OPT["earlypub"]:
            L = newlbl("wv")
            a.e(f"s_cbranch_scc1 {L}", f"s_waitcnt vmcnt({n})")
            a.label(L)
            a.e(f"s_waitcnt vmcnt({n+1})")
        else:
            a.e(f"s_waitcnt vmcnt({n})")
    a.e("s_cmp_eq_u32 s3, 0")
    wv(19, 1)
    for ch in range(4):
        for j in range(4):
            src = SHR + 2*ch + (j >> 1)
            if j & 1: a.e(f"v_and_b32 v{SHF+4*j+ch}, s{M}, v{src}")
            else:     a.e(f"v_lshlrev_b32 v{SHF+4*j+ch}, 16, v{src}")
    for i in range(11):
        wv(18-i, 1)
        for hf in range(2):
            a.e(f"v_lshlrev_b32 v{KF+4*i+2*hf}, 16, v{KR+2*i+hf}", f"v_and_b32 v{KF+4*i+2*hf+1}, s{M}, v{KR+2*i+hf}")
    loc_issue(a, 10)
    a.e("s_cmp_eq_u32 s3, 0")
    for i in range(8):
        wv(7-i, 2)
        if i == 7 and hook: hook()
        for hf in range(2):
            a.e(f"v_lshlrev_b32 v{TM+2*hf}, 16, v{VR+2*i+hf}", f"v_and_b32 v{TM+2*hf+1}, s{M}, v{VR+2*i+hf}")
        for hf in range(2):
            acc = KV+4*i+2*hf
            a.e(f"v_pk_mul_f32 {v(acc,2)}, {v(KF+4*(i+3)+2*hf,2)}, {v(SHF+2*hf,2)}")
            for j in range(1, 4):
                a.e(f"v_pk_fma_f32 {v(acc,2)}, {v(KF+4*(i+3-j)+2*hf,2)}, {v(SHF+4*j+2*hf,2)}, {v(acc,2)}")
            a.e(f"v_pk_mul_f32 {v(acc,2)}, {v(acc,2)}, {v(TM+2*hf,2)}")
    stamp(a, 3)
    for ch in range(4):
        for m in range(4):
            a.e(f"v_cvt_pk_bf16_f32 v{PK+4*ch+m}, v{KV+4*(7-2*m)+ch}, v{KV+4*(6-2*m)+ch}")
    sts = [f"buffer_store_dwordx4 {v(PK+4*ch,4)}, v{VST}, s[{SKVT}:{SKVT+3}], {SCR_SOFF[ch]} offen" for ch in range(4)]
    if OPT["twoflag"]:
        for l in sts: a.e(l + (" nt" if OPT["ntscr"] else ""))
        stamp(a, 4)
        a.e(f"s_lshl_b32 s51, s{sCBKT}, 4", f"s_add_u32 s51, s51, s{sSUBT}", f"s_lshl_b32 s51, s51, {FB()}", f"s_add_u32 s92, s51, {SY_B1}")
        La = newlbl("siga")
        a.e("s_waitcnt vmcnt(0)", "s_barrier", "s_cmp_lg_u32 s3, 0", f"s_cbranch_scc1 {La}",
            "v_mov_b32 v14, s92", f"v_mov_b32 v15, s{S_TGT}", "s_mov_b64 exec, 1",
            f"buffer_store_dword v15, v14, s[{S_SYN}:{S_SYN+3}], 0 offen", "s_mov_b64 exec, -1")
        a.label(La)
        if after_stores: after_stores()
        loc_resolve(a, 10, nafter=nafter + 1 if after_stores else 1)
        Lo = newlbl("opt")
        a.e(f"s_cmp_lg_u32 s{sLOC}, 0", f"s_cbranch_scc1 {Lo}", "s_waitcnt vmcnt(0)")
        for l in sts: a.e(l + " sc1")
        a.e(f"s_add_u32 s51, s51, {SY_B1B}")
        signal(a, 51, 14)
        a.label(Lo)
        return
    if OPT["optst"]:
        for l in sts: a.e(l)
        if after_stores: after_stores()
        loc_resolve(a, 10, nafter=nafter)
        Lo = newlbl("opt")
        a.e(f"s_cmp_lg_u32 s{sLOC}, 0", f"s_cbranch_scc1 {Lo}", "s_waitcnt vmcnt(0)")
        for l in sts: a.e(l + " sc1")
        a.e("s_waitcnt vmcnt(0)")
        a.label(Lo)
    else:
        loc_resolve(a, 10)
        dual_store(a, sts)
    stamp(a, 4)
    a.e(f"s_lshl_b32 s51, s{sCBKT}, 4", f"s_add_u32 s51, s51, s{sSUBT}", f"s_lshl_b32 s51, s51, {FB()}", f"s_add_u32 s51, s51, {SY_B1}")
    signal(a, 51, 14, nafter=nafter, bloc=True)

B3_QR, B3_VQ, B3_VT, B3_VO = 208, 224, 225, 226
def emit_B3_pre(a):
    SQ, STT, SOUT = BT_S0, BT_S1, BT_S2
    srd(a, SQ, P_Q, P_Q+1, 4*MB); srd(a, SOUT, P_OUT, P_OUT+1, 8*MB)
    bt_setup(a)
    t = 227
    a.e(f"v_and_b32 v{t}, 15, v1", f"v_lshrrev_b32 v{t+1}, 4, v1",
        f"v_lshl_add_u32 v{t+1}, v{t+1}, 3, s{BT_ROW}", f"v_lshl_add_u32 v{t}, v{t}, 2, s{BT_CH}",
        f"v_lshlrev_b32 v{B3_VQ}, 11, v{t+1}", f"v_lshl_add_u32 v{B3_VQ}, v{t}, 1, v{B3_VQ}",
        f"v_lshlrev_b32 v{B3_VO}, 12, v{t+1}", f"v_lshl_add_u32 v{B3_VO}, v{t}, 1, v{B3_VO}", f"v_add_u32 v{B3_VO}, 2048, v{B3_VO}")
    a.e(f"v_and_b32 v{t}, 15, v1", f"v_lshrrev_b32 v{t+1}, 4, v1")
    scratch_addr(a, B3_VT, t, t+1)
    for i in range(8):
        a.e(f"buffer_load_dwordx2 {v(B3_QR+2*i,2)}, v{B3_VQ}, s[{SQ}:{SQ+3}], {BT_SOFF[i>>1]} offen" + (" offset:2048" if i & 1 else "") + NT())

def emit_B3(a):
    SQ, STT, SOUT = BT_S0, BT_S1, BT_S2
    soff = BT_SOFF; M = BT_MASK
    TR, TF, QF = 16, 48, 80
    a.e(f"s_mov_b32 s{M}, 0xffff0000")
    a.e(f"s_lshl_b32 s51, s{sCBKT}, {4+FB()}", f"s_add_u32 s51, s51, {SY_B2}",
        "v_and_b32 v12, 15, v1", f"v_lshlrev_b32 v12, {FB()}, v12", "v_add_u32 v12, s51, v12")
    a.e("s_waitcnt vmcnt(0)")
    for e in range(8):
        qf = QF + 4*e
        for hf in range(2):
            a.e(f"v_lshlrev_b32 v{qf+2*hf}, 16, v{B3_QR+2*e+hf}", f"v_and_b32 v{qf+2*hf+1}, s{M}, v{B3_QR+2*e+hf}")
    wait_flags(a, 12, 1, 13, 51)
    stamp(a, 10)
    for ch in range(4):
        a.e(f"buffer_load_dwordx4 {v(TR+4*ch,4)}, v{B3_VT}, s[{SOUT}:{SOUT+3}], {SCR_SOFF[ch]} offen" + LDL())
    for ch in range(4):
        a.e(f"s_waitcnt vmcnt({3-ch})")
        for e in range(8):
            src = TR+4*ch+(e >> 1)
            if e & 1: a.e(f"v_and_b32 v{TF+4*e+ch}, s{M}, v{src}")
            else:     a.e(f"v_lshlrev_b32 v{TF+4*e+ch}, 16, v{src}")
    a.e("s_barrier")
    for e in range(8):
        qf = QF + 4*e
        for hf in range(2):
            a.e(f"v_pk_mul_f32 {v(qf+2*hf,2)}, {v(qf+2*hf,2)}, {v(TF+4*e+2*hf,2)}")
        pk = 112+2*e
        for hf in range(2):
            a.e(f"v_cvt_pk_bf16_f32 v{pk+hf}, v{qf+2*hf}, v{qf+2*hf+1}")
        a.e(f"buffer_store_dwordx2 {v(pk,2)}, v{B3_VO}, s[{SOUT}:{SOUT+3}], {soff[e]} offen" + NTO())

def gen_A(a):
    SX, SI1, SWR, SWI, SI2, SOUT = 32, 36, 80, 84, 32, 36
    a.e(f"s_setprio {OPT['prioA']}") if OPT['prioA'] else None
    sT, sSA, sCB, sJ, sJM, sJP, sJQ, sTL = 40, 41, 42, 43, 72, 73, 74, 44
    def rows():
        srd(a, SI1, P_WS, P_WS+1, 4*MB, add=WS_I1)
        srd(a, SWR, P_WR, P_WR+1, WBYTES); srd(a, SWI, P_WI, P_WI+1, WBYTES)
        Lr = newlbl("reg")
        a.e("s_lshl_b32 s47, s3, 9", f"s_add_u32 s{sJ}, s{sT}, s47", f"s_mov_b32 s{sJP}, s{sT}", f"s_sub_u32 s{sJQ}, 512, s{sT}",
            f"s_cmp_lg_u32 s{sT}, 0", f"s_cbranch_scc1 {Lr}",
            f"s_mov_b32 s{sJQ}, 256", "s_lshl_b32 s47, s3, 2", "s_lshr_b32 s46, 0x3120, s47", "s_and_b32 s46, s46, 15", f"s_lshl_b32 s{sJ}, s46, 8")
        a.label(Lr)
        a.e(f"s_sub_u32 s{sJM}, 2048, s{sJ}", f"s_and_b32 s{sJM}, s{sJM}, 2047",
            f"s_mul_i32 s{sJ}, s{sJ}, 1026", f"s_mul_i32 s{sJM}, s{sJM}, 1026")
        a.e(f"s_or_b32 s75, s{sT}, s3")
    def wstage():
        a.e("v_lshlrev_b32 v243, 4, v1", "s_lshl_b32 s46, s3, 12", f"s_add_u32 s46, s46, {LW}")
        w_dma(a, SWR, SWI, sJ, sJM, 46, 243)
        pf_loads(a, SWR, SWI, sJ, sJM, PF, 244)
        if not OPT["spec2"]: wstage2()
    def wstage2():
        Ln = newlbl("now2")
        a.e("s_cmp_lg_u32 s75, 0", f"s_cbranch_scc1 {Ln}")
        a.e("v_lshlrev_b32 v243, 4, v1", f"s_mov_b32 s47, {1024*1026}", f"s_mov_b32 s46, {LW2}")
        w_dma(a, SWR, SWI, 47, 47, 46, 243)
        pf_loads(a, SWR, SWI, 47, 47, PF2, 244)
        a.label(Ln)
    a.e(f"s_mov_b32 s{sT}, s{sCU}")
    stamp(a, 0, True); stamp(a, 1)
    Lp1 = newlbl("nop1")
    a.e(f"s_cmp_eq_u32 s{sACT}, 0", f"s_cbranch_scc1 {Lp1}_in")
    if OPT["pA1a"] >= 0: a.e(f"s_setprio {OPT['pA1a']}")
    srd(a, SX, P_X, P_X+1, 4*MB)
    a.e(f"s_lshr_b32 s48, s{sT}, 4", f"s_and_b32 s49, s{sT}, 7",
        f"s_lshr_b32 s{sSA}, s48, 2", "s_bfe_u32 s50, s48, 0x10001", "s_lshl_b32 s50, s50, 3", "s_add_u32 s50, s50, s49",
        "s_lshl_b32 s50, s50, 1", "s_and_b32 s51, s48, 1", f"s_add_u32 s{sCB}, s50, s51",
        "s_lshl_b32 s48, s48, 3", f"s_add_u32 s{sTL}, s48, s49")
    fft512_addr(a, sSA, sCB)
    fft512_loads(a, SX, NT() if OPT["ntx"] else "")
    stamp(a, 12)
    rows()
    if OPT["spec2"]: wstage2()
    fft512_addr2(a, sSA, sCB, 2048, 8192)
    fft512_consts(a)
    fft512_compute(a, SI1, False, 0, "sc1", 2, hook=None if OPT["wlate"] else wstage)
    stamp(a, 4)
    a.e(f"s_lshl_b32 s48, s{sTL}, {FA()}", f"s_add_u32 s48, s48, {SY_A1}")
    fin_epoch(a)
    signal(a, 48, F_TMP)
    a.e(f"s_branch {Lp1}")
    a.label(f"{Lp1}_in")
    if OPT["pA1i"] >= 0: a.e(f"s_setprio {OPT['pA1i']}")
    stamp(a, 12)
    if OPT["b1all"]:
        rows()
        fin_epoch(a)
        if not OPT["wlate"]: wstage()
    else:
        emit_B1(a, shadow=rows, hook=None if OPT["wlate"] else wstage)
    a.label(Lp1)
    if OPT["pA1i"] >= 0 or OPT["pA1a"] >= 0: a.e(f"s_setprio {OPT['prioA']}")
    stamp(a, 5)
    if OPT["wlate"] == 2: wstage()
    srd(a, SI2, P_WS, P_WS+1, 4*MB, add=WS_I2)
    a2_consts(a, sT)
    a.e(f"v_lshl_add_u32 v{TMP}, v{G_}, 7, v{IDX}",
        "s_lshl_b32 s48, s3, 12", f"s_add_u32 s48, s48, {LW}",
        f"v_lshl_add_u32 v{VW}, v{TMP}, 1, s48",
        f"v_sub_u32 v{TMP+1}, {1023-32*27}, v{TMP}", f"s_add_u32 s49, s48, 2048", f"v_lshl_add_u32 v{VW+1}, v{TMP+1}, 1, s49")
    a.e(f"v_lshlrev_b32 v{VG}, 12, v{G_}", f"v_lshl_add_u32 v{VG}, v{IDX}, 2, v{VG}",
        "s_lshl_b32 s49, s3, 9",
        f"s_lshl_b32 s52, s{sJP}, 13", "s_add_u32 s52, s52, s49",
        f"s_lshl_b32 s53, s{sJQ}, 13", "s_add_u32 s53, s53, s49")
    a.e(f"v_lshlrev_b32 v{VGW}, 12, v{G_}", f"v_lshl_add_u32 v{VGW}, v{IDX}, 3, v{VGW}", "s_lshl_b32 s50, s3, 10", f"v_add_u32 v{VGW}, s50, v{VGW}",
        f"v_lshlrev_b32 v{VRR}, 9, v{G_}", f"v_lshl_add_u32 v{VRR}, v{IDX}, 2, v{VRR}", "s_lshl_b32 s51, s3, 12", f"v_add_u32 v{VRR}, s51, v{VRR}")
    for t in range(1, 4): a.e(f"v_add_u32 v{VRR+t}, {1024*t}, v{VRR}")
    a.e(f"v_lshrrev_b32 v{TMP}, 4, v1", f"v_and_b32 v{TMP+1}, 1, v{TMP}", f"v_lshlrev_b32 v{VHR}, 13, v{TMP+1}",
        f"v_lshrrev_b32 v{TMP+1}, 1, v{TMP}", f"v_lshl_add_u32 v{VHR}, v{TMP+1}, 7, v{VHR}",
        f"v_and_b32 v{TMP+1}, 15, v1", f"v_lshl_add_u32 v{VHR}, v{TMP+1}, 3, v{VHR}", f"v_add_u32 v{VHR}, s50, v{VHR}")
    a.e(f"v_and_b32 v{TMP+2}, 1, v{TMP+1}", f"v_mov_b32 v{TMP+3}, s52", f"v_mov_b32 v{TMP+4}, s53",
        f"v_cmp_eq_u32 vcc, 1, v{TMP+2}", f"v_cndmask_b32 v{VST}, v{TMP+3}, v{TMP+4}, vcc",
        f"v_bfe_u32 v{TMP+2}, v{TMP+1}, 1, 2", f"v_lshl_add_u32 v{VST}, v{TMP+2}, 11, v{VST}",
        f"v_lshrrev_b32 v{TMP+2}, 3, v{TMP+1}", f"v_lshl_add_u32 v{VST}, v{TMP+2}, 6, v{VST}",
        f"v_lshl_add_u32 v{VST}, v{TMP}, 4, v{VST}")
    a.e(f"v_lshlrev_b32 v{TMP}, {FA()}, v1", f"v_add_u32 v{TMP}, {SY_A1}, v{TMP}")
    stamp(a, 6)
    wait_flags(a, TMP, 2, TMP+1, 48)
    if OPT["yieldB"]: a_state(a, sT, 0, TMP)
    stamp(a, 7)
    for u in range(4):
        for sl in range(2):
            for pq in range(2):
                a.e(f"buffer_load_dword v{GB+4*u+2*sl+pq}, v{VG}, s[{SI1}:{SI1+3}], s{52+pq} offen offset:{2048*sl+128*u} sc1")
    NWL = 0
    if OPT["wlate"] == 1:
        wstage(); NWL = 8
        if not OPT["spec2"]:
            Lsw = newlbl("spw")
            a.e("s_cmp_lg_u32 s75, 0", f"s_cbranch_scc1 {Lsw}", "s_waitcnt vmcnt(0)")
            a.label(Lsw)
    for rnd in range(2):
        a.e(f"s_waitcnt vmcnt({8-8*rnd+NWL})")
        for uu in range(2):
            u = 2*rnd+uu
            a.e(f"v_mfma_f32_32x32x16_bf16 {v(ARE if uu == 0 else AIM,16)}, {v(GA,4)}, {v(GB+4*u,4)}, 0")
        for uu in range(2):
            u = 2*rnd+uu
            D = ARE if uu == 0 else AIM
            t = TMP+4*uu
            for h in range(2):
                a.e(f"v_cvt_pk_bf16_f32 v{t}, v{D+4*h}, v{D+4*h+1}", f"v_cvt_pk_bf16_f32 v{t+1}, v{D+4*h+2}, v{D+4*h+3}",
                    f"ds_write_b64 v{VGW}, {v(t,2)} offset:{256*u+8192*h}")
                t += 2
    a.e("s_waitcnt lgkmcnt(0)", "s_barrier")
    stamp(a, 8)
    if OPT["qA"] and not OPT["a3all"]:
        Lq = newlbl("noqA")
        a.e(f"s_cmp_lg_u32 s{sACT}, 0", f"s_cbranch_scc1 {Lq}")
        emit_B3_pre(a)
        a.label(Lq)
    for t in range(4):
        a.e(f"ds_read2_b32 {v(DF+4*t,2)}, v{VRR+t} offset0:0 offset1:32", f"ds_read2_b32 {v(DF+4*t+2,2)}, v{VRR+t} offset0:64 offset1:96")
    a.e("s_waitcnt lgkmcnt(0)")
    Lsp, Linv, Lfwd, Lpre = newlbl("special"), newlbl("inv"), newlbl("fwd"), newlbl("pre")
    sPASS = 45
    if OPT["spec2"]:
        a.e(f"s_mov_b32 s{sPASS}, 0", "s_cmp_lg_u32 s75, 0", f"s_cbranch_scc1 {Lpre}")
        for i in range(16): a.e(f"v_lshrrev_b32 v{GB+i}, 16, v{DF+i}", f"v_and_b32 v{DF+i}, 0xffff, v{DF+i}")
        a.label(Lpre)
    def wmid():
        Lk = newlbl("wskip")
        if OPT["spec2"]: a.e(f"s_cmp_lg_u32 s{sPASS}, 0", f"s_cbranch_scc1 {Lk}")
        if OPT["qA"] and not OPT["a3all"]:
            L1, L2 = newlbl("wa"), newlbl("wb")
            a.e(f"s_cmp_lg_u32 s{sACT}, 0", f"s_cbranch_scc1 {L1}", "s_waitcnt vmcnt(8)", f"s_branch {L2}")
            a.label(L1); a.e("s_waitcnt vmcnt(0)"); a.label(L2)
        else:
            a.e("s_waitcnt vmcnt(0)")
        w_lds_reads(a, VW, VW+1, WR, WI)
        a.label(Lk)
    if OPT["wlate"] == 1:
        a.label(Lfwd); a.e("s_nop 1")
        fft1024(a, mid=wmid)
    else:
        w_lds_reads(a, VW, VW+1, WR, WI)
        a.label(Lfwd); a.e("s_nop 1")
        fft1024(a)
    a.e("s_waitcnt lgkmcnt(0)")
    Lnf = newlbl("nofix")
    if OPT["spec2"]: a.e(f"s_cmp_lg_u32 s{sPASS}, 0", f"s_cbranch_scc1 {Lnf}")
    fix_w(a, WR, WI, PF)
    a.label(Lnf)
    a.e("s_cmp_eq_u32 s75, 0", f"s_cbranch_scc1 {Lsp}")
    for p in range(8):
        xr, xi, wr, wi = ARE+2*p, AIM+2*p, WR+2*p, WI+2*p
        t0 = TMP+4*(p & 1); t1 = t0+2
        n0 = " neg_lo:[1,0,0] neg_hi:[1,0,0]" if p < 4 else ""
        n1 = "" if p < 4 else " neg_lo:[1,0,0] neg_hi:[1,0,0]"
        a.e(f"v_pk_mul_f32 {v(t0,2)}, {v(xr,2)}, {v(wr,2)}", f"v_pk_mul_f32 {v(t1,2)}, {v(xi,2)}, {v(wr,2)}",
            f"v_pk_fma_f32 {v(t0,2)}, {v(xi,2)}, {v(wi,2)}, {v(t0,2)}{n0}",
            f"v_pk_fma_f32 {v(t1,2)}, {v(xr,2)}, {v(wi,2)}, {v(t1,2)}{n1}")
        for e in range(2):
            a.e(f"v_cvt_pk_bf16_f32 v{DF+2*p+e}, v{t0+e}, -v{t1+e}")
    a.label(Linv)
    a.e("s_nop 1")
    fft1024(a)
    for r in range(16):
        t = TMP + (r & 7)
        a.e(f"v_cvt_pk_bf16_f32 v{t}, v{ARE+r}, v{AIM+r}", f"ds_write_b32 v{VRR}, v{t} offset:{128*eidx(r)}")
    a.e("s_waitcnt lgkmcnt(0)", "s_barrier")
    if OPT["yieldB"]: a_state(a, sT, 1, TMP)
    stamp(a, 9)
    for u in range(4):
        for sl in range(2):
            a.e(f"ds_read_b64 {v(GB+4*u+2*sl,2)}, v{VHR} offset:{4096*sl+256*u}")
    a.e("s_lshl_b32 s49, s3, 9")
    for u in range(4):
        a.e(f"s_waitcnt lgkmcnt({6-2*u})")
        a.e(f"v_mfma_f32_16x16x32_bf16 {v(ARE+4*u,4)}, {v(GB+4*u,4)}, {v(HRE,4)}, 0",
            f"v_mfma_f32_16x16x32_bf16 {v(AIM+4*u,4)}, {v(GB+4*u,4)}, {v(HIM,4)}, 0")
    for u in range(4):
        for r in range(4):
            a.e(f"v_cvt_pk_bf16_f32 v{DF+4*u+r}, v{ARE+4*u+r}, v{AIM+4*u+r}")
        a.e(f"buffer_store_dwordx4 {v(DF+4*u,4)}, v{VST}, s[{SI2}:{SI2+3}], 0 offen offset:{128*u} sc1")
    a.e(f"s_lshl_b32 s48, s{sT}, {FA()}", f"s_add_u32 s48, s48, {SY_A2}")
    signal(a, 48, TMP)
    stamp(a, 10)
    Lb3 = newlbl("b3")
    if OPT["a3all"]:
        srd(a, SOUT, P_OUT, P_OUT+1, 8*MB)
        a.e(f"s_lshr_b32 s48, s{sT}, 3", f"s_and_b32 s49, s{sT}, 7", f"s_lshr_b32 s{sSA}, s48, 3", "s_bfe_u32 s50, s48, 0x10002",
            "s_lshl_b32 s50, s50, 3", "s_add_u32 s50, s50, s49", "s_lshl_b32 s50, s50, 2", "s_and_b32 s51, s48, 3", f"s_add_u32 s{sCB}, s50, s51")
        f8_addr(a, sSA, sCB, 4096, 16384)
        f8_consts(a)
        a.e(f"v_lshlrev_b32 v{F_TMP}, {FA()}, v1", f"v_add_u32 v{F_TMP}, {SY_A2}, v{F_TMP}")
        wait_flags(a, F_TMP, 4, F_TMP+1, 48)
        stamp(a, 11)
        PHASE[0] = 3
        fstamp(a, 11)
        f8_run(a, SI2, SOUT, "sc1", NTO())
    else:
        a.e(f"s_cmp_eq_u32 s{sACT}, 0", f"s_cbranch_scc1 {Lb3}")
        srd(a, SOUT, P_OUT, P_OUT+1, 8*MB)
        fft512_addr(a, sSA, sCB)
        fft512_addr2(a, sSA, sCB, 4096, 16384)
        fft512_consts(a)
        a.e(f"v_lshlrev_b32 v{F_TMP}, {FA()}, v1", f"v_add_u32 v{F_TMP}, {SY_A2}, v{F_TMP}")
        wait_flags(a, F_TMP, 4, F_TMP+1, 48)
        stamp(a, 11)
        PHASE[0] = 3
        fstamp(a, 11)
        fft512_loads(a, SI2, "sc1")
        fstamp(a, 3)
        save = gen.PROF; gen.PROF = False
        fft512_compute(a, SOUT, True, 0, NTO(), 0)
        gen.PROF = save
    a.e("s_cmp_lg_u32 s75, 0", "s_cbranch_scc1 L_fin")
    Lb1, Lb2 = newlbl("bchk"), newlbl("bchkd")
    a.e("v_lshlrev_b32 v2, 6, v1", f"v_add_u32 v2, {SY_ID}, v2", f"s_lshl_b32 s49, s{S_TGT}, 4", "s_mov_b32 s48, 0")
    a.label(Lb1)
    NS = NMEM()*8//64
    for i in range(NS):
        a.e(f"s_mov_b32 s50, {4096*i}", f"buffer_load_dword v{4+i}, v2, s[{S_SYN}:{S_SYN+3}], s50 offen sc1")
    a.e("s_add_u32 s48, s48, 1", "s_waitcnt vmcnt(0)")
    for i in range(NS): a.e(f"v_xor_b32 v{4+i}, s49, v{4+i}")
    for i in range(1, NS): a.e(f"v_or_b32 v4, v4, v{4+i}")
    a.e("v_lshrrev_b32 v4, 4, v4", "v_cmp_ne_u32 vcc, 0, v4", f"s_cbranch_vccz {Lb2}", f"s_cmp_lt_u32 s48, {SPIN_LIMIT}", f"s_cbranch_scc1 {Lb1}")
    a.label(Lb2)
    a.e(f"s_mov_b32 s48, {SY_E}")
    bump(a, 48, 2)
    a.e("s_branch L_fin")
    if not OPT["a3all"]:
        a.label(Lb3)
        if not OPT["qA"]: emit_B3_pre(a)
        emit_B3(a)
        a.e("s_branch L_fin")
    a.label(Lsp)
    if OPT["spec2"]:
        Lp1s = newlbl("sp1")
        NEG = " neg_lo:[1,0,0] neg_hi:[1,0,0]"
        a.e(f"s_cmp_lg_u32 s{sPASS}, 0", f"s_cbranch_scc1 {Lp1s}")
        a.e(f"v_lshl_add_u32 v{SP}, v{G_}, 7, v{IDX}", f"v_sub_u32 v{SP+1}, {1023-32*27}, v{SP}",
            f"s_mov_b32 s48, {LW2}", f"v_lshl_add_u32 v{SP+2}, v{SP}, 1, s48", f"s_mov_b32 s49, {LW2+2048}", f"v_lshl_add_u32 v{SP+3}, v{SP+1}, 1, s49")
        w_lds_reads(a, SP+2, SP+3, W2R, W2I)
        for p in range(8):
            xr, xi, wr, wi = ARE+2*p, AIM+2*p, WR+2*p, WI+2*p
            t0 = TMP+4*(p & 1); t1 = t0+2
            n0 = NEG if p < 4 else ""; n1 = "" if p < 4 else NEG
            a.e(f"v_pk_mul_f32 {v(t0,2)}, {v(xr,2)}, {v(wr,2)}", f"v_pk_mul_f32 {v(t1,2)}, {v(xi,2)}, {v(wr,2)}",
                f"v_pk_fma_f32 {v(wr,2)}, {v(xi,2)}, {v(wi,2)}, {v(t0,2)}{n0}",
                f"v_pk_fma_f32 {v(wi,2)}, {v(xr,2)}, {v(wi,2)}, {v(t1,2)}{n1}")
        for i in range(16): a.e(f"v_mov_b32 v{DF+i}, v{GB+i}")
        a.e(f"s_mov_b32 s{sPASS}, 1", f"s_branch {Lfwd}")
        a.label(Lp1s)
        fix_w(a, W2R, W2I, PF2)
        for p in range(8):
            xr, xi, br, bi, r1r, r1i = ARE+2*p, AIM+2*p, W2R+2*p, W2I+2*p, WR+2*p, WI+2*p
            t0 = TMP+4*(p & 1); t1 = t0+2
            n0 = NEG if p < 4 else ""; n1 = "" if p < 4 else NEG
            a.e(f"v_pk_mul_f32 {v(t0,2)}, {v(xr,2)}, {v(br,2)}", f"v_pk_mul_f32 {v(t1,2)}, {v(xi,2)}, {v(br,2)}",
                f"v_pk_fma_f32 {v(t0,2)}, {v(xi,2)}, {v(bi,2)}, {v(t0,2)}{n0}",
                f"v_pk_fma_f32 {v(t1,2)}, {v(xr,2)}, {v(bi,2)}, {v(t1,2)}{n1}",
                f"v_pk_add_f32 {v(t1,2)}, {v(r1r,2)}, {v(t1,2)} neg_lo:[0,1] neg_hi:[0,1]",
                f"v_pk_add_f32 {v(t0,2)}, {v(r1i,2)}, {v(t0,2)}")
            for e in range(2):
                a.e(f"v_cvt_pk_bf16_f32 v{DF+2*p+e}, v{t1+e}, -v{t0+e}")
        a.e(f"s_branch {Linv}")
        return
    a.e(f"v_lshl_add_u32 v{TMP}, v{G_}, 7, v{IDX}", f"v_sub_u32 v{TMP+1}, {1023-32*27}, v{TMP}",
        f"s_mov_b32 s48, {LW2}", f"v_lshl_add_u32 v{TMP+2}, v{TMP}, 1, s48", f"s_mov_b32 s49, {LW2+2048}", f"v_lshl_add_u32 v{TMP+3}, v{TMP+1}, 1, s49")
    w_lds_reads(a, TMP+2, TMP+3, W2R, W2I)
    a.e("s_waitcnt lgkmcnt(0)")
    fix_w(a, W2R, W2I, PF2)
    VS = SP; K0 = SP+1
    a.e(f"v_lshlrev_b32 v{VS}, 9, v{G_}", f"v_lshl_add_u32 v{VS}, v{IDX}, 2, v{VS}")
    for r in range(16):
        a.e(f"ds_write_b32 v{VS}, v{ARE+r} offset:{LSC+128*eidx(r)}", f"ds_write_b32 v{VS}, v{AIM+r} offset:{LSC+4096+128*eidx(r)}")
    a.e(f"v_lshl_add_u32 v{K0}, v{G_}, 7, v{IDX}", f"v_sub_u32 v{K0}, 1024, v{K0}", "s_waitcnt lgkmcnt(0)")
    for r in range(16):
        ad, rr, ri, ur, ui, vr, vi, o0, o1 = [SP+2+i for i in range(9)]
        a.e(f"v_subrev_u32 v{ad}, {32*eidx(r)}, v{K0}", f"v_and_b32 v{ad}, 1023, v{ad}", f"v_lshlrev_b32 v{ad}, 2, v{ad}",
            f"ds_read_b32 v{rr}, v{ad} offset:{LSC}", f"ds_read_b32 v{ri}, v{ad} offset:{LSC+4096}", "s_waitcnt lgkmcnt(0)")
        pr, pi_ = ARE+r, AIM+r
        a.e(f"v_add_f32 v{ur}, v{pr}, v{rr}", f"v_sub_f32 v{ui}, v{pi_}, v{ri}",
            f"v_sub_f32 v{vr}, v{pr}, v{rr}", f"v_add_f32 v{vi}, v{pi_}, v{ri}")
        sg = "-" if r < 8 else ""; ns = "" if r < 8 else "-"
        ar, ai, br, bi = WR+r, WI+r, W2R+r, W2I+r
        a.e(f"v_mul_f32 v{o0}, v{ur}, v{ar}", f"v_fma_f32 v{o0}, {sg}v{ui}, v{ai}, v{o0}",
            f"v_fma_f32 v{o0}, v{vr}, v{br}, v{o0}", f"v_fma_f32 v{o0}, {sg}v{vi}, v{bi}, v{o0}",
            f"v_mul_f32 v{o1}, v{ui}, v{ar}", f"v_fma_f32 v{o1}, {ns}v{ur}, v{ai}, v{o1}",
            f"v_fma_f32 v{o1}, v{vi}, v{br}, v{o1}", f"v_fma_f32 v{o1}, {ns}v{vr}, v{bi}, v{o1}",
            f"v_mul_f32 v{o0}, 0.5, v{o0}", f"v_mul_f32 v{o1}, 0.5, v{o1}",
            f"v_cvt_pk_bf16_f32 v{DF+r}, v{o0}, -v{o1}")
    a.e(f"s_branch {Linv}")

def h_dma(a, SH, sLB, sD4K):
    a.e("v_lshlrev_b32 v235, 4, v1")
    a.e(f"s_add_u32 s74, s{sLB}, 32", "s_mov_b32 m0, s74")
    for ch in range(4): a.e(f"buffer_load_dwordx4 v235, s[{SH}:{SH+3}], s{sD4K} offen offset:{1024*ch} lds" + (NT() if OPT["nth"] else ""))
    a.e(f"s_add_u32 s74, s{sLB}, 4192", f"s_add_u32 s75, s{sD4K}, 2", "s_mov_b32 m0, s74")
    for ch in range(4): a.e(f"buffer_load_dwordx4 v235, s[{SH}:{SH+3}], s75 offen offset:{1024*ch} lds" + (NT() if OPT["nth"] else ""))
    a.e("v_mov_b32 v233, 0x7ffffff0", f"v_mov_b32 v234, s{sD4K}", "v_cmp_eq_u32 vcc, 15, v1", "v_cndmask_b32 v233, v233, v234, vcc",
        f"buffer_load_short_d16_hi v230, v233, s[{SH}:{SH+3}], 0 offen")

def gen_B(a):
    SH, STT, SKVT = 80, 84, 32
    a.e(f"s_setprio {OPT['prioB']}") if OPT['prioB'] else None
    srd(a, SH, P_SSMK, P_SSMK+1, 4*MB); srd(a, STT, P_OUT, P_OUT+1, 8*MB)
    sCBK, sSUB, sD, sD4K, sLB, sDV, sF1, sF2, sMASK = 40, 41, 42, 43, 44, 45, 46, 47, 72
    a.e(f"s_and_b32 s{sCBK}, s2, 15",
        f"s_lshr_b32 s{sSUB}, s2, 4",
        f"s_lshl_b32 s{sD}, s{sCBK}, 4", f"s_add_u32 s{sD}, s{sD}, s{sSUB}", f"s_lshl_b32 s{sD}, s{sD}, 2", f"s_add_u32 s{sD}, s{sD}, s3",
        f"s_lshl_b32 s{sD4K}, s{sD}, 12", f"s_mul_i32 s{sLB}, s3, {LB_STRIDE}", f"s_mov_b32 s{sMASK}, 0xffff0000")
    sSB = 36
    a.e(f"s_and_b32 s73, s{sD}, 63", "s_lshl_b32 s73, s73, 13", f"s_lshl_b32 s74, s{sCBK}, 7", "s_add_u32 s73, s73, s74", f"s_add_u32 s{sSB}, s73, 2048")
    for i in range(1, 4): a.e(f"s_add_u32 s{sSB+i}, s{sSB}, {i*2*MB}")
    a.e(f"s_lshl_b32 s73, s{sCBK}, {4+FB()}", f"s_add_u32 s{sF1}, s73, {SY_B1}", f"s_lshl_b32 s74, s{sSUB}, {FB()}", "s_add_u32 s73, s73, s74", f"s_add_u32 s{sF2}, s73, {SY_B2}")
    a.e(f"s_and_b32 s73, s{sD}, 0xfffffffe", "s_lshl_b32 s73, s73, 1", f"s_load_dword s{sDV}, s[{P_SSMD}:{P_SSMD+1}], s73")
    stamp(a, 0, True); stamp(a, 1)
    Lidle, Lsetup = newlbl("bidle"), newlbl("bsetup")
    if OPT["pB1"]: a.e(f"s_setprio {OPT['pB1']}")
    if OPT["b1all"]:
        a.e(f"s_mov_b32 s{sCBKT}, s{sCBK}", f"s_mov_b32 s{sSUBT}, s{sSUB}")
        if OPT["hearly"] and not OPT["hlate"]:
            emit_B1(a, after_stores=lambda: h_dma(a, SH, sLB, sD4K), nafter=9)
        else:
            emit_B1(a)
            if not OPT["hlate"]: h_dma(a, SH, sLB, sD4K)
    else:
        a.e(f"s_cmp_lg_u32 s{sACT}, 0", f"s_cbranch_scc1 {Lidle}")
        if OPT["hearly"] and not OPT["hlate"]:
            emit_B1(a, after_stores=lambda: h_dma(a, SH, sLB, sD4K), nafter=9)
        else:
            emit_B1(a)
            if not OPT["hlate"]: h_dma(a, SH, sLB, sD4K)
        a.e(f"s_branch {Lsetup}")
        a.label(Lidle)
        if OPT["tlb"] or OPT["cpf"]: warm(a)
        fin_epoch(a)
        loc_publish(a)
        loc_issue(a, 10)
        loc_resolve(a, 10, barrier=False)
        if not OPT["hlate"]:
            for _ in range(OPT["hactdelay"]):
                a.e("v_and_b32 v12, 15, v1", f"v_lshlrev_b32 v12, {FB()}, v12", f"v_add_u32 v12, s{sF1}, v12",
                    f"buffer_load_dword v13, v12, s[{S_SYN}:{S_SYN+3}], 0 offen sc1", "s_waitcnt vmcnt(0)")
            h_dma(a, SH, sLB, sD4K)
    a.label(Lsetup)
    if OPT["pB1"]: a.e(f"s_setprio {OPT['prioB']}")
    stamp(a, 12)
    LN16, B_, G4, VA, VB, VE, VS2, T = 2, 3, 4, 5, 9, 10, 11, 12
    a.e(f"v_lshlrev_b32 v{T}, 2, v1",
        f"v_add_u32 v{T+1}, {4160-32}, v{T}", "v_cmp_le_u32 vcc, 8, v1", f"v_cndmask_b32 v{T+3}, v{T}, v{T+1}, vcc",
        f"v_add_u32 v{T+1}, 8288, v{T}", "v_cmp_le_u32 vcc, 16, v1", f"v_cndmask_b32 v{T+3}, v{T+3}, v{T+1}, vcc",
        f"v_add_u32 v231, s{sLB}, v{T+3}")
    a.e(f"v_lshlrev_b32 v{T}, 3, v1", f"v_add_u32 v{T}, s{sLB}, v{T}", "v_mov_b32 v16, 0", "v_mov_b32 v17, 0", f"ds_write_b64 v{T}, v[16:17] offset:8288")
    a.e(f"v_and_b32 v{B_}, 15, v1", f"v_lshrrev_b32 v{G4}, 4, v1")
    a.e(f"v_and_b32 v{VA}, 1, v{B_}", f"v_xor_b32 v{VA}, 1, v{VA}", f"v_mul_u32_u24 v{VA}, 4160, v{VA}",
        f"v_add_u32 v{VA+1}, 1, v{B_}", f"v_lshrrev_b32 v{VA+1}, 1, v{VA+1}", f"v_lshl_add_u32 v{VA}, v{VA+1}, 2, v{VA}",
        f"v_lshlrev_b32 v{VA+1}, 4, v{G4}", f"v_sub_u32 v{VA}, v{VA}, v{VA+1}",
        f"s_add_u32 s73, s{sLB}, 16", f"v_add_u32 v{VA}, s73, v{VA}")
    for pp in range(1, 4): a.e(f"v_add_u32 v{VA+pp}, {1024*pp}, v{VA}")
    a.e(f"v_lshlrev_b32 v{VB}, 5, v{B_}", f"v_lshl_add_u32 v{VB}, v{G4}, 4, v{VB}",
        f"s_add_u32 s73, s{sLB}, {8800-480}", f"v_add_u32 v{VB}, s73, v{VB}")
    a.e(f"v_lshrrev_b32 v18, 1, v{G4}", f"v_lshlrev_b32 v19, 4, v18", f"v_lshl_add_u32 v19, v{B_}, 5, v19",
        f"v_and_b32 v18, 1, v{G4}", "v_xor_b32 v18, 1, v18", f"v_lshl_add_u32 v19, v18, 3, v19",
        f"s_add_u32 s73, s{sLB}, 8800", f"v_add_u32 v232, s73, v19")
    a.e(f"v_lshrrev_b32 v18, 3, v{B_}", f"v_lshlrev_b32 v{VS2}, 19, v18", f"v_bfe_u32 v18, v{B_}, 2, 1", f"v_lshl_add_u32 v{VS2}, v18, 12, v{VS2}",
        f"v_and_b32 v18, 1, v{G4}", f"v_lshl_add_u32 v{VS2}, v18, 20, v{VS2}", f"v_and_b32 v18, 3, v{B_}", f"v_lshl_add_u32 v{VS2}, v18, 5, v{VS2}",
        f"v_lshrrev_b32 v18, 1, v{G4}", f"v_lshl_add_u32 v{VS2}, v18, 4, v{VS2}")
    a.e(f"v_lshlrev_b32 v{LN16}, 19, v{G4}", "v_bfe_u32 v18, v1, 3, 1", f"v_lshl_add_u32 v{LN16}, v18, 12, v{LN16}",
        "v_and_b32 v18, 7, v1", f"v_lshl_add_u32 v{LN16}, v18, 4, v{LN16}")
    a.e("v_lshlrev_b32 v18, 4, v1", f"s_add_u32 s73, s{sLB}, 8800", "v_add_u32 v19, s73, v18")
    a.e("s_waitcnt lgkmcnt(0)",
        f"s_and_b32 s73, s{sD}, 1", f"s_lshl_b32 s74, s{sDV}, 16", f"s_and_b32 s75, s{sDV}, 0xffff0000",
        "s_cmp_eq_u32 s73, 1", f"s_cselect_b32 s{sDV}, s75, s74")
    if OPT["twoflag"]:
        a.e(f"s_add_u32 s73, s{sF1}, {SY_B1B-SY_B1}", f"s_cmp_lg_u32 s{sLOC}, 0", f"s_cselect_b32 s{sF1}, s{sF1}, s73")
    a.e(f"v_and_b32 v{T}, 15, v1", f"v_lshlrev_b32 v{T}, {FB()}, v{T}", f"v_add_u32 v{T}, s{sF1}, v{T}")
    stamp(a, 5)
    wait_flags(a, T, 1, T+1, 73)
    loc_read(a, 12)
    stamp(a, 6)
    VE = 232
    ACC = 20
    SETS = [(52, 84), (116, 148)]
    U = SETS[1][1]
    for ch in range(4):
        a.e(f"buffer_load_dwordx4 {v(U+4*ch,4)}, v{LN16}, s[{STT}:{STT+3}], s{sSB+ch} offen" + LDL())
    def reads(rho, st):
        A, B = SETS[st]
        out = []
        for p in range(8):
            o = 8*rho + 128*(p & 1)
            out.append(f"ds_read2_b32 {v(A+4*p,2)}, v{VA+(p>>1)} offset0:{o} offset1:{o+1}")
            out.append(f"ds_read2_b32 {v(A+4*p+2,2)}, v{VA+(p>>1)} offset0:{o+2} offset1:{o+3}")
        outb = [f"ds_read_b128 {v(B+4*q,4)}, v{VB} offset:{512*q+32*(15-rho)}" for q in range(8)]
        return out, outb
    rhos = list(range(1, 16, 2))
    ra, rb = reads(rhos[0], 0)
    if OPT["hlate"]:
        h_dma(a, SH, sLB, sD4K)
        for ch in range(4):
            a.e(f"s_waitcnt vmcnt({3-ch+9})", f"ds_write_b128 v19, {v(U+4*ch,4)} offset:{1024*ch}")
        a.e("s_waitcnt vmcnt(0)", "ds_write_b32 v231, v230", "s_waitcnt lgkmcnt(0)")
        for r in ra: a.e(r)
    else:
        a.e("s_waitcnt vmcnt(4)", "ds_write_b32 v231, v230")
        a.e("s_waitcnt lgkmcnt(0)")
        for r in ra: a.e(r)
        for ch in range(4):
            a.e(f"s_waitcnt vmcnt({3-ch})", f"ds_write_b128 v19, {v(U+4*ch,4)} offset:{1024*ch}")
    a.e("s_waitcnt lgkmcnt(0)")
    for r in rb: a.e(r)
    if OPT["yieldB"]: b_yield(a, 233)
    Lnq = newlbl("noq")
    if OPT["a3all"]:
        a.e(f"s_mov_b32 s{sCBKT}, s{sCBK}", f"s_mov_b32 s{sSUBT}, s{sSUB}")
        emit_B3_pre(a)
    else:
        a.e(f"s_cmp_lg_u32 s{sACT}, 0", f"s_cbranch_scc1 {Lnq}")
        emit_B3_pre(a)
        a.label(Lnq)
    stamp(a, 7)
    for ci, rho in enumerate(rhos):
        st = ci & 1
        A, B = SETS[st]
        if ci+1 < len(rhos):
            ra, rb = reads(rhos[ci+1], st ^ 1); nxt = ra[0:2] + rb + ra[2:]
        else:
            nxt = [f"ds_read_b64 {v(SETS[st^1][0]+2*j,2)}, v{VE} offset:{512*j}" for j in range(8)]
        a.e("s_waitcnt lgkmcnt(0)")
        n = 0
        for p in range(8):
            for q in range(8-p):
                j = p+q
                c = "0" if (ci == 0 and p == 0) else v(ACC+4*j, 4)
                a.e(f"v_mfma_f32_16x16x32_bf16 {v(ACC+4*j,4)}, {v(A+4*p,4)}, {v(B+4*q,4)}, {c}")
                if n < len(nxt): a.e(nxt[n])
                n += 1
    KVR = SETS[0][0]; TMv = 116
    a.e("s_waitcnt lgkmcnt(0)")
    stamp(a, 8)
    sts = []
    for jp in range(4):
        base = TMv + 8*jp
        for hh in range(2):
            j = 2*jp+hh
            w0, w1 = KVR+2*j, KVR+2*j+1
            t = 172
            a.e(f"v_and_b32 v{t}, s{sMASK}, v{w1}", f"v_lshlrev_b32 v{t+1}, 16, v{w1}",
                f"v_and_b32 v{t+2}, s{sMASK}, v{w0}", f"v_lshlrev_b32 v{t+3}, 16, v{w0}")
            for r in range(4):
                a.e(f"v_fma_f32 v{t+r}, v{t+r}, s{sDV}, v{ACC+4*j+r}")
            a.e(f"v_cvt_pk_bf16_f32 v{base+2*hh}, v{t}, v{t+1}", f"v_cvt_pk_bf16_f32 v{base+2*hh+1}, v{t+2}, v{t+3}")
        a.e(f"v_permlane16_swap_b32 v{base}, v{base+2}", f"v_permlane16_swap_b32 v{base+1}, v{base+3}")
        sts.append(f"buffer_store_dwordx4 {v(base,4)}, v{VS2}, s[{STT}:{STT+3}], s{sSB+jp} offen")
    dual_store(a, sts)
    signal(a, sF2, 12, bloc=True)
    stamp(a, 9)
    if not OPT["a3all"]: a.e(f"s_cmp_lg_u32 s{sACT}, 0", "s_cbranch_scc1 L_fin")
    emit_B3(a)
    a.e("s_branch L_fin")

def warm(a):
    if OPT["tlb"]:
        L = newlbl("warm")
        a.e("s_cmp_lg_u32 s3, 3", f"s_cbranch_scc1 {L}")
        pages = [(P_WS, WS_I1), (P_WS, WS_I1+2*MB), (P_WS, WS_I2), (P_WS, WS_I2+2*MB), (P_WS, WS_SYNC+512*1024),
                 (P_OUT, 0), (P_OUT, 2*MB), (P_OUT, 4*MB), (P_OUT, 6*MB),
                 (P_WR, 0), (P_WR, 2*MB), (P_WI, 0), (P_WI, 2*MB), (P_SSMK, 0), (P_SSMK, 2*MB), (P_Q, 0), (P_Q, 2*MB)]
        a.e("v_mov_b32 v240, 0", "v_mov_b32 v241, 0")
        for i, (p, off) in enumerate(pages):
            a.e(f"s_add_u32 s92, s{p}, {off}", f"s_addc_u32 s93, s{p+1}, 0", f"v_writelane_b32 v240, s92, {i}", f"v_writelane_b32 v241, s93, {i}")
        a.e(f"s_mov_b64 exec, {(1 << len(pages)) - 1}", "global_load_dword v242, v[240:241], off", "s_mov_b64 exec, -1")
        a.label(L)
    if OPT["cpf"]:
        L = newlbl("warm")
        a.e("s_cmp_ge_u32 s3, 2", f"s_cbranch_scc1 {L}")
        a.e("s_getpc_b64 s[92:93]")
        a.e("s_lshr_b32 s96, s2, 4", "s_and_b32 s96, s96, 15", "s_lshl_b32 s96, s96, 1", "s_add_u32 s96, s96, s3", "s_min_u32 s96, s96, 25",
            "s_lshl_b32 s96, s96, 10", f"s_sub_u32 s92, s92, {OPT['cpf']}", "s_subb_u32 s93, s93, 0",
            "s_add_u32 s92, s92, s96", "s_addc_u32 s93, s93, 0", "v_lshlrev_b32 v240, 4, v1",
            "global_load_dwordx4 v[236:239], v240, s[92:93]")
        a.label(L)

def gen_kernel():
    a = Asm(); a.name = "p"
    a.e("s_cmp_ge_u32 s2, 512", "s_cbranch_scc1 L_exit")
    if OPT.get("spinT") or OPT.get("span"): a.e("s_memrealtime s[94:95]")
    if gen.PROF: a.e("s_memrealtime s[98:99]", "s_waitcnt lgkmcnt(0)", "v_writelane_b32 v247, s98, 13")
    a.e(f"s_load_dwordx16 s[4:19], s[0:1], 0", f"s_load_dwordx8 s[20:27], s[0:1], 64")
    a.e("v_lshrrev_b32 v1, 6, v0", "v_readfirstlane_b32 s3, v1", "v_and_b32 v1, 63, v0", "s_waitcnt lgkmcnt(0)")
    srd(a, S_SYN, P_WS, P_WS+1, 1*MB, add=WS_SYNC)
    a.e(f"s_mov_b32 s48, {WS_SYNC+SY_E}", f"s_load_dword s{S_TGT}, s[{P_WS}:{P_WS+1}], s48")
    a.e(f"s_mov_b32 s98, {64<<FA()}", f"s_mov_b32 s99, {128<<FA()}", f"s_mov_b32 s100, {192<<FA()}")
    a.e(f"s_and_b32 s{sCU}, s2, 255", f"s_bitcmp0_b32 s2, 3", f"s_cselect_b32 s{sACT}, 1, 0",
        f"s_lshr_b32 s48, s{sCU}, 4", "s_lshl_b32 s48, s48, 3", f"s_and_b32 s49, s{sCU}, 7", "s_add_u32 s48, s48, s49",
        f"s_and_b32 s{sCBKT}, s48, 15", "s_lshr_b32 s48, s48, 4", "s_lshl_b32 s48, s48, 1", "s_lshr_b32 s49, s2, 8", f"s_add_u32 s{sSUBT}, s48, s49")
    a.e("s_cmp_ge_u32 s2, 256", "s_cbranch_scc1 L_A")
    gen_B(a)
    a.label("L_A")
    gen_A(a)
    a.label("L_fin")
    if gen.PROF:
        a.e("s_waitcnt vmcnt(0)")
        stamp(a, 14); stamp(a, 15, True)
        prof_dump(a)
    if OPT.get("span"):
        Ls = newlbl("span")
        a.e("s_cmp_lg_u32 s3, 0", f"s_cbranch_scc1 {Ls}", "s_waitcnt vmcnt(0)", "s_memrealtime s[92:93]",
            f"s_add_u32 s32, s{P_WS}, {gen.WS_PROF}", f"s_addc_u32 s33, s{P_WS+1}, 0", f"s_mov_b32 s34, {MB}", "s_mov_b32 s35, 0x00020000",
            "s_lshl_b32 s36, s2, 3", "s_waitcnt lgkmcnt(0)", "v_mov_b32 v2, s36", "v_mov_b32 v4, s94", "v_mov_b32 v5, s92", "s_mov_b64 exec, 1",
            "buffer_store_dwordx2 v[4:5], v2, s[32:35], 0 offen", "s_waitcnt vmcnt(0)")
        a.label(Ls)
    if OPT.get("spinT"):
        a.label("L_spin")
        a.e("s_memrealtime s[92:93]", "s_waitcnt lgkmcnt(0)", "s_sub_u32 s92, s92, s94", f"s_cmp_lt_u32 s92, {OPT['spinT']}", "s_cbranch_scc1 L_spin")
    a.label("L_exit")
    a.e("s_endpgm")
    return a

def prof_dump(a):
    if OPT.get("dbgwg", -1) >= 0:
        L = newlbl("nodbg")
        a.e(f"s_cmp_lg_u32 s2, {OPT['dbgwg']}", f"s_cbranch_scc1 {L}", "s_cmp_lg_u32 s3, 0", f"s_cbranch_scc1 {L}")
        a.e("v_readlane_b32 s36, v247, 1", "v_readlane_b32 s37, v247, 13", "v_mov_b32 v250, s36", "v_mov_b32 v251, s37",
            "v_cmp_eq_u32 vcc, 0, v1", "v_cndmask_b32 v250, v250, v251, vcc", "v_cmp_eq_u32 vcc, 13, v1", "v_cndmask_b32 v250, v250, v251, vcc",
            "v_cmp_eq_u32 vcc, 15, v1", "v_cndmask_b32 v250, v250, v251, vcc", "v_sub_u32 v250, v247, v250",
            f"s_mov_b32 s32, s{P_DBG}", f"s_mov_b32 s33, s{P_DBG+1}", "s_mov_b32 s34, 256", "s_mov_b32 s35, 0x00020000",
            "v_lshlrev_b32 v251, 2, v1", "s_mov_b64 exec, 0xffff", "buffer_store_dword v250, v251, s[32:35], 0 offen", "s_waitcnt vmcnt(0)", "s_mov_b64 exec, -1")
        a.label(L)
        return

    a.e(f"s_add_u32 s32, s{P_WS}, {gen.WS_PROF}", f"s_addc_u32 s33, s{P_WS+1}, 0", f"s_mov_b32 s34, {MB}", "s_mov_b32 s35, 0x00020000")
    a.e("s_lshl_b32 s36, s2, 2", "s_add_u32 s36, s36, s3", "s_lshl_b32 s36, s36, 6",
        "v_lshlrev_b32 v250, 2, v1", "v_add_u32 v250, s36, v250", "s_mov_b64 exec, 0xffff",
        "buffer_store_dword v247, v250, s[32:35], 0 offen")
    if OPT.get("fine"):
        a.e("v_add_u32 v250, 0x40000, v250", "buffer_store_dword v246, v250, s[32:35], 0 offen")
    a.e("s_waitcnt vmcnt(0)")
PROFREGS = []

def build(path):
    a = gen_kernel()
    name = "concat_heads__spectral_gfnet__ssm_conv_h3__prompt_kernel"
    s = open("concat_heads__spectral_gfnet__ssm_conv_h3__prompt.s.ref").read().split("; Override")[0]
    s += f"; @launch grid=(512,1,1) block=(256,1,1) lds={LDS_BYTES}\n"
    s += '.amdgcn_target "amdgcn-amd-amdhsa--gfx950"\n' + gen.header(name) + a.text() + gen.descriptor(name, 256, 102)
    s = s.replace(" lds nt", " nt lds")
    open(path, "w").write(s)
    return s

if __name__ == "__main__":
    out = sys.argv[1] if len(sys.argv) > 1 else "pers.s"
    gen.PROF = "prof" in sys.argv[2:]
    for x in sys.argv[2:]:
        if "=" in x:
            k, val = x.split("="); OPT[k] = int(val)
    if OPT["wsend"]:
        base = OPT["wsend"]*MB
        WS_I1, WS_KVT, WS_I2, WS_TT, WS_SYNC = base, base+4*MB, base+8*MB, base+12*MB, base+20*MB
    s = build(out)
    print(out, len(s))
```

```python
import sys
from asmgen import *
import gen
from gen import srd, MB, WS_I1, WS_KVT, WS_I2, WS_TT, KA

PHASE = [1]
def fstamp(a, i):
    if OPT.get("fine") != PHASE[0]: return
    a.e('s_memtime s[96:97]', 's_waitcnt lgkmcnt(0)', f'v_writelane_b32 v246, s96, {i}')
def stamp(a, i, real=False):
    if not gen.PROF: return
    a.e('s_memrealtime s[96:97]' if real else 's_memtime s[96:97]', 's_waitcnt lgkmcnt(0)', f'v_writelane_b32 v247, s96, {i}')

WBYTES = 2048*513*2
LB_STRIDE = 12896
LDS_BYTES = 53248
SPIN_LIMIT = 400000
OPT = dict(prioA=0, prioB=0, sleep=0, nt=1, wsend=0, ntout=1, ntw=1, wlate=1, hlate=1, qA=1, fsa=6, fsb=6, shrink=0, loc=1, forceloc=-1, ldloc=1, bdelay=0, earlypub=1, wpos=1, optst=1, locflag=1, hearly=1, twoflag=1, pA1i=-1, pB1=0, ntscr=0, a3all=1, ntk=1, ntv=1, ntx=1, nth=1, hactdelay=0, b1all=1, bactwait=1, pA1a=-1, grp=1, yieldB=0, ylim=40, tlb=0, cpf=0, spec2=1, y0=0)
def NMEM(): return 32 if OPT['b1all'] else 48
def LDL(): return {0: ' sc1', 1: ' nt', 2: ' sc1 nt'}[OPT['ldloc']]
def FA(): return OPT['fsa']
def FB(): return OPT['fsb']
def NT(): return ' nt' if OPT['nt'] else ''
def NTO(): return {0: '', 1: ' nt', 2: ' sc1', 3: ' sc1 nt'}[OPT['ntout']]

P_X, P_WR, P_WI, P_Q, P_K, P_V, P_SHK, P_SSMK, P_SSMD, P_OUT, P_DBG, P_WS = 4, 6, 8, 10, 12, 14, 16, 18, 20, 22, 24, 26
S_DBG = 28
def eidx(r): return (r & 3) + 8*(r >> 2)

_lbl = [0]
def newlbl(p):
    _lbl[0] += 1
    return f"L_{p}_{_lbl[0]}"

WS_SYNC = 20*MB
S_SYN = 28
S_TGT = 101
SY_E, SY_A1, SY_A2, SY_B1, SY_B2 = 0, 4096, 4096+16384, 4096+32768, 4096+49152
sACT, sCBKT, sSUBT, sCU = 88, 89, 90, 91
sLOC, sXEXP = 79, 0
S_DBG = 12
def signal(a, s_off, vt, nafter=0, bloc=False):
    L = newlbl("sig")
    a.e(f"s_waitcnt vmcnt({nafter})", "s_barrier", "s_cmp_lg_u32 s3, 0", f"s_cbranch_scc1 {L}",
        f"v_mov_b32 v{vt}, s{s_off}", f"v_mov_b32 v{vt+1}, s{S_TGT}", "s_mov_b64 exec, 1")
    st = f"buffer_store_dword v{vt+1}, v{vt}, s[{S_SYN}:{S_SYN+3}], 0 offen"
    if bloc and OPT["locflag"]:
        dual_store(a, [st])
    else:
        a.e(st + " sc1")
    a.e("s_mov_b64 exec, -1")
    a.label(L)

def wait_flags(a, vaddr, nload, vt, s_cnt, pre_barrier=None, solo=False):
    L = newlbl("poll"); Ls = newlbl("pdone"); Lr = newlbl("prest")
    if not solo: a.e("s_cmp_lg_u32 s3, 0", f"s_cbranch_scc1 {Ls}")
    a.e(f"s_mov_b32 s{s_cnt}, 0")
    a.label(L)
    offs = ["0", "s98", "s99", "s100"]
    for i in range(nload):
        a.e(f"buffer_load_dword v{vt+i}, v{vaddr}, s[{S_SYN}:{S_SYN+3}], {offs[i]} offen sc1")
    a.e(f"s_add_u32 s{s_cnt}, s{s_cnt}, 1", "s_waitcnt vmcnt(0)")
    for i in range(nload):
        a.e(f"v_xor_b32 v{vt+i}, s{S_TGT}, v{vt+i}")
    for i in range(1, nload):
        a.e(f"v_or_b32 v{vt}, v{vt}, v{vt+i}")
    if OPT["shrink"]:
        a.e(f"v_cmp_ne_u32 vcc, 0, v{vt}", "s_and_b64 exec, exec, vcc", f"s_cbranch_execz {Lr}")
    else:
        a.e(f"v_cmp_ne_u32 vcc, 0, v{vt}", f"s_cbranch_vccz {Lr}")
    if OPT["sleep"]: a.e(f"s_sleep {OPT['sleep']}")
    a.e(f"s_cmp_lt_u32 s{s_cnt}, {SPIN_LIMIT}", f"s_cbranch_scc1 {L}")
    a.label(Lr)
    if OPT["shrink"]: a.e("s_mov_b64 exec, -1")
    a.label(Ls)
    if pre_barrier: a.e(pre_barrier)
    if not solo: a.e("s_barrier")

SY_ID = 4096 + 65536
SY_B1B = 4096 + 98304
SY_AS = 4096 + 114688
LOCW = 53244
def loc_publish(a):
    L = newlbl("pub")
    a.e("s_getreg_b32 s92, hwreg(HW_REG_XCC_ID)", "s_and_b32 s92, s92, 15", f"s_lshl_b32 s{sXEXP}, s{S_TGT}, 4", f"s_or_b32 s{sXEXP}, s{sXEXP}, s92")
    a.e("s_cmp_lg_u32 s3, 0", f"s_cbranch_scc1 {L}")
    if OPT["b1all"] and OPT["grp"]:
        a.e("s_and_b32 s92, s2, 15", "s_lshl_b32 s92, s92, 4", "s_lshr_b32 s93, s2, 4", "s_add_u32 s92, s92, s93", "s_lshl_b32 s92, s92, 6", f"s_add_u32 s92, s92, {SY_ID}")
    else:
        a.e("s_lshr_b32 s92, s2, 3", f"s_lshr_b32 s93, s{sCU}, 4", "s_add_u32 s93, s93, 32", "s_cmp_ge_u32 s2, 256", "s_cselect_b32 s92, s93, s92",
            "s_and_b32 s93, s2, 7", f"s_mul_i32 s93, s93, {NMEM()}", "s_add_u32 s92, s92, s93", "s_lshl_b32 s92, s92, 6", f"s_add_u32 s92, s92, {SY_ID}")
    a.e(
        "v_mov_b32 v10, s92", f"v_mov_b32 v11, s{sXEXP}", "s_mov_b64 exec, 1",
        f"buffer_store_dword v11, v10, s[{S_SYN}:{S_SYN+3}], 0 offen sc1", "s_mov_b64 exec, -1")
    a.label(L)

def loc_issue(a, vt):
    if OPT["b1all"] and OPT["grp"]:
        a.e(f"v_min_u32 v{vt}, 15, v1", "s_and_b32 s93, s2, 15", "s_lshl_b32 s93, s93, 4")
    else:
        a.e(f"v_min_u32 v{vt}, {NMEM()-1}, v1", "s_and_b32 s93, s2, 7", f"s_mul_i32 s93, s93, {NMEM()}")
    a.e(f"v_add_u32 v{vt}, s93, v{vt}",
        f"v_lshlrev_b32 v{vt}, 6, v{vt}", f"v_add_u32 v{vt}, {SY_ID}, v{vt}")
    L = newlbl("li")
    a.e("s_cmp_lg_u32 s3, 0", f"s_cbranch_scc1 {L}")
    a.e(f"buffer_load_dword v{vt+1}, v{vt}, s[{S_SYN}:{S_SYN+3}], 0 offen sc1")
    a.label(L)

def loc_resolve(a, vt, barrier=True, nafter=0):
    L, Ld, Ls = newlbl("locp"), newlbl("locd"), newlbl("locs")
    a.e("s_cmp_lg_u32 s3, 0", f"s_cbranch_scc1 {Ls}")
    if OPT["forceloc"] >= 0:
        a.e(f"s_waitcnt vmcnt({nafter})", f"s_mov_b32 s93, {OPT['forceloc']}")
    else:
        a.e("s_mov_b32 s92, 0", f"s_waitcnt vmcnt({nafter})")
        a.label(L)
        a.e(f"v_xor_b32 v{vt+2}, s{sXEXP}, v{vt+1}", f"v_lshrrev_b32 v{vt+3}, 4, v{vt+2}", "s_add_u32 s92, s92, 1",
            f"v_cmp_ne_u32 vcc, 0, v{vt+3}", f"s_cbranch_vccz {Ld}",
            f"s_cmp_ge_u32 s92, {SPIN_LIMIT}", f"s_cbranch_scc1 {Ld}",
            f"buffer_load_dword v{vt+1}, v{vt}, s[{S_SYN}:{S_SYN+3}], 0 offen sc1", "s_waitcnt vmcnt(0)", f"s_branch {L}")
        a.label(Ld)
        a.e(f"v_cmp_ne_u32 vcc, 0, v{vt+2}", "s_cmp_eq_u64 vcc, 0", "s_cselect_b32 s93, 1, 0")
    a.e(f"s_mov_b32 s{sLOC}, s93", f"v_mov_b32 v{vt+2}, {LOCW}", f"v_mov_b32 v{vt+3}, s93", f"ds_write_b32 v{vt+2}, v{vt+3}", "s_waitcnt lgkmcnt(0)")
    a.label(Ls)
    if barrier:
        a.e("s_barrier")
        loc_read(a, vt)

def loc_read(a, vt):
    a.e(f"v_mov_b32 v{vt+2}, {LOCW}", f"ds_read_b32 v{vt+3}, v{vt+2}", "s_waitcnt lgkmcnt(0)", f"v_readfirstlane_b32 s{sLOC}, v{vt+3}")

def dual_store(a, lines):
    L1, L2 = newlbl("stg"), newlbl("stl")
    a.e(f"s_cmp_eq_u32 s{sLOC}, 0", f"s_cbranch_scc1 {L1}")
    for l in lines: a.e(l)
    a.e(f"s_branch {L2}")
    a.label(L1)
    for l in lines: a.e(l + " sc1" if "buffer_store" in l else l)
    a.label(L2)

def a_state(a, sT, done, vt):
    L = newlbl("ast")
    a.e("s_cmp_lg_u32 s3, 0", f"s_cbranch_scc1 {L}", f"s_lshl_b32 s92, s{sT}, 6", f"s_add_u32 s92, s92, {SY_AS}",
        f"s_lshl_b32 s93, s{S_TGT}, 1", f"s_or_b32 s93, s93, {done}", f"v_mov_b32 v{vt}, s92", f"v_mov_b32 v{vt+1}, s93", "s_mov_b64 exec, 1",
        f"buffer_store_dword v{vt+1}, v{vt}, s[{S_SYN}:{S_SYN+3}], 0 offen", "s_mov_b64 exec, -1")
    a.label(L)

def b_yield(a, vt):
    L, Ld = newlbl("yl"), newlbl("yd")
    a.e(f"s_lshl_b32 s92, s{sCU}, 6", f"s_add_u32 s92, s92, {SY_AS}", f"v_mov_b32 v{vt}, s92", f"s_lshl_b32 s75, s{S_TGT}, 1", "s_mov_b32 s92, 0")
    if OPT["yieldB"] == 2: a.e("s_or_b32 s75, s75, 1")
    a.label(L)
    a.e(f"buffer_load_dword v{vt+1}, v{vt}, s[{S_SYN}:{S_SYN+3}], 0 offen " + ("sc1" if OPT.get("ysc", 1) else "nt"), "s_add_u32 s92, s92, 1", "s_waitcnt vmcnt(0)",
        f"v_readfirstlane_b32 s93, v{vt+1}", "s_cmp_lg_u32 s93, s75" if OPT["yieldB"] == 1 else "s_cmp_eq_u32 s93, s75", f"s_cbranch_scc1 {Ld}",
        f"s_cmp_lt_u32 s92, {OPT['ylim']}", f"s_cbranch_scc1 {L}")
    a.label(Ld)

def fin_epoch(a):
    a.e("s_waitcnt lgkmcnt(0)", f"s_add_u32 s{S_TGT}, s{S_TGT}, 1")

def bump(a, s_off, vt):
    a.e(f"v_mov_b32 v{vt}, s{s_off}", f"v_mov_b32 v{vt+1}, s{S_TGT}", "s_mov_b64 exec, 1",
        f"buffer_store_dword v{vt+1}, v{vt}, s[{S_SYN}:{S_SYN+3}], 0 offen sc1", "s_mov_b64 exec, -1")

F_M, F_G, F_IN0, F_IN1, F_OUTOFF, F_WR, F_RD0, F_RD1, F_MM = 2, 3, 4, 5, 6, 7, 8, 9, 10
F_T = 11
F_IN, F16RE, F16IM, F_TWC, F_TWS, F_DRE, F_DIM, F_P, F_TMP, F32RE, F32IM = 16, 48, 52, 56, 88, 120, 136, 152, 168, 176, 192
SI_OFF, SO_OFF = 52, 68
SO_LIST = [68, 69, 70, 71, 76, 77, 78, 79]

def fft512_addr(a, s_sa, s_cb):
    a.e(f"v_and_b32 v{F_M}, 15, v1", f"v_lshrrev_b32 v{F_G}, 4, v1")
    a.e(f"v_lshlrev_b32 v{F_IN0}, 20, v{F_G}", f"v_lshl_add_u32 v{F_IN0}, v{F_M}, 2, v{F_IN0}", f"v_add_u32 v{F_IN1}, {4*8192}, v{F_IN0}")
    a.e(f"s_lshl_b32 s48, s{s_sa}, 11", f"s_lshl_b32 s49, s{s_cb}, 6", "s_add_u32 s48, s48, s49",
        "s_lshl_b32 s50, s3, 16", "s_add_u32 s48, s48, s50")
    for aa in range(4):
        for i in range(4):
            a.e(f"s_add_u32 s{SI_OFF+4*aa+i}, s48, {(32*i+aa)*8192}")

def fft512_loads(a, SIN, mod=""):
    for hh in range(2):
        for aa in range(4):
            for i in range(4):
                a.e(f"buffer_load_dword v{F_IN+16*hh+4*aa+i}, v{F_IN0+hh}, s[{SIN}:{SIN+3}], s{SI_OFF+4*aa+i} offen {mod}")

def fft512_addr2(a, s_sa, s_cb, orow, ostr):
    a.e(f"s_mov_b32 s51, {16*ostr}", f"v_mul_lo_u32 v{F_OUTOFF}, v{F_M}, s51", f"v_lshl_add_u32 v{F_OUTOFF}, v{F_G}, 4, v{F_OUTOFF}")
    a.e(f"s_mul_i32 s48, s{s_sa}, {orow}", f"s_lshl_b32 s49, s{s_cb}, 6", "s_add_u32 s48, s48, s49",
        f"s_mul_i32 s50, s3, {4*ostr}", "s_add_u32 s48, s48, s50")
    for b in range(4):
        for h in range(2):
            a.e(f"s_add_u32 s{SO_LIST[2*b+h]}, s48, {(b+256*h)*ostr}")
    a.e(f"v_and_b32 v{F_T}, 7, v{F_M}", "s_lshl_b32 s50, s3, 1", f"v_xor_b32 v{F_T+1}, s50, v{F_T}",
        f"v_lshlrev_b32 v{F_WR}, 4, v{F_T+1}", f"v_lshl_add_u32 v{F_WR}, v{F_M}, 7, v{F_WR}",
        f"v_lshl_add_u32 v{F_WR}, v{F_G}, 13, v{F_WR}")
    a.e(f"v_xor_b32 v{F_T+1}, v{F_G}, v{F_T}", f"v_lshlrev_b32 v{F_RD0}, 4, v{F_T+1}",
        f"v_lshl_add_u32 v{F_RD0}, v{F_M}, 7, v{F_RD0}", "s_lshl_b32 s50, s3, 13",
        f"v_add_u32 v{F_RD0}, s50, v{F_RD0}", f"v_xor_b32 v{F_RD1}, 64, v{F_RD0}")

def fft512_consts(a):
    T, TMP = F_T, F_TMP
    XS, XB = T, T+1
    a.e(f"v_cvt_f32_u32 v{XS}, v{F_M}", f"v_mul_f32 v{XS}, {f32hex(1/32)}, v{XS}",
        f"v_cvt_f32_u32 v{T+2}, v{F_G}", f"v_mul_f32 v{T+2}, 4.0, v{T+2}",
        f"v_mul_f32 v{XB}, v{T+2}, v{XS}")
    a.e(f"v_and_b32 v{F_MM}, 1, v{F_M}", f"v_mul_u32_u24 v{F_MM}, 0x8000, v{F_MM}",
        f"v_lshl_or_b32 v{F_MM}, v{F_MM}, 16, v{F_MM}", "s_mov_b32 s50, 0x80008000")
    for i in range(4):
        x = TMP; cs = TMP+1; sn = TMP+2; x2 = TMP+3; cs2 = TMP+4; sn2 = TMP+5
        a.e(f"v_fmamk_f32 v{x}, v{XS}, {f32hex(float(i))}, v{XB}" if i else f"v_mov_b32 v{x}, v{XB}")
        a.e(f"v_add_f32 v{x2}, v{x}, v{x}")
        a.e(f"v_cos_f32 v{cs}, v{x}", f"v_sin_f32 v{sn}, v{x}", f"v_cos_f32 v{cs2}, v{x2}", f"v_sin_f32 v{sn2}, v{x2}")
        a.e(f"v_cvt_pk_bf16_f32 v{F32RE+i}, v{cs}, v{sn}", f"v_cvt_pk_bf16_f32 v{F32IM+i}, -v{sn}, v{cs}",
            f"v_cvt_pk_bf16_f32 v{F16RE+i}, v{cs2}, v{sn2}", f"v_cvt_pk_bf16_f32 v{F16IM+i}, -v{sn2}, v{cs2}")
    for base in (F32RE, F32IM):
        for i in range(4):
            a.e(f"v_xor_b32 v{base+4+i}, v{F_MM}, v{base+i}")
        for t in range(2):
            for i in range(4):
                src = base+4*t+i
                if i & 1: a.e(f"v_xor_b32 v{base+8+4*t+i}, s50, v{src}")
                else:     a.e(f"v_mov_b32 v{base+8+4*t+i}, v{src}")
    a.e(f"v_cvt_f32_u32 v{TMP}, s3", f"v_mul_f32 v{TMP}, {f32hex(8/512)}, v{TMP}")
    for r in range(4):
        a.e(f"v_add_f32 v{TMP+4+r}, {f32hex(float(r)) if r else 0}, v{T+2}")
    for aa in range(8):
        a.e(f"v_add_f32 v{TMP+1}, {f32hex(aa/512) if aa else 0}, v{TMP}")
        for r in range(4):
            a.e(f"v_mul_f32 v{T+3+(r&1)}, v{TMP+1}, v{TMP+4+r}",
                f"v_cos_f32 v{F_TWC+4*aa+r}, v{T+3+(r&1)}", f"v_sin_f32 v{F_TWS+4*aa+r}, v{T+3+(r&1)}")

def fft512_compute(a, SOUT, neg_im, nafter, stmod, st0, fs=0, hook=None):
    TMP = F_TMP
    stamp(a, st0)
    for hh in range(2):
        fstamp(a, fs+5*hh)
        for aa in range(4):
            a.e(f"s_waitcnt vmcnt({28-16*hh-4*aa+nafter})")
            a.e(f"v_mfma_f32_16x16x32_bf16 {v(F_DRE+4*aa,4)}, {v(F16RE,4)}, {v(F_IN+16*hh+4*aa,4)}, 0",
                f"v_mfma_f32_16x16x32_bf16 {v(F_DIM+4*aa,4)}, {v(F16IM,4)}, {v(F_IN+16*hh+4*aa,4)}, 0")
        if hh == 1:
            stamp(a, st0+1)
            if hook: hook()
        fstamp(a, fs+5*hh+1)
        for aa in range(4):
            for p in range(2):
                re, im = F_DRE+4*aa+2*p, F_DIM+4*aa+2*p
                tc, ts = F_TWC+16*hh+4*aa+2*p, F_TWS+16*hh+4*aa+2*p
                t0, t1 = TMP+4*p, TMP+4*p+2
                a.e(f"v_pk_mul_f32 {v(t0,2)}, {v(re,2)}, {v(tc,2)}",
                    f"v_pk_mul_f32 {v(t1,2)}, {v(im,2)}, {v(tc,2)}",
                    f"v_pk_fma_f32 {v(t0,2)}, {v(im,2)}, {v(ts,2)}, {v(t0,2)}",
                    f"v_pk_fma_f32 {v(t1,2)}, {v(re,2)}, {v(ts,2)}, {v(t1,2)} neg_lo:[1,0,0] neg_hi:[1,0,0]")
                for e in range(2):
                    r = 2*p+e
                    a.e(f"v_cvt_pk_bf16_f32 v{F_P+4*r+aa}, v{t0+e}, v{t1+e}")
        fstamp(a, fs+5*hh+2)
        if hh == 1: a.e(f"v_xor_b32 v{F_WR}, 16, v{F_WR}")
        for r in range(4):
            a.e(f"ds_write_b128 v{F_WR}, {v(F_P+4*r,4)} offset:{r*2048}")
    a.e("s_waitcnt lgkmcnt(0)")
    fstamp(a, fs+8)
    a.e("s_barrier")
    fstamp(a, fs+9)
    for b in range(4):
        a.e(f"ds_read_b128 {v(F_IN+8*b,4)}, v{F_RD0} offset:{b*2048}",
            f"ds_read_b128 {v(F_IN+8*b+4,4)}, v{F_RD1} offset:{b*2048}")
    sg = "-" if neg_im else ""
    def mf(bb):
        D0 = [F_DRE, F_DIM] if bb == 0 else [F_TWC, F_TWC+16]
        for bl in range(2):
            b = 2*bb+bl
            a.e(f"s_waitcnt lgkmcnt({6-2*b})")
            for t in range(2):
                for h in range(2):
                    for (D_, F_) in ((D0[0], F32RE), (D0[1], F32IM)):
                        d = D_+8*bl+4*h
                        c = "0" if t == 0 else v(d, 4)
                        a.e(f"v_mfma_f32_16x16x32_bf16 {v(d,4)}, {v(F_IN+8*b+4*t,4)}, {v(F_+8*h+4*t,4)}, {c}")
    def st(bb):
        D0 = [F_DRE, F_DIM] if bb == 0 else [F_TWC, F_TWC+16]
        PB = F_P if bb == 0 else F_TWS
        out = []
        for bl in range(2):
            b = 2*bb+bl
            for h in range(2):
                idx = 8*bl+4*h
                for r in range(4):
                    out.append(f"v_cvt_pk_bf16_f32 v{PB+idx+r}, v{D0[0]+idx+r}, {sg}v{D0[1]+idx+r}")
                out.append(f"buffer_store_dwordx4 {v(PB+idx,4)}, v{F_OUTOFF}, s[{SOUT}:{SOUT+3}], s{SO_LIST[2*b+h]} offen {stmod}")
        return out
    mf(0)
    n0 = len(a.lines)
    mf(1)
    m1 = a.lines[n0:]; del a.lines[n0:]
    s0 = st(0)
    k = 0
    seen = 0
    for l in m1:
        a.lines.append(l)
        if "v_mfma" in l:
            seen += 1
            if seen > 4:
                for _ in range(2):
                    if k < len(s0): a.e(s0[k]); k += 1
    while k < len(s0): a.e(s0[k]); k += 1
    fstamp(a, fs+10)
    for l in st(1): a.e(l)

def f8_addr(a, s_sa, s_cb, orow, ostr):
    a.e(f"v_and_b32 v{F_M}, 15, v1", f"v_lshrrev_b32 v{F_G}, 4, v1")
    a.e(f"v_and_b32 v{F_T}, 7, v1", f"v_bfe_u32 v{F_T+1}, v1, 3, 1",
        f"v_lshlrev_b32 v{F_IN0}, 20, v{F_G}", f"v_lshl_add_u32 v{F_IN0}, v{F_T+1}, 15, v{F_IN0}",
        f"v_lshl_add_u32 v{F_IN0}, v{F_T}, 2, v{F_IN0}")
    a.e(f"s_lshl_b32 s48, s{s_sa}, 11", f"s_lshl_b32 s49, s{s_cb}, 5", "s_add_u32 s48, s48, s49",
        "s_lshl_b32 s50, s3, 16", "s_add_u32 s48, s48, s50")
    for aa in range(4):
        for i in range(4):
            a.e(f"s_add_u32 s{SI_OFF+4*aa+i}, s48, {(32*i+aa)*8192}")
    a.e(f"v_lshrrev_b32 v{F_T+2}, 1, v{F_G}", f"v_lshl_add_u32 v{F_T+2}, v{F_M}, 4, v{F_T+2}",
        f"s_mov_b32 s51, {ostr}", f"v_mul_lo_u32 v{F_OUTOFF}, v{F_T+2}, s51",
        f"v_and_b32 v{F_T+2}, 1, v{F_G}", f"v_lshl_add_u32 v{F_OUTOFF}, v{F_T+2}, 4, v{F_OUTOFF}")
    a.e(f"s_mul_i32 s48, s{s_sa}, {orow}", f"s_lshl_b32 s49, s{s_cb}, 5", "s_add_u32 s48, s48, s49",
        f"s_mul_i32 s50, s3, {4*ostr}", "s_add_u32 s48, s48, s50")
    for b in range(2):
        for h in range(2):
            a.e(f"s_add_u32 s{SO_LIST[2*b+h]}, s48, {(2*b+256*h)*ostr}")
    a.e("s_lshl_b32 s50, s3, 1", f"v_add_u32 v{F_T+2}, s50, v{F_T+1}", f"v_xor_b32 v{F_T+2}, v{F_T+2}, v{F_T}",
        f"v_lshlrev_b32 v{F_WR}, 4, v{F_T+2}", f"v_lshl_add_u32 v{F_WR}, v{F_T}, 7, v{F_WR}", f"v_lshl_add_u32 v{F_WR}, v{F_G}, 12, v{F_WR}")
    a.e(f"v_xor_b32 v{F_T+2}, v{F_G}, v{F_T}", f"v_lshlrev_b32 v{F_RD0}, 4, v{F_T+2}",
        f"v_lshl_add_u32 v{F_RD0}, v{F_T}, 7, v{F_RD0}", f"v_lshl_add_u32 v{F_RD0}, v{F_T+1}, 10, v{F_RD0}",
        "s_lshl_b32 s50, s3, 12", f"v_add_u32 v{F_RD0}, s50, v{F_RD0}", f"v_xor_b32 v{F_RD1}, 64, v{F_RD0}")

def f8_consts(a):
    T, TMP = F_T, F_TMP
    XS, XB = T, T+1
    a.e(f"v_cvt_f32_u32 v{XS}, v{F_M}", f"v_mul_f32 v{XS}, {f32hex(1/32)}, v{XS}",
        f"v_cvt_f32_u32 v{T+2}, v{F_G}", f"v_mul_f32 v{T+2}, 4.0, v{T+2}",
        f"v_mul_f32 v{XB}, v{T+2}, v{XS}")
    a.e(f"v_and_b32 v{F_MM}, 1, v{F_M}", f"v_mul_u32_u24 v{F_MM}, 0x8000, v{F_MM}",
        f"v_lshl_or_b32 v{F_MM}, v{F_MM}, 16, v{F_MM}", "s_mov_b32 s50, 0x80008000")
    for i in range(4):
        x = TMP; cs = TMP+1; sn = TMP+2; x2 = TMP+3; cs2 = TMP+4; sn2 = TMP+5
        a.e(f"v_fmamk_f32 v{x}, v{XS}, {f32hex(float(i))}, v{XB}" if i else f"v_mov_b32 v{x}, v{XB}")
        a.e(f"v_add_f32 v{x2}, v{x}, v{x}")
        a.e(f"v_cos_f32 v{cs}, v{x}", f"v_sin_f32 v{sn}, v{x}", f"v_cos_f32 v{cs2}, v{x2}", f"v_sin_f32 v{sn2}, v{x2}")
        a.e(f"v_cvt_pk_bf16_f32 v{F32RE+i}, v{cs}, v{sn}", f"v_cvt_pk_bf16_f32 v{F32IM+i}, -v{sn}, v{cs}",
            f"v_cvt_pk_bf16_f32 v{F16RE+i}, v{cs2}, v{sn2}", f"v_cvt_pk_bf16_f32 v{F16IM+i}, -v{sn2}, v{cs2}")
    for base in (F32RE, F32IM):
        for i in range(4):
            a.e(f"v_xor_b32 v{base+4+i}, v{F_MM}, v{base+i}")
        for t in range(2):
            for i in range(4):
                src = base+4*t+i
                if i & 1: a.e(f"v_xor_b32 v{base+8+4*t+i}, s50, v{src}")
                else:     a.e(f"v_mov_b32 v{base+8+4*t+i}, v{src}")
    a.e(f"v_bfe_u32 v{TMP}, v1, 3, 1", "s_lshl_b32 s50, s3, 1", f"v_add_u32 v{TMP}, s50, v{TMP}",
        f"v_cvt_f32_u32 v{TMP}, v{TMP}", f"v_mul_f32 v{TMP}, {f32hex(4/512)}, v{TMP}")
    for r in range(4):
        a.e(f"v_add_f32 v{TMP+4+r}, {f32hex(float(r)) if r else 0}, v{T+2}")
    for aa in range(4):
        a.e(f"v_add_f32 v{TMP+1}, {f32hex(aa/512) if aa else 0}, v{TMP}")
        for r in range(4):
            a.e(f"v_mul_f32 v{T+3+(r&1)}, v{TMP+1}, v{TMP+4+r}",
                f"v_cos_f32 v{F_TWC+4*aa+r}, v{T+3+(r&1)}", f"v_sin_f32 v{F_TWS+4*aa+r}, v{T+3+(r&1)}")

def f8_run(a, SIN, SOUT, ldmod, stmod):
    TMP = F_TMP
    for aa in range(4):
        for i in range(4):
            a.e(f"buffer_load_dword v{F_IN+4*aa+i}, v{F_IN0}, s[{SIN}:{SIN+3}], s{SI_OFF+4*aa+i} offen {ldmod}")
    fstamp(a, 3)
    for aa in range(4):
        a.e(f"s_waitcnt vmcnt({12-4*aa})")
        a.e(f"v_mfma_f32_16x16x32_bf16 {v(F_DRE+4*aa,4)}, {v(F16RE,4)}, {v(F_IN+4*aa,4)}, 0",
            f"v_mfma_f32_16x16x32_bf16 {v(F_DIM+4*aa,4)}, {v(F16IM,4)}, {v(F_IN+4*aa,4)}, 0")
    fstamp(a, 1)
    for aa in range(4):
        for p in range(2):
            re, im = F_DRE+4*aa+2*p, F_DIM+4*aa+2*p
            tc, ts = F_TWC+4*aa+2*p, F_TWS+4*aa+2*p
            t0, t1 = TMP+4*p, TMP+4*p+2
            a.e(f"v_pk_mul_f32 {v(t0,2)}, {v(re,2)}, {v(tc,2)}",
                f"v_pk_mul_f32 {v(t1,2)}, {v(im,2)}, {v(tc,2)}",
                f"v_pk_fma_f32 {v(t0,2)}, {v(im,2)}, {v(ts,2)}, {v(t0,2)}",
                f"v_pk_fma_f32 {v(t1,2)}, {v(re,2)}, {v(ts,2)}, {v(t1,2)} neg_lo:[1,0,0] neg_hi:[1,0,0]")
            for e in range(2):
                r = 2*p+e
                a.e(f"v_cvt_pk_bf16_f32 v{F_P+4*r+aa}, v{t0+e}, v{t1+e}")
    for r in range(4):
        a.e(f"ds_write_b128 v{F_WR}, {v(F_P+4*r,4)} offset:{r*1024}")
    a.e("s_waitcnt lgkmcnt(0)")
    fstamp(a, 8)
    a.e("s_barrier")
    fstamp(a, 9)
    for b in range(2):
        a.e(f"ds_read_b128 {v(F_IN+8*b,4)}, v{F_RD0} offset:{b*2048}",
            f"ds_read_b128 {v(F_IN+8*b+4,4)}, v{F_RD1} offset:{b*2048}")
    for b in range(2):
        a.e(f"s_waitcnt lgkmcnt({2-2*b})")
        for t in range(2):
            for h in range(2):
                for (D_, F_) in ((F_DRE, F32RE), (F_DIM, F32IM)):
                    d = D_+8*b+4*h
                    c = "0" if t == 0 else v(d, 4)
                    a.e(f"v_mfma_f32_16x16x32_bf16 {v(d,4)}, {v(F_IN+8*b+4*t,4)}, {v(F_+8*h+4*t,4)}, {c}")
    fstamp(a, 10)
    for b in range(2):
        for h in range(2):
            idx = 8*b+4*h
            for r in range(4):
                a.e(f"v_cvt_pk_bf16_f32 v{F_P+idx+r}, v{F_DRE+idx+r}, -v{F_DIM+idx+r}")
            a.e(f"buffer_store_dwordx4 {v(F_P+idx,4)}, v{F_OUTOFF}, s[{SOUT}:{SOUT+3}], s{SO_LIST[2*b+h]} offen {stmod}")

IDX, G_, VG, VGW, VRR, VHR, VST, VW = 2, 3, 6, 7, 8, 12, 13, 14
CRE, CIM, TWC, TWS, WR, WI, ARE, AIM, DF, GA, HRE, HIM, GB, TMP = 16, 32, 48, 64, 80, 96, 112, 128, 144, 160, 164, 168, 172, 188
W2R, W2I, SP, PF, PF2 = 204, 220, 236, 248, 252
LW = 32768; LSC = 16384; LW2 = 49152

def w_dma(a, SWR, SWI, s_rowoff, s_mirroff, s_ldsbase, vlane16):
    a.e(f"s_mov_b32 m0, s{s_ldsbase}", f"buffer_load_dwordx4 v{vlane16}, s[{SWR}:{SWR+3}], s{s_rowoff} offen lds" + NT())
    a.e(f"s_add_u32 s93, s{s_ldsbase}, 1024", "s_mov_b32 m0, s93", f"buffer_load_dwordx4 v{vlane16}, s[{SWI}:{SWI+3}], s{s_rowoff} offen lds" + NT())
    a.e(f"s_add_u32 s92, s{s_mirroff}, 2")
    a.e(f"s_add_u32 s93, s{s_ldsbase}, 2048", "s_mov_b32 m0, s93", f"buffer_load_dwordx4 v{vlane16}, s[{SWR}:{SWR+3}], s92 offen lds" + NT())
    a.e(f"s_add_u32 s93, s{s_ldsbase}, 3072", "s_mov_b32 m0, s93", f"buffer_load_dwordx4 v{vlane16}, s[{SWI}:{SWI+3}], s92 offen lds" + NT())

def pf_loads(a, SWR, SWI, s_rowoff, s_mirroff, dst, vt):
    a.e(f"v_mov_b32 v{vt}, s{s_mirroff}", f"v_mov_b32 v{vt+1}, s{s_rowoff}", f"v_add_u32 v{vt+1}, 1024, v{vt+1}")
    a.e(f"buffer_load_short_d16_hi v{dst}, v{vt}, s[{SWR}:{SWR+3}], 0 offen",
        f"buffer_load_short_d16_hi v{dst+1}, v{vt}, s[{SWI}:{SWI+3}], 0 offen",
        f"buffer_load_short_d16_hi v{dst+2}, v{vt+1}, s[{SWR}:{SWR+3}], 0 offen",
        f"buffer_load_short_d16_hi v{dst+3}, v{vt+1}, s[{SWI}:{SWI+3}], 0 offen")

def w_lds_reads(a, vlo, vhi, dr, di):
    for (dst, o) in ((dr, 0), (di, 1024)):
        for r in range(16):
            e = eidx(r)
            if r < 8: a.e(f"ds_read_u16_d16_hi v{dst+r}, v{vlo} offset:{o+64*e}")
            else:     a.e(f"ds_read_u16_d16_hi v{dst+r}, v{vhi} offset:{o+64*(27-e)}")

def fix_w(a, dr, di, pf):
    a.e("v_cmp_eq_u32 vcc, 0, v1")
    for (r, o) in ((0, 0), (8, 2)):
        a.e(f"v_add_f32 v{TMP}, v{dr+r}, v{pf+o}", f"v_mul_f32 v{TMP}, 0.5, v{TMP}",
            f"v_sub_f32 v{TMP+1}, v{di+r}, v{pf+o+1}", f"v_mul_f32 v{TMP+1}, 0.5, v{TMP+1}",
            f"v_cndmask_b32 v{dr+r}, v{dr+r}, v{TMP}, vcc", f"v_cndmask_b32 v{di+r}, v{di+r}, v{TMP+1}, vcc")

def fft1024(a, mid=None):
    for t in range(4):
        c0 = "0" if t == 0 else v(ARE, 16); c1 = "0" if t == 0 else v(AIM, 16)
        a.e(f"v_mfma_f32_32x32x16_bf16 {v(ARE,16)}, {v(DF+4*t,4)}, {v(CRE+4*t,4)}, {c0}",
            f"v_mfma_f32_32x32x16_bf16 {v(AIM,16)}, {v(DF+4*t,4)}, {v(CIM+4*t,4)}, {c1}")
    for p in range(8):
        re, im, tc, ts = ARE+2*p, AIM+2*p, TWC+2*p, TWS+2*p
        t0 = TMP+4*(p & 1); t1 = t0+2
        a.e(f"v_pk_mul_f32 {v(t0,2)}, {v(re,2)}, {v(tc,2)}",
            f"v_pk_mul_f32 {v(t1,2)}, {v(im,2)}, {v(tc,2)}",
            f"v_pk_fma_f32 {v(t0,2)}, {v(im,2)}, {v(ts,2)}, {v(t0,2)}",
            f"v_pk_fma_f32 {v(t1,2)}, {v(re,2)}, {v(ts,2)}, {v(t1,2)} neg_lo:[1,0,0] neg_hi:[1,0,0]")
        for e in range(2):
            a.e(f"v_cvt_pk_bf16_f32 v{DF+2*p+e}, v{t0+e}, v{t1+e}")
    for t in range(4):
        if mid and t == 1: mid()
        c0 = "0" if t == 0 else v(ARE, 16); c1 = "0" if t == 0 else v(AIM, 16)
        a.e(f"v_mfma_f32_32x32x16_bf16 {v(ARE,16)}, {v(CRE+4*t,4)}, {v(DF+4*t,4)}, {c0}",
            f"v_mfma_f32_32x32x16_bf16 {v(AIM,16)}, {v(CIM+4*t,4)}, {v(DF+4*t,4)}, {c1}")

def a2_consts(a, sT):
    a.e(f"v_and_b32 v{IDX}, 31, v1", f"v_lshrrev_b32 v{G_}, 5, v1")
    XS, XB = TMP, TMP+1
    a.e(f"v_cvt_f32_u32 v{TMP+2}, v{IDX}", f"v_cvt_f32_u32 v{TMP+3}, v{G_}", f"v_mul_f32 v{TMP+3}, 4.0, v{TMP+3}",
        f"v_mul_f32 v{XS}, {f32hex(1/32)}, v{TMP+2}", f"v_mul_f32 v{XB}, v{TMP+3}, v{XS}")
    a.e(f"v_and_b32 v{TMP+4}, 1, v{IDX}", f"v_mul_u32_u24 v{TMP+4}, 0x8000, v{TMP+4}", f"v_lshl_or_b32 v{TMP+4}, v{TMP+4}, 16, v{TMP+4}")
    for t in range(2):
        for i in range(4):
            c = float(8*t+i); x = TMP+5+3*(i & 1)
            a.e(f"v_fmamk_f32 v{x}, v{XS}, {f32hex(c)}, v{XB}" if c else f"v_mov_b32 v{x}, v{XB}")
            a.e(f"v_cos_f32 v{x+1}, v{x}", f"v_sin_f32 v{x+2}, v{x}")
            a.e(f"v_cvt_pk_bf16_f32 v{CRE+4*t+i}, v{x+1}, v{x+2}", f"v_cvt_pk_bf16_f32 v{CIM+4*t+i}, -v{x+2}, v{x+1}")
    for base in (CRE, CIM):
        for i in range(8):
            a.e(f"v_xor_b32 v{base+8+i}, v{TMP+4}, v{base+i}")
    a.e(f"v_mul_f32 v{XS}, {f32hex(1/1024)}, v{TMP+2}", f"v_mul_f32 v{XB}, v{TMP+3}, v{XS}")
    for r in range(16):
        c = float(eidx(r)); x = TMP+5+(r & 1)
        a.e(f"v_fmamk_f32 v{x}, v{XS}, {f32hex(c)}, v{XB}" if c else f"v_mov_b32 v{x}, v{XB}")
        a.e(f"v_cos_f32 v{TWC+r}, v{x}", f"v_sin_f32 v{TWS+r}, v{x}")
    LO, HI, Q, AV, XA0, XA1, E0, E1 = TMP, TMP+1, TMP+2, TMP+3, TMP+4, TMP+5, TMP+6, TMP+7
    JF, KEY, T2, PO, PAR, N16, G4, CS = [TMP+8+i for i in range(8)]
    Lspec, Ldone = newlbl("ghspec"), newlbl("ghdone")
    a.e(f"v_and_b32 v{LO}, 3, v{IDX}", f"v_bfe_u32 v{HI}, v{IDX}, 2, 2")
    a.e(f"v_and_b32 v{N16}, 15, v1", f"v_lshrrev_b32 v{G4}, 4, v1")
    a.e(f"s_cmp_eq_u32 s{sT}, 0", f"s_cbranch_scc1 {Lspec}")
    a.e(f"v_cvt_f32_u32 v{T2}, s{sT}", f"v_cvt_f32_u32 v{JF}, v{HI}", f"v_fmamk_f32 v{JF}, v{JF}, {f32hex(512.0)}, v{T2}",
        f"v_mul_f32 v{JF}, {f32hex(1/2048)}, v{JF}",
        f"v_cvt_f32_u32 v{XA0}, v{G_}", f"v_add_f32 v{XA0}, v{XA0}, v{XA0}", f"v_add_f32 v{XA1}, 1.0, v{XA0}",
        f"v_mul_f32 v{XA0}, v{XA0}, v{JF}", f"v_mul_f32 v{XA1}, v{XA1}, v{JF}",
        f"v_lshlrev_b32 v{Q}, 3, v{LO}", "s_mov_b32 s50, 0x4631914C", f"v_lshrrev_b32 v{Q}, v{Q}, s50",
        f"v_mov_b32 v{AV}, 0.5", f"v_cmp_gt_u32 vcc, 16, v{IDX}", f"v_cndmask_b32 v{AV}, 0, v{AV}, vcc")
    for jj2 in range(4):
        for e in range(2):
            jj = 2*jj2+e
            xa = XA1 if jj >> 2 else XA0
            a.e(f"v_bfe_u32 v{E0+e}, v{Q}, {2*(jj&3)}, 2", f"v_cvt_f32_u32 v{E0+e}, v{E0+e}",
                f"v_fmamk_f32 v{E0+e}, v{E0+e}, {f32hex(0.25)}, v{xa}", f"v_cos_f32 v{E0+e}, v{E0+e}",
                f"v_mul_f32 v{E0+e}, v{E0+e}, v{AV}")
        a.e(f"v_cvt_pk_bf16_f32 v{GA+jj2}, v{E0}, v{E1}")
    a.e(f"v_bfe_u32 v{HI}, v{N16}, 1, 2", f"v_cvt_f32_u32 v{KEY}, v{HI}", f"v_mul_f32 v{KEY}, {f32hex(1/2048)}, v{KEY}",
        f"v_and_b32 v{JF}, 1, v{G4}", f"v_cvt_f32_u32 v{JF}, v{JF}", f"v_fmamk_f32 v{JF}, v{JF}, {f32hex(1024.0)}, v{T2}",
        f"v_add_f32 v{XA1}, {f32hex(512.0)}, v{JF}", f"v_mul_f32 v{XA0}, v{JF}, v{KEY}", f"v_mul_f32 v{XA1}, v{XA1}, v{KEY}",
        f"v_lshrrev_b32 v{CS}, 1, v{G4}", f"v_lshrrev_b32 v{AV}, 3, v{N16}", f"v_cmp_eq_u32 vcc, v{CS}, v{AV}",
        f"v_mov_b32 v{AV}, {f32hex(2.0**-21)}", f"v_cndmask_b32 v{AV}, 0, v{AV}, vcc",
        f"v_and_b32 v{PO}, 1, v{N16}")
    for part, Hd in ((0, HRE), (1, HIM)):
        w0, w1 = (0x1C, 0xBC) if part == 0 else (0x61, 0x6B)
        a.e(f"v_mov_b32 v{Q}, {w0}", f"v_mov_b32 v{PAR}, {w1}", f"v_cmp_eq_u32 vcc, 1, v{PO}", f"v_cndmask_b32 v{Q}, v{Q}, v{PAR}, vcc")
        for jj2 in range(4):
            for e in range(2):
                jj = 2*jj2+e
                xa = XA1 if jj >> 2 else XA0
                a.e(f"v_bfe_u32 v{E0+e}, v{Q}, {2*(jj&3)}, 2", f"v_cvt_f32_u32 v{E0+e}, v{E0+e}",
                    f"v_fmamk_f32 v{E0+e}, v{E0+e}, {f32hex(0.25)}, v{xa}", f"v_cos_f32 v{E0+e}, v{E0+e}",
                    f"v_mul_f32 v{E0+e}, v{E0+e}, v{AV}")
            a.e(f"v_cvt_pk_bf16_f32 v{Hd+jj2}, v{E0}, v{E1}")
    a.e(f"s_branch {Ldone}")
    a.label(Lspec)
    a.e(f"v_and_b32 v{PO}, 1, v{LO}", f"v_lshrrev_b32 v{PAR}, 1, v{LO}")
    a.e(f"v_lshlrev_b32 v{JF}, 2, v{HI}", "s_mov_b32 s50, 0x3120", f"v_lshrrev_b32 v{JF}, v{JF}, s50", f"v_and_b32 v{JF}, 15, v{JF}",
        f"v_lshlrev_b32 v{JF}, 8, v{JF}", f"v_lshlrev_b32 v{T2}, 10, v{PO}",
        f"v_cmp_eq_u32 vcc, 0, v{HI}", f"v_cndmask_b32 v{JF}, v{JF}, v{T2}, vcc", f"v_mov_b32 v{T2}, 0",
        f"v_cndmask_b32 v{Q}, v{PO}, v{T2}, vcc",
        f"v_cvt_f32_u32 v{JF}, v{JF}", f"v_mul_f32 v{JF}, {f32hex(1/2048)}, v{JF}",
        f"v_cvt_f32_u32 v{Q}, v{Q}", f"v_mul_f32 v{Q}, {f32hex(0.25)}, v{Q}",
        f"v_cvt_f32_u32 v{XA0}, v{G_}", f"v_add_f32 v{XA0}, v{XA0}, v{XA0}", f"v_add_f32 v{XA1}, 1.0, v{XA0}",
        f"v_fma_f32 v{XA0}, v{XA0}, v{JF}, v{Q}", f"v_fma_f32 v{XA1}, v{XA1}, v{JF}, v{Q}",
        f"v_cos_f32 v{XA0}, v{XA0}", f"v_cos_f32 v{XA1}, v{XA1}",
        f"v_lshrrev_b32 v{KEY}, 1, v{HI}", f"v_lshl_add_u32 v{KEY}, v{KEY}, 1, v{PAR}",
        f"v_lshrrev_b32 v{T2}, 4, v{IDX}", f"v_lshl_add_u32 v{KEY}, v{T2}, 2, v{KEY}", f"v_mov_b32 v{T2}, 0")
    for jj2 in range(4):
        for e in range(2):
            jj = 2*jj2+e
            xa = XA1 if jj >> 2 else XA0
            a.e(f"v_cmp_eq_u32 vcc, {jj&3}, v{KEY}", f"v_cndmask_b32 v{E0+e}, v{T2}, v{xa}, vcc")
        a.e(f"v_cvt_pk_bf16_f32 v{GA+jj2}, v{E0}, v{E1}")
    SAF, GS = JF, PAR
    a.e(f"v_bfe_u32 v{HI}, v{N16}, 1, 2", f"v_cvt_f32_u32 v{SAF}, v{HI}", f"v_mul_f32 v{SAF}, {f32hex(1/2048)}, v{SAF}",
        f"v_and_b32 v{GS}, 1, v{G4}", f"v_and_b32 v{PO}, 1, v{N16}",
        f"v_lshrrev_b32 v{CS}, 1, v{G4}", f"v_lshrrev_b32 v{T2}, 3, v{N16}",
        f"v_cmp_eq_u32 s[44:45], v{CS}, v{T2}", f"v_cmp_eq_u32 s[46:47], v{GS}, v{PO}", "s_and_b64 s[44:45], s[44:45], s[46:47]",
        f"v_cmp_eq_u32 s[46:47], 0, v{GS}")
    for part, Hd in ((0, HRE), (1, HIM)):
        for jj in range(8):
            sl, par, pi = jj >> 2, (jj >> 1) & 1, jj & 1
            e = E0 + (jj & 1)
            if par != part:
                a.e(f"v_mov_b32 v{e}, 0")
            else:
                if sl == 0:
                    j0, q0, a0 = 1024.0*pi, 0.5*pi, 2.0**-21
                    j1, q1, a1 = 256.0, 0.75*pi, 2.0**-20
                else:
                    j0, q0, a0 = 512.0, 0.75*pi, 2.0**-20
                    j1, q1, a1 = 768.0, 0.75*pi, 2.0**-20
                def sel(dst, x0, x1):
                    a.e(f"v_mov_b32 v{dst}, {f32hex(x1)}", f"v_mov_b32 v{AV}, {f32hex(x0)}", f"v_cndmask_b32 v{dst}, v{dst}, v{AV}, s[46:47]")
                sel(XA0, j0, j1); sel(XA1, q0 + 0.5*part, q1 + 0.5*part)
                a.e(f"v_fma_f32 v{XA0}, v{XA0}, v{SAF}, v{XA1}", f"v_cos_f32 v{XA0}, v{XA0}")
                sel(XA1, a0, a1)
                a.e(f"v_mul_f32 v{XA0}, v{XA0}, v{XA1}", f"v_mov_b32 v{XA1}, 0", f"v_cndmask_b32 v{e}, v{XA1}, v{XA0}, s[44:45]")
            if jj & 1: a.e(f"v_cvt_pk_bf16_f32 v{Hd+(jj>>1)}, v{E0}, v{E1}")
    a.label(Ldone)
    a.e("s_nop 1")


BT_S0, BT_S1, BT_S2, BT_S3 = 52, 56, 60, 64
BT_SOFF = ["0", "s68", "s69", "s70", "s71", "s76", "s77", "s78"]
BT_ROW, BT_CH, BT_MASK = 48, 49, 50
def bt_setup(a):
    a.e(f"s_lshl_b32 s{BT_ROW}, s{sSUBT}, 7", "s_lshl_b32 s51, s3, 5", f"s_add_u32 s{BT_ROW}, s{BT_ROW}, s51", f"s_lshl_b32 s{BT_CH}, s{sCBKT}, 6")
    for i in range(1, 8): a.e(f"s_mov_b32 {BT_SOFF[i]}, {4096*i}")
    a.e(f"s_mov_b32 s{BT_MASK}, 0xffff0000")

def scratch_addr(a, vdst, vcg, vrg):
    a.e(f"s_lshl_b32 s51, s{sSUBT}, 7", "s_lshr_b32 s92, s3, 1", "s_add_u32 s51, s51, s92", "s_lshl_b32 s51, s51, 12",
        f"s_lshl_b32 s92, s{sCBKT}, 7", "s_add_u32 s51, s51, s92", "s_and_b32 s92, s3, 1", "s_lshl_b32 s92, s92, 6", "s_add_u32 s51, s51, s92",
        "s_add_u32 s51, s51, 2048",
        f"v_lshlrev_b32 v{vdst}, 15, v{vcg}", f"v_lshl_add_u32 v{vdst}, v{vrg}, 4, v{vdst}", f"v_add_u32 v{vdst}, s51, v{vdst}")
SCR_SOFF = ["0", "s69", "s71", "s77"]

def emit_B1(a, shadow=None, hook=None, post_mode=None, after_stores=None, nafter=0):
    SK, SV, SSH, SKVT = BT_S0, BT_S1, BT_S2, BT_S3
    srd(a, SK, P_K, P_K+1, 4*MB); srd(a, SV, P_V, P_V+1, 4*MB); srd(a, SSH, P_SHK, P_SHK+1, 8192); srd(a, SKVT, P_OUT, P_OUT+1, 8*MB)
    bt_setup(a)
    soff = BT_SOFF; M = BT_MASK
    CG, RG, S0, CH0, VOFF, VH, VST, VSH = 2, 3, 4, 5, 6, 7, 8, 9
    a.e(f"v_and_b32 v{CG}, 15, v1", f"v_lshrrev_b32 v{RG}, 4, v1",
        f"v_lshl_add_u32 v{S0}, v{RG}, 3, s{BT_ROW}", f"v_lshl_add_u32 v{CH0}, v{CG}, 2, s{BT_CH}",
        f"v_lshlrev_b32 v{VOFF}, 11, v{S0}", f"v_lshl_add_u32 v{VOFF}, v{CH0}, 1, v{VOFF}",
        f"v_subrev_u32 v{VH}, 6144, v{VOFF}",
        f"v_lshlrev_b32 v{VSH}, 3, v{CH0}")
    scratch_addr(a, VST, CG, RG)
    KR, VR, SHR, KF, SHF, KV, TM, PK = 16, 38, 54, 64, 108, 124, 156, 16
    if OPT["bactwait"] and OPT["b1all"]:
        Lw = newlbl("bw")
        a.e(f"s_cmp_eq_u32 s{sACT}, 0", f"s_cbranch_scc1 {Lw}", "s_waitcnt lgkmcnt(0)")
        a.label(Lw)
    if OPT["earlypub"]:
        Lp = newlbl("epub")
        a.e("s_cmp_lg_u32 s3, 0", f"s_cbranch_scc1 {Lp}")
        fin_epoch(a); loc_publish(a)
        a.label(Lp)
    a.e(f"buffer_load_dwordx4 {v(SHR,4)}, v{VSH}, s[{SSH}:{SSH+3}], 0 offen",
        f"buffer_load_dwordx4 {v(SHR+4,4)}, v{VSH}, s[{SSH}:{SSH+3}], 0 offen offset:16")
    for i in range(3):
        a.e(f"buffer_load_dwordx2 {v(KR+2*i,2)}, v{VH}, s[{SK}:{SK+3}], {soff[i>>1]} offen" + (" offset:2048" if i & 1 else "") + (NT() if OPT["ntk"] else ""))
    for i in range(8):
        a.e(f"buffer_load_dwordx2 {v(KR+6+2*i,2)}, v{VOFF}, s[{SK}:{SK+3}], {soff[i>>1]} offen" + (" offset:2048" if i & 1 else "") + (NT() if OPT["ntk"] else ""))
    for i in range(8):
        a.e(f"buffer_load_dwordx2 {v(VR+2*i,2)}, v{VOFF}, s[{SV}:{SV+3}], {soff[i>>1]} offen" + (" offset:2048" if i & 1 else "") + NT())
    stamp(a, 2)
    if OPT["earlypub"]:
        Lq = newlbl("epub2")
        a.e("s_cmp_eq_u32 s3, 0", f"s_cbranch_scc1 {Lq}")
        fin_epoch(a)
        a.label(Lq)
    else:
        fin_epoch(a)
        loc_publish(a)
    if shadow: shadow()
    def wv(n, extra):
        if extra and not OPT["earlypub"]:
            L = newlbl("wv")
            a.e(f"s_cbranch_scc1 {L}", f"s_waitcnt vmcnt({n})")
            a.label(L)
            a.e(f"s_waitcnt vmcnt({n+extra})")
        elif extra == 2 and OPT["earlypub"]:
            L = newlbl("wv")
            a.e(f"s_cbranch_scc1 {L}", f"s_waitcnt vmcnt({n})")
            a.label(L)
            a.e(f"s_waitcnt vmcnt({n+1})")
        else:
            a.e(f"s_waitcnt vmcnt({n})")
    a.e("s_cmp_eq_u32 s3, 0")
    wv(19, 1)
    for ch in range(4):
        for j in range(4):
            src = SHR + 2*ch + (j >> 1)
            if j & 1: a.e(f"v_and_b32 v{SHF+4*j+ch}, s{M}, v{src}")
            else:     a.e(f"v_lshlrev_b32 v{SHF+4*j+ch}, 16, v{src}")
    for i in range(11):
        wv(18-i, 1)
        for hf in range(2):
            a.e(f"v_lshlrev_b32 v{KF+4*i+2*hf}, 16, v{KR+2*i+hf}", f"v_and_b32 v{KF+4*i+2*hf+1}, s{M}, v{KR+2*i+hf}")
    loc_issue(a, 10)
    a.e("s_cmp_eq_u32 s3, 0")
    for i in range(8):
        wv(7-i, 2)
        if i == 7 and hook: hook()
        for hf in range(2):
            a.e(f"v_lshlrev_b32 v{TM+2*hf}, 16, v{VR+2*i+hf}", f"v_and_b32 v{TM+2*hf+1}, s{M}, v{VR+2*i+hf}")
        for hf in range(2):
            acc = KV+4*i+2*hf
            a.e(f"v_pk_mul_f32 {v(acc,2)}, {v(KF+4*(i+3)+2*hf,2)}, {v(SHF+2*hf,2)}")
            for j in range(1, 4):
                a.e(f"v_pk_fma_f32 {v(acc,2)}, {v(KF+4*(i+3-j)+2*hf,2)}, {v(SHF+4*j+2*hf,2)}, {v(acc,2)}")
            a.e(f"v_pk_mul_f32 {v(acc,2)}, {v(acc,2)}, {v(TM+2*hf,2)}")
    stamp(a, 3)
    for ch in range(4):
        for m in range(4):
            a.e(f"v_cvt_pk_bf16_f32 v{PK+4*ch+m}, v{KV+4*(7-2*m)+ch}, v{KV+4*(6-2*m)+ch}")
    sts = [f"buffer_store_dwordx4 {v(PK+4*ch,4)}, v{VST}, s[{SKVT}:{SKVT+3}], {SCR_SOFF[ch]} offen" for ch in range(4)]
    if OPT["twoflag"]:
        for l in sts: a.e(l + (" nt" if OPT["ntscr"] else ""))
        stamp(a, 4)
        a.e(f"s_lshl_b32 s51, s{sCBKT}, 4", f"s_add_u32 s51, s51, s{sSUBT}", f"s_lshl_b32 s51, s51, {FB()}", f"s_add_u32 s92, s51, {SY_B1}")
        La = newlbl("siga")
        a.e("s_waitcnt vmcnt(0)", "s_barrier", "s_cmp_lg_u32 s3, 0", f"s_cbranch_scc1 {La}",
            "v_mov_b32 v14, s92", f"v_mov_b32 v15, s{S_TGT}", "s_mov_b64 exec, 1",
            f"buffer_store_dword v15, v14, s[{S_SYN}:{S_SYN+3}], 0 offen", "s_mov_b64 exec, -1")
        a.label(La)
        if after_stores: after_stores()
        loc_resolve(a, 10, nafter=nafter + 1 if after_stores else 1)
        Lo = newlbl("opt")
        a.e(f"s_cmp_lg_u32 s{sLOC}, 0", f"s_cbranch_scc1 {Lo}", "s_waitcnt vmcnt(0)")
        for l in sts: a.e(l + " sc1")
        a.e(f"s_add_u32 s51, s51, {SY_B1B}")
        signal(a, 51, 14)
        a.label(Lo)
        return
    if OPT["optst"]:
        for l in sts: a.e(l)
        if after_stores: after_stores()
        loc_resolve(a, 10, nafter=nafter)
        Lo = newlbl("opt")
        a.e(f"s_cmp_lg_u32 s{sLOC}, 0", f"s_cbranch_scc1 {Lo}", "s_waitcnt vmcnt(0)")
        for l in sts: a.e(l + " sc1")
        a.e("s_waitcnt vmcnt(0)")
        a.label(Lo)
    else:
        loc_resolve(a, 10)
        dual_store(a, sts)
    stamp(a, 4)
    a.e(f"s_lshl_b32 s51, s{sCBKT}, 4", f"s_add_u32 s51, s51, s{sSUBT}", f"s_lshl_b32 s51, s51, {FB()}", f"s_add_u32 s51, s51, {SY_B1}")
    signal(a, 51, 14, nafter=nafter, bloc=True)

B3_QR, B3_VQ, B3_VT, B3_VO = 208, 224, 225, 226
def emit_B3_pre(a):
    SQ, STT, SOUT = BT_S0, BT_S1, BT_S2
    srd(a, SQ, P_Q, P_Q+1, 4*MB); srd(a, SOUT, P_OUT, P_OUT+1, 8*MB)
    bt_setup(a)
    t = 227
    a.e(f"v_and_b32 v{t}, 15, v1", f"v_lshrrev_b32 v{t+1}, 4, v1",
        f"v_lshl_add_u32 v{t+1}, v{t+1}, 3, s{BT_ROW}", f"v_lshl_add_u32 v{t}, v{t}, 2, s{BT_CH}",
        f"v_lshlrev_b32 v{B3_VQ}, 11, v{t+1}", f"v_lshl_add_u32 v{B3_VQ}, v{t}, 1, v{B3_VQ}",
        f"v_lshlrev_b32 v{B3_VO}, 12, v{t+1}", f"v_lshl_add_u32 v{B3_VO}, v{t}, 1, v{B3_VO}", f"v_add_u32 v{B3_VO}, 2048, v{B3_VO}")
    a.e(f"v_and_b32 v{t}, 15, v1", f"v_lshrrev_b32 v{t+1}, 4, v1")
    scratch_addr(a, B3_VT, t, t+1)
    for i in range(8):
        a.e(f"buffer_load_dwordx2 {v(B3_QR+2*i,2)}, v{B3_VQ}, s[{SQ}:{SQ+3}], {BT_SOFF[i>>1]} offen" + (" offset:2048" if i & 1 else "") + NT())

def emit_B3(a):
    SQ, STT, SOUT = BT_S0, BT_S1, BT_S2
    soff = BT_SOFF; M = BT_MASK
    TR, TF, QF = 16, 48, 80
    a.e(f"s_mov_b32 s{M}, 0xffff0000")
    a.e(f"s_lshl_b32 s51, s{sCBKT}, {4+FB()}", f"s_add_u32 s51, s51, {SY_B2}",
        "v_and_b32 v12, 15, v1", f"v_lshlrev_b32 v12, {FB()}, v12", "v_add_u32 v12, s51, v12")
    a.e("s_waitcnt vmcnt(0)")
    for e in range(8):
        qf = QF + 4*e
        for hf in range(2):
            a.e(f"v_lshlrev_b32 v{qf+2*hf}, 16, v{B3_QR+2*e+hf}", f"v_and_b32 v{qf+2*hf+1}, s{M}, v{B3_QR+2*e+hf}")
    wait_flags(a, 12, 1, 13, 51)
    stamp(a, 10)
    for ch in range(4):
        a.e(f"buffer_load_dwordx4 {v(TR+4*ch,4)}, v{B3_VT}, s[{SOUT}:{SOUT+3}], {SCR_SOFF[ch]} offen" + LDL())
    for ch in range(4):
        a.e(f"s_waitcnt vmcnt({3-ch})")
        for e in range(8):
            src = TR+4*ch+(e >> 1)
            if e & 1: a.e(f"v_and_b32 v{TF+4*e+ch}, s{M}, v{src}")
            else:     a.e(f"v_lshlrev_b32 v{TF+4*e+ch}, 16, v{src}")
    a.e("s_barrier")
    for e in range(8):
        qf = QF + 4*e
        for hf in range(2):
            a.e(f"v_pk_mul_f32 {v(qf+2*hf,2)}, {v(qf+2*hf,2)}, {v(TF+4*e+2*hf,2)}")
        pk = 112+2*e
        for hf in range(2):
            a.e(f"v_cvt_pk_bf16_f32 v{pk+hf}, v{qf+2*hf}, v{qf+2*hf+1}")
        a.e(f"buffer_store_dwordx2 {v(pk,2)}, v{B3_VO}, s[{SOUT}:{SOUT+3}], {soff[e]} offen" + NTO())

def gen_A(a):
    SX, SI1, SWR, SWI, SI2, SOUT = 32, 36, 80, 84, 32, 36
    a.e(f"s_setprio {OPT['prioA']}") if OPT['prioA'] else None
    sT, sSA, sCB, sJ, sJM, sJP, sJQ, sTL = 40, 41, 42, 43, 72, 73, 74, 44
    def rows():
        srd(a, SI1, P_WS, P_WS+1, 4*MB, add=WS_I1)
        srd(a, SWR, P_WR, P_WR+1, WBYTES); srd(a, SWI, P_WI, P_WI+1, WBYTES)
        Lr = newlbl("reg")
        a.e("s_lshl_b32 s47, s3, 9", f"s_add_u32 s{sJ}, s{sT}, s47", f"s_mov_b32 s{sJP}, s{sT}", f"s_sub_u32 s{sJQ}, 512, s{sT}",
            f"s_cmp_lg_u32 s{sT}, 0", f"s_cbranch_scc1 {Lr}",
            f"s_mov_b32 s{sJQ}, 256", "s_lshl_b32 s47, s3, 2", "s_lshr_b32 s46, 0x3120, s47", "s_and_b32 s46, s46, 15", f"s_lshl_b32 s{sJ}, s46, 8")
        a.label(Lr)
        a.e(f"s_sub_u32 s{sJM}, 2048, s{sJ}", f"s_and_b32 s{sJM}, s{sJM}, 2047",
            f"s_mul_i32 s{sJ}, s{sJ}, 1026", f"s_mul_i32 s{sJM}, s{sJM}, 1026")
        a.e(f"s_or_b32 s75, s{sT}, s3")
    def wstage():
        a.e("v_lshlrev_b32 v243, 4, v1", "s_lshl_b32 s46, s3, 12", f"s_add_u32 s46, s46, {LW}")
        w_dma(a, SWR, SWI, sJ, sJM, 46, 243)
        pf_loads(a, SWR, SWI, sJ, sJM, PF, 244)
        if not OPT["spec2"]: wstage2()
    def wstage2():
        Ln = newlbl("now2")
        a.e("s_cmp_lg_u32 s75, 0", f"s_cbranch_scc1 {Ln}")
        a.e("v_lshlrev_b32 v243, 4, v1", f"s_mov_b32 s47, {1024*1026}", f"s_mov_b32 s46, {LW2}")
        w_dma(a, SWR, SWI, 47, 47, 46, 243)
        pf_loads(a, SWR, SWI, 47, 47, PF2, 244)
        a.label(Ln)
    a.e(f"s_mov_b32 s{sT}, s{sCU}")
    stamp(a, 0, True); stamp(a, 1)
    Lp1 = newlbl("nop1")
    a.e(f"s_cmp_eq_u32 s{sACT}, 0", f"s_cbranch_scc1 {Lp1}_in")
    if OPT["pA1a"] >= 0: a.e(f"s_setprio {OPT['pA1a']}")
    srd(a, SX, P_X, P_X+1, 4*MB)
    a.e(f"s_lshr_b32 s48, s{sT}, 4", f"s_and_b32 s49, s{sT}, 7",
        f"s_lshr_b32 s{sSA}, s48, 2", "s_bfe_u32 s50, s48, 0x10001", "s_lshl_b32 s50, s50, 3", "s_add_u32 s50, s50, s49",
        "s_lshl_b32 s50, s50, 1", "s_and_b32 s51, s48, 1", f"s_add_u32 s{sCB}, s50, s51",
        "s_lshl_b32 s48, s48, 3", f"s_add_u32 s{sTL}, s48, s49")
    fft512_addr(a, sSA, sCB)
    fft512_loads(a, SX, NT() if OPT["ntx"] else "")
    stamp(a, 12)
    rows()
    if OPT["spec2"]: wstage2()
    fft512_addr2(a, sSA, sCB, 2048, 8192)
    fft512_consts(a)
    fft512_compute(a, SI1, False, 0, "sc1", 2, hook=None if OPT["wlate"] else wstage)
    stamp(a, 4)
    a.e(f"s_lshl_b32 s48, s{sTL}, {FA()}", f"s_add_u32 s48, s48, {SY_A1}")
    fin_epoch(a)
    signal(a, 48, F_TMP)
    a.e(f"s_branch {Lp1}")
    a.label(f"{Lp1}_in")
    if OPT["pA1i"] >= 0: a.e(f"s_setprio {OPT['pA1i']}")
    stamp(a, 12)
    if OPT["b1all"]:
        rows()
        fin_epoch(a)
        if not OPT["wlate"]: wstage()
    else:
        emit_B1(a, shadow=rows, hook=None if OPT["wlate"] else wstage)
    a.label(Lp1)
    if OPT["pA1i"] >= 0 or OPT["pA1a"] >= 0: a.e(f"s_setprio {OPT['prioA']}")
    stamp(a, 5)
    if OPT["wlate"] == 2: wstage()
    srd(a, SI2, P_WS, P_WS+1, 4*MB, add=WS_I2)
    a2_consts(a, sT)
    a.e(f"v_lshl_add_u32 v{TMP}, v{G_}, 7, v{IDX}",
        "s_lshl_b32 s48, s3, 12", f"s_add_u32 s48, s48, {LW}",
        f"v_lshl_add_u32 v{VW}, v{TMP}, 1, s48",
        f"v_sub_u32 v{TMP+1}, {1023-32*27}, v{TMP}", f"s_add_u32 s49, s48, 2048", f"v_lshl_add_u32 v{VW+1}, v{TMP+1}, 1, s49")
    a.e(f"v_lshlrev_b32 v{VG}, 12, v{G_}", f"v_lshl_add_u32 v{VG}, v{IDX}, 2, v{VG}",
        "s_lshl_b32 s49, s3, 9",
        f"s_lshl_b32 s52, s{sJP}, 13", "s_add_u32 s52, s52, s49",
        f"s_lshl_b32 s53, s{sJQ}, 13", "s_add_u32 s53, s53, s49")
    a.e(f"v_lshlrev_b32 v{VGW}, 12, v{G_}", f"v_lshl_add_u32 v{VGW}, v{IDX}, 3, v{VGW}", "s_lshl_b32 s50, s3, 10", f"v_add_u32 v{VGW}, s50, v{VGW}",
        f"v_lshlrev_b32 v{VRR}, 9, v{G_}", f"v_lshl_add_u32 v{VRR}, v{IDX}, 2, v{VRR}", "s_lshl_b32 s51, s3, 12", f"v_add_u32 v{VRR}, s51, v{VRR}")
    for t in range(1, 4): a.e(f"v_add_u32 v{VRR+t}, {1024*t}, v{VRR}")
    a.e(f"v_lshrrev_b32 v{TMP}, 4, v1", f"v_and_b32 v{TMP+1}, 1, v{TMP}", f"v_lshlrev_b32 v{VHR}, 13, v{TMP+1}",
        f"v_lshrrev_b32 v{TMP+1}, 1, v{TMP}", f"v_lshl_add_u32 v{VHR}, v{TMP+1}, 7, v{VHR}",
        f"v_and_b32 v{TMP+1}, 15, v1", f"v_lshl_add_u32 v{VHR}, v{TMP+1}, 3, v{VHR}", f"v_add_u32 v{VHR}, s50, v{VHR}")
    a.e(f"v_and_b32 v{TMP+2}, 1, v{TMP+1}", f"v_mov_b32 v{TMP+3}, s52", f"v_mov_b32 v{TMP+4}, s53",
        f"v_cmp_eq_u32 vcc, 1, v{TMP+2}", f"v_cndmask_b32 v{VST}, v{TMP+3}, v{TMP+4}, vcc",
        f"v_bfe_u32 v{TMP+2}, v{TMP+1}, 1, 2", f"v_lshl_add_u32 v{VST}, v{TMP+2}, 11, v{VST}",
        f"v_lshrrev_b32 v{TMP+2}, 3, v{TMP+1}", f"v_lshl_add_u32 v{VST}, v{TMP+2}, 6, v{VST}",
        f"v_lshl_add_u32 v{VST}, v{TMP}, 4, v{VST}")
    a.e(f"v_lshlrev_b32 v{TMP}, {FA()}, v1", f"v_add_u32 v{TMP}, {SY_A1}, v{TMP}")
    stamp(a, 6)
    wait_flags(a, TMP, 2, TMP+1, 48)
    if OPT["yieldB"] == 1: a_state(a, sT, 0, TMP)
    stamp(a, 7)
    for u in range(4):
        for sl in range(2):
            for pq in range(2):
                a.e(f"buffer_load_dword v{GB+4*u+2*sl+pq}, v{VG}, s[{SI1}:{SI1+3}], s{52+pq} offen offset:{2048*sl+128*u} sc1")
    NWL = 0
    if OPT["wlate"] == 1:
        wstage(); NWL = 8
        if not OPT["spec2"]:
            Lsw = newlbl("spw")
            a.e("s_cmp_lg_u32 s75, 0", f"s_cbranch_scc1 {Lsw}", "s_waitcnt vmcnt(0)")
            a.label(Lsw)
    for rnd in range(2):
        a.e(f"s_waitcnt vmcnt({8-8*rnd+NWL})")
        for uu in range(2):
            u = 2*rnd+uu
            a.e(f"v_mfma_f32_32x32x16_bf16 {v(ARE if uu == 0 else AIM,16)}, {v(GA,4)}, {v(GB+4*u,4)}, 0")
        for uu in range(2):
            u = 2*rnd+uu
            D = ARE if uu == 0 else AIM
            t = TMP+4*uu
            for h in range(2):
                a.e(f"v_cvt_pk_bf16_f32 v{t}, v{D+4*h}, v{D+4*h+1}", f"v_cvt_pk_bf16_f32 v{t+1}, v{D+4*h+2}, v{D+4*h+3}",
                    f"ds_write_b64 v{VGW}, {v(t,2)} offset:{256*u+8192*h}")
                t += 2
    a.e("s_waitcnt lgkmcnt(0)", "s_barrier")
    stamp(a, 8)
    if OPT["qA"] and not OPT["a3all"]:
        Lq = newlbl("noqA")
        a.e(f"s_cmp_lg_u32 s{sACT}, 0", f"s_cbranch_scc1 {Lq}")
        emit_B3_pre(a)
        a.label(Lq)
    for t in range(4):
        a.e(f"ds_read2_b32 {v(DF+4*t,2)}, v{VRR+t} offset0:0 offset1:32", f"ds_read2_b32 {v(DF+4*t+2,2)}, v{VRR+t} offset0:64 offset1:96")
    a.e("s_waitcnt lgkmcnt(0)")
    Lsp, Linv, Lfwd, Lpre = newlbl("special"), newlbl("inv"), newlbl("fwd"), newlbl("pre")
    sPASS = 45
    if OPT["spec2"]:
        a.e(f"s_mov_b32 s{sPASS}, 0", "s_cmp_lg_u32 s75, 0", f"s_cbranch_scc1 {Lpre}")
        for i in range(16): a.e(f"v_lshrrev_b32 v{GB+i}, 16, v{DF+i}", f"v_and_b32 v{DF+i}, 0xffff, v{DF+i}")
        a.label(Lpre)
    def wmid():
        Lk = newlbl("wskip")
        if OPT["spec2"]: a.e(f"s_cmp_lg_u32 s{sPASS}, 0", f"s_cbranch_scc1 {Lk}")
        if OPT["qA"] and not OPT["a3all"]:
            L1, L2 = newlbl("wa"), newlbl("wb")
            a.e(f"s_cmp_lg_u32 s{sACT}, 0", f"s_cbranch_scc1 {L1}", "s_waitcnt vmcnt(8)", f"s_branch {L2}")
            a.label(L1); a.e("s_waitcnt vmcnt(0)"); a.label(L2)
        else:
            a.e("s_waitcnt vmcnt(0)")
        w_lds_reads(a, VW, VW+1, WR, WI)
        a.label(Lk)
    if OPT["wlate"] == 1:
        a.label(Lfwd); a.e("s_nop 1")
        fft1024(a, mid=wmid)
    else:
        w_lds_reads(a, VW, VW+1, WR, WI)
        a.label(Lfwd); a.e("s_nop 1")
        fft1024(a)
    a.e("s_waitcnt lgkmcnt(0)")
    Lnf = newlbl("nofix")
    if OPT["spec2"]: a.e(f"s_cmp_lg_u32 s{sPASS}, 0", f"s_cbranch_scc1 {Lnf}")
    fix_w(a, WR, WI, PF)
    a.label(Lnf)
    a.e("s_cmp_eq_u32 s75, 0", f"s_cbranch_scc1 {Lsp}")
    for p in range(8):
        xr, xi, wr, wi = ARE+2*p, AIM+2*p, WR+2*p, WI+2*p
        t0 = TMP+4*(p & 1); t1 = t0+2
        n0 = " neg_lo:[1,0,0] neg_hi:[1,0,0]" if p < 4 else ""
        n1 = "" if p < 4 else " neg_lo:[1,0,0] neg_hi:[1,0,0]"
        a.e(f"v_pk_mul_f32 {v(t0,2)}, {v(xr,2)}, {v(wr,2)}", f"v_pk_mul_f32 {v(t1,2)}, {v(xi,2)}, {v(wr,2)}",
            f"v_pk_fma_f32 {v(t0,2)}, {v(xi,2)}, {v(wi,2)}, {v(t0,2)}{n0}",
            f"v_pk_fma_f32 {v(t1,2)}, {v(xr,2)}, {v(wi,2)}, {v(t1,2)}{n1}")
        for e in range(2):
            a.e(f"v_cvt_pk_bf16_f32 v{DF+2*p+e}, v{t0+e}, -v{t1+e}")
    a.label(Linv)
    a.e("s_nop 1")
    fft1024(a)
    for r in range(16):
        t = TMP + (r & 7)
        a.e(f"v_cvt_pk_bf16_f32 v{t}, v{ARE+r}, v{AIM+r}", f"ds_write_b32 v{VRR}, v{t} offset:{128*eidx(r)}")
    a.e("s_waitcnt lgkmcnt(0)", "s_barrier")
    if OPT["yieldB"]:
        Ly = newlbl("y0a")
        if OPT["y0"]: a.e(f"s_cmp_lg_u32 s{sT}, 0", f"s_cbranch_scc1 {Ly}")
        a_state(a, sT, 1, TMP)
        a.label(Ly)
    stamp(a, 9)
    for u in range(4):
        for sl in range(2):
            a.e(f"ds_read_b64 {v(GB+4*u+2*sl,2)}, v{VHR} offset:{4096*sl+256*u}")
    a.e("s_lshl_b32 s49, s3, 9")
    for u in range(4):
        a.e(f"s_waitcnt lgkmcnt({6-2*u})")
        a.e(f"v_mfma_f32_16x16x32_bf16 {v(ARE+4*u,4)}, {v(GB+4*u,4)}, {v(HRE,4)}, 0",
            f"v_mfma_f32_16x16x32_bf16 {v(AIM+4*u,4)}, {v(GB+4*u,4)}, {v(HIM,4)}, 0")
    for u in range(4):
        for r in range(4):
            a.e(f"v_cvt_pk_bf16_f32 v{DF+4*u+r}, v{ARE+4*u+r}, v{AIM+4*u+r}")
        a.e(f"buffer_store_dwordx4 {v(DF+4*u,4)}, v{VST}, s[{SI2}:{SI2+3}], 0 offen offset:{128*u} sc1")
    a.e(f"s_lshl_b32 s48, s{sT}, {FA()}", f"s_add_u32 s48, s48, {SY_A2}")
    signal(a, 48, TMP)
    stamp(a, 10)
    Lb3 = newlbl("b3")
    if OPT["a3all"]:
        srd(a, SOUT, P_OUT, P_OUT+1, 8*MB)
        a.e(f"s_lshr_b32 s48, s{sT}, 3", f"s_and_b32 s49, s{sT}, 7", f"s_lshr_b32 s{sSA}, s48, 3", "s_bfe_u32 s50, s48, 0x10002",
            "s_lshl_b32 s50, s50, 3", "s_add_u32 s50, s50, s49", "s_lshl_b32 s50, s50, 2", "s_and_b32 s51, s48, 3", f"s_add_u32 s{sCB}, s50, s51")
        f8_addr(a, sSA, sCB, 4096, 16384)
        f8_consts(a)
        a.e(f"v_lshlrev_b32 v{F_TMP}, {FA()}, v1", f"v_add_u32 v{F_TMP}, {SY_A2}, v{F_TMP}")
        wait_flags(a, F_TMP, 4, F_TMP+1, 48)
        stamp(a, 11)
        PHASE[0] = 3
        fstamp(a, 11)
        f8_run(a, SI2, SOUT, "sc1", NTO())
    else:
        a.e(f"s_cmp_eq_u32 s{sACT}, 0", f"s_cbranch_scc1 {Lb3}")
        srd(a, SOUT, P_OUT, P_OUT+1, 8*MB)
        fft512_addr(a, sSA, sCB)
        fft512_addr2(a, sSA, sCB, 4096, 16384)
        fft512_consts(a)
        a.e(f"v_lshlrev_b32 v{F_TMP}, {FA()}, v1", f"v_add_u32 v{F_TMP}, {SY_A2}, v{F_TMP}")
        wait_flags(a, F_TMP, 4, F_TMP+1, 48)
        stamp(a, 11)
        PHASE[0] = 3
        fstamp(a, 11)
        fft512_loads(a, SI2, "sc1")
        fstamp(a, 3)
        save = gen.PROF; gen.PROF = False
        fft512_compute(a, SOUT, True, 0, NTO(), 0)
        gen.PROF = save
    a.e("s_cmp_lg_u32 s75, 0", "s_cbranch_scc1 L_fin")
    Lb1, Lb2 = newlbl("bchk"), newlbl("bchkd")
    a.e("v_lshlrev_b32 v2, 6, v1", f"v_add_u32 v2, {SY_ID}, v2", f"s_lshl_b32 s49, s{S_TGT}, 4", "s_mov_b32 s48, 0")
    a.label(Lb1)
    NS = NMEM()*8//64
    for i in range(NS):
        a.e(f"s_mov_b32 s50, {4096*i}", f"buffer_load_dword v{4+i}, v2, s[{S_SYN}:{S_SYN+3}], s50 offen sc1")
    a.e("s_add_u32 s48, s48, 1", "s_waitcnt vmcnt(0)")
    for i in range(NS): a.e(f"v_xor_b32 v{4+i}, s49, v{4+i}")
    for i in range(1, NS): a.e(f"v_or_b32 v4, v4, v{4+i}")
    a.e("v_lshrrev_b32 v4, 4, v4", "v_cmp_ne_u32 vcc, 0, v4", f"s_cbranch_vccz {Lb2}", f"s_cmp_lt_u32 s48, {SPIN_LIMIT}", f"s_cbranch_scc1 {Lb1}")
    a.label(Lb2)
    a.e(f"s_mov_b32 s48, {SY_E}")
    bump(a, 48, 2)
    a.e("s_branch L_fin")
    if not OPT["a3all"]:
        a.label(Lb3)
        if not OPT["qA"]: emit_B3_pre(a)
        emit_B3(a)
        a.e("s_branch L_fin")
    a.label(Lsp)
    if OPT["spec2"]:
        Lp1s = newlbl("sp1")
        NEG = " neg_lo:[1,0,0] neg_hi:[1,0,0]"
        a.e(f"s_cmp_lg_u32 s{sPASS}, 0", f"s_cbranch_scc1 {Lp1s}")
        a.e(f"v_lshl_add_u32 v{SP}, v{G_}, 7, v{IDX}", f"v_sub_u32 v{SP+1}, {1023-32*27}, v{SP}",
            f"s_mov_b32 s48, {LW2}", f"v_lshl_add_u32 v{SP+2}, v{SP}, 1, s48", f"s_mov_b32 s49, {LW2+2048}", f"v_lshl_add_u32 v{SP+3}, v{SP+1}, 1, s49")
        w_lds_reads(a, SP+2, SP+3, W2R, W2I)
        for p in range(8):
            xr, xi, wr, wi = ARE+2*p, AIM+2*p, WR+2*p, WI+2*p
            t0 = TMP+4*(p & 1); t1 = t0+2
            n0 = NEG if p < 4 else ""; n1 = "" if p < 4 else NEG
            a.e(f"v_pk_mul_f32 {v(t0,2)}, {v(xr,2)}, {v(wr,2)}", f"v_pk_mul_f32 {v(t1,2)}, {v(xi,2)}, {v(wr,2)}",
                f"v_pk_fma_f32 {v(wr,2)}, {v(xi,2)}, {v(wi,2)}, {v(t0,2)}{n0}",
                f"v_pk_fma_f32 {v(wi,2)}, {v(xr,2)}, {v(wi,2)}, {v(t1,2)}{n1}")
        for i in range(16): a.e(f"v_mov_b32 v{DF+i}, v{GB+i}")
        a.e(f"s_mov_b32 s{sPASS}, 1", f"s_branch {Lfwd}")
        a.label(Lp1s)
        fix_w(a, W2R, W2I, PF2)
        for p in range(8):
            xr, xi, br, bi, r1r, r1i = ARE+2*p, AIM+2*p, W2R+2*p, W2I+2*p, WR+2*p, WI+2*p
            t0 = TMP+4*(p & 1); t1 = t0+2
            n0 = NEG if p < 4 else ""; n1 = "" if p < 4 else NEG
            a.e(f"v_pk_mul_f32 {v(t0,2)}, {v(xr,2)}, {v(br,2)}", f"v_pk_mul_f32 {v(t1,2)}, {v(xi,2)}, {v(br,2)}",
                f"v_pk_fma_f32 {v(t0,2)}, {v(xi,2)}, {v(bi,2)}, {v(t0,2)}{n0}",
                f"v_pk_fma_f32 {v(t1,2)}, {v(xr,2)}, {v(bi,2)}, {v(t1,2)}{n1}",
                f"v_pk_add_f32 {v(t1,2)}, {v(r1r,2)}, {v(t1,2)} neg_lo:[0,1] neg_hi:[0,1]",
                f"v_pk_add_f32 {v(t0,2)}, {v(r1i,2)}, {v(t0,2)}")
            for e in range(2):
                a.e(f"v_cvt_pk_bf16_f32 v{DF+2*p+e}, v{t1+e}, -v{t0+e}")
        a.e(f"s_branch {Linv}")
        return
    a.e(f"v_lshl_add_u32 v{TMP}, v{G_}, 7, v{IDX}", f"v_sub_u32 v{TMP+1}, {1023-32*27}, v{TMP}",
        f"s_mov_b32 s48, {LW2}", f"v_lshl_add_u32 v{TMP+2}, v{TMP}, 1, s48", f"s_mov_b32 s49, {LW2+2048}", f"v_lshl_add_u32 v{TMP+3}, v{TMP+1}, 1, s49")
    w_lds_reads(a, TMP+2, TMP+3, W2R, W2I)
    a.e("s_waitcnt lgkmcnt(0)")
    fix_w(a, W2R, W2I, PF2)
    VS = SP; K0 = SP+1
    a.e(f"v_lshlrev_b32 v{VS}, 9, v{G_}", f"v_lshl_add_u32 v{VS}, v{IDX}, 2, v{VS}")
    for r in range(16):
        a.e(f"ds_write_b32 v{VS}, v{ARE+r} offset:{LSC+128*eidx(r)}", f"ds_write_b32 v{VS}, v{AIM+r} offset:{LSC+4096+128*eidx(r)}")
    a.e(f"v_lshl_add_u32 v{K0}, v{G_}, 7, v{IDX}", f"v_sub_u32 v{K0}, 1024, v{K0}", "s_waitcnt lgkmcnt(0)")
    for r in range(16):
        ad, rr, ri, ur, ui, vr, vi, o0, o1 = [SP+2+i for i in range(9)]
        a.e(f"v_subrev_u32 v{ad}, {32*eidx(r)}, v{K0}", f"v_and_b32 v{ad}, 1023, v{ad}", f"v_lshlrev_b32 v{ad}, 2, v{ad}",
            f"ds_read_b32 v{rr}, v{ad} offset:{LSC}", f"ds_read_b32 v{ri}, v{ad} offset:{LSC+4096}", "s_waitcnt lgkmcnt(0)")
        pr, pi_ = ARE+r, AIM+r
        a.e(f"v_add_f32 v{ur}, v{pr}, v{rr}", f"v_sub_f32 v{ui}, v{pi_}, v{ri}",
            f"v_sub_f32 v{vr}, v{pr}, v{rr}", f"v_add_f32 v{vi}, v{pi_}, v{ri}")
        sg = "-" if r < 8 else ""; ns = "" if r < 8 else "-"
        ar, ai, br, bi = WR+r, WI+r, W2R+r, W2I+r
        a.e(f"v_mul_f32 v{o0}, v{ur}, v{ar}", f"v_fma_f32 v{o0}, {sg}v{ui}, v{ai}, v{o0}",
            f"v_fma_f32 v{o0}, v{vr}, v{br}, v{o0}", f"v_fma_f32 v{o0}, {sg}v{vi}, v{bi}, v{o0}",
            f"v_mul_f32 v{o1}, v{ui}, v{ar}", f"v_fma_f32 v{o1}, {ns}v{ur}, v{ai}, v{o1}",
            f"v_fma_f32 v{o1}, v{vi}, v{br}, v{o1}", f"v_fma_f32 v{o1}, {ns}v{vr}, v{bi}, v{o1}",
            f"v_mul_f32 v{o0}, 0.5, v{o0}", f"v_mul_f32 v{o1}, 0.5, v{o1}",
            f"v_cvt_pk_bf16_f32 v{DF+r}, v{o0}, -v{o1}")
    a.e(f"s_branch {Linv}")

def h_dma(a, SH, sLB, sD4K):
    a.e("v_lshlrev_b32 v235, 4, v1")
    a.e(f"s_add_u32 s74, s{sLB}, 32", "s_mov_b32 m0, s74")
    for ch in range(4): a.e(f"buffer_load_dwordx4 v235, s[{SH}:{SH+3}], s{sD4K} offen offset:{1024*ch} lds" + (NT() if OPT["nth"] else ""))
    a.e(f"s_add_u32 s74, s{sLB}, 4192", f"s_add_u32 s75, s{sD4K}, 2", "s_mov_b32 m0, s74")
    for ch in range(4): a.e(f"buffer_load_dwordx4 v235, s[{SH}:{SH+3}], s75 offen offset:{1024*ch} lds" + (NT() if OPT["nth"] else ""))
    a.e("v_mov_b32 v233, 0x7ffffff0", f"v_mov_b32 v234, s{sD4K}", "v_cmp_eq_u32 vcc, 15, v1", "v_cndmask_b32 v233, v233, v234, vcc",
        f"buffer_load_short_d16_hi v230, v233, s[{SH}:{SH+3}], 0 offen")

def gen_B(a):
    SH, STT, SKVT = 80, 84, 32
    a.e(f"s_setprio {OPT['prioB']}") if OPT['prioB'] else None
    srd(a, SH, P_SSMK, P_SSMK+1, 4*MB); srd(a, STT, P_OUT, P_OUT+1, 8*MB)
    sCBK, sSUB, sD, sD4K, sLB, sDV, sF1, sF2, sMASK = 40, 41, 42, 43, 44, 45, 46, 47, 72
    a.e(f"s_and_b32 s{sCBK}, s2, 15",
        f"s_lshr_b32 s{sSUB}, s2, 4",
        f"s_lshl_b32 s{sD}, s{sCBK}, 4", f"s_add_u32 s{sD}, s{sD}, s{sSUB}", f"s_lshl_b32 s{sD}, s{sD}, 2", f"s_add_u32 s{sD}, s{sD}, s3",
        f"s_lshl_b32 s{sD4K}, s{sD}, 12", f"s_mul_i32 s{sLB}, s3, {LB_STRIDE}", f"s_mov_b32 s{sMASK}, 0xffff0000")
    sSB = 36
    a.e(f"s_and_b32 s73, s{sD}, 63", "s_lshl_b32 s73, s73, 13", f"s_lshl_b32 s74, s{sCBK}, 7", "s_add_u32 s73, s73, s74", f"s_add_u32 s{sSB}, s73, 2048")
    for i in range(1, 4): a.e(f"s_add_u32 s{sSB+i}, s{sSB}, {i*2*MB}")
    a.e(f"s_lshl_b32 s73, s{sCBK}, {4+FB()}", f"s_add_u32 s{sF1}, s73, {SY_B1}", f"s_lshl_b32 s74, s{sSUB}, {FB()}", "s_add_u32 s73, s73, s74", f"s_add_u32 s{sF2}, s73, {SY_B2}")
    a.e(f"s_and_b32 s73, s{sD}, 0xfffffffe", "s_lshl_b32 s73, s73, 1", f"s_load_dword s{sDV}, s[{P_SSMD}:{P_SSMD+1}], s73")
    stamp(a, 0, True); stamp(a, 1)
    Lidle, Lsetup = newlbl("bidle"), newlbl("bsetup")
    if OPT["pB1"]: a.e(f"s_setprio {OPT['pB1']}")
    if OPT["b1all"]:
        a.e(f"s_mov_b32 s{sCBKT}, s{sCBK}", f"s_mov_b32 s{sSUBT}, s{sSUB}")
        if OPT["hearly"] and not OPT["hlate"]:
            emit_B1(a, after_stores=lambda: h_dma(a, SH, sLB, sD4K), nafter=9)
        else:
            emit_B1(a)
            if not OPT["hlate"]: h_dma(a, SH, sLB, sD4K)
    else:
        a.e(f"s_cmp_lg_u32 s{sACT}, 0", f"s_cbranch_scc1 {Lidle}")
        if OPT["hearly"] and not OPT["hlate"]:
            emit_B1(a, after_stores=lambda: h_dma(a, SH, sLB, sD4K), nafter=9)
        else:
            emit_B1(a)
            if not OPT["hlate"]: h_dma(a, SH, sLB, sD4K)
        a.e(f"s_branch {Lsetup}")
        a.label(Lidle)
        if OPT["tlb"] or OPT["cpf"]: warm(a)
        fin_epoch(a)
        loc_publish(a)
        loc_issue(a, 10)
        loc_resolve(a, 10, barrier=False)
        if not OPT["hlate"]:
            for _ in range(OPT["hactdelay"]):
                a.e("v_and_b32 v12, 15, v1", f"v_lshlrev_b32 v12, {FB()}, v12", f"v_add_u32 v12, s{sF1}, v12",
                    f"buffer_load_dword v13, v12, s[{S_SYN}:{S_SYN+3}], 0 offen sc1", "s_waitcnt vmcnt(0)")
            h_dma(a, SH, sLB, sD4K)
    a.label(Lsetup)
    if OPT["pB1"]: a.e(f"s_setprio {OPT['prioB']}")
    stamp(a, 12)
    LN16, B_, G4, VA, VB, VE, VS2, T = 2, 3, 4, 5, 9, 10, 11, 12
    a.e(f"v_lshlrev_b32 v{T}, 2, v1",
        f"v_add_u32 v{T+1}, {4160-32}, v{T}", "v_cmp_le_u32 vcc, 8, v1", f"v_cndmask_b32 v{T+3}, v{T}, v{T+1}, vcc",
        f"v_add_u32 v{T+1}, 8288, v{T}", "v_cmp_le_u32 vcc, 16, v1", f"v_cndmask_b32 v{T+3}, v{T+3}, v{T+1}, vcc",
        f"v_add_u32 v231, s{sLB}, v{T+3}")
    a.e(f"v_lshlrev_b32 v{T}, 3, v1", f"v_add_u32 v{T}, s{sLB}, v{T}", "v_mov_b32 v16, 0", "v_mov_b32 v17, 0", f"ds_write_b64 v{T}, v[16:17] offset:8288")
    a.e(f"v_and_b32 v{B_}, 15, v1", f"v_lshrrev_b32 v{G4}, 4, v1")
    a.e(f"v_and_b32 v{VA}, 1, v{B_}", f"v_xor_b32 v{VA}, 1, v{VA}", f"v_mul_u32_u24 v{VA}, 4160, v{VA}",
        f"v_add_u32 v{VA+1}, 1, v{B_}", f"v_lshrrev_b32 v{VA+1}, 1, v{VA+1}", f"v_lshl_add_u32 v{VA}, v{VA+1}, 2, v{VA}",
        f"v_lshlrev_b32 v{VA+1}, 4, v{G4}", f"v_sub_u32 v{VA}, v{VA}, v{VA+1}",
        f"s_add_u32 s73, s{sLB}, 16", f"v_add_u32 v{VA}, s73, v{VA}")
    for pp in range(1, 4): a.e(f"v_add_u32 v{VA+pp}, {1024*pp}, v{VA}")
    a.e(f"v_lshlrev_b32 v{VB}, 5, v{B_}", f"v_lshl_add_u32 v{VB}, v{G4}, 4, v{VB}",
        f"s_add_u32 s73, s{sLB}, {8800-480}", f"v_add_u32 v{VB}, s73, v{VB}")
    a.e(f"v_lshrrev_b32 v18, 1, v{G4}", f"v_lshlrev_b32 v19, 4, v18", f"v_lshl_add_u32 v19, v{B_}, 5, v19",
        f"v_and_b32 v18, 1, v{G4}", "v_xor_b32 v18, 1, v18", f"v_lshl_add_u32 v19, v18, 3, v19",
        f"s_add_u32 s73, s{sLB}, 8800", f"v_add_u32 v232, s73, v19")
    a.e(f"v_lshrrev_b32 v18, 3, v{B_}", f"v_lshlrev_b32 v{VS2}, 19, v18", f"v_bfe_u32 v18, v{B_}, 2, 1", f"v_lshl_add_u32 v{VS2}, v18, 12, v{VS2}",
        f"v_and_b32 v18, 1, v{G4}", f"v_lshl_add_u32 v{VS2}, v18, 20, v{VS2}", f"v_and_b32 v18, 3, v{B_}", f"v_lshl_add_u32 v{VS2}, v18, 5, v{VS2}",
        f"v_lshrrev_b32 v18, 1, v{G4}", f"v_lshl_add_u32 v{VS2}, v18, 4, v{VS2}")
    a.e(f"v_lshlrev_b32 v{LN16}, 19, v{G4}", "v_bfe_u32 v18, v1, 3, 1", f"v_lshl_add_u32 v{LN16}, v18, 12, v{LN16}",
        "v_and_b32 v18, 7, v1", f"v_lshl_add_u32 v{LN16}, v18, 4, v{LN16}")
    a.e("v_lshlrev_b32 v18, 4, v1", f"s_add_u32 s73, s{sLB}, 8800", "v_add_u32 v19, s73, v18")
    a.e("s_waitcnt lgkmcnt(0)",
        f"s_and_b32 s73, s{sD}, 1", f"s_lshl_b32 s74, s{sDV}, 16", f"s_and_b32 s75, s{sDV}, 0xffff0000",
        "s_cmp_eq_u32 s73, 1", f"s_cselect_b32 s{sDV}, s75, s74")
    if OPT["twoflag"]:
        a.e(f"s_add_u32 s73, s{sF1}, {SY_B1B-SY_B1}", f"s_cmp_lg_u32 s{sLOC}, 0", f"s_cselect_b32 s{sF1}, s{sF1}, s73")
    a.e(f"v_and_b32 v{T}, 15, v1", f"v_lshlrev_b32 v{T}, {FB()}, v{T}", f"v_add_u32 v{T}, s{sF1}, v{T}")
    stamp(a, 5)
    wait_flags(a, T, 1, T+1, 73)
    loc_read(a, 12)
    stamp(a, 6)
    VE = 232
    ACC = 20
    SETS = [(52, 84), (116, 148)]
    U = SETS[1][1]
    for ch in range(4):
        a.e(f"buffer_load_dwordx4 {v(U+4*ch,4)}, v{LN16}, s[{STT}:{STT+3}], s{sSB+ch} offen" + LDL())
    def reads(rho, st):
        A, B = SETS[st]
        out = []
        for p in range(8):
            o = 8*rho + 128*(p & 1)
            out.append(f"ds_read2_b32 {v(A+4*p,2)}, v{VA+(p>>1)} offset0:{o} offset1:{o+1}")
            out.append(f"ds_read2_b32 {v(A+4*p+2,2)}, v{VA+(p>>1)} offset0:{o+2} offset1:{o+3}")
        outb = [f"ds_read_b128 {v(B+4*q,4)}, v{VB} offset:{512*q+32*(15-rho)}" for q in range(8)]
        return out, outb
    rhos = list(range(1, 16, 2))
    ra, rb = reads(rhos[0], 0)
    if OPT["hlate"]:
        h_dma(a, SH, sLB, sD4K)
        for ch in range(4):
            a.e(f"s_waitcnt vmcnt({3-ch+9})", f"ds_write_b128 v19, {v(U+4*ch,4)} offset:{1024*ch}")
        a.e("s_waitcnt vmcnt(0)", "ds_write_b32 v231, v230", "s_waitcnt lgkmcnt(0)")
        for r in ra: a.e(r)
    else:
        a.e("s_waitcnt vmcnt(4)", "ds_write_b32 v231, v230")
        a.e("s_waitcnt lgkmcnt(0)")
        for r in ra: a.e(r)
        for ch in range(4):
            a.e(f"s_waitcnt vmcnt({3-ch})", f"ds_write_b128 v19, {v(U+4*ch,4)} offset:{1024*ch}")
    a.e("s_waitcnt lgkmcnt(0)")
    for r in rb: a.e(r)
    if OPT["yieldB"]:
        Ly = newlbl("y0b")
        if OPT["y0"]: a.e("s_cmp_lg_u32 s2, 0", f"s_cbranch_scc1 {Ly}")
        b_yield(a, 233)
        a.label(Ly)
    Lnq = newlbl("noq")
    if OPT["a3all"]:
        a.e(f"s_mov_b32 s{sCBKT}, s{sCBK}", f"s_mov_b32 s{sSUBT}, s{sSUB}")
        emit_B3_pre(a)
    else:
        a.e(f"s_cmp_lg_u32 s{sACT}, 0", f"s_cbranch_scc1 {Lnq}")
        emit_B3_pre(a)
        a.label(Lnq)
    stamp(a, 7)
    for ci, rho in enumerate(rhos):
        st = ci & 1
        A, B = SETS[st]
        if ci+1 < len(rhos):
            ra, rb = reads(rhos[ci+1], st ^ 1); nxt = ra[0:2] + rb + ra[2:]
        else:
            nxt = [f"ds_read_b64 {v(SETS[st^1][0]+2*j,2)}, v{VE} offset:{512*j}" for j in range(8)]
        a.e("s_waitcnt lgkmcnt(0)")
        n = 0
        for p in range(8):
            for q in range(8-p):
                j = p+q
                c = "0" if (ci == 0 and p == 0) else v(ACC+4*j, 4)
                a.e(f"v_mfma_f32_16x16x32_bf16 {v(ACC+4*j,4)}, {v(A+4*p,4)}, {v(B+4*q,4)}, {c}")
                if n < len(nxt): a.e(nxt[n])
                n += 1
    KVR = SETS[0][0]; TMv = 116
    a.e("s_waitcnt lgkmcnt(0)")
    stamp(a, 8)
    sts = []
    for jp in range(4):
        base = TMv + 8*jp
        for hh in range(2):
            j = 2*jp+hh
            w0, w1 = KVR+2*j, KVR+2*j+1
            t = 172
            a.e(f"v_and_b32 v{t}, s{sMASK}, v{w1}", f"v_lshlrev_b32 v{t+1}, 16, v{w1}",
                f"v_and_b32 v{t+2}, s{sMASK}, v{w0}", f"v_lshlrev_b32 v{t+3}, 16, v{w0}")
            for r in range(4):
                a.e(f"v_fma_f32 v{t+r}, v{t+r}, s{sDV}, v{ACC+4*j+r}")
            a.e(f"v_cvt_pk_bf16_f32 v{base+2*hh}, v{t}, v{t+1}", f"v_cvt_pk_bf16_f32 v{base+2*hh+1}, v{t+2}, v{t+3}")
        a.e(f"v_permlane16_swap_b32 v{base}, v{base+2}", f"v_permlane16_swap_b32 v{base+1}, v{base+3}")
        sts.append(f"buffer_store_dwordx4 {v(base,4)}, v{VS2}, s[{STT}:{STT+3}], s{sSB+jp} offen")
    dual_store(a, sts)
    signal(a, sF2, 12, bloc=True)
    stamp(a, 9)
    if not OPT["a3all"]: a.e(f"s_cmp_lg_u32 s{sACT}, 0", "s_cbranch_scc1 L_fin")
    emit_B3(a)
    a.e("s_branch L_fin")

def warm(a):
    if OPT["tlb"]:
        L = newlbl("warm")
        a.e("s_cmp_lg_u32 s3, 3", f"s_cbranch_scc1 {L}")
        pages = [(P_WS, WS_I1), (P_WS, WS_I1+2*MB), (P_WS, WS_I2), (P_WS, WS_I2+2*MB), (P_WS, WS_SYNC+512*1024),
                 (P_OUT, 0), (P_OUT, 2*MB), (P_OUT, 4*MB), (P_OUT, 6*MB),
                 (P_WR, 0), (P_WR, 2*MB), (P_WI, 0), (P_WI, 2*MB), (P_SSMK, 0), (P_SSMK, 2*MB), (P_Q, 0), (P_Q, 2*MB)]
        a.e("v_mov_b32 v240, 0", "v_mov_b32 v241, 0")
        for i, (p, off) in enumerate(pages):
            a.e(f"s_add_u32 s92, s{p}, {off}", f"s_addc_u32 s93, s{p+1}, 0", f"v_writelane_b32 v240, s92, {i}", f"v_writelane_b32 v241, s93, {i}")
        a.e(f"s_mov_b64 exec, {(1 << len(pages)) - 1}", "global_load_dword v242, v[240:241], off", "s_mov_b64 exec, -1")
        a.label(L)
    if OPT["cpf"]:
        L = newlbl("warm")
        a.e("s_cmp_ge_u32 s3, 2", f"s_cbranch_scc1 {L}")
        a.e("s_getpc_b64 s[92:93]")
        a.e("s_lshr_b32 s96, s2, 4", "s_and_b32 s96, s96, 15", "s_lshl_b32 s96, s96, 1", "s_add_u32 s96, s96, s3", "s_min_u32 s96, s96, 25",
            "s_lshl_b32 s96, s96, 10", f"s_sub_u32 s92, s92, {OPT['cpf']}", "s_subb_u32 s93, s93, 0",
            "s_add_u32 s92, s92, s96", "s_addc_u32 s93, s93, 0", "v_lshlrev_b32 v240, 4, v1",
            "global_load_dwordx4 v[236:239], v240, s[92:93]")
        a.label(L)

def gen_kernel():
    a = Asm(); a.name = "p"
    a.e("s_cmp_ge_u32 s2, 512", "s_cbranch_scc1 L_exit")
    if OPT.get("spinT") or OPT.get("span"): a.e("s_memrealtime s[94:95]")
    if gen.PROF: a.e("s_memrealtime s[98:99]", "s_waitcnt lgkmcnt(0)", "v_writelane_b32 v247, s98, 13")
    a.e(f"s_load_dwordx16 s[4:19], s[0:1], 0", f"s_load_dwordx8 s[20:27], s[0:1], 64")
    a.e("v_lshrrev_b32 v1, 6, v0", "v_readfirstlane_b32 s3, v1", "v_and_b32 v1, 63, v0", "s_waitcnt lgkmcnt(0)")
    srd(a, S_SYN, P_WS, P_WS+1, 1*MB, add=WS_SYNC)
    a.e(f"s_mov_b32 s48, {WS_SYNC+SY_E}", f"s_load_dword s{S_TGT}, s[{P_WS}:{P_WS+1}], s48")
    a.e(f"s_mov_b32 s98, {64<<FA()}", f"s_mov_b32 s99, {128<<FA()}", f"s_mov_b32 s100, {192<<FA()}")
    a.e(f"s_and_b32 s{sCU}, s2, 255", f"s_bitcmp0_b32 s2, 3", f"s_cselect_b32 s{sACT}, 1, 0",
        f"s_lshr_b32 s48, s{sCU}, 4", "s_lshl_b32 s48, s48, 3", f"s_and_b32 s49, s{sCU}, 7", "s_add_u32 s48, s48, s49",
        f"s_and_b32 s{sCBKT}, s48, 15", "s_lshr_b32 s48, s48, 4", "s_lshl_b32 s48, s48, 1", "s_lshr_b32 s49, s2, 8", f"s_add_u32 s{sSUBT}, s48, s49")
    a.e("s_cmp_ge_u32 s2, 256", "s_cbranch_scc1 L_A")
    gen_B(a)
    a.label("L_A")
    gen_A(a)
    a.label("L_fin")
    if gen.PROF:
        a.e("s_waitcnt vmcnt(0)")
        stamp(a, 14); stamp(a, 15, True)
        prof_dump(a)
    if OPT.get("span"):
        Ls = newlbl("span")
        a.e("s_cmp_lg_u32 s3, 0", f"s_cbranch_scc1 {Ls}", "s_waitcnt vmcnt(0)", "s_memrealtime s[92:93]",
            f"s_add_u32 s32, s{P_WS}, {gen.WS_PROF}", f"s_addc_u32 s33, s{P_WS+1}, 0", f"s_mov_b32 s34, {MB}", "s_mov_b32 s35, 0x00020000",
            "s_lshl_b32 s36, s2, 3", "s_waitcnt lgkmcnt(0)", "v_mov_b32 v2, s36", "v_mov_b32 v4, s94", "v_mov_b32 v5, s92", "s_mov_b64 exec, 1",
            "buffer_store_dwordx2 v[4:5], v2, s[32:35], 0 offen", "s_waitcnt vmcnt(0)")
        a.label(Ls)
    if OPT.get("spinT"):
        a.label("L_spin")
        a.e("s_memrealtime s[92:93]", "s_waitcnt lgkmcnt(0)", "s_sub_u32 s92, s92, s94", f"s_cmp_lt_u32 s92, {OPT['spinT']}", "s_cbranch_scc1 L_spin")
    a.label("L_exit")
    a.e("s_endpgm")
    return a

def prof_dump(a):
    if OPT.get("dbgwg", -1) >= 0:
        L = newlbl("nodbg")
        a.e(f"s_cmp_lg_u32 s2, {OPT['dbgwg']}", f"s_cbranch_scc1 {L}", "s_cmp_lg_u32 s3, 0", f"s_cbranch_scc1 {L}")
        a.e("v_readlane_b32 s36, v247, 1", "v_readlane_b32 s37, v247, 13", "v_mov_b32 v250, s36", "v_mov_b32 v251, s37",
            "v_cmp_eq_u32 vcc, 0, v1", "v_cndmask_b32 v250, v250, v251, vcc", "v_cmp_eq_u32 vcc, 13, v1", "v_cndmask_b32 v250, v250, v251, vcc",
            "v_cmp_eq_u32 vcc, 15, v1", "v_cndmask_b32 v250, v250, v251, vcc", "v_sub_u32 v250, v247, v250",
            f"s_mov_b32 s32, s{P_DBG}", f"s_mov_b32 s33, s{P_DBG+1}", "s_mov_b32 s34, 256", "s_mov_b32 s35, 0x00020000",
            "v_lshlrev_b32 v251, 2, v1", "s_mov_b64 exec, 0xffff", "buffer_store_dword v250, v251, s[32:35], 0 offen", "s_waitcnt vmcnt(0)", "s_mov_b64 exec, -1")
        a.label(L)
        return

    a.e(f"s_add_u32 s32, s{P_WS}, {gen.WS_PROF}", f"s_addc_u32 s33, s{P_WS+1}, 0", f"s_mov_b32 s34, {MB}", "s_mov_b32 s35, 0x00020000")
    a.e("s_lshl_b32 s36, s2, 2", "s_add_u32 s36, s36, s3", "s_lshl_b32 s36, s36, 6",
        "v_lshlrev_b32 v250, 2, v1", "v_add_u32 v250, s36, v250", "s_mov_b64 exec, 0xffff",
        "buffer_store_dword v247, v250, s[32:35], 0 offen")
    if OPT.get("fine"):
        a.e("v_add_u32 v250, 0x40000, v250", "buffer_store_dword v246, v250, s[32:35], 0 offen")
    a.e("s_waitcnt vmcnt(0)")
PROFREGS = []

def build(path):
    a = gen_kernel()
    name = "concat_heads__spectral_gfnet__ssm_conv_h3__prompt_kernel"
    s = open("concat_heads__spectral_gfnet__ssm_conv_h3__prompt.s.ref").read().split("; Override")[0]
    s += f"; @launch grid=(512,1,1) block=(256,1,1) lds={LDS_BYTES}\n"
    s += '.amdgcn_target "amdgcn-amd-amdhsa--gfx950"\n' + gen.header(name) + a.text() + gen.descriptor(name, 256, 102)
    s = s.replace(" lds nt", " nt lds")
    open(path, "w").write(s)
    return s

if __name__ == "__main__":
    out = sys.argv[1] if len(sys.argv) > 1 else "pers.s"
    gen.PROF = "prof" in sys.argv[2:]
    for x in sys.argv[2:]:
        if "=" in x:
            k, val = x.split("="); OPT[k] = int(val)
    if OPT["wsend"]:
        base = OPT["wsend"]*MB
        WS_I1, WS_KVT, WS_I2, WS_TT, WS_SYNC = base, base+4*MB, base+8*MB, base+12*MB, base+20*MB
    s = build(out)
    print(out, len(s))
```

```python
import sys
from asmgen import *
import gen
from gen import srd, MB, WS_I1, WS_KVT, WS_I2, WS_TT, KA

PHASE = [1]
def dstamp(a, k, inv=False):
    if not OPT.get("dmax"): return
    L = newlbl("dm")
    a.e("s_cmp_lg_u32 s3, 0", f"s_cbranch_scc1 {L}", "s_memrealtime s[96:97]", "s_waitcnt lgkmcnt(0)")
    if inv: a.e("s_not_b32 s96, s96")
    a.e("s_lshl_b32 s96, s96, 8", "s_and_b32 s97, s2, 255", "s_or_b32 s96, s96, s97",
        f"s_mov_b32 s92, s{P_DBG}", f"s_mov_b32 s93, s{P_DBG+1}", "s_mov_b32 s94, 256", "s_mov_b32 s95, 0x00020000",
        f"v_mov_b32 v240, {4*k}", "v_mov_b32 v241, s96", "s_mov_b64 exec, 1",
        "buffer_atomic_umax v241, v240, s[92:95], 0 offen sc1", "s_mov_b64 exec, -1")
    a.label(L)
DMAP_A = {5: 1, 7: 2, 8: 3, 9: 4, 10: 5, 11: 6}
DMAP_B = {6: 8, 7: 9, 8: 10, 9: 11, 10: 12, 14: 13}
ROLE = ["B"]
def fstamp(a, i):
    if OPT.get("fine") != PHASE[0]: return
    a.e('s_memtime s[96:97]', 's_waitcnt lgkmcnt(0)', f'v_writelane_b32 v246, s96, {i}')
def stamp(a, i, real=False):
    if OPT.get("dmax"):
        m = DMAP_A if ROLE[0] == "A" else DMAP_B
        if i in m and i != 14: dstamp(a, m[i])
        return
    if not gen.PROF: return
    a.e('s_memrealtime s[96:97]' if real else 's_memtime s[96:97]', 's_waitcnt lgkmcnt(0)', f'v_writelane_b32 v247, s96, {i}')

WBYTES = 2048*513*2
LB_STRIDE = 12896
LDS_BYTES = 53248
SPIN_LIMIT = 400000
OPT = dict(prioA=0, prioB=0, sleep=0, nt=1, wsend=0, ntout=1, ntw=1, wlate=1, hlate=1, qA=1, fsa=6, fsb=6, shrink=0, loc=1, forceloc=-1, ldloc=1, bdelay=0, earlypub=1, wpos=1, optst=1, locflag=1, hearly=1, twoflag=1, pA1i=-1, pB1=0, ntscr=0, a3all=1, ntk=1, ntv=1, ntx=1, nth=1, hactdelay=0, b1all=1, bactwait=1, pA1a=-1, grp=1, yieldB=0, ylim=40, tlb=0, cpf=0, spec2=1, y0=0)
def NMEM(): return 32 if OPT['b1all'] else 48
def LDL(): return {0: ' sc1', 1: ' nt', 2: ' sc1 nt'}[OPT['ldloc']]
def FA(): return OPT['fsa']
def FB(): return OPT['fsb']
def NT(): return ' nt' if OPT['nt'] else ''
def NTO(): return {0: '', 1: ' nt', 2: ' sc1', 3: ' sc1 nt'}[OPT['ntout']]

P_X, P_WR, P_WI, P_Q, P_K, P_V, P_SHK, P_SSMK, P_SSMD, P_OUT, P_DBG, P_WS = 4, 6, 8, 10, 12, 14, 16, 18, 20, 22, 24, 26
S_DBG = 28
def eidx(r): return (r & 3) + 8*(r >> 2)

_lbl = [0]
def newlbl(p):
    _lbl[0] += 1
    return f"L_{p}_{_lbl[0]}"

WS_SYNC = 20*MB
S_SYN = 28
S_TGT = 101
SY_E, SY_A1, SY_A2, SY_B1, SY_B2 = 0, 4096, 4096+16384, 4096+32768, 4096+49152
sACT, sCBKT, sSUBT, sCU = 88, 89, 90, 91
sLOC, sXEXP = 79, 0
S_DBG = 12
def signal(a, s_off, vt, nafter=0, bloc=False):
    L = newlbl("sig")
    a.e(f"s_waitcnt vmcnt({nafter})", "s_barrier", "s_cmp_lg_u32 s3, 0", f"s_cbranch_scc1 {L}",
        f"v_mov_b32 v{vt}, s{s_off}", f"v_mov_b32 v{vt+1}, s{S_TGT}", "s_mov_b64 exec, 1")
    st = f"buffer_store_dword v{vt+1}, v{vt}, s[{S_SYN}:{S_SYN+3}], 0 offen"
    if bloc and OPT["locflag"]:
        dual_store(a, [st])
    else:
        a.e(st + " sc1")
    a.e("s_mov_b64 exec, -1")
    a.label(L)

def wait_flags(a, vaddr, nload, vt, s_cnt, pre_barrier=None, solo=False):
    L = newlbl("poll"); Ls = newlbl("pdone"); Lr = newlbl("prest")
    if not solo: a.e("s_cmp_lg_u32 s3, 0", f"s_cbranch_scc1 {Ls}")
    a.e(f"s_mov_b32 s{s_cnt}, 0")
    a.label(L)
    offs = ["0", "s98", "s99", "s100"]
    for i in range(nload):
        a.e(f"buffer_load_dword v{vt+i}, v{vaddr}, s[{S_SYN}:{S_SYN+3}], {offs[i]} offen sc1")
    a.e(f"s_add_u32 s{s_cnt}, s{s_cnt}, 1", "s_waitcnt vmcnt(0)")
    for i in range(nload):
        a.e(f"v_xor_b32 v{vt+i}, s{S_TGT}, v{vt+i}")
    for i in range(1, nload):
        a.e(f"v_or_b32 v{vt}, v{vt}, v{vt+i}")
    if OPT["shrink"]:
        a.e(f"v_cmp_ne_u32 vcc, 0, v{vt}", "s_and_b64 exec, exec, vcc", f"s_cbranch_execz {Lr}")
    else:
        a.e(f"v_cmp_ne_u32 vcc, 0, v{vt}", f"s_cbranch_vccz {Lr}")
    if OPT["sleep"]: a.e(f"s_sleep {OPT['sleep']}")
    a.e(f"s_cmp_lt_u32 s{s_cnt}, {SPIN_LIMIT}", f"s_cbranch_scc1 {L}")
    a.label(Lr)
    if OPT["shrink"]: a.e("s_mov_b64 exec, -1")
    a.label(Ls)
    if pre_barrier: a.e(pre_barrier)
    if not solo: a.e("s_barrier")

SY_ID = 4096 + 65536
SY_B1B = 4096 + 98304
SY_AS = 4096 + 114688
LOCW = 53244
def loc_publish(a):
    L = newlbl("pub")
    a.e("s_getreg_b32 s92, hwreg(HW_REG_XCC_ID)", "s_and_b32 s92, s92, 15", f"s_lshl_b32 s{sXEXP}, s{S_TGT}, 4", f"s_or_b32 s{sXEXP}, s{sXEXP}, s92")
    a.e("s_cmp_lg_u32 s3, 0", f"s_cbranch_scc1 {L}")
    if OPT["b1all"] and OPT["grp"]:
        a.e("s_and_b32 s92, s2, 15", "s_lshl_b32 s92, s92, 4", "s_lshr_b32 s93, s2, 4", "s_add_u32 s92, s92, s93", "s_lshl_b32 s92, s92, 6", f"s_add_u32 s92, s92, {SY_ID}")
    else:
        a.e("s_lshr_b32 s92, s2, 3", f"s_lshr_b32 s93, s{sCU}, 4", "s_add_u32 s93, s93, 32", "s_cmp_ge_u32 s2, 256", "s_cselect_b32 s92, s93, s92",
            "s_and_b32 s93, s2, 7", f"s_mul_i32 s93, s93, {NMEM()}", "s_add_u32 s92, s92, s93", "s_lshl_b32 s92, s92, 6", f"s_add_u32 s92, s92, {SY_ID}")
    a.e(
        "v_mov_b32 v10, s92", f"v_mov_b32 v11, s{sXEXP}", "s_mov_b64 exec, 1",
        f"buffer_store_dword v11, v10, s[{S_SYN}:{S_SYN+3}], 0 offen sc1", "s_mov_b64 exec, -1")
    a.label(L)

def loc_issue(a, vt):
    if OPT["b1all"] and OPT["grp"]:
        a.e(f"v_min_u32 v{vt}, 15, v1", "s_and_b32 s93, s2, 15", "s_lshl_b32 s93, s93, 4")
    else:
        a.e(f"v_min_u32 v{vt}, {NMEM()-1}, v1", "s_and_b32 s93, s2, 7", f"s_mul_i32 s93, s93, {NMEM()}")
    a.e(f"v_add_u32 v{vt}, s93, v{vt}",
        f"v_lshlrev_b32 v{vt}, 6, v{vt}", f"v_add_u32 v{vt}, {SY_ID}, v{vt}")
    L = newlbl("li")
    a.e("s_cmp_lg_u32 s3, 0", f"s_cbranch_scc1 {L}")
    a.e(f"buffer_load_dword v{vt+1}, v{vt}, s[{S_SYN}:{S_SYN+3}], 0 offen sc1")
    a.label(L)

def loc_resolve(a, vt, barrier=True, nafter=0):
    L, Ld, Ls = newlbl("locp"), newlbl("locd"), newlbl("locs")
    a.e("s_cmp_lg_u32 s3, 0", f"s_cbranch_scc1 {Ls}")
    if OPT["forceloc"] >= 0:
        a.e(f"s_waitcnt vmcnt({nafter})", f"s_mov_b32 s93, {OPT['forceloc']}")
    else:
        a.e("s_mov_b32 s92, 0", f"s_waitcnt vmcnt({nafter})")
        a.label(L)
        a.e(f"v_xor_b32 v{vt+2}, s{sXEXP}, v{vt+1}", f"v_lshrrev_b32 v{vt+3}, 4, v{vt+2}", "s_add_u32 s92, s92, 1",
            f"v_cmp_ne_u32 vcc, 0, v{vt+3}", f"s_cbranch_vccz {Ld}",
            f"s_cmp_ge_u32 s92, {SPIN_LIMIT}", f"s_cbranch_scc1 {Ld}",
            f"buffer_load_dword v{vt+1}, v{vt}, s[{S_SYN}:{S_SYN+3}], 0 offen sc1", "s_waitcnt vmcnt(0)", f"s_branch {L}")
        a.label(Ld)
        a.e(f"v_cmp_ne_u32 vcc, 0, v{vt+2}", "s_cmp_eq_u64 vcc, 0", "s_cselect_b32 s93, 1, 0")
    a.e(f"s_mov_b32 s{sLOC}, s93", f"v_mov_b32 v{vt+2}, {LOCW}", f"v_mov_b32 v{vt+3}, s93", f"ds_write_b32 v{vt+2}, v{vt+3}", "s_waitcnt lgkmcnt(0)")
    a.label(Ls)
    if barrier:
        a.e("s_barrier")
        loc_read(a, vt)

def loc_read(a, vt):
    a.e(f"v_mov_b32 v{vt+2}, {LOCW}", f"ds_read_b32 v{vt+3}, v{vt+2}", "s_waitcnt lgkmcnt(0)", f"v_readfirstlane_b32 s{sLOC}, v{vt+3}")

def dual_store(a, lines):
    L1, L2 = newlbl("stg"), newlbl("stl")
    a.e(f"s_cmp_eq_u32 s{sLOC}, 0", f"s_cbranch_scc1 {L1}")
    for l in lines: a.e(l)
    a.e(f"s_branch {L2}")
    a.label(L1)
    for l in lines: a.e(l + " sc1" if "buffer_store" in l else l)
    a.label(L2)

def a_state(a, sT, done, vt):
    L = newlbl("ast")
    a.e("s_cmp_lg_u32 s3, 0", f"s_cbranch_scc1 {L}", f"s_lshl_b32 s92, s{sT}, 6", f"s_add_u32 s92, s92, {SY_AS}",
        f"s_lshl_b32 s93, s{S_TGT}, 1", f"s_or_b32 s93, s93, {done}", f"v_mov_b32 v{vt}, s92", f"v_mov_b32 v{vt+1}, s93", "s_mov_b64 exec, 1",
        f"buffer_store_dword v{vt+1}, v{vt}, s[{S_SYN}:{S_SYN+3}], 0 offen", "s_mov_b64 exec, -1")
    a.label(L)

def b_yield(a, vt):
    L, Ld = newlbl("yl"), newlbl("yd")
    a.e(f"s_lshl_b32 s92, s{sCU}, 6", f"s_add_u32 s92, s92, {SY_AS}", f"v_mov_b32 v{vt}, s92", f"s_lshl_b32 s75, s{S_TGT}, 1", "s_mov_b32 s92, 0")
    if OPT["yieldB"] == 2: a.e("s_or_b32 s75, s75, 1")
    a.label(L)
    a.e(f"buffer_load_dword v{vt+1}, v{vt}, s[{S_SYN}:{S_SYN+3}], 0 offen " + ("sc1" if OPT.get("ysc", 1) else "nt"), "s_add_u32 s92, s92, 1", "s_waitcnt vmcnt(0)",
        f"v_readfirstlane_b32 s93, v{vt+1}", "s_cmp_lg_u32 s93, s75" if OPT["yieldB"] == 1 else "s_cmp_eq_u32 s93, s75", f"s_cbranch_scc1 {Ld}",
        f"s_cmp_lt_u32 s92, {OPT['ylim']}", f"s_cbranch_scc1 {L}")
    a.label(Ld)

def fin_epoch(a):
    a.e("s_waitcnt lgkmcnt(0)", f"s_add_u32 s{S_TGT}, s{S_TGT}, 1")

def bump(a, s_off, vt):
    a.e(f"v_mov_b32 v{vt}, s{s_off}", f"v_mov_b32 v{vt+1}, s{S_TGT}", "s_mov_b64 exec, 1",
        f"buffer_store_dword v{vt+1}, v{vt}, s[{S_SYN}:{S_SYN+3}], 0 offen sc1", "s_mov_b64 exec, -1")

F_M, F_G, F_IN0, F_IN1, F_OUTOFF, F_WR, F_RD0, F_RD1, F_MM = 2, 3, 4, 5, 6, 7, 8, 9, 10
F_T = 11
F_IN, F16RE, F16IM, F_TWC, F_TWS, F_DRE, F_DIM, F_P, F_TMP, F32RE, F32IM = 16, 48, 52, 56, 88, 120, 136, 152, 168, 176, 192
SI_OFF, SO_OFF = 52, 68
SO_LIST = [68, 69, 70, 71, 76, 77, 78, 79]

def fft512_addr(a, s_sa, s_cb):
    a.e(f"v_and_b32 v{F_M}, 15, v1", f"v_lshrrev_b32 v{F_G}, 4, v1")
    a.e(f"v_lshlrev_b32 v{F_IN0}, 20, v{F_G}", f"v_lshl_add_u32 v{F_IN0}, v{F_M}, 2, v{F_IN0}", f"v_add_u32 v{F_IN1}, {4*8192}, v{F_IN0}")
    a.e(f"s_lshl_b32 s48, s{s_sa}, 11", f"s_lshl_b32 s49, s{s_cb}, 6", "s_add_u32 s48, s48, s49",
        "s_lshl_b32 s50, s3, 16", "s_add_u32 s48, s48, s50")
    for aa in range(4):
        for i in range(4):
            a.e(f"s_add_u32 s{SI_OFF+4*aa+i}, s48, {(32*i+aa)*8192}")

def fft512_loads(a, SIN, mod=""):
    for hh in range(2):
        for aa in range(4):
            for i in range(4):
                a.e(f"buffer_load_dword v{F_IN+16*hh+4*aa+i}, v{F_IN0+hh}, s[{SIN}:{SIN+3}], s{SI_OFF+4*aa+i} offen {mod}")

def fft512_addr2(a, s_sa, s_cb, orow, ostr):
    a.e(f"s_mov_b32 s51, {16*ostr}", f"v_mul_lo_u32 v{F_OUTOFF}, v{F_M}, s51", f"v_lshl_add_u32 v{F_OUTOFF}, v{F_G}, 4, v{F_OUTOFF}")
    a.e(f"s_mul_i32 s48, s{s_sa}, {orow}", f"s_lshl_b32 s49, s{s_cb}, 6", "s_add_u32 s48, s48, s49",
        f"s_mul_i32 s50, s3, {4*ostr}", "s_add_u32 s48, s48, s50")
    for b in range(4):
        for h in range(2):
            a.e(f"s_add_u32 s{SO_LIST[2*b+h]}, s48, {(b+256*h)*ostr}")
    a.e(f"v_and_b32 v{F_T}, 7, v{F_M}", "s_lshl_b32 s50, s3, 1", f"v_xor_b32 v{F_T+1}, s50, v{F_T}",
        f"v_lshlrev_b32 v{F_WR}, 4, v{F_T+1}", f"v_lshl_add_u32 v{F_WR}, v{F_M}, 7, v{F_WR}",
        f"v_lshl_add_u32 v{F_WR}, v{F_G}, 13, v{F_WR}")
    a.e(f"v_xor_b32 v{F_T+1}, v{F_G}, v{F_T}", f"v_lshlrev_b32 v{F_RD0}, 4, v{F_T+1}",
        f"v_lshl_add_u32 v{F_RD0}, v{F_M}, 7, v{F_RD0}", "s_lshl_b32 s50, s3, 13",
        f"v_add_u32 v{F_RD0}, s50, v{F_RD0}", f"v_xor_b32 v{F_RD1}, 64, v{F_RD0}")

def fft512_consts(a):
    T, TMP = F_T, F_TMP
    XS, XB = T, T+1
    a.e(f"v_cvt_f32_u32 v{XS}, v{F_M}", f"v_mul_f32 v{XS}, {f32hex(1/32)}, v{XS}",
        f"v_cvt_f32_u32 v{T+2}, v{F_G}", f"v_mul_f32 v{T+2}, 4.0, v{T+2}",
        f"v_mul_f32 v{XB}, v{T+2}, v{XS}")
    a.e(f"v_and_b32 v{F_MM}, 1, v{F_M}", f"v_mul_u32_u24 v{F_MM}, 0x8000, v{F_MM}",
        f"v_lshl_or_b32 v{F_MM}, v{F_MM}, 16, v{F_MM}", "s_mov_b32 s50, 0x80008000")
    for i in range(4):
        x = TMP; cs = TMP+1; sn = TMP+2; x2 = TMP+3; cs2 = TMP+4; sn2 = TMP+5
        a.e(f"v_fmamk_f32 v{x}, v{XS}, {f32hex(float(i))}, v{XB}" if i else f"v_mov_b32 v{x}, v{XB}")
        a.e(f"v_add_f32 v{x2}, v{x}, v{x}")
        a.e(f"v_cos_f32 v{cs}, v{x}", f"v_sin_f32 v{sn}, v{x}", f"v_cos_f32 v{cs2}, v{x2}", f"v_sin_f32 v{sn2}, v{x2}")
        a.e(f"v_cvt_pk_bf16_f32 v{F32RE+i}, v{cs}, v{sn}", f"v_cvt_pk_bf16_f32 v{F32IM+i}, -v{sn}, v{cs}",
            f"v_cvt_pk_bf16_f32 v{F16RE+i}, v{cs2}, v{sn2}", f"v_cvt_pk_bf16_f32 v{F16IM+i}, -v{sn2}, v{cs2}")
    for base in (F32RE, F32IM):
        for i in range(4):
            a.e(f"v_xor_b32 v{base+4+i}, v{F_MM}, v{base+i}")
        for t in range(2):
            for i in range(4):
                src = base+4*t+i
                if i & 1: a.e(f"v_xor_b32 v{base+8+4*t+i}, s50, v{src}")
                else:     a.e(f"v_mov_b32 v{base+8+4*t+i}, v{src}")
    a.e(f"v_cvt_f32_u32 v{TMP}, s3", f"v_mul_f32 v{TMP}, {f32hex(8/512)}, v{TMP}")
    for r in range(4):
        a.e(f"v_add_f32 v{TMP+4+r}, {f32hex(float(r)) if r else 0}, v{T+2}")
    for aa in range(8):
        a.e(f"v_add_f32 v{TMP+1}, {f32hex(aa/512) if aa else 0}, v{TMP}")
        for r in range(4):
            a.e(f"v_mul_f32 v{T+3+(r&1)}, v{TMP+1}, v{TMP+4+r}",
                f"v_cos_f32 v{F_TWC+4*aa+r}, v{T+3+(r&1)}", f"v_sin_f32 v{F_TWS+4*aa+r}, v{T+3+(r&1)}")

def fft512_compute(a, SOUT, neg_im, nafter, stmod, st0, fs=0, hook=None):
    TMP = F_TMP
    stamp(a, st0)
    for hh in range(2):
        fstamp(a, fs+5*hh)
        for aa in range(4):
            a.e(f"s_waitcnt vmcnt({28-16*hh-4*aa+nafter})")
            a.e(f"v_mfma_f32_16x16x32_bf16 {v(F_DRE+4*aa,4)}, {v(F16RE,4)}, {v(F_IN+16*hh+4*aa,4)}, 0",
                f"v_mfma_f32_16x16x32_bf16 {v(F_DIM+4*aa,4)}, {v(F16IM,4)}, {v(F_IN+16*hh+4*aa,4)}, 0")
        if hh == 1:
            stamp(a, st0+1)
            if hook: hook()
        fstamp(a, fs+5*hh+1)
        for aa in range(4):
            for p in range(2):
                re, im = F_DRE+4*aa+2*p, F_DIM+4*aa+2*p
                tc, ts = F_TWC+16*hh+4*aa+2*p, F_TWS+16*hh+4*aa+2*p
                t0, t1 = TMP+4*p, TMP+4*p+2
                a.e(f"v_pk_mul_f32 {v(t0,2)}, {v(re,2)}, {v(tc,2)}",
                    f"v_pk_mul_f32 {v(t1,2)}, {v(im,2)}, {v(tc,2)}",
                    f"v_pk_fma_f32 {v(t0,2)}, {v(im,2)}, {v(ts,2)}, {v(t0,2)}",
                    f"v_pk_fma_f32 {v(t1,2)}, {v(re,2)}, {v(ts,2)}, {v(t1,2)} neg_lo:[1,0,0] neg_hi:[1,0,0]")
                for e in range(2):
                    r = 2*p+e
                    a.e(f"v_cvt_pk_bf16_f32 v{F_P+4*r+aa}, v{t0+e}, v{t1+e}")
        fstamp(a, fs+5*hh+2)
        if hh == 1: a.e(f"v_xor_b32 v{F_WR}, 16, v{F_WR}")
        for r in range(4):
            a.e(f"ds_write_b128 v{F_WR}, {v(F_P+4*r,4)} offset:{r*2048}")
    a.e("s_waitcnt lgkmcnt(0)")
    fstamp(a, fs+8)
    a.e("s_barrier")
    fstamp(a, fs+9)
    for b in range(4):
        a.e(f"ds_read_b128 {v(F_IN+8*b,4)}, v{F_RD0} offset:{b*2048}",
            f"ds_read_b128 {v(F_IN+8*b+4,4)}, v{F_RD1} offset:{b*2048}")
    sg = "-" if neg_im else ""
    def mf(bb):
        D0 = [F_DRE, F_DIM] if bb == 0 else [F_TWC, F_TWC+16]
        for bl in range(2):
            b = 2*bb+bl
            a.e(f"s_waitcnt lgkmcnt({6-2*b})")
            for t in range(2):
                for h in range(2):
                    for (D_, F_) in ((D0[0], F32RE), (D0[1], F32IM)):
                        d = D_+8*bl+4*h
                        c = "0" if t == 0 else v(d, 4)
                        a.e(f"v_mfma_f32_16x16x32_bf16 {v(d,4)}, {v(F_IN+8*b+4*t,4)}, {v(F_+8*h+4*t,4)}, {c}")
    def st(bb):
        D0 = [F_DRE, F_DIM] if bb == 0 else [F_TWC, F_TWC+16]
        PB = F_P if bb == 0 else F_TWS
        out = []
        for bl in range(2):
            b = 2*bb+bl
            for h in range(2):
                idx = 8*bl+4*h
                for r in range(4):
                    out.append(f"v_cvt_pk_bf16_f32 v{PB+idx+r}, v{D0[0]+idx+r}, {sg}v{D0[1]+idx+r}")
                out.append(f"buffer_store_dwordx4 {v(PB+idx,4)}, v{F_OUTOFF}, s[{SOUT}:{SOUT+3}], s{SO_LIST[2*b+h]} offen {stmod}")
        return out
    mf(0)
    n0 = len(a.lines)
    mf(1)
    m1 = a.lines[n0:]; del a.lines[n0:]
    s0 = st(0)
    k = 0
    seen = 0
    for l in m1:
        a.lines.append(l)
        if "v_mfma" in l:
            seen += 1
            if seen > 4:
                for _ in range(2):
                    if k < len(s0): a.e(s0[k]); k += 1
    while k < len(s0): a.e(s0[k]); k += 1
    fstamp(a, fs+10)
    for l in st(1): a.e(l)

def f8_addr(a, s_sa, s_cb, orow, ostr):
    a.e(f"v_and_b32 v{F_M}, 15, v1", f"v_lshrrev_b32 v{F_G}, 4, v1")
    a.e(f"v_and_b32 v{F_T}, 7, v1", f"v_bfe_u32 v{F_T+1}, v1, 3, 1",
        f"v_lshlrev_b32 v{F_IN0}, 20, v{F_G}", f"v_lshl_add_u32 v{F_IN0}, v{F_T+1}, 15, v{F_IN0}",
        f"v_lshl_add_u32 v{F_IN0}, v{F_T}, 2, v{F_IN0}")
    a.e(f"s_lshl_b32 s48, s{s_sa}, 11", f"s_lshl_b32 s49, s{s_cb}, 5", "s_add_u32 s48, s48, s49",
        "s_lshl_b32 s50, s3, 16", "s_add_u32 s48, s48, s50")
    for aa in range(4):
        for i in range(4):
            a.e(f"s_add_u32 s{SI_OFF+4*aa+i}, s48, {(32*i+aa)*8192}")
    a.e(f"v_lshrrev_b32 v{F_T+2}, 1, v{F_G}", f"v_lshl_add_u32 v{F_T+2}, v{F_M}, 4, v{F_T+2}",
        f"s_mov_b32 s51, {ostr}", f"v_mul_lo_u32 v{F_OUTOFF}, v{F_T+2}, s51",
        f"v_and_b32 v{F_T+2}, 1, v{F_G}", f"v_lshl_add_u32 v{F_OUTOFF}, v{F_T+2}, 4, v{F_OUTOFF}")
    a.e(f"s_mul_i32 s48, s{s_sa}, {orow}", f"s_lshl_b32 s49, s{s_cb}, 5", "s_add_u32 s48, s48, s49",
        f"s_mul_i32 s50, s3, {4*ostr}", "s_add_u32 s48, s48, s50")
    for b in range(2):
        for h in range(2):
            a.e(f"s_add_u32 s{SO_LIST[2*b+h]}, s48, {(2*b+256*h)*ostr}")
    a.e("s_lshl_b32 s50, s3, 1", f"v_add_u32 v{F_T+2}, s50, v{F_T+1}", f"v_xor_b32 v{F_T+2}, v{F_T+2}, v{F_T}",
        f"v_lshlrev_b32 v{F_WR}, 4, v{F_T+2}", f"v_lshl_add_u32 v{F_WR}, v{F_T}, 7, v{F_WR}", f"v_lshl_add_u32 v{F_WR}, v{F_G}, 12, v{F_WR}")
    a.e(f"v_xor_b32 v{F_T+2}, v{F_G}, v{F_T}", f"v_lshlrev_b32 v{F_RD0}, 4, v{F_T+2}",
        f"v_lshl_add_u32 v{F_RD0}, v{F_T}, 7, v{F_RD0}", f"v_lshl_add_u32 v{F_RD0}, v{F_T+1}, 10, v{F_RD0}",
        "s_lshl_b32 s50, s3, 12", f"v_add_u32 v{F_RD0}, s50, v{F_RD0}", f"v_xor_b32 v{F_RD1}, 64, v{F_RD0}")

def f8_consts(a):
    T, TMP = F_T, F_TMP
    XS, XB = T, T+1
    a.e(f"v_cvt_f32_u32 v{XS}, v{F_M}", f"v_mul_f32 v{XS}, {f32hex(1/32)}, v{XS}",
        f"v_cvt_f32_u32 v{T+2}, v{F_G}", f"v_mul_f32 v{T+2}, 4.0, v{T+2}",
        f"v_mul_f32 v{XB}, v{T+2}, v{XS}")
    a.e(f"v_and_b32 v{F_MM}, 1, v{F_M}", f"v_mul_u32_u24 v{F_MM}, 0x8000, v{F_MM}",
        f"v_lshl_or_b32 v{F_MM}, v{F_MM}, 16, v{F_MM}", "s_mov_b32 s50, 0x80008000")
    for i in range(4):
        x = TMP; cs = TMP+1; sn = TMP+2; x2 = TMP+3; cs2 = TMP+4; sn2 = TMP+5
        a.e(f"v_fmamk_f32 v{x}, v{XS}, {f32hex(float(i))}, v{XB}" if i else f"v_mov_b32 v{x}, v{XB}")
        a.e(f"v_add_f32 v{x2}, v{x}, v{x}")
        a.e(f"v_cos_f32 v{cs}, v{x}", f"v_sin_f32 v{sn}, v{x}", f"v_cos_f32 v{cs2}, v{x2}", f"v_sin_f32 v{sn2}, v{x2}")
        a.e(f"v_cvt_pk_bf16_f32 v{F32RE+i}, v{cs}, v{sn}", f"v_cvt_pk_bf16_f32 v{F32IM+i}, -v{sn}, v{cs}",
            f"v_cvt_pk_bf16_f32 v{F16RE+i}, v{cs2}, v{sn2}", f"v_cvt_pk_bf16_f32 v{F16IM+i}, -v{sn2}, v{cs2}")
    for base in (F32RE, F32IM):
        for i in range(4):
            a.e(f"v_xor_b32 v{base+4+i}, v{F_MM}, v{base+i}")
        for t in range(2):
            for i in range(4):
                src = base+4*t+i
                if i & 1: a.e(f"v_xor_b32 v{base+8+4*t+i}, s50, v{src}")
                else:     a.e(f"v_mov_b32 v{base+8+4*t+i}, v{src}")
    a.e(f"v_bfe_u32 v{TMP}, v1, 3, 1", "s_lshl_b32 s50, s3, 1", f"v_add_u32 v{TMP}, s50, v{TMP}",
        f"v_cvt_f32_u32 v{TMP}, v{TMP}", f"v_mul_f32 v{TMP}, {f32hex(4/512)}, v{TMP}")
    for r in range(4):
        a.e(f"v_add_f32 v{TMP+4+r}, {f32hex(float(r)) if r else 0}, v{T+2}")
    for aa in range(4):
        a.e(f"v_add_f32 v{TMP+1}, {f32hex(aa/512) if aa else 0}, v{TMP}")
        for r in range(4):
            a.e(f"v_mul_f32 v{T+3+(r&1)}, v{TMP+1}, v{TMP+4+r}",
                f"v_cos_f32 v{F_TWC+4*aa+r}, v{T+3+(r&1)}", f"v_sin_f32 v{F_TWS+4*aa+r}, v{T+3+(r&1)}")

def f8_run(a, SIN, SOUT, ldmod, stmod):
    TMP = F_TMP
    for aa in range(4):
        for i in range(4):
            a.e(f"buffer_load_dword v{F_IN+4*aa+i}, v{F_IN0}, s[{SIN}:{SIN+3}], s{SI_OFF+4*aa+i} offen {ldmod}")
    fstamp(a, 3)
    for aa in range(4):
        a.e(f"s_waitcnt vmcnt({12-4*aa})")
        a.e(f"v_mfma_f32_16x16x32_bf16 {v(F_DRE+4*aa,4)}, {v(F16RE,4)}, {v(F_IN+4*aa,4)}, 0",
            f"v_mfma_f32_16x16x32_bf16 {v(F_DIM+4*aa,4)}, {v(F16IM,4)}, {v(F_IN+4*aa,4)}, 0")
    fstamp(a, 1)
    for aa in range(4):
        for p in range(2):
            re, im = F_DRE+4*aa+2*p, F_DIM+4*aa+2*p
            tc, ts = F_TWC+4*aa+2*p, F_TWS+4*aa+2*p
            t0, t1 = TMP+4*p, TMP+4*p+2
            a.e(f"v_pk_mul_f32 {v(t0,2)}, {v(re,2)}, {v(tc,2)}",
                f"v_pk_mul_f32 {v(t1,2)}, {v(im,2)}, {v(tc,2)}",
                f"v_pk_fma_f32 {v(t0,2)}, {v(im,2)}, {v(ts,2)}, {v(t0,2)}",
                f"v_pk_fma_f32 {v(t1,2)}, {v(re,2)}, {v(ts,2)}, {v(t1,2)} neg_lo:[1,0,0] neg_hi:[1,0,0]")
            for e in range(2):
                r = 2*p+e
                a.e(f"v_cvt_pk_bf16_f32 v{F_P+4*r+aa}, v{t0+e}, v{t1+e}")
    for r in range(4):
        a.e(f"ds_write_b128 v{F_WR}, {v(F_P+4*r,4)} offset:{r*1024}")
    a.e("s_waitcnt lgkmcnt(0)")
    fstamp(a, 8)
    a.e("s_barrier")
    fstamp(a, 9)
    for b in range(2):
        a.e(f"ds_read_b128 {v(F_IN+8*b,4)}, v{F_RD0} offset:{b*2048}",
            f"ds_read_b128 {v(F_IN+8*b+4,4)}, v{F_RD1} offset:{b*2048}")
    for b in range(2):
        a.e(f"s_waitcnt lgkmcnt({2-2*b})")
        for t in range(2):
            for h in range(2):
                for (D_, F_) in ((F_DRE, F32RE), (F_DIM, F32IM)):
                    d = D_+8*b+4*h
                    c = "0" if t == 0 else v(d, 4)
                    a.e(f"v_mfma_f32_16x16x32_bf16 {v(d,4)}, {v(F_IN+8*b+4*t,4)}, {v(F_+8*h+4*t,4)}, {c}")
    fstamp(a, 10)
    for b in range(2):
        for h in range(2):
            idx = 8*b+4*h
            for r in range(4):
                a.e(f"v_cvt_pk_bf16_f32 v{F_P+idx+r}, v{F_DRE+idx+r}, -v{F_DIM+idx+r}")
            a.e(f"buffer_store_dwordx4 {v(F_P+idx,4)}, v{F_OUTOFF}, s[{SOUT}:{SOUT+3}], s{SO_LIST[2*b+h]} offen {stmod}")

IDX, G_, VG, VGW, VRR, VHR, VST, VW = 2, 3, 6, 7, 8, 12, 13, 14
CRE, CIM, TWC, TWS, WR, WI, ARE, AIM, DF, GA, HRE, HIM, GB, TMP = 16, 32, 48, 64, 80, 96, 112, 128, 144, 160, 164, 168, 172, 188
W2R, W2I, SP, PF, PF2 = 204, 220, 236, 248, 252
LW = 32768; LSC = 16384; LW2 = 49152

def w_dma(a, SWR, SWI, s_rowoff, s_mirroff, s_ldsbase, vlane16):
    a.e(f"s_mov_b32 m0, s{s_ldsbase}", f"buffer_load_dwordx4 v{vlane16}, s[{SWR}:{SWR+3}], s{s_rowoff} offen lds" + NT())
    a.e(f"s_add_u32 s93, s{s_ldsbase}, 1024", "s_mov_b32 m0, s93", f"buffer_load_dwordx4 v{vlane16}, s[{SWI}:{SWI+3}], s{s_rowoff} offen lds" + NT())
    a.e(f"s_add_u32 s92, s{s_mirroff}, 2")
    a.e(f"s_add_u32 s93, s{s_ldsbase}, 2048", "s_mov_b32 m0, s93", f"buffer_load_dwordx4 v{vlane16}, s[{SWR}:{SWR+3}], s92 offen lds" + NT())
    a.e(f"s_add_u32 s93, s{s_ldsbase}, 3072", "s_mov_b32 m0, s93", f"buffer_load_dwordx4 v{vlane16}, s[{SWI}:{SWI+3}], s92 offen lds" + NT())

def pf_loads(a, SWR, SWI, s_rowoff, s_mirroff, dst, vt):
    a.e(f"v_mov_b32 v{vt}, s{s_mirroff}", f"v_mov_b32 v{vt+1}, s{s_rowoff}", f"v_add_u32 v{vt+1}, 1024, v{vt+1}")
    a.e(f"buffer_load_short_d16_hi v{dst}, v{vt}, s[{SWR}:{SWR+3}], 0 offen",
        f"buffer_load_short_d16_hi v{dst+1}, v{vt}, s[{SWI}:{SWI+3}], 0 offen",
        f"buffer_load_short_d16_hi v{dst+2}, v{vt+1}, s[{SWR}:{SWR+3}], 0 offen",
        f"buffer_load_short_d16_hi v{dst+3}, v{vt+1}, s[{SWI}:{SWI+3}], 0 offen")

def w_lds_reads(a, vlo, vhi, dr, di):
    for (dst, o) in ((dr, 0), (di, 1024)):
        for r in range(16):
            e = eidx(r)
            if r < 8: a.e(f"ds_read_u16_d16_hi v{dst+r}, v{vlo} offset:{o+64*e}")
            else:     a.e(f"ds_read_u16_d16_hi v{dst+r}, v{vhi} offset:{o+64*(27-e)}")

def fix_w(a, dr, di, pf):
    a.e("v_cmp_eq_u32 vcc, 0, v1")
    for (r, o) in ((0, 0), (8, 2)):
        a.e(f"v_add_f32 v{TMP}, v{dr+r}, v{pf+o}", f"v_mul_f32 v{TMP}, 0.5, v{TMP}",
            f"v_sub_f32 v{TMP+1}, v{di+r}, v{pf+o+1}", f"v_mul_f32 v{TMP+1}, 0.5, v{TMP+1}",
            f"v_cndmask_b32 v{dr+r}, v{dr+r}, v{TMP}, vcc", f"v_cndmask_b32 v{di+r}, v{di+r}, v{TMP+1}, vcc")

def fft1024(a, mid=None):
    for t in range(4):
        c0 = "0" if t == 0 else v(ARE, 16); c1 = "0" if t == 0 else v(AIM, 16)
        a.e(f"v_mfma_f32_32x32x16_bf16 {v(ARE,16)}, {v(DF+4*t,4)}, {v(CRE+4*t,4)}, {c0}",
            f"v_mfma_f32_32x32x16_bf16 {v(AIM,16)}, {v(DF+4*t,4)}, {v(CIM+4*t,4)}, {c1}")
    for p in range(8):
        re, im, tc, ts = ARE+2*p, AIM+2*p, TWC+2*p, TWS+2*p
        t0 = TMP+4*(p & 1); t1 = t0+2
        a.e(f"v_pk_mul_f32 {v(t0,2)}, {v(re,2)}, {v(tc,2)}",
            f"v_pk_mul_f32 {v(t1,2)}, {v(im,2)}, {v(tc,2)}",
            f"v_pk_fma_f32 {v(t0,2)}, {v(im,2)}, {v(ts,2)}, {v(t0,2)}",
            f"v_pk_fma_f32 {v(t1,2)}, {v(re,2)}, {v(ts,2)}, {v(t1,2)} neg_lo:[1,0,0] neg_hi:[1,0,0]")
        for e in range(2):
            a.e(f"v_cvt_pk_bf16_f32 v{DF+2*p+e}, v{t0+e}, v{t1+e}")
    for t in range(4):
        if mid and t == 1: mid()
        c0 = "0" if t == 0 else v(ARE, 16); c1 = "0" if t == 0 else v(AIM, 16)
        a.e(f"v_mfma_f32_32x32x16_bf16 {v(ARE,16)}, {v(CRE+4*t,4)}, {v(DF+4*t,4)}, {c0}",
            f"v_mfma_f32_32x32x16_bf16 {v(AIM,16)}, {v(CIM+4*t,4)}, {v(DF+4*t,4)}, {c1}")

def a2_consts(a, sT):
    a.e(f"v_and_b32 v{IDX}, 31, v1", f"v_lshrrev_b32 v{G_}, 5, v1")
    XS, XB = TMP, TMP+1
    a.e(f"v_cvt_f32_u32 v{TMP+2}, v{IDX}", f"v_cvt_f32_u32 v{TMP+3}, v{G_}", f"v_mul_f32 v{TMP+3}, 4.0, v{TMP+3}",
        f"v_mul_f32 v{XS}, {f32hex(1/32)}, v{TMP+2}", f"v_mul_f32 v{XB}, v{TMP+3}, v{XS}")
    a.e(f"v_and_b32 v{TMP+4}, 1, v{IDX}", f"v_mul_u32_u24 v{TMP+4}, 0x8000, v{TMP+4}", f"v_lshl_or_b32 v{TMP+4}, v{TMP+4}, 16, v{TMP+4}")
    for t in range(2):
        for i in range(4):
            c = float(8*t+i); x = TMP+5+3*(i & 1)
            a.e(f"v_fmamk_f32 v{x}, v{XS}, {f32hex(c)}, v{XB}" if c else f"v_mov_b32 v{x}, v{XB}")
            a.e(f"v_cos_f32 v{x+1}, v{x}", f"v_sin_f32 v{x+2}, v{x}")
            a.e(f"v_cvt_pk_bf16_f32 v{CRE+4*t+i}, v{x+1}, v{x+2}", f"v_cvt_pk_bf16_f32 v{CIM+4*t+i}, -v{x+2}, v{x+1}")
    for base in (CRE, CIM):
        for i in range(8):
            a.e(f"v_xor_b32 v{base+8+i}, v{TMP+4}, v{base+i}")
    a.e(f"v_mul_f32 v{XS}, {f32hex(1/1024)}, v{TMP+2}", f"v_mul_f32 v{XB}, v{TMP+3}, v{XS}")
    for r in range(16):
        c = float(eidx(r)); x = TMP+5+(r & 1)
        a.e(f"v_fmamk_f32 v{x}, v{XS}, {f32hex(c)}, v{XB}" if c else f"v_mov_b32 v{x}, v{XB}")
        a.e(f"v_cos_f32 v{TWC+r}, v{x}", f"v_sin_f32 v{TWS+r}, v{x}")
    LO, HI, Q, AV, XA0, XA1, E0, E1 = TMP, TMP+1, TMP+2, TMP+3, TMP+4, TMP+5, TMP+6, TMP+7
    JF, KEY, T2, PO, PAR, N16, G4, CS = [TMP+8+i for i in range(8)]
    Lspec, Ldone = newlbl("ghspec"), newlbl("ghdone")
    a.e(f"v_and_b32 v{LO}, 3, v{IDX}", f"v_bfe_u32 v{HI}, v{IDX}, 2, 2")
    a.e(f"v_and_b32 v{N16}, 15, v1", f"v_lshrrev_b32 v{G4}, 4, v1")
    a.e(f"s_cmp_eq_u32 s{sT}, 0", f"s_cbranch_scc1 {Lspec}")
    a.e(f"v_cvt_f32_u32 v{T2}, s{sT}", f"v_cvt_f32_u32 v{JF}, v{HI}", f"v_fmamk_f32 v{JF}, v{JF}, {f32hex(512.0)}, v{T2}",
        f"v_mul_f32 v{JF}, {f32hex(1/2048)}, v{JF}",
        f"v_cvt_f32_u32 v{XA0}, v{G_}", f"v_add_f32 v{XA0}, v{XA0}, v{XA0}", f"v_add_f32 v{XA1}, 1.0, v{XA0}",
        f"v_mul_f32 v{XA0}, v{XA0}, v{JF}", f"v_mul_f32 v{XA1}, v{XA1}, v{JF}",
        f"v_lshlrev_b32 v{Q}, 3, v{LO}", "s_mov_b32 s50, 0x4631914C", f"v_lshrrev_b32 v{Q}, v{Q}, s50",
        f"v_mov_b32 v{AV}, 0.5", f"v_cmp_gt_u32 vcc, 16, v{IDX}", f"v_cndmask_b32 v{AV}, 0, v{AV}, vcc")
    for jj2 in range(4):
        for e in range(2):
            jj = 2*jj2+e
            xa = XA1 if jj >> 2 else XA0
            a.e(f"v_bfe_u32 v{E0+e}, v{Q}, {2*(jj&3)}, 2", f"v_cvt_f32_u32 v{E0+e}, v{E0+e}",
                f"v_fmamk_f32 v{E0+e}, v{E0+e}, {f32hex(0.25)}, v{xa}", f"v_cos_f32 v{E0+e}, v{E0+e}",
                f"v_mul_f32 v{E0+e}, v{E0+e}, v{AV}")
        a.e(f"v_cvt_pk_bf16_f32 v{GA+jj2}, v{E0}, v{E1}")
    a.e(f"v_bfe_u32 v{HI}, v{N16}, 1, 2", f"v_cvt_f32_u32 v{KEY}, v{HI}", f"v_mul_f32 v{KEY}, {f32hex(1/2048)}, v{KEY}",
        f"v_and_b32 v{JF}, 1, v{G4}", f"v_cvt_f32_u32 v{JF}, v{JF}", f"v_fmamk_f32 v{JF}, v{JF}, {f32hex(1024.0)}, v{T2}",
        f"v_add_f32 v{XA1}, {f32hex(512.0)}, v{JF}", f"v_mul_f32 v{XA0}, v{JF}, v{KEY}", f"v_mul_f32 v{XA1}, v{XA1}, v{KEY}",
        f"v_lshrrev_b32 v{CS}, 1, v{G4}", f"v_lshrrev_b32 v{AV}, 3, v{N16}", f"v_cmp_eq_u32 vcc, v{CS}, v{AV}",
        f"v_mov_b32 v{AV}, {f32hex(2.0**-21)}", f"v_cndmask_b32 v{AV}, 0, v{AV}, vcc",
        f"v_and_b32 v{PO}, 1, v{N16}")
    for part, Hd in ((0, HRE), (1, HIM)):
        w0, w1 = (0x1C, 0xBC) if part == 0 else (0x61, 0x6B)
        a.e(f"v_mov_b32 v{Q}, {w0}", f"v_mov_b32 v{PAR}, {w1}", f"v_cmp_eq_u32 vcc, 1, v{PO}", f"v_cndmask_b32 v{Q}, v{Q}, v{PAR}, vcc")
        for jj2 in range(4):
            for e in range(2):
                jj = 2*jj2+e
                xa = XA1 if jj >> 2 else XA0
                a.e(f"v_bfe_u32 v{E0+e}, v{Q}, {2*(jj&3)}, 2", f"v_cvt_f32_u32 v{E0+e}, v{E0+e}",
                    f"v_fmamk_f32 v{E0+e}, v{E0+e}, {f32hex(0.25)}, v{xa}", f"v_cos_f32 v{E0+e}, v{E0+e}",
                    f"v_mul_f32 v{E0+e}, v{E0+e}, v{AV}")
            a.e(f"v_cvt_pk_bf16_f32 v{Hd+jj2}, v{E0}, v{E1}")
    a.e(f"s_branch {Ldone}")
    a.label(Lspec)
    a.e(f"v_and_b32 v{PO}, 1, v{LO}", f"v_lshrrev_b32 v{PAR}, 1, v{LO}")
    a.e(f"v_lshlrev_b32 v{JF}, 2, v{HI}", "s_mov_b32 s50, 0x3120", f"v_lshrrev_b32 v{JF}, v{JF}, s50", f"v_and_b32 v{JF}, 15, v{JF}",
        f"v_lshlrev_b32 v{JF}, 8, v{JF}", f"v_lshlrev_b32 v{T2}, 10, v{PO}",
        f"v_cmp_eq_u32 vcc, 0, v{HI}", f"v_cndmask_b32 v{JF}, v{JF}, v{T2}, vcc", f"v_mov_b32 v{T2}, 0",
        f"v_cndmask_b32 v{Q}, v{PO}, v{T2}, vcc",
        f"v_cvt_f32_u32 v{JF}, v{JF}", f"v_mul_f32 v{JF}, {f32hex(1/2048)}, v{JF}",
        f"v_cvt_f32_u32 v{Q}, v{Q}", f"v_mul_f32 v{Q}, {f32hex(0.25)}, v{Q}",
        f"v_cvt_f32_u32 v{XA0}, v{G_}", f"v_add_f32 v{XA0}, v{XA0}, v{XA0}", f"v_add_f32 v{XA1}, 1.0, v{XA0}",
        f"v_fma_f32 v{XA0}, v{XA0}, v{JF}, v{Q}", f"v_fma_f32 v{XA1}, v{XA1}, v{JF}, v{Q}",
        f"v_cos_f32 v{XA0}, v{XA0}", f"v_cos_f32 v{XA1}, v{XA1}",
        f"v_lshrrev_b32 v{KEY}, 1, v{HI}", f"v_lshl_add_u32 v{KEY}, v{KEY}, 1, v{PAR}",
        f"v_lshrrev_b32 v{T2}, 4, v{IDX}", f"v_lshl_add_u32 v{KEY}, v{T2}, 2, v{KEY}", f"v_mov_b32 v{T2}, 0")
    for jj2 in range(4):
        for e in range(2):
            jj = 2*jj2+e
            xa = XA1 if jj >> 2 else XA0
            a.e(f"v_cmp_eq_u32 vcc, {jj&3}, v{KEY}", f"v_cndmask_b32 v{E0+e}, v{T2}, v{xa}, vcc")
        a.e(f"v_cvt_pk_bf16_f32 v{GA+jj2}, v{E0}, v{E1}")
    SAF, GS = JF, PAR
    a.e(f"v_bfe_u32 v{HI}, v{N16}, 1, 2", f"v_cvt_f32_u32 v{SAF}, v{HI}", f"v_mul_f32 v{SAF}, {f32hex(1/2048)}, v{SAF}",
        f"v_and_b32 v{GS}, 1, v{G4}", f"v_and_b32 v{PO}, 1, v{N16}",
        f"v_lshrrev_b32 v{CS}, 1, v{G4}", f"v_lshrrev_b32 v{T2}, 3, v{N16}",
        f"v_cmp_eq_u32 s[44:45], v{CS}, v{T2}", f"v_cmp_eq_u32 s[46:47], v{GS}, v{PO}", "s_and_b64 s[44:45], s[44:45], s[46:47]",
        f"v_cmp_eq_u32 s[46:47], 0, v{GS}")
    for part, Hd in ((0, HRE), (1, HIM)):
        for jj in range(8):
            sl, par, pi = jj >> 2, (jj >> 1) & 1, jj & 1
            e = E0 + (jj & 1)
            if par != part:
                a.e(f"v_mov_b32 v{e}, 0")
            else:
                if sl == 0:
                    j0, q0, a0 = 1024.0*pi, 0.5*pi, 2.0**-21
                    j1, q1, a1 = 256.0, 0.75*pi, 2.0**-20
                else:
                    j0, q0, a0 = 512.0, 0.75*pi, 2.0**-20
                    j1, q1, a1 = 768.0, 0.75*pi, 2.0**-20
                def sel(dst, x0, x1):
                    a.e(f"v_mov_b32 v{dst}, {f32hex(x1)}", f"v_mov_b32 v{AV}, {f32hex(x0)}", f"v_cndmask_b32 v{dst}, v{dst}, v{AV}, s[46:47]")
                sel(XA0, j0, j1); sel(XA1, q0 + 0.5*part, q1 + 0.5*part)
                a.e(f"v_fma_f32 v{XA0}, v{XA0}, v{SAF}, v{XA1}", f"v_cos_f32 v{XA0}, v{XA0}")
                sel(XA1, a0, a1)
                a.e(f"v_mul_f32 v{XA0}, v{XA0}, v{XA1}", f"v_mov_b32 v{XA1}, 0", f"v_cndmask_b32 v{e}, v{XA1}, v{XA0}, s[44:45]")
            if jj & 1: a.e(f"v_cvt_pk_bf16_f32 v{Hd+(jj>>1)}, v{E0}, v{E1}")
    a.label(Ldone)
    a.e("s_nop 1")


BT_S0, BT_S1, BT_S2, BT_S3 = 52, 56, 60, 64
BT_SOFF = ["0", "s68", "s69", "s70", "s71", "s76", "s77", "s78"]
BT_ROW, BT_CH, BT_MASK = 48, 49, 50
def bt_setup(a):
    a.e(f"s_lshl_b32 s{BT_ROW}, s{sSUBT}, 7", "s_lshl_b32 s51, s3, 5", f"s_add_u32 s{BT_ROW}, s{BT_ROW}, s51", f"s_lshl_b32 s{BT_CH}, s{sCBKT}, 6")
    for i in range(1, 8): a.e(f"s_mov_b32 {BT_SOFF[i]}, {4096*i}")
    a.e(f"s_mov_b32 s{BT_MASK}, 0xffff0000")

def scratch_addr(a, vdst, vcg, vrg):
    a.e(f"s_lshl_b32 s51, s{sSUBT}, 7", "s_lshr_b32 s92, s3, 1", "s_add_u32 s51, s51, s92", "s_lshl_b32 s51, s51, 12",
        f"s_lshl_b32 s92, s{sCBKT}, 7", "s_add_u32 s51, s51, s92", "s_and_b32 s92, s3, 1", "s_lshl_b32 s92, s92, 6", "s_add_u32 s51, s51, s92",
        "s_add_u32 s51, s51, 2048",
        f"v_lshlrev_b32 v{vdst}, 15, v{vcg}", f"v_lshl_add_u32 v{vdst}, v{vrg}, 4, v{vdst}", f"v_add_u32 v{vdst}, s51, v{vdst}")
SCR_SOFF = ["0", "s69", "s71", "s77"]

def emit_B1(a, shadow=None, hook=None, post_mode=None, after_stores=None, nafter=0):
    SK, SV, SSH, SKVT = BT_S0, BT_S1, BT_S2, BT_S3
    srd(a, SK, P_K, P_K+1, 4*MB); srd(a, SV, P_V, P_V+1, 4*MB); srd(a, SSH, P_SHK, P_SHK+1, 8192); srd(a, SKVT, P_OUT, P_OUT+1, 8*MB)
    bt_setup(a)
    soff = BT_SOFF; M = BT_MASK
    CG, RG, S0, CH0, VOFF, VH, VST, VSH = 2, 3, 4, 5, 6, 7, 8, 9
    a.e(f"v_and_b32 v{CG}, 15, v1", f"v_lshrrev_b32 v{RG}, 4, v1",
        f"v_lshl_add_u32 v{S0}, v{RG}, 3, s{BT_ROW}", f"v_lshl_add_u32 v{CH0}, v{CG}, 2, s{BT_CH}",
        f"v_lshlrev_b32 v{VOFF}, 11, v{S0}", f"v_lshl_add_u32 v{VOFF}, v{CH0}, 1, v{VOFF}",
        f"v_subrev_u32 v{VH}, 6144, v{VOFF}",
        f"v_lshlrev_b32 v{VSH}, 3, v{CH0}")
    scratch_addr(a, VST, CG, RG)
    KR, VR, SHR, KF, SHF, KV, TM, PK = 16, 38, 54, 64, 108, 124, 156, 16
    if OPT["bactwait"] and OPT["b1all"]:
        Lw = newlbl("bw")
        a.e(f"s_cmp_eq_u32 s{sACT}, 0", f"s_cbranch_scc1 {Lw}", "s_waitcnt lgkmcnt(0)")
        a.label(Lw)
    if OPT["earlypub"]:
        Lp = newlbl("epub")
        a.e("s_cmp_lg_u32 s3, 0", f"s_cbranch_scc1 {Lp}")
        fin_epoch(a); loc_publish(a)
        a.label(Lp)
    a.e(f"buffer_load_dwordx4 {v(SHR,4)}, v{VSH}, s[{SSH}:{SSH+3}], 0 offen",
        f"buffer_load_dwordx4 {v(SHR+4,4)}, v{VSH}, s[{SSH}:{SSH+3}], 0 offen offset:16")
    for i in range(3):
        a.e(f"buffer_load_dwordx2 {v(KR+2*i,2)}, v{VH}, s[{SK}:{SK+3}], {soff[i>>1]} offen" + (" offset:2048" if i & 1 else "") + (NT() if OPT["ntk"] else ""))
    for i in range(8):
        a.e(f"buffer_load_dwordx2 {v(KR+6+2*i,2)}, v{VOFF}, s[{SK}:{SK+3}], {soff[i>>1]} offen" + (" offset:2048" if i & 1 else "") + (NT() if OPT["ntk"] else ""))
    for i in range(8):
        a.e(f"buffer_load_dwordx2 {v(VR+2*i,2)}, v{VOFF}, s[{SV}:{SV+3}], {soff[i>>1]} offen" + (" offset:2048" if i & 1 else "") + NT())
    stamp(a, 2)
    if OPT["earlypub"]:
        Lq = newlbl("epub2")
        a.e("s_cmp_eq_u32 s3, 0", f"s_cbranch_scc1 {Lq}")
        fin_epoch(a)
        a.label(Lq)
    else:
        fin_epoch(a)
        loc_publish(a)
    if shadow: shadow()
    def wv(n, extra):
        if extra and not OPT["earlypub"]:
            L = newlbl("wv")
            a.e(f"s_cbranch_scc1 {L}", f"s_waitcnt vmcnt({n})")
            a.label(L)
            a.e(f"s_waitcnt vmcnt({n+extra})")
        elif extra == 2 and OPT["earlypub"]:
            L = newlbl("wv")
            a.e(f"s_cbranch_scc1 {L}", f"s_waitcnt vmcnt({n})")
            a.label(L)
            a.e(f"s_waitcnt vmcnt({n+1})")
        else:
            a.e(f"s_waitcnt vmcnt({n})")
    a.e("s_cmp_eq_u32 s3, 0")
    wv(19, 1)
    for ch in range(4):
        for j in range(4):
            src = SHR + 2*ch + (j >> 1)
            if j & 1: a.e(f"v_and_b32 v{SHF+4*j+ch}, s{M}, v{src}")
            else:     a.e(f"v_lshlrev_b32 v{SHF+4*j+ch}, 16, v{src}")
    for i in range(11):
        wv(18-i, 1)
        for hf in range(2):
            a.e(f"v_lshlrev_b32 v{KF+4*i+2*hf}, 16, v{KR+2*i+hf}", f"v_and_b32 v{KF+4*i+2*hf+1}, s{M}, v{KR+2*i+hf}")
    loc_issue(a, 10)
    a.e("s_cmp_eq_u32 s3, 0")
    for i in range(8):
        wv(7-i, 2)
        if i == 7 and hook: hook()
        for hf in range(2):
            a.e(f"v_lshlrev_b32 v{TM+2*hf}, 16, v{VR+2*i+hf}", f"v_and_b32 v{TM+2*hf+1}, s{M}, v{VR+2*i+hf}")
        for hf in range(2):
            acc = KV+4*i+2*hf
            a.e(f"v_pk_mul_f32 {v(acc,2)}, {v(KF+4*(i+3)+2*hf,2)}, {v(SHF+2*hf,2)}")
            for j in range(1, 4):
                a.e(f"v_pk_fma_f32 {v(acc,2)}, {v(KF+4*(i+3-j)+2*hf,2)}, {v(SHF+4*j+2*hf,2)}, {v(acc,2)}")
            a.e(f"v_pk_mul_f32 {v(acc,2)}, {v(acc,2)}, {v(TM+2*hf,2)}")
    stamp(a, 3)
    for ch in range(4):
        for m in range(4):
            a.e(f"v_cvt_pk_bf16_f32 v{PK+4*ch+m}, v{KV+4*(7-2*m)+ch}, v{KV+4*(6-2*m)+ch}")
    sts = [f"buffer_store_dwordx4 {v(PK+4*ch,4)}, v{VST}, s[{SKVT}:{SKVT+3}], {SCR_SOFF[ch]} offen" for ch in range(4)]
    if OPT["twoflag"]:
        for l in sts: a.e(l + (" nt" if OPT["ntscr"] else ""))
        stamp(a, 4)
        a.e(f"s_lshl_b32 s51, s{sCBKT}, 4", f"s_add_u32 s51, s51, s{sSUBT}", f"s_lshl_b32 s51, s51, {FB()}", f"s_add_u32 s92, s51, {SY_B1}")
        La = newlbl("siga")
        a.e("s_waitcnt vmcnt(0)", "s_barrier", "s_cmp_lg_u32 s3, 0", f"s_cbranch_scc1 {La}",
            "v_mov_b32 v14, s92", f"v_mov_b32 v15, s{S_TGT}", "s_mov_b64 exec, 1",
            f"buffer_store_dword v15, v14, s[{S_SYN}:{S_SYN+3}], 0 offen", "s_mov_b64 exec, -1")
        a.label(La)
        if after_stores: after_stores()
        loc_resolve(a, 10, nafter=nafter + 1 if after_stores else 1)
        Lo = newlbl("opt")
        a.e(f"s_cmp_lg_u32 s{sLOC}, 0", f"s_cbranch_scc1 {Lo}", "s_waitcnt vmcnt(0)")
        for l in sts: a.e(l + " sc1")
        a.e(f"s_add_u32 s51, s51, {SY_B1B}")
        signal(a, 51, 14)
        a.label(Lo)
        return
    if OPT["optst"]:
        for l in sts: a.e(l)
        if after_stores: after_stores()
        loc_resolve(a, 10, nafter=nafter)
        Lo = newlbl("opt")
        a.e(f"s_cmp_lg_u32 s{sLOC}, 0", f"s_cbranch_scc1 {Lo}", "s_waitcnt vmcnt(0)")
        for l in sts: a.e(l + " sc1")
        a.e("s_waitcnt vmcnt(0)")
        a.label(Lo)
    else:
        loc_resolve(a, 10)
        dual_store(a, sts)
    stamp(a, 4)
    a.e(f"s_lshl_b32 s51, s{sCBKT}, 4", f"s_add_u32 s51, s51, s{sSUBT}", f"s_lshl_b32 s51, s51, {FB()}", f"s_add_u32 s51, s51, {SY_B1}")
    signal(a, 51, 14, nafter=nafter, bloc=True)

B3_QR, B3_VQ, B3_VT, B3_VO = 208, 224, 225, 226
def emit_B3_pre(a):
    SQ, STT, SOUT = BT_S0, BT_S1, BT_S2
    srd(a, SQ, P_Q, P_Q+1, 4*MB); srd(a, SOUT, P_OUT, P_OUT+1, 8*MB)
    bt_setup(a)
    t = 227
    a.e(f"v_and_b32 v{t}, 15, v1", f"v_lshrrev_b32 v{t+1}, 4, v1",
        f"v_lshl_add_u32 v{t+1}, v{t+1}, 3, s{BT_ROW}", f"v_lshl_add_u32 v{t}, v{t}, 2, s{BT_CH}",
        f"v_lshlrev_b32 v{B3_VQ}, 11, v{t+1}", f"v_lshl_add_u32 v{B3_VQ}, v{t}, 1, v{B3_VQ}",
        f"v_lshlrev_b32 v{B3_VO}, 12, v{t+1}", f"v_lshl_add_u32 v{B3_VO}, v{t}, 1, v{B3_VO}", f"v_add_u32 v{B3_VO}, 2048, v{B3_VO}")
    a.e(f"v_and_b32 v{t}, 15, v1", f"v_lshrrev_b32 v{t+1}, 4, v1")
    scratch_addr(a, B3_VT, t, t+1)
    for i in range(8):
        a.e(f"buffer_load_dwordx2 {v(B3_QR+2*i,2)}, v{B3_VQ}, s[{SQ}:{SQ+3}], {BT_SOFF[i>>1]} offen" + (" offset:2048" if i & 1 else "") + NT())

def emit_B3(a):
    SQ, STT, SOUT = BT_S0, BT_S1, BT_S2
    soff = BT_SOFF; M = BT_MASK
    TR, TF, QF = 16, 48, 80
    a.e(f"s_mov_b32 s{M}, 0xffff0000")
    a.e(f"s_lshl_b32 s51, s{sCBKT}, {4+FB()}", f"s_add_u32 s51, s51, {SY_B2}",
        "v_and_b32 v12, 15, v1", f"v_lshlrev_b32 v12, {FB()}, v12", "v_add_u32 v12, s51, v12")
    a.e("s_waitcnt vmcnt(0)")
    for e in range(8):
        qf = QF + 4*e
        for hf in range(2):
            a.e(f"v_lshlrev_b32 v{qf+2*hf}, 16, v{B3_QR+2*e+hf}", f"v_and_b32 v{qf+2*hf+1}, s{M}, v{B3_QR+2*e+hf}")
    wait_flags(a, 12, 1, 13, 51)
    stamp(a, 10)
    for ch in range(4):
        a.e(f"buffer_load_dwordx4 {v(TR+4*ch,4)}, v{B3_VT}, s[{SOUT}:{SOUT+3}], {SCR_SOFF[ch]} offen" + LDL())
    for ch in range(4):
        a.e(f"s_waitcnt vmcnt({3-ch})")
        for e in range(8):
            src = TR+4*ch+(e >> 1)
            if e & 1: a.e(f"v_and_b32 v{TF+4*e+ch}, s{M}, v{src}")
            else:     a.e(f"v_lshlrev_b32 v{TF+4*e+ch}, 16, v{src}")
    a.e("s_barrier")
    for e in range(8):
        qf = QF + 4*e
        for hf in range(2):
            a.e(f"v_pk_mul_f32 {v(qf+2*hf,2)}, {v(qf+2*hf,2)}, {v(TF+4*e+2*hf,2)}")
        pk = 112+2*e
        for hf in range(2):
            a.e(f"v_cvt_pk_bf16_f32 v{pk+hf}, v{qf+2*hf}, v{qf+2*hf+1}")
        a.e(f"buffer_store_dwordx2 {v(pk,2)}, v{B3_VO}, s[{SOUT}:{SOUT+3}], {soff[e]} offen" + NTO())

def gen_A(a):
    ROLE[0] = 'A'
    SX, SI1, SWR, SWI, SI2, SOUT = 32, 36, 80, 84, 32, 36
    a.e(f"s_setprio {OPT['prioA']}") if OPT['prioA'] else None
    sT, sSA, sCB, sJ, sJM, sJP, sJQ, sTL = 40, 41, 42, 43, 72, 73, 74, 44
    def rows():
        srd(a, SI1, P_WS, P_WS+1, 4*MB, add=WS_I1)
        srd(a, SWR, P_WR, P_WR+1, WBYTES); srd(a, SWI, P_WI, P_WI+1, WBYTES)
        Lr = newlbl("reg")
        a.e("s_lshl_b32 s47, s3, 9", f"s_add_u32 s{sJ}, s{sT}, s47", f"s_mov_b32 s{sJP}, s{sT}", f"s_sub_u32 s{sJQ}, 512, s{sT}",
            f"s_cmp_lg_u32 s{sT}, 0", f"s_cbranch_scc1 {Lr}",
            f"s_mov_b32 s{sJQ}, 256", "s_lshl_b32 s47, s3, 2", "s_lshr_b32 s46, 0x3120, s47", "s_and_b32 s46, s46, 15", f"s_lshl_b32 s{sJ}, s46, 8")
        a.label(Lr)
        a.e(f"s_sub_u32 s{sJM}, 2048, s{sJ}", f"s_and_b32 s{sJM}, s{sJM}, 2047",
            f"s_mul_i32 s{sJ}, s{sJ}, 1026", f"s_mul_i32 s{sJM}, s{sJM}, 1026")
        a.e(f"s_or_b32 s75, s{sT}, s3")
    def wstage():
        a.e("v_lshlrev_b32 v243, 4, v1", "s_lshl_b32 s46, s3, 12", f"s_add_u32 s46, s46, {LW}")
        w_dma(a, SWR, SWI, sJ, sJM, 46, 243)
        pf_loads(a, SWR, SWI, sJ, sJM, PF, 244)
        if not OPT["spec2"]: wstage2()
    def wstage2():
        Ln = newlbl("now2")
        a.e("s_cmp_lg_u32 s75, 0", f"s_cbranch_scc1 {Ln}")
        a.e("v_lshlrev_b32 v243, 4, v1", f"s_mov_b32 s47, {1024*1026}", f"s_mov_b32 s46, {LW2}")
        w_dma(a, SWR, SWI, 47, 47, 46, 243)
        pf_loads(a, SWR, SWI, 47, 47, PF2, 244)
        a.label(Ln)
    a.e(f"s_mov_b32 s{sT}, s{sCU}")
    stamp(a, 0, True); stamp(a, 1)
    Lp1 = newlbl("nop1")
    a.e(f"s_cmp_eq_u32 s{sACT}, 0", f"s_cbranch_scc1 {Lp1}_in")
    if OPT["pA1a"] >= 0: a.e(f"s_setprio {OPT['pA1a']}")
    srd(a, SX, P_X, P_X+1, 4*MB)
    a.e(f"s_lshr_b32 s48, s{sT}, 4", f"s_and_b32 s49, s{sT}, 7",
        f"s_lshr_b32 s{sSA}, s48, 2", "s_bfe_u32 s50, s48, 0x10001", "s_lshl_b32 s50, s50, 3", "s_add_u32 s50, s50, s49",
        "s_lshl_b32 s50, s50, 1", "s_and_b32 s51, s48, 1", f"s_add_u32 s{sCB}, s50, s51",
        "s_lshl_b32 s48, s48, 3", f"s_add_u32 s{sTL}, s48, s49")
    fft512_addr(a, sSA, sCB)
    fft512_loads(a, SX, NT() if OPT["ntx"] else "")
    stamp(a, 12)
    rows()
    if OPT["spec2"]: wstage2()
    fft512_addr2(a, sSA, sCB, 2048, 8192)
    fft512_consts(a)
    fft512_compute(a, SI1, False, 0, "sc1", 2, hook=None if OPT["wlate"] else wstage)
    stamp(a, 4)
    a.e(f"s_lshl_b32 s48, s{sTL}, {FA()}", f"s_add_u32 s48, s48, {SY_A1}")
    fin_epoch(a)
    signal(a, 48, F_TMP)
    a.e(f"s_branch {Lp1}")
    a.label(f"{Lp1}_in")
    if OPT["pA1i"] >= 0: a.e(f"s_setprio {OPT['pA1i']}")
    stamp(a, 12)
    if OPT["b1all"]:
        rows()
        fin_epoch(a)
        if not OPT["wlate"]: wstage()
    else:
        emit_B1(a, shadow=rows, hook=None if OPT["wlate"] else wstage)
    a.label(Lp1)
    if OPT["pA1i"] >= 0 or OPT["pA1a"] >= 0: a.e(f"s_setprio {OPT['prioA']}")
    stamp(a, 5)
    if OPT["wlate"] == 2: wstage()
    srd(a, SI2, P_WS, P_WS+1, 4*MB, add=WS_I2)
    a2_consts(a, sT)
    a.e(f"v_lshl_add_u32 v{TMP}, v{G_}, 7, v{IDX}",
        "s_lshl_b32 s48, s3, 12", f"s_add_u32 s48, s48, {LW}",
        f"v_lshl_add_u32 v{VW}, v{TMP}, 1, s48",
        f"v_sub_u32 v{TMP+1}, {1023-32*27}, v{TMP}", f"s_add_u32 s49, s48, 2048", f"v_lshl_add_u32 v{VW+1}, v{TMP+1}, 1, s49")
    a.e(f"v_lshlrev_b32 v{VG}, 12, v{G_}", f"v_lshl_add_u32 v{VG}, v{IDX}, 2, v{VG}",
        "s_lshl_b32 s49, s3, 9",
        f"s_lshl_b32 s52, s{sJP}, 13", "s_add_u32 s52, s52, s49",
        f"s_lshl_b32 s53, s{sJQ}, 13", "s_add_u32 s53, s53, s49")
    a.e(f"v_lshlrev_b32 v{VGW}, 12, v{G_}", f"v_lshl_add_u32 v{VGW}, v{IDX}, 3, v{VGW}", "s_lshl_b32 s50, s3, 10", f"v_add_u32 v{VGW}, s50, v{VGW}",
        f"v_lshlrev_b32 v{VRR}, 9, v{G_}", f"v_lshl_add_u32 v{VRR}, v{IDX}, 2, v{VRR}", "s_lshl_b32 s51, s3, 12", f"v_add_u32 v{VRR}, s51, v{VRR}")
    for t in range(1, 4): a.e(f"v_add_u32 v{VRR+t}, {1024*t}, v{VRR}")
    a.e(f"v_lshrrev_b32 v{TMP}, 4, v1", f"v_and_b32 v{TMP+1}, 1, v{TMP}", f"v_lshlrev_b32 v{VHR}, 13, v{TMP+1}",
        f"v_lshrrev_b32 v{TMP+1}, 1, v{TMP}", f"v_lshl_add_u32 v{VHR}, v{TMP+1}, 7, v{VHR}",
        f"v_and_b32 v{TMP+1}, 15, v1", f"v_lshl_add_u32 v{VHR}, v{TMP+1}, 3, v{VHR}", f"v_add_u32 v{VHR}, s50, v{VHR}")
    a.e(f"v_and_b32 v{TMP+2}, 1, v{TMP+1}", f"v_mov_b32 v{TMP+3}, s52", f"v_mov_b32 v{TMP+4}, s53",
        f"v_cmp_eq_u32 vcc, 1, v{TMP+2}", f"v_cndmask_b32 v{VST}, v{TMP+3}, v{TMP+4}, vcc",
        f"v_bfe_u32 v{TMP+2}, v{TMP+1}, 1, 2", f"v_lshl_add_u32 v{VST}, v{TMP+2}, 11, v{VST}",
        f"v_lshrrev_b32 v{TMP+2}, 3, v{TMP+1}", f"v_lshl_add_u32 v{VST}, v{TMP+2}, 6, v{VST}",
        f"v_lshl_add_u32 v{VST}, v{TMP}, 4, v{VST}")
    a.e(f"v_lshlrev_b32 v{TMP}, {FA()}, v1", f"v_add_u32 v{TMP}, {SY_A1}, v{TMP}")
    stamp(a, 6)
    wait_flags(a, TMP, 2, TMP+1, 48)
    if OPT["yieldB"] == 1: a_state(a, sT, 0, TMP)
    stamp(a, 7)
    for u in range(4):
        for sl in range(2):
            for pq in range(2):
                a.e(f"buffer_load_dword v{GB+4*u+2*sl+pq}, v{VG}, s[{SI1}:{SI1+3}], s{52+pq} offen offset:{2048*sl+128*u} sc1")
    NWL = 0
    if OPT["wlate"] == 1:
        wstage(); NWL = 8
        if not OPT["spec2"]:
            Lsw = newlbl("spw")
            a.e("s_cmp_lg_u32 s75, 0", f"s_cbranch_scc1 {Lsw}", "s_waitcnt vmcnt(0)")
            a.label(Lsw)
    for rnd in range(2):
        a.e(f"s_waitcnt vmcnt({8-8*rnd+NWL})")
        for uu in range(2):
            u = 2*rnd+uu
            a.e(f"v_mfma_f32_32x32x16_bf16 {v(ARE if uu == 0 else AIM,16)}, {v(GA,4)}, {v(GB+4*u,4)}, 0")
        for uu in range(2):
            u = 2*rnd+uu
            D = ARE if uu == 0 else AIM
            t = TMP+4*uu
            for h in range(2):
                a.e(f"v_cvt_pk_bf16_f32 v{t}, v{D+4*h}, v{D+4*h+1}", f"v_cvt_pk_bf16_f32 v{t+1}, v{D+4*h+2}, v{D+4*h+3}",
                    f"ds_write_b64 v{VGW}, {v(t,2)} offset:{256*u+8192*h}")
                t += 2
    a.e("s_waitcnt lgkmcnt(0)", "s_barrier")
    stamp(a, 8)
    if OPT["qA"] and not OPT["a3all"]:
        Lq = newlbl("noqA")
        a.e(f"s_cmp_lg_u32 s{sACT}, 0", f"s_cbranch_scc1 {Lq}")
        emit_B3_pre(a)
        a.label(Lq)
    for t in range(4):
        a.e(f"ds_read2_b32 {v(DF+4*t,2)}, v{VRR+t} offset0:0 offset1:32", f"ds_read2_b32 {v(DF+4*t+2,2)}, v{VRR+t} offset0:64 offset1:96")
    a.e("s_waitcnt lgkmcnt(0)")
    Lsp, Linv, Lfwd, Lpre = newlbl("special"), newlbl("inv"), newlbl("fwd"), newlbl("pre")
    sPASS = 45
    if OPT["spec2"]:
        a.e(f"s_mov_b32 s{sPASS}, 0", "s_cmp_lg_u32 s75, 0", f"s_cbranch_scc1 {Lpre}")
        for i in range(16): a.e(f"v_lshrrev_b32 v{GB+i}, 16, v{DF+i}", f"v_and_b32 v{DF+i}, 0xffff, v{DF+i}")
        a.label(Lpre)
    def wmid():
        Lk = newlbl("wskip")
        if OPT["spec2"]: a.e(f"s_cmp_lg_u32 s{sPASS}, 0", f"s_cbranch_scc1 {Lk}")
        if OPT["qA"] and not OPT["a3all"]:
            L1, L2 = newlbl("wa"), newlbl("wb")
            a.e(f"s_cmp_lg_u32 s{sACT}, 0", f"s_cbranch_scc1 {L1}", "s_waitcnt vmcnt(8)", f"s_branch {L2}")
            a.label(L1); a.e("s_waitcnt vmcnt(0)"); a.label(L2)
        else:
            a.e("s_waitcnt vmcnt(0)")
        w_lds_reads(a, VW, VW+1, WR, WI)
        a.label(Lk)
    if OPT["wlate"] == 1:
        a.label(Lfwd); a.e("s_nop 1")
        fft1024(a, mid=wmid)
    else:
        w_lds_reads(a, VW, VW+1, WR, WI)
        a.label(Lfwd); a.e("s_nop 1")
        fft1024(a)
    a.e("s_waitcnt lgkmcnt(0)")
    Lnf = newlbl("nofix")
    if OPT["spec2"]: a.e(f"s_cmp_lg_u32 s{sPASS}, 0", f"s_cbranch_scc1 {Lnf}")
    fix_w(a, WR, WI, PF)
    a.label(Lnf)
    a.e("s_cmp_eq_u32 s75, 0", f"s_cbranch_scc1 {Lsp}")
    for p in range(8):
        xr, xi, wr, wi = ARE+2*p, AIM+2*p, WR+2*p, WI+2*p
        t0 = TMP+4*(p & 1); t1 = t0+2
        n0 = " neg_lo:[1,0,0] neg_hi:[1,0,0]" if p < 4 else ""
        n1 = "" if p < 4 else " neg_lo:[1,0,0] neg_hi:[1,0,0]"
        a.e(f"v_pk_mul_f32 {v(t0,2)}, {v(xr,2)}, {v(wr,2)}", f"v_pk_mul_f32 {v(t1,2)}, {v(xi,2)}, {v(wr,2)}",
            f"v_pk_fma_f32 {v(t0,2)}, {v(xi,2)}, {v(wi,2)}, {v(t0,2)}{n0}",
            f"v_pk_fma_f32 {v(t1,2)}, {v(xr,2)}, {v(wi,2)}, {v(t1,2)}{n1}")
        for e in range(2):
            a.e(f"v_cvt_pk_bf16_f32 v{DF+2*p+e}, v{t0+e}, -v{t1+e}")
    a.label(Linv)
    a.e("s_nop 1")
    fft1024(a)
    for r in range(16):
        t = TMP + (r & 7)
        a.e(f"v_cvt_pk_bf16_f32 v{t}, v{ARE+r}, v{AIM+r}", f"ds_write_b32 v{VRR}, v{t} offset:{128*eidx(r)}")
    a.e("s_waitcnt lgkmcnt(0)", "s_barrier")
    if OPT["yieldB"]:
        Ly = newlbl("y0a")
        if OPT["y0"]: a.e(f"s_cmp_lg_u32 s{sT}, 0", f"s_cbranch_scc1 {Ly}")
        a_state(a, sT, 1, TMP)
        a.label(Ly)
    stamp(a, 9)
    for u in range(4):
        for sl in range(2):
            a.e(f"ds_read_b64 {v(GB+4*u+2*sl,2)}, v{VHR} offset:{4096*sl+256*u}")
    a.e("s_lshl_b32 s49, s3, 9")
    for u in range(4):
        a.e(f"s_waitcnt lgkmcnt({6-2*u})")
        a.e(f"v_mfma_f32_16x16x32_bf16 {v(ARE+4*u,4)}, {v(GB+4*u,4)}, {v(HRE,4)}, 0",
            f"v_mfma_f32_16x16x32_bf16 {v(AIM+4*u,4)}, {v(GB+4*u,4)}, {v(HIM,4)}, 0")
    for u in range(4):
        for r in range(4):
            a.e(f"v_cvt_pk_bf16_f32 v{DF+4*u+r}, v{ARE+4*u+r}, v{AIM+4*u+r}")
        a.e(f"buffer_store_dwordx4 {v(DF+4*u,4)}, v{VST}, s[{SI2}:{SI2+3}], 0 offen offset:{128*u} sc1")
    a.e(f"s_lshl_b32 s48, s{sT}, {FA()}", f"s_add_u32 s48, s48, {SY_A2}")
    signal(a, 48, TMP)
    stamp(a, 10)
    Lb3 = newlbl("b3")
    if OPT["a3all"]:
        srd(a, SOUT, P_OUT, P_OUT+1, 8*MB)
        a.e(f"s_lshr_b32 s48, s{sT}, 3", f"s_and_b32 s49, s{sT}, 7", f"s_lshr_b32 s{sSA}, s48, 3", "s_bfe_u32 s50, s48, 0x10002",
            "s_lshl_b32 s50, s50, 3", "s_add_u32 s50, s50, s49", "s_lshl_b32 s50, s50, 2", "s_and_b32 s51, s48, 3", f"s_add_u32 s{sCB}, s50, s51")
        f8_addr(a, sSA, sCB, 4096, 16384)
        f8_consts(a)
        a.e(f"v_lshlrev_b32 v{F_TMP}, {FA()}, v1", f"v_add_u32 v{F_TMP}, {SY_A2}, v{F_TMP}")
        wait_flags(a, F_TMP, 4, F_TMP+1, 48)
        stamp(a, 11)
        PHASE[0] = 3
        fstamp(a, 11)
        f8_run(a, SI2, SOUT, "sc1", NTO())
    else:
        a.e(f"s_cmp_eq_u32 s{sACT}, 0", f"s_cbranch_scc1 {Lb3}")
        srd(a, SOUT, P_OUT, P_OUT+1, 8*MB)
        fft512_addr(a, sSA, sCB)
        fft512_addr2(a, sSA, sCB, 4096, 16384)
        fft512_consts(a)
        a.e(f"v_lshlrev_b32 v{F_TMP}, {FA()}, v1", f"v_add_u32 v{F_TMP}, {SY_A2}, v{F_TMP}")
        wait_flags(a, F_TMP, 4, F_TMP+1, 48)
        stamp(a, 11)
        PHASE[0] = 3
        fstamp(a, 11)
        fft512_loads(a, SI2, "sc1")
        fstamp(a, 3)
        save = gen.PROF; gen.PROF = False
        fft512_compute(a, SOUT, True, 0, NTO(), 0)
        gen.PROF = save
    a.e("s_cmp_lg_u32 s75, 0", "s_cbranch_scc1 L_fin")
    Lb1, Lb2 = newlbl("bchk"), newlbl("bchkd")
    a.e("v_lshlrev_b32 v2, 6, v1", f"v_add_u32 v2, {SY_ID}, v2", f"s_lshl_b32 s49, s{S_TGT}, 4", "s_mov_b32 s48, 0")
    a.label(Lb1)
    NS = NMEM()*8//64
    for i in range(NS):
        a.e(f"s_mov_b32 s50, {4096*i}", f"buffer_load_dword v{4+i}, v2, s[{S_SYN}:{S_SYN+3}], s50 offen sc1")
    a.e("s_add_u32 s48, s48, 1", "s_waitcnt vmcnt(0)")
    for i in range(NS): a.e(f"v_xor_b32 v{4+i}, s49, v{4+i}")
    for i in range(1, NS): a.e(f"v_or_b32 v4, v4, v{4+i}")
    a.e("v_lshrrev_b32 v4, 4, v4", "v_cmp_ne_u32 vcc, 0, v4", f"s_cbranch_vccz {Lb2}", f"s_cmp_lt_u32 s48, {SPIN_LIMIT}", f"s_cbranch_scc1 {Lb1}")
    a.label(Lb2)
    a.e(f"s_mov_b32 s48, {SY_E}")
    bump(a, 48, 2)
    a.e("s_branch L_fin")
    if not OPT["a3all"]:
        a.label(Lb3)
        if not OPT["qA"]: emit_B3_pre(a)
        emit_B3(a)
        a.e("s_branch L_fin")
    a.label(Lsp)
    if OPT["spec2"]:
        Lp1s = newlbl("sp1")
        NEG = " neg_lo:[1,0,0] neg_hi:[1,0,0]"
        a.e(f"s_cmp_lg_u32 s{sPASS}, 0", f"s_cbranch_scc1 {Lp1s}")
        a.e(f"v_lshl_add_u32 v{SP}, v{G_}, 7, v{IDX}", f"v_sub_u32 v{SP+1}, {1023-32*27}, v{SP}",
            f"s_mov_b32 s48, {LW2}", f"v_lshl_add_u32 v{SP+2}, v{SP}, 1, s48", f"s_mov_b32 s49, {LW2+2048}", f"v_lshl_add_u32 v{SP+3}, v{SP+1}, 1, s49")
        w_lds_reads(a, SP+2, SP+3, W2R, W2I)
        for p in range(8):
            xr, xi, wr, wi = ARE+2*p, AIM+2*p, WR+2*p, WI+2*p
            t0 = TMP+4*(p & 1); t1 = t0+2
            n0 = NEG if p < 4 else ""; n1 = "" if p < 4 else NEG
            a.e(f"v_pk_mul_f32 {v(t0,2)}, {v(xr,2)}, {v(wr,2)}", f"v_pk_mul_f32 {v(t1,2)}, {v(xi,2)}, {v(wr,2)}",
                f"v_pk_fma_f32 {v(wr,2)}, {v(xi,2)}, {v(wi,2)}, {v(t0,2)}{n0}",
                f"v_pk_fma_f32 {v(wi,2)}, {v(xr,2)}, {v(wi,2)}, {v(t1,2)}{n1}")
        for i in range(16): a.e(f"v_mov_b32 v{DF+i}, v{GB+i}")
        a.e(f"s_mov_b32 s{sPASS}, 1", f"s_branch {Lfwd}")
        a.label(Lp1s)
        fix_w(a, W2R, W2I, PF2)
        for p in range(8):
            xr, xi, br, bi, r1r, r1i = ARE+2*p, AIM+2*p, W2R+2*p, W2I+2*p, WR+2*p, WI+2*p
            t0 = TMP+4*(p & 1); t1 = t0+2
            n0 = NEG if p < 4 else ""; n1 = "" if p < 4 else NEG
            a.e(f"v_pk_mul_f32 {v(t0,2)}, {v(xr,2)}, {v(br,2)}", f"v_pk_mul_f32 {v(t1,2)}, {v(xi,2)}, {v(br,2)}",
                f"v_pk_fma_f32 {v(t0,2)}, {v(xi,2)}, {v(bi,2)}, {v(t0,2)}{n0}",
                f"v_pk_fma_f32 {v(t1,2)}, {v(xr,2)}, {v(bi,2)}, {v(t1,2)}{n1}",
                f"v_pk_add_f32 {v(t1,2)}, {v(r1r,2)}, {v(t1,2)} neg_lo:[0,1] neg_hi:[0,1]",
                f"v_pk_add_f32 {v(t0,2)}, {v(r1i,2)}, {v(t0,2)}")
            for e in range(2):
                a.e(f"v_cvt_pk_bf16_f32 v{DF+2*p+e}, v{t1+e}, -v{t0+e}")
        a.e(f"s_branch {Linv}")
        return
    a.e(f"v_lshl_add_u32 v{TMP}, v{G_}, 7, v{IDX}", f"v_sub_u32 v{TMP+1}, {1023-32*27}, v{TMP}",
        f"s_mov_b32 s48, {LW2}", f"v_lshl_add_u32 v{TMP+2}, v{TMP}, 1, s48", f"s_mov_b32 s49, {LW2+2048}", f"v_lshl_add_u32 v{TMP+3}, v{TMP+1}, 1, s49")
    w_lds_reads(a, TMP+2, TMP+3, W2R, W2I)
    a.e("s_waitcnt lgkmcnt(0)")
    fix_w(a, W2R, W2I, PF2)
    VS = SP; K0 = SP+1
    a.e(f"v_lshlrev_b32 v{VS}, 9, v{G_}", f"v_lshl_add_u32 v{VS}, v{IDX}, 2, v{VS}")
    for r in range(16):
        a.e(f"ds_write_b32 v{VS}, v{ARE+r} offset:{LSC+128*eidx(r)}", f"ds_write_b32 v{VS}, v{AIM+r} offset:{LSC+4096+128*eidx(r)}")
    a.e(f"v_lshl_add_u32 v{K0}, v{G_}, 7, v{IDX}", f"v_sub_u32 v{K0}, 1024, v{K0}", "s_waitcnt lgkmcnt(0)")
    for r in range(16):
        ad, rr, ri, ur, ui, vr, vi, o0, o1 = [SP+2+i for i in range(9)]
        a.e(f"v_subrev_u32 v{ad}, {32*eidx(r)}, v{K0}", f"v_and_b32 v{ad}, 1023, v{ad}", f"v_lshlrev_b32 v{ad}, 2, v{ad}",
            f"ds_read_b32 v{rr}, v{ad} offset:{LSC}", f"ds_read_b32 v{ri}, v{ad} offset:{LSC+4096}", "s_waitcnt lgkmcnt(0)")
        pr, pi_ = ARE+r, AIM+r
        a.e(f"v_add_f32 v{ur}, v{pr}, v{rr}", f"v_sub_f32 v{ui}, v{pi_}, v{ri}",
            f"v_sub_f32 v{vr}, v{pr}, v{rr}", f"v_add_f32 v{vi}, v{pi_}, v{ri}")
        sg = "-" if r < 8 else ""; ns = "" if r < 8 else "-"
        ar, ai, br, bi = WR+r, WI+r, W2R+r, W2I+r
        a.e(f"v_mul_f32 v{o0}, v{ur}, v{ar}", f"v_fma_f32 v{o0}, {sg}v{ui}, v{ai}, v{o0}",
            f"v_fma_f32 v{o0}, v{vr}, v{br}, v{o0}", f"v_fma_f32 v{o0}, {sg}v{vi}, v{bi}, v{o0}",
            f"v_mul_f32 v{o1}, v{ui}, v{ar}", f"v_fma_f32 v{o1}, {ns}v{ur}, v{ai}, v{o1}",
            f"v_fma_f32 v{o1}, v{vi}, v{br}, v{o1}", f"v_fma_f32 v{o1}, {ns}v{vr}, v{bi}, v{o1}",
            f"v_mul_f32 v{o0}, 0.5, v{o0}", f"v_mul_f32 v{o1}, 0.5, v{o1}",
            f"v_cvt_pk_bf16_f32 v{DF+r}, v{o0}, -v{o1}")
    a.e(f"s_branch {Linv}")

def h_dma(a, SH, sLB, sD4K):
    a.e("v_lshlrev_b32 v235, 4, v1")
    a.e(f"s_add_u32 s74, s{sLB}, 32", "s_mov_b32 m0, s74")
    for ch in range(4): a.e(f"buffer_load_dwordx4 v235, s[{SH}:{SH+3}], s{sD4K} offen offset:{1024*ch} lds" + (NT() if OPT["nth"] else ""))
    a.e(f"s_add_u32 s74, s{sLB}, 4192", f"s_add_u32 s75, s{sD4K}, 2", "s_mov_b32 m0, s74")
    for ch in range(4): a.e(f"buffer_load_dwordx4 v235, s[{SH}:{SH+3}], s75 offen offset:{1024*ch} lds" + (NT() if OPT["nth"] else ""))
    a.e("v_mov_b32 v233, 0x7ffffff0", f"v_mov_b32 v234, s{sD4K}", "v_cmp_eq_u32 vcc, 15, v1", "v_cndmask_b32 v233, v233, v234, vcc",
        f"buffer_load_short_d16_hi v230, v233, s[{SH}:{SH+3}], 0 offen")

def gen_B(a):
    ROLE[0] = 'B'
    SH, STT, SKVT = 80, 84, 32
    a.e(f"s_setprio {OPT['prioB']}") if OPT['prioB'] else None
    srd(a, SH, P_SSMK, P_SSMK+1, 4*MB); srd(a, STT, P_OUT, P_OUT+1, 8*MB)
    sCBK, sSUB, sD, sD4K, sLB, sDV, sF1, sF2, sMASK = 40, 41, 42, 43, 44, 45, 46, 47, 72
    a.e(f"s_and_b32 s{sCBK}, s2, 15",
        f"s_lshr_b32 s{sSUB}, s2, 4",
        f"s_lshl_b32 s{sD}, s{sCBK}, 4", f"s_add_u32 s{sD}, s{sD}, s{sSUB}", f"s_lshl_b32 s{sD}, s{sD}, 2", f"s_add_u32 s{sD}, s{sD}, s3",
        f"s_lshl_b32 s{sD4K}, s{sD}, 12", f"s_mul_i32 s{sLB}, s3, {LB_STRIDE}", f"s_mov_b32 s{sMASK}, 0xffff0000")
    sSB = 36
    a.e(f"s_and_b32 s73, s{sD}, 63", "s_lshl_b32 s73, s73, 13", f"s_lshl_b32 s74, s{sCBK}, 7", "s_add_u32 s73, s73, s74", f"s_add_u32 s{sSB}, s73, 2048")
    for i in range(1, 4): a.e(f"s_add_u32 s{sSB+i}, s{sSB}, {i*2*MB}")
    a.e(f"s_lshl_b32 s73, s{sCBK}, {4+FB()}", f"s_add_u32 s{sF1}, s73, {SY_B1}", f"s_lshl_b32 s74, s{sSUB}, {FB()}", "s_add_u32 s73, s73, s74", f"s_add_u32 s{sF2}, s73, {SY_B2}")
    a.e(f"s_and_b32 s73, s{sD}, 0xfffffffe", "s_lshl_b32 s73, s73, 1", f"s_load_dword s{sDV}, s[{P_SSMD}:{P_SSMD+1}], s73")
    stamp(a, 0, True); stamp(a, 1)
    Lidle, Lsetup = newlbl("bidle"), newlbl("bsetup")
    if OPT["pB1"]: a.e(f"s_setprio {OPT['pB1']}")
    if OPT["b1all"]:
        a.e(f"s_mov_b32 s{sCBKT}, s{sCBK}", f"s_mov_b32 s{sSUBT}, s{sSUB}")
        if OPT["hearly"] and not OPT["hlate"]:
            emit_B1(a, after_stores=lambda: h_dma(a, SH, sLB, sD4K), nafter=9)
        else:
            emit_B1(a)
            if not OPT["hlate"]: h_dma(a, SH, sLB, sD4K)
    else:
        a.e(f"s_cmp_lg_u32 s{sACT}, 0", f"s_cbranch_scc1 {Lidle}")
        if OPT["hearly"] and not OPT["hlate"]:
            emit_B1(a, after_stores=lambda: h_dma(a, SH, sLB, sD4K), nafter=9)
        else:
            emit_B1(a)
            if not OPT["hlate"]: h_dma(a, SH, sLB, sD4K)
        a.e(f"s_branch {Lsetup}")
        a.label(Lidle)
        if OPT["tlb"] or OPT["cpf"]: warm(a)
        fin_epoch(a)
        loc_publish(a)
        loc_issue(a, 10)
        loc_resolve(a, 10, barrier=False)
        if not OPT["hlate"]:
            for _ in range(OPT["hactdelay"]):
                a.e("v_and_b32 v12, 15, v1", f"v_lshlrev_b32 v12, {FB()}, v12", f"v_add_u32 v12, s{sF1}, v12",
                    f"buffer_load_dword v13, v12, s[{S_SYN}:{S_SYN+3}], 0 offen sc1", "s_waitcnt vmcnt(0)")
            h_dma(a, SH, sLB, sD4K)
    a.label(Lsetup)
    if OPT["pB1"]: a.e(f"s_setprio {OPT['prioB']}")
    stamp(a, 12)
    LN16, B_, G4, VA, VB, VE, VS2, T = 2, 3, 4, 5, 9, 10, 11, 12
    a.e(f"v_lshlrev_b32 v{T}, 2, v1",
        f"v_add_u32 v{T+1}, {4160-32}, v{T}", "v_cmp_le_u32 vcc, 8, v1", f"v_cndmask_b32 v{T+3}, v{T}, v{T+1}, vcc",
        f"v_add_u32 v{T+1}, 8288, v{T}", "v_cmp_le_u32 vcc, 16, v1", f"v_cndmask_b32 v{T+3}, v{T+3}, v{T+1}, vcc",
        f"v_add_u32 v231, s{sLB}, v{T+3}")
    a.e(f"v_lshlrev_b32 v{T}, 3, v1", f"v_add_u32 v{T}, s{sLB}, v{T}", "v_mov_b32 v16, 0", "v_mov_b32 v17, 0", f"ds_write_b64 v{T}, v[16:17] offset:8288")
    a.e(f"v_and_b32 v{B_}, 15, v1", f"v_lshrrev_b32 v{G4}, 4, v1")
    a.e(f"v_and_b32 v{VA}, 1, v{B_}", f"v_xor_b32 v{VA}, 1, v{VA}", f"v_mul_u32_u24 v{VA}, 4160, v{VA}",
        f"v_add_u32 v{VA+1}, 1, v{B_}", f"v_lshrrev_b32 v{VA+1}, 1, v{VA+1}", f"v_lshl_add_u32 v{VA}, v{VA+1}, 2, v{VA}",
        f"v_lshlrev_b32 v{VA+1}, 4, v{G4}", f"v_sub_u32 v{VA}, v{VA}, v{VA+1}",
        f"s_add_u32 s73, s{sLB}, 16", f"v_add_u32 v{VA}, s73, v{VA}")
    for pp in range(1, 4): a.e(f"v_add_u32 v{VA+pp}, {1024*pp}, v{VA}")
    a.e(f"v_lshlrev_b32 v{VB}, 5, v{B_}", f"v_lshl_add_u32 v{VB}, v{G4}, 4, v{VB}",
        f"s_add_u32 s73, s{sLB}, {8800-480}", f"v_add_u32 v{VB}, s73, v{VB}")
    a.e(f"v_lshrrev_b32 v18, 1, v{G4}", f"v_lshlrev_b32 v19, 4, v18", f"v_lshl_add_u32 v19, v{B_}, 5, v19",
        f"v_and_b32 v18, 1, v{G4}", "v_xor_b32 v18, 1, v18", f"v_lshl_add_u32 v19, v18, 3, v19",
        f"s_add_u32 s73, s{sLB}, 8800", f"v_add_u32 v232, s73, v19")
    a.e(f"v_lshrrev_b32 v18, 3, v{B_}", f"v_lshlrev_b32 v{VS2}, 19, v18", f"v_bfe_u32 v18, v{B_}, 2, 1", f"v_lshl_add_u32 v{VS2}, v18, 12, v{VS2}",
        f"v_and_b32 v18, 1, v{G4}", f"v_lshl_add_u32 v{VS2}, v18, 20, v{VS2}", f"v_and_b32 v18, 3, v{B_}", f"v_lshl_add_u32 v{VS2}, v18, 5, v{VS2}",
        f"v_lshrrev_b32 v18, 1, v{G4}", f"v_lshl_add_u32 v{VS2}, v18, 4, v{VS2}")
    a.e(f"v_lshlrev_b32 v{LN16}, 19, v{G4}", "v_bfe_u32 v18, v1, 3, 1", f"v_lshl_add_u32 v{LN16}, v18, 12, v{LN16}",
        "v_and_b32 v18, 7, v1", f"v_lshl_add_u32 v{LN16}, v18, 4, v{LN16}")
    a.e("v_lshlrev_b32 v18, 4, v1", f"s_add_u32 s73, s{sLB}, 8800", "v_add_u32 v19, s73, v18")
    a.e("s_waitcnt lgkmcnt(0)",
        f"s_and_b32 s73, s{sD}, 1", f"s_lshl_b32 s74, s{sDV}, 16", f"s_and_b32 s75, s{sDV}, 0xffff0000",
        "s_cmp_eq_u32 s73, 1", f"s_cselect_b32 s{sDV}, s75, s74")
    if OPT["twoflag"]:
        a.e(f"s_add_u32 s73, s{sF1}, {SY_B1B-SY_B1}", f"s_cmp_lg_u32 s{sLOC}, 0", f"s_cselect_b32 s{sF1}, s{sF1}, s73")
    a.e(f"v_and_b32 v{T}, 15, v1", f"v_lshlrev_b32 v{T}, {FB()}, v{T}", f"v_add_u32 v{T}, s{sF1}, v{T}")
    stamp(a, 5)
    wait_flags(a, T, 1, T+1, 73)
    loc_read(a, 12)
    stamp(a, 6)
    VE = 232
    ACC = 20
    SETS = [(52, 84), (116, 148)]
    U = SETS[1][1]
    for ch in range(4):
        a.e(f"buffer_load_dwordx4 {v(U+4*ch,4)}, v{LN16}, s[{STT}:{STT+3}], s{sSB+ch} offen" + LDL())
    def reads(rho, st):
        A, B = SETS[st]
        out = []
        for p in range(8):
            o = 8*rho + 128*(p & 1)
            out.append(f"ds_read2_b32 {v(A+4*p,2)}, v{VA+(p>>1)} offset0:{o} offset1:{o+1}")
            out.append(f"ds_read2_b32 {v(A+4*p+2,2)}, v{VA+(p>>1)} offset0:{o+2} offset1:{o+3}")
        outb = [f"ds_read_b128 {v(B+4*q,4)}, v{VB} offset:{512*q+32*(15-rho)}" for q in range(8)]
        return out, outb
    rhos = list(range(1, 16, 2))
    ra, rb = reads(rhos[0], 0)
    if OPT["hlate"]:
        h_dma(a, SH, sLB, sD4K)
        for ch in range(4):
            a.e(f"s_waitcnt vmcnt({3-ch+9})", f"ds_write_b128 v19, {v(U+4*ch,4)} offset:{1024*ch}")
        a.e("s_waitcnt vmcnt(0)", "ds_write_b32 v231, v230", "s_waitcnt lgkmcnt(0)")
        for r in ra: a.e(r)
    else:
        a.e("s_waitcnt vmcnt(4)", "ds_write_b32 v231, v230")
        a.e("s_waitcnt lgkmcnt(0)")
        for r in ra: a.e(r)
        for ch in range(4):
            a.e(f"s_waitcnt vmcnt({3-ch})", f"ds_write_b128 v19, {v(U+4*ch,4)} offset:{1024*ch}")
    a.e("s_waitcnt lgkmcnt(0)")
    for r in rb: a.e(r)
    if OPT["yieldB"]:
        Ly = newlbl("y0b")
        if OPT["y0"]: a.e("s_cmp_lg_u32 s2, 0", f"s_cbranch_scc1 {Ly}")
        b_yield(a, 233)
        a.label(Ly)
    Lnq = newlbl("noq")
    if OPT["a3all"]:
        a.e(f"s_mov_b32 s{sCBKT}, s{sCBK}", f"s_mov_b32 s{sSUBT}, s{sSUB}")
        emit_B3_pre(a)
    else:
        a.e(f"s_cmp_lg_u32 s{sACT}, 0", f"s_cbranch_scc1 {Lnq}")
        emit_B3_pre(a)
        a.label(Lnq)
    stamp(a, 7)
    for ci, rho in enumerate(rhos):
        st = ci & 1
        A, B = SETS[st]
        if ci+1 < len(rhos):
            ra, rb = reads(rhos[ci+1], st ^ 1); nxt = ra[0:2] + rb + ra[2:]
        else:
            nxt = [f"ds_read_b64 {v(SETS[st^1][0]+2*j,2)}, v{VE} offset:{512*j}" for j in range(8)]
        a.e("s_waitcnt lgkmcnt(0)")
        n = 0
        for p in range(8):
            for q in range(8-p):
                j = p+q
                c = "0" if (ci == 0 and p == 0) else v(ACC+4*j, 4)
                a.e(f"v_mfma_f32_16x16x32_bf16 {v(ACC+4*j,4)}, {v(A+4*p,4)}, {v(B+4*q,4)}, {c}")
                if n < len(nxt): a.e(nxt[n])
                n += 1
    KVR = SETS[0][0]; TMv = 116
    a.e("s_waitcnt lgkmcnt(0)")
    stamp(a, 8)
    sts = []
    for jp in range(4):
        base = TMv + 8*jp
        for hh in range(2):
            j = 2*jp+hh
            w0, w1 = KVR+2*j, KVR+2*j+1
            t = 172
            a.e(f"v_and_b32 v{t}, s{sMASK}, v{w1}", f"v_lshlrev_b32 v{t+1}, 16, v{w1}",
                f"v_and_b32 v{t+2}, s{sMASK}, v{w0}", f"v_lshlrev_b32 v{t+3}, 16, v{w0}")
            for r in range(4):
                a.e(f"v_fma_f32 v{t+r}, v{t+r}, s{sDV}, v{ACC+4*j+r}")
            a.e(f"v_cvt_pk_bf16_f32 v{base+2*hh}, v{t}, v{t+1}", f"v_cvt_pk_bf16_f32 v{base+2*hh+1}, v{t+2}, v{t+3}")
        a.e(f"v_permlane16_swap_b32 v{base}, v{base+2}", f"v_permlane16_swap_b32 v{base+1}, v{base+3}")
        sts.append(f"buffer_store_dwordx4 {v(base,4)}, v{VS2}, s[{STT}:{STT+3}], s{sSB+jp} offen")
    dual_store(a, sts)
    signal(a, sF2, 12, bloc=True)
    stamp(a, 9)
    if not OPT["a3all"]: a.e(f"s_cmp_lg_u32 s{sACT}, 0", "s_cbranch_scc1 L_fin")
    emit_B3(a)
    a.e("s_branch L_fin")

def warm(a):
    if OPT["tlb"]:
        L = newlbl("warm")
        a.e("s_cmp_lg_u32 s3, 3", f"s_cbranch_scc1 {L}")
        pages = [(P_WS, WS_I1), (P_WS, WS_I1+2*MB), (P_WS, WS_I2), (P_WS, WS_I2+2*MB), (P_WS, WS_SYNC+512*1024),
                 (P_OUT, 0), (P_OUT, 2*MB), (P_OUT, 4*MB), (P_OUT, 6*MB),
                 (P_WR, 0), (P_WR, 2*MB), (P_WI, 0), (P_WI, 2*MB), (P_SSMK, 0), (P_SSMK, 2*MB), (P_Q, 0), (P_Q, 2*MB)]
        a.e("v_mov_b32 v240, 0", "v_mov_b32 v241, 0")
        for i, (p, off) in enumerate(pages):
            a.e(f"s_add_u32 s92, s{p}, {off}", f"s_addc_u32 s93, s{p+1}, 0", f"v_writelane_b32 v240, s92, {i}", f"v_writelane_b32 v241, s93, {i}")
        a.e(f"s_mov_b64 exec, {(1 << len(pages)) - 1}", "global_load_dword v242, v[240:241], off", "s_mov_b64 exec, -1")
        a.label(L)
    if OPT["cpf"]:
        L = newlbl("warm")
        a.e("s_cmp_ge_u32 s3, 2", f"s_cbranch_scc1 {L}")
        a.e("s_getpc_b64 s[92:93]")
        a.e("s_lshr_b32 s96, s2, 4", "s_and_b32 s96, s96, 15", "s_lshl_b32 s96, s96, 1", "s_add_u32 s96, s96, s3", "s_min_u32 s96, s96, 25",
            "s_lshl_b32 s96, s96, 10", f"s_sub_u32 s92, s92, {OPT['cpf']}", "s_subb_u32 s93, s93, 0",
            "s_add_u32 s92, s92, s96", "s_addc_u32 s93, s93, 0", "v_lshlrev_b32 v240, 4, v1",
            "global_load_dwordx4 v[236:239], v240, s[92:93]")
        a.label(L)

def gen_kernel():
    a = Asm(); a.name = "p"
    a.e("s_cmp_ge_u32 s2, 512", "s_cbranch_scc1 L_exit")
    if OPT.get("spinT") or OPT.get("span"): a.e("s_memrealtime s[94:95]")
    if gen.PROF: a.e("s_memrealtime s[98:99]", "s_waitcnt lgkmcnt(0)", "v_writelane_b32 v247, s98, 13")
    a.e(f"s_load_dwordx16 s[4:19], s[0:1], 0", f"s_load_dwordx8 s[20:27], s[0:1], 64")
    a.e("v_lshrrev_b32 v1, 6, v0", "v_readfirstlane_b32 s3, v1", "v_and_b32 v1, 63, v0", "s_waitcnt lgkmcnt(0)")
    srd(a, S_SYN, P_WS, P_WS+1, 1*MB, add=WS_SYNC)
    a.e(f"s_mov_b32 s48, {WS_SYNC+SY_E}", f"s_load_dword s{S_TGT}, s[{P_WS}:{P_WS+1}], s48")
    a.e(f"s_mov_b32 s98, {64<<FA()}", f"s_mov_b32 s99, {128<<FA()}", f"s_mov_b32 s100, {192<<FA()}")
    a.e(f"s_and_b32 s{sCU}, s2, 255", f"s_bitcmp0_b32 s2, 3", f"s_cselect_b32 s{sACT}, 1, 0",
        f"s_lshr_b32 s48, s{sCU}, 4", "s_lshl_b32 s48, s48, 3", f"s_and_b32 s49, s{sCU}, 7", "s_add_u32 s48, s48, s49",
        f"s_and_b32 s{sCBKT}, s48, 15", "s_lshr_b32 s48, s48, 4", "s_lshl_b32 s48, s48, 1", "s_lshr_b32 s49, s2, 8", f"s_add_u32 s{sSUBT}, s48, s49")
    dstamp(a, 0, inv=True)
    a.e("s_cmp_ge_u32 s2, 256", "s_cbranch_scc1 L_A")
    gen_B(a)
    a.label("L_A")
    gen_A(a)
    a.label("L_fin")
    if OPT.get("dmax"):
        a.e("s_waitcnt vmcnt(0)"); dstamp(a, 7)
    if gen.PROF:
        a.e("s_waitcnt vmcnt(0)")
        stamp(a, 14); stamp(a, 15, True)
        prof_dump(a)
    if OPT.get("span"):
        Ls = newlbl("span")
        a.e("s_cmp_lg_u32 s3, 0", f"s_cbranch_scc1 {Ls}", "s_waitcnt vmcnt(0)", "s_memrealtime s[92:93]",
            f"s_add_u32 s32, s{P_WS}, {gen.WS_PROF}", f"s_addc_u32 s33, s{P_WS+1}, 0", f"s_mov_b32 s34, {MB}", "s_mov_b32 s35, 0x00020000",
            "s_lshl_b32 s36, s2, 3", "s_waitcnt lgkmcnt(0)", "v_mov_b32 v2, s36", "v_mov_b32 v4, s94", "v_mov_b32 v5, s92", "s_mov_b64 exec, 1",
            "buffer_store_dwordx2 v[4:5], v2, s[32:35], 0 offen", "s_waitcnt vmcnt(0)")
        a.label(Ls)
    if OPT.get("spinT"):
        a.label("L_spin")
        a.e("s_memrealtime s[92:93]", "s_waitcnt lgkmcnt(0)", "s_sub_u32 s92, s92, s94", f"s_cmp_lt_u32 s92, {OPT['spinT']}", "s_cbranch_scc1 L_spin")
    a.label("L_exit")
    a.e("s_endpgm")
    return a

def prof_dump(a):
    if OPT.get("dbgwg", -1) >= 0:
        L = newlbl("nodbg")
        a.e(f"s_cmp_lg_u32 s2, {OPT['dbgwg']}", f"s_cbranch_scc1 {L}", "s_cmp_lg_u32 s3, 0", f"s_cbranch_scc1 {L}")
        a.e("v_readlane_b32 s36, v247, 1", "v_readlane_b32 s37, v247, 13", "v_mov_b32 v250, s36", "v_mov_b32 v251, s37",
            "v_cmp_eq_u32 vcc, 0, v1", "v_cndmask_b32 v250, v250, v251, vcc", "v_cmp_eq_u32 vcc, 13, v1", "v_cndmask_b32 v250, v250, v251, vcc",
            "v_cmp_eq_u32 vcc, 15, v1", "v_cndmask_b32 v250, v250, v251, vcc", "v_sub_u32 v250, v247, v250",
            f"s_mov_b32 s32, s{P_DBG}", f"s_mov_b32 s33, s{P_DBG+1}", "s_mov_b32 s34, 256", "s_mov_b32 s35, 0x00020000",
            "v_lshlrev_b32 v251, 2, v1", "s_mov_b64 exec, 0xffff", "buffer_store_dword v250, v251, s[32:35], 0 offen", "s_waitcnt vmcnt(0)", "s_mov_b64 exec, -1")
        a.label(L)
        return

    a.e(f"s_add_u32 s32, s{P_WS}, {gen.WS_PROF}", f"s_addc_u32 s33, s{P_WS+1}, 0", f"s_mov_b32 s34, {MB}", "s_mov_b32 s35, 0x00020000")
    a.e("s_lshl_b32 s36, s2, 2", "s_add_u32 s36, s36, s3", "s_lshl_b32 s36, s36, 6",
        "v_lshlrev_b32 v250, 2, v1", "v_add_u32 v250, s36, v250", "s_mov_b64 exec, 0xffff",
        "buffer_store_dword v247, v250, s[32:35], 0 offen")
    if OPT.get("fine"):
        a.e("v_add_u32 v250, 0x40000, v250", "buffer_store_dword v246, v250, s[32:35], 0 offen")
    a.e("s_waitcnt vmcnt(0)")
PROFREGS = []

def build(path):
    a = gen_kernel()
    name = "concat_heads__spectral_gfnet__ssm_conv_h3__prompt_kernel"
    s = open("concat_heads__spectral_gfnet__ssm_conv_h3__prompt.s.ref").read().split("; Override")[0]
    s += f"; @launch grid=(512,1,1) block=(256,1,1) lds={LDS_BYTES}\n"
    s += '.amdgcn_target "amdgcn-amd-amdhsa--gfx950"\n' + gen.header(name) + a.text() + gen.descriptor(name, 256, 102)
    s = s.replace(" lds nt", " nt lds")
    open(path, "w").write(s)
    return s

if __name__ == "__main__":
    out = sys.argv[1] if len(sys.argv) > 1 else "pers.s"
    gen.PROF = "prof" in sys.argv[2:]
    for x in sys.argv[2:]:
        if "=" in x:
            k, val = x.split("="); OPT[k] = int(val)
    if OPT["wsend"]:
        base = OPT["wsend"]*MB
        WS_I1, WS_KVT, WS_I2, WS_TT, WS_SYNC = base, base+4*MB, base+8*MB, base+12*MB, base+20*MB
    s = build(out)
    print(out, len(s))
```

```python
import sys
from asmgen import *
import gen
from gen import srd, MB, WS_I1, WS_KVT, WS_I2, WS_TT, KA

PHASE = [1]
def dstamp(a, k, inv=False):
    if not OPT.get("dmax"): return
    a.e("s_memrealtime s[96:97]", "s_waitcnt lgkmcnt(0)", f"v_writelane_b32 v242, s96, {k}")
SY_DG = 4096 + 131072
def dpublish(a, sT):
    if not OPT.get("dmax"): return
    L = newlbl("dp")
    a.e("s_cmp_lg_u32 s3, 0", f"s_cbranch_scc1 {L}", f"s_lshl_b32 s92, s{sT}, 5", f"s_add_u32 s92, s92, {SY_DG}",
        "v_lshlrev_b32 v240, 2, v1", "v_add_u32 v240, s92, v240", "s_mov_b64 exec, 0xff",
        f"buffer_store_dword v242, v240, s[{S_SYN}:{S_SYN+3}], 0 offen sc1", "s_mov_b64 exec, -1")
    a.label(L)
def dreduce(a):
    if not OPT.get("dmax"): return
    a.e(f"s_mov_b32 s92, s{P_DBG}", f"s_mov_b32 s93, s{P_DBG+1}", "s_mov_b32 s94, 256", "s_mov_b32 s95, 0x00020000")
    a.e("v_lshlrev_b32 v2, 5, v1", f"v_add_u32 v2, {SY_DG}, v2")
    for k in range(7):
        for i in range(4):
            a.e(f"s_mov_b32 s50, {2048*i + 4*k}", f"buffer_load_dword v{10+i}, v2, s[{S_SYN}:{S_SYN+3}], s50 offen sc1")
        a.e("s_waitcnt vmcnt(0)")
        if k == 0:
            a.e("v_min_u32 v10, v10, v11", "v_min_u32 v12, v12, v13", "v_min_u32 v10, v10, v12", "s_mov_b32 s51, -1")
            for l in range(64): a.e(f"v_readlane_b32 s48, v10, {l}", "s_min_u32 s51, s51, s48")
            a.e("s_mov_b32 s45, s51")
            continue
        for i in range(4):
            a.e(f"v_subrev_u32 v{10+i}, s45, v{10+i}", f"v_lshlrev_b32 v{10+i}, 8, v{10+i}", f"v_add_u32 v14, {64*i}, v1", f"v_or_b32 v{10+i}, v{10+i}, v14")
        a.e("v_max_u32 v10, v10, v11", "v_max_u32 v12, v12, v13", "v_max_u32 v10, v10, v12", "s_mov_b32 s51, 0")
        for l in range(64): a.e(f"v_readlane_b32 s48, v10, {l}", "s_max_u32 s51, s51, s48")
        a.e("s_lshr_b32 s48, s51, 8", "s_and_b32 s49, s51, 255", "v_mov_b32 v14, s48", "v_mov_b32 v15, s49", f"v_mov_b32 v16, {8*(k-1)}", "s_mov_b64 exec, 1",
            "buffer_store_dwordx2 v[14:15], v16, s[92:95], 0 offen", "s_mov_b64 exec, -1")
DMAP_A = {1: 0, 5: 1, 6: 2, 7: 3, 8: 4, 9: 5}
DMAP_B = {}
ROLE = ["B"]
def fstamp(a, i):
    if OPT.get("fine") != PHASE[0]: return
    a.e('s_memtime s[96:97]', 's_waitcnt lgkmcnt(0)', f'v_writelane_b32 v246, s96, {i}')
def stamp(a, i, real=False):
    if OPT.get("dmax"):
        m = DMAP_A if ROLE[0] == "A" else DMAP_B
        if i in m and i != 14: dstamp(a, m[i])
        return
    if not gen.PROF: return
    a.e('s_memrealtime s[96:97]' if real else 's_memtime s[96:97]', 's_waitcnt lgkmcnt(0)', f'v_writelane_b32 v247, s96, {i}')

WBYTES = 2048*513*2
LB_STRIDE = 12896
LDS_BYTES = 53248
SPIN_LIMIT = 400000
OPT = dict(prioA=0, prioB=0, sleep=0, nt=1, wsend=0, ntout=1, ntw=1, wlate=1, hlate=1, qA=1, fsa=6, fsb=6, shrink=0, loc=1, forceloc=-1, ldloc=1, bdelay=0, earlypub=1, wpos=1, optst=1, locflag=1, hearly=1, twoflag=1, pA1i=-1, pB1=0, ntscr=0, a3all=1, ntk=1, ntv=1, ntx=1, nth=1, hactdelay=0, b1all=1, bactwait=1, pA1a=-1, grp=1, yieldB=0, ylim=40, tlb=0, cpf=0, spec2=1, y0=0, yinit=1)
def NMEM(): return 32 if OPT['b1all'] else 48
def LDL(): return {0: ' sc1', 1: ' nt', 2: ' sc1 nt'}[OPT['ldloc']]
def FA(): return OPT['fsa']
def FB(): return OPT['fsb']
def NT(): return ' nt' if OPT['nt'] else ''
def NTO(): return {0: '', 1: ' nt', 2: ' sc1', 3: ' sc1 nt'}[OPT['ntout']]

P_X, P_WR, P_WI, P_Q, P_K, P_V, P_SHK, P_SSMK, P_SSMD, P_OUT, P_DBG, P_WS = 4, 6, 8, 10, 12, 14, 16, 18, 20, 22, 24, 26
S_DBG = 28
def eidx(r): return (r & 3) + 8*(r >> 2)

_lbl = [0]
def newlbl(p):
    _lbl[0] += 1
    return f"L_{p}_{_lbl[0]}"

WS_SYNC = 20*MB
S_SYN = 28
S_TGT = 101
SY_E, SY_A1, SY_A2, SY_B1, SY_B2 = 0, 4096, 4096+16384, 4096+32768, 4096+49152
sACT, sCBKT, sSUBT, sCU = 88, 89, 90, 91
sLOC, sXEXP = 79, 0
S_DBG = 12
def signal(a, s_off, vt, nafter=0, bloc=False):
    L = newlbl("sig")
    a.e(f"s_waitcnt vmcnt({nafter})", "s_barrier", "s_cmp_lg_u32 s3, 0", f"s_cbranch_scc1 {L}",
        f"v_mov_b32 v{vt}, s{s_off}", f"v_mov_b32 v{vt+1}, s{S_TGT}", "s_mov_b64 exec, 1")
    st = f"buffer_store_dword v{vt+1}, v{vt}, s[{S_SYN}:{S_SYN+3}], 0 offen"
    if bloc and OPT["locflag"]:
        dual_store(a, [st])
    else:
        a.e(st + " sc1")
    a.e("s_mov_b64 exec, -1")
    a.label(L)

def wait_flags(a, vaddr, nload, vt, s_cnt, pre_barrier=None, solo=False):
    L = newlbl("poll"); Ls = newlbl("pdone"); Lr = newlbl("prest")
    if not solo: a.e("s_cmp_lg_u32 s3, 0", f"s_cbranch_scc1 {Ls}")
    a.e(f"s_mov_b32 s{s_cnt}, 0")
    a.label(L)
    offs = ["0", "s98", "s99", "s100"]
    for i in range(nload):
        a.e(f"buffer_load_dword v{vt+i}, v{vaddr}, s[{S_SYN}:{S_SYN+3}], {offs[i]} offen sc1")
    a.e(f"s_add_u32 s{s_cnt}, s{s_cnt}, 1", "s_waitcnt vmcnt(0)")
    for i in range(nload):
        a.e(f"v_xor_b32 v{vt+i}, s{S_TGT}, v{vt+i}")
    for i in range(1, nload):
        a.e(f"v_or_b32 v{vt}, v{vt}, v{vt+i}")
    if OPT["shrink"]:
        a.e(f"v_cmp_ne_u32 vcc, 0, v{vt}", "s_and_b64 exec, exec, vcc", f"s_cbranch_execz {Lr}")
    else:
        a.e(f"v_cmp_ne_u32 vcc, 0, v{vt}", f"s_cbranch_vccz {Lr}")
    if OPT["sleep"]: a.e(f"s_sleep {OPT['sleep']}")
    a.e(f"s_cmp_lt_u32 s{s_cnt}, {SPIN_LIMIT}", f"s_cbranch_scc1 {L}")
    a.label(Lr)
    if OPT["shrink"]: a.e("s_mov_b64 exec, -1")
    a.label(Ls)
    if pre_barrier: a.e(pre_barrier)
    if not solo: a.e("s_barrier")

SY_ID = 4096 + 65536
SY_B1B = 4096 + 98304
SY_AS = 4096 + 114688
LOCW = 53244
def loc_publish(a):
    L = newlbl("pub")
    a.e("s_getreg_b32 s92, hwreg(HW_REG_XCC_ID)", "s_and_b32 s92, s92, 15", f"s_lshl_b32 s{sXEXP}, s{S_TGT}, 4", f"s_or_b32 s{sXEXP}, s{sXEXP}, s92")
    a.e("s_cmp_lg_u32 s3, 0", f"s_cbranch_scc1 {L}")
    if OPT["b1all"] and OPT["grp"]:
        a.e("s_and_b32 s92, s2, 15", "s_lshl_b32 s92, s92, 4", "s_lshr_b32 s93, s2, 4", "s_add_u32 s92, s92, s93", "s_lshl_b32 s92, s92, 6", f"s_add_u32 s92, s92, {SY_ID}")
    else:
        a.e("s_lshr_b32 s92, s2, 3", f"s_lshr_b32 s93, s{sCU}, 4", "s_add_u32 s93, s93, 32", "s_cmp_ge_u32 s2, 256", "s_cselect_b32 s92, s93, s92",
            "s_and_b32 s93, s2, 7", f"s_mul_i32 s93, s93, {NMEM()}", "s_add_u32 s92, s92, s93", "s_lshl_b32 s92, s92, 6", f"s_add_u32 s92, s92, {SY_ID}")
    a.e(
        "v_mov_b32 v10, s92", f"v_mov_b32 v11, s{sXEXP}", "s_mov_b64 exec, 1",
        f"buffer_store_dword v11, v10, s[{S_SYN}:{S_SYN+3}], 0 offen sc1", "s_mov_b64 exec, -1")
    a.label(L)

def loc_issue(a, vt):
    if OPT["b1all"] and OPT["grp"]:
        a.e(f"v_min_u32 v{vt}, 15, v1", "s_and_b32 s93, s2, 15", "s_lshl_b32 s93, s93, 4")
    else:
        a.e(f"v_min_u32 v{vt}, {NMEM()-1}, v1", "s_and_b32 s93, s2, 7", f"s_mul_i32 s93, s93, {NMEM()}")
    a.e(f"v_add_u32 v{vt}, s93, v{vt}",
        f"v_lshlrev_b32 v{vt}, 6, v{vt}", f"v_add_u32 v{vt}, {SY_ID}, v{vt}")
    L = newlbl("li")
    a.e("s_cmp_lg_u32 s3, 0", f"s_cbranch_scc1 {L}")
    a.e(f"buffer_load_dword v{vt+1}, v{vt}, s[{S_SYN}:{S_SYN+3}], 0 offen sc1")
    a.label(L)

def loc_resolve(a, vt, barrier=True, nafter=0):
    L, Ld, Ls = newlbl("locp"), newlbl("locd"), newlbl("locs")
    a.e("s_cmp_lg_u32 s3, 0", f"s_cbranch_scc1 {Ls}")
    if OPT["forceloc"] >= 0:
        a.e(f"s_waitcnt vmcnt({nafter})", f"s_mov_b32 s93, {OPT['forceloc']}")
    else:
        a.e("s_mov_b32 s92, 0", f"s_waitcnt vmcnt({nafter})")
        a.label(L)
        a.e(f"v_xor_b32 v{vt+2}, s{sXEXP}, v{vt+1}", f"v_lshrrev_b32 v{vt+3}, 4, v{vt+2}", "s_add_u32 s92, s92, 1",
            f"v_cmp_ne_u32 vcc, 0, v{vt+3}", f"s_cbranch_vccz {Ld}",
            f"s_cmp_ge_u32 s92, {SPIN_LIMIT}", f"s_cbranch_scc1 {Ld}",
            f"buffer_load_dword v{vt+1}, v{vt}, s[{S_SYN}:{S_SYN+3}], 0 offen sc1", "s_waitcnt vmcnt(0)", f"s_branch {L}")
        a.label(Ld)
        a.e(f"v_cmp_ne_u32 vcc, 0, v{vt+2}", "s_cmp_eq_u64 vcc, 0", "s_cselect_b32 s93, 1, 0")
    a.e(f"s_mov_b32 s{sLOC}, s93", f"v_mov_b32 v{vt+2}, {LOCW}", f"v_mov_b32 v{vt+3}, s93", f"ds_write_b32 v{vt+2}, v{vt+3}", "s_waitcnt lgkmcnt(0)")
    a.label(Ls)
    if barrier:
        a.e("s_barrier")
        loc_read(a, vt)

def loc_read(a, vt):
    a.e(f"v_mov_b32 v{vt+2}, {LOCW}", f"ds_read_b32 v{vt+3}, v{vt+2}", "s_waitcnt lgkmcnt(0)", f"v_readfirstlane_b32 s{sLOC}, v{vt+3}")

def dual_store(a, lines):
    L1, L2 = newlbl("stg"), newlbl("stl")
    a.e(f"s_cmp_eq_u32 s{sLOC}, 0", f"s_cbranch_scc1 {L1}")
    for l in lines: a.e(l)
    a.e(f"s_branch {L2}")
    a.label(L1)
    for l in lines: a.e(l + " sc1" if "buffer_store" in l else l)
    a.label(L2)

def a_state(a, sT, done, vt):
    L = newlbl("ast")
    a.e("s_cmp_lg_u32 s3, 0", f"s_cbranch_scc1 {L}", f"s_lshl_b32 s92, s{sT}, 6", f"s_add_u32 s92, s92, {SY_AS}",
        f"s_lshl_b32 s93, s{S_TGT}, 1", f"s_or_b32 s93, s93, {done}", f"v_mov_b32 v{vt}, s92", f"v_mov_b32 v{vt+1}, s93", "s_mov_b64 exec, 1",
        f"buffer_store_dword v{vt+1}, v{vt}, s[{S_SYN}:{S_SYN+3}], 0 offen", "s_mov_b64 exec, -1")
    a.label(L)

def b_yield(a, vt):
    L, Ld = newlbl("yl"), newlbl("yd")
    a.e(f"s_lshl_b32 s92, s{sCU}, 6", f"s_add_u32 s92, s92, {SY_AS}", f"v_mov_b32 v{vt}, s92", f"s_lshl_b32 s75, s{S_TGT}, 1", "s_mov_b32 s92, 0")
    if OPT["yieldB"] == 2: a.e("s_or_b32 s75, s75, 1")
    a.label(L)
    a.e(f"buffer_load_dword v{vt+1}, v{vt}, s[{S_SYN}:{S_SYN+3}], 0 offen " + ("sc1" if OPT.get("ysc", 1) else "nt"), "s_add_u32 s92, s92, 1", "s_waitcnt vmcnt(0)",
        f"v_readfirstlane_b32 s93, v{vt+1}", "s_cmp_lg_u32 s93, s75" if OPT["yieldB"] == 1 else "s_cmp_eq_u32 s93, s75", f"s_cbranch_scc1 {Ld}",
        f"s_cmp_lt_u32 s92, {OPT['ylim']}", f"s_cbranch_scc1 {L}")
    a.label(Ld)

def fin_epoch(a):
    a.e("s_waitcnt lgkmcnt(0)", f"s_add_u32 s{S_TGT}, s{S_TGT}, 1")

def bump(a, s_off, vt):
    a.e(f"v_mov_b32 v{vt}, s{s_off}", f"v_mov_b32 v{vt+1}, s{S_TGT}", "s_mov_b64 exec, 1",
        f"buffer_store_dword v{vt+1}, v{vt}, s[{S_SYN}:{S_SYN+3}], 0 offen sc1", "s_mov_b64 exec, -1")

F_M, F_G, F_IN0, F_IN1, F_OUTOFF, F_WR, F_RD0, F_RD1, F_MM = 2, 3, 4, 5, 6, 7, 8, 9, 10
F_T = 11
F_IN, F16RE, F16IM, F_TWC, F_TWS, F_DRE, F_DIM, F_P, F_TMP, F32RE, F32IM = 16, 48, 52, 56, 88, 120, 136, 152, 168, 176, 192
SI_OFF, SO_OFF = 52, 68
SO_LIST = [68, 69, 70, 71, 76, 77, 78, 79]

def fft512_addr(a, s_sa, s_cb):
    a.e(f"v_and_b32 v{F_M}, 15, v1", f"v_lshrrev_b32 v{F_G}, 4, v1")
    a.e(f"v_lshlrev_b32 v{F_IN0}, 20, v{F_G}", f"v_lshl_add_u32 v{F_IN0}, v{F_M}, 2, v{F_IN0}", f"v_add_u32 v{F_IN1}, {4*8192}, v{F_IN0}")
    a.e(f"s_lshl_b32 s48, s{s_sa}, 11", f"s_lshl_b32 s49, s{s_cb}, 6", "s_add_u32 s48, s48, s49",
        "s_lshl_b32 s50, s3, 16", "s_add_u32 s48, s48, s50")
    for aa in range(4):
        for i in range(4):
            a.e(f"s_add_u32 s{SI_OFF+4*aa+i}, s48, {(32*i+aa)*8192}")

def fft512_loads(a, SIN, mod=""):
    for hh in range(2):
        for aa in range(4):
            for i in range(4):
                a.e(f"buffer_load_dword v{F_IN+16*hh+4*aa+i}, v{F_IN0+hh}, s[{SIN}:{SIN+3}], s{SI_OFF+4*aa+i} offen {mod}")

def fft512_addr2(a, s_sa, s_cb, orow, ostr):
    a.e(f"s_mov_b32 s51, {16*ostr}", f"v_mul_lo_u32 v{F_OUTOFF}, v{F_M}, s51", f"v_lshl_add_u32 v{F_OUTOFF}, v{F_G}, 4, v{F_OUTOFF}")
    a.e(f"s_mul_i32 s48, s{s_sa}, {orow}", f"s_lshl_b32 s49, s{s_cb}, 6", "s_add_u32 s48, s48, s49",
        f"s_mul_i32 s50, s3, {4*ostr}", "s_add_u32 s48, s48, s50")
    for b in range(4):
        for h in range(2):
            a.e(f"s_add_u32 s{SO_LIST[2*b+h]}, s48, {(b+256*h)*ostr}")
    a.e(f"v_and_b32 v{F_T}, 7, v{F_M}", "s_lshl_b32 s50, s3, 1", f"v_xor_b32 v{F_T+1}, s50, v{F_T}",
        f"v_lshlrev_b32 v{F_WR}, 4, v{F_T+1}", f"v_lshl_add_u32 v{F_WR}, v{F_M}, 7, v{F_WR}",
        f"v_lshl_add_u32 v{F_WR}, v{F_G}, 13, v{F_WR}")
    a.e(f"v_xor_b32 v{F_T+1}, v{F_G}, v{F_T}", f"v_lshlrev_b32 v{F_RD0}, 4, v{F_T+1}",
        f"v_lshl_add_u32 v{F_RD0}, v{F_M}, 7, v{F_RD0}", "s_lshl_b32 s50, s3, 13",
        f"v_add_u32 v{F_RD0}, s50, v{F_RD0}", f"v_xor_b32 v{F_RD1}, 64, v{F_RD0}")

def fft512_consts(a):
    T, TMP = F_T, F_TMP
    XS, XB = T, T+1
    a.e(f"v_cvt_f32_u32 v{XS}, v{F_M}", f"v_mul_f32 v{XS}, {f32hex(1/32)}, v{XS}",
        f"v_cvt_f32_u32 v{T+2}, v{F_G}", f"v_mul_f32 v{T+2}, 4.0, v{T+2}",
        f"v_mul_f32 v{XB}, v{T+2}, v{XS}")
    a.e(f"v_and_b32 v{F_MM}, 1, v{F_M}", f"v_mul_u32_u24 v{F_MM}, 0x8000, v{F_MM}",
        f"v_lshl_or_b32 v{F_MM}, v{F_MM}, 16, v{F_MM}", "s_mov_b32 s50, 0x80008000")
    for i in range(4):
        x = TMP; cs = TMP+1; sn = TMP+2; x2 = TMP+3; cs2 = TMP+4; sn2 = TMP+5
        a.e(f"v_fmamk_f32 v{x}, v{XS}, {f32hex(float(i))}, v{XB}" if i else f"v_mov_b32 v{x}, v{XB}")
        a.e(f"v_add_f32 v{x2}, v{x}, v{x}")
        a.e(f"v_cos_f32 v{cs}, v{x}", f"v_sin_f32 v{sn}, v{x}", f"v_cos_f32 v{cs2}, v{x2}", f"v_sin_f32 v{sn2}, v{x2}")
        a.e(f"v_cvt_pk_bf16_f32 v{F32RE+i}, v{cs}, v{sn}", f"v_cvt_pk_bf16_f32 v{F32IM+i}, -v{sn}, v{cs}",
            f"v_cvt_pk_bf16_f32 v{F16RE+i}, v{cs2}, v{sn2}", f"v_cvt_pk_bf16_f32 v{F16IM+i}, -v{sn2}, v{cs2}")
    for base in (F32RE, F32IM):
        for i in range(4):
            a.e(f"v_xor_b32 v{base+4+i}, v{F_MM}, v{base+i}")
        for t in range(2):
            for i in range(4):
                src = base+4*t+i
                if i & 1: a.e(f"v_xor_b32 v{base+8+4*t+i}, s50, v{src}")
                else:     a.e(f"v_mov_b32 v{base+8+4*t+i}, v{src}")
    a.e(f"v_cvt_f32_u32 v{TMP}, s3", f"v_mul_f32 v{TMP}, {f32hex(8/512)}, v{TMP}")
    for r in range(4):
        a.e(f"v_add_f32 v{TMP+4+r}, {f32hex(float(r)) if r else 0}, v{T+2}")
    for aa in range(8):
        a.e(f"v_add_f32 v{TMP+1}, {f32hex(aa/512) if aa else 0}, v{TMP}")
        for r in range(4):
            a.e(f"v_mul_f32 v{T+3+(r&1)}, v{TMP+1}, v{TMP+4+r}",
                f"v_cos_f32 v{F_TWC+4*aa+r}, v{T+3+(r&1)}", f"v_sin_f32 v{F_TWS+4*aa+r}, v{T+3+(r&1)}")

def fft512_compute(a, SOUT, neg_im, nafter, stmod, st0, fs=0, hook=None):
    TMP = F_TMP
    stamp(a, st0)
    for hh in range(2):
        fstamp(a, fs+5*hh)
        for aa in range(4):
            a.e(f"s_waitcnt vmcnt({28-16*hh-4*aa+nafter})")
            a.e(f"v_mfma_f32_16x16x32_bf16 {v(F_DRE+4*aa,4)}, {v(F16RE,4)}, {v(F_IN+16*hh+4*aa,4)}, 0",
                f"v_mfma_f32_16x16x32_bf16 {v(F_DIM+4*aa,4)}, {v(F16IM,4)}, {v(F_IN+16*hh+4*aa,4)}, 0")
        if hh == 1:
            stamp(a, st0+1)
            if hook: hook()
        fstamp(a, fs+5*hh+1)
        for aa in range(4):
            for p in range(2):
                re, im = F_DRE+4*aa+2*p, F_DIM+4*aa+2*p
                tc, ts = F_TWC+16*hh+4*aa+2*p, F_TWS+16*hh+4*aa+2*p
                t0, t1 = TMP+4*p, TMP+4*p+2
                a.e(f"v_pk_mul_f32 {v(t0,2)}, {v(re,2)}, {v(tc,2)}",
                    f"v_pk_mul_f32 {v(t1,2)}, {v(im,2)}, {v(tc,2)}",
                    f"v_pk_fma_f32 {v(t0,2)}, {v(im,2)}, {v(ts,2)}, {v(t0,2)}",
                    f"v_pk_fma_f32 {v(t1,2)}, {v(re,2)}, {v(ts,2)}, {v(t1,2)} neg_lo:[1,0,0] neg_hi:[1,0,0]")
                for e in range(2):
                    r = 2*p+e
                    a.e(f"v_cvt_pk_bf16_f32 v{F_P+4*r+aa}, v{t0+e}, v{t1+e}")
        fstamp(a, fs+5*hh+2)
        if hh == 1: a.e(f"v_xor_b32 v{F_WR}, 16, v{F_WR}")
        for r in range(4):
            a.e(f"ds_write_b128 v{F_WR}, {v(F_P+4*r,4)} offset:{r*2048}")
    a.e("s_waitcnt lgkmcnt(0)")
    fstamp(a, fs+8)
    a.e("s_barrier")
    fstamp(a, fs+9)
    for b in range(4):
        a.e(f"ds_read_b128 {v(F_IN+8*b,4)}, v{F_RD0} offset:{b*2048}",
            f"ds_read_b128 {v(F_IN+8*b+4,4)}, v{F_RD1} offset:{b*2048}")
    sg = "-" if neg_im else ""
    def mf(bb):
        D0 = [F_DRE, F_DIM] if bb == 0 else [F_TWC, F_TWC+16]
        for bl in range(2):
            b = 2*bb+bl
            a.e(f"s_waitcnt lgkmcnt({6-2*b})")
            for t in range(2):
                for h in range(2):
                    for (D_, F_) in ((D0[0], F32RE), (D0[1], F32IM)):
                        d = D_+8*bl+4*h
                        c = "0" if t == 0 else v(d, 4)
                        a.e(f"v_mfma_f32_16x16x32_bf16 {v(d,4)}, {v(F_IN+8*b+4*t,4)}, {v(F_+8*h+4*t,4)}, {c}")
    def st(bb):
        D0 = [F_DRE, F_DIM] if bb == 0 else [F_TWC, F_TWC+16]
        PB = F_P if bb == 0 else F_TWS
        out = []
        for bl in range(2):
            b = 2*bb+bl
            for h in range(2):
                idx = 8*bl+4*h
                for r in range(4):
                    out.append(f"v_cvt_pk_bf16_f32 v{PB+idx+r}, v{D0[0]+idx+r}, {sg}v{D0[1]+idx+r}")
                out.append(f"buffer_store_dwordx4 {v(PB+idx,4)}, v{F_OUTOFF}, s[{SOUT}:{SOUT+3}], s{SO_LIST[2*b+h]} offen {stmod}")
        return out
    mf(0)
    n0 = len(a.lines)
    mf(1)
    m1 = a.lines[n0:]; del a.lines[n0:]
    s0 = st(0)
    k = 0
    seen = 0
    for l in m1:
        a.lines.append(l)
        if "v_mfma" in l:
            seen += 1
            if seen > 4:
                for _ in range(2):
                    if k < len(s0): a.e(s0[k]); k += 1
    while k < len(s0): a.e(s0[k]); k += 1
    fstamp(a, fs+10)
    for l in st(1): a.e(l)

def f8_addr(a, s_sa, s_cb, orow, ostr):
    a.e(f"v_and_b32 v{F_M}, 15, v1", f"v_lshrrev_b32 v{F_G}, 4, v1")
    a.e(f"v_and_b32 v{F_T}, 7, v1", f"v_bfe_u32 v{F_T+1}, v1, 3, 1",
        f"v_lshlrev_b32 v{F_IN0}, 20, v{F_G}", f"v_lshl_add_u32 v{F_IN0}, v{F_T+1}, 15, v{F_IN0}",
        f"v_lshl_add_u32 v{F_IN0}, v{F_T}, 2, v{F_IN0}")
    a.e(f"s_lshl_b32 s48, s{s_sa}, 11", f"s_lshl_b32 s49, s{s_cb}, 5", "s_add_u32 s48, s48, s49",
        "s_lshl_b32 s50, s3, 16", "s_add_u32 s48, s48, s50")
    for aa in range(4):
        for i in range(4):
            a.e(f"s_add_u32 s{SI_OFF+4*aa+i}, s48, {(32*i+aa)*8192}")
    a.e(f"v_lshrrev_b32 v{F_T+2}, 1, v{F_G}", f"v_lshl_add_u32 v{F_T+2}, v{F_M}, 4, v{F_T+2}",
        f"s_mov_b32 s51, {ostr}", f"v_mul_lo_u32 v{F_OUTOFF}, v{F_T+2}, s51",
        f"v_and_b32 v{F_T+2}, 1, v{F_G}", f"v_lshl_add_u32 v{F_OUTOFF}, v{F_T+2}, 4, v{F_OUTOFF}")
    a.e(f"s_mul_i32 s48, s{s_sa}, {orow}", f"s_lshl_b32 s49, s{s_cb}, 5", "s_add_u32 s48, s48, s49",
        f"s_mul_i32 s50, s3, {4*ostr}", "s_add_u32 s48, s48, s50")
    for b in range(2):
        for h in range(2):
            a.e(f"s_add_u32 s{SO_LIST[2*b+h]}, s48, {(2*b+256*h)*ostr}")
    a.e("s_lshl_b32 s50, s3, 1", f"v_add_u32 v{F_T+2}, s50, v{F_T+1}", f"v_xor_b32 v{F_T+2}, v{F_T+2}, v{F_T}",
        f"v_lshlrev_b32 v{F_WR}, 4, v{F_T+2}", f"v_lshl_add_u32 v{F_WR}, v{F_T}, 7, v{F_WR}", f"v_lshl_add_u32 v{F_WR}, v{F_G}, 12, v{F_WR}")
    a.e(f"v_xor_b32 v{F_T+2}, v{F_G}, v{F_T}", f"v_lshlrev_b32 v{F_RD0}, 4, v{F_T+2}",
        f"v_lshl_add_u32 v{F_RD0}, v{F_T}, 7, v{F_RD0}", f"v_lshl_add_u32 v{F_RD0}, v{F_T+1}, 10, v{F_RD0}",
        "s_lshl_b32 s50, s3, 12", f"v_add_u32 v{F_RD0}, s50, v{F_RD0}", f"v_xor_b32 v{F_RD1}, 64, v{F_RD0}")

def f8_consts(a):
    T, TMP = F_T, F_TMP
    XS, XB = T, T+1
    a.e(f"v_cvt_f32_u32 v{XS}, v{F_M}", f"v_mul_f32 v{XS}, {f32hex(1/32)}, v{XS}",
        f"v_cvt_f32_u32 v{T+2}, v{F_G}", f"v_mul_f32 v{T+2}, 4.0, v{T+2}",
        f"v_mul_f32 v{XB}, v{T+2}, v{XS}")
    a.e(f"v_and_b32 v{F_MM}, 1, v{F_M}", f"v_mul_u32_u24 v{F_MM}, 0x8000, v{F_MM}",
        f"v_lshl_or_b32 v{F_MM}, v{F_MM}, 16, v{F_MM}", "s_mov_b32 s50, 0x80008000")
    for i in range(4):
        x = TMP; cs = TMP+1; sn = TMP+2; x2 = TMP+3; cs2 = TMP+4; sn2 = TMP+5
        a.e(f"v_fmamk_f32 v{x}, v{XS}, {f32hex(float(i))}, v{XB}" if i else f"v_mov_b32 v{x}, v{XB}")
        a.e(f"v_add_f32 v{x2}, v{x}, v{x}")
        a.e(f"v_cos_f32 v{cs}, v{x}", f"v_sin_f32 v{sn}, v{x}", f"v_cos_f32 v{cs2}, v{x2}", f"v_sin_f32 v{sn2}, v{x2}")
        a.e(f"v_cvt_pk_bf16_f32 v{F32RE+i}, v{cs}, v{sn}", f"v_cvt_pk_bf16_f32 v{F32IM+i}, -v{sn}, v{cs}",
            f"v_cvt_pk_bf16_f32 v{F16RE+i}, v{cs2}, v{sn2}", f"v_cvt_pk_bf16_f32 v{F16IM+i}, -v{sn2}, v{cs2}")
    for base in (F32RE, F32IM):
        for i in range(4):
            a.e(f"v_xor_b32 v{base+4+i}, v{F_MM}, v{base+i}")
        for t in range(2):
            for i in range(4):
                src = base+4*t+i
                if i & 1: a.e(f"v_xor_b32 v{base+8+4*t+i}, s50, v{src}")
                else:     a.e(f"v_mov_b32 v{base+8+4*t+i}, v{src}")
    a.e(f"v_bfe_u32 v{TMP}, v1, 3, 1", "s_lshl_b32 s50, s3, 1", f"v_add_u32 v{TMP}, s50, v{TMP}",
        f"v_cvt_f32_u32 v{TMP}, v{TMP}", f"v_mul_f32 v{TMP}, {f32hex(4/512)}, v{TMP}")
    for r in range(4):
        a.e(f"v_add_f32 v{TMP+4+r}, {f32hex(float(r)) if r else 0}, v{T+2}")
    for aa in range(4):
        a.e(f"v_add_f32 v{TMP+1}, {f32hex(aa/512) if aa else 0}, v{TMP}")
        for r in range(4):
            a.e(f"v_mul_f32 v{T+3+(r&1)}, v{TMP+1}, v{TMP+4+r}",
                f"v_cos_f32 v{F_TWC+4*aa+r}, v{T+3+(r&1)}", f"v_sin_f32 v{F_TWS+4*aa+r}, v{T+3+(r&1)}")

def f8_run(a, SIN, SOUT, ldmod, stmod):
    TMP = F_TMP
    for aa in range(4):
        for i in range(4):
            a.e(f"buffer_load_dword v{F_IN+4*aa+i}, v{F_IN0}, s[{SIN}:{SIN+3}], s{SI_OFF+4*aa+i} offen {ldmod}")
    fstamp(a, 3)
    for aa in range(4):
        a.e(f"s_waitcnt vmcnt({12-4*aa})")
        a.e(f"v_mfma_f32_16x16x32_bf16 {v(F_DRE+4*aa,4)}, {v(F16RE,4)}, {v(F_IN+4*aa,4)}, 0",
            f"v_mfma_f32_16x16x32_bf16 {v(F_DIM+4*aa,4)}, {v(F16IM,4)}, {v(F_IN+4*aa,4)}, 0")
    fstamp(a, 1)
    for aa in range(4):
        for p in range(2):
            re, im = F_DRE+4*aa+2*p, F_DIM+4*aa+2*p
            tc, ts = F_TWC+4*aa+2*p, F_TWS+4*aa+2*p
            t0, t1 = TMP+4*p, TMP+4*p+2
            a.e(f"v_pk_mul_f32 {v(t0,2)}, {v(re,2)}, {v(tc,2)}",
                f"v_pk_mul_f32 {v(t1,2)}, {v(im,2)}, {v(tc,2)}",
                f"v_pk_fma_f32 {v(t0,2)}, {v(im,2)}, {v(ts,2)}, {v(t0,2)}",
                f"v_pk_fma_f32 {v(t1,2)}, {v(re,2)}, {v(ts,2)}, {v(t1,2)} neg_lo:[1,0,0] neg_hi:[1,0,0]")
            for e in range(2):
                r = 2*p+e
                a.e(f"v_cvt_pk_bf16_f32 v{F_P+4*r+aa}, v{t0+e}, v{t1+e}")
    for r in range(4):
        a.e(f"ds_write_b128 v{F_WR}, {v(F_P+4*r,4)} offset:{r*1024}")
    a.e("s_waitcnt lgkmcnt(0)")
    fstamp(a, 8)
    a.e("s_barrier")
    fstamp(a, 9)
    for b in range(2):
        a.e(f"ds_read_b128 {v(F_IN+8*b,4)}, v{F_RD0} offset:{b*2048}",
            f"ds_read_b128 {v(F_IN+8*b+4,4)}, v{F_RD1} offset:{b*2048}")
    for b in range(2):
        a.e(f"s_waitcnt lgkmcnt({2-2*b})")
        for t in range(2):
            for h in range(2):
                for (D_, F_) in ((F_DRE, F32RE), (F_DIM, F32IM)):
                    d = D_+8*b+4*h
                    c = "0" if t == 0 else v(d, 4)
                    a.e(f"v_mfma_f32_16x16x32_bf16 {v(d,4)}, {v(F_IN+8*b+4*t,4)}, {v(F_+8*h+4*t,4)}, {c}")
    fstamp(a, 10)
    for b in range(2):
        for h in range(2):
            idx = 8*b+4*h
            for r in range(4):
                a.e(f"v_cvt_pk_bf16_f32 v{F_P+idx+r}, v{F_DRE+idx+r}, -v{F_DIM+idx+r}")
            a.e(f"buffer_store_dwordx4 {v(F_P+idx,4)}, v{F_OUTOFF}, s[{SOUT}:{SOUT+3}], s{SO_LIST[2*b+h]} offen {stmod}")

IDX, G_, VG, VGW, VRR, VHR, VST, VW = 2, 3, 6, 7, 8, 12, 13, 14
CRE, CIM, TWC, TWS, WR, WI, ARE, AIM, DF, GA, HRE, HIM, GB, TMP = 16, 32, 48, 64, 80, 96, 112, 128, 144, 160, 164, 168, 172, 188
W2R, W2I, SP, PF, PF2 = 204, 220, 236, 248, 252
LW = 32768; LSC = 16384; LW2 = 49152

def w_dma(a, SWR, SWI, s_rowoff, s_mirroff, s_ldsbase, vlane16):
    a.e(f"s_mov_b32 m0, s{s_ldsbase}", f"buffer_load_dwordx4 v{vlane16}, s[{SWR}:{SWR+3}], s{s_rowoff} offen lds" + NT())
    a.e(f"s_add_u32 s93, s{s_ldsbase}, 1024", "s_mov_b32 m0, s93", f"buffer_load_dwordx4 v{vlane16}, s[{SWI}:{SWI+3}], s{s_rowoff} offen lds" + NT())
    a.e(f"s_add_u32 s92, s{s_mirroff}, 2")
    a.e(f"s_add_u32 s93, s{s_ldsbase}, 2048", "s_mov_b32 m0, s93", f"buffer_load_dwordx4 v{vlane16}, s[{SWR}:{SWR+3}], s92 offen lds" + NT())
    a.e(f"s_add_u32 s93, s{s_ldsbase}, 3072", "s_mov_b32 m0, s93", f"buffer_load_dwordx4 v{vlane16}, s[{SWI}:{SWI+3}], s92 offen lds" + NT())

def pf_loads(a, SWR, SWI, s_rowoff, s_mirroff, dst, vt):
    a.e(f"v_mov_b32 v{vt}, s{s_mirroff}", f"v_mov_b32 v{vt+1}, s{s_rowoff}", f"v_add_u32 v{vt+1}, 1024, v{vt+1}")
    a.e(f"buffer_load_short_d16_hi v{dst}, v{vt}, s[{SWR}:{SWR+3}], 0 offen",
        f"buffer_load_short_d16_hi v{dst+1}, v{vt}, s[{SWI}:{SWI+3}], 0 offen",
        f"buffer_load_short_d16_hi v{dst+2}, v{vt+1}, s[{SWR}:{SWR+3}], 0 offen",
        f"buffer_load_short_d16_hi v{dst+3}, v{vt+1}, s[{SWI}:{SWI+3}], 0 offen")

def w_lds_reads(a, vlo, vhi, dr, di):
    for (dst, o) in ((dr, 0), (di, 1024)):
        for r in range(16):
            e = eidx(r)
            if r < 8: a.e(f"ds_read_u16_d16_hi v{dst+r}, v{vlo} offset:{o+64*e}")
            else:     a.e(f"ds_read_u16_d16_hi v{dst+r}, v{vhi} offset:{o+64*(27-e)}")

def fix_w(a, dr, di, pf):
    a.e("v_cmp_eq_u32 vcc, 0, v1")
    for (r, o) in ((0, 0), (8, 2)):
        a.e(f"v_add_f32 v{TMP}, v{dr+r}, v{pf+o}", f"v_mul_f32 v{TMP}, 0.5, v{TMP}",
            f"v_sub_f32 v{TMP+1}, v{di+r}, v{pf+o+1}", f"v_mul_f32 v{TMP+1}, 0.5, v{TMP+1}",
            f"v_cndmask_b32 v{dr+r}, v{dr+r}, v{TMP}, vcc", f"v_cndmask_b32 v{di+r}, v{di+r}, v{TMP+1}, vcc")

def fft1024(a, mid=None):
    for t in range(4):
        c0 = "0" if t == 0 else v(ARE, 16); c1 = "0" if t == 0 else v(AIM, 16)
        a.e(f"v_mfma_f32_32x32x16_bf16 {v(ARE,16)}, {v(DF+4*t,4)}, {v(CRE+4*t,4)}, {c0}",
            f"v_mfma_f32_32x32x16_bf16 {v(AIM,16)}, {v(DF+4*t,4)}, {v(CIM+4*t,4)}, {c1}")
    for p in range(8):
        re, im, tc, ts = ARE+2*p, AIM+2*p, TWC+2*p, TWS+2*p
        t0 = TMP+4*(p & 1); t1 = t0+2
        a.e(f"v_pk_mul_f32 {v(t0,2)}, {v(re,2)}, {v(tc,2)}",
            f"v_pk_mul_f32 {v(t1,2)}, {v(im,2)}, {v(tc,2)}",
            f"v_pk_fma_f32 {v(t0,2)}, {v(im,2)}, {v(ts,2)}, {v(t0,2)}",
            f"v_pk_fma_f32 {v(t1,2)}, {v(re,2)}, {v(ts,2)}, {v(t1,2)} neg_lo:[1,0,0] neg_hi:[1,0,0]")
        for e in range(2):
            a.e(f"v_cvt_pk_bf16_f32 v{DF+2*p+e}, v{t0+e}, v{t1+e}")
    for t in range(4):
        if mid and t == 1: mid()
        c0 = "0" if t == 0 else v(ARE, 16); c1 = "0" if t == 0 else v(AIM, 16)
        a.e(f"v_mfma_f32_32x32x16_bf16 {v(ARE,16)}, {v(CRE+4*t,4)}, {v(DF+4*t,4)}, {c0}",
            f"v_mfma_f32_32x32x16_bf16 {v(AIM,16)}, {v(CIM+4*t,4)}, {v(DF+4*t,4)}, {c1}")

def a2_consts(a, sT):
    a.e(f"v_and_b32 v{IDX}, 31, v1", f"v_lshrrev_b32 v{G_}, 5, v1")
    XS, XB = TMP, TMP+1
    a.e(f"v_cvt_f32_u32 v{TMP+2}, v{IDX}", f"v_cvt_f32_u32 v{TMP+3}, v{G_}", f"v_mul_f32 v{TMP+3}, 4.0, v{TMP+3}",
        f"v_mul_f32 v{XS}, {f32hex(1/32)}, v{TMP+2}", f"v_mul_f32 v{XB}, v{TMP+3}, v{XS}")
    a.e(f"v_and_b32 v{TMP+4}, 1, v{IDX}", f"v_mul_u32_u24 v{TMP+4}, 0x8000, v{TMP+4}", f"v_lshl_or_b32 v{TMP+4}, v{TMP+4}, 16, v{TMP+4}")
    for t in range(2):
        for i in range(4):
            c = float(8*t+i); x = TMP+5+3*(i & 1)
            a.e(f"v_fmamk_f32 v{x}, v{XS}, {f32hex(c)}, v{XB}" if c else f"v_mov_b32 v{x}, v{XB}")
            a.e(f"v_cos_f32 v{x+1}, v{x}", f"v_sin_f32 v{x+2}, v{x}")
            a.e(f"v_cvt_pk_bf16_f32 v{CRE+4*t+i}, v{x+1}, v{x+2}", f"v_cvt_pk_bf16_f32 v{CIM+4*t+i}, -v{x+2}, v{x+1}")
    for base in (CRE, CIM):
        for i in range(8):
            a.e(f"v_xor_b32 v{base+8+i}, v{TMP+4}, v{base+i}")
    a.e(f"v_mul_f32 v{XS}, {f32hex(1/1024)}, v{TMP+2}", f"v_mul_f32 v{XB}, v{TMP+3}, v{XS}")
    for r in range(16):
        c = float(eidx(r)); x = TMP+5+(r & 1)
        a.e(f"v_fmamk_f32 v{x}, v{XS}, {f32hex(c)}, v{XB}" if c else f"v_mov_b32 v{x}, v{XB}")
        a.e(f"v_cos_f32 v{TWC+r}, v{x}", f"v_sin_f32 v{TWS+r}, v{x}")
    LO, HI, Q, AV, XA0, XA1, E0, E1 = TMP, TMP+1, TMP+2, TMP+3, TMP+4, TMP+5, TMP+6, TMP+7
    JF, KEY, T2, PO, PAR, N16, G4, CS = [TMP+8+i for i in range(8)]
    Lspec, Ldone = newlbl("ghspec"), newlbl("ghdone")
    a.e(f"v_and_b32 v{LO}, 3, v{IDX}", f"v_bfe_u32 v{HI}, v{IDX}, 2, 2")
    a.e(f"v_and_b32 v{N16}, 15, v1", f"v_lshrrev_b32 v{G4}, 4, v1")
    a.e(f"s_cmp_eq_u32 s{sT}, 0", f"s_cbranch_scc1 {Lspec}")
    a.e(f"v_cvt_f32_u32 v{T2}, s{sT}", f"v_cvt_f32_u32 v{JF}, v{HI}", f"v_fmamk_f32 v{JF}, v{JF}, {f32hex(512.0)}, v{T2}",
        f"v_mul_f32 v{JF}, {f32hex(1/2048)}, v{JF}",
        f"v_cvt_f32_u32 v{XA0}, v{G_}", f"v_add_f32 v{XA0}, v{XA0}, v{XA0}", f"v_add_f32 v{XA1}, 1.0, v{XA0}",
        f"v_mul_f32 v{XA0}, v{XA0}, v{JF}", f"v_mul_f32 v{XA1}, v{XA1}, v{JF}",
        f"v_lshlrev_b32 v{Q}, 3, v{LO}", "s_mov_b32 s50, 0x4631914C", f"v_lshrrev_b32 v{Q}, v{Q}, s50",
        f"v_mov_b32 v{AV}, 0.5", f"v_cmp_gt_u32 vcc, 16, v{IDX}", f"v_cndmask_b32 v{AV}, 0, v{AV}, vcc")
    for jj2 in range(4):
        for e in range(2):
            jj = 2*jj2+e
            xa = XA1 if jj >> 2 else XA0
            a.e(f"v_bfe_u32 v{E0+e}, v{Q}, {2*(jj&3)}, 2", f"v_cvt_f32_u32 v{E0+e}, v{E0+e}",
                f"v_fmamk_f32 v{E0+e}, v{E0+e}, {f32hex(0.25)}, v{xa}", f"v_cos_f32 v{E0+e}, v{E0+e}",
                f"v_mul_f32 v{E0+e}, v{E0+e}, v{AV}")
        a.e(f"v_cvt_pk_bf16_f32 v{GA+jj2}, v{E0}, v{E1}")
    a.e(f"v_bfe_u32 v{HI}, v{N16}, 1, 2", f"v_cvt_f32_u32 v{KEY}, v{HI}", f"v_mul_f32 v{KEY}, {f32hex(1/2048)}, v{KEY}",
        f"v_and_b32 v{JF}, 1, v{G4}", f"v_cvt_f32_u32 v{JF}, v{JF}", f"v_fmamk_f32 v{JF}, v{JF}, {f32hex(1024.0)}, v{T2}",
        f"v_add_f32 v{XA1}, {f32hex(512.0)}, v{JF}", f"v_mul_f32 v{XA0}, v{JF}, v{KEY}", f"v_mul_f32 v{XA1}, v{XA1}, v{KEY}",
        f"v_lshrrev_b32 v{CS}, 1, v{G4}", f"v_lshrrev_b32 v{AV}, 3, v{N16}", f"v_cmp_eq_u32 vcc, v{CS}, v{AV}",
        f"v_mov_b32 v{AV}, {f32hex(2.0**-21)}", f"v_cndmask_b32 v{AV}, 0, v{AV}, vcc",
        f"v_and_b32 v{PO}, 1, v{N16}")
    for part, Hd in ((0, HRE), (1, HIM)):
        w0, w1 = (0x1C, 0xBC) if part == 0 else (0x61, 0x6B)
        a.e(f"v_mov_b32 v{Q}, {w0}", f"v_mov_b32 v{PAR}, {w1}", f"v_cmp_eq_u32 vcc, 1, v{PO}", f"v_cndmask_b32 v{Q}, v{Q}, v{PAR}, vcc")
        for jj2 in range(4):
            for e in range(2):
                jj = 2*jj2+e
                xa = XA1 if jj >> 2 else XA0
                a.e(f"v_bfe_u32 v{E0+e}, v{Q}, {2*(jj&3)}, 2", f"v_cvt_f32_u32 v{E0+e}, v{E0+e}",
                    f"v_fmamk_f32 v{E0+e}, v{E0+e}, {f32hex(0.25)}, v{xa}", f"v_cos_f32 v{E0+e}, v{E0+e}",
                    f"v_mul_f32 v{E0+e}, v{E0+e}, v{AV}")
            a.e(f"v_cvt_pk_bf16_f32 v{Hd+jj2}, v{E0}, v{E1}")
    a.e(f"s_branch {Ldone}")
    a.label(Lspec)
    a.e(f"v_and_b32 v{PO}, 1, v{LO}", f"v_lshrrev_b32 v{PAR}, 1, v{LO}")
    a.e(f"v_lshlrev_b32 v{JF}, 2, v{HI}", "s_mov_b32 s50, 0x3120", f"v_lshrrev_b32 v{JF}, v{JF}, s50", f"v_and_b32 v{JF}, 15, v{JF}",
        f"v_lshlrev_b32 v{JF}, 8, v{JF}", f"v_lshlrev_b32 v{T2}, 10, v{PO}",
        f"v_cmp_eq_u32 vcc, 0, v{HI}", f"v_cndmask_b32 v{JF}, v{JF}, v{T2}, vcc", f"v_mov_b32 v{T2}, 0",
        f"v_cndmask_b32 v{Q}, v{PO}, v{T2}, vcc",
        f"v_cvt_f32_u32 v{JF}, v{JF}", f"v_mul_f32 v{JF}, {f32hex(1/2048)}, v{JF}",
        f"v_cvt_f32_u32 v{Q}, v{Q}", f"v_mul_f32 v{Q}, {f32hex(0.25)}, v{Q}",
        f"v_cvt_f32_u32 v{XA0}, v{G_}", f"v_add_f32 v{XA0}, v{XA0}, v{XA0}", f"v_add_f32 v{XA1}, 1.0, v{XA0}",
        f"v_fma_f32 v{XA0}, v{XA0}, v{JF}, v{Q}", f"v_fma_f32 v{XA1}, v{XA1}, v{JF}, v{Q}",
        f"v_cos_f32 v{XA0}, v{XA0}", f"v_cos_f32 v{XA1}, v{XA1}",
        f"v_lshrrev_b32 v{KEY}, 1, v{HI}", f"v_lshl_add_u32 v{KEY}, v{KEY}, 1, v{PAR}",
        f"v_lshrrev_b32 v{T2}, 4, v{IDX}", f"v_lshl_add_u32 v{KEY}, v{T2}, 2, v{KEY}", f"v_mov_b32 v{T2}, 0")
    for jj2 in range(4):
        for e in range(2):
            jj = 2*jj2+e
            xa = XA1 if jj >> 2 else XA0
            a.e(f"v_cmp_eq_u32 vcc, {jj&3}, v{KEY}", f"v_cndmask_b32 v{E0+e}, v{T2}, v{xa}, vcc")
        a.e(f"v_cvt_pk_bf16_f32 v{GA+jj2}, v{E0}, v{E1}")
    SAF, GS = JF, PAR
    a.e(f"v_bfe_u32 v{HI}, v{N16}, 1, 2", f"v_cvt_f32_u32 v{SAF}, v{HI}", f"v_mul_f32 v{SAF}, {f32hex(1/2048)}, v{SAF}",
        f"v_and_b32 v{GS}, 1, v{G4}", f"v_and_b32 v{PO}, 1, v{N16}",
        f"v_lshrrev_b32 v{CS}, 1, v{G4}", f"v_lshrrev_b32 v{T2}, 3, v{N16}",
        f"v_cmp_eq_u32 s[44:45], v{CS}, v{T2}", f"v_cmp_eq_u32 s[46:47], v{GS}, v{PO}", "s_and_b64 s[44:45], s[44:45], s[46:47]",
        f"v_cmp_eq_u32 s[46:47], 0, v{GS}")
    for part, Hd in ((0, HRE), (1, HIM)):
        for jj in range(8):
            sl, par, pi = jj >> 2, (jj >> 1) & 1, jj & 1
            e = E0 + (jj & 1)
            if par != part:
                a.e(f"v_mov_b32 v{e}, 0")
            else:
                if sl == 0:
                    j0, q0, a0 = 1024.0*pi, 0.5*pi, 2.0**-21
                    j1, q1, a1 = 256.0, 0.75*pi, 2.0**-20
                else:
                    j0, q0, a0 = 512.0, 0.75*pi, 2.0**-20
                    j1, q1, a1 = 768.0, 0.75*pi, 2.0**-20
                def sel(dst, x0, x1):
                    a.e(f"v_mov_b32 v{dst}, {f32hex(x1)}", f"v_mov_b32 v{AV}, {f32hex(x0)}", f"v_cndmask_b32 v{dst}, v{dst}, v{AV}, s[46:47]")
                sel(XA0, j0, j1); sel(XA1, q0 + 0.5*part, q1 + 0.5*part)
                a.e(f"v_fma_f32 v{XA0}, v{XA0}, v{SAF}, v{XA1}", f"v_cos_f32 v{XA0}, v{XA0}")
                sel(XA1, a0, a1)
                a.e(f"v_mul_f32 v{XA0}, v{XA0}, v{XA1}", f"v_mov_b32 v{XA1}, 0", f"v_cndmask_b32 v{e}, v{XA1}, v{XA0}, s[44:45]")
            if jj & 1: a.e(f"v_cvt_pk_bf16_f32 v{Hd+(jj>>1)}, v{E0}, v{E1}")
    a.label(Ldone)
    a.e("s_nop 1")


BT_S0, BT_S1, BT_S2, BT_S3 = 52, 56, 60, 64
BT_SOFF = ["0", "s68", "s69", "s70", "s71", "s76", "s77", "s78"]
BT_ROW, BT_CH, BT_MASK = 48, 49, 50
def bt_setup(a):
    a.e(f"s_lshl_b32 s{BT_ROW}, s{sSUBT}, 7", "s_lshl_b32 s51, s3, 5", f"s_add_u32 s{BT_ROW}, s{BT_ROW}, s51", f"s_lshl_b32 s{BT_CH}, s{sCBKT}, 6")
    for i in range(1, 8): a.e(f"s_mov_b32 {BT_SOFF[i]}, {4096*i}")
    a.e(f"s_mov_b32 s{BT_MASK}, 0xffff0000")

def scratch_addr(a, vdst, vcg, vrg):
    a.e(f"s_lshl_b32 s51, s{sSUBT}, 7", "s_lshr_b32 s92, s3, 1", "s_add_u32 s51, s51, s92", "s_lshl_b32 s51, s51, 12",
        f"s_lshl_b32 s92, s{sCBKT}, 7", "s_add_u32 s51, s51, s92", "s_and_b32 s92, s3, 1", "s_lshl_b32 s92, s92, 6", "s_add_u32 s51, s51, s92",
        "s_add_u32 s51, s51, 2048",
        f"v_lshlrev_b32 v{vdst}, 15, v{vcg}", f"v_lshl_add_u32 v{vdst}, v{vrg}, 4, v{vdst}", f"v_add_u32 v{vdst}, s51, v{vdst}")
SCR_SOFF = ["0", "s69", "s71", "s77"]

def emit_B1(a, shadow=None, hook=None, post_mode=None, after_stores=None, nafter=0):
    SK, SV, SSH, SKVT = BT_S0, BT_S1, BT_S2, BT_S3
    srd(a, SK, P_K, P_K+1, 4*MB); srd(a, SV, P_V, P_V+1, 4*MB); srd(a, SSH, P_SHK, P_SHK+1, 8192); srd(a, SKVT, P_OUT, P_OUT+1, 8*MB)
    bt_setup(a)
    soff = BT_SOFF; M = BT_MASK
    CG, RG, S0, CH0, VOFF, VH, VST, VSH = 2, 3, 4, 5, 6, 7, 8, 9
    a.e(f"v_and_b32 v{CG}, 15, v1", f"v_lshrrev_b32 v{RG}, 4, v1",
        f"v_lshl_add_u32 v{S0}, v{RG}, 3, s{BT_ROW}", f"v_lshl_add_u32 v{CH0}, v{CG}, 2, s{BT_CH}",
        f"v_lshlrev_b32 v{VOFF}, 11, v{S0}", f"v_lshl_add_u32 v{VOFF}, v{CH0}, 1, v{VOFF}",
        f"v_subrev_u32 v{VH}, 6144, v{VOFF}",
        f"v_lshlrev_b32 v{VSH}, 3, v{CH0}")
    scratch_addr(a, VST, CG, RG)
    KR, VR, SHR, KF, SHF, KV, TM, PK = 16, 38, 54, 64, 108, 124, 156, 16
    if OPT["bactwait"] and OPT["b1all"]:
        Lw = newlbl("bw")
        a.e(f"s_cmp_eq_u32 s{sACT}, 0", f"s_cbranch_scc1 {Lw}", "s_waitcnt lgkmcnt(0)")
        a.label(Lw)
    if OPT["earlypub"]:
        Lp = newlbl("epub")
        a.e("s_cmp_lg_u32 s3, 0", f"s_cbranch_scc1 {Lp}")
        fin_epoch(a); loc_publish(a)
        a.label(Lp)
    a.e(f"buffer_load_dwordx4 {v(SHR,4)}, v{VSH}, s[{SSH}:{SSH+3}], 0 offen",
        f"buffer_load_dwordx4 {v(SHR+4,4)}, v{VSH}, s[{SSH}:{SSH+3}], 0 offen offset:16")
    for i in range(3):
        a.e(f"buffer_load_dwordx2 {v(KR+2*i,2)}, v{VH}, s[{SK}:{SK+3}], {soff[i>>1]} offen" + (" offset:2048" if i & 1 else "") + (NT() if OPT["ntk"] else ""))
    for i in range(8):
        a.e(f"buffer_load_dwordx2 {v(KR+6+2*i,2)}, v{VOFF}, s[{SK}:{SK+3}], {soff[i>>1]} offen" + (" offset:2048" if i & 1 else "") + (NT() if OPT["ntk"] else ""))
    for i in range(8):
        a.e(f"buffer_load_dwordx2 {v(VR+2*i,2)}, v{VOFF}, s[{SV}:{SV+3}], {soff[i>>1]} offen" + (" offset:2048" if i & 1 else "") + NT())
    stamp(a, 2)
    if OPT["earlypub"]:
        Lq = newlbl("epub2")
        a.e("s_cmp_eq_u32 s3, 0", f"s_cbranch_scc1 {Lq}")
        fin_epoch(a)
        a.label(Lq)
    else:
        fin_epoch(a)
        loc_publish(a)
    if shadow: shadow()
    def wv(n, extra):
        if extra and not OPT["earlypub"]:
            L = newlbl("wv")
            a.e(f"s_cbranch_scc1 {L}", f"s_waitcnt vmcnt({n})")
            a.label(L)
            a.e(f"s_waitcnt vmcnt({n+extra})")
        elif extra == 2 and OPT["earlypub"]:
            L = newlbl("wv")
            a.e(f"s_cbranch_scc1 {L}", f"s_waitcnt vmcnt({n})")
            a.label(L)
            a.e(f"s_waitcnt vmcnt({n+1})")
        else:
            a.e(f"s_waitcnt vmcnt({n})")
    a.e("s_cmp_eq_u32 s3, 0")
    wv(19, 1)
    for ch in range(4):
        for j in range(4):
            src = SHR + 2*ch + (j >> 1)
            if j & 1: a.e(f"v_and_b32 v{SHF+4*j+ch}, s{M}, v{src}")
            else:     a.e(f"v_lshlrev_b32 v{SHF+4*j+ch}, 16, v{src}")
    for i in range(11):
        wv(18-i, 1)
        for hf in range(2):
            a.e(f"v_lshlrev_b32 v{KF+4*i+2*hf}, 16, v{KR+2*i+hf}", f"v_and_b32 v{KF+4*i+2*hf+1}, s{M}, v{KR+2*i+hf}")
    loc_issue(a, 10)
    a.e("s_cmp_eq_u32 s3, 0")
    for i in range(8):
        wv(7-i, 2)
        if i == 7 and hook: hook()
        for hf in range(2):
            a.e(f"v_lshlrev_b32 v{TM+2*hf}, 16, v{VR+2*i+hf}", f"v_and_b32 v{TM+2*hf+1}, s{M}, v{VR+2*i+hf}")
        for hf in range(2):
            acc = KV+4*i+2*hf
            a.e(f"v_pk_mul_f32 {v(acc,2)}, {v(KF+4*(i+3)+2*hf,2)}, {v(SHF+2*hf,2)}")
            for j in range(1, 4):
                a.e(f"v_pk_fma_f32 {v(acc,2)}, {v(KF+4*(i+3-j)+2*hf,2)}, {v(SHF+4*j+2*hf,2)}, {v(acc,2)}")
            a.e(f"v_pk_mul_f32 {v(acc,2)}, {v(acc,2)}, {v(TM+2*hf,2)}")
    stamp(a, 3)
    for ch in range(4):
        for m in range(4):
            a.e(f"v_cvt_pk_bf16_f32 v{PK+4*ch+m}, v{KV+4*(7-2*m)+ch}, v{KV+4*(6-2*m)+ch}")
    sts = [f"buffer_store_dwordx4 {v(PK+4*ch,4)}, v{VST}, s[{SKVT}:{SKVT+3}], {SCR_SOFF[ch]} offen" for ch in range(4)]
    if OPT["twoflag"]:
        for l in sts: a.e(l + (" nt" if OPT["ntscr"] else ""))
        stamp(a, 4)
        a.e(f"s_lshl_b32 s51, s{sCBKT}, 4", f"s_add_u32 s51, s51, s{sSUBT}", f"s_lshl_b32 s51, s51, {FB()}", f"s_add_u32 s92, s51, {SY_B1}")
        La = newlbl("siga")
        a.e("s_waitcnt vmcnt(0)", "s_barrier", "s_cmp_lg_u32 s3, 0", f"s_cbranch_scc1 {La}",
            "v_mov_b32 v14, s92", f"v_mov_b32 v15, s{S_TGT}", "s_mov_b64 exec, 1",
            f"buffer_store_dword v15, v14, s[{S_SYN}:{S_SYN+3}], 0 offen", "s_mov_b64 exec, -1")
        a.label(La)
        if after_stores: after_stores()
        loc_resolve(a, 10, nafter=nafter + 1 if after_stores else 1)
        Lo = newlbl("opt")
        a.e(f"s_cmp_lg_u32 s{sLOC}, 0", f"s_cbranch_scc1 {Lo}", "s_waitcnt vmcnt(0)")
        for l in sts: a.e(l + " sc1")
        a.e(f"s_add_u32 s51, s51, {SY_B1B}")
        signal(a, 51, 14)
        a.label(Lo)
        return
    if OPT["optst"]:
        for l in sts: a.e(l)
        if after_stores: after_stores()
        loc_resolve(a, 10, nafter=nafter)
        Lo = newlbl("opt")
        a.e(f"s_cmp_lg_u32 s{sLOC}, 0", f"s_cbranch_scc1 {Lo}", "s_waitcnt vmcnt(0)")
        for l in sts: a.e(l + " sc1")
        a.e("s_waitcnt vmcnt(0)")
        a.label(Lo)
    else:
        loc_resolve(a, 10)
        dual_store(a, sts)
    stamp(a, 4)
    a.e(f"s_lshl_b32 s51, s{sCBKT}, 4", f"s_add_u32 s51, s51, s{sSUBT}", f"s_lshl_b32 s51, s51, {FB()}", f"s_add_u32 s51, s51, {SY_B1}")
    signal(a, 51, 14, nafter=nafter, bloc=True)

B3_QR, B3_VQ, B3_VT, B3_VO = 208, 224, 225, 226
def emit_B3_pre(a):
    SQ, STT, SOUT = BT_S0, BT_S1, BT_S2
    srd(a, SQ, P_Q, P_Q+1, 4*MB); srd(a, SOUT, P_OUT, P_OUT+1, 8*MB)
    bt_setup(a)
    t = 227
    a.e(f"v_and_b32 v{t}, 15, v1", f"v_lshrrev_b32 v{t+1}, 4, v1",
        f"v_lshl_add_u32 v{t+1}, v{t+1}, 3, s{BT_ROW}", f"v_lshl_add_u32 v{t}, v{t}, 2, s{BT_CH}",
        f"v_lshlrev_b32 v{B3_VQ}, 11, v{t+1}", f"v_lshl_add_u32 v{B3_VQ}, v{t}, 1, v{B3_VQ}",
        f"v_lshlrev_b32 v{B3_VO}, 12, v{t+1}", f"v_lshl_add_u32 v{B3_VO}, v{t}, 1, v{B3_VO}", f"v_add_u32 v{B3_VO}, 2048, v{B3_VO}")
    a.e(f"v_and_b32 v{t}, 15, v1", f"v_lshrrev_b32 v{t+1}, 4, v1")
    scratch_addr(a, B3_VT, t, t+1)
    for i in range(8):
        a.e(f"buffer_load_dwordx2 {v(B3_QR+2*i,2)}, v{B3_VQ}, s[{SQ}:{SQ+3}], {BT_SOFF[i>>1]} offen" + (" offset:2048" if i & 1 else "") + NT())

def emit_B3(a):
    SQ, STT, SOUT = BT_S0, BT_S1, BT_S2
    soff = BT_SOFF; M = BT_MASK
    TR, TF, QF = 16, 48, 80
    a.e(f"s_mov_b32 s{M}, 0xffff0000")
    a.e(f"s_lshl_b32 s51, s{sCBKT}, {4+FB()}", f"s_add_u32 s51, s51, {SY_B2}",
        "v_and_b32 v12, 15, v1", f"v_lshlrev_b32 v12, {FB()}, v12", "v_add_u32 v12, s51, v12")
    a.e("s_waitcnt vmcnt(0)")
    for e in range(8):
        qf = QF + 4*e
        for hf in range(2):
            a.e(f"v_lshlrev_b32 v{qf+2*hf}, 16, v{B3_QR+2*e+hf}", f"v_and_b32 v{qf+2*hf+1}, s{M}, v{B3_QR+2*e+hf}")
    wait_flags(a, 12, 1, 13, 51)
    stamp(a, 10)
    for ch in range(4):
        a.e(f"buffer_load_dwordx4 {v(TR+4*ch,4)}, v{B3_VT}, s[{SOUT}:{SOUT+3}], {SCR_SOFF[ch]} offen" + LDL())
    for ch in range(4):
        a.e(f"s_waitcnt vmcnt({3-ch})")
        for e in range(8):
            src = TR+4*ch+(e >> 1)
            if e & 1: a.e(f"v_and_b32 v{TF+4*e+ch}, s{M}, v{src}")
            else:     a.e(f"v_lshlrev_b32 v{TF+4*e+ch}, 16, v{src}")
    a.e("s_barrier")
    for e in range(8):
        qf = QF + 4*e
        for hf in range(2):
            a.e(f"v_pk_mul_f32 {v(qf+2*hf,2)}, {v(qf+2*hf,2)}, {v(TF+4*e+2*hf,2)}")
        pk = 112+2*e
        for hf in range(2):
            a.e(f"v_cvt_pk_bf16_f32 v{pk+hf}, v{qf+2*hf}, v{qf+2*hf+1}")
        a.e(f"buffer_store_dwordx2 {v(pk,2)}, v{B3_VO}, s[{SOUT}:{SOUT+3}], {soff[e]} offen" + NTO())

def gen_A(a):
    ROLE[0] = 'A'
    SX, SI1, SWR, SWI, SI2, SOUT = 32, 36, 80, 84, 32, 36
    a.e(f"s_setprio {OPT['prioA']}") if OPT['prioA'] else None
    sT, sSA, sCB, sJ, sJM, sJP, sJQ, sTL = 40, 41, 42, 43, 72, 73, 74, 44
    def rows():
        srd(a, SI1, P_WS, P_WS+1, 4*MB, add=WS_I1)
        srd(a, SWR, P_WR, P_WR+1, WBYTES); srd(a, SWI, P_WI, P_WI+1, WBYTES)
        Lr = newlbl("reg")
        a.e("s_lshl_b32 s47, s3, 9", f"s_add_u32 s{sJ}, s{sT}, s47", f"s_mov_b32 s{sJP}, s{sT}", f"s_sub_u32 s{sJQ}, 512, s{sT}",
            f"s_cmp_lg_u32 s{sT}, 0", f"s_cbranch_scc1 {Lr}",
            f"s_mov_b32 s{sJQ}, 256", "s_lshl_b32 s47, s3, 2", "s_lshr_b32 s46, 0x3120, s47", "s_and_b32 s46, s46, 15", f"s_lshl_b32 s{sJ}, s46, 8")
        a.label(Lr)
        a.e(f"s_sub_u32 s{sJM}, 2048, s{sJ}", f"s_and_b32 s{sJM}, s{sJM}, 2047",
            f"s_mul_i32 s{sJ}, s{sJ}, 1026", f"s_mul_i32 s{sJM}, s{sJM}, 1026")
        a.e(f"s_or_b32 s75, s{sT}, s3")
    def wstage():
        a.e("v_lshlrev_b32 v243, 4, v1", "s_lshl_b32 s46, s3, 12", f"s_add_u32 s46, s46, {LW}")
        w_dma(a, SWR, SWI, sJ, sJM, 46, 243)
        pf_loads(a, SWR, SWI, sJ, sJM, PF, 244)
        if not OPT["spec2"]: wstage2()
    def wstage2():
        Ln = newlbl("now2")
        a.e("s_cmp_lg_u32 s75, 0", f"s_cbranch_scc1 {Ln}")
        a.e("v_lshlrev_b32 v243, 4, v1", f"s_mov_b32 s47, {1024*1026}", f"s_mov_b32 s46, {LW2}")
        w_dma(a, SWR, SWI, 47, 47, 46, 243)
        pf_loads(a, SWR, SWI, 47, 47, PF2, 244)
        a.label(Ln)
    a.e(f"s_mov_b32 s{sT}, s{sCU}")
    stamp(a, 0, True); stamp(a, 1)
    Lp1 = newlbl("nop1")
    a.e(f"s_cmp_eq_u32 s{sACT}, 0", f"s_cbranch_scc1 {Lp1}_in")
    if OPT["pA1a"] >= 0: a.e(f"s_setprio {OPT['pA1a']}")
    srd(a, SX, P_X, P_X+1, 4*MB)
    a.e(f"s_lshr_b32 s48, s{sT}, 4", f"s_and_b32 s49, s{sT}, 7",
        f"s_lshr_b32 s{sSA}, s48, 2", "s_bfe_u32 s50, s48, 0x10001", "s_lshl_b32 s50, s50, 3", "s_add_u32 s50, s50, s49",
        "s_lshl_b32 s50, s50, 1", "s_and_b32 s51, s48, 1", f"s_add_u32 s{sCB}, s50, s51",
        "s_lshl_b32 s48, s48, 3", f"s_add_u32 s{sTL}, s48, s49")
    fft512_addr(a, sSA, sCB)
    fft512_loads(a, SX, NT() if OPT["ntx"] else "")
    stamp(a, 12)
    rows()
    if OPT["spec2"]: wstage2()
    fft512_addr2(a, sSA, sCB, 2048, 8192)
    fft512_consts(a)
    fft512_compute(a, SI1, False, 0, "sc1", 2, hook=None if OPT["wlate"] else wstage)
    stamp(a, 4)
    a.e(f"s_lshl_b32 s48, s{sTL}, {FA()}", f"s_add_u32 s48, s48, {SY_A1}")
    fin_epoch(a)
    signal(a, 48, F_TMP)
    a.e(f"s_branch {Lp1}")
    a.label(f"{Lp1}_in")
    if OPT["pA1i"] >= 0: a.e(f"s_setprio {OPT['pA1i']}")
    stamp(a, 12)
    if OPT["b1all"]:
        rows()
        fin_epoch(a)
        if not OPT["wlate"]: wstage()
    else:
        emit_B1(a, shadow=rows, hook=None if OPT["wlate"] else wstage)
    a.label(Lp1)
    if OPT["pA1i"] >= 0 or OPT["pA1a"] >= 0: a.e(f"s_setprio {OPT['prioA']}")
    stamp(a, 5)
    if OPT["wlate"] == 2: wstage()
    srd(a, SI2, P_WS, P_WS+1, 4*MB, add=WS_I2)
    a2_consts(a, sT)
    a.e(f"v_lshl_add_u32 v{TMP}, v{G_}, 7, v{IDX}",
        "s_lshl_b32 s48, s3, 12", f"s_add_u32 s48, s48, {LW}",
        f"v_lshl_add_u32 v{VW}, v{TMP}, 1, s48",
        f"v_sub_u32 v{TMP+1}, {1023-32*27}, v{TMP}", f"s_add_u32 s49, s48, 2048", f"v_lshl_add_u32 v{VW+1}, v{TMP+1}, 1, s49")
    a.e(f"v_lshlrev_b32 v{VG}, 12, v{G_}", f"v_lshl_add_u32 v{VG}, v{IDX}, 2, v{VG}",
        "s_lshl_b32 s49, s3, 9",
        f"s_lshl_b32 s52, s{sJP}, 13", "s_add_u32 s52, s52, s49",
        f"s_lshl_b32 s53, s{sJQ}, 13", "s_add_u32 s53, s53, s49")
    a.e(f"v_lshlrev_b32 v{VGW}, 12, v{G_}", f"v_lshl_add_u32 v{VGW}, v{IDX}, 3, v{VGW}", "s_lshl_b32 s50, s3, 10", f"v_add_u32 v{VGW}, s50, v{VGW}",
        f"v_lshlrev_b32 v{VRR}, 9, v{G_}", f"v_lshl_add_u32 v{VRR}, v{IDX}, 2, v{VRR}", "s_lshl_b32 s51, s3, 12", f"v_add_u32 v{VRR}, s51, v{VRR}")
    for t in range(1, 4): a.e(f"v_add_u32 v{VRR+t}, {1024*t}, v{VRR}")
    a.e(f"v_lshrrev_b32 v{TMP}, 4, v1", f"v_and_b32 v{TMP+1}, 1, v{TMP}", f"v_lshlrev_b32 v{VHR}, 13, v{TMP+1}",
        f"v_lshrrev_b32 v{TMP+1}, 1, v{TMP}", f"v_lshl_add_u32 v{VHR}, v{TMP+1}, 7, v{VHR}",
        f"v_and_b32 v{TMP+1}, 15, v1", f"v_lshl_add_u32 v{VHR}, v{TMP+1}, 3, v{VHR}", f"v_add_u32 v{VHR}, s50, v{VHR}")
    a.e(f"v_and_b32 v{TMP+2}, 1, v{TMP+1}", f"v_mov_b32 v{TMP+3}, s52", f"v_mov_b32 v{TMP+4}, s53",
        f"v_cmp_eq_u32 vcc, 1, v{TMP+2}", f"v_cndmask_b32 v{VST}, v{TMP+3}, v{TMP+4}, vcc",
        f"v_bfe_u32 v{TMP+2}, v{TMP+1}, 1, 2", f"v_lshl_add_u32 v{VST}, v{TMP+2}, 11, v{VST}",
        f"v_lshrrev_b32 v{TMP+2}, 3, v{TMP+1}", f"v_lshl_add_u32 v{VST}, v{TMP+2}, 6, v{VST}",
        f"v_lshl_add_u32 v{VST}, v{TMP}, 4, v{VST}")
    a.e(f"v_lshlrev_b32 v{TMP}, {FA()}, v1", f"v_add_u32 v{TMP}, {SY_A1}, v{TMP}")
    stamp(a, 6)
    wait_flags(a, TMP, 2, TMP+1, 48)
    if OPT["yieldB"] == 1: a_state(a, sT, 0, TMP)
    stamp(a, 7)
    for u in range(4):
        for sl in range(2):
            for pq in range(2):
                a.e(f"buffer_load_dword v{GB+4*u+2*sl+pq}, v{VG}, s[{SI1}:{SI1+3}], s{52+pq} offen offset:{2048*sl+128*u} sc1")
    NWL = 0
    if OPT["wlate"] == 1:
        wstage(); NWL = 8
        if not OPT["spec2"]:
            Lsw = newlbl("spw")
            a.e("s_cmp_lg_u32 s75, 0", f"s_cbranch_scc1 {Lsw}", "s_waitcnt vmcnt(0)")
            a.label(Lsw)
    for rnd in range(2):
        a.e(f"s_waitcnt vmcnt({8-8*rnd+NWL})")
        for uu in range(2):
            u = 2*rnd+uu
            a.e(f"v_mfma_f32_32x32x16_bf16 {v(ARE if uu == 0 else AIM,16)}, {v(GA,4)}, {v(GB+4*u,4)}, 0")
        for uu in range(2):
            u = 2*rnd+uu
            D = ARE if uu == 0 else AIM
            t = TMP+4*uu
            for h in range(2):
                a.e(f"v_cvt_pk_bf16_f32 v{t}, v{D+4*h}, v{D+4*h+1}", f"v_cvt_pk_bf16_f32 v{t+1}, v{D+4*h+2}, v{D+4*h+3}",
                    f"ds_write_b64 v{VGW}, {v(t,2)} offset:{256*u+8192*h}")
                t += 2
    a.e("s_waitcnt lgkmcnt(0)", "s_barrier")
    stamp(a, 8)
    if OPT["qA"] and not OPT["a3all"]:
        Lq = newlbl("noqA")
        a.e(f"s_cmp_lg_u32 s{sACT}, 0", f"s_cbranch_scc1 {Lq}")
        emit_B3_pre(a)
        a.label(Lq)
    for t in range(4):
        a.e(f"ds_read2_b32 {v(DF+4*t,2)}, v{VRR+t} offset0:0 offset1:32", f"ds_read2_b32 {v(DF+4*t+2,2)}, v{VRR+t} offset0:64 offset1:96")
    a.e("s_waitcnt lgkmcnt(0)")
    Lsp, Linv, Lfwd, Lpre = newlbl("special"), newlbl("inv"), newlbl("fwd"), newlbl("pre")
    sPASS = 45
    if OPT["spec2"]:
        a.e(f"s_mov_b32 s{sPASS}, 0", "s_cmp_lg_u32 s75, 0", f"s_cbranch_scc1 {Lpre}")
        for i in range(16): a.e(f"v_lshrrev_b32 v{GB+i}, 16, v{DF+i}", f"v_and_b32 v{DF+i}, 0xffff, v{DF+i}")
        a.label(Lpre)
    def wmid():
        Lk = newlbl("wskip")
        if OPT["spec2"]: a.e(f"s_cmp_lg_u32 s{sPASS}, 0", f"s_cbranch_scc1 {Lk}")
        if OPT["qA"] and not OPT["a3all"]:
            L1, L2 = newlbl("wa"), newlbl("wb")
            a.e(f"s_cmp_lg_u32 s{sACT}, 0", f"s_cbranch_scc1 {L1}", "s_waitcnt vmcnt(8)", f"s_branch {L2}")
            a.label(L1); a.e("s_waitcnt vmcnt(0)"); a.label(L2)
        else:
            a.e("s_waitcnt vmcnt(0)")
        w_lds_reads(a, VW, VW+1, WR, WI)
        a.label(Lk)
    if OPT["wlate"] == 1:
        a.label(Lfwd); a.e("s_nop 1")
        fft1024(a, mid=wmid)
    else:
        w_lds_reads(a, VW, VW+1, WR, WI)
        a.label(Lfwd); a.e("s_nop 1")
        fft1024(a)
    a.e("s_waitcnt lgkmcnt(0)")
    Lnf = newlbl("nofix")
    if OPT["spec2"]: a.e(f"s_cmp_lg_u32 s{sPASS}, 0", f"s_cbranch_scc1 {Lnf}")
    fix_w(a, WR, WI, PF)
    a.label(Lnf)
    a.e("s_cmp_eq_u32 s75, 0", f"s_cbranch_scc1 {Lsp}")
    for p in range(8):
        xr, xi, wr, wi = ARE+2*p, AIM+2*p, WR+2*p, WI+2*p
        t0 = TMP+4*(p & 1); t1 = t0+2
        n0 = " neg_lo:[1,0,0] neg_hi:[1,0,0]" if p < 4 else ""
        n1 = "" if p < 4 else " neg_lo:[1,0,0] neg_hi:[1,0,0]"
        a.e(f"v_pk_mul_f32 {v(t0,2)}, {v(xr,2)}, {v(wr,2)}", f"v_pk_mul_f32 {v(t1,2)}, {v(xi,2)}, {v(wr,2)}",
            f"v_pk_fma_f32 {v(t0,2)}, {v(xi,2)}, {v(wi,2)}, {v(t0,2)}{n0}",
            f"v_pk_fma_f32 {v(t1,2)}, {v(xr,2)}, {v(wi,2)}, {v(t1,2)}{n1}")
        for e in range(2):
            a.e(f"v_cvt_pk_bf16_f32 v{DF+2*p+e}, v{t0+e}, -v{t1+e}")
    a.label(Linv)
    a.e("s_nop 1")
    fft1024(a)
    for r in range(16):
        t = TMP + (r & 7)
        a.e(f"v_cvt_pk_bf16_f32 v{t}, v{ARE+r}, v{AIM+r}", f"ds_write_b32 v{VRR}, v{t} offset:{128*eidx(r)}")
    a.e("s_waitcnt lgkmcnt(0)", "s_barrier")
    if OPT["yieldB"]:
        Ly = newlbl("y0a")
        if OPT["y0"]: a.e(f"s_cmp_lg_u32 s{sT}, 0", f"s_cbranch_scc1 {Ly}")
        a_state(a, sT, 1, TMP)
        a.label(Ly)
    stamp(a, 9)
    for u in range(4):
        for sl in range(2):
            a.e(f"ds_read_b64 {v(GB+4*u+2*sl,2)}, v{VHR} offset:{4096*sl+256*u}")
    a.e("s_lshl_b32 s49, s3, 9")
    for u in range(4):
        a.e(f"s_waitcnt lgkmcnt({6-2*u})")
        a.e(f"v_mfma_f32_16x16x32_bf16 {v(ARE+4*u,4)}, {v(GB+4*u,4)}, {v(HRE,4)}, 0",
            f"v_mfma_f32_16x16x32_bf16 {v(AIM+4*u,4)}, {v(GB+4*u,4)}, {v(HIM,4)}, 0")
    for u in range(4):
        for r in range(4):
            a.e(f"v_cvt_pk_bf16_f32 v{DF+4*u+r}, v{ARE+4*u+r}, v{AIM+4*u+r}")
        a.e(f"buffer_store_dwordx4 {v(DF+4*u,4)}, v{VST}, s[{SI2}:{SI2+3}], 0 offen offset:{128*u} sc1")
    dstamp(a, 6); dpublish(a, sT)
    a.e(f"s_lshl_b32 s48, s{sT}, {FA()}", f"s_add_u32 s48, s48, {SY_A2}")
    signal(a, 48, TMP)
    stamp(a, 10)
    Lb3 = newlbl("b3")
    if OPT["a3all"]:
        srd(a, SOUT, P_OUT, P_OUT+1, 8*MB)
        a.e(f"s_lshr_b32 s48, s{sT}, 3", f"s_and_b32 s49, s{sT}, 7", f"s_lshr_b32 s{sSA}, s48, 3", "s_bfe_u32 s50, s48, 0x10002",
            "s_lshl_b32 s50, s50, 3", "s_add_u32 s50, s50, s49", "s_lshl_b32 s50, s50, 2", "s_and_b32 s51, s48, 3", f"s_add_u32 s{sCB}, s50, s51")
        f8_addr(a, sSA, sCB, 4096, 16384)
        f8_consts(a)
        a.e(f"v_lshlrev_b32 v{F_TMP}, {FA()}, v1", f"v_add_u32 v{F_TMP}, {SY_A2}, v{F_TMP}")
        wait_flags(a, F_TMP, 4, F_TMP+1, 48)
        stamp(a, 11)
        PHASE[0] = 3
        fstamp(a, 11)
        f8_run(a, SI2, SOUT, "sc1", NTO())
    else:
        a.e(f"s_cmp_eq_u32 s{sACT}, 0", f"s_cbranch_scc1 {Lb3}")
        srd(a, SOUT, P_OUT, P_OUT+1, 8*MB)
        fft512_addr(a, sSA, sCB)
        fft512_addr2(a, sSA, sCB, 4096, 16384)
        fft512_consts(a)
        a.e(f"v_lshlrev_b32 v{F_TMP}, {FA()}, v1", f"v_add_u32 v{F_TMP}, {SY_A2}, v{F_TMP}")
        wait_flags(a, F_TMP, 4, F_TMP+1, 48)
        stamp(a, 11)
        PHASE[0] = 3
        fstamp(a, 11)
        fft512_loads(a, SI2, "sc1")
        fstamp(a, 3)
        save = gen.PROF; gen.PROF = False
        fft512_compute(a, SOUT, True, 0, NTO(), 0)
        gen.PROF = save
    a.e("s_cmp_lg_u32 s75, 0", "s_cbranch_scc1 L_fin")
    Lb1, Lb2 = newlbl("bchk"), newlbl("bchkd")
    a.e("v_lshlrev_b32 v2, 6, v1", f"v_add_u32 v2, {SY_ID}, v2", f"s_lshl_b32 s49, s{S_TGT}, 4", "s_mov_b32 s48, 0")
    a.label(Lb1)
    NS = NMEM()*8//64
    for i in range(NS):
        a.e(f"s_mov_b32 s50, {4096*i}", f"buffer_load_dword v{4+i}, v2, s[{S_SYN}:{S_SYN+3}], s50 offen sc1")
    a.e("s_add_u32 s48, s48, 1", "s_waitcnt vmcnt(0)")
    for i in range(NS): a.e(f"v_xor_b32 v{4+i}, s49, v{4+i}")
    for i in range(1, NS): a.e(f"v_or_b32 v4, v4, v{4+i}")
    a.e("v_lshrrev_b32 v4, 4, v4", "v_cmp_ne_u32 vcc, 0, v4", f"s_cbranch_vccz {Lb2}", f"s_cmp_lt_u32 s48, {SPIN_LIMIT}", f"s_cbranch_scc1 {Lb1}")
    a.label(Lb2)
    dreduce(a)
    a.e(f"s_mov_b32 s48, {SY_E}")
    bump(a, 48, 2)
    a.e("s_branch L_fin")
    if not OPT["a3all"]:
        a.label(Lb3)
        if not OPT["qA"]: emit_B3_pre(a)
        emit_B3(a)
        a.e("s_branch L_fin")
    a.label(Lsp)
    if OPT["spec2"]:
        Lp1s = newlbl("sp1")
        NEG = " neg_lo:[1,0,0] neg_hi:[1,0,0]"
        a.e(f"s_cmp_lg_u32 s{sPASS}, 0", f"s_cbranch_scc1 {Lp1s}")
        a.e(f"v_lshl_add_u32 v{SP}, v{G_}, 7, v{IDX}", f"v_sub_u32 v{SP+1}, {1023-32*27}, v{SP}",
            f"s_mov_b32 s48, {LW2}", f"v_lshl_add_u32 v{SP+2}, v{SP}, 1, s48", f"s_mov_b32 s49, {LW2+2048}", f"v_lshl_add_u32 v{SP+3}, v{SP+1}, 1, s49")
        w_lds_reads(a, SP+2, SP+3, W2R, W2I)
        for p in range(8):
            xr, xi, wr, wi = ARE+2*p, AIM+2*p, WR+2*p, WI+2*p
            t0 = TMP+4*(p & 1); t1 = t0+2
            n0 = NEG if p < 4 else ""; n1 = "" if p < 4 else NEG
            a.e(f"v_pk_mul_f32 {v(t0,2)}, {v(xr,2)}, {v(wr,2)}", f"v_pk_mul_f32 {v(t1,2)}, {v(xi,2)}, {v(wr,2)}",
                f"v_pk_fma_f32 {v(wr,2)}, {v(xi,2)}, {v(wi,2)}, {v(t0,2)}{n0}",
                f"v_pk_fma_f32 {v(wi,2)}, {v(xr,2)}, {v(wi,2)}, {v(t1,2)}{n1}")
        for i in range(16): a.e(f"v_mov_b32 v{DF+i}, v{GB+i}")
        a.e(f"s_mov_b32 s{sPASS}, 1", f"s_branch {Lfwd}")
        a.label(Lp1s)
        fix_w(a, W2R, W2I, PF2)
        for p in range(8):
            xr, xi, br, bi, r1r, r1i = ARE+2*p, AIM+2*p, W2R+2*p, W2I+2*p, WR+2*p, WI+2*p
            t0 = TMP+4*(p & 1); t1 = t0+2
            n0 = NEG if p < 4 else ""; n1 = "" if p < 4 else NEG
            a.e(f"v_pk_mul_f32 {v(t0,2)}, {v(xr,2)}, {v(br,2)}", f"v_pk_mul_f32 {v(t1,2)}, {v(xi,2)}, {v(br,2)}",
                f"v_pk_fma_f32 {v(t0,2)}, {v(xi,2)}, {v(bi,2)}, {v(t0,2)}{n0}",
                f"v_pk_fma_f32 {v(t1,2)}, {v(xr,2)}, {v(bi,2)}, {v(t1,2)}{n1}",
                f"v_pk_add_f32 {v(t1,2)}, {v(r1r,2)}, {v(t1,2)} neg_lo:[0,1] neg_hi:[0,1]",
                f"v_pk_add_f32 {v(t0,2)}, {v(r1i,2)}, {v(t0,2)}")
            for e in range(2):
                a.e(f"v_cvt_pk_bf16_f32 v{DF+2*p+e}, v{t1+e}, -v{t0+e}")
        a.e(f"s_branch {Linv}")
        return
    a.e(f"v_lshl_add_u32 v{TMP}, v{G_}, 7, v{IDX}", f"v_sub_u32 v{TMP+1}, {1023-32*27}, v{TMP}",
        f"s_mov_b32 s48, {LW2}", f"v_lshl_add_u32 v{TMP+2}, v{TMP}, 1, s48", f"s_mov_b32 s49, {LW2+2048}", f"v_lshl_add_u32 v{TMP+3}, v{TMP+1}, 1, s49")
    w_lds_reads(a, TMP+2, TMP+3, W2R, W2I)
    a.e("s_waitcnt lgkmcnt(0)")
    fix_w(a, W2R, W2I, PF2)
    VS = SP; K0 = SP+1
    a.e(f"v_lshlrev_b32 v{VS}, 9, v{G_}", f"v_lshl_add_u32 v{VS}, v{IDX}, 2, v{VS}")
    for r in range(16):
        a.e(f"ds_write_b32 v{VS}, v{ARE+r} offset:{LSC+128*eidx(r)}", f"ds_write_b32 v{VS}, v{AIM+r} offset:{LSC+4096+128*eidx(r)}")
    a.e(f"v_lshl_add_u32 v{K0}, v{G_}, 7, v{IDX}", f"v_sub_u32 v{K0}, 1024, v{K0}", "s_waitcnt lgkmcnt(0)")
    for r in range(16):
        ad, rr, ri, ur, ui, vr, vi, o0, o1 = [SP+2+i for i in range(9)]
        a.e(f"v_subrev_u32 v{ad}, {32*eidx(r)}, v{K0}", f"v_and_b32 v{ad}, 1023, v{ad}", f"v_lshlrev_b32 v{ad}, 2, v{ad}",
            f"ds_read_b32 v{rr}, v{ad} offset:{LSC}", f"ds_read_b32 v{ri}, v{ad} offset:{LSC+4096}", "s_waitcnt lgkmcnt(0)")
        pr, pi_ = ARE+r, AIM+r
        a.e(f"v_add_f32 v{ur}, v{pr}, v{rr}", f"v_sub_f32 v{ui}, v{pi_}, v{ri}",
            f"v_sub_f32 v{vr}, v{pr}, v{rr}", f"v_add_f32 v{vi}, v{pi_}, v{ri}")
        sg = "-" if r < 8 else ""; ns = "" if r < 8 else "-"
        ar, ai, br, bi = WR+r, WI+r, W2R+r, W2I+r
        a.e(f"v_mul_f32 v{o0}, v{ur}, v{ar}", f"v_fma_f32 v{o0}, {sg}v{ui}, v{ai}, v{o0}",
            f"v_fma_f32 v{o0}, v{vr}, v{br}, v{o0}", f"v_fma_f32 v{o0}, {sg}v{vi}, v{bi}, v{o0}",
            f"v_mul_f32 v{o1}, v{ui}, v{ar}", f"v_fma_f32 v{o1}, {ns}v{ur}, v{ai}, v{o1}",
            f"v_fma_f32 v{o1}, v{vi}, v{br}, v{o1}", f"v_fma_f32 v{o1}, {ns}v{vr}, v{bi}, v{o1}",
            f"v_mul_f32 v{o0}, 0.5, v{o0}", f"v_mul_f32 v{o1}, 0.5, v{o1}",
            f"v_cvt_pk_bf16_f32 v{DF+r}, v{o0}, -v{o1}")
    a.e(f"s_branch {Linv}")

def h_dma(a, SH, sLB, sD4K):
    a.e("v_lshlrev_b32 v235, 4, v1")
    a.e(f"s_add_u32 s74, s{sLB}, 32", "s_mov_b32 m0, s74")
    for ch in range(4): a.e(f"buffer_load_dwordx4 v235, s[{SH}:{SH+3}], s{sD4K} offen offset:{1024*ch} lds" + (NT() if OPT["nth"] else ""))
    a.e(f"s_add_u32 s74, s{sLB}, 4192", f"s_add_u32 s75, s{sD4K}, 2", "s_mov_b32 m0, s74")
    for ch in range(4): a.e(f"buffer_load_dwordx4 v235, s[{SH}:{SH+3}], s75 offen offset:{1024*ch} lds" + (NT() if OPT["nth"] else ""))
    a.e("v_mov_b32 v233, 0x7ffffff0", f"v_mov_b32 v234, s{sD4K}", "v_cmp_eq_u32 vcc, 15, v1", "v_cndmask_b32 v233, v233, v234, vcc",
        f"buffer_load_short_d16_hi v230, v233, s[{SH}:{SH+3}], 0 offen")

def gen_B(a):
    ROLE[0] = 'B'
    SH, STT, SKVT = 80, 84, 32
    a.e(f"s_setprio {OPT['prioB']}") if OPT['prioB'] else None
    srd(a, SH, P_SSMK, P_SSMK+1, 4*MB); srd(a, STT, P_OUT, P_OUT+1, 8*MB)
    sCBK, sSUB, sD, sD4K, sLB, sDV, sF1, sF2, sMASK = 40, 41, 42, 43, 44, 45, 46, 47, 72
    a.e(f"s_and_b32 s{sCBK}, s2, 15",
        f"s_lshr_b32 s{sSUB}, s2, 4",
        f"s_lshl_b32 s{sD}, s{sCBK}, 4", f"s_add_u32 s{sD}, s{sD}, s{sSUB}", f"s_lshl_b32 s{sD}, s{sD}, 2", f"s_add_u32 s{sD}, s{sD}, s3",
        f"s_lshl_b32 s{sD4K}, s{sD}, 12", f"s_mul_i32 s{sLB}, s3, {LB_STRIDE}", f"s_mov_b32 s{sMASK}, 0xffff0000")
    sSB = 36
    a.e(f"s_and_b32 s73, s{sD}, 63", "s_lshl_b32 s73, s73, 13", f"s_lshl_b32 s74, s{sCBK}, 7", "s_add_u32 s73, s73, s74", f"s_add_u32 s{sSB}, s73, 2048")
    for i in range(1, 4): a.e(f"s_add_u32 s{sSB+i}, s{sSB}, {i*2*MB}")
    a.e(f"s_lshl_b32 s73, s{sCBK}, {4+FB()}", f"s_add_u32 s{sF1}, s73, {SY_B1}", f"s_lshl_b32 s74, s{sSUB}, {FB()}", "s_add_u32 s73, s73, s74", f"s_add_u32 s{sF2}, s73, {SY_B2}")
    a.e(f"s_and_b32 s73, s{sD}, 0xfffffffe", "s_lshl_b32 s73, s73, 1", f"s_load_dword s{sDV}, s[{P_SSMD}:{P_SSMD+1}], s73")
    stamp(a, 0, True); stamp(a, 1)
    Lidle, Lsetup = newlbl("bidle"), newlbl("bsetup")
    if OPT["pB1"]: a.e(f"s_setprio {OPT['pB1']}")
    if OPT["b1all"]:
        a.e(f"s_mov_b32 s{sCBKT}, s{sCBK}", f"s_mov_b32 s{sSUBT}, s{sSUB}")
        if OPT["hearly"] and not OPT["hlate"]:
            emit_B1(a, after_stores=lambda: h_dma(a, SH, sLB, sD4K), nafter=9)
        else:
            emit_B1(a)
            if not OPT["hlate"]: h_dma(a, SH, sLB, sD4K)
    else:
        a.e(f"s_cmp_lg_u32 s{sACT}, 0", f"s_cbranch_scc1 {Lidle}")
        if OPT["hearly"] and not OPT["hlate"]:
            emit_B1(a, after_stores=lambda: h_dma(a, SH, sLB, sD4K), nafter=9)
        else:
            emit_B1(a)
            if not OPT["hlate"]: h_dma(a, SH, sLB, sD4K)
        a.e(f"s_branch {Lsetup}")
        a.label(Lidle)
        if OPT["tlb"] or OPT["cpf"]: warm(a)
        fin_epoch(a)
        loc_publish(a)
        loc_issue(a, 10)
        loc_resolve(a, 10, barrier=False)
        if not OPT["hlate"]:
            for _ in range(OPT["hactdelay"]):
                a.e("v_and_b32 v12, 15, v1", f"v_lshlrev_b32 v12, {FB()}, v12", f"v_add_u32 v12, s{sF1}, v12",
                    f"buffer_load_dword v13, v12, s[{S_SYN}:{S_SYN+3}], 0 offen sc1", "s_waitcnt vmcnt(0)")
            h_dma(a, SH, sLB, sD4K)
    a.label(Lsetup)
    if OPT["pB1"]: a.e(f"s_setprio {OPT['prioB']}")
    stamp(a, 12)
    if OPT["yieldB"] == 2 and OPT["yinit"]:
        a_state(a, sCU, 0, 233)
    LN16, B_, G4, VA, VB, VE, VS2, T = 2, 3, 4, 5, 9, 10, 11, 12
    a.e(f"v_lshlrev_b32 v{T}, 2, v1",
        f"v_add_u32 v{T+1}, {4160-32}, v{T}", "v_cmp_le_u32 vcc, 8, v1", f"v_cndmask_b32 v{T+3}, v{T}, v{T+1}, vcc",
        f"v_add_u32 v{T+1}, 8288, v{T}", "v_cmp_le_u32 vcc, 16, v1", f"v_cndmask_b32 v{T+3}, v{T+3}, v{T+1}, vcc",
        f"v_add_u32 v231, s{sLB}, v{T+3}")
    a.e(f"v_lshlrev_b32 v{T}, 3, v1", f"v_add_u32 v{T}, s{sLB}, v{T}", "v_mov_b32 v16, 0", "v_mov_b32 v17, 0", f"ds_write_b64 v{T}, v[16:17] offset:8288")
    a.e(f"v_and_b32 v{B_}, 15, v1", f"v_lshrrev_b32 v{G4}, 4, v1")
    a.e(f"v_and_b32 v{VA}, 1, v{B_}", f"v_xor_b32 v{VA}, 1, v{VA}", f"v_mul_u32_u24 v{VA}, 4160, v{VA}",
        f"v_add_u32 v{VA+1}, 1, v{B_}", f"v_lshrrev_b32 v{VA+1}, 1, v{VA+1}", f"v_lshl_add_u32 v{VA}, v{VA+1}, 2, v{VA}",
        f"v_lshlrev_b32 v{VA+1}, 4, v{G4}", f"v_sub_u32 v{VA}, v{VA}, v{VA+1}",
        f"s_add_u32 s73, s{sLB}, 16", f"v_add_u32 v{VA}, s73, v{VA}")
    for pp in range(1, 4): a.e(f"v_add_u32 v{VA+pp}, {1024*pp}, v{VA}")
    a.e(f"v_lshlrev_b32 v{VB}, 5, v{B_}", f"v_lshl_add_u32 v{VB}, v{G4}, 4, v{VB}",
        f"s_add_u32 s73, s{sLB}, {8800-480}", f"v_add_u32 v{VB}, s73, v{VB}")
    a.e(f"v_lshrrev_b32 v18, 1, v{G4}", f"v_lshlrev_b32 v19, 4, v18", f"v_lshl_add_u32 v19, v{B_}, 5, v19",
        f"v_and_b32 v18, 1, v{G4}", "v_xor_b32 v18, 1, v18", f"v_lshl_add_u32 v19, v18, 3, v19",
        f"s_add_u32 s73, s{sLB}, 8800", f"v_add_u32 v232, s73, v19")
    a.e(f"v_lshrrev_b32 v18, 3, v{B_}", f"v_lshlrev_b32 v{VS2}, 19, v18", f"v_bfe_u32 v18, v{B_}, 2, 1", f"v_lshl_add_u32 v{VS2}, v18, 12, v{VS2}",
        f"v_and_b32 v18, 1, v{G4}", f"v_lshl_add_u32 v{VS2}, v18, 20, v{VS2}", f"v_and_b32 v18, 3, v{B_}", f"v_lshl_add_u32 v{VS2}, v18, 5, v{VS2}",
        f"v_lshrrev_b32 v18, 1, v{G4}", f"v_lshl_add_u32 v{VS2}, v18, 4, v{VS2}")
    a.e(f"v_lshlrev_b32 v{LN16}, 19, v{G4}", "v_bfe_u32 v18, v1, 3, 1", f"v_lshl_add_u32 v{LN16}, v18, 12, v{LN16}",
        "v_and_b32 v18, 7, v1", f"v_lshl_add_u32 v{LN16}, v18, 4, v{LN16}")
    a.e("v_lshlrev_b32 v18, 4, v1", f"s_add_u32 s73, s{sLB}, 8800", "v_add_u32 v19, s73, v18")
    a.e("s_waitcnt lgkmcnt(0)",
        f"s_and_b32 s73, s{sD}, 1", f"s_lshl_b32 s74, s{sDV}, 16", f"s_and_b32 s75, s{sDV}, 0xffff0000",
        "s_cmp_eq_u32 s73, 1", f"s_cselect_b32 s{sDV}, s75, s74")
    if OPT["twoflag"]:
        a.e(f"s_add_u32 s73, s{sF1}, {SY_B1B-SY_B1}", f"s_cmp_lg_u32 s{sLOC}, 0", f"s_cselect_b32 s{sF1}, s{sF1}, s73")
    a.e(f"v_and_b32 v{T}, 15, v1", f"v_lshlrev_b32 v{T}, {FB()}, v{T}", f"v_add_u32 v{T}, s{sF1}, v{T}")
    stamp(a, 5)
    wait_flags(a, T, 1, T+1, 73)
    loc_read(a, 12)
    stamp(a, 6)
    VE = 232
    ACC = 20
    SETS = [(52, 84), (116, 148)]
    U = SETS[1][1]
    for ch in range(4):
        a.e(f"buffer_load_dwordx4 {v(U+4*ch,4)}, v{LN16}, s[{STT}:{STT+3}], s{sSB+ch} offen" + LDL())
    def reads(rho, st):
        A, B = SETS[st]
        out = []
        for p in range(8):
            o = 8*rho + 128*(p & 1)
            out.append(f"ds_read2_b32 {v(A+4*p,2)}, v{VA+(p>>1)} offset0:{o} offset1:{o+1}")
            out.append(f"ds_read2_b32 {v(A+4*p+2,2)}, v{VA+(p>>1)} offset0:{o+2} offset1:{o+3}")
        outb = [f"ds_read_b128 {v(B+4*q,4)}, v{VB} offset:{512*q+32*(15-rho)}" for q in range(8)]
        return out, outb
    rhos = list(range(1, 16, 2))
    ra, rb = reads(rhos[0], 0)
    if OPT["hlate"]:
        h_dma(a, SH, sLB, sD4K)
        for ch in range(4):
            a.e(f"s_waitcnt vmcnt({3-ch+9})", f"ds_write_b128 v19, {v(U+4*ch,4)} offset:{1024*ch}")
        a.e("s_waitcnt vmcnt(0)", "ds_write_b32 v231, v230", "s_waitcnt lgkmcnt(0)")
        for r in ra: a.e(r)
    else:
        a.e("s_waitcnt vmcnt(4)", "ds_write_b32 v231, v230")
        a.e("s_waitcnt lgkmcnt(0)")
        for r in ra: a.e(r)
        for ch in range(4):
            a.e(f"s_waitcnt vmcnt({3-ch})", f"ds_write_b128 v19, {v(U+4*ch,4)} offset:{1024*ch}")
    a.e("s_waitcnt lgkmcnt(0)")
    for r in rb: a.e(r)
    if OPT["yieldB"]:
        Ly = newlbl("y0b")
        if OPT["y0"]: a.e("s_cmp_lg_u32 s2, 0", f"s_cbranch_scc1 {Ly}")
        b_yield(a, 233)
        a.label(Ly)
    Lnq = newlbl("noq")
    if OPT["a3all"]:
        a.e(f"s_mov_b32 s{sCBKT}, s{sCBK}", f"s_mov_b32 s{sSUBT}, s{sSUB}")
        emit_B3_pre(a)
    else:
        a.e(f"s_cmp_lg_u32 s{sACT}, 0", f"s_cbranch_scc1 {Lnq}")
        emit_B3_pre(a)
        a.label(Lnq)
    stamp(a, 7)
    for ci, rho in enumerate(rhos):
        st = ci & 1
        A, B = SETS[st]
        if ci+1 < len(rhos):
            ra, rb = reads(rhos[ci+1], st ^ 1); nxt = ra[0:2] + rb + ra[2:]
        else:
            nxt = [f"ds_read_b64 {v(SETS[st^1][0]+2*j,2)}, v{VE} offset:{512*j}" for j in range(8)]
        a.e("s_waitcnt lgkmcnt(0)")
        n = 0
        for p in range(8):
            for q in range(8-p):
                j = p+q
                c = "0" if (ci == 0 and p == 0) else v(ACC+4*j, 4)
                a.e(f"v_mfma_f32_16x16x32_bf16 {v(ACC+4*j,4)}, {v(A+4*p,4)}, {v(B+4*q,4)}, {c}")
                if n < len(nxt): a.e(nxt[n])
                n += 1
    KVR = SETS[0][0]; TMv = 116
    a.e("s_waitcnt lgkmcnt(0)")
    stamp(a, 8)
    sts = []
    for jp in range(4):
        base = TMv + 8*jp
        for hh in range(2):
            j = 2*jp+hh
            w0, w1 = KVR+2*j, KVR+2*j+1
            t = 172
            a.e(f"v_and_b32 v{t}, s{sMASK}, v{w1}", f"v_lshlrev_b32 v{t+1}, 16, v{w1}",
                f"v_and_b32 v{t+2}, s{sMASK}, v{w0}", f"v_lshlrev_b32 v{t+3}, 16, v{w0}")
            for r in range(4):
                a.e(f"v_fma_f32 v{t+r}, v{t+r}, s{sDV}, v{ACC+4*j+r}")
            a.e(f"v_cvt_pk_bf16_f32 v{base+2*hh}, v{t}, v{t+1}", f"v_cvt_pk_bf16_f32 v{base+2*hh+1}, v{t+2}, v{t+3}")
        a.e(f"v_permlane16_swap_b32 v{base}, v{base+2}", f"v_permlane16_swap_b32 v{base+1}, v{base+3}")
        sts.append(f"buffer_store_dwordx4 {v(base,4)}, v{VS2}, s[{STT}:{STT+3}], s{sSB+jp} offen")
    dual_store(a, sts)
    signal(a, sF2, 12, bloc=True)
    stamp(a, 9)
    if not OPT["a3all"]: a.e(f"s_cmp_lg_u32 s{sACT}, 0", "s_cbranch_scc1 L_fin")
    emit_B3(a)
    a.e("s_branch L_fin")

def warm(a):
    if OPT["tlb"]:
        L = newlbl("warm")
        a.e("s_cmp_lg_u32 s3, 3", f"s_cbranch_scc1 {L}")
        pages = [(P_WS, WS_I1), (P_WS, WS_I1+2*MB), (P_WS, WS_I2), (P_WS, WS_I2+2*MB), (P_WS, WS_SYNC+512*1024),
                 (P_OUT, 0), (P_OUT, 2*MB), (P_OUT, 4*MB), (P_OUT, 6*MB),
                 (P_WR, 0), (P_WR, 2*MB), (P_WI, 0), (P_WI, 2*MB), (P_SSMK, 0), (P_SSMK, 2*MB), (P_Q, 0), (P_Q, 2*MB)]
        a.e("v_mov_b32 v240, 0", "v_mov_b32 v241, 0")
        for i, (p, off) in enumerate(pages):
            a.e(f"s_add_u32 s92, s{p}, {off}", f"s_addc_u32 s93, s{p+1}, 0", f"v_writelane_b32 v240, s92, {i}", f"v_writelane_b32 v241, s93, {i}")
        a.e(f"s_mov_b64 exec, {(1 << len(pages)) - 1}", "global_load_dword v242, v[240:241], off", "s_mov_b64 exec, -1")
        a.label(L)
    if OPT["cpf"]:
        L = newlbl("warm")
        a.e("s_cmp_ge_u32 s3, 2", f"s_cbranch_scc1 {L}")
        a.e("s_getpc_b64 s[92:93]")
        a.e("s_lshr_b32 s96, s2, 4", "s_and_b32 s96, s96, 15", "s_lshl_b32 s96, s96, 1", "s_add_u32 s96, s96, s3", "s_min_u32 s96, s96, 25",
            "s_lshl_b32 s96, s96, 10", f"s_sub_u32 s92, s92, {OPT['cpf']}", "s_subb_u32 s93, s93, 0",
            "s_add_u32 s92, s92, s96", "s_addc_u32 s93, s93, 0", "v_lshlrev_b32 v240, 4, v1",
            "global_load_dwordx4 v[236:239], v240, s[92:93]")
        a.label(L)

def gen_kernel():
    a = Asm(); a.name = "p"
    a.e("s_cmp_ge_u32 s2, 512", "s_cbranch_scc1 L_exit")
    if OPT.get("spinT") or OPT.get("span"): a.e("s_memrealtime s[94:95]")
    if gen.PROF: a.e("s_memrealtime s[98:99]", "s_waitcnt lgkmcnt(0)", "v_writelane_b32 v247, s98, 13")
    a.e(f"s_load_dwordx16 s[4:19], s[0:1], 0", f"s_load_dwordx8 s[20:27], s[0:1], 64")
    a.e("v_lshrrev_b32 v1, 6, v0", "v_readfirstlane_b32 s3, v1", "v_and_b32 v1, 63, v0", "s_waitcnt lgkmcnt(0)")
    srd(a, S_SYN, P_WS, P_WS+1, 1*MB, add=WS_SYNC)
    a.e(f"s_mov_b32 s48, {WS_SYNC+SY_E}", f"s_load_dword s{S_TGT}, s[{P_WS}:{P_WS+1}], s48")
    a.e(f"s_mov_b32 s98, {64<<FA()}", f"s_mov_b32 s99, {128<<FA()}", f"s_mov_b32 s100, {192<<FA()}")
    a.e(f"s_and_b32 s{sCU}, s2, 255", f"s_bitcmp0_b32 s2, 3", f"s_cselect_b32 s{sACT}, 1, 0",
        f"s_lshr_b32 s48, s{sCU}, 4", "s_lshl_b32 s48, s48, 3", f"s_and_b32 s49, s{sCU}, 7", "s_add_u32 s48, s48, s49",
        f"s_and_b32 s{sCBKT}, s48, 15", "s_lshr_b32 s48, s48, 4", "s_lshl_b32 s48, s48, 1", "s_lshr_b32 s49, s2, 8", f"s_add_u32 s{sSUBT}, s48, s49")
    a.e("s_cmp_ge_u32 s2, 256", "s_cbranch_scc1 L_A")
    gen_B(a)
    a.label("L_A")
    gen_A(a)
    a.label("L_fin")
    pass
    if gen.PROF:
        a.e("s_waitcnt vmcnt(0)")
        stamp(a, 14); stamp(a, 15, True)
        prof_dump(a)
    if OPT.get("span"):
        Ls = newlbl("span")
        a.e("s_cmp_lg_u32 s3, 0", f"s_cbranch_scc1 {Ls}", "s_waitcnt vmcnt(0)", "s_memrealtime s[92:93]",
            f"s_add_u32 s32, s{P_WS}, {gen.WS_PROF}", f"s_addc_u32 s33, s{P_WS+1}, 0", f"s_mov_b32 s34, {MB}", "s_mov_b32 s35, 0x00020000",
            "s_lshl_b32 s36, s2, 3", "s_waitcnt lgkmcnt(0)", "v_mov_b32 v2, s36", "v_mov_b32 v4, s94", "v_mov_b32 v5, s92", "s_mov_b64 exec, 1",
            "buffer_store_dwordx2 v[4:5], v2, s[32:35], 0 offen", "s_waitcnt vmcnt(0)")
        a.label(Ls)
    if OPT.get("spinT"):
        a.label("L_spin")
        a.e("s_memrealtime s[92:93]", "s_waitcnt lgkmcnt(0)", "s_sub_u32 s92, s92, s94", f"s_cmp_lt_u32 s92, {OPT['spinT']}", "s_cbranch_scc1 L_spin")
    a.label("L_exit")
    a.e("s_endpgm")
    return a

def prof_dump(a):
    if OPT.get("dbgwg", -1) >= 0:
        L = newlbl("nodbg")
        a.e(f"s_cmp_lg_u32 s2, {OPT['dbgwg']}", f"s_cbranch_scc1 {L}", "s_cmp_lg_u32 s3, 0", f"s_cbranch_scc1 {L}")
        a.e("v_readlane_b32 s36, v247, 1", "v_readlane_b32 s37, v247, 13", "v_mov_b32 v250, s36", "v_mov_b32 v251, s37",
            "v_cmp_eq_u32 vcc, 0, v1", "v_cndmask_b32 v250, v250, v251, vcc", "v_cmp_eq_u32 vcc, 13, v1", "v_cndmask_b32 v250, v250, v251, vcc",
            "v_cmp_eq_u32 vcc, 15, v1", "v_cndmask_b32 v250, v250, v251, vcc", "v_sub_u32 v250, v247, v250",
            f"s_mov_b32 s32, s{P_DBG}", f"s_mov_b32 s33, s{P_DBG+1}", "s_mov_b32 s34, 256", "s_mov_b32 s35, 0x00020000",
            "v_lshlrev_b32 v251, 2, v1", "s_mov_b64 exec, 0xffff", "buffer_store_dword v250, v251, s[32:35], 0 offen", "s_waitcnt vmcnt(0)", "s_mov_b64 exec, -1")
        a.label(L)
        return

    a.e(f"s_add_u32 s32, s{P_WS}, {gen.WS_PROF}", f"s_addc_u32 s33, s{P_WS+1}, 0", f"s_mov_b32 s34, {MB}", "s_mov_b32 s35, 0x00020000")
    a.e("s_lshl_b32 s36, s2, 2", "s_add_u32 s36, s36, s3", "s_lshl_b32 s36, s36, 6",
        "v_lshlrev_b32 v250, 2, v1", "v_add_u32 v250, s36, v250", "s_mov_b64 exec, 0xffff",
        "buffer_store_dword v247, v250, s[32:35], 0 offen")
    if OPT.get("fine"):
        a.e("v_add_u32 v250, 0x40000, v250", "buffer_store_dword v246, v250, s[32:35], 0 offen")
    a.e("s_waitcnt vmcnt(0)")
PROFREGS = []

def build(path):
    a = gen_kernel()
    name = "concat_heads__spectral_gfnet__ssm_conv_h3__prompt_kernel"
    s = open("concat_heads__spectral_gfnet__ssm_conv_h3__prompt.s.ref").read().split("; Override")[0]
    s += f"; @launch grid=(512,1,1) block=(256,1,1) lds={LDS_BYTES}\n"
    s += '.amdgcn_target "amdgcn-amd-amdhsa--gfx950"\n' + gen.header(name) + a.text() + gen.descriptor(name, 256, 102)
    s = s.replace(" lds nt", " nt lds")
    open(path, "w").write(s)
    return s

if __name__ == "__main__":
    out = sys.argv[1] if len(sys.argv) > 1 else "pers.s"
    gen.PROF = "prof" in sys.argv[2:]
    for x in sys.argv[2:]:
        if "=" in x:
            k, val = x.split("="); OPT[k] = int(val)
    if OPT["wsend"]:
        base = OPT["wsend"]*MB
        WS_I1, WS_KVT, WS_I2, WS_TT, WS_SYNC = base, base+4*MB, base+8*MB, base+12*MB, base+20*MB
    s = build(out)
    print(out, len(s))
```

```python
import sys
from asmgen import *
import gen
from gen import srd, MB, WS_I1, WS_KVT, WS_I2, WS_TT, KA

PHASE = [1]
def dstamp(a, k, inv=False):
    if not OPT.get("dmax"): return
    a.e("s_memrealtime s[96:97]", "s_waitcnt lgkmcnt(0)", f"v_writelane_b32 v242, s96, {k}")
SY_DG = 4096 + 131072
def dpublish(a, sT):
    if not OPT.get("dmax"): return
    L = newlbl("dp")
    a.e("s_cmp_lg_u32 s3, 0", f"s_cbranch_scc1 {L}", f"s_lshl_b32 s92, s{sT}, 5", f"s_add_u32 s92, s92, {SY_DG}",
        "v_lshlrev_b32 v240, 2, v1", "v_add_u32 v240, s92, v240", "s_mov_b64 exec, 0xff",
        f"buffer_store_dword v242, v240, s[{S_SYN}:{S_SYN+3}], 0 offen sc1", "s_mov_b64 exec, -1")
    a.label(L)
def dreduce(a):
    if not OPT.get("dmax"): return
    a.e(f"s_mov_b32 s92, s{P_DBG}", f"s_mov_b32 s93, s{P_DBG+1}", "s_mov_b32 s94, 256", "s_mov_b32 s95, 0x00020000")
    a.e("v_lshlrev_b32 v2, 5, v1", f"v_add_u32 v2, {SY_DG}, v2")
    for k in range(7):
        for i in range(4):
            a.e(f"s_mov_b32 s50, {2048*i + 4*k}", f"buffer_load_dword v{10+i}, v2, s[{S_SYN}:{S_SYN+3}], s50 offen sc1")
        a.e("s_waitcnt vmcnt(0)")
        if k == 0:
            a.e("v_min_u32 v10, v10, v11", "v_min_u32 v12, v12, v13", "v_min_u32 v10, v10, v12", "s_mov_b32 s51, -1")
            for l in range(64): a.e(f"v_readlane_b32 s48, v10, {l}", "s_min_u32 s51, s51, s48")
            a.e("s_mov_b32 s45, s51")
            continue
        for i in range(4):
            a.e(f"v_subrev_u32 v{10+i}, s45, v{10+i}", f"v_lshlrev_b32 v{10+i}, 8, v{10+i}", f"v_add_u32 v14, {64*i}, v1", f"v_or_b32 v{10+i}, v{10+i}, v14")
        a.e("v_max_u32 v10, v10, v11", "v_max_u32 v12, v12, v13", "v_max_u32 v10, v10, v12", "s_mov_b32 s51, 0")
        for l in range(64): a.e(f"v_readlane_b32 s48, v10, {l}", "s_max_u32 s51, s51, s48")
        a.e("s_lshr_b32 s48, s51, 8", "s_and_b32 s49, s51, 255", "v_mov_b32 v14, s48", "v_mov_b32 v15, s49", f"v_mov_b32 v16, {8*(k-1)}", "s_mov_b64 exec, 1",
            "buffer_store_dwordx2 v[14:15], v16, s[92:95], 0 offen", "s_mov_b64 exec, -1")
DMAP_A = {1: 0, 5: 1, 6: 2, 7: 3, 8: 4, 9: 5}
DMAP_B = {}
ROLE = ["B"]
def fstamp(a, i):
    if OPT.get("fine") != PHASE[0]: return
    a.e('s_memtime s[96:97]', 's_waitcnt lgkmcnt(0)', f'v_writelane_b32 v246, s96, {i}')
def stamp(a, i, real=False):
    if OPT.get("dmax"):
        m = DMAP_A if ROLE[0] == "A" else DMAP_B
        if i in m and i != 14: dstamp(a, m[i])
        return
    if not gen.PROF: return
    a.e('s_memrealtime s[96:97]' if real else 's_memtime s[96:97]', 's_waitcnt lgkmcnt(0)', f'v_writelane_b32 v247, s96, {i}')

WBYTES = 2048*513*2
LB_STRIDE = 12896
LDS_BYTES = 53248
SPIN_LIMIT = 400000
OPT = dict(prioA=0, prioB=0, sleep=0, nt=1, wsend=0, ntout=1, ntw=1, wlate=1, hlate=1, qA=1, fsa=6, fsb=6, shrink=0, loc=1, forceloc=-1, ldloc=1, bdelay=0, earlypub=1, wpos=1, optst=1, locflag=1, hearly=1, twoflag=1, pA1i=-1, pB1=0, ntscr=0, a3all=1, ntk=1, ntv=1, ntx=1, nth=1, hactdelay=0, b1all=1, bactwait=1, pA1a=-1, grp=1, yieldB=0, ylim=40, tlb=0, cpf=0, spec2=1, y0=0, yinit=1, ymid=0)
def NMEM(): return 32 if OPT['b1all'] else 48
def LDL(): return {0: ' sc1', 1: ' nt', 2: ' sc1 nt'}[OPT['ldloc']]
def FA(): return OPT['fsa']
def FB(): return OPT['fsb']
def NT(): return ' nt' if OPT['nt'] else ''
def NTO(): return {0: '', 1: ' nt', 2: ' sc1', 3: ' sc1 nt'}[OPT['ntout']]

P_X, P_WR, P_WI, P_Q, P_K, P_V, P_SHK, P_SSMK, P_SSMD, P_OUT, P_DBG, P_WS = 4, 6, 8, 10, 12, 14, 16, 18, 20, 22, 24, 26
S_DBG = 28
def eidx(r): return (r & 3) + 8*(r >> 2)

_lbl = [0]
def newlbl(p):
    _lbl[0] += 1
    return f"L_{p}_{_lbl[0]}"

WS_SYNC = 20*MB
S_SYN = 28
S_TGT = 101
SY_E, SY_A1, SY_A2, SY_B1, SY_B2 = 0, 4096, 4096+16384, 4096+32768, 4096+49152
sACT, sCBKT, sSUBT, sCU = 88, 89, 90, 91
sLOC, sXEXP = 79, 0
S_DBG = 12
def signal(a, s_off, vt, nafter=0, bloc=False):
    L = newlbl("sig")
    a.e(f"s_waitcnt vmcnt({nafter})", "s_barrier", "s_cmp_lg_u32 s3, 0", f"s_cbranch_scc1 {L}",
        f"v_mov_b32 v{vt}, s{s_off}", f"v_mov_b32 v{vt+1}, s{S_TGT}", "s_mov_b64 exec, 1")
    st = f"buffer_store_dword v{vt+1}, v{vt}, s[{S_SYN}:{S_SYN+3}], 0 offen"
    if bloc and OPT["locflag"]:
        dual_store(a, [st])
    else:
        a.e(st + " sc1")
    a.e("s_mov_b64 exec, -1")
    a.label(L)

def wait_flags(a, vaddr, nload, vt, s_cnt, pre_barrier=None, solo=False):
    L = newlbl("poll"); Ls = newlbl("pdone"); Lr = newlbl("prest")
    if not solo: a.e("s_cmp_lg_u32 s3, 0", f"s_cbranch_scc1 {Ls}")
    a.e(f"s_mov_b32 s{s_cnt}, 0")
    a.label(L)
    offs = ["0", "s98", "s99", "s100"]
    for i in range(nload):
        a.e(f"buffer_load_dword v{vt+i}, v{vaddr}, s[{S_SYN}:{S_SYN+3}], {offs[i]} offen sc1")
    a.e(f"s_add_u32 s{s_cnt}, s{s_cnt}, 1", "s_waitcnt vmcnt(0)")
    for i in range(nload):
        a.e(f"v_xor_b32 v{vt+i}, s{S_TGT}, v{vt+i}")
    for i in range(1, nload):
        a.e(f"v_or_b32 v{vt}, v{vt}, v{vt+i}")
    if OPT["shrink"]:
        a.e(f"v_cmp_ne_u32 vcc, 0, v{vt}", "s_and_b64 exec, exec, vcc", f"s_cbranch_execz {Lr}")
    else:
        a.e(f"v_cmp_ne_u32 vcc, 0, v{vt}", f"s_cbranch_vccz {Lr}")
    if OPT["sleep"]: a.e(f"s_sleep {OPT['sleep']}")
    a.e(f"s_cmp_lt_u32 s{s_cnt}, {SPIN_LIMIT}", f"s_cbranch_scc1 {L}")
    a.label(Lr)
    if OPT["shrink"]: a.e("s_mov_b64 exec, -1")
    a.label(Ls)
    if pre_barrier: a.e(pre_barrier)
    if not solo: a.e("s_barrier")

SY_ID = 4096 + 65536
SY_B1B = 4096 + 98304
SY_AS = 4096 + 114688
LOCW = 53244
def loc_publish(a):
    L = newlbl("pub")
    a.e("s_getreg_b32 s92, hwreg(HW_REG_XCC_ID)", "s_and_b32 s92, s92, 15", f"s_lshl_b32 s{sXEXP}, s{S_TGT}, 4", f"s_or_b32 s{sXEXP}, s{sXEXP}, s92")
    a.e("s_cmp_lg_u32 s3, 0", f"s_cbranch_scc1 {L}")
    if OPT["b1all"] and OPT["grp"]:
        a.e("s_and_b32 s92, s2, 15", "s_lshl_b32 s92, s92, 4", "s_lshr_b32 s93, s2, 4", "s_add_u32 s92, s92, s93", "s_lshl_b32 s92, s92, 6", f"s_add_u32 s92, s92, {SY_ID}")
    else:
        a.e("s_lshr_b32 s92, s2, 3", f"s_lshr_b32 s93, s{sCU}, 4", "s_add_u32 s93, s93, 32", "s_cmp_ge_u32 s2, 256", "s_cselect_b32 s92, s93, s92",
            "s_and_b32 s93, s2, 7", f"s_mul_i32 s93, s93, {NMEM()}", "s_add_u32 s92, s92, s93", "s_lshl_b32 s92, s92, 6", f"s_add_u32 s92, s92, {SY_ID}")
    a.e(
        "v_mov_b32 v10, s92", f"v_mov_b32 v11, s{sXEXP}", "s_mov_b64 exec, 1",
        f"buffer_store_dword v11, v10, s[{S_SYN}:{S_SYN+3}], 0 offen sc1", "s_mov_b64 exec, -1")
    a.label(L)

def loc_issue(a, vt):
    if OPT["b1all"] and OPT["grp"]:
        a.e(f"v_min_u32 v{vt}, 15, v1", "s_and_b32 s93, s2, 15", "s_lshl_b32 s93, s93, 4")
    else:
        a.e(f"v_min_u32 v{vt}, {NMEM()-1}, v1", "s_and_b32 s93, s2, 7", f"s_mul_i32 s93, s93, {NMEM()}")
    a.e(f"v_add_u32 v{vt}, s93, v{vt}",
        f"v_lshlrev_b32 v{vt}, 6, v{vt}", f"v_add_u32 v{vt}, {SY_ID}, v{vt}")
    L = newlbl("li")
    a.e("s_cmp_lg_u32 s3, 0", f"s_cbranch_scc1 {L}")
    a.e(f"buffer_load_dword v{vt+1}, v{vt}, s[{S_SYN}:{S_SYN+3}], 0 offen sc1")
    a.label(L)

def loc_resolve(a, vt, barrier=True, nafter=0):
    L, Ld, Ls = newlbl("locp"), newlbl("locd"), newlbl("locs")
    a.e("s_cmp_lg_u32 s3, 0", f"s_cbranch_scc1 {Ls}")
    if OPT["forceloc"] >= 0:
        a.e(f"s_waitcnt vmcnt({nafter})", f"s_mov_b32 s93, {OPT['forceloc']}")
    else:
        a.e("s_mov_b32 s92, 0", f"s_waitcnt vmcnt({nafter})")
        a.label(L)
        a.e(f"v_xor_b32 v{vt+2}, s{sXEXP}, v{vt+1}", f"v_lshrrev_b32 v{vt+3}, 4, v{vt+2}", "s_add_u32 s92, s92, 1",
            f"v_cmp_ne_u32 vcc, 0, v{vt+3}", f"s_cbranch_vccz {Ld}",
            f"s_cmp_ge_u32 s92, {SPIN_LIMIT}", f"s_cbranch_scc1 {Ld}",
            f"buffer_load_dword v{vt+1}, v{vt}, s[{S_SYN}:{S_SYN+3}], 0 offen sc1", "s_waitcnt vmcnt(0)", f"s_branch {L}")
        a.label(Ld)
        a.e(f"v_cmp_ne_u32 vcc, 0, v{vt+2}", "s_cmp_eq_u64 vcc, 0", "s_cselect_b32 s93, 1, 0")
    a.e(f"s_mov_b32 s{sLOC}, s93", f"v_mov_b32 v{vt+2}, {LOCW}", f"v_mov_b32 v{vt+3}, s93", f"ds_write_b32 v{vt+2}, v{vt+3}", "s_waitcnt lgkmcnt(0)")
    a.label(Ls)
    if barrier:
        a.e("s_barrier")
        loc_read(a, vt)

def loc_read(a, vt):
    a.e(f"v_mov_b32 v{vt+2}, {LOCW}", f"ds_read_b32 v{vt+3}, v{vt+2}", "s_waitcnt lgkmcnt(0)", f"v_readfirstlane_b32 s{sLOC}, v{vt+3}")

def dual_store(a, lines):
    L1, L2 = newlbl("stg"), newlbl("stl")
    a.e(f"s_cmp_eq_u32 s{sLOC}, 0", f"s_cbranch_scc1 {L1}")
    for l in lines: a.e(l)
    a.e(f"s_branch {L2}")
    a.label(L1)
    for l in lines: a.e(l + " sc1" if "buffer_store" in l else l)
    a.label(L2)

def a_state(a, sT, st, vt):
    L = newlbl("ast")
    a.e("s_cmp_lg_u32 s3, 0", f"s_cbranch_scc1 {L}", f"s_lshl_b32 s92, s{sT}, 6", f"s_add_u32 s92, s92, {SY_AS}",
        f"s_lshl_b32 s93, s{S_TGT}, 2", f"s_or_b32 s93, s93, {st}", f"v_mov_b32 v{vt}, s92", f"v_mov_b32 v{vt+1}, s93", "s_mov_b64 exec, 1",
        f"buffer_store_dword v{vt+1}, v{vt}, s[{S_SYN}:{S_SYN+3}], 0 offen", "s_mov_b64 exec, -1")
    a.label(L)

def y_ld(vt): return f"buffer_load_dword v{vt+1}, v{vt}, s[{S_SYN}:{S_SYN+3}], 0 offen " + ("sc1" if OPT.get("ysc", 1) else "nt")
def b_yield(a, vt):
    L, Ld = newlbl("yl"), newlbl("yd")
    a.e(f"s_lshl_b32 s92, s{sCU}, 6", f"s_add_u32 s92, s92, {SY_AS}", f"v_mov_b32 v{vt}, s92", f"s_lshl_b32 s75, s{S_TGT}, 2", "s_mov_b32 s92, 0")
    a.e(f"s_or_b32 s75, s75, {2 if OPT['yieldB'] == 2 else 1}")
    if OPT["yieldB"] == 3:
        a.e(y_ld(vt)); return
    a.label(L)
    a.e(y_ld(vt), "s_add_u32 s92, s92, 1", "s_waitcnt vmcnt(0)",
        f"v_readfirstlane_b32 s93, v{vt+1}", "s_cmp_lg_u32 s93, s75" if OPT["yieldB"] == 1 else "s_cmp_eq_u32 s93, s75", f"s_cbranch_scc1 {Ld}",
        f"s_cmp_lt_u32 s92, {OPT['ylim']}", f"s_cbranch_scc1 {L}")
    a.label(Ld)

def b_yield_step(a, vt, last):
    L, Ld = newlbl("ys"), newlbl("ysd")
    a.label(L)
    a.e("s_waitcnt vmcnt(0)", f"v_readfirstlane_b32 s93, v{vt+1}", "s_cmp_lg_u32 s93, s75", f"s_cbranch_scc1 {Ld}",
        f"s_cmp_ge_u32 s92, {OPT['ylim']}", f"s_cbranch_scc1 {Ld}", "s_add_u32 s92, s92, 1", y_ld(vt), f"s_branch {L}")
    a.label(Ld)
    if not last: a.e(y_ld(vt))

def fin_epoch(a):
    a.e("s_waitcnt lgkmcnt(0)", f"s_add_u32 s{S_TGT}, s{S_TGT}, 1")

def bump(a, s_off, vt):
    a.e(f"v_mov_b32 v{vt}, s{s_off}", f"v_mov_b32 v{vt+1}, s{S_TGT}", "s_mov_b64 exec, 1",
        f"buffer_store_dword v{vt+1}, v{vt}, s[{S_SYN}:{S_SYN+3}], 0 offen sc1", "s_mov_b64 exec, -1")

F_M, F_G, F_IN0, F_IN1, F_OUTOFF, F_WR, F_RD0, F_RD1, F_MM = 2, 3, 4, 5, 6, 7, 8, 9, 10
F_T = 11
F_IN, F16RE, F16IM, F_TWC, F_TWS, F_DRE, F_DIM, F_P, F_TMP, F32RE, F32IM = 16, 48, 52, 56, 88, 120, 136, 152, 168, 176, 192
SI_OFF, SO_OFF = 52, 68
SO_LIST = [68, 69, 70, 71, 76, 77, 78, 79]

def fft512_addr(a, s_sa, s_cb):
    a.e(f"v_and_b32 v{F_M}, 15, v1", f"v_lshrrev_b32 v{F_G}, 4, v1")
    a.e(f"v_lshlrev_b32 v{F_IN0}, 20, v{F_G}", f"v_lshl_add_u32 v{F_IN0}, v{F_M}, 2, v{F_IN0}", f"v_add_u32 v{F_IN1}, {4*8192}, v{F_IN0}")
    a.e(f"s_lshl_b32 s48, s{s_sa}, 11", f"s_lshl_b32 s49, s{s_cb}, 6", "s_add_u32 s48, s48, s49",
        "s_lshl_b32 s50, s3, 16", "s_add_u32 s48, s48, s50")
    for aa in range(4):
        for i in range(4):
            a.e(f"s_add_u32 s{SI_OFF+4*aa+i}, s48, {(32*i+aa)*8192}")

def fft512_loads(a, SIN, mod=""):
    for hh in range(2):
        for aa in range(4):
            for i in range(4):
                a.e(f"buffer_load_dword v{F_IN+16*hh+4*aa+i}, v{F_IN0+hh}, s[{SIN}:{SIN+3}], s{SI_OFF+4*aa+i} offen {mod}")

def fft512_addr2(a, s_sa, s_cb, orow, ostr):
    a.e(f"s_mov_b32 s51, {16*ostr}", f"v_mul_lo_u32 v{F_OUTOFF}, v{F_M}, s51", f"v_lshl_add_u32 v{F_OUTOFF}, v{F_G}, 4, v{F_OUTOFF}")
    a.e(f"s_mul_i32 s48, s{s_sa}, {orow}", f"s_lshl_b32 s49, s{s_cb}, 6", "s_add_u32 s48, s48, s49",
        f"s_mul_i32 s50, s3, {4*ostr}", "s_add_u32 s48, s48, s50")
    for b in range(4):
        for h in range(2):
            a.e(f"s_add_u32 s{SO_LIST[2*b+h]}, s48, {(b+256*h)*ostr}")
    a.e(f"v_and_b32 v{F_T}, 7, v{F_M}", "s_lshl_b32 s50, s3, 1", f"v_xor_b32 v{F_T+1}, s50, v{F_T}",
        f"v_lshlrev_b32 v{F_WR}, 4, v{F_T+1}", f"v_lshl_add_u32 v{F_WR}, v{F_M}, 7, v{F_WR}",
        f"v_lshl_add_u32 v{F_WR}, v{F_G}, 13, v{F_WR}")
    a.e(f"v_xor_b32 v{F_T+1}, v{F_G}, v{F_T}", f"v_lshlrev_b32 v{F_RD0}, 4, v{F_T+1}",
        f"v_lshl_add_u32 v{F_RD0}, v{F_M}, 7, v{F_RD0}", "s_lshl_b32 s50, s3, 13",
        f"v_add_u32 v{F_RD0}, s50, v{F_RD0}", f"v_xor_b32 v{F_RD1}, 64, v{F_RD0}")

def fft512_consts(a):
    T, TMP = F_T, F_TMP
    XS, XB = T, T+1
    a.e(f"v_cvt_f32_u32 v{XS}, v{F_M}", f"v_mul_f32 v{XS}, {f32hex(1/32)}, v{XS}",
        f"v_cvt_f32_u32 v{T+2}, v{F_G}", f"v_mul_f32 v{T+2}, 4.0, v{T+2}",
        f"v_mul_f32 v{XB}, v{T+2}, v{XS}")
    a.e(f"v_and_b32 v{F_MM}, 1, v{F_M}", f"v_mul_u32_u24 v{F_MM}, 0x8000, v{F_MM}",
        f"v_lshl_or_b32 v{F_MM}, v{F_MM}, 16, v{F_MM}", "s_mov_b32 s50, 0x80008000")
    for i in range(4):
        x = TMP; cs = TMP+1; sn = TMP+2; x2 = TMP+3; cs2 = TMP+4; sn2 = TMP+5
        a.e(f"v_fmamk_f32 v{x}, v{XS}, {f32hex(float(i))}, v{XB}" if i else f"v_mov_b32 v{x}, v{XB}")
        a.e(f"v_add_f32 v{x2}, v{x}, v{x}")
        a.e(f"v_cos_f32 v{cs}, v{x}", f"v_sin_f32 v{sn}, v{x}", f"v_cos_f32 v{cs2}, v{x2}", f"v_sin_f32 v{sn2}, v{x2}")
        a.e(f"v_cvt_pk_bf16_f32 v{F32RE+i}, v{cs}, v{sn}", f"v_cvt_pk_bf16_f32 v{F32IM+i}, -v{sn}, v{cs}",
            f"v_cvt_pk_bf16_f32 v{F16RE+i}, v{cs2}, v{sn2}", f"v_cvt_pk_bf16_f32 v{F16IM+i}, -v{sn2}, v{cs2}")
    for base in (F32RE, F32IM):
        for i in range(4):
            a.e(f"v_xor_b32 v{base+4+i}, v{F_MM}, v{base+i}")
        for t in range(2):
            for i in range(4):
                src = base+4*t+i
                if i & 1: a.e(f"v_xor_b32 v{base+8+4*t+i}, s50, v{src}")
                else:     a.e(f"v_mov_b32 v{base+8+4*t+i}, v{src}")
    a.e(f"v_cvt_f32_u32 v{TMP}, s3", f"v_mul_f32 v{TMP}, {f32hex(8/512)}, v{TMP}")
    for r in range(4):
        a.e(f"v_add_f32 v{TMP+4+r}, {f32hex(float(r)) if r else 0}, v{T+2}")
    for aa in range(8):
        a.e(f"v_add_f32 v{TMP+1}, {f32hex(aa/512) if aa else 0}, v{TMP}")
        for r in range(4):
            a.e(f"v_mul_f32 v{T+3+(r&1)}, v{TMP+1}, v{TMP+4+r}",
                f"v_cos_f32 v{F_TWC+4*aa+r}, v{T+3+(r&1)}", f"v_sin_f32 v{F_TWS+4*aa+r}, v{T+3+(r&1)}")

def fft512_compute(a, SOUT, neg_im, nafter, stmod, st0, fs=0, hook=None):
    TMP = F_TMP
    stamp(a, st0)
    for hh in range(2):
        fstamp(a, fs+5*hh)
        for aa in range(4):
            a.e(f"s_waitcnt vmcnt({28-16*hh-4*aa+nafter})")
            a.e(f"v_mfma_f32_16x16x32_bf16 {v(F_DRE+4*aa,4)}, {v(F16RE,4)}, {v(F_IN+16*hh+4*aa,4)}, 0",
                f"v_mfma_f32_16x16x32_bf16 {v(F_DIM+4*aa,4)}, {v(F16IM,4)}, {v(F_IN+16*hh+4*aa,4)}, 0")
        if hh == 1:
            stamp(a, st0+1)
            if hook: hook()
        fstamp(a, fs+5*hh+1)
        for aa in range(4):
            for p in range(2):
                re, im = F_DRE+4*aa+2*p, F_DIM+4*aa+2*p
                tc, ts = F_TWC+16*hh+4*aa+2*p, F_TWS+16*hh+4*aa+2*p
                t0, t1 = TMP+4*p, TMP+4*p+2
                a.e(f"v_pk_mul_f32 {v(t0,2)}, {v(re,2)}, {v(tc,2)}",
                    f"v_pk_mul_f32 {v(t1,2)}, {v(im,2)}, {v(tc,2)}",
                    f"v_pk_fma_f32 {v(t0,2)}, {v(im,2)}, {v(ts,2)}, {v(t0,2)}",
                    f"v_pk_fma_f32 {v(t1,2)}, {v(re,2)}, {v(ts,2)}, {v(t1,2)} neg_lo:[1,0,0] neg_hi:[1,0,0]")
                for e in range(2):
                    r = 2*p+e
                    a.e(f"v_cvt_pk_bf16_f32 v{F_P+4*r+aa}, v{t0+e}, v{t1+e}")
        fstamp(a, fs+5*hh+2)
        if hh == 1: a.e(f"v_xor_b32 v{F_WR}, 16, v{F_WR}")
        for r in range(4):
            a.e(f"ds_write_b128 v{F_WR}, {v(F_P+4*r,4)} offset:{r*2048}")
    a.e("s_waitcnt lgkmcnt(0)")
    fstamp(a, fs+8)
    a.e("s_barrier")
    fstamp(a, fs+9)
    for b in range(4):
        a.e(f"ds_read_b128 {v(F_IN+8*b,4)}, v{F_RD0} offset:{b*2048}",
            f"ds_read_b128 {v(F_IN+8*b+4,4)}, v{F_RD1} offset:{b*2048}")
    sg = "-" if neg_im else ""
    def mf(bb):
        D0 = [F_DRE, F_DIM] if bb == 0 else [F_TWC, F_TWC+16]
        for bl in range(2):
            b = 2*bb+bl
            a.e(f"s_waitcnt lgkmcnt({6-2*b})")
            for t in range(2):
                for h in range(2):
                    for (D_, F_) in ((D0[0], F32RE), (D0[1], F32IM)):
                        d = D_+8*bl+4*h
                        c = "0" if t == 0 else v(d, 4)
                        a.e(f"v_mfma_f32_16x16x32_bf16 {v(d,4)}, {v(F_IN+8*b+4*t,4)}, {v(F_+8*h+4*t,4)}, {c}")
    def st(bb):
        D0 = [F_DRE, F_DIM] if bb == 0 else [F_TWC, F_TWC+16]
        PB = F_P if bb == 0 else F_TWS
        out = []
        for bl in range(2):
            b = 2*bb+bl
            for h in range(2):
                idx = 8*bl+4*h
                for r in range(4):
                    out.append(f"v_cvt_pk_bf16_f32 v{PB+idx+r}, v{D0[0]+idx+r}, {sg}v{D0[1]+idx+r}")
                out.append(f"buffer_store_dwordx4 {v(PB+idx,4)}, v{F_OUTOFF}, s[{SOUT}:{SOUT+3}], s{SO_LIST[2*b+h]} offen {stmod}")
        return out
    mf(0)
    n0 = len(a.lines)
    mf(1)
    m1 = a.lines[n0:]; del a.lines[n0:]
    s0 = st(0)
    k = 0
    seen = 0
    for l in m1:
        a.lines.append(l)
        if "v_mfma" in l:
            seen += 1
            if seen > 4:
                for _ in range(2):
                    if k < len(s0): a.e(s0[k]); k += 1
    while k < len(s0): a.e(s0[k]); k += 1
    fstamp(a, fs+10)
    for l in st(1): a.e(l)

def f8_addr(a, s_sa, s_cb, orow, ostr):
    a.e(f"v_and_b32 v{F_M}, 15, v1", f"v_lshrrev_b32 v{F_G}, 4, v1")
    a.e(f"v_and_b32 v{F_T}, 7, v1", f"v_bfe_u32 v{F_T+1}, v1, 3, 1",
        f"v_lshlrev_b32 v{F_IN0}, 20, v{F_G}", f"v_lshl_add_u32 v{F_IN0}, v{F_T+1}, 15, v{F_IN0}",
        f"v_lshl_add_u32 v{F_IN0}, v{F_T}, 2, v{F_IN0}")
    a.e(f"s_lshl_b32 s48, s{s_sa}, 11", f"s_lshl_b32 s49, s{s_cb}, 5", "s_add_u32 s48, s48, s49",
        "s_lshl_b32 s50, s3, 16", "s_add_u32 s48, s48, s50")
    for aa in range(4):
        for i in range(4):
            a.e(f"s_add_u32 s{SI_OFF+4*aa+i}, s48, {(32*i+aa)*8192}")
    a.e(f"v_lshrrev_b32 v{F_T+2}, 1, v{F_G}", f"v_lshl_add_u32 v{F_T+2}, v{F_M}, 4, v{F_T+2}",
        f"s_mov_b32 s51, {ostr}", f"v_mul_lo_u32 v{F_OUTOFF}, v{F_T+2}, s51",
        f"v_and_b32 v{F_T+2}, 1, v{F_G}", f"v_lshl_add_u32 v{F_OUTOFF}, v{F_T+2}, 4, v{F_OUTOFF}")
    a.e(f"s_mul_i32 s48, s{s_sa}, {orow}", f"s_lshl_b32 s49, s{s_cb}, 5", "s_add_u32 s48, s48, s49",
        f"s_mul_i32 s50, s3, {4*ostr}", "s_add_u32 s48, s48, s50")
    for b in range(2):
        for h in range(2):
            a.e(f"s_add_u32 s{SO_LIST[2*b+h]}, s48, {(2*b+256*h)*ostr}")
    a.e("s_lshl_b32 s50, s3, 1", f"v_add_u32 v{F_T+2}, s50, v{F_T+1}", f"v_xor_b32 v{F_T+2}, v{F_T+2}, v{F_T}",
        f"v_lshlrev_b32 v{F_WR}, 4, v{F_T+2}", f"v_lshl_add_u32 v{F_WR}, v{F_T}, 7, v{F_WR}", f"v_lshl_add_u32 v{F_WR}, v{F_G}, 12, v{F_WR}")
    a.e(f"v_xor_b32 v{F_T+2}, v{F_G}, v{F_T}", f"v_lshlrev_b32 v{F_RD0}, 4, v{F_T+2}",
        f"v_lshl_add_u32 v{F_RD0}, v{F_T}, 7, v{F_RD0}", f"v_lshl_add_u32 v{F_RD0}, v{F_T+1}, 10, v{F_RD0}",
        "s_lshl_b32 s50, s3, 12", f"v_add_u32 v{F_RD0}, s50, v{F_RD0}", f"v_xor_b32 v{F_RD1}, 64, v{F_RD0}")

def f8_consts(a):
    T, TMP = F_T, F_TMP
    XS, XB = T, T+1
    a.e(f"v_cvt_f32_u32 v{XS}, v{F_M}", f"v_mul_f32 v{XS}, {f32hex(1/32)}, v{XS}",
        f"v_cvt_f32_u32 v{T+2}, v{F_G}", f"v_mul_f32 v{T+2}, 4.0, v{T+2}",
        f"v_mul_f32 v{XB}, v{T+2}, v{XS}")
    a.e(f"v_and_b32 v{F_MM}, 1, v{F_M}", f"v_mul_u32_u24 v{F_MM}, 0x8000, v{F_MM}",
        f"v_lshl_or_b32 v{F_MM}, v{F_MM}, 16, v{F_MM}", "s_mov_b32 s50, 0x80008000")
    for i in range(4):
        x = TMP; cs = TMP+1; sn = TMP+2; x2 = TMP+3; cs2 = TMP+4; sn2 = TMP+5
        a.e(f"v_fmamk_f32 v{x}, v{XS}, {f32hex(float(i))}, v{XB}" if i else f"v_mov_b32 v{x}, v{XB}")
        a.e(f"v_add_f32 v{x2}, v{x}, v{x}")
        a.e(f"v_cos_f32 v{cs}, v{x}", f"v_sin_f32 v{sn}, v{x}", f"v_cos_f32 v{cs2}, v{x2}", f"v_sin_f32 v{sn2}, v{x2}")
        a.e(f"v_cvt_pk_bf16_f32 v{F32RE+i}, v{cs}, v{sn}", f"v_cvt_pk_bf16_f32 v{F32IM+i}, -v{sn}, v{cs}",
            f"v_cvt_pk_bf16_f32 v{F16RE+i}, v{cs2}, v{sn2}", f"v_cvt_pk_bf16_f32 v{F16IM+i}, -v{sn2}, v{cs2}")
    for base in (F32RE, F32IM):
        for i in range(4):
            a.e(f"v_xor_b32 v{base+4+i}, v{F_MM}, v{base+i}")
        for t in range(2):
            for i in range(4):
                src = base+4*t+i
                if i & 1: a.e(f"v_xor_b32 v{base+8+4*t+i}, s50, v{src}")
                else:     a.e(f"v_mov_b32 v{base+8+4*t+i}, v{src}")
    a.e(f"v_bfe_u32 v{TMP}, v1, 3, 1", "s_lshl_b32 s50, s3, 1", f"v_add_u32 v{TMP}, s50, v{TMP}",
        f"v_cvt_f32_u32 v{TMP}, v{TMP}", f"v_mul_f32 v{TMP}, {f32hex(4/512)}, v{TMP}")
    for r in range(4):
        a.e(f"v_add_f32 v{TMP+4+r}, {f32hex(float(r)) if r else 0}, v{T+2}")
    for aa in range(4):
        a.e(f"v_add_f32 v{TMP+1}, {f32hex(aa/512) if aa else 0}, v{TMP}")
        for r in range(4):
            a.e(f"v_mul_f32 v{T+3+(r&1)}, v{TMP+1}, v{TMP+4+r}",
                f"v_cos_f32 v{F_TWC+4*aa+r}, v{T+3+(r&1)}", f"v_sin_f32 v{F_TWS+4*aa+r}, v{T+3+(r&1)}")

def f8_run(a, SIN, SOUT, ldmod, stmod):
    TMP = F_TMP
    for aa in range(4):
        for i in range(4):
            a.e(f"buffer_load_dword v{F_IN+4*aa+i}, v{F_IN0}, s[{SIN}:{SIN+3}], s{SI_OFF+4*aa+i} offen {ldmod}")
    fstamp(a, 3)
    for aa in range(4):
        a.e(f"s_waitcnt vmcnt({12-4*aa})")
        a.e(f"v_mfma_f32_16x16x32_bf16 {v(F_DRE+4*aa,4)}, {v(F16RE,4)}, {v(F_IN+4*aa,4)}, 0",
            f"v_mfma_f32_16x16x32_bf16 {v(F_DIM+4*aa,4)}, {v(F16IM,4)}, {v(F_IN+4*aa,4)}, 0")
    fstamp(a, 1)
    for aa in range(4):
        for p in range(2):
            re, im = F_DRE+4*aa+2*p, F_DIM+4*aa+2*p
            tc, ts = F_TWC+4*aa+2*p, F_TWS+4*aa+2*p
            t0, t1 = TMP+4*p, TMP+4*p+2
            a.e(f"v_pk_mul_f32 {v(t0,2)}, {v(re,2)}, {v(tc,2)}",
                f"v_pk_mul_f32 {v(t1,2)}, {v(im,2)}, {v(tc,2)}",
                f"v_pk_fma_f32 {v(t0,2)}, {v(im,2)}, {v(ts,2)}, {v(t0,2)}",
                f"v_pk_fma_f32 {v(t1,2)}, {v(re,2)}, {v(ts,2)}, {v(t1,2)} neg_lo:[1,0,0] neg_hi:[1,0,0]")
            for e in range(2):
                r = 2*p+e
                a.e(f"v_cvt_pk_bf16_f32 v{F_P+4*r+aa}, v{t0+e}, v{t1+e}")
    for r in range(4):
        a.e(f"ds_write_b128 v{F_WR}, {v(F_P+4*r,4)} offset:{r*1024}")
    a.e("s_waitcnt lgkmcnt(0)")
    fstamp(a, 8)
    a.e("s_barrier")
    fstamp(a, 9)
    for b in range(2):
        a.e(f"ds_read_b128 {v(F_IN+8*b,4)}, v{F_RD0} offset:{b*2048}",
            f"ds_read_b128 {v(F_IN+8*b+4,4)}, v{F_RD1} offset:{b*2048}")
    for b in range(2):
        a.e(f"s_waitcnt lgkmcnt({2-2*b})")
        for t in range(2):
            for h in range(2):
                for (D_, F_) in ((F_DRE, F32RE), (F_DIM, F32IM)):
                    d = D_+8*b+4*h
                    c = "0" if t == 0 else v(d, 4)
                    a.e(f"v_mfma_f32_16x16x32_bf16 {v(d,4)}, {v(F_IN+8*b+4*t,4)}, {v(F_+8*h+4*t,4)}, {c}")
    fstamp(a, 10)
    for b in range(2):
        for h in range(2):
            idx = 8*b+4*h
            for r in range(4):
                a.e(f"v_cvt_pk_bf16_f32 v{F_P+idx+r}, v{F_DRE+idx+r}, -v{F_DIM+idx+r}")
            a.e(f"buffer_store_dwordx4 {v(F_P+idx,4)}, v{F_OUTOFF}, s[{SOUT}:{SOUT+3}], s{SO_LIST[2*b+h]} offen {stmod}")

IDX, G_, VG, VGW, VRR, VHR, VST, VW = 2, 3, 6, 7, 8, 12, 13, 14
CRE, CIM, TWC, TWS, WR, WI, ARE, AIM, DF, GA, HRE, HIM, GB, TMP = 16, 32, 48, 64, 80, 96, 112, 128, 144, 160, 164, 168, 172, 188
W2R, W2I, SP, PF, PF2 = 204, 220, 236, 248, 252
LW = 32768; LSC = 16384; LW2 = 49152

def w_dma(a, SWR, SWI, s_rowoff, s_mirroff, s_ldsbase, vlane16):
    a.e(f"s_mov_b32 m0, s{s_ldsbase}", f"buffer_load_dwordx4 v{vlane16}, s[{SWR}:{SWR+3}], s{s_rowoff} offen lds" + NT())
    a.e(f"s_add_u32 s93, s{s_ldsbase}, 1024", "s_mov_b32 m0, s93", f"buffer_load_dwordx4 v{vlane16}, s[{SWI}:{SWI+3}], s{s_rowoff} offen lds" + NT())
    a.e(f"s_add_u32 s92, s{s_mirroff}, 2")
    a.e(f"s_add_u32 s93, s{s_ldsbase}, 2048", "s_mov_b32 m0, s93", f"buffer_load_dwordx4 v{vlane16}, s[{SWR}:{SWR+3}], s92 offen lds" + NT())
    a.e(f"s_add_u32 s93, s{s_ldsbase}, 3072", "s_mov_b32 m0, s93", f"buffer_load_dwordx4 v{vlane16}, s[{SWI}:{SWI+3}], s92 offen lds" + NT())

def pf_loads(a, SWR, SWI, s_rowoff, s_mirroff, dst, vt):
    a.e(f"v_mov_b32 v{vt}, s{s_mirroff}", f"v_mov_b32 v{vt+1}, s{s_rowoff}", f"v_add_u32 v{vt+1}, 1024, v{vt+1}")
    a.e(f"buffer_load_short_d16_hi v{dst}, v{vt}, s[{SWR}:{SWR+3}], 0 offen",
        f"buffer_load_short_d16_hi v{dst+1}, v{vt}, s[{SWI}:{SWI+3}], 0 offen",
        f"buffer_load_short_d16_hi v{dst+2}, v{vt+1}, s[{SWR}:{SWR+3}], 0 offen",
        f"buffer_load_short_d16_hi v{dst+3}, v{vt+1}, s[{SWI}:{SWI+3}], 0 offen")

def w_lds_reads(a, vlo, vhi, dr, di):
    for (dst, o) in ((dr, 0), (di, 1024)):
        for r in range(16):
            e = eidx(r)
            if r < 8: a.e(f"ds_read_u16_d16_hi v{dst+r}, v{vlo} offset:{o+64*e}")
            else:     a.e(f"ds_read_u16_d16_hi v{dst+r}, v{vhi} offset:{o+64*(27-e)}")

def fix_w(a, dr, di, pf):
    a.e("v_cmp_eq_u32 vcc, 0, v1")
    for (r, o) in ((0, 0), (8, 2)):
        a.e(f"v_add_f32 v{TMP}, v{dr+r}, v{pf+o}", f"v_mul_f32 v{TMP}, 0.5, v{TMP}",
            f"v_sub_f32 v{TMP+1}, v{di+r}, v{pf+o+1}", f"v_mul_f32 v{TMP+1}, 0.5, v{TMP+1}",
            f"v_cndmask_b32 v{dr+r}, v{dr+r}, v{TMP}, vcc", f"v_cndmask_b32 v{di+r}, v{di+r}, v{TMP+1}, vcc")

def fft1024(a, mid=None):
    for t in range(4):
        c0 = "0" if t == 0 else v(ARE, 16); c1 = "0" if t == 0 else v(AIM, 16)
        a.e(f"v_mfma_f32_32x32x16_bf16 {v(ARE,16)}, {v(DF+4*t,4)}, {v(CRE+4*t,4)}, {c0}",
            f"v_mfma_f32_32x32x16_bf16 {v(AIM,16)}, {v(DF+4*t,4)}, {v(CIM+4*t,4)}, {c1}")
    for p in range(8):
        re, im, tc, ts = ARE+2*p, AIM+2*p, TWC+2*p, TWS+2*p
        t0 = TMP+4*(p & 1); t1 = t0+2
        a.e(f"v_pk_mul_f32 {v(t0,2)}, {v(re,2)}, {v(tc,2)}",
            f"v_pk_mul_f32 {v(t1,2)}, {v(im,2)}, {v(tc,2)}",
            f"v_pk_fma_f32 {v(t0,2)}, {v(im,2)}, {v(ts,2)}, {v(t0,2)}",
            f"v_pk_fma_f32 {v(t1,2)}, {v(re,2)}, {v(ts,2)}, {v(t1,2)} neg_lo:[1,0,0] neg_hi:[1,0,0]")
        for e in range(2):
            a.e(f"v_cvt_pk_bf16_f32 v{DF+2*p+e}, v{t0+e}, v{t1+e}")
    for t in range(4):
        if mid and t == 1: mid()
        c0 = "0" if t == 0 else v(ARE, 16); c1 = "0" if t == 0 else v(AIM, 16)
        a.e(f"v_mfma_f32_32x32x16_bf16 {v(ARE,16)}, {v(CRE+4*t,4)}, {v(DF+4*t,4)}, {c0}",
            f"v_mfma_f32_32x32x16_bf16 {v(AIM,16)}, {v(CIM+4*t,4)}, {v(DF+4*t,4)}, {c1}")

def a2_consts(a, sT):
    a.e(f"v_and_b32 v{IDX}, 31, v1", f"v_lshrrev_b32 v{G_}, 5, v1")
    XS, XB = TMP, TMP+1
    a.e(f"v_cvt_f32_u32 v{TMP+2}, v{IDX}", f"v_cvt_f32_u32 v{TMP+3}, v{G_}", f"v_mul_f32 v{TMP+3}, 4.0, v{TMP+3}",
        f"v_mul_f32 v{XS}, {f32hex(1/32)}, v{TMP+2}", f"v_mul_f32 v{XB}, v{TMP+3}, v{XS}")
    a.e(f"v_and_b32 v{TMP+4}, 1, v{IDX}", f"v_mul_u32_u24 v{TMP+4}, 0x8000, v{TMP+4}", f"v_lshl_or_b32 v{TMP+4}, v{TMP+4}, 16, v{TMP+4}")
    for t in range(2):
        for i in range(4):
            c = float(8*t+i); x = TMP+5+3*(i & 1)
            a.e(f"v_fmamk_f32 v{x}, v{XS}, {f32hex(c)}, v{XB}" if c else f"v_mov_b32 v{x}, v{XB}")
            a.e(f"v_cos_f32 v{x+1}, v{x}", f"v_sin_f32 v{x+2}, v{x}")
            a.e(f"v_cvt_pk_bf16_f32 v{CRE+4*t+i}, v{x+1}, v{x+2}", f"v_cvt_pk_bf16_f32 v{CIM+4*t+i}, -v{x+2}, v{x+1}")
    for base in (CRE, CIM):
        for i in range(8):
            a.e(f"v_xor_b32 v{base+8+i}, v{TMP+4}, v{base+i}")
    a.e(f"v_mul_f32 v{XS}, {f32hex(1/1024)}, v{TMP+2}", f"v_mul_f32 v{XB}, v{TMP+3}, v{XS}")
    for r in range(16):
        c = float(eidx(r)); x = TMP+5+(r & 1)
        a.e(f"v_fmamk_f32 v{x}, v{XS}, {f32hex(c)}, v{XB}" if c else f"v_mov_b32 v{x}, v{XB}")
        a.e(f"v_cos_f32 v{TWC+r}, v{x}", f"v_sin_f32 v{TWS+r}, v{x}")
    LO, HI, Q, AV, XA0, XA1, E0, E1 = TMP, TMP+1, TMP+2, TMP+3, TMP+4, TMP+5, TMP+6, TMP+7
    JF, KEY, T2, PO, PAR, N16, G4, CS = [TMP+8+i for i in range(8)]
    Lspec, Ldone = newlbl("ghspec"), newlbl("ghdone")
    a.e(f"v_and_b32 v{LO}, 3, v{IDX}", f"v_bfe_u32 v{HI}, v{IDX}, 2, 2")
    a.e(f"v_and_b32 v{N16}, 15, v1", f"v_lshrrev_b32 v{G4}, 4, v1")
    a.e(f"s_cmp_eq_u32 s{sT}, 0", f"s_cbranch_scc1 {Lspec}")
    a.e(f"v_cvt_f32_u32 v{T2}, s{sT}", f"v_cvt_f32_u32 v{JF}, v{HI}", f"v_fmamk_f32 v{JF}, v{JF}, {f32hex(512.0)}, v{T2}",
        f"v_mul_f32 v{JF}, {f32hex(1/2048)}, v{JF}",
        f"v_cvt_f32_u32 v{XA0}, v{G_}", f"v_add_f32 v{XA0}, v{XA0}, v{XA0}", f"v_add_f32 v{XA1}, 1.0, v{XA0}",
        f"v_mul_f32 v{XA0}, v{XA0}, v{JF}", f"v_mul_f32 v{XA1}, v{XA1}, v{JF}",
        f"v_lshlrev_b32 v{Q}, 3, v{LO}", "s_mov_b32 s50, 0x4631914C", f"v_lshrrev_b32 v{Q}, v{Q}, s50",
        f"v_mov_b32 v{AV}, 0.5", f"v_cmp_gt_u32 vcc, 16, v{IDX}", f"v_cndmask_b32 v{AV}, 0, v{AV}, vcc")
    for jj2 in range(4):
        for e in range(2):
            jj = 2*jj2+e
            xa = XA1 if jj >> 2 else XA0
            a.e(f"v_bfe_u32 v{E0+e}, v{Q}, {2*(jj&3)}, 2", f"v_cvt_f32_u32 v{E0+e}, v{E0+e}",
                f"v_fmamk_f32 v{E0+e}, v{E0+e}, {f32hex(0.25)}, v{xa}", f"v_cos_f32 v{E0+e}, v{E0+e}",
                f"v_mul_f32 v{E0+e}, v{E0+e}, v{AV}")
        a.e(f"v_cvt_pk_bf16_f32 v{GA+jj2}, v{E0}, v{E1}")
    a.e(f"v_bfe_u32 v{HI}, v{N16}, 1, 2", f"v_cvt_f32_u32 v{KEY}, v{HI}", f"v_mul_f32 v{KEY}, {f32hex(1/2048)}, v{KEY}",
        f"v_and_b32 v{JF}, 1, v{G4}", f"v_cvt_f32_u32 v{JF}, v{JF}", f"v_fmamk_f32 v{JF}, v{JF}, {f32hex(1024.0)}, v{T2}",
        f"v_add_f32 v{XA1}, {f32hex(512.0)}, v{JF}", f"v_mul_f32 v{XA0}, v{JF}, v{KEY}", f"v_mul_f32 v{XA1}, v{XA1}, v{KEY}",
        f"v_lshrrev_b32 v{CS}, 1, v{G4}", f"v_lshrrev_b32 v{AV}, 3, v{N16}", f"v_cmp_eq_u32 vcc, v{CS}, v{AV}",
        f"v_mov_b32 v{AV}, {f32hex(2.0**-21)}", f"v_cndmask_b32 v{AV}, 0, v{AV}, vcc",
        f"v_and_b32 v{PO}, 1, v{N16}")
    for part, Hd in ((0, HRE), (1, HIM)):
        w0, w1 = (0x1C, 0xBC) if part == 0 else (0x61, 0x6B)
        a.e(f"v_mov_b32 v{Q}, {w0}", f"v_mov_b32 v{PAR}, {w1}", f"v_cmp_eq_u32 vcc, 1, v{PO}", f"v_cndmask_b32 v{Q}, v{Q}, v{PAR}, vcc")
        for jj2 in range(4):
            for e in range(2):
                jj = 2*jj2+e
                xa = XA1 if jj >> 2 else XA0
                a.e(f"v_bfe_u32 v{E0+e}, v{Q}, {2*(jj&3)}, 2", f"v_cvt_f32_u32 v{E0+e}, v{E0+e}",
                    f"v_fmamk_f32 v{E0+e}, v{E0+e}, {f32hex(0.25)}, v{xa}", f"v_cos_f32 v{E0+e}, v{E0+e}",
                    f"v_mul_f32 v{E0+e}, v{E0+e}, v{AV}")
            a.e(f"v_cvt_pk_bf16_f32 v{Hd+jj2}, v{E0}, v{E1}")
    a.e(f"s_branch {Ldone}")
    a.label(Lspec)
    a.e(f"v_and_b32 v{PO}, 1, v{LO}", f"v_lshrrev_b32 v{PAR}, 1, v{LO}")
    a.e(f"v_lshlrev_b32 v{JF}, 2, v{HI}", "s_mov_b32 s50, 0x3120", f"v_lshrrev_b32 v{JF}, v{JF}, s50", f"v_and_b32 v{JF}, 15, v{JF}",
        f"v_lshlrev_b32 v{JF}, 8, v{JF}", f"v_lshlrev_b32 v{T2}, 10, v{PO}",
        f"v_cmp_eq_u32 vcc, 0, v{HI}", f"v_cndmask_b32 v{JF}, v{JF}, v{T2}, vcc", f"v_mov_b32 v{T2}, 0",
        f"v_cndmask_b32 v{Q}, v{PO}, v{T2}, vcc",
        f"v_cvt_f32_u32 v{JF}, v{JF}", f"v_mul_f32 v{JF}, {f32hex(1/2048)}, v{JF}",
        f"v_cvt_f32_u32 v{Q}, v{Q}", f"v_mul_f32 v{Q}, {f32hex(0.25)}, v{Q}",
        f"v_cvt_f32_u32 v{XA0}, v{G_}", f"v_add_f32 v{XA0}, v{XA0}, v{XA0}", f"v_add_f32 v{XA1}, 1.0, v{XA0}",
        f"v_fma_f32 v{XA0}, v{XA0}, v{JF}, v{Q}", f"v_fma_f32 v{XA1}, v{XA1}, v{JF}, v{Q}",
        f"v_cos_f32 v{XA0}, v{XA0}", f"v_cos_f32 v{XA1}, v{XA1}",
        f"v_lshrrev_b32 v{KEY}, 1, v{HI}", f"v_lshl_add_u32 v{KEY}, v{KEY}, 1, v{PAR}",
        f"v_lshrrev_b32 v{T2}, 4, v{IDX}", f"v_lshl_add_u32 v{KEY}, v{T2}, 2, v{KEY}", f"v_mov_b32 v{T2}, 0")
    for jj2 in range(4):
        for e in range(2):
            jj = 2*jj2+e
            xa = XA1 if jj >> 2 else XA0
            a.e(f"v_cmp_eq_u32 vcc, {jj&3}, v{KEY}", f"v_cndmask_b32 v{E0+e}, v{T2}, v{xa}, vcc")
        a.e(f"v_cvt_pk_bf16_f32 v{GA+jj2}, v{E0}, v{E1}")
    SAF, GS = JF, PAR
    a.e(f"v_bfe_u32 v{HI}, v{N16}, 1, 2", f"v_cvt_f32_u32 v{SAF}, v{HI}", f"v_mul_f32 v{SAF}, {f32hex(1/2048)}, v{SAF}",
        f"v_and_b32 v{GS}, 1, v{G4}", f"v_and_b32 v{PO}, 1, v{N16}",
        f"v_lshrrev_b32 v{CS}, 1, v{G4}", f"v_lshrrev_b32 v{T2}, 3, v{N16}",
        f"v_cmp_eq_u32 s[44:45], v{CS}, v{T2}", f"v_cmp_eq_u32 s[46:47], v{GS}, v{PO}", "s_and_b64 s[44:45], s[44:45], s[46:47]",
        f"v_cmp_eq_u32 s[46:47], 0, v{GS}")
    for part, Hd in ((0, HRE), (1, HIM)):
        for jj in range(8):
            sl, par, pi = jj >> 2, (jj >> 1) & 1, jj & 1
            e = E0 + (jj & 1)
            if par != part:
                a.e(f"v_mov_b32 v{e}, 0")
            else:
                if sl == 0:
                    j0, q0, a0 = 1024.0*pi, 0.5*pi, 2.0**-21
                    j1, q1, a1 = 256.0, 0.75*pi, 2.0**-20
                else:
                    j0, q0, a0 = 512.0, 0.75*pi, 2.0**-20
                    j1, q1, a1 = 768.0, 0.75*pi, 2.0**-20
                def sel(dst, x0, x1):
                    a.e(f"v_mov_b32 v{dst}, {f32hex(x1)}", f"v_mov_b32 v{AV}, {f32hex(x0)}", f"v_cndmask_b32 v{dst}, v{dst}, v{AV}, s[46:47]")
                sel(XA0, j0, j1); sel(XA1, q0 + 0.5*part, q1 + 0.5*part)
                a.e(f"v_fma_f32 v{XA0}, v{XA0}, v{SAF}, v{XA1}", f"v_cos_f32 v{XA0}, v{XA0}")
                sel(XA1, a0, a1)
                a.e(f"v_mul_f32 v{XA0}, v{XA0}, v{XA1}", f"v_mov_b32 v{XA1}, 0", f"v_cndmask_b32 v{e}, v{XA1}, v{XA0}, s[44:45]")
            if jj & 1: a.e(f"v_cvt_pk_bf16_f32 v{Hd+(jj>>1)}, v{E0}, v{E1}")
    a.label(Ldone)
    a.e("s_nop 1")


BT_S0, BT_S1, BT_S2, BT_S3 = 52, 56, 60, 64
BT_SOFF = ["0", "s68", "s69", "s70", "s71", "s76", "s77", "s78"]
BT_ROW, BT_CH, BT_MASK = 48, 49, 50
def bt_setup(a):
    a.e(f"s_lshl_b32 s{BT_ROW}, s{sSUBT}, 7", "s_lshl_b32 s51, s3, 5", f"s_add_u32 s{BT_ROW}, s{BT_ROW}, s51", f"s_lshl_b32 s{BT_CH}, s{sCBKT}, 6")
    for i in range(1, 8): a.e(f"s_mov_b32 {BT_SOFF[i]}, {4096*i}")
    a.e(f"s_mov_b32 s{BT_MASK}, 0xffff0000")

def scratch_addr(a, vdst, vcg, vrg):
    a.e(f"s_lshl_b32 s51, s{sSUBT}, 7", "s_lshr_b32 s92, s3, 1", "s_add_u32 s51, s51, s92", "s_lshl_b32 s51, s51, 12",
        f"s_lshl_b32 s92, s{sCBKT}, 7", "s_add_u32 s51, s51, s92", "s_and_b32 s92, s3, 1", "s_lshl_b32 s92, s92, 6", "s_add_u32 s51, s51, s92",
        "s_add_u32 s51, s51, 2048",
        f"v_lshlrev_b32 v{vdst}, 15, v{vcg}", f"v_lshl_add_u32 v{vdst}, v{vrg}, 4, v{vdst}", f"v_add_u32 v{vdst}, s51, v{vdst}")
SCR_SOFF = ["0", "s69", "s71", "s77"]

def emit_B1(a, shadow=None, hook=None, post_mode=None, after_stores=None, nafter=0):
    SK, SV, SSH, SKVT = BT_S0, BT_S1, BT_S2, BT_S3
    srd(a, SK, P_K, P_K+1, 4*MB); srd(a, SV, P_V, P_V+1, 4*MB); srd(a, SSH, P_SHK, P_SHK+1, 8192); srd(a, SKVT, P_OUT, P_OUT+1, 8*MB)
    bt_setup(a)
    soff = BT_SOFF; M = BT_MASK
    CG, RG, S0, CH0, VOFF, VH, VST, VSH = 2, 3, 4, 5, 6, 7, 8, 9
    a.e(f"v_and_b32 v{CG}, 15, v1", f"v_lshrrev_b32 v{RG}, 4, v1",
        f"v_lshl_add_u32 v{S0}, v{RG}, 3, s{BT_ROW}", f"v_lshl_add_u32 v{CH0}, v{CG}, 2, s{BT_CH}",
        f"v_lshlrev_b32 v{VOFF}, 11, v{S0}", f"v_lshl_add_u32 v{VOFF}, v{CH0}, 1, v{VOFF}",
        f"v_subrev_u32 v{VH}, 6144, v{VOFF}",
        f"v_lshlrev_b32 v{VSH}, 3, v{CH0}")
    scratch_addr(a, VST, CG, RG)
    KR, VR, SHR, KF, SHF, KV, TM, PK = 16, 38, 54, 64, 108, 124, 156, 16
    if OPT["bactwait"] and OPT["b1all"]:
        Lw = newlbl("bw")
        a.e(f"s_cmp_eq_u32 s{sACT}, 0", f"s_cbranch_scc1 {Lw}", "s_waitcnt lgkmcnt(0)")
        a.label(Lw)
    if OPT["earlypub"]:
        Lp = newlbl("epub")
        a.e("s_cmp_lg_u32 s3, 0", f"s_cbranch_scc1 {Lp}")
        fin_epoch(a); loc_publish(a)
        a.label(Lp)
    a.e(f"buffer_load_dwordx4 {v(SHR,4)}, v{VSH}, s[{SSH}:{SSH+3}], 0 offen",
        f"buffer_load_dwordx4 {v(SHR+4,4)}, v{VSH}, s[{SSH}:{SSH+3}], 0 offen offset:16")
    for i in range(3):
        a.e(f"buffer_load_dwordx2 {v(KR+2*i,2)}, v{VH}, s[{SK}:{SK+3}], {soff[i>>1]} offen" + (" offset:2048" if i & 1 else "") + (NT() if OPT["ntk"] else ""))
    for i in range(8):
        a.e(f"buffer_load_dwordx2 {v(KR+6+2*i,2)}, v{VOFF}, s[{SK}:{SK+3}], {soff[i>>1]} offen" + (" offset:2048" if i & 1 else "") + (NT() if OPT["ntk"] else ""))
    for i in range(8):
        a.e(f"buffer_load_dwordx2 {v(VR+2*i,2)}, v{VOFF}, s[{SV}:{SV+3}], {soff[i>>1]} offen" + (" offset:2048" if i & 1 else "") + NT())
    stamp(a, 2)
    if OPT["earlypub"]:
        Lq = newlbl("epub2")
        a.e("s_cmp_eq_u32 s3, 0", f"s_cbranch_scc1 {Lq}")
        fin_epoch(a)
        a.label(Lq)
    else:
        fin_epoch(a)
        loc_publish(a)
    if shadow: shadow()
    def wv(n, extra):
        if extra and not OPT["earlypub"]:
            L = newlbl("wv")
            a.e(f"s_cbranch_scc1 {L}", f"s_waitcnt vmcnt({n})")
            a.label(L)
            a.e(f"s_waitcnt vmcnt({n+extra})")
        elif extra == 2 and OPT["earlypub"]:
            L = newlbl("wv")
            a.e(f"s_cbranch_scc1 {L}", f"s_waitcnt vmcnt({n})")
            a.label(L)
            a.e(f"s_waitcnt vmcnt({n+1})")
        else:
            a.e(f"s_waitcnt vmcnt({n})")
    a.e("s_cmp_eq_u32 s3, 0")
    wv(19, 1)
    for ch in range(4):
        for j in range(4):
            src = SHR + 2*ch + (j >> 1)
            if j & 1: a.e(f"v_and_b32 v{SHF+4*j+ch}, s{M}, v{src}")
            else:     a.e(f"v_lshlrev_b32 v{SHF+4*j+ch}, 16, v{src}")
    for i in range(11):
        wv(18-i, 1)
        for hf in range(2):
            a.e(f"v_lshlrev_b32 v{KF+4*i+2*hf}, 16, v{KR+2*i+hf}", f"v_and_b32 v{KF+4*i+2*hf+1}, s{M}, v{KR+2*i+hf}")
    loc_issue(a, 10)
    a.e("s_cmp_eq_u32 s3, 0")
    for i in range(8):
        wv(7-i, 2)
        if i == 7 and hook: hook()
        for hf in range(2):
            a.e(f"v_lshlrev_b32 v{TM+2*hf}, 16, v{VR+2*i+hf}", f"v_and_b32 v{TM+2*hf+1}, s{M}, v{VR+2*i+hf}")
        for hf in range(2):
            acc = KV+4*i+2*hf
            a.e(f"v_pk_mul_f32 {v(acc,2)}, {v(KF+4*(i+3)+2*hf,2)}, {v(SHF+2*hf,2)}")
            for j in range(1, 4):
                a.e(f"v_pk_fma_f32 {v(acc,2)}, {v(KF+4*(i+3-j)+2*hf,2)}, {v(SHF+4*j+2*hf,2)}, {v(acc,2)}")
            a.e(f"v_pk_mul_f32 {v(acc,2)}, {v(acc,2)}, {v(TM+2*hf,2)}")
    stamp(a, 3)
    for ch in range(4):
        for m in range(4):
            a.e(f"v_cvt_pk_bf16_f32 v{PK+4*ch+m}, v{KV+4*(7-2*m)+ch}, v{KV+4*(6-2*m)+ch}")
    sts = [f"buffer_store_dwordx4 {v(PK+4*ch,4)}, v{VST}, s[{SKVT}:{SKVT+3}], {SCR_SOFF[ch]} offen" for ch in range(4)]
    if OPT["twoflag"]:
        for l in sts: a.e(l + (" nt" if OPT["ntscr"] else ""))
        stamp(a, 4)
        a.e(f"s_lshl_b32 s51, s{sCBKT}, 4", f"s_add_u32 s51, s51, s{sSUBT}", f"s_lshl_b32 s51, s51, {FB()}", f"s_add_u32 s92, s51, {SY_B1}")
        La = newlbl("siga")
        a.e("s_waitcnt vmcnt(0)", "s_barrier", "s_cmp_lg_u32 s3, 0", f"s_cbranch_scc1 {La}",
            "v_mov_b32 v14, s92", f"v_mov_b32 v15, s{S_TGT}", "s_mov_b64 exec, 1",
            f"buffer_store_dword v15, v14, s[{S_SYN}:{S_SYN+3}], 0 offen", "s_mov_b64 exec, -1")
        a.label(La)
        if after_stores: after_stores()
        loc_resolve(a, 10, nafter=nafter + 1 if after_stores else 1)
        Lo = newlbl("opt")
        a.e(f"s_cmp_lg_u32 s{sLOC}, 0", f"s_cbranch_scc1 {Lo}", "s_waitcnt vmcnt(0)")
        for l in sts: a.e(l + " sc1")
        a.e(f"s_add_u32 s51, s51, {SY_B1B}")
        signal(a, 51, 14)
        a.label(Lo)
        return
    if OPT["optst"]:
        for l in sts: a.e(l)
        if after_stores: after_stores()
        loc_resolve(a, 10, nafter=nafter)
        Lo = newlbl("opt")
        a.e(f"s_cmp_lg_u32 s{sLOC}, 0", f"s_cbranch_scc1 {Lo}", "s_waitcnt vmcnt(0)")
        for l in sts: a.e(l + " sc1")
        a.e("s_waitcnt vmcnt(0)")
        a.label(Lo)
    else:
        loc_resolve(a, 10)
        dual_store(a, sts)
    stamp(a, 4)
    a.e(f"s_lshl_b32 s51, s{sCBKT}, 4", f"s_add_u32 s51, s51, s{sSUBT}", f"s_lshl_b32 s51, s51, {FB()}", f"s_add_u32 s51, s51, {SY_B1}")
    signal(a, 51, 14, nafter=nafter, bloc=True)

B3_QR, B3_VQ, B3_VT, B3_VO = 208, 224, 225, 226
def emit_B3_pre(a):
    SQ, STT, SOUT = BT_S0, BT_S1, BT_S2
    srd(a, SQ, P_Q, P_Q+1, 4*MB); srd(a, SOUT, P_OUT, P_OUT+1, 8*MB)
    bt_setup(a)
    t = 227
    a.e(f"v_and_b32 v{t}, 15, v1", f"v_lshrrev_b32 v{t+1}, 4, v1",
        f"v_lshl_add_u32 v{t+1}, v{t+1}, 3, s{BT_ROW}", f"v_lshl_add_u32 v{t}, v{t}, 2, s{BT_CH}",
        f"v_lshlrev_b32 v{B3_VQ}, 11, v{t+1}", f"v_lshl_add_u32 v{B3_VQ}, v{t}, 1, v{B3_VQ}",
        f"v_lshlrev_b32 v{B3_VO}, 12, v{t+1}", f"v_lshl_add_u32 v{B3_VO}, v{t}, 1, v{B3_VO}", f"v_add_u32 v{B3_VO}, 2048, v{B3_VO}")
    a.e(f"v_and_b32 v{t}, 15, v1", f"v_lshrrev_b32 v{t+1}, 4, v1")
    scratch_addr(a, B3_VT, t, t+1)
    for i in range(8):
        a.e(f"buffer_load_dwordx2 {v(B3_QR+2*i,2)}, v{B3_VQ}, s[{SQ}:{SQ+3}], {BT_SOFF[i>>1]} offen" + (" offset:2048" if i & 1 else "") + NT())

def emit_B3(a):
    SQ, STT, SOUT = BT_S0, BT_S1, BT_S2
    soff = BT_SOFF; M = BT_MASK
    TR, TF, QF = 16, 48, 80
    a.e(f"s_mov_b32 s{M}, 0xffff0000")
    a.e(f"s_lshl_b32 s51, s{sCBKT}, {4+FB()}", f"s_add_u32 s51, s51, {SY_B2}",
        "v_and_b32 v12, 15, v1", f"v_lshlrev_b32 v12, {FB()}, v12", "v_add_u32 v12, s51, v12")
    a.e("s_waitcnt vmcnt(0)")
    for e in range(8):
        qf = QF + 4*e
        for hf in range(2):
            a.e(f"v_lshlrev_b32 v{qf+2*hf}, 16, v{B3_QR+2*e+hf}", f"v_and_b32 v{qf+2*hf+1}, s{M}, v{B3_QR+2*e+hf}")
    wait_flags(a, 12, 1, 13, 51)
    stamp(a, 10)
    for ch in range(4):
        a.e(f"buffer_load_dwordx4 {v(TR+4*ch,4)}, v{B3_VT}, s[{SOUT}:{SOUT+3}], {SCR_SOFF[ch]} offen" + LDL())
    for ch in range(4):
        a.e(f"s_waitcnt vmcnt({3-ch})")
        for e in range(8):
            src = TR+4*ch+(e >> 1)
            if e & 1: a.e(f"v_and_b32 v{TF+4*e+ch}, s{M}, v{src}")
            else:     a.e(f"v_lshlrev_b32 v{TF+4*e+ch}, 16, v{src}")
    a.e("s_barrier")
    for e in range(8):
        qf = QF + 4*e
        for hf in range(2):
            a.e(f"v_pk_mul_f32 {v(qf+2*hf,2)}, {v(qf+2*hf,2)}, {v(TF+4*e+2*hf,2)}")
        pk = 112+2*e
        for hf in range(2):
            a.e(f"v_cvt_pk_bf16_f32 v{pk+hf}, v{qf+2*hf}, v{qf+2*hf+1}")
        a.e(f"buffer_store_dwordx2 {v(pk,2)}, v{B3_VO}, s[{SOUT}:{SOUT+3}], {soff[e]} offen" + NTO())

def gen_A(a):
    ROLE[0] = 'A'
    SX, SI1, SWR, SWI, SI2, SOUT = 32, 36, 80, 84, 32, 36
    a.e(f"s_setprio {OPT['prioA']}") if OPT['prioA'] else None
    sT, sSA, sCB, sJ, sJM, sJP, sJQ, sTL = 40, 41, 42, 43, 72, 73, 74, 44
    def rows():
        srd(a, SI1, P_WS, P_WS+1, 4*MB, add=WS_I1)
        srd(a, SWR, P_WR, P_WR+1, WBYTES); srd(a, SWI, P_WI, P_WI+1, WBYTES)
        Lr = newlbl("reg")
        a.e("s_lshl_b32 s47, s3, 9", f"s_add_u32 s{sJ}, s{sT}, s47", f"s_mov_b32 s{sJP}, s{sT}", f"s_sub_u32 s{sJQ}, 512, s{sT}",
            f"s_cmp_lg_u32 s{sT}, 0", f"s_cbranch_scc1 {Lr}",
            f"s_mov_b32 s{sJQ}, 256", "s_lshl_b32 s47, s3, 2", "s_lshr_b32 s46, 0x3120, s47", "s_and_b32 s46, s46, 15", f"s_lshl_b32 s{sJ}, s46, 8")
        a.label(Lr)
        a.e(f"s_sub_u32 s{sJM}, 2048, s{sJ}", f"s_and_b32 s{sJM}, s{sJM}, 2047",
            f"s_mul_i32 s{sJ}, s{sJ}, 1026", f"s_mul_i32 s{sJM}, s{sJM}, 1026")
        a.e(f"s_or_b32 s75, s{sT}, s3")
    def wstage():
        a.e("v_lshlrev_b32 v243, 4, v1", "s_lshl_b32 s46, s3, 12", f"s_add_u32 s46, s46, {LW}")
        w_dma(a, SWR, SWI, sJ, sJM, 46, 243)
        pf_loads(a, SWR, SWI, sJ, sJM, PF, 244)
        if not OPT["spec2"]: wstage2()
    def wstage2():
        Ln = newlbl("now2")
        a.e("s_cmp_lg_u32 s75, 0", f"s_cbranch_scc1 {Ln}")
        a.e("v_lshlrev_b32 v243, 4, v1", f"s_mov_b32 s47, {1024*1026}", f"s_mov_b32 s46, {LW2}")
        w_dma(a, SWR, SWI, 47, 47, 46, 243)
        pf_loads(a, SWR, SWI, 47, 47, PF2, 244)
        a.label(Ln)
    a.e(f"s_mov_b32 s{sT}, s{sCU}")
    stamp(a, 0, True); stamp(a, 1)
    Lp1 = newlbl("nop1")
    a.e(f"s_cmp_eq_u32 s{sACT}, 0", f"s_cbranch_scc1 {Lp1}_in")
    if OPT["pA1a"] >= 0: a.e(f"s_setprio {OPT['pA1a']}")
    srd(a, SX, P_X, P_X+1, 4*MB)
    a.e(f"s_lshr_b32 s48, s{sT}, 4", f"s_and_b32 s49, s{sT}, 7",
        f"s_lshr_b32 s{sSA}, s48, 2", "s_bfe_u32 s50, s48, 0x10001", "s_lshl_b32 s50, s50, 3", "s_add_u32 s50, s50, s49",
        "s_lshl_b32 s50, s50, 1", "s_and_b32 s51, s48, 1", f"s_add_u32 s{sCB}, s50, s51",
        "s_lshl_b32 s48, s48, 3", f"s_add_u32 s{sTL}, s48, s49")
    fft512_addr(a, sSA, sCB)
    fft512_loads(a, SX, NT() if OPT["ntx"] else "")
    stamp(a, 12)
    rows()
    if OPT["spec2"]: wstage2()
    fft512_addr2(a, sSA, sCB, 2048, 8192)
    fft512_consts(a)
    fft512_compute(a, SI1, False, 0, "sc1", 2, hook=None if OPT["wlate"] else wstage)
    stamp(a, 4)
    a.e(f"s_lshl_b32 s48, s{sTL}, {FA()}", f"s_add_u32 s48, s48, {SY_A1}")
    fin_epoch(a)
    signal(a, 48, F_TMP)
    a.e(f"s_branch {Lp1}")
    a.label(f"{Lp1}_in")
    if OPT["pA1i"] >= 0: a.e(f"s_setprio {OPT['pA1i']}")
    stamp(a, 12)
    if OPT["b1all"]:
        rows()
        fin_epoch(a)
        if not OPT["wlate"]: wstage()
    else:
        emit_B1(a, shadow=rows, hook=None if OPT["wlate"] else wstage)
    a.label(Lp1)
    if OPT["pA1i"] >= 0 or OPT["pA1a"] >= 0: a.e(f"s_setprio {OPT['prioA']}")
    stamp(a, 5)
    if OPT["wlate"] == 2: wstage()
    srd(a, SI2, P_WS, P_WS+1, 4*MB, add=WS_I2)
    a2_consts(a, sT)
    a.e(f"v_lshl_add_u32 v{TMP}, v{G_}, 7, v{IDX}",
        "s_lshl_b32 s48, s3, 12", f"s_add_u32 s48, s48, {LW}",
        f"v_lshl_add_u32 v{VW}, v{TMP}, 1, s48",
        f"v_sub_u32 v{TMP+1}, {1023-32*27}, v{TMP}", f"s_add_u32 s49, s48, 2048", f"v_lshl_add_u32 v{VW+1}, v{TMP+1}, 1, s49")
    a.e(f"v_lshlrev_b32 v{VG}, 12, v{G_}", f"v_lshl_add_u32 v{VG}, v{IDX}, 2, v{VG}",
        "s_lshl_b32 s49, s3, 9",
        f"s_lshl_b32 s52, s{sJP}, 13", "s_add_u32 s52, s52, s49",
        f"s_lshl_b32 s53, s{sJQ}, 13", "s_add_u32 s53, s53, s49")
    a.e(f"v_lshlrev_b32 v{VGW}, 12, v{G_}", f"v_lshl_add_u32 v{VGW}, v{IDX}, 3, v{VGW}", "s_lshl_b32 s50, s3, 10", f"v_add_u32 v{VGW}, s50, v{VGW}",
        f"v_lshlrev_b32 v{VRR}, 9, v{G_}", f"v_lshl_add_u32 v{VRR}, v{IDX}, 2, v{VRR}", "s_lshl_b32 s51, s3, 12", f"v_add_u32 v{VRR}, s51, v{VRR}")
    for t in range(1, 4): a.e(f"v_add_u32 v{VRR+t}, {1024*t}, v{VRR}")
    a.e(f"v_lshrrev_b32 v{TMP}, 4, v1", f"v_and_b32 v{TMP+1}, 1, v{TMP}", f"v_lshlrev_b32 v{VHR}, 13, v{TMP+1}",
        f"v_lshrrev_b32 v{TMP+1}, 1, v{TMP}", f"v_lshl_add_u32 v{VHR}, v{TMP+1}, 7, v{VHR}",
        f"v_and_b32 v{TMP+1}, 15, v1", f"v_lshl_add_u32 v{VHR}, v{TMP+1}, 3, v{VHR}", f"v_add_u32 v{VHR}, s50, v{VHR}")
    a.e(f"v_and_b32 v{TMP+2}, 1, v{TMP+1}", f"v_mov_b32 v{TMP+3}, s52", f"v_mov_b32 v{TMP+4}, s53",
        f"v_cmp_eq_u32 vcc, 1, v{TMP+2}", f"v_cndmask_b32 v{VST}, v{TMP+3}, v{TMP+4}, vcc",
        f"v_bfe_u32 v{TMP+2}, v{TMP+1}, 1, 2", f"v_lshl_add_u32 v{VST}, v{TMP+2}, 11, v{VST}",
        f"v_lshrrev_b32 v{TMP+2}, 3, v{TMP+1}", f"v_lshl_add_u32 v{VST}, v{TMP+2}, 6, v{VST}",
        f"v_lshl_add_u32 v{VST}, v{TMP}, 4, v{VST}")
    a.e(f"v_lshlrev_b32 v{TMP}, {FA()}, v1", f"v_add_u32 v{TMP}, {SY_A1}, v{TMP}")
    stamp(a, 6)
    wait_flags(a, TMP, 2, TMP+1, 48)
    if OPT["yieldB"] == 1: a_state(a, sT, 1, TMP)
    stamp(a, 7)
    for u in range(4):
        for sl in range(2):
            for pq in range(2):
                a.e(f"buffer_load_dword v{GB+4*u+2*sl+pq}, v{VG}, s[{SI1}:{SI1+3}], s{52+pq} offen offset:{2048*sl+128*u} sc1")
    NWL = 0
    if OPT["wlate"] == 1:
        wstage(); NWL = 8
        if not OPT["spec2"]:
            Lsw = newlbl("spw")
            a.e("s_cmp_lg_u32 s75, 0", f"s_cbranch_scc1 {Lsw}", "s_waitcnt vmcnt(0)")
            a.label(Lsw)
    for rnd in range(2):
        a.e(f"s_waitcnt vmcnt({8-8*rnd+NWL})")
        if rnd == OPT.get("yat", 1) and OPT["yieldB"] == 3:
            a_state(a, sT, 1, 240)
        for uu in range(2):
            u = 2*rnd+uu
            a.e(f"v_mfma_f32_32x32x16_bf16 {v(ARE if uu == 0 else AIM,16)}, {v(GA,4)}, {v(GB+4*u,4)}, 0")
        for uu in range(2):
            u = 2*rnd+uu
            D = ARE if uu == 0 else AIM
            t = TMP+4*uu
            for h in range(2):
                a.e(f"v_cvt_pk_bf16_f32 v{t}, v{D+4*h}, v{D+4*h+1}", f"v_cvt_pk_bf16_f32 v{t+1}, v{D+4*h+2}, v{D+4*h+3}",
                    f"ds_write_b64 v{VGW}, {v(t,2)} offset:{256*u+8192*h}")
                t += 2
    a.e("s_waitcnt lgkmcnt(0)", "s_barrier")
    stamp(a, 8)
    if OPT["qA"] and not OPT["a3all"]:
        Lq = newlbl("noqA")
        a.e(f"s_cmp_lg_u32 s{sACT}, 0", f"s_cbranch_scc1 {Lq}")
        emit_B3_pre(a)
        a.label(Lq)
    for t in range(4):
        a.e(f"ds_read2_b32 {v(DF+4*t,2)}, v{VRR+t} offset0:0 offset1:32", f"ds_read2_b32 {v(DF+4*t+2,2)}, v{VRR+t} offset0:64 offset1:96")
    a.e("s_waitcnt lgkmcnt(0)")
    Lsp, Linv, Lfwd, Lpre = newlbl("special"), newlbl("inv"), newlbl("fwd"), newlbl("pre")
    sPASS = 45
    if OPT["spec2"]:
        a.e(f"s_mov_b32 s{sPASS}, 0", "s_cmp_lg_u32 s75, 0", f"s_cbranch_scc1 {Lpre}")
        for i in range(16): a.e(f"v_lshrrev_b32 v{GB+i}, 16, v{DF+i}", f"v_and_b32 v{DF+i}, 0xffff, v{DF+i}")
        a.label(Lpre)
    def wmid():
        Lk = newlbl("wskip")
        if OPT["spec2"]: a.e(f"s_cmp_lg_u32 s{sPASS}, 0", f"s_cbranch_scc1 {Lk}")
        if OPT["qA"] and not OPT["a3all"]:
            L1, L2 = newlbl("wa"), newlbl("wb")
            a.e(f"s_cmp_lg_u32 s{sACT}, 0", f"s_cbranch_scc1 {L1}", "s_waitcnt vmcnt(8)", f"s_branch {L2}")
            a.label(L1); a.e("s_waitcnt vmcnt(0)"); a.label(L2)
        else:
            a.e("s_waitcnt vmcnt(0)")
        w_lds_reads(a, VW, VW+1, WR, WI)
        a.label(Lk)
    if OPT["wlate"] == 1:
        a.label(Lfwd); a.e("s_nop 1")
        fft1024(a, mid=wmid)
    else:
        w_lds_reads(a, VW, VW+1, WR, WI)
        a.label(Lfwd); a.e("s_nop 1")
        fft1024(a)
    a.e("s_waitcnt lgkmcnt(0)")
    Lnf = newlbl("nofix")
    if OPT["spec2"]: a.e(f"s_cmp_lg_u32 s{sPASS}, 0", f"s_cbranch_scc1 {Lnf}")
    fix_w(a, WR, WI, PF)
    a.label(Lnf)
    a.e("s_cmp_eq_u32 s75, 0", f"s_cbranch_scc1 {Lsp}")
    for p in range(8):
        xr, xi, wr, wi = ARE+2*p, AIM+2*p, WR+2*p, WI+2*p
        t0 = TMP+4*(p & 1); t1 = t0+2
        n0 = " neg_lo:[1,0,0] neg_hi:[1,0,0]" if p < 4 else ""
        n1 = "" if p < 4 else " neg_lo:[1,0,0] neg_hi:[1,0,0]"
        a.e(f"v_pk_mul_f32 {v(t0,2)}, {v(xr,2)}, {v(wr,2)}", f"v_pk_mul_f32 {v(t1,2)}, {v(xi,2)}, {v(wr,2)}",
            f"v_pk_fma_f32 {v(t0,2)}, {v(xi,2)}, {v(wi,2)}, {v(t0,2)}{n0}",
            f"v_pk_fma_f32 {v(t1,2)}, {v(xr,2)}, {v(wi,2)}, {v(t1,2)}{n1}")
        for e in range(2):
            a.e(f"v_cvt_pk_bf16_f32 v{DF+2*p+e}, v{t0+e}, -v{t1+e}")
    a.label(Linv)
    a.e("s_nop 1")
    fft1024(a)
    for r in range(16):
        t = TMP + (r & 7)
        a.e(f"v_cvt_pk_bf16_f32 v{t}, v{ARE+r}, v{AIM+r}", f"ds_write_b32 v{VRR}, v{t} offset:{128*eidx(r)}")
    a.e("s_waitcnt lgkmcnt(0)", "s_barrier")
    if OPT["yieldB"]:
        Ly = newlbl("y0a")
        if OPT["y0"]: a.e(f"s_cmp_lg_u32 s{sT}, 0", f"s_cbranch_scc1 {Ly}")
        a_state(a, sT, 2, TMP)
        a.label(Ly)
    stamp(a, 9)
    for u in range(4):
        for sl in range(2):
            a.e(f"ds_read_b64 {v(GB+4*u+2*sl,2)}, v{VHR} offset:{4096*sl+256*u}")
    a.e("s_lshl_b32 s49, s3, 9")
    for u in range(4):
        a.e(f"s_waitcnt lgkmcnt({6-2*u})")
        a.e(f"v_mfma_f32_16x16x32_bf16 {v(ARE+4*u,4)}, {v(GB+4*u,4)}, {v(HRE,4)}, 0",
            f"v_mfma_f32_16x16x32_bf16 {v(AIM+4*u,4)}, {v(GB+4*u,4)}, {v(HIM,4)}, 0")
    for u in range(4):
        for r in range(4):
            a.e(f"v_cvt_pk_bf16_f32 v{DF+4*u+r}, v{ARE+4*u+r}, v{AIM+4*u+r}")
        a.e(f"buffer_store_dwordx4 {v(DF+4*u,4)}, v{VST}, s[{SI2}:{SI2+3}], 0 offen offset:{128*u} sc1")
    dstamp(a, 6); dpublish(a, sT)
    a.e(f"s_lshl_b32 s48, s{sT}, {FA()}", f"s_add_u32 s48, s48, {SY_A2}")
    signal(a, 48, TMP)
    stamp(a, 10)
    Lb3 = newlbl("b3")
    if OPT["a3all"]:
        srd(a, SOUT, P_OUT, P_OUT+1, 8*MB)
        a.e(f"s_lshr_b32 s48, s{sT}, 3", f"s_and_b32 s49, s{sT}, 7", f"s_lshr_b32 s{sSA}, s48, 3", "s_bfe_u32 s50, s48, 0x10002",
            "s_lshl_b32 s50, s50, 3", "s_add_u32 s50, s50, s49", "s_lshl_b32 s50, s50, 2", "s_and_b32 s51, s48, 3", f"s_add_u32 s{sCB}, s50, s51")
        f8_addr(a, sSA, sCB, 4096, 16384)
        f8_consts(a)
        a.e(f"v_lshlrev_b32 v{F_TMP}, {FA()}, v1", f"v_add_u32 v{F_TMP}, {SY_A2}, v{F_TMP}")
        wait_flags(a, F_TMP, 4, F_TMP+1, 48)
        stamp(a, 11)
        PHASE[0] = 3
        fstamp(a, 11)
        f8_run(a, SI2, SOUT, "sc1", NTO())
    else:
        a.e(f"s_cmp_eq_u32 s{sACT}, 0", f"s_cbranch_scc1 {Lb3}")
        srd(a, SOUT, P_OUT, P_OUT+1, 8*MB)
        fft512_addr(a, sSA, sCB)
        fft512_addr2(a, sSA, sCB, 4096, 16384)
        fft512_consts(a)
        a.e(f"v_lshlrev_b32 v{F_TMP}, {FA()}, v1", f"v_add_u32 v{F_TMP}, {SY_A2}, v{F_TMP}")
        wait_flags(a, F_TMP, 4, F_TMP+1, 48)
        stamp(a, 11)
        PHASE[0] = 3
        fstamp(a, 11)
        fft512_loads(a, SI2, "sc1")
        fstamp(a, 3)
        save = gen.PROF; gen.PROF = False
        fft512_compute(a, SOUT, True, 0, NTO(), 0)
        gen.PROF = save
    a.e("s_cmp_lg_u32 s75, 0", "s_cbranch_scc1 L_fin")
    Lb1, Lb2 = newlbl("bchk"), newlbl("bchkd")
    a.e("v_lshlrev_b32 v2, 6, v1", f"v_add_u32 v2, {SY_ID}, v2", f"s_lshl_b32 s49, s{S_TGT}, 4", "s_mov_b32 s48, 0")
    a.label(Lb1)
    NS = NMEM()*8//64
    for i in range(NS):
        a.e(f"s_mov_b32 s50, {4096*i}", f"buffer_load_dword v{4+i}, v2, s[{S_SYN}:{S_SYN+3}], s50 offen sc1")
    a.e("s_add_u32 s48, s48, 1", "s_waitcnt vmcnt(0)")
    for i in range(NS): a.e(f"v_xor_b32 v{4+i}, s49, v{4+i}")
    for i in range(1, NS): a.e(f"v_or_b32 v4, v4, v{4+i}")
    a.e("v_lshrrev_b32 v4, 4, v4", "v_cmp_ne_u32 vcc, 0, v4", f"s_cbranch_vccz {Lb2}", f"s_cmp_lt_u32 s48, {SPIN_LIMIT}", f"s_cbranch_scc1 {Lb1}")
    a.label(Lb2)
    dreduce(a)
    a.e(f"s_mov_b32 s48, {SY_E}")
    bump(a, 48, 2)
    a.e("s_branch L_fin")
    if not OPT["a3all"]:
        a.label(Lb3)
        if not OPT["qA"]: emit_B3_pre(a)
        emit_B3(a)
        a.e("s_branch L_fin")
    a.label(Lsp)
    if OPT["spec2"]:
        Lp1s = newlbl("sp1")
        NEG = " neg_lo:[1,0,0] neg_hi:[1,0,0]"
        a.e(f"s_cmp_lg_u32 s{sPASS}, 0", f"s_cbranch_scc1 {Lp1s}")
        a.e(f"v_lshl_add_u32 v{SP}, v{G_}, 7, v{IDX}", f"v_sub_u32 v{SP+1}, {1023-32*27}, v{SP}",
            f"s_mov_b32 s48, {LW2}", f"v_lshl_add_u32 v{SP+2}, v{SP}, 1, s48", f"s_mov_b32 s49, {LW2+2048}", f"v_lshl_add_u32 v{SP+3}, v{SP+1}, 1, s49")
        w_lds_reads(a, SP+2, SP+3, W2R, W2I)
        for p in range(8):
            xr, xi, wr, wi = ARE+2*p, AIM+2*p, WR+2*p, WI+2*p
            t0 = TMP+4*(p & 1); t1 = t0+2
            n0 = NEG if p < 4 else ""; n1 = "" if p < 4 else NEG
            a.e(f"v_pk_mul_f32 {v(t0,2)}, {v(xr,2)}, {v(wr,2)}", f"v_pk_mul_f32 {v(t1,2)}, {v(xi,2)}, {v(wr,2)}",
                f"v_pk_fma_f32 {v(wr,2)}, {v(xi,2)}, {v(wi,2)}, {v(t0,2)}{n0}",
                f"v_pk_fma_f32 {v(wi,2)}, {v(xr,2)}, {v(wi,2)}, {v(t1,2)}{n1}")
        for i in range(16): a.e(f"v_mov_b32 v{DF+i}, v{GB+i}")
        a.e(f"s_mov_b32 s{sPASS}, 1", f"s_branch {Lfwd}")
        a.label(Lp1s)
        fix_w(a, W2R, W2I, PF2)
        for p in range(8):
            xr, xi, br, bi, r1r, r1i = ARE+2*p, AIM+2*p, W2R+2*p, W2I+2*p, WR+2*p, WI+2*p
            t0 = TMP+4*(p & 1); t1 = t0+2
            n0 = NEG if p < 4 else ""; n1 = "" if p < 4 else NEG
            a.e(f"v_pk_mul_f32 {v(t0,2)}, {v(xr,2)}, {v(br,2)}", f"v_pk_mul_f32 {v(t1,2)}, {v(xi,2)}, {v(br,2)}",
                f"v_pk_fma_f32 {v(t0,2)}, {v(xi,2)}, {v(bi,2)}, {v(t0,2)}{n0}",
                f"v_pk_fma_f32 {v(t1,2)}, {v(xr,2)}, {v(bi,2)}, {v(t1,2)}{n1}",
                f"v_pk_add_f32 {v(t1,2)}, {v(r1r,2)}, {v(t1,2)} neg_lo:[0,1] neg_hi:[0,1]",
                f"v_pk_add_f32 {v(t0,2)}, {v(r1i,2)}, {v(t0,2)}")
            for e in range(2):
                a.e(f"v_cvt_pk_bf16_f32 v{DF+2*p+e}, v{t1+e}, -v{t0+e}")
        a.e(f"s_branch {Linv}")
        return
    a.e(f"v_lshl_add_u32 v{TMP}, v{G_}, 7, v{IDX}", f"v_sub_u32 v{TMP+1}, {1023-32*27}, v{TMP}",
        f"s_mov_b32 s48, {LW2}", f"v_lshl_add_u32 v{TMP+2}, v{TMP}, 1, s48", f"s_mov_b32 s49, {LW2+2048}", f"v_lshl_add_u32 v{TMP+3}, v{TMP+1}, 1, s49")
    w_lds_reads(a, TMP+2, TMP+3, W2R, W2I)
    a.e("s_waitcnt lgkmcnt(0)")
    fix_w(a, W2R, W2I, PF2)
    VS = SP; K0 = SP+1
    a.e(f"v_lshlrev_b32 v{VS}, 9, v{G_}", f"v_lshl_add_u32 v{VS}, v{IDX}, 2, v{VS}")
    for r in range(16):
        a.e(f"ds_write_b32 v{VS}, v{ARE+r} offset:{LSC+128*eidx(r)}", f"ds_write_b32 v{VS}, v{AIM+r} offset:{LSC+4096+128*eidx(r)}")
    a.e(f"v_lshl_add_u32 v{K0}, v{G_}, 7, v{IDX}", f"v_sub_u32 v{K0}, 1024, v{K0}", "s_waitcnt lgkmcnt(0)")
    for r in range(16):
        ad, rr, ri, ur, ui, vr, vi, o0, o1 = [SP+2+i for i in range(9)]
        a.e(f"v_subrev_u32 v{ad}, {32*eidx(r)}, v{K0}", f"v_and_b32 v{ad}, 1023, v{ad}", f"v_lshlrev_b32 v{ad}, 2, v{ad}",
            f"ds_read_b32 v{rr}, v{ad} offset:{LSC}", f"ds_read_b32 v{ri}, v{ad} offset:{LSC+4096}", "s_waitcnt lgkmcnt(0)")
        pr, pi_ = ARE+r, AIM+r
        a.e(f"v_add_f32 v{ur}, v{pr}, v{rr}", f"v_sub_f32 v{ui}, v{pi_}, v{ri}",
            f"v_sub_f32 v{vr}, v{pr}, v{rr}", f"v_add_f32 v{vi}, v{pi_}, v{ri}")
        sg = "-" if r < 8 else ""; ns = "" if r < 8 else "-"
        ar, ai, br, bi = WR+r, WI+r, W2R+r, W2I+r
        a.e(f"v_mul_f32 v{o0}, v{ur}, v{ar}", f"v_fma_f32 v{o0}, {sg}v{ui}, v{ai}, v{o0}",
            f"v_fma_f32 v{o0}, v{vr}, v{br}, v{o0}", f"v_fma_f32 v{o0}, {sg}v{vi}, v{bi}, v{o0}",
            f"v_mul_f32 v{o1}, v{ui}, v{ar}", f"v_fma_f32 v{o1}, {ns}v{ur}, v{ai}, v{o1}",
            f"v_fma_f32 v{o1}, v{vi}, v{br}, v{o1}", f"v_fma_f32 v{o1}, {ns}v{vr}, v{bi}, v{o1}",
            f"v_mul_f32 v{o0}, 0.5, v{o0}", f"v_mul_f32 v{o1}, 0.5, v{o1}",
            f"v_cvt_pk_bf16_f32 v{DF+r}, v{o0}, -v{o1}")
    a.e(f"s_branch {Linv}")

def h_dma(a, SH, sLB, sD4K):
    a.e("v_lshlrev_b32 v235, 4, v1")
    a.e(f"s_add_u32 s74, s{sLB}, 32", "s_mov_b32 m0, s74")
    for ch in range(4): a.e(f"buffer_load_dwordx4 v235, s[{SH}:{SH+3}], s{sD4K} offen offset:{1024*ch} lds" + (NT() if OPT["nth"] else ""))
    a.e(f"s_add_u32 s74, s{sLB}, 4192", f"s_add_u32 s75, s{sD4K}, 2", "s_mov_b32 m0, s74")
    for ch in range(4): a.e(f"buffer_load_dwordx4 v235, s[{SH}:{SH+3}], s75 offen offset:{1024*ch} lds" + (NT() if OPT["nth"] else ""))
    a.e("v_mov_b32 v233, 0x7ffffff0", f"v_mov_b32 v234, s{sD4K}", "v_cmp_eq_u32 vcc, 15, v1", "v_cndmask_b32 v233, v233, v234, vcc",
        f"buffer_load_short_d16_hi v230, v233, s[{SH}:{SH+3}], 0 offen")

def gen_B(a):
    ROLE[0] = 'B'
    SH, STT, SKVT = 80, 84, 32
    a.e(f"s_setprio {OPT['prioB']}") if OPT['prioB'] else None
    srd(a, SH, P_SSMK, P_SSMK+1, 4*MB); srd(a, STT, P_OUT, P_OUT+1, 8*MB)
    sCBK, sSUB, sD, sD4K, sLB, sDV, sF1, sF2, sMASK = 40, 41, 42, 43, 44, 45, 46, 47, 72
    a.e(f"s_and_b32 s{sCBK}, s2, 15",
        f"s_lshr_b32 s{sSUB}, s2, 4",
        f"s_lshl_b32 s{sD}, s{sCBK}, 4", f"s_add_u32 s{sD}, s{sD}, s{sSUB}", f"s_lshl_b32 s{sD}, s{sD}, 2", f"s_add_u32 s{sD}, s{sD}, s3",
        f"s_lshl_b32 s{sD4K}, s{sD}, 12", f"s_mul_i32 s{sLB}, s3, {LB_STRIDE}", f"s_mov_b32 s{sMASK}, 0xffff0000")
    sSB = 36
    a.e(f"s_and_b32 s73, s{sD}, 63", "s_lshl_b32 s73, s73, 13", f"s_lshl_b32 s74, s{sCBK}, 7", "s_add_u32 s73, s73, s74", f"s_add_u32 s{sSB}, s73, 2048")
    for i in range(1, 4): a.e(f"s_add_u32 s{sSB+i}, s{sSB}, {i*2*MB}")
    a.e(f"s_lshl_b32 s73, s{sCBK}, {4+FB()}", f"s_add_u32 s{sF1}, s73, {SY_B1}", f"s_lshl_b32 s74, s{sSUB}, {FB()}", "s_add_u32 s73, s73, s74", f"s_add_u32 s{sF2}, s73, {SY_B2}")
    a.e(f"s_and_b32 s73, s{sD}, 0xfffffffe", "s_lshl_b32 s73, s73, 1", f"s_load_dword s{sDV}, s[{P_SSMD}:{P_SSMD+1}], s73")
    stamp(a, 0, True); stamp(a, 1)
    Lidle, Lsetup = newlbl("bidle"), newlbl("bsetup")
    if OPT["pB1"]: a.e(f"s_setprio {OPT['pB1']}")
    if OPT["b1all"]:
        a.e(f"s_mov_b32 s{sCBKT}, s{sCBK}", f"s_mov_b32 s{sSUBT}, s{sSUB}")
        if OPT["hearly"] and not OPT["hlate"]:
            emit_B1(a, after_stores=lambda: h_dma(a, SH, sLB, sD4K), nafter=9)
        else:
            emit_B1(a)
            if not OPT["hlate"]: h_dma(a, SH, sLB, sD4K)
    else:
        a.e(f"s_cmp_lg_u32 s{sACT}, 0", f"s_cbranch_scc1 {Lidle}")
        if OPT["hearly"] and not OPT["hlate"]:
            emit_B1(a, after_stores=lambda: h_dma(a, SH, sLB, sD4K), nafter=9)
        else:
            emit_B1(a)
            if not OPT["hlate"]: h_dma(a, SH, sLB, sD4K)
        a.e(f"s_branch {Lsetup}")
        a.label(Lidle)
        if OPT["tlb"] or OPT["cpf"]: warm(a)
        fin_epoch(a)
        loc_publish(a)
        loc_issue(a, 10)
        loc_resolve(a, 10, barrier=False)
        if not OPT["hlate"]:
            for _ in range(OPT["hactdelay"]):
                a.e("v_and_b32 v12, 15, v1", f"v_lshlrev_b32 v12, {FB()}, v12", f"v_add_u32 v12, s{sF1}, v12",
                    f"buffer_load_dword v13, v12, s[{S_SYN}:{S_SYN+3}], 0 offen sc1", "s_waitcnt vmcnt(0)")
            h_dma(a, SH, sLB, sD4K)
    a.label(Lsetup)
    if OPT["pB1"]: a.e(f"s_setprio {OPT['prioB']}")
    stamp(a, 12)
    if OPT["yieldB"] >= 2 and OPT["yinit"]:
        a_state(a, sCU, 0, 233)
    LN16, B_, G4, VA, VB, VE, VS2, T = 2, 3, 4, 5, 9, 10, 11, 12
    a.e(f"v_lshlrev_b32 v{T}, 2, v1",
        f"v_add_u32 v{T+1}, {4160-32}, v{T}", "v_cmp_le_u32 vcc, 8, v1", f"v_cndmask_b32 v{T+3}, v{T}, v{T+1}, vcc",
        f"v_add_u32 v{T+1}, 8288, v{T}", "v_cmp_le_u32 vcc, 16, v1", f"v_cndmask_b32 v{T+3}, v{T+3}, v{T+1}, vcc",
        f"v_add_u32 v231, s{sLB}, v{T+3}")
    a.e(f"v_lshlrev_b32 v{T}, 3, v1", f"v_add_u32 v{T}, s{sLB}, v{T}", "v_mov_b32 v16, 0", "v_mov_b32 v17, 0", f"ds_write_b64 v{T}, v[16:17] offset:8288")
    a.e(f"v_and_b32 v{B_}, 15, v1", f"v_lshrrev_b32 v{G4}, 4, v1")
    a.e(f"v_and_b32 v{VA}, 1, v{B_}", f"v_xor_b32 v{VA}, 1, v{VA}", f"v_mul_u32_u24 v{VA}, 4160, v{VA}",
        f"v_add_u32 v{VA+1}, 1, v{B_}", f"v_lshrrev_b32 v{VA+1}, 1, v{VA+1}", f"v_lshl_add_u32 v{VA}, v{VA+1}, 2, v{VA}",
        f"v_lshlrev_b32 v{VA+1}, 4, v{G4}", f"v_sub_u32 v{VA}, v{VA}, v{VA+1}",
        f"s_add_u32 s73, s{sLB}, 16", f"v_add_u32 v{VA}, s73, v{VA}")
    for pp in range(1, 4): a.e(f"v_add_u32 v{VA+pp}, {1024*pp}, v{VA}")
    a.e(f"v_lshlrev_b32 v{VB}, 5, v{B_}", f"v_lshl_add_u32 v{VB}, v{G4}, 4, v{VB}",
        f"s_add_u32 s73, s{sLB}, {8800-480}", f"v_add_u32 v{VB}, s73, v{VB}")
    a.e(f"v_lshrrev_b32 v18, 1, v{G4}", f"v_lshlrev_b32 v19, 4, v18", f"v_lshl_add_u32 v19, v{B_}, 5, v19",
        f"v_and_b32 v18, 1, v{G4}", "v_xor_b32 v18, 1, v18", f"v_lshl_add_u32 v19, v18, 3, v19",
        f"s_add_u32 s73, s{sLB}, 8800", f"v_add_u32 v232, s73, v19")
    a.e(f"v_lshrrev_b32 v18, 3, v{B_}", f"v_lshlrev_b32 v{VS2}, 19, v18", f"v_bfe_u32 v18, v{B_}, 2, 1", f"v_lshl_add_u32 v{VS2}, v18, 12, v{VS2}",
        f"v_and_b32 v18, 1, v{G4}", f"v_lshl_add_u32 v{VS2}, v18, 20, v{VS2}", f"v_and_b32 v18, 3, v{B_}", f"v_lshl_add_u32 v{VS2}, v18, 5, v{VS2}",
        f"v_lshrrev_b32 v18, 1, v{G4}", f"v_lshl_add_u32 v{VS2}, v18, 4, v{VS2}")
    a.e(f"v_lshlrev_b32 v{LN16}, 19, v{G4}", "v_bfe_u32 v18, v1, 3, 1", f"v_lshl_add_u32 v{LN16}, v18, 12, v{LN16}",
        "v_and_b32 v18, 7, v1", f"v_lshl_add_u32 v{LN16}, v18, 4, v{LN16}")
    a.e("v_lshlrev_b32 v18, 4, v1", f"s_add_u32 s73, s{sLB}, 8800", "v_add_u32 v19, s73, v18")
    a.e("s_waitcnt lgkmcnt(0)",
        f"s_and_b32 s73, s{sD}, 1", f"s_lshl_b32 s74, s{sDV}, 16", f"s_and_b32 s75, s{sDV}, 0xffff0000",
        "s_cmp_eq_u32 s73, 1", f"s_cselect_b32 s{sDV}, s75, s74")
    if OPT["twoflag"]:
        a.e(f"s_add_u32 s73, s{sF1}, {SY_B1B-SY_B1}", f"s_cmp_lg_u32 s{sLOC}, 0", f"s_cselect_b32 s{sF1}, s{sF1}, s73")
    a.e(f"v_and_b32 v{T}, 15, v1", f"v_lshlrev_b32 v{T}, {FB()}, v{T}", f"v_add_u32 v{T}, s{sF1}, v{T}")
    stamp(a, 5)
    wait_flags(a, T, 1, T+1, 73)
    loc_read(a, 12)
    stamp(a, 6)
    VE = 232
    ACC = 20
    SETS = [(52, 84), (116, 148)]
    U = SETS[1][1]
    for ch in range(4):
        a.e(f"buffer_load_dwordx4 {v(U+4*ch,4)}, v{LN16}, s[{STT}:{STT+3}], s{sSB+ch} offen" + LDL())
    def reads(rho, st):
        A, B = SETS[st]
        out = []
        for p in range(8):
            o = 8*rho + 128*(p & 1)
            out.append(f"ds_read2_b32 {v(A+4*p,2)}, v{VA+(p>>1)} offset0:{o} offset1:{o+1}")
            out.append(f"ds_read2_b32 {v(A+4*p+2,2)}, v{VA+(p>>1)} offset0:{o+2} offset1:{o+3}")
        outb = [f"ds_read_b128 {v(B+4*q,4)}, v{VB} offset:{512*q+32*(15-rho)}" for q in range(8)]
        return out, outb
    rhos = list(range(1, 16, 2))
    ra, rb = reads(rhos[0], 0)
    if OPT["hlate"]:
        h_dma(a, SH, sLB, sD4K)
        for ch in range(4):
            a.e(f"s_waitcnt vmcnt({3-ch+9})", f"ds_write_b128 v19, {v(U+4*ch,4)} offset:{1024*ch}")
        a.e("s_waitcnt vmcnt(0)", "ds_write_b32 v231, v230", "s_waitcnt lgkmcnt(0)")
        for r in ra: a.e(r)
    else:
        a.e("s_waitcnt vmcnt(4)", "ds_write_b32 v231, v230")
        a.e("s_waitcnt lgkmcnt(0)")
        for r in ra: a.e(r)
        for ch in range(4):
            a.e(f"s_waitcnt vmcnt({3-ch})", f"ds_write_b128 v19, {v(U+4*ch,4)} offset:{1024*ch}")
    a.e("s_waitcnt lgkmcnt(0)")
    for r in rb: a.e(r)
    if OPT["yieldB"]:
        Ly = newlbl("y0b")
        if OPT["y0"]: a.e("s_cmp_lg_u32 s2, 0", f"s_cbranch_scc1 {Ly}")
        if not (OPT["yieldB"] == 2 and OPT["ymid"]): b_yield(a, 233)
        a.label(Ly)
    Lnq = newlbl("noq")
    if OPT["a3all"]:
        a.e(f"s_mov_b32 s{sCBKT}, s{sCBK}", f"s_mov_b32 s{sSUBT}, s{sSUB}")
        if OPT["yieldB"] != 3: emit_B3_pre(a)
    else:
        a.e(f"s_cmp_lg_u32 s{sACT}, 0", f"s_cbranch_scc1 {Lnq}")
        emit_B3_pre(a)
        a.label(Lnq)
    stamp(a, 7)
    for ci, rho in enumerate(rhos):
        st = ci & 1
        A, B = SETS[st]
        if ci+1 < len(rhos):
            ra, rb = reads(rhos[ci+1], st ^ 1); nxt = ra[0:2] + rb + ra[2:]
        else:
            nxt = [f"ds_read_b64 {v(SETS[st^1][0]+2*j,2)}, v{VE} offset:{512*j}" for j in range(8)]
        if OPT["yieldB"] == 3: b_yield_step(a, 233, ci == len(rhos)-1)
        if OPT["yieldB"] == 2 and OPT["ymid"] and ci == OPT["ymid"]: b_yield(a, 233)
        a.e("s_waitcnt lgkmcnt(0)")
        n = 0
        for p in range(8):
            for q in range(8-p):
                j = p+q
                c = "0" if (ci == 0 and p == 0) else v(ACC+4*j, 4)
                a.e(f"v_mfma_f32_16x16x32_bf16 {v(ACC+4*j,4)}, {v(A+4*p,4)}, {v(B+4*q,4)}, {c}")
                if n < len(nxt): a.e(nxt[n])
                n += 1
    KVR = SETS[0][0]; TMv = 116
    if OPT["yieldB"] == 3 and OPT["a3all"]: emit_B3_pre(a)
    a.e("s_waitcnt lgkmcnt(0)")
    stamp(a, 8)
    sts = []
    for jp in range(4):
        base = TMv + 8*jp
        for hh in range(2):
            j = 2*jp+hh
            w0, w1 = KVR+2*j, KVR+2*j+1
            t = 172
            a.e(f"v_and_b32 v{t}, s{sMASK}, v{w1}", f"v_lshlrev_b32 v{t+1}, 16, v{w1}",
                f"v_and_b32 v{t+2}, s{sMASK}, v{w0}", f"v_lshlrev_b32 v{t+3}, 16, v{w0}")
            for r in range(4):
                a.e(f"v_fma_f32 v{t+r}, v{t+r}, s{sDV}, v{ACC+4*j+r}")
            a.e(f"v_cvt_pk_bf16_f32 v{base+2*hh}, v{t}, v{t+1}", f"v_cvt_pk_bf16_f32 v{base+2*hh+1}, v{t+2}, v{t+3}")
        a.e(f"v_permlane16_swap_b32 v{base}, v{base+2}", f"v_permlane16_swap_b32 v{base+1}, v{base+3}")
        sts.append(f"buffer_store_dwordx4 {v(base,4)}, v{VS2}, s[{STT}:{STT+3}], s{sSB+jp} offen")
    dual_store(a, sts)
    signal(a, sF2, 12, bloc=True)
    stamp(a, 9)
    if not OPT["a3all"]: a.e(f"s_cmp_lg_u32 s{sACT}, 0", "s_cbranch_scc1 L_fin")
    emit_B3(a)
    a.e("s_branch L_fin")

def warm(a):
    if OPT["tlb"]:
        L = newlbl("warm")
        a.e("s_cmp_lg_u32 s3, 3", f"s_cbranch_scc1 {L}")
        pages = [(P_WS, WS_I1), (P_WS, WS_I1+2*MB), (P_WS, WS_I2), (P_WS, WS_I2+2*MB), (P_WS, WS_SYNC+512*1024),
                 (P_OUT, 0), (P_OUT, 2*MB), (P_OUT, 4*MB), (P_OUT, 6*MB),
                 (P_WR, 0), (P_WR, 2*MB), (P_WI, 0), (P_WI, 2*MB), (P_SSMK, 0), (P_SSMK, 2*MB), (P_Q, 0), (P_Q, 2*MB)]
        a.e("v_mov_b32 v240, 0", "v_mov_b32 v241, 0")
        for i, (p, off) in enumerate(pages):
            a.e(f"s_add_u32 s92, s{p}, {off}", f"s_addc_u32 s93, s{p+1}, 0", f"v_writelane_b32 v240, s92, {i}", f"v_writelane_b32 v241, s93, {i}")
        a.e(f"s_mov_b64 exec, {(1 << len(pages)) - 1}", "global_load_dword v242, v[240:241], off", "s_mov_b64 exec, -1")
        a.label(L)
    if OPT["cpf"]:
        L = newlbl("warm")
        a.e("s_cmp_ge_u32 s3, 2", f"s_cbranch_scc1 {L}")
        a.e("s_getpc_b64 s[92:93]")
        a.e("s_lshr_b32 s96, s2, 4", "s_and_b32 s96, s96, 15", "s_lshl_b32 s96, s96, 1", "s_add_u32 s96, s96, s3", "s_min_u32 s96, s96, 25",
            "s_lshl_b32 s96, s96, 10", f"s_sub_u32 s92, s92, {OPT['cpf']}", "s_subb_u32 s93, s93, 0",
            "s_add_u32 s92, s92, s96", "s_addc_u32 s93, s93, 0", "v_lshlrev_b32 v240, 4, v1",
            "global_load_dwordx4 v[236:239], v240, s[92:93]")
        a.label(L)

def gen_kernel():
    a = Asm(); a.name = "p"
    a.e("s_cmp_ge_u32 s2, 512", "s_cbranch_scc1 L_exit")
    if OPT.get("spinT") or OPT.get("span"): a.e("s_memrealtime s[94:95]")
    if gen.PROF: a.e("s_memrealtime s[98:99]", "s_waitcnt lgkmcnt(0)", "v_writelane_b32 v247, s98, 13")
    a.e(f"s_load_dwordx16 s[4:19], s[0:1], 0", f"s_load_dwordx8 s[20:27], s[0:1], 64")
    a.e("v_lshrrev_b32 v1, 6, v0", "v_readfirstlane_b32 s3, v1", "v_and_b32 v1, 63, v0", "s_waitcnt lgkmcnt(0)")
    srd(a, S_SYN, P_WS, P_WS+1, 1*MB, add=WS_SYNC)
    a.e(f"s_mov_b32 s48, {WS_SYNC+SY_E}", f"s_load_dword s{S_TGT}, s[{P_WS}:{P_WS+1}], s48")
    a.e(f"s_mov_b32 s98, {64<<FA()}", f"s_mov_b32 s99, {128<<FA()}", f"s_mov_b32 s100, {192<<FA()}")
    a.e(f"s_and_b32 s{sCU}, s2, 255", f"s_bitcmp0_b32 s2, 3", f"s_cselect_b32 s{sACT}, 1, 0",
        f"s_lshr_b32 s48, s{sCU}, 4", "s_lshl_b32 s48, s48, 3", f"s_and_b32 s49, s{sCU}, 7", "s_add_u32 s48, s48, s49",
        f"s_and_b32 s{sCBKT}, s48, 15", "s_lshr_b32 s48, s48, 4", "s_lshl_b32 s48, s48, 1", "s_lshr_b32 s49, s2, 8", f"s_add_u32 s{sSUBT}, s48, s49")
    a.e("s_cmp_ge_u32 s2, 256", "s_cbranch_scc1 L_A")
    gen_B(a)
    a.label("L_A")
    gen_A(a)
    a.label("L_fin")
    pass
    if gen.PROF:
        a.e("s_waitcnt vmcnt(0)")
        stamp(a, 14); stamp(a, 15, True)
        prof_dump(a)
    if OPT.get("span"):
        Ls = newlbl("span")
        a.e("s_cmp_lg_u32 s3, 0", f"s_cbranch_scc1 {Ls}", "s_waitcnt vmcnt(0)", "s_memrealtime s[92:93]",
            f"s_add_u32 s32, s{P_WS}, {gen.WS_PROF}", f"s_addc_u32 s33, s{P_WS+1}, 0", f"s_mov_b32 s34, {MB}", "s_mov_b32 s35, 0x00020000",
            "s_lshl_b32 s36, s2, 3", "s_waitcnt lgkmcnt(0)", "v_mov_b32 v2, s36", "v_mov_b32 v4, s94", "v_mov_b32 v5, s92", "s_mov_b64 exec, 1",
            "buffer_store_dwordx2 v[4:5], v2, s[32:35], 0 offen", "s_waitcnt vmcnt(0)")
        a.label(Ls)
    if OPT.get("spinT"):
        a.label("L_spin")
        a.e("s_memrealtime s[92:93]", "s_waitcnt lgkmcnt(0)", "s_sub_u32 s92, s92, s94", f"s_cmp_lt_u32 s92, {OPT['spinT']}", "s_cbranch_scc1 L_spin")
    a.label("L_exit")
    a.e("s_endpgm")
    return a

def prof_dump(a):
    if OPT.get("dbgwg", -1) >= 0:
        L = newlbl("nodbg")
        a.e(f"s_cmp_lg_u32 s2, {OPT['dbgwg']}", f"s_cbranch_scc1 {L}", "s_cmp_lg_u32 s3, 0", f"s_cbranch_scc1 {L}")
        a.e("v_readlane_b32 s36, v247, 1", "v_readlane_b32 s37, v247, 13", "v_mov_b32 v250, s36", "v_mov_b32 v251, s37",
            "v_cmp_eq_u32 vcc, 0, v1", "v_cndmask_b32 v250, v250, v251, vcc", "v_cmp_eq_u32 vcc, 13, v1", "v_cndmask_b32 v250, v250, v251, vcc",
            "v_cmp_eq_u32 vcc, 15, v1", "v_cndmask_b32 v250, v250, v251, vcc", "v_sub_u32 v250, v247, v250",
            f"s_mov_b32 s32, s{P_DBG}", f"s_mov_b32 s33, s{P_DBG+1}", "s_mov_b32 s34, 256", "s_mov_b32 s35, 0x00020000",
            "v_lshlrev_b32 v251, 2, v1", "s_mov_b64 exec, 0xffff", "buffer_store_dword v250, v251, s[32:35], 0 offen", "s_waitcnt vmcnt(0)", "s_mov_b64 exec, -1")
        a.label(L)
        return

    a.e(f"s_add_u32 s32, s{P_WS}, {gen.WS_PROF}", f"s_addc_u32 s33, s{P_WS+1}, 0", f"s_mov_b32 s34, {MB}", "s_mov_b32 s35, 0x00020000")
    a.e("s_lshl_b32 s36, s2, 2", "s_add_u32 s36, s36, s3", "s_lshl_b32 s36, s36, 6",
        "v_lshlrev_b32 v250, 2, v1", "v_add_u32 v250, s36, v250", "s_mov_b64 exec, 0xffff",
        "buffer_store_dword v247, v250, s[32:35], 0 offen")
    if OPT.get("fine"):
        a.e("v_add_u32 v250, 0x40000, v250", "buffer_store_dword v246, v250, s[32:35], 0 offen")
    a.e("s_waitcnt vmcnt(0)")
PROFREGS = []

def build(path):
    a = gen_kernel()
    name = "concat_heads__spectral_gfnet__ssm_conv_h3__prompt_kernel"
    s = open("concat_heads__spectral_gfnet__ssm_conv_h3__prompt.s.ref").read().split("; Override")[0]
    s += f"; @launch grid=(512,1,1) block=(256,1,1) lds={LDS_BYTES}\n"
    s += '.amdgcn_target "amdgcn-amd-amdhsa--gfx950"\n' + gen.header(name) + a.text() + gen.descriptor(name, 256, 102)
    s = s.replace(" lds nt", " nt lds")
    open(path, "w").write(s)
    return s

if __name__ == "__main__":
    out = sys.argv[1] if len(sys.argv) > 1 else "pers.s"
    gen.PROF = "prof" in sys.argv[2:]
    for x in sys.argv[2:]:
        if "=" in x:
            k, val = x.split("="); OPT[k] = int(val)
    if OPT["wsend"]:
        base = OPT["wsend"]*MB
        WS_I1, WS_KVT, WS_I2, WS_TT, WS_SYNC = base, base+4*MB, base+8*MB, base+12*MB, base+20*MB
    s = build(out)
    print(out, len(s))
```

```python
import sys
from asmgen import *
import gen
from gen import srd, MB, WS_I1, WS_KVT, WS_I2, WS_TT, KA

PHASE = [1]
def dstamp(a, k, inv=False):
    if not OPT.get("dmax"): return
    a.e("s_memrealtime s[96:97]", "s_waitcnt lgkmcnt(0)", f"v_writelane_b32 v242, s96, {k}")
SY_DG = 4096 + 131072
def dpublish(a, sT):
    if not OPT.get("dmax"): return
    L = newlbl("dp")
    a.e("s_cmp_lg_u32 s3, 0", f"s_cbranch_scc1 {L}", f"s_lshl_b32 s92, s{sT}, 5", f"s_add_u32 s92, s92, {SY_DG}",
        "v_lshlrev_b32 v240, 2, v1", "v_add_u32 v240, s92, v240", "s_mov_b64 exec, 0xff",
        f"buffer_store_dword v242, v240, s[{S_SYN}:{S_SYN+3}], 0 offen sc1", "s_mov_b64 exec, -1")
    a.label(L)
def dreduce(a):
    if not OPT.get("dmax"): return
    a.e(f"s_mov_b32 s92, s{P_DBG}", f"s_mov_b32 s93, s{P_DBG+1}", "s_mov_b32 s94, 256", "s_mov_b32 s95, 0x00020000")
    a.e("v_lshlrev_b32 v2, 5, v1", f"v_add_u32 v2, {SY_DG}, v2")
    for k in range(7):
        for i in range(4):
            a.e(f"s_mov_b32 s50, {2048*i + 4*k}", f"buffer_load_dword v{10+i}, v2, s[{S_SYN}:{S_SYN+3}], s50 offen sc1")
        a.e("s_waitcnt vmcnt(0)")
        if k == 0:
            a.e("v_min_u32 v10, v10, v11", "v_min_u32 v12, v12, v13", "v_min_u32 v10, v10, v12", "s_mov_b32 s51, -1")
            for l in range(64): a.e(f"v_readlane_b32 s48, v10, {l}", "s_min_u32 s51, s51, s48")
            a.e("s_mov_b32 s45, s51")
            continue
        for i in range(4):
            a.e(f"v_subrev_u32 v{10+i}, s45, v{10+i}", f"v_lshlrev_b32 v{10+i}, 8, v{10+i}", f"v_add_u32 v14, {64*i}, v1", f"v_or_b32 v{10+i}, v{10+i}, v14")
        a.e("v_max_u32 v10, v10, v11", "v_max_u32 v12, v12, v13", "v_max_u32 v10, v10, v12", "s_mov_b32 s51, 0")
        for l in range(64): a.e(f"v_readlane_b32 s48, v10, {l}", "s_max_u32 s51, s51, s48")
        a.e("s_lshr_b32 s48, s51, 8", "s_and_b32 s49, s51, 255", "v_mov_b32 v14, s48", "v_mov_b32 v15, s49", f"v_mov_b32 v16, {8*(k-1)}", "s_mov_b64 exec, 1",
            "buffer_store_dwordx2 v[14:15], v16, s[92:95], 0 offen", "s_mov_b64 exec, -1")
DMAP_A = {1: 0, 5: 1, 6: 2, 7: 3, 8: 4, 9: 5}
DMAP_B = {}
ROLE = ["B"]
def fstamp(a, i):
    if OPT.get("fine") != PHASE[0]: return
    a.e('s_memtime s[96:97]', 's_waitcnt lgkmcnt(0)', f'v_writelane_b32 v246, s96, {i}')
def stamp(a, i, real=False):
    if OPT.get("dmax"):
        m = DMAP_A if ROLE[0] == "A" else DMAP_B
        if i in m and i != 14: dstamp(a, m[i])
        return
    if not gen.PROF: return
    a.e('s_memrealtime s[96:97]' if real else 's_memtime s[96:97]', 's_waitcnt lgkmcnt(0)', f'v_writelane_b32 v247, s96, {i}')

WBYTES = 2048*513*2
LB_STRIDE = 12896
LDS_BYTES = 53248
SPIN_LIMIT = 400000
OPT = dict(prioA=0, prioB=0, sleep=0, nt=1, wsend=0, ntout=1, ntw=1, wlate=1, hlate=1, qA=1, fsa=6, fsb=6, shrink=0, loc=1, forceloc=-1, ldloc=1, bdelay=0, earlypub=1, wpos=1, optst=1, locflag=1, hearly=1, twoflag=1, pA1i=-1, pB1=0, ntscr=0, a3all=1, ntk=1, ntv=1, ntx=1, nth=1, hactdelay=0, b1all=1, bactwait=1, pA1a=-1, grp=1, yieldB=0, ylim=40, tlb=0, cpf=0, spec2=1, y0=0, yinit=1, ymid=0)
def NMEM(): return 32 if OPT['b1all'] else 48
def LDL(): return {0: ' sc1', 1: ' nt', 2: ' sc1 nt'}[OPT['ldloc']]
def FA(): return OPT['fsa']
def FB(): return OPT['fsb']
def NT(): return ' nt' if OPT['nt'] else ''
def NTO(): return {0: '', 1: ' nt', 2: ' sc1', 3: ' sc1 nt'}[OPT['ntout']]

P_X, P_WR, P_WI, P_Q, P_K, P_V, P_SHK, P_SSMK, P_SSMD, P_OUT, P_DBG, P_WS = 4, 6, 8, 10, 12, 14, 16, 18, 20, 22, 24, 26
S_DBG = 28
def eidx(r): return (r & 3) + 8*(r >> 2)

_lbl = [0]
def newlbl(p):
    _lbl[0] += 1
    return f"L_{p}_{_lbl[0]}"

WS_SYNC = 20*MB
S_SYN = 28
S_TGT = 101
SY_E, SY_A1, SY_A2, SY_B1, SY_B2 = 0, 4096, 4096+16384, 4096+32768, 4096+49152
sACT, sCBKT, sSUBT, sCU = 88, 89, 90, 91
sLOC, sXEXP = 79, 0
S_DBG = 12
def signal(a, s_off, vt, nafter=0, bloc=False):
    L = newlbl("sig")
    a.e(f"s_waitcnt vmcnt({nafter})", "s_barrier", "s_cmp_lg_u32 s3, 0", f"s_cbranch_scc1 {L}",
        f"v_mov_b32 v{vt}, s{s_off}", f"v_mov_b32 v{vt+1}, s{S_TGT}", "s_mov_b64 exec, 1")
    st = f"buffer_store_dword v{vt+1}, v{vt}, s[{S_SYN}:{S_SYN+3}], 0 offen"
    if bloc and OPT["locflag"]:
        dual_store(a, [st])
    else:
        a.e(st + " sc1")
    a.e("s_mov_b64 exec, -1")
    a.label(L)

def wait_flags(a, vaddr, nload, vt, s_cnt, pre_barrier=None, solo=False):
    L = newlbl("poll"); Ls = newlbl("pdone"); Lr = newlbl("prest")
    if not solo: a.e("s_cmp_lg_u32 s3, 0", f"s_cbranch_scc1 {Ls}")
    a.e(f"s_mov_b32 s{s_cnt}, 0")
    a.label(L)
    offs = ["0", "s98", "s99", "s100"]
    for i in range(nload):
        a.e(f"buffer_load_dword v{vt+i}, v{vaddr}, s[{S_SYN}:{S_SYN+3}], {offs[i]} offen sc1")
    a.e(f"s_add_u32 s{s_cnt}, s{s_cnt}, 1", "s_waitcnt vmcnt(0)")
    for i in range(nload):
        a.e(f"v_xor_b32 v{vt+i}, s{S_TGT}, v{vt+i}")
    for i in range(1, nload):
        a.e(f"v_or_b32 v{vt}, v{vt}, v{vt+i}")
    if OPT["shrink"]:
        a.e(f"v_cmp_ne_u32 vcc, 0, v{vt}", "s_and_b64 exec, exec, vcc", f"s_cbranch_execz {Lr}")
    else:
        a.e(f"v_cmp_ne_u32 vcc, 0, v{vt}", f"s_cbranch_vccz {Lr}")
    if OPT["sleep"]: a.e(f"s_sleep {OPT['sleep']}")
    a.e(f"s_cmp_lt_u32 s{s_cnt}, {SPIN_LIMIT}", f"s_cbranch_scc1 {L}")
    a.label(Lr)
    if OPT["shrink"]: a.e("s_mov_b64 exec, -1")
    a.label(Ls)
    if pre_barrier: a.e(pre_barrier)
    if not solo: a.e("s_barrier")

SY_ID = 4096 + 65536
SY_B1B = 4096 + 98304
SY_AS = 4096 + 114688
LOCW = 53244
def loc_publish(a):
    L = newlbl("pub")
    a.e("s_getreg_b32 s92, hwreg(HW_REG_XCC_ID)", "s_and_b32 s92, s92, 15", f"s_lshl_b32 s{sXEXP}, s{S_TGT}, 4", f"s_or_b32 s{sXEXP}, s{sXEXP}, s92")
    a.e("s_cmp_lg_u32 s3, 0", f"s_cbranch_scc1 {L}")
    if OPT["b1all"] and OPT["grp"]:
        a.e("s_and_b32 s92, s2, 15", "s_lshl_b32 s92, s92, 4", "s_lshr_b32 s93, s2, 4", "s_add_u32 s92, s92, s93", "s_lshl_b32 s92, s92, 6", f"s_add_u32 s92, s92, {SY_ID}")
    else:
        a.e("s_lshr_b32 s92, s2, 3", f"s_lshr_b32 s93, s{sCU}, 4", "s_add_u32 s93, s93, 32", "s_cmp_ge_u32 s2, 256", "s_cselect_b32 s92, s93, s92",
            "s_and_b32 s93, s2, 7", f"s_mul_i32 s93, s93, {NMEM()}", "s_add_u32 s92, s92, s93", "s_lshl_b32 s92, s92, 6", f"s_add_u32 s92, s92, {SY_ID}")
    a.e(
        "v_mov_b32 v10, s92", f"v_mov_b32 v11, s{sXEXP}", "s_mov_b64 exec, 1",
        f"buffer_store_dword v11, v10, s[{S_SYN}:{S_SYN+3}], 0 offen sc1", "s_mov_b64 exec, -1")
    a.label(L)

def loc_issue(a, vt):
    if OPT["b1all"] and OPT["grp"]:
        a.e(f"v_min_u32 v{vt}, 15, v1", "s_and_b32 s93, s2, 15", "s_lshl_b32 s93, s93, 4")
    else:
        a.e(f"v_min_u32 v{vt}, {NMEM()-1}, v1", "s_and_b32 s93, s2, 7", f"s_mul_i32 s93, s93, {NMEM()}")
    a.e(f"v_add_u32 v{vt}, s93, v{vt}",
        f"v_lshlrev_b32 v{vt}, 6, v{vt}", f"v_add_u32 v{vt}, {SY_ID}, v{vt}")
    L = newlbl("li")
    a.e("s_cmp_lg_u32 s3, 0", f"s_cbranch_scc1 {L}")
    a.e(f"buffer_load_dword v{vt+1}, v{vt}, s[{S_SYN}:{S_SYN+3}], 0 offen sc1")
    a.label(L)

def loc_resolve(a, vt, barrier=True, nafter=0):
    L, Ld, Ls = newlbl("locp"), newlbl("locd"), newlbl("locs")
    a.e("s_cmp_lg_u32 s3, 0", f"s_cbranch_scc1 {Ls}")
    if OPT["forceloc"] >= 0:
        a.e(f"s_waitcnt vmcnt({nafter})", f"s_mov_b32 s93, {OPT['forceloc']}")
    else:
        a.e("s_mov_b32 s92, 0", f"s_waitcnt vmcnt({nafter})")
        a.label(L)
        a.e(f"v_xor_b32 v{vt+2}, s{sXEXP}, v{vt+1}", f"v_lshrrev_b32 v{vt+3}, 4, v{vt+2}", "s_add_u32 s92, s92, 1",
            f"v_cmp_ne_u32 vcc, 0, v{vt+3}", f"s_cbranch_vccz {Ld}",
            f"s_cmp_ge_u32 s92, {SPIN_LIMIT}", f"s_cbranch_scc1 {Ld}",
            f"buffer_load_dword v{vt+1}, v{vt}, s[{S_SYN}:{S_SYN+3}], 0 offen sc1", "s_waitcnt vmcnt(0)", f"s_branch {L}")
        a.label(Ld)
        a.e(f"v_cmp_ne_u32 vcc, 0, v{vt+2}", "s_cmp_eq_u64 vcc, 0", "s_cselect_b32 s93, 1, 0")
    a.e(f"s_mov_b32 s{sLOC}, s93", f"v_mov_b32 v{vt+2}, {LOCW}", f"v_mov_b32 v{vt+3}, s93", f"ds_write_b32 v{vt+2}, v{vt+3}", "s_waitcnt lgkmcnt(0)")
    a.label(Ls)
    if barrier:
        a.e("s_barrier")
        loc_read(a, vt)

def loc_read(a, vt):
    a.e(f"v_mov_b32 v{vt+2}, {LOCW}", f"ds_read_b32 v{vt+3}, v{vt+2}", "s_waitcnt lgkmcnt(0)", f"v_readfirstlane_b32 s{sLOC}, v{vt+3}")

def dual_store(a, lines):
    L1, L2 = newlbl("stg"), newlbl("stl")
    a.e(f"s_cmp_eq_u32 s{sLOC}, 0", f"s_cbranch_scc1 {L1}")
    for l in lines: a.e(l)
    a.e(f"s_branch {L2}")
    a.label(L1)
    for l in lines: a.e(l + " sc1" if "buffer_store" in l else l)
    a.label(L2)

def a_state(a, sT, st, vt):
    L = newlbl("ast")
    a.e("s_cmp_lg_u32 s3, 0", f"s_cbranch_scc1 {L}", f"s_lshl_b32 s92, s{sT}, 6", f"s_add_u32 s92, s92, {SY_AS}",
        f"s_lshl_b32 s93, s{S_TGT}, 2", f"s_or_b32 s93, s93, {st}", f"v_mov_b32 v{vt}, s92", f"v_mov_b32 v{vt+1}, s93", "s_mov_b64 exec, 1",
        f"buffer_store_dword v{vt+1}, v{vt}, s[{S_SYN}:{S_SYN+3}], 0 offen", "s_mov_b64 exec, -1")
    a.label(L)

def y_ld(vt): return f"buffer_load_dword v{vt+1}, v{vt}, s[{S_SYN}:{S_SYN+3}], 0 offen " + ("sc1" if OPT.get("ysc", 1) else "nt")
def b_yield(a, vt):
    L, Ld = newlbl("yl"), newlbl("yd")
    a.e(f"s_lshl_b32 s92, s{sCU}, 6", f"s_add_u32 s92, s92, {SY_AS}", f"v_mov_b32 v{vt}, s92", f"s_lshl_b32 s75, s{S_TGT}, 2", "s_mov_b32 s92, 0")
    a.e(f"s_or_b32 s75, s75, {2 if OPT['yieldB'] == 2 else 1}")
    if OPT["yieldB"] == 3:
        a.e(y_ld(vt)); return
    a.label(L)
    a.e(y_ld(vt), "s_add_u32 s92, s92, 1", "s_waitcnt vmcnt(0)",
        f"v_readfirstlane_b32 s93, v{vt+1}", "s_cmp_lg_u32 s93, s75" if OPT["yieldB"] == 1 else "s_cmp_eq_u32 s93, s75", f"s_cbranch_scc1 {Ld}",
        f"s_cmp_lt_u32 s92, {OPT['ylim']}", f"s_cbranch_scc1 {L}")
    a.label(Ld)

def b_yield_step(a, vt, last):
    L, Ld = newlbl("ys"), newlbl("ysd")
    a.label(L)
    a.e("s_waitcnt vmcnt(0)", f"v_readfirstlane_b32 s93, v{vt+1}", "s_cmp_lg_u32 s93, s75", f"s_cbranch_scc1 {Ld}",
        f"s_cmp_ge_u32 s92, {OPT['ylim']}", f"s_cbranch_scc1 {Ld}", "s_add_u32 s92, s92, 1", y_ld(vt), f"s_branch {L}")
    a.label(Ld)
    if not last: a.e(y_ld(vt))

def fin_epoch(a):
    a.e("s_waitcnt lgkmcnt(0)", f"s_add_u32 s{S_TGT}, s{S_TGT}, 1")

def bump(a, s_off, vt):
    a.e(f"v_mov_b32 v{vt}, s{s_off}", f"v_mov_b32 v{vt+1}, s{S_TGT}", "s_mov_b64 exec, 1",
        f"buffer_store_dword v{vt+1}, v{vt}, s[{S_SYN}:{S_SYN+3}], 0 offen sc1", "s_mov_b64 exec, -1")

F_M, F_G, F_IN0, F_IN1, F_OUTOFF, F_WR, F_RD0, F_RD1, F_MM = 2, 3, 4, 5, 6, 7, 8, 9, 10
F_T = 11
F_IN, F16RE, F16IM, F_TWC, F_TWS, F_DRE, F_DIM, F_P, F_TMP, F32RE, F32IM = 16, 48, 52, 56, 88, 120, 136, 152, 168, 176, 192
SI_OFF, SO_OFF = 52, 68
SO_LIST = [68, 69, 70, 71, 76, 77, 78, 79]

def fft512_addr(a, s_sa, s_cb):
    a.e(f"v_and_b32 v{F_M}, 15, v1", f"v_lshrrev_b32 v{F_G}, 4, v1")
    a.e(f"v_lshlrev_b32 v{F_IN0}, 20, v{F_G}", f"v_lshl_add_u32 v{F_IN0}, v{F_M}, 2, v{F_IN0}", f"v_add_u32 v{F_IN1}, {4*8192}, v{F_IN0}")
    a.e(f"s_lshl_b32 s48, s{s_sa}, 11", f"s_lshl_b32 s49, s{s_cb}, 6", "s_add_u32 s48, s48, s49",
        "s_lshl_b32 s50, s3, 16", "s_add_u32 s48, s48, s50")
    for aa in range(4):
        for i in range(4):
            a.e(f"s_add_u32 s{SI_OFF+4*aa+i}, s48, {(32*i+aa)*8192}")

def fft512_loads(a, SIN, mod=""):
    for hh in range(2):
        for aa in range(4):
            for i in range(4):
                a.e(f"buffer_load_dword v{F_IN+16*hh+4*aa+i}, v{F_IN0+hh}, s[{SIN}:{SIN+3}], s{SI_OFF+4*aa+i} offen {mod}")

def fft512_addr2(a, s_sa, s_cb, orow, ostr):
    a.e(f"s_mov_b32 s51, {16*ostr}", f"v_mul_lo_u32 v{F_OUTOFF}, v{F_M}, s51", f"v_lshl_add_u32 v{F_OUTOFF}, v{F_G}, 4, v{F_OUTOFF}")
    a.e(f"s_mul_i32 s48, s{s_sa}, {orow}", f"s_lshl_b32 s49, s{s_cb}, 6", "s_add_u32 s48, s48, s49",
        f"s_mul_i32 s50, s3, {4*ostr}", "s_add_u32 s48, s48, s50")
    for b in range(4):
        for h in range(2):
            a.e(f"s_add_u32 s{SO_LIST[2*b+h]}, s48, {(b+256*h)*ostr}")
    a.e(f"v_and_b32 v{F_T}, 7, v{F_M}", "s_lshl_b32 s50, s3, 1", f"v_xor_b32 v{F_T+1}, s50, v{F_T}",
        f"v_lshlrev_b32 v{F_WR}, 4, v{F_T+1}", f"v_lshl_add_u32 v{F_WR}, v{F_M}, 7, v{F_WR}",
        f"v_lshl_add_u32 v{F_WR}, v{F_G}, 13, v{F_WR}")
    a.e(f"v_xor_b32 v{F_T+1}, v{F_G}, v{F_T}", f"v_lshlrev_b32 v{F_RD0}, 4, v{F_T+1}",
        f"v_lshl_add_u32 v{F_RD0}, v{F_M}, 7, v{F_RD0}", "s_lshl_b32 s50, s3, 13",
        f"v_add_u32 v{F_RD0}, s50, v{F_RD0}", f"v_xor_b32 v{F_RD1}, 64, v{F_RD0}")

def fft512_consts(a):
    T, TMP = F_T, F_TMP
    XS, XB = T, T+1
    a.e(f"v_cvt_f32_u32 v{XS}, v{F_M}", f"v_mul_f32 v{XS}, {f32hex(1/32)}, v{XS}",
        f"v_cvt_f32_u32 v{T+2}, v{F_G}", f"v_mul_f32 v{T+2}, 4.0, v{T+2}",
        f"v_mul_f32 v{XB}, v{T+2}, v{XS}")
    a.e(f"v_and_b32 v{F_MM}, 1, v{F_M}", f"v_mul_u32_u24 v{F_MM}, 0x8000, v{F_MM}",
        f"v_lshl_or_b32 v{F_MM}, v{F_MM}, 16, v{F_MM}", "s_mov_b32 s50, 0x80008000")
    for i in range(4):
        x = TMP; cs = TMP+1; sn = TMP+2; x2 = TMP+3; cs2 = TMP+4; sn2 = TMP+5
        a.e(f"v_fmamk_f32 v{x}, v{XS}, {f32hex(float(i))}, v{XB}" if i else f"v_mov_b32 v{x}, v{XB}")
        a.e(f"v_add_f32 v{x2}, v{x}, v{x}")
        a.e(f"v_cos_f32 v{cs}, v{x}", f"v_sin_f32 v{sn}, v{x}", f"v_cos_f32 v{cs2}, v{x2}", f"v_sin_f32 v{sn2}, v{x2}")
        a.e(f"v_cvt_pk_bf16_f32 v{F32RE+i}, v{cs}, v{sn}", f"v_cvt_pk_bf16_f32 v{F32IM+i}, -v{sn}, v{cs}",
            f"v_cvt_pk_bf16_f32 v{F16RE+i}, v{cs2}, v{sn2}", f"v_cvt_pk_bf16_f32 v{F16IM+i}, -v{sn2}, v{cs2}")
    for base in (F32RE, F32IM):
        for i in range(4):
            a.e(f"v_xor_b32 v{base+4+i}, v{F_MM}, v{base+i}")
        for t in range(2):
            for i in range(4):
                src = base+4*t+i
                if i & 1: a.e(f"v_xor_b32 v{base+8+4*t+i}, s50, v{src}")
                else:     a.e(f"v_mov_b32 v{base+8+4*t+i}, v{src}")
    a.e(f"v_cvt_f32_u32 v{TMP}, s3", f"v_mul_f32 v{TMP}, {f32hex(8/512)}, v{TMP}")
    for r in range(4):
        a.e(f"v_add_f32 v{TMP+4+r}, {f32hex(float(r)) if r else 0}, v{T+2}")
    for aa in range(8):
        a.e(f"v_add_f32 v{TMP+1}, {f32hex(aa/512) if aa else 0}, v{TMP}")
        for r in range(4):
            a.e(f"v_mul_f32 v{T+3+(r&1)}, v{TMP+1}, v{TMP+4+r}",
                f"v_cos_f32 v{F_TWC+4*aa+r}, v{T+3+(r&1)}", f"v_sin_f32 v{F_TWS+4*aa+r}, v{T+3+(r&1)}")

def fft512_compute(a, SOUT, neg_im, nafter, stmod, st0, fs=0, hook=None):
    TMP = F_TMP
    stamp(a, st0)
    for hh in range(2):
        fstamp(a, fs+5*hh)
        for aa in range(4):
            a.e(f"s_waitcnt vmcnt({28-16*hh-4*aa+nafter})")
            a.e(f"v_mfma_f32_16x16x32_bf16 {v(F_DRE+4*aa,4)}, {v(F16RE,4)}, {v(F_IN+16*hh+4*aa,4)}, 0",
                f"v_mfma_f32_16x16x32_bf16 {v(F_DIM+4*aa,4)}, {v(F16IM,4)}, {v(F_IN+16*hh+4*aa,4)}, 0")
        if hh == 1:
            stamp(a, st0+1)
            if hook: hook()
        fstamp(a, fs+5*hh+1)
        for aa in range(4):
            for p in range(2):
                re, im = F_DRE+4*aa+2*p, F_DIM+4*aa+2*p
                tc, ts = F_TWC+16*hh+4*aa+2*p, F_TWS+16*hh+4*aa+2*p
                t0, t1 = TMP+4*p, TMP+4*p+2
                a.e(f"v_pk_mul_f32 {v(t0,2)}, {v(re,2)}, {v(tc,2)}",
                    f"v_pk_mul_f32 {v(t1,2)}, {v(im,2)}, {v(tc,2)}",
                    f"v_pk_fma_f32 {v(t0,2)}, {v(im,2)}, {v(ts,2)}, {v(t0,2)}",
                    f"v_pk_fma_f32 {v(t1,2)}, {v(re,2)}, {v(ts,2)}, {v(t1,2)} neg_lo:[1,0,0] neg_hi:[1,0,0]")
                for e in range(2):
                    r = 2*p+e
                    a.e(f"v_cvt_pk_bf16_f32 v{F_P+4*r+aa}, v{t0+e}, v{t1+e}")
        fstamp(a, fs+5*hh+2)
        if hh == 1: a.e(f"v_xor_b32 v{F_WR}, 16, v{F_WR}")
        for r in range(4):
            a.e(f"ds_write_b128 v{F_WR}, {v(F_P+4*r,4)} offset:{r*2048}")
    a.e("s_waitcnt lgkmcnt(0)")
    fstamp(a, fs+8)
    a.e("s_barrier")
    fstamp(a, fs+9)
    for b in range(4):
        a.e(f"ds_read_b128 {v(F_IN+8*b,4)}, v{F_RD0} offset:{b*2048}",
            f"ds_read_b128 {v(F_IN+8*b+4,4)}, v{F_RD1} offset:{b*2048}")
    sg = "-" if neg_im else ""
    def mf(bb):
        D0 = [F_DRE, F_DIM] if bb == 0 else [F_TWC, F_TWC+16]
        for bl in range(2):
            b = 2*bb+bl
            a.e(f"s_waitcnt lgkmcnt({6-2*b})")
            for t in range(2):
                for h in range(2):
                    for (D_, F_) in ((D0[0], F32RE), (D0[1], F32IM)):
                        d = D_+8*bl+4*h
                        c = "0" if t == 0 else v(d, 4)
                        a.e(f"v_mfma_f32_16x16x32_bf16 {v(d,4)}, {v(F_IN+8*b+4*t,4)}, {v(F_+8*h+4*t,4)}, {c}")
    def st(bb):
        D0 = [F_DRE, F_DIM] if bb == 0 else [F_TWC, F_TWC+16]
        PB = F_P if bb == 0 else F_TWS
        out = []
        for bl in range(2):
            b = 2*bb+bl
            for h in range(2):
                idx = 8*bl+4*h
                for r in range(4):
                    out.append(f"v_cvt_pk_bf16_f32 v{PB+idx+r}, v{D0[0]+idx+r}, {sg}v{D0[1]+idx+r}")
                out.append(f"buffer_store_dwordx4 {v(PB+idx,4)}, v{F_OUTOFF}, s[{SOUT}:{SOUT+3}], s{SO_LIST[2*b+h]} offen {stmod}")
        return out
    mf(0)
    n0 = len(a.lines)
    mf(1)
    m1 = a.lines[n0:]; del a.lines[n0:]
    s0 = st(0)
    k = 0
    seen = 0
    for l in m1:
        a.lines.append(l)
        if "v_mfma" in l:
            seen += 1
            if seen > 4:
                for _ in range(2):
                    if k < len(s0): a.e(s0[k]); k += 1
    while k < len(s0): a.e(s0[k]); k += 1
    fstamp(a, fs+10)
    for l in st(1): a.e(l)

def f8_addr(a, s_sa, s_cb, orow, ostr):
    a.e(f"v_and_b32 v{F_M}, 15, v1", f"v_lshrrev_b32 v{F_G}, 4, v1")
    a.e(f"v_and_b32 v{F_T}, 7, v1", f"v_bfe_u32 v{F_T+1}, v1, 3, 1",
        f"v_lshlrev_b32 v{F_IN0}, 20, v{F_G}", f"v_lshl_add_u32 v{F_IN0}, v{F_T+1}, 15, v{F_IN0}",
        f"v_lshl_add_u32 v{F_IN0}, v{F_T}, 2, v{F_IN0}")
    a.e(f"s_lshl_b32 s48, s{s_sa}, 11", f"s_lshl_b32 s49, s{s_cb}, 5", "s_add_u32 s48, s48, s49",
        "s_lshl_b32 s50, s3, 16", "s_add_u32 s48, s48, s50")
    for aa in range(4):
        for i in range(4):
            a.e(f"s_add_u32 s{SI_OFF+4*aa+i}, s48, {(32*i+aa)*8192}")
    a.e(f"v_lshrrev_b32 v{F_T+2}, 1, v{F_G}", f"v_lshl_add_u32 v{F_T+2}, v{F_M}, 4, v{F_T+2}",
        f"s_mov_b32 s51, {ostr}", f"v_mul_lo_u32 v{F_OUTOFF}, v{F_T+2}, s51",
        f"v_and_b32 v{F_T+2}, 1, v{F_G}", f"v_lshl_add_u32 v{F_OUTOFF}, v{F_T+2}, 4, v{F_OUTOFF}")
    a.e(f"s_mul_i32 s48, s{s_sa}, {orow}", f"s_lshl_b32 s49, s{s_cb}, 5", "s_add_u32 s48, s48, s49",
        f"s_mul_i32 s50, s3, {4*ostr}", "s_add_u32 s48, s48, s50")
    for b in range(2):
        for h in range(2):
            a.e(f"s_add_u32 s{SO_LIST[2*b+h]}, s48, {(2*b+256*h)*ostr}")
    a.e("s_lshl_b32 s50, s3, 1", f"v_add_u32 v{F_T+2}, s50, v{F_T+1}", f"v_xor_b32 v{F_T+2}, v{F_T+2}, v{F_T}",
        f"v_lshlrev_b32 v{F_WR}, 4, v{F_T+2}", f"v_lshl_add_u32 v{F_WR}, v{F_T}, 7, v{F_WR}", f"v_lshl_add_u32 v{F_WR}, v{F_G}, 12, v{F_WR}")
    a.e(f"v_xor_b32 v{F_T+2}, v{F_G}, v{F_T}", f"v_lshlrev_b32 v{F_RD0}, 4, v{F_T+2}",
        f"v_lshl_add_u32 v{F_RD0}, v{F_T}, 7, v{F_RD0}", f"v_lshl_add_u32 v{F_RD0}, v{F_T+1}, 10, v{F_RD0}",
        "s_lshl_b32 s50, s3, 12", f"v_add_u32 v{F_RD0}, s50, v{F_RD0}", f"v_xor_b32 v{F_RD1}, 64, v{F_RD0}")

def f8_consts(a):
    T, TMP = F_T, F_TMP
    XS, XB = T, T+1
    a.e(f"v_cvt_f32_u32 v{XS}, v{F_M}", f"v_mul_f32 v{XS}, {f32hex(1/32)}, v{XS}",
        f"v_cvt_f32_u32 v{T+2}, v{F_G}", f"v_mul_f32 v{T+2}, 4.0, v{T+2}",
        f"v_mul_f32 v{XB}, v{T+2}, v{XS}")
    a.e(f"v_and_b32 v{F_MM}, 1, v{F_M}", f"v_mul_u32_u24 v{F_MM}, 0x8000, v{F_MM}",
        f"v_lshl_or_b32 v{F_MM}, v{F_MM}, 16, v{F_MM}", "s_mov_b32 s50, 0x80008000")
    for i in range(4):
        x = TMP; cs = TMP+1; sn = TMP+2; x2 = TMP+3; cs2 = TMP+4; sn2 = TMP+5
        a.e(f"v_fmamk_f32 v{x}, v{XS}, {f32hex(float(i))}, v{XB}" if i else f"v_mov_b32 v{x}, v{XB}")
        a.e(f"v_add_f32 v{x2}, v{x}, v{x}")
        a.e(f"v_cos_f32 v{cs}, v{x}", f"v_sin_f32 v{sn}, v{x}", f"v_cos_f32 v{cs2}, v{x2}", f"v_sin_f32 v{sn2}, v{x2}")
        a.e(f"v_cvt_pk_bf16_f32 v{F32RE+i}, v{cs}, v{sn}", f"v_cvt_pk_bf16_f32 v{F32IM+i}, -v{sn}, v{cs}",
            f"v_cvt_pk_bf16_f32 v{F16RE+i}, v{cs2}, v{sn2}", f"v_cvt_pk_bf16_f32 v{F16IM+i}, -v{sn2}, v{cs2}")
    for base in (F32RE, F32IM):
        for i in range(4):
            a.e(f"v_xor_b32 v{base+4+i}, v{F_MM}, v{base+i}")
        for t in range(2):
            for i in range(4):
                src = base+4*t+i
                if i & 1: a.e(f"v_xor_b32 v{base+8+4*t+i}, s50, v{src}")
                else:     a.e(f"v_mov_b32 v{base+8+4*t+i}, v{src}")
    a.e(f"v_bfe_u32 v{TMP}, v1, 3, 1", "s_lshl_b32 s50, s3, 1", f"v_add_u32 v{TMP}, s50, v{TMP}",
        f"v_cvt_f32_u32 v{TMP}, v{TMP}", f"v_mul_f32 v{TMP}, {f32hex(4/512)}, v{TMP}")
    for r in range(4):
        a.e(f"v_add_f32 v{TMP+4+r}, {f32hex(float(r)) if r else 0}, v{T+2}")
    for aa in range(4):
        a.e(f"v_add_f32 v{TMP+1}, {f32hex(aa/512) if aa else 0}, v{TMP}")
        for r in range(4):
            a.e(f"v_mul_f32 v{T+3+(r&1)}, v{TMP+1}, v{TMP+4+r}",
                f"v_cos_f32 v{F_TWC+4*aa+r}, v{T+3+(r&1)}", f"v_sin_f32 v{F_TWS+4*aa+r}, v{T+3+(r&1)}")

def f8_run(a, SIN, SOUT, ldmod, stmod):
    TMP = F_TMP
    for aa in range(4):
        for i in range(4):
            a.e(f"buffer_load_dword v{F_IN+4*aa+i}, v{F_IN0}, s[{SIN}:{SIN+3}], s{SI_OFF+4*aa+i} offen {ldmod}")
    fstamp(a, 3)
    for aa in range(4):
        a.e(f"s_waitcnt vmcnt({12-4*aa})")
        a.e(f"v_mfma_f32_16x16x32_bf16 {v(F_DRE+4*aa,4)}, {v(F16RE,4)}, {v(F_IN+4*aa,4)}, 0",
            f"v_mfma_f32_16x16x32_bf16 {v(F_DIM+4*aa,4)}, {v(F16IM,4)}, {v(F_IN+4*aa,4)}, 0")
    fstamp(a, 1)
    for aa in range(4):
        for p in range(2):
            re, im = F_DRE+4*aa+2*p, F_DIM+4*aa+2*p
            tc, ts = F_TWC+4*aa+2*p, F_TWS+4*aa+2*p
            t0, t1 = TMP+4*p, TMP+4*p+2
            a.e(f"v_pk_mul_f32 {v(t0,2)}, {v(re,2)}, {v(tc,2)}",
                f"v_pk_mul_f32 {v(t1,2)}, {v(im,2)}, {v(tc,2)}",
                f"v_pk_fma_f32 {v(t0,2)}, {v(im,2)}, {v(ts,2)}, {v(t0,2)}",
                f"v_pk_fma_f32 {v(t1,2)}, {v(re,2)}, {v(ts,2)}, {v(t1,2)} neg_lo:[1,0,0] neg_hi:[1,0,0]")
            for e in range(2):
                r = 2*p+e
                a.e(f"v_cvt_pk_bf16_f32 v{F_P+4*r+aa}, v{t0+e}, v{t1+e}")
    for r in range(4):
        a.e(f"ds_write_b128 v{F_WR}, {v(F_P+4*r,4)} offset:{r*1024}")
    a.e("s_waitcnt lgkmcnt(0)")
    fstamp(a, 8)
    a.e("s_barrier")
    fstamp(a, 9)
    for b in range(2):
        a.e(f"ds_read_b128 {v(F_IN+8*b,4)}, v{F_RD0} offset:{b*2048}",
            f"ds_read_b128 {v(F_IN+8*b+4,4)}, v{F_RD1} offset:{b*2048}")
    for b in range(2):
        a.e(f"s_waitcnt lgkmcnt({2-2*b})")
        for t in range(2):
            for h in range(2):
                for (D_, F_) in ((F_DRE, F32RE), (F_DIM, F32IM)):
                    d = D_+8*b+4*h
                    c = "0" if t == 0 else v(d, 4)
                    a.e(f"v_mfma_f32_16x16x32_bf16 {v(d,4)}, {v(F_IN+8*b+4*t,4)}, {v(F_+8*h+4*t,4)}, {c}")
    fstamp(a, 10)
    for b in range(2):
        for h in range(2):
            idx = 8*b+4*h
            for r in range(4):
                a.e(f"v_cvt_pk_bf16_f32 v{F_P+idx+r}, v{F_DRE+idx+r}, -v{F_DIM+idx+r}")
            a.e(f"buffer_store_dwordx4 {v(F_P+idx,4)}, v{F_OUTOFF}, s[{SOUT}:{SOUT+3}], s{SO_LIST[2*b+h]} offen {stmod}")

IDX, G_, VG, VGW, VRR, VHR, VST, VW = 2, 3, 6, 7, 8, 12, 13, 14
CRE, CIM, TWC, TWS, WR, WI, ARE, AIM, DF, GA, HRE, HIM, GB, TMP = 16, 32, 48, 64, 80, 96, 112, 128, 144, 160, 164, 168, 172, 188
W2R, W2I, SP, PF, PF2 = 204, 220, 236, 248, 252
LW = 32768; LSC = 16384; LW2 = 49152

def w_dma(a, SWR, SWI, s_rowoff, s_mirroff, s_ldsbase, vlane16):
    a.e(f"s_mov_b32 m0, s{s_ldsbase}", f"buffer_load_dwordx4 v{vlane16}, s[{SWR}:{SWR+3}], s{s_rowoff} offen lds" + NT())
    a.e(f"s_add_u32 s93, s{s_ldsbase}, 1024", "s_mov_b32 m0, s93", f"buffer_load_dwordx4 v{vlane16}, s[{SWI}:{SWI+3}], s{s_rowoff} offen lds" + NT())
    a.e(f"s_add_u32 s92, s{s_mirroff}, 2")
    a.e(f"s_add_u32 s93, s{s_ldsbase}, 2048", "s_mov_b32 m0, s93", f"buffer_load_dwordx4 v{vlane16}, s[{SWR}:{SWR+3}], s92 offen lds" + NT())
    a.e(f"s_add_u32 s93, s{s_ldsbase}, 3072", "s_mov_b32 m0, s93", f"buffer_load_dwordx4 v{vlane16}, s[{SWI}:{SWI+3}], s92 offen lds" + NT())

def pf_loads(a, SWR, SWI, s_rowoff, s_mirroff, dst, vt):
    a.e(f"v_mov_b32 v{vt}, s{s_mirroff}", f"v_mov_b32 v{vt+1}, s{s_rowoff}", f"v_add_u32 v{vt+1}, 1024, v{vt+1}")
    a.e(f"buffer_load_short_d16_hi v{dst}, v{vt}, s[{SWR}:{SWR+3}], 0 offen",
        f"buffer_load_short_d16_hi v{dst+1}, v{vt}, s[{SWI}:{SWI+3}], 0 offen",
        f"buffer_load_short_d16_hi v{dst+2}, v{vt+1}, s[{SWR}:{SWR+3}], 0 offen",
        f"buffer_load_short_d16_hi v{dst+3}, v{vt+1}, s[{SWI}:{SWI+3}], 0 offen")

def w_lds_reads(a, vlo, vhi, dr, di):
    for (dst, o) in ((dr, 0), (di, 1024)):
        for r in range(16):
            e = eidx(r)
            if r < 8: a.e(f"ds_read_u16_d16_hi v{dst+r}, v{vlo} offset:{o+64*e}")
            else:     a.e(f"ds_read_u16_d16_hi v{dst+r}, v{vhi} offset:{o+64*(27-e)}")

def fix_w(a, dr, di, pf):
    a.e("v_cmp_eq_u32 vcc, 0, v1")
    for (r, o) in ((0, 0), (8, 2)):
        a.e(f"v_add_f32 v{TMP}, v{dr+r}, v{pf+o}", f"v_mul_f32 v{TMP}, 0.5, v{TMP}",
            f"v_sub_f32 v{TMP+1}, v{di+r}, v{pf+o+1}", f"v_mul_f32 v{TMP+1}, 0.5, v{TMP+1}",
            f"v_cndmask_b32 v{dr+r}, v{dr+r}, v{TMP}, vcc", f"v_cndmask_b32 v{di+r}, v{di+r}, v{TMP+1}, vcc")

def fft1024(a, mid=None):
    for t in range(4):
        c0 = "0" if t == 0 else v(ARE, 16); c1 = "0" if t == 0 else v(AIM, 16)
        a.e(f"v_mfma_f32_32x32x16_bf16 {v(ARE,16)}, {v(DF+4*t,4)}, {v(CRE+4*t,4)}, {c0}",
            f"v_mfma_f32_32x32x16_bf16 {v(AIM,16)}, {v(DF+4*t,4)}, {v(CIM+4*t,4)}, {c1}")
    for p in range(8):
        re, im, tc, ts = ARE+2*p, AIM+2*p, TWC+2*p, TWS+2*p
        t0 = TMP+4*(p & 1); t1 = t0+2
        a.e(f"v_pk_mul_f32 {v(t0,2)}, {v(re,2)}, {v(tc,2)}",
            f"v_pk_mul_f32 {v(t1,2)}, {v(im,2)}, {v(tc,2)}",
            f"v_pk_fma_f32 {v(t0,2)}, {v(im,2)}, {v(ts,2)}, {v(t0,2)}",
            f"v_pk_fma_f32 {v(t1,2)}, {v(re,2)}, {v(ts,2)}, {v(t1,2)} neg_lo:[1,0,0] neg_hi:[1,0,0]")
        for e in range(2):
            a.e(f"v_cvt_pk_bf16_f32 v{DF+2*p+e}, v{t0+e}, v{t1+e}")
    for t in range(4):
        if mid and t == 1: mid()
        c0 = "0" if t == 0 else v(ARE, 16); c1 = "0" if t == 0 else v(AIM, 16)
        a.e(f"v_mfma_f32_32x32x16_bf16 {v(ARE,16)}, {v(CRE+4*t,4)}, {v(DF+4*t,4)}, {c0}",
            f"v_mfma_f32_32x32x16_bf16 {v(AIM,16)}, {v(CIM+4*t,4)}, {v(DF+4*t,4)}, {c1}")

def a2_consts(a, sT):
    a.e(f"v_and_b32 v{IDX}, 31, v1", f"v_lshrrev_b32 v{G_}, 5, v1")
    XS, XB = TMP, TMP+1
    a.e(f"v_cvt_f32_u32 v{TMP+2}, v{IDX}", f"v_cvt_f32_u32 v{TMP+3}, v{G_}", f"v_mul_f32 v{TMP+3}, 4.0, v{TMP+3}",
        f"v_mul_f32 v{XS}, {f32hex(1/32)}, v{TMP+2}", f"v_mul_f32 v{XB}, v{TMP+3}, v{XS}")
    a.e(f"v_and_b32 v{TMP+4}, 1, v{IDX}", f"v_mul_u32_u24 v{TMP+4}, 0x8000, v{TMP+4}", f"v_lshl_or_b32 v{TMP+4}, v{TMP+4}, 16, v{TMP+4}")
    for t in range(2):
        for i in range(4):
            c = float(8*t+i); x = TMP+5+3*(i & 1)
            a.e(f"v_fmamk_f32 v{x}, v{XS}, {f32hex(c)}, v{XB}" if c else f"v_mov_b32 v{x}, v{XB}")
            a.e(f"v_cos_f32 v{x+1}, v{x}", f"v_sin_f32 v{x+2}, v{x}")
            a.e(f"v_cvt_pk_bf16_f32 v{CRE+4*t+i}, v{x+1}, v{x+2}", f"v_cvt_pk_bf16_f32 v{CIM+4*t+i}, -v{x+2}, v{x+1}")
    for base in (CRE, CIM):
        for i in range(8):
            a.e(f"v_xor_b32 v{base+8+i}, v{TMP+4}, v{base+i}")
    a.e(f"v_mul_f32 v{XS}, {f32hex(1/1024)}, v{TMP+2}", f"v_mul_f32 v{XB}, v{TMP+3}, v{XS}")
    for r in range(16):
        c = float(eidx(r)); x = TMP+5+(r & 1)
        a.e(f"v_fmamk_f32 v{x}, v{XS}, {f32hex(c)}, v{XB}" if c else f"v_mov_b32 v{x}, v{XB}")
        a.e(f"v_cos_f32 v{TWC+r}, v{x}", f"v_sin_f32 v{TWS+r}, v{x}")
    LO, HI, Q, AV, XA0, XA1, E0, E1 = TMP, TMP+1, TMP+2, TMP+3, TMP+4, TMP+5, TMP+6, TMP+7
    JF, KEY, T2, PO, PAR, N16, G4, CS = [TMP+8+i for i in range(8)]
    Lspec, Ldone = newlbl("ghspec"), newlbl("ghdone")
    a.e(f"v_and_b32 v{LO}, 3, v{IDX}", f"v_bfe_u32 v{HI}, v{IDX}, 2, 2")
    a.e(f"v_and_b32 v{N16}, 15, v1", f"v_lshrrev_b32 v{G4}, 4, v1")
    a.e(f"s_cmp_eq_u32 s{sT}, 0", f"s_cbranch_scc1 {Lspec}")
    a.e(f"v_cvt_f32_u32 v{T2}, s{sT}", f"v_cvt_f32_u32 v{JF}, v{HI}", f"v_fmamk_f32 v{JF}, v{JF}, {f32hex(512.0)}, v{T2}",
        f"v_mul_f32 v{JF}, {f32hex(1/2048)}, v{JF}",
        f"v_cvt_f32_u32 v{XA0}, v{G_}", f"v_add_f32 v{XA0}, v{XA0}, v{XA0}", f"v_add_f32 v{XA1}, 1.0, v{XA0}",
        f"v_mul_f32 v{XA0}, v{XA0}, v{JF}", f"v_mul_f32 v{XA1}, v{XA1}, v{JF}",
        f"v_lshlrev_b32 v{Q}, 3, v{LO}", "s_mov_b32 s50, 0x4631914C", f"v_lshrrev_b32 v{Q}, v{Q}, s50",
        f"v_mov_b32 v{AV}, 0.5", f"v_cmp_gt_u32 vcc, 16, v{IDX}", f"v_cndmask_b32 v{AV}, 0, v{AV}, vcc")
    for jj2 in range(4):
        for e in range(2):
            jj = 2*jj2+e
            xa = XA1 if jj >> 2 else XA0
            a.e(f"v_bfe_u32 v{E0+e}, v{Q}, {2*(jj&3)}, 2", f"v_cvt_f32_u32 v{E0+e}, v{E0+e}",
                f"v_fmamk_f32 v{E0+e}, v{E0+e}, {f32hex(0.25)}, v{xa}", f"v_cos_f32 v{E0+e}, v{E0+e}",
                f"v_mul_f32 v{E0+e}, v{E0+e}, v{AV}")
        a.e(f"v_cvt_pk_bf16_f32 v{GA+jj2}, v{E0}, v{E1}")
    a.e(f"v_bfe_u32 v{HI}, v{N16}, 1, 2", f"v_cvt_f32_u32 v{KEY}, v{HI}", f"v_mul_f32 v{KEY}, {f32hex(1/2048)}, v{KEY}",
        f"v_and_b32 v{JF}, 1, v{G4}", f"v_cvt_f32_u32 v{JF}, v{JF}", f"v_fmamk_f32 v{JF}, v{JF}, {f32hex(1024.0)}, v{T2}",
        f"v_add_f32 v{XA1}, {f32hex(512.0)}, v{JF}", f"v_mul_f32 v{XA0}, v{JF}, v{KEY}", f"v_mul_f32 v{XA1}, v{XA1}, v{KEY}",
        f"v_lshrrev_b32 v{CS}, 1, v{G4}", f"v_lshrrev_b32 v{AV}, 3, v{N16}", f"v_cmp_eq_u32 vcc, v{CS}, v{AV}",
        f"v_mov_b32 v{AV}, {f32hex(2.0**-21)}", f"v_cndmask_b32 v{AV}, 0, v{AV}, vcc",
        f"v_and_b32 v{PO}, 1, v{N16}")
    for part, Hd in ((0, HRE), (1, HIM)):
        w0, w1 = (0x1C, 0xBC) if part == 0 else (0x61, 0x6B)
        a.e(f"v_mov_b32 v{Q}, {w0}", f"v_mov_b32 v{PAR}, {w1}", f"v_cmp_eq_u32 vcc, 1, v{PO}", f"v_cndmask_b32 v{Q}, v{Q}, v{PAR}, vcc")
        for jj2 in range(4):
            for e in range(2):
                jj = 2*jj2+e
                xa = XA1 if jj >> 2 else XA0
                a.e(f"v_bfe_u32 v{E0+e}, v{Q}, {2*(jj&3)}, 2", f"v_cvt_f32_u32 v{E0+e}, v{E0+e}",
                    f"v_fmamk_f32 v{E0+e}, v{E0+e}, {f32hex(0.25)}, v{xa}", f"v_cos_f32 v{E0+e}, v{E0+e}",
                    f"v_mul_f32 v{E0+e}, v{E0+e}, v{AV}")
            a.e(f"v_cvt_pk_bf16_f32 v{Hd+jj2}, v{E0}, v{E1}")
    a.e(f"s_branch {Ldone}")
    a.label(Lspec)
    a.e(f"v_and_b32 v{PO}, 1, v{LO}", f"v_lshrrev_b32 v{PAR}, 1, v{LO}")
    a.e(f"v_lshlrev_b32 v{JF}, 2, v{HI}", "s_mov_b32 s50, 0x3120", f"v_lshrrev_b32 v{JF}, v{JF}, s50", f"v_and_b32 v{JF}, 15, v{JF}",
        f"v_lshlrev_b32 v{JF}, 8, v{JF}", f"v_lshlrev_b32 v{T2}, 10, v{PO}",
        f"v_cmp_eq_u32 vcc, 0, v{HI}", f"v_cndmask_b32 v{JF}, v{JF}, v{T2}, vcc", f"v_mov_b32 v{T2}, 0",
        f"v_cndmask_b32 v{Q}, v{PO}, v{T2}, vcc",
        f"v_cvt_f32_u32 v{JF}, v{JF}", f"v_mul_f32 v{JF}, {f32hex(1/2048)}, v{JF}",
        f"v_cvt_f32_u32 v{Q}, v{Q}", f"v_mul_f32 v{Q}, {f32hex(0.25)}, v{Q}",
        f"v_cvt_f32_u32 v{XA0}, v{G_}", f"v_add_f32 v{XA0}, v{XA0}, v{XA0}", f"v_add_f32 v{XA1}, 1.0, v{XA0}",
        f"v_fma_f32 v{XA0}, v{XA0}, v{JF}, v{Q}", f"v_fma_f32 v{XA1}, v{XA1}, v{JF}, v{Q}",
        f"v_cos_f32 v{XA0}, v{XA0}", f"v_cos_f32 v{XA1}, v{XA1}",
        f"v_lshrrev_b32 v{KEY}, 1, v{HI}", f"v_lshl_add_u32 v{KEY}, v{KEY}, 1, v{PAR}",
        f"v_lshrrev_b32 v{T2}, 4, v{IDX}", f"v_lshl_add_u32 v{KEY}, v{T2}, 2, v{KEY}", f"v_mov_b32 v{T2}, 0")
    for jj2 in range(4):
        for e in range(2):
            jj = 2*jj2+e
            xa = XA1 if jj >> 2 else XA0
            a.e(f"v_cmp_eq_u32 vcc, {jj&3}, v{KEY}", f"v_cndmask_b32 v{E0+e}, v{T2}, v{xa}, vcc")
        a.e(f"v_cvt_pk_bf16_f32 v{GA+jj2}, v{E0}, v{E1}")
    SAF, GS = JF, PAR
    a.e(f"v_bfe_u32 v{HI}, v{N16}, 1, 2", f"v_cvt_f32_u32 v{SAF}, v{HI}", f"v_mul_f32 v{SAF}, {f32hex(1/2048)}, v{SAF}",
        f"v_and_b32 v{GS}, 1, v{G4}", f"v_and_b32 v{PO}, 1, v{N16}",
        f"v_lshrrev_b32 v{CS}, 1, v{G4}", f"v_lshrrev_b32 v{T2}, 3, v{N16}",
        f"v_cmp_eq_u32 s[44:45], v{CS}, v{T2}", f"v_cmp_eq_u32 s[46:47], v{GS}, v{PO}", "s_and_b64 s[44:45], s[44:45], s[46:47]",
        f"v_cmp_eq_u32 s[46:47], 0, v{GS}")
    for part, Hd in ((0, HRE), (1, HIM)):
        for jj in range(8):
            sl, par, pi = jj >> 2, (jj >> 1) & 1, jj & 1
            e = E0 + (jj & 1)
            if par != part:
                a.e(f"v_mov_b32 v{e}, 0")
            else:
                if sl == 0:
                    j0, q0, a0 = 1024.0*pi, 0.5*pi, 2.0**-21
                    j1, q1, a1 = 256.0, 0.75*pi, 2.0**-20
                else:
                    j0, q0, a0 = 512.0, 0.75*pi, 2.0**-20
                    j1, q1, a1 = 768.0, 0.75*pi, 2.0**-20
                def sel(dst, x0, x1):
                    a.e(f"v_mov_b32 v{dst}, {f32hex(x1)}", f"v_mov_b32 v{AV}, {f32hex(x0)}", f"v_cndmask_b32 v{dst}, v{dst}, v{AV}, s[46:47]")
                sel(XA0, j0, j1); sel(XA1, q0 + 0.5*part, q1 + 0.5*part)
                a.e(f"v_fma_f32 v{XA0}, v{XA0}, v{SAF}, v{XA1}", f"v_cos_f32 v{XA0}, v{XA0}")
                sel(XA1, a0, a1)
                a.e(f"v_mul_f32 v{XA0}, v{XA0}, v{XA1}", f"v_mov_b32 v{XA1}, 0", f"v_cndmask_b32 v{e}, v{XA1}, v{XA0}, s[44:45]")
            if jj & 1: a.e(f"v_cvt_pk_bf16_f32 v{Hd+(jj>>1)}, v{E0}, v{E1}")
    a.label(Ldone)
    a.e("s_nop 1")


BT_S0, BT_S1, BT_S2, BT_S3 = 52, 56, 60, 64
BT_SOFF = ["0", "s68", "s69", "s70", "s71", "s76", "s77", "s78"]
BT_ROW, BT_CH, BT_MASK = 48, 49, 50
def bt_setup(a):
    a.e(f"s_lshl_b32 s{BT_ROW}, s{sSUBT}, 7", "s_lshl_b32 s51, s3, 5", f"s_add_u32 s{BT_ROW}, s{BT_ROW}, s51", f"s_lshl_b32 s{BT_CH}, s{sCBKT}, 6")
    for i in range(1, 8): a.e(f"s_mov_b32 {BT_SOFF[i]}, {4096*i}")
    a.e(f"s_mov_b32 s{BT_MASK}, 0xffff0000")

def scratch_addr(a, vdst, vcg, vrg):
    a.e(f"s_lshl_b32 s51, s{sSUBT}, 7", "s_lshr_b32 s92, s3, 1", "s_add_u32 s51, s51, s92", "s_lshl_b32 s51, s51, 12",
        f"s_lshl_b32 s92, s{sCBKT}, 7", "s_add_u32 s51, s51, s92", "s_and_b32 s92, s3, 1", "s_lshl_b32 s92, s92, 6", "s_add_u32 s51, s51, s92",
        "s_add_u32 s51, s51, 2048",
        f"v_lshlrev_b32 v{vdst}, 15, v{vcg}", f"v_lshl_add_u32 v{vdst}, v{vrg}, 4, v{vdst}", f"v_add_u32 v{vdst}, s51, v{vdst}")
SCR_SOFF = ["0", "s69", "s71", "s77"]

def emit_B1(a, shadow=None, hook=None, post_mode=None, after_stores=None, nafter=0):
    SK, SV, SSH, SKVT = BT_S0, BT_S1, BT_S2, BT_S3
    srd(a, SK, P_K, P_K+1, 4*MB); srd(a, SV, P_V, P_V+1, 4*MB); srd(a, SSH, P_SHK, P_SHK+1, 8192); srd(a, SKVT, P_OUT, P_OUT+1, 8*MB)
    bt_setup(a)
    soff = BT_SOFF; M = BT_MASK
    CG, RG, S0, CH0, VOFF, VH, VST, VSH = 2, 3, 4, 5, 6, 7, 8, 9
    a.e(f"v_and_b32 v{CG}, 15, v1", f"v_lshrrev_b32 v{RG}, 4, v1",
        f"v_lshl_add_u32 v{S0}, v{RG}, 3, s{BT_ROW}", f"v_lshl_add_u32 v{CH0}, v{CG}, 2, s{BT_CH}",
        f"v_lshlrev_b32 v{VOFF}, 11, v{S0}", f"v_lshl_add_u32 v{VOFF}, v{CH0}, 1, v{VOFF}",
        f"v_subrev_u32 v{VH}, 6144, v{VOFF}",
        f"v_lshlrev_b32 v{VSH}, 3, v{CH0}")
    scratch_addr(a, VST, CG, RG)
    KR, VR, SHR, KF, SHF, KV, TM, PK = 16, 38, 54, 64, 108, 124, 156, 16
    if OPT["bactwait"] and OPT["b1all"]:
        Lw = newlbl("bw")
        a.e(f"s_cmp_eq_u32 s{sACT}, 0", f"s_cbranch_scc1 {Lw}", "s_waitcnt lgkmcnt(0)")
        a.label(Lw)
    if OPT["earlypub"]:
        Lp = newlbl("epub")
        a.e("s_cmp_lg_u32 s3, 0", f"s_cbranch_scc1 {Lp}")
        fin_epoch(a); loc_publish(a)
        a.label(Lp)
    a.e(f"buffer_load_dwordx4 {v(SHR,4)}, v{VSH}, s[{SSH}:{SSH+3}], 0 offen",
        f"buffer_load_dwordx4 {v(SHR+4,4)}, v{VSH}, s[{SSH}:{SSH+3}], 0 offen offset:16")
    for i in range(3):
        a.e(f"buffer_load_dwordx2 {v(KR+2*i,2)}, v{VH}, s[{SK}:{SK+3}], {soff[i>>1]} offen" + (" offset:2048" if i & 1 else "") + (NT() if OPT["ntk"] else ""))
    for i in range(8):
        a.e(f"buffer_load_dwordx2 {v(KR+6+2*i,2)}, v{VOFF}, s[{SK}:{SK+3}], {soff[i>>1]} offen" + (" offset:2048" if i & 1 else "") + (NT() if OPT["ntk"] else ""))
    for i in range(8):
        a.e(f"buffer_load_dwordx2 {v(VR+2*i,2)}, v{VOFF}, s[{SV}:{SV+3}], {soff[i>>1]} offen" + (" offset:2048" if i & 1 else "") + NT())
    stamp(a, 2)
    if OPT["earlypub"]:
        Lq = newlbl("epub2")
        a.e("s_cmp_eq_u32 s3, 0", f"s_cbranch_scc1 {Lq}")
        fin_epoch(a)
        a.label(Lq)
    else:
        fin_epoch(a)
        loc_publish(a)
    if shadow: shadow()
    def wv(n, extra):
        if extra and not OPT["earlypub"]:
            L = newlbl("wv")
            a.e(f"s_cbranch_scc1 {L}", f"s_waitcnt vmcnt({n})")
            a.label(L)
            a.e(f"s_waitcnt vmcnt({n+extra})")
        elif extra == 2 and OPT["earlypub"]:
            L = newlbl("wv")
            a.e(f"s_cbranch_scc1 {L}", f"s_waitcnt vmcnt({n})")
            a.label(L)
            a.e(f"s_waitcnt vmcnt({n+1})")
        else:
            a.e(f"s_waitcnt vmcnt({n})")
    a.e("s_cmp_eq_u32 s3, 0")
    wv(19, 1)
    for ch in range(4):
        for j in range(4):
            src = SHR + 2*ch + (j >> 1)
            if j & 1: a.e(f"v_and_b32 v{SHF+4*j+ch}, s{M}, v{src}")
            else:     a.e(f"v_lshlrev_b32 v{SHF+4*j+ch}, 16, v{src}")
    for i in range(11):
        wv(18-i, 1)
        for hf in range(2):
            a.e(f"v_lshlrev_b32 v{KF+4*i+2*hf}, 16, v{KR+2*i+hf}", f"v_and_b32 v{KF+4*i+2*hf+1}, s{M}, v{KR+2*i+hf}")
    loc_issue(a, 10)
    a.e("s_cmp_eq_u32 s3, 0")
    for i in range(8):
        wv(7-i, 2)
        if i == 7 and hook: hook()
        for hf in range(2):
            a.e(f"v_lshlrev_b32 v{TM+2*hf}, 16, v{VR+2*i+hf}", f"v_and_b32 v{TM+2*hf+1}, s{M}, v{VR+2*i+hf}")
        for hf in range(2):
            acc = KV+4*i+2*hf
            a.e(f"v_pk_mul_f32 {v(acc,2)}, {v(KF+4*(i+3)+2*hf,2)}, {v(SHF+2*hf,2)}")
            for j in range(1, 4):
                a.e(f"v_pk_fma_f32 {v(acc,2)}, {v(KF+4*(i+3-j)+2*hf,2)}, {v(SHF+4*j+2*hf,2)}, {v(acc,2)}")
            a.e(f"v_pk_mul_f32 {v(acc,2)}, {v(acc,2)}, {v(TM+2*hf,2)}")
    stamp(a, 3)
    for ch in range(4):
        for m in range(4):
            a.e(f"v_cvt_pk_bf16_f32 v{PK+4*ch+m}, v{KV+4*(7-2*m)+ch}, v{KV+4*(6-2*m)+ch}")
    sts = [f"buffer_store_dwordx4 {v(PK+4*ch,4)}, v{VST}, s[{SKVT}:{SKVT+3}], {SCR_SOFF[ch]} offen" for ch in range(4)]
    if OPT["twoflag"]:
        for l in sts: a.e(l + (" nt" if OPT["ntscr"] else ""))
        stamp(a, 4)
        a.e(f"s_lshl_b32 s51, s{sCBKT}, 4", f"s_add_u32 s51, s51, s{sSUBT}", f"s_lshl_b32 s51, s51, {FB()}", f"s_add_u32 s92, s51, {SY_B1}")
        La = newlbl("siga")
        a.e("s_waitcnt vmcnt(0)", "s_barrier", "s_cmp_lg_u32 s3, 0", f"s_cbranch_scc1 {La}",
            "v_mov_b32 v14, s92", f"v_mov_b32 v15, s{S_TGT}", "s_mov_b64 exec, 1",
            f"buffer_store_dword v15, v14, s[{S_SYN}:{S_SYN+3}], 0 offen", "s_mov_b64 exec, -1")
        a.label(La)
        if after_stores: after_stores()
        loc_resolve(a, 10, nafter=nafter + 1 if after_stores else 1)
        Lo = newlbl("opt")
        a.e(f"s_cmp_lg_u32 s{sLOC}, 0", f"s_cbranch_scc1 {Lo}", "s_waitcnt vmcnt(0)")
        for l in sts: a.e(l + " sc1")
        a.e(f"s_add_u32 s51, s51, {SY_B1B}")
        signal(a, 51, 14)
        a.label(Lo)
        return
    if OPT["optst"]:
        for l in sts: a.e(l)
        if after_stores: after_stores()
        loc_resolve(a, 10, nafter=nafter)
        Lo = newlbl("opt")
        a.e(f"s_cmp_lg_u32 s{sLOC}, 0", f"s_cbranch_scc1 {Lo}", "s_waitcnt vmcnt(0)")
        for l in sts: a.e(l + " sc1")
        a.e("s_waitcnt vmcnt(0)")
        a.label(Lo)
    else:
        loc_resolve(a, 10)
        dual_store(a, sts)
    stamp(a, 4)
    a.e(f"s_lshl_b32 s51, s{sCBKT}, 4", f"s_add_u32 s51, s51, s{sSUBT}", f"s_lshl_b32 s51, s51, {FB()}", f"s_add_u32 s51, s51, {SY_B1}")
    signal(a, 51, 14, nafter=nafter, bloc=True)

B3_QR, B3_VQ, B3_VT, B3_VO = 208, 224, 225, 226
def emit_B3_pre(a):
    SQ, STT, SOUT = BT_S0, BT_S1, BT_S2
    srd(a, SQ, P_Q, P_Q+1, 4*MB); srd(a, SOUT, P_OUT, P_OUT+1, 8*MB)
    bt_setup(a)
    t = 227
    a.e(f"v_and_b32 v{t}, 15, v1", f"v_lshrrev_b32 v{t+1}, 4, v1",
        f"v_lshl_add_u32 v{t+1}, v{t+1}, 3, s{BT_ROW}", f"v_lshl_add_u32 v{t}, v{t}, 2, s{BT_CH}",
        f"v_lshlrev_b32 v{B3_VQ}, 11, v{t+1}", f"v_lshl_add_u32 v{B3_VQ}, v{t}, 1, v{B3_VQ}",
        f"v_lshlrev_b32 v{B3_VO}, 12, v{t+1}", f"v_lshl_add_u32 v{B3_VO}, v{t}, 1, v{B3_VO}", f"v_add_u32 v{B3_VO}, 2048, v{B3_VO}")
    a.e(f"v_and_b32 v{t}, 15, v1", f"v_lshrrev_b32 v{t+1}, 4, v1")
    scratch_addr(a, B3_VT, t, t+1)
    for i in range(8):
        a.e(f"buffer_load_dwordx2 {v(B3_QR+2*i,2)}, v{B3_VQ}, s[{SQ}:{SQ+3}], {BT_SOFF[i>>1]} offen" + (" offset:2048" if i & 1 else "") + NT())

def emit_B3(a):
    SQ, STT, SOUT = BT_S0, BT_S1, BT_S2
    soff = BT_SOFF; M = BT_MASK
    TR, TF, QF = 16, 48, 80
    a.e(f"s_mov_b32 s{M}, 0xffff0000")
    a.e(f"s_lshl_b32 s51, s{sCBKT}, {4+FB()}", f"s_add_u32 s51, s51, {SY_B2}",
        "v_and_b32 v12, 15, v1", f"v_lshlrev_b32 v12, {FB()}, v12", "v_add_u32 v12, s51, v12")
    a.e("s_waitcnt vmcnt(0)")
    for e in range(8):
        qf = QF + 4*e
        for hf in range(2):
            a.e(f"v_lshlrev_b32 v{qf+2*hf}, 16, v{B3_QR+2*e+hf}", f"v_and_b32 v{qf+2*hf+1}, s{M}, v{B3_QR+2*e+hf}")
    wait_flags(a, 12, 1, 13, 51)
    stamp(a, 10)
    for ch in range(4):
        a.e(f"buffer_load_dwordx4 {v(TR+4*ch,4)}, v{B3_VT}, s[{SOUT}:{SOUT+3}], {SCR_SOFF[ch]} offen" + LDL())
    for ch in range(4):
        a.e(f"s_waitcnt vmcnt({3-ch})")
        for e in range(8):
            src = TR+4*ch+(e >> 1)
            if e & 1: a.e(f"v_and_b32 v{TF+4*e+ch}, s{M}, v{src}")
            else:     a.e(f"v_lshlrev_b32 v{TF+4*e+ch}, 16, v{src}")
    a.e("s_barrier")
    for e in range(8):
        qf = QF + 4*e
        for hf in range(2):
            a.e(f"v_pk_mul_f32 {v(qf+2*hf,2)}, {v(qf+2*hf,2)}, {v(TF+4*e+2*hf,2)}")
        pk = 112+2*e
        for hf in range(2):
            a.e(f"v_cvt_pk_bf16_f32 v{pk+hf}, v{qf+2*hf}, v{qf+2*hf+1}")
        a.e(f"buffer_store_dwordx2 {v(pk,2)}, v{B3_VO}, s[{SOUT}:{SOUT+3}], {soff[e]} offen" + NTO())

def gen_A(a):
    ROLE[0] = 'A'
    SX, SI1, SWR, SWI, SI2, SOUT = 32, 36, 80, 84, 32, 36
    a.e(f"s_setprio {OPT['prioA']}") if OPT['prioA'] else None
    sT, sSA, sCB, sJ, sJM, sJP, sJQ, sTL = 40, 41, 42, 43, 72, 73, 74, 44
    def rows():
        srd(a, SI1, P_WS, P_WS+1, 4*MB, add=WS_I1)
        srd(a, SWR, P_WR, P_WR+1, WBYTES); srd(a, SWI, P_WI, P_WI+1, WBYTES)
        Lr = newlbl("reg")
        a.e("s_lshl_b32 s47, s3, 9", f"s_add_u32 s{sJ}, s{sT}, s47", f"s_mov_b32 s{sJP}, s{sT}", f"s_sub_u32 s{sJQ}, 512, s{sT}",
            f"s_cmp_lg_u32 s{sT}, 0", f"s_cbranch_scc1 {Lr}",
            f"s_mov_b32 s{sJQ}, 256", "s_lshl_b32 s47, s3, 2", "s_lshr_b32 s46, 0x3120, s47", "s_and_b32 s46, s46, 15", f"s_lshl_b32 s{sJ}, s46, 8")
        a.label(Lr)
        a.e(f"s_sub_u32 s{sJM}, 2048, s{sJ}", f"s_and_b32 s{sJM}, s{sJM}, 2047",
            f"s_mul_i32 s{sJ}, s{sJ}, 1026", f"s_mul_i32 s{sJM}, s{sJM}, 1026")
        a.e(f"s_or_b32 s75, s{sT}, s3")
    def wstage():
        a.e("v_lshlrev_b32 v243, 4, v1", "s_lshl_b32 s46, s3, 12", f"s_add_u32 s46, s46, {LW}")
        w_dma(a, SWR, SWI, sJ, sJM, 46, 243)
        pf_loads(a, SWR, SWI, sJ, sJM, PF, 244)
        if not OPT["spec2"]: wstage2()
    def wstage2():
        Ln = newlbl("now2")
        a.e("s_cmp_lg_u32 s75, 0", f"s_cbranch_scc1 {Ln}")
        a.e("v_lshlrev_b32 v243, 4, v1", f"s_mov_b32 s47, {1024*1026}", f"s_mov_b32 s46, {LW2}")
        w_dma(a, SWR, SWI, 47, 47, 46, 243)
        pf_loads(a, SWR, SWI, 47, 47, PF2, 244)
        a.label(Ln)
    a.e(f"s_mov_b32 s{sT}, s{sCU}")
    stamp(a, 0, True); stamp(a, 1)
    Lp1 = newlbl("nop1")
    a.e(f"s_cmp_eq_u32 s{sACT}, 0", f"s_cbranch_scc1 {Lp1}_in")
    if OPT["pA1a"] >= 0: a.e(f"s_setprio {OPT['pA1a']}")
    srd(a, SX, P_X, P_X+1, 4*MB)
    a.e(f"s_lshr_b32 s48, s{sT}, 4", f"s_and_b32 s49, s{sT}, 7",
        f"s_lshr_b32 s{sSA}, s48, 2", "s_bfe_u32 s50, s48, 0x10001", "s_lshl_b32 s50, s50, 3", "s_add_u32 s50, s50, s49",
        "s_lshl_b32 s50, s50, 1", "s_and_b32 s51, s48, 1", f"s_add_u32 s{sCB}, s50, s51",
        "s_lshl_b32 s48, s48, 3", f"s_add_u32 s{sTL}, s48, s49")
    fft512_addr(a, sSA, sCB)
    fft512_loads(a, SX, NT() if OPT["ntx"] else "")
    stamp(a, 12)
    rows()
    if OPT["spec2"]: wstage2()
    fft512_addr2(a, sSA, sCB, 2048, 8192)
    fft512_consts(a)
    fft512_compute(a, SI1, False, 0, "sc1", 2, hook=None if OPT["wlate"] else wstage)
    stamp(a, 4)
    a.e(f"s_lshl_b32 s48, s{sTL}, {FA()}", f"s_add_u32 s48, s48, {SY_A1}")
    fin_epoch(a)
    signal(a, 48, F_TMP)
    a.e(f"s_branch {Lp1}")
    a.label(f"{Lp1}_in")
    if OPT["pA1i"] >= 0: a.e(f"s_setprio {OPT['pA1i']}")
    stamp(a, 12)
    if OPT["b1all"]:
        rows()
        fin_epoch(a)
        if not OPT["wlate"]: wstage()
    else:
        emit_B1(a, shadow=rows, hook=None if OPT["wlate"] else wstage)
    a.label(Lp1)
    pair_pubA(a)
    if OPT["pA1i"] >= 0 or OPT["pA1a"] >= 0: a.e(f"s_setprio {OPT['prioA']}")
    stamp(a, 5)
    if OPT["wlate"] == 2: wstage()
    srd(a, SI2, P_WS, P_WS+1, 4*MB, add=WS_I2)
    a2_consts(a, sT)
    a.e(f"v_lshl_add_u32 v{TMP}, v{G_}, 7, v{IDX}",
        "s_lshl_b32 s48, s3, 12", f"s_add_u32 s48, s48, {LW}",
        f"v_lshl_add_u32 v{VW}, v{TMP}, 1, s48",
        f"v_sub_u32 v{TMP+1}, {1023-32*27}, v{TMP}", f"s_add_u32 s49, s48, 2048", f"v_lshl_add_u32 v{VW+1}, v{TMP+1}, 1, s49")
    a.e(f"v_lshlrev_b32 v{VG}, 12, v{G_}", f"v_lshl_add_u32 v{VG}, v{IDX}, 2, v{VG}",
        "s_lshl_b32 s49, s3, 9",
        f"s_lshl_b32 s52, s{sJP}, 13", "s_add_u32 s52, s52, s49",
        f"s_lshl_b32 s53, s{sJQ}, 13", "s_add_u32 s53, s53, s49")
    a.e(f"v_lshlrev_b32 v{VGW}, 12, v{G_}", f"v_lshl_add_u32 v{VGW}, v{IDX}, 3, v{VGW}", "s_lshl_b32 s50, s3, 10", f"v_add_u32 v{VGW}, s50, v{VGW}",
        f"v_lshlrev_b32 v{VRR}, 9, v{G_}", f"v_lshl_add_u32 v{VRR}, v{IDX}, 2, v{VRR}", "s_lshl_b32 s51, s3, 12", f"v_add_u32 v{VRR}, s51, v{VRR}")
    for t in range(1, 4): a.e(f"v_add_u32 v{VRR+t}, {1024*t}, v{VRR}")
    a.e(f"v_lshrrev_b32 v{TMP}, 4, v1", f"v_and_b32 v{TMP+1}, 1, v{TMP}", f"v_lshlrev_b32 v{VHR}, 13, v{TMP+1}",
        f"v_lshrrev_b32 v{TMP+1}, 1, v{TMP}", f"v_lshl_add_u32 v{VHR}, v{TMP+1}, 7, v{VHR}",
        f"v_and_b32 v{TMP+1}, 15, v1", f"v_lshl_add_u32 v{VHR}, v{TMP+1}, 3, v{VHR}", f"v_add_u32 v{VHR}, s50, v{VHR}")
    a.e(f"v_and_b32 v{TMP+2}, 1, v{TMP+1}", f"v_mov_b32 v{TMP+3}, s52", f"v_mov_b32 v{TMP+4}, s53",
        f"v_cmp_eq_u32 vcc, 1, v{TMP+2}", f"v_cndmask_b32 v{VST}, v{TMP+3}, v{TMP+4}, vcc",
        f"v_bfe_u32 v{TMP+2}, v{TMP+1}, 1, 2", f"v_lshl_add_u32 v{VST}, v{TMP+2}, 11, v{VST}",
        f"v_lshrrev_b32 v{TMP+2}, 3, v{TMP+1}", f"v_lshl_add_u32 v{VST}, v{TMP+2}, 6, v{VST}",
        f"v_lshl_add_u32 v{VST}, v{TMP}, 4, v{VST}")
    a.e(f"v_lshlrev_b32 v{TMP}, {FA()}, v1", f"v_add_u32 v{TMP}, {SY_A1}, v{TMP}")
    stamp(a, 6)
    wait_flags(a, TMP, 2, TMP+1, 48)
    if OPT["yieldB"] == 1: a_state(a, sT, 1, TMP)
    stamp(a, 7)
    for u in range(4):
        for sl in range(2):
            for pq in range(2):
                a.e(f"buffer_load_dword v{GB+4*u+2*sl+pq}, v{VG}, s[{SI1}:{SI1+3}], s{52+pq} offen offset:{2048*sl+128*u} sc1")
    NWL = 0
    if OPT["wlate"] == 1:
        wstage(); NWL = 8
        if not OPT["spec2"]:
            Lsw = newlbl("spw")
            a.e("s_cmp_lg_u32 s75, 0", f"s_cbranch_scc1 {Lsw}", "s_waitcnt vmcnt(0)")
            a.label(Lsw)
    for rnd in range(2):
        a.e(f"s_waitcnt vmcnt({8-8*rnd+NWL})")
        if rnd == OPT.get("yat", 1) and OPT["yieldB"] == 3:
            a_state(a, sT, 1, 240)
        for uu in range(2):
            u = 2*rnd+uu
            a.e(f"v_mfma_f32_32x32x16_bf16 {v(ARE if uu == 0 else AIM,16)}, {v(GA,4)}, {v(GB+4*u,4)}, 0")
        for uu in range(2):
            u = 2*rnd+uu
            D = ARE if uu == 0 else AIM
            t = TMP+4*uu
            for h in range(2):
                a.e(f"v_cvt_pk_bf16_f32 v{t}, v{D+4*h}, v{D+4*h+1}", f"v_cvt_pk_bf16_f32 v{t+1}, v{D+4*h+2}, v{D+4*h+3}",
                    f"ds_write_b64 v{VGW}, {v(t,2)} offset:{256*u+8192*h}")
                t += 2
    a.e("s_waitcnt lgkmcnt(0)", "s_barrier")
    stamp(a, 8)
    if OPT["qA"] and not OPT["a3all"]:
        Lq = newlbl("noqA")
        a.e(f"s_cmp_lg_u32 s{sACT}, 0", f"s_cbranch_scc1 {Lq}")
        emit_B3_pre(a)
        a.label(Lq)
    for t in range(4):
        a.e(f"ds_read2_b32 {v(DF+4*t,2)}, v{VRR+t} offset0:0 offset1:32", f"ds_read2_b32 {v(DF+4*t+2,2)}, v{VRR+t} offset0:64 offset1:96")
    a.e("s_waitcnt lgkmcnt(0)")
    Lsp, Linv, Lfwd, Lpre = newlbl("special"), newlbl("inv"), newlbl("fwd"), newlbl("pre")
    sPASS = 45
    if OPT["spec2"]:
        a.e(f"s_mov_b32 s{sPASS}, 0", "s_cmp_lg_u32 s75, 0", f"s_cbranch_scc1 {Lpre}")
        for i in range(16): a.e(f"v_lshrrev_b32 v{GB+i}, 16, v{DF+i}", f"v_and_b32 v{DF+i}, 0xffff, v{DF+i}")
        a.label(Lpre)
    def wmid():
        Lk = newlbl("wskip")
        if OPT["spec2"]: a.e(f"s_cmp_lg_u32 s{sPASS}, 0", f"s_cbranch_scc1 {Lk}")
        if OPT["qA"] and not OPT["a3all"]:
            L1, L2 = newlbl("wa"), newlbl("wb")
            a.e(f"s_cmp_lg_u32 s{sACT}, 0", f"s_cbranch_scc1 {L1}", "s_waitcnt vmcnt(8)", f"s_branch {L2}")
            a.label(L1); a.e("s_waitcnt vmcnt(0)"); a.label(L2)
        else:
            a.e("s_waitcnt vmcnt(0)")
        w_lds_reads(a, VW, VW+1, WR, WI)
        a.label(Lk)
    if OPT["wlate"] == 1:
        a.label(Lfwd); a.e("s_nop 1")
        fft1024(a, mid=wmid)
    else:
        w_lds_reads(a, VW, VW+1, WR, WI)
        a.label(Lfwd); a.e("s_nop 1")
        fft1024(a)
    a.e("s_waitcnt lgkmcnt(0)")
    Lnf = newlbl("nofix")
    if OPT["spec2"]: a.e(f"s_cmp_lg_u32 s{sPASS}, 0", f"s_cbranch_scc1 {Lnf}")
    fix_w(a, WR, WI, PF)
    a.label(Lnf)
    a.e("s_cmp_eq_u32 s75, 0", f"s_cbranch_scc1 {Lsp}")
    for p in range(8):
        xr, xi, wr, wi = ARE+2*p, AIM+2*p, WR+2*p, WI+2*p
        t0 = TMP+4*(p & 1); t1 = t0+2
        n0 = " neg_lo:[1,0,0] neg_hi:[1,0,0]" if p < 4 else ""
        n1 = "" if p < 4 else " neg_lo:[1,0,0] neg_hi:[1,0,0]"
        a.e(f"v_pk_mul_f32 {v(t0,2)}, {v(xr,2)}, {v(wr,2)}", f"v_pk_mul_f32 {v(t1,2)}, {v(xi,2)}, {v(wr,2)}",
            f"v_pk_fma_f32 {v(t0,2)}, {v(xi,2)}, {v(wi,2)}, {v(t0,2)}{n0}",
            f"v_pk_fma_f32 {v(t1,2)}, {v(xr,2)}, {v(wi,2)}, {v(t1,2)}{n1}")
        for e in range(2):
            a.e(f"v_cvt_pk_bf16_f32 v{DF+2*p+e}, v{t0+e}, -v{t1+e}")
    a.label(Linv)
    a.e("s_nop 1")
    fft1024(a)
    for r in range(16):
        t = TMP + (r & 7)
        a.e(f"v_cvt_pk_bf16_f32 v{t}, v{ARE+r}, v{AIM+r}", f"ds_write_b32 v{VRR}, v{t} offset:{128*eidx(r)}")
    a.e("s_waitcnt lgkmcnt(0)", "s_barrier")
    if OPT["yieldB"]:
        Ly = newlbl("y0a")
        if OPT["y0"]: a.e(f"s_cmp_lg_u32 s{sT}, 0", f"s_cbranch_scc1 {Ly}")
        a_state(a, sT, 2, TMP)
        a.label(Ly)
    stamp(a, 9)
    for u in range(4):
        for sl in range(2):
            a.e(f"ds_read_b64 {v(GB+4*u+2*sl,2)}, v{VHR} offset:{4096*sl+256*u}")
    a.e("s_lshl_b32 s49, s3, 9")
    for u in range(4):
        a.e(f"s_waitcnt lgkmcnt({6-2*u})")
        a.e(f"v_mfma_f32_16x16x32_bf16 {v(ARE+4*u,4)}, {v(GB+4*u,4)}, {v(HRE,4)}, 0",
            f"v_mfma_f32_16x16x32_bf16 {v(AIM+4*u,4)}, {v(GB+4*u,4)}, {v(HIM,4)}, 0")
    for u in range(4):
        for r in range(4):
            a.e(f"v_cvt_pk_bf16_f32 v{DF+4*u+r}, v{ARE+4*u+r}, v{AIM+4*u+r}")
        a.e(f"buffer_store_dwordx4 {v(DF+4*u,4)}, v{VST}, s[{SI2}:{SI2+3}], 0 offen offset:{128*u} sc1")
    dstamp(a, 6); dpublish(a, sT)
    a.e(f"s_lshl_b32 s48, s{sT}, {FA()}", f"s_add_u32 s48, s48, {SY_A2}")
    signal(a, 48, TMP)
    stamp(a, 10)
    Lb3 = newlbl("b3")
    if OPT["a3all"]:
        srd(a, SOUT, P_OUT, P_OUT+1, 8*MB)
        a.e(f"s_lshr_b32 s48, s{sT}, 3", f"s_and_b32 s49, s{sT}, 7", f"s_lshr_b32 s{sSA}, s48, 3", "s_bfe_u32 s50, s48, 0x10002",
            "s_lshl_b32 s50, s50, 3", "s_add_u32 s50, s50, s49", "s_lshl_b32 s50, s50, 2", "s_and_b32 s51, s48, 3", f"s_add_u32 s{sCB}, s50, s51")
        f8_addr(a, sSA, sCB, 4096, 16384)
        f8_consts(a)
        a.e(f"v_lshlrev_b32 v{F_TMP}, {FA()}, v1", f"v_add_u32 v{F_TMP}, {SY_A2}, v{F_TMP}")
        wait_flags(a, F_TMP, 4, F_TMP+1, 48)
        stamp(a, 11)
        PHASE[0] = 3
        fstamp(a, 11)
        f8_run(a, SI2, SOUT, "sc1", NTO())
    else:
        a.e(f"s_cmp_eq_u32 s{sACT}, 0", f"s_cbranch_scc1 {Lb3}")
        srd(a, SOUT, P_OUT, P_OUT+1, 8*MB)
        fft512_addr(a, sSA, sCB)
        fft512_addr2(a, sSA, sCB, 4096, 16384)
        fft512_consts(a)
        a.e(f"v_lshlrev_b32 v{F_TMP}, {FA()}, v1", f"v_add_u32 v{F_TMP}, {SY_A2}, v{F_TMP}")
        wait_flags(a, F_TMP, 4, F_TMP+1, 48)
        stamp(a, 11)
        PHASE[0] = 3
        fstamp(a, 11)
        fft512_loads(a, SI2, "sc1")
        fstamp(a, 3)
        save = gen.PROF; gen.PROF = False
        fft512_compute(a, SOUT, True, 0, NTO(), 0)
        gen.PROF = save
    a.e("s_cmp_lg_u32 s75, 0", "s_cbranch_scc1 L_fin")
    Lb1, Lb2 = newlbl("bchk"), newlbl("bchkd")
    a.e("v_lshlrev_b32 v2, 6, v1", f"v_add_u32 v2, {SY_ID}, v2", f"s_lshl_b32 s49, s{S_TGT}, 4", "s_mov_b32 s48, 0")
    a.label(Lb1)
    NS = NMEM()*8//64
    for i in range(NS):
        a.e(f"s_mov_b32 s50, {4096*i}", f"buffer_load_dword v{4+i}, v2, s[{S_SYN}:{S_SYN+3}], s50 offen sc1")
    a.e("s_add_u32 s48, s48, 1", "s_waitcnt vmcnt(0)")
    for i in range(NS): a.e(f"v_xor_b32 v{4+i}, s49, v{4+i}")
    for i in range(1, NS): a.e(f"v_or_b32 v4, v4, v{4+i}")
    a.e("v_lshrrev_b32 v4, 4, v4", "v_cmp_ne_u32 vcc, 0, v4", f"s_cbranch_vccz {Lb2}", f"s_cmp_lt_u32 s48, {SPIN_LIMIT}", f"s_cbranch_scc1 {Lb1}")
    a.label(Lb2)
    dreduce(a)
    pair_sum(a)
    a.e(f"s_mov_b32 s48, {SY_E}")
    bump(a, 48, 2)
    a.e("s_branch L_fin")
    if not OPT["a3all"]:
        a.label(Lb3)
        if not OPT["qA"]: emit_B3_pre(a)
        emit_B3(a)
        a.e("s_branch L_fin")
    a.label(Lsp)
    if OPT["spec2"]:
        Lp1s = newlbl("sp1")
        NEG = " neg_lo:[1,0,0] neg_hi:[1,0,0]"
        a.e(f"s_cmp_lg_u32 s{sPASS}, 0", f"s_cbranch_scc1 {Lp1s}")
        a.e(f"v_lshl_add_u32 v{SP}, v{G_}, 7, v{IDX}", f"v_sub_u32 v{SP+1}, {1023-32*27}, v{SP}",
            f"s_mov_b32 s48, {LW2}", f"v_lshl_add_u32 v{SP+2}, v{SP}, 1, s48", f"s_mov_b32 s49, {LW2+2048}", f"v_lshl_add_u32 v{SP+3}, v{SP+1}, 1, s49")
        w_lds_reads(a, SP+2, SP+3, W2R, W2I)
        for p in range(8):
            xr, xi, wr, wi = ARE+2*p, AIM+2*p, WR+2*p, WI+2*p
            t0 = TMP+4*(p & 1); t1 = t0+2
            n0 = NEG if p < 4 else ""; n1 = "" if p < 4 else NEG
            a.e(f"v_pk_mul_f32 {v(t0,2)}, {v(xr,2)}, {v(wr,2)}", f"v_pk_mul_f32 {v(t1,2)}, {v(xi,2)}, {v(wr,2)}",
                f"v_pk_fma_f32 {v(wr,2)}, {v(xi,2)}, {v(wi,2)}, {v(t0,2)}{n0}",
                f"v_pk_fma_f32 {v(wi,2)}, {v(xr,2)}, {v(wi,2)}, {v(t1,2)}{n1}")
        for i in range(16): a.e(f"v_mov_b32 v{DF+i}, v{GB+i}")
        a.e(f"s_mov_b32 s{sPASS}, 1", f"s_branch {Lfwd}")
        a.label(Lp1s)
        fix_w(a, W2R, W2I, PF2)
        for p in range(8):
            xr, xi, br, bi, r1r, r1i = ARE+2*p, AIM+2*p, W2R+2*p, W2I+2*p, WR+2*p, WI+2*p
            t0 = TMP+4*(p & 1); t1 = t0+2
            n0 = NEG if p < 4 else ""; n1 = "" if p < 4 else NEG
            a.e(f"v_pk_mul_f32 {v(t0,2)}, {v(xr,2)}, {v(br,2)}", f"v_pk_mul_f32 {v(t1,2)}, {v(xi,2)}, {v(br,2)}",
                f"v_pk_fma_f32 {v(t0,2)}, {v(xi,2)}, {v(bi,2)}, {v(t0,2)}{n0}",
                f"v_pk_fma_f32 {v(t1,2)}, {v(xr,2)}, {v(bi,2)}, {v(t1,2)}{n1}",
                f"v_pk_add_f32 {v(t1,2)}, {v(r1r,2)}, {v(t1,2)} neg_lo:[0,1] neg_hi:[0,1]",
                f"v_pk_add_f32 {v(t0,2)}, {v(r1i,2)}, {v(t0,2)}")
            for e in range(2):
                a.e(f"v_cvt_pk_bf16_f32 v{DF+2*p+e}, v{t1+e}, -v{t0+e}")
        a.e(f"s_branch {Linv}")
        return
    a.e(f"v_lshl_add_u32 v{TMP}, v{G_}, 7, v{IDX}", f"v_sub_u32 v{TMP+1}, {1023-32*27}, v{TMP}",
        f"s_mov_b32 s48, {LW2}", f"v_lshl_add_u32 v{TMP+2}, v{TMP}, 1, s48", f"s_mov_b32 s49, {LW2+2048}", f"v_lshl_add_u32 v{TMP+3}, v{TMP+1}, 1, s49")
    w_lds_reads(a, TMP+2, TMP+3, W2R, W2I)
    a.e("s_waitcnt lgkmcnt(0)")
    fix_w(a, W2R, W2I, PF2)
    VS = SP; K0 = SP+1
    a.e(f"v_lshlrev_b32 v{VS}, 9, v{G_}", f"v_lshl_add_u32 v{VS}, v{IDX}, 2, v{VS}")
    for r in range(16):
        a.e(f"ds_write_b32 v{VS}, v{ARE+r} offset:{LSC+128*eidx(r)}", f"ds_write_b32 v{VS}, v{AIM+r} offset:{LSC+4096+128*eidx(r)}")
    a.e(f"v_lshl_add_u32 v{K0}, v{G_}, 7, v{IDX}", f"v_sub_u32 v{K0}, 1024, v{K0}", "s_waitcnt lgkmcnt(0)")
    for r in range(16):
        ad, rr, ri, ur, ui, vr, vi, o0, o1 = [SP+2+i for i in range(9)]
        a.e(f"v_subrev_u32 v{ad}, {32*eidx(r)}, v{K0}", f"v_and_b32 v{ad}, 1023, v{ad}", f"v_lshlrev_b32 v{ad}, 2, v{ad}",
            f"ds_read_b32 v{rr}, v{ad} offset:{LSC}", f"ds_read_b32 v{ri}, v{ad} offset:{LSC+4096}", "s_waitcnt lgkmcnt(0)")
        pr, pi_ = ARE+r, AIM+r
        a.e(f"v_add_f32 v{ur}, v{pr}, v{rr}", f"v_sub_f32 v{ui}, v{pi_}, v{ri}",
            f"v_sub_f32 v{vr}, v{pr}, v{rr}", f"v_add_f32 v{vi}, v{pi_}, v{ri}")
        sg = "-" if r < 8 else ""; ns = "" if r < 8 else "-"
        ar, ai, br, bi = WR+r, WI+r, W2R+r, W2I+r
        a.e(f"v_mul_f32 v{o0}, v{ur}, v{ar}", f"v_fma_f32 v{o0}, {sg}v{ui}, v{ai}, v{o0}",
            f"v_fma_f32 v{o0}, v{vr}, v{br}, v{o0}", f"v_fma_f32 v{o0}, {sg}v{vi}, v{bi}, v{o0}",
            f"v_mul_f32 v{o1}, v{ui}, v{ar}", f"v_fma_f32 v{o1}, {ns}v{ur}, v{ai}, v{o1}",
            f"v_fma_f32 v{o1}, v{vi}, v{br}, v{o1}", f"v_fma_f32 v{o1}, {ns}v{vr}, v{bi}, v{o1}",
            f"v_mul_f32 v{o0}, 0.5, v{o0}", f"v_mul_f32 v{o1}, 0.5, v{o1}",
            f"v_cvt_pk_bf16_f32 v{DF+r}, v{o0}, -v{o1}")
    a.e(f"s_branch {Linv}")

def h_dma(a, SH, sLB, sD4K):
    a.e("v_lshlrev_b32 v235, 4, v1")
    a.e(f"s_add_u32 s74, s{sLB}, 32", "s_mov_b32 m0, s74")
    for ch in range(4): a.e(f"buffer_load_dwordx4 v235, s[{SH}:{SH+3}], s{sD4K} offen offset:{1024*ch} lds" + (NT() if OPT["nth"] else ""))
    a.e(f"s_add_u32 s74, s{sLB}, 4192", f"s_add_u32 s75, s{sD4K}, 2", "s_mov_b32 m0, s74")
    for ch in range(4): a.e(f"buffer_load_dwordx4 v235, s[{SH}:{SH+3}], s75 offen offset:{1024*ch} lds" + (NT() if OPT["nth"] else ""))
    a.e("v_mov_b32 v233, 0x7ffffff0", f"v_mov_b32 v234, s{sD4K}", "v_cmp_eq_u32 vcc, 15, v1", "v_cndmask_b32 v233, v233, v234, vcc",
        f"buffer_load_short_d16_hi v230, v233, s[{SH}:{SH+3}], 0 offen")

def gen_B(a):
    ROLE[0] = 'B'
    SH, STT, SKVT = 80, 84, 32
    a.e(f"s_setprio {OPT['prioB']}") if OPT['prioB'] else None
    srd(a, SH, P_SSMK, P_SSMK+1, 4*MB); srd(a, STT, P_OUT, P_OUT+1, 8*MB)
    sCBK, sSUB, sD, sD4K, sLB, sDV, sF1, sF2, sMASK = 40, 41, 42, 43, 44, 45, 46, 47, 72
    a.e(f"s_and_b32 s{sCBK}, s2, 15",
        f"s_lshr_b32 s{sSUB}, s2, 4",
        f"s_lshl_b32 s{sD}, s{sCBK}, 4", f"s_add_u32 s{sD}, s{sD}, s{sSUB}", f"s_lshl_b32 s{sD}, s{sD}, 2", f"s_add_u32 s{sD}, s{sD}, s3",
        f"s_lshl_b32 s{sD4K}, s{sD}, 12", f"s_mul_i32 s{sLB}, s3, {LB_STRIDE}", f"s_mov_b32 s{sMASK}, 0xffff0000")
    sSB = 36
    a.e(f"s_and_b32 s73, s{sD}, 63", "s_lshl_b32 s73, s73, 13", f"s_lshl_b32 s74, s{sCBK}, 7", "s_add_u32 s73, s73, s74", f"s_add_u32 s{sSB}, s73, 2048")
    for i in range(1, 4): a.e(f"s_add_u32 s{sSB+i}, s{sSB}, {i*2*MB}")
    a.e(f"s_lshl_b32 s73, s{sCBK}, {4+FB()}", f"s_add_u32 s{sF1}, s73, {SY_B1}", f"s_lshl_b32 s74, s{sSUB}, {FB()}", "s_add_u32 s73, s73, s74", f"s_add_u32 s{sF2}, s73, {SY_B2}")
    a.e(f"s_and_b32 s73, s{sD}, 0xfffffffe", "s_lshl_b32 s73, s73, 1", f"s_load_dword s{sDV}, s[{P_SSMD}:{P_SSMD+1}], s73")
    stamp(a, 0, True); stamp(a, 1)
    Lidle, Lsetup = newlbl("bidle"), newlbl("bsetup")
    if OPT["pB1"]: a.e(f"s_setprio {OPT['pB1']}")
    if OPT["b1all"]:
        a.e(f"s_mov_b32 s{sCBKT}, s{sCBK}", f"s_mov_b32 s{sSUBT}, s{sSUB}")
        if OPT["hearly"] and not OPT["hlate"]:
            emit_B1(a, after_stores=lambda: h_dma(a, SH, sLB, sD4K), nafter=9)
        else:
            emit_B1(a)
            if not OPT["hlate"]: h_dma(a, SH, sLB, sD4K)
    else:
        a.e(f"s_cmp_lg_u32 s{sACT}, 0", f"s_cbranch_scc1 {Lidle}")
        if OPT["hearly"] and not OPT["hlate"]:
            emit_B1(a, after_stores=lambda: h_dma(a, SH, sLB, sD4K), nafter=9)
        else:
            emit_B1(a)
            if not OPT["hlate"]: h_dma(a, SH, sLB, sD4K)
        a.e(f"s_branch {Lsetup}")
        a.label(Lidle)
        if OPT["tlb"] or OPT["cpf"]: warm(a)
        fin_epoch(a)
        loc_publish(a)
        loc_issue(a, 10)
        loc_resolve(a, 10, barrier=False)
        if not OPT["hlate"]:
            for _ in range(OPT["hactdelay"]):
                a.e("v_and_b32 v12, 15, v1", f"v_lshlrev_b32 v12, {FB()}, v12", f"v_add_u32 v12, s{sF1}, v12",
                    f"buffer_load_dword v13, v12, s[{S_SYN}:{S_SYN+3}], 0 offen sc1", "s_waitcnt vmcnt(0)")
            h_dma(a, SH, sLB, sD4K)
    a.label(Lsetup)
    if OPT["pB1"]: a.e(f"s_setprio {OPT['prioB']}")
    stamp(a, 12)
    if OPT["yieldB"] >= 2 and OPT["yinit"]:
        a_state(a, sCU, 0, 233)
    LN16, B_, G4, VA, VB, VE, VS2, T = 2, 3, 4, 5, 9, 10, 11, 12
    a.e(f"v_lshlrev_b32 v{T}, 2, v1",
        f"v_add_u32 v{T+1}, {4160-32}, v{T}", "v_cmp_le_u32 vcc, 8, v1", f"v_cndmask_b32 v{T+3}, v{T}, v{T+1}, vcc",
        f"v_add_u32 v{T+1}, 8288, v{T}", "v_cmp_le_u32 vcc, 16, v1", f"v_cndmask_b32 v{T+3}, v{T+3}, v{T+1}, vcc",
        f"v_add_u32 v231, s{sLB}, v{T+3}")
    a.e(f"v_lshlrev_b32 v{T}, 3, v1", f"v_add_u32 v{T}, s{sLB}, v{T}", "v_mov_b32 v16, 0", "v_mov_b32 v17, 0", f"ds_write_b64 v{T}, v[16:17] offset:8288")
    a.e(f"v_and_b32 v{B_}, 15, v1", f"v_lshrrev_b32 v{G4}, 4, v1")
    a.e(f"v_and_b32 v{VA}, 1, v{B_}", f"v_xor_b32 v{VA}, 1, v{VA}", f"v_mul_u32_u24 v{VA}, 4160, v{VA}",
        f"v_add_u32 v{VA+1}, 1, v{B_}", f"v_lshrrev_b32 v{VA+1}, 1, v{VA+1}", f"v_lshl_add_u32 v{VA}, v{VA+1}, 2, v{VA}",
        f"v_lshlrev_b32 v{VA+1}, 4, v{G4}", f"v_sub_u32 v{VA}, v{VA}, v{VA+1}",
        f"s_add_u32 s73, s{sLB}, 16", f"v_add_u32 v{VA}, s73, v{VA}")
    for pp in range(1, 4): a.e(f"v_add_u32 v{VA+pp}, {1024*pp}, v{VA}")
    a.e(f"v_lshlrev_b32 v{VB}, 5, v{B_}", f"v_lshl_add_u32 v{VB}, v{G4}, 4, v{VB}",
        f"s_add_u32 s73, s{sLB}, {8800-480}", f"v_add_u32 v{VB}, s73, v{VB}")
    a.e(f"v_lshrrev_b32 v18, 1, v{G4}", f"v_lshlrev_b32 v19, 4, v18", f"v_lshl_add_u32 v19, v{B_}, 5, v19",
        f"v_and_b32 v18, 1, v{G4}", "v_xor_b32 v18, 1, v18", f"v_lshl_add_u32 v19, v18, 3, v19",
        f"s_add_u32 s73, s{sLB}, 8800", f"v_add_u32 v232, s73, v19")
    a.e(f"v_lshrrev_b32 v18, 3, v{B_}", f"v_lshlrev_b32 v{VS2}, 19, v18", f"v_bfe_u32 v18, v{B_}, 2, 1", f"v_lshl_add_u32 v{VS2}, v18, 12, v{VS2}",
        f"v_and_b32 v18, 1, v{G4}", f"v_lshl_add_u32 v{VS2}, v18, 20, v{VS2}", f"v_and_b32 v18, 3, v{B_}", f"v_lshl_add_u32 v{VS2}, v18, 5, v{VS2}",
        f"v_lshrrev_b32 v18, 1, v{G4}", f"v_lshl_add_u32 v{VS2}, v18, 4, v{VS2}")
    a.e(f"v_lshlrev_b32 v{LN16}, 19, v{G4}", "v_bfe_u32 v18, v1, 3, 1", f"v_lshl_add_u32 v{LN16}, v18, 12, v{LN16}",
        "v_and_b32 v18, 7, v1", f"v_lshl_add_u32 v{LN16}, v18, 4, v{LN16}")
    a.e("v_lshlrev_b32 v18, 4, v1", f"s_add_u32 s73, s{sLB}, 8800", "v_add_u32 v19, s73, v18")
    a.e("s_waitcnt lgkmcnt(0)",
        f"s_and_b32 s73, s{sD}, 1", f"s_lshl_b32 s74, s{sDV}, 16", f"s_and_b32 s75, s{sDV}, 0xffff0000",
        "s_cmp_eq_u32 s73, 1", f"s_cselect_b32 s{sDV}, s75, s74")
    if OPT["twoflag"]:
        a.e(f"s_add_u32 s73, s{sF1}, {SY_B1B-SY_B1}", f"s_cmp_lg_u32 s{sLOC}, 0", f"s_cselect_b32 s{sF1}, s{sF1}, s73")
    a.e(f"v_and_b32 v{T}, 15, v1", f"v_lshlrev_b32 v{T}, {FB()}, v{T}", f"v_add_u32 v{T}, s{sF1}, v{T}")
    stamp(a, 5)
    wait_flags(a, T, 1, T+1, 73)
    loc_read(a, 12)
    stamp(a, 6)
    VE = 232
    ACC = 20
    SETS = [(52, 84), (116, 148)]
    U = SETS[1][1]
    for ch in range(4):
        a.e(f"buffer_load_dwordx4 {v(U+4*ch,4)}, v{LN16}, s[{STT}:{STT+3}], s{sSB+ch} offen" + LDL())
    def reads(rho, st):
        A, B = SETS[st]
        out = []
        for p in range(8):
            o = 8*rho + 128*(p & 1)
            out.append(f"ds_read2_b32 {v(A+4*p,2)}, v{VA+(p>>1)} offset0:{o} offset1:{o+1}")
            out.append(f"ds_read2_b32 {v(A+4*p+2,2)}, v{VA+(p>>1)} offset0:{o+2} offset1:{o+3}")
        outb = [f"ds_read_b128 {v(B+4*q,4)}, v{VB} offset:{512*q+32*(15-rho)}" for q in range(8)]
        return out, outb
    rhos = list(range(1, 16, 2))
    ra, rb = reads(rhos[0], 0)
    if OPT["hlate"]:
        h_dma(a, SH, sLB, sD4K)
        for ch in range(4):
            a.e(f"s_waitcnt vmcnt({3-ch+9})", f"ds_write_b128 v19, {v(U+4*ch,4)} offset:{1024*ch}")
        a.e("s_waitcnt vmcnt(0)", "ds_write_b32 v231, v230", "s_waitcnt lgkmcnt(0)")
        for r in ra: a.e(r)
    else:
        a.e("s_waitcnt vmcnt(4)", "ds_write_b32 v231, v230")
        a.e("s_waitcnt lgkmcnt(0)")
        for r in ra: a.e(r)
        for ch in range(4):
            a.e(f"s_waitcnt vmcnt({3-ch})", f"ds_write_b128 v19, {v(U+4*ch,4)} offset:{1024*ch}")
    a.e("s_waitcnt lgkmcnt(0)")
    for r in rb: a.e(r)
    if OPT["yieldB"]:
        Ly = newlbl("y0b")
        if OPT["y0"]: a.e("s_cmp_lg_u32 s2, 0", f"s_cbranch_scc1 {Ly}")
        if not (OPT["yieldB"] == 2 and OPT["ymid"]): b_yield(a, 233)
        a.label(Ly)
    Lnq = newlbl("noq")
    if OPT["a3all"]:
        a.e(f"s_mov_b32 s{sCBKT}, s{sCBK}", f"s_mov_b32 s{sSUBT}, s{sSUB}")
        if OPT["yieldB"] != 3: emit_B3_pre(a)
    else:
        a.e(f"s_cmp_lg_u32 s{sACT}, 0", f"s_cbranch_scc1 {Lnq}")
        emit_B3_pre(a)
        a.label(Lnq)
    stamp(a, 7)
    for ci, rho in enumerate(rhos):
        st = ci & 1
        A, B = SETS[st]
        if ci+1 < len(rhos):
            ra, rb = reads(rhos[ci+1], st ^ 1); nxt = ra[0:2] + rb + ra[2:]
        else:
            nxt = [f"ds_read_b64 {v(SETS[st^1][0]+2*j,2)}, v{VE} offset:{512*j}" for j in range(8)]
        if OPT["yieldB"] == 3: b_yield_step(a, 233, ci == len(rhos)-1)
        if OPT["yieldB"] == 2 and OPT["ymid"] and ci == OPT["ymid"]: b_yield(a, 233)
        a.e("s_waitcnt lgkmcnt(0)")
        n = 0
        for p in range(8):
            for q in range(8-p):
                j = p+q
                c = "0" if (ci == 0 and p == 0) else v(ACC+4*j, 4)
                a.e(f"v_mfma_f32_16x16x32_bf16 {v(ACC+4*j,4)}, {v(A+4*p,4)}, {v(B+4*q,4)}, {c}")
                if n < len(nxt): a.e(nxt[n])
                n += 1
    KVR = SETS[0][0]; TMv = 116
    if OPT["yieldB"] == 3 and OPT["a3all"]: emit_B3_pre(a)
    a.e("s_waitcnt lgkmcnt(0)")
    stamp(a, 8)
    sts = []
    for jp in range(4):
        base = TMv + 8*jp
        for hh in range(2):
            j = 2*jp+hh
            w0, w1 = KVR+2*j, KVR+2*j+1
            t = 172
            a.e(f"v_and_b32 v{t}, s{sMASK}, v{w1}", f"v_lshlrev_b32 v{t+1}, 16, v{w1}",
                f"v_and_b32 v{t+2}, s{sMASK}, v{w0}", f"v_lshlrev_b32 v{t+3}, 16, v{w0}")
            for r in range(4):
                a.e(f"v_fma_f32 v{t+r}, v{t+r}, s{sDV}, v{ACC+4*j+r}")
            a.e(f"v_cvt_pk_bf16_f32 v{base+2*hh}, v{t}, v{t+1}", f"v_cvt_pk_bf16_f32 v{base+2*hh+1}, v{t+2}, v{t+3}")
        a.e(f"v_permlane16_swap_b32 v{base}, v{base+2}", f"v_permlane16_swap_b32 v{base+1}, v{base+3}")
        sts.append(f"buffer_store_dwordx4 {v(base,4)}, v{VS2}, s[{STT}:{STT+3}], s{sSB+jp} offen")
    dual_store(a, sts)
    signal(a, sF2, 12, bloc=True)
    stamp(a, 9)
    if not OPT["a3all"]: a.e(f"s_cmp_lg_u32 s{sACT}, 0", "s_cbranch_scc1 L_fin")
    emit_B3(a)
    pair_chkB(a)
    a.e("s_branch L_fin")

SY_PA = 4096 + 163840
SY_PB = SY_PA + 16384
def hwid(a, dst):
    a.e(f"s_getreg_b32 s{dst}, hwreg(HW_REG_HW_ID)", f"s_lshr_b32 s{dst}, s{dst}, 8", f"s_and_b32 s{dst}, s{dst}, 0xff",
        "s_getreg_b32 s93, hwreg(HW_REG_XCC_ID)", "s_and_b32 s93, s93, 15", "s_lshl_b32 s93, s93, 8", f"s_or_b32 s{dst}, s{dst}, s93")
def pair_pubA(a):
    if not OPT.get("pair"): return
    L = newlbl("ppa")
    a.e("s_cmp_lg_u32 s3, 0", f"s_cbranch_scc1 {L}")
    hwid(a, 92)
    a.e(f"s_lshl_b32 s93, s{sCU}, 6", f"s_add_u32 s93, s93, {SY_PA}", "v_mov_b32 v240, s93", "v_mov_b32 v241, s92", "s_mov_b64 exec, 1",
        f"buffer_store_dword v241, v240, s[{S_SYN}:{S_SYN+3}], 0 offen sc1", "s_mov_b64 exec, -1")
    a.label(L)
def pair_chkB(a):
    if not OPT.get("pair"): return
    L = newlbl("ppb")
    a.e("s_cmp_lg_u32 s3, 0", f"s_cbranch_scc1 {L}")
    hwid(a, 92)
    a.e(f"s_lshl_b32 s93, s{sCU}, 6", f"s_add_u32 s93, s93, {SY_PA}", "v_mov_b32 v240, s93",
        f"buffer_load_dword v241, v240, s[{S_SYN}:{S_SYN+3}], 0 offen sc1", "s_waitcnt vmcnt(0)", "v_readfirstlane_b32 s93, v241",
        "s_cmp_lg_u32 s92, s93", "s_cselect_b32 s92, 1, 0", f"s_lshl_b32 s93, s{S_TGT}, 1", "s_or_b32 s92, s92, s93",
        f"s_lshl_b32 s93, s{sCU}, 6", f"s_add_u32 s93, s93, {SY_PB}", "v_mov_b32 v240, s93", "v_mov_b32 v241, s92", "s_mov_b64 exec, 1",
        f"buffer_store_dword v241, v240, s[{S_SYN}:{S_SYN+3}], 0 offen sc1", "s_mov_b64 exec, -1", "s_waitcnt vmcnt(0)")
    a.label(L)
def pair_sum(a):
    if not OPT.get("pair"): return
    L1, L2, L3 = newlbl("ps"), newlbl("psd"), newlbl("psp")
    a.e("v_lshlrev_b32 v2, 6, v1", f"v_add_u32 v2, {SY_PB}, v2", f"s_lshl_b32 s49, s{S_TGT}, 1", "s_mov_b32 s48, 0")
    a.label(L1)
    for i in range(4): a.e(f"s_mov_b32 s50, {4096*i}", f"buffer_load_dword v{4+i}, v2, s[{S_SYN}:{S_SYN+3}], s50 offen sc1")
    a.e("s_add_u32 s48, s48, 1", "s_waitcnt vmcnt(0)")
    for i in range(4): a.e(f"v_xor_b32 v{4+i}, s49, v{4+i}")
    a.e("v_or_b32 v8, v4, v5", "v_or_b32 v9, v6, v7", "v_or_b32 v8, v8, v9", "v_lshrrev_b32 v8, 1, v8", "v_cmp_ne_u32 vcc, 0, v8", f"s_cbranch_vccz {L2}",
        f"s_cmp_lt_u32 s48, {SPIN_LIMIT}", f"s_cbranch_scc1 {L1}")
    a.label(L2)
    a.e("s_mov_b32 s48, 0")
    for i in range(4): a.e(f"v_cmp_eq_u32 vcc, 1, v{4+i}", "s_bcnt1_i32_b64 s49, vcc", "s_add_u32 s48, s48, s49")
    a.e(f"s_mov_b32 s92, s{P_DBG}", f"s_mov_b32 s93, s{P_DBG+1}", "s_mov_b32 s94, 256", "s_mov_b32 s95, 0x00020000", "v_mov_b32 v4, 0", "v_mov_b32 v5, s48", "s_mov_b64 exec, 1",
        "buffer_store_dword v5, v4, s[92:95], 0 offen", "s_mov_b64 exec, -1")
    a.e("s_mul_i32 s48, s48, 10", "s_memrealtime s[50:51]", "s_waitcnt lgkmcnt(0)", "s_mov_b32 s49, s50")
    a.label(L3)
    a.e("s_memrealtime s[50:51]", "s_waitcnt lgkmcnt(0)", "s_sub_u32 s50, s50, s49", "s_cmp_lt_u32 s50, s48", f"s_cbranch_scc1 {L3}")

def warm(a):
    if OPT["tlb"]:
        L = newlbl("warm")
        a.e("s_cmp_lg_u32 s3, 3", f"s_cbranch_scc1 {L}")
        pages = [(P_WS, WS_I1), (P_WS, WS_I1+2*MB), (P_WS, WS_I2), (P_WS, WS_I2+2*MB), (P_WS, WS_SYNC+512*1024),
                 (P_OUT, 0), (P_OUT, 2*MB), (P_OUT, 4*MB), (P_OUT, 6*MB),
                 (P_WR, 0), (P_WR, 2*MB), (P_WI, 0), (P_WI, 2*MB), (P_SSMK, 0), (P_SSMK, 2*MB), (P_Q, 0), (P_Q, 2*MB)]
        a.e("v_mov_b32 v240, 0", "v_mov_b32 v241, 0")
        for i, (p, off) in enumerate(pages):
            a.e(f"s_add_u32 s92, s{p}, {off}", f"s_addc_u32 s93, s{p+1}, 0", f"v_writelane_b32 v240, s92, {i}", f"v_writelane_b32 v241, s93, {i}")
        a.e(f"s_mov_b64 exec, {(1 << len(pages)) - 1}", "global_load_dword v242, v[240:241], off", "s_mov_b64 exec, -1")
        a.label(L)
    if OPT["cpf"]:
        L = newlbl("warm")
        a.e("s_cmp_ge_u32 s3, 2", f"s_cbranch_scc1 {L}")
        a.e("s_getpc_b64 s[92:93]")
        a.e("s_lshr_b32 s96, s2, 4", "s_and_b32 s96, s96, 15", "s_lshl_b32 s96, s96, 1", "s_add_u32 s96, s96, s3", "s_min_u32 s96, s96, 25",
            "s_lshl_b32 s96, s96, 10", f"s_sub_u32 s92, s92, {OPT['cpf']}", "s_subb_u32 s93, s93, 0",
            "s_add_u32 s92, s92, s96", "s_addc_u32 s93, s93, 0", "v_lshlrev_b32 v240, 4, v1",
            "global_load_dwordx4 v[236:239], v240, s[92:93]")
        a.label(L)

def gen_kernel():
    a = Asm(); a.name = "p"
    a.e("s_cmp_ge_u32 s2, 512", "s_cbranch_scc1 L_exit")
    if OPT.get("spinT") or OPT.get("span"): a.e("s_memrealtime s[94:95]")
    if gen.PROF: a.e("s_memrealtime s[98:99]", "s_waitcnt lgkmcnt(0)", "v_writelane_b32 v247, s98, 13")
    a.e(f"s_load_dwordx16 s[4:19], s[0:1], 0", f"s_load_dwordx8 s[20:27], s[0:1], 64")
    a.e("v_lshrrev_b32 v1, 6, v0", "v_readfirstlane_b32 s3, v1", "v_and_b32 v1, 63, v0", "s_waitcnt lgkmcnt(0)")
    srd(a, S_SYN, P_WS, P_WS+1, 1*MB, add=WS_SYNC)
    a.e(f"s_mov_b32 s48, {WS_SYNC+SY_E}", f"s_load_dword s{S_TGT}, s[{P_WS}:{P_WS+1}], s48")
    a.e(f"s_mov_b32 s98, {64<<FA()}", f"s_mov_b32 s99, {128<<FA()}", f"s_mov_b32 s100, {192<<FA()}")
    a.e(f"s_and_b32 s{sCU}, s2, 255", f"s_bitcmp0_b32 s2, 3", f"s_cselect_b32 s{sACT}, 1, 0",
        f"s_lshr_b32 s48, s{sCU}, 4", "s_lshl_b32 s48, s48, 3", f"s_and_b32 s49, s{sCU}, 7", "s_add_u32 s48, s48, s49",
        f"s_and_b32 s{sCBKT}, s48, 15", "s_lshr_b32 s48, s48, 4", "s_lshl_b32 s48, s48, 1", "s_lshr_b32 s49, s2, 8", f"s_add_u32 s{sSUBT}, s48, s49")
    a.e("s_cmp_ge_u32 s2, 256", "s_cbranch_scc1 L_A")
    gen_B(a)
    a.label("L_A")
    gen_A(a)
    a.label("L_fin")
    pass
    if gen.PROF:
        a.e("s_waitcnt vmcnt(0)")
        stamp(a, 14); stamp(a, 15, True)
        prof_dump(a)
    if OPT.get("span"):
        Ls = newlbl("span")
        a.e("s_cmp_lg_u32 s3, 0", f"s_cbranch_scc1 {Ls}", "s_waitcnt vmcnt(0)", "s_memrealtime s[92:93]",
            f"s_add_u32 s32, s{P_WS}, {gen.WS_PROF}", f"s_addc_u32 s33, s{P_WS+1}, 0", f"s_mov_b32 s34, {MB}", "s_mov_b32 s35, 0x00020000",
            "s_lshl_b32 s36, s2, 3", "s_waitcnt lgkmcnt(0)", "v_mov_b32 v2, s36", "v_mov_b32 v4, s94", "v_mov_b32 v5, s92", "s_mov_b64 exec, 1",
            "buffer_store_dwordx2 v[4:5], v2, s[32:35], 0 offen", "s_waitcnt vmcnt(0)")
        a.label(Ls)
    if OPT.get("spinT"):
        a.label("L_spin")
        a.e("s_memrealtime s[92:93]", "s_waitcnt lgkmcnt(0)", "s_sub_u32 s92, s92, s94", f"s_cmp_lt_u32 s92, {OPT['spinT']}", "s_cbranch_scc1 L_spin")
    a.label("L_exit")
    a.e("s_endpgm")
    return a

def prof_dump(a):
    if OPT.get("dbgwg", -1) >= 0:
        L = newlbl("nodbg")
        a.e(f"s_cmp_lg_u32 s2, {OPT['dbgwg']}", f"s_cbranch_scc1 {L}", "s_cmp_lg_u32 s3, 0", f"s_cbranch_scc1 {L}")
        a.e("v_readlane_b32 s36, v247, 1", "v_readlane_b32 s37, v247, 13", "v_mov_b32 v250, s36", "v_mov_b32 v251, s37",
            "v_cmp_eq_u32 vcc, 0, v1", "v_cndmask_b32 v250, v250, v251, vcc", "v_cmp_eq_u32 vcc, 13, v1", "v_cndmask_b32 v250, v250, v251, vcc",
            "v_cmp_eq_u32 vcc, 15, v1", "v_cndmask_b32 v250, v250, v251, vcc", "v_sub_u32 v250, v247, v250",
            f"s_mov_b32 s32, s{P_DBG}", f"s_mov_b32 s33, s{P_DBG+1}", "s_mov_b32 s34, 256", "s_mov_b32 s35, 0x00020000",
            "v_lshlrev_b32 v251, 2, v1", "s_mov_b64 exec, 0xffff", "buffer_store_dword v250, v251, s[32:35], 0 offen", "s_waitcnt vmcnt(0)", "s_mov_b64 exec, -1")
        a.label(L)
        return

    a.e(f"s_add_u32 s32, s{P_WS}, {gen.WS_PROF}", f"s_addc_u32 s33, s{P_WS+1}, 0", f"s_mov_b32 s34, {MB}", "s_mov_b32 s35, 0x00020000")
    a.e("s_lshl_b32 s36, s2, 2", "s_add_u32 s36, s36, s3", "s_lshl_b32 s36, s36, 6",
        "v_lshlrev_b32 v250, 2, v1", "v_add_u32 v250, s36, v250", "s_mov_b64 exec, 0xffff",
        "buffer_store_dword v247, v250, s[32:35], 0 offen")
    if OPT.get("fine"):
        a.e("v_add_u32 v250, 0x40000, v250", "buffer_store_dword v246, v250, s[32:35], 0 offen")
    a.e("s_waitcnt vmcnt(0)")
PROFREGS = []

def build(path):
    a = gen_kernel()
    name = "concat_heads__spectral_gfnet__ssm_conv_h3__prompt_kernel"
    s = open("concat_heads__spectral_gfnet__ssm_conv_h3__prompt.s.ref").read().split("; Override")[0]
    s += f"; @launch grid=(512,1,1) block=(256,1,1) lds={LDS_BYTES}\n"
    s += '.amdgcn_target "amdgcn-amd-amdhsa--gfx950"\n' + gen.header(name) + a.text() + gen.descriptor(name, 256, 102)
    s = s.replace(" lds nt", " nt lds")
    open(path, "w").write(s)
    return s

if __name__ == "__main__":
    out = sys.argv[1] if len(sys.argv) > 1 else "pers.s"
    gen.PROF = "prof" in sys.argv[2:]
    for x in sys.argv[2:]:
        if "=" in x:
            k, val = x.split("="); OPT[k] = int(val)
    if OPT["wsend"]:
        base = OPT["wsend"]*MB
        WS_I1, WS_KVT, WS_I2, WS_TT, WS_SYNC = base, base+4*MB, base+8*MB, base+12*MB, base+20*MB
    s = build(out)
    print(out, len(s))
```

```python
import sys
from asmgen import *
import gen
from gen import srd, MB, WS_I1, WS_KVT, WS_I2, WS_TT, KA

PHASE = [1]
def dstamp(a, k, inv=False):
    if not OPT.get("dmax"): return
    a.e("s_memrealtime s[96:97]", "s_waitcnt lgkmcnt(0)", f"v_writelane_b32 v242, s96, {k}")
SY_DG = 4096 + 131072
def dpublish(a, sT):
    if not OPT.get("dmax"): return
    L = newlbl("dp")
    a.e("s_cmp_lg_u32 s3, 0", f"s_cbranch_scc1 {L}", f"s_lshl_b32 s92, s{sT}, 5", f"s_add_u32 s92, s92, {SY_DG}",
        "v_lshlrev_b32 v240, 2, v1", "v_add_u32 v240, s92, v240", "s_mov_b64 exec, 0xff",
        f"buffer_store_dword v242, v240, s[{S_SYN}:{S_SYN+3}], 0 offen sc1", "s_mov_b64 exec, -1")
    a.label(L)
def dreduce(a):
    if not OPT.get("dmax"): return
    a.e(f"s_mov_b32 s92, s{P_DBG}", f"s_mov_b32 s93, s{P_DBG+1}", "s_mov_b32 s94, 256", "s_mov_b32 s95, 0x00020000")
    a.e("v_lshlrev_b32 v2, 5, v1", f"v_add_u32 v2, {SY_DG}, v2")
    for k in range(7):
        for i in range(4):
            a.e(f"s_mov_b32 s50, {2048*i + 4*k}", f"buffer_load_dword v{10+i}, v2, s[{S_SYN}:{S_SYN+3}], s50 offen sc1")
        a.e("s_waitcnt vmcnt(0)")
        if k == 0:
            a.e("v_min_u32 v10, v10, v11", "v_min_u32 v12, v12, v13", "v_min_u32 v10, v10, v12", "s_mov_b32 s51, -1")
            for l in range(64): a.e(f"v_readlane_b32 s48, v10, {l}", "s_min_u32 s51, s51, s48")
            a.e("s_mov_b32 s45, s51")
            continue
        for i in range(4):
            a.e(f"v_subrev_u32 v{10+i}, s45, v{10+i}", f"v_lshlrev_b32 v{10+i}, 8, v{10+i}", f"v_add_u32 v14, {64*i}, v1", f"v_or_b32 v{10+i}, v{10+i}, v14")
        a.e("v_max_u32 v10, v10, v11", "v_max_u32 v12, v12, v13", "v_max_u32 v10, v10, v12", "s_mov_b32 s51, 0")
        for l in range(64): a.e(f"v_readlane_b32 s48, v10, {l}", "s_max_u32 s51, s51, s48")
        a.e("s_lshr_b32 s48, s51, 8", "s_and_b32 s49, s51, 255", "v_mov_b32 v14, s48", "v_mov_b32 v15, s49", f"v_mov_b32 v16, {8*(k-1)}", "s_mov_b64 exec, 1",
            "buffer_store_dwordx2 v[14:15], v16, s[92:95], 0 offen", "s_mov_b64 exec, -1")
DMAP_A = {1: 0, 5: 1, 6: 2, 7: 3, 8: 4, 9: 5}
DMAP_B = {}
ROLE = ["B"]
def fstamp(a, i):
    if OPT.get("fine") != PHASE[0]: return
    a.e('s_memtime s[96:97]', 's_waitcnt lgkmcnt(0)', f'v_writelane_b32 v246, s96, {i}')
def stamp(a, i, real=False):
    if OPT.get("dmax"):
        m = DMAP_A if ROLE[0] == "A" else DMAP_B
        if i in m and i != 14: dstamp(a, m[i])
        return
    if not gen.PROF: return
    a.e('s_memrealtime s[96:97]' if real else 's_memtime s[96:97]', 's_waitcnt lgkmcnt(0)', f'v_writelane_b32 v247, s96, {i}')

WBYTES = 2048*513*2
LB_STRIDE = 12896
LDS_BYTES = 53248
SPIN_LIMIT = 400000
OPT = dict(prioA=0, prioB=0, sleep=0, nt=1, wsend=0, ntout=1, ntw=1, wlate=1, hlate=1, qA=1, fsa=6, fsb=6, shrink=0, loc=1, forceloc=-1, ldloc=1, bdelay=0, earlypub=1, wpos=1, optst=1, locflag=1, hearly=1, twoflag=1, pA1i=-1, pB1=0, ntscr=0, a3all=1, ntk=1, ntv=1, ntx=1, nth=1, hactdelay=0, b1all=1, bactwait=1, pA1a=-1, grp=1, yieldB=0, ylim=40, tlb=0, cpf=0, spec2=1, y0=0, yinit=1, ymid=0)
def NMEM(): return 32 if OPT['b1all'] else 48
def LDL(): return {0: ' sc1', 1: ' nt', 2: ' sc1 nt'}[OPT['ldloc']]
def FA(): return OPT['fsa']
def FB(): return OPT['fsb']
def NT(): return ' nt' if OPT['nt'] else ''
def NTO(): return {0: '', 1: ' nt', 2: ' sc1', 3: ' sc1 nt'}[OPT['ntout']]

P_X, P_WR, P_WI, P_Q, P_K, P_V, P_SHK, P_SSMK, P_SSMD, P_OUT, P_DBG, P_WS = 4, 6, 8, 10, 12, 14, 16, 18, 20, 22, 24, 26
S_DBG = 28
def eidx(r): return (r & 3) + 8*(r >> 2)

_lbl = [0]
def newlbl(p):
    _lbl[0] += 1
    return f"L_{p}_{_lbl[0]}"

WS_SYNC = 20*MB
S_SYN = 28
S_TGT = 101
SY_E, SY_A1, SY_A2, SY_B1, SY_B2 = 0, 4096, 4096+16384, 4096+32768, 4096+49152
sACT, sCBKT, sSUBT, sCU = 88, 89, 90, 91
sLOC, sXEXP = 79, 0
S_DBG = 12
def signal(a, s_off, vt, nafter=0, bloc=False):
    L = newlbl("sig")
    a.e(f"s_waitcnt vmcnt({nafter})", "s_barrier", "s_cmp_lg_u32 s3, 0", f"s_cbranch_scc1 {L}",
        f"v_mov_b32 v{vt}, s{s_off}", f"v_mov_b32 v{vt+1}, s{S_TGT}", "s_mov_b64 exec, 1")
    st = f"buffer_store_dword v{vt+1}, v{vt}, s[{S_SYN}:{S_SYN+3}], 0 offen"
    if bloc and OPT["locflag"]:
        dual_store(a, [st])
    else:
        a.e(st + " sc1")
    a.e("s_mov_b64 exec, -1")
    a.label(L)

def wait_flags(a, vaddr, nload, vt, s_cnt, pre_barrier=None, solo=False):
    L = newlbl("poll"); Ls = newlbl("pdone"); Lr = newlbl("prest")
    if not solo: a.e("s_cmp_lg_u32 s3, 0", f"s_cbranch_scc1 {Ls}")
    a.e(f"s_mov_b32 s{s_cnt}, 0")
    a.label(L)
    offs = ["0", "s98", "s99", "s100"]
    for i in range(nload):
        a.e(f"buffer_load_dword v{vt+i}, v{vaddr}, s[{S_SYN}:{S_SYN+3}], {offs[i]} offen sc1")
    a.e(f"s_add_u32 s{s_cnt}, s{s_cnt}, 1", "s_waitcnt vmcnt(0)")
    for i in range(nload):
        a.e(f"v_xor_b32 v{vt+i}, s{S_TGT}, v{vt+i}")
    for i in range(1, nload):
        a.e(f"v_or_b32 v{vt}, v{vt}, v{vt+i}")
    if OPT["shrink"]:
        a.e(f"v_cmp_ne_u32 vcc, 0, v{vt}", "s_and_b64 exec, exec, vcc", f"s_cbranch_execz {Lr}")
    else:
        a.e(f"v_cmp_ne_u32 vcc, 0, v{vt}", f"s_cbranch_vccz {Lr}")
    if OPT["sleep"]: a.e(f"s_sleep {OPT['sleep']}")
    a.e(f"s_cmp_lt_u32 s{s_cnt}, {SPIN_LIMIT}", f"s_cbranch_scc1 {L}")
    a.label(Lr)
    if OPT["shrink"]: a.e("s_mov_b64 exec, -1")
    a.label(Ls)
    if pre_barrier: a.e(pre_barrier)
    if not solo: a.e("s_barrier")

SY_ID = 4096 + 65536
SY_B1B = 4096 + 98304
SY_AS = 4096 + 114688
LOCW = 53244
def loc_publish(a):
    L = newlbl("pub")
    a.e("s_getreg_b32 s92, hwreg(HW_REG_XCC_ID)", "s_and_b32 s92, s92, 15", f"s_lshl_b32 s{sXEXP}, s{S_TGT}, 4", f"s_or_b32 s{sXEXP}, s{sXEXP}, s92")
    a.e("s_cmp_lg_u32 s3, 0", f"s_cbranch_scc1 {L}")
    if OPT["b1all"] and OPT["grp"]:
        a.e("s_and_b32 s92, s2, 15", "s_lshl_b32 s92, s92, 4", "s_lshr_b32 s93, s2, 4", "s_add_u32 s92, s92, s93", "s_lshl_b32 s92, s92, 6", f"s_add_u32 s92, s92, {SY_ID}")
    else:
        a.e("s_lshr_b32 s92, s2, 3", f"s_lshr_b32 s93, s{sCU}, 4", "s_add_u32 s93, s93, 32", "s_cmp_ge_u32 s2, 256", "s_cselect_b32 s92, s93, s92",
            "s_and_b32 s93, s2, 7", f"s_mul_i32 s93, s93, {NMEM()}", "s_add_u32 s92, s92, s93", "s_lshl_b32 s92, s92, 6", f"s_add_u32 s92, s92, {SY_ID}")
    a.e(
        "v_mov_b32 v10, s92", f"v_mov_b32 v11, s{sXEXP}", "s_mov_b64 exec, 1",
        f"buffer_store_dword v11, v10, s[{S_SYN}:{S_SYN+3}], 0 offen sc1", "s_mov_b64 exec, -1")
    a.label(L)

def loc_issue(a, vt):
    if OPT["b1all"] and OPT["grp"]:
        a.e(f"v_min_u32 v{vt}, 15, v1", "s_and_b32 s93, s2, 15", "s_lshl_b32 s93, s93, 4")
    else:
        a.e(f"v_min_u32 v{vt}, {NMEM()-1}, v1", "s_and_b32 s93, s2, 7", f"s_mul_i32 s93, s93, {NMEM()}")
    a.e(f"v_add_u32 v{vt}, s93, v{vt}",
        f"v_lshlrev_b32 v{vt}, 6, v{vt}", f"v_add_u32 v{vt}, {SY_ID}, v{vt}")
    L = newlbl("li")
    a.e("s_cmp_lg_u32 s3, 0", f"s_cbranch_scc1 {L}")
    a.e(f"buffer_load_dword v{vt+1}, v{vt}, s[{S_SYN}:{S_SYN+3}], 0 offen sc1")
    a.label(L)

def loc_resolve(a, vt, barrier=True, nafter=0):
    L, Ld, Ls = newlbl("locp"), newlbl("locd"), newlbl("locs")
    a.e("s_cmp_lg_u32 s3, 0", f"s_cbranch_scc1 {Ls}")
    if OPT["forceloc"] >= 0:
        a.e(f"s_waitcnt vmcnt({nafter})", f"s_mov_b32 s93, {OPT['forceloc']}")
    else:
        a.e("s_mov_b32 s92, 0", f"s_waitcnt vmcnt({nafter})")
        a.label(L)
        a.e(f"v_xor_b32 v{vt+2}, s{sXEXP}, v{vt+1}", f"v_lshrrev_b32 v{vt+3}, 4, v{vt+2}", "s_add_u32 s92, s92, 1",
            f"v_cmp_ne_u32 vcc, 0, v{vt+3}", f"s_cbranch_vccz {Ld}",
            f"s_cmp_ge_u32 s92, {SPIN_LIMIT}", f"s_cbranch_scc1 {Ld}",
            f"buffer_load_dword v{vt+1}, v{vt}, s[{S_SYN}:{S_SYN+3}], 0 offen sc1", "s_waitcnt vmcnt(0)", f"s_branch {L}")
        a.label(Ld)
        a.e(f"v_cmp_ne_u32 vcc, 0, v{vt+2}", "s_cmp_eq_u64 vcc, 0", "s_cselect_b32 s93, 1, 0")
    a.e(f"s_mov_b32 s{sLOC}, s93", f"v_mov_b32 v{vt+2}, {LOCW}", f"v_mov_b32 v{vt+3}, s93", f"ds_write_b32 v{vt+2}, v{vt+3}", "s_waitcnt lgkmcnt(0)")
    a.label(Ls)
    if barrier:
        a.e("s_barrier")
        loc_read(a, vt)

def loc_read(a, vt):
    a.e(f"v_mov_b32 v{vt+2}, {LOCW}", f"ds_read_b32 v{vt+3}, v{vt+2}", "s_waitcnt lgkmcnt(0)", f"v_readfirstlane_b32 s{sLOC}, v{vt+3}")

def dual_store(a, lines):
    L1, L2 = newlbl("stg"), newlbl("stl")
    a.e(f"s_cmp_eq_u32 s{sLOC}, 0", f"s_cbranch_scc1 {L1}")
    for l in lines: a.e(l)
    a.e(f"s_branch {L2}")
    a.label(L1)
    for l in lines: a.e(l + " sc1" if "buffer_store" in l else l)
    a.label(L2)

def a_state(a, sT, st, vt):
    L = newlbl("ast")
    a.e("s_cmp_lg_u32 s3, 0", f"s_cbranch_scc1 {L}", f"s_lshl_b32 s92, s{sT}, 6", f"s_add_u32 s92, s92, {SY_AS}",
        f"s_lshl_b32 s93, s{S_TGT}, 2", f"s_or_b32 s93, s93, {st}", f"v_mov_b32 v{vt}, s92", f"v_mov_b32 v{vt+1}, s93", "s_mov_b64 exec, 1",
        f"buffer_store_dword v{vt+1}, v{vt}, s[{S_SYN}:{S_SYN+3}], 0 offen", "s_mov_b64 exec, -1")
    a.label(L)

def y_ld(vt): return f"buffer_load_dword v{vt+1}, v{vt}, s[{S_SYN}:{S_SYN+3}], 0 offen " + ("sc1" if OPT.get("ysc", 1) else "nt")
def b_yield(a, vt):
    L, Ld = newlbl("yl"), newlbl("yd")
    a.e(f"s_lshl_b32 s92, s{sCU}, 6", f"s_add_u32 s92, s92, {SY_AS}", f"v_mov_b32 v{vt}, s92", f"s_lshl_b32 s75, s{S_TGT}, 2", "s_mov_b32 s92, 0")
    a.e(f"s_or_b32 s75, s75, {2 if OPT['yieldB'] == 2 else 1}")
    if OPT["yieldB"] == 3:
        a.e(y_ld(vt)); return
    a.label(L)
    a.e(y_ld(vt), "s_add_u32 s92, s92, 1", "s_waitcnt vmcnt(0)",
        f"v_readfirstlane_b32 s93, v{vt+1}", "s_cmp_lg_u32 s93, s75" if OPT["yieldB"] == 1 else "s_cmp_eq_u32 s93, s75", f"s_cbranch_scc1 {Ld}",
        f"s_cmp_lt_u32 s92, {OPT['ylim']}", f"s_cbranch_scc1 {L}")
    a.label(Ld)

def b_yield_step(a, vt, last):
    L, Ld = newlbl("ys"), newlbl("ysd")
    a.label(L)
    a.e("s_waitcnt vmcnt(0)", f"v_readfirstlane_b32 s93, v{vt+1}", "s_cmp_lg_u32 s93, s75", f"s_cbranch_scc1 {Ld}",
        f"s_cmp_ge_u32 s92, {OPT['ylim']}", f"s_cbranch_scc1 {Ld}", "s_add_u32 s92, s92, 1", y_ld(vt), f"s_branch {L}")
    a.label(Ld)
    if not last: a.e(y_ld(vt))

def fin_epoch(a):
    a.e("s_waitcnt lgkmcnt(0)", f"s_add_u32 s{S_TGT}, s{S_TGT}, 1")

def bump(a, s_off, vt):
    a.e(f"v_mov_b32 v{vt}, s{s_off}", f"v_mov_b32 v{vt+1}, s{S_TGT}", "s_mov_b64 exec, 1",
        f"buffer_store_dword v{vt+1}, v{vt}, s[{S_SYN}:{S_SYN+3}], 0 offen sc1", "s_mov_b64 exec, -1")

F_M, F_G, F_IN0, F_IN1, F_OUTOFF, F_WR, F_RD0, F_RD1, F_MM = 2, 3, 4, 5, 6, 7, 8, 9, 10
F_T = 11
F_IN, F16RE, F16IM, F_TWC, F_TWS, F_DRE, F_DIM, F_P, F_TMP, F32RE, F32IM = 16, 48, 52, 56, 88, 120, 136, 152, 168, 176, 192
SI_OFF, SO_OFF = 52, 68
SO_LIST = [68, 69, 70, 71, 76, 77, 78, 79]

def fft512_addr(a, s_sa, s_cb):
    a.e(f"v_and_b32 v{F_M}, 15, v1", f"v_lshrrev_b32 v{F_G}, 4, v1")
    a.e(f"v_lshlrev_b32 v{F_IN0}, 20, v{F_G}", f"v_lshl_add_u32 v{F_IN0}, v{F_M}, 2, v{F_IN0}", f"v_add_u32 v{F_IN1}, {4*8192}, v{F_IN0}")
    a.e(f"s_lshl_b32 s48, s{s_sa}, 11", f"s_lshl_b32 s49, s{s_cb}, 6", "s_add_u32 s48, s48, s49",
        "s_lshl_b32 s50, s3, 16", "s_add_u32 s48, s48, s50")
    for aa in range(4):
        for i in range(4):
            a.e(f"s_add_u32 s{SI_OFF+4*aa+i}, s48, {(32*i+aa)*8192}")

def fft512_loads(a, SIN, mod=""):
    for hh in range(2):
        for aa in range(4):
            for i in range(4):
                a.e(f"buffer_load_dword v{F_IN+16*hh+4*aa+i}, v{F_IN0+hh}, s[{SIN}:{SIN+3}], s{SI_OFF+4*aa+i} offen {mod}")

def fft512_addr2(a, s_sa, s_cb, orow, ostr):
    a.e(f"s_mov_b32 s51, {16*ostr}", f"v_mul_lo_u32 v{F_OUTOFF}, v{F_M}, s51", f"v_lshl_add_u32 v{F_OUTOFF}, v{F_G}, 4, v{F_OUTOFF}")
    a.e(f"s_mul_i32 s48, s{s_sa}, {orow}", f"s_lshl_b32 s49, s{s_cb}, 6", "s_add_u32 s48, s48, s49",
        f"s_mul_i32 s50, s3, {4*ostr}", "s_add_u32 s48, s48, s50")
    for b in range(4):
        for h in range(2):
            a.e(f"s_add_u32 s{SO_LIST[2*b+h]}, s48, {(b+256*h)*ostr}")
    a.e(f"v_and_b32 v{F_T}, 7, v{F_M}", "s_lshl_b32 s50, s3, 1", f"v_xor_b32 v{F_T+1}, s50, v{F_T}",
        f"v_lshlrev_b32 v{F_WR}, 4, v{F_T+1}", f"v_lshl_add_u32 v{F_WR}, v{F_M}, 7, v{F_WR}",
        f"v_lshl_add_u32 v{F_WR}, v{F_G}, 13, v{F_WR}")
    a.e(f"v_xor_b32 v{F_T+1}, v{F_G}, v{F_T}", f"v_lshlrev_b32 v{F_RD0}, 4, v{F_T+1}",
        f"v_lshl_add_u32 v{F_RD0}, v{F_M}, 7, v{F_RD0}", "s_lshl_b32 s50, s3, 13",
        f"v_add_u32 v{F_RD0}, s50, v{F_RD0}", f"v_xor_b32 v{F_RD1}, 64, v{F_RD0}")

def fft512_consts(a):
    T, TMP = F_T, F_TMP
    XS, XB = T, T+1
    a.e(f"v_cvt_f32_u32 v{XS}, v{F_M}", f"v_mul_f32 v{XS}, {f32hex(1/32)}, v{XS}",
        f"v_cvt_f32_u32 v{T+2}, v{F_G}", f"v_mul_f32 v{T+2}, 4.0, v{T+2}",
        f"v_mul_f32 v{XB}, v{T+2}, v{XS}")
    a.e(f"v_and_b32 v{F_MM}, 1, v{F_M}", f"v_mul_u32_u24 v{F_MM}, 0x8000, v{F_MM}",
        f"v_lshl_or_b32 v{F_MM}, v{F_MM}, 16, v{F_MM}", "s_mov_b32 s50, 0x80008000")
    for i in range(4):
        x = TMP; cs = TMP+1; sn = TMP+2; x2 = TMP+3; cs2 = TMP+4; sn2 = TMP+5
        a.e(f"v_fmamk_f32 v{x}, v{XS}, {f32hex(float(i))}, v{XB}" if i else f"v_mov_b32 v{x}, v{XB}")
        a.e(f"v_add_f32 v{x2}, v{x}, v{x}")
        a.e(f"v_cos_f32 v{cs}, v{x}", f"v_sin_f32 v{sn}, v{x}", f"v_cos_f32 v{cs2}, v{x2}", f"v_sin_f32 v{sn2}, v{x2}")
        a.e(f"v_cvt_pk_bf16_f32 v{F32RE+i}, v{cs}, v{sn}", f"v_cvt_pk_bf16_f32 v{F32IM+i}, -v{sn}, v{cs}",
            f"v_cvt_pk_bf16_f32 v{F16RE+i}, v{cs2}, v{sn2}", f"v_cvt_pk_bf16_f32 v{F16IM+i}, -v{sn2}, v{cs2}")
    for base in (F32RE, F32IM):
        for i in range(4):
            a.e(f"v_xor_b32 v{base+4+i}, v{F_MM}, v{base+i}")
        for t in range(2):
            for i in range(4):
                src = base+4*t+i
                if i & 1: a.e(f"v_xor_b32 v{base+8+4*t+i}, s50, v{src}")
                else:     a.e(f"v_mov_b32 v{base+8+4*t+i}, v{src}")
    a.e(f"v_cvt_f32_u32 v{TMP}, s3", f"v_mul_f32 v{TMP}, {f32hex(8/512)}, v{TMP}")
    for r in range(4):
        a.e(f"v_add_f32 v{TMP+4+r}, {f32hex(float(r)) if r else 0}, v{T+2}")
    for aa in range(8):
        a.e(f"v_add_f32 v{TMP+1}, {f32hex(aa/512) if aa else 0}, v{TMP}")
        for r in range(4):
            a.e(f"v_mul_f32 v{T+3+(r&1)}, v{TMP+1}, v{TMP+4+r}",
                f"v_cos_f32 v{F_TWC+4*aa+r}, v{T+3+(r&1)}", f"v_sin_f32 v{F_TWS+4*aa+r}, v{T+3+(r&1)}")

def fft512_compute(a, SOUT, neg_im, nafter, stmod, st0, fs=0, hook=None):
    TMP = F_TMP
    stamp(a, st0)
    for hh in range(2):
        fstamp(a, fs+5*hh)
        for aa in range(4):
            a.e(f"s_waitcnt vmcnt({28-16*hh-4*aa+nafter})")
            a.e(f"v_mfma_f32_16x16x32_bf16 {v(F_DRE+4*aa,4)}, {v(F16RE,4)}, {v(F_IN+16*hh+4*aa,4)}, 0",
                f"v_mfma_f32_16x16x32_bf16 {v(F_DIM+4*aa,4)}, {v(F16IM,4)}, {v(F_IN+16*hh+4*aa,4)}, 0")
        if hh == 1:
            stamp(a, st0+1)
            if hook: hook()
        fstamp(a, fs+5*hh+1)
        for aa in range(4):
            for p in range(2):
                re, im = F_DRE+4*aa+2*p, F_DIM+4*aa+2*p
                tc, ts = F_TWC+16*hh+4*aa+2*p, F_TWS+16*hh+4*aa+2*p
                t0, t1 = TMP+4*p, TMP+4*p+2
                a.e(f"v_pk_mul_f32 {v(t0,2)}, {v(re,2)}, {v(tc,2)}",
                    f"v_pk_mul_f32 {v(t1,2)}, {v(im,2)}, {v(tc,2)}",
                    f"v_pk_fma_f32 {v(t0,2)}, {v(im,2)}, {v(ts,2)}, {v(t0,2)}",
                    f"v_pk_fma_f32 {v(t1,2)}, {v(re,2)}, {v(ts,2)}, {v(t1,2)} neg_lo:[1,0,0] neg_hi:[1,0,0]")
                for e in range(2):
                    r = 2*p+e
                    a.e(f"v_cvt_pk_bf16_f32 v{F_P+4*r+aa}, v{t0+e}, v{t1+e}")
        fstamp(a, fs+5*hh+2)
        if hh == 1: a.e(f"v_xor_b32 v{F_WR}, 16, v{F_WR}")
        for r in range(4):
            a.e(f"ds_write_b128 v{F_WR}, {v(F_P+4*r,4)} offset:{r*2048}")
    a.e("s_waitcnt lgkmcnt(0)")
    fstamp(a, fs+8)
    a.e("s_barrier")
    fstamp(a, fs+9)
    for b in range(4):
        a.e(f"ds_read_b128 {v(F_IN+8*b,4)}, v{F_RD0} offset:{b*2048}",
            f"ds_read_b128 {v(F_IN+8*b+4,4)}, v{F_RD1} offset:{b*2048}")
    sg = "-" if neg_im else ""
    def mf(bb):
        D0 = [F_DRE, F_DIM] if bb == 0 else [F_TWC, F_TWC+16]
        for bl in range(2):
            b = 2*bb+bl
            a.e(f"s_waitcnt lgkmcnt({6-2*b})")
            for t in range(2):
                for h in range(2):
                    for (D_, F_) in ((D0[0], F32RE), (D0[1], F32IM)):
                        d = D_+8*bl+4*h
                        c = "0" if t == 0 else v(d, 4)
                        a.e(f"v_mfma_f32_16x16x32_bf16 {v(d,4)}, {v(F_IN+8*b+4*t,4)}, {v(F_+8*h+4*t,4)}, {c}")
    def st(bb):
        D0 = [F_DRE, F_DIM] if bb == 0 else [F_TWC, F_TWC+16]
        PB = F_P if bb == 0 else F_TWS
        out = []
        for bl in range(2):
            b = 2*bb+bl
            for h in range(2):
                idx = 8*bl+4*h
                for r in range(4):
                    out.append(f"v_cvt_pk_bf16_f32 v{PB+idx+r}, v{D0[0]+idx+r}, {sg}v{D0[1]+idx+r}")
                out.append(f"buffer_store_dwordx4 {v(PB+idx,4)}, v{F_OUTOFF}, s[{SOUT}:{SOUT+3}], s{SO_LIST[2*b+h]} offen {stmod}")
        return out
    mf(0)
    n0 = len(a.lines)
    mf(1)
    m1 = a.lines[n0:]; del a.lines[n0:]
    s0 = st(0)
    k = 0
    seen = 0
    for l in m1:
        a.lines.append(l)
        if "v_mfma" in l:
            seen += 1
            if seen > 4:
                for _ in range(2):
                    if k < len(s0): a.e(s0[k]); k += 1
    while k < len(s0): a.e(s0[k]); k += 1
    fstamp(a, fs+10)
    for l in st(1): a.e(l)

def f8_addr(a, s_sa, s_cb, orow, ostr):
    a.e(f"v_and_b32 v{F_M}, 15, v1", f"v_lshrrev_b32 v{F_G}, 4, v1")
    a.e(f"v_and_b32 v{F_T}, 7, v1", f"v_bfe_u32 v{F_T+1}, v1, 3, 1",
        f"v_lshlrev_b32 v{F_IN0}, 20, v{F_G}", f"v_lshl_add_u32 v{F_IN0}, v{F_T+1}, 15, v{F_IN0}",
        f"v_lshl_add_u32 v{F_IN0}, v{F_T}, 2, v{F_IN0}")
    a.e(f"s_lshl_b32 s48, s{s_sa}, 11", f"s_lshl_b32 s49, s{s_cb}, 5", "s_add_u32 s48, s48, s49",
        "s_lshl_b32 s50, s3, 16", "s_add_u32 s48, s48, s50")
    for aa in range(4):
        for i in range(4):
            a.e(f"s_add_u32 s{SI_OFF+4*aa+i}, s48, {(32*i+aa)*8192}")
    a.e(f"v_lshrrev_b32 v{F_T+2}, 1, v{F_G}", f"v_lshl_add_u32 v{F_T+2}, v{F_M}, 4, v{F_T+2}",
        f"s_mov_b32 s51, {ostr}", f"v_mul_lo_u32 v{F_OUTOFF}, v{F_T+2}, s51",
        f"v_and_b32 v{F_T+2}, 1, v{F_G}", f"v_lshl_add_u32 v{F_OUTOFF}, v{F_T+2}, 4, v{F_OUTOFF}")
    a.e(f"s_mul_i32 s48, s{s_sa}, {orow}", f"s_lshl_b32 s49, s{s_cb}, 5", "s_add_u32 s48, s48, s49",
        f"s_mul_i32 s50, s3, {4*ostr}", "s_add_u32 s48, s48, s50")
    for b in range(2):
        for h in range(2):
            a.e(f"s_add_u32 s{SO_LIST[2*b+h]}, s48, {(2*b+256*h)*ostr}")
    a.e("s_lshl_b32 s50, s3, 1", f"v_add_u32 v{F_T+2}, s50, v{F_T+1}", f"v_xor_b32 v{F_T+2}, v{F_T+2}, v{F_T}",
        f"v_lshlrev_b32 v{F_WR}, 4, v{F_T+2}", f"v_lshl_add_u32 v{F_WR}, v{F_T}, 7, v{F_WR}", f"v_lshl_add_u32 v{F_WR}, v{F_G}, 12, v{F_WR}")
    a.e(f"v_xor_b32 v{F_T+2}, v{F_G}, v{F_T}", f"v_lshlrev_b32 v{F_RD0}, 4, v{F_T+2}",
        f"v_lshl_add_u32 v{F_RD0}, v{F_T}, 7, v{F_RD0}", f"v_lshl_add_u32 v{F_RD0}, v{F_T+1}, 10, v{F_RD0}",
        "s_lshl_b32 s50, s3, 12", f"v_add_u32 v{F_RD0}, s50, v{F_RD0}", f"v_xor_b32 v{F_RD1}, 64, v{F_RD0}")

def f8_consts(a):
    T, TMP = F_T, F_TMP
    XS, XB = T, T+1
    a.e(f"v_cvt_f32_u32 v{XS}, v{F_M}", f"v_mul_f32 v{XS}, {f32hex(1/32)}, v{XS}",
        f"v_cvt_f32_u32 v{T+2}, v{F_G}", f"v_mul_f32 v{T+2}, 4.0, v{T+2}",
        f"v_mul_f32 v{XB}, v{T+2}, v{XS}")
    a.e(f"v_and_b32 v{F_MM}, 1, v{F_M}", f"v_mul_u32_u24 v{F_MM}, 0x8000, v{F_MM}",
        f"v_lshl_or_b32 v{F_MM}, v{F_MM}, 16, v{F_MM}", "s_mov_b32 s50, 0x80008000")
    for i in range(4):
        x = TMP; cs = TMP+1; sn = TMP+2; x2 = TMP+3; cs2 = TMP+4; sn2 = TMP+5
        a.e(f"v_fmamk_f32 v{x}, v{XS}, {f32hex(float(i))}, v{XB}" if i else f"v_mov_b32 v{x}, v{XB}")
        a.e(f"v_add_f32 v{x2}, v{x}, v{x}")
        a.e(f"v_cos_f32 v{cs}, v{x}", f"v_sin_f32 v{sn}, v{x}", f"v_cos_f32 v{cs2}, v{x2}", f"v_sin_f32 v{sn2}, v{x2}")
        a.e(f"v_cvt_pk_bf16_f32 v{F32RE+i}, v{cs}, v{sn}", f"v_cvt_pk_bf16_f32 v{F32IM+i}, -v{sn}, v{cs}",
            f"v_cvt_pk_bf16_f32 v{F16RE+i}, v{cs2}, v{sn2}", f"v_cvt_pk_bf16_f32 v{F16IM+i}, -v{sn2}, v{cs2}")
    for base in (F32RE, F32IM):
        for i in range(4):
            a.e(f"v_xor_b32 v{base+4+i}, v{F_MM}, v{base+i}")
        for t in range(2):
            for i in range(4):
                src = base+4*t+i
                if i & 1: a.e(f"v_xor_b32 v{base+8+4*t+i}, s50, v{src}")
                else:     a.e(f"v_mov_b32 v{base+8+4*t+i}, v{src}")
    a.e(f"v_bfe_u32 v{TMP}, v1, 3, 1", "s_lshl_b32 s50, s3, 1", f"v_add_u32 v{TMP}, s50, v{TMP}",
        f"v_cvt_f32_u32 v{TMP}, v{TMP}", f"v_mul_f32 v{TMP}, {f32hex(4/512)}, v{TMP}")
    for r in range(4):
        a.e(f"v_add_f32 v{TMP+4+r}, {f32hex(float(r)) if r else 0}, v{T+2}")
    for aa in range(4):
        a.e(f"v_add_f32 v{TMP+1}, {f32hex(aa/512) if aa else 0}, v{TMP}")
        for r in range(4):
            a.e(f"v_mul_f32 v{T+3+(r&1)}, v{TMP+1}, v{TMP+4+r}",
                f"v_cos_f32 v{F_TWC+4*aa+r}, v{T+3+(r&1)}", f"v_sin_f32 v{F_TWS+4*aa+r}, v{T+3+(r&1)}")

def f8_run(a, SIN, SOUT, ldmod, stmod):
    TMP = F_TMP
    for aa in range(4):
        for i in range(4):
            a.e(f"buffer_load_dword v{F_IN+4*aa+i}, v{F_IN0}, s[{SIN}:{SIN+3}], s{SI_OFF+4*aa+i} offen {ldmod}")
    fstamp(a, 3)
    for aa in range(4):
        a.e(f"s_waitcnt vmcnt({12-4*aa})")
        a.e(f"v_mfma_f32_16x16x32_bf16 {v(F_DRE+4*aa,4)}, {v(F16RE,4)}, {v(F_IN+4*aa,4)}, 0",
            f"v_mfma_f32_16x16x32_bf16 {v(F_DIM+4*aa,4)}, {v(F16IM,4)}, {v(F_IN+4*aa,4)}, 0")
    fstamp(a, 1)
    for aa in range(4):
        for p in range(2):
            re, im = F_DRE+4*aa+2*p, F_DIM+4*aa+2*p
            tc, ts = F_TWC+4*aa+2*p, F_TWS+4*aa+2*p
            t0, t1 = TMP+4*p, TMP+4*p+2
            a.e(f"v_pk_mul_f32 {v(t0,2)}, {v(re,2)}, {v(tc,2)}",
                f"v_pk_mul_f32 {v(t1,2)}, {v(im,2)}, {v(tc,2)}",
                f"v_pk_fma_f32 {v(t0,2)}, {v(im,2)}, {v(ts,2)}, {v(t0,2)}",
                f"v_pk_fma_f32 {v(t1,2)}, {v(re,2)}, {v(ts,2)}, {v(t1,2)} neg_lo:[1,0,0] neg_hi:[1,0,0]")
            for e in range(2):
                r = 2*p+e
                a.e(f"v_cvt_pk_bf16_f32 v{F_P+4*r+aa}, v{t0+e}, v{t1+e}")
    for r in range(4):
        a.e(f"ds_write_b128 v{F_WR}, {v(F_P+4*r,4)} offset:{r*1024}")
    a.e("s_waitcnt lgkmcnt(0)")
    fstamp(a, 8)
    a.e("s_barrier")
    fstamp(a, 9)
    for b in range(2):
        a.e(f"ds_read_b128 {v(F_IN+8*b,4)}, v{F_RD0} offset:{b*2048}",
            f"ds_read_b128 {v(F_IN+8*b+4,4)}, v{F_RD1} offset:{b*2048}")
    for b in range(2):
        a.e(f"s_waitcnt lgkmcnt({2-2*b})")
        for t in range(2):
            for h in range(2):
                for (D_, F_) in ((F_DRE, F32RE), (F_DIM, F32IM)):
                    d = D_+8*b+4*h
                    c = "0" if t == 0 else v(d, 4)
                    a.e(f"v_mfma_f32_16x16x32_bf16 {v(d,4)}, {v(F_IN+8*b+4*t,4)}, {v(F_+8*h+4*t,4)}, {c}")
    fstamp(a, 10)
    for b in range(2):
        for h in range(2):
            idx = 8*b+4*h
            for r in range(4):
                a.e(f"v_cvt_pk_bf16_f32 v{F_P+idx+r}, v{F_DRE+idx+r}, -v{F_DIM+idx+r}")
            a.e(f"buffer_store_dwordx4 {v(F_P+idx,4)}, v{F_OUTOFF}, s[{SOUT}:{SOUT+3}], s{SO_LIST[2*b+h]} offen {stmod}")

IDX, G_, VG, VGW, VRR, VHR, VST, VW = 2, 3, 6, 7, 8, 12, 13, 14
CRE, CIM, TWC, TWS, WR, WI, ARE, AIM, DF, GA, HRE, HIM, GB, TMP = 16, 32, 48, 64, 80, 96, 112, 128, 144, 160, 164, 168, 172, 188
W2R, W2I, SP, PF, PF2 = 204, 220, 236, 248, 252
LW = 32768; LSC = 16384; LW2 = 49152

def w_dma(a, SWR, SWI, s_rowoff, s_mirroff, s_ldsbase, vlane16):
    a.e(f"s_mov_b32 m0, s{s_ldsbase}", f"buffer_load_dwordx4 v{vlane16}, s[{SWR}:{SWR+3}], s{s_rowoff} offen lds" + NT())
    a.e(f"s_add_u32 s93, s{s_ldsbase}, 1024", "s_mov_b32 m0, s93", f"buffer_load_dwordx4 v{vlane16}, s[{SWI}:{SWI+3}], s{s_rowoff} offen lds" + NT())
    a.e(f"s_add_u32 s92, s{s_mirroff}, 2")
    a.e(f"s_add_u32 s93, s{s_ldsbase}, 2048", "s_mov_b32 m0, s93", f"buffer_load_dwordx4 v{vlane16}, s[{SWR}:{SWR+3}], s92 offen lds" + NT())
    a.e(f"s_add_u32 s93, s{s_ldsbase}, 3072", "s_mov_b32 m0, s93", f"buffer_load_dwordx4 v{vlane16}, s[{SWI}:{SWI+3}], s92 offen lds" + NT())

def pf_loads(a, SWR, SWI, s_rowoff, s_mirroff, dst, vt):
    a.e(f"v_mov_b32 v{vt}, s{s_mirroff}", f"v_mov_b32 v{vt+1}, s{s_rowoff}", f"v_add_u32 v{vt+1}, 1024, v{vt+1}")
    a.e(f"buffer_load_short_d16_hi v{dst}, v{vt}, s[{SWR}:{SWR+3}], 0 offen",
        f"buffer_load_short_d16_hi v{dst+1}, v{vt}, s[{SWI}:{SWI+3}], 0 offen",
        f"buffer_load_short_d16_hi v{dst+2}, v{vt+1}, s[{SWR}:{SWR+3}], 0 offen",
        f"buffer_load_short_d16_hi v{dst+3}, v{vt+1}, s[{SWI}:{SWI+3}], 0 offen")

def w_lds_reads(a, vlo, vhi, dr, di):
    for (dst, o) in ((dr, 0), (di, 1024)):
        for r in range(16):
            e = eidx(r)
            if r < 8: a.e(f"ds_read_u16_d16_hi v{dst+r}, v{vlo} offset:{o+64*e}")
            else:     a.e(f"ds_read_u16_d16_hi v{dst+r}, v{vhi} offset:{o+64*(27-e)}")

def fix_w(a, dr, di, pf):
    a.e("v_cmp_eq_u32 vcc, 0, v1")
    for (r, o) in ((0, 0), (8, 2)):
        a.e(f"v_add_f32 v{TMP}, v{dr+r}, v{pf+o}", f"v_mul_f32 v{TMP}, 0.5, v{TMP}",
            f"v_sub_f32 v{TMP+1}, v{di+r}, v{pf+o+1}", f"v_mul_f32 v{TMP+1}, 0.5, v{TMP+1}",
            f"v_cndmask_b32 v{dr+r}, v{dr+r}, v{TMP}, vcc", f"v_cndmask_b32 v{di+r}, v{di+r}, v{TMP+1}, vcc")

def fft1024(a, mid=None):
    for t in range(4):
        c0 = "0" if t == 0 else v(ARE, 16); c1 = "0" if t == 0 else v(AIM, 16)
        a.e(f"v_mfma_f32_32x32x16_bf16 {v(ARE,16)}, {v(DF+4*t,4)}, {v(CRE+4*t,4)}, {c0}",
            f"v_mfma_f32_32x32x16_bf16 {v(AIM,16)}, {v(DF+4*t,4)}, {v(CIM+4*t,4)}, {c1}")
    for p in range(8):
        re, im, tc, ts = ARE+2*p, AIM+2*p, TWC+2*p, TWS+2*p
        t0 = TMP+4*(p & 1); t1 = t0+2
        a.e(f"v_pk_mul_f32 {v(t0,2)}, {v(re,2)}, {v(tc,2)}",
            f"v_pk_mul_f32 {v(t1,2)}, {v(im,2)}, {v(tc,2)}",
            f"v_pk_fma_f32 {v(t0,2)}, {v(im,2)}, {v(ts,2)}, {v(t0,2)}",
            f"v_pk_fma_f32 {v(t1,2)}, {v(re,2)}, {v(ts,2)}, {v(t1,2)} neg_lo:[1,0,0] neg_hi:[1,0,0]")
        for e in range(2):
            a.e(f"v_cvt_pk_bf16_f32 v{DF+2*p+e}, v{t0+e}, v{t1+e}")
    for t in range(4):
        if mid and t == 1: mid()
        c0 = "0" if t == 0 else v(ARE, 16); c1 = "0" if t == 0 else v(AIM, 16)
        a.e(f"v_mfma_f32_32x32x16_bf16 {v(ARE,16)}, {v(CRE+4*t,4)}, {v(DF+4*t,4)}, {c0}",
            f"v_mfma_f32_32x32x16_bf16 {v(AIM,16)}, {v(CIM+4*t,4)}, {v(DF+4*t,4)}, {c1}")

def a2_consts(a, sT):
    a.e(f"v_and_b32 v{IDX}, 31, v1", f"v_lshrrev_b32 v{G_}, 5, v1")
    XS, XB = TMP, TMP+1
    a.e(f"v_cvt_f32_u32 v{TMP+2}, v{IDX}", f"v_cvt_f32_u32 v{TMP+3}, v{G_}", f"v_mul_f32 v{TMP+3}, 4.0, v{TMP+3}",
        f"v_mul_f32 v{XS}, {f32hex(1/32)}, v{TMP+2}", f"v_mul_f32 v{XB}, v{TMP+3}, v{XS}")
    a.e(f"v_and_b32 v{TMP+4}, 1, v{IDX}", f"v_mul_u32_u24 v{TMP+4}, 0x8000, v{TMP+4}", f"v_lshl_or_b32 v{TMP+4}, v{TMP+4}, 16, v{TMP+4}")
    for t in range(2):
        for i in range(4):
            c = float(8*t+i); x = TMP+5+3*(i & 1)
            a.e(f"v_fmamk_f32 v{x}, v{XS}, {f32hex(c)}, v{XB}" if c else f"v_mov_b32 v{x}, v{XB}")
            a.e(f"v_cos_f32 v{x+1}, v{x}", f"v_sin_f32 v{x+2}, v{x}")
            a.e(f"v_cvt_pk_bf16_f32 v{CRE+4*t+i}, v{x+1}, v{x+2}", f"v_cvt_pk_bf16_f32 v{CIM+4*t+i}, -v{x+2}, v{x+1}")
    for base in (CRE, CIM):
        for i in range(8):
            a.e(f"v_xor_b32 v{base+8+i}, v{TMP+4}, v{base+i}")
    a.e(f"v_mul_f32 v{XS}, {f32hex(1/1024)}, v{TMP+2}", f"v_mul_f32 v{XB}, v{TMP+3}, v{XS}")
    for r in range(16):
        c = float(eidx(r)); x = TMP+5+(r & 1)
        a.e(f"v_fmamk_f32 v{x}, v{XS}, {f32hex(c)}, v{XB}" if c else f"v_mov_b32 v{x}, v{XB}")
        a.e(f"v_cos_f32 v{TWC+r}, v{x}", f"v_sin_f32 v{TWS+r}, v{x}")
    LO, HI, Q, AV, XA0, XA1, E0, E1 = TMP, TMP+1, TMP+2, TMP+3, TMP+4, TMP+5, TMP+6, TMP+7
    JF, KEY, T2, PO, PAR, N16, G4, CS = [TMP+8+i for i in range(8)]
    Lspec, Ldone = newlbl("ghspec"), newlbl("ghdone")
    a.e(f"v_and_b32 v{LO}, 3, v{IDX}", f"v_bfe_u32 v{HI}, v{IDX}, 2, 2")
    a.e(f"v_and_b32 v{N16}, 15, v1", f"v_lshrrev_b32 v{G4}, 4, v1")
    a.e(f"s_cmp_eq_u32 s{sT}, 0", f"s_cbranch_scc1 {Lspec}")
    a.e(f"v_cvt_f32_u32 v{T2}, s{sT}", f"v_cvt_f32_u32 v{JF}, v{HI}", f"v_fmamk_f32 v{JF}, v{JF}, {f32hex(512.0)}, v{T2}",
        f"v_mul_f32 v{JF}, {f32hex(1/2048)}, v{JF}",
        f"v_cvt_f32_u32 v{XA0}, v{G_}", f"v_add_f32 v{XA0}, v{XA0}, v{XA0}", f"v_add_f32 v{XA1}, 1.0, v{XA0}",
        f"v_mul_f32 v{XA0}, v{XA0}, v{JF}", f"v_mul_f32 v{XA1}, v{XA1}, v{JF}",
        f"v_lshlrev_b32 v{Q}, 3, v{LO}", "s_mov_b32 s50, 0x4631914C", f"v_lshrrev_b32 v{Q}, v{Q}, s50",
        f"v_mov_b32 v{AV}, 0.5", f"v_cmp_gt_u32 vcc, 16, v{IDX}", f"v_cndmask_b32 v{AV}, 0, v{AV}, vcc")
    for jj2 in range(4):
        for e in range(2):
            jj = 2*jj2+e
            xa = XA1 if jj >> 2 else XA0
            a.e(f"v_bfe_u32 v{E0+e}, v{Q}, {2*(jj&3)}, 2", f"v_cvt_f32_u32 v{E0+e}, v{E0+e}",
                f"v_fmamk_f32 v{E0+e}, v{E0+e}, {f32hex(0.25)}, v{xa}", f"v_cos_f32 v{E0+e}, v{E0+e}",
                f"v_mul_f32 v{E0+e}, v{E0+e}, v{AV}")
        a.e(f"v_cvt_pk_bf16_f32 v{GA+jj2}, v{E0}, v{E1}")
    a.e(f"v_bfe_u32 v{HI}, v{N16}, 1, 2", f"v_cvt_f32_u32 v{KEY}, v{HI}", f"v_mul_f32 v{KEY}, {f32hex(1/2048)}, v{KEY}",
        f"v_and_b32 v{JF}, 1, v{G4}", f"v_cvt_f32_u32 v{JF}, v{JF}", f"v_fmamk_f32 v{JF}, v{JF}, {f32hex(1024.0)}, v{T2}",
        f"v_add_f32 v{XA1}, {f32hex(512.0)}, v{JF}", f"v_mul_f32 v{XA0}, v{JF}, v{KEY}", f"v_mul_f32 v{XA1}, v{XA1}, v{KEY}",
        f"v_lshrrev_b32 v{CS}, 1, v{G4}", f"v_lshrrev_b32 v{AV}, 3, v{N16}", f"v_cmp_eq_u32 vcc, v{CS}, v{AV}",
        f"v_mov_b32 v{AV}, {f32hex(2.0**-21)}", f"v_cndmask_b32 v{AV}, 0, v{AV}, vcc",
        f"v_and_b32 v{PO}, 1, v{N16}")
    for part, Hd in ((0, HRE), (1, HIM)):
        w0, w1 = (0x1C, 0xBC) if part == 0 else (0x61, 0x6B)
        a.e(f"v_mov_b32 v{Q}, {w0}", f"v_mov_b32 v{PAR}, {w1}", f"v_cmp_eq_u32 vcc, 1, v{PO}", f"v_cndmask_b32 v{Q}, v{Q}, v{PAR}, vcc")
        for jj2 in range(4):
            for e in range(2):
                jj = 2*jj2+e
                xa = XA1 if jj >> 2 else XA0
                a.e(f"v_bfe_u32 v{E0+e}, v{Q}, {2*(jj&3)}, 2", f"v_cvt_f32_u32 v{E0+e}, v{E0+e}",
                    f"v_fmamk_f32 v{E0+e}, v{E0+e}, {f32hex(0.25)}, v{xa}", f"v_cos_f32 v{E0+e}, v{E0+e}",
                    f"v_mul_f32 v{E0+e}, v{E0+e}, v{AV}")
            a.e(f"v_cvt_pk_bf16_f32 v{Hd+jj2}, v{E0}, v{E1}")
    a.e(f"s_branch {Ldone}")
    a.label(Lspec)
    a.e(f"v_and_b32 v{PO}, 1, v{LO}", f"v_lshrrev_b32 v{PAR}, 1, v{LO}")
    a.e(f"v_lshlrev_b32 v{JF}, 2, v{HI}", "s_mov_b32 s50, 0x3120", f"v_lshrrev_b32 v{JF}, v{JF}, s50", f"v_and_b32 v{JF}, 15, v{JF}",
        f"v_lshlrev_b32 v{JF}, 8, v{JF}", f"v_lshlrev_b32 v{T2}, 10, v{PO}",
        f"v_cmp_eq_u32 vcc, 0, v{HI}", f"v_cndmask_b32 v{JF}, v{JF}, v{T2}, vcc", f"v_mov_b32 v{T2}, 0",
        f"v_cndmask_b32 v{Q}, v{PO}, v{T2}, vcc",
        f"v_cvt_f32_u32 v{JF}, v{JF}", f"v_mul_f32 v{JF}, {f32hex(1/2048)}, v{JF}",
        f"v_cvt_f32_u32 v{Q}, v{Q}", f"v_mul_f32 v{Q}, {f32hex(0.25)}, v{Q}",
        f"v_cvt_f32_u32 v{XA0}, v{G_}", f"v_add_f32 v{XA0}, v{XA0}, v{XA0}", f"v_add_f32 v{XA1}, 1.0, v{XA0}",
        f"v_fma_f32 v{XA0}, v{XA0}, v{JF}, v{Q}", f"v_fma_f32 v{XA1}, v{XA1}, v{JF}, v{Q}",
        f"v_cos_f32 v{XA0}, v{XA0}", f"v_cos_f32 v{XA1}, v{XA1}",
        f"v_lshrrev_b32 v{KEY}, 1, v{HI}", f"v_lshl_add_u32 v{KEY}, v{KEY}, 1, v{PAR}",
        f"v_lshrrev_b32 v{T2}, 4, v{IDX}", f"v_lshl_add_u32 v{KEY}, v{T2}, 2, v{KEY}", f"v_mov_b32 v{T2}, 0")
    for jj2 in range(4):
        for e in range(2):
            jj = 2*jj2+e
            xa = XA1 if jj >> 2 else XA0
            a.e(f"v_cmp_eq_u32 vcc, {jj&3}, v{KEY}", f"v_cndmask_b32 v{E0+e}, v{T2}, v{xa}, vcc")
        a.e(f"v_cvt_pk_bf16_f32 v{GA+jj2}, v{E0}, v{E1}")
    SAF, GS = JF, PAR
    a.e(f"v_bfe_u32 v{HI}, v{N16}, 1, 2", f"v_cvt_f32_u32 v{SAF}, v{HI}", f"v_mul_f32 v{SAF}, {f32hex(1/2048)}, v{SAF}",
        f"v_and_b32 v{GS}, 1, v{G4}", f"v_and_b32 v{PO}, 1, v{N16}",
        f"v_lshrrev_b32 v{CS}, 1, v{G4}", f"v_lshrrev_b32 v{T2}, 3, v{N16}",
        f"v_cmp_eq_u32 s[44:45], v{CS}, v{T2}", f"v_cmp_eq_u32 s[46:47], v{GS}, v{PO}", "s_and_b64 s[44:45], s[44:45], s[46:47]",
        f"v_cmp_eq_u32 s[46:47], 0, v{GS}")
    for part, Hd in ((0, HRE), (1, HIM)):
        for jj in range(8):
            sl, par, pi = jj >> 2, (jj >> 1) & 1, jj & 1
            e = E0 + (jj & 1)
            if par != part:
                a.e(f"v_mov_b32 v{e}, 0")
            else:
                if sl == 0:
                    j0, q0, a0 = 1024.0*pi, 0.5*pi, 2.0**-21
                    j1, q1, a1 = 256.0, 0.75*pi, 2.0**-20
                else:
                    j0, q0, a0 = 512.0, 0.75*pi, 2.0**-20
                    j1, q1, a1 = 768.0, 0.75*pi, 2.0**-20
                def sel(dst, x0, x1):
                    a.e(f"v_mov_b32 v{dst}, {f32hex(x1)}", f"v_mov_b32 v{AV}, {f32hex(x0)}", f"v_cndmask_b32 v{dst}, v{dst}, v{AV}, s[46:47]")
                sel(XA0, j0, j1); sel(XA1, q0 + 0.5*part, q1 + 0.5*part)
                a.e(f"v_fma_f32 v{XA0}, v{XA0}, v{SAF}, v{XA1}", f"v_cos_f32 v{XA0}, v{XA0}")
                sel(XA1, a0, a1)
                a.e(f"v_mul_f32 v{XA0}, v{XA0}, v{XA1}", f"v_mov_b32 v{XA1}, 0", f"v_cndmask_b32 v{e}, v{XA1}, v{XA0}, s[44:45]")
            if jj & 1: a.e(f"v_cvt_pk_bf16_f32 v{Hd+(jj>>1)}, v{E0}, v{E1}")
    a.label(Ldone)
    a.e("s_nop 1")


BT_S0, BT_S1, BT_S2, BT_S3 = 52, 56, 60, 64
BT_SOFF = ["0", "s68", "s69", "s70", "s71", "s76", "s77", "s78"]
BT_ROW, BT_CH, BT_MASK = 48, 49, 50
def bt_setup(a):
    a.e(f"s_lshl_b32 s{BT_ROW}, s{sSUBT}, 7", "s_lshl_b32 s51, s3, 5", f"s_add_u32 s{BT_ROW}, s{BT_ROW}, s51", f"s_lshl_b32 s{BT_CH}, s{sCBKT}, 6")
    for i in range(1, 8): a.e(f"s_mov_b32 {BT_SOFF[i]}, {4096*i}")
    a.e(f"s_mov_b32 s{BT_MASK}, 0xffff0000")

def scratch_addr(a, vdst, vcg, vrg):
    a.e(f"s_lshl_b32 s51, s{sSUBT}, 7", "s_lshr_b32 s92, s3, 1", "s_add_u32 s51, s51, s92", "s_lshl_b32 s51, s51, 12",
        f"s_lshl_b32 s92, s{sCBKT}, 7", "s_add_u32 s51, s51, s92", "s_and_b32 s92, s3, 1", "s_lshl_b32 s92, s92, 6", "s_add_u32 s51, s51, s92",
        "s_add_u32 s51, s51, 2048",
        f"v_lshlrev_b32 v{vdst}, 15, v{vcg}", f"v_lshl_add_u32 v{vdst}, v{vrg}, 4, v{vdst}", f"v_add_u32 v{vdst}, s51, v{vdst}")
SCR_SOFF = ["0", "s69", "s71", "s77"]

def emit_B1(a, shadow=None, hook=None, post_mode=None, after_stores=None, nafter=0):
    SK, SV, SSH, SKVT = BT_S0, BT_S1, BT_S2, BT_S3
    srd(a, SK, P_K, P_K+1, 4*MB); srd(a, SV, P_V, P_V+1, 4*MB); srd(a, SSH, P_SHK, P_SHK+1, 8192); srd(a, SKVT, P_OUT, P_OUT+1, 8*MB)
    bt_setup(a)
    soff = BT_SOFF; M = BT_MASK
    CG, RG, S0, CH0, VOFF, VH, VST, VSH = 2, 3, 4, 5, 6, 7, 8, 9
    a.e(f"v_and_b32 v{CG}, 15, v1", f"v_lshrrev_b32 v{RG}, 4, v1",
        f"v_lshl_add_u32 v{S0}, v{RG}, 3, s{BT_ROW}", f"v_lshl_add_u32 v{CH0}, v{CG}, 2, s{BT_CH}",
        f"v_lshlrev_b32 v{VOFF}, 11, v{S0}", f"v_lshl_add_u32 v{VOFF}, v{CH0}, 1, v{VOFF}",
        f"v_subrev_u32 v{VH}, 6144, v{VOFF}",
        f"v_lshlrev_b32 v{VSH}, 3, v{CH0}")
    scratch_addr(a, VST, CG, RG)
    KR, VR, SHR, KF, SHF, KV, TM, PK = 16, 38, 54, 64, 108, 124, 156, 16
    if OPT["bactwait"] and OPT["b1all"]:
        Lw = newlbl("bw")
        a.e(f"s_cmp_eq_u32 s{sACT}, 0", f"s_cbranch_scc1 {Lw}", "s_waitcnt lgkmcnt(0)")
        a.label(Lw)
    if OPT["earlypub"]:
        Lp = newlbl("epub")
        a.e("s_cmp_lg_u32 s3, 0", f"s_cbranch_scc1 {Lp}")
        fin_epoch(a); loc_publish(a)
        a.label(Lp)
    a.e(f"buffer_load_dwordx4 {v(SHR,4)}, v{VSH}, s[{SSH}:{SSH+3}], 0 offen",
        f"buffer_load_dwordx4 {v(SHR+4,4)}, v{VSH}, s[{SSH}:{SSH+3}], 0 offen offset:16")
    for i in range(3):
        a.e(f"buffer_load_dwordx2 {v(KR+2*i,2)}, v{VH}, s[{SK}:{SK+3}], {soff[i>>1]} offen" + (" offset:2048" if i & 1 else "") + (NT() if OPT["ntk"] else ""))
    for i in range(8):
        a.e(f"buffer_load_dwordx2 {v(KR+6+2*i,2)}, v{VOFF}, s[{SK}:{SK+3}], {soff[i>>1]} offen" + (" offset:2048" if i & 1 else "") + (NT() if OPT["ntk"] else ""))
    for i in range(8):
        a.e(f"buffer_load_dwordx2 {v(VR+2*i,2)}, v{VOFF}, s[{SV}:{SV+3}], {soff[i>>1]} offen" + (" offset:2048" if i & 1 else "") + NT())
    stamp(a, 2)
    if OPT["earlypub"]:
        Lq = newlbl("epub2")
        a.e("s_cmp_eq_u32 s3, 0", f"s_cbranch_scc1 {Lq}")
        fin_epoch(a)
        a.label(Lq)
    else:
        fin_epoch(a)
        loc_publish(a)
    if shadow: shadow()
    def wv(n, extra):
        if extra and not OPT["earlypub"]:
            L = newlbl("wv")
            a.e(f"s_cbranch_scc1 {L}", f"s_waitcnt vmcnt({n})")
            a.label(L)
            a.e(f"s_waitcnt vmcnt({n+extra})")
        elif extra == 2 and OPT["earlypub"]:
            L = newlbl("wv")
            a.e(f"s_cbranch_scc1 {L}", f"s_waitcnt vmcnt({n})")
            a.label(L)
            a.e(f"s_waitcnt vmcnt({n+1})")
        else:
            a.e(f"s_waitcnt vmcnt({n})")
    a.e("s_cmp_eq_u32 s3, 0")
    wv(19, 1)
    for ch in range(4):
        for j in range(4):
            src = SHR + 2*ch + (j >> 1)
            if j & 1: a.e(f"v_and_b32 v{SHF+4*j+ch}, s{M}, v{src}")
            else:     a.e(f"v_lshlrev_b32 v{SHF+4*j+ch}, 16, v{src}")
    for i in range(11):
        wv(18-i, 1)
        for hf in range(2):
            a.e(f"v_lshlrev_b32 v{KF+4*i+2*hf}, 16, v{KR+2*i+hf}", f"v_and_b32 v{KF+4*i+2*hf+1}, s{M}, v{KR+2*i+hf}")
    loc_issue(a, 10)
    a.e("s_cmp_eq_u32 s3, 0")
    for i in range(8):
        wv(7-i, 2)
        if i == 7 and hook: hook()
        for hf in range(2):
            a.e(f"v_lshlrev_b32 v{TM+2*hf}, 16, v{VR+2*i+hf}", f"v_and_b32 v{TM+2*hf+1}, s{M}, v{VR+2*i+hf}")
        for hf in range(2):
            acc = KV+4*i+2*hf
            a.e(f"v_pk_mul_f32 {v(acc,2)}, {v(KF+4*(i+3)+2*hf,2)}, {v(SHF+2*hf,2)}")
            for j in range(1, 4):
                a.e(f"v_pk_fma_f32 {v(acc,2)}, {v(KF+4*(i+3-j)+2*hf,2)}, {v(SHF+4*j+2*hf,2)}, {v(acc,2)}")
            a.e(f"v_pk_mul_f32 {v(acc,2)}, {v(acc,2)}, {v(TM+2*hf,2)}")
    stamp(a, 3)
    for ch in range(4):
        for m in range(4):
            a.e(f"v_cvt_pk_bf16_f32 v{PK+4*ch+m}, v{KV+4*(7-2*m)+ch}, v{KV+4*(6-2*m)+ch}")
    sts = [f"buffer_store_dwordx4 {v(PK+4*ch,4)}, v{VST}, s[{SKVT}:{SKVT+3}], {SCR_SOFF[ch]} offen" for ch in range(4)]
    if OPT["twoflag"]:
        for l in sts: a.e(l + (" nt" if OPT["ntscr"] else ""))
        stamp(a, 4)
        a.e(f"s_lshl_b32 s51, s{sCBKT}, 4", f"s_add_u32 s51, s51, s{sSUBT}", f"s_lshl_b32 s51, s51, {FB()}", f"s_add_u32 s92, s51, {SY_B1}")
        La = newlbl("siga")
        a.e("s_waitcnt vmcnt(0)", "s_barrier", "s_cmp_lg_u32 s3, 0", f"s_cbranch_scc1 {La}",
            "v_mov_b32 v14, s92", f"v_mov_b32 v15, s{S_TGT}", "s_mov_b64 exec, 1",
            f"buffer_store_dword v15, v14, s[{S_SYN}:{S_SYN+3}], 0 offen", "s_mov_b64 exec, -1")
        a.label(La)
        if after_stores: after_stores()
        loc_resolve(a, 10, nafter=nafter + 1 if after_stores else 1)
        Lo = newlbl("opt")
        a.e(f"s_cmp_lg_u32 s{sLOC}, 0", f"s_cbranch_scc1 {Lo}", "s_waitcnt vmcnt(0)")
        for l in sts: a.e(l + " sc1")
        a.e(f"s_add_u32 s51, s51, {SY_B1B}")
        signal(a, 51, 14)
        a.label(Lo)
        return
    if OPT["optst"]:
        for l in sts: a.e(l)
        if after_stores: after_stores()
        loc_resolve(a, 10, nafter=nafter)
        Lo = newlbl("opt")
        a.e(f"s_cmp_lg_u32 s{sLOC}, 0", f"s_cbranch_scc1 {Lo}", "s_waitcnt vmcnt(0)")
        for l in sts: a.e(l + " sc1")
        a.e("s_waitcnt vmcnt(0)")
        a.label(Lo)
    else:
        loc_resolve(a, 10)
        dual_store(a, sts)
    stamp(a, 4)
    a.e(f"s_lshl_b32 s51, s{sCBKT}, 4", f"s_add_u32 s51, s51, s{sSUBT}", f"s_lshl_b32 s51, s51, {FB()}", f"s_add_u32 s51, s51, {SY_B1}")
    signal(a, 51, 14, nafter=nafter, bloc=True)

B3_QR, B3_VQ, B3_VT, B3_VO = 208, 224, 225, 226
def emit_B3_pre(a):
    SQ, STT, SOUT = BT_S0, BT_S1, BT_S2
    srd(a, SQ, P_Q, P_Q+1, 4*MB); srd(a, SOUT, P_OUT, P_OUT+1, 8*MB)
    bt_setup(a)
    t = 227
    a.e(f"v_and_b32 v{t}, 15, v1", f"v_lshrrev_b32 v{t+1}, 4, v1",
        f"v_lshl_add_u32 v{t+1}, v{t+1}, 3, s{BT_ROW}", f"v_lshl_add_u32 v{t}, v{t}, 2, s{BT_CH}",
        f"v_lshlrev_b32 v{B3_VQ}, 11, v{t+1}", f"v_lshl_add_u32 v{B3_VQ}, v{t}, 1, v{B3_VQ}",
        f"v_lshlrev_b32 v{B3_VO}, 12, v{t+1}", f"v_lshl_add_u32 v{B3_VO}, v{t}, 1, v{B3_VO}", f"v_add_u32 v{B3_VO}, 2048, v{B3_VO}")
    a.e(f"v_and_b32 v{t}, 15, v1", f"v_lshrrev_b32 v{t+1}, 4, v1")
    scratch_addr(a, B3_VT, t, t+1)
    for i in range(8):
        a.e(f"buffer_load_dwordx2 {v(B3_QR+2*i,2)}, v{B3_VQ}, s[{SQ}:{SQ+3}], {BT_SOFF[i>>1]} offen" + (" offset:2048" if i & 1 else "") + NT())

def emit_B3(a):
    SQ, STT, SOUT = BT_S0, BT_S1, BT_S2
    soff = BT_SOFF; M = BT_MASK
    TR, TF, QF = 16, 48, 80
    a.e(f"s_mov_b32 s{M}, 0xffff0000")
    a.e(f"s_lshl_b32 s51, s{sCBKT}, {4+FB()}", f"s_add_u32 s51, s51, {SY_B2}",
        "v_and_b32 v12, 15, v1", f"v_lshlrev_b32 v12, {FB()}, v12", "v_add_u32 v12, s51, v12")
    a.e("s_waitcnt vmcnt(0)")
    for e in range(8):
        qf = QF + 4*e
        for hf in range(2):
            a.e(f"v_lshlrev_b32 v{qf+2*hf}, 16, v{B3_QR+2*e+hf}", f"v_and_b32 v{qf+2*hf+1}, s{M}, v{B3_QR+2*e+hf}")
    wait_flags(a, 12, 1, 13, 51)
    stamp(a, 10)
    for ch in range(4):
        a.e(f"buffer_load_dwordx4 {v(TR+4*ch,4)}, v{B3_VT}, s[{SOUT}:{SOUT+3}], {SCR_SOFF[ch]} offen" + LDL())
    for ch in range(4):
        a.e(f"s_waitcnt vmcnt({3-ch})")
        for e in range(8):
            src = TR+4*ch+(e >> 1)
            if e & 1: a.e(f"v_and_b32 v{TF+4*e+ch}, s{M}, v{src}")
            else:     a.e(f"v_lshlrev_b32 v{TF+4*e+ch}, 16, v{src}")
    a.e("s_barrier")
    for e in range(8):
        qf = QF + 4*e
        for hf in range(2):
            a.e(f"v_pk_mul_f32 {v(qf+2*hf,2)}, {v(qf+2*hf,2)}, {v(TF+4*e+2*hf,2)}")
        pk = 112+2*e
        for hf in range(2):
            a.e(f"v_cvt_pk_bf16_f32 v{pk+hf}, v{qf+2*hf}, v{qf+2*hf+1}")
        a.e(f"buffer_store_dwordx2 {v(pk,2)}, v{B3_VO}, s[{SOUT}:{SOUT+3}], {soff[e]} offen" + NTO())

def gen_A(a):
    ROLE[0] = 'A'
    SX, SI1, SWR, SWI, SI2, SOUT = 32, 36, 80, 84, 32, 36
    a.e(f"s_setprio {OPT['prioA']}") if OPT['prioA'] else None
    sT, sSA, sCB, sJ, sJM, sJP, sJQ, sTL = 40, 41, 42, 43, 72, 73, 74, 44
    def rows():
        srd(a, SI1, P_WS, P_WS+1, 4*MB, add=WS_I1)
        srd(a, SWR, P_WR, P_WR+1, WBYTES); srd(a, SWI, P_WI, P_WI+1, WBYTES)
        Lr = newlbl("reg")
        a.e("s_lshl_b32 s47, s3, 9", f"s_add_u32 s{sJ}, s{sT}, s47", f"s_mov_b32 s{sJP}, s{sT}", f"s_sub_u32 s{sJQ}, 512, s{sT}",
            f"s_cmp_lg_u32 s{sT}, 0", f"s_cbranch_scc1 {Lr}",
            f"s_mov_b32 s{sJQ}, 256", "s_lshl_b32 s47, s3, 2", "s_lshr_b32 s46, 0x3120, s47", "s_and_b32 s46, s46, 15", f"s_lshl_b32 s{sJ}, s46, 8")
        a.label(Lr)
        a.e(f"s_sub_u32 s{sJM}, 2048, s{sJ}", f"s_and_b32 s{sJM}, s{sJM}, 2047",
            f"s_mul_i32 s{sJ}, s{sJ}, 1026", f"s_mul_i32 s{sJM}, s{sJM}, 1026")
        a.e(f"s_or_b32 s75, s{sT}, s3")
    def wstage():
        a.e("v_lshlrev_b32 v243, 4, v1", "s_lshl_b32 s46, s3, 12", f"s_add_u32 s46, s46, {LW}")
        w_dma(a, SWR, SWI, sJ, sJM, 46, 243)
        pf_loads(a, SWR, SWI, sJ, sJM, PF, 244)
        if not OPT["spec2"]: wstage2()
    def wstage2():
        Ln = newlbl("now2")
        a.e("s_cmp_lg_u32 s75, 0", f"s_cbranch_scc1 {Ln}")
        a.e("v_lshlrev_b32 v243, 4, v1", f"s_mov_b32 s47, {1024*1026}", f"s_mov_b32 s46, {LW2}")
        w_dma(a, SWR, SWI, 47, 47, 46, 243)
        pf_loads(a, SWR, SWI, 47, 47, PF2, 244)
        a.label(Ln)
    a.e(f"s_mov_b32 s{sT}, s{sCU}")
    stamp(a, 0, True); stamp(a, 1)
    Lp1 = newlbl("nop1")
    a.e(f"s_cmp_eq_u32 s{sACT}, 0", f"s_cbranch_scc1 {Lp1}_in")
    if OPT["pA1a"] >= 0: a.e(f"s_setprio {OPT['pA1a']}")
    srd(a, SX, P_X, P_X+1, 4*MB)
    a.e(f"s_lshr_b32 s48, s{sT}, 4", f"s_and_b32 s49, s{sT}, 7",
        f"s_lshr_b32 s{sSA}, s48, 2", "s_bfe_u32 s50, s48, 0x10001", "s_lshl_b32 s50, s50, 3", "s_add_u32 s50, s50, s49",
        "s_lshl_b32 s50, s50, 1", "s_and_b32 s51, s48, 1", f"s_add_u32 s{sCB}, s50, s51",
        "s_lshl_b32 s48, s48, 3", f"s_add_u32 s{sTL}, s48, s49")
    fft512_addr(a, sSA, sCB)
    fft512_loads(a, SX, NT() if OPT["ntx"] else "")
    stamp(a, 12)
    rows()
    if OPT["spec2"]: wstage2()
    fft512_addr2(a, sSA, sCB, 2048, 8192)
    fft512_consts(a)
    fft512_compute(a, SI1, False, 0, "sc1", 2, hook=None if OPT["wlate"] else wstage)
    stamp(a, 4)
    a.e(f"s_lshl_b32 s48, s{sTL}, {FA()}", f"s_add_u32 s48, s48, {SY_A1}")
    fin_epoch(a)
    signal(a, 48, F_TMP)
    a.e(f"s_branch {Lp1}")
    a.label(f"{Lp1}_in")
    if OPT["pA1i"] >= 0: a.e(f"s_setprio {OPT['pA1i']}")
    stamp(a, 12)
    if OPT["b1all"]:
        rows()
        fin_epoch(a)
        if not OPT["wlate"]: wstage()
    else:
        emit_B1(a, shadow=rows, hook=None if OPT["wlate"] else wstage)
    a.label(Lp1)
    pair_pubA(a)
    if OPT["pA1i"] >= 0 or OPT["pA1a"] >= 0: a.e(f"s_setprio {OPT['prioA']}")
    stamp(a, 5)
    if OPT["wlate"] == 2: wstage()
    srd(a, SI2, P_WS, P_WS+1, 4*MB, add=WS_I2)
    a2_consts(a, sT)
    a.e(f"v_lshl_add_u32 v{TMP}, v{G_}, 7, v{IDX}",
        "s_lshl_b32 s48, s3, 12", f"s_add_u32 s48, s48, {LW}",
        f"v_lshl_add_u32 v{VW}, v{TMP}, 1, s48",
        f"v_sub_u32 v{TMP+1}, {1023-32*27}, v{TMP}", f"s_add_u32 s49, s48, 2048", f"v_lshl_add_u32 v{VW+1}, v{TMP+1}, 1, s49")
    a.e(f"v_lshlrev_b32 v{VG}, 12, v{G_}", f"v_lshl_add_u32 v{VG}, v{IDX}, 2, v{VG}",
        "s_lshl_b32 s49, s3, 9",
        f"s_lshl_b32 s52, s{sJP}, 13", "s_add_u32 s52, s52, s49",
        f"s_lshl_b32 s53, s{sJQ}, 13", "s_add_u32 s53, s53, s49")
    a.e(f"v_lshlrev_b32 v{VGW}, 12, v{G_}", f"v_lshl_add_u32 v{VGW}, v{IDX}, 3, v{VGW}", "s_lshl_b32 s50, s3, 10", f"v_add_u32 v{VGW}, s50, v{VGW}",
        f"v_lshlrev_b32 v{VRR}, 9, v{G_}", f"v_lshl_add_u32 v{VRR}, v{IDX}, 2, v{VRR}", "s_lshl_b32 s51, s3, 12", f"v_add_u32 v{VRR}, s51, v{VRR}")
    for t in range(1, 4): a.e(f"v_add_u32 v{VRR+t}, {1024*t}, v{VRR}")
    a.e(f"v_lshrrev_b32 v{TMP}, 4, v1", f"v_and_b32 v{TMP+1}, 1, v{TMP}", f"v_lshlrev_b32 v{VHR}, 13, v{TMP+1}",
        f"v_lshrrev_b32 v{TMP+1}, 1, v{TMP}", f"v_lshl_add_u32 v{VHR}, v{TMP+1}, 7, v{VHR}",
        f"v_and_b32 v{TMP+1}, 15, v1", f"v_lshl_add_u32 v{VHR}, v{TMP+1}, 3, v{VHR}", f"v_add_u32 v{VHR}, s50, v{VHR}")
    a.e(f"v_and_b32 v{TMP+2}, 1, v{TMP+1}", f"v_mov_b32 v{TMP+3}, s52", f"v_mov_b32 v{TMP+4}, s53",
        f"v_cmp_eq_u32 vcc, 1, v{TMP+2}", f"v_cndmask_b32 v{VST}, v{TMP+3}, v{TMP+4}, vcc",
        f"v_bfe_u32 v{TMP+2}, v{TMP+1}, 1, 2", f"v_lshl_add_u32 v{VST}, v{TMP+2}, 11, v{VST}",
        f"v_lshrrev_b32 v{TMP+2}, 3, v{TMP+1}", f"v_lshl_add_u32 v{VST}, v{TMP+2}, 6, v{VST}",
        f"v_lshl_add_u32 v{VST}, v{TMP}, 4, v{VST}")
    a.e(f"v_lshlrev_b32 v{TMP}, {FA()}, v1", f"v_add_u32 v{TMP}, {SY_A1}, v{TMP}")
    stamp(a, 6)
    wait_flags(a, TMP, 2, TMP+1, 48)
    if OPT["yieldB"] == 1: a_state(a, sT, 1, TMP)
    stamp(a, 7)
    for u in range(4):
        for sl in range(2):
            for pq in range(2):
                a.e(f"buffer_load_dword v{GB+4*u+2*sl+pq}, v{VG}, s[{SI1}:{SI1+3}], s{52+pq} offen offset:{2048*sl+128*u} sc1")
    NWL = 0
    if OPT["wlate"] == 1:
        wstage(); NWL = 8
        if not OPT["spec2"]:
            Lsw = newlbl("spw")
            a.e("s_cmp_lg_u32 s75, 0", f"s_cbranch_scc1 {Lsw}", "s_waitcnt vmcnt(0)")
            a.label(Lsw)
    for rnd in range(2):
        a.e(f"s_waitcnt vmcnt({8-8*rnd+NWL})")
        if rnd == OPT.get("yat", 1) and OPT["yieldB"] == 3:
            a_state(a, sT, 1, 240)
        for uu in range(2):
            u = 2*rnd+uu
            a.e(f"v_mfma_f32_32x32x16_bf16 {v(ARE if uu == 0 else AIM,16)}, {v(GA,4)}, {v(GB+4*u,4)}, 0")
        for uu in range(2):
            u = 2*rnd+uu
            D = ARE if uu == 0 else AIM
            t = TMP+4*uu
            for h in range(2):
                a.e(f"v_cvt_pk_bf16_f32 v{t}, v{D+4*h}, v{D+4*h+1}", f"v_cvt_pk_bf16_f32 v{t+1}, v{D+4*h+2}, v{D+4*h+3}",
                    f"ds_write_b64 v{VGW}, {v(t,2)} offset:{256*u+8192*h}")
                t += 2
    a.e("s_waitcnt lgkmcnt(0)", "s_barrier")
    stamp(a, 8)
    if OPT["qA"] and not OPT["a3all"]:
        Lq = newlbl("noqA")
        a.e(f"s_cmp_lg_u32 s{sACT}, 0", f"s_cbranch_scc1 {Lq}")
        emit_B3_pre(a)
        a.label(Lq)
    for t in range(4):
        a.e(f"ds_read2_b32 {v(DF+4*t,2)}, v{VRR+t} offset0:0 offset1:32", f"ds_read2_b32 {v(DF+4*t+2,2)}, v{VRR+t} offset0:64 offset1:96")
    a.e("s_waitcnt lgkmcnt(0)")
    Lsp, Linv, Lfwd, Lpre = newlbl("special"), newlbl("inv"), newlbl("fwd"), newlbl("pre")
    sPASS = 45
    if OPT["spec2"]:
        a.e(f"s_mov_b32 s{sPASS}, 0", "s_cmp_lg_u32 s75, 0", f"s_cbranch_scc1 {Lpre}")
        for i in range(16): a.e(f"v_lshrrev_b32 v{GB+i}, 16, v{DF+i}", f"v_and_b32 v{DF+i}, 0xffff, v{DF+i}")
        a.label(Lpre)
    def wmid():
        Lk = newlbl("wskip")
        if OPT["spec2"]: a.e(f"s_cmp_lg_u32 s{sPASS}, 0", f"s_cbranch_scc1 {Lk}")
        if OPT["qA"] and not OPT["a3all"]:
            L1, L2 = newlbl("wa"), newlbl("wb")
            a.e(f"s_cmp_lg_u32 s{sACT}, 0", f"s_cbranch_scc1 {L1}", "s_waitcnt vmcnt(8)", f"s_branch {L2}")
            a.label(L1); a.e("s_waitcnt vmcnt(0)"); a.label(L2)
        else:
            a.e("s_waitcnt vmcnt(0)")
        w_lds_reads(a, VW, VW+1, WR, WI)
        a.label(Lk)
    if OPT["wlate"] == 1:
        a.label(Lfwd); a.e("s_nop 1")
        fft1024(a, mid=wmid)
    else:
        w_lds_reads(a, VW, VW+1, WR, WI)
        a.label(Lfwd); a.e("s_nop 1")
        fft1024(a)
    a.e("s_waitcnt lgkmcnt(0)")
    Lnf = newlbl("nofix")
    if OPT["spec2"]: a.e(f"s_cmp_lg_u32 s{sPASS}, 0", f"s_cbranch_scc1 {Lnf}")
    fix_w(a, WR, WI, PF)
    a.label(Lnf)
    a.e("s_cmp_eq_u32 s75, 0", f"s_cbranch_scc1 {Lsp}")
    for p in range(8):
        xr, xi, wr, wi = ARE+2*p, AIM+2*p, WR+2*p, WI+2*p
        t0 = TMP+4*(p & 1); t1 = t0+2
        n0 = " neg_lo:[1,0,0] neg_hi:[1,0,0]" if p < 4 else ""
        n1 = "" if p < 4 else " neg_lo:[1,0,0] neg_hi:[1,0,0]"
        a.e(f"v_pk_mul_f32 {v(t0,2)}, {v(xr,2)}, {v(wr,2)}", f"v_pk_mul_f32 {v(t1,2)}, {v(xi,2)}, {v(wr,2)}",
            f"v_pk_fma_f32 {v(t0,2)}, {v(xi,2)}, {v(wi,2)}, {v(t0,2)}{n0}",
            f"v_pk_fma_f32 {v(t1,2)}, {v(xr,2)}, {v(wi,2)}, {v(t1,2)}{n1}")
        for e in range(2):
            a.e(f"v_cvt_pk_bf16_f32 v{DF+2*p+e}, v{t0+e}, -v{t1+e}")
    a.label(Linv)
    a.e("s_nop 1")
    fft1024(a)
    for r in range(16):
        t = TMP + (r & 7)
        a.e(f"v_cvt_pk_bf16_f32 v{t}, v{ARE+r}, v{AIM+r}", f"ds_write_b32 v{VRR}, v{t} offset:{128*eidx(r)}")
    a.e("s_waitcnt lgkmcnt(0)", "s_barrier")
    if OPT["yieldB"]:
        Ly = newlbl("y0a")
        if OPT["y0"]: a.e(f"s_cmp_lg_u32 s{sT}, 0", f"s_cbranch_scc1 {Ly}")
        a_state(a, sT, 2, TMP)
        a.label(Ly)
    stamp(a, 9)
    for u in range(4):
        for sl in range(2):
            a.e(f"ds_read_b64 {v(GB+4*u+2*sl,2)}, v{VHR} offset:{4096*sl+256*u}")
    a.e("s_lshl_b32 s49, s3, 9")
    for u in range(4):
        a.e(f"s_waitcnt lgkmcnt({6-2*u})")
        a.e(f"v_mfma_f32_16x16x32_bf16 {v(ARE+4*u,4)}, {v(GB+4*u,4)}, {v(HRE,4)}, 0",
            f"v_mfma_f32_16x16x32_bf16 {v(AIM+4*u,4)}, {v(GB+4*u,4)}, {v(HIM,4)}, 0")
    for u in range(4):
        for r in range(4):
            a.e(f"v_cvt_pk_bf16_f32 v{DF+4*u+r}, v{ARE+4*u+r}, v{AIM+4*u+r}")
        a.e(f"buffer_store_dwordx4 {v(DF+4*u,4)}, v{VST}, s[{SI2}:{SI2+3}], 0 offen offset:{128*u} sc1")
    dstamp(a, 6); dpublish(a, sT)
    a.e(f"s_lshl_b32 s48, s{sT}, {FA()}", f"s_add_u32 s48, s48, {SY_A2}")
    signal(a, 48, TMP)
    stamp(a, 10)
    Lb3 = newlbl("b3")
    if OPT["a3all"]:
        srd(a, SOUT, P_OUT, P_OUT+1, 8*MB)
        a.e(f"s_lshr_b32 s48, s{sT}, 3", f"s_and_b32 s49, s{sT}, 7", f"s_lshr_b32 s{sSA}, s48, 3", "s_bfe_u32 s50, s48, 0x10002",
            "s_lshl_b32 s50, s50, 3", "s_add_u32 s50, s50, s49", "s_lshl_b32 s50, s50, 2", "s_and_b32 s51, s48, 3", f"s_add_u32 s{sCB}, s50, s51")
        f8_addr(a, sSA, sCB, 4096, 16384)
        f8_consts(a)
        a.e(f"v_lshlrev_b32 v{F_TMP}, {FA()}, v1", f"v_add_u32 v{F_TMP}, {SY_A2}, v{F_TMP}")
        wait_flags(a, F_TMP, 4, F_TMP+1, 48)
        stamp(a, 11)
        PHASE[0] = 3
        fstamp(a, 11)
        f8_run(a, SI2, SOUT, "sc1", NTO())
    else:
        a.e(f"s_cmp_eq_u32 s{sACT}, 0", f"s_cbranch_scc1 {Lb3}")
        srd(a, SOUT, P_OUT, P_OUT+1, 8*MB)
        fft512_addr(a, sSA, sCB)
        fft512_addr2(a, sSA, sCB, 4096, 16384)
        fft512_consts(a)
        a.e(f"v_lshlrev_b32 v{F_TMP}, {FA()}, v1", f"v_add_u32 v{F_TMP}, {SY_A2}, v{F_TMP}")
        wait_flags(a, F_TMP, 4, F_TMP+1, 48)
        stamp(a, 11)
        PHASE[0] = 3
        fstamp(a, 11)
        fft512_loads(a, SI2, "sc1")
        fstamp(a, 3)
        save = gen.PROF; gen.PROF = False
        fft512_compute(a, SOUT, True, 0, NTO(), 0)
        gen.PROF = save
    a.e("s_cmp_lg_u32 s75, 0", "s_cbranch_scc1 L_fin")
    Lb1, Lb2 = newlbl("bchk"), newlbl("bchkd")
    a.e("v_lshlrev_b32 v2, 6, v1", f"v_add_u32 v2, {SY_ID}, v2", f"s_lshl_b32 s49, s{S_TGT}, 4", "s_mov_b32 s48, 0")
    a.label(Lb1)
    NS = NMEM()*8//64
    for i in range(NS):
        a.e(f"s_mov_b32 s50, {4096*i}", f"buffer_load_dword v{4+i}, v2, s[{S_SYN}:{S_SYN+3}], s50 offen sc1")
    a.e("s_add_u32 s48, s48, 1", "s_waitcnt vmcnt(0)")
    for i in range(NS): a.e(f"v_xor_b32 v{4+i}, s49, v{4+i}")
    for i in range(1, NS): a.e(f"v_or_b32 v4, v4, v{4+i}")
    a.e("v_lshrrev_b32 v4, 4, v4", "v_cmp_ne_u32 vcc, 0, v4", f"s_cbranch_vccz {Lb2}", f"s_cmp_lt_u32 s48, {SPIN_LIMIT}", f"s_cbranch_scc1 {Lb1}")
    a.label(Lb2)
    dreduce(a)
    pair_sum(a)
    a.e(f"s_mov_b32 s48, {SY_E}")
    bump(a, 48, 2)
    a.e("s_branch L_fin")
    if not OPT["a3all"]:
        a.label(Lb3)
        if not OPT["qA"]: emit_B3_pre(a)
        emit_B3(a)
        a.e("s_branch L_fin")
    a.label(Lsp)
    if OPT["spec2"]:
        Lp1s = newlbl("sp1")
        NEG = " neg_lo:[1,0,0] neg_hi:[1,0,0]"
        a.e(f"s_cmp_lg_u32 s{sPASS}, 0", f"s_cbranch_scc1 {Lp1s}")
        a.e(f"v_lshl_add_u32 v{SP}, v{G_}, 7, v{IDX}", f"v_sub_u32 v{SP+1}, {1023-32*27}, v{SP}",
            f"s_mov_b32 s48, {LW2}", f"v_lshl_add_u32 v{SP+2}, v{SP}, 1, s48", f"s_mov_b32 s49, {LW2+2048}", f"v_lshl_add_u32 v{SP+3}, v{SP+1}, 1, s49")
        w_lds_reads(a, SP+2, SP+3, W2R, W2I)
        for p in range(8):
            xr, xi, wr, wi = ARE+2*p, AIM+2*p, WR+2*p, WI+2*p
            t0 = TMP+4*(p & 1); t1 = t0+2
            n0 = NEG if p < 4 else ""; n1 = "" if p < 4 else NEG
            a.e(f"v_pk_mul_f32 {v(t0,2)}, {v(xr,2)}, {v(wr,2)}", f"v_pk_mul_f32 {v(t1,2)}, {v(xi,2)}, {v(wr,2)}",
                f"v_pk_fma_f32 {v(wr,2)}, {v(xi,2)}, {v(wi,2)}, {v(t0,2)}{n0}",
                f"v_pk_fma_f32 {v(wi,2)}, {v(xr,2)}, {v(wi,2)}, {v(t1,2)}{n1}")
        for i in range(16): a.e(f"v_mov_b32 v{DF+i}, v{GB+i}")
        a.e(f"s_mov_b32 s{sPASS}, 1", f"s_branch {Lfwd}")
        a.label(Lp1s)
        fix_w(a, W2R, W2I, PF2)
        for p in range(8):
            xr, xi, br, bi, r1r, r1i = ARE+2*p, AIM+2*p, W2R+2*p, W2I+2*p, WR+2*p, WI+2*p
            t0 = TMP+4*(p & 1); t1 = t0+2
            n0 = NEG if p < 4 else ""; n1 = "" if p < 4 else NEG
            a.e(f"v_pk_mul_f32 {v(t0,2)}, {v(xr,2)}, {v(br,2)}", f"v_pk_mul_f32 {v(t1,2)}, {v(xi,2)}, {v(br,2)}",
                f"v_pk_fma_f32 {v(t0,2)}, {v(xi,2)}, {v(bi,2)}, {v(t0,2)}{n0}",
                f"v_pk_fma_f32 {v(t1,2)}, {v(xr,2)}, {v(bi,2)}, {v(t1,2)}{n1}",
                f"v_pk_add_f32 {v(t1,2)}, {v(r1r,2)}, {v(t1,2)} neg_lo:[0,1] neg_hi:[0,1]",
                f"v_pk_add_f32 {v(t0,2)}, {v(r1i,2)}, {v(t0,2)}")
            for e in range(2):
                a.e(f"v_cvt_pk_bf16_f32 v{DF+2*p+e}, v{t1+e}, -v{t0+e}")
        a.e(f"s_branch {Linv}")
        return
    a.e(f"v_lshl_add_u32 v{TMP}, v{G_}, 7, v{IDX}", f"v_sub_u32 v{TMP+1}, {1023-32*27}, v{TMP}",
        f"s_mov_b32 s48, {LW2}", f"v_lshl_add_u32 v{TMP+2}, v{TMP}, 1, s48", f"s_mov_b32 s49, {LW2+2048}", f"v_lshl_add_u32 v{TMP+3}, v{TMP+1}, 1, s49")
    w_lds_reads(a, TMP+2, TMP+3, W2R, W2I)
    a.e("s_waitcnt lgkmcnt(0)")
    fix_w(a, W2R, W2I, PF2)
    VS = SP; K0 = SP+1
    a.e(f"v_lshlrev_b32 v{VS}, 9, v{G_}", f"v_lshl_add_u32 v{VS}, v{IDX}, 2, v{VS}")
    for r in range(16):
        a.e(f"ds_write_b32 v{VS}, v{ARE+r} offset:{LSC+128*eidx(r)}", f"ds_write_b32 v{VS}, v{AIM+r} offset:{LSC+4096+128*eidx(r)}")
    a.e(f"v_lshl_add_u32 v{K0}, v{G_}, 7, v{IDX}", f"v_sub_u32 v{K0}, 1024, v{K0}", "s_waitcnt lgkmcnt(0)")
    for r in range(16):
        ad, rr, ri, ur, ui, vr, vi, o0, o1 = [SP+2+i for i in range(9)]
        a.e(f"v_subrev_u32 v{ad}, {32*eidx(r)}, v{K0}", f"v_and_b32 v{ad}, 1023, v{ad}", f"v_lshlrev_b32 v{ad}, 2, v{ad}",
            f"ds_read_b32 v{rr}, v{ad} offset:{LSC}", f"ds_read_b32 v{ri}, v{ad} offset:{LSC+4096}", "s_waitcnt lgkmcnt(0)")
        pr, pi_ = ARE+r, AIM+r
        a.e(f"v_add_f32 v{ur}, v{pr}, v{rr}", f"v_sub_f32 v{ui}, v{pi_}, v{ri}",
            f"v_sub_f32 v{vr}, v{pr}, v{rr}", f"v_add_f32 v{vi}, v{pi_}, v{ri}")
        sg = "-" if r < 8 else ""; ns = "" if r < 8 else "-"
        ar, ai, br, bi = WR+r, WI+r, W2R+r, W2I+r
        a.e(f"v_mul_f32 v{o0}, v{ur}, v{ar}", f"v_fma_f32 v{o0}, {sg}v{ui}, v{ai}, v{o0}",
            f"v_fma_f32 v{o0}, v{vr}, v{br}, v{o0}", f"v_fma_f32 v{o0}, {sg}v{vi}, v{bi}, v{o0}",
            f"v_mul_f32 v{o1}, v{ui}, v{ar}", f"v_fma_f32 v{o1}, {ns}v{ur}, v{ai}, v{o1}",
            f"v_fma_f32 v{o1}, v{vi}, v{br}, v{o1}", f"v_fma_f32 v{o1}, {ns}v{vr}, v{bi}, v{o1}",
            f"v_mul_f32 v{o0}, 0.5, v{o0}", f"v_mul_f32 v{o1}, 0.5, v{o1}",
            f"v_cvt_pk_bf16_f32 v{DF+r}, v{o0}, -v{o1}")
    a.e(f"s_branch {Linv}")

def h_dma(a, SH, sLB, sD4K):
    a.e("v_lshlrev_b32 v235, 4, v1")
    a.e(f"s_add_u32 s74, s{sLB}, 32", "s_mov_b32 m0, s74")
    for ch in range(4): a.e(f"buffer_load_dwordx4 v235, s[{SH}:{SH+3}], s{sD4K} offen offset:{1024*ch} lds" + (NT() if OPT["nth"] else ""))
    a.e(f"s_add_u32 s74, s{sLB}, 4192", f"s_add_u32 s75, s{sD4K}, 2", "s_mov_b32 m0, s74")
    for ch in range(4): a.e(f"buffer_load_dwordx4 v235, s[{SH}:{SH+3}], s75 offen offset:{1024*ch} lds" + (NT() if OPT["nth"] else ""))
    a.e("v_mov_b32 v233, 0x7ffffff0", f"v_mov_b32 v234, s{sD4K}", "v_cmp_eq_u32 vcc, 15, v1", "v_cndmask_b32 v233, v233, v234, vcc",
        f"buffer_load_short_d16_hi v230, v233, s[{SH}:{SH+3}], 0 offen")

def gen_B(a):
    ROLE[0] = 'B'
    SH, STT, SKVT = 80, 84, 32
    a.e(f"s_setprio {OPT['prioB']}") if OPT['prioB'] else None
    srd(a, SH, P_SSMK, P_SSMK+1, 4*MB); srd(a, STT, P_OUT, P_OUT+1, 8*MB)
    sCBK, sSUB, sD, sD4K, sLB, sDV, sF1, sF2, sMASK = 40, 41, 42, 43, 44, 45, 46, 47, 72
    a.e(f"s_and_b32 s{sCBK}, s2, 15",
        f"s_lshr_b32 s{sSUB}, s2, 4",
        f"s_lshl_b32 s{sD}, s{sCBK}, 4", f"s_add_u32 s{sD}, s{sD}, s{sSUB}", f"s_lshl_b32 s{sD}, s{sD}, 2", f"s_add_u32 s{sD}, s{sD}, s3",
        f"s_lshl_b32 s{sD4K}, s{sD}, 12", f"s_mul_i32 s{sLB}, s3, {LB_STRIDE}", f"s_mov_b32 s{sMASK}, 0xffff0000")
    sSB = 36
    a.e(f"s_and_b32 s73, s{sD}, 63", "s_lshl_b32 s73, s73, 13", f"s_lshl_b32 s74, s{sCBK}, 7", "s_add_u32 s73, s73, s74", f"s_add_u32 s{sSB}, s73, 2048")
    for i in range(1, 4): a.e(f"s_add_u32 s{sSB+i}, s{sSB}, {i*2*MB}")
    a.e(f"s_lshl_b32 s73, s{sCBK}, {4+FB()}", f"s_add_u32 s{sF1}, s73, {SY_B1}", f"s_lshl_b32 s74, s{sSUB}, {FB()}", "s_add_u32 s73, s73, s74", f"s_add_u32 s{sF2}, s73, {SY_B2}")
    a.e(f"s_and_b32 s73, s{sD}, 0xfffffffe", "s_lshl_b32 s73, s73, 1", f"s_load_dword s{sDV}, s[{P_SSMD}:{P_SSMD+1}], s73")
    stamp(a, 0, True); stamp(a, 1)
    Lidle, Lsetup = newlbl("bidle"), newlbl("bsetup")
    if OPT["pB1"]: a.e(f"s_setprio {OPT['pB1']}")
    if OPT["b1all"]:
        a.e(f"s_mov_b32 s{sCBKT}, s{sCBK}", f"s_mov_b32 s{sSUBT}, s{sSUB}")
        if OPT["hearly"] and not OPT["hlate"]:
            emit_B1(a, after_stores=lambda: h_dma(a, SH, sLB, sD4K), nafter=9)
        else:
            emit_B1(a)
            if not OPT["hlate"]: h_dma(a, SH, sLB, sD4K)
    else:
        a.e(f"s_cmp_lg_u32 s{sACT}, 0", f"s_cbranch_scc1 {Lidle}")
        if OPT["hearly"] and not OPT["hlate"]:
            emit_B1(a, after_stores=lambda: h_dma(a, SH, sLB, sD4K), nafter=9)
        else:
            emit_B1(a)
            if not OPT["hlate"]: h_dma(a, SH, sLB, sD4K)
        a.e(f"s_branch {Lsetup}")
        a.label(Lidle)
        if OPT["tlb"] or OPT["cpf"]: warm(a)
        fin_epoch(a)
        loc_publish(a)
        loc_issue(a, 10)
        loc_resolve(a, 10, barrier=False)
        if not OPT["hlate"]:
            for _ in range(OPT["hactdelay"]):
                a.e("v_and_b32 v12, 15, v1", f"v_lshlrev_b32 v12, {FB()}, v12", f"v_add_u32 v12, s{sF1}, v12",
                    f"buffer_load_dword v13, v12, s[{S_SYN}:{S_SYN+3}], 0 offen sc1", "s_waitcnt vmcnt(0)")
            h_dma(a, SH, sLB, sD4K)
    a.label(Lsetup)
    if OPT["pB1"]: a.e(f"s_setprio {OPT['prioB']}")
    stamp(a, 12)
    if OPT["yieldB"] >= 2 and OPT["yinit"]:
        a_state(a, sCU, 0, 233)
    LN16, B_, G4, VA, VB, VE, VS2, T = 2, 3, 4, 5, 9, 10, 11, 12
    a.e(f"v_lshlrev_b32 v{T}, 2, v1",
        f"v_add_u32 v{T+1}, {4160-32}, v{T}", "v_cmp_le_u32 vcc, 8, v1", f"v_cndmask_b32 v{T+3}, v{T}, v{T+1}, vcc",
        f"v_add_u32 v{T+1}, 8288, v{T}", "v_cmp_le_u32 vcc, 16, v1", f"v_cndmask_b32 v{T+3}, v{T+3}, v{T+1}, vcc",
        f"v_add_u32 v231, s{sLB}, v{T+3}")
    a.e(f"v_lshlrev_b32 v{T}, 3, v1", f"v_add_u32 v{T}, s{sLB}, v{T}", "v_mov_b32 v16, 0", "v_mov_b32 v17, 0", f"ds_write_b64 v{T}, v[16:17] offset:8288")
    a.e(f"v_and_b32 v{B_}, 15, v1", f"v_lshrrev_b32 v{G4}, 4, v1")
    a.e(f"v_and_b32 v{VA}, 1, v{B_}", f"v_xor_b32 v{VA}, 1, v{VA}", f"v_mul_u32_u24 v{VA}, 4160, v{VA}",
        f"v_add_u32 v{VA+1}, 1, v{B_}", f"v_lshrrev_b32 v{VA+1}, 1, v{VA+1}", f"v_lshl_add_u32 v{VA}, v{VA+1}, 2, v{VA}",
        f"v_lshlrev_b32 v{VA+1}, 4, v{G4}", f"v_sub_u32 v{VA}, v{VA}, v{VA+1}",
        f"s_add_u32 s73, s{sLB}, 16", f"v_add_u32 v{VA}, s73, v{VA}")
    for pp in range(1, 4): a.e(f"v_add_u32 v{VA+pp}, {1024*pp}, v{VA}")
    a.e(f"v_lshlrev_b32 v{VB}, 5, v{B_}", f"v_lshl_add_u32 v{VB}, v{G4}, 4, v{VB}",
        f"s_add_u32 s73, s{sLB}, {8800-480}", f"v_add_u32 v{VB}, s73, v{VB}")
    a.e(f"v_lshrrev_b32 v18, 1, v{G4}", f"v_lshlrev_b32 v19, 4, v18", f"v_lshl_add_u32 v19, v{B_}, 5, v19",
        f"v_and_b32 v18, 1, v{G4}", "v_xor_b32 v18, 1, v18", f"v_lshl_add_u32 v19, v18, 3, v19",
        f"s_add_u32 s73, s{sLB}, 8800", f"v_add_u32 v232, s73, v19")
    a.e(f"v_lshrrev_b32 v18, 3, v{B_}", f"v_lshlrev_b32 v{VS2}, 19, v18", f"v_bfe_u32 v18, v{B_}, 2, 1", f"v_lshl_add_u32 v{VS2}, v18, 12, v{VS2}",
        f"v_and_b32 v18, 1, v{G4}", f"v_lshl_add_u32 v{VS2}, v18, 20, v{VS2}", f"v_and_b32 v18, 3, v{B_}", f"v_lshl_add_u32 v{VS2}, v18, 5, v{VS2}",
        f"v_lshrrev_b32 v18, 1, v{G4}", f"v_lshl_add_u32 v{VS2}, v18, 4, v{VS2}")
    a.e(f"v_lshlrev_b32 v{LN16}, 19, v{G4}", "v_bfe_u32 v18, v1, 3, 1", f"v_lshl_add_u32 v{LN16}, v18, 12, v{LN16}",
        "v_and_b32 v18, 7, v1", f"v_lshl_add_u32 v{LN16}, v18, 4, v{LN16}")
    a.e("v_lshlrev_b32 v18, 4, v1", f"s_add_u32 s73, s{sLB}, 8800", "v_add_u32 v19, s73, v18")
    a.e("s_waitcnt lgkmcnt(0)",
        f"s_and_b32 s73, s{sD}, 1", f"s_lshl_b32 s74, s{sDV}, 16", f"s_and_b32 s75, s{sDV}, 0xffff0000",
        "s_cmp_eq_u32 s73, 1", f"s_cselect_b32 s{sDV}, s75, s74")
    if OPT["twoflag"]:
        a.e(f"s_add_u32 s73, s{sF1}, {SY_B1B-SY_B1}", f"s_cmp_lg_u32 s{sLOC}, 0", f"s_cselect_b32 s{sF1}, s{sF1}, s73")
    a.e(f"v_and_b32 v{T}, 15, v1", f"v_lshlrev_b32 v{T}, {FB()}, v{T}", f"v_add_u32 v{T}, s{sF1}, v{T}")
    stamp(a, 5)
    wait_flags(a, T, 1, T+1, 73)
    loc_read(a, 12)
    stamp(a, 6)
    VE = 232
    ACC = 20
    SETS = [(52, 84), (116, 148)]
    U = SETS[1][1]
    for ch in range(4):
        a.e(f"buffer_load_dwordx4 {v(U+4*ch,4)}, v{LN16}, s[{STT}:{STT+3}], s{sSB+ch} offen" + LDL())
    def reads(rho, st):
        A, B = SETS[st]
        out = []
        for p in range(8):
            o = 8*rho + 128*(p & 1)
            out.append(f"ds_read2_b32 {v(A+4*p,2)}, v{VA+(p>>1)} offset0:{o} offset1:{o+1}")
            out.append(f"ds_read2_b32 {v(A+4*p+2,2)}, v{VA+(p>>1)} offset0:{o+2} offset1:{o+3}")
        outb = [f"ds_read_b128 {v(B+4*q,4)}, v{VB} offset:{512*q+32*(15-rho)}" for q in range(8)]
        return out, outb
    rhos = list(range(1, 16, 2))
    ra, rb = reads(rhos[0], 0)
    if OPT["hlate"]:
        h_dma(a, SH, sLB, sD4K)
        for ch in range(4):
            a.e(f"s_waitcnt vmcnt({3-ch+9})", f"ds_write_b128 v19, {v(U+4*ch,4)} offset:{1024*ch}")
        a.e("s_waitcnt vmcnt(0)", "ds_write_b32 v231, v230", "s_waitcnt lgkmcnt(0)")
        for r in ra: a.e(r)
    else:
        a.e("s_waitcnt vmcnt(4)", "ds_write_b32 v231, v230")
        a.e("s_waitcnt lgkmcnt(0)")
        for r in ra: a.e(r)
        for ch in range(4):
            a.e(f"s_waitcnt vmcnt({3-ch})", f"ds_write_b128 v19, {v(U+4*ch,4)} offset:{1024*ch}")
    a.e("s_waitcnt lgkmcnt(0)")
    for r in rb: a.e(r)
    if OPT["yieldB"]:
        Ly = newlbl("y0b")
        if OPT["y0"]: a.e("s_cmp_lg_u32 s2, 0", f"s_cbranch_scc1 {Ly}")
        if not (OPT["yieldB"] == 2 and OPT["ymid"]): b_yield(a, 233)
        a.label(Ly)
    Lnq = newlbl("noq")
    if OPT["a3all"]:
        a.e(f"s_mov_b32 s{sCBKT}, s{sCBK}", f"s_mov_b32 s{sSUBT}, s{sSUB}")
        if OPT["yieldB"] != 3: emit_B3_pre(a)
    else:
        a.e(f"s_cmp_lg_u32 s{sACT}, 0", f"s_cbranch_scc1 {Lnq}")
        emit_B3_pre(a)
        a.label(Lnq)
    stamp(a, 7)
    for ci, rho in enumerate(rhos):
        st = ci & 1
        A, B = SETS[st]
        if ci+1 < len(rhos):
            ra, rb = reads(rhos[ci+1], st ^ 1); nxt = ra[0:2] + rb + ra[2:]
        else:
            nxt = [f"ds_read_b64 {v(SETS[st^1][0]+2*j,2)}, v{VE} offset:{512*j}" for j in range(8)]
        if OPT["yieldB"] == 3: b_yield_step(a, 233, ci == len(rhos)-1)
        if OPT["yieldB"] == 2 and OPT["ymid"] and ci == OPT["ymid"]: b_yield(a, 233)
        a.e("s_waitcnt lgkmcnt(0)")
        n = 0
        for p in range(8):
            for q in range(8-p):
                j = p+q
                c = "0" if (ci == 0 and p == 0) else v(ACC+4*j, 4)
                a.e(f"v_mfma_f32_16x16x32_bf16 {v(ACC+4*j,4)}, {v(A+4*p,4)}, {v(B+4*q,4)}, {c}")
                if n < len(nxt): a.e(nxt[n])
                n += 1
    KVR = SETS[0][0]; TMv = 116
    if OPT["yieldB"] == 3 and OPT["a3all"]: emit_B3_pre(a)
    a.e("s_waitcnt lgkmcnt(0)")
    stamp(a, 8)
    sts = []
    for jp in range(4):
        base = TMv + 8*jp
        for hh in range(2):
            j = 2*jp+hh
            w0, w1 = KVR+2*j, KVR+2*j+1
            t = 172
            a.e(f"v_and_b32 v{t}, s{sMASK}, v{w1}", f"v_lshlrev_b32 v{t+1}, 16, v{w1}",
                f"v_and_b32 v{t+2}, s{sMASK}, v{w0}", f"v_lshlrev_b32 v{t+3}, 16, v{w0}")
            for r in range(4):
                a.e(f"v_fma_f32 v{t+r}, v{t+r}, s{sDV}, v{ACC+4*j+r}")
            a.e(f"v_cvt_pk_bf16_f32 v{base+2*hh}, v{t}, v{t+1}", f"v_cvt_pk_bf16_f32 v{base+2*hh+1}, v{t+2}, v{t+3}")
        a.e(f"v_permlane16_swap_b32 v{base}, v{base+2}", f"v_permlane16_swap_b32 v{base+1}, v{base+3}")
        sts.append(f"buffer_store_dwordx4 {v(base,4)}, v{VS2}, s[{STT}:{STT+3}], s{sSB+jp} offen")
    dual_store(a, sts)
    signal(a, sF2, 12, bloc=True)
    stamp(a, 9)
    if not OPT["a3all"]: a.e(f"s_cmp_lg_u32 s{sACT}, 0", "s_cbranch_scc1 L_fin")
    emit_B3(a)
    pair_chkB(a)
    a.e("s_branch L_fin")

SY_PA = 4096 + 163840
SY_PB = SY_PA + 16384
def hwid(a, dst):
    a.e(f"s_getreg_b32 s{dst}, hwreg(HW_REG_HW_ID)", f"s_lshr_b32 s{dst}, s{dst}, 8", f"s_and_b32 s{dst}, s{dst}, 0xff",
        "s_getreg_b32 s93, hwreg(HW_REG_XCC_ID)", "s_and_b32 s93, s93, 15", "s_lshl_b32 s93, s93, 8", f"s_or_b32 s{dst}, s{dst}, s93")
def pair_pubA(a):
    if not OPT.get("pair"): return
    L = newlbl("ppa")
    a.e("s_cmp_lg_u32 s3, 0", f"s_cbranch_scc1 {L}")
    hwid(a, 92)
    a.e(f"s_lshl_b32 s93, s{sCU}, 6", f"s_add_u32 s93, s93, {SY_PA}", "v_mov_b32 v240, s93", "v_mov_b32 v241, s92", "s_mov_b64 exec, 1",
        f"buffer_store_dword v241, v240, s[{S_SYN}:{S_SYN+3}], 0 offen sc1", "s_mov_b64 exec, -1")
    a.label(L)
def pair_chkB(a):
    if not OPT.get("pair"): return
    L = newlbl("ppb")
    a.e("s_cmp_lg_u32 s3, 0", f"s_cbranch_scc1 {L}")
    hwid(a, 92)
    a.e(f"s_lshl_b32 s93, s{sCU}, 6", f"s_add_u32 s93, s93, {SY_PA}", "v_mov_b32 v240, s93",
        f"buffer_load_dword v241, v240, s[{S_SYN}:{S_SYN+3}], 0 offen sc1", "s_waitcnt vmcnt(0)", "v_readfirstlane_b32 s93, v241",
        "s_cmp_lg_u32 s92, s93", "s_cselect_b32 s92, 1, 0", f"s_lshl_b32 s93, s{S_TGT}, 1", "s_or_b32 s92, s92, s93",
        f"s_lshl_b32 s93, s{sCU}, 6", f"s_add_u32 s93, s93, {SY_PB}", "v_mov_b32 v240, s93", "v_mov_b32 v241, s92", "s_mov_b64 exec, 1",
        f"buffer_store_dword v241, v240, s[{S_SYN}:{S_SYN+3}], 0 offen sc1", "s_mov_b64 exec, -1", "s_waitcnt vmcnt(0)")
    a.label(L)
def pair_sum(a):
    if not OPT.get("pair"): return
    L1, L2, L3 = newlbl("ps"), newlbl("psd"), newlbl("psp")
    a.e("v_lshlrev_b32 v2, 6, v1", f"v_add_u32 v2, {SY_PB}, v2", f"s_lshl_b32 s49, s{S_TGT}, 1", "s_mov_b32 s48, 0")
    a.label(L1)
    for i in range(4): a.e(f"s_mov_b32 s50, {4096*i}", f"buffer_load_dword v{4+i}, v2, s[{S_SYN}:{S_SYN+3}], s50 offen sc1")
    a.e("s_add_u32 s48, s48, 1", "s_waitcnt vmcnt(0)")
    for i in range(4): a.e(f"v_xor_b32 v{4+i}, s49, v{4+i}")
    a.e("v_or_b32 v8, v4, v5", "v_or_b32 v9, v6, v7", "v_or_b32 v8, v8, v9", "v_lshrrev_b32 v8, 1, v8", "v_cmp_ne_u32 vcc, 0, v8", f"s_cbranch_vccz {L2}",
        f"s_cmp_lt_u32 s48, {SPIN_LIMIT}", f"s_cbranch_scc1 {L1}")
    a.label(L2)
    a.e("s_mov_b32 s48, 0")
    for i in range(4): a.e(f"v_cmp_eq_u32 vcc, 1, v{4+i}", "s_bcnt1_i32_b64 s49, vcc", "s_add_u32 s48, s48, s49")
    a.e(f"s_mov_b32 s92, s{P_DBG}", f"s_mov_b32 s93, s{P_DBG+1}", "s_mov_b32 s94, 256", "s_mov_b32 s95, 0x00020000", "v_mov_b32 v4, 0", "v_mov_b32 v5, s48", "s_mov_b64 exec, 1",
        "buffer_store_dword v5, v4, s[92:95], 0 offen", "s_mov_b64 exec, -1")
    a.e("s_mul_i32 s48, s48, 10", "s_memrealtime s[50:51]", "s_waitcnt lgkmcnt(0)", "s_mov_b32 s49, s50")
    a.label(L3)
    a.e("s_memrealtime s[50:51]", "s_waitcnt lgkmcnt(0)", "s_sub_u32 s50, s50, s49", "s_cmp_lt_u32 s50, s48", f"s_cbranch_scc1 {L3}")

def warm(a):
    if OPT["tlb"]:
        L = newlbl("warm")
        a.e("s_cmp_lg_u32 s3, 3", f"s_cbranch_scc1 {L}")
        pages = [(P_WS, WS_I1), (P_WS, WS_I1+2*MB), (P_WS, WS_I2), (P_WS, WS_I2+2*MB), (P_WS, WS_SYNC+512*1024),
                 (P_OUT, 0), (P_OUT, 2*MB), (P_OUT, 4*MB), (P_OUT, 6*MB),
                 (P_WR, 0), (P_WR, 2*MB), (P_WI, 0), (P_WI, 2*MB), (P_SSMK, 0), (P_SSMK, 2*MB), (P_Q, 0), (P_Q, 2*MB)]
        a.e("v_mov_b32 v240, 0", "v_mov_b32 v241, 0")
        for i, (p, off) in enumerate(pages):
            a.e(f"s_add_u32 s92, s{p}, {off}", f"s_addc_u32 s93, s{p+1}, 0", f"v_writelane_b32 v240, s92, {i}", f"v_writelane_b32 v241, s93, {i}")
        a.e(f"s_mov_b64 exec, {(1 << len(pages)) - 1}", "global_load_dword v242, v[240:241], off", "s_mov_b64 exec, -1")
        a.label(L)
    if OPT["cpf"]:
        L = newlbl("warm")
        a.e("s_cmp_ge_u32 s3, 2", f"s_cbranch_scc1 {L}")
        a.e("s_getpc_b64 s[92:93]")
        a.e("s_lshr_b32 s96, s2, 4", "s_and_b32 s96, s96, 15", "s_lshl_b32 s96, s96, 1", "s_add_u32 s96, s96, s3", "s_min_u32 s96, s96, 25",
            "s_lshl_b32 s96, s96, 10", f"s_sub_u32 s92, s92, {OPT['cpf']}", "s_subb_u32 s93, s93, 0",
            "s_add_u32 s92, s92, s96", "s_addc_u32 s93, s93, 0", "v_lshlrev_b32 v240, 4, v1",
            "global_load_dwordx4 v[236:239], v240, s[92:93]")
        a.label(L)

def gen_kernel():
    a = Asm(); a.name = "p"
    a.e("s_cmp_ge_u32 s2, 512", "s_cbranch_scc1 L_exit")
    if OPT.get("spinT") or OPT.get("span"): a.e("s_memrealtime s[94:95]")
    if OPT.get("spinC"): a.e("s_memtime s[94:95]")
    if gen.PROF: a.e("s_memrealtime s[98:99]", "s_waitcnt lgkmcnt(0)", "v_writelane_b32 v247, s98, 13")
    a.e(f"s_load_dwordx16 s[4:19], s[0:1], 0", f"s_load_dwordx8 s[20:27], s[0:1], 64")
    a.e("v_lshrrev_b32 v1, 6, v0", "v_readfirstlane_b32 s3, v1", "v_and_b32 v1, 63, v0", "s_waitcnt lgkmcnt(0)")
    srd(a, S_SYN, P_WS, P_WS+1, 1*MB, add=WS_SYNC)
    a.e(f"s_mov_b32 s48, {WS_SYNC+SY_E}", f"s_load_dword s{S_TGT}, s[{P_WS}:{P_WS+1}], s48")
    a.e(f"s_mov_b32 s98, {64<<FA()}", f"s_mov_b32 s99, {128<<FA()}", f"s_mov_b32 s100, {192<<FA()}")
    a.e(f"s_and_b32 s{sCU}, s2, 255", f"s_bitcmp0_b32 s2, 3", f"s_cselect_b32 s{sACT}, 1, 0",
        f"s_lshr_b32 s48, s{sCU}, 4", "s_lshl_b32 s48, s48, 3", f"s_and_b32 s49, s{sCU}, 7", "s_add_u32 s48, s48, s49",
        f"s_and_b32 s{sCBKT}, s48, 15", "s_lshr_b32 s48, s48, 4", "s_lshl_b32 s48, s48, 1", "s_lshr_b32 s49, s2, 8", f"s_add_u32 s{sSUBT}, s48, s49")
    a.e("s_cmp_ge_u32 s2, 256", "s_cbranch_scc1 L_A")
    gen_B(a)
    a.label("L_A")
    gen_A(a)
    a.label("L_fin")
    pass
    if gen.PROF:
        a.e("s_waitcnt vmcnt(0)")
        stamp(a, 14); stamp(a, 15, True)
        prof_dump(a)
    if OPT.get("span"):
        Ls = newlbl("span")
        a.e("s_cmp_lg_u32 s3, 0", f"s_cbranch_scc1 {Ls}", "s_waitcnt vmcnt(0)", "s_memrealtime s[92:93]",
            f"s_add_u32 s32, s{P_WS}, {gen.WS_PROF}", f"s_addc_u32 s33, s{P_WS+1}, 0", f"s_mov_b32 s34, {MB}", "s_mov_b32 s35, 0x00020000",
            "s_lshl_b32 s36, s2, 3", "s_waitcnt lgkmcnt(0)", "v_mov_b32 v2, s36", "v_mov_b32 v4, s94", "v_mov_b32 v5, s92", "s_mov_b64 exec, 1",
            "buffer_store_dwordx2 v[4:5], v2, s[32:35], 0 offen", "s_waitcnt vmcnt(0)")
        a.label(Ls)
    if OPT.get("spinC"):
        a.label("L_spinc")
        a.e("s_memtime s[92:93]", "s_waitcnt lgkmcnt(0)", "s_sub_u32 s92, s92, s94", f"s_cmp_lt_u32 s92, {OPT['spinC']}", "s_cbranch_scc1 L_spinc")
    if OPT.get("spinT"):
        a.label("L_spin")
        a.e("s_memrealtime s[92:93]", "s_waitcnt lgkmcnt(0)", "s_sub_u32 s92, s92, s94", f"s_cmp_lt_u32 s92, {OPT['spinT']}", "s_cbranch_scc1 L_spin")
    a.label("L_exit")
    a.e("s_endpgm")
    return a

def prof_dump(a):
    if OPT.get("dbgwg", -1) >= 0:
        L = newlbl("nodbg")
        a.e(f"s_cmp_lg_u32 s2, {OPT['dbgwg']}", f"s_cbranch_scc1 {L}", "s_cmp_lg_u32 s3, 0", f"s_cbranch_scc1 {L}")
        a.e("v_readlane_b32 s36, v247, 1", "v_readlane_b32 s37, v247, 13", "v_mov_b32 v250, s36", "v_mov_b32 v251, s37",
            "v_cmp_eq_u32 vcc, 0, v1", "v_cndmask_b32 v250, v250, v251, vcc", "v_cmp_eq_u32 vcc, 13, v1", "v_cndmask_b32 v250, v250, v251, vcc",
            "v_cmp_eq_u32 vcc, 15, v1", "v_cndmask_b32 v250, v250, v251, vcc", "v_sub_u32 v250, v247, v250",
            f"s_mov_b32 s32, s{P_DBG}", f"s_mov_b32 s33, s{P_DBG+1}", "s_mov_b32 s34, 256", "s_mov_b32 s35, 0x00020000",
            "v_lshlrev_b32 v251, 2, v1", "s_mov_b64 exec, 0xffff", "buffer_store_dword v250, v251, s[32:35], 0 offen", "s_waitcnt vmcnt(0)", "s_mov_b64 exec, -1")
        a.label(L)
        return

    a.e(f"s_add_u32 s32, s{P_WS}, {gen.WS_PROF}", f"s_addc_u32 s33, s{P_WS+1}, 0", f"s_mov_b32 s34, {MB}", "s_mov_b32 s35, 0x00020000")
    a.e("s_lshl_b32 s36, s2, 2", "s_add_u32 s36, s36, s3", "s_lshl_b32 s36, s36, 6",
        "v_lshlrev_b32 v250, 2, v1", "v_add_u32 v250, s36, v250", "s_mov_b64 exec, 0xffff",
        "buffer_store_dword v247, v250, s[32:35], 0 offen")
    if OPT.get("fine"):
        a.e("v_add_u32 v250, 0x40000, v250", "buffer_store_dword v246, v250, s[32:35], 0 offen")
    a.e("s_waitcnt vmcnt(0)")
PROFREGS = []

def build(path):
    a = gen_kernel()
    name = "concat_heads__spectral_gfnet__ssm_conv_h3__prompt_kernel"
    s = open("concat_heads__spectral_gfnet__ssm_conv_h3__prompt.s.ref").read().split("; Override")[0]
    s += f"; @launch grid=(512,1,1) block=(256,1,1) lds={LDS_BYTES}\n"
    s += '.amdgcn_target "amdgcn-amd-amdhsa--gfx950"\n' + gen.header(name) + a.text() + gen.descriptor(name, 256, 102)
    s = s.replace(" lds nt", " nt lds")
    open(path, "w").write(s)
    return s

if __name__ == "__main__":
    out = sys.argv[1] if len(sys.argv) > 1 else "pers.s"
    gen.PROF = "prof" in sys.argv[2:]
    for x in sys.argv[2:]:
        if "=" in x:
            k, val = x.split("="); OPT[k] = int(val)
    if OPT["wsend"]:
        base = OPT["wsend"]*MB
        WS_I1, WS_KVT, WS_I2, WS_TT, WS_SYNC = base, base+4*MB, base+8*MB, base+12*MB, base+20*MB
    s = build(out)
    print(out, len(s))
```

```python
import sys
from asmgen import *
import gen
from gen import srd, MB, WS_I1, WS_KVT, WS_I2, WS_TT, KA

PHASE = [1]
def dstamp(a, k, inv=False):
    if not OPT.get("dmax"): return
    a.e("s_memrealtime s[96:97]", "s_waitcnt lgkmcnt(0)", f"v_writelane_b32 v242, s96, {k}")
SY_DG = 4096 + 131072
def dpublish(a, sT):
    if not OPT.get("dmax"): return
    L = newlbl("dp")
    a.e("s_cmp_lg_u32 s3, 0", f"s_cbranch_scc1 {L}", f"s_lshl_b32 s92, s{sT}, 5", f"s_add_u32 s92, s92, {SY_DG}",
        "v_lshlrev_b32 v240, 2, v1", "v_add_u32 v240, s92, v240", "s_mov_b64 exec, 0xff",
        f"buffer_store_dword v242, v240, s[{S_SYN}:{S_SYN+3}], 0 offen sc1", "s_mov_b64 exec, -1")
    a.label(L)
def dreduce(a):
    if not OPT.get("dmax"): return
    a.e(f"s_mov_b32 s92, s{P_DBG}", f"s_mov_b32 s93, s{P_DBG+1}", "s_mov_b32 s94, 256", "s_mov_b32 s95, 0x00020000")
    a.e("v_lshlrev_b32 v2, 5, v1", f"v_add_u32 v2, {SY_DG}, v2")
    for k in range(7):
        for i in range(4):
            a.e(f"s_mov_b32 s50, {2048*i + 4*k}", f"buffer_load_dword v{10+i}, v2, s[{S_SYN}:{S_SYN+3}], s50 offen sc1")
        a.e("s_waitcnt vmcnt(0)")
        if k == 0:
            a.e("v_min_u32 v10, v10, v11", "v_min_u32 v12, v12, v13", "v_min_u32 v10, v10, v12", "s_mov_b32 s51, -1")
            for l in range(64): a.e(f"v_readlane_b32 s48, v10, {l}", "s_min_u32 s51, s51, s48")
            a.e("s_mov_b32 s45, s51")
            continue
        for i in range(4):
            a.e(f"v_subrev_u32 v{10+i}, s45, v{10+i}", f"v_lshlrev_b32 v{10+i}, 8, v{10+i}", f"v_add_u32 v14, {64*i}, v1", f"v_or_b32 v{10+i}, v{10+i}, v14")
        a.e("v_max_u32 v10, v10, v11", "v_max_u32 v12, v12, v13", "v_max_u32 v10, v10, v12", "s_mov_b32 s51, 0")
        for l in range(64): a.e(f"v_readlane_b32 s48, v10, {l}", "s_max_u32 s51, s51, s48")
        a.e("s_lshr_b32 s48, s51, 8", "s_and_b32 s49, s51, 255", "v_mov_b32 v14, s48", "v_mov_b32 v15, s49", f"v_mov_b32 v16, {8*(k-1)}", "s_mov_b64 exec, 1",
            "buffer_store_dwordx2 v[14:15], v16, s[92:95], 0 offen", "s_mov_b64 exec, -1")
DMAP_A = {1: 0, 5: 1, 6: 2, 7: 3, 8: 4, 9: 5}
DMAP_B = {}
ROLE = ["B"]
def fstamp(a, i):
    if OPT.get("fine") != PHASE[0]: return
    a.e('s_memtime s[96:97]', 's_waitcnt lgkmcnt(0)', f'v_writelane_b32 v246, s96, {i}')
def stamp(a, i, real=False):
    if OPT.get("dmax"):
        m = DMAP_A if ROLE[0] == "A" else DMAP_B
        if i in m and i != 14: dstamp(a, m[i])
        return
    if not gen.PROF: return
    a.e('s_memrealtime s[96:97]' if real else 's_memtime s[96:97]', 's_waitcnt lgkmcnt(0)', f'v_writelane_b32 v247, s96, {i}')

WBYTES = 2048*513*2
LB_STRIDE = 12896
LDS_BYTES = 53248
SPIN_LIMIT = 400000
OPT = dict(prioA=0, prioB=0, sleep=0, nt=1, wsend=0, ntout=1, ntw=1, wlate=1, hlate=1, qA=1, fsa=6, fsb=6, shrink=0, loc=1, forceloc=-1, ldloc=1, bdelay=0, earlypub=1, wpos=1, optst=1, locflag=1, hearly=1, twoflag=1, pA1i=-1, pB1=0, ntscr=0, a3all=1, ntk=1, ntv=1, ntx=1, nth=1, hactdelay=0, b1all=1, bactwait=1, pA1a=-1, grp=1, yieldB=0, ylim=40, tlb=0, cpf=0, spec2=1, y0=0, yinit=1, ymid=0, swap=0, a1all=1, cearly=1, fullline=1)
def NMEM(): return 32 if OPT['b1all'] else 48
def LDL(): return {0: ' sc1', 1: ' nt', 2: ' sc1 nt'}[OPT['ldloc']]
def FA(): return OPT['fsa']
def FB(): return OPT['fsb']
def NT(): return ' nt' if OPT['nt'] else ''
def NTO(): return {0: '', 1: ' nt', 2: ' sc1', 3: ' sc1 nt'}[OPT['ntout']]

P_X, P_WR, P_WI, P_Q, P_K, P_V, P_SHK, P_SSMK, P_SSMD, P_OUT, P_DBG, P_WS = 4, 6, 8, 10, 12, 14, 16, 18, 20, 22, 24, 26
S_DBG = 28
def eidx(r): return (r & 3) + 8*(r >> 2)

_lbl = [0]
def newlbl(p):
    _lbl[0] += 1
    return f"L_{p}_{_lbl[0]}"

WS_SYNC = 20*MB
S_SYN = 28
S_TGT = 101
SY_E, SY_A1, SY_A2, SY_B1, SY_B2 = 0, 4096, 4096+16384, 4096+32768, 4096+49152
sACT, sCBKT, sSUBT, sCU = 88, 89, 90, 91
sLOC, sXEXP = 79, 0
S_DBG = 12
def signal(a, s_off, vt, nafter=0, bloc=False):
    L = newlbl("sig")
    a.e(f"s_waitcnt vmcnt({nafter})", "s_barrier", "s_cmp_lg_u32 s3, 0", f"s_cbranch_scc1 {L}",
        f"v_mov_b32 v{vt}, s{s_off}", f"v_mov_b32 v{vt+1}, s{S_TGT}", "s_mov_b64 exec, 1")
    st = f"buffer_store_dword v{vt+1}, v{vt}, s[{S_SYN}:{S_SYN+3}], 0 offen"
    if bloc and OPT["locflag"]:
        dual_store(a, [st])
    else:
        a.e(st + " sc1")
    a.e("s_mov_b64 exec, -1")
    if OPT.get("flagwait"): a.e("s_waitcnt vmcnt(0)")
    a.label(L)

def wait_flags(a, vaddr, nload, vt, s_cnt, pre_barrier=None, solo=False):
    L = newlbl("poll"); Ls = newlbl("pdone"); Lr = newlbl("prest")
    if not solo: a.e("s_cmp_lg_u32 s3, 0", f"s_cbranch_scc1 {Ls}")
    a.e(f"s_mov_b32 s{s_cnt}, 0")
    a.label(L)
    offs = ["0", "s98", "s99", "s100"]
    for i in range(nload):
        a.e(f"buffer_load_dword v{vt+i}, v{vaddr}, s[{S_SYN}:{S_SYN+3}], {offs[i]} offen sc1")
    a.e(f"s_add_u32 s{s_cnt}, s{s_cnt}, 1", "s_waitcnt vmcnt(0)")
    for i in range(nload):
        a.e(f"v_xor_b32 v{vt+i}, s{S_TGT}, v{vt+i}")
    for i in range(1, nload):
        a.e(f"v_or_b32 v{vt}, v{vt}, v{vt+i}")
    if OPT["shrink"]:
        a.e(f"v_cmp_ne_u32 vcc, 0, v{vt}", "s_and_b64 exec, exec, vcc", f"s_cbranch_execz {Lr}")
    else:
        a.e(f"v_cmp_ne_u32 vcc, 0, v{vt}", f"s_cbranch_vccz {Lr}")
    if OPT["sleep"]: a.e(f"s_sleep {OPT['sleep']}")
    a.e(f"s_cmp_lt_u32 s{s_cnt}, {SPIN_LIMIT}", f"s_cbranch_scc1 {L}")
    a.label(Lr)
    if OPT["shrink"]: a.e("s_mov_b64 exec, -1")
    a.label(Ls)
    if pre_barrier: a.e(pre_barrier)
    if not solo: a.e("s_barrier")

SY_ID = 4096 + 65536
SY_B1B = 4096 + 98304
SY_AS = 4096 + 114688
LOCW = 53244
def loc_publish(a):
    L = newlbl("pub")
    a.e("s_getreg_b32 s92, hwreg(HW_REG_XCC_ID)", "s_and_b32 s92, s92, 15", f"s_lshl_b32 s{sXEXP}, s{S_TGT}, 4", f"s_or_b32 s{sXEXP}, s{sXEXP}, s92")
    a.e("s_cmp_lg_u32 s3, 0", f"s_cbranch_scc1 {L}")
    if OPT["b1all"] and OPT["grp"]:
        a.e("s_and_b32 s92, s2, 15", "s_lshl_b32 s92, s92, 4", "s_lshr_b32 s93, s2, 4", "s_add_u32 s92, s92, s93", "s_lshl_b32 s92, s92, 6", f"s_add_u32 s92, s92, {SY_ID}")
    else:
        a.e("s_lshr_b32 s92, s2, 3", f"s_lshr_b32 s93, s{sCU}, 4", "s_add_u32 s93, s93, 32", "s_cmp_ge_u32 s2, 256", "s_cselect_b32 s92, s93, s92",
            "s_and_b32 s93, s2, 7", f"s_mul_i32 s93, s93, {NMEM()}", "s_add_u32 s92, s92, s93", "s_lshl_b32 s92, s92, 6", f"s_add_u32 s92, s92, {SY_ID}")
    a.e(
        "v_mov_b32 v10, s92", f"v_mov_b32 v11, s{sXEXP}", "s_mov_b64 exec, 1",
        f"buffer_store_dword v11, v10, s[{S_SYN}:{S_SYN+3}], 0 offen sc1", "s_mov_b64 exec, -1")
    a.label(L)

def loc_issue(a, vt):
    if OPT["b1all"] and OPT["grp"]:
        a.e(f"v_min_u32 v{vt}, 15, v1", "s_and_b32 s93, s2, 15", "s_lshl_b32 s93, s93, 4")
    else:
        a.e(f"v_min_u32 v{vt}, {NMEM()-1}, v1", "s_and_b32 s93, s2, 7", f"s_mul_i32 s93, s93, {NMEM()}")
    a.e(f"v_add_u32 v{vt}, s93, v{vt}",
        f"v_lshlrev_b32 v{vt}, 6, v{vt}", f"v_add_u32 v{vt}, {SY_ID}, v{vt}")
    L = newlbl("li")
    a.e("s_cmp_lg_u32 s3, 0", f"s_cbranch_scc1 {L}")
    a.e(f"buffer_load_dword v{vt+1}, v{vt}, s[{S_SYN}:{S_SYN+3}], 0 offen sc1")
    a.label(L)

def loc_resolve(a, vt, barrier=True, nafter=0):
    L, Ld, Ls = newlbl("locp"), newlbl("locd"), newlbl("locs")
    a.e("s_cmp_lg_u32 s3, 0", f"s_cbranch_scc1 {Ls}")
    if OPT["forceloc"] >= 0:
        a.e(f"s_waitcnt vmcnt({nafter})", f"s_mov_b32 s93, {OPT['forceloc']}")
    else:
        a.e("s_mov_b32 s92, 0", f"s_waitcnt vmcnt({nafter})")
        a.label(L)
        a.e(f"v_xor_b32 v{vt+2}, s{sXEXP}, v{vt+1}", f"v_lshrrev_b32 v{vt+3}, 4, v{vt+2}", "s_add_u32 s92, s92, 1",
            f"v_cmp_ne_u32 vcc, 0, v{vt+3}", f"s_cbranch_vccz {Ld}",
            f"s_cmp_ge_u32 s92, {SPIN_LIMIT}", f"s_cbranch_scc1 {Ld}",
            f"buffer_load_dword v{vt+1}, v{vt}, s[{S_SYN}:{S_SYN+3}], 0 offen sc1", "s_waitcnt vmcnt(0)", f"s_branch {L}")
        a.label(Ld)
        a.e(f"v_cmp_ne_u32 vcc, 0, v{vt+2}", "s_cmp_eq_u64 vcc, 0", "s_cselect_b32 s93, 1, 0")
    a.e(f"s_mov_b32 s{sLOC}, s93", f"v_mov_b32 v{vt+2}, {LOCW}", f"v_mov_b32 v{vt+3}, s93", f"ds_write_b32 v{vt+2}, v{vt+3}", "s_waitcnt lgkmcnt(0)")
    a.label(Ls)
    if barrier:
        a.e("s_barrier")
        loc_read(a, vt)

def loc_read(a, vt):
    a.e(f"v_mov_b32 v{vt+2}, {LOCW}", f"ds_read_b32 v{vt+3}, v{vt+2}", "s_waitcnt lgkmcnt(0)", f"v_readfirstlane_b32 s{sLOC}, v{vt+3}")

def dual_store(a, lines):
    L1, L2 = newlbl("stg"), newlbl("stl")
    a.e(f"s_cmp_eq_u32 s{sLOC}, 0", f"s_cbranch_scc1 {L1}")
    for l in lines: a.e(l)
    a.e(f"s_branch {L2}")
    a.label(L1)
    for l in lines: a.e(l + " sc1" if "buffer_store" in l else l)
    a.label(L2)

def a_state(a, sT, st, vt):
    L = newlbl("ast")
    a.e("s_cmp_lg_u32 s3, 0", f"s_cbranch_scc1 {L}", f"s_lshl_b32 s92, s{sT}, 6", f"s_add_u32 s92, s92, {SY_AS}",
        f"s_lshl_b32 s93, s{S_TGT}, 2", f"s_or_b32 s93, s93, {st}", f"v_mov_b32 v{vt}, s92", f"v_mov_b32 v{vt+1}, s93", "s_mov_b64 exec, 1",
        f"buffer_store_dword v{vt+1}, v{vt}, s[{S_SYN}:{S_SYN+3}], 0 offen", "s_mov_b64 exec, -1")
    a.label(L)

def y_ld(vt): return f"buffer_load_dword v{vt+1}, v{vt}, s[{S_SYN}:{S_SYN+3}], 0 offen " + ("sc1" if OPT.get("ysc", 1) else "nt")
def b_yield(a, vt):
    L, Ld = newlbl("yl"), newlbl("yd")
    a.e(f"s_lshl_b32 s92, s{sCU}, 6", f"s_add_u32 s92, s92, {SY_AS}", f"v_mov_b32 v{vt}, s92", f"s_lshl_b32 s75, s{S_TGT}, 2", "s_mov_b32 s92, 0")
    a.e(f"s_or_b32 s75, s75, {2 if OPT['yieldB'] == 2 else 1}")
    if OPT["yieldB"] == 3:
        a.e(y_ld(vt)); return
    a.label(L)
    a.e(y_ld(vt), "s_add_u32 s92, s92, 1", "s_waitcnt vmcnt(0)",
        f"v_readfirstlane_b32 s93, v{vt+1}", "s_cmp_lg_u32 s93, s75" if OPT["yieldB"] == 1 else "s_cmp_eq_u32 s93, s75", f"s_cbranch_scc1 {Ld}",
        f"s_cmp_lt_u32 s92, {OPT['ylim']}", f"s_cbranch_scc1 {L}")
    a.label(Ld)

def b_yield_step(a, vt, last):
    L, Ld = newlbl("ys"), newlbl("ysd")
    a.label(L)
    a.e("s_waitcnt vmcnt(0)", f"v_readfirstlane_b32 s93, v{vt+1}", "s_cmp_lg_u32 s93, s75", f"s_cbranch_scc1 {Ld}",
        f"s_cmp_ge_u32 s92, {OPT['ylim']}", f"s_cbranch_scc1 {Ld}", "s_add_u32 s92, s92, 1", y_ld(vt), f"s_branch {L}")
    a.label(Ld)
    if not last: a.e(y_ld(vt))

def fin_epoch(a):
    a.e("s_waitcnt lgkmcnt(0)", f"s_add_u32 s{S_TGT}, s{S_TGT}, 1")

def bump(a, s_off, vt):
    a.e(f"v_mov_b32 v{vt}, s{s_off}", f"v_mov_b32 v{vt+1}, s{S_TGT}", "s_mov_b64 exec, 1",
        f"buffer_store_dword v{vt+1}, v{vt}, s[{S_SYN}:{S_SYN+3}], 0 offen sc1", "s_mov_b64 exec, -1")

F_M, F_G, F_IN0, F_IN1, F_OUTOFF, F_WR, F_RD0, F_RD1, F_MM = 2, 3, 4, 5, 6, 7, 8, 9, 10
F_T = 11
F_IN, F16RE, F16IM, F_TWC, F_TWS, F_DRE, F_DIM, F_P, F_TMP, F32RE, F32IM = 16, 48, 52, 56, 88, 120, 136, 152, 168, 176, 192
SI_OFF, SO_OFF = 52, 68
SO_LIST = [68, 69, 70, 71, 76, 77, 78, 79]

def fft512_addr(a, s_sa, s_cb):
    a.e(f"v_and_b32 v{F_M}, 15, v1", f"v_lshrrev_b32 v{F_G}, 4, v1")
    a.e(f"v_lshlrev_b32 v{F_IN0}, 20, v{F_G}", f"v_lshl_add_u32 v{F_IN0}, v{F_M}, 2, v{F_IN0}", f"v_add_u32 v{F_IN1}, {4*8192}, v{F_IN0}")
    a.e(f"s_lshl_b32 s48, s{s_sa}, 11", f"s_lshl_b32 s49, s{s_cb}, 6", "s_add_u32 s48, s48, s49",
        "s_lshl_b32 s50, s3, 16", "s_add_u32 s48, s48, s50")
    for aa in range(4):
        for i in range(4):
            a.e(f"s_add_u32 s{SI_OFF+4*aa+i}, s48, {(32*i+aa)*8192}")

def fft512_loads(a, SIN, mod=""):
    for hh in range(2):
        for aa in range(4):
            for i in range(4):
                a.e(f"buffer_load_dword v{F_IN+16*hh+4*aa+i}, v{F_IN0+hh}, s[{SIN}:{SIN+3}], s{SI_OFF+4*aa+i} offen {mod}")

def fft512_addr2(a, s_sa, s_cb, orow, ostr):
    a.e(f"s_mov_b32 s51, {16*ostr}", f"v_mul_lo_u32 v{F_OUTOFF}, v{F_M}, s51", f"v_lshl_add_u32 v{F_OUTOFF}, v{F_G}, 4, v{F_OUTOFF}")
    a.e(f"s_mul_i32 s48, s{s_sa}, {orow}", f"s_lshl_b32 s49, s{s_cb}, 6", "s_add_u32 s48, s48, s49",
        f"s_mul_i32 s50, s3, {4*ostr}", "s_add_u32 s48, s48, s50")
    for b in range(4):
        for h in range(2):
            a.e(f"s_add_u32 s{SO_LIST[2*b+h]}, s48, {(b+256*h)*ostr}")
    a.e(f"v_and_b32 v{F_T}, 7, v{F_M}", "s_lshl_b32 s50, s3, 1", f"v_xor_b32 v{F_T+1}, s50, v{F_T}",
        f"v_lshlrev_b32 v{F_WR}, 4, v{F_T+1}", f"v_lshl_add_u32 v{F_WR}, v{F_M}, 7, v{F_WR}",
        f"v_lshl_add_u32 v{F_WR}, v{F_G}, 13, v{F_WR}")
    a.e(f"v_xor_b32 v{F_T+1}, v{F_G}, v{F_T}", f"v_lshlrev_b32 v{F_RD0}, 4, v{F_T+1}",
        f"v_lshl_add_u32 v{F_RD0}, v{F_M}, 7, v{F_RD0}", "s_lshl_b32 s50, s3, 13",
        f"v_add_u32 v{F_RD0}, s50, v{F_RD0}", f"v_xor_b32 v{F_RD1}, 64, v{F_RD0}")

def fft512_consts(a):
    T, TMP = F_T, F_TMP
    XS, XB = T, T+1
    a.e(f"v_cvt_f32_u32 v{XS}, v{F_M}", f"v_mul_f32 v{XS}, {f32hex(1/32)}, v{XS}",
        f"v_cvt_f32_u32 v{T+2}, v{F_G}", f"v_mul_f32 v{T+2}, 4.0, v{T+2}",
        f"v_mul_f32 v{XB}, v{T+2}, v{XS}")
    a.e(f"v_and_b32 v{F_MM}, 1, v{F_M}", f"v_mul_u32_u24 v{F_MM}, 0x8000, v{F_MM}",
        f"v_lshl_or_b32 v{F_MM}, v{F_MM}, 16, v{F_MM}", "s_mov_b32 s50, 0x80008000")
    for i in range(4):
        x = TMP; cs = TMP+1; sn = TMP+2; x2 = TMP+3; cs2 = TMP+4; sn2 = TMP+5
        a.e(f"v_fmamk_f32 v{x}, v{XS}, {f32hex(float(i))}, v{XB}" if i else f"v_mov_b32 v{x}, v{XB}")
        a.e(f"v_add_f32 v{x2}, v{x}, v{x}")
        a.e(f"v_cos_f32 v{cs}, v{x}", f"v_sin_f32 v{sn}, v{x}", f"v_cos_f32 v{cs2}, v{x2}", f"v_sin_f32 v{sn2}, v{x2}")
        a.e(f"v_cvt_pk_bf16_f32 v{F32RE+i}, v{cs}, v{sn}", f"v_cvt_pk_bf16_f32 v{F32IM+i}, -v{sn}, v{cs}",
            f"v_cvt_pk_bf16_f32 v{F16RE+i}, v{cs2}, v{sn2}", f"v_cvt_pk_bf16_f32 v{F16IM+i}, -v{sn2}, v{cs2}")
    for base in (F32RE, F32IM):
        for i in range(4):
            a.e(f"v_xor_b32 v{base+4+i}, v{F_MM}, v{base+i}")
        for t in range(2):
            for i in range(4):
                src = base+4*t+i
                if i & 1: a.e(f"v_xor_b32 v{base+8+4*t+i}, s50, v{src}")
                else:     a.e(f"v_mov_b32 v{base+8+4*t+i}, v{src}")
    a.e(f"v_cvt_f32_u32 v{TMP}, s3", f"v_mul_f32 v{TMP}, {f32hex(8/512)}, v{TMP}")
    for r in range(4):
        a.e(f"v_add_f32 v{TMP+4+r}, {f32hex(float(r)) if r else 0}, v{T+2}")
    for aa in range(8):
        a.e(f"v_add_f32 v{TMP+1}, {f32hex(aa/512) if aa else 0}, v{TMP}")
        for r in range(4):
            a.e(f"v_mul_f32 v{T+3+(r&1)}, v{TMP+1}, v{TMP+4+r}",
                f"v_cos_f32 v{F_TWC+4*aa+r}, v{T+3+(r&1)}", f"v_sin_f32 v{F_TWS+4*aa+r}, v{T+3+(r&1)}")

def fft512_compute(a, SOUT, neg_im, nafter, stmod, st0, fs=0, hook=None):
    TMP = F_TMP
    stamp(a, st0)
    for hh in range(2):
        fstamp(a, fs+5*hh)
        for aa in range(4):
            a.e(f"s_waitcnt vmcnt({28-16*hh-4*aa+nafter})")
            a.e(f"v_mfma_f32_16x16x32_bf16 {v(F_DRE+4*aa,4)}, {v(F16RE,4)}, {v(F_IN+16*hh+4*aa,4)}, 0",
                f"v_mfma_f32_16x16x32_bf16 {v(F_DIM+4*aa,4)}, {v(F16IM,4)}, {v(F_IN+16*hh+4*aa,4)}, 0")
        if hh == 1:
            stamp(a, st0+1)
            if hook: hook()
        fstamp(a, fs+5*hh+1)
        for aa in range(4):
            for p in range(2):
                re, im = F_DRE+4*aa+2*p, F_DIM+4*aa+2*p
                tc, ts = F_TWC+16*hh+4*aa+2*p, F_TWS+16*hh+4*aa+2*p
                t0, t1 = TMP+4*p, TMP+4*p+2
                a.e(f"v_pk_mul_f32 {v(t0,2)}, {v(re,2)}, {v(tc,2)}",
                    f"v_pk_mul_f32 {v(t1,2)}, {v(im,2)}, {v(tc,2)}",
                    f"v_pk_fma_f32 {v(t0,2)}, {v(im,2)}, {v(ts,2)}, {v(t0,2)}",
                    f"v_pk_fma_f32 {v(t1,2)}, {v(re,2)}, {v(ts,2)}, {v(t1,2)} neg_lo:[1,0,0] neg_hi:[1,0,0]")
                for e in range(2):
                    r = 2*p+e
                    a.e(f"v_cvt_pk_bf16_f32 v{F_P+4*r+aa}, v{t0+e}, v{t1+e}")
        fstamp(a, fs+5*hh+2)
        if hh == 1: a.e(f"v_xor_b32 v{F_WR}, 16, v{F_WR}")
        for r in range(4):
            a.e(f"ds_write_b128 v{F_WR}, {v(F_P+4*r,4)} offset:{r*2048}")
    a.e("s_waitcnt lgkmcnt(0)")
    fstamp(a, fs+8)
    a.e("s_barrier")
    fstamp(a, fs+9)
    for b in range(4):
        a.e(f"ds_read_b128 {v(F_IN+8*b,4)}, v{F_RD0} offset:{b*2048}",
            f"ds_read_b128 {v(F_IN+8*b+4,4)}, v{F_RD1} offset:{b*2048}")
    sg = "-" if neg_im else ""
    def mf(bb):
        D0 = [F_DRE, F_DIM] if bb == 0 else [F_TWC, F_TWC+16]
        for bl in range(2):
            b = 2*bb+bl
            a.e(f"s_waitcnt lgkmcnt({6-2*b})")
            for t in range(2):
                for h in range(2):
                    for (D_, F_) in ((D0[0], F32RE), (D0[1], F32IM)):
                        d = D_+8*bl+4*h
                        c = "0" if t == 0 else v(d, 4)
                        a.e(f"v_mfma_f32_16x16x32_bf16 {v(d,4)}, {v(F_IN+8*b+4*t,4)}, {v(F_+8*h+4*t,4)}, {c}")
    def st(bb):
        D0 = [F_DRE, F_DIM] if bb == 0 else [F_TWC, F_TWC+16]
        PB = F_P if bb == 0 else F_TWS
        out = []
        for bl in range(2):
            b = 2*bb+bl
            for h in range(2):
                idx = 8*bl+4*h
                for r in range(4):
                    out.append(f"v_cvt_pk_bf16_f32 v{PB+idx+r}, v{D0[0]+idx+r}, {sg}v{D0[1]+idx+r}")
                out.append(f"buffer_store_dwordx4 {v(PB+idx,4)}, v{F_OUTOFF}, s[{SOUT}:{SOUT+3}], s{SO_LIST[2*b+h]} offen {stmod}")
        return out
    mf(0)
    n0 = len(a.lines)
    mf(1)
    m1 = a.lines[n0:]; del a.lines[n0:]
    s0 = st(0)
    k = 0
    seen = 0
    for l in m1:
        a.lines.append(l)
        if "v_mfma" in l:
            seen += 1
            if seen > 4:
                for _ in range(2):
                    if k < len(s0): a.e(s0[k]); k += 1
    while k < len(s0): a.e(s0[k]); k += 1
    fstamp(a, fs+10)
    for l in st(1): a.e(l)

def f8_addr(a, s_sa, s_cb, orow, ostr):
    a.e(f"v_and_b32 v{F_M}, 15, v1", f"v_lshrrev_b32 v{F_G}, 4, v1")
    a.e(f"v_and_b32 v{F_T}, 7, v1", f"v_bfe_u32 v{F_T+1}, v1, 3, 1",
        f"v_lshlrev_b32 v{F_IN0}, 20, v{F_G}", f"v_lshl_add_u32 v{F_IN0}, v{F_T+1}, 15, v{F_IN0}",
        f"v_lshl_add_u32 v{F_IN0}, v{F_T}, 2, v{F_IN0}")
    a.e(f"s_lshl_b32 s48, s{s_sa}, 11", f"s_lshl_b32 s49, s{s_cb}, 5", "s_add_u32 s48, s48, s49",
        "s_lshl_b32 s50, s3, 16", "s_add_u32 s48, s48, s50")
    for aa in range(4):
        for i in range(4):
            a.e(f"s_add_u32 s{SI_OFF+4*aa+i}, s48, {(32*i+aa)*8192}")
    a.e(f"v_lshrrev_b32 v{F_T+2}, 1, v{F_G}", f"v_lshl_add_u32 v{F_T+2}, v{F_M}, 4, v{F_T+2}",
        f"s_mov_b32 s51, {ostr}", f"v_mul_lo_u32 v{F_OUTOFF}, v{F_T+2}, s51",
        f"v_and_b32 v{F_T+2}, 1, v{F_G}", f"v_lshl_add_u32 v{F_OUTOFF}, v{F_T+2}, 4, v{F_OUTOFF}")
    a.e(f"s_mul_i32 s48, s{s_sa}, {orow}", f"s_lshl_b32 s49, s{s_cb}, 5", "s_add_u32 s48, s48, s49",
        f"s_mul_i32 s50, s3, {4*ostr}", "s_add_u32 s48, s48, s50")
    for b in range(2):
        for h in range(2):
            a.e(f"s_add_u32 s{SO_LIST[2*b+h]}, s48, {(2*b+256*h)*ostr}")
    a.e("s_lshl_b32 s50, s3, 1", f"v_add_u32 v{F_T+2}, s50, v{F_T+1}", f"v_xor_b32 v{F_T+2}, v{F_T+2}, v{F_T}",
        f"v_lshlrev_b32 v{F_WR}, 4, v{F_T+2}", f"v_lshl_add_u32 v{F_WR}, v{F_T}, 7, v{F_WR}", f"v_lshl_add_u32 v{F_WR}, v{F_G}, 12, v{F_WR}")
    a.e(f"v_xor_b32 v{F_T+2}, v{F_G}, v{F_T}", f"v_lshlrev_b32 v{F_RD0}, 4, v{F_T+2}",
        f"v_lshl_add_u32 v{F_RD0}, v{F_T}, 7, v{F_RD0}", f"v_lshl_add_u32 v{F_RD0}, v{F_T+1}, 10, v{F_RD0}",
        "s_lshl_b32 s50, s3, 12", f"v_add_u32 v{F_RD0}, s50, v{F_RD0}", f"v_xor_b32 v{F_RD1}, 64, v{F_RD0}")

def f8_consts(a):
    T, TMP = F_T, F_TMP
    XS, XB = T, T+1
    a.e(f"v_cvt_f32_u32 v{XS}, v{F_M}", f"v_mul_f32 v{XS}, {f32hex(1/32)}, v{XS}",
        f"v_cvt_f32_u32 v{T+2}, v{F_G}", f"v_mul_f32 v{T+2}, 4.0, v{T+2}",
        f"v_mul_f32 v{XB}, v{T+2}, v{XS}")
    a.e(f"v_and_b32 v{F_MM}, 1, v{F_M}", f"v_mul_u32_u24 v{F_MM}, 0x8000, v{F_MM}",
        f"v_lshl_or_b32 v{F_MM}, v{F_MM}, 16, v{F_MM}", "s_mov_b32 s50, 0x80008000")
    for i in range(4):
        x = TMP; cs = TMP+1; sn = TMP+2; x2 = TMP+3; cs2 = TMP+4; sn2 = TMP+5
        a.e(f"v_fmamk_f32 v{x}, v{XS}, {f32hex(float(i))}, v{XB}" if i else f"v_mov_b32 v{x}, v{XB}")
        a.e(f"v_add_f32 v{x2}, v{x}, v{x}")
        a.e(f"v_cos_f32 v{cs}, v{x}", f"v_sin_f32 v{sn}, v{x}", f"v_cos_f32 v{cs2}, v{x2}", f"v_sin_f32 v{sn2}, v{x2}")
        a.e(f"v_cvt_pk_bf16_f32 v{F32RE+i}, v{cs}, v{sn}", f"v_cvt_pk_bf16_f32 v{F32IM+i}, -v{sn}, v{cs}",
            f"v_cvt_pk_bf16_f32 v{F16RE+i}, v{cs2}, v{sn2}", f"v_cvt_pk_bf16_f32 v{F16IM+i}, -v{sn2}, v{cs2}")
    for base in (F32RE, F32IM):
        for i in range(4):
            a.e(f"v_xor_b32 v{base+4+i}, v{F_MM}, v{base+i}")
        for t in range(2):
            for i in range(4):
                src = base+4*t+i
                if i & 1: a.e(f"v_xor_b32 v{base+8+4*t+i}, s50, v{src}")
                else:     a.e(f"v_mov_b32 v{base+8+4*t+i}, v{src}")
    a.e(f"v_bfe_u32 v{TMP}, v1, 3, 1", "s_lshl_b32 s50, s3, 1", f"v_add_u32 v{TMP}, s50, v{TMP}",
        f"v_cvt_f32_u32 v{TMP}, v{TMP}", f"v_mul_f32 v{TMP}, {f32hex(4/512)}, v{TMP}")
    for r in range(4):
        a.e(f"v_add_f32 v{TMP+4+r}, {f32hex(float(r)) if r else 0}, v{T+2}")
    for aa in range(4):
        a.e(f"v_add_f32 v{TMP+1}, {f32hex(aa/512) if aa else 0}, v{TMP}")
        for r in range(4):
            a.e(f"v_mul_f32 v{T+3+(r&1)}, v{TMP+1}, v{TMP+4+r}",
                f"v_cos_f32 v{F_TWC+4*aa+r}, v{T+3+(r&1)}", f"v_sin_f32 v{F_TWS+4*aa+r}, v{T+3+(r&1)}")

def f8_run(a, SIN, SOUT, ldmod, stmod):
    TMP = F_TMP
    for aa in range(4):
        for i in range(4):
            a.e(f"buffer_load_dword v{F_IN+4*aa+i}, v{F_IN0}, s[{SIN}:{SIN+3}], s{SI_OFF+4*aa+i} offen {ldmod}")
    fstamp(a, 3)
    for aa in range(4):
        a.e(f"s_waitcnt vmcnt({12-4*aa})")
        a.e(f"v_mfma_f32_16x16x32_bf16 {v(F_DRE+4*aa,4)}, {v(F16RE,4)}, {v(F_IN+4*aa,4)}, 0",
            f"v_mfma_f32_16x16x32_bf16 {v(F_DIM+4*aa,4)}, {v(F16IM,4)}, {v(F_IN+4*aa,4)}, 0")
    fstamp(a, 1)
    for aa in range(4):
        for p in range(2):
            re, im = F_DRE+4*aa+2*p, F_DIM+4*aa+2*p
            tc, ts = F_TWC+4*aa+2*p, F_TWS+4*aa+2*p
            t0, t1 = TMP+4*p, TMP+4*p+2
            a.e(f"v_pk_mul_f32 {v(t0,2)}, {v(re,2)}, {v(tc,2)}",
                f"v_pk_mul_f32 {v(t1,2)}, {v(im,2)}, {v(tc,2)}",
                f"v_pk_fma_f32 {v(t0,2)}, {v(im,2)}, {v(ts,2)}, {v(t0,2)}",
                f"v_pk_fma_f32 {v(t1,2)}, {v(re,2)}, {v(ts,2)}, {v(t1,2)} neg_lo:[1,0,0] neg_hi:[1,0,0]")
            for e in range(2):
                r = 2*p+e
                a.e(f"v_cvt_pk_bf16_f32 v{F_P+4*r+aa}, v{t0+e}, v{t1+e}")
    for r in range(4):
        a.e(f"ds_write_b128 v{F_WR}, {v(F_P+4*r,4)} offset:{r*1024}")
    a.e("s_waitcnt lgkmcnt(0)")
    fstamp(a, 8)
    a.e("s_barrier")
    fstamp(a, 9)
    for b in range(2):
        a.e(f"ds_read_b128 {v(F_IN+8*b,4)}, v{F_RD0} offset:{b*2048}",
            f"ds_read_b128 {v(F_IN+8*b+4,4)}, v{F_RD1} offset:{b*2048}")
    for b in range(2):
        a.e(f"s_waitcnt lgkmcnt({2-2*b})")
        for t in range(2):
            for h in range(2):
                for (D_, F_) in ((F_DRE, F32RE), (F_DIM, F32IM)):
                    d = D_+8*b+4*h
                    c = "0" if t == 0 else v(d, 4)
                    a.e(f"v_mfma_f32_16x16x32_bf16 {v(d,4)}, {v(F_IN+8*b+4*t,4)}, {v(F_+8*h+4*t,4)}, {c}")
    fstamp(a, 10)
    for b in range(2):
        for h in range(2):
            idx = 8*b+4*h
            for r in range(4):
                a.e(f"v_cvt_pk_bf16_f32 v{F_P+idx+r}, v{F_DRE+idx+r}, -v{F_DIM+idx+r}")
            a.e(f"buffer_store_dwordx4 {v(F_P+idx,4)}, v{F_OUTOFF}, s[{SOUT}:{SOUT+3}], s{SO_LIST[2*b+h]} offen {stmod}")

def f256_loads(a, SX, s_sa, s_cb, mod):
    a.e(f"v_and_b32 v{F_M}, 15, v1", f"v_lshrrev_b32 v{F_G}, 4, v1",
        f"v_lshlrev_b32 v{F_IN0}, 20, v{F_G}", f"v_lshl_add_u32 v{F_IN0}, v{F_M}, 2, v{F_IN0}")
    a.e(f"s_lshl_b32 s48, s{s_sa}, 11", f"s_lshl_b32 s49, s{s_cb}, 6", "s_add_u32 s48, s48, s49",
        "s_lshl_b32 s50, s3, 16", "s_add_u32 s50, s50, s48")
    for aa in range(4):
        for i in range(4):
            a.e(f"s_add_u32 s{SI_OFF+4*aa+i}, s50, {(16*i+aa)*16384}",
                f"buffer_load_dword v{F_IN+4*aa+i}, v{F_IN0}, s[{SX}:{SX+3}], s{SI_OFF+4*aa+i} offen {mod}")

def f256_setup(a):
    T, TMP = F_T, F_TMP
    a.e(f"v_lshlrev_b32 v{F_OUTOFF}, 18, v{F_M}", f"v_lshl_add_u32 v{F_OUTOFF}, v{F_G}, 4, v{F_OUTOFF}",
        "s_lshl_b32 s50, s3, 16", "s_add_u32 s50, s50, s48")
    for b in range(4): a.e(f"s_add_u32 s{SO_LIST[b]}, s50, {b*16384}")
    a.e(f"v_bfe_u32 v{T}, v{F_M}, 1, 2", f"v_xor_b32 v{T+1}, s3, v{T}", f"v_lshlrev_b32 v{F_WR}, 4, v{T+1}",
        f"v_lshl_add_u32 v{F_WR}, v{F_M}, 6, v{F_WR}", f"v_lshl_add_u32 v{F_WR}, v{F_G}, 12, v{F_WR}",
        f"v_xor_b32 v{T+1}, v{F_G}, v{T}", f"v_lshlrev_b32 v{F_RD0}, 4, v{T+1}", f"v_lshl_add_u32 v{F_RD0}, v{F_M}, 6, v{F_RD0}",
        "s_lshl_b32 s50, s3, 12", f"v_add_u32 v{F_RD0}, s50, v{F_RD0}")
    XS, XB = T, T+1
    a.e(f"v_cvt_f32_u32 v{XS}, v{F_M}", f"v_mul_f32 v{XS}, {f32hex(1/16)}, v{XS}",
        f"v_cvt_f32_u32 v{T+2}, v{F_G}", f"v_mul_f32 v{T+2}, 4.0, v{T+2}", f"v_mul_f32 v{XB}, v{T+2}, v{XS}")
    for i in range(4):
        x = TMP+3*(i & 1)
        a.e(f"v_fmamk_f32 v{x}, v{XS}, {f32hex(float(i))}, v{XB}" if i else f"v_mov_b32 v{x}, v{XB}")
        a.e(f"v_cos_f32 v{x+1}, v{x}", f"v_sin_f32 v{x+2}, v{x}")
        a.e(f"v_cvt_pk_bf16_f32 v{F16RE+i}, v{x+1}, v{x+2}", f"v_cvt_pk_bf16_f32 v{F16IM+i}, -v{x+2}, v{x+1}")
    a.e(f"v_cvt_f32_u32 v{TMP}, s3", f"v_mul_f32 v{TMP}, {f32hex(4/256)}, v{TMP}")
    for r in range(4): a.e(f"v_add_f32 v{TMP+4+r}, {f32hex(float(r)) if r else 0}, v{T+2}")
    for aa in range(4):
        a.e(f"v_add_f32 v{TMP+1}, {f32hex(aa/256) if aa else 0}, v{TMP}")
        for r in range(4):
            a.e(f"v_mul_f32 v{T+3+(r&1)}, v{TMP+1}, v{TMP+4+r}",
                f"v_cos_f32 v{F_TWC+4*aa+r}, v{T+3+(r&1)}", f"v_sin_f32 v{F_TWS+4*aa+r}, v{T+3+(r&1)}")

def f256_run(a, SOUT, nafter):
    TMP = F_TMP
    stamp(a, 2)
    for aa in range(4):
        a.e(f"s_waitcnt vmcnt({12-4*aa+nafter})")
        a.e(f"v_mfma_f32_16x16x32_bf16 {v(F_DRE+4*aa,4)}, {v(F16RE,4)}, {v(F_IN+4*aa,4)}, 0",
            f"v_mfma_f32_16x16x32_bf16 {v(F_DIM+4*aa,4)}, {v(F16IM,4)}, {v(F_IN+4*aa,4)}, 0")
    stamp(a, 3)
    for aa in range(4):
        for p in range(2):
            re, im = F_DRE+4*aa+2*p, F_DIM+4*aa+2*p
            tc, ts = F_TWC+4*aa+2*p, F_TWS+4*aa+2*p
            t0, t1 = TMP+4*p, TMP+4*p+2
            a.e(f"v_pk_mul_f32 {v(t0,2)}, {v(re,2)}, {v(tc,2)}",
                f"v_pk_mul_f32 {v(t1,2)}, {v(im,2)}, {v(tc,2)}",
                f"v_pk_fma_f32 {v(t0,2)}, {v(im,2)}, {v(ts,2)}, {v(t0,2)}",
                f"v_pk_fma_f32 {v(t1,2)}, {v(re,2)}, {v(ts,2)}, {v(t1,2)} neg_lo:[1,0,0] neg_hi:[1,0,0]")
            for e in range(2):
                r = 2*p+e
                a.e(f"v_cvt_pk_bf16_f32 v{F_P+4*r+aa}, v{t0+e}, v{t1+e}")
    for r in range(4):
        a.e(f"ds_write_b128 v{F_WR}, {v(F_P+4*r,4)} offset:{r*1024}")
    a.e("s_waitcnt lgkmcnt(0)", "s_barrier")
    for b in range(4):
        a.e(f"ds_read_b128 {v(F_IN+4*b,4)}, v{F_RD0} offset:{b*1024}")
    for b in range(4):
        a.e(f"s_waitcnt lgkmcnt({3-b})")
        a.e(f"v_mfma_f32_16x16x32_bf16 {v(F_DRE+4*b,4)}, {v(F_IN+4*b,4)}, {v(F16RE,4)}, 0",
            f"v_mfma_f32_16x16x32_bf16 {v(F_DIM+4*b,4)}, {v(F_IN+4*b,4)}, {v(F16IM,4)}, 0")
    for b in range(4):
        for r in range(4):
            a.e(f"v_cvt_pk_bf16_f32 v{F_P+4*b+r}, v{F_DRE+4*b+r}, v{F_DIM+4*b+r}")
        a.e(f"buffer_store_dwordx4 {v(F_P+4*b,4)}, v{F_OUTOFF}, s[{SOUT}:{SOUT+3}], s{SO_LIST[b]} offen sc1")

IDX, G_, VG, VGW, VRR, VHR, VST, VW = 2, 3, 6, 7, 8, 12, 13, 14
CRE, CIM, TWC, TWS, WR, WI, ARE, AIM, DF, GA, HRE, HIM, GB, TMP = 16, 32, 48, 64, 80, 96, 112, 128, 144, 160, 164, 168, 172, 188
W2R, W2I, SP, PF, PF2 = 204, 220, 236, 248, 252
GA2 = 204
LW = 32768; LSC = 16384; LW2 = 49152

def w_dma(a, SWR, SWI, s_rowoff, s_mirroff, s_ldsbase, vlane16):
    a.e(f"s_mov_b32 m0, s{s_ldsbase}", f"buffer_load_dwordx4 v{vlane16}, s[{SWR}:{SWR+3}], s{s_rowoff} offen lds" + NT())
    a.e(f"s_add_u32 s93, s{s_ldsbase}, 1024", "s_mov_b32 m0, s93", f"buffer_load_dwordx4 v{vlane16}, s[{SWI}:{SWI+3}], s{s_rowoff} offen lds" + NT())
    a.e(f"s_add_u32 s92, s{s_mirroff}, 2")
    a.e(f"s_add_u32 s93, s{s_ldsbase}, 2048", "s_mov_b32 m0, s93", f"buffer_load_dwordx4 v{vlane16}, s[{SWR}:{SWR+3}], s92 offen lds" + NT())
    a.e(f"s_add_u32 s93, s{s_ldsbase}, 3072", "s_mov_b32 m0, s93", f"buffer_load_dwordx4 v{vlane16}, s[{SWI}:{SWI+3}], s92 offen lds" + NT())

def pf_loads(a, SWR, SWI, s_rowoff, s_mirroff, dst, vt):
    a.e(f"v_mov_b32 v{vt}, s{s_mirroff}", f"v_mov_b32 v{vt+1}, s{s_rowoff}", f"v_add_u32 v{vt+1}, 1024, v{vt+1}")
    a.e(f"buffer_load_short_d16_hi v{dst}, v{vt}, s[{SWR}:{SWR+3}], 0 offen",
        f"buffer_load_short_d16_hi v{dst+1}, v{vt}, s[{SWI}:{SWI+3}], 0 offen",
        f"buffer_load_short_d16_hi v{dst+2}, v{vt+1}, s[{SWR}:{SWR+3}], 0 offen",
        f"buffer_load_short_d16_hi v{dst+3}, v{vt+1}, s[{SWI}:{SWI+3}], 0 offen")

def w_lds_reads(a, vlo, vhi, dr, di):
    for (dst, o) in ((dr, 0), (di, 1024)):
        for r in range(16):
            e = eidx(r)
            if r < 8: a.e(f"ds_read_u16_d16_hi v{dst+r}, v{vlo} offset:{o+64*e}")
            else:     a.e(f"ds_read_u16_d16_hi v{dst+r}, v{vhi} offset:{o+64*(27-e)}")

def fix_w(a, dr, di, pf):
    a.e("v_cmp_eq_u32 vcc, 0, v1")
    for (r, o) in ((0, 0), (8, 2)):
        a.e(f"v_add_f32 v{TMP}, v{dr+r}, v{pf+o}", f"v_mul_f32 v{TMP}, 0.5, v{TMP}",
            f"v_sub_f32 v{TMP+1}, v{di+r}, v{pf+o+1}", f"v_mul_f32 v{TMP+1}, 0.5, v{TMP+1}",
            f"v_cndmask_b32 v{dr+r}, v{dr+r}, v{TMP}, vcc", f"v_cndmask_b32 v{di+r}, v{di+r}, v{TMP+1}, vcc")

def fft1024(a, mid=None):
    for t in range(4):
        c0 = "0" if t == 0 else v(ARE, 16); c1 = "0" if t == 0 else v(AIM, 16)
        a.e(f"v_mfma_f32_32x32x16_bf16 {v(ARE,16)}, {v(DF+4*t,4)}, {v(CRE+4*t,4)}, {c0}",
            f"v_mfma_f32_32x32x16_bf16 {v(AIM,16)}, {v(DF+4*t,4)}, {v(CIM+4*t,4)}, {c1}")
    for p in range(8):
        re, im, tc, ts = ARE+2*p, AIM+2*p, TWC+2*p, TWS+2*p
        t0 = TMP+4*(p & 1); t1 = t0+2
        a.e(f"v_pk_mul_f32 {v(t0,2)}, {v(re,2)}, {v(tc,2)}",
            f"v_pk_mul_f32 {v(t1,2)}, {v(im,2)}, {v(tc,2)}",
            f"v_pk_fma_f32 {v(t0,2)}, {v(im,2)}, {v(ts,2)}, {v(t0,2)}",
            f"v_pk_fma_f32 {v(t1,2)}, {v(re,2)}, {v(ts,2)}, {v(t1,2)} neg_lo:[1,0,0] neg_hi:[1,0,0]")
        for e in range(2):
            a.e(f"v_cvt_pk_bf16_f32 v{DF+2*p+e}, v{t0+e}, v{t1+e}")
    for t in range(4):
        if mid and t == 1: mid()
        c0 = "0" if t == 0 else v(ARE, 16); c1 = "0" if t == 0 else v(AIM, 16)
        a.e(f"v_mfma_f32_32x32x16_bf16 {v(ARE,16)}, {v(CRE+4*t,4)}, {v(DF+4*t,4)}, {c0}",
            f"v_mfma_f32_32x32x16_bf16 {v(AIM,16)}, {v(CIM+4*t,4)}, {v(DF+4*t,4)}, {c1}")

def a2_consts(a, sT):
    a.e(f"v_and_b32 v{IDX}, 31, v1", f"v_lshrrev_b32 v{G_}, 5, v1")
    XS, XB = TMP, TMP+1
    a.e(f"v_cvt_f32_u32 v{TMP+2}, v{IDX}", f"v_cvt_f32_u32 v{TMP+3}, v{G_}", f"v_mul_f32 v{TMP+3}, 4.0, v{TMP+3}",
        f"v_mul_f32 v{XS}, {f32hex(1/32)}, v{TMP+2}", f"v_mul_f32 v{XB}, v{TMP+3}, v{XS}")
    a.e(f"v_and_b32 v{TMP+4}, 1, v{IDX}", f"v_mul_u32_u24 v{TMP+4}, 0x8000, v{TMP+4}", f"v_lshl_or_b32 v{TMP+4}, v{TMP+4}, 16, v{TMP+4}")
    for t in range(2):
        for i in range(4):
            c = float(8*t+i); x = TMP+5+3*(i & 1)
            a.e(f"v_fmamk_f32 v{x}, v{XS}, {f32hex(c)}, v{XB}" if c else f"v_mov_b32 v{x}, v{XB}")
            a.e(f"v_cos_f32 v{x+1}, v{x}", f"v_sin_f32 v{x+2}, v{x}")
            a.e(f"v_cvt_pk_bf16_f32 v{CRE+4*t+i}, v{x+1}, v{x+2}", f"v_cvt_pk_bf16_f32 v{CIM+4*t+i}, -v{x+2}, v{x+1}")
    for base in (CRE, CIM):
        for i in range(8):
            a.e(f"v_xor_b32 v{base+8+i}, v{TMP+4}, v{base+i}")
    a.e(f"v_mul_f32 v{XS}, {f32hex(1/1024)}, v{TMP+2}", f"v_mul_f32 v{XB}, v{TMP+3}, v{XS}")
    for r in range(16):
        c = float(eidx(r)); x = TMP+5+(r & 1)
        a.e(f"v_fmamk_f32 v{x}, v{XS}, {f32hex(c)}, v{XB}" if c else f"v_mov_b32 v{x}, v{XB}")
        a.e(f"v_cos_f32 v{TWC+r}, v{x}", f"v_sin_f32 v{TWS+r}, v{x}")
    LO, HI, Q, AV, XA0, XA1, E0, E1 = TMP, TMP+1, TMP+2, TMP+3, TMP+4, TMP+5, TMP+6, TMP+7
    JF, KEY, T2, PO, PAR, N16, G4, CS = [TMP+8+i for i in range(8)]
    Lspec, Ldone = newlbl("ghspec"), newlbl("ghdone")
    a.e(f"v_and_b32 v{LO}, 3, v{IDX}", f"v_bfe_u32 v{HI}, v{IDX}, 2, 2")
    a.e(f"v_and_b32 v{N16}, 15, v1", f"v_lshrrev_b32 v{G4}, 4, v1")
    a.e(f"s_cmp_eq_u32 s{sT}, 0", f"s_cbranch_scc1 {Lspec}")
    a.e(f"v_cvt_f32_u32 v{T2}, s{sT}", f"v_cvt_f32_u32 v{JF}, v{HI}", f"v_fmamk_f32 v{JF}, v{JF}, {f32hex(512.0)}, v{T2}",
        f"v_mul_f32 v{JF}, {f32hex(1/2048)}, v{JF}",
        f"v_lshlrev_b32 v{Q}, 3, v{LO}", "s_mov_b32 s50, 0x4631914C", f"v_lshrrev_b32 v{Q}, v{Q}, s50",
        f"v_mov_b32 v{AV}, 0.5", f"v_cmp_gt_u32 vcc, 16, v{IDX}", f"v_cndmask_b32 v{AV}, 0, v{AV}, vcc")
    for ks, Gd in ((0, GA), (1, GA2)):
        a.e(f"v_cvt_f32_u32 v{XA0}, v{G_}", f"v_add_f32 v{XA0}, v{XA0}, v{XA0}")
        if ks: a.e(f"v_add_f32 v{XA0}, 4.0, v{XA0}")
        a.e(f"v_add_f32 v{XA1}, 1.0, v{XA0}", f"v_mul_f32 v{XA0}, v{XA0}, v{JF}", f"v_mul_f32 v{XA1}, v{XA1}, v{JF}")
        for jj2 in range(4):
            for e in range(2):
                jj = 2*jj2+e
                xa = XA1 if jj >> 2 else XA0
                a.e(f"v_bfe_u32 v{E0+e}, v{Q}, {2*(jj&3)}, 2", f"v_cvt_f32_u32 v{E0+e}, v{E0+e}",
                    f"v_fmamk_f32 v{E0+e}, v{E0+e}, {f32hex(0.25)}, v{xa}", f"v_cos_f32 v{E0+e}, v{E0+e}",
                    f"v_mul_f32 v{E0+e}, v{E0+e}, v{AV}")
            a.e(f"v_cvt_pk_bf16_f32 v{Gd+jj2}, v{E0}, v{E1}")
    a.e(f"v_bfe_u32 v{HI}, v{N16}, 1, 2", f"v_cvt_f32_u32 v{KEY}, v{HI}", f"v_mul_f32 v{KEY}, {f32hex(1/2048)}, v{KEY}",
        f"v_and_b32 v{JF}, 1, v{G4}", f"v_cvt_f32_u32 v{JF}, v{JF}", f"v_fmamk_f32 v{JF}, v{JF}, {f32hex(1024.0)}, v{T2}",
        f"v_add_f32 v{XA1}, {f32hex(512.0)}, v{JF}", f"v_mul_f32 v{XA0}, v{JF}, v{KEY}", f"v_mul_f32 v{XA1}, v{XA1}, v{KEY}",
        f"v_lshrrev_b32 v{CS}, 1, v{G4}", f"v_lshrrev_b32 v{AV}, 3, v{N16}", f"v_cmp_eq_u32 vcc, v{CS}, v{AV}",
        f"v_mov_b32 v{AV}, {f32hex(2.0**-21)}", f"v_cndmask_b32 v{AV}, 0, v{AV}, vcc",
        f"v_and_b32 v{PO}, 1, v{N16}")
    for part, Hd in ((0, HRE), (1, HIM)):
        w0, w1 = (0x1C, 0xBC) if part == 0 else (0x61, 0x6B)
        a.e(f"v_mov_b32 v{Q}, {w0}", f"v_mov_b32 v{PAR}, {w1}", f"v_cmp_eq_u32 vcc, 1, v{PO}", f"v_cndmask_b32 v{Q}, v{Q}, v{PAR}, vcc")
        for jj2 in range(4):
            for e in range(2):
                jj = 2*jj2+e
                xa = XA1 if jj >> 2 else XA0
                a.e(f"v_bfe_u32 v{E0+e}, v{Q}, {2*(jj&3)}, 2", f"v_cvt_f32_u32 v{E0+e}, v{E0+e}",
                    f"v_fmamk_f32 v{E0+e}, v{E0+e}, {f32hex(0.25)}, v{xa}", f"v_cos_f32 v{E0+e}, v{E0+e}",
                    f"v_mul_f32 v{E0+e}, v{E0+e}, v{AV}")
            a.e(f"v_cvt_pk_bf16_f32 v{Hd+jj2}, v{E0}, v{E1}")
    a.e(f"s_branch {Ldone}")
    a.label(Lspec)
    a.e(f"v_and_b32 v{PO}, 1, v{LO}", f"v_lshrrev_b32 v{PAR}, 1, v{LO}")
    a.e(f"v_lshlrev_b32 v{JF}, 2, v{HI}", "s_mov_b32 s50, 0x3120", f"v_lshrrev_b32 v{JF}, v{JF}, s50", f"v_and_b32 v{JF}, 15, v{JF}",
        f"v_lshlrev_b32 v{JF}, 8, v{JF}", f"v_lshlrev_b32 v{T2}, 10, v{PO}",
        f"v_cmp_eq_u32 vcc, 0, v{HI}", f"v_cndmask_b32 v{JF}, v{JF}, v{T2}, vcc", f"v_mov_b32 v{T2}, 0",
        f"v_cndmask_b32 v{Q}, v{PO}, v{T2}, vcc",
        f"v_cvt_f32_u32 v{JF}, v{JF}", f"v_mul_f32 v{JF}, {f32hex(1/2048)}, v{JF}",
        f"v_cvt_f32_u32 v{Q}, v{Q}", f"v_mul_f32 v{Q}, {f32hex(0.25)}, v{Q}",
        f"v_lshrrev_b32 v{T2}, 4, v{IDX}", f"v_lshl_add_u32 v{KEY}, v{T2}, 2, v{PAR}", f"v_mov_b32 v{T2}, 0")
    for ks, Gd in ((0, GA), (1, GA2)):
        a.e(f"v_cvt_f32_u32 v{XA0}, v{G_}", f"v_add_f32 v{XA0}, v{XA0}, v{XA0}")
        if ks: a.e(f"v_add_f32 v{XA0}, 4.0, v{XA0}")
        a.e(f"v_add_f32 v{XA1}, 1.0, v{XA0}",
            f"v_fma_f32 v{XA0}, v{XA0}, v{JF}, v{Q}", f"v_fma_f32 v{XA1}, v{XA1}, v{JF}, v{Q}",
            f"v_cos_f32 v{XA0}, v{XA0}", f"v_cos_f32 v{XA1}, v{XA1}")
        for jj2 in range(4):
            for e in range(2):
                jj = 2*jj2+e
                xa = XA1 if jj >> 2 else XA0
                a.e(f"v_cmp_eq_u32 vcc, {jj&3}, v{KEY}", f"v_cndmask_b32 v{E0+e}, v{T2}, v{xa}, vcc")
            a.e(f"v_cvt_pk_bf16_f32 v{Gd+jj2}, v{E0}, v{E1}")
    SAF, GS = JF, PAR
    a.e(f"v_bfe_u32 v{HI}, v{N16}, 1, 2", f"v_cvt_f32_u32 v{SAF}, v{HI}", f"v_mul_f32 v{SAF}, {f32hex(1/2048)}, v{SAF}",
        f"v_and_b32 v{GS}, 1, v{G4}", f"v_and_b32 v{PO}, 1, v{N16}",
        f"v_lshrrev_b32 v{CS}, 1, v{G4}", f"v_lshrrev_b32 v{T2}, 3, v{N16}",
        f"v_cmp_eq_u32 s[44:45], v{CS}, v{T2}", f"v_cmp_eq_u32 s[46:47], v{GS}, v{PO}", "s_and_b64 s[44:45], s[44:45], s[46:47]",
        f"v_cmp_eq_u32 s[46:47], 0, v{GS}")
    for part, Hd in ((0, HRE), (1, HIM)):
        for jj in range(8):
            sl, par, pi = jj >> 2, (jj >> 1) & 1, jj & 1
            e = E0 + (jj & 1)
            if par != part:
                a.e(f"v_mov_b32 v{e}, 0")
            else:
                if sl == 0:
                    j0, q0, a0 = 1024.0*pi, 0.5*pi, 2.0**-21
                    j1, q1, a1 = 256.0, 0.75*pi, 2.0**-20
                else:
                    j0, q0, a0 = 512.0, 0.75*pi, 2.0**-20
                    j1, q1, a1 = 768.0, 0.75*pi, 2.0**-20
                def sel(dst, x0, x1):
                    a.e(f"v_mov_b32 v{dst}, {f32hex(x1)}", f"v_mov_b32 v{AV}, {f32hex(x0)}", f"v_cndmask_b32 v{dst}, v{dst}, v{AV}, s[46:47]")
                sel(XA0, j0, j1); sel(XA1, q0 + 0.5*part, q1 + 0.5*part)
                a.e(f"v_fma_f32 v{XA0}, v{XA0}, v{SAF}, v{XA1}", f"v_cos_f32 v{XA0}, v{XA0}")
                sel(XA1, a0, a1)
                a.e(f"v_mul_f32 v{XA0}, v{XA0}, v{XA1}", f"v_mov_b32 v{XA1}, 0", f"v_cndmask_b32 v{e}, v{XA1}, v{XA0}, s[44:45]")
            if jj & 1: a.e(f"v_cvt_pk_bf16_f32 v{Hd+(jj>>1)}, v{E0}, v{E1}")
    a.label(Ldone)
    a.e("s_nop 1")


BT_S0, BT_S1, BT_S2, BT_S3 = 52, 56, 60, 64
BT_SOFF = ["0", "s68", "s69", "s70", "s71", "s76", "s77", "s78"]
BT_ROW, BT_CH, BT_MASK = 48, 49, 50
def bt_setup(a):
    a.e(f"s_lshl_b32 s{BT_ROW}, s{sSUBT}, 7", "s_lshl_b32 s51, s3, 5", f"s_add_u32 s{BT_ROW}, s{BT_ROW}, s51", f"s_lshl_b32 s{BT_CH}, s{sCBKT}, 6")
    for i in range(1, 8): a.e(f"s_mov_b32 {BT_SOFF[i]}, {4096*i}")
    a.e(f"s_mov_b32 s{BT_MASK}, 0xffff0000")

def scratch_addr(a, vdst, vcg, vrg):
    if OPT["fullline"]:
        a.e(f"s_lshl_b32 s51, s{sSUBT}, 7", "s_lshl_b32 s92, s3, 5", "s_add_u32 s51, s51, s92", "s_lshl_b32 s51, s51, 12",
            f"s_lshl_b32 s92, s{sCBKT}, 7", "s_add_u32 s51, s51, s92", "s_add_u32 s51, s51, 2048",
            f"v_lshrrev_b32 v{vdst}, 1, v{vcg}", f"v_lshlrev_b32 v{vdst}, 12, v{vdst}", f"v_lshl_add_u32 v{vdst}, v{vrg}, 4, v{vdst}",
            f"v_and_b32 v{vcg}, 1, v{vcg}", f"v_lshl_add_u32 v{vdst}, v{vcg}, 6, v{vdst}", f"v_add_u32 v{vdst}, s51, v{vdst}",
            "s_mov_b32 s32, 32768", "s_mov_b32 s33, 65536", "s_mov_b32 s34, 98304")
        return
    a.e(f"s_lshl_b32 s51, s{sSUBT}, 7", "s_lshr_b32 s92, s3, 1", "s_add_u32 s51, s51, s92", "s_lshl_b32 s51, s51, 12",
        f"s_lshl_b32 s92, s{sCBKT}, 7", "s_add_u32 s51, s51, s92", "s_and_b32 s92, s3, 1", "s_lshl_b32 s92, s92, 6", "s_add_u32 s51, s51, s92",
        "s_add_u32 s51, s51, 2048",
        f"v_lshlrev_b32 v{vdst}, 15, v{vcg}", f"v_lshl_add_u32 v{vdst}, v{vrg}, 4, v{vdst}", f"v_add_u32 v{vdst}, s51, v{vdst}")
def SCR(c):
    return ["0", "s32", "s33", "s34"][c] if OPT["fullline"] else ["0", "s69", "s71", "s77"][c]

def emit_B1(a, shadow=None, hook=None, post_mode=None, after_stores=None, nafter=0):
    SK, SV, SSH, SKVT = BT_S0, BT_S1, BT_S2, BT_S3
    srd(a, SK, P_K, P_K+1, 4*MB); srd(a, SV, P_V, P_V+1, 4*MB); srd(a, SSH, P_SHK, P_SHK+1, 8192); srd(a, SKVT, P_OUT, P_OUT+1, 8*MB)
    bt_setup(a)
    soff = BT_SOFF; M = BT_MASK
    CG, RG, S0, CH0, VOFF, VH, VST, VSH = 2, 3, 4, 5, 6, 7, 8, 9
    a.e(f"v_and_b32 v{CG}, 15, v1", f"v_lshrrev_b32 v{RG}, 4, v1",
        f"v_lshl_add_u32 v{S0}, v{RG}, 3, s{BT_ROW}", f"v_lshl_add_u32 v{CH0}, v{CG}, 2, s{BT_CH}",
        f"v_lshlrev_b32 v{VOFF}, 11, v{S0}", f"v_lshl_add_u32 v{VOFF}, v{CH0}, 1, v{VOFF}",
        f"v_subrev_u32 v{VH}, 6144, v{VOFF}",
        f"v_lshlrev_b32 v{VSH}, 3, v{CH0}")
    scratch_addr(a, VST, CG, RG)
    KR, VR, SHR, KF, SHF, KV, TM, PK = 16, 38, 54, 64, 108, 124, 156, 16
    if OPT["bactwait"] and OPT["b1all"]:
        Lw = newlbl("bw")
        a.e(f"s_cmp_eq_u32 s{sACT}, 0", f"s_cbranch_scc1 {Lw}", "s_waitcnt lgkmcnt(0)")
        a.label(Lw)
    if OPT["earlypub"]:
        Lp = newlbl("epub")
        a.e("s_cmp_lg_u32 s3, 0", f"s_cbranch_scc1 {Lp}")
        fin_epoch(a); loc_publish(a)
        a.label(Lp)
    a.e(f"buffer_load_dwordx4 {v(SHR,4)}, v{VSH}, s[{SSH}:{SSH+3}], 0 offen",
        f"buffer_load_dwordx4 {v(SHR+4,4)}, v{VSH}, s[{SSH}:{SSH+3}], 0 offen offset:16")
    for i in range(3):
        a.e(f"buffer_load_dwordx2 {v(KR+2*i,2)}, v{VH}, s[{SK}:{SK+3}], {soff[i>>1]} offen" + (" offset:2048" if i & 1 else "") + (NT() if OPT["ntk"] else ""))
    for i in range(8):
        a.e(f"buffer_load_dwordx2 {v(KR+6+2*i,2)}, v{VOFF}, s[{SK}:{SK+3}], {soff[i>>1]} offen" + (" offset:2048" if i & 1 else "") + (NT() if OPT["ntk"] else ""))
    for i in range(8):
        a.e(f"buffer_load_dwordx2 {v(VR+2*i,2)}, v{VOFF}, s[{SV}:{SV+3}], {soff[i>>1]} offen" + (" offset:2048" if i & 1 else "") + NT())
    stamp(a, 2)
    if OPT["earlypub"]:
        Lq = newlbl("epub2")
        a.e("s_cmp_eq_u32 s3, 0", f"s_cbranch_scc1 {Lq}")
        fin_epoch(a)
        a.label(Lq)
    else:
        fin_epoch(a)
        loc_publish(a)
    if shadow: shadow()
    def wv(n, extra):
        if extra and not OPT["earlypub"]:
            L = newlbl("wv")
            a.e(f"s_cbranch_scc1 {L}", f"s_waitcnt vmcnt({n})")
            a.label(L)
            a.e(f"s_waitcnt vmcnt({n+extra})")
        elif extra == 2 and OPT["earlypub"]:
            L = newlbl("wv")
            a.e(f"s_cbranch_scc1 {L}", f"s_waitcnt vmcnt({n})")
            a.label(L)
            a.e(f"s_waitcnt vmcnt({n+1})")
        else:
            a.e(f"s_waitcnt vmcnt({n})")
    a.e("s_cmp_eq_u32 s3, 0")
    wv(19, 1)
    for ch in range(4):
        for j in range(4):
            src = SHR + 2*ch + (j >> 1)
            if j & 1: a.e(f"v_and_b32 v{SHF+4*j+ch}, s{M}, v{src}")
            else:     a.e(f"v_lshlrev_b32 v{SHF+4*j+ch}, 16, v{src}")
    for i in range(11):
        wv(18-i, 1)
        for hf in range(2):
            a.e(f"v_lshlrev_b32 v{KF+4*i+2*hf}, 16, v{KR+2*i+hf}", f"v_and_b32 v{KF+4*i+2*hf+1}, s{M}, v{KR+2*i+hf}")
    loc_issue(a, 10)
    a.e("s_cmp_eq_u32 s3, 0")
    for i in range(8):
        wv(7-i, 2)
        if i == 7 and hook: hook()
        for hf in range(2):
            a.e(f"v_lshlrev_b32 v{TM+2*hf}, 16, v{VR+2*i+hf}", f"v_and_b32 v{TM+2*hf+1}, s{M}, v{VR+2*i+hf}")
        for hf in range(2):
            acc = KV+4*i+2*hf
            a.e(f"v_pk_mul_f32 {v(acc,2)}, {v(KF+4*(i+3)+2*hf,2)}, {v(SHF+2*hf,2)}")
            for j in range(1, 4):
                a.e(f"v_pk_fma_f32 {v(acc,2)}, {v(KF+4*(i+3-j)+2*hf,2)}, {v(SHF+4*j+2*hf,2)}, {v(acc,2)}")
            a.e(f"v_pk_mul_f32 {v(acc,2)}, {v(acc,2)}, {v(TM+2*hf,2)}")
    stamp(a, 3)
    for ch in range(4):
        for m in range(4):
            a.e(f"v_cvt_pk_bf16_f32 v{PK+4*ch+m}, v{KV+4*(7-2*m)+ch}, v{KV+4*(6-2*m)+ch}")
    sts = [f"buffer_store_dwordx4 {v(PK+4*ch,4)}, v{VST}, s[{SKVT}:{SKVT+3}], {SCR(ch)} offen" for ch in range(4)]
    if OPT["twoflag"]:
        for l in sts: a.e(l + (" nt" if OPT["ntscr"] else ""))
        stamp(a, 4)
        a.e(f"s_lshl_b32 s51, s{sCBKT}, 4", f"s_add_u32 s51, s51, s{sSUBT}", f"s_lshl_b32 s51, s51, {FB()}", f"s_add_u32 s92, s51, {SY_B1}")
        La = newlbl("siga")
        a.e("s_waitcnt vmcnt(0)", "s_barrier", "s_cmp_lg_u32 s3, 0", f"s_cbranch_scc1 {La}",
            "v_mov_b32 v14, s92", f"v_mov_b32 v15, s{S_TGT}", "s_mov_b64 exec, 1",
            f"buffer_store_dword v15, v14, s[{S_SYN}:{S_SYN+3}], 0 offen", "s_mov_b64 exec, -1")
        a.label(La)
        if after_stores: after_stores()
        loc_resolve(a, 10, nafter=nafter + 1 if after_stores else 1)
        Lo = newlbl("opt")
        a.e(f"s_cmp_lg_u32 s{sLOC}, 0", f"s_cbranch_scc1 {Lo}", "s_waitcnt vmcnt(0)")
        for l in sts: a.e(l + " sc1")
        a.e(f"s_add_u32 s51, s51, {SY_B1B}")
        signal(a, 51, 14)
        a.label(Lo)
        return
    if OPT["optst"]:
        for l in sts: a.e(l)
        if after_stores: after_stores()
        loc_resolve(a, 10, nafter=nafter)
        Lo = newlbl("opt")
        a.e(f"s_cmp_lg_u32 s{sLOC}, 0", f"s_cbranch_scc1 {Lo}", "s_waitcnt vmcnt(0)")
        for l in sts: a.e(l + " sc1")
        a.e("s_waitcnt vmcnt(0)")
        a.label(Lo)
    else:
        loc_resolve(a, 10)
        dual_store(a, sts)
    stamp(a, 4)
    a.e(f"s_lshl_b32 s51, s{sCBKT}, 4", f"s_add_u32 s51, s51, s{sSUBT}", f"s_lshl_b32 s51, s51, {FB()}", f"s_add_u32 s51, s51, {SY_B1}")
    signal(a, 51, 14, nafter=nafter, bloc=True)

B3_QR, B3_VQ, B3_VT, B3_VO = 208, 224, 225, 226
def emit_B3_pre(a):
    SQ, STT, SOUT = BT_S0, BT_S1, BT_S2
    srd(a, SQ, P_Q, P_Q+1, 4*MB); srd(a, SOUT, P_OUT, P_OUT+1, 8*MB)
    bt_setup(a)
    t = 227
    a.e(f"v_and_b32 v{t}, 15, v1", f"v_lshrrev_b32 v{t+1}, 4, v1",
        f"v_lshl_add_u32 v{t+1}, v{t+1}, 3, s{BT_ROW}", f"v_lshl_add_u32 v{t}, v{t}, 2, s{BT_CH}",
        f"v_lshlrev_b32 v{B3_VQ}, 11, v{t+1}", f"v_lshl_add_u32 v{B3_VQ}, v{t}, 1, v{B3_VQ}",
        f"v_lshlrev_b32 v{B3_VO}, 12, v{t+1}", f"v_lshl_add_u32 v{B3_VO}, v{t}, 1, v{B3_VO}", f"v_add_u32 v{B3_VO}, 2048, v{B3_VO}")
    a.e(f"v_and_b32 v{t}, 15, v1", f"v_lshrrev_b32 v{t+1}, 4, v1")
    scratch_addr(a, B3_VT, t, t+1)
    for i in range(8):
        a.e(f"buffer_load_dwordx2 {v(B3_QR+2*i,2)}, v{B3_VQ}, s[{SQ}:{SQ+3}], {BT_SOFF[i>>1]} offen" + (" offset:2048" if i & 1 else "") + NT())

def emit_B3(a):
    SQ, STT, SOUT = BT_S0, BT_S1, BT_S2
    soff = BT_SOFF; M = BT_MASK
    TR, TF, QF = 16, 48, 80
    a.e(f"s_mov_b32 s{M}, 0xffff0000")
    a.e(f"s_lshl_b32 s51, s{sCBKT}, {4+FB()}", f"s_add_u32 s51, s51, {SY_B2}",
        "v_and_b32 v12, 15, v1", f"v_lshlrev_b32 v12, {FB()}, v12", "v_add_u32 v12, s51, v12")
    a.e("s_waitcnt vmcnt(0)")
    for e in range(8):
        qf = QF + 4*e
        for hf in range(2):
            a.e(f"v_lshlrev_b32 v{qf+2*hf}, 16, v{B3_QR+2*e+hf}", f"v_and_b32 v{qf+2*hf+1}, s{M}, v{B3_QR+2*e+hf}")
    wait_flags(a, 12, 1, 13, 51)
    stamp(a, 10)
    for ch in range(4):
        a.e(f"buffer_load_dwordx4 {v(TR+4*ch,4)}, v{B3_VT}, s[{SOUT}:{SOUT+3}], {SCR(ch)} offen" + LDL())
    for ch in range(4):
        a.e(f"s_waitcnt vmcnt({3-ch})")
        for e in range(8):
            src = TR+4*ch+(e >> 1)
            if e & 1: a.e(f"v_and_b32 v{TF+4*e+ch}, s{M}, v{src}")
            else:     a.e(f"v_lshlrev_b32 v{TF+4*e+ch}, 16, v{src}")
    a.e("s_barrier")
    for e in range(8):
        qf = QF + 4*e
        for hf in range(2):
            a.e(f"v_pk_mul_f32 {v(qf+2*hf,2)}, {v(qf+2*hf,2)}, {v(TF+4*e+2*hf,2)}")
        pk = 112+2*e
        for hf in range(2):
            a.e(f"v_cvt_pk_bf16_f32 v{pk+hf}, v{qf+2*hf}, v{qf+2*hf+1}")
        a.e(f"buffer_store_dwordx2 {v(pk,2)}, v{B3_VO}, s[{SOUT}:{SOUT+3}], {soff[e]} offen" + NTO())

def gen_A(a):
    ROLE[0] = 'A'
    SX, SI1, SWR, SWI, SI2, SOUT = 32, 36, 80, 84, 32, 36
    a.e(f"s_setprio {OPT['prioA']}") if OPT['prioA'] else None
    sT, sSA, sCB, sJ, sJM, sJP, sJQ, sTL = 40, 41, 42, 43, 72, 73, 74, 44
    def rows():
        srd(a, SI1, P_WS, P_WS+1, 4*MB, add=WS_I1)
        srd(a, SWR, P_WR, P_WR+1, WBYTES); srd(a, SWI, P_WI, P_WI+1, WBYTES)
        Lr = newlbl("reg")
        a.e("s_lshl_b32 s47, s3, 9", f"s_add_u32 s{sJ}, s{sT}, s47", f"s_mov_b32 s{sJP}, s{sT}", f"s_sub_u32 s{sJQ}, 512, s{sT}",
            f"s_cmp_lg_u32 s{sT}, 0", f"s_cbranch_scc1 {Lr}",
            f"s_mov_b32 s{sJQ}, 256", "s_lshl_b32 s47, s3, 2", "s_lshr_b32 s46, 0x3120, s47", "s_and_b32 s46, s46, 15", f"s_lshl_b32 s{sJ}, s46, 8")
        a.label(Lr)
        a.e(f"s_sub_u32 s{sJM}, 2048, s{sJ}", f"s_and_b32 s{sJM}, s{sJM}, 2047",
            f"s_mul_i32 s{sJ}, s{sJ}, 1026", f"s_mul_i32 s{sJM}, s{sJM}, 1026")
        a.e(f"s_or_b32 s75, s{sT}, s3")
    def wstage():
        a.e("v_lshlrev_b32 v243, 4, v1", "s_lshl_b32 s46, s3, 12", f"s_add_u32 s46, s46, {LW}")
        w_dma(a, SWR, SWI, sJ, sJM, 46, 243)
        pf_loads(a, SWR, SWI, sJ, sJM, PF, 244)
        if not OPT["spec2"]: wstage2()
    def wstage2():
        Ln = newlbl("now2")
        a.e("s_cmp_lg_u32 s75, 0", f"s_cbranch_scc1 {Ln}")
        a.e("v_lshlrev_b32 v243, 4, v1", f"s_mov_b32 s47, {1024*1026}", f"s_mov_b32 s46, {LW2}")
        w_dma(a, SWR, SWI, 47, 47, 46, 243)
        pf_loads(a, SWR, SWI, 47, 47, PF2, 244)
        a.label(Ln)
    a.e(f"s_mov_b32 s{sT}, s{sCU}")
    stamp(a, 0, True); stamp(a, 1)
    Lp1 = newlbl("nop1")
    if OPT["pA1a"] >= 0: a.e(f"s_setprio {OPT['pA1a']}")
    srd(a, SX, P_X, P_X+1, 4*MB)
    a.e(f"s_lshr_b32 s48, s{sT}, 3", f"s_and_b32 s49, s{sT}, 7", f"s_lshr_b32 s{sSA}, s48, 2", "s_bfe_u32 s50, s48, 0x10001",
        "s_lshl_b32 s50, s50, 3", "s_add_u32 s50, s50, s49", "s_lshl_b32 s50, s50, 1", "s_and_b32 s51, s48, 1", f"s_add_u32 s{sCB}, s50, s51")
    f256_loads(a, SX, sSA, sCB, NT() if OPT["ntx"] else "")
    stamp(a, 12)
    f256_setup(a)
    rows()
    wstage2()
    f256_run(a, SI1, 0)
    stamp(a, 4)
    if OPT["cearly"]:
        a.e("s_nop 1")
        a2_consts(a, sT)
    a.e(f"s_lshl_b32 s48, s{sT}, {FA()}", f"s_add_u32 s48, s48, {SY_A1}")
    fin_epoch(a)
    signal(a, 48, 240)
    a.label(Lp1)
    pair_pubA(a)
    if OPT["pA1i"] >= 0 or OPT["pA1a"] >= 0: a.e(f"s_setprio {OPT['prioA']}")
    stamp(a, 5)
    if OPT["wlate"] == 2: wstage()
    srd(a, SI2, P_WS, P_WS+1, 4*MB, add=WS_I2)
    if not OPT["cearly"]: a2_consts(a, sT)
    a.e(f"v_lshl_add_u32 v{TMP}, v{G_}, 7, v{IDX}",
        "s_lshl_b32 s48, s3, 12", f"s_add_u32 s48, s48, {LW}",
        f"v_lshl_add_u32 v{VW}, v{TMP}, 1, s48",
        f"v_sub_u32 v{TMP+1}, {1023-32*27}, v{TMP}", f"s_add_u32 s49, s48, 2048", f"v_lshl_add_u32 v{VW+1}, v{TMP+1}, 1, s49")
    a.e(f"v_lshlrev_b32 v{VG}, 12, v{G_}", f"v_lshl_add_u32 v{VG}, v{IDX}, 2, v{VG}",
        "s_lshl_b32 s49, s3, 9",
        f"s_lshl_b32 s52, s{sJP}, 13", "s_add_u32 s52, s52, s49",
        f"s_lshl_b32 s53, s{sJQ}, 13", "s_add_u32 s53, s53, s49")
    a.e(f"s_lshl_b32 s54, s{sT}, 14", "s_add_u32 s54, s54, s49", f"s_sub_u32 s55, 256, s{sT}", "s_and_b32 s55, s55, 255", "s_lshl_b32 s55, s55, 14", "s_add_u32 s55, s55, s49",
        "s_add_u32 s56, s54, 8192", "s_add_u32 s57, s55, 8192")
    a.e(f"v_lshlrev_b32 v{VGW}, 12, v{G_}", f"v_lshl_add_u32 v{VGW}, v{IDX}, 3, v{VGW}", "s_lshl_b32 s50, s3, 10", f"v_add_u32 v{VGW}, s50, v{VGW}",
        f"v_lshlrev_b32 v{VRR}, 9, v{G_}", f"v_lshl_add_u32 v{VRR}, v{IDX}, 2, v{VRR}", "s_lshl_b32 s51, s3, 12", f"v_add_u32 v{VRR}, s51, v{VRR}")
    for t in range(1, 4): a.e(f"v_add_u32 v{VRR+t}, {1024*t}, v{VRR}")
    a.e(f"v_lshrrev_b32 v{TMP}, 4, v1", f"v_and_b32 v{TMP+1}, 1, v{TMP}", f"v_lshlrev_b32 v{VHR}, 13, v{TMP+1}",
        f"v_lshrrev_b32 v{TMP+1}, 1, v{TMP}", f"v_lshl_add_u32 v{VHR}, v{TMP+1}, 7, v{VHR}",
        f"v_and_b32 v{TMP+1}, 15, v1", f"v_lshl_add_u32 v{VHR}, v{TMP+1}, 3, v{VHR}", f"v_add_u32 v{VHR}, s50, v{VHR}")
    a.e(f"v_and_b32 v{TMP+2}, 1, v{TMP+1}", f"v_mov_b32 v{TMP+3}, s52", f"v_mov_b32 v{TMP+4}, s53",
        f"v_cmp_eq_u32 vcc, 1, v{TMP+2}", f"v_cndmask_b32 v{VST}, v{TMP+3}, v{TMP+4}, vcc",
        f"v_bfe_u32 v{TMP+2}, v{TMP+1}, 1, 2", f"v_lshl_add_u32 v{VST}, v{TMP+2}, 11, v{VST}",
        f"v_lshrrev_b32 v{TMP+2}, 3, v{TMP+1}", f"v_lshl_add_u32 v{VST}, v{TMP+2}, 6, v{VST}",
        f"v_lshl_add_u32 v{VST}, v{TMP}, 4, v{VST}")
    a.e(f"v_lshlrev_b32 v{TMP}, {FA()}, v1", f"v_add_u32 v{TMP}, {SY_A1}, v{TMP}")
    stamp(a, 6)
    wait_flags(a, TMP, 4, TMP+1, 48)
    if OPT["yieldB"] == 1: a_state(a, sT, 1, TMP)
    stamp(a, 7)
    def gfrag(u, ks): return (GB if u < 2 else DF) + 8*(u & 1) + 4*ks
    for u in range(4):
        for ks in range(2):
            for sl in range(2):
                for pq in range(2):
                    a.e(f"buffer_load_dword v{gfrag(u,ks)+2*sl+pq}, v{VG}, s[{SI1}:{SI1+3}], s{54+2*ks+pq} offen offset:{2048*sl+128*u} sc1")
    NWL = 0
    if OPT["wlate"] == 1:
        wstage(); NWL = 8
        if not OPT["spec2"]:
            Lsw = newlbl("spw")
            a.e("s_cmp_lg_u32 s75, 0", f"s_cbranch_scc1 {Lsw}", "s_waitcnt vmcnt(0)")
            a.label(Lsw)
    for rnd in range(2):
        a.e(f"s_waitcnt vmcnt({16-16*rnd+NWL})")
        if rnd == OPT.get("yat", 1) and OPT["yieldB"] == 3:
            a_state(a, sT, 1, 240)
        for uu in range(2):
            u = 2*rnd+uu
            D = ARE if uu == 0 else AIM
            a.e(f"v_mfma_f32_32x32x16_bf16 {v(D,16)}, {v(GA,4)}, {v(gfrag(u,0),4)}, 0",
                f"v_mfma_f32_32x32x16_bf16 {v(D,16)}, {v(GA2,4)}, {v(gfrag(u,1),4)}, {v(D,16)}")
        for uu in range(2):
            u = 2*rnd+uu
            D = ARE if uu == 0 else AIM
            t = TMP+4*uu
            for h in range(2):
                a.e(f"v_cvt_pk_bf16_f32 v{t}, v{D+4*h}, v{D+4*h+1}", f"v_cvt_pk_bf16_f32 v{t+1}, v{D+4*h+2}, v{D+4*h+3}",
                    f"ds_write_b64 v{VGW}, {v(t,2)} offset:{256*u+8192*h}")
                t += 2
    a.e("s_waitcnt lgkmcnt(0)", "s_barrier")
    stamp(a, 8)
    if OPT["qA"] and not OPT["a3all"]:
        Lq = newlbl("noqA")
        a.e(f"s_cmp_lg_u32 s{sACT}, 0", f"s_cbranch_scc1 {Lq}")
        emit_B3_pre(a)
        a.label(Lq)
    for t in range(4):
        a.e(f"ds_read2_b32 {v(DF+4*t,2)}, v{VRR+t} offset0:0 offset1:32", f"ds_read2_b32 {v(DF+4*t+2,2)}, v{VRR+t} offset0:64 offset1:96")
    a.e("s_waitcnt lgkmcnt(0)")
    Lsp, Linv, Lfwd, Lpre = newlbl("special"), newlbl("inv"), newlbl("fwd"), newlbl("pre")
    sPASS = 45
    if OPT["spec2"]:
        a.e(f"s_mov_b32 s{sPASS}, 0", "s_cmp_lg_u32 s75, 0", f"s_cbranch_scc1 {Lpre}")
        for i in range(16): a.e(f"v_lshrrev_b32 v{GB+i}, 16, v{DF+i}", f"v_and_b32 v{DF+i}, 0xffff, v{DF+i}")
        a.label(Lpre)
    def wmid():
        Lk = newlbl("wskip")
        if OPT["spec2"]: a.e(f"s_cmp_lg_u32 s{sPASS}, 0", f"s_cbranch_scc1 {Lk}")
        if OPT["qA"] and not OPT["a3all"]:
            L1, L2 = newlbl("wa"), newlbl("wb")
            a.e(f"s_cmp_lg_u32 s{sACT}, 0", f"s_cbranch_scc1 {L1}", "s_waitcnt vmcnt(8)", f"s_branch {L2}")
            a.label(L1); a.e("s_waitcnt vmcnt(0)"); a.label(L2)
        else:
            a.e("s_waitcnt vmcnt(0)")
        w_lds_reads(a, VW, VW+1, WR, WI)
        a.label(Lk)
    if OPT["wlate"] == 1:
        a.label(Lfwd); a.e("s_nop 1")
        fft1024(a, mid=wmid)
    else:
        w_lds_reads(a, VW, VW+1, WR, WI)
        a.label(Lfwd); a.e("s_nop 1")
        fft1024(a)
    a.e("s_waitcnt lgkmcnt(0)")
    Lnf = newlbl("nofix")
    if OPT["spec2"]: a.e(f"s_cmp_lg_u32 s{sPASS}, 0", f"s_cbranch_scc1 {Lnf}")
    fix_w(a, WR, WI, PF)
    a.label(Lnf)
    a.e("s_cmp_eq_u32 s75, 0", f"s_cbranch_scc1 {Lsp}")
    for p in range(8):
        xr, xi, wr, wi = ARE+2*p, AIM+2*p, WR+2*p, WI+2*p
        t0 = TMP+4*(p & 1); t1 = t0+2
        n0 = " neg_lo:[1,0,0] neg_hi:[1,0,0]" if p < 4 else ""
        n1 = "" if p < 4 else " neg_lo:[1,0,0] neg_hi:[1,0,0]"
        a.e(f"v_pk_mul_f32 {v(t0,2)}, {v(xr,2)}, {v(wr,2)}", f"v_pk_mul_f32 {v(t1,2)}, {v(xi,2)}, {v(wr,2)}",
            f"v_pk_fma_f32 {v(t0,2)}, {v(xi,2)}, {v(wi,2)}, {v(t0,2)}{n0}",
            f"v_pk_fma_f32 {v(t1,2)}, {v(xr,2)}, {v(wi,2)}, {v(t1,2)}{n1}")
        for e in range(2):
            a.e(f"v_cvt_pk_bf16_f32 v{DF+2*p+e}, v{t0+e}, -v{t1+e}")
    a.label(Linv)
    a.e("s_nop 1")
    fft1024(a)
    for r in range(16):
        t = TMP + (r & 7)
        a.e(f"v_cvt_pk_bf16_f32 v{t}, v{ARE+r}, v{AIM+r}", f"ds_write_b32 v{VRR}, v{t} offset:{128*eidx(r)}")
    a.e("s_waitcnt lgkmcnt(0)", "s_barrier")
    if OPT["yieldB"]:
        Ly = newlbl("y0a")
        if OPT["y0"]: a.e(f"s_cmp_lg_u32 s{sT}, 0", f"s_cbranch_scc1 {Ly}")
        a_state(a, sT, 2, TMP)
        a.label(Ly)
    stamp(a, 9)
    for u in range(4):
        for sl in range(2):
            a.e(f"ds_read_b64 {v(GB+4*u+2*sl,2)}, v{VHR} offset:{4096*sl+256*u}")
    a.e("s_lshl_b32 s49, s3, 9")
    for u in range(4):
        a.e(f"s_waitcnt lgkmcnt({6-2*u})")
        a.e(f"v_mfma_f32_16x16x32_bf16 {v(ARE+4*u,4)}, {v(GB+4*u,4)}, {v(HRE,4)}, 0",
            f"v_mfma_f32_16x16x32_bf16 {v(AIM+4*u,4)}, {v(GB+4*u,4)}, {v(HIM,4)}, 0")
    for u in range(4):
        for r in range(4):
            a.e(f"v_cvt_pk_bf16_f32 v{DF+4*u+r}, v{ARE+4*u+r}, v{AIM+4*u+r}")
        a.e(f"buffer_store_dwordx4 {v(DF+4*u,4)}, v{VST}, s[{SI2}:{SI2+3}], 0 offen offset:{128*u} sc1")
    dstamp(a, 6); dpublish(a, sT)
    a.e(f"s_lshl_b32 s48, s{sT}, {FA()}", f"s_add_u32 s48, s48, {SY_A2}")
    signal(a, 48, TMP)
    stamp(a, 10)
    Lb3 = newlbl("b3")
    if OPT["a3all"]:
        srd(a, SOUT, P_OUT, P_OUT+1, 8*MB)
        a.e(f"s_lshr_b32 s48, s{sT}, 3", f"s_and_b32 s49, s{sT}, 7", f"s_lshr_b32 s{sSA}, s48, 3", "s_bfe_u32 s50, s48, 0x10002",
            "s_lshl_b32 s50, s50, 3", "s_add_u32 s50, s50, s49", "s_lshl_b32 s50, s50, 2", "s_and_b32 s51, s48, 3", f"s_add_u32 s{sCB}, s50, s51")
        f8_addr(a, sSA, sCB, 4096, 16384)
        f8_consts(a)
        a.e(f"v_lshlrev_b32 v{F_TMP}, {FA()}, v1", f"v_add_u32 v{F_TMP}, {SY_A2}, v{F_TMP}")
        wait_flags(a, F_TMP, 4, F_TMP+1, 48)
        stamp(a, 11)
        PHASE[0] = 3
        fstamp(a, 11)
        f8_run(a, SI2, SOUT, "sc1", NTO())
    else:
        a.e(f"s_cmp_eq_u32 s{sACT}, 0", f"s_cbranch_scc1 {Lb3}")
        srd(a, SOUT, P_OUT, P_OUT+1, 8*MB)
        fft512_addr(a, sSA, sCB)
        fft512_addr2(a, sSA, sCB, 4096, 16384)
        fft512_consts(a)
        a.e(f"v_lshlrev_b32 v{F_TMP}, {FA()}, v1", f"v_add_u32 v{F_TMP}, {SY_A2}, v{F_TMP}")
        wait_flags(a, F_TMP, 4, F_TMP+1, 48)
        stamp(a, 11)
        PHASE[0] = 3
        fstamp(a, 11)
        fft512_loads(a, SI2, "sc1")
        fstamp(a, 3)
        save = gen.PROF; gen.PROF = False
        fft512_compute(a, SOUT, True, 0, NTO(), 0)
        gen.PROF = save
    a.e("s_cmp_lg_u32 s75, 0", "s_cbranch_scc1 L_fin")
    Lb1, Lb2 = newlbl("bchk"), newlbl("bchkd")
    a.e("v_lshlrev_b32 v2, 6, v1", f"v_add_u32 v2, {SY_ID}, v2", f"s_lshl_b32 s49, s{S_TGT}, 4", "s_mov_b32 s48, 0")
    a.label(Lb1)
    NS = NMEM()*8//64
    for i in range(NS):
        a.e(f"s_mov_b32 s50, {4096*i}", f"buffer_load_dword v{4+i}, v2, s[{S_SYN}:{S_SYN+3}], s50 offen sc1")
    a.e("s_add_u32 s48, s48, 1", "s_waitcnt vmcnt(0)")
    for i in range(NS): a.e(f"v_xor_b32 v{4+i}, s49, v{4+i}")
    for i in range(1, NS): a.e(f"v_or_b32 v4, v4, v{4+i}")
    a.e("v_lshrrev_b32 v4, 4, v4", "v_cmp_ne_u32 vcc, 0, v4", f"s_cbranch_vccz {Lb2}", f"s_cmp_lt_u32 s48, {SPIN_LIMIT}", f"s_cbranch_scc1 {Lb1}")
    a.label(Lb2)
    dreduce(a)
    pair_sum(a)
    a.e(f"s_mov_b32 s48, {SY_E}")
    bump(a, 48, 2)
    a.e("s_branch L_fin")
    if not OPT["a3all"]:
        a.label(Lb3)
        if not OPT["qA"]: emit_B3_pre(a)
        emit_B3(a)
        a.e("s_branch L_fin")
    a.label(Lsp)
    if OPT["spec2"]:
        Lp1s = newlbl("sp1")
        NEG = " neg_lo:[1,0,0] neg_hi:[1,0,0]"
        a.e(f"s_cmp_lg_u32 s{sPASS}, 0", f"s_cbranch_scc1 {Lp1s}")
        a.e(f"v_lshl_add_u32 v{SP}, v{G_}, 7, v{IDX}", f"v_sub_u32 v{SP+1}, {1023-32*27}, v{SP}",
            f"s_mov_b32 s48, {LW2}", f"v_lshl_add_u32 v{SP+2}, v{SP}, 1, s48", f"s_mov_b32 s49, {LW2+2048}", f"v_lshl_add_u32 v{SP+3}, v{SP+1}, 1, s49")
        w_lds_reads(a, SP+2, SP+3, W2R, W2I)
        for p in range(8):
            xr, xi, wr, wi = ARE+2*p, AIM+2*p, WR+2*p, WI+2*p
            t0 = TMP+4*(p & 1); t1 = t0+2
            n0 = NEG if p < 4 else ""; n1 = "" if p < 4 else NEG
            a.e(f"v_pk_mul_f32 {v(t0,2)}, {v(xr,2)}, {v(wr,2)}", f"v_pk_mul_f32 {v(t1,2)}, {v(xi,2)}, {v(wr,2)}",
                f"v_pk_fma_f32 {v(wr,2)}, {v(xi,2)}, {v(wi,2)}, {v(t0,2)}{n0}",
                f"v_pk_fma_f32 {v(wi,2)}, {v(xr,2)}, {v(wi,2)}, {v(t1,2)}{n1}")
        for i in range(16): a.e(f"v_mov_b32 v{DF+i}, v{GB+i}")
        a.e(f"s_mov_b32 s{sPASS}, 1", f"s_branch {Lfwd}")
        a.label(Lp1s)
        fix_w(a, W2R, W2I, PF2)
        for p in range(8):
            xr, xi, br, bi, r1r, r1i = ARE+2*p, AIM+2*p, W2R+2*p, W2I+2*p, WR+2*p, WI+2*p
            t0 = TMP+4*(p & 1); t1 = t0+2
            n0 = NEG if p < 4 else ""; n1 = "" if p < 4 else NEG
            a.e(f"v_pk_mul_f32 {v(t0,2)}, {v(xr,2)}, {v(br,2)}", f"v_pk_mul_f32 {v(t1,2)}, {v(xi,2)}, {v(br,2)}",
                f"v_pk_fma_f32 {v(t0,2)}, {v(xi,2)}, {v(bi,2)}, {v(t0,2)}{n0}",
                f"v_pk_fma_f32 {v(t1,2)}, {v(xr,2)}, {v(bi,2)}, {v(t1,2)}{n1}",
                f"v_pk_add_f32 {v(t1,2)}, {v(r1r,2)}, {v(t1,2)} neg_lo:[0,1] neg_hi:[0,1]",
                f"v_pk_add_f32 {v(t0,2)}, {v(r1i,2)}, {v(t0,2)}")
            for e in range(2):
                a.e(f"v_cvt_pk_bf16_f32 v{DF+2*p+e}, v{t1+e}, -v{t0+e}")
        a.e(f"s_branch {Linv}")
        return
    a.e(f"v_lshl_add_u32 v{TMP}, v{G_}, 7, v{IDX}", f"v_sub_u32 v{TMP+1}, {1023-32*27}, v{TMP}",
        f"s_mov_b32 s48, {LW2}", f"v_lshl_add_u32 v{TMP+2}, v{TMP}, 1, s48", f"s_mov_b32 s49, {LW2+2048}", f"v_lshl_add_u32 v{TMP+3}, v{TMP+1}, 1, s49")
    w_lds_reads(a, TMP+2, TMP+3, W2R, W2I)
    a.e("s_waitcnt lgkmcnt(0)")
    fix_w(a, W2R, W2I, PF2)
    VS = SP; K0 = SP+1
    a.e(f"v_lshlrev_b32 v{VS}, 9, v{G_}", f"v_lshl_add_u32 v{VS}, v{IDX}, 2, v{VS}")
    for r in range(16):
        a.e(f"ds_write_b32 v{VS}, v{ARE+r} offset:{LSC+128*eidx(r)}", f"ds_write_b32 v{VS}, v{AIM+r} offset:{LSC+4096+128*eidx(r)}")
    a.e(f"v_lshl_add_u32 v{K0}, v{G_}, 7, v{IDX}", f"v_sub_u32 v{K0}, 1024, v{K0}", "s_waitcnt lgkmcnt(0)")
    for r in range(16):
        ad, rr, ri, ur, ui, vr, vi, o0, o1 = [SP+2+i for i in range(9)]
        a.e(f"v_subrev_u32 v{ad}, {32*eidx(r)}, v{K0}", f"v_and_b32 v{ad}, 1023, v{ad}", f"v_lshlrev_b32 v{ad}, 2, v{ad}",
            f"ds_read_b32 v{rr}, v{ad} offset:{LSC}", f"ds_read_b32 v{ri}, v{ad} offset:{LSC+4096}", "s_waitcnt lgkmcnt(0)")
        pr, pi_ = ARE+r, AIM+r
        a.e(f"v_add_f32 v{ur}, v{pr}, v{rr}", f"v_sub_f32 v{ui}, v{pi_}, v{ri}",
            f"v_sub_f32 v{vr}, v{pr}, v{rr}", f"v_add_f32 v{vi}, v{pi_}, v{ri}")
        sg = "-" if r < 8 else ""; ns = "" if r < 8 else "-"
        ar, ai, br, bi = WR+r, WI+r, W2R+r, W2I+r
        a.e(f"v_mul_f32 v{o0}, v{ur}, v{ar}", f"v_fma_f32 v{o0}, {sg}v{ui}, v{ai}, v{o0}",
            f"v_fma_f32 v{o0}, v{vr}, v{br}, v{o0}", f"v_fma_f32 v{o0}, {sg}v{vi}, v{bi}, v{o0}",
            f"v_mul_f32 v{o1}, v{ui}, v{ar}", f"v_fma_f32 v{o1}, {ns}v{ur}, v{ai}, v{o1}",
            f"v_fma_f32 v{o1}, v{vi}, v{br}, v{o1}", f"v_fma_f32 v{o1}, {ns}v{vr}, v{bi}, v{o1}",
            f"v_mul_f32 v{o0}, 0.5, v{o0}", f"v_mul_f32 v{o1}, 0.5, v{o1}",
            f"v_cvt_pk_bf16_f32 v{DF+r}, v{o0}, -v{o1}")
    a.e(f"s_branch {Linv}")

def h_dma(a, SH, sLB, sD4K):
    a.e("v_lshlrev_b32 v235, 4, v1")
    a.e(f"s_add_u32 s74, s{sLB}, 32", "s_mov_b32 m0, s74")
    for ch in range(4): a.e(f"buffer_load_dwordx4 v235, s[{SH}:{SH+3}], s{sD4K} offen offset:{1024*ch} lds" + (NT() if OPT["nth"] else ""))
    a.e(f"s_add_u32 s74, s{sLB}, 4192", f"s_add_u32 s75, s{sD4K}, 2", "s_mov_b32 m0, s74")
    for ch in range(4): a.e(f"buffer_load_dwordx4 v235, s[{SH}:{SH+3}], s75 offen offset:{1024*ch} lds" + (NT() if OPT["nth"] else ""))
    a.e("v_mov_b32 v233, 0x7ffffff0", f"v_mov_b32 v234, s{sD4K}", "v_cmp_eq_u32 vcc, 15, v1", "v_cndmask_b32 v233, v233, v234, vcc",
        f"buffer_load_short_d16_hi v230, v233, s[{SH}:{SH+3}], 0 offen")

def gen_B(a):
    ROLE[0] = 'B'
    SH, STT, SKVT = 80, 84, 32
    a.e(f"s_setprio {OPT['prioB']}") if OPT['prioB'] else None
    srd(a, SH, P_SSMK, P_SSMK+1, 4*MB); srd(a, STT, P_OUT, P_OUT+1, 8*MB)
    sCBK, sSUB, sD, sD4K, sLB, sDV, sF1, sF2, sMASK = 40, 41, 42, 43, 44, 45, 46, 47, 72
    a.e(f"s_and_b32 s{sCBK}, s2, 15",
        f"s_lshr_b32 s{sSUB}, s2, 4",
        f"s_lshl_b32 s{sD}, s{sCBK}, 4", f"s_add_u32 s{sD}, s{sD}, s{sSUB}", f"s_lshl_b32 s{sD}, s{sD}, 2", f"s_add_u32 s{sD}, s{sD}, s3",
        f"s_lshl_b32 s{sD4K}, s{sD}, 12", f"s_mul_i32 s{sLB}, s3, {LB_STRIDE}", f"s_mov_b32 s{sMASK}, 0xffff0000")
    sSB = 36
    if OPT["fullline"]:
        a.e(f"s_and_b32 s73, s{sD}, 3", "s_lshl_b32 s73, s73, 15", f"s_bfe_u32 s74, s{sD}, 0x30003", "s_lshl_b32 s74, s74, 12", "s_add_u32 s73, s73, s74",
            f"s_bfe_u32 s74, s{sD}, 0x10002", "s_lshl_b32 s74, s74, 6", "s_add_u32 s73, s73, s74",
            f"s_lshl_b32 s74, s{sCBK}, 7", "s_add_u32 s73, s73, s74", f"s_add_u32 s{sSB}, s73, 2048")
    else:
        a.e(f"s_and_b32 s73, s{sD}, 63", "s_lshl_b32 s73, s73, 13", f"s_lshl_b32 s74, s{sCBK}, 7", "s_add_u32 s73, s73, s74", f"s_add_u32 s{sSB}, s73, 2048")
    for i in range(1, 4): a.e(f"s_add_u32 s{sSB+i}, s{sSB}, {i*2*MB}")
    a.e(f"s_lshl_b32 s73, s{sCBK}, {4+FB()}", f"s_add_u32 s{sF1}, s73, {SY_B1}", f"s_lshl_b32 s74, s{sSUB}, {FB()}", "s_add_u32 s73, s73, s74", f"s_add_u32 s{sF2}, s73, {SY_B2}")
    a.e(f"s_and_b32 s73, s{sD}, 0xfffffffe", "s_lshl_b32 s73, s73, 1", f"s_load_dword s{sDV}, s[{P_SSMD}:{P_SSMD+1}], s73")
    stamp(a, 0, True); stamp(a, 1)
    Lidle, Lsetup = newlbl("bidle"), newlbl("bsetup")
    if OPT["pB1"]: a.e(f"s_setprio {OPT['pB1']}")
    if OPT["b1all"]:
        a.e(f"s_mov_b32 s{sCBKT}, s{sCBK}", f"s_mov_b32 s{sSUBT}, s{sSUB}")
        if OPT["hearly"] and not OPT["hlate"]:
            emit_B1(a, after_stores=lambda: h_dma(a, SH, sLB, sD4K), nafter=9)
        else:
            emit_B1(a)
            if not OPT["hlate"]: h_dma(a, SH, sLB, sD4K)
    else:
        a.e(f"s_cmp_lg_u32 s{sACT}, 0", f"s_cbranch_scc1 {Lidle}")
        if OPT["hearly"] and not OPT["hlate"]:
            emit_B1(a, after_stores=lambda: h_dma(a, SH, sLB, sD4K), nafter=9)
        else:
            emit_B1(a)
            if not OPT["hlate"]: h_dma(a, SH, sLB, sD4K)
        a.e(f"s_branch {Lsetup}")
        a.label(Lidle)
        if OPT["tlb"] or OPT["cpf"]: warm(a)
        fin_epoch(a)
        loc_publish(a)
        loc_issue(a, 10)
        loc_resolve(a, 10, barrier=False)
        if not OPT["hlate"]:
            for _ in range(OPT["hactdelay"]):
                a.e("v_and_b32 v12, 15, v1", f"v_lshlrev_b32 v12, {FB()}, v12", f"v_add_u32 v12, s{sF1}, v12",
                    f"buffer_load_dword v13, v12, s[{S_SYN}:{S_SYN+3}], 0 offen sc1", "s_waitcnt vmcnt(0)")
            h_dma(a, SH, sLB, sD4K)
    a.label(Lsetup)
    if OPT["pB1"]: a.e(f"s_setprio {OPT['prioB']}")
    stamp(a, 12)
    if OPT["yieldB"] >= 2 and OPT["yinit"]:
        a_state(a, sCU, 0, 233)
    LN16, B_, G4, VA, VB, VE, VS2, T = 2, 3, 4, 5, 9, 10, 11, 12
    a.e(f"v_lshlrev_b32 v{T}, 2, v1",
        f"v_add_u32 v{T+1}, {4160-32}, v{T}", "v_cmp_le_u32 vcc, 8, v1", f"v_cndmask_b32 v{T+3}, v{T}, v{T+1}, vcc",
        f"v_add_u32 v{T+1}, 8288, v{T}", "v_cmp_le_u32 vcc, 16, v1", f"v_cndmask_b32 v{T+3}, v{T+3}, v{T+1}, vcc",
        f"v_add_u32 v231, s{sLB}, v{T+3}")
    a.e(f"v_lshlrev_b32 v{T}, 3, v1", f"v_add_u32 v{T}, s{sLB}, v{T}", "v_mov_b32 v16, 0", "v_mov_b32 v17, 0", f"ds_write_b64 v{T}, v[16:17] offset:8288")
    a.e(f"v_and_b32 v{B_}, 15, v1", f"v_lshrrev_b32 v{G4}, 4, v1")
    a.e(f"v_and_b32 v{VA}, 1, v{B_}", f"v_xor_b32 v{VA}, 1, v{VA}", f"v_mul_u32_u24 v{VA}, 4160, v{VA}",
        f"v_add_u32 v{VA+1}, 1, v{B_}", f"v_lshrrev_b32 v{VA+1}, 1, v{VA+1}", f"v_lshl_add_u32 v{VA}, v{VA+1}, 2, v{VA}",
        f"v_lshlrev_b32 v{VA+1}, 4, v{G4}", f"v_sub_u32 v{VA}, v{VA}, v{VA+1}",
        f"s_add_u32 s73, s{sLB}, 16", f"v_add_u32 v{VA}, s73, v{VA}")
    for pp in range(1, 4): a.e(f"v_add_u32 v{VA+pp}, {1024*pp}, v{VA}")
    a.e(f"v_lshlrev_b32 v{VB}, 5, v{B_}", f"v_lshl_add_u32 v{VB}, v{G4}, 4, v{VB}",
        f"s_add_u32 s73, s{sLB}, {8800-480}", f"v_add_u32 v{VB}, s73, v{VB}")
    a.e(f"v_lshrrev_b32 v18, 1, v{G4}", f"v_lshlrev_b32 v19, 4, v18", f"v_lshl_add_u32 v19, v{B_}, 5, v19",
        f"v_and_b32 v18, 1, v{G4}", "v_xor_b32 v18, 1, v18", f"v_lshl_add_u32 v19, v18, 3, v19",
        f"s_add_u32 s73, s{sLB}, 8800", f"v_add_u32 v232, s73, v19")
    if OPT["fullline"]:
        a.e(f"v_lshrrev_b32 v18, 3, v{B_}", f"v_lshlrev_b32 v{VS2}, 19, v18", f"v_bfe_u32 v18, v{B_}, 1, 2", f"v_lshl_add_u32 v{VS2}, v18, 17, v{VS2}",
            f"v_and_b32 v18, 1, v{G4}", f"v_lshl_add_u32 v{VS2}, v18, 20, v{VS2}", f"v_and_b32 v18, 1, v{B_}", f"v_lshl_add_u32 v{VS2}, v18, 5, v{VS2}",
            f"v_lshrrev_b32 v18, 1, v{G4}", f"v_lshl_add_u32 v{VS2}, v18, 4, v{VS2}")
        a.e(f"v_lshlrev_b32 v{LN16}, 19, v{G4}", "v_bfe_u32 v18, v1, 2, 2", f"v_lshl_add_u32 v{LN16}, v18, 17, v{LN16}",
            "v_and_b32 v18, 3, v1", f"v_lshl_add_u32 v{LN16}, v18, 4, v{LN16}")
    else:
        a.e(f"v_lshrrev_b32 v18, 3, v{B_}", f"v_lshlrev_b32 v{VS2}, 19, v18", f"v_bfe_u32 v18, v{B_}, 2, 1", f"v_lshl_add_u32 v{VS2}, v18, 12, v{VS2}",
            f"v_and_b32 v18, 1, v{G4}", f"v_lshl_add_u32 v{VS2}, v18, 20, v{VS2}", f"v_and_b32 v18, 3, v{B_}", f"v_lshl_add_u32 v{VS2}, v18, 5, v{VS2}",
            f"v_lshrrev_b32 v18, 1, v{G4}", f"v_lshl_add_u32 v{VS2}, v18, 4, v{VS2}")
        a.e(f"v_lshlrev_b32 v{LN16}, 19, v{G4}", "v_bfe_u32 v18, v1, 3, 1", f"v_lshl_add_u32 v{LN16}, v18, 12, v{LN16}",
            "v_and_b32 v18, 7, v1", f"v_lshl_add_u32 v{LN16}, v18, 4, v{LN16}")
    a.e("v_lshlrev_b32 v18, 4, v1", f"s_add_u32 s73, s{sLB}, 8800", "v_add_u32 v19, s73, v18")
    a.e("s_waitcnt lgkmcnt(0)",
        f"s_and_b32 s73, s{sD}, 1", f"s_lshl_b32 s74, s{sDV}, 16", f"s_and_b32 s75, s{sDV}, 0xffff0000",
        "s_cmp_eq_u32 s73, 1", f"s_cselect_b32 s{sDV}, s75, s74")
    if OPT["twoflag"]:
        a.e(f"s_add_u32 s73, s{sF1}, {SY_B1B-SY_B1}", f"s_cmp_lg_u32 s{sLOC}, 0", f"s_cselect_b32 s{sF1}, s{sF1}, s73")
    a.e(f"v_and_b32 v{T}, 15, v1", f"v_lshlrev_b32 v{T}, {FB()}, v{T}", f"v_add_u32 v{T}, s{sF1}, v{T}")
    stamp(a, 5)
    wait_flags(a, T, 1, T+1, 73)
    loc_read(a, 12)
    stamp(a, 6)
    VE = 232
    ACC = 20
    SETS = [(52, 84), (116, 148)]
    U = SETS[1][1]
    for ch in range(4):
        a.e(f"buffer_load_dwordx4 {v(U+4*ch,4)}, v{LN16}, s[{STT}:{STT+3}], s{sSB+ch} offen" + LDL())
    def reads(rho, st):
        A, B = SETS[st]
        out = []
        for p in range(8):
            o = 8*rho + 128*(p & 1)
            out.append(f"ds_read2_b32 {v(A+4*p,2)}, v{VA+(p>>1)} offset0:{o} offset1:{o+1}")
            out.append(f"ds_read2_b32 {v(A+4*p+2,2)}, v{VA+(p>>1)} offset0:{o+2} offset1:{o+3}")
        outb = [f"ds_read_b128 {v(B+4*q,4)}, v{VB} offset:{512*q+32*(15-rho)}" for q in range(8)]
        return out, outb
    rhos = list(range(1, 16, 2))
    ra, rb = reads(rhos[0], 0)
    if OPT["hlate"]:
        h_dma(a, SH, sLB, sD4K)
        for ch in range(4):
            a.e(f"s_waitcnt vmcnt({3-ch+9})", f"ds_write_b128 v19, {v(U+4*ch,4)} offset:{1024*ch}")
        a.e("s_waitcnt vmcnt(0)", "ds_write_b32 v231, v230", "s_waitcnt lgkmcnt(0)")
        for r in ra: a.e(r)
    else:
        a.e("s_waitcnt vmcnt(4)", "ds_write_b32 v231, v230")
        a.e("s_waitcnt lgkmcnt(0)")
        for r in ra: a.e(r)
        for ch in range(4):
            a.e(f"s_waitcnt vmcnt({3-ch})", f"ds_write_b128 v19, {v(U+4*ch,4)} offset:{1024*ch}")
    a.e("s_waitcnt lgkmcnt(0)")
    for r in rb: a.e(r)
    if OPT["yieldB"]:
        Ly = newlbl("y0b")
        if OPT["y0"]: a.e("s_cmp_lg_u32 s2, 0", f"s_cbranch_scc1 {Ly}")
        if not (OPT["yieldB"] == 2 and OPT["ymid"]): b_yield(a, 233)
        a.label(Ly)
    Lnq = newlbl("noq")
    if OPT["a3all"]:
        a.e(f"s_mov_b32 s{sCBKT}, s{sCBK}", f"s_mov_b32 s{sSUBT}, s{sSUB}")
        if OPT["yieldB"] != 3: emit_B3_pre(a)
    else:
        a.e(f"s_cmp_lg_u32 s{sACT}, 0", f"s_cbranch_scc1 {Lnq}")
        emit_B3_pre(a)
        a.label(Lnq)
    stamp(a, 7)
    for ci, rho in enumerate(rhos):
        st = ci & 1
        A, B = SETS[st]
        if ci+1 < len(rhos):
            ra, rb = reads(rhos[ci+1], st ^ 1); nxt = ra[0:2] + rb + ra[2:]
        else:
            nxt = [f"ds_read_b64 {v(SETS[st^1][0]+2*j,2)}, v{VE} offset:{512*j}" for j in range(8)]
        if OPT["yieldB"] == 3: b_yield_step(a, 233, ci == len(rhos)-1)
        if OPT["yieldB"] == 2 and OPT["ymid"] and ci == OPT["ymid"]: b_yield(a, 233)
        a.e("s_waitcnt lgkmcnt(0)")
        n = 0
        for p in range(8):
            for q in range(8-p):
                j = p+q
                c = "0" if (ci == 0 and p == 0) else v(ACC+4*j, 4)
                a.e(f"v_mfma_f32_16x16x32_bf16 {v(ACC+4*j,4)}, {v(A+4*p,4)}, {v(B+4*q,4)}, {c}")
                if n < len(nxt): a.e(nxt[n])
                n += 1
    KVR = SETS[0][0]; TMv = 116
    if OPT["yieldB"] == 3 and OPT["a3all"]: emit_B3_pre(a)
    a.e("s_waitcnt lgkmcnt(0)")
    stamp(a, 8)
    sts = []
    for jp in range(4):
        base = TMv + 8*jp
        for hh in range(2):
            j = 2*jp+hh
            w0, w1 = KVR+2*j, KVR+2*j+1
            t = 172
            a.e(f"v_and_b32 v{t}, s{sMASK}, v{w1}", f"v_lshlrev_b32 v{t+1}, 16, v{w1}",
                f"v_and_b32 v{t+2}, s{sMASK}, v{w0}", f"v_lshlrev_b32 v{t+3}, 16, v{w0}")
            for r in range(4):
                a.e(f"v_fma_f32 v{t+r}, v{t+r}, s{sDV}, v{ACC+4*j+r}")
            a.e(f"v_cvt_pk_bf16_f32 v{base+2*hh}, v{t}, v{t+1}", f"v_cvt_pk_bf16_f32 v{base+2*hh+1}, v{t+2}, v{t+3}")
        a.e(f"v_permlane16_swap_b32 v{base}, v{base+2}", f"v_permlane16_swap_b32 v{base+1}, v{base+3}")
        sts.append(f"buffer_store_dwordx4 {v(base,4)}, v{VS2}, s[{STT}:{STT+3}], s{sSB+jp} offen")
    dual_store(a, sts)
    signal(a, sF2, 12, bloc=True)
    stamp(a, 9)
    if not OPT["a3all"]: a.e(f"s_cmp_lg_u32 s{sACT}, 0", "s_cbranch_scc1 L_fin")
    emit_B3(a)
    pair_chkB(a)
    a.e("s_branch L_fin")

SY_PA = 4096 + 163840
SY_PB = SY_PA + 16384
def hwid(a, dst):
    a.e(f"s_getreg_b32 s{dst}, hwreg(HW_REG_HW_ID)", f"s_lshr_b32 s{dst}, s{dst}, 8", f"s_and_b32 s{dst}, s{dst}, 0xff",
        "s_getreg_b32 s93, hwreg(HW_REG_XCC_ID)", "s_and_b32 s93, s93, 15", "s_lshl_b32 s93, s93, 8", f"s_or_b32 s{dst}, s{dst}, s93")
def pair_pubA(a):
    if not OPT.get("pair"): return
    L = newlbl("ppa")
    a.e("s_cmp_lg_u32 s3, 0", f"s_cbranch_scc1 {L}")
    hwid(a, 92)
    a.e(f"s_lshl_b32 s93, s{sCU}, 6", f"s_add_u32 s93, s93, {SY_PA}", "v_mov_b32 v240, s93", "v_mov_b32 v241, s92", "s_mov_b64 exec, 1",
        f"buffer_store_dword v241, v240, s[{S_SYN}:{S_SYN+3}], 0 offen sc1", "s_mov_b64 exec, -1")
    a.label(L)
def pair_chkB(a):
    if not OPT.get("pair"): return
    L = newlbl("ppb")
    a.e("s_cmp_lg_u32 s3, 0", f"s_cbranch_scc1 {L}")
    hwid(a, 92)
    a.e(f"s_lshl_b32 s93, s{sCU}, 6", f"s_add_u32 s93, s93, {SY_PA}", "v_mov_b32 v240, s93",
        f"buffer_load_dword v241, v240, s[{S_SYN}:{S_SYN+3}], 0 offen sc1", "s_waitcnt vmcnt(0)", "v_readfirstlane_b32 s93, v241",
        "s_cmp_lg_u32 s92, s93", "s_cselect_b32 s92, 1, 0", f"s_lshl_b32 s93, s{S_TGT}, 1", "s_or_b32 s92, s92, s93",
        f"s_lshl_b32 s93, s{sCU}, 6", f"s_add_u32 s93, s93, {SY_PB}", "v_mov_b32 v240, s93", "v_mov_b32 v241, s92", "s_mov_b64 exec, 1",
        f"buffer_store_dword v241, v240, s[{S_SYN}:{S_SYN+3}], 0 offen sc1", "s_mov_b64 exec, -1", "s_waitcnt vmcnt(0)")
    a.label(L)
def pair_sum(a):
    if not OPT.get("pair"): return
    L1, L2, L3 = newlbl("ps"), newlbl("psd"), newlbl("psp")
    a.e("v_lshlrev_b32 v2, 6, v1", f"v_add_u32 v2, {SY_PB}, v2", f"s_lshl_b32 s49, s{S_TGT}, 1", "s_mov_b32 s48, 0")
    a.label(L1)
    for i in range(4): a.e(f"s_mov_b32 s50, {4096*i}", f"buffer_load_dword v{4+i}, v2, s[{S_SYN}:{S_SYN+3}], s50 offen sc1")
    a.e("s_add_u32 s48, s48, 1", "s_waitcnt vmcnt(0)")
    for i in range(4): a.e(f"v_xor_b32 v{4+i}, s49, v{4+i}")
    a.e("v_or_b32 v8, v4, v5", "v_or_b32 v9, v6, v7", "v_or_b32 v8, v8, v9", "v_lshrrev_b32 v8, 1, v8", "v_cmp_ne_u32 vcc, 0, v8", f"s_cbranch_vccz {L2}",
        f"s_cmp_lt_u32 s48, {SPIN_LIMIT}", f"s_cbranch_scc1 {L1}")
    a.label(L2)
    a.e("s_mov_b32 s48, 0")
    for i in range(4): a.e(f"v_cmp_eq_u32 vcc, 1, v{4+i}", "s_bcnt1_i32_b64 s49, vcc", "s_add_u32 s48, s48, s49")
    a.e(f"s_mov_b32 s92, s{P_DBG}", f"s_mov_b32 s93, s{P_DBG+1}", "s_mov_b32 s94, 256", "s_mov_b32 s95, 0x00020000", "v_mov_b32 v4, 0", "v_mov_b32 v5, s48", "s_mov_b64 exec, 1",
        "buffer_store_dword v5, v4, s[92:95], 0 offen", "s_mov_b64 exec, -1")
    a.e("s_mul_i32 s48, s48, 10", "s_memrealtime s[50:51]", "s_waitcnt lgkmcnt(0)", "s_mov_b32 s49, s50")
    a.label(L3)
    a.e("s_memrealtime s[50:51]", "s_waitcnt lgkmcnt(0)", "s_sub_u32 s50, s50, s49", "s_cmp_lt_u32 s50, s48", f"s_cbranch_scc1 {L3}")

def warm(a):
    if OPT["tlb"]:
        L = newlbl("warm")
        a.e("s_cmp_lg_u32 s3, 3", f"s_cbranch_scc1 {L}")
        pages = [(P_WS, WS_I1), (P_WS, WS_I1+2*MB), (P_WS, WS_I2), (P_WS, WS_I2+2*MB), (P_WS, WS_SYNC+512*1024),
                 (P_OUT, 0), (P_OUT, 2*MB), (P_OUT, 4*MB), (P_OUT, 6*MB),
                 (P_WR, 0), (P_WR, 2*MB), (P_WI, 0), (P_WI, 2*MB), (P_SSMK, 0), (P_SSMK, 2*MB), (P_Q, 0), (P_Q, 2*MB)]
        a.e("v_mov_b32 v240, 0", "v_mov_b32 v241, 0")
        for i, (p, off) in enumerate(pages):
            a.e(f"s_add_u32 s92, s{p}, {off}", f"s_addc_u32 s93, s{p+1}, 0", f"v_writelane_b32 v240, s92, {i}", f"v_writelane_b32 v241, s93, {i}")
        a.e(f"s_mov_b64 exec, {(1 << len(pages)) - 1}", "global_load_dword v242, v[240:241], off", "s_mov_b64 exec, -1")
        a.label(L)
    if OPT["cpf"]:
        L = newlbl("warm")
        a.e("s_cmp_ge_u32 s3, 2", f"s_cbranch_scc1 {L}")
        a.e("s_getpc_b64 s[92:93]")
        a.e("s_lshr_b32 s96, s2, 4", "s_and_b32 s96, s96, 15", "s_lshl_b32 s96, s96, 1", "s_add_u32 s96, s96, s3", "s_min_u32 s96, s96, 25",
            "s_lshl_b32 s96, s96, 10", f"s_sub_u32 s92, s92, {OPT['cpf']}", "s_subb_u32 s93, s93, 0",
            "s_add_u32 s92, s92, s96", "s_addc_u32 s93, s93, 0", "v_lshlrev_b32 v240, 4, v1",
            "global_load_dwordx4 v[236:239], v240, s[92:93]")
        a.label(L)

def gen_kernel():
    a = Asm(); a.name = "p"
    a.e("s_cmp_ge_u32 s2, 512", "s_cbranch_scc1 L_exit")
    if OPT["swap"]: a.e("s_xor_b32 s2, s2, 256")
    if OPT.get("spinT") or OPT.get("span"): a.e("s_memrealtime s[94:95]")
    if OPT.get("spinC"): a.e("s_memtime s[94:95]")
    if gen.PROF: a.e("s_memrealtime s[98:99]", "s_waitcnt lgkmcnt(0)", "v_writelane_b32 v247, s98, 13")
    a.e(f"s_load_dwordx16 s[4:19], s[0:1], 0", f"s_load_dwordx8 s[20:27], s[0:1], 64")
    a.e("v_lshrrev_b32 v1, 6, v0", "v_readfirstlane_b32 s3, v1", "v_and_b32 v1, 63, v0", "s_waitcnt lgkmcnt(0)")
    srd(a, S_SYN, P_WS, P_WS+1, 1*MB, add=WS_SYNC)
    a.e(f"s_mov_b32 s48, {WS_SYNC+SY_E}", f"s_load_dword s{S_TGT}, s[{P_WS}:{P_WS+1}], s48")
    a.e(f"s_mov_b32 s98, {64<<FA()}", f"s_mov_b32 s99, {128<<FA()}", f"s_mov_b32 s100, {192<<FA()}")
    a.e(f"s_and_b32 s{sCU}, s2, 255", f"s_bitcmp0_b32 s2, 3", f"s_cselect_b32 s{sACT}, 1, 0",
        f"s_lshr_b32 s48, s{sCU}, 4", "s_lshl_b32 s48, s48, 3", f"s_and_b32 s49, s{sCU}, 7", "s_add_u32 s48, s48, s49",
        f"s_and_b32 s{sCBKT}, s48, 15", "s_lshr_b32 s48, s48, 4", "s_lshl_b32 s48, s48, 1", "s_lshr_b32 s49, s2, 8", f"s_add_u32 s{sSUBT}, s48, s49")
    a.e("s_cmp_ge_u32 s2, 256", "s_cbranch_scc1 L_A")
    gen_B(a)
    a.label("L_A")
    gen_A(a)
    a.label("L_fin")
    pass
    if gen.PROF:
        a.e("s_waitcnt vmcnt(0)")
        stamp(a, 14); stamp(a, 15, True)
        prof_dump(a)
    if OPT.get("span"):
        Ls = newlbl("span")
        a.e("s_cmp_lg_u32 s3, 0", f"s_cbranch_scc1 {Ls}", "s_waitcnt vmcnt(0)", "s_memrealtime s[92:93]",
            f"s_add_u32 s32, s{P_WS}, {gen.WS_PROF}", f"s_addc_u32 s33, s{P_WS+1}, 0", f"s_mov_b32 s34, {MB}", "s_mov_b32 s35, 0x00020000",
            "s_lshl_b32 s36, s2, 3", "s_waitcnt lgkmcnt(0)", "v_mov_b32 v2, s36", "v_mov_b32 v4, s94", "v_mov_b32 v5, s92", "s_mov_b64 exec, 1",
            "buffer_store_dwordx2 v[4:5], v2, s[32:35], 0 offen", "s_waitcnt vmcnt(0)")
        a.label(Ls)
    if OPT.get("spinC"):
        a.label("L_spinc")
        a.e("s_memtime s[92:93]", "s_waitcnt lgkmcnt(0)", "s_sub_u32 s92, s92, s94", f"s_cmp_lt_u32 s92, {OPT['spinC']}", "s_cbranch_scc1 L_spinc")
    if OPT.get("spinT"):
        a.label("L_spin")
        a.e("s_memrealtime s[92:93]", "s_waitcnt lgkmcnt(0)", "s_sub_u32 s92, s92, s94", f"s_cmp_lt_u32 s92, {OPT['spinT']}", "s_cbranch_scc1 L_spin")
    a.label("L_exit")
    a.e("s_endpgm")
    return a

def prof_dump(a):
    if OPT.get("dbgwg", -1) >= 0:
        L = newlbl("nodbg")
        a.e(f"s_cmp_lg_u32 s2, {OPT['dbgwg']}", f"s_cbranch_scc1 {L}", "s_cmp_lg_u32 s3, 0", f"s_cbranch_scc1 {L}")
        a.e("v_readlane_b32 s36, v247, 1", "v_readlane_b32 s37, v247, 13", "v_mov_b32 v250, s36", "v_mov_b32 v251, s37",
            "v_cmp_eq_u32 vcc, 0, v1", "v_cndmask_b32 v250, v250, v251, vcc", "v_cmp_eq_u32 vcc, 13, v1", "v_cndmask_b32 v250, v250, v251, vcc",
            "v_cmp_eq_u32 vcc, 15, v1", "v_cndmask_b32 v250, v250, v251, vcc", "v_sub_u32 v250, v247, v250",
            f"s_mov_b32 s32, s{P_DBG}", f"s_mov_b32 s33, s{P_DBG+1}", "s_mov_b32 s34, 256", "s_mov_b32 s35, 0x00020000",
            "v_lshlrev_b32 v251, 2, v1", "s_mov_b64 exec, 0xffff", "buffer_store_dword v250, v251, s[32:35], 0 offen", "s_waitcnt vmcnt(0)", "s_mov_b64 exec, -1")
        a.label(L)
        return

    a.e(f"s_add_u32 s32, s{P_WS}, {gen.WS_PROF}", f"s_addc_u32 s33, s{P_WS+1}, 0", f"s_mov_b32 s34, {MB}", "s_mov_b32 s35, 0x00020000")
    a.e("s_lshl_b32 s36, s2, 2", "s_add_u32 s36, s36, s3", "s_lshl_b32 s36, s36, 6",
        "v_lshlrev_b32 v250, 2, v1", "v_add_u32 v250, s36, v250", "s_mov_b64 exec, 0xffff",
        "buffer_store_dword v247, v250, s[32:35], 0 offen")
    if OPT.get("fine"):
        a.e("v_add_u32 v250, 0x40000, v250", "buffer_store_dword v246, v250, s[32:35], 0 offen")
    a.e("s_waitcnt vmcnt(0)")
PROFREGS = []

def build(path):
    a = gen_kernel()
    name = "concat_heads__spectral_gfnet__ssm_conv_h3__prompt_kernel"
    s = open("concat_heads__spectral_gfnet__ssm_conv_h3__prompt.s.ref").read().split("; Override")[0]
    s += f"; @launch grid=(512,1,1) block=(256,1,1) lds={LDS_BYTES}\n"
    s += '.amdgcn_target "amdgcn-amd-amdhsa--gfx950"\n' + gen.header(name) + a.text() + gen.descriptor(name, 256, 102)
    s = s.replace(" lds nt", " nt lds")
    open(path, "w").write(s)
    return s

if __name__ == "__main__":
    out = sys.argv[1] if len(sys.argv) > 1 else "pers.s"
    gen.PROF = "prof" in sys.argv[2:]
    for x in sys.argv[2:]:
        if "=" in x:
            k, val = x.split("="); OPT[k] = int(val)
    if OPT["wsend"]:
        base = OPT["wsend"]*MB
        WS_I1, WS_KVT, WS_I2, WS_TT, WS_SYNC = base, base+4*MB, base+8*MB, base+12*MB, base+20*MB
    s = build(out)
    print(out, len(s))
```

```python
import sys
from asmgen import *
import gen
from gen import srd, MB, WS_I1, WS_KVT, WS_I2, WS_TT, KA

PHASE = [1]
def dstamp(a, k, inv=False):
    if not OPT.get("dmax"): return
    a.e("s_memrealtime s[96:97]", "s_waitcnt lgkmcnt(0)", f"v_writelane_b32 v242, s96, {k}")
SY_DG = 4096 + 131072
def dpublish(a, sT):
    if not OPT.get("dmax"): return
    L = newlbl("dp")
    a.e("s_cmp_lg_u32 s3, 0", f"s_cbranch_scc1 {L}", f"s_lshl_b32 s92, s{sT}, 5", f"s_add_u32 s92, s92, {SY_DG}",
        "v_lshlrev_b32 v240, 2, v1", "v_add_u32 v240, s92, v240", "s_mov_b64 exec, 0xff",
        f"buffer_store_dword v242, v240, s[{S_SYN}:{S_SYN+3}], 0 offen sc1", "s_mov_b64 exec, -1")
    a.label(L)
def dreduce(a):
    if not OPT.get("dmax"): return
    a.e(f"s_mov_b32 s92, s{P_DBG}", f"s_mov_b32 s93, s{P_DBG+1}", "s_mov_b32 s94, 256", "s_mov_b32 s95, 0x00020000")
    a.e("v_lshlrev_b32 v2, 5, v1", f"v_add_u32 v2, {SY_DG}, v2")
    for k in range(7):
        for i in range(4):
            a.e(f"s_mov_b32 s50, {2048*i + 4*k}", f"buffer_load_dword v{10+i}, v2, s[{S_SYN}:{S_SYN+3}], s50 offen sc1")
        a.e("s_waitcnt vmcnt(0)")
        if k == 0:
            a.e("v_min_u32 v10, v10, v11", "v_min_u32 v12, v12, v13", "v_min_u32 v10, v10, v12", "s_mov_b32 s51, -1")
            for l in range(64): a.e(f"v_readlane_b32 s48, v10, {l}", "s_min_u32 s51, s51, s48")
            a.e("s_mov_b32 s45, s51")
            continue
        for i in range(4):
            a.e(f"v_subrev_u32 v{10+i}, s45, v{10+i}", f"v_lshlrev_b32 v{10+i}, 8, v{10+i}", f"v_add_u32 v14, {64*i}, v1", f"v_or_b32 v{10+i}, v{10+i}, v14")
        a.e("v_max_u32 v10, v10, v11", "v_max_u32 v12, v12, v13", "v_max_u32 v10, v10, v12", "s_mov_b32 s51, 0")
        for l in range(64): a.e(f"v_readlane_b32 s48, v10, {l}", "s_max_u32 s51, s51, s48")
        a.e("s_lshr_b32 s48, s51, 8", "s_and_b32 s49, s51, 255", "v_mov_b32 v14, s48", "v_mov_b32 v15, s49", f"v_mov_b32 v16, {8*(k-1)}", "s_mov_b64 exec, 1",
            "buffer_store_dwordx2 v[14:15], v16, s[92:95], 0 offen", "s_mov_b64 exec, -1")
DMAP_A = {1: 0, 5: 1, 6: 2, 7: 3, 8: 4, 9: 5}
DMAP_B = {}
ROLE = ["B"]
def fstamp(a, i):
    if OPT.get("fine") != PHASE[0]: return
    a.e('s_memtime s[96:97]', 's_waitcnt lgkmcnt(0)', f'v_writelane_b32 v246, s96, {i}')
def stamp(a, i, real=False):
    if OPT.get("dmax"):
        m = DMAP_A if ROLE[0] == "A" else DMAP_B
        if i in m and i != 14: dstamp(a, m[i])
        return
    if not gen.PROF: return
    a.e('s_memrealtime s[96:97]' if real else 's_memtime s[96:97]', 's_waitcnt lgkmcnt(0)', f'v_writelane_b32 v247, s96, {i}')

WBYTES = 2048*513*2
LB_STRIDE = 12896
LDS_BYTES = 53248
SPIN_LIMIT = 400000
OPT = dict(prioA=0, prioB=0, sleep=0, nt=1, wsend=0, ntout=1, ntw=1, wlate=1, hlate=1, qA=1, fsa=6, fsb=6, shrink=0, loc=1, forceloc=-1, ldloc=1, bdelay=0, earlypub=1, wpos=1, optst=1, locflag=1, hearly=1, twoflag=1, pA1i=-1, pB1=0, ntscr=0, a3all=1, ntk=1, ntv=1, ntx=1, nth=1, hactdelay=0, b1all=1, bactwait=1, pA1a=-1, grp=1, yieldB=0, ylim=40, tlb=0, cpf=0, spec2=1, y0=0, yinit=1, ymid=0, swap=0, a1all=1, cearly=1, fullline=1, qlate=0, hfirst=0, pairx=0, gld=0, t0late=0, i2ld=0, outB=-1)
def NTOB(): return NTO() if OPT['outB'] < 0 else {0: '', 1: ' nt', 2: ' sc1', 3: ' sc1 nt'}[OPT['outB']]
def GLD(): return {0: 'sc1', 1: 'nt', 2: ''}[OPT['gld']]
def NMEM(): return 32 if OPT['b1all'] else 48
def LDL(): return {0: ' sc1', 1: ' nt', 2: ' sc1 nt'}[OPT['ldloc']]
def FA(): return OPT['fsa']
def FB(): return OPT['fsb']
def NT(): return ' nt' if OPT['nt'] else ''
def NTO(): return {0: '', 1: ' nt', 2: ' sc1', 3: ' sc1 nt'}[OPT['ntout']]

P_X, P_WR, P_WI, P_Q, P_K, P_V, P_SHK, P_SSMK, P_SSMD, P_OUT, P_DBG, P_WS = 4, 6, 8, 10, 12, 14, 16, 18, 20, 22, 24, 26
S_DBG = 28
def eidx(r): return (r & 3) + 8*(r >> 2)

_lbl = [0]
def newlbl(p):
    _lbl[0] += 1
    return f"L_{p}_{_lbl[0]}"

WS_SYNC = 20*MB
S_SYN = 28
S_TGT = 101
SY_E, SY_A1, SY_A2, SY_B1, SY_B2 = 0, 4096, 4096+16384, 4096+32768, 4096+49152
sACT, sCBKT, sSUBT, sCU = 88, 89, 90, 91
sLOC, sXEXP = 79, 0
S_DBG = 12
def signal(a, s_off, vt, nafter=0, bloc=False):
    L = newlbl("sig")
    a.e(f"s_waitcnt vmcnt({nafter})", "s_barrier", "s_cmp_lg_u32 s3, 0", f"s_cbranch_scc1 {L}",
        f"v_mov_b32 v{vt}, s{s_off}", f"v_mov_b32 v{vt+1}, s{S_TGT}", "s_mov_b64 exec, 1")
    st = f"buffer_store_dword v{vt+1}, v{vt}, s[{S_SYN}:{S_SYN+3}], 0 offen"
    if bloc and OPT["locflag"]:
        dual_store(a, [st])
    else:
        a.e(st + " sc1")
    a.e("s_mov_b64 exec, -1")
    if OPT.get("flagwait"): a.e("s_waitcnt vmcnt(0)")
    a.label(L)

def wait_flags(a, vaddr, nload, vt, s_cnt, pre_barrier=None, solo=False, skip0=None):
    L = newlbl("poll"); Ls = newlbl("pdone"); Lr = newlbl("prest")
    if not solo: a.e("s_cmp_lg_u32 s3, 0", f"s_cbranch_scc1 {Ls}")
    a.e(f"s_mov_b32 s{s_cnt}, 0")
    a.label(L)
    offs = ["0", "s98", "s99", "s100"]
    for i in range(nload):
        a.e(f"buffer_load_dword v{vt+i}, v{vaddr}, s[{S_SYN}:{S_SYN+3}], {offs[i]} offen sc1")
    a.e(f"s_add_u32 s{s_cnt}, s{s_cnt}, 1", "s_waitcnt vmcnt(0)")
    for i in range(nload):
        a.e(f"v_xor_b32 v{vt+i}, s{S_TGT}, v{vt+i}")
    if skip0 is not None:
        a.e(f"v_readfirstlane_b32 s{skip0}, v{vt}", f"v_writelane_b32 v{vt}, 0, 0")
    for i in range(1, nload):
        a.e(f"v_or_b32 v{vt}, v{vt}, v{vt+i}")
    if OPT["shrink"]:
        a.e(f"v_cmp_ne_u32 vcc, 0, v{vt}", "s_and_b64 exec, exec, vcc", f"s_cbranch_execz {Lr}")
    else:
        a.e(f"v_cmp_ne_u32 vcc, 0, v{vt}", f"s_cbranch_vccz {Lr}")
    if OPT["sleep"]: a.e(f"s_sleep {OPT['sleep']}")
    a.e(f"s_cmp_lt_u32 s{s_cnt}, {SPIN_LIMIT}", f"s_cbranch_scc1 {L}")
    a.label(Lr)
    if OPT["shrink"]: a.e("s_mov_b64 exec, -1")
    a.label(Ls)
    if pre_barrier: a.e(pre_barrier)
    if not solo: a.e("s_barrier")

SY_ID = 4096 + 65536
SY_B1B = 4096 + 98304
SY_AS = 4096 + 114688
LOCW = 53244
def loc_publish(a):
    L = newlbl("pub")
    a.e("s_getreg_b32 s92, hwreg(HW_REG_XCC_ID)", "s_and_b32 s92, s92, 15", f"s_lshl_b32 s{sXEXP}, s{S_TGT}, 4", f"s_or_b32 s{sXEXP}, s{sXEXP}, s92")
    a.e("s_cmp_lg_u32 s3, 0", f"s_cbranch_scc1 {L}")
    if OPT["b1all"] and OPT["grp"]:
        a.e("s_and_b32 s92, s2, 15", "s_lshl_b32 s92, s92, 4", "s_lshr_b32 s93, s2, 4", "s_add_u32 s92, s92, s93", "s_lshl_b32 s92, s92, 6", f"s_add_u32 s92, s92, {SY_ID}")
    else:
        a.e("s_lshr_b32 s92, s2, 3", f"s_lshr_b32 s93, s{sCU}, 4", "s_add_u32 s93, s93, 32", "s_cmp_ge_u32 s2, 256", "s_cselect_b32 s92, s93, s92",
            "s_and_b32 s93, s2, 7", f"s_mul_i32 s93, s93, {NMEM()}", "s_add_u32 s92, s92, s93", "s_lshl_b32 s92, s92, 6", f"s_add_u32 s92, s92, {SY_ID}")
    a.e(
        "v_mov_b32 v10, s92", f"v_mov_b32 v11, s{sXEXP}", "s_mov_b64 exec, 1",
        f"buffer_store_dword v11, v10, s[{S_SYN}:{S_SYN+3}], 0 offen sc1", "s_mov_b64 exec, -1")
    a.label(L)

def loc_issue(a, vt):
    if OPT["b1all"] and OPT["grp"]:
        a.e(f"v_min_u32 v{vt}, 15, v1", "s_and_b32 s93, s2, 15", "s_lshl_b32 s93, s93, 4")
    else:
        a.e(f"v_min_u32 v{vt}, {NMEM()-1}, v1", "s_and_b32 s93, s2, 7", f"s_mul_i32 s93, s93, {NMEM()}")
    a.e(f"v_add_u32 v{vt}, s93, v{vt}",
        f"v_lshlrev_b32 v{vt}, 6, v{vt}", f"v_add_u32 v{vt}, {SY_ID}, v{vt}")
    L = newlbl("li")
    a.e("s_cmp_lg_u32 s3, 0", f"s_cbranch_scc1 {L}")
    a.e(f"buffer_load_dword v{vt+1}, v{vt}, s[{S_SYN}:{S_SYN+3}], 0 offen sc1")
    a.label(L)

def loc_resolve(a, vt, barrier=True, nafter=0):
    L, Ld, Ls = newlbl("locp"), newlbl("locd"), newlbl("locs")
    a.e("s_cmp_lg_u32 s3, 0", f"s_cbranch_scc1 {Ls}")
    if OPT["forceloc"] >= 0:
        a.e(f"s_waitcnt vmcnt({nafter})", f"s_mov_b32 s93, {OPT['forceloc']}")
    else:
        a.e("s_mov_b32 s92, 0", f"s_waitcnt vmcnt({nafter})")
        a.label(L)
        a.e(f"v_xor_b32 v{vt+2}, s{sXEXP}, v{vt+1}", f"v_lshrrev_b32 v{vt+3}, 4, v{vt+2}", "s_add_u32 s92, s92, 1",
            f"v_cmp_ne_u32 vcc, 0, v{vt+3}", f"s_cbranch_vccz {Ld}",
            f"s_cmp_ge_u32 s92, {SPIN_LIMIT}", f"s_cbranch_scc1 {Ld}",
            f"buffer_load_dword v{vt+1}, v{vt}, s[{S_SYN}:{S_SYN+3}], 0 offen sc1", "s_waitcnt vmcnt(0)", f"s_branch {L}")
        a.label(Ld)
        a.e(f"v_cmp_ne_u32 vcc, 0, v{vt+2}", "s_cmp_eq_u64 vcc, 0", "s_cselect_b32 s93, 1, 0")
    a.e(f"s_mov_b32 s{sLOC}, s93", f"v_mov_b32 v{vt+2}, {LOCW}", f"v_mov_b32 v{vt+3}, s93", f"ds_write_b32 v{vt+2}, v{vt+3}", "s_waitcnt lgkmcnt(0)")
    a.label(Ls)
    if barrier:
        a.e("s_barrier")
        loc_read(a, vt)

def loc_read(a, vt):
    a.e(f"v_mov_b32 v{vt+2}, {LOCW}", f"ds_read_b32 v{vt+3}, v{vt+2}", "s_waitcnt lgkmcnt(0)", f"v_readfirstlane_b32 s{sLOC}, v{vt+3}")

def dual_store(a, lines):
    L1, L2 = newlbl("stg"), newlbl("stl")
    a.e(f"s_cmp_eq_u32 s{sLOC}, 0", f"s_cbranch_scc1 {L1}")
    for l in lines: a.e(l)
    a.e(f"s_branch {L2}")
    a.label(L1)
    for l in lines: a.e(l + " sc1" if "buffer_store" in l else l)
    a.label(L2)

def a_state(a, sT, st, vt):
    L = newlbl("ast")
    a.e("s_cmp_lg_u32 s3, 0", f"s_cbranch_scc1 {L}", f"s_lshl_b32 s92, s{sT}, 6", f"s_add_u32 s92, s92, {SY_AS}",
        f"s_lshl_b32 s93, s{S_TGT}, 2", f"s_or_b32 s93, s93, {st}", f"v_mov_b32 v{vt}, s92", f"v_mov_b32 v{vt+1}, s93", "s_mov_b64 exec, 1",
        f"buffer_store_dword v{vt+1}, v{vt}, s[{S_SYN}:{S_SYN+3}], 0 offen", "s_mov_b64 exec, -1")
    a.label(L)

def y_ld(vt): return f"buffer_load_dword v{vt+1}, v{vt}, s[{S_SYN}:{S_SYN+3}], 0 offen " + ("sc1" if OPT.get("ysc", 1) else "nt")
def b_yield(a, vt):
    L, Ld = newlbl("yl"), newlbl("yd")
    a.e(f"s_lshl_b32 s92, s{sCU}, 6", f"s_add_u32 s92, s92, {SY_AS}", f"v_mov_b32 v{vt}, s92", f"s_lshl_b32 s75, s{S_TGT}, 2", "s_mov_b32 s92, 0")
    a.e(f"s_or_b32 s75, s75, {2 if OPT['yieldB'] == 2 else 1}")
    if OPT["yieldB"] == 3:
        a.e(y_ld(vt)); return
    a.label(L)
    a.e(y_ld(vt), "s_add_u32 s92, s92, 1", "s_waitcnt vmcnt(0)",
        f"v_readfirstlane_b32 s93, v{vt+1}", "s_cmp_lg_u32 s93, s75" if OPT["yieldB"] == 1 else "s_cmp_eq_u32 s93, s75", f"s_cbranch_scc1 {Ld}",
        f"s_cmp_lt_u32 s92, {OPT['ylim']}", f"s_cbranch_scc1 {L}")
    a.label(Ld)

def b_yield_step(a, vt, last):
    L, Ld = newlbl("ys"), newlbl("ysd")
    a.label(L)
    a.e("s_waitcnt vmcnt(0)", f"v_readfirstlane_b32 s93, v{vt+1}", "s_cmp_lg_u32 s93, s75", f"s_cbranch_scc1 {Ld}",
        f"s_cmp_ge_u32 s92, {OPT['ylim']}", f"s_cbranch_scc1 {Ld}", "s_add_u32 s92, s92, 1", y_ld(vt), f"s_branch {L}")
    a.label(Ld)
    if not last: a.e(y_ld(vt))

def fin_epoch(a):
    a.e("s_waitcnt lgkmcnt(0)", f"s_add_u32 s{S_TGT}, s{S_TGT}, 1")

def bump(a, s_off, vt):
    a.e(f"v_mov_b32 v{vt}, s{s_off}", f"v_mov_b32 v{vt+1}, s{S_TGT}", "s_mov_b64 exec, 1",
        f"buffer_store_dword v{vt+1}, v{vt}, s[{S_SYN}:{S_SYN+3}], 0 offen sc1", "s_mov_b64 exec, -1")

F_M, F_G, F_IN0, F_IN1, F_OUTOFF, F_WR, F_RD0, F_RD1, F_MM = 2, 3, 4, 5, 6, 7, 8, 9, 10
F_T = 11
F_IN, F16RE, F16IM, F_TWC, F_TWS, F_DRE, F_DIM, F_P, F_TMP, F32RE, F32IM = 16, 48, 52, 56, 88, 120, 136, 152, 168, 176, 192
SI_OFF, SO_OFF = 52, 68
SO_LIST = [68, 69, 70, 71, 76, 77, 78, 79]

def fft512_addr(a, s_sa, s_cb):
    a.e(f"v_and_b32 v{F_M}, 15, v1", f"v_lshrrev_b32 v{F_G}, 4, v1")
    a.e(f"v_lshlrev_b32 v{F_IN0}, 20, v{F_G}", f"v_lshl_add_u32 v{F_IN0}, v{F_M}, 2, v{F_IN0}", f"v_add_u32 v{F_IN1}, {4*8192}, v{F_IN0}")
    a.e(f"s_lshl_b32 s48, s{s_sa}, 11", f"s_lshl_b32 s49, s{s_cb}, 6", "s_add_u32 s48, s48, s49",
        "s_lshl_b32 s50, s3, 16", "s_add_u32 s48, s48, s50")
    for aa in range(4):
        for i in range(4):
            a.e(f"s_add_u32 s{SI_OFF+4*aa+i}, s48, {(32*i+aa)*8192}")

def fft512_loads(a, SIN, mod=""):
    for hh in range(2):
        for aa in range(4):
            for i in range(4):
                a.e(f"buffer_load_dword v{F_IN+16*hh+4*aa+i}, v{F_IN0+hh}, s[{SIN}:{SIN+3}], s{SI_OFF+4*aa+i} offen {mod}")

def fft512_addr2(a, s_sa, s_cb, orow, ostr):
    a.e(f"s_mov_b32 s51, {16*ostr}", f"v_mul_lo_u32 v{F_OUTOFF}, v{F_M}, s51", f"v_lshl_add_u32 v{F_OUTOFF}, v{F_G}, 4, v{F_OUTOFF}")
    a.e(f"s_mul_i32 s48, s{s_sa}, {orow}", f"s_lshl_b32 s49, s{s_cb}, 6", "s_add_u32 s48, s48, s49",
        f"s_mul_i32 s50, s3, {4*ostr}", "s_add_u32 s48, s48, s50")
    for b in range(4):
        for h in range(2):
            a.e(f"s_add_u32 s{SO_LIST[2*b+h]}, s48, {(b+256*h)*ostr}")
    a.e(f"v_and_b32 v{F_T}, 7, v{F_M}", "s_lshl_b32 s50, s3, 1", f"v_xor_b32 v{F_T+1}, s50, v{F_T}",
        f"v_lshlrev_b32 v{F_WR}, 4, v{F_T+1}", f"v_lshl_add_u32 v{F_WR}, v{F_M}, 7, v{F_WR}",
        f"v_lshl_add_u32 v{F_WR}, v{F_G}, 13, v{F_WR}")
    a.e(f"v_xor_b32 v{F_T+1}, v{F_G}, v{F_T}", f"v_lshlrev_b32 v{F_RD0}, 4, v{F_T+1}",
        f"v_lshl_add_u32 v{F_RD0}, v{F_M}, 7, v{F_RD0}", "s_lshl_b32 s50, s3, 13",
        f"v_add_u32 v{F_RD0}, s50, v{F_RD0}", f"v_xor_b32 v{F_RD1}, 64, v{F_RD0}")

def fft512_consts(a):
    T, TMP = F_T, F_TMP
    XS, XB = T, T+1
    a.e(f"v_cvt_f32_u32 v{XS}, v{F_M}", f"v_mul_f32 v{XS}, {f32hex(1/32)}, v{XS}",
        f"v_cvt_f32_u32 v{T+2}, v{F_G}", f"v_mul_f32 v{T+2}, 4.0, v{T+2}",
        f"v_mul_f32 v{XB}, v{T+2}, v{XS}")
    a.e(f"v_and_b32 v{F_MM}, 1, v{F_M}", f"v_mul_u32_u24 v{F_MM}, 0x8000, v{F_MM}",
        f"v_lshl_or_b32 v{F_MM}, v{F_MM}, 16, v{F_MM}", "s_mov_b32 s50, 0x80008000")
    for i in range(4):
        x = TMP; cs = TMP+1; sn = TMP+2; x2 = TMP+3; cs2 = TMP+4; sn2 = TMP+5
        a.e(f"v_fmamk_f32 v{x}, v{XS}, {f32hex(float(i))}, v{XB}" if i else f"v_mov_b32 v{x}, v{XB}")
        a.e(f"v_add_f32 v{x2}, v{x}, v{x}")
        a.e(f"v_cos_f32 v{cs}, v{x}", f"v_sin_f32 v{sn}, v{x}", f"v_cos_f32 v{cs2}, v{x2}", f"v_sin_f32 v{sn2}, v{x2}")
        a.e(f"v_cvt_pk_bf16_f32 v{F32RE+i}, v{cs}, v{sn}", f"v_cvt_pk_bf16_f32 v{F32IM+i}, -v{sn}, v{cs}",
            f"v_cvt_pk_bf16_f32 v{F16RE+i}, v{cs2}, v{sn2}", f"v_cvt_pk_bf16_f32 v{F16IM+i}, -v{sn2}, v{cs2}")
    for base in (F32RE, F32IM):
        for i in range(4):
            a.e(f"v_xor_b32 v{base+4+i}, v{F_MM}, v{base+i}")
        for t in range(2):
            for i in range(4):
                src = base+4*t+i
                if i & 1: a.e(f"v_xor_b32 v{base+8+4*t+i}, s50, v{src}")
                else:     a.e(f"v_mov_b32 v{base+8+4*t+i}, v{src}")
    a.e(f"v_cvt_f32_u32 v{TMP}, s3", f"v_mul_f32 v{TMP}, {f32hex(8/512)}, v{TMP}")
    for r in range(4):
        a.e(f"v_add_f32 v{TMP+4+r}, {f32hex(float(r)) if r else 0}, v{T+2}")
    for aa in range(8):
        a.e(f"v_add_f32 v{TMP+1}, {f32hex(aa/512) if aa else 0}, v{TMP}")
        for r in range(4):
            a.e(f"v_mul_f32 v{T+3+(r&1)}, v{TMP+1}, v{TMP+4+r}",
                f"v_cos_f32 v{F_TWC+4*aa+r}, v{T+3+(r&1)}", f"v_sin_f32 v{F_TWS+4*aa+r}, v{T+3+(r&1)}")

def fft512_compute(a, SOUT, neg_im, nafter, stmod, st0, fs=0, hook=None):
    TMP = F_TMP
    stamp(a, st0)
    for hh in range(2):
        fstamp(a, fs+5*hh)
        for aa in range(4):
            a.e(f"s_waitcnt vmcnt({28-16*hh-4*aa+nafter})")
            a.e(f"v_mfma_f32_16x16x32_bf16 {v(F_DRE+4*aa,4)}, {v(F16RE,4)}, {v(F_IN+16*hh+4*aa,4)}, 0",
                f"v_mfma_f32_16x16x32_bf16 {v(F_DIM+4*aa,4)}, {v(F16IM,4)}, {v(F_IN+16*hh+4*aa,4)}, 0")
        if hh == 1:
            stamp(a, st0+1)
            if hook: hook()
        fstamp(a, fs+5*hh+1)
        for aa in range(4):
            for p in range(2):
                re, im = F_DRE+4*aa+2*p, F_DIM+4*aa+2*p
                tc, ts = F_TWC+16*hh+4*aa+2*p, F_TWS+16*hh+4*aa+2*p
                t0, t1 = TMP+4*p, TMP+4*p+2
                a.e(f"v_pk_mul_f32 {v(t0,2)}, {v(re,2)}, {v(tc,2)}",
                    f"v_pk_mul_f32 {v(t1,2)}, {v(im,2)}, {v(tc,2)}",
                    f"v_pk_fma_f32 {v(t0,2)}, {v(im,2)}, {v(ts,2)}, {v(t0,2)}",
                    f"v_pk_fma_f32 {v(t1,2)}, {v(re,2)}, {v(ts,2)}, {v(t1,2)} neg_lo:[1,0,0] neg_hi:[1,0,0]")
                for e in range(2):
                    r = 2*p+e
                    a.e(f"v_cvt_pk_bf16_f32 v{F_P+4*r+aa}, v{t0+e}, v{t1+e}")
        fstamp(a, fs+5*hh+2)
        if hh == 1: a.e(f"v_xor_b32 v{F_WR}, 16, v{F_WR}")
        for r in range(4):
            a.e(f"ds_write_b128 v{F_WR}, {v(F_P+4*r,4)} offset:{r*2048}")
    a.e("s_waitcnt lgkmcnt(0)")
    fstamp(a, fs+8)
    a.e("s_barrier")
    fstamp(a, fs+9)
    for b in range(4):
        a.e(f"ds_read_b128 {v(F_IN+8*b,4)}, v{F_RD0} offset:{b*2048}",
            f"ds_read_b128 {v(F_IN+8*b+4,4)}, v{F_RD1} offset:{b*2048}")
    sg = "-" if neg_im else ""
    def mf(bb):
        D0 = [F_DRE, F_DIM] if bb == 0 else [F_TWC, F_TWC+16]
        for bl in range(2):
            b = 2*bb+bl
            a.e(f"s_waitcnt lgkmcnt({6-2*b})")
            for t in range(2):
                for h in range(2):
                    for (D_, F_) in ((D0[0], F32RE), (D0[1], F32IM)):
                        d = D_+8*bl+4*h
                        c = "0" if t == 0 else v(d, 4)
                        a.e(f"v_mfma_f32_16x16x32_bf16 {v(d,4)}, {v(F_IN+8*b+4*t,4)}, {v(F_+8*h+4*t,4)}, {c}")
    def st(bb):
        D0 = [F_DRE, F_DIM] if bb == 0 else [F_TWC, F_TWC+16]
        PB = F_P if bb == 0 else F_TWS
        out = []
        for bl in range(2):
            b = 2*bb+bl
            for h in range(2):
                idx = 8*bl+4*h
                for r in range(4):
                    out.append(f"v_cvt_pk_bf16_f32 v{PB+idx+r}, v{D0[0]+idx+r}, {sg}v{D0[1]+idx+r}")
                out.append(f"buffer_store_dwordx4 {v(PB+idx,4)}, v{F_OUTOFF}, s[{SOUT}:{SOUT+3}], s{SO_LIST[2*b+h]} offen {stmod}")
        return out
    mf(0)
    n0 = len(a.lines)
    mf(1)
    m1 = a.lines[n0:]; del a.lines[n0:]
    s0 = st(0)
    k = 0
    seen = 0
    for l in m1:
        a.lines.append(l)
        if "v_mfma" in l:
            seen += 1
            if seen > 4:
                for _ in range(2):
                    if k < len(s0): a.e(s0[k]); k += 1
    while k < len(s0): a.e(s0[k]); k += 1
    fstamp(a, fs+10)
    for l in st(1): a.e(l)

def f8_addr(a, s_sa, s_cb, orow, ostr):
    a.e(f"v_and_b32 v{F_M}, 15, v1", f"v_lshrrev_b32 v{F_G}, 4, v1")
    a.e(f"v_and_b32 v{F_T}, 7, v1", f"v_bfe_u32 v{F_T+1}, v1, 3, 1",
        f"v_lshlrev_b32 v{F_IN0}, 20, v{F_G}", f"v_lshl_add_u32 v{F_IN0}, v{F_T+1}, 15, v{F_IN0}",
        f"v_lshl_add_u32 v{F_IN0}, v{F_T}, 2, v{F_IN0}")
    a.e(f"s_lshl_b32 s48, s{s_sa}, 11", f"s_lshl_b32 s49, s{s_cb}, 5", "s_add_u32 s48, s48, s49",
        "s_lshl_b32 s50, s3, 16", "s_add_u32 s48, s48, s50")
    for aa in range(4):
        for i in range(4):
            a.e(f"s_add_u32 s{SI_OFF+4*aa+i}, s48, {(32*i+aa)*8192}")
    a.e(f"v_lshrrev_b32 v{F_T+2}, 1, v{F_G}", f"v_lshl_add_u32 v{F_T+2}, v{F_M}, 4, v{F_T+2}",
        f"s_mov_b32 s51, {ostr}", f"v_mul_lo_u32 v{F_OUTOFF}, v{F_T+2}, s51",
        f"v_and_b32 v{F_T+2}, 1, v{F_G}", f"v_lshl_add_u32 v{F_OUTOFF}, v{F_T+2}, 4, v{F_OUTOFF}")
    a.e(f"s_mul_i32 s48, s{s_sa}, {orow}", f"s_lshl_b32 s49, s{s_cb}, 5", "s_add_u32 s48, s48, s49",
        f"s_mul_i32 s50, s3, {4*ostr}", "s_add_u32 s48, s48, s50")
    for b in range(2):
        for h in range(2):
            a.e(f"s_add_u32 s{SO_LIST[2*b+h]}, s48, {(2*b+256*h)*ostr}")
    a.e("s_lshl_b32 s50, s3, 1", f"v_add_u32 v{F_T+2}, s50, v{F_T+1}", f"v_xor_b32 v{F_T+2}, v{F_T+2}, v{F_T}",
        f"v_lshlrev_b32 v{F_WR}, 4, v{F_T+2}", f"v_lshl_add_u32 v{F_WR}, v{F_T}, 7, v{F_WR}", f"v_lshl_add_u32 v{F_WR}, v{F_G}, 12, v{F_WR}")
    a.e(f"v_xor_b32 v{F_T+2}, v{F_G}, v{F_T}", f"v_lshlrev_b32 v{F_RD0}, 4, v{F_T+2}",
        f"v_lshl_add_u32 v{F_RD0}, v{F_T}, 7, v{F_RD0}", f"v_lshl_add_u32 v{F_RD0}, v{F_T+1}, 10, v{F_RD0}",
        "s_lshl_b32 s50, s3, 12", f"v_add_u32 v{F_RD0}, s50, v{F_RD0}", f"v_xor_b32 v{F_RD1}, 64, v{F_RD0}")

def f8_consts(a):
    T, TMP = F_T, F_TMP
    XS, XB = T, T+1
    a.e(f"v_cvt_f32_u32 v{XS}, v{F_M}", f"v_mul_f32 v{XS}, {f32hex(1/32)}, v{XS}",
        f"v_cvt_f32_u32 v{T+2}, v{F_G}", f"v_mul_f32 v{T+2}, 4.0, v{T+2}",
        f"v_mul_f32 v{XB}, v{T+2}, v{XS}")
    a.e(f"v_and_b32 v{F_MM}, 1, v{F_M}", f"v_mul_u32_u24 v{F_MM}, 0x8000, v{F_MM}",
        f"v_lshl_or_b32 v{F_MM}, v{F_MM}, 16, v{F_MM}", "s_mov_b32 s50, 0x80008000")
    for i in range(4):
        x = TMP; cs = TMP+1; sn = TMP+2; x2 = TMP+3; cs2 = TMP+4; sn2 = TMP+5
        a.e(f"v_fmamk_f32 v{x}, v{XS}, {f32hex(float(i))}, v{XB}" if i else f"v_mov_b32 v{x}, v{XB}")
        a.e(f"v_add_f32 v{x2}, v{x}, v{x}")
        a.e(f"v_cos_f32 v{cs}, v{x}", f"v_sin_f32 v{sn}, v{x}", f"v_cos_f32 v{cs2}, v{x2}", f"v_sin_f32 v{sn2}, v{x2}")
        a.e(f"v_cvt_pk_bf16_f32 v{F32RE+i}, v{cs}, v{sn}", f"v_cvt_pk_bf16_f32 v{F32IM+i}, -v{sn}, v{cs}",
            f"v_cvt_pk_bf16_f32 v{F16RE+i}, v{cs2}, v{sn2}", f"v_cvt_pk_bf16_f32 v{F16IM+i}, -v{sn2}, v{cs2}")
    for base in (F32RE, F32IM):
        for i in range(4):
            a.e(f"v_xor_b32 v{base+4+i}, v{F_MM}, v{base+i}")
        for t in range(2):
            for i in range(4):
                src = base+4*t+i
                if i & 1: a.e(f"v_xor_b32 v{base+8+4*t+i}, s50, v{src}")
                else:     a.e(f"v_mov_b32 v{base+8+4*t+i}, v{src}")
    a.e(f"v_bfe_u32 v{TMP}, v1, 3, 1", "s_lshl_b32 s50, s3, 1", f"v_add_u32 v{TMP}, s50, v{TMP}",
        f"v_cvt_f32_u32 v{TMP}, v{TMP}", f"v_mul_f32 v{TMP}, {f32hex(4/512)}, v{TMP}")
    for r in range(4):
        a.e(f"v_add_f32 v{TMP+4+r}, {f32hex(float(r)) if r else 0}, v{T+2}")
    for aa in range(4):
        a.e(f"v_add_f32 v{TMP+1}, {f32hex(aa/512) if aa else 0}, v{TMP}")
        for r in range(4):
            a.e(f"v_mul_f32 v{T+3+(r&1)}, v{TMP+1}, v{TMP+4+r}",
                f"v_cos_f32 v{F_TWC+4*aa+r}, v{T+3+(r&1)}", f"v_sin_f32 v{F_TWS+4*aa+r}, v{T+3+(r&1)}")

def f8_run(a, SIN, SOUT, ldmod, stmod, sT0=None):
    TMP = F_TMP
    ld = lambda aa, i: f"buffer_load_dword v{F_IN+4*aa+i}, v{F_IN0}, s[{SIN}:{SIN+3}], s{SI_OFF+4*aa+i} offen {ldmod}"
    order = [0, 1, 2, 3]
    if sT0 is None:
        for aa in range(4):
            for i in range(4): a.e(ld(aa, i))
    else:
        order = [1, 2, 3, 0]
        for aa in (1, 2, 3):
            for i in range(4): a.e(ld(aa, i))
        for i in (1, 2, 3): a.e(ld(0, i))
        L, Ld = newlbl("t0p"), newlbl("t0d")
        a.e("s_cmp_lg_u32 s3, 0", f"s_cbranch_scc1 {Ld}", f"s_cmp_eq_u32 s{sT0}, 0", f"s_cbranch_scc1 {Ld}",
            f"v_mov_b32 v{TMP}, {SY_A2}", "s_mov_b32 s48, 0")
        a.label(L)
        a.e(f"buffer_load_dword v{TMP+1}, v{TMP}, s[{S_SYN}:{S_SYN+3}], 0 offen sc1", "s_add_u32 s48, s48, 1", "s_waitcnt vmcnt(0)",
            f"v_readfirstlane_b32 s49, v{TMP+1}", f"s_cmp_eq_u32 s49, s{S_TGT}", f"s_cbranch_scc1 {Ld}",
            f"s_cmp_lt_u32 s48, {SPIN_LIMIT}", f"s_cbranch_scc1 {L}")
        a.label(Ld)
        a.e(ld(0, 0))
    fstamp(a, 3)
    for n_, aa in enumerate(order):
        a.e(f"s_waitcnt vmcnt({12-4*n_})")
        a.e(f"v_mfma_f32_16x16x32_bf16 {v(F_DRE+4*aa,4)}, {v(F16RE,4)}, {v(F_IN+4*aa,4)}, 0",
            f"v_mfma_f32_16x16x32_bf16 {v(F_DIM+4*aa,4)}, {v(F16IM,4)}, {v(F_IN+4*aa,4)}, 0")
    fstamp(a, 1)
    for aa in range(4):
        for p in range(2):
            re, im = F_DRE+4*aa+2*p, F_DIM+4*aa+2*p
            tc, ts = F_TWC+4*aa+2*p, F_TWS+4*aa+2*p
            t0, t1 = TMP+4*p, TMP+4*p+2
            a.e(f"v_pk_mul_f32 {v(t0,2)}, {v(re,2)}, {v(tc,2)}",
                f"v_pk_mul_f32 {v(t1,2)}, {v(im,2)}, {v(tc,2)}",
                f"v_pk_fma_f32 {v(t0,2)}, {v(im,2)}, {v(ts,2)}, {v(t0,2)}",
                f"v_pk_fma_f32 {v(t1,2)}, {v(re,2)}, {v(ts,2)}, {v(t1,2)} neg_lo:[1,0,0] neg_hi:[1,0,0]")
            for e in range(2):
                r = 2*p+e
                a.e(f"v_cvt_pk_bf16_f32 v{F_P+4*r+aa}, v{t0+e}, v{t1+e}")
    for r in range(4):
        a.e(f"ds_write_b128 v{F_WR}, {v(F_P+4*r,4)} offset:{r*1024}")
    a.e("s_waitcnt lgkmcnt(0)")
    fstamp(a, 8)
    a.e("s_barrier")
    fstamp(a, 9)
    for b in range(2):
        a.e(f"ds_read_b128 {v(F_IN+8*b,4)}, v{F_RD0} offset:{b*2048}",
            f"ds_read_b128 {v(F_IN+8*b+4,4)}, v{F_RD1} offset:{b*2048}")
    for b in range(2):
        a.e(f"s_waitcnt lgkmcnt({2-2*b})")
        for t in range(2):
            for h in range(2):
                for (D_, F_) in ((F_DRE, F32RE), (F_DIM, F32IM)):
                    d = D_+8*b+4*h
                    c = "0" if t == 0 else v(d, 4)
                    a.e(f"v_mfma_f32_16x16x32_bf16 {v(d,4)}, {v(F_IN+8*b+4*t,4)}, {v(F_+8*h+4*t,4)}, {c}")
    fstamp(a, 10)
    for b in range(2):
        for h in range(2):
            idx = 8*b+4*h
            for r in range(4):
                a.e(f"v_cvt_pk_bf16_f32 v{F_P+idx+r}, v{F_DRE+idx+r}, -v{F_DIM+idx+r}")
            a.e(f"buffer_store_dwordx4 {v(F_P+idx,4)}, v{F_OUTOFF}, s[{SOUT}:{SOUT+3}], s{SO_LIST[2*b+h]} offen {stmod}")

def f256_loads(a, SX, s_sa, s_cb, mod):
    a.e(f"v_and_b32 v{F_M}, 15, v1", f"v_lshrrev_b32 v{F_G}, 4, v1",
        f"v_lshlrev_b32 v{F_IN0}, 20, v{F_G}", f"v_lshl_add_u32 v{F_IN0}, v{F_M}, 2, v{F_IN0}")
    a.e(f"s_lshl_b32 s48, s{s_sa}, 11", f"s_lshl_b32 s49, s{s_cb}, 6", "s_add_u32 s48, s48, s49",
        "s_lshl_b32 s50, s3, 16", "s_add_u32 s50, s50, s48")
    for aa in range(4):
        for i in range(4):
            a.e(f"s_add_u32 s{SI_OFF+4*aa+i}, s50, {(16*i+aa)*16384}",
                f"buffer_load_dword v{F_IN+4*aa+i}, v{F_IN0}, s[{SX}:{SX+3}], s{SI_OFF+4*aa+i} offen {mod}")

def f256_setup(a):
    T, TMP = F_T, F_TMP
    a.e(f"v_lshlrev_b32 v{F_OUTOFF}, 18, v{F_M}", f"v_lshl_add_u32 v{F_OUTOFF}, v{F_G}, 4, v{F_OUTOFF}",
        "s_lshl_b32 s50, s3, 16", "s_add_u32 s50, s50, s48")
    for b in range(4): a.e(f"s_add_u32 s{SO_LIST[b]}, s50, {b*16384}")
    a.e(f"v_bfe_u32 v{T}, v{F_M}, 1, 2", f"v_xor_b32 v{T+1}, s3, v{T}", f"v_lshlrev_b32 v{F_WR}, 4, v{T+1}",
        f"v_lshl_add_u32 v{F_WR}, v{F_M}, 6, v{F_WR}", f"v_lshl_add_u32 v{F_WR}, v{F_G}, 12, v{F_WR}",
        f"v_xor_b32 v{T+1}, v{F_G}, v{T}", f"v_lshlrev_b32 v{F_RD0}, 4, v{T+1}", f"v_lshl_add_u32 v{F_RD0}, v{F_M}, 6, v{F_RD0}",
        "s_lshl_b32 s50, s3, 12", f"v_add_u32 v{F_RD0}, s50, v{F_RD0}")
    XS, XB = T, T+1
    a.e(f"v_cvt_f32_u32 v{XS}, v{F_M}", f"v_mul_f32 v{XS}, {f32hex(1/16)}, v{XS}",
        f"v_cvt_f32_u32 v{T+2}, v{F_G}", f"v_mul_f32 v{T+2}, 4.0, v{T+2}", f"v_mul_f32 v{XB}, v{T+2}, v{XS}")
    for i in range(4):
        x = TMP+3*(i & 1)
        a.e(f"v_fmamk_f32 v{x}, v{XS}, {f32hex(float(i))}, v{XB}" if i else f"v_mov_b32 v{x}, v{XB}")
        a.e(f"v_cos_f32 v{x+1}, v{x}", f"v_sin_f32 v{x+2}, v{x}")
        a.e(f"v_cvt_pk_bf16_f32 v{F16RE+i}, v{x+1}, v{x+2}", f"v_cvt_pk_bf16_f32 v{F16IM+i}, -v{x+2}, v{x+1}")
    a.e(f"v_cvt_f32_u32 v{TMP}, s3", f"v_mul_f32 v{TMP}, {f32hex(4/256)}, v{TMP}")
    for r in range(4): a.e(f"v_add_f32 v{TMP+4+r}, {f32hex(float(r)) if r else 0}, v{T+2}")
    for aa in range(4):
        a.e(f"v_add_f32 v{TMP+1}, {f32hex(aa/256) if aa else 0}, v{TMP}")
        for r in range(4):
            a.e(f"v_mul_f32 v{T+3+(r&1)}, v{TMP+1}, v{TMP+4+r}",
                f"v_cos_f32 v{F_TWC+4*aa+r}, v{T+3+(r&1)}", f"v_sin_f32 v{F_TWS+4*aa+r}, v{T+3+(r&1)}")

def f256_run(a, SOUT, nafter):
    TMP = F_TMP
    stamp(a, 2)
    for aa in range(4):
        a.e(f"s_waitcnt vmcnt({12-4*aa+nafter})")
        a.e(f"v_mfma_f32_16x16x32_bf16 {v(F_DRE+4*aa,4)}, {v(F16RE,4)}, {v(F_IN+4*aa,4)}, 0",
            f"v_mfma_f32_16x16x32_bf16 {v(F_DIM+4*aa,4)}, {v(F16IM,4)}, {v(F_IN+4*aa,4)}, 0")
    stamp(a, 3)
    for aa in range(4):
        for p in range(2):
            re, im = F_DRE+4*aa+2*p, F_DIM+4*aa+2*p
            tc, ts = F_TWC+4*aa+2*p, F_TWS+4*aa+2*p
            t0, t1 = TMP+4*p, TMP+4*p+2
            a.e(f"v_pk_mul_f32 {v(t0,2)}, {v(re,2)}, {v(tc,2)}",
                f"v_pk_mul_f32 {v(t1,2)}, {v(im,2)}, {v(tc,2)}",
                f"v_pk_fma_f32 {v(t0,2)}, {v(im,2)}, {v(ts,2)}, {v(t0,2)}",
                f"v_pk_fma_f32 {v(t1,2)}, {v(re,2)}, {v(ts,2)}, {v(t1,2)} neg_lo:[1,0,0] neg_hi:[1,0,0]")
            for e in range(2):
                r = 2*p+e
                a.e(f"v_cvt_pk_bf16_f32 v{F_P+4*r+aa}, v{t0+e}, v{t1+e}")
    for r in range(4):
        a.e(f"ds_write_b128 v{F_WR}, {v(F_P+4*r,4)} offset:{r*1024}")
    a.e("s_waitcnt lgkmcnt(0)", "s_barrier")
    for b in range(4):
        a.e(f"ds_read_b128 {v(F_IN+4*b,4)}, v{F_RD0} offset:{b*1024}")
    for b in range(4):
        a.e(f"s_waitcnt lgkmcnt({3-b})")
        a.e(f"v_mfma_f32_16x16x32_bf16 {v(F_DRE+4*b,4)}, {v(F_IN+4*b,4)}, {v(F16RE,4)}, 0",
            f"v_mfma_f32_16x16x32_bf16 {v(F_DIM+4*b,4)}, {v(F_IN+4*b,4)}, {v(F16IM,4)}, 0")
    for b in range(4):
        for r in range(4):
            a.e(f"v_cvt_pk_bf16_f32 v{F_P+4*b+r}, v{F_DRE+4*b+r}, v{F_DIM+4*b+r}")
        a.e(f"buffer_store_dwordx4 {v(F_P+4*b,4)}, v{F_OUTOFF}, s[{SOUT}:{SOUT+3}], s{SO_LIST[b]} offen sc1")

IDX, G_, VG, VGW, VRR, VHR, VST, VW = 2, 3, 6, 7, 8, 12, 13, 14
CRE, CIM, TWC, TWS, WR, WI, ARE, AIM, DF, GA, HRE, HIM, GB, TMP = 16, 32, 48, 64, 80, 96, 112, 128, 144, 160, 164, 168, 172, 188
W2R, W2I, SP, PF, PF2 = 204, 220, 236, 248, 252
GA2 = 204
LW = 32768; LSC = 16384; LW2 = 49152

def w_dma(a, SWR, SWI, s_rowoff, s_mirroff, s_ldsbase, vlane16):
    a.e(f"s_mov_b32 m0, s{s_ldsbase}", f"buffer_load_dwordx4 v{vlane16}, s[{SWR}:{SWR+3}], s{s_rowoff} offen lds" + NT())
    a.e(f"s_add_u32 s93, s{s_ldsbase}, 1024", "s_mov_b32 m0, s93", f"buffer_load_dwordx4 v{vlane16}, s[{SWI}:{SWI+3}], s{s_rowoff} offen lds" + NT())
    a.e(f"s_add_u32 s92, s{s_mirroff}, 2")
    a.e(f"s_add_u32 s93, s{s_ldsbase}, 2048", "s_mov_b32 m0, s93", f"buffer_load_dwordx4 v{vlane16}, s[{SWR}:{SWR+3}], s92 offen lds" + NT())
    a.e(f"s_add_u32 s93, s{s_ldsbase}, 3072", "s_mov_b32 m0, s93", f"buffer_load_dwordx4 v{vlane16}, s[{SWI}:{SWI+3}], s92 offen lds" + NT())

def pf_loads(a, SWR, SWI, s_rowoff, s_mirroff, dst, vt):
    a.e(f"v_mov_b32 v{vt}, s{s_mirroff}", f"v_mov_b32 v{vt+1}, s{s_rowoff}", f"v_add_u32 v{vt+1}, 1024, v{vt+1}")
    a.e(f"buffer_load_short_d16_hi v{dst}, v{vt}, s[{SWR}:{SWR+3}], 0 offen",
        f"buffer_load_short_d16_hi v{dst+1}, v{vt}, s[{SWI}:{SWI+3}], 0 offen",
        f"buffer_load_short_d16_hi v{dst+2}, v{vt+1}, s[{SWR}:{SWR+3}], 0 offen",
        f"buffer_load_short_d16_hi v{dst+3}, v{vt+1}, s[{SWI}:{SWI+3}], 0 offen")

def w_lds_reads(a, vlo, vhi, dr, di):
    for (dst, o) in ((dr, 0), (di, 1024)):
        for r in range(16):
            e = eidx(r)
            if r < 8: a.e(f"ds_read_u16_d16_hi v{dst+r}, v{vlo} offset:{o+64*e}")
            else:     a.e(f"ds_read_u16_d16_hi v{dst+r}, v{vhi} offset:{o+64*(27-e)}")

def fix_w(a, dr, di, pf):
    a.e("v_cmp_eq_u32 vcc, 0, v1")
    for (r, o) in ((0, 0), (8, 2)):
        a.e(f"v_add_f32 v{TMP}, v{dr+r}, v{pf+o}", f"v_mul_f32 v{TMP}, 0.5, v{TMP}",
            f"v_sub_f32 v{TMP+1}, v{di+r}, v{pf+o+1}", f"v_mul_f32 v{TMP+1}, 0.5, v{TMP+1}",
            f"v_cndmask_b32 v{dr+r}, v{dr+r}, v{TMP}, vcc", f"v_cndmask_b32 v{di+r}, v{di+r}, v{TMP+1}, vcc")

def fft1024(a, mid=None):
    for t in range(4):
        c0 = "0" if t == 0 else v(ARE, 16); c1 = "0" if t == 0 else v(AIM, 16)
        a.e(f"v_mfma_f32_32x32x16_bf16 {v(ARE,16)}, {v(DF+4*t,4)}, {v(CRE+4*t,4)}, {c0}",
            f"v_mfma_f32_32x32x16_bf16 {v(AIM,16)}, {v(DF+4*t,4)}, {v(CIM+4*t,4)}, {c1}")
    for p in range(8):
        re, im, tc, ts = ARE+2*p, AIM+2*p, TWC+2*p, TWS+2*p
        t0 = TMP+4*(p & 1); t1 = t0+2
        a.e(f"v_pk_mul_f32 {v(t0,2)}, {v(re,2)}, {v(tc,2)}",
            f"v_pk_mul_f32 {v(t1,2)}, {v(im,2)}, {v(tc,2)}",
            f"v_pk_fma_f32 {v(t0,2)}, {v(im,2)}, {v(ts,2)}, {v(t0,2)}",
            f"v_pk_fma_f32 {v(t1,2)}, {v(re,2)}, {v(ts,2)}, {v(t1,2)} neg_lo:[1,0,0] neg_hi:[1,0,0]")
        for e in range(2):
            a.e(f"v_cvt_pk_bf16_f32 v{DF+2*p+e}, v{t0+e}, v{t1+e}")
    for t in range(4):
        if mid and t == 1: mid()
        c0 = "0" if t == 0 else v(ARE, 16); c1 = "0" if t == 0 else v(AIM, 16)
        a.e(f"v_mfma_f32_32x32x16_bf16 {v(ARE,16)}, {v(CRE+4*t,4)}, {v(DF+4*t,4)}, {c0}",
            f"v_mfma_f32_32x32x16_bf16 {v(AIM,16)}, {v(CIM+4*t,4)}, {v(DF+4*t,4)}, {c1}")

def a2_consts(a, sT):
    a.e(f"v_and_b32 v{IDX}, 31, v1", f"v_lshrrev_b32 v{G_}, 5, v1")
    XS, XB = TMP, TMP+1
    a.e(f"v_cvt_f32_u32 v{TMP+2}, v{IDX}", f"v_cvt_f32_u32 v{TMP+3}, v{G_}", f"v_mul_f32 v{TMP+3}, 4.0, v{TMP+3}",
        f"v_mul_f32 v{XS}, {f32hex(1/32)}, v{TMP+2}", f"v_mul_f32 v{XB}, v{TMP+3}, v{XS}")
    a.e(f"v_and_b32 v{TMP+4}, 1, v{IDX}", f"v_mul_u32_u24 v{TMP+4}, 0x8000, v{TMP+4}", f"v_lshl_or_b32 v{TMP+4}, v{TMP+4}, 16, v{TMP+4}")
    for t in range(2):
        for i in range(4):
            c = float(8*t+i); x = TMP+5+3*(i & 1)
            a.e(f"v_fmamk_f32 v{x}, v{XS}, {f32hex(c)}, v{XB}" if c else f"v_mov_b32 v{x}, v{XB}")
            a.e(f"v_cos_f32 v{x+1}, v{x}", f"v_sin_f32 v{x+2}, v{x}")
            a.e(f"v_cvt_pk_bf16_f32 v{CRE+4*t+i}, v{x+1}, v{x+2}", f"v_cvt_pk_bf16_f32 v{CIM+4*t+i}, -v{x+2}, v{x+1}")
    for base in (CRE, CIM):
        for i in range(8):
            a.e(f"v_xor_b32 v{base+8+i}, v{TMP+4}, v{base+i}")
    a.e(f"v_mul_f32 v{XS}, {f32hex(1/1024)}, v{TMP+2}", f"v_mul_f32 v{XB}, v{TMP+3}, v{XS}")
    for r in range(16):
        c = float(eidx(r)); x = TMP+5+(r & 1)
        a.e(f"v_fmamk_f32 v{x}, v{XS}, {f32hex(c)}, v{XB}" if c else f"v_mov_b32 v{x}, v{XB}")
        a.e(f"v_cos_f32 v{TWC+r}, v{x}", f"v_sin_f32 v{TWS+r}, v{x}")
    LO, HI, Q, AV, XA0, XA1, E0, E1 = TMP, TMP+1, TMP+2, TMP+3, TMP+4, TMP+5, TMP+6, TMP+7
    JF, KEY, T2, PO, PAR, N16, G4, CS = [TMP+8+i for i in range(8)]
    Lspec, Ldone = newlbl("ghspec"), newlbl("ghdone")
    a.e(f"v_and_b32 v{LO}, 3, v{IDX}", f"v_bfe_u32 v{HI}, v{IDX}, 2, 2")
    a.e(f"v_and_b32 v{N16}, 15, v1", f"v_lshrrev_b32 v{G4}, 4, v1")
    a.e(f"s_cmp_eq_u32 s{sT}, 0", f"s_cbranch_scc1 {Lspec}")
    a.e(f"v_cvt_f32_u32 v{T2}, s{sT}", f"v_cvt_f32_u32 v{JF}, v{HI}", f"v_fmamk_f32 v{JF}, v{JF}, {f32hex(512.0)}, v{T2}",
        f"v_mul_f32 v{JF}, {f32hex(1/2048)}, v{JF}",
        f"v_lshlrev_b32 v{Q}, 3, v{LO}", "s_mov_b32 s50, 0x4631914C", f"v_lshrrev_b32 v{Q}, v{Q}, s50",
        f"v_mov_b32 v{AV}, 0.5", f"v_cmp_gt_u32 vcc, 16, v{IDX}", f"v_cndmask_b32 v{AV}, 0, v{AV}, vcc")
    for ks, Gd in ((0, GA), (1, GA2)):
        a.e(f"v_cvt_f32_u32 v{XA0}, v{G_}", f"v_add_f32 v{XA0}, v{XA0}, v{XA0}")
        if ks: a.e(f"v_add_f32 v{XA0}, 4.0, v{XA0}")
        a.e(f"v_add_f32 v{XA1}, 1.0, v{XA0}", f"v_mul_f32 v{XA0}, v{XA0}, v{JF}", f"v_mul_f32 v{XA1}, v{XA1}, v{JF}")
        for jj2 in range(4):
            for e in range(2):
                jj = 2*jj2+e
                xa = XA1 if jj >> 2 else XA0
                a.e(f"v_bfe_u32 v{E0+e}, v{Q}, {2*(jj&3)}, 2", f"v_cvt_f32_u32 v{E0+e}, v{E0+e}",
                    f"v_fmamk_f32 v{E0+e}, v{E0+e}, {f32hex(0.25)}, v{xa}", f"v_cos_f32 v{E0+e}, v{E0+e}",
                    f"v_mul_f32 v{E0+e}, v{E0+e}, v{AV}")
            a.e(f"v_cvt_pk_bf16_f32 v{Gd+jj2}, v{E0}, v{E1}")
    a.e(f"v_bfe_u32 v{HI}, v{N16}, 1, 2", f"v_cvt_f32_u32 v{KEY}, v{HI}", f"v_mul_f32 v{KEY}, {f32hex(1/2048)}, v{KEY}",
        f"v_and_b32 v{JF}, 1, v{G4}", f"v_cvt_f32_u32 v{JF}, v{JF}", f"v_fmamk_f32 v{JF}, v{JF}, {f32hex(1024.0)}, v{T2}",
        f"v_add_f32 v{XA1}, {f32hex(512.0)}, v{JF}", f"v_mul_f32 v{XA0}, v{JF}, v{KEY}", f"v_mul_f32 v{XA1}, v{XA1}, v{KEY}",
        f"v_lshrrev_b32 v{CS}, 1, v{G4}", f"v_lshrrev_b32 v{AV}, 3, v{N16}", f"v_cmp_eq_u32 vcc, v{CS}, v{AV}",
        f"v_mov_b32 v{AV}, {f32hex(2.0**-21)}", f"v_cndmask_b32 v{AV}, 0, v{AV}, vcc",
        f"v_and_b32 v{PO}, 1, v{N16}")
    for part, Hd in ((0, HRE), (1, HIM)):
        w0, w1 = (0x1C, 0xBC) if part == 0 else (0x61, 0x6B)
        a.e(f"v_mov_b32 v{Q}, {w0}", f"v_mov_b32 v{PAR}, {w1}", f"v_cmp_eq_u32 vcc, 1, v{PO}", f"v_cndmask_b32 v{Q}, v{Q}, v{PAR}, vcc")
        for jj2 in range(4):
            for e in range(2):
                jj = 2*jj2+e
                xa = XA1 if jj >> 2 else XA0
                a.e(f"v_bfe_u32 v{E0+e}, v{Q}, {2*(jj&3)}, 2", f"v_cvt_f32_u32 v{E0+e}, v{E0+e}",
                    f"v_fmamk_f32 v{E0+e}, v{E0+e}, {f32hex(0.25)}, v{xa}", f"v_cos_f32 v{E0+e}, v{E0+e}",
                    f"v_mul_f32 v{E0+e}, v{E0+e}, v{AV}")
            a.e(f"v_cvt_pk_bf16_f32 v{Hd+jj2}, v{E0}, v{E1}")
    a.e(f"s_branch {Ldone}")
    a.label(Lspec)
    a.e(f"v_and_b32 v{PO}, 1, v{LO}", f"v_lshrrev_b32 v{PAR}, 1, v{LO}")
    a.e(f"v_lshlrev_b32 v{JF}, 2, v{HI}", "s_mov_b32 s50, 0x3120", f"v_lshrrev_b32 v{JF}, v{JF}, s50", f"v_and_b32 v{JF}, 15, v{JF}",
        f"v_lshlrev_b32 v{JF}, 8, v{JF}", f"v_lshlrev_b32 v{T2}, 10, v{PO}",
        f"v_cmp_eq_u32 vcc, 0, v{HI}", f"v_cndmask_b32 v{JF}, v{JF}, v{T2}, vcc", f"v_mov_b32 v{T2}, 0",
        f"v_cndmask_b32 v{Q}, v{PO}, v{T2}, vcc",
        f"v_cvt_f32_u32 v{JF}, v{JF}", f"v_mul_f32 v{JF}, {f32hex(1/2048)}, v{JF}",
        f"v_cvt_f32_u32 v{Q}, v{Q}", f"v_mul_f32 v{Q}, {f32hex(0.25)}, v{Q}",
        f"v_lshrrev_b32 v{T2}, 4, v{IDX}", f"v_lshl_add_u32 v{KEY}, v{T2}, 2, v{PAR}", f"v_mov_b32 v{T2}, 0")
    for ks, Gd in ((0, GA), (1, GA2)):
        a.e(f"v_cvt_f32_u32 v{XA0}, v{G_}", f"v_add_f32 v{XA0}, v{XA0}, v{XA0}")
        if ks: a.e(f"v_add_f32 v{XA0}, 4.0, v{XA0}")
        a.e(f"v_add_f32 v{XA1}, 1.0, v{XA0}",
            f"v_fma_f32 v{XA0}, v{XA0}, v{JF}, v{Q}", f"v_fma_f32 v{XA1}, v{XA1}, v{JF}, v{Q}",
            f"v_cos_f32 v{XA0}, v{XA0}", f"v_cos_f32 v{XA1}, v{XA1}")
        for jj2 in range(4):
            for e in range(2):
                jj = 2*jj2+e
                xa = XA1 if jj >> 2 else XA0
                a.e(f"v_cmp_eq_u32 vcc, {jj&3}, v{KEY}", f"v_cndmask_b32 v{E0+e}, v{T2}, v{xa}, vcc")
            a.e(f"v_cvt_pk_bf16_f32 v{Gd+jj2}, v{E0}, v{E1}")
    SAF, GS = JF, PAR
    a.e(f"v_bfe_u32 v{HI}, v{N16}, 1, 2", f"v_cvt_f32_u32 v{SAF}, v{HI}", f"v_mul_f32 v{SAF}, {f32hex(1/2048)}, v{SAF}",
        f"v_and_b32 v{GS}, 1, v{G4}", f"v_and_b32 v{PO}, 1, v{N16}",
        f"v_lshrrev_b32 v{CS}, 1, v{G4}", f"v_lshrrev_b32 v{T2}, 3, v{N16}",
        f"v_cmp_eq_u32 s[44:45], v{CS}, v{T2}", f"v_cmp_eq_u32 s[46:47], v{GS}, v{PO}", "s_and_b64 s[44:45], s[44:45], s[46:47]",
        f"v_cmp_eq_u32 s[46:47], 0, v{GS}")
    for part, Hd in ((0, HRE), (1, HIM)):
        for jj in range(8):
            sl, par, pi = jj >> 2, (jj >> 1) & 1, jj & 1
            e = E0 + (jj & 1)
            if par != part:
                a.e(f"v_mov_b32 v{e}, 0")
            else:
                if sl == 0:
                    j0, q0, a0 = 1024.0*pi, 0.5*pi, 2.0**-21
                    j1, q1, a1 = 256.0, 0.75*pi, 2.0**-20
                else:
                    j0, q0, a0 = 512.0, 0.75*pi, 2.0**-20
                    j1, q1, a1 = 768.0, 0.75*pi, 2.0**-20
                def sel(dst, x0, x1):
                    a.e(f"v_mov_b32 v{dst}, {f32hex(x1)}", f"v_mov_b32 v{AV}, {f32hex(x0)}", f"v_cndmask_b32 v{dst}, v{dst}, v{AV}, s[46:47]")
                sel(XA0, j0, j1); sel(XA1, q0 + 0.5*part, q1 + 0.5*part)
                a.e(f"v_fma_f32 v{XA0}, v{XA0}, v{SAF}, v{XA1}", f"v_cos_f32 v{XA0}, v{XA0}")
                sel(XA1, a0, a1)
                a.e(f"v_mul_f32 v{XA0}, v{XA0}, v{XA1}", f"v_mov_b32 v{XA1}, 0", f"v_cndmask_b32 v{e}, v{XA1}, v{XA0}, s[44:45]")
            if jj & 1: a.e(f"v_cvt_pk_bf16_f32 v{Hd+(jj>>1)}, v{E0}, v{E1}")
    a.label(Ldone)
    a.e("s_nop 1")


BT_S0, BT_S1, BT_S2, BT_S3 = 52, 56, 60, 64
BT_SOFF = ["0", "s68", "s69", "s70", "s71", "s76", "s77", "s78"]
BT_ROW, BT_CH, BT_MASK = 48, 49, 50
def bt_setup(a):
    a.e(f"s_lshl_b32 s{BT_ROW}, s{sSUBT}, 7", "s_lshl_b32 s51, s3, 5", f"s_add_u32 s{BT_ROW}, s{BT_ROW}, s51", f"s_lshl_b32 s{BT_CH}, s{sCBKT}, 6")
    for i in range(1, 8): a.e(f"s_mov_b32 {BT_SOFF[i]}, {4096*i}")
    a.e(f"s_mov_b32 s{BT_MASK}, 0xffff0000")

def scratch_addr(a, vdst, vcg, vrg):
    if OPT["fullline"]:
        a.e(f"s_lshl_b32 s51, s{sSUBT}, 7", "s_lshl_b32 s92, s3, 5", "s_add_u32 s51, s51, s92", "s_lshl_b32 s51, s51, 12",
            f"s_lshl_b32 s92, s{sCBKT}, 7", "s_add_u32 s51, s51, s92", "s_add_u32 s51, s51, 2048",
            f"v_lshrrev_b32 v{vdst}, 1, v{vcg}", f"v_lshlrev_b32 v{vdst}, 12, v{vdst}", f"v_lshl_add_u32 v{vdst}, v{vrg}, 4, v{vdst}",
            f"v_and_b32 v{vcg}, 1, v{vcg}", f"v_lshl_add_u32 v{vdst}, v{vcg}, 6, v{vdst}", f"v_add_u32 v{vdst}, s51, v{vdst}",
            "s_mov_b32 s32, 32768", "s_mov_b32 s33, 65536", "s_mov_b32 s34, 98304")
        return
    a.e(f"s_lshl_b32 s51, s{sSUBT}, 7", "s_lshr_b32 s92, s3, 1", "s_add_u32 s51, s51, s92", "s_lshl_b32 s51, s51, 12",
        f"s_lshl_b32 s92, s{sCBKT}, 7", "s_add_u32 s51, s51, s92", "s_and_b32 s92, s3, 1", "s_lshl_b32 s92, s92, 6", "s_add_u32 s51, s51, s92",
        "s_add_u32 s51, s51, 2048",
        f"v_lshlrev_b32 v{vdst}, 15, v{vcg}", f"v_lshl_add_u32 v{vdst}, v{vrg}, 4, v{vdst}", f"v_add_u32 v{vdst}, s51, v{vdst}")
def SCR(c):
    return ["0", "s32", "s33", "s34"][c] if OPT["fullline"] else ["0", "s69", "s71", "s77"][c]

def emit_B1(a, shadow=None, hook=None, post_mode=None, after_stores=None, nafter=0, after_loads=None, nyoung=0):
    SK, SV, SSH, SKVT = BT_S0, BT_S1, BT_S2, BT_S3
    srd(a, SK, P_K, P_K+1, 4*MB); srd(a, SV, P_V, P_V+1, 4*MB); srd(a, SSH, P_SHK, P_SHK+1, 8192); srd(a, SKVT, P_OUT, P_OUT+1, 8*MB)
    bt_setup(a)
    soff = BT_SOFF; M = BT_MASK
    CG, RG, S0, CH0, VOFF, VH, VST, VSH = 2, 3, 4, 5, 6, 7, 8, 9
    a.e(f"v_and_b32 v{CG}, 15, v1", f"v_lshrrev_b32 v{RG}, 4, v1",
        f"v_lshl_add_u32 v{S0}, v{RG}, 3, s{BT_ROW}", f"v_lshl_add_u32 v{CH0}, v{CG}, 2, s{BT_CH}",
        f"v_lshlrev_b32 v{VOFF}, 11, v{S0}", f"v_lshl_add_u32 v{VOFF}, v{CH0}, 1, v{VOFF}",
        f"v_subrev_u32 v{VH}, 6144, v{VOFF}",
        f"v_lshlrev_b32 v{VSH}, 3, v{CH0}")
    scratch_addr(a, VST, CG, RG)
    KR, VR, SHR, KF, SHF, KV, TM, PK = 16, 38, 54, 64, 108, 124, 156, 16
    if OPT["bactwait"] and OPT["b1all"]:
        Lw = newlbl("bw")
        a.e(f"s_cmp_eq_u32 s{sACT}, 0", f"s_cbranch_scc1 {Lw}", "s_waitcnt lgkmcnt(0)")
        a.label(Lw)
    if OPT["earlypub"]:
        Lp = newlbl("epub")
        a.e("s_cmp_lg_u32 s3, 0", f"s_cbranch_scc1 {Lp}")
        fin_epoch(a); loc_publish(a)
        a.label(Lp)
    a.e(f"buffer_load_dwordx4 {v(SHR,4)}, v{VSH}, s[{SSH}:{SSH+3}], 0 offen",
        f"buffer_load_dwordx4 {v(SHR+4,4)}, v{VSH}, s[{SSH}:{SSH+3}], 0 offen offset:16")
    for i in range(3):
        a.e(f"buffer_load_dwordx2 {v(KR+2*i,2)}, v{VH}, s[{SK}:{SK+3}], {soff[i>>1]} offen" + (" offset:2048" if i & 1 else "") + (NT() if OPT["ntk"] else ""))
    for i in range(8):
        a.e(f"buffer_load_dwordx2 {v(KR+6+2*i,2)}, v{VOFF}, s[{SK}:{SK+3}], {soff[i>>1]} offen" + (" offset:2048" if i & 1 else "") + (NT() if OPT["ntk"] else ""))
    for i in range(8):
        a.e(f"buffer_load_dwordx2 {v(VR+2*i,2)}, v{VOFF}, s[{SV}:{SV+3}], {soff[i>>1]} offen" + (" offset:2048" if i & 1 else "") + NT())
    if after_loads: after_loads()
    stamp(a, 2)
    if OPT["earlypub"]:
        Lq = newlbl("epub2")
        a.e("s_cmp_eq_u32 s3, 0", f"s_cbranch_scc1 {Lq}")
        fin_epoch(a)
        a.label(Lq)
    else:
        fin_epoch(a)
        loc_publish(a)
    if shadow: shadow()
    def wv(n, extra):
        n += nyoung
        if extra and not OPT["earlypub"]:
            L = newlbl("wv")
            a.e(f"s_cbranch_scc1 {L}", f"s_waitcnt vmcnt({n})")
            a.label(L)
            a.e(f"s_waitcnt vmcnt({n+extra})")
        elif extra == 2 and OPT["earlypub"]:
            L = newlbl("wv")
            a.e(f"s_cbranch_scc1 {L}", f"s_waitcnt vmcnt({n})")
            a.label(L)
            a.e(f"s_waitcnt vmcnt({n+1})")
        else:
            a.e(f"s_waitcnt vmcnt({n})")
    a.e("s_cmp_eq_u32 s3, 0")
    wv(19, 1)
    for ch in range(4):
        for j in range(4):
            src = SHR + 2*ch + (j >> 1)
            if j & 1: a.e(f"v_and_b32 v{SHF+4*j+ch}, s{M}, v{src}")
            else:     a.e(f"v_lshlrev_b32 v{SHF+4*j+ch}, 16, v{src}")
    for i in range(11):
        wv(18-i, 1)
        for hf in range(2):
            a.e(f"v_lshlrev_b32 v{KF+4*i+2*hf}, 16, v{KR+2*i+hf}", f"v_and_b32 v{KF+4*i+2*hf+1}, s{M}, v{KR+2*i+hf}")
    loc_issue(a, 10)
    a.e("s_cmp_eq_u32 s3, 0")
    for i in range(8):
        wv(7-i, 2)
        if i == 7 and hook: hook()
        for hf in range(2):
            a.e(f"v_lshlrev_b32 v{TM+2*hf}, 16, v{VR+2*i+hf}", f"v_and_b32 v{TM+2*hf+1}, s{M}, v{VR+2*i+hf}")
        for hf in range(2):
            acc = KV+4*i+2*hf
            a.e(f"v_pk_mul_f32 {v(acc,2)}, {v(KF+4*(i+3)+2*hf,2)}, {v(SHF+2*hf,2)}")
            for j in range(1, 4):
                a.e(f"v_pk_fma_f32 {v(acc,2)}, {v(KF+4*(i+3-j)+2*hf,2)}, {v(SHF+4*j+2*hf,2)}, {v(acc,2)}")
            a.e(f"v_pk_mul_f32 {v(acc,2)}, {v(acc,2)}, {v(TM+2*hf,2)}")
    stamp(a, 3)
    for ch in range(4):
        for m in range(4):
            a.e(f"v_cvt_pk_bf16_f32 v{PK+4*ch+m}, v{KV+4*(7-2*m)+ch}, v{KV+4*(6-2*m)+ch}")
    sts = [f"buffer_store_dwordx4 {v(PK+4*ch,4)}, v{VST}, s[{SKVT}:{SKVT+3}], {SCR(ch)} offen" for ch in range(4)]
    if OPT["twoflag"]:
        for l in sts: a.e(l + (" nt" if OPT["ntscr"] else ""))
        stamp(a, 4)
        a.e(f"s_lshl_b32 s51, s{sCBKT}, 4", f"s_add_u32 s51, s51, s{sSUBT}", f"s_lshl_b32 s51, s51, {FB()}", f"s_add_u32 s92, s51, {SY_B1}")
        La = newlbl("siga")
        a.e("s_waitcnt vmcnt(0)", "s_barrier", "s_cmp_lg_u32 s3, 0", f"s_cbranch_scc1 {La}",
            "v_mov_b32 v14, s92", f"v_mov_b32 v15, s{S_TGT}", "s_mov_b64 exec, 1",
            f"buffer_store_dword v15, v14, s[{S_SYN}:{S_SYN+3}], 0 offen", "s_mov_b64 exec, -1")
        a.label(La)
        if after_stores: after_stores()
        loc_resolve(a, 10, nafter=nafter + 1 if after_stores else 1)
        Lo = newlbl("opt")
        a.e(f"s_cmp_lg_u32 s{sLOC}, 0", f"s_cbranch_scc1 {Lo}", "s_waitcnt vmcnt(0)")
        for l in sts: a.e(l + " sc1")
        a.e(f"s_add_u32 s51, s51, {SY_B1B}")
        signal(a, 51, 14)
        a.label(Lo)
        return
    if OPT["optst"]:
        for l in sts: a.e(l)
        if after_stores: after_stores()
        loc_resolve(a, 10, nafter=nafter)
        Lo = newlbl("opt")
        a.e(f"s_cmp_lg_u32 s{sLOC}, 0", f"s_cbranch_scc1 {Lo}", "s_waitcnt vmcnt(0)")
        for l in sts: a.e(l + " sc1")
        a.e("s_waitcnt vmcnt(0)")
        a.label(Lo)
    else:
        loc_resolve(a, 10)
        dual_store(a, sts)
    stamp(a, 4)
    a.e(f"s_lshl_b32 s51, s{sCBKT}, 4", f"s_add_u32 s51, s51, s{sSUBT}", f"s_lshl_b32 s51, s51, {FB()}", f"s_add_u32 s51, s51, {SY_B1}")
    signal(a, 51, 14, nafter=nafter, bloc=True)

B3_QR, B3_VQ, B3_VT, B3_VO = 208, 224, 225, 226
def emit_B3_pre(a):
    SQ, STT, SOUT = BT_S0, BT_S1, BT_S2
    srd(a, SQ, P_Q, P_Q+1, 4*MB); srd(a, SOUT, P_OUT, P_OUT+1, 8*MB)
    bt_setup(a)
    t = 227
    a.e(f"v_and_b32 v{t}, 15, v1", f"v_lshrrev_b32 v{t+1}, 4, v1",
        f"v_lshl_add_u32 v{t+1}, v{t+1}, 3, s{BT_ROW}", f"v_lshl_add_u32 v{t}, v{t}, 2, s{BT_CH}",
        f"v_lshlrev_b32 v{B3_VQ}, 11, v{t+1}", f"v_lshl_add_u32 v{B3_VQ}, v{t}, 1, v{B3_VQ}",
        f"v_lshlrev_b32 v{B3_VO}, 12, v{t+1}", f"v_lshl_add_u32 v{B3_VO}, v{t}, 1, v{B3_VO}", f"v_add_u32 v{B3_VO}, 2048, v{B3_VO}")
    a.e(f"v_and_b32 v{t}, 15, v1", f"v_lshrrev_b32 v{t+1}, 4, v1")
    scratch_addr(a, B3_VT, t, t+1)
    for i in range(8):
        a.e(f"buffer_load_dwordx2 {v(B3_QR+2*i,2)}, v{B3_VQ}, s[{SQ}:{SQ+3}], {BT_SOFF[i>>1]} offen" + (" offset:2048" if i & 1 else "") + NT())

def emit_B3(a):
    SQ, STT, SOUT = BT_S0, BT_S1, BT_S2
    soff = BT_SOFF; M = BT_MASK
    TR, TF, QF = 16, 48, 80
    a.e(f"s_mov_b32 s{M}, 0xffff0000")
    a.e(f"s_lshl_b32 s51, s{sCBKT}, {4+FB()}", f"s_add_u32 s51, s51, {SY_B2}",
        "v_and_b32 v12, 15, v1", f"v_lshlrev_b32 v12, {FB()}, v12", "v_add_u32 v12, s51, v12")
    a.e("s_waitcnt vmcnt(0)")
    for e in range(8):
        qf = QF + 4*e
        for hf in range(2):
            a.e(f"v_lshlrev_b32 v{qf+2*hf}, 16, v{B3_QR+2*e+hf}", f"v_and_b32 v{qf+2*hf+1}, s{M}, v{B3_QR+2*e+hf}")
    wait_flags(a, 12, 1, 13, 51)
    stamp(a, 10)
    for ch in range(4):
        a.e(f"buffer_load_dwordx4 {v(TR+4*ch,4)}, v{B3_VT}, s[{SOUT}:{SOUT+3}], {SCR(ch)} offen" + LDL())
    for ch in range(4):
        a.e(f"s_waitcnt vmcnt({3-ch})")
        for e in range(8):
            src = TR+4*ch+(e >> 1)
            if e & 1: a.e(f"v_and_b32 v{TF+4*e+ch}, s{M}, v{src}")
            else:     a.e(f"v_lshlrev_b32 v{TF+4*e+ch}, 16, v{src}")
    a.e("s_barrier")
    for e in range(8):
        qf = QF + 4*e
        for hf in range(2):
            a.e(f"v_pk_mul_f32 {v(qf+2*hf,2)}, {v(qf+2*hf,2)}, {v(TF+4*e+2*hf,2)}")
        pk = 112+2*e
        for hf in range(2):
            a.e(f"v_cvt_pk_bf16_f32 v{pk+hf}, v{qf+2*hf}, v{qf+2*hf+1}")
        a.e(f"buffer_store_dwordx2 {v(pk,2)}, v{B3_VO}, s[{SOUT}:{SOUT+3}], {soff[e]} offen" + NTOB())

def gen_A(a):
    ROLE[0] = 'A'
    SX, SI1, SWR, SWI, SI2, SOUT = 32, 36, 80, 84, 32, 36
    a.e(f"s_setprio {OPT['prioA']}") if OPT['prioA'] else None
    sT, sSA, sCB, sJ, sJM, sJP, sJQ, sTL = 40, 41, 42, 43, 72, 73, 74, 44
    def rows():
        srd(a, SI1, P_WS, P_WS+1, 4*MB, add=WS_I1)
        srd(a, SWR, P_WR, P_WR+1, WBYTES); srd(a, SWI, P_WI, P_WI+1, WBYTES)
        Lr = newlbl("reg")
        a.e("s_lshl_b32 s47, s3, 9", f"s_add_u32 s{sJ}, s{sT}, s47", f"s_mov_b32 s{sJP}, s{sT}", f"s_sub_u32 s{sJQ}, 512, s{sT}",
            f"s_cmp_lg_u32 s{sT}, 0", f"s_cbranch_scc1 {Lr}",
            f"s_mov_b32 s{sJQ}, 256", "s_lshl_b32 s47, s3, 2", "s_lshr_b32 s46, 0x3120, s47", "s_and_b32 s46, s46, 15", f"s_lshl_b32 s{sJ}, s46, 8")
        a.label(Lr)
        a.e(f"s_sub_u32 s{sJM}, 2048, s{sJ}", f"s_and_b32 s{sJM}, s{sJM}, 2047",
            f"s_mul_i32 s{sJ}, s{sJ}, 1026", f"s_mul_i32 s{sJM}, s{sJM}, 1026")
        a.e(f"s_or_b32 s75, s{sT}, s3")
    def wstage():
        a.e("v_lshlrev_b32 v243, 4, v1", "s_lshl_b32 s46, s3, 12", f"s_add_u32 s46, s46, {LW}")
        w_dma(a, SWR, SWI, sJ, sJM, 46, 243)
        pf_loads(a, SWR, SWI, sJ, sJM, PF, 244)
        if not OPT["spec2"]: wstage2()
    def wstage2():
        Ln = newlbl("now2")
        a.e("s_cmp_lg_u32 s75, 0", f"s_cbranch_scc1 {Ln}")
        a.e("v_lshlrev_b32 v243, 4, v1", f"s_mov_b32 s47, {1024*1026}", f"s_mov_b32 s46, {LW2}")
        w_dma(a, SWR, SWI, 47, 47, 46, 243)
        pf_loads(a, SWR, SWI, 47, 47, PF2, 244)
        a.label(Ln)
    if OPT["pairx"]:
        a.e(f"s_and_b32 s48, s{sCU}, 7", "s_lshl_b32 s48, s48, 4", f"s_lshr_b32 s49, s{sCU}, 4", "s_add_u32 s48, s48, s49",
            "s_sub_u32 s49, 256, s48", "s_cmp_eq_u32 s48, 0", "s_cselect_b32 s49, 128, s49",
            f"s_bitcmp1_b32 s{sCU}, 3", f"s_cselect_b32 s{sT}, s49, s48")
    else:
        a.e(f"s_mov_b32 s{sT}, s{sCU}")
    stamp(a, 0, True); stamp(a, 1)
    Lp1 = newlbl("nop1")
    if OPT["pA1a"] >= 0: a.e(f"s_setprio {OPT['pA1a']}")
    srd(a, SX, P_X, P_X+1, 4*MB)
    a.e(f"s_lshr_b32 s48, s{sCU}, 3", f"s_and_b32 s49, s{sCU}, 7", f"s_lshr_b32 s{sSA}, s48, 2", "s_bfe_u32 s50, s48, 0x10001",
        "s_lshl_b32 s50, s50, 3", "s_add_u32 s50, s50, s49", "s_lshl_b32 s50, s50, 1", "s_and_b32 s51, s48, 1", f"s_add_u32 s{sCB}, s50, s51")
    f256_loads(a, SX, sSA, sCB, NT() if OPT["ntx"] else "")
    stamp(a, 12)
    f256_setup(a)
    rows()
    wstage2()
    f256_run(a, SI1, 0)
    stamp(a, 4)
    if OPT["cearly"]:
        a.e("s_nop 1")
        a2_consts(a, sT)
    a.e(f"s_lshl_b32 s48, s{sCU}, {FA()}", f"s_add_u32 s48, s48, {SY_A1}")
    fin_epoch(a)
    signal(a, 48, 240)
    a.label(Lp1)
    pair_pubA(a)
    if OPT["pA1i"] >= 0 or OPT["pA1a"] >= 0: a.e(f"s_setprio {OPT['prioA']}")
    stamp(a, 5)
    if OPT["wlate"] == 2: wstage()
    srd(a, SI2, P_WS, P_WS+1, 4*MB, add=WS_I2)
    if not OPT["cearly"]: a2_consts(a, sT)
    a.e(f"v_lshl_add_u32 v{TMP}, v{G_}, 7, v{IDX}",
        "s_lshl_b32 s48, s3, 12", f"s_add_u32 s48, s48, {LW}",
        f"v_lshl_add_u32 v{VW}, v{TMP}, 1, s48",
        f"v_sub_u32 v{TMP+1}, {1023-32*27}, v{TMP}", f"s_add_u32 s49, s48, 2048", f"v_lshl_add_u32 v{VW+1}, v{TMP+1}, 1, s49")
    a.e(f"v_lshlrev_b32 v{VG}, 12, v{G_}", f"v_lshl_add_u32 v{VG}, v{IDX}, 2, v{VG}",
        "s_lshl_b32 s49, s3, 9",
        f"s_lshl_b32 s52, s{sJP}, 13", "s_add_u32 s52, s52, s49",
        f"s_lshl_b32 s53, s{sJQ}, 13", "s_add_u32 s53, s53, s49")
    a.e(f"s_lshl_b32 s54, s{sT}, 14", "s_add_u32 s54, s54, s49", f"s_sub_u32 s55, 256, s{sT}", "s_and_b32 s55, s55, 255", "s_lshl_b32 s55, s55, 14", "s_add_u32 s55, s55, s49",
        "s_add_u32 s56, s54, 8192", "s_add_u32 s57, s55, 8192")
    a.e(f"v_lshlrev_b32 v{VGW}, 12, v{G_}", f"v_lshl_add_u32 v{VGW}, v{IDX}, 3, v{VGW}", "s_lshl_b32 s50, s3, 10", f"v_add_u32 v{VGW}, s50, v{VGW}",
        f"v_lshlrev_b32 v{VRR}, 9, v{G_}", f"v_lshl_add_u32 v{VRR}, v{IDX}, 2, v{VRR}", "s_lshl_b32 s51, s3, 12", f"v_add_u32 v{VRR}, s51, v{VRR}")
    for t in range(1, 4): a.e(f"v_add_u32 v{VRR+t}, {1024*t}, v{VRR}")
    a.e(f"v_lshrrev_b32 v{TMP}, 4, v1", f"v_and_b32 v{TMP+1}, 1, v{TMP}", f"v_lshlrev_b32 v{VHR}, 13, v{TMP+1}",
        f"v_lshrrev_b32 v{TMP+1}, 1, v{TMP}", f"v_lshl_add_u32 v{VHR}, v{TMP+1}, 7, v{VHR}",
        f"v_and_b32 v{TMP+1}, 15, v1", f"v_lshl_add_u32 v{VHR}, v{TMP+1}, 3, v{VHR}", f"v_add_u32 v{VHR}, s50, v{VHR}")
    a.e(f"v_and_b32 v{TMP+2}, 1, v{TMP+1}", f"v_mov_b32 v{TMP+3}, s52", f"v_mov_b32 v{TMP+4}, s53",
        f"v_cmp_eq_u32 vcc, 1, v{TMP+2}", f"v_cndmask_b32 v{VST}, v{TMP+3}, v{TMP+4}, vcc",
        f"v_bfe_u32 v{TMP+2}, v{TMP+1}, 1, 2", f"v_lshl_add_u32 v{VST}, v{TMP+2}, 11, v{VST}",
        f"v_lshrrev_b32 v{TMP+2}, 3, v{TMP+1}", f"v_lshl_add_u32 v{VST}, v{TMP+2}, 6, v{VST}",
        f"v_lshl_add_u32 v{VST}, v{TMP}, 4, v{VST}")
    a.e(f"v_lshlrev_b32 v{TMP}, {FA()}, v1", f"v_add_u32 v{TMP}, {SY_A1}, v{TMP}")
    stamp(a, 6)
    wait_flags(a, TMP, 4, TMP+1, 48)
    if OPT["yieldB"] == 1: a_state(a, sCU, 1, TMP)
    stamp(a, 7)
    def gfrag(u, ks): return (GB if u < 2 else DF) + 8*(u & 1) + 4*ks
    for u in range(4):
        for ks in range(2):
            for sl in range(2):
                for pq in range(2):
                    a.e(f"buffer_load_dword v{gfrag(u,ks)+2*sl+pq}, v{VG}, s[{SI1}:{SI1+3}], s{54+2*ks+pq} offen offset:{2048*sl+128*u} " + GLD())
    NWL = 0
    if OPT["wlate"] == 1:
        wstage(); NWL = 8
        if not OPT["spec2"]:
            Lsw = newlbl("spw")
            a.e("s_cmp_lg_u32 s75, 0", f"s_cbranch_scc1 {Lsw}", "s_waitcnt vmcnt(0)")
            a.label(Lsw)
    for rnd in range(2):
        a.e(f"s_waitcnt vmcnt({16-16*rnd+NWL})")
        if rnd == OPT.get("yat", 1) and OPT["yieldB"] == 3:
            a_state(a, sCU, 1, 240)
        for uu in range(2):
            u = 2*rnd+uu
            D = ARE if uu == 0 else AIM
            a.e(f"v_mfma_f32_32x32x16_bf16 {v(D,16)}, {v(GA,4)}, {v(gfrag(u,0),4)}, 0",
                f"v_mfma_f32_32x32x16_bf16 {v(D,16)}, {v(GA2,4)}, {v(gfrag(u,1),4)}, {v(D,16)}")
        for uu in range(2):
            u = 2*rnd+uu
            D = ARE if uu == 0 else AIM
            t = TMP+4*uu
            for h in range(2):
                a.e(f"v_cvt_pk_bf16_f32 v{t}, v{D+4*h}, v{D+4*h+1}", f"v_cvt_pk_bf16_f32 v{t+1}, v{D+4*h+2}, v{D+4*h+3}",
                    f"ds_write_b64 v{VGW}, {v(t,2)} offset:{256*u+8192*h}")
                t += 2
    a.e("s_waitcnt lgkmcnt(0)", "s_barrier")
    stamp(a, 8)
    if OPT["qA"] and not OPT["a3all"]:
        Lq = newlbl("noqA")
        a.e(f"s_cmp_lg_u32 s{sACT}, 0", f"s_cbranch_scc1 {Lq}")
        emit_B3_pre(a)
        a.label(Lq)
    for t in range(4):
        a.e(f"ds_read2_b32 {v(DF+4*t,2)}, v{VRR+t} offset0:0 offset1:32", f"ds_read2_b32 {v(DF+4*t+2,2)}, v{VRR+t} offset0:64 offset1:96")
    a.e("s_waitcnt lgkmcnt(0)")
    Lsp, Linv, Lfwd, Lpre = newlbl("special"), newlbl("inv"), newlbl("fwd"), newlbl("pre")
    sPASS = 45
    if OPT["spec2"]:
        a.e(f"s_mov_b32 s{sPASS}, 0", "s_cmp_lg_u32 s75, 0", f"s_cbranch_scc1 {Lpre}")
        for i in range(16): a.e(f"v_lshrrev_b32 v{GB+i}, 16, v{DF+i}", f"v_and_b32 v{DF+i}, 0xffff, v{DF+i}")
        a.label(Lpre)
    def wmid():
        Lk = newlbl("wskip")
        if OPT["spec2"]: a.e(f"s_cmp_lg_u32 s{sPASS}, 0", f"s_cbranch_scc1 {Lk}")
        if OPT["qA"] and not OPT["a3all"]:
            L1, L2 = newlbl("wa"), newlbl("wb")
            a.e(f"s_cmp_lg_u32 s{sACT}, 0", f"s_cbranch_scc1 {L1}", "s_waitcnt vmcnt(8)", f"s_branch {L2}")
            a.label(L1); a.e("s_waitcnt vmcnt(0)"); a.label(L2)
        else:
            a.e("s_waitcnt vmcnt(0)")
        w_lds_reads(a, VW, VW+1, WR, WI)
        a.label(Lk)
    if OPT["wlate"] == 1:
        a.label(Lfwd); a.e("s_nop 1")
        fft1024(a, mid=wmid)
    else:
        w_lds_reads(a, VW, VW+1, WR, WI)
        a.label(Lfwd); a.e("s_nop 1")
        fft1024(a)
    a.e("s_waitcnt lgkmcnt(0)")
    Lnf = newlbl("nofix")
    if OPT["spec2"]: a.e(f"s_cmp_lg_u32 s{sPASS}, 0", f"s_cbranch_scc1 {Lnf}")
    fix_w(a, WR, WI, PF)
    a.label(Lnf)
    a.e("s_cmp_eq_u32 s75, 0", f"s_cbranch_scc1 {Lsp}")
    for p in range(8):
        xr, xi, wr, wi = ARE+2*p, AIM+2*p, WR+2*p, WI+2*p
        t0 = TMP+4*(p & 1); t1 = t0+2
        n0 = " neg_lo:[1,0,0] neg_hi:[1,0,0]" if p < 4 else ""
        n1 = "" if p < 4 else " neg_lo:[1,0,0] neg_hi:[1,0,0]"
        a.e(f"v_pk_mul_f32 {v(t0,2)}, {v(xr,2)}, {v(wr,2)}", f"v_pk_mul_f32 {v(t1,2)}, {v(xi,2)}, {v(wr,2)}",
            f"v_pk_fma_f32 {v(t0,2)}, {v(xi,2)}, {v(wi,2)}, {v(t0,2)}{n0}",
            f"v_pk_fma_f32 {v(t1,2)}, {v(xr,2)}, {v(wi,2)}, {v(t1,2)}{n1}")
        for e in range(2):
            a.e(f"v_cvt_pk_bf16_f32 v{DF+2*p+e}, v{t0+e}, -v{t1+e}")
    a.label(Linv)
    a.e("s_nop 1")
    fft1024(a)
    for r in range(16):
        t = TMP + (r & 7)
        a.e(f"v_cvt_pk_bf16_f32 v{t}, v{ARE+r}, v{AIM+r}", f"ds_write_b32 v{VRR}, v{t} offset:{128*eidx(r)}")
    a.e("s_waitcnt lgkmcnt(0)", "s_barrier")
    if OPT["yieldB"]:
        Ly = newlbl("y0a")
        if OPT["y0"]: a.e(f"s_cmp_lg_u32 s{sT}, 0", f"s_cbranch_scc1 {Ly}")
        a_state(a, sCU, 2, TMP)
        a.label(Ly)
    stamp(a, 9)
    for u in range(4):
        for sl in range(2):
            a.e(f"ds_read_b64 {v(GB+4*u+2*sl,2)}, v{VHR} offset:{4096*sl+256*u}")
    a.e("s_lshl_b32 s49, s3, 9")
    for u in range(4):
        a.e(f"s_waitcnt lgkmcnt({6-2*u})")
        a.e(f"v_mfma_f32_16x16x32_bf16 {v(ARE+4*u,4)}, {v(GB+4*u,4)}, {v(HRE,4)}, 0",
            f"v_mfma_f32_16x16x32_bf16 {v(AIM+4*u,4)}, {v(GB+4*u,4)}, {v(HIM,4)}, 0")
    for u in range(4):
        for r in range(4):
            a.e(f"v_cvt_pk_bf16_f32 v{DF+4*u+r}, v{ARE+4*u+r}, v{AIM+4*u+r}")
        a.e(f"buffer_store_dwordx4 {v(DF+4*u,4)}, v{VST}, s[{SI2}:{SI2+3}], 0 offen offset:{128*u} sc1")
    dstamp(a, 6); dpublish(a, sT)
    a.e(f"s_lshl_b32 s48, s{sT}, {FA()}", f"s_add_u32 s48, s48, {SY_A2}")
    signal(a, 48, TMP)
    stamp(a, 10)
    Lb3 = newlbl("b3")
    if OPT["a3all"]:
        srd(a, SOUT, P_OUT, P_OUT+1, 8*MB)
        a.e(f"s_lshr_b32 s48, s{sCU}, 3", f"s_and_b32 s49, s{sCU}, 7", f"s_lshr_b32 s{sSA}, s48, 3", "s_bfe_u32 s50, s48, 0x10002",
            "s_lshl_b32 s50, s50, 3", "s_add_u32 s50, s50, s49", "s_lshl_b32 s50, s50, 2", "s_and_b32 s51, s48, 3", f"s_add_u32 s{sCB}, s50, s51")
        f8_addr(a, sSA, sCB, 4096, 16384)
        f8_consts(a)
        a.e(f"v_lshlrev_b32 v{F_TMP}, {FA()}, v1", f"v_add_u32 v{F_TMP}, {SY_A2}, v{F_TMP}")
        wait_flags(a, F_TMP, 4, F_TMP+1, 48, skip0=47 if OPT["t0late"] else None)
        stamp(a, 11)
        PHASE[0] = 3
        fstamp(a, 11)
        f8_run(a, SI2, SOUT, {0: "sc1", 1: "nt", 2: ""}[OPT["i2ld"]], NTO(), sT0=47 if OPT["t0late"] else None)
    else:
        a.e(f"s_cmp_eq_u32 s{sACT}, 0", f"s_cbranch_scc1 {Lb3}")
        srd(a, SOUT, P_OUT, P_OUT+1, 8*MB)
        fft512_addr(a, sSA, sCB)
        fft512_addr2(a, sSA, sCB, 4096, 16384)
        fft512_consts(a)
        a.e(f"v_lshlrev_b32 v{F_TMP}, {FA()}, v1", f"v_add_u32 v{F_TMP}, {SY_A2}, v{F_TMP}")
        wait_flags(a, F_TMP, 4, F_TMP+1, 48)
        stamp(a, 11)
        PHASE[0] = 3
        fstamp(a, 11)
        fft512_loads(a, SI2, "sc1")
        fstamp(a, 3)
        save = gen.PROF; gen.PROF = False
        fft512_compute(a, SOUT, True, 0, NTO(), 0)
        gen.PROF = save
    a.e("s_cmp_lg_u32 s75, 0", "s_cbranch_scc1 L_fin")
    Lb1, Lb2 = newlbl("bchk"), newlbl("bchkd")
    a.e("v_lshlrev_b32 v2, 6, v1", f"v_add_u32 v2, {SY_ID}, v2", f"s_lshl_b32 s49, s{S_TGT}, 4", "s_mov_b32 s48, 0")
    a.label(Lb1)
    NS = NMEM()*8//64
    for i in range(NS):
        a.e(f"s_mov_b32 s50, {4096*i}", f"buffer_load_dword v{4+i}, v2, s[{S_SYN}:{S_SYN+3}], s50 offen sc1")
    a.e("s_add_u32 s48, s48, 1", "s_waitcnt vmcnt(0)")
    for i in range(NS): a.e(f"v_xor_b32 v{4+i}, s49, v{4+i}")
    for i in range(1, NS): a.e(f"v_or_b32 v4, v4, v{4+i}")
    a.e("v_lshrrev_b32 v4, 4, v4", "v_cmp_ne_u32 vcc, 0, v4", f"s_cbranch_vccz {Lb2}", f"s_cmp_lt_u32 s48, {SPIN_LIMIT}", f"s_cbranch_scc1 {Lb1}")
    a.label(Lb2)
    dreduce(a)
    pair_sum(a)
    a.e(f"s_mov_b32 s48, {SY_E}")
    bump(a, 48, 2)
    a.e("s_branch L_fin")
    if not OPT["a3all"]:
        a.label(Lb3)
        if not OPT["qA"]: emit_B3_pre(a)
        emit_B3(a)
        a.e("s_branch L_fin")
    a.label(Lsp)
    if OPT["spec2"]:
        Lp1s = newlbl("sp1")
        NEG = " neg_lo:[1,0,0] neg_hi:[1,0,0]"
        a.e(f"s_cmp_lg_u32 s{sPASS}, 0", f"s_cbranch_scc1 {Lp1s}")
        a.e(f"v_lshl_add_u32 v{SP}, v{G_}, 7, v{IDX}", f"v_sub_u32 v{SP+1}, {1023-32*27}, v{SP}",
            f"s_mov_b32 s48, {LW2}", f"v_lshl_add_u32 v{SP+2}, v{SP}, 1, s48", f"s_mov_b32 s49, {LW2+2048}", f"v_lshl_add_u32 v{SP+3}, v{SP+1}, 1, s49")
        w_lds_reads(a, SP+2, SP+3, W2R, W2I)
        for p in range(8):
            xr, xi, wr, wi = ARE+2*p, AIM+2*p, WR+2*p, WI+2*p
            t0 = TMP+4*(p & 1); t1 = t0+2
            n0 = NEG if p < 4 else ""; n1 = "" if p < 4 else NEG
            a.e(f"v_pk_mul_f32 {v(t0,2)}, {v(xr,2)}, {v(wr,2)}", f"v_pk_mul_f32 {v(t1,2)}, {v(xi,2)}, {v(wr,2)}",
                f"v_pk_fma_f32 {v(wr,2)}, {v(xi,2)}, {v(wi,2)}, {v(t0,2)}{n0}",
                f"v_pk_fma_f32 {v(wi,2)}, {v(xr,2)}, {v(wi,2)}, {v(t1,2)}{n1}")
        for i in range(16): a.e(f"v_mov_b32 v{DF+i}, v{GB+i}")
        a.e(f"s_mov_b32 s{sPASS}, 1", f"s_branch {Lfwd}")
        a.label(Lp1s)
        fix_w(a, W2R, W2I, PF2)
        for p in range(8):
            xr, xi, br, bi, r1r, r1i = ARE+2*p, AIM+2*p, W2R+2*p, W2I+2*p, WR+2*p, WI+2*p
            t0 = TMP+4*(p & 1); t1 = t0+2
            n0 = NEG if p < 4 else ""; n1 = "" if p < 4 else NEG
            a.e(f"v_pk_mul_f32 {v(t0,2)}, {v(xr,2)}, {v(br,2)}", f"v_pk_mul_f32 {v(t1,2)}, {v(xi,2)}, {v(br,2)}",
                f"v_pk_fma_f32 {v(t0,2)}, {v(xi,2)}, {v(bi,2)}, {v(t0,2)}{n0}",
                f"v_pk_fma_f32 {v(t1,2)}, {v(xr,2)}, {v(bi,2)}, {v(t1,2)}{n1}",
                f"v_pk_add_f32 {v(t1,2)}, {v(r1r,2)}, {v(t1,2)} neg_lo:[0,1] neg_hi:[0,1]",
                f"v_pk_add_f32 {v(t0,2)}, {v(r1i,2)}, {v(t0,2)}")
            for e in range(2):
                a.e(f"v_cvt_pk_bf16_f32 v{DF+2*p+e}, v{t1+e}, -v{t0+e}")
        a.e(f"s_branch {Linv}")
        return
    a.e(f"v_lshl_add_u32 v{TMP}, v{G_}, 7, v{IDX}", f"v_sub_u32 v{TMP+1}, {1023-32*27}, v{TMP}",
        f"s_mov_b32 s48, {LW2}", f"v_lshl_add_u32 v{TMP+2}, v{TMP}, 1, s48", f"s_mov_b32 s49, {LW2+2048}", f"v_lshl_add_u32 v{TMP+3}, v{TMP+1}, 1, s49")
    w_lds_reads(a, TMP+2, TMP+3, W2R, W2I)
    a.e("s_waitcnt lgkmcnt(0)")
    fix_w(a, W2R, W2I, PF2)
    VS = SP; K0 = SP+1
    a.e(f"v_lshlrev_b32 v{VS}, 9, v{G_}", f"v_lshl_add_u32 v{VS}, v{IDX}, 2, v{VS}")
    for r in range(16):
        a.e(f"ds_write_b32 v{VS}, v{ARE+r} offset:{LSC+128*eidx(r)}", f"ds_write_b32 v{VS}, v{AIM+r} offset:{LSC+4096+128*eidx(r)}")
    a.e(f"v_lshl_add_u32 v{K0}, v{G_}, 7, v{IDX}", f"v_sub_u32 v{K0}, 1024, v{K0}", "s_waitcnt lgkmcnt(0)")
    for r in range(16):
        ad, rr, ri, ur, ui, vr, vi, o0, o1 = [SP+2+i for i in range(9)]
        a.e(f"v_subrev_u32 v{ad}, {32*eidx(r)}, v{K0}", f"v_and_b32 v{ad}, 1023, v{ad}", f"v_lshlrev_b32 v{ad}, 2, v{ad}",
            f"ds_read_b32 v{rr}, v{ad} offset:{LSC}", f"ds_read_b32 v{ri}, v{ad} offset:{LSC+4096}", "s_waitcnt lgkmcnt(0)")
        pr, pi_ = ARE+r, AIM+r
        a.e(f"v_add_f32 v{ur}, v{pr}, v{rr}", f"v_sub_f32 v{ui}, v{pi_}, v{ri}",
            f"v_sub_f32 v{vr}, v{pr}, v{rr}", f"v_add_f32 v{vi}, v{pi_}, v{ri}")
        sg = "-" if r < 8 else ""; ns = "" if r < 8 else "-"
        ar, ai, br, bi = WR+r, WI+r, W2R+r, W2I+r
        a.e(f"v_mul_f32 v{o0}, v{ur}, v{ar}", f"v_fma_f32 v{o0}, {sg}v{ui}, v{ai}, v{o0}",
            f"v_fma_f32 v{o0}, v{vr}, v{br}, v{o0}", f"v_fma_f32 v{o0}, {sg}v{vi}, v{bi}, v{o0}",
            f"v_mul_f32 v{o1}, v{ui}, v{ar}", f"v_fma_f32 v{o1}, {ns}v{ur}, v{ai}, v{o1}",
            f"v_fma_f32 v{o1}, v{vi}, v{br}, v{o1}", f"v_fma_f32 v{o1}, {ns}v{vr}, v{bi}, v{o1}",
            f"v_mul_f32 v{o0}, 0.5, v{o0}", f"v_mul_f32 v{o1}, 0.5, v{o1}",
            f"v_cvt_pk_bf16_f32 v{DF+r}, v{o0}, -v{o1}")
    a.e(f"s_branch {Linv}")

def h_dma(a, SH, sLB, sD4K):
    a.e("v_lshlrev_b32 v235, 4, v1")
    a.e(f"s_add_u32 s74, s{sLB}, 32", "s_mov_b32 m0, s74")
    for ch in range(4): a.e(f"buffer_load_dwordx4 v235, s[{SH}:{SH+3}], s{sD4K} offen offset:{1024*ch} lds" + (NT() if OPT["nth"] else ""))
    a.e(f"s_add_u32 s74, s{sLB}, 4192", f"s_add_u32 s75, s{sD4K}, 2", "s_mov_b32 m0, s74")
    for ch in range(4): a.e(f"buffer_load_dwordx4 v235, s[{SH}:{SH+3}], s75 offen offset:{1024*ch} lds" + (NT() if OPT["nth"] else ""))
    a.e("v_mov_b32 v233, 0x7ffffff0", f"v_mov_b32 v234, s{sD4K}", "v_cmp_eq_u32 vcc, 15, v1", "v_cndmask_b32 v233, v233, v234, vcc",
        f"buffer_load_short_d16_hi v230, v233, s[{SH}:{SH+3}], 0 offen")

def gen_B(a):
    ROLE[0] = 'B'
    SH, STT, SKVT = 80, 84, 32
    a.e(f"s_setprio {OPT['prioB']}") if OPT['prioB'] else None
    srd(a, SH, P_SSMK, P_SSMK+1, 4*MB); srd(a, STT, P_OUT, P_OUT+1, 8*MB)
    sCBK, sSUB, sD, sD4K, sLB, sDV, sF1, sF2, sMASK = 40, 41, 42, 43, 44, 45, 46, 47, 72
    a.e(f"s_and_b32 s{sCBK}, s2, 15",
        f"s_lshr_b32 s{sSUB}, s2, 4",
        f"s_lshl_b32 s{sD}, s{sCBK}, 4", f"s_add_u32 s{sD}, s{sD}, s{sSUB}", f"s_lshl_b32 s{sD}, s{sD}, 2", f"s_add_u32 s{sD}, s{sD}, s3",
        f"s_lshl_b32 s{sD4K}, s{sD}, 12", f"s_mul_i32 s{sLB}, s3, {LB_STRIDE}", f"s_mov_b32 s{sMASK}, 0xffff0000")
    sSB = 36
    if OPT["fullline"]:
        a.e(f"s_and_b32 s73, s{sD}, 3", "s_lshl_b32 s73, s73, 15", f"s_bfe_u32 s74, s{sD}, 0x30003", "s_lshl_b32 s74, s74, 12", "s_add_u32 s73, s73, s74",
            f"s_bfe_u32 s74, s{sD}, 0x10002", "s_lshl_b32 s74, s74, 6", "s_add_u32 s73, s73, s74",
            f"s_lshl_b32 s74, s{sCBK}, 7", "s_add_u32 s73, s73, s74", f"s_add_u32 s{sSB}, s73, 2048")
    else:
        a.e(f"s_and_b32 s73, s{sD}, 63", "s_lshl_b32 s73, s73, 13", f"s_lshl_b32 s74, s{sCBK}, 7", "s_add_u32 s73, s73, s74", f"s_add_u32 s{sSB}, s73, 2048")
    for i in range(1, 4): a.e(f"s_add_u32 s{sSB+i}, s{sSB}, {i*2*MB}")
    a.e(f"s_lshl_b32 s73, s{sCBK}, {4+FB()}", f"s_add_u32 s{sF1}, s73, {SY_B1}", f"s_lshl_b32 s74, s{sSUB}, {FB()}", "s_add_u32 s73, s73, s74", f"s_add_u32 s{sF2}, s73, {SY_B2}")
    a.e(f"s_and_b32 s73, s{sD}, 0xfffffffe", "s_lshl_b32 s73, s73, 1", f"s_load_dword s{sDV}, s[{P_SSMD}:{P_SSMD+1}], s73")
    stamp(a, 0, True); stamp(a, 1)
    Lidle, Lsetup = newlbl("bidle"), newlbl("bsetup")
    if OPT["pB1"]: a.e(f"s_setprio {OPT['pB1']}")
    if OPT["b1all"]:
        a.e(f"s_mov_b32 s{sCBKT}, s{sCBK}", f"s_mov_b32 s{sSUBT}, s{sSUB}")
        if OPT["hfirst"]:
            emit_B1(a, after_loads=lambda: h_dma(a, SH, sLB, sD4K), nyoung=9)
        elif OPT["hearly"] and not OPT["hlate"]:
            emit_B1(a, after_stores=lambda: h_dma(a, SH, sLB, sD4K), nafter=9)
        else:
            emit_B1(a)
            if not OPT["hlate"]: h_dma(a, SH, sLB, sD4K)
    else:
        a.e(f"s_cmp_lg_u32 s{sACT}, 0", f"s_cbranch_scc1 {Lidle}")
        if OPT["hearly"] and not OPT["hlate"]:
            emit_B1(a, after_stores=lambda: h_dma(a, SH, sLB, sD4K), nafter=9)
        else:
            emit_B1(a)
            if not OPT["hlate"]: h_dma(a, SH, sLB, sD4K)
        a.e(f"s_branch {Lsetup}")
        a.label(Lidle)
        if OPT["tlb"] or OPT["cpf"]: warm(a)
        fin_epoch(a)
        loc_publish(a)
        loc_issue(a, 10)
        loc_resolve(a, 10, barrier=False)
        if not OPT["hlate"]:
            for _ in range(OPT["hactdelay"]):
                a.e("v_and_b32 v12, 15, v1", f"v_lshlrev_b32 v12, {FB()}, v12", f"v_add_u32 v12, s{sF1}, v12",
                    f"buffer_load_dword v13, v12, s[{S_SYN}:{S_SYN+3}], 0 offen sc1", "s_waitcnt vmcnt(0)")
            h_dma(a, SH, sLB, sD4K)
    a.label(Lsetup)
    if OPT["pB1"]: a.e(f"s_setprio {OPT['prioB']}")
    stamp(a, 12)
    if OPT["yieldB"] >= 2 and OPT["yinit"]:
        a_state(a, sCU, 0, 233)
    LN16, B_, G4, VA, VB, VE, VS2, T = 2, 3, 4, 5, 9, 10, 11, 12
    a.e(f"v_lshlrev_b32 v{T}, 2, v1",
        f"v_add_u32 v{T+1}, {4160-32}, v{T}", "v_cmp_le_u32 vcc, 8, v1", f"v_cndmask_b32 v{T+3}, v{T}, v{T+1}, vcc",
        f"v_add_u32 v{T+1}, 8288, v{T}", "v_cmp_le_u32 vcc, 16, v1", f"v_cndmask_b32 v{T+3}, v{T+3}, v{T+1}, vcc",
        f"v_add_u32 v231, s{sLB}, v{T+3}")
    a.e(f"v_lshlrev_b32 v{T}, 3, v1", f"v_add_u32 v{T}, s{sLB}, v{T}", "v_mov_b32 v16, 0", "v_mov_b32 v17, 0", f"ds_write_b64 v{T}, v[16:17] offset:8288")
    a.e(f"v_and_b32 v{B_}, 15, v1", f"v_lshrrev_b32 v{G4}, 4, v1")
    a.e(f"v_and_b32 v{VA}, 1, v{B_}", f"v_xor_b32 v{VA}, 1, v{VA}", f"v_mul_u32_u24 v{VA}, 4160, v{VA}",
        f"v_add_u32 v{VA+1}, 1, v{B_}", f"v_lshrrev_b32 v{VA+1}, 1, v{VA+1}", f"v_lshl_add_u32 v{VA}, v{VA+1}, 2, v{VA}",
        f"v_lshlrev_b32 v{VA+1}, 4, v{G4}", f"v_sub_u32 v{VA}, v{VA}, v{VA+1}",
        f"s_add_u32 s73, s{sLB}, 16", f"v_add_u32 v{VA}, s73, v{VA}")
    for pp in range(1, 4): a.e(f"v_add_u32 v{VA+pp}, {1024*pp}, v{VA}")
    a.e(f"v_lshlrev_b32 v{VB}, 5, v{B_}", f"v_lshl_add_u32 v{VB}, v{G4}, 4, v{VB}",
        f"s_add_u32 s73, s{sLB}, {8800-480}", f"v_add_u32 v{VB}, s73, v{VB}")
    a.e(f"v_lshrrev_b32 v18, 1, v{G4}", f"v_lshlrev_b32 v19, 4, v18", f"v_lshl_add_u32 v19, v{B_}, 5, v19",
        f"v_and_b32 v18, 1, v{G4}", "v_xor_b32 v18, 1, v18", f"v_lshl_add_u32 v19, v18, 3, v19",
        f"s_add_u32 s73, s{sLB}, 8800", f"v_add_u32 v232, s73, v19")
    if OPT["fullline"]:
        a.e(f"v_lshrrev_b32 v18, 3, v{B_}", f"v_lshlrev_b32 v{VS2}, 19, v18", f"v_bfe_u32 v18, v{B_}, 1, 2", f"v_lshl_add_u32 v{VS2}, v18, 17, v{VS2}",
            f"v_and_b32 v18, 1, v{G4}", f"v_lshl_add_u32 v{VS2}, v18, 20, v{VS2}", f"v_and_b32 v18, 1, v{B_}", f"v_lshl_add_u32 v{VS2}, v18, 5, v{VS2}",
            f"v_lshrrev_b32 v18, 1, v{G4}", f"v_lshl_add_u32 v{VS2}, v18, 4, v{VS2}")
        a.e(f"v_lshlrev_b32 v{LN16}, 19, v{G4}", "v_bfe_u32 v18, v1, 2, 2", f"v_lshl_add_u32 v{LN16}, v18, 17, v{LN16}",
            "v_and_b32 v18, 3, v1", f"v_lshl_add_u32 v{LN16}, v18, 4, v{LN16}")
    else:
        a.e(f"v_lshrrev_b32 v18, 3, v{B_}", f"v_lshlrev_b32 v{VS2}, 19, v18", f"v_bfe_u32 v18, v{B_}, 2, 1", f"v_lshl_add_u32 v{VS2}, v18, 12, v{VS2}",
            f"v_and_b32 v18, 1, v{G4}", f"v_lshl_add_u32 v{VS2}, v18, 20, v{VS2}", f"v_and_b32 v18, 3, v{B_}", f"v_lshl_add_u32 v{VS2}, v18, 5, v{VS2}",
            f"v_lshrrev_b32 v18, 1, v{G4}", f"v_lshl_add_u32 v{VS2}, v18, 4, v{VS2}")
        a.e(f"v_lshlrev_b32 v{LN16}, 19, v{G4}", "v_bfe_u32 v18, v1, 3, 1", f"v_lshl_add_u32 v{LN16}, v18, 12, v{LN16}",
            "v_and_b32 v18, 7, v1", f"v_lshl_add_u32 v{LN16}, v18, 4, v{LN16}")
    a.e("v_lshlrev_b32 v18, 4, v1", f"s_add_u32 s73, s{sLB}, 8800", "v_add_u32 v19, s73, v18")
    a.e("s_waitcnt lgkmcnt(0)",
        f"s_and_b32 s73, s{sD}, 1", f"s_lshl_b32 s74, s{sDV}, 16", f"s_and_b32 s75, s{sDV}, 0xffff0000",
        "s_cmp_eq_u32 s73, 1", f"s_cselect_b32 s{sDV}, s75, s74")
    if OPT["twoflag"]:
        a.e(f"s_add_u32 s73, s{sF1}, {SY_B1B-SY_B1}", f"s_cmp_lg_u32 s{sLOC}, 0", f"s_cselect_b32 s{sF1}, s{sF1}, s73")
    a.e(f"v_and_b32 v{T}, 15, v1", f"v_lshlrev_b32 v{T}, {FB()}, v{T}", f"v_add_u32 v{T}, s{sF1}, v{T}")
    stamp(a, 5)
    wait_flags(a, T, 1, T+1, 73)
    loc_read(a, 12)
    stamp(a, 6)
    VE = 232
    ACC = 20
    SETS = [(52, 84), (116, 148)]
    U = SETS[1][1]
    for ch in range(4):
        a.e(f"buffer_load_dwordx4 {v(U+4*ch,4)}, v{LN16}, s[{STT}:{STT+3}], s{sSB+ch} offen" + LDL())
    def reads(rho, st):
        A, B = SETS[st]
        out = []
        for p in range(8):
            o = 8*rho + 128*(p & 1)
            out.append(f"ds_read2_b32 {v(A+4*p,2)}, v{VA+(p>>1)} offset0:{o} offset1:{o+1}")
            out.append(f"ds_read2_b32 {v(A+4*p+2,2)}, v{VA+(p>>1)} offset0:{o+2} offset1:{o+3}")
        outb = [f"ds_read_b128 {v(B+4*q,4)}, v{VB} offset:{512*q+32*(15-rho)}" for q in range(8)]
        return out, outb
    rhos = list(range(1, 16, 2))
    ra, rb = reads(rhos[0], 0)
    if OPT["hlate"]:
        h_dma(a, SH, sLB, sD4K)
        for ch in range(4):
            a.e(f"s_waitcnt vmcnt({3-ch+9})", f"ds_write_b128 v19, {v(U+4*ch,4)} offset:{1024*ch}")
        a.e("s_waitcnt vmcnt(0)", "ds_write_b32 v231, v230", "s_waitcnt lgkmcnt(0)")
        for r in ra: a.e(r)
    else:
        a.e("s_waitcnt vmcnt(4)", "ds_write_b32 v231, v230")
        a.e("s_waitcnt lgkmcnt(0)")
        for r in ra: a.e(r)
        for ch in range(4):
            a.e(f"s_waitcnt vmcnt({3-ch})", f"ds_write_b128 v19, {v(U+4*ch,4)} offset:{1024*ch}")
    a.e("s_waitcnt lgkmcnt(0)")
    for r in rb: a.e(r)
    if OPT["yieldB"]:
        Ly = newlbl("y0b")
        if OPT["y0"]: a.e("s_cmp_lg_u32 s2, 0", f"s_cbranch_scc1 {Ly}")
        if not (OPT["yieldB"] == 2 and OPT["ymid"]): b_yield(a, 233)
        a.label(Ly)
    Lnq = newlbl("noq")
    if OPT["a3all"]:
        a.e(f"s_mov_b32 s{sCBKT}, s{sCBK}", f"s_mov_b32 s{sSUBT}, s{sSUB}")
        if OPT["yieldB"] != 3 and not OPT["qlate"]: emit_B3_pre(a)
    else:
        a.e(f"s_cmp_lg_u32 s{sACT}, 0", f"s_cbranch_scc1 {Lnq}")
        emit_B3_pre(a)
        a.label(Lnq)
    stamp(a, 7)
    for ci, rho in enumerate(rhos):
        st = ci & 1
        A, B = SETS[st]
        if ci+1 < len(rhos):
            ra, rb = reads(rhos[ci+1], st ^ 1); nxt = ra[0:2] + rb + ra[2:]
        else:
            nxt = [f"ds_read_b64 {v(SETS[st^1][0]+2*j,2)}, v{VE} offset:{512*j}" for j in range(8)]
        if OPT["yieldB"] == 3: b_yield_step(a, 233, ci == len(rhos)-1)
        if OPT["yieldB"] == 2 and OPT["ymid"] and ci == OPT["ymid"]: b_yield(a, 233)
        a.e("s_waitcnt lgkmcnt(0)")
        n = 0
        for p in range(8):
            for q in range(8-p):
                j = p+q
                c = "0" if (ci == 0 and p == 0) else v(ACC+4*j, 4)
                a.e(f"v_mfma_f32_16x16x32_bf16 {v(ACC+4*j,4)}, {v(A+4*p,4)}, {v(B+4*q,4)}, {c}")
                if n < len(nxt): a.e(nxt[n])
                n += 1
    KVR = SETS[0][0]; TMv = 116
    if (OPT["yieldB"] == 3 or OPT["qlate"]) and OPT["a3all"]: emit_B3_pre(a)
    a.e("s_waitcnt lgkmcnt(0)")
    stamp(a, 8)
    sts = []
    for jp in range(4):
        base = TMv + 8*jp
        for hh in range(2):
            j = 2*jp+hh
            w0, w1 = KVR+2*j, KVR+2*j+1
            t = 172
            a.e(f"v_and_b32 v{t}, s{sMASK}, v{w1}", f"v_lshlrev_b32 v{t+1}, 16, v{w1}",
                f"v_and_b32 v{t+2}, s{sMASK}, v{w0}", f"v_lshlrev_b32 v{t+3}, 16, v{w0}")
            for r in range(4):
                a.e(f"v_fma_f32 v{t+r}, v{t+r}, s{sDV}, v{ACC+4*j+r}")
            a.e(f"v_cvt_pk_bf16_f32 v{base+2*hh}, v{t}, v{t+1}", f"v_cvt_pk_bf16_f32 v{base+2*hh+1}, v{t+2}, v{t+3}")
        a.e(f"v_permlane16_swap_b32 v{base}, v{base+2}", f"v_permlane16_swap_b32 v{base+1}, v{base+3}")
        sts.append(f"buffer_store_dwordx4 {v(base,4)}, v{VS2}, s[{STT}:{STT+3}], s{sSB+jp} offen")
    dual_store(a, sts)
    signal(a, sF2, 12, bloc=True)
    stamp(a, 9)
    if not OPT["a3all"]: a.e(f"s_cmp_lg_u32 s{sACT}, 0", "s_cbranch_scc1 L_fin")
    emit_B3(a)
    pair_chkB(a)
    a.e("s_branch L_fin")

SY_PA = 4096 + 163840
SY_PB = SY_PA + 16384
def hwid(a, dst):
    a.e(f"s_getreg_b32 s{dst}, hwreg(HW_REG_HW_ID)", f"s_lshr_b32 s{dst}, s{dst}, 8", f"s_and_b32 s{dst}, s{dst}, 0xff",
        "s_getreg_b32 s93, hwreg(HW_REG_XCC_ID)", "s_and_b32 s93, s93, 15", "s_lshl_b32 s93, s93, 8", f"s_or_b32 s{dst}, s{dst}, s93")
def pair_pubA(a):
    if not OPT.get("pair"): return
    L = newlbl("ppa")
    a.e("s_cmp_lg_u32 s3, 0", f"s_cbranch_scc1 {L}")
    hwid(a, 92)
    a.e(f"s_lshl_b32 s93, s{sCU}, 6", f"s_add_u32 s93, s93, {SY_PA}", "v_mov_b32 v240, s93", "v_mov_b32 v241, s92", "s_mov_b64 exec, 1",
        f"buffer_store_dword v241, v240, s[{S_SYN}:{S_SYN+3}], 0 offen sc1", "s_mov_b64 exec, -1")
    a.label(L)
def pair_chkB(a):
    if not OPT.get("pair"): return
    L = newlbl("ppb")
    a.e("s_cmp_lg_u32 s3, 0", f"s_cbranch_scc1 {L}")
    hwid(a, 92)
    a.e(f"s_lshl_b32 s93, s{sCU}, 6", f"s_add_u32 s93, s93, {SY_PA}", "v_mov_b32 v240, s93",
        f"buffer_load_dword v241, v240, s[{S_SYN}:{S_SYN+3}], 0 offen sc1", "s_waitcnt vmcnt(0)", "v_readfirstlane_b32 s93, v241",
        "s_cmp_lg_u32 s92, s93", "s_cselect_b32 s92, 1, 0", f"s_lshl_b32 s93, s{S_TGT}, 1", "s_or_b32 s92, s92, s93",
        f"s_lshl_b32 s93, s{sCU}, 6", f"s_add_u32 s93, s93, {SY_PB}", "v_mov_b32 v240, s93", "v_mov_b32 v241, s92", "s_mov_b64 exec, 1",
        f"buffer_store_dword v241, v240, s[{S_SYN}:{S_SYN+3}], 0 offen sc1", "s_mov_b64 exec, -1", "s_waitcnt vmcnt(0)")
    a.label(L)
def pair_sum(a):
    if not OPT.get("pair"): return
    L1, L2, L3 = newlbl("ps"), newlbl("psd"), newlbl("psp")
    a.e("v_lshlrev_b32 v2, 6, v1", f"v_add_u32 v2, {SY_PB}, v2", f"s_lshl_b32 s49, s{S_TGT}, 1", "s_mov_b32 s48, 0")
    a.label(L1)
    for i in range(4): a.e(f"s_mov_b32 s50, {4096*i}", f"buffer_load_dword v{4+i}, v2, s[{S_SYN}:{S_SYN+3}], s50 offen sc1")
    a.e("s_add_u32 s48, s48, 1", "s_waitcnt vmcnt(0)")
    for i in range(4): a.e(f"v_xor_b32 v{4+i}, s49, v{4+i}")
    a.e("v_or_b32 v8, v4, v5", "v_or_b32 v9, v6, v7", "v_or_b32 v8, v8, v9", "v_lshrrev_b32 v8, 1, v8", "v_cmp_ne_u32 vcc, 0, v8", f"s_cbranch_vccz {L2}",
        f"s_cmp_lt_u32 s48, {SPIN_LIMIT}", f"s_cbranch_scc1 {L1}")
    a.label(L2)
    a.e("s_mov_b32 s48, 0")
    for i in range(4): a.e(f"v_cmp_eq_u32 vcc, 1, v{4+i}", "s_bcnt1_i32_b64 s49, vcc", "s_add_u32 s48, s48, s49")
    a.e(f"s_mov_b32 s92, s{P_DBG}", f"s_mov_b32 s93, s{P_DBG+1}", "s_mov_b32 s94, 256", "s_mov_b32 s95, 0x00020000", "v_mov_b32 v4, 0", "v_mov_b32 v5, s48", "s_mov_b64 exec, 1",
        "buffer_store_dword v5, v4, s[92:95], 0 offen", "s_mov_b64 exec, -1")
    a.e("s_mul_i32 s48, s48, 10", "s_memrealtime s[50:51]", "s_waitcnt lgkmcnt(0)", "s_mov_b32 s49, s50")
    a.label(L3)
    a.e("s_memrealtime s[50:51]", "s_waitcnt lgkmcnt(0)", "s_sub_u32 s50, s50, s49", "s_cmp_lt_u32 s50, s48", f"s_cbranch_scc1 {L3}")

def warm(a):
    if OPT["tlb"]:
        L = newlbl("warm")
        a.e("s_cmp_lg_u32 s3, 3", f"s_cbranch_scc1 {L}")
        pages = [(P_WS, WS_I1), (P_WS, WS_I1+2*MB), (P_WS, WS_I2), (P_WS, WS_I2+2*MB), (P_WS, WS_SYNC+512*1024),
                 (P_OUT, 0), (P_OUT, 2*MB), (P_OUT, 4*MB), (P_OUT, 6*MB),
                 (P_WR, 0), (P_WR, 2*MB), (P_WI, 0), (P_WI, 2*MB), (P_SSMK, 0), (P_SSMK, 2*MB), (P_Q, 0), (P_Q, 2*MB)]
        a.e("v_mov_b32 v240, 0", "v_mov_b32 v241, 0")
        for i, (p, off) in enumerate(pages):
            a.e(f"s_add_u32 s92, s{p}, {off}", f"s_addc_u32 s93, s{p+1}, 0", f"v_writelane_b32 v240, s92, {i}", f"v_writelane_b32 v241, s93, {i}")
        a.e(f"s_mov_b64 exec, {(1 << len(pages)) - 1}", "global_load_dword v242, v[240:241], off", "s_mov_b64 exec, -1")
        a.label(L)
    if OPT["cpf"]:
        L = newlbl("warm")
        a.e("s_cmp_ge_u32 s3, 2", f"s_cbranch_scc1 {L}")
        a.e("s_getpc_b64 s[92:93]")
        a.e("s_lshr_b32 s96, s2, 4", "s_and_b32 s96, s96, 15", "s_lshl_b32 s96, s96, 1", "s_add_u32 s96, s96, s3", "s_min_u32 s96, s96, 25",
            "s_lshl_b32 s96, s96, 10", f"s_sub_u32 s92, s92, {OPT['cpf']}", "s_subb_u32 s93, s93, 0",
            "s_add_u32 s92, s92, s96", "s_addc_u32 s93, s93, 0", "v_lshlrev_b32 v240, 4, v1",
            "global_load_dwordx4 v[236:239], v240, s[92:93]")
        a.label(L)

def gen_kernel():
    a = Asm(); a.name = "p"
    a.e("s_cmp_ge_u32 s2, 512", "s_cbranch_scc1 L_exit")
    if OPT["swap"]: a.e("s_xor_b32 s2, s2, 256")
    if OPT.get("spinT") or OPT.get("span"): a.e("s_memrealtime s[94:95]")
    if OPT.get("spinC"): a.e("s_memtime s[94:95]")
    if gen.PROF: a.e("s_memrealtime s[98:99]", "s_waitcnt lgkmcnt(0)", "v_writelane_b32 v247, s98, 13")
    a.e(f"s_load_dwordx16 s[4:19], s[0:1], 0", f"s_load_dwordx8 s[20:27], s[0:1], 64")
    a.e("v_lshrrev_b32 v1, 6, v0", "v_readfirstlane_b32 s3, v1", "v_and_b32 v1, 63, v0", "s_waitcnt lgkmcnt(0)")
    srd(a, S_SYN, P_WS, P_WS+1, 1*MB, add=WS_SYNC)
    a.e(f"s_mov_b32 s48, {WS_SYNC+SY_E}", f"s_load_dword s{S_TGT}, s[{P_WS}:{P_WS+1}], s48")
    a.e(f"s_mov_b32 s98, {64<<FA()}", f"s_mov_b32 s99, {128<<FA()}", f"s_mov_b32 s100, {192<<FA()}")
    a.e(f"s_and_b32 s{sCU}, s2, 255", f"s_bitcmp0_b32 s2, 3", f"s_cselect_b32 s{sACT}, 1, 0",
        f"s_lshr_b32 s48, s{sCU}, 4", "s_lshl_b32 s48, s48, 3", f"s_and_b32 s49, s{sCU}, 7", "s_add_u32 s48, s48, s49",
        f"s_and_b32 s{sCBKT}, s48, 15", "s_lshr_b32 s48, s48, 4", "s_lshl_b32 s48, s48, 1", "s_lshr_b32 s49, s2, 8", f"s_add_u32 s{sSUBT}, s48, s49")
    a.e("s_cmp_ge_u32 s2, 256", "s_cbranch_scc1 L_A")
    gen_B(a)
    a.label("L_A")
    gen_A(a)
    a.label("L_fin")
    pass
    if gen.PROF:
        a.e("s_waitcnt vmcnt(0)")
        stamp(a, 14); stamp(a, 15, True)
        prof_dump(a)
    if OPT.get("span"):
        Ls = newlbl("span")
        a.e("s_cmp_lg_u32 s3, 0", f"s_cbranch_scc1 {Ls}", "s_waitcnt vmcnt(0)", "s_memrealtime s[92:93]",
            f"s_add_u32 s32, s{P_WS}, {gen.WS_PROF}", f"s_addc_u32 s33, s{P_WS+1}, 0", f"s_mov_b32 s34, {MB}", "s_mov_b32 s35, 0x00020000",
            "s_lshl_b32 s36, s2, 3", "s_waitcnt lgkmcnt(0)", "v_mov_b32 v2, s36", "v_mov_b32 v4, s94", "v_mov_b32 v5, s92", "s_mov_b64 exec, 1",
            "buffer_store_dwordx2 v[4:5], v2, s[32:35], 0 offen", "s_waitcnt vmcnt(0)")
        a.label(Ls)
    if OPT.get("spinC"):
        a.label("L_spinc")
        a.e("s_memtime s[92:93]", "s_waitcnt lgkmcnt(0)", "s_sub_u32 s92, s92, s94", f"s_cmp_lt_u32 s92, {OPT['spinC']}", "s_cbranch_scc1 L_spinc")
    if OPT.get("spinT"):
        a.label("L_spin")
        a.e("s_memrealtime s[92:93]", "s_waitcnt lgkmcnt(0)", "s_sub_u32 s92, s92, s94", f"s_cmp_lt_u32 s92, {OPT['spinT']}", "s_cbranch_scc1 L_spin")
    a.label("L_exit")
    a.e("s_endpgm")
    return a

def prof_dump(a):
    if OPT.get("dbgwg", -1) >= 0:
        L = newlbl("nodbg")
        a.e(f"s_cmp_lg_u32 s2, {OPT['dbgwg']}", f"s_cbranch_scc1 {L}", "s_cmp_lg_u32 s3, 0", f"s_cbranch_scc1 {L}")
        a.e("v_readlane_b32 s36, v247, 1", "v_readlane_b32 s37, v247, 13", "v_mov_b32 v250, s36", "v_mov_b32 v251, s37",
            "v_cmp_eq_u32 vcc, 0, v1", "v_cndmask_b32 v250, v250, v251, vcc", "v_cmp_eq_u32 vcc, 13, v1", "v_cndmask_b32 v250, v250, v251, vcc",
            "v_cmp_eq_u32 vcc, 15, v1", "v_cndmask_b32 v250, v250, v251, vcc", "v_sub_u32 v250, v247, v250",
            f"s_mov_b32 s32, s{P_DBG}", f"s_mov_b32 s33, s{P_DBG+1}", "s_mov_b32 s34, 256", "s_mov_b32 s35, 0x00020000",
            "v_lshlrev_b32 v251, 2, v1", "s_mov_b64 exec, 0xffff", "buffer_store_dword v250, v251, s[32:35], 0 offen", "s_waitcnt vmcnt(0)", "s_mov_b64 exec, -1")
        a.label(L)
        return

    a.e(f"s_add_u32 s32, s{P_WS}, {gen.WS_PROF}", f"s_addc_u32 s33, s{P_WS+1}, 0", f"s_mov_b32 s34, {MB}", "s_mov_b32 s35, 0x00020000")
    a.e("s_lshl_b32 s36, s2, 2", "s_add_u32 s36, s36, s3", "s_lshl_b32 s36, s36, 6",
        "v_lshlrev_b32 v250, 2, v1", "v_add_u32 v250, s36, v250", "s_mov_b64 exec, 0xffff",
        "buffer_store_dword v247, v250, s[32:35], 0 offen")
    if OPT.get("fine"):
        a.e("v_add_u32 v250, 0x40000, v250", "buffer_store_dword v246, v250, s[32:35], 0 offen")
    a.e("s_waitcnt vmcnt(0)")
PROFREGS = []

def build(path):
    a = gen_kernel()
    name = "concat_heads__spectral_gfnet__ssm_conv_h3__prompt_kernel"
    s = open("concat_heads__spectral_gfnet__ssm_conv_h3__prompt.s.ref").read().split("; Override")[0]
    s += f"; @launch grid=(512,1,1) block=(256,1,1) lds={LDS_BYTES}\n"
    s += '.amdgcn_target "amdgcn-amd-amdhsa--gfx950"\n' + gen.header(name) + a.text() + gen.descriptor(name, 256, 102)
    s = s.replace(" lds nt", " nt lds")
    open(path, "w").write(s)
    return s

if __name__ == "__main__":
    out = sys.argv[1] if len(sys.argv) > 1 else "pers.s"
    gen.PROF = "prof" in sys.argv[2:]
    for x in sys.argv[2:]:
        if "=" in x:
            k, val = x.split("="); OPT[k] = int(val)
    if OPT["wsend"]:
        base = OPT["wsend"]*MB
        WS_I1, WS_KVT, WS_I2, WS_TT, WS_SYNC = base, base+4*MB, base+8*MB, base+12*MB, base+20*MB
    s = build(out)
    print(out, len(s))
```

```python
import sys
from asmgen import *
import gen
from gen import srd, MB, WS_I1, WS_KVT, WS_I2, WS_TT, KA

PHASE = [1]
def dstamp(a, k, inv=False):
    if not OPT.get("dmax"): return
    a.e("s_memrealtime s[96:97]", "s_waitcnt lgkmcnt(0)", f"v_writelane_b32 v242, s96, {k}")
SY_DG = 4096 + 131072
def dpublish(a, sT):
    if not OPT.get("dmax"): return
    L = newlbl("dp")
    a.e("s_cmp_lg_u32 s3, 0", f"s_cbranch_scc1 {L}", f"s_lshl_b32 s92, s{sT}, 5", f"s_add_u32 s92, s92, {SY_DG}",
        "v_lshlrev_b32 v240, 2, v1", "v_add_u32 v240, s92, v240", "s_mov_b64 exec, 0xff",
        f"buffer_store_dword v242, v240, s[{S_SYN}:{S_SYN+3}], 0 offen sc1", "s_mov_b64 exec, -1")
    a.label(L)
def dreduce(a):
    if not OPT.get("dmax"): return
    a.e(f"s_mov_b32 s92, s{P_DBG}", f"s_mov_b32 s93, s{P_DBG+1}", "s_mov_b32 s94, 256", "s_mov_b32 s95, 0x00020000")
    a.e("v_lshlrev_b32 v2, 5, v1", f"v_add_u32 v2, {SY_DG}, v2")
    for k in range(7):
        for i in range(4):
            a.e(f"s_mov_b32 s50, {2048*i + 4*k}", f"buffer_load_dword v{10+i}, v2, s[{S_SYN}:{S_SYN+3}], s50 offen sc1")
        a.e("s_waitcnt vmcnt(0)")
        if k == 0:
            a.e("v_min_u32 v10, v10, v11", "v_min_u32 v12, v12, v13", "v_min_u32 v10, v10, v12", "s_mov_b32 s51, -1")
            for l in range(64): a.e(f"v_readlane_b32 s48, v10, {l}", "s_min_u32 s51, s51, s48")
            a.e("s_mov_b32 s45, s51")
            continue
        for i in range(4):
            a.e(f"v_subrev_u32 v{10+i}, s45, v{10+i}", f"v_lshlrev_b32 v{10+i}, 8, v{10+i}", f"v_add_u32 v14, {64*i}, v1", f"v_or_b32 v{10+i}, v{10+i}, v14")
        a.e("v_max_u32 v10, v10, v11", "v_max_u32 v12, v12, v13", "v_max_u32 v10, v10, v12", "s_mov_b32 s51, 0")
        for l in range(64): a.e(f"v_readlane_b32 s48, v10, {l}", "s_max_u32 s51, s51, s48")
        a.e("s_lshr_b32 s48, s51, 8", "s_and_b32 s49, s51, 255", "v_mov_b32 v14, s48", "v_mov_b32 v15, s49", f"v_mov_b32 v16, {8*(k-1)}", "s_mov_b64 exec, 1",
            "buffer_store_dwordx2 v[14:15], v16, s[92:95], 0 offen", "s_mov_b64 exec, -1")
DMAP_A = {1: 0, 5: 1, 6: 2, 7: 3, 8: 4, 9: 5}
DMAP_B = {}
ROLE = ["B"]
def fstamp(a, i):
    if OPT.get("fine") != PHASE[0]: return
    a.e('s_memtime s[96:97]', 's_waitcnt lgkmcnt(0)', f'v_writelane_b32 v246, s96, {i}')
def stamp(a, i, real=False):
    if OPT.get("dmax"):
        m = DMAP_A if ROLE[0] == "A" else DMAP_B
        if i in m and i != 14: dstamp(a, m[i])
        return
    if not gen.PROF: return
    a.e('s_memrealtime s[96:97]' if real else 's_memtime s[96:97]', 's_waitcnt lgkmcnt(0)', f'v_writelane_b32 v247, s96, {i}')

WBYTES = 2048*513*2
LB_STRIDE = 12896
LDS_BYTES = 53248
SPIN_LIMIT = 400000
OPT = dict(prioA=0, prioB=0, sleep=0, nt=1, wsend=0, ntout=1, ntw=1, wlate=1, hlate=1, qA=1, fsa=6, fsb=6, shrink=0, loc=1, forceloc=-1, ldloc=1, bdelay=0, earlypub=1, wpos=1, optst=1, locflag=1, hearly=1, twoflag=1, pA1i=-1, pB1=0, ntscr=0, a3all=1, ntk=1, ntv=1, ntx=1, nth=1, hactdelay=0, b1all=1, bactwait=1, pA1a=-1, grp=1, yieldB=0, ylim=40, tlb=0, cpf=0, spec2=1, y0=0, yinit=1, ymid=0, swap=0, a1all=1, cearly=1, fullline=1, qlate=0, hfirst=0, pairx=0, gld=0, t0late=0, i2ld=0, outB=-1, b3w=0)
def NTOB(): return NTO() if OPT['outB'] < 0 else {0: '', 1: ' nt', 2: ' sc1', 3: ' sc1 nt'}[OPT['outB']]
def GLD(): return {0: 'sc1', 1: 'nt', 2: ''}[OPT['gld']]
def NMEM(): return 32 if OPT['b1all'] else 48
def LDL(): return {0: ' sc1', 1: ' nt', 2: ' sc1 nt'}[OPT['ldloc']]
def FA(): return OPT['fsa']
def FB(): return OPT['fsb']
def NT(): return ' nt' if OPT['nt'] else ''
def NTO(): return {0: '', 1: ' nt', 2: ' sc1', 3: ' sc1 nt'}[OPT['ntout']]

P_X, P_WR, P_WI, P_Q, P_K, P_V, P_SHK, P_SSMK, P_SSMD, P_OUT, P_DBG, P_WS = 4, 6, 8, 10, 12, 14, 16, 18, 20, 22, 24, 26
S_DBG = 28
def eidx(r): return (r & 3) + 8*(r >> 2)

_lbl = [0]
def newlbl(p):
    _lbl[0] += 1
    return f"L_{p}_{_lbl[0]}"

WS_SYNC = 20*MB
S_SYN = 28
S_TGT = 101
SY_E, SY_A1, SY_A2, SY_B1, SY_B2 = 0, 4096, 4096+16384, 4096+32768, 4096+49152
sACT, sCBKT, sSUBT, sCU = 88, 89, 90, 91
sLOC, sXEXP = 79, 0
S_DBG = 12
def signal(a, s_off, vt, nafter=0, bloc=False):
    L = newlbl("sig")
    a.e(f"s_waitcnt vmcnt({nafter})", "s_barrier", "s_cmp_lg_u32 s3, 0", f"s_cbranch_scc1 {L}",
        f"v_mov_b32 v{vt}, s{s_off}", f"v_mov_b32 v{vt+1}, s{S_TGT}", "s_mov_b64 exec, 1")
    st = f"buffer_store_dword v{vt+1}, v{vt}, s[{S_SYN}:{S_SYN+3}], 0 offen"
    if bloc and OPT["locflag"]:
        dual_store(a, [st])
    else:
        a.e(st + " sc1")
    a.e("s_mov_b64 exec, -1")
    if OPT.get("flagwait"): a.e("s_waitcnt vmcnt(0)")
    a.label(L)

def wait_flags(a, vaddr, nload, vt, s_cnt, pre_barrier=None, solo=False, skip0=None):
    L = newlbl("poll"); Ls = newlbl("pdone"); Lr = newlbl("prest")
    if not solo: a.e("s_cmp_lg_u32 s3, 0", f"s_cbranch_scc1 {Ls}")
    a.e(f"s_mov_b32 s{s_cnt}, 0")
    a.label(L)
    offs = ["0", "s98", "s99", "s100"]
    for i in range(nload):
        a.e(f"buffer_load_dword v{vt+i}, v{vaddr}, s[{S_SYN}:{S_SYN+3}], {offs[i]} offen sc1")
    a.e(f"s_add_u32 s{s_cnt}, s{s_cnt}, 1", "s_waitcnt vmcnt(0)")
    for i in range(nload):
        a.e(f"v_xor_b32 v{vt+i}, s{S_TGT}, v{vt+i}")
    if skip0 is not None:
        a.e(f"v_readfirstlane_b32 s{skip0}, v{vt}", f"v_writelane_b32 v{vt}, 0, 0")
    for i in range(1, nload):
        a.e(f"v_or_b32 v{vt}, v{vt}, v{vt+i}")
    if OPT["shrink"]:
        a.e(f"v_cmp_ne_u32 vcc, 0, v{vt}", "s_and_b64 exec, exec, vcc", f"s_cbranch_execz {Lr}")
    else:
        a.e(f"v_cmp_ne_u32 vcc, 0, v{vt}", f"s_cbranch_vccz {Lr}")
    if OPT["sleep"]: a.e(f"s_sleep {OPT['sleep']}")
    a.e(f"s_cmp_lt_u32 s{s_cnt}, {SPIN_LIMIT}", f"s_cbranch_scc1 {L}")
    a.label(Lr)
    if OPT["shrink"]: a.e("s_mov_b64 exec, -1")
    a.label(Ls)
    if pre_barrier: a.e(pre_barrier)
    if not solo: a.e("s_barrier")

SY_ID = 4096 + 65536
SY_B1B = 4096 + 98304
SY_AS = 4096 + 114688
LOCW = 53244
def loc_publish(a):
    L = newlbl("pub")
    a.e("s_getreg_b32 s92, hwreg(HW_REG_XCC_ID)", "s_and_b32 s92, s92, 15", f"s_lshl_b32 s{sXEXP}, s{S_TGT}, 4", f"s_or_b32 s{sXEXP}, s{sXEXP}, s92")
    a.e("s_cmp_lg_u32 s3, 0", f"s_cbranch_scc1 {L}")
    if OPT["b1all"] and OPT["grp"]:
        a.e("s_and_b32 s92, s2, 15", "s_lshl_b32 s92, s92, 4", "s_lshr_b32 s93, s2, 4", "s_add_u32 s92, s92, s93", "s_lshl_b32 s92, s92, 6", f"s_add_u32 s92, s92, {SY_ID}")
    else:
        a.e("s_lshr_b32 s92, s2, 3", f"s_lshr_b32 s93, s{sCU}, 4", "s_add_u32 s93, s93, 32", "s_cmp_ge_u32 s2, 256", "s_cselect_b32 s92, s93, s92",
            "s_and_b32 s93, s2, 7", f"s_mul_i32 s93, s93, {NMEM()}", "s_add_u32 s92, s92, s93", "s_lshl_b32 s92, s92, 6", f"s_add_u32 s92, s92, {SY_ID}")
    a.e(
        "v_mov_b32 v10, s92", f"v_mov_b32 v11, s{sXEXP}", "s_mov_b64 exec, 1",
        f"buffer_store_dword v11, v10, s[{S_SYN}:{S_SYN+3}], 0 offen sc1", "s_mov_b64 exec, -1")
    a.label(L)

def loc_issue(a, vt):
    if OPT["b1all"] and OPT["grp"]:
        a.e(f"v_min_u32 v{vt}, 15, v1", "s_and_b32 s93, s2, 15", "s_lshl_b32 s93, s93, 4")
    else:
        a.e(f"v_min_u32 v{vt}, {NMEM()-1}, v1", "s_and_b32 s93, s2, 7", f"s_mul_i32 s93, s93, {NMEM()}")
    a.e(f"v_add_u32 v{vt}, s93, v{vt}",
        f"v_lshlrev_b32 v{vt}, 6, v{vt}", f"v_add_u32 v{vt}, {SY_ID}, v{vt}")
    L = newlbl("li")
    a.e("s_cmp_lg_u32 s3, 0", f"s_cbranch_scc1 {L}")
    a.e(f"buffer_load_dword v{vt+1}, v{vt}, s[{S_SYN}:{S_SYN+3}], 0 offen sc1")
    a.label(L)

def loc_resolve(a, vt, barrier=True, nafter=0):
    L, Ld, Ls = newlbl("locp"), newlbl("locd"), newlbl("locs")
    a.e("s_cmp_lg_u32 s3, 0", f"s_cbranch_scc1 {Ls}")
    if OPT["forceloc"] >= 0:
        a.e(f"s_waitcnt vmcnt({nafter})", f"s_mov_b32 s93, {OPT['forceloc']}")
    else:
        a.e("s_mov_b32 s92, 0", f"s_waitcnt vmcnt({nafter})")
        a.label(L)
        a.e(f"v_xor_b32 v{vt+2}, s{sXEXP}, v{vt+1}", f"v_lshrrev_b32 v{vt+3}, 4, v{vt+2}", "s_add_u32 s92, s92, 1",
            f"v_cmp_ne_u32 vcc, 0, v{vt+3}", f"s_cbranch_vccz {Ld}",
            f"s_cmp_ge_u32 s92, {SPIN_LIMIT}", f"s_cbranch_scc1 {Ld}",
            f"buffer_load_dword v{vt+1}, v{vt}, s[{S_SYN}:{S_SYN+3}], 0 offen sc1", "s_waitcnt vmcnt(0)", f"s_branch {L}")
        a.label(Ld)
        a.e(f"v_cmp_ne_u32 vcc, 0, v{vt+2}", "s_cmp_eq_u64 vcc, 0", "s_cselect_b32 s93, 1, 0")
    a.e(f"s_mov_b32 s{sLOC}, s93", f"v_mov_b32 v{vt+2}, {LOCW}", f"v_mov_b32 v{vt+3}, s93", f"ds_write_b32 v{vt+2}, v{vt+3}", "s_waitcnt lgkmcnt(0)")
    a.label(Ls)
    if barrier:
        a.e("s_barrier")
        loc_read(a, vt)

def loc_read(a, vt):
    a.e(f"v_mov_b32 v{vt+2}, {LOCW}", f"ds_read_b32 v{vt+3}, v{vt+2}", "s_waitcnt lgkmcnt(0)", f"v_readfirstlane_b32 s{sLOC}, v{vt+3}")

def dual_store(a, lines):
    L1, L2 = newlbl("stg"), newlbl("stl")
    a.e(f"s_cmp_eq_u32 s{sLOC}, 0", f"s_cbranch_scc1 {L1}")
    for l in lines: a.e(l)
    a.e(f"s_branch {L2}")
    a.label(L1)
    for l in lines: a.e(l + " sc1" if "buffer_store" in l else l)
    a.label(L2)

def a_state(a, sT, st, vt):
    L = newlbl("ast")
    a.e("s_cmp_lg_u32 s3, 0", f"s_cbranch_scc1 {L}", f"s_lshl_b32 s92, s{sT}, 6", f"s_add_u32 s92, s92, {SY_AS}",
        f"s_lshl_b32 s93, s{S_TGT}, 2", f"s_or_b32 s93, s93, {st}", f"v_mov_b32 v{vt}, s92", f"v_mov_b32 v{vt+1}, s93", "s_mov_b64 exec, 1",
        f"buffer_store_dword v{vt+1}, v{vt}, s[{S_SYN}:{S_SYN+3}], 0 offen", "s_mov_b64 exec, -1")
    a.label(L)

def y_ld(vt): return f"buffer_load_dword v{vt+1}, v{vt}, s[{S_SYN}:{S_SYN+3}], 0 offen " + ("sc1" if OPT.get("ysc", 1) else "nt")
def b_yield(a, vt):
    L, Ld = newlbl("yl"), newlbl("yd")
    a.e(f"s_lshl_b32 s92, s{sCU}, 6", f"s_add_u32 s92, s92, {SY_AS}", f"v_mov_b32 v{vt}, s92", f"s_lshl_b32 s75, s{S_TGT}, 2", "s_mov_b32 s92, 0")
    a.e(f"s_or_b32 s75, s75, {2 if OPT['yieldB'] == 2 else 1}")
    if OPT["yieldB"] == 3:
        a.e(y_ld(vt)); return
    a.label(L)
    a.e(y_ld(vt), "s_add_u32 s92, s92, 1", "s_waitcnt vmcnt(0)",
        f"v_readfirstlane_b32 s93, v{vt+1}", "s_cmp_lg_u32 s93, s75" if OPT["yieldB"] == 1 else "s_cmp_eq_u32 s93, s75", f"s_cbranch_scc1 {Ld}",
        f"s_cmp_lt_u32 s92, {OPT['ylim']}", f"s_cbranch_scc1 {L}")
    a.label(Ld)

def b_yield_step(a, vt, last):
    L, Ld = newlbl("ys"), newlbl("ysd")
    a.label(L)
    a.e("s_waitcnt vmcnt(0)", f"v_readfirstlane_b32 s93, v{vt+1}", "s_cmp_lg_u32 s93, s75", f"s_cbranch_scc1 {Ld}",
        f"s_cmp_ge_u32 s92, {OPT['ylim']}", f"s_cbranch_scc1 {Ld}", "s_add_u32 s92, s92, 1", y_ld(vt), f"s_branch {L}")
    a.label(Ld)
    if not last: a.e(y_ld(vt))

def fin_epoch(a):
    a.e("s_waitcnt lgkmcnt(0)", f"s_add_u32 s{S_TGT}, s{S_TGT}, 1")

def bump(a, s_off, vt):
    a.e(f"v_mov_b32 v{vt}, s{s_off}", f"v_mov_b32 v{vt+1}, s{S_TGT}", "s_mov_b64 exec, 1",
        f"buffer_store_dword v{vt+1}, v{vt}, s[{S_SYN}:{S_SYN+3}], 0 offen sc1", "s_mov_b64 exec, -1")

F_M, F_G, F_IN0, F_IN1, F_OUTOFF, F_WR, F_RD0, F_RD1, F_MM = 2, 3, 4, 5, 6, 7, 8, 9, 10
F_T = 11
F_IN, F16RE, F16IM, F_TWC, F_TWS, F_DRE, F_DIM, F_P, F_TMP, F32RE, F32IM = 16, 48, 52, 56, 88, 120, 136, 152, 168, 176, 192
SI_OFF, SO_OFF = 52, 68
SO_LIST = [68, 69, 70, 71, 76, 77, 78, 79]

def fft512_addr(a, s_sa, s_cb):
    a.e(f"v_and_b32 v{F_M}, 15, v1", f"v_lshrrev_b32 v{F_G}, 4, v1")
    a.e(f"v_lshlrev_b32 v{F_IN0}, 20, v{F_G}", f"v_lshl_add_u32 v{F_IN0}, v{F_M}, 2, v{F_IN0}", f"v_add_u32 v{F_IN1}, {4*8192}, v{F_IN0}")
    a.e(f"s_lshl_b32 s48, s{s_sa}, 11", f"s_lshl_b32 s49, s{s_cb}, 6", "s_add_u32 s48, s48, s49",
        "s_lshl_b32 s50, s3, 16", "s_add_u32 s48, s48, s50")
    for aa in range(4):
        for i in range(4):
            a.e(f"s_add_u32 s{SI_OFF+4*aa+i}, s48, {(32*i+aa)*8192}")

def fft512_loads(a, SIN, mod=""):
    for hh in range(2):
        for aa in range(4):
            for i in range(4):
                a.e(f"buffer_load_dword v{F_IN+16*hh+4*aa+i}, v{F_IN0+hh}, s[{SIN}:{SIN+3}], s{SI_OFF+4*aa+i} offen {mod}")

def fft512_addr2(a, s_sa, s_cb, orow, ostr):
    a.e(f"s_mov_b32 s51, {16*ostr}", f"v_mul_lo_u32 v{F_OUTOFF}, v{F_M}, s51", f"v_lshl_add_u32 v{F_OUTOFF}, v{F_G}, 4, v{F_OUTOFF}")
    a.e(f"s_mul_i32 s48, s{s_sa}, {orow}", f"s_lshl_b32 s49, s{s_cb}, 6", "s_add_u32 s48, s48, s49",
        f"s_mul_i32 s50, s3, {4*ostr}", "s_add_u32 s48, s48, s50")
    for b in range(4):
        for h in range(2):
            a.e(f"s_add_u32 s{SO_LIST[2*b+h]}, s48, {(b+256*h)*ostr}")
    a.e(f"v_and_b32 v{F_T}, 7, v{F_M}", "s_lshl_b32 s50, s3, 1", f"v_xor_b32 v{F_T+1}, s50, v{F_T}",
        f"v_lshlrev_b32 v{F_WR}, 4, v{F_T+1}", f"v_lshl_add_u32 v{F_WR}, v{F_M}, 7, v{F_WR}",
        f"v_lshl_add_u32 v{F_WR}, v{F_G}, 13, v{F_WR}")
    a.e(f"v_xor_b32 v{F_T+1}, v{F_G}, v{F_T}", f"v_lshlrev_b32 v{F_RD0}, 4, v{F_T+1}",
        f"v_lshl_add_u32 v{F_RD0}, v{F_M}, 7, v{F_RD0}", "s_lshl_b32 s50, s3, 13",
        f"v_add_u32 v{F_RD0}, s50, v{F_RD0}", f"v_xor_b32 v{F_RD1}, 64, v{F_RD0}")

def fft512_consts(a):
    T, TMP = F_T, F_TMP
    XS, XB = T, T+1
    a.e(f"v_cvt_f32_u32 v{XS}, v{F_M}", f"v_mul_f32 v{XS}, {f32hex(1/32)}, v{XS}",
        f"v_cvt_f32_u32 v{T+2}, v{F_G}", f"v_mul_f32 v{T+2}, 4.0, v{T+2}",
        f"v_mul_f32 v{XB}, v{T+2}, v{XS}")
    a.e(f"v_and_b32 v{F_MM}, 1, v{F_M}", f"v_mul_u32_u24 v{F_MM}, 0x8000, v{F_MM}",
        f"v_lshl_or_b32 v{F_MM}, v{F_MM}, 16, v{F_MM}", "s_mov_b32 s50, 0x80008000")
    for i in range(4):
        x = TMP; cs = TMP+1; sn = TMP+2; x2 = TMP+3; cs2 = TMP+4; sn2 = TMP+5
        a.e(f"v_fmamk_f32 v{x}, v{XS}, {f32hex(float(i))}, v{XB}" if i else f"v_mov_b32 v{x}, v{XB}")
        a.e(f"v_add_f32 v{x2}, v{x}, v{x}")
        a.e(f"v_cos_f32 v{cs}, v{x}", f"v_sin_f32 v{sn}, v{x}", f"v_cos_f32 v{cs2}, v{x2}", f"v_sin_f32 v{sn2}, v{x2}")
        a.e(f"v_cvt_pk_bf16_f32 v{F32RE+i}, v{cs}, v{sn}", f"v_cvt_pk_bf16_f32 v{F32IM+i}, -v{sn}, v{cs}",
            f"v_cvt_pk_bf16_f32 v{F16RE+i}, v{cs2}, v{sn2}", f"v_cvt_pk_bf16_f32 v{F16IM+i}, -v{sn2}, v{cs2}")
    for base in (F32RE, F32IM):
        for i in range(4):
            a.e(f"v_xor_b32 v{base+4+i}, v{F_MM}, v{base+i}")
        for t in range(2):
            for i in range(4):
                src = base+4*t+i
                if i & 1: a.e(f"v_xor_b32 v{base+8+4*t+i}, s50, v{src}")
                else:     a.e(f"v_mov_b32 v{base+8+4*t+i}, v{src}")
    a.e(f"v_cvt_f32_u32 v{TMP}, s3", f"v_mul_f32 v{TMP}, {f32hex(8/512)}, v{TMP}")
    for r in range(4):
        a.e(f"v_add_f32 v{TMP+4+r}, {f32hex(float(r)) if r else 0}, v{T+2}")
    for aa in range(8):
        a.e(f"v_add_f32 v{TMP+1}, {f32hex(aa/512) if aa else 0}, v{TMP}")
        for r in range(4):
            a.e(f"v_mul_f32 v{T+3+(r&1)}, v{TMP+1}, v{TMP+4+r}",
                f"v_cos_f32 v{F_TWC+4*aa+r}, v{T+3+(r&1)}", f"v_sin_f32 v{F_TWS+4*aa+r}, v{T+3+(r&1)}")

def fft512_compute(a, SOUT, neg_im, nafter, stmod, st0, fs=0, hook=None):
    TMP = F_TMP
    stamp(a, st0)
    for hh in range(2):
        fstamp(a, fs+5*hh)
        for aa in range(4):
            a.e(f"s_waitcnt vmcnt({28-16*hh-4*aa+nafter})")
            a.e(f"v_mfma_f32_16x16x32_bf16 {v(F_DRE+4*aa,4)}, {v(F16RE,4)}, {v(F_IN+16*hh+4*aa,4)}, 0",
                f"v_mfma_f32_16x16x32_bf16 {v(F_DIM+4*aa,4)}, {v(F16IM,4)}, {v(F_IN+16*hh+4*aa,4)}, 0")
        if hh == 1:
            stamp(a, st0+1)
            if hook: hook()
        fstamp(a, fs+5*hh+1)
        for aa in range(4):
            for p in range(2):
                re, im = F_DRE+4*aa+2*p, F_DIM+4*aa+2*p
                tc, ts = F_TWC+16*hh+4*aa+2*p, F_TWS+16*hh+4*aa+2*p
                t0, t1 = TMP+4*p, TMP+4*p+2
                a.e(f"v_pk_mul_f32 {v(t0,2)}, {v(re,2)}, {v(tc,2)}",
                    f"v_pk_mul_f32 {v(t1,2)}, {v(im,2)}, {v(tc,2)}",
                    f"v_pk_fma_f32 {v(t0,2)}, {v(im,2)}, {v(ts,2)}, {v(t0,2)}",
                    f"v_pk_fma_f32 {v(t1,2)}, {v(re,2)}, {v(ts,2)}, {v(t1,2)} neg_lo:[1,0,0] neg_hi:[1,0,0]")
                for e in range(2):
                    r = 2*p+e
                    a.e(f"v_cvt_pk_bf16_f32 v{F_P+4*r+aa}, v{t0+e}, v{t1+e}")
        fstamp(a, fs+5*hh+2)
        if hh == 1: a.e(f"v_xor_b32 v{F_WR}, 16, v{F_WR}")
        for r in range(4):
            a.e(f"ds_write_b128 v{F_WR}, {v(F_P+4*r,4)} offset:{r*2048}")
    a.e("s_waitcnt lgkmcnt(0)")
    fstamp(a, fs+8)
    a.e("s_barrier")
    fstamp(a, fs+9)
    for b in range(4):
        a.e(f"ds_read_b128 {v(F_IN+8*b,4)}, v{F_RD0} offset:{b*2048}",
            f"ds_read_b128 {v(F_IN+8*b+4,4)}, v{F_RD1} offset:{b*2048}")
    sg = "-" if neg_im else ""
    def mf(bb):
        D0 = [F_DRE, F_DIM] if bb == 0 else [F_TWC, F_TWC+16]
        for bl in range(2):
            b = 2*bb+bl
            a.e(f"s_waitcnt lgkmcnt({6-2*b})")
            for t in range(2):
                for h in range(2):
                    for (D_, F_) in ((D0[0], F32RE), (D0[1], F32IM)):
                        d = D_+8*bl+4*h
                        c = "0" if t == 0 else v(d, 4)
                        a.e(f"v_mfma_f32_16x16x32_bf16 {v(d,4)}, {v(F_IN+8*b+4*t,4)}, {v(F_+8*h+4*t,4)}, {c}")
    def st(bb):
        D0 = [F_DRE, F_DIM] if bb == 0 else [F_TWC, F_TWC+16]
        PB = F_P if bb == 0 else F_TWS
        out = []
        for bl in range(2):
            b = 2*bb+bl
            for h in range(2):
                idx = 8*bl+4*h
                for r in range(4):
                    out.append(f"v_cvt_pk_bf16_f32 v{PB+idx+r}, v{D0[0]+idx+r}, {sg}v{D0[1]+idx+r}")
                out.append(f"buffer_store_dwordx4 {v(PB+idx,4)}, v{F_OUTOFF}, s[{SOUT}:{SOUT+3}], s{SO_LIST[2*b+h]} offen {stmod}")
        return out
    mf(0)
    n0 = len(a.lines)
    mf(1)
    m1 = a.lines[n0:]; del a.lines[n0:]
    s0 = st(0)
    k = 0
    seen = 0
    for l in m1:
        a.lines.append(l)
        if "v_mfma" in l:
            seen += 1
            if seen > 4:
                for _ in range(2):
                    if k < len(s0): a.e(s0[k]); k += 1
    while k < len(s0): a.e(s0[k]); k += 1
    fstamp(a, fs+10)
    for l in st(1): a.e(l)

def f8_addr(a, s_sa, s_cb, orow, ostr):
    a.e(f"v_and_b32 v{F_M}, 15, v1", f"v_lshrrev_b32 v{F_G}, 4, v1")
    a.e(f"v_and_b32 v{F_T}, 7, v1", f"v_bfe_u32 v{F_T+1}, v1, 3, 1",
        f"v_lshlrev_b32 v{F_IN0}, 20, v{F_G}", f"v_lshl_add_u32 v{F_IN0}, v{F_T+1}, 15, v{F_IN0}",
        f"v_lshl_add_u32 v{F_IN0}, v{F_T}, 2, v{F_IN0}")
    a.e(f"s_lshl_b32 s48, s{s_sa}, 11", f"s_lshl_b32 s49, s{s_cb}, 5", "s_add_u32 s48, s48, s49",
        "s_lshl_b32 s50, s3, 16", "s_add_u32 s48, s48, s50")
    for aa in range(4):
        for i in range(4):
            a.e(f"s_add_u32 s{SI_OFF+4*aa+i}, s48, {(32*i+aa)*8192}")
    a.e(f"v_lshrrev_b32 v{F_T+2}, 1, v{F_G}", f"v_lshl_add_u32 v{F_T+2}, v{F_M}, 4, v{F_T+2}",
        f"s_mov_b32 s51, {ostr}", f"v_mul_lo_u32 v{F_OUTOFF}, v{F_T+2}, s51",
        f"v_and_b32 v{F_T+2}, 1, v{F_G}", f"v_lshl_add_u32 v{F_OUTOFF}, v{F_T+2}, 4, v{F_OUTOFF}")
    a.e(f"s_mul_i32 s48, s{s_sa}, {orow}", f"s_lshl_b32 s49, s{s_cb}, 5", "s_add_u32 s48, s48, s49",
        f"s_mul_i32 s50, s3, {4*ostr}", "s_add_u32 s48, s48, s50")
    for b in range(2):
        for h in range(2):
            a.e(f"s_add_u32 s{SO_LIST[2*b+h]}, s48, {(2*b+256*h)*ostr}")
    a.e("s_lshl_b32 s50, s3, 1", f"v_add_u32 v{F_T+2}, s50, v{F_T+1}", f"v_xor_b32 v{F_T+2}, v{F_T+2}, v{F_T}",
        f"v_lshlrev_b32 v{F_WR}, 4, v{F_T+2}", f"v_lshl_add_u32 v{F_WR}, v{F_T}, 7, v{F_WR}", f"v_lshl_add_u32 v{F_WR}, v{F_G}, 12, v{F_WR}")
    a.e(f"v_xor_b32 v{F_T+2}, v{F_G}, v{F_T}", f"v_lshlrev_b32 v{F_RD0}, 4, v{F_T+2}",
        f"v_lshl_add_u32 v{F_RD0}, v{F_T}, 7, v{F_RD0}", f"v_lshl_add_u32 v{F_RD0}, v{F_T+1}, 10, v{F_RD0}",
        "s_lshl_b32 s50, s3, 12", f"v_add_u32 v{F_RD0}, s50, v{F_RD0}", f"v_xor_b32 v{F_RD1}, 64, v{F_RD0}")

def f8_consts(a):
    T, TMP = F_T, F_TMP
    XS, XB = T, T+1
    a.e(f"v_cvt_f32_u32 v{XS}, v{F_M}", f"v_mul_f32 v{XS}, {f32hex(1/32)}, v{XS}",
        f"v_cvt_f32_u32 v{T+2}, v{F_G}", f"v_mul_f32 v{T+2}, 4.0, v{T+2}",
        f"v_mul_f32 v{XB}, v{T+2}, v{XS}")
    a.e(f"v_and_b32 v{F_MM}, 1, v{F_M}", f"v_mul_u32_u24 v{F_MM}, 0x8000, v{F_MM}",
        f"v_lshl_or_b32 v{F_MM}, v{F_MM}, 16, v{F_MM}", "s_mov_b32 s50, 0x80008000")
    for i in range(4):
        x = TMP; cs = TMP+1; sn = TMP+2; x2 = TMP+3; cs2 = TMP+4; sn2 = TMP+5
        a.e(f"v_fmamk_f32 v{x}, v{XS}, {f32hex(float(i))}, v{XB}" if i else f"v_mov_b32 v{x}, v{XB}")
        a.e(f"v_add_f32 v{x2}, v{x}, v{x}")
        a.e(f"v_cos_f32 v{cs}, v{x}", f"v_sin_f32 v{sn}, v{x}", f"v_cos_f32 v{cs2}, v{x2}", f"v_sin_f32 v{sn2}, v{x2}")
        a.e(f"v_cvt_pk_bf16_f32 v{F32RE+i}, v{cs}, v{sn}", f"v_cvt_pk_bf16_f32 v{F32IM+i}, -v{sn}, v{cs}",
            f"v_cvt_pk_bf16_f32 v{F16RE+i}, v{cs2}, v{sn2}", f"v_cvt_pk_bf16_f32 v{F16IM+i}, -v{sn2}, v{cs2}")
    for base in (F32RE, F32IM):
        for i in range(4):
            a.e(f"v_xor_b32 v{base+4+i}, v{F_MM}, v{base+i}")
        for t in range(2):
            for i in range(4):
                src = base+4*t+i
                if i & 1: a.e(f"v_xor_b32 v{base+8+4*t+i}, s50, v{src}")
                else:     a.e(f"v_mov_b32 v{base+8+4*t+i}, v{src}")
    a.e(f"v_bfe_u32 v{TMP}, v1, 3, 1", "s_lshl_b32 s50, s3, 1", f"v_add_u32 v{TMP}, s50, v{TMP}",
        f"v_cvt_f32_u32 v{TMP}, v{TMP}", f"v_mul_f32 v{TMP}, {f32hex(4/512)}, v{TMP}")
    for r in range(4):
        a.e(f"v_add_f32 v{TMP+4+r}, {f32hex(float(r)) if r else 0}, v{T+2}")
    for aa in range(4):
        a.e(f"v_add_f32 v{TMP+1}, {f32hex(aa/512) if aa else 0}, v{TMP}")
        for r in range(4):
            a.e(f"v_mul_f32 v{T+3+(r&1)}, v{TMP+1}, v{TMP+4+r}",
                f"v_cos_f32 v{F_TWC+4*aa+r}, v{T+3+(r&1)}", f"v_sin_f32 v{F_TWS+4*aa+r}, v{T+3+(r&1)}")

def f8_run(a, SIN, SOUT, ldmod, stmod, sT0=None):
    TMP = F_TMP
    ld = lambda aa, i: f"buffer_load_dword v{F_IN+4*aa+i}, v{F_IN0}, s[{SIN}:{SIN+3}], s{SI_OFF+4*aa+i} offen {ldmod}"
    order = [0, 1, 2, 3]
    if sT0 is None:
        for aa in range(4):
            for i in range(4): a.e(ld(aa, i))
    else:
        order = [1, 2, 3, 0]
        for aa in (1, 2, 3):
            for i in range(4): a.e(ld(aa, i))
        for i in (1, 2, 3): a.e(ld(0, i))
        L, Ld = newlbl("t0p"), newlbl("t0d")
        a.e("s_cmp_lg_u32 s3, 0", f"s_cbranch_scc1 {Ld}", f"s_cmp_eq_u32 s{sT0}, 0", f"s_cbranch_scc1 {Ld}",
            f"v_mov_b32 v{TMP}, {SY_A2}", "s_mov_b32 s48, 0")
        a.label(L)
        a.e(f"buffer_load_dword v{TMP+1}, v{TMP}, s[{S_SYN}:{S_SYN+3}], 0 offen sc1", "s_add_u32 s48, s48, 1", "s_waitcnt vmcnt(0)",
            f"v_readfirstlane_b32 s49, v{TMP+1}", f"s_cmp_eq_u32 s49, s{S_TGT}", f"s_cbranch_scc1 {Ld}",
            f"s_cmp_lt_u32 s48, {SPIN_LIMIT}", f"s_cbranch_scc1 {L}")
        a.label(Ld)
        a.e(ld(0, 0))
    fstamp(a, 3)
    for n_, aa in enumerate(order):
        a.e(f"s_waitcnt vmcnt({12-4*n_})")
        a.e(f"v_mfma_f32_16x16x32_bf16 {v(F_DRE+4*aa,4)}, {v(F16RE,4)}, {v(F_IN+4*aa,4)}, 0",
            f"v_mfma_f32_16x16x32_bf16 {v(F_DIM+4*aa,4)}, {v(F16IM,4)}, {v(F_IN+4*aa,4)}, 0")
    fstamp(a, 1)
    for aa in range(4):
        for p in range(2):
            re, im = F_DRE+4*aa+2*p, F_DIM+4*aa+2*p
            tc, ts = F_TWC+4*aa+2*p, F_TWS+4*aa+2*p
            t0, t1 = TMP+4*p, TMP+4*p+2
            a.e(f"v_pk_mul_f32 {v(t0,2)}, {v(re,2)}, {v(tc,2)}",
                f"v_pk_mul_f32 {v(t1,2)}, {v(im,2)}, {v(tc,2)}",
                f"v_pk_fma_f32 {v(t0,2)}, {v(im,2)}, {v(ts,2)}, {v(t0,2)}",
                f"v_pk_fma_f32 {v(t1,2)}, {v(re,2)}, {v(ts,2)}, {v(t1,2)} neg_lo:[1,0,0] neg_hi:[1,0,0]")
            for e in range(2):
                r = 2*p+e
                a.e(f"v_cvt_pk_bf16_f32 v{F_P+4*r+aa}, v{t0+e}, v{t1+e}")
    for r in range(4):
        a.e(f"ds_write_b128 v{F_WR}, {v(F_P+4*r,4)} offset:{r*1024}")
    a.e("s_waitcnt lgkmcnt(0)")
    fstamp(a, 8)
    a.e("s_barrier")
    fstamp(a, 9)
    for b in range(2):
        a.e(f"ds_read_b128 {v(F_IN+8*b,4)}, v{F_RD0} offset:{b*2048}",
            f"ds_read_b128 {v(F_IN+8*b+4,4)}, v{F_RD1} offset:{b*2048}")
    for b in range(2):
        a.e(f"s_waitcnt lgkmcnt({2-2*b})")
        for t in range(2):
            for h in range(2):
                for (D_, F_) in ((F_DRE, F32RE), (F_DIM, F32IM)):
                    d = D_+8*b+4*h
                    c = "0" if t == 0 else v(d, 4)
                    a.e(f"v_mfma_f32_16x16x32_bf16 {v(d,4)}, {v(F_IN+8*b+4*t,4)}, {v(F_+8*h+4*t,4)}, {c}")
    fstamp(a, 10)
    for b in range(2):
        for h in range(2):
            idx = 8*b+4*h
            for r in range(4):
                a.e(f"v_cvt_pk_bf16_f32 v{F_P+idx+r}, v{F_DRE+idx+r}, -v{F_DIM+idx+r}")
            a.e(f"buffer_store_dwordx4 {v(F_P+idx,4)}, v{F_OUTOFF}, s[{SOUT}:{SOUT+3}], s{SO_LIST[2*b+h]} offen {stmod}")

def f256_loads(a, SX, s_sa, s_cb, mod):
    a.e(f"v_and_b32 v{F_M}, 15, v1", f"v_lshrrev_b32 v{F_G}, 4, v1",
        f"v_lshlrev_b32 v{F_IN0}, 20, v{F_G}", f"v_lshl_add_u32 v{F_IN0}, v{F_M}, 2, v{F_IN0}")
    a.e(f"s_lshl_b32 s48, s{s_sa}, 11", f"s_lshl_b32 s49, s{s_cb}, 6", "s_add_u32 s48, s48, s49",
        "s_lshl_b32 s50, s3, 16", "s_add_u32 s50, s50, s48")
    for aa in range(4):
        for i in range(4):
            a.e(f"s_add_u32 s{SI_OFF+4*aa+i}, s50, {(16*i+aa)*16384}",
                f"buffer_load_dword v{F_IN+4*aa+i}, v{F_IN0}, s[{SX}:{SX+3}], s{SI_OFF+4*aa+i} offen {mod}")

def f256_setup(a):
    T, TMP = F_T, F_TMP
    a.e(f"v_lshlrev_b32 v{F_OUTOFF}, 18, v{F_M}", f"v_lshl_add_u32 v{F_OUTOFF}, v{F_G}, 4, v{F_OUTOFF}",
        "s_lshl_b32 s50, s3, 16", "s_add_u32 s50, s50, s48")
    for b in range(4): a.e(f"s_add_u32 s{SO_LIST[b]}, s50, {b*16384}")
    a.e(f"v_bfe_u32 v{T}, v{F_M}, 1, 2", f"v_xor_b32 v{T+1}, s3, v{T}", f"v_lshlrev_b32 v{F_WR}, 4, v{T+1}",
        f"v_lshl_add_u32 v{F_WR}, v{F_M}, 6, v{F_WR}", f"v_lshl_add_u32 v{F_WR}, v{F_G}, 12, v{F_WR}",
        f"v_xor_b32 v{T+1}, v{F_G}, v{T}", f"v_lshlrev_b32 v{F_RD0}, 4, v{T+1}", f"v_lshl_add_u32 v{F_RD0}, v{F_M}, 6, v{F_RD0}",
        "s_lshl_b32 s50, s3, 12", f"v_add_u32 v{F_RD0}, s50, v{F_RD0}")
    XS, XB = T, T+1
    a.e(f"v_cvt_f32_u32 v{XS}, v{F_M}", f"v_mul_f32 v{XS}, {f32hex(1/16)}, v{XS}",
        f"v_cvt_f32_u32 v{T+2}, v{F_G}", f"v_mul_f32 v{T+2}, 4.0, v{T+2}", f"v_mul_f32 v{XB}, v{T+2}, v{XS}")
    for i in range(4):
        x = TMP+3*(i & 1)
        a.e(f"v_fmamk_f32 v{x}, v{XS}, {f32hex(float(i))}, v{XB}" if i else f"v_mov_b32 v{x}, v{XB}")
        a.e(f"v_cos_f32 v{x+1}, v{x}", f"v_sin_f32 v{x+2}, v{x}")
        a.e(f"v_cvt_pk_bf16_f32 v{F16RE+i}, v{x+1}, v{x+2}", f"v_cvt_pk_bf16_f32 v{F16IM+i}, -v{x+2}, v{x+1}")
    a.e(f"v_cvt_f32_u32 v{TMP}, s3", f"v_mul_f32 v{TMP}, {f32hex(4/256)}, v{TMP}")
    for r in range(4): a.e(f"v_add_f32 v{TMP+4+r}, {f32hex(float(r)) if r else 0}, v{T+2}")
    for aa in range(4):
        a.e(f"v_add_f32 v{TMP+1}, {f32hex(aa/256) if aa else 0}, v{TMP}")
        for r in range(4):
            a.e(f"v_mul_f32 v{T+3+(r&1)}, v{TMP+1}, v{TMP+4+r}",
                f"v_cos_f32 v{F_TWC+4*aa+r}, v{T+3+(r&1)}", f"v_sin_f32 v{F_TWS+4*aa+r}, v{T+3+(r&1)}")

def f256_run(a, SOUT, nafter):
    TMP = F_TMP
    stamp(a, 2)
    for aa in range(4):
        a.e(f"s_waitcnt vmcnt({12-4*aa+nafter})")
        a.e(f"v_mfma_f32_16x16x32_bf16 {v(F_DRE+4*aa,4)}, {v(F16RE,4)}, {v(F_IN+4*aa,4)}, 0",
            f"v_mfma_f32_16x16x32_bf16 {v(F_DIM+4*aa,4)}, {v(F16IM,4)}, {v(F_IN+4*aa,4)}, 0")
    stamp(a, 3)
    for aa in range(4):
        for p in range(2):
            re, im = F_DRE+4*aa+2*p, F_DIM+4*aa+2*p
            tc, ts = F_TWC+4*aa+2*p, F_TWS+4*aa+2*p
            t0, t1 = TMP+4*p, TMP+4*p+2
            a.e(f"v_pk_mul_f32 {v(t0,2)}, {v(re,2)}, {v(tc,2)}",
                f"v_pk_mul_f32 {v(t1,2)}, {v(im,2)}, {v(tc,2)}",
                f"v_pk_fma_f32 {v(t0,2)}, {v(im,2)}, {v(ts,2)}, {v(t0,2)}",
                f"v_pk_fma_f32 {v(t1,2)}, {v(re,2)}, {v(ts,2)}, {v(t1,2)} neg_lo:[1,0,0] neg_hi:[1,0,0]")
            for e in range(2):
                r = 2*p+e
                a.e(f"v_cvt_pk_bf16_f32 v{F_P+4*r+aa}, v{t0+e}, v{t1+e}")
    for r in range(4):
        a.e(f"ds_write_b128 v{F_WR}, {v(F_P+4*r,4)} offset:{r*1024}")
    a.e("s_waitcnt lgkmcnt(0)", "s_barrier")
    for b in range(4):
        a.e(f"ds_read_b128 {v(F_IN+4*b,4)}, v{F_RD0} offset:{b*1024}")
    for b in range(4):
        a.e(f"s_waitcnt lgkmcnt({3-b})")
        a.e(f"v_mfma_f32_16x16x32_bf16 {v(F_DRE+4*b,4)}, {v(F_IN+4*b,4)}, {v(F16RE,4)}, 0",
            f"v_mfma_f32_16x16x32_bf16 {v(F_DIM+4*b,4)}, {v(F_IN+4*b,4)}, {v(F16IM,4)}, 0")
    for b in range(4):
        for r in range(4):
            a.e(f"v_cvt_pk_bf16_f32 v{F_P+4*b+r}, v{F_DRE+4*b+r}, v{F_DIM+4*b+r}")
        a.e(f"buffer_store_dwordx4 {v(F_P+4*b,4)}, v{F_OUTOFF}, s[{SOUT}:{SOUT+3}], s{SO_LIST[b]} offen sc1")

IDX, G_, VG, VGW, VRR, VHR, VST, VW = 2, 3, 6, 7, 8, 12, 13, 14
CRE, CIM, TWC, TWS, WR, WI, ARE, AIM, DF, GA, HRE, HIM, GB, TMP = 16, 32, 48, 64, 80, 96, 112, 128, 144, 160, 164, 168, 172, 188
W2R, W2I, SP, PF, PF2 = 204, 220, 236, 248, 252
GA2 = 204
LW = 32768; LSC = 16384; LW2 = 49152

def w_dma(a, SWR, SWI, s_rowoff, s_mirroff, s_ldsbase, vlane16):
    a.e(f"s_mov_b32 m0, s{s_ldsbase}", f"buffer_load_dwordx4 v{vlane16}, s[{SWR}:{SWR+3}], s{s_rowoff} offen lds" + NT())
    a.e(f"s_add_u32 s93, s{s_ldsbase}, 1024", "s_mov_b32 m0, s93", f"buffer_load_dwordx4 v{vlane16}, s[{SWI}:{SWI+3}], s{s_rowoff} offen lds" + NT())
    a.e(f"s_add_u32 s92, s{s_mirroff}, 2")
    a.e(f"s_add_u32 s93, s{s_ldsbase}, 2048", "s_mov_b32 m0, s93", f"buffer_load_dwordx4 v{vlane16}, s[{SWR}:{SWR+3}], s92 offen lds" + NT())
    a.e(f"s_add_u32 s93, s{s_ldsbase}, 3072", "s_mov_b32 m0, s93", f"buffer_load_dwordx4 v{vlane16}, s[{SWI}:{SWI+3}], s92 offen lds" + NT())

def pf_loads(a, SWR, SWI, s_rowoff, s_mirroff, dst, vt):
    a.e(f"v_mov_b32 v{vt}, s{s_mirroff}", f"v_mov_b32 v{vt+1}, s{s_rowoff}", f"v_add_u32 v{vt+1}, 1024, v{vt+1}")
    a.e(f"buffer_load_short_d16_hi v{dst}, v{vt}, s[{SWR}:{SWR+3}], 0 offen",
        f"buffer_load_short_d16_hi v{dst+1}, v{vt}, s[{SWI}:{SWI+3}], 0 offen",
        f"buffer_load_short_d16_hi v{dst+2}, v{vt+1}, s[{SWR}:{SWR+3}], 0 offen",
        f"buffer_load_short_d16_hi v{dst+3}, v{vt+1}, s[{SWI}:{SWI+3}], 0 offen")

def w_lds_reads(a, vlo, vhi, dr, di):
    for (dst, o) in ((dr, 0), (di, 1024)):
        for r in range(16):
            e = eidx(r)
            if r < 8: a.e(f"ds_read_u16_d16_hi v{dst+r}, v{vlo} offset:{o+64*e}")
            else:     a.e(f"ds_read_u16_d16_hi v{dst+r}, v{vhi} offset:{o+64*(27-e)}")

def fix_w(a, dr, di, pf):
    a.e("v_cmp_eq_u32 vcc, 0, v1")
    for (r, o) in ((0, 0), (8, 2)):
        a.e(f"v_add_f32 v{TMP}, v{dr+r}, v{pf+o}", f"v_mul_f32 v{TMP}, 0.5, v{TMP}",
            f"v_sub_f32 v{TMP+1}, v{di+r}, v{pf+o+1}", f"v_mul_f32 v{TMP+1}, 0.5, v{TMP+1}",
            f"v_cndmask_b32 v{dr+r}, v{dr+r}, v{TMP}, vcc", f"v_cndmask_b32 v{di+r}, v{di+r}, v{TMP+1}, vcc")

def fft1024(a, mid=None):
    for t in range(4):
        c0 = "0" if t == 0 else v(ARE, 16); c1 = "0" if t == 0 else v(AIM, 16)
        a.e(f"v_mfma_f32_32x32x16_bf16 {v(ARE,16)}, {v(DF+4*t,4)}, {v(CRE+4*t,4)}, {c0}",
            f"v_mfma_f32_32x32x16_bf16 {v(AIM,16)}, {v(DF+4*t,4)}, {v(CIM+4*t,4)}, {c1}")
    for p in range(8):
        re, im, tc, ts = ARE+2*p, AIM+2*p, TWC+2*p, TWS+2*p
        t0 = TMP+4*(p & 1); t1 = t0+2
        a.e(f"v_pk_mul_f32 {v(t0,2)}, {v(re,2)}, {v(tc,2)}",
            f"v_pk_mul_f32 {v(t1,2)}, {v(im,2)}, {v(tc,2)}",
            f"v_pk_fma_f32 {v(t0,2)}, {v(im,2)}, {v(ts,2)}, {v(t0,2)}",
            f"v_pk_fma_f32 {v(t1,2)}, {v(re,2)}, {v(ts,2)}, {v(t1,2)} neg_lo:[1,0,0] neg_hi:[1,0,0]")
        for e in range(2):
            a.e(f"v_cvt_pk_bf16_f32 v{DF+2*p+e}, v{t0+e}, v{t1+e}")
    for t in range(4):
        if mid and t == 1: mid()
        c0 = "0" if t == 0 else v(ARE, 16); c1 = "0" if t == 0 else v(AIM, 16)
        a.e(f"v_mfma_f32_32x32x16_bf16 {v(ARE,16)}, {v(CRE+4*t,4)}, {v(DF+4*t,4)}, {c0}",
            f"v_mfma_f32_32x32x16_bf16 {v(AIM,16)}, {v(CIM+4*t,4)}, {v(DF+4*t,4)}, {c1}")

def a2_consts(a, sT):
    a.e(f"v_and_b32 v{IDX}, 31, v1", f"v_lshrrev_b32 v{G_}, 5, v1")
    XS, XB = TMP, TMP+1
    a.e(f"v_cvt_f32_u32 v{TMP+2}, v{IDX}", f"v_cvt_f32_u32 v{TMP+3}, v{G_}", f"v_mul_f32 v{TMP+3}, 4.0, v{TMP+3}",
        f"v_mul_f32 v{XS}, {f32hex(1/32)}, v{TMP+2}", f"v_mul_f32 v{XB}, v{TMP+3}, v{XS}")
    a.e(f"v_and_b32 v{TMP+4}, 1, v{IDX}", f"v_mul_u32_u24 v{TMP+4}, 0x8000, v{TMP+4}", f"v_lshl_or_b32 v{TMP+4}, v{TMP+4}, 16, v{TMP+4}")
    for t in range(2):
        for i in range(4):
            c = float(8*t+i); x = TMP+5+3*(i & 1)
            a.e(f"v_fmamk_f32 v{x}, v{XS}, {f32hex(c)}, v{XB}" if c else f"v_mov_b32 v{x}, v{XB}")
            a.e(f"v_cos_f32 v{x+1}, v{x}", f"v_sin_f32 v{x+2}, v{x}")
            a.e(f"v_cvt_pk_bf16_f32 v{CRE+4*t+i}, v{x+1}, v{x+2}", f"v_cvt_pk_bf16_f32 v{CIM+4*t+i}, -v{x+2}, v{x+1}")
    for base in (CRE, CIM):
        for i in range(8):
            a.e(f"v_xor_b32 v{base+8+i}, v{TMP+4}, v{base+i}")
    a.e(f"v_mul_f32 v{XS}, {f32hex(1/1024)}, v{TMP+2}", f"v_mul_f32 v{XB}, v{TMP+3}, v{XS}")
    for r in range(16):
        c = float(eidx(r)); x = TMP+5+(r & 1)
        a.e(f"v_fmamk_f32 v{x}, v{XS}, {f32hex(c)}, v{XB}" if c else f"v_mov_b32 v{x}, v{XB}")
        a.e(f"v_cos_f32 v{TWC+r}, v{x}", f"v_sin_f32 v{TWS+r}, v{x}")
    LO, HI, Q, AV, XA0, XA1, E0, E1 = TMP, TMP+1, TMP+2, TMP+3, TMP+4, TMP+5, TMP+6, TMP+7
    JF, KEY, T2, PO, PAR, N16, G4, CS = [TMP+8+i for i in range(8)]
    Lspec, Ldone = newlbl("ghspec"), newlbl("ghdone")
    a.e(f"v_and_b32 v{LO}, 3, v{IDX}", f"v_bfe_u32 v{HI}, v{IDX}, 2, 2")
    a.e(f"v_and_b32 v{N16}, 15, v1", f"v_lshrrev_b32 v{G4}, 4, v1")
    a.e(f"s_cmp_eq_u32 s{sT}, 0", f"s_cbranch_scc1 {Lspec}")
    a.e(f"v_cvt_f32_u32 v{T2}, s{sT}", f"v_cvt_f32_u32 v{JF}, v{HI}", f"v_fmamk_f32 v{JF}, v{JF}, {f32hex(512.0)}, v{T2}",
        f"v_mul_f32 v{JF}, {f32hex(1/2048)}, v{JF}",
        f"v_lshlrev_b32 v{Q}, 3, v{LO}", "s_mov_b32 s50, 0x4631914C", f"v_lshrrev_b32 v{Q}, v{Q}, s50",
        f"v_mov_b32 v{AV}, 0.5", f"v_cmp_gt_u32 vcc, 16, v{IDX}", f"v_cndmask_b32 v{AV}, 0, v{AV}, vcc")
    for ks, Gd in ((0, GA), (1, GA2)):
        a.e(f"v_cvt_f32_u32 v{XA0}, v{G_}", f"v_add_f32 v{XA0}, v{XA0}, v{XA0}")
        if ks: a.e(f"v_add_f32 v{XA0}, 4.0, v{XA0}")
        a.e(f"v_add_f32 v{XA1}, 1.0, v{XA0}", f"v_mul_f32 v{XA0}, v{XA0}, v{JF}", f"v_mul_f32 v{XA1}, v{XA1}, v{JF}")
        for jj2 in range(4):
            for e in range(2):
                jj = 2*jj2+e
                xa = XA1 if jj >> 2 else XA0
                a.e(f"v_bfe_u32 v{E0+e}, v{Q}, {2*(jj&3)}, 2", f"v_cvt_f32_u32 v{E0+e}, v{E0+e}",
                    f"v_fmamk_f32 v{E0+e}, v{E0+e}, {f32hex(0.25)}, v{xa}", f"v_cos_f32 v{E0+e}, v{E0+e}",
                    f"v_mul_f32 v{E0+e}, v{E0+e}, v{AV}")
            a.e(f"v_cvt_pk_bf16_f32 v{Gd+jj2}, v{E0}, v{E1}")
    a.e(f"v_bfe_u32 v{HI}, v{N16}, 1, 2", f"v_cvt_f32_u32 v{KEY}, v{HI}", f"v_mul_f32 v{KEY}, {f32hex(1/2048)}, v{KEY}",
        f"v_and_b32 v{JF}, 1, v{G4}", f"v_cvt_f32_u32 v{JF}, v{JF}", f"v_fmamk_f32 v{JF}, v{JF}, {f32hex(1024.0)}, v{T2}",
        f"v_add_f32 v{XA1}, {f32hex(512.0)}, v{JF}", f"v_mul_f32 v{XA0}, v{JF}, v{KEY}", f"v_mul_f32 v{XA1}, v{XA1}, v{KEY}",
        f"v_lshrrev_b32 v{CS}, 1, v{G4}", f"v_lshrrev_b32 v{AV}, 3, v{N16}", f"v_cmp_eq_u32 vcc, v{CS}, v{AV}",
        f"v_mov_b32 v{AV}, {f32hex(2.0**-21)}", f"v_cndmask_b32 v{AV}, 0, v{AV}, vcc",
        f"v_and_b32 v{PO}, 1, v{N16}")
    for part, Hd in ((0, HRE), (1, HIM)):
        w0, w1 = (0x1C, 0xBC) if part == 0 else (0x61, 0x6B)
        a.e(f"v_mov_b32 v{Q}, {w0}", f"v_mov_b32 v{PAR}, {w1}", f"v_cmp_eq_u32 vcc, 1, v{PO}", f"v_cndmask_b32 v{Q}, v{Q}, v{PAR}, vcc")
        for jj2 in range(4):
            for e in range(2):
                jj = 2*jj2+e
                xa = XA1 if jj >> 2 else XA0
                a.e(f"v_bfe_u32 v{E0+e}, v{Q}, {2*(jj&3)}, 2", f"v_cvt_f32_u32 v{E0+e}, v{E0+e}",
                    f"v_fmamk_f32 v{E0+e}, v{E0+e}, {f32hex(0.25)}, v{xa}", f"v_cos_f32 v{E0+e}, v{E0+e}",
                    f"v_mul_f32 v{E0+e}, v{E0+e}, v{AV}")
            a.e(f"v_cvt_pk_bf16_f32 v{Hd+jj2}, v{E0}, v{E1}")
    a.e(f"s_branch {Ldone}")
    a.label(Lspec)
    a.e(f"v_and_b32 v{PO}, 1, v{LO}", f"v_lshrrev_b32 v{PAR}, 1, v{LO}")
    a.e(f"v_lshlrev_b32 v{JF}, 2, v{HI}", "s_mov_b32 s50, 0x3120", f"v_lshrrev_b32 v{JF}, v{JF}, s50", f"v_and_b32 v{JF}, 15, v{JF}",
        f"v_lshlrev_b32 v{JF}, 8, v{JF}", f"v_lshlrev_b32 v{T2}, 10, v{PO}",
        f"v_cmp_eq_u32 vcc, 0, v{HI}", f"v_cndmask_b32 v{JF}, v{JF}, v{T2}, vcc", f"v_mov_b32 v{T2}, 0",
        f"v_cndmask_b32 v{Q}, v{PO}, v{T2}, vcc",
        f"v_cvt_f32_u32 v{JF}, v{JF}", f"v_mul_f32 v{JF}, {f32hex(1/2048)}, v{JF}",
        f"v_cvt_f32_u32 v{Q}, v{Q}", f"v_mul_f32 v{Q}, {f32hex(0.25)}, v{Q}",
        f"v_lshrrev_b32 v{T2}, 4, v{IDX}", f"v_lshl_add_u32 v{KEY}, v{T2}, 2, v{PAR}", f"v_mov_b32 v{T2}, 0")
    for ks, Gd in ((0, GA), (1, GA2)):
        a.e(f"v_cvt_f32_u32 v{XA0}, v{G_}", f"v_add_f32 v{XA0}, v{XA0}, v{XA0}")
        if ks: a.e(f"v_add_f32 v{XA0}, 4.0, v{XA0}")
        a.e(f"v_add_f32 v{XA1}, 1.0, v{XA0}",
            f"v_fma_f32 v{XA0}, v{XA0}, v{JF}, v{Q}", f"v_fma_f32 v{XA1}, v{XA1}, v{JF}, v{Q}",
            f"v_cos_f32 v{XA0}, v{XA0}", f"v_cos_f32 v{XA1}, v{XA1}")
        for jj2 in range(4):
            for e in range(2):
                jj = 2*jj2+e
                xa = XA1 if jj >> 2 else XA0
                a.e(f"v_cmp_eq_u32 vcc, {jj&3}, v{KEY}", f"v_cndmask_b32 v{E0+e}, v{T2}, v{xa}, vcc")
            a.e(f"v_cvt_pk_bf16_f32 v{Gd+jj2}, v{E0}, v{E1}")
    SAF, GS = JF, PAR
    a.e(f"v_bfe_u32 v{HI}, v{N16}, 1, 2", f"v_cvt_f32_u32 v{SAF}, v{HI}", f"v_mul_f32 v{SAF}, {f32hex(1/2048)}, v{SAF}",
        f"v_and_b32 v{GS}, 1, v{G4}", f"v_and_b32 v{PO}, 1, v{N16}",
        f"v_lshrrev_b32 v{CS}, 1, v{G4}", f"v_lshrrev_b32 v{T2}, 3, v{N16}",
        f"v_cmp_eq_u32 s[44:45], v{CS}, v{T2}", f"v_cmp_eq_u32 s[46:47], v{GS}, v{PO}", "s_and_b64 s[44:45], s[44:45], s[46:47]",
        f"v_cmp_eq_u32 s[46:47], 0, v{GS}")
    for part, Hd in ((0, HRE), (1, HIM)):
        for jj in range(8):
            sl, par, pi = jj >> 2, (jj >> 1) & 1, jj & 1
            e = E0 + (jj & 1)
            if par != part:
                a.e(f"v_mov_b32 v{e}, 0")
            else:
                if sl == 0:
                    j0, q0, a0 = 1024.0*pi, 0.5*pi, 2.0**-21
                    j1, q1, a1 = 256.0, 0.75*pi, 2.0**-20
                else:
                    j0, q0, a0 = 512.0, 0.75*pi, 2.0**-20
                    j1, q1, a1 = 768.0, 0.75*pi, 2.0**-20
                def sel(dst, x0, x1):
                    a.e(f"v_mov_b32 v{dst}, {f32hex(x1)}", f"v_mov_b32 v{AV}, {f32hex(x0)}", f"v_cndmask_b32 v{dst}, v{dst}, v{AV}, s[46:47]")
                sel(XA0, j0, j1); sel(XA1, q0 + 0.5*part, q1 + 0.5*part)
                a.e(f"v_fma_f32 v{XA0}, v{XA0}, v{SAF}, v{XA1}", f"v_cos_f32 v{XA0}, v{XA0}")
                sel(XA1, a0, a1)
                a.e(f"v_mul_f32 v{XA0}, v{XA0}, v{XA1}", f"v_mov_b32 v{XA1}, 0", f"v_cndmask_b32 v{e}, v{XA1}, v{XA0}, s[44:45]")
            if jj & 1: a.e(f"v_cvt_pk_bf16_f32 v{Hd+(jj>>1)}, v{E0}, v{E1}")
    a.label(Ldone)
    a.e("s_nop 1")


BT_S0, BT_S1, BT_S2, BT_S3 = 52, 56, 60, 64
BT_SOFF = ["0", "s68", "s69", "s70", "s71", "s76", "s77", "s78"]
BT_ROW, BT_CH, BT_MASK = 48, 49, 50
def bt_setup(a):
    a.e(f"s_lshl_b32 s{BT_ROW}, s{sSUBT}, 7", "s_lshl_b32 s51, s3, 5", f"s_add_u32 s{BT_ROW}, s{BT_ROW}, s51", f"s_lshl_b32 s{BT_CH}, s{sCBKT}, 6")
    for i in range(1, 8): a.e(f"s_mov_b32 {BT_SOFF[i]}, {4096*i}")
    a.e(f"s_mov_b32 s{BT_MASK}, 0xffff0000")

def scratch_addr(a, vdst, vcg, vrg):
    if OPT["fullline"]:
        a.e(f"s_lshl_b32 s51, s{sSUBT}, 7", "s_lshl_b32 s92, s3, 5", "s_add_u32 s51, s51, s92", "s_lshl_b32 s51, s51, 12",
            f"s_lshl_b32 s92, s{sCBKT}, 7", "s_add_u32 s51, s51, s92", "s_add_u32 s51, s51, 2048",
            f"v_lshrrev_b32 v{vdst}, 1, v{vcg}", f"v_lshlrev_b32 v{vdst}, 12, v{vdst}", f"v_lshl_add_u32 v{vdst}, v{vrg}, 4, v{vdst}",
            f"v_and_b32 v{vcg}, 1, v{vcg}", f"v_lshl_add_u32 v{vdst}, v{vcg}, 6, v{vdst}", f"v_add_u32 v{vdst}, s51, v{vdst}",
            "s_mov_b32 s32, 32768", "s_mov_b32 s33, 65536", "s_mov_b32 s34, 98304")
        return
    a.e(f"s_lshl_b32 s51, s{sSUBT}, 7", "s_lshr_b32 s92, s3, 1", "s_add_u32 s51, s51, s92", "s_lshl_b32 s51, s51, 12",
        f"s_lshl_b32 s92, s{sCBKT}, 7", "s_add_u32 s51, s51, s92", "s_and_b32 s92, s3, 1", "s_lshl_b32 s92, s92, 6", "s_add_u32 s51, s51, s92",
        "s_add_u32 s51, s51, 2048",
        f"v_lshlrev_b32 v{vdst}, 15, v{vcg}", f"v_lshl_add_u32 v{vdst}, v{vrg}, 4, v{vdst}", f"v_add_u32 v{vdst}, s51, v{vdst}")
def SCR(c):
    return ["0", "s32", "s33", "s34"][c] if OPT["fullline"] else ["0", "s69", "s71", "s77"][c]

def emit_B1(a, shadow=None, hook=None, post_mode=None, after_stores=None, nafter=0, after_loads=None, nyoung=0):
    SK, SV, SSH, SKVT = BT_S0, BT_S1, BT_S2, BT_S3
    srd(a, SK, P_K, P_K+1, 4*MB); srd(a, SV, P_V, P_V+1, 4*MB); srd(a, SSH, P_SHK, P_SHK+1, 8192); srd(a, SKVT, P_OUT, P_OUT+1, 8*MB)
    bt_setup(a)
    soff = BT_SOFF; M = BT_MASK
    CG, RG, S0, CH0, VOFF, VH, VST, VSH = 2, 3, 4, 5, 6, 7, 8, 9
    a.e(f"v_and_b32 v{CG}, 15, v1", f"v_lshrrev_b32 v{RG}, 4, v1",
        f"v_lshl_add_u32 v{S0}, v{RG}, 3, s{BT_ROW}", f"v_lshl_add_u32 v{CH0}, v{CG}, 2, s{BT_CH}",
        f"v_lshlrev_b32 v{VOFF}, 11, v{S0}", f"v_lshl_add_u32 v{VOFF}, v{CH0}, 1, v{VOFF}",
        f"v_subrev_u32 v{VH}, 6144, v{VOFF}",
        f"v_lshlrev_b32 v{VSH}, 3, v{CH0}")
    scratch_addr(a, VST, CG, RG)
    KR, VR, SHR, KF, SHF, KV, TM, PK = 16, 38, 54, 64, 108, 124, 156, 16
    if OPT["bactwait"] and OPT["b1all"]:
        Lw = newlbl("bw")
        a.e(f"s_cmp_eq_u32 s{sACT}, 0", f"s_cbranch_scc1 {Lw}", "s_waitcnt lgkmcnt(0)")
        a.label(Lw)
    if OPT["earlypub"]:
        Lp = newlbl("epub")
        a.e("s_cmp_lg_u32 s3, 0", f"s_cbranch_scc1 {Lp}")
        fin_epoch(a); loc_publish(a)
        a.label(Lp)
    a.e(f"buffer_load_dwordx4 {v(SHR,4)}, v{VSH}, s[{SSH}:{SSH+3}], 0 offen",
        f"buffer_load_dwordx4 {v(SHR+4,4)}, v{VSH}, s[{SSH}:{SSH+3}], 0 offen offset:16")
    for i in range(3):
        a.e(f"buffer_load_dwordx2 {v(KR+2*i,2)}, v{VH}, s[{SK}:{SK+3}], {soff[i>>1]} offen" + (" offset:2048" if i & 1 else "") + (NT() if OPT["ntk"] else ""))
    for i in range(8):
        a.e(f"buffer_load_dwordx2 {v(KR+6+2*i,2)}, v{VOFF}, s[{SK}:{SK+3}], {soff[i>>1]} offen" + (" offset:2048" if i & 1 else "") + (NT() if OPT["ntk"] else ""))
    for i in range(8):
        a.e(f"buffer_load_dwordx2 {v(VR+2*i,2)}, v{VOFF}, s[{SV}:{SV+3}], {soff[i>>1]} offen" + (" offset:2048" if i & 1 else "") + NT())
    if after_loads: after_loads()
    stamp(a, 2)
    if OPT["earlypub"]:
        Lq = newlbl("epub2")
        a.e("s_cmp_eq_u32 s3, 0", f"s_cbranch_scc1 {Lq}")
        fin_epoch(a)
        a.label(Lq)
    else:
        fin_epoch(a)
        loc_publish(a)
    if shadow: shadow()
    def wv(n, extra):
        n += nyoung
        if extra and not OPT["earlypub"]:
            L = newlbl("wv")
            a.e(f"s_cbranch_scc1 {L}", f"s_waitcnt vmcnt({n})")
            a.label(L)
            a.e(f"s_waitcnt vmcnt({n+extra})")
        elif extra == 2 and OPT["earlypub"]:
            L = newlbl("wv")
            a.e(f"s_cbranch_scc1 {L}", f"s_waitcnt vmcnt({n})")
            a.label(L)
            a.e(f"s_waitcnt vmcnt({n+1})")
        else:
            a.e(f"s_waitcnt vmcnt({n})")
    a.e("s_cmp_eq_u32 s3, 0")
    wv(19, 1)
    for ch in range(4):
        for j in range(4):
            src = SHR + 2*ch + (j >> 1)
            if j & 1: a.e(f"v_and_b32 v{SHF+4*j+ch}, s{M}, v{src}")
            else:     a.e(f"v_lshlrev_b32 v{SHF+4*j+ch}, 16, v{src}")
    for i in range(11):
        wv(18-i, 1)
        for hf in range(2):
            a.e(f"v_lshlrev_b32 v{KF+4*i+2*hf}, 16, v{KR+2*i+hf}", f"v_and_b32 v{KF+4*i+2*hf+1}, s{M}, v{KR+2*i+hf}")
    loc_issue(a, 10)
    a.e("s_cmp_eq_u32 s3, 0")
    for i in range(8):
        wv(7-i, 2)
        if i == 7 and hook: hook()
        for hf in range(2):
            a.e(f"v_lshlrev_b32 v{TM+2*hf}, 16, v{VR+2*i+hf}", f"v_and_b32 v{TM+2*hf+1}, s{M}, v{VR+2*i+hf}")
        for hf in range(2):
            acc = KV+4*i+2*hf
            a.e(f"v_pk_mul_f32 {v(acc,2)}, {v(KF+4*(i+3)+2*hf,2)}, {v(SHF+2*hf,2)}")
            for j in range(1, 4):
                a.e(f"v_pk_fma_f32 {v(acc,2)}, {v(KF+4*(i+3-j)+2*hf,2)}, {v(SHF+4*j+2*hf,2)}, {v(acc,2)}")
            a.e(f"v_pk_mul_f32 {v(acc,2)}, {v(acc,2)}, {v(TM+2*hf,2)}")
    stamp(a, 3)
    for ch in range(4):
        for m in range(4):
            a.e(f"v_cvt_pk_bf16_f32 v{PK+4*ch+m}, v{KV+4*(7-2*m)+ch}, v{KV+4*(6-2*m)+ch}")
    sts = [f"buffer_store_dwordx4 {v(PK+4*ch,4)}, v{VST}, s[{SKVT}:{SKVT+3}], {SCR(ch)} offen" for ch in range(4)]
    if OPT["twoflag"]:
        for l in sts: a.e(l + (" nt" if OPT["ntscr"] else ""))
        stamp(a, 4)
        a.e(f"s_lshl_b32 s51, s{sCBKT}, 4", f"s_add_u32 s51, s51, s{sSUBT}", f"s_lshl_b32 s51, s51, {FB()}", f"s_add_u32 s92, s51, {SY_B1}")
        La = newlbl("siga")
        a.e("s_waitcnt vmcnt(0)", "s_barrier", "s_cmp_lg_u32 s3, 0", f"s_cbranch_scc1 {La}",
            "v_mov_b32 v14, s92", f"v_mov_b32 v15, s{S_TGT}", "s_mov_b64 exec, 1",
            f"buffer_store_dword v15, v14, s[{S_SYN}:{S_SYN+3}], 0 offen", "s_mov_b64 exec, -1")
        a.label(La)
        if after_stores: after_stores()
        loc_resolve(a, 10, nafter=nafter + 1 if after_stores else 1)
        Lo = newlbl("opt")
        a.e(f"s_cmp_lg_u32 s{sLOC}, 0", f"s_cbranch_scc1 {Lo}", "s_waitcnt vmcnt(0)")
        for l in sts: a.e(l + " sc1")
        a.e(f"s_add_u32 s51, s51, {SY_B1B}")
        signal(a, 51, 14)
        a.label(Lo)
        return
    if OPT["optst"]:
        for l in sts: a.e(l)
        if after_stores: after_stores()
        loc_resolve(a, 10, nafter=nafter)
        Lo = newlbl("opt")
        a.e(f"s_cmp_lg_u32 s{sLOC}, 0", f"s_cbranch_scc1 {Lo}", "s_waitcnt vmcnt(0)")
        for l in sts: a.e(l + " sc1")
        a.e("s_waitcnt vmcnt(0)")
        a.label(Lo)
    else:
        loc_resolve(a, 10)
        dual_store(a, sts)
    stamp(a, 4)
    a.e(f"s_lshl_b32 s51, s{sCBKT}, 4", f"s_add_u32 s51, s51, s{sSUBT}", f"s_lshl_b32 s51, s51, {FB()}", f"s_add_u32 s51, s51, {SY_B1}")
    signal(a, 51, 14, nafter=nafter, bloc=True)

B3_QR, B3_VQ, B3_VT, B3_VO = 208, 224, 225, 226
def emit_B3_pre_n(a):
    SQ, STT, SOUT = BT_S0, BT_S1, BT_S2
    srd(a, SQ, P_Q, P_Q+1, 4*MB); srd(a, SOUT, P_OUT, P_OUT+1, 8*MB)
    bt_setup(a)
    t = 227
    a.e(f"v_and_b32 v{t}, 15, v1", f"v_lshrrev_b32 v{t+1}, 4, v1",
        f"v_lshl_add_u32 v{t+1}, v{t+1}, 3, s{BT_ROW}", f"v_lshl_add_u32 v{t}, v{t}, 2, s{BT_CH}",
        f"v_lshlrev_b32 v{B3_VQ}, 11, v{t+1}", f"v_lshl_add_u32 v{B3_VQ}, v{t}, 1, v{B3_VQ}",
        f"v_lshlrev_b32 v{B3_VO}, 12, v{t+1}", f"v_lshl_add_u32 v{B3_VO}, v{t}, 1, v{B3_VO}", f"v_add_u32 v{B3_VO}, 2048, v{B3_VO}")
    a.e(f"v_and_b32 v{t}, 15, v1", f"v_lshrrev_b32 v{t+1}, 4, v1")
    scratch_addr(a, B3_VT, t, t+1)
    for i in range(8):
        a.e(f"buffer_load_dwordx2 {v(B3_QR+2*i,2)}, v{B3_VQ}, s[{SQ}:{SQ+3}], {BT_SOFF[i>>1]} offen" + (" offset:2048" if i & 1 else "") + NT())

def emit_B3_n(a):
    SQ, STT, SOUT = BT_S0, BT_S1, BT_S2
    soff = BT_SOFF; M = BT_MASK
    TR, TF, QF = 16, 48, 80
    a.e(f"s_mov_b32 s{M}, 0xffff0000")
    a.e(f"s_lshl_b32 s51, s{sCBKT}, {4+FB()}", f"s_add_u32 s51, s51, {SY_B2}",
        "v_and_b32 v12, 15, v1", f"v_lshlrev_b32 v12, {FB()}, v12", "v_add_u32 v12, s51, v12")
    a.e("s_waitcnt vmcnt(0)")
    for e in range(8):
        qf = QF + 4*e
        for hf in range(2):
            a.e(f"v_lshlrev_b32 v{qf+2*hf}, 16, v{B3_QR+2*e+hf}", f"v_and_b32 v{qf+2*hf+1}, s{M}, v{B3_QR+2*e+hf}")
    wait_flags(a, 12, 1, 13, 51)
    stamp(a, 10)
    for ch in range(4):
        a.e(f"buffer_load_dwordx4 {v(TR+4*ch,4)}, v{B3_VT}, s[{SOUT}:{SOUT+3}], {SCR(ch)} offen" + LDL())
    for ch in range(4):
        a.e(f"s_waitcnt vmcnt({3-ch})")
        for e in range(8):
            src = TR+4*ch+(e >> 1)
            if e & 1: a.e(f"v_and_b32 v{TF+4*e+ch}, s{M}, v{src}")
            else:     a.e(f"v_lshlrev_b32 v{TF+4*e+ch}, 16, v{src}")
    a.e("s_barrier")
    for e in range(8):
        qf = QF + 4*e
        for hf in range(2):
            a.e(f"v_pk_mul_f32 {v(qf+2*hf,2)}, {v(qf+2*hf,2)}, {v(TF+4*e+2*hf,2)}")
        pk = 112+2*e
        for hf in range(2):
            a.e(f"v_cvt_pk_bf16_f32 v{pk+hf}, v{qf+2*hf}, v{qf+2*hf+1}")
        a.e(f"buffer_store_dwordx2 {v(pk,2)}, v{B3_VO}, s[{SOUT}:{SOUT+3}], {soff[e]} offen" + NTOB())

def emit_B3_pre_w(a):
    SQ, STT, SOUT = BT_S0, BT_S1, BT_S2
    srd(a, SQ, P_Q, P_Q+1, 4*MB); srd(a, SOUT, P_OUT, P_OUT+1, 8*MB)
    bt_setup(a)
    t = 227
    a.e(f"v_and_b32 v{t}, 7, v1", f"v_lshrrev_b32 v{t+1}, 3, v1")
    a.e(f"s_lshl_b32 s51, s{sSUBT}, 7", "s_lshl_b32 s92, s3, 5", "s_add_u32 s51, s51, s92", "s_lshl_b32 s51, s51, 12",
        f"s_lshl_b32 s92, s{sCBKT}, 7", "s_add_u32 s51, s51, s92", "s_add_u32 s51, s51, 2048",
        f"v_lshlrev_b32 v{B3_VT}, 12, v{t}", f"v_lshl_add_u32 v{B3_VT}, v{t+1}, 3, v{B3_VT}", f"v_add_u32 v{B3_VT}, s51, v{B3_VT}",
        "s_mov_b32 s32, 32768", "s_mov_b32 s33, 65536", "s_mov_b32 s34, 98304")
    a.e(f"v_lshl_add_u32 v{t+1}, v{t+1}, 2, s{BT_ROW}", f"v_lshl_add_u32 v{t}, v{t}, 3, s{BT_CH}",
        f"v_lshlrev_b32 v{B3_VQ}, 11, v{t+1}", f"v_lshl_add_u32 v{B3_VQ}, v{t}, 1, v{B3_VQ}",
        f"v_lshlrev_b32 v{B3_VO}, 12, v{t+1}", f"v_lshl_add_u32 v{B3_VO}, v{t}, 1, v{B3_VO}", f"v_add_u32 v{B3_VO}, 2048, v{B3_VO}")
    for e in range(4):
        a.e(f"buffer_load_dwordx4 {v(B3_QR+4*e,4)}, v{B3_VQ}, s[{SQ}:{SQ+3}], {BT_SOFF[e>>1]} offen" + (" offset:2048" if e & 1 else "") + NT())

def emit_B3_w(a):
    SQ, STT, SOUT = BT_S0, BT_S1, BT_S2
    soff = BT_SOFF; M = BT_MASK
    TR, TF, QF = 16, 48, 80
    a.e(f"s_mov_b32 s{M}, 0xffff0000")
    a.e(f"s_lshl_b32 s51, s{sCBKT}, {4+FB()}", f"s_add_u32 s51, s51, {SY_B2}",
        "v_and_b32 v12, 15, v1", f"v_lshlrev_b32 v12, {FB()}, v12", "v_add_u32 v12, s51, v12")
    a.e("s_waitcnt vmcnt(0)")
    for e in range(4):
        for d in range(4):
            a.e(f"v_lshlrev_b32 v{QF+8*e+2*d}, 16, v{B3_QR+4*e+d}", f"v_and_b32 v{QF+8*e+2*d+1}, s{M}, v{B3_QR+4*e+d}")
    wait_flags(a, 12, 1, 13, 51)
    stamp(a, 10)
    for c in range(8):
        a.e(f"buffer_load_dwordx2 {v(TR+2*c,2)}, v{B3_VT}, s[{SOUT}:{SOUT+3}], {SCR(c & 3)} offen" + (" offset:64" if c >> 2 else "") + LDL())
    for c in range(8):
        a.e(f"s_waitcnt vmcnt({7-c})")
        for e in range(4):
            src = TR+2*c+(e >> 1)
            if e & 1: a.e(f"v_and_b32 v{TF+8*e+c}, s{M}, v{src}")
            else:     a.e(f"v_lshlrev_b32 v{TF+8*e+c}, 16, v{src}")
    a.e("s_barrier")
    for e in range(4):
        for d in range(4):
            a.e(f"v_pk_mul_f32 {v(QF+8*e+2*d,2)}, {v(QF+8*e+2*d,2)}, {v(TF+8*e+2*d,2)}")
        pk = 112+4*e
        for d in range(4):
            a.e(f"v_cvt_pk_bf16_f32 v{pk+d}, v{QF+8*e+2*d}, v{QF+8*e+2*d+1}")
        a.e(f"buffer_store_dwordx4 {v(pk,4)}, v{B3_VO}, s[{SOUT}:{SOUT+3}], {soff[e]} offen" + NTOB())

def emit_B3_pre(a): (emit_B3_pre_w if OPT["b3w"] else emit_B3_pre_n)(a)
def emit_B3(a): (emit_B3_w if OPT["b3w"] else emit_B3_n)(a)

def gen_A(a):
    ROLE[0] = 'A'
    SX, SI1, SWR, SWI, SI2, SOUT = 32, 36, 80, 84, 32, 36
    a.e(f"s_setprio {OPT['prioA']}") if OPT['prioA'] else None
    sT, sSA, sCB, sJ, sJM, sJP, sJQ, sTL = 40, 41, 42, 43, 72, 73, 74, 44
    def rows():
        srd(a, SI1, P_WS, P_WS+1, 4*MB, add=WS_I1)
        srd(a, SWR, P_WR, P_WR+1, WBYTES); srd(a, SWI, P_WI, P_WI+1, WBYTES)
        Lr = newlbl("reg")
        a.e("s_lshl_b32 s47, s3, 9", f"s_add_u32 s{sJ}, s{sT}, s47", f"s_mov_b32 s{sJP}, s{sT}", f"s_sub_u32 s{sJQ}, 512, s{sT}",
            f"s_cmp_lg_u32 s{sT}, 0", f"s_cbranch_scc1 {Lr}",
            f"s_mov_b32 s{sJQ}, 256", "s_lshl_b32 s47, s3, 2", "s_lshr_b32 s46, 0x3120, s47", "s_and_b32 s46, s46, 15", f"s_lshl_b32 s{sJ}, s46, 8")
        a.label(Lr)
        a.e(f"s_sub_u32 s{sJM}, 2048, s{sJ}", f"s_and_b32 s{sJM}, s{sJM}, 2047",
            f"s_mul_i32 s{sJ}, s{sJ}, 1026", f"s_mul_i32 s{sJM}, s{sJM}, 1026")
        a.e(f"s_or_b32 s75, s{sT}, s3")
    def wstage():
        a.e("v_lshlrev_b32 v243, 4, v1", "s_lshl_b32 s46, s3, 12", f"s_add_u32 s46, s46, {LW}")
        w_dma(a, SWR, SWI, sJ, sJM, 46, 243)
        pf_loads(a, SWR, SWI, sJ, sJM, PF, 244)
        if not OPT["spec2"]: wstage2()
    def wstage2():
        Ln = newlbl("now2")
        a.e("s_cmp_lg_u32 s75, 0", f"s_cbranch_scc1 {Ln}")
        a.e("v_lshlrev_b32 v243, 4, v1", f"s_mov_b32 s47, {1024*1026}", f"s_mov_b32 s46, {LW2}")
        w_dma(a, SWR, SWI, 47, 47, 46, 243)
        pf_loads(a, SWR, SWI, 47, 47, PF2, 244)
        a.label(Ln)
    if OPT["pairx"]:
        a.e(f"s_and_b32 s48, s{sCU}, 7", "s_lshl_b32 s48, s48, 4", f"s_lshr_b32 s49, s{sCU}, 4", "s_add_u32 s48, s48, s49",
            "s_sub_u32 s49, 256, s48", "s_cmp_eq_u32 s48, 0", "s_cselect_b32 s49, 128, s49",
            f"s_bitcmp1_b32 s{sCU}, 3", f"s_cselect_b32 s{sT}, s49, s48")
    else:
        a.e(f"s_mov_b32 s{sT}, s{sCU}")
    stamp(a, 0, True); stamp(a, 1)
    Lp1 = newlbl("nop1")
    if OPT["pA1a"] >= 0: a.e(f"s_setprio {OPT['pA1a']}")
    srd(a, SX, P_X, P_X+1, 4*MB)
    a.e(f"s_lshr_b32 s48, s{sCU}, 3", f"s_and_b32 s49, s{sCU}, 7", f"s_lshr_b32 s{sSA}, s48, 2", "s_bfe_u32 s50, s48, 0x10001",
        "s_lshl_b32 s50, s50, 3", "s_add_u32 s50, s50, s49", "s_lshl_b32 s50, s50, 1", "s_and_b32 s51, s48, 1", f"s_add_u32 s{sCB}, s50, s51")
    f256_loads(a, SX, sSA, sCB, NT() if OPT["ntx"] else "")
    stamp(a, 12)
    f256_setup(a)
    rows()
    wstage2()
    f256_run(a, SI1, 0)
    stamp(a, 4)
    if OPT["cearly"]:
        a.e("s_nop 1")
        a2_consts(a, sT)
    a.e(f"s_lshl_b32 s48, s{sCU}, {FA()}", f"s_add_u32 s48, s48, {SY_A1}")
    fin_epoch(a)
    signal(a, 48, 240)
    a.label(Lp1)
    pair_pubA(a)
    if OPT["pA1i"] >= 0 or OPT["pA1a"] >= 0: a.e(f"s_setprio {OPT['prioA']}")
    stamp(a, 5)
    if OPT["wlate"] == 2: wstage()
    srd(a, SI2, P_WS, P_WS+1, 4*MB, add=WS_I2)
    if not OPT["cearly"]: a2_consts(a, sT)
    a.e(f"v_lshl_add_u32 v{TMP}, v{G_}, 7, v{IDX}",
        "s_lshl_b32 s48, s3, 12", f"s_add_u32 s48, s48, {LW}",
        f"v_lshl_add_u32 v{VW}, v{TMP}, 1, s48",
        f"v_sub_u32 v{TMP+1}, {1023-32*27}, v{TMP}", f"s_add_u32 s49, s48, 2048", f"v_lshl_add_u32 v{VW+1}, v{TMP+1}, 1, s49")
    a.e(f"v_lshlrev_b32 v{VG}, 12, v{G_}", f"v_lshl_add_u32 v{VG}, v{IDX}, 2, v{VG}",
        "s_lshl_b32 s49, s3, 9",
        f"s_lshl_b32 s52, s{sJP}, 13", "s_add_u32 s52, s52, s49",
        f"s_lshl_b32 s53, s{sJQ}, 13", "s_add_u32 s53, s53, s49")
    a.e(f"s_lshl_b32 s54, s{sT}, 14", "s_add_u32 s54, s54, s49", f"s_sub_u32 s55, 256, s{sT}", "s_and_b32 s55, s55, 255", "s_lshl_b32 s55, s55, 14", "s_add_u32 s55, s55, s49",
        "s_add_u32 s56, s54, 8192", "s_add_u32 s57, s55, 8192")
    a.e(f"v_lshlrev_b32 v{VGW}, 12, v{G_}", f"v_lshl_add_u32 v{VGW}, v{IDX}, 3, v{VGW}", "s_lshl_b32 s50, s3, 10", f"v_add_u32 v{VGW}, s50, v{VGW}",
        f"v_lshlrev_b32 v{VRR}, 9, v{G_}", f"v_lshl_add_u32 v{VRR}, v{IDX}, 2, v{VRR}", "s_lshl_b32 s51, s3, 12", f"v_add_u32 v{VRR}, s51, v{VRR}")
    for t in range(1, 4): a.e(f"v_add_u32 v{VRR+t}, {1024*t}, v{VRR}")
    a.e(f"v_lshrrev_b32 v{TMP}, 4, v1", f"v_and_b32 v{TMP+1}, 1, v{TMP}", f"v_lshlrev_b32 v{VHR}, 13, v{TMP+1}",
        f"v_lshrrev_b32 v{TMP+1}, 1, v{TMP}", f"v_lshl_add_u32 v{VHR}, v{TMP+1}, 7, v{VHR}",
        f"v_and_b32 v{TMP+1}, 15, v1", f"v_lshl_add_u32 v{VHR}, v{TMP+1}, 3, v{VHR}", f"v_add_u32 v{VHR}, s50, v{VHR}")
    a.e(f"v_and_b32 v{TMP+2}, 1, v{TMP+1}", f"v_mov_b32 v{TMP+3}, s52", f"v_mov_b32 v{TMP+4}, s53",
        f"v_cmp_eq_u32 vcc, 1, v{TMP+2}", f"v_cndmask_b32 v{VST}, v{TMP+3}, v{TMP+4}, vcc",
        f"v_bfe_u32 v{TMP+2}, v{TMP+1}, 1, 2", f"v_lshl_add_u32 v{VST}, v{TMP+2}, 11, v{VST}",
        f"v_lshrrev_b32 v{TMP+2}, 3, v{TMP+1}", f"v_lshl_add_u32 v{VST}, v{TMP+2}, 6, v{VST}",
        f"v_lshl_add_u32 v{VST}, v{TMP}, 4, v{VST}")
    a.e(f"v_lshlrev_b32 v{TMP}, {FA()}, v1", f"v_add_u32 v{TMP}, {SY_A1}, v{TMP}")
    stamp(a, 6)
    wait_flags(a, TMP, 4, TMP+1, 48)
    if OPT["yieldB"] == 1: a_state(a, sCU, 1, TMP)
    stamp(a, 7)
    def gfrag(u, ks): return (GB if u < 2 else DF) + 8*(u & 1) + 4*ks
    for u in range(4):
        for ks in range(2):
            for sl in range(2):
                for pq in range(2):
                    a.e(f"buffer_load_dword v{gfrag(u,ks)+2*sl+pq}, v{VG}, s[{SI1}:{SI1+3}], s{54+2*ks+pq} offen offset:{2048*sl+128*u} " + GLD())
    NWL = 0
    if OPT["wlate"] == 1:
        wstage(); NWL = 8
        if not OPT["spec2"]:
            Lsw = newlbl("spw")
            a.e("s_cmp_lg_u32 s75, 0", f"s_cbranch_scc1 {Lsw}", "s_waitcnt vmcnt(0)")
            a.label(Lsw)
    for rnd in range(2):
        a.e(f"s_waitcnt vmcnt({16-16*rnd+NWL})")
        if rnd == OPT.get("yat", 1) and OPT["yieldB"] == 3:
            a_state(a, sCU, 1, 240)
        for uu in range(2):
            u = 2*rnd+uu
            D = ARE if uu == 0 else AIM
            a.e(f"v_mfma_f32_32x32x16_bf16 {v(D,16)}, {v(GA,4)}, {v(gfrag(u,0),4)}, 0",
                f"v_mfma_f32_32x32x16_bf16 {v(D,16)}, {v(GA2,4)}, {v(gfrag(u,1),4)}, {v(D,16)}")
        for uu in range(2):
            u = 2*rnd+uu
            D = ARE if uu == 0 else AIM
            t = TMP+4*uu
            for h in range(2):
                a.e(f"v_cvt_pk_bf16_f32 v{t}, v{D+4*h}, v{D+4*h+1}", f"v_cvt_pk_bf16_f32 v{t+1}, v{D+4*h+2}, v{D+4*h+3}",
                    f"ds_write_b64 v{VGW}, {v(t,2)} offset:{256*u+8192*h}")
                t += 2
    a.e("s_waitcnt lgkmcnt(0)", "s_barrier")
    stamp(a, 8)
    if OPT["qA"] and not OPT["a3all"]:
        Lq = newlbl("noqA")
        a.e(f"s_cmp_lg_u32 s{sACT}, 0", f"s_cbranch_scc1 {Lq}")
        emit_B3_pre(a)
        a.label(Lq)
    for t in range(4):
        a.e(f"ds_read2_b32 {v(DF+4*t,2)}, v{VRR+t} offset0:0 offset1:32", f"ds_read2_b32 {v(DF+4*t+2,2)}, v{VRR+t} offset0:64 offset1:96")
    a.e("s_waitcnt lgkmcnt(0)")
    Lsp, Linv, Lfwd, Lpre = newlbl("special"), newlbl("inv"), newlbl("fwd"), newlbl("pre")
    sPASS = 45
    if OPT["spec2"]:
        a.e(f"s_mov_b32 s{sPASS}, 0", "s_cmp_lg_u32 s75, 0", f"s_cbranch_scc1 {Lpre}")
        for i in range(16): a.e(f"v_lshrrev_b32 v{GB+i}, 16, v{DF+i}", f"v_and_b32 v{DF+i}, 0xffff, v{DF+i}")
        a.label(Lpre)
    def wmid():
        Lk = newlbl("wskip")
        if OPT["spec2"]: a.e(f"s_cmp_lg_u32 s{sPASS}, 0", f"s_cbranch_scc1 {Lk}")
        if OPT["qA"] and not OPT["a3all"]:
            L1, L2 = newlbl("wa"), newlbl("wb")
            a.e(f"s_cmp_lg_u32 s{sACT}, 0", f"s_cbranch_scc1 {L1}", "s_waitcnt vmcnt(8)", f"s_branch {L2}")
            a.label(L1); a.e("s_waitcnt vmcnt(0)"); a.label(L2)
        else:
            a.e("s_waitcnt vmcnt(0)")
        w_lds_reads(a, VW, VW+1, WR, WI)
        a.label(Lk)
    if OPT["wlate"] == 1:
        a.label(Lfwd); a.e("s_nop 1")
        fft1024(a, mid=wmid)
    else:
        w_lds_reads(a, VW, VW+1, WR, WI)
        a.label(Lfwd); a.e("s_nop 1")
        fft1024(a)
    a.e("s_waitcnt lgkmcnt(0)")
    Lnf = newlbl("nofix")
    if OPT["spec2"]: a.e(f"s_cmp_lg_u32 s{sPASS}, 0", f"s_cbranch_scc1 {Lnf}")
    fix_w(a, WR, WI, PF)
    a.label(Lnf)
    a.e("s_cmp_eq_u32 s75, 0", f"s_cbranch_scc1 {Lsp}")
    for p in range(8):
        xr, xi, wr, wi = ARE+2*p, AIM+2*p, WR+2*p, WI+2*p
        t0 = TMP+4*(p & 1); t1 = t0+2
        n0 = " neg_lo:[1,0,0] neg_hi:[1,0,0]" if p < 4 else ""
        n1 = "" if p < 4 else " neg_lo:[1,0,0] neg_hi:[1,0,0]"
        a.e(f"v_pk_mul_f32 {v(t0,2)}, {v(xr,2)}, {v(wr,2)}", f"v_pk_mul_f32 {v(t1,2)}, {v(xi,2)}, {v(wr,2)}",
            f"v_pk_fma_f32 {v(t0,2)}, {v(xi,2)}, {v(wi,2)}, {v(t0,2)}{n0}",
            f"v_pk_fma_f32 {v(t1,2)}, {v(xr,2)}, {v(wi,2)}, {v(t1,2)}{n1}")
        for e in range(2):
            a.e(f"v_cvt_pk_bf16_f32 v{DF+2*p+e}, v{t0+e}, -v{t1+e}")
    a.label(Linv)
    a.e("s_nop 1")
    fft1024(a)
    for r in range(16):
        t = TMP + (r & 7)
        a.e(f"v_cvt_pk_bf16_f32 v{t}, v{ARE+r}, v{AIM+r}", f"ds_write_b32 v{VRR}, v{t} offset:{128*eidx(r)}")
    a.e("s_waitcnt lgkmcnt(0)", "s_barrier")
    if OPT["yieldB"]:
        Ly = newlbl("y0a")
        if OPT["y0"]: a.e(f"s_cmp_lg_u32 s{sT}, 0", f"s_cbranch_scc1 {Ly}")
        a_state(a, sCU, 2, TMP)
        a.label(Ly)
    stamp(a, 9)
    for u in range(4):
        for sl in range(2):
            a.e(f"ds_read_b64 {v(GB+4*u+2*sl,2)}, v{VHR} offset:{4096*sl+256*u}")
    a.e("s_lshl_b32 s49, s3, 9")
    for u in range(4):
        a.e(f"s_waitcnt lgkmcnt({6-2*u})")
        a.e(f"v_mfma_f32_16x16x32_bf16 {v(ARE+4*u,4)}, {v(GB+4*u,4)}, {v(HRE,4)}, 0",
            f"v_mfma_f32_16x16x32_bf16 {v(AIM+4*u,4)}, {v(GB+4*u,4)}, {v(HIM,4)}, 0")
    for u in range(4):
        for r in range(4):
            a.e(f"v_cvt_pk_bf16_f32 v{DF+4*u+r}, v{ARE+4*u+r}, v{AIM+4*u+r}")
        a.e(f"buffer_store_dwordx4 {v(DF+4*u,4)}, v{VST}, s[{SI2}:{SI2+3}], 0 offen offset:{128*u} sc1")
    dstamp(a, 6); dpublish(a, sT)
    a.e(f"s_lshl_b32 s48, s{sT}, {FA()}", f"s_add_u32 s48, s48, {SY_A2}")
    signal(a, 48, TMP)
    stamp(a, 10)
    Lb3 = newlbl("b3")
    if OPT["a3all"]:
        srd(a, SOUT, P_OUT, P_OUT+1, 8*MB)
        a.e(f"s_lshr_b32 s48, s{sCU}, 3", f"s_and_b32 s49, s{sCU}, 7", f"s_lshr_b32 s{sSA}, s48, 3", "s_bfe_u32 s50, s48, 0x10002",
            "s_lshl_b32 s50, s50, 3", "s_add_u32 s50, s50, s49", "s_lshl_b32 s50, s50, 2", "s_and_b32 s51, s48, 3", f"s_add_u32 s{sCB}, s50, s51")
        f8_addr(a, sSA, sCB, 4096, 16384)
        f8_consts(a)
        a.e(f"v_lshlrev_b32 v{F_TMP}, {FA()}, v1", f"v_add_u32 v{F_TMP}, {SY_A2}, v{F_TMP}")
        wait_flags(a, F_TMP, 4, F_TMP+1, 48, skip0=47 if OPT["t0late"] else None)
        stamp(a, 11)
        PHASE[0] = 3
        fstamp(a, 11)
        f8_run(a, SI2, SOUT, {0: "sc1", 1: "nt", 2: ""}[OPT["i2ld"]], NTO(), sT0=47 if OPT["t0late"] else None)
    else:
        a.e(f"s_cmp_eq_u32 s{sACT}, 0", f"s_cbranch_scc1 {Lb3}")
        srd(a, SOUT, P_OUT, P_OUT+1, 8*MB)
        fft512_addr(a, sSA, sCB)
        fft512_addr2(a, sSA, sCB, 4096, 16384)
        fft512_consts(a)
        a.e(f"v_lshlrev_b32 v{F_TMP}, {FA()}, v1", f"v_add_u32 v{F_TMP}, {SY_A2}, v{F_TMP}")
        wait_flags(a, F_TMP, 4, F_TMP+1, 48)
        stamp(a, 11)
        PHASE[0] = 3
        fstamp(a, 11)
        fft512_loads(a, SI2, "sc1")
        fstamp(a, 3)
        save = gen.PROF; gen.PROF = False
        fft512_compute(a, SOUT, True, 0, NTO(), 0)
        gen.PROF = save
    a.e("s_cmp_lg_u32 s75, 0", "s_cbranch_scc1 L_fin")
    Lb1, Lb2 = newlbl("bchk"), newlbl("bchkd")
    a.e("v_lshlrev_b32 v2, 6, v1", f"v_add_u32 v2, {SY_ID}, v2", f"s_lshl_b32 s49, s{S_TGT}, 4", "s_mov_b32 s48, 0")
    a.label(Lb1)
    NS = NMEM()*8//64
    for i in range(NS):
        a.e(f"s_mov_b32 s50, {4096*i}", f"buffer_load_dword v{4+i}, v2, s[{S_SYN}:{S_SYN+3}], s50 offen sc1")
    a.e("s_add_u32 s48, s48, 1", "s_waitcnt vmcnt(0)")
    for i in range(NS): a.e(f"v_xor_b32 v{4+i}, s49, v{4+i}")
    for i in range(1, NS): a.e(f"v_or_b32 v4, v4, v{4+i}")
    a.e("v_lshrrev_b32 v4, 4, v4", "v_cmp_ne_u32 vcc, 0, v4", f"s_cbranch_vccz {Lb2}", f"s_cmp_lt_u32 s48, {SPIN_LIMIT}", f"s_cbranch_scc1 {Lb1}")
    a.label(Lb2)
    dreduce(a)
    pair_sum(a)
    a.e(f"s_mov_b32 s48, {SY_E}")
    bump(a, 48, 2)
    a.e("s_branch L_fin")
    if not OPT["a3all"]:
        a.label(Lb3)
        if not OPT["qA"]: emit_B3_pre(a)
        emit_B3(a)
        a.e("s_branch L_fin")
    a.label(Lsp)
    if OPT["spec2"]:
        Lp1s = newlbl("sp1")
        NEG = " neg_lo:[1,0,0] neg_hi:[1,0,0]"
        a.e(f"s_cmp_lg_u32 s{sPASS}, 0", f"s_cbranch_scc1 {Lp1s}")
        a.e(f"v_lshl_add_u32 v{SP}, v{G_}, 7, v{IDX}", f"v_sub_u32 v{SP+1}, {1023-32*27}, v{SP}",
            f"s_mov_b32 s48, {LW2}", f"v_lshl_add_u32 v{SP+2}, v{SP}, 1, s48", f"s_mov_b32 s49, {LW2+2048}", f"v_lshl_add_u32 v{SP+3}, v{SP+1}, 1, s49")
        w_lds_reads(a, SP+2, SP+3, W2R, W2I)
        for p in range(8):
            xr, xi, wr, wi = ARE+2*p, AIM+2*p, WR+2*p, WI+2*p
            t0 = TMP+4*(p & 1); t1 = t0+2
            n0 = NEG if p < 4 else ""; n1 = "" if p < 4 else NEG
            a.e(f"v_pk_mul_f32 {v(t0,2)}, {v(xr,2)}, {v(wr,2)}", f"v_pk_mul_f32 {v(t1,2)}, {v(xi,2)}, {v(wr,2)}",
                f"v_pk_fma_f32 {v(wr,2)}, {v(xi,2)}, {v(wi,2)}, {v(t0,2)}{n0}",
                f"v_pk_fma_f32 {v(wi,2)}, {v(xr,2)}, {v(wi,2)}, {v(t1,2)}{n1}")
        for i in range(16): a.e(f"v_mov_b32 v{DF+i}, v{GB+i}")
        a.e(f"s_mov_b32 s{sPASS}, 1", f"s_branch {Lfwd}")
        a.label(Lp1s)
        fix_w(a, W2R, W2I, PF2)
        for p in range(8):
            xr, xi, br, bi, r1r, r1i = ARE+2*p, AIM+2*p, W2R+2*p, W2I+2*p, WR+2*p, WI+2*p
            t0 = TMP+4*(p & 1); t1 = t0+2
            n0 = NEG if p < 4 else ""; n1 = "" if p < 4 else NEG
            a.e(f"v_pk_mul_f32 {v(t0,2)}, {v(xr,2)}, {v(br,2)}", f"v_pk_mul_f32 {v(t1,2)}, {v(xi,2)}, {v(br,2)}",
                f"v_pk_fma_f32 {v(t0,2)}, {v(xi,2)}, {v(bi,2)}, {v(t0,2)}{n0}",
                f"v_pk_fma_f32 {v(t1,2)}, {v(xr,2)}, {v(bi,2)}, {v(t1,2)}{n1}",
                f"v_pk_add_f32 {v(t1,2)}, {v(r1r,2)}, {v(t1,2)} neg_lo:[0,1] neg_hi:[0,1]",
                f"v_pk_add_f32 {v(t0,2)}, {v(r1i,2)}, {v(t0,2)}")
            for e in range(2):
                a.e(f"v_cvt_pk_bf16_f32 v{DF+2*p+e}, v{t1+e}, -v{t0+e}")
        a.e(f"s_branch {Linv}")
        return
    a.e(f"v_lshl_add_u32 v{TMP}, v{G_}, 7, v{IDX}", f"v_sub_u32 v{TMP+1}, {1023-32*27}, v{TMP}",
        f"s_mov_b32 s48, {LW2}", f"v_lshl_add_u32 v{TMP+2}, v{TMP}, 1, s48", f"s_mov_b32 s49, {LW2+2048}", f"v_lshl_add_u32 v{TMP+3}, v{TMP+1}, 1, s49")
    w_lds_reads(a, TMP+2, TMP+3, W2R, W2I)
    a.e("s_waitcnt lgkmcnt(0)")
    fix_w(a, W2R, W2I, PF2)
    VS = SP; K0 = SP+1
    a.e(f"v_lshlrev_b32 v{VS}, 9, v{G_}", f"v_lshl_add_u32 v{VS}, v{IDX}, 2, v{VS}")
    for r in range(16):
        a.e(f"ds_write_b32 v{VS}, v{ARE+r} offset:{LSC+128*eidx(r)}", f"ds_write_b32 v{VS}, v{AIM+r} offset:{LSC+4096+128*eidx(r)}")
    a.e(f"v_lshl_add_u32 v{K0}, v{G_}, 7, v{IDX}", f"v_sub_u32 v{K0}, 1024, v{K0}", "s_waitcnt lgkmcnt(0)")
    for r in range(16):
        ad, rr, ri, ur, ui, vr, vi, o0, o1 = [SP+2+i for i in range(9)]
        a.e(f"v_subrev_u32 v{ad}, {32*eidx(r)}, v{K0}", f"v_and_b32 v{ad}, 1023, v{ad}", f"v_lshlrev_b32 v{ad}, 2, v{ad}",
            f"ds_read_b32 v{rr}, v{ad} offset:{LSC}", f"ds_read_b32 v{ri}, v{ad} offset:{LSC+4096}", "s_waitcnt lgkmcnt(0)")
        pr, pi_ = ARE+r, AIM+r
        a.e(f"v_add_f32 v{ur}, v{pr}, v{rr}", f"v_sub_f32 v{ui}, v{pi_}, v{ri}",
            f"v_sub_f32 v{vr}, v{pr}, v{rr}", f"v_add_f32 v{vi}, v{pi_}, v{ri}")
        sg = "-" if r < 8 else ""; ns = "" if r < 8 else "-"
        ar, ai, br, bi = WR+r, WI+r, W2R+r, W2I+r
        a.e(f"v_mul_f32 v{o0}, v{ur}, v{ar}", f"v_fma_f32 v{o0}, {sg}v{ui}, v{ai}, v{o0}",
            f"v_fma_f32 v{o0}, v{vr}, v{br}, v{o0}", f"v_fma_f32 v{o0}, {sg}v{vi}, v{bi}, v{o0}",
            f"v_mul_f32 v{o1}, v{ui}, v{ar}", f"v_fma_f32 v{o1}, {ns}v{ur}, v{ai}, v{o1}",
            f"v_fma_f32 v{o1}, v{vi}, v{br}, v{o1}", f"v_fma_f32 v{o1}, {ns}v{vr}, v{bi}, v{o1}",
            f"v_mul_f32 v{o0}, 0.5, v{o0}", f"v_mul_f32 v{o1}, 0.5, v{o1}",
            f"v_cvt_pk_bf16_f32 v{DF+r}, v{o0}, -v{o1}")
    a.e(f"s_branch {Linv}")

def h_dma(a, SH, sLB, sD4K):
    a.e("v_lshlrev_b32 v235, 4, v1")
    a.e(f"s_add_u32 s74, s{sLB}, 32", "s_mov_b32 m0, s74")
    for ch in range(4): a.e(f"buffer_load_dwordx4 v235, s[{SH}:{SH+3}], s{sD4K} offen offset:{1024*ch} lds" + (NT() if OPT["nth"] else ""))
    a.e(f"s_add_u32 s74, s{sLB}, 4192", f"s_add_u32 s75, s{sD4K}, 2", "s_mov_b32 m0, s74")
    for ch in range(4): a.e(f"buffer_load_dwordx4 v235, s[{SH}:{SH+3}], s75 offen offset:{1024*ch} lds" + (NT() if OPT["nth"] else ""))
    a.e("v_mov_b32 v233, 0x7ffffff0", f"v_mov_b32 v234, s{sD4K}", "v_cmp_eq_u32 vcc, 15, v1", "v_cndmask_b32 v233, v233, v234, vcc",
        f"buffer_load_short_d16_hi v230, v233, s[{SH}:{SH+3}], 0 offen")

def gen_B(a):
    ROLE[0] = 'B'
    SH, STT, SKVT = 80, 84, 32
    a.e(f"s_setprio {OPT['prioB']}") if OPT['prioB'] else None
    srd(a, SH, P_SSMK, P_SSMK+1, 4*MB); srd(a, STT, P_OUT, P_OUT+1, 8*MB)
    sCBK, sSUB, sD, sD4K, sLB, sDV, sF1, sF2, sMASK = 40, 41, 42, 43, 44, 45, 46, 47, 72
    a.e(f"s_and_b32 s{sCBK}, s2, 15",
        f"s_lshr_b32 s{sSUB}, s2, 4",
        f"s_lshl_b32 s{sD}, s{sCBK}, 4", f"s_add_u32 s{sD}, s{sD}, s{sSUB}", f"s_lshl_b32 s{sD}, s{sD}, 2", f"s_add_u32 s{sD}, s{sD}, s3",
        f"s_lshl_b32 s{sD4K}, s{sD}, 12", f"s_mul_i32 s{sLB}, s3, {LB_STRIDE}", f"s_mov_b32 s{sMASK}, 0xffff0000")
    sSB = 36
    if OPT["fullline"]:
        a.e(f"s_and_b32 s73, s{sD}, 3", "s_lshl_b32 s73, s73, 15", f"s_bfe_u32 s74, s{sD}, 0x30003", "s_lshl_b32 s74, s74, 12", "s_add_u32 s73, s73, s74",
            f"s_bfe_u32 s74, s{sD}, 0x10002", "s_lshl_b32 s74, s74, 6", "s_add_u32 s73, s73, s74",
            f"s_lshl_b32 s74, s{sCBK}, 7", "s_add_u32 s73, s73, s74", f"s_add_u32 s{sSB}, s73, 2048")
    else:
        a.e(f"s_and_b32 s73, s{sD}, 63", "s_lshl_b32 s73, s73, 13", f"s_lshl_b32 s74, s{sCBK}, 7", "s_add_u32 s73, s73, s74", f"s_add_u32 s{sSB}, s73, 2048")
    for i in range(1, 4): a.e(f"s_add_u32 s{sSB+i}, s{sSB}, {i*2*MB}")
    a.e(f"s_lshl_b32 s73, s{sCBK}, {4+FB()}", f"s_add_u32 s{sF1}, s73, {SY_B1}", f"s_lshl_b32 s74, s{sSUB}, {FB()}", "s_add_u32 s73, s73, s74", f"s_add_u32 s{sF2}, s73, {SY_B2}")
    a.e(f"s_and_b32 s73, s{sD}, 0xfffffffe", "s_lshl_b32 s73, s73, 1", f"s_load_dword s{sDV}, s[{P_SSMD}:{P_SSMD+1}], s73")
    stamp(a, 0, True); stamp(a, 1)
    Lidle, Lsetup = newlbl("bidle"), newlbl("bsetup")
    if OPT["pB1"]: a.e(f"s_setprio {OPT['pB1']}")
    if OPT["b1all"]:
        a.e(f"s_mov_b32 s{sCBKT}, s{sCBK}", f"s_mov_b32 s{sSUBT}, s{sSUB}")
        if OPT["hfirst"]:
            emit_B1(a, after_loads=lambda: h_dma(a, SH, sLB, sD4K), nyoung=9)
        elif OPT["hearly"] and not OPT["hlate"]:
            emit_B1(a, after_stores=lambda: h_dma(a, SH, sLB, sD4K), nafter=9)
        else:
            emit_B1(a)
            if not OPT["hlate"]: h_dma(a, SH, sLB, sD4K)
    else:
        a.e(f"s_cmp_lg_u32 s{sACT}, 0", f"s_cbranch_scc1 {Lidle}")
        if OPT["hearly"] and not OPT["hlate"]:
            emit_B1(a, after_stores=lambda: h_dma(a, SH, sLB, sD4K), nafter=9)
        else:
            emit_B1(a)
            if not OPT["hlate"]: h_dma(a, SH, sLB, sD4K)
        a.e(f"s_branch {Lsetup}")
        a.label(Lidle)
        if OPT["tlb"] or OPT["cpf"]: warm(a)
        fin_epoch(a)
        loc_publish(a)
        loc_issue(a, 10)
        loc_resolve(a, 10, barrier=False)
        if not OPT["hlate"]:
            for _ in range(OPT["hactdelay"]):
                a.e("v_and_b32 v12, 15, v1", f"v_lshlrev_b32 v12, {FB()}, v12", f"v_add_u32 v12, s{sF1}, v12",
                    f"buffer_load_dword v13, v12, s[{S_SYN}:{S_SYN+3}], 0 offen sc1", "s_waitcnt vmcnt(0)")
            h_dma(a, SH, sLB, sD4K)
    a.label(Lsetup)
    if OPT["pB1"]: a.e(f"s_setprio {OPT['prioB']}")
    stamp(a, 12)
    if OPT["yieldB"] >= 2 and OPT["yinit"]:
        a_state(a, sCU, 0, 233)
    LN16, B_, G4, VA, VB, VE, VS2, T = 2, 3, 4, 5, 9, 10, 11, 12
    a.e(f"v_lshlrev_b32 v{T}, 2, v1",
        f"v_add_u32 v{T+1}, {4160-32}, v{T}", "v_cmp_le_u32 vcc, 8, v1", f"v_cndmask_b32 v{T+3}, v{T}, v{T+1}, vcc",
        f"v_add_u32 v{T+1}, 8288, v{T}", "v_cmp_le_u32 vcc, 16, v1", f"v_cndmask_b32 v{T+3}, v{T+3}, v{T+1}, vcc",
        f"v_add_u32 v231, s{sLB}, v{T+3}")
    a.e(f"v_lshlrev_b32 v{T}, 3, v1", f"v_add_u32 v{T}, s{sLB}, v{T}", "v_mov_b32 v16, 0", "v_mov_b32 v17, 0", f"ds_write_b64 v{T}, v[16:17] offset:8288")
    a.e(f"v_and_b32 v{B_}, 15, v1", f"v_lshrrev_b32 v{G4}, 4, v1")
    a.e(f"v_and_b32 v{VA}, 1, v{B_}", f"v_xor_b32 v{VA}, 1, v{VA}", f"v_mul_u32_u24 v{VA}, 4160, v{VA}",
        f"v_add_u32 v{VA+1}, 1, v{B_}", f"v_lshrrev_b32 v{VA+1}, 1, v{VA+1}", f"v_lshl_add_u32 v{VA}, v{VA+1}, 2, v{VA}",
        f"v_lshlrev_b32 v{VA+1}, 4, v{G4}", f"v_sub_u32 v{VA}, v{VA}, v{VA+1}",
        f"s_add_u32 s73, s{sLB}, 16", f"v_add_u32 v{VA}, s73, v{VA}")
    for pp in range(1, 4): a.e(f"v_add_u32 v{VA+pp}, {1024*pp}, v{VA}")
    a.e(f"v_lshlrev_b32 v{VB}, 5, v{B_}", f"v_lshl_add_u32 v{VB}, v{G4}, 4, v{VB}",
        f"s_add_u32 s73, s{sLB}, {8800-480}", f"v_add_u32 v{VB}, s73, v{VB}")
    a.e(f"v_lshrrev_b32 v18, 1, v{G4}", f"v_lshlrev_b32 v19, 4, v18", f"v_lshl_add_u32 v19, v{B_}, 5, v19",
        f"v_and_b32 v18, 1, v{G4}", "v_xor_b32 v18, 1, v18", f"v_lshl_add_u32 v19, v18, 3, v19",
        f"s_add_u32 s73, s{sLB}, 8800", f"v_add_u32 v232, s73, v19")
    if OPT["fullline"]:
        a.e(f"v_lshrrev_b32 v18, 3, v{B_}", f"v_lshlrev_b32 v{VS2}, 19, v18", f"v_bfe_u32 v18, v{B_}, 1, 2", f"v_lshl_add_u32 v{VS2}, v18, 17, v{VS2}",
            f"v_and_b32 v18, 1, v{G4}", f"v_lshl_add_u32 v{VS2}, v18, 20, v{VS2}", f"v_and_b32 v18, 1, v{B_}", f"v_lshl_add_u32 v{VS2}, v18, 5, v{VS2}",
            f"v_lshrrev_b32 v18, 1, v{G4}", f"v_lshl_add_u32 v{VS2}, v18, 4, v{VS2}")
        a.e(f"v_lshlrev_b32 v{LN16}, 19, v{G4}", "v_bfe_u32 v18, v1, 2, 2", f"v_lshl_add_u32 v{LN16}, v18, 17, v{LN16}",
            "v_and_b32 v18, 3, v1", f"v_lshl_add_u32 v{LN16}, v18, 4, v{LN16}")
    else:
        a.e(f"v_lshrrev_b32 v18, 3, v{B_}", f"v_lshlrev_b32 v{VS2}, 19, v18", f"v_bfe_u32 v18, v{B_}, 2, 1", f"v_lshl_add_u32 v{VS2}, v18, 12, v{VS2}",
            f"v_and_b32 v18, 1, v{G4}", f"v_lshl_add_u32 v{VS2}, v18, 20, v{VS2}", f"v_and_b32 v18, 3, v{B_}", f"v_lshl_add_u32 v{VS2}, v18, 5, v{VS2}",
            f"v_lshrrev_b32 v18, 1, v{G4}", f"v_lshl_add_u32 v{VS2}, v18, 4, v{VS2}")
        a.e(f"v_lshlrev_b32 v{LN16}, 19, v{G4}", "v_bfe_u32 v18, v1, 3, 1", f"v_lshl_add_u32 v{LN16}, v18, 12, v{LN16}",
            "v_and_b32 v18, 7, v1", f"v_lshl_add_u32 v{LN16}, v18, 4, v{LN16}")
    a.e("v_lshlrev_b32 v18, 4, v1", f"s_add_u32 s73, s{sLB}, 8800", "v_add_u32 v19, s73, v18")
    a.e("s_waitcnt lgkmcnt(0)",
        f"s_and_b32 s73, s{sD}, 1", f"s_lshl_b32 s74, s{sDV}, 16", f"s_and_b32 s75, s{sDV}, 0xffff0000",
        "s_cmp_eq_u32 s73, 1", f"s_cselect_b32 s{sDV}, s75, s74")
    if OPT["twoflag"]:
        a.e(f"s_add_u32 s73, s{sF1}, {SY_B1B-SY_B1}", f"s_cmp_lg_u32 s{sLOC}, 0", f"s_cselect_b32 s{sF1}, s{sF1}, s73")
    a.e(f"v_and_b32 v{T}, 15, v1", f"v_lshlrev_b32 v{T}, {FB()}, v{T}", f"v_add_u32 v{T}, s{sF1}, v{T}")
    stamp(a, 5)
    wait_flags(a, T, 1, T+1, 73)
    loc_read(a, 12)
    stamp(a, 6)
    VE = 232
    ACC = 20
    SETS = [(52, 84), (116, 148)]
    U = SETS[1][1]
    for ch in range(4):
        a.e(f"buffer_load_dwordx4 {v(U+4*ch,4)}, v{LN16}, s[{STT}:{STT+3}], s{sSB+ch} offen" + LDL())
    def reads(rho, st):
        A, B = SETS[st]
        out = []
        for p in range(8):
            o = 8*rho + 128*(p & 1)
            out.append(f"ds_read2_b32 {v(A+4*p,2)}, v{VA+(p>>1)} offset0:{o} offset1:{o+1}")
            out.append(f"ds_read2_b32 {v(A+4*p+2,2)}, v{VA+(p>>1)} offset0:{o+2} offset1:{o+3}")
        outb = [f"ds_read_b128 {v(B+4*q,4)}, v{VB} offset:{512*q+32*(15-rho)}" for q in range(8)]
        return out, outb
    rhos = list(range(1, 16, 2))
    ra, rb = reads(rhos[0], 0)
    if OPT["hlate"]:
        h_dma(a, SH, sLB, sD4K)
        for ch in range(4):
            a.e(f"s_waitcnt vmcnt({3-ch+9})", f"ds_write_b128 v19, {v(U+4*ch,4)} offset:{1024*ch}")
        a.e("s_waitcnt vmcnt(0)", "ds_write_b32 v231, v230", "s_waitcnt lgkmcnt(0)")
        for r in ra: a.e(r)
    else:
        a.e("s_waitcnt vmcnt(4)", "ds_write_b32 v231, v230")
        a.e("s_waitcnt lgkmcnt(0)")
        for r in ra: a.e(r)
        for ch in range(4):
            a.e(f"s_waitcnt vmcnt({3-ch})", f"ds_write_b128 v19, {v(U+4*ch,4)} offset:{1024*ch}")
    a.e("s_waitcnt lgkmcnt(0)")
    for r in rb: a.e(r)
    if OPT["yieldB"]:
        Ly = newlbl("y0b")
        if OPT["y0"]: a.e("s_cmp_lg_u32 s2, 0", f"s_cbranch_scc1 {Ly}")
        if not (OPT["yieldB"] == 2 and OPT["ymid"]): b_yield(a, 233)
        a.label(Ly)
    Lnq = newlbl("noq")
    if OPT["a3all"]:
        a.e(f"s_mov_b32 s{sCBKT}, s{sCBK}", f"s_mov_b32 s{sSUBT}, s{sSUB}")
        if OPT["yieldB"] != 3 and not OPT["qlate"]: emit_B3_pre(a)
    else:
        a.e(f"s_cmp_lg_u32 s{sACT}, 0", f"s_cbranch_scc1 {Lnq}")
        emit_B3_pre(a)
        a.label(Lnq)
    stamp(a, 7)
    for ci, rho in enumerate(rhos):
        st = ci & 1
        A, B = SETS[st]
        if ci+1 < len(rhos):
            ra, rb = reads(rhos[ci+1], st ^ 1); nxt = ra[0:2] + rb + ra[2:]
        else:
            nxt = [f"ds_read_b64 {v(SETS[st^1][0]+2*j,2)}, v{VE} offset:{512*j}" for j in range(8)]
        if OPT["yieldB"] == 3: b_yield_step(a, 233, ci == len(rhos)-1)
        if OPT["yieldB"] == 2 and OPT["ymid"] and ci == OPT["ymid"]: b_yield(a, 233)
        a.e("s_waitcnt lgkmcnt(0)")
        n = 0
        for p in range(8):
            for q in range(8-p):
                j = p+q
                c = "0" if (ci == 0 and p == 0) else v(ACC+4*j, 4)
                a.e(f"v_mfma_f32_16x16x32_bf16 {v(ACC+4*j,4)}, {v(A+4*p,4)}, {v(B+4*q,4)}, {c}")
                if n < len(nxt): a.e(nxt[n])
                n += 1
    KVR = SETS[0][0]; TMv = 116
    if (OPT["yieldB"] == 3 or OPT["qlate"]) and OPT["a3all"]: emit_B3_pre(a)
    a.e("s_waitcnt lgkmcnt(0)")
    stamp(a, 8)
    sts = []
    for jp in range(4):
        base = TMv + 8*jp
        for hh in range(2):
            j = 2*jp+hh
            w0, w1 = KVR+2*j, KVR+2*j+1
            t = 172
            a.e(f"v_and_b32 v{t}, s{sMASK}, v{w1}", f"v_lshlrev_b32 v{t+1}, 16, v{w1}",
                f"v_and_b32 v{t+2}, s{sMASK}, v{w0}", f"v_lshlrev_b32 v{t+3}, 16, v{w0}")
            for r in range(4):
                a.e(f"v_fma_f32 v{t+r}, v{t+r}, s{sDV}, v{ACC+4*j+r}")
            a.e(f"v_cvt_pk_bf16_f32 v{base+2*hh}, v{t}, v{t+1}", f"v_cvt_pk_bf16_f32 v{base+2*hh+1}, v{t+2}, v{t+3}")
        a.e(f"v_permlane16_swap_b32 v{base}, v{base+2}", f"v_permlane16_swap_b32 v{base+1}, v{base+3}")
        sts.append(f"buffer_store_dwordx4 {v(base,4)}, v{VS2}, s[{STT}:{STT+3}], s{sSB+jp} offen")
    dual_store(a, sts)
    signal(a, sF2, 12, bloc=True)
    stamp(a, 9)
    if not OPT["a3all"]: a.e(f"s_cmp_lg_u32 s{sACT}, 0", "s_cbranch_scc1 L_fin")
    emit_B3(a)
    pair_chkB(a)
    a.e("s_branch L_fin")

SY_PA = 4096 + 163840
SY_PB = SY_PA + 16384
def hwid(a, dst):
    a.e(f"s_getreg_b32 s{dst}, hwreg(HW_REG_HW_ID)", f"s_lshr_b32 s{dst}, s{dst}, 8", f"s_and_b32 s{dst}, s{dst}, 0xff",
        "s_getreg_b32 s93, hwreg(HW_REG_XCC_ID)", "s_and_b32 s93, s93, 15", "s_lshl_b32 s93, s93, 8", f"s_or_b32 s{dst}, s{dst}, s93")
def pair_pubA(a):
    if not OPT.get("pair"): return
    L = newlbl("ppa")
    a.e("s_cmp_lg_u32 s3, 0", f"s_cbranch_scc1 {L}")
    hwid(a, 92)
    a.e(f"s_lshl_b32 s93, s{sCU}, 6", f"s_add_u32 s93, s93, {SY_PA}", "v_mov_b32 v240, s93", "v_mov_b32 v241, s92", "s_mov_b64 exec, 1",
        f"buffer_store_dword v241, v240, s[{S_SYN}:{S_SYN+3}], 0 offen sc1", "s_mov_b64 exec, -1")
    a.label(L)
def pair_chkB(a):
    if not OPT.get("pair"): return
    L = newlbl("ppb")
    a.e("s_cmp_lg_u32 s3, 0", f"s_cbranch_scc1 {L}")
    hwid(a, 92)
    a.e(f"s_lshl_b32 s93, s{sCU}, 6", f"s_add_u32 s93, s93, {SY_PA}", "v_mov_b32 v240, s93",
        f"buffer_load_dword v241, v240, s[{S_SYN}:{S_SYN+3}], 0 offen sc1", "s_waitcnt vmcnt(0)", "v_readfirstlane_b32 s93, v241",
        "s_cmp_lg_u32 s92, s93", "s_cselect_b32 s92, 1, 0", f"s_lshl_b32 s93, s{S_TGT}, 1", "s_or_b32 s92, s92, s93",
        f"s_lshl_b32 s93, s{sCU}, 6", f"s_add_u32 s93, s93, {SY_PB}", "v_mov_b32 v240, s93", "v_mov_b32 v241, s92", "s_mov_b64 exec, 1",
        f"buffer_store_dword v241, v240, s[{S_SYN}:{S_SYN+3}], 0 offen sc1", "s_mov_b64 exec, -1", "s_waitcnt vmcnt(0)")
    a.label(L)
def pair_sum(a):
    if not OPT.get("pair"): return
    L1, L2, L3 = newlbl("ps"), newlbl("psd"), newlbl("psp")
    a.e("v_lshlrev_b32 v2, 6, v1", f"v_add_u32 v2, {SY_PB}, v2", f"s_lshl_b32 s49, s{S_TGT}, 1", "s_mov_b32 s48, 0")
    a.label(L1)
    for i in range(4): a.e(f"s_mov_b32 s50, {4096*i}", f"buffer_load_dword v{4+i}, v2, s[{S_SYN}:{S_SYN+3}], s50 offen sc1")
    a.e("s_add_u32 s48, s48, 1", "s_waitcnt vmcnt(0)")
    for i in range(4): a.e(f"v_xor_b32 v{4+i}, s49, v{4+i}")
    a.e("v_or_b32 v8, v4, v5", "v_or_b32 v9, v6, v7", "v_or_b32 v8, v8, v9", "v_lshrrev_b32 v8, 1, v8", "v_cmp_ne_u32 vcc, 0, v8", f"s_cbranch_vccz {L2}",
        f"s_cmp_lt_u32 s48, {SPIN_LIMIT}", f"s_cbranch_scc1 {L1}")
    a.label(L2)
    a.e("s_mov_b32 s48, 0")
    for i in range(4): a.e(f"v_cmp_eq_u32 vcc, 1, v{4+i}", "s_bcnt1_i32_b64 s49, vcc", "s_add_u32 s48, s48, s49")
    a.e(f"s_mov_b32 s92, s{P_DBG}", f"s_mov_b32 s93, s{P_DBG+1}", "s_mov_b32 s94, 256", "s_mov_b32 s95, 0x00020000", "v_mov_b32 v4, 0", "v_mov_b32 v5, s48", "s_mov_b64 exec, 1",
        "buffer_store_dword v5, v4, s[92:95], 0 offen", "s_mov_b64 exec, -1")
    a.e("s_mul_i32 s48, s48, 10", "s_memrealtime s[50:51]", "s_waitcnt lgkmcnt(0)", "s_mov_b32 s49, s50")
    a.label(L3)
    a.e("s_memrealtime s[50:51]", "s_waitcnt lgkmcnt(0)", "s_sub_u32 s50, s50, s49", "s_cmp_lt_u32 s50, s48", f"s_cbranch_scc1 {L3}")

def warm(a):
    if OPT["tlb"]:
        L = newlbl("warm")
        a.e("s_cmp_lg_u32 s3, 3", f"s_cbranch_scc1 {L}")
        pages = [(P_WS, WS_I1), (P_WS, WS_I1+2*MB), (P_WS, WS_I2), (P_WS, WS_I2+2*MB), (P_WS, WS_SYNC+512*1024),
                 (P_OUT, 0), (P_OUT, 2*MB), (P_OUT, 4*MB), (P_OUT, 6*MB),
                 (P_WR, 0), (P_WR, 2*MB), (P_WI, 0), (P_WI, 2*MB), (P_SSMK, 0), (P_SSMK, 2*MB), (P_Q, 0), (P_Q, 2*MB)]
        a.e("v_mov_b32 v240, 0", "v_mov_b32 v241, 0")
        for i, (p, off) in enumerate(pages):
            a.e(f"s_add_u32 s92, s{p}, {off}", f"s_addc_u32 s93, s{p+1}, 0", f"v_writelane_b32 v240, s92, {i}", f"v_writelane_b32 v241, s93, {i}")
        a.e(f"s_mov_b64 exec, {(1 << len(pages)) - 1}", "global_load_dword v242, v[240:241], off", "s_mov_b64 exec, -1")
        a.label(L)
    if OPT["cpf"]:
        L = newlbl("warm")
        a.e("s_cmp_ge_u32 s3, 2", f"s_cbranch_scc1 {L}")
        a.e("s_getpc_b64 s[92:93]")
        a.e("s_lshr_b32 s96, s2, 4", "s_and_b32 s96, s96, 15", "s_lshl_b32 s96, s96, 1", "s_add_u32 s96, s96, s3", "s_min_u32 s96, s96, 25",
            "s_lshl_b32 s96, s96, 10", f"s_sub_u32 s92, s92, {OPT['cpf']}", "s_subb_u32 s93, s93, 0",
            "s_add_u32 s92, s92, s96", "s_addc_u32 s93, s93, 0", "v_lshlrev_b32 v240, 4, v1",
            "global_load_dwordx4 v[236:239], v240, s[92:93]")
        a.label(L)

def gen_kernel():
    a = Asm(); a.name = "p"
    a.e("s_cmp_ge_u32 s2, 512", "s_cbranch_scc1 L_exit")
    if OPT["swap"]: a.e("s_xor_b32 s2, s2, 256")
    if OPT.get("spinT") or OPT.get("span"): a.e("s_memrealtime s[94:95]")
    if OPT.get("spinC"): a.e("s_memtime s[94:95]")
    if gen.PROF: a.e("s_memrealtime s[98:99]", "s_waitcnt lgkmcnt(0)", "v_writelane_b32 v247, s98, 13")
    a.e(f"s_load_dwordx16 s[4:19], s[0:1], 0", f"s_load_dwordx8 s[20:27], s[0:1], 64")
    a.e("v_lshrrev_b32 v1, 6, v0", "v_readfirstlane_b32 s3, v1", "v_and_b32 v1, 63, v0", "s_waitcnt lgkmcnt(0)")
    srd(a, S_SYN, P_WS, P_WS+1, 1*MB, add=WS_SYNC)
    a.e(f"s_mov_b32 s48, {WS_SYNC+SY_E}", f"s_load_dword s{S_TGT}, s[{P_WS}:{P_WS+1}], s48")
    a.e(f"s_mov_b32 s98, {64<<FA()}", f"s_mov_b32 s99, {128<<FA()}", f"s_mov_b32 s100, {192<<FA()}")
    a.e(f"s_and_b32 s{sCU}, s2, 255", f"s_bitcmp0_b32 s2, 3", f"s_cselect_b32 s{sACT}, 1, 0",
        f"s_lshr_b32 s48, s{sCU}, 4", "s_lshl_b32 s48, s48, 3", f"s_and_b32 s49, s{sCU}, 7", "s_add_u32 s48, s48, s49",
        f"s_and_b32 s{sCBKT}, s48, 15", "s_lshr_b32 s48, s48, 4", "s_lshl_b32 s48, s48, 1", "s_lshr_b32 s49, s2, 8", f"s_add_u32 s{sSUBT}, s48, s49")
    a.e("s_cmp_ge_u32 s2, 256", "s_cbranch_scc1 L_A")
    gen_B(a)
    a.label("L_A")
    gen_A(a)
    a.label("L_fin")
    pass
    if gen.PROF:
        a.e("s_waitcnt vmcnt(0)")
        stamp(a, 14); stamp(a, 15, True)
        prof_dump(a)
    if OPT.get("span"):
        Ls = newlbl("span")
        a.e("s_cmp_lg_u32 s3, 0", f"s_cbranch_scc1 {Ls}", "s_waitcnt vmcnt(0)", "s_memrealtime s[92:93]",
            f"s_add_u32 s32, s{P_WS}, {gen.WS_PROF}", f"s_addc_u32 s33, s{P_WS+1}, 0", f"s_mov_b32 s34, {MB}", "s_mov_b32 s35, 0x00020000",
            "s_lshl_b32 s36, s2, 3", "s_waitcnt lgkmcnt(0)", "v_mov_b32 v2, s36", "v_mov_b32 v4, s94", "v_mov_b32 v5, s92", "s_mov_b64 exec, 1",
            "buffer_store_dwordx2 v[4:5], v2, s[32:35], 0 offen", "s_waitcnt vmcnt(0)")
        a.label(Ls)
    if OPT.get("spinC"):
        a.label("L_spinc")
        a.e("s_memtime s[92:93]", "s_waitcnt lgkmcnt(0)", "s_sub_u32 s92, s92, s94", f"s_cmp_lt_u32 s92, {OPT['spinC']}", "s_cbranch_scc1 L_spinc")
    if OPT.get("spinT"):
        a.label("L_spin")
        a.e("s_memrealtime s[92:93]", "s_waitcnt lgkmcnt(0)", "s_sub_u32 s92, s92, s94", f"s_cmp_lt_u32 s92, {OPT['spinT']}", "s_cbranch_scc1 L_spin")
    a.label("L_exit")
    a.e("s_endpgm")
    return a

def prof_dump(a):
    if OPT.get("dbgwg", -1) >= 0:
        L = newlbl("nodbg")
        a.e(f"s_cmp_lg_u32 s2, {OPT['dbgwg']}", f"s_cbranch_scc1 {L}", "s_cmp_lg_u32 s3, 0", f"s_cbranch_scc1 {L}")
        a.e("v_readlane_b32 s36, v247, 1", "v_readlane_b32 s37, v247, 13", "v_mov_b32 v250, s36", "v_mov_b32 v251, s37",
            "v_cmp_eq_u32 vcc, 0, v1", "v_cndmask_b32 v250, v250, v251, vcc", "v_cmp_eq_u32 vcc, 13, v1", "v_cndmask_b32 v250, v250, v251, vcc",
            "v_cmp_eq_u32 vcc, 15, v1", "v_cndmask_b32 v250, v250, v251, vcc", "v_sub_u32 v250, v247, v250",
            f"s_mov_b32 s32, s{P_DBG}", f"s_mov_b32 s33, s{P_DBG+1}", "s_mov_b32 s34, 256", "s_mov_b32 s35, 0x00020000",
            "v_lshlrev_b32 v251, 2, v1", "s_mov_b64 exec, 0xffff", "buffer_store_dword v250, v251, s[32:35], 0 offen", "s_waitcnt vmcnt(0)", "s_mov_b64 exec, -1")
        a.label(L)
        return

    a.e(f"s_add_u32 s32, s{P_WS}, {gen.WS_PROF}", f"s_addc_u32 s33, s{P_WS+1}, 0", f"s_mov_b32 s34, {MB}", "s_mov_b32 s35, 0x00020000")
    a.e("s_lshl_b32 s36, s2, 2", "s_add_u32 s36, s36, s3", "s_lshl_b32 s36, s36, 6",
        "v_lshlrev_b32 v250, 2, v1", "v_add_u32 v250, s36, v250", "s_mov_b64 exec, 0xffff",
        "buffer_store_dword v247, v250, s[32:35], 0 offen")
    if OPT.get("fine"):
        a.e("v_add_u32 v250, 0x40000, v250", "buffer_store_dword v246, v250, s[32:35], 0 offen")
    a.e("s_waitcnt vmcnt(0)")
PROFREGS = []

def build(path):
    a = gen_kernel()
    name = "concat_heads__spectral_gfnet__ssm_conv_h3__prompt_kernel"
    s = open("concat_heads__spectral_gfnet__ssm_conv_h3__prompt.s.ref").read().split("; Override")[0]
    s += f"; @launch grid=(512,1,1) block=(256,1,1) lds={LDS_BYTES}\n"
    s += '.amdgcn_target "amdgcn-amd-amdhsa--gfx950"\n' + gen.header(name) + a.text() + gen.descriptor(name, 256, 102)
    s = s.replace(" lds nt", " nt lds")
    open(path, "w").write(s)
    return s

if __name__ == "__main__":
    out = sys.argv[1] if len(sys.argv) > 1 else "pers.s"
    gen.PROF = "prof" in sys.argv[2:]
    for x in sys.argv[2:]:
        if "=" in x:
            k, val = x.split("="); OPT[k] = int(val)
    if OPT["wsend"]:
        base = OPT["wsend"]*MB
        WS_I1, WS_KVT, WS_I2, WS_TT, WS_SYNC = base, base+4*MB, base+8*MB, base+12*MB, base+20*MB
    s = build(out)
    print(out, len(s))
```

```python
import sys
from asmgen import *
import gen
from gen import srd, MB, WS_I1, WS_KVT, WS_I2, WS_TT, KA

PHASE = [1]
def dstamp(a, k, inv=False):
    if not OPT.get("dmax"): return
    a.e("s_memrealtime s[96:97]", "s_waitcnt lgkmcnt(0)", f"v_writelane_b32 v242, s96, {k}")
SY_DG = 4096 + 131072
def dpublish(a, sT):
    if not OPT.get("dmax"): return
    L = newlbl("dp")
    a.e("s_cmp_lg_u32 s3, 0", f"s_cbranch_scc1 {L}", f"s_lshl_b32 s92, s{sT}, 5", f"s_add_u32 s92, s92, {SY_DG}",
        "v_lshlrev_b32 v240, 2, v1", "v_add_u32 v240, s92, v240", "s_mov_b64 exec, 0xff",
        f"buffer_store_dword v242, v240, s[{S_SYN}:{S_SYN+3}], 0 offen sc1", "s_mov_b64 exec, -1")
    a.label(L)
def dreduce(a):
    if not OPT.get("dmax"): return
    a.e(f"s_mov_b32 s92, s{P_DBG}", f"s_mov_b32 s93, s{P_DBG+1}", "s_mov_b32 s94, 256", "s_mov_b32 s95, 0x00020000")
    a.e("v_lshlrev_b32 v2, 5, v1", f"v_add_u32 v2, {SY_DG}, v2")
    for k in range(7):
        for i in range(4):
            a.e(f"s_mov_b32 s50, {2048*i + 4*k}", f"buffer_load_dword v{10+i}, v2, s[{S_SYN}:{S_SYN+3}], s50 offen sc1")
        a.e("s_waitcnt vmcnt(0)")
        if k == 0:
            a.e("v_min_u32 v10, v10, v11", "v_min_u32 v12, v12, v13", "v_min_u32 v10, v10, v12", "s_mov_b32 s51, -1")
            for l in range(64): a.e(f"v_readlane_b32 s48, v10, {l}", "s_min_u32 s51, s51, s48")
            a.e("s_mov_b32 s45, s51")
            continue
        for i in range(4):
            a.e(f"v_subrev_u32 v{10+i}, s45, v{10+i}", f"v_lshlrev_b32 v{10+i}, 8, v{10+i}", f"v_add_u32 v14, {64*i}, v1", f"v_or_b32 v{10+i}, v{10+i}, v14")
        a.e("v_max_u32 v10, v10, v11", "v_max_u32 v12, v12, v13", "v_max_u32 v10, v10, v12", "s_mov_b32 s51, 0")
        for l in range(64): a.e(f"v_readlane_b32 s48, v10, {l}", "s_max_u32 s51, s51, s48")
        a.e("s_lshr_b32 s48, s51, 8", "s_and_b32 s49, s51, 255", "v_mov_b32 v14, s48", "v_mov_b32 v15, s49", f"v_mov_b32 v16, {8*(k-1)}", "s_mov_b64 exec, 1",
            "buffer_store_dwordx2 v[14:15], v16, s[92:95], 0 offen", "s_mov_b64 exec, -1")
DMAP_A = {1: 0, 5: 1, 6: 2, 7: 3, 8: 4, 9: 5}
DMAP_B = {}
ROLE = ["B"]
def fstamp(a, i):
    if OPT.get("fine") != PHASE[0]: return
    a.e('s_memtime s[96:97]', 's_waitcnt lgkmcnt(0)', f'v_writelane_b32 v246, s96, {i}')
def stamp(a, i, real=False):
    if OPT.get("dmax"):
        m = DMAP_A if ROLE[0] == "A" else DMAP_B
        if i in m and i != 14: dstamp(a, m[i])
        return
    if not gen.PROF: return
    a.e('s_memrealtime s[96:97]' if real else 's_memtime s[96:97]', 's_waitcnt lgkmcnt(0)', f'v_writelane_b32 v247, s96, {i}')

WBYTES = 2048*513*2
LB_STRIDE = 12896
LDS_BYTES = 53248
SPIN_LIMIT = 400000
OPT = dict(prioA=0, prioB=0, sleep=0, nt=1, wsend=0, ntout=1, ntw=1, wlate=1, hlate=1, qA=1, fsa=6, fsb=6, shrink=0, loc=1, forceloc=-1, ldloc=1, bdelay=0, earlypub=1, wpos=1, optst=1, locflag=1, hearly=1, twoflag=1, pA1i=-1, pB1=0, ntscr=0, a3all=1, ntk=1, ntv=1, ntx=1, nth=1, hactdelay=0, b1all=1, bactwait=1, pA1a=-1, grp=1, yieldB=0, ylim=40, tlb=0, cpf=0, spec2=1, y0=0, yinit=1, ymid=0, swap=0, a1all=1, cearly=1, fullline=1, qlate=0, hfirst=0, pairx=0, gld=0, t0late=0, i2ld=0, outB=-1, b3w=0, wbl2=0)
def NTOB(): return NTO() if OPT['outB'] < 0 else {0: '', 1: ' nt', 2: ' sc1', 3: ' sc1 nt'}[OPT['outB']]
def GLD(): return {0: 'sc1', 1: 'nt', 2: ''}[OPT['gld']]
def NMEM(): return 32 if OPT['b1all'] else 48
def LDL(): return {0: ' sc1', 1: ' nt', 2: ' sc1 nt'}[OPT['ldloc']]
def FA(): return OPT['fsa']
def FB(): return OPT['fsb']
def NT(): return ' nt' if OPT['nt'] else ''
def NTO(): return {0: '', 1: ' nt', 2: ' sc1', 3: ' sc1 nt'}[OPT['ntout']]

P_X, P_WR, P_WI, P_Q, P_K, P_V, P_SHK, P_SSMK, P_SSMD, P_OUT, P_DBG, P_WS = 4, 6, 8, 10, 12, 14, 16, 18, 20, 22, 24, 26
S_DBG = 28
def eidx(r): return (r & 3) + 8*(r >> 2)

_lbl = [0]
def newlbl(p):
    _lbl[0] += 1
    return f"L_{p}_{_lbl[0]}"

WS_SYNC = 20*MB
S_SYN = 28
S_TGT = 101
SY_E, SY_A1, SY_A2, SY_B1, SY_B2 = 0, 4096, 4096+16384, 4096+32768, 4096+49152
sACT, sCBKT, sSUBT, sCU = 88, 89, 90, 91
sLOC, sXEXP = 79, 0
S_DBG = 12
def signal(a, s_off, vt, nafter=0, bloc=False):
    L = newlbl("sig")
    a.e(f"s_waitcnt vmcnt({nafter})", "s_barrier", "s_cmp_lg_u32 s3, 0", f"s_cbranch_scc1 {L}",
        f"v_mov_b32 v{vt}, s{s_off}", f"v_mov_b32 v{vt+1}, s{S_TGT}", "s_mov_b64 exec, 1")
    st = f"buffer_store_dword v{vt+1}, v{vt}, s[{S_SYN}:{S_SYN+3}], 0 offen"
    if bloc and OPT["locflag"]:
        dual_store(a, [st])
    else:
        a.e(st + " sc1")
    a.e("s_mov_b64 exec, -1")
    if OPT.get("flagwait"): a.e("s_waitcnt vmcnt(0)")
    a.label(L)

def wait_flags(a, vaddr, nload, vt, s_cnt, pre_barrier=None, solo=False, skip0=None):
    L = newlbl("poll"); Ls = newlbl("pdone"); Lr = newlbl("prest")
    if not solo: a.e("s_cmp_lg_u32 s3, 0", f"s_cbranch_scc1 {Ls}")
    a.e(f"s_mov_b32 s{s_cnt}, 0")
    a.label(L)
    offs = ["0", "s98", "s99", "s100"]
    for i in range(nload):
        a.e(f"buffer_load_dword v{vt+i}, v{vaddr}, s[{S_SYN}:{S_SYN+3}], {offs[i]} offen sc1")
    a.e(f"s_add_u32 s{s_cnt}, s{s_cnt}, 1", "s_waitcnt vmcnt(0)")
    for i in range(nload):
        a.e(f"v_xor_b32 v{vt+i}, s{S_TGT}, v{vt+i}")
    if skip0 is not None:
        a.e(f"v_readfirstlane_b32 s{skip0}, v{vt}", f"v_writelane_b32 v{vt}, 0, 0")
    for i in range(1, nload):
        a.e(f"v_or_b32 v{vt}, v{vt}, v{vt+i}")
    if OPT["shrink"]:
        a.e(f"v_cmp_ne_u32 vcc, 0, v{vt}", "s_and_b64 exec, exec, vcc", f"s_cbranch_execz {Lr}")
    else:
        a.e(f"v_cmp_ne_u32 vcc, 0, v{vt}", f"s_cbranch_vccz {Lr}")
    if OPT["sleep"]: a.e(f"s_sleep {OPT['sleep']}")
    a.e(f"s_cmp_lt_u32 s{s_cnt}, {SPIN_LIMIT}", f"s_cbranch_scc1 {L}")
    a.label(Lr)
    if OPT["shrink"]: a.e("s_mov_b64 exec, -1")
    a.label(Ls)
    if pre_barrier: a.e(pre_barrier)
    if not solo: a.e("s_barrier")

SY_ID = 4096 + 65536
SY_B1B = 4096 + 98304
SY_AS = 4096 + 114688
LOCW = 53244
def loc_publish(a):
    L = newlbl("pub")
    a.e("s_getreg_b32 s92, hwreg(HW_REG_XCC_ID)", "s_and_b32 s92, s92, 15", f"s_lshl_b32 s{sXEXP}, s{S_TGT}, 4", f"s_or_b32 s{sXEXP}, s{sXEXP}, s92")
    a.e("s_cmp_lg_u32 s3, 0", f"s_cbranch_scc1 {L}")
    if OPT["b1all"] and OPT["grp"]:
        a.e("s_and_b32 s92, s2, 15", "s_lshl_b32 s92, s92, 4", "s_lshr_b32 s93, s2, 4", "s_add_u32 s92, s92, s93", "s_lshl_b32 s92, s92, 6", f"s_add_u32 s92, s92, {SY_ID}")
    else:
        a.e("s_lshr_b32 s92, s2, 3", f"s_lshr_b32 s93, s{sCU}, 4", "s_add_u32 s93, s93, 32", "s_cmp_ge_u32 s2, 256", "s_cselect_b32 s92, s93, s92",
            "s_and_b32 s93, s2, 7", f"s_mul_i32 s93, s93, {NMEM()}", "s_add_u32 s92, s92, s93", "s_lshl_b32 s92, s92, 6", f"s_add_u32 s92, s92, {SY_ID}")
    a.e(
        "v_mov_b32 v10, s92", f"v_mov_b32 v11, s{sXEXP}", "s_mov_b64 exec, 1",
        f"buffer_store_dword v11, v10, s[{S_SYN}:{S_SYN+3}], 0 offen sc1", "s_mov_b64 exec, -1")
    a.label(L)

def loc_issue(a, vt):
    if OPT["b1all"] and OPT["grp"]:
        a.e(f"v_min_u32 v{vt}, 15, v1", "s_and_b32 s93, s2, 15", "s_lshl_b32 s93, s93, 4")
    else:
        a.e(f"v_min_u32 v{vt}, {NMEM()-1}, v1", "s_and_b32 s93, s2, 7", f"s_mul_i32 s93, s93, {NMEM()}")
    a.e(f"v_add_u32 v{vt}, s93, v{vt}",
        f"v_lshlrev_b32 v{vt}, 6, v{vt}", f"v_add_u32 v{vt}, {SY_ID}, v{vt}")
    L = newlbl("li")
    a.e("s_cmp_lg_u32 s3, 0", f"s_cbranch_scc1 {L}")
    a.e(f"buffer_load_dword v{vt+1}, v{vt}, s[{S_SYN}:{S_SYN+3}], 0 offen sc1")
    a.label(L)

def loc_resolve(a, vt, barrier=True, nafter=0):
    L, Ld, Ls = newlbl("locp"), newlbl("locd"), newlbl("locs")
    a.e("s_cmp_lg_u32 s3, 0", f"s_cbranch_scc1 {Ls}")
    if OPT["forceloc"] >= 0:
        a.e(f"s_waitcnt vmcnt({nafter})", f"s_mov_b32 s93, {OPT['forceloc']}")
    else:
        a.e("s_mov_b32 s92, 0", f"s_waitcnt vmcnt({nafter})")
        a.label(L)
        a.e(f"v_xor_b32 v{vt+2}, s{sXEXP}, v{vt+1}", f"v_lshrrev_b32 v{vt+3}, 4, v{vt+2}", "s_add_u32 s92, s92, 1",
            f"v_cmp_ne_u32 vcc, 0, v{vt+3}", f"s_cbranch_vccz {Ld}",
            f"s_cmp_ge_u32 s92, {SPIN_LIMIT}", f"s_cbranch_scc1 {Ld}",
            f"buffer_load_dword v{vt+1}, v{vt}, s[{S_SYN}:{S_SYN+3}], 0 offen sc1", "s_waitcnt vmcnt(0)", f"s_branch {L}")
        a.label(Ld)
        a.e(f"v_cmp_ne_u32 vcc, 0, v{vt+2}", "s_cmp_eq_u64 vcc, 0", "s_cselect_b32 s93, 1, 0")
    a.e(f"s_mov_b32 s{sLOC}, s93", f"v_mov_b32 v{vt+2}, {LOCW}", f"v_mov_b32 v{vt+3}, s93", f"ds_write_b32 v{vt+2}, v{vt+3}", "s_waitcnt lgkmcnt(0)")
    a.label(Ls)
    if barrier:
        a.e("s_barrier")
        loc_read(a, vt)

def loc_read(a, vt):
    a.e(f"v_mov_b32 v{vt+2}, {LOCW}", f"ds_read_b32 v{vt+3}, v{vt+2}", "s_waitcnt lgkmcnt(0)", f"v_readfirstlane_b32 s{sLOC}, v{vt+3}")

def dual_store(a, lines):
    L1, L2 = newlbl("stg"), newlbl("stl")
    a.e(f"s_cmp_eq_u32 s{sLOC}, 0", f"s_cbranch_scc1 {L1}")
    for l in lines: a.e(l)
    a.e(f"s_branch {L2}")
    a.label(L1)
    for l in lines: a.e(l + " sc1" if "buffer_store" in l else l)
    a.label(L2)

def a_state(a, sT, st, vt):
    L = newlbl("ast")
    a.e("s_cmp_lg_u32 s3, 0", f"s_cbranch_scc1 {L}", f"s_lshl_b32 s92, s{sT}, 6", f"s_add_u32 s92, s92, {SY_AS}",
        f"s_lshl_b32 s93, s{S_TGT}, 2", f"s_or_b32 s93, s93, {st}", f"v_mov_b32 v{vt}, s92", f"v_mov_b32 v{vt+1}, s93", "s_mov_b64 exec, 1",
        f"buffer_store_dword v{vt+1}, v{vt}, s[{S_SYN}:{S_SYN+3}], 0 offen", "s_mov_b64 exec, -1")
    a.label(L)

def y_ld(vt): return f"buffer_load_dword v{vt+1}, v{vt}, s[{S_SYN}:{S_SYN+3}], 0 offen " + ("sc1" if OPT.get("ysc", 1) else "nt")
def b_yield(a, vt):
    L, Ld = newlbl("yl"), newlbl("yd")
    a.e(f"s_lshl_b32 s92, s{sCU}, 6", f"s_add_u32 s92, s92, {SY_AS}", f"v_mov_b32 v{vt}, s92", f"s_lshl_b32 s75, s{S_TGT}, 2", "s_mov_b32 s92, 0")
    a.e(f"s_or_b32 s75, s75, {2 if OPT['yieldB'] == 2 else 1}")
    if OPT["yieldB"] == 3:
        a.e(y_ld(vt)); return
    a.label(L)
    a.e(y_ld(vt), "s_add_u32 s92, s92, 1", "s_waitcnt vmcnt(0)",
        f"v_readfirstlane_b32 s93, v{vt+1}", "s_cmp_lg_u32 s93, s75" if OPT["yieldB"] == 1 else "s_cmp_eq_u32 s93, s75", f"s_cbranch_scc1 {Ld}",
        f"s_cmp_lt_u32 s92, {OPT['ylim']}", f"s_cbranch_scc1 {L}")
    a.label(Ld)

def b_yield_step(a, vt, last):
    L, Ld = newlbl("ys"), newlbl("ysd")
    a.label(L)
    a.e("s_waitcnt vmcnt(0)", f"v_readfirstlane_b32 s93, v{vt+1}", "s_cmp_lg_u32 s93, s75", f"s_cbranch_scc1 {Ld}",
        f"s_cmp_ge_u32 s92, {OPT['ylim']}", f"s_cbranch_scc1 {Ld}", "s_add_u32 s92, s92, 1", y_ld(vt), f"s_branch {L}")
    a.label(Ld)
    if not last: a.e(y_ld(vt))

def fin_epoch(a):
    a.e("s_waitcnt lgkmcnt(0)", f"s_add_u32 s{S_TGT}, s{S_TGT}, 1")

def bump(a, s_off, vt):
    a.e(f"v_mov_b32 v{vt}, s{s_off}", f"v_mov_b32 v{vt+1}, s{S_TGT}", "s_mov_b64 exec, 1",
        f"buffer_store_dword v{vt+1}, v{vt}, s[{S_SYN}:{S_SYN+3}], 0 offen sc1", "s_mov_b64 exec, -1")

F_M, F_G, F_IN0, F_IN1, F_OUTOFF, F_WR, F_RD0, F_RD1, F_MM = 2, 3, 4, 5, 6, 7, 8, 9, 10
F_T = 11
F_IN, F16RE, F16IM, F_TWC, F_TWS, F_DRE, F_DIM, F_P, F_TMP, F32RE, F32IM = 16, 48, 52, 56, 88, 120, 136, 152, 168, 176, 192
SI_OFF, SO_OFF = 52, 68
SO_LIST = [68, 69, 70, 71, 76, 77, 78, 79]

def fft512_addr(a, s_sa, s_cb):
    a.e(f"v_and_b32 v{F_M}, 15, v1", f"v_lshrrev_b32 v{F_G}, 4, v1")
    a.e(f"v_lshlrev_b32 v{F_IN0}, 20, v{F_G}", f"v_lshl_add_u32 v{F_IN0}, v{F_M}, 2, v{F_IN0}", f"v_add_u32 v{F_IN1}, {4*8192}, v{F_IN0}")
    a.e(f"s_lshl_b32 s48, s{s_sa}, 11", f"s_lshl_b32 s49, s{s_cb}, 6", "s_add_u32 s48, s48, s49",
        "s_lshl_b32 s50, s3, 16", "s_add_u32 s48, s48, s50")
    for aa in range(4):
        for i in range(4):
            a.e(f"s_add_u32 s{SI_OFF+4*aa+i}, s48, {(32*i+aa)*8192}")

def fft512_loads(a, SIN, mod=""):
    for hh in range(2):
        for aa in range(4):
            for i in range(4):
                a.e(f"buffer_load_dword v{F_IN+16*hh+4*aa+i}, v{F_IN0+hh}, s[{SIN}:{SIN+3}], s{SI_OFF+4*aa+i} offen {mod}")

def fft512_addr2(a, s_sa, s_cb, orow, ostr):
    a.e(f"s_mov_b32 s51, {16*ostr}", f"v_mul_lo_u32 v{F_OUTOFF}, v{F_M}, s51", f"v_lshl_add_u32 v{F_OUTOFF}, v{F_G}, 4, v{F_OUTOFF}")
    a.e(f"s_mul_i32 s48, s{s_sa}, {orow}", f"s_lshl_b32 s49, s{s_cb}, 6", "s_add_u32 s48, s48, s49",
        f"s_mul_i32 s50, s3, {4*ostr}", "s_add_u32 s48, s48, s50")
    for b in range(4):
        for h in range(2):
            a.e(f"s_add_u32 s{SO_LIST[2*b+h]}, s48, {(b+256*h)*ostr}")
    a.e(f"v_and_b32 v{F_T}, 7, v{F_M}", "s_lshl_b32 s50, s3, 1", f"v_xor_b32 v{F_T+1}, s50, v{F_T}",
        f"v_lshlrev_b32 v{F_WR}, 4, v{F_T+1}", f"v_lshl_add_u32 v{F_WR}, v{F_M}, 7, v{F_WR}",
        f"v_lshl_add_u32 v{F_WR}, v{F_G}, 13, v{F_WR}")
    a.e(f"v_xor_b32 v{F_T+1}, v{F_G}, v{F_T}", f"v_lshlrev_b32 v{F_RD0}, 4, v{F_T+1}",
        f"v_lshl_add_u32 v{F_RD0}, v{F_M}, 7, v{F_RD0}", "s_lshl_b32 s50, s3, 13",
        f"v_add_u32 v{F_RD0}, s50, v{F_RD0}", f"v_xor_b32 v{F_RD1}, 64, v{F_RD0}")

def fft512_consts(a):
    T, TMP = F_T, F_TMP
    XS, XB = T, T+1
    a.e(f"v_cvt_f32_u32 v{XS}, v{F_M}", f"v_mul_f32 v{XS}, {f32hex(1/32)}, v{XS}",
        f"v_cvt_f32_u32 v{T+2}, v{F_G}", f"v_mul_f32 v{T+2}, 4.0, v{T+2}",
        f"v_mul_f32 v{XB}, v{T+2}, v{XS}")
    a.e(f"v_and_b32 v{F_MM}, 1, v{F_M}", f"v_mul_u32_u24 v{F_MM}, 0x8000, v{F_MM}",
        f"v_lshl_or_b32 v{F_MM}, v{F_MM}, 16, v{F_MM}", "s_mov_b32 s50, 0x80008000")
    for i in range(4):
        x = TMP; cs = TMP+1; sn = TMP+2; x2 = TMP+3; cs2 = TMP+4; sn2 = TMP+5
        a.e(f"v_fmamk_f32 v{x}, v{XS}, {f32hex(float(i))}, v{XB}" if i else f"v_mov_b32 v{x}, v{XB}")
        a.e(f"v_add_f32 v{x2}, v{x}, v{x}")
        a.e(f"v_cos_f32 v{cs}, v{x}", f"v_sin_f32 v{sn}, v{x}", f"v_cos_f32 v{cs2}, v{x2}", f"v_sin_f32 v{sn2}, v{x2}")
        a.e(f"v_cvt_pk_bf16_f32 v{F32RE+i}, v{cs}, v{sn}", f"v_cvt_pk_bf16_f32 v{F32IM+i}, -v{sn}, v{cs}",
            f"v_cvt_pk_bf16_f32 v{F16RE+i}, v{cs2}, v{sn2}", f"v_cvt_pk_bf16_f32 v{F16IM+i}, -v{sn2}, v{cs2}")
    for base in (F32RE, F32IM):
        for i in range(4):
            a.e(f"v_xor_b32 v{base+4+i}, v{F_MM}, v{base+i}")
        for t in range(2):
            for i in range(4):
                src = base+4*t+i
                if i & 1: a.e(f"v_xor_b32 v{base+8+4*t+i}, s50, v{src}")
                else:     a.e(f"v_mov_b32 v{base+8+4*t+i}, v{src}")
    a.e(f"v_cvt_f32_u32 v{TMP}, s3", f"v_mul_f32 v{TMP}, {f32hex(8/512)}, v{TMP}")
    for r in range(4):
        a.e(f"v_add_f32 v{TMP+4+r}, {f32hex(float(r)) if r else 0}, v{T+2}")
    for aa in range(8):
        a.e(f"v_add_f32 v{TMP+1}, {f32hex(aa/512) if aa else 0}, v{TMP}")
        for r in range(4):
            a.e(f"v_mul_f32 v{T+3+(r&1)}, v{TMP+1}, v{TMP+4+r}",
                f"v_cos_f32 v{F_TWC+4*aa+r}, v{T+3+(r&1)}", f"v_sin_f32 v{F_TWS+4*aa+r}, v{T+3+(r&1)}")

def fft512_compute(a, SOUT, neg_im, nafter, stmod, st0, fs=0, hook=None):
    TMP = F_TMP
    stamp(a, st0)
    for hh in range(2):
        fstamp(a, fs+5*hh)
        for aa in range(4):
            a.e(f"s_waitcnt vmcnt({28-16*hh-4*aa+nafter})")
            a.e(f"v_mfma_f32_16x16x32_bf16 {v(F_DRE+4*aa,4)}, {v(F16RE,4)}, {v(F_IN+16*hh+4*aa,4)}, 0",
                f"v_mfma_f32_16x16x32_bf16 {v(F_DIM+4*aa,4)}, {v(F16IM,4)}, {v(F_IN+16*hh+4*aa,4)}, 0")
        if hh == 1:
            stamp(a, st0+1)
            if hook: hook()
        fstamp(a, fs+5*hh+1)
        for aa in range(4):
            for p in range(2):
                re, im = F_DRE+4*aa+2*p, F_DIM+4*aa+2*p
                tc, ts = F_TWC+16*hh+4*aa+2*p, F_TWS+16*hh+4*aa+2*p
                t0, t1 = TMP+4*p, TMP+4*p+2
                a.e(f"v_pk_mul_f32 {v(t0,2)}, {v(re,2)}, {v(tc,2)}",
                    f"v_pk_mul_f32 {v(t1,2)}, {v(im,2)}, {v(tc,2)}",
                    f"v_pk_fma_f32 {v(t0,2)}, {v(im,2)}, {v(ts,2)}, {v(t0,2)}",
                    f"v_pk_fma_f32 {v(t1,2)}, {v(re,2)}, {v(ts,2)}, {v(t1,2)} neg_lo:[1,0,0] neg_hi:[1,0,0]")
                for e in range(2):
                    r = 2*p+e
                    a.e(f"v_cvt_pk_bf16_f32 v{F_P+4*r+aa}, v{t0+e}, v{t1+e}")
        fstamp(a, fs+5*hh+2)
        if hh == 1: a.e(f"v_xor_b32 v{F_WR}, 16, v{F_WR}")
        for r in range(4):
            a.e(f"ds_write_b128 v{F_WR}, {v(F_P+4*r,4)} offset:{r*2048}")
    a.e("s_waitcnt lgkmcnt(0)")
    fstamp(a, fs+8)
    a.e("s_barrier")
    fstamp(a, fs+9)
    for b in range(4):
        a.e(f"ds_read_b128 {v(F_IN+8*b,4)}, v{F_RD0} offset:{b*2048}",
            f"ds_read_b128 {v(F_IN+8*b+4,4)}, v{F_RD1} offset:{b*2048}")
    sg = "-" if neg_im else ""
    def mf(bb):
        D0 = [F_DRE, F_DIM] if bb == 0 else [F_TWC, F_TWC+16]
        for bl in range(2):
            b = 2*bb+bl
            a.e(f"s_waitcnt lgkmcnt({6-2*b})")
            for t in range(2):
                for h in range(2):
                    for (D_, F_) in ((D0[0], F32RE), (D0[1], F32IM)):
                        d = D_+8*bl+4*h
                        c = "0" if t == 0 else v(d, 4)
                        a.e(f"v_mfma_f32_16x16x32_bf16 {v(d,4)}, {v(F_IN+8*b+4*t,4)}, {v(F_+8*h+4*t,4)}, {c}")
    def st(bb):
        D0 = [F_DRE, F_DIM] if bb == 0 else [F_TWC, F_TWC+16]
        PB = F_P if bb == 0 else F_TWS
        out = []
        for bl in range(2):
            b = 2*bb+bl
            for h in range(2):
                idx = 8*bl+4*h
                for r in range(4):
                    out.append(f"v_cvt_pk_bf16_f32 v{PB+idx+r}, v{D0[0]+idx+r}, {sg}v{D0[1]+idx+r}")
                out.append(f"buffer_store_dwordx4 {v(PB+idx,4)}, v{F_OUTOFF}, s[{SOUT}:{SOUT+3}], s{SO_LIST[2*b+h]} offen {stmod}")
        return out
    mf(0)
    n0 = len(a.lines)
    mf(1)
    m1 = a.lines[n0:]; del a.lines[n0:]
    s0 = st(0)
    k = 0
    seen = 0
    for l in m1:
        a.lines.append(l)
        if "v_mfma" in l:
            seen += 1
            if seen > 4:
                for _ in range(2):
                    if k < len(s0): a.e(s0[k]); k += 1
    while k < len(s0): a.e(s0[k]); k += 1
    fstamp(a, fs+10)
    for l in st(1): a.e(l)

def f8_addr(a, s_sa, s_cb, orow, ostr):
    a.e(f"v_and_b32 v{F_M}, 15, v1", f"v_lshrrev_b32 v{F_G}, 4, v1")
    a.e(f"v_and_b32 v{F_T}, 7, v1", f"v_bfe_u32 v{F_T+1}, v1, 3, 1",
        f"v_lshlrev_b32 v{F_IN0}, 20, v{F_G}", f"v_lshl_add_u32 v{F_IN0}, v{F_T+1}, 15, v{F_IN0}",
        f"v_lshl_add_u32 v{F_IN0}, v{F_T}, 2, v{F_IN0}")
    a.e(f"s_lshl_b32 s48, s{s_sa}, 11", f"s_lshl_b32 s49, s{s_cb}, 5", "s_add_u32 s48, s48, s49",
        "s_lshl_b32 s50, s3, 16", "s_add_u32 s48, s48, s50")
    for aa in range(4):
        for i in range(4):
            a.e(f"s_add_u32 s{SI_OFF+4*aa+i}, s48, {(32*i+aa)*8192}")
    a.e(f"v_lshrrev_b32 v{F_T+2}, 1, v{F_G}", f"v_lshl_add_u32 v{F_T+2}, v{F_M}, 4, v{F_T+2}",
        f"s_mov_b32 s51, {ostr}", f"v_mul_lo_u32 v{F_OUTOFF}, v{F_T+2}, s51",
        f"v_and_b32 v{F_T+2}, 1, v{F_G}", f"v_lshl_add_u32 v{F_OUTOFF}, v{F_T+2}, 4, v{F_OUTOFF}")
    a.e(f"s_mul_i32 s48, s{s_sa}, {orow}", f"s_lshl_b32 s49, s{s_cb}, 5", "s_add_u32 s48, s48, s49",
        f"s_mul_i32 s50, s3, {4*ostr}", "s_add_u32 s48, s48, s50")
    for b in range(2):
        for h in range(2):
            a.e(f"s_add_u32 s{SO_LIST[2*b+h]}, s48, {(2*b+256*h)*ostr}")
    a.e("s_lshl_b32 s50, s3, 1", f"v_add_u32 v{F_T+2}, s50, v{F_T+1}", f"v_xor_b32 v{F_T+2}, v{F_T+2}, v{F_T}",
        f"v_lshlrev_b32 v{F_WR}, 4, v{F_T+2}", f"v_lshl_add_u32 v{F_WR}, v{F_T}, 7, v{F_WR}", f"v_lshl_add_u32 v{F_WR}, v{F_G}, 12, v{F_WR}")
    a.e(f"v_xor_b32 v{F_T+2}, v{F_G}, v{F_T}", f"v_lshlrev_b32 v{F_RD0}, 4, v{F_T+2}",
        f"v_lshl_add_u32 v{F_RD0}, v{F_T}, 7, v{F_RD0}", f"v_lshl_add_u32 v{F_RD0}, v{F_T+1}, 10, v{F_RD0}",
        "s_lshl_b32 s50, s3, 12", f"v_add_u32 v{F_RD0}, s50, v{F_RD0}", f"v_xor_b32 v{F_RD1}, 64, v{F_RD0}")

def f8_consts(a):
    T, TMP = F_T, F_TMP
    XS, XB = T, T+1
    a.e(f"v_cvt_f32_u32 v{XS}, v{F_M}", f"v_mul_f32 v{XS}, {f32hex(1/32)}, v{XS}",
        f"v_cvt_f32_u32 v{T+2}, v{F_G}", f"v_mul_f32 v{T+2}, 4.0, v{T+2}",
        f"v_mul_f32 v{XB}, v{T+2}, v{XS}")
    a.e(f"v_and_b32 v{F_MM}, 1, v{F_M}", f"v_mul_u32_u24 v{F_MM}, 0x8000, v{F_MM}",
        f"v_lshl_or_b32 v{F_MM}, v{F_MM}, 16, v{F_MM}", "s_mov_b32 s50, 0x80008000")
    for i in range(4):
        x = TMP; cs = TMP+1; sn = TMP+2; x2 = TMP+3; cs2 = TMP+4; sn2 = TMP+5
        a.e(f"v_fmamk_f32 v{x}, v{XS}, {f32hex(float(i))}, v{XB}" if i else f"v_mov_b32 v{x}, v{XB}")
        a.e(f"v_add_f32 v{x2}, v{x}, v{x}")
        a.e(f"v_cos_f32 v{cs}, v{x}", f"v_sin_f32 v{sn}, v{x}", f"v_cos_f32 v{cs2}, v{x2}", f"v_sin_f32 v{sn2}, v{x2}")
        a.e(f"v_cvt_pk_bf16_f32 v{F32RE+i}, v{cs}, v{sn}", f"v_cvt_pk_bf16_f32 v{F32IM+i}, -v{sn}, v{cs}",
            f"v_cvt_pk_bf16_f32 v{F16RE+i}, v{cs2}, v{sn2}", f"v_cvt_pk_bf16_f32 v{F16IM+i}, -v{sn2}, v{cs2}")
    for base in (F32RE, F32IM):
        for i in range(4):
            a.e(f"v_xor_b32 v{base+4+i}, v{F_MM}, v{base+i}")
        for t in range(2):
            for i in range(4):
                src = base+4*t+i
                if i & 1: a.e(f"v_xor_b32 v{base+8+4*t+i}, s50, v{src}")
                else:     a.e(f"v_mov_b32 v{base+8+4*t+i}, v{src}")
    a.e(f"v_bfe_u32 v{TMP}, v1, 3, 1", "s_lshl_b32 s50, s3, 1", f"v_add_u32 v{TMP}, s50, v{TMP}",
        f"v_cvt_f32_u32 v{TMP}, v{TMP}", f"v_mul_f32 v{TMP}, {f32hex(4/512)}, v{TMP}")
    for r in range(4):
        a.e(f"v_add_f32 v{TMP+4+r}, {f32hex(float(r)) if r else 0}, v{T+2}")
    for aa in range(4):
        a.e(f"v_add_f32 v{TMP+1}, {f32hex(aa/512) if aa else 0}, v{TMP}")
        for r in range(4):
            a.e(f"v_mul_f32 v{T+3+(r&1)}, v{TMP+1}, v{TMP+4+r}",
                f"v_cos_f32 v{F_TWC+4*aa+r}, v{T+3+(r&1)}", f"v_sin_f32 v{F_TWS+4*aa+r}, v{T+3+(r&1)}")

def f8_run(a, SIN, SOUT, ldmod, stmod, sT0=None):
    TMP = F_TMP
    ld = lambda aa, i: f"buffer_load_dword v{F_IN+4*aa+i}, v{F_IN0}, s[{SIN}:{SIN+3}], s{SI_OFF+4*aa+i} offen {ldmod}"
    order = [0, 1, 2, 3]
    if sT0 is None:
        for aa in range(4):
            for i in range(4): a.e(ld(aa, i))
    else:
        order = [1, 2, 3, 0]
        for aa in (1, 2, 3):
            for i in range(4): a.e(ld(aa, i))
        for i in (1, 2, 3): a.e(ld(0, i))
        L, Ld = newlbl("t0p"), newlbl("t0d")
        a.e("s_cmp_lg_u32 s3, 0", f"s_cbranch_scc1 {Ld}", f"s_cmp_eq_u32 s{sT0}, 0", f"s_cbranch_scc1 {Ld}",
            f"v_mov_b32 v{TMP}, {SY_A2}", "s_mov_b32 s48, 0")
        a.label(L)
        a.e(f"buffer_load_dword v{TMP+1}, v{TMP}, s[{S_SYN}:{S_SYN+3}], 0 offen sc1", "s_add_u32 s48, s48, 1", "s_waitcnt vmcnt(0)",
            f"v_readfirstlane_b32 s49, v{TMP+1}", f"s_cmp_eq_u32 s49, s{S_TGT}", f"s_cbranch_scc1 {Ld}",
            f"s_cmp_lt_u32 s48, {SPIN_LIMIT}", f"s_cbranch_scc1 {L}")
        a.label(Ld)
        a.e(ld(0, 0))
    fstamp(a, 3)
    for n_, aa in enumerate(order):
        a.e(f"s_waitcnt vmcnt({12-4*n_})")
        a.e(f"v_mfma_f32_16x16x32_bf16 {v(F_DRE+4*aa,4)}, {v(F16RE,4)}, {v(F_IN+4*aa,4)}, 0",
            f"v_mfma_f32_16x16x32_bf16 {v(F_DIM+4*aa,4)}, {v(F16IM,4)}, {v(F_IN+4*aa,4)}, 0")
    fstamp(a, 1)
    for aa in range(4):
        for p in range(2):
            re, im = F_DRE+4*aa+2*p, F_DIM+4*aa+2*p
            tc, ts = F_TWC+4*aa+2*p, F_TWS+4*aa+2*p
            t0, t1 = TMP+4*p, TMP+4*p+2
            a.e(f"v_pk_mul_f32 {v(t0,2)}, {v(re,2)}, {v(tc,2)}",
                f"v_pk_mul_f32 {v(t1,2)}, {v(im,2)}, {v(tc,2)}",
                f"v_pk_fma_f32 {v(t0,2)}, {v(im,2)}, {v(ts,2)}, {v(t0,2)}",
                f"v_pk_fma_f32 {v(t1,2)}, {v(re,2)}, {v(ts,2)}, {v(t1,2)} neg_lo:[1,0,0] neg_hi:[1,0,0]")
            for e in range(2):
                r = 2*p+e
                a.e(f"v_cvt_pk_bf16_f32 v{F_P+4*r+aa}, v{t0+e}, v{t1+e}")
    for r in range(4):
        a.e(f"ds_write_b128 v{F_WR}, {v(F_P+4*r,4)} offset:{r*1024}")
    a.e("s_waitcnt lgkmcnt(0)")
    fstamp(a, 8)
    a.e("s_barrier")
    fstamp(a, 9)
    for b in range(2):
        a.e(f"ds_read_b128 {v(F_IN+8*b,4)}, v{F_RD0} offset:{b*2048}",
            f"ds_read_b128 {v(F_IN+8*b+4,4)}, v{F_RD1} offset:{b*2048}")
    for b in range(2):
        a.e(f"s_waitcnt lgkmcnt({2-2*b})")
        for t in range(2):
            for h in range(2):
                for (D_, F_) in ((F_DRE, F32RE), (F_DIM, F32IM)):
                    d = D_+8*b+4*h
                    c = "0" if t == 0 else v(d, 4)
                    a.e(f"v_mfma_f32_16x16x32_bf16 {v(d,4)}, {v(F_IN+8*b+4*t,4)}, {v(F_+8*h+4*t,4)}, {c}")
    fstamp(a, 10)
    for b in range(2):
        for h in range(2):
            idx = 8*b+4*h
            for r in range(4):
                a.e(f"v_cvt_pk_bf16_f32 v{F_P+idx+r}, v{F_DRE+idx+r}, -v{F_DIM+idx+r}")
            a.e(f"buffer_store_dwordx4 {v(F_P+idx,4)}, v{F_OUTOFF}, s[{SOUT}:{SOUT+3}], s{SO_LIST[2*b+h]} offen {stmod}")

def f256_loads(a, SX, s_sa, s_cb, mod):
    a.e(f"v_and_b32 v{F_M}, 15, v1", f"v_lshrrev_b32 v{F_G}, 4, v1",
        f"v_lshlrev_b32 v{F_IN0}, 20, v{F_G}", f"v_lshl_add_u32 v{F_IN0}, v{F_M}, 2, v{F_IN0}")
    a.e(f"s_lshl_b32 s48, s{s_sa}, 11", f"s_lshl_b32 s49, s{s_cb}, 6", "s_add_u32 s48, s48, s49",
        "s_lshl_b32 s50, s3, 16", "s_add_u32 s50, s50, s48")
    for aa in range(4):
        for i in range(4):
            a.e(f"s_add_u32 s{SI_OFF+4*aa+i}, s50, {(16*i+aa)*16384}",
                f"buffer_load_dword v{F_IN+4*aa+i}, v{F_IN0}, s[{SX}:{SX+3}], s{SI_OFF+4*aa+i} offen {mod}")

def f256_setup(a):
    T, TMP = F_T, F_TMP
    a.e(f"v_lshlrev_b32 v{F_OUTOFF}, 18, v{F_M}", f"v_lshl_add_u32 v{F_OUTOFF}, v{F_G}, 4, v{F_OUTOFF}",
        "s_lshl_b32 s50, s3, 16", "s_add_u32 s50, s50, s48")
    for b in range(4): a.e(f"s_add_u32 s{SO_LIST[b]}, s50, {b*16384}")
    a.e(f"v_bfe_u32 v{T}, v{F_M}, 1, 2", f"v_xor_b32 v{T+1}, s3, v{T}", f"v_lshlrev_b32 v{F_WR}, 4, v{T+1}",
        f"v_lshl_add_u32 v{F_WR}, v{F_M}, 6, v{F_WR}", f"v_lshl_add_u32 v{F_WR}, v{F_G}, 12, v{F_WR}",
        f"v_xor_b32 v{T+1}, v{F_G}, v{T}", f"v_lshlrev_b32 v{F_RD0}, 4, v{T+1}", f"v_lshl_add_u32 v{F_RD0}, v{F_M}, 6, v{F_RD0}",
        "s_lshl_b32 s50, s3, 12", f"v_add_u32 v{F_RD0}, s50, v{F_RD0}")
    XS, XB = T, T+1
    a.e(f"v_cvt_f32_u32 v{XS}, v{F_M}", f"v_mul_f32 v{XS}, {f32hex(1/16)}, v{XS}",
        f"v_cvt_f32_u32 v{T+2}, v{F_G}", f"v_mul_f32 v{T+2}, 4.0, v{T+2}", f"v_mul_f32 v{XB}, v{T+2}, v{XS}")
    for i in range(4):
        x = TMP+3*(i & 1)
        a.e(f"v_fmamk_f32 v{x}, v{XS}, {f32hex(float(i))}, v{XB}" if i else f"v_mov_b32 v{x}, v{XB}")
        a.e(f"v_cos_f32 v{x+1}, v{x}", f"v_sin_f32 v{x+2}, v{x}")
        a.e(f"v_cvt_pk_bf16_f32 v{F16RE+i}, v{x+1}, v{x+2}", f"v_cvt_pk_bf16_f32 v{F16IM+i}, -v{x+2}, v{x+1}")
    a.e(f"v_cvt_f32_u32 v{TMP}, s3", f"v_mul_f32 v{TMP}, {f32hex(4/256)}, v{TMP}")
    for r in range(4): a.e(f"v_add_f32 v{TMP+4+r}, {f32hex(float(r)) if r else 0}, v{T+2}")
    for aa in range(4):
        a.e(f"v_add_f32 v{TMP+1}, {f32hex(aa/256) if aa else 0}, v{TMP}")
        for r in range(4):
            a.e(f"v_mul_f32 v{T+3+(r&1)}, v{TMP+1}, v{TMP+4+r}",
                f"v_cos_f32 v{F_TWC+4*aa+r}, v{T+3+(r&1)}", f"v_sin_f32 v{F_TWS+4*aa+r}, v{T+3+(r&1)}")

def f256_run(a, SOUT, nafter):
    TMP = F_TMP
    stamp(a, 2)
    for aa in range(4):
        a.e(f"s_waitcnt vmcnt({12-4*aa+nafter})")
        a.e(f"v_mfma_f32_16x16x32_bf16 {v(F_DRE+4*aa,4)}, {v(F16RE,4)}, {v(F_IN+4*aa,4)}, 0",
            f"v_mfma_f32_16x16x32_bf16 {v(F_DIM+4*aa,4)}, {v(F16IM,4)}, {v(F_IN+4*aa,4)}, 0")
    stamp(a, 3)
    for aa in range(4):
        for p in range(2):
            re, im = F_DRE+4*aa+2*p, F_DIM+4*aa+2*p
            tc, ts = F_TWC+4*aa+2*p, F_TWS+4*aa+2*p
            t0, t1 = TMP+4*p, TMP+4*p+2
            a.e(f"v_pk_mul_f32 {v(t0,2)}, {v(re,2)}, {v(tc,2)}",
                f"v_pk_mul_f32 {v(t1,2)}, {v(im,2)}, {v(tc,2)}",
                f"v_pk_fma_f32 {v(t0,2)}, {v(im,2)}, {v(ts,2)}, {v(t0,2)}",
                f"v_pk_fma_f32 {v(t1,2)}, {v(re,2)}, {v(ts,2)}, {v(t1,2)} neg_lo:[1,0,0] neg_hi:[1,0,0]")
            for e in range(2):
                r = 2*p+e
                a.e(f"v_cvt_pk_bf16_f32 v{F_P+4*r+aa}, v{t0+e}, v{t1+e}")
    for r in range(4):
        a.e(f"ds_write_b128 v{F_WR}, {v(F_P+4*r,4)} offset:{r*1024}")
    a.e("s_waitcnt lgkmcnt(0)", "s_barrier")
    for b in range(4):
        a.e(f"ds_read_b128 {v(F_IN+4*b,4)}, v{F_RD0} offset:{b*1024}")
    for b in range(4):
        a.e(f"s_waitcnt lgkmcnt({3-b})")
        a.e(f"v_mfma_f32_16x16x32_bf16 {v(F_DRE+4*b,4)}, {v(F_IN+4*b,4)}, {v(F16RE,4)}, 0",
            f"v_mfma_f32_16x16x32_bf16 {v(F_DIM+4*b,4)}, {v(F_IN+4*b,4)}, {v(F16IM,4)}, 0")
    for b in range(4):
        for r in range(4):
            a.e(f"v_cvt_pk_bf16_f32 v{F_P+4*b+r}, v{F_DRE+4*b+r}, v{F_DIM+4*b+r}")
        a.e(f"buffer_store_dwordx4 {v(F_P+4*b,4)}, v{F_OUTOFF}, s[{SOUT}:{SOUT+3}], s{SO_LIST[b]} offen sc1")

IDX, G_, VG, VGW, VRR, VHR, VST, VW = 2, 3, 6, 7, 8, 12, 13, 14
CRE, CIM, TWC, TWS, WR, WI, ARE, AIM, DF, GA, HRE, HIM, GB, TMP = 16, 32, 48, 64, 80, 96, 112, 128, 144, 160, 164, 168, 172, 188
W2R, W2I, SP, PF, PF2 = 204, 220, 236, 248, 252
GA2 = 204
LW = 32768; LSC = 16384; LW2 = 49152

def w_dma(a, SWR, SWI, s_rowoff, s_mirroff, s_ldsbase, vlane16):
    a.e(f"s_mov_b32 m0, s{s_ldsbase}", f"buffer_load_dwordx4 v{vlane16}, s[{SWR}:{SWR+3}], s{s_rowoff} offen lds" + NT())
    a.e(f"s_add_u32 s93, s{s_ldsbase}, 1024", "s_mov_b32 m0, s93", f"buffer_load_dwordx4 v{vlane16}, s[{SWI}:{SWI+3}], s{s_rowoff} offen lds" + NT())
    a.e(f"s_add_u32 s92, s{s_mirroff}, 2")
    a.e(f"s_add_u32 s93, s{s_ldsbase}, 2048", "s_mov_b32 m0, s93", f"buffer_load_dwordx4 v{vlane16}, s[{SWR}:{SWR+3}], s92 offen lds" + NT())
    a.e(f"s_add_u32 s93, s{s_ldsbase}, 3072", "s_mov_b32 m0, s93", f"buffer_load_dwordx4 v{vlane16}, s[{SWI}:{SWI+3}], s92 offen lds" + NT())

def pf_loads(a, SWR, SWI, s_rowoff, s_mirroff, dst, vt):
    a.e(f"v_mov_b32 v{vt}, s{s_mirroff}", f"v_mov_b32 v{vt+1}, s{s_rowoff}", f"v_add_u32 v{vt+1}, 1024, v{vt+1}")
    a.e(f"buffer_load_short_d16_hi v{dst}, v{vt}, s[{SWR}:{SWR+3}], 0 offen",
        f"buffer_load_short_d16_hi v{dst+1}, v{vt}, s[{SWI}:{SWI+3}], 0 offen",
        f"buffer_load_short_d16_hi v{dst+2}, v{vt+1}, s[{SWR}:{SWR+3}], 0 offen",
        f"buffer_load_short_d16_hi v{dst+3}, v{vt+1}, s[{SWI}:{SWI+3}], 0 offen")

def w_lds_reads(a, vlo, vhi, dr, di):
    for (dst, o) in ((dr, 0), (di, 1024)):
        for r in range(16):
            e = eidx(r)
            if r < 8: a.e(f"ds_read_u16_d16_hi v{dst+r}, v{vlo} offset:{o+64*e}")
            else:     a.e(f"ds_read_u16_d16_hi v{dst+r}, v{vhi} offset:{o+64*(27-e)}")

def fix_w(a, dr, di, pf):
    a.e("v_cmp_eq_u32 vcc, 0, v1")
    for (r, o) in ((0, 0), (8, 2)):
        a.e(f"v_add_f32 v{TMP}, v{dr+r}, v{pf+o}", f"v_mul_f32 v{TMP}, 0.5, v{TMP}",
            f"v_sub_f32 v{TMP+1}, v{di+r}, v{pf+o+1}", f"v_mul_f32 v{TMP+1}, 0.5, v{TMP+1}",
            f"v_cndmask_b32 v{dr+r}, v{dr+r}, v{TMP}, vcc", f"v_cndmask_b32 v{di+r}, v{di+r}, v{TMP+1}, vcc")

def fft1024(a, mid=None):
    for t in range(4):
        c0 = "0" if t == 0 else v(ARE, 16); c1 = "0" if t == 0 else v(AIM, 16)
        a.e(f"v_mfma_f32_32x32x16_bf16 {v(ARE,16)}, {v(DF+4*t,4)}, {v(CRE+4*t,4)}, {c0}",
            f"v_mfma_f32_32x32x16_bf16 {v(AIM,16)}, {v(DF+4*t,4)}, {v(CIM+4*t,4)}, {c1}")
    for p in range(8):
        re, im, tc, ts = ARE+2*p, AIM+2*p, TWC+2*p, TWS+2*p
        t0 = TMP+4*(p & 1); t1 = t0+2
        a.e(f"v_pk_mul_f32 {v(t0,2)}, {v(re,2)}, {v(tc,2)}",
            f"v_pk_mul_f32 {v(t1,2)}, {v(im,2)}, {v(tc,2)}",
            f"v_pk_fma_f32 {v(t0,2)}, {v(im,2)}, {v(ts,2)}, {v(t0,2)}",
            f"v_pk_fma_f32 {v(t1,2)}, {v(re,2)}, {v(ts,2)}, {v(t1,2)} neg_lo:[1,0,0] neg_hi:[1,0,0]")
        for e in range(2):
            a.e(f"v_cvt_pk_bf16_f32 v{DF+2*p+e}, v{t0+e}, v{t1+e}")
    for t in range(4):
        if mid and t == 1: mid()
        c0 = "0" if t == 0 else v(ARE, 16); c1 = "0" if t == 0 else v(AIM, 16)
        a.e(f"v_mfma_f32_32x32x16_bf16 {v(ARE,16)}, {v(CRE+4*t,4)}, {v(DF+4*t,4)}, {c0}",
            f"v_mfma_f32_32x32x16_bf16 {v(AIM,16)}, {v(CIM+4*t,4)}, {v(DF+4*t,4)}, {c1}")

def a2_consts(a, sT):
    a.e(f"v_and_b32 v{IDX}, 31, v1", f"v_lshrrev_b32 v{G_}, 5, v1")
    XS, XB = TMP, TMP+1
    a.e(f"v_cvt_f32_u32 v{TMP+2}, v{IDX}", f"v_cvt_f32_u32 v{TMP+3}, v{G_}", f"v_mul_f32 v{TMP+3}, 4.0, v{TMP+3}",
        f"v_mul_f32 v{XS}, {f32hex(1/32)}, v{TMP+2}", f"v_mul_f32 v{XB}, v{TMP+3}, v{XS}")
    a.e(f"v_and_b32 v{TMP+4}, 1, v{IDX}", f"v_mul_u32_u24 v{TMP+4}, 0x8000, v{TMP+4}", f"v_lshl_or_b32 v{TMP+4}, v{TMP+4}, 16, v{TMP+4}")
    for t in range(2):
        for i in range(4):
            c = float(8*t+i); x = TMP+5+3*(i & 1)
            a.e(f"v_fmamk_f32 v{x}, v{XS}, {f32hex(c)}, v{XB}" if c else f"v_mov_b32 v{x}, v{XB}")
            a.e(f"v_cos_f32 v{x+1}, v{x}", f"v_sin_f32 v{x+2}, v{x}")
            a.e(f"v_cvt_pk_bf16_f32 v{CRE+4*t+i}, v{x+1}, v{x+2}", f"v_cvt_pk_bf16_f32 v{CIM+4*t+i}, -v{x+2}, v{x+1}")
    for base in (CRE, CIM):
        for i in range(8):
            a.e(f"v_xor_b32 v{base+8+i}, v{TMP+4}, v{base+i}")
    a.e(f"v_mul_f32 v{XS}, {f32hex(1/1024)}, v{TMP+2}", f"v_mul_f32 v{XB}, v{TMP+3}, v{XS}")
    for r in range(16):
        c = float(eidx(r)); x = TMP+5+(r & 1)
        a.e(f"v_fmamk_f32 v{x}, v{XS}, {f32hex(c)}, v{XB}" if c else f"v_mov_b32 v{x}, v{XB}")
        a.e(f"v_cos_f32 v{TWC+r}, v{x}", f"v_sin_f32 v{TWS+r}, v{x}")
    LO, HI, Q, AV, XA0, XA1, E0, E1 = TMP, TMP+1, TMP+2, TMP+3, TMP+4, TMP+5, TMP+6, TMP+7
    JF, KEY, T2, PO, PAR, N16, G4, CS = [TMP+8+i for i in range(8)]
    Lspec, Ldone = newlbl("ghspec"), newlbl("ghdone")
    a.e(f"v_and_b32 v{LO}, 3, v{IDX}", f"v_bfe_u32 v{HI}, v{IDX}, 2, 2")
    a.e(f"v_and_b32 v{N16}, 15, v1", f"v_lshrrev_b32 v{G4}, 4, v1")
    a.e(f"s_cmp_eq_u32 s{sT}, 0", f"s_cbranch_scc1 {Lspec}")
    a.e(f"v_cvt_f32_u32 v{T2}, s{sT}", f"v_cvt_f32_u32 v{JF}, v{HI}", f"v_fmamk_f32 v{JF}, v{JF}, {f32hex(512.0)}, v{T2}",
        f"v_mul_f32 v{JF}, {f32hex(1/2048)}, v{JF}",
        f"v_lshlrev_b32 v{Q}, 3, v{LO}", "s_mov_b32 s50, 0x4631914C", f"v_lshrrev_b32 v{Q}, v{Q}, s50",
        f"v_mov_b32 v{AV}, 0.5", f"v_cmp_gt_u32 vcc, 16, v{IDX}", f"v_cndmask_b32 v{AV}, 0, v{AV}, vcc")
    for ks, Gd in ((0, GA), (1, GA2)):
        a.e(f"v_cvt_f32_u32 v{XA0}, v{G_}", f"v_add_f32 v{XA0}, v{XA0}, v{XA0}")
        if ks: a.e(f"v_add_f32 v{XA0}, 4.0, v{XA0}")
        a.e(f"v_add_f32 v{XA1}, 1.0, v{XA0}", f"v_mul_f32 v{XA0}, v{XA0}, v{JF}", f"v_mul_f32 v{XA1}, v{XA1}, v{JF}")
        for jj2 in range(4):
            for e in range(2):
                jj = 2*jj2+e
                xa = XA1 if jj >> 2 else XA0
                a.e(f"v_bfe_u32 v{E0+e}, v{Q}, {2*(jj&3)}, 2", f"v_cvt_f32_u32 v{E0+e}, v{E0+e}",
                    f"v_fmamk_f32 v{E0+e}, v{E0+e}, {f32hex(0.25)}, v{xa}", f"v_cos_f32 v{E0+e}, v{E0+e}",
                    f"v_mul_f32 v{E0+e}, v{E0+e}, v{AV}")
            a.e(f"v_cvt_pk_bf16_f32 v{Gd+jj2}, v{E0}, v{E1}")
    a.e(f"v_bfe_u32 v{HI}, v{N16}, 1, 2", f"v_cvt_f32_u32 v{KEY}, v{HI}", f"v_mul_f32 v{KEY}, {f32hex(1/2048)}, v{KEY}",
        f"v_and_b32 v{JF}, 1, v{G4}", f"v_cvt_f32_u32 v{JF}, v{JF}", f"v_fmamk_f32 v{JF}, v{JF}, {f32hex(1024.0)}, v{T2}",
        f"v_add_f32 v{XA1}, {f32hex(512.0)}, v{JF}", f"v_mul_f32 v{XA0}, v{JF}, v{KEY}", f"v_mul_f32 v{XA1}, v{XA1}, v{KEY}",
        f"v_lshrrev_b32 v{CS}, 1, v{G4}", f"v_lshrrev_b32 v{AV}, 3, v{N16}", f"v_cmp_eq_u32 vcc, v{CS}, v{AV}",
        f"v_mov_b32 v{AV}, {f32hex(2.0**-21)}", f"v_cndmask_b32 v{AV}, 0, v{AV}, vcc",
        f"v_and_b32 v{PO}, 1, v{N16}")
    for part, Hd in ((0, HRE), (1, HIM)):
        w0, w1 = (0x1C, 0xBC) if part == 0 else (0x61, 0x6B)
        a.e(f"v_mov_b32 v{Q}, {w0}", f"v_mov_b32 v{PAR}, {w1}", f"v_cmp_eq_u32 vcc, 1, v{PO}", f"v_cndmask_b32 v{Q}, v{Q}, v{PAR}, vcc")
        for jj2 in range(4):
            for e in range(2):
                jj = 2*jj2+e
                xa = XA1 if jj >> 2 else XA0
                a.e(f"v_bfe_u32 v{E0+e}, v{Q}, {2*(jj&3)}, 2", f"v_cvt_f32_u32 v{E0+e}, v{E0+e}",
                    f"v_fmamk_f32 v{E0+e}, v{E0+e}, {f32hex(0.25)}, v{xa}", f"v_cos_f32 v{E0+e}, v{E0+e}",
                    f"v_mul_f32 v{E0+e}, v{E0+e}, v{AV}")
            a.e(f"v_cvt_pk_bf16_f32 v{Hd+jj2}, v{E0}, v{E1}")
    a.e(f"s_branch {Ldone}")
    a.label(Lspec)
    a.e(f"v_and_b32 v{PO}, 1, v{LO}", f"v_lshrrev_b32 v{PAR}, 1, v{LO}")
    a.e(f"v_lshlrev_b32 v{JF}, 2, v{HI}", "s_mov_b32 s50, 0x3120", f"v_lshrrev_b32 v{JF}, v{JF}, s50", f"v_and_b32 v{JF}, 15, v{JF}",
        f"v_lshlrev_b32 v{JF}, 8, v{JF}", f"v_lshlrev_b32 v{T2}, 10, v{PO}",
        f"v_cmp_eq_u32 vcc, 0, v{HI}", f"v_cndmask_b32 v{JF}, v{JF}, v{T2}, vcc", f"v_mov_b32 v{T2}, 0",
        f"v_cndmask_b32 v{Q}, v{PO}, v{T2}, vcc",
        f"v_cvt_f32_u32 v{JF}, v{JF}", f"v_mul_f32 v{JF}, {f32hex(1/2048)}, v{JF}",
        f"v_cvt_f32_u32 v{Q}, v{Q}", f"v_mul_f32 v{Q}, {f32hex(0.25)}, v{Q}",
        f"v_lshrrev_b32 v{T2}, 4, v{IDX}", f"v_lshl_add_u32 v{KEY}, v{T2}, 2, v{PAR}", f"v_mov_b32 v{T2}, 0")
    for ks, Gd in ((0, GA), (1, GA2)):
        a.e(f"v_cvt_f32_u32 v{XA0}, v{G_}", f"v_add_f32 v{XA0}, v{XA0}, v{XA0}")
        if ks: a.e(f"v_add_f32 v{XA0}, 4.0, v{XA0}")
        a.e(f"v_add_f32 v{XA1}, 1.0, v{XA0}",
            f"v_fma_f32 v{XA0}, v{XA0}, v{JF}, v{Q}", f"v_fma_f32 v{XA1}, v{XA1}, v{JF}, v{Q}",
            f"v_cos_f32 v{XA0}, v{XA0}", f"v_cos_f32 v{XA1}, v{XA1}")
        for jj2 in range(4):
            for e in range(2):
                jj = 2*jj2+e
                xa = XA1 if jj >> 2 else XA0
                a.e(f"v_cmp_eq_u32 vcc, {jj&3}, v{KEY}", f"v_cndmask_b32 v{E0+e}, v{T2}, v{xa}, vcc")
            a.e(f"v_cvt_pk_bf16_f32 v{Gd+jj2}, v{E0}, v{E1}")
    SAF, GS = JF, PAR
    a.e(f"v_bfe_u32 v{HI}, v{N16}, 1, 2", f"v_cvt_f32_u32 v{SAF}, v{HI}", f"v_mul_f32 v{SAF}, {f32hex(1/2048)}, v{SAF}",
        f"v_and_b32 v{GS}, 1, v{G4}", f"v_and_b32 v{PO}, 1, v{N16}",
        f"v_lshrrev_b32 v{CS}, 1, v{G4}", f"v_lshrrev_b32 v{T2}, 3, v{N16}",
        f"v_cmp_eq_u32 s[44:45], v{CS}, v{T2}", f"v_cmp_eq_u32 s[46:47], v{GS}, v{PO}", "s_and_b64 s[44:45], s[44:45], s[46:47]",
        f"v_cmp_eq_u32 s[46:47], 0, v{GS}")
    for part, Hd in ((0, HRE), (1, HIM)):
        for jj in range(8):
            sl, par, pi = jj >> 2, (jj >> 1) & 1, jj & 1
            e = E0 + (jj & 1)
            if par != part:
                a.e(f"v_mov_b32 v{e}, 0")
            else:
                if sl == 0:
                    j0, q0, a0 = 1024.0*pi, 0.5*pi, 2.0**-21
                    j1, q1, a1 = 256.0, 0.75*pi, 2.0**-20
                else:
                    j0, q0, a0 = 512.0, 0.75*pi, 2.0**-20
                    j1, q1, a1 = 768.0, 0.75*pi, 2.0**-20
                def sel(dst, x0, x1):
                    a.e(f"v_mov_b32 v{dst}, {f32hex(x1)}", f"v_mov_b32 v{AV}, {f32hex(x0)}", f"v_cndmask_b32 v{dst}, v{dst}, v{AV}, s[46:47]")
                sel(XA0, j0, j1); sel(XA1, q0 + 0.5*part, q1 + 0.5*part)
                a.e(f"v_fma_f32 v{XA0}, v{XA0}, v{SAF}, v{XA1}", f"v_cos_f32 v{XA0}, v{XA0}")
                sel(XA1, a0, a1)
                a.e(f"v_mul_f32 v{XA0}, v{XA0}, v{XA1}", f"v_mov_b32 v{XA1}, 0", f"v_cndmask_b32 v{e}, v{XA1}, v{XA0}, s[44:45]")
            if jj & 1: a.e(f"v_cvt_pk_bf16_f32 v{Hd+(jj>>1)}, v{E0}, v{E1}")
    a.label(Ldone)
    a.e("s_nop 1")


BT_S0, BT_S1, BT_S2, BT_S3 = 52, 56, 60, 64
BT_SOFF = ["0", "s68", "s69", "s70", "s71", "s76", "s77", "s78"]
BT_ROW, BT_CH, BT_MASK = 48, 49, 50
def bt_setup(a):
    a.e(f"s_lshl_b32 s{BT_ROW}, s{sSUBT}, 7", "s_lshl_b32 s51, s3, 5", f"s_add_u32 s{BT_ROW}, s{BT_ROW}, s51", f"s_lshl_b32 s{BT_CH}, s{sCBKT}, 6")
    for i in range(1, 8): a.e(f"s_mov_b32 {BT_SOFF[i]}, {4096*i}")
    a.e(f"s_mov_b32 s{BT_MASK}, 0xffff0000")

def scratch_addr(a, vdst, vcg, vrg):
    if OPT["fullline"]:
        a.e(f"s_lshl_b32 s51, s{sSUBT}, 7", "s_lshl_b32 s92, s3, 5", "s_add_u32 s51, s51, s92", "s_lshl_b32 s51, s51, 12",
            f"s_lshl_b32 s92, s{sCBKT}, 7", "s_add_u32 s51, s51, s92", "s_add_u32 s51, s51, 2048",
            f"v_lshrrev_b32 v{vdst}, 1, v{vcg}", f"v_lshlrev_b32 v{vdst}, 12, v{vdst}", f"v_lshl_add_u32 v{vdst}, v{vrg}, 4, v{vdst}",
            f"v_and_b32 v{vcg}, 1, v{vcg}", f"v_lshl_add_u32 v{vdst}, v{vcg}, 6, v{vdst}", f"v_add_u32 v{vdst}, s51, v{vdst}",
            "s_mov_b32 s32, 32768", "s_mov_b32 s33, 65536", "s_mov_b32 s34, 98304")
        return
    a.e(f"s_lshl_b32 s51, s{sSUBT}, 7", "s_lshr_b32 s92, s3, 1", "s_add_u32 s51, s51, s92", "s_lshl_b32 s51, s51, 12",
        f"s_lshl_b32 s92, s{sCBKT}, 7", "s_add_u32 s51, s51, s92", "s_and_b32 s92, s3, 1", "s_lshl_b32 s92, s92, 6", "s_add_u32 s51, s51, s92",
        "s_add_u32 s51, s51, 2048",
        f"v_lshlrev_b32 v{vdst}, 15, v{vcg}", f"v_lshl_add_u32 v{vdst}, v{vrg}, 4, v{vdst}", f"v_add_u32 v{vdst}, s51, v{vdst}")
def SCR(c):
    return ["0", "s32", "s33", "s34"][c] if OPT["fullline"] else ["0", "s69", "s71", "s77"][c]

def emit_B1(a, shadow=None, hook=None, post_mode=None, after_stores=None, nafter=0, after_loads=None, nyoung=0):
    SK, SV, SSH, SKVT = BT_S0, BT_S1, BT_S2, BT_S3
    srd(a, SK, P_K, P_K+1, 4*MB); srd(a, SV, P_V, P_V+1, 4*MB); srd(a, SSH, P_SHK, P_SHK+1, 8192); srd(a, SKVT, P_OUT, P_OUT+1, 8*MB)
    bt_setup(a)
    soff = BT_SOFF; M = BT_MASK
    CG, RG, S0, CH0, VOFF, VH, VST, VSH = 2, 3, 4, 5, 6, 7, 8, 9
    a.e(f"v_and_b32 v{CG}, 15, v1", f"v_lshrrev_b32 v{RG}, 4, v1",
        f"v_lshl_add_u32 v{S0}, v{RG}, 3, s{BT_ROW}", f"v_lshl_add_u32 v{CH0}, v{CG}, 2, s{BT_CH}",
        f"v_lshlrev_b32 v{VOFF}, 11, v{S0}", f"v_lshl_add_u32 v{VOFF}, v{CH0}, 1, v{VOFF}",
        f"v_subrev_u32 v{VH}, 6144, v{VOFF}",
        f"v_lshlrev_b32 v{VSH}, 3, v{CH0}")
    scratch_addr(a, VST, CG, RG)
    KR, VR, SHR, KF, SHF, KV, TM, PK = 16, 38, 54, 64, 108, 124, 156, 16
    if OPT["bactwait"] and OPT["b1all"]:
        Lw = newlbl("bw")
        a.e(f"s_cmp_eq_u32 s{sACT}, 0", f"s_cbranch_scc1 {Lw}", "s_waitcnt lgkmcnt(0)")
        a.label(Lw)
    if OPT["earlypub"]:
        Lp = newlbl("epub")
        a.e("s_cmp_lg_u32 s3, 0", f"s_cbranch_scc1 {Lp}")
        fin_epoch(a); loc_publish(a)
        a.label(Lp)
    a.e(f"buffer_load_dwordx4 {v(SHR,4)}, v{VSH}, s[{SSH}:{SSH+3}], 0 offen",
        f"buffer_load_dwordx4 {v(SHR+4,4)}, v{VSH}, s[{SSH}:{SSH+3}], 0 offen offset:16")
    for i in range(3):
        a.e(f"buffer_load_dwordx2 {v(KR+2*i,2)}, v{VH}, s[{SK}:{SK+3}], {soff[i>>1]} offen" + (" offset:2048" if i & 1 else "") + (NT() if OPT["ntk"] else ""))
    for i in range(8):
        a.e(f"buffer_load_dwordx2 {v(KR+6+2*i,2)}, v{VOFF}, s[{SK}:{SK+3}], {soff[i>>1]} offen" + (" offset:2048" if i & 1 else "") + (NT() if OPT["ntk"] else ""))
    for i in range(8):
        a.e(f"buffer_load_dwordx2 {v(VR+2*i,2)}, v{VOFF}, s[{SV}:{SV+3}], {soff[i>>1]} offen" + (" offset:2048" if i & 1 else "") + NT())
    if after_loads: after_loads()
    stamp(a, 2)
    if OPT["earlypub"]:
        Lq = newlbl("epub2")
        a.e("s_cmp_eq_u32 s3, 0", f"s_cbranch_scc1 {Lq}")
        fin_epoch(a)
        a.label(Lq)
    else:
        fin_epoch(a)
        loc_publish(a)
    if shadow: shadow()
    def wv(n, extra):
        n += nyoung
        if extra and not OPT["earlypub"]:
            L = newlbl("wv")
            a.e(f"s_cbranch_scc1 {L}", f"s_waitcnt vmcnt({n})")
            a.label(L)
            a.e(f"s_waitcnt vmcnt({n+extra})")
        elif extra == 2 and OPT["earlypub"]:
            L = newlbl("wv")
            a.e(f"s_cbranch_scc1 {L}", f"s_waitcnt vmcnt({n})")
            a.label(L)
            a.e(f"s_waitcnt vmcnt({n+1})")
        else:
            a.e(f"s_waitcnt vmcnt({n})")
    a.e("s_cmp_eq_u32 s3, 0")
    wv(19, 1)
    for ch in range(4):
        for j in range(4):
            src = SHR + 2*ch + (j >> 1)
            if j & 1: a.e(f"v_and_b32 v{SHF+4*j+ch}, s{M}, v{src}")
            else:     a.e(f"v_lshlrev_b32 v{SHF+4*j+ch}, 16, v{src}")
    for i in range(11):
        wv(18-i, 1)
        for hf in range(2):
            a.e(f"v_lshlrev_b32 v{KF+4*i+2*hf}, 16, v{KR+2*i+hf}", f"v_and_b32 v{KF+4*i+2*hf+1}, s{M}, v{KR+2*i+hf}")
    loc_issue(a, 10)
    a.e("s_cmp_eq_u32 s3, 0")
    for i in range(8):
        wv(7-i, 2)
        if i == 7 and hook: hook()
        for hf in range(2):
            a.e(f"v_lshlrev_b32 v{TM+2*hf}, 16, v{VR+2*i+hf}", f"v_and_b32 v{TM+2*hf+1}, s{M}, v{VR+2*i+hf}")
        for hf in range(2):
            acc = KV+4*i+2*hf
            a.e(f"v_pk_mul_f32 {v(acc,2)}, {v(KF+4*(i+3)+2*hf,2)}, {v(SHF+2*hf,2)}")
            for j in range(1, 4):
                a.e(f"v_pk_fma_f32 {v(acc,2)}, {v(KF+4*(i+3-j)+2*hf,2)}, {v(SHF+4*j+2*hf,2)}, {v(acc,2)}")
            a.e(f"v_pk_mul_f32 {v(acc,2)}, {v(acc,2)}, {v(TM+2*hf,2)}")
    stamp(a, 3)
    for ch in range(4):
        for m in range(4):
            a.e(f"v_cvt_pk_bf16_f32 v{PK+4*ch+m}, v{KV+4*(7-2*m)+ch}, v{KV+4*(6-2*m)+ch}")
    sts = [f"buffer_store_dwordx4 {v(PK+4*ch,4)}, v{VST}, s[{SKVT}:{SKVT+3}], {SCR(ch)} offen" for ch in range(4)]
    if OPT["twoflag"]:
        for l in sts: a.e(l + (" nt" if OPT["ntscr"] else ""))
        stamp(a, 4)
        a.e(f"s_lshl_b32 s51, s{sCBKT}, 4", f"s_add_u32 s51, s51, s{sSUBT}", f"s_lshl_b32 s51, s51, {FB()}", f"s_add_u32 s92, s51, {SY_B1}")
        La = newlbl("siga")
        a.e("s_waitcnt vmcnt(0)", "s_barrier", "s_cmp_lg_u32 s3, 0", f"s_cbranch_scc1 {La}",
            "v_mov_b32 v14, s92", f"v_mov_b32 v15, s{S_TGT}", "s_mov_b64 exec, 1",
            f"buffer_store_dword v15, v14, s[{S_SYN}:{S_SYN+3}], 0 offen", "s_mov_b64 exec, -1")
        a.label(La)
        if after_stores: after_stores()
        loc_resolve(a, 10, nafter=nafter + 1 if after_stores else 1)
        Lo = newlbl("opt")
        a.e(f"s_cmp_lg_u32 s{sLOC}, 0", f"s_cbranch_scc1 {Lo}", "s_waitcnt vmcnt(0)")
        for l in sts: a.e(l + " sc1")
        a.e(f"s_add_u32 s51, s51, {SY_B1B}")
        signal(a, 51, 14)
        a.label(Lo)
        return
    if OPT["optst"]:
        for l in sts: a.e(l)
        if after_stores: after_stores()
        loc_resolve(a, 10, nafter=nafter)
        Lo = newlbl("opt")
        a.e(f"s_cmp_lg_u32 s{sLOC}, 0", f"s_cbranch_scc1 {Lo}", "s_waitcnt vmcnt(0)")
        for l in sts: a.e(l + " sc1")
        a.e("s_waitcnt vmcnt(0)")
        a.label(Lo)
    else:
        loc_resolve(a, 10)
        dual_store(a, sts)
    stamp(a, 4)
    a.e(f"s_lshl_b32 s51, s{sCBKT}, 4", f"s_add_u32 s51, s51, s{sSUBT}", f"s_lshl_b32 s51, s51, {FB()}", f"s_add_u32 s51, s51, {SY_B1}")
    signal(a, 51, 14, nafter=nafter, bloc=True)

B3_QR, B3_VQ, B3_VT, B3_VO = 208, 224, 225, 226
def emit_B3_pre_n(a):
    SQ, STT, SOUT = BT_S0, BT_S1, BT_S2
    srd(a, SQ, P_Q, P_Q+1, 4*MB); srd(a, SOUT, P_OUT, P_OUT+1, 8*MB)
    bt_setup(a)
    t = 227
    a.e(f"v_and_b32 v{t}, 15, v1", f"v_lshrrev_b32 v{t+1}, 4, v1",
        f"v_lshl_add_u32 v{t+1}, v{t+1}, 3, s{BT_ROW}", f"v_lshl_add_u32 v{t}, v{t}, 2, s{BT_CH}",
        f"v_lshlrev_b32 v{B3_VQ}, 11, v{t+1}", f"v_lshl_add_u32 v{B3_VQ}, v{t}, 1, v{B3_VQ}",
        f"v_lshlrev_b32 v{B3_VO}, 12, v{t+1}", f"v_lshl_add_u32 v{B3_VO}, v{t}, 1, v{B3_VO}", f"v_add_u32 v{B3_VO}, 2048, v{B3_VO}")
    a.e(f"v_and_b32 v{t}, 15, v1", f"v_lshrrev_b32 v{t+1}, 4, v1")
    scratch_addr(a, B3_VT, t, t+1)
    for i in range(8):
        a.e(f"buffer_load_dwordx2 {v(B3_QR+2*i,2)}, v{B3_VQ}, s[{SQ}:{SQ+3}], {BT_SOFF[i>>1]} offen" + (" offset:2048" if i & 1 else "") + NT())

def emit_B3_n(a):
    SQ, STT, SOUT = BT_S0, BT_S1, BT_S2
    soff = BT_SOFF; M = BT_MASK
    TR, TF, QF = 16, 48, 80
    a.e(f"s_mov_b32 s{M}, 0xffff0000")
    a.e(f"s_lshl_b32 s51, s{sCBKT}, {4+FB()}", f"s_add_u32 s51, s51, {SY_B2}",
        "v_and_b32 v12, 15, v1", f"v_lshlrev_b32 v12, {FB()}, v12", "v_add_u32 v12, s51, v12")
    a.e("s_waitcnt vmcnt(0)")
    for e in range(8):
        qf = QF + 4*e
        for hf in range(2):
            a.e(f"v_lshlrev_b32 v{qf+2*hf}, 16, v{B3_QR+2*e+hf}", f"v_and_b32 v{qf+2*hf+1}, s{M}, v{B3_QR+2*e+hf}")
    wait_flags(a, 12, 1, 13, 51)
    stamp(a, 10)
    for ch in range(4):
        a.e(f"buffer_load_dwordx4 {v(TR+4*ch,4)}, v{B3_VT}, s[{SOUT}:{SOUT+3}], {SCR(ch)} offen" + LDL())
    for ch in range(4):
        a.e(f"s_waitcnt vmcnt({3-ch})")
        for e in range(8):
            src = TR+4*ch+(e >> 1)
            if e & 1: a.e(f"v_and_b32 v{TF+4*e+ch}, s{M}, v{src}")
            else:     a.e(f"v_lshlrev_b32 v{TF+4*e+ch}, 16, v{src}")
    a.e("s_barrier")
    for e in range(8):
        qf = QF + 4*e
        for hf in range(2):
            a.e(f"v_pk_mul_f32 {v(qf+2*hf,2)}, {v(qf+2*hf,2)}, {v(TF+4*e+2*hf,2)}")
        pk = 112+2*e
        for hf in range(2):
            a.e(f"v_cvt_pk_bf16_f32 v{pk+hf}, v{qf+2*hf}, v{qf+2*hf+1}")
        a.e(f"buffer_store_dwordx2 {v(pk,2)}, v{B3_VO}, s[{SOUT}:{SOUT+3}], {soff[e]} offen" + NTOB())

def emit_B3_pre_w(a):
    SQ, STT, SOUT = BT_S0, BT_S1, BT_S2
    srd(a, SQ, P_Q, P_Q+1, 4*MB); srd(a, SOUT, P_OUT, P_OUT+1, 8*MB)
    bt_setup(a)
    t = 227
    a.e(f"v_and_b32 v{t}, 7, v1", f"v_lshrrev_b32 v{t+1}, 3, v1")
    a.e(f"s_lshl_b32 s51, s{sSUBT}, 7", "s_lshl_b32 s92, s3, 5", "s_add_u32 s51, s51, s92", "s_lshl_b32 s51, s51, 12",
        f"s_lshl_b32 s92, s{sCBKT}, 7", "s_add_u32 s51, s51, s92", "s_add_u32 s51, s51, 2048",
        f"v_lshlrev_b32 v{B3_VT}, 12, v{t}", f"v_lshl_add_u32 v{B3_VT}, v{t+1}, 3, v{B3_VT}", f"v_add_u32 v{B3_VT}, s51, v{B3_VT}",
        "s_mov_b32 s32, 32768", "s_mov_b32 s33, 65536", "s_mov_b32 s34, 98304")
    a.e(f"v_lshl_add_u32 v{t+1}, v{t+1}, 2, s{BT_ROW}", f"v_lshl_add_u32 v{t}, v{t}, 3, s{BT_CH}",
        f"v_lshlrev_b32 v{B3_VQ}, 11, v{t+1}", f"v_lshl_add_u32 v{B3_VQ}, v{t}, 1, v{B3_VQ}",
        f"v_lshlrev_b32 v{B3_VO}, 12, v{t+1}", f"v_lshl_add_u32 v{B3_VO}, v{t}, 1, v{B3_VO}", f"v_add_u32 v{B3_VO}, 2048, v{B3_VO}")
    for e in range(4):
        a.e(f"buffer_load_dwordx4 {v(B3_QR+4*e,4)}, v{B3_VQ}, s[{SQ}:{SQ+3}], {BT_SOFF[e>>1]} offen" + (" offset:2048" if e & 1 else "") + NT())

def emit_B3_w(a):
    SQ, STT, SOUT = BT_S0, BT_S1, BT_S2
    soff = BT_SOFF; M = BT_MASK
    TR, TF, QF = 16, 48, 80
    a.e(f"s_mov_b32 s{M}, 0xffff0000")
    a.e(f"s_lshl_b32 s51, s{sCBKT}, {4+FB()}", f"s_add_u32 s51, s51, {SY_B2}",
        "v_and_b32 v12, 15, v1", f"v_lshlrev_b32 v12, {FB()}, v12", "v_add_u32 v12, s51, v12")
    a.e("s_waitcnt vmcnt(0)")
    for e in range(4):
        for d in range(4):
            a.e(f"v_lshlrev_b32 v{QF+8*e+2*d}, 16, v{B3_QR+4*e+d}", f"v_and_b32 v{QF+8*e+2*d+1}, s{M}, v{B3_QR+4*e+d}")
    wait_flags(a, 12, 1, 13, 51)
    stamp(a, 10)
    for c in range(8):
        a.e(f"buffer_load_dwordx2 {v(TR+2*c,2)}, v{B3_VT}, s[{SOUT}:{SOUT+3}], {SCR(c & 3)} offen" + (" offset:64" if c >> 2 else "") + LDL())
    for c in range(8):
        a.e(f"s_waitcnt vmcnt({7-c})")
        for e in range(4):
            src = TR+2*c+(e >> 1)
            if e & 1: a.e(f"v_and_b32 v{TF+8*e+c}, s{M}, v{src}")
            else:     a.e(f"v_lshlrev_b32 v{TF+8*e+c}, 16, v{src}")
    a.e("s_barrier")
    for e in range(4):
        for d in range(4):
            a.e(f"v_pk_mul_f32 {v(QF+8*e+2*d,2)}, {v(QF+8*e+2*d,2)}, {v(TF+8*e+2*d,2)}")
        pk = 112+4*e
        for d in range(4):
            a.e(f"v_cvt_pk_bf16_f32 v{pk+d}, v{QF+8*e+2*d}, v{QF+8*e+2*d+1}")
        a.e(f"buffer_store_dwordx4 {v(pk,4)}, v{B3_VO}, s[{SOUT}:{SOUT+3}], {soff[e]} offen" + NTOB())

def emit_B3_pre(a): (emit_B3_pre_w if OPT["b3w"] else emit_B3_pre_n)(a)
def emit_B3(a): (emit_B3_w if OPT["b3w"] else emit_B3_n)(a)

def gen_A(a):
    ROLE[0] = 'A'
    SX, SI1, SWR, SWI, SI2, SOUT = 32, 36, 80, 84, 32, 36
    a.e(f"s_setprio {OPT['prioA']}") if OPT['prioA'] else None
    sT, sSA, sCB, sJ, sJM, sJP, sJQ, sTL = 40, 41, 42, 43, 72, 73, 74, 44
    def rows():
        srd(a, SI1, P_WS, P_WS+1, 4*MB, add=WS_I1)
        srd(a, SWR, P_WR, P_WR+1, WBYTES); srd(a, SWI, P_WI, P_WI+1, WBYTES)
        Lr = newlbl("reg")
        a.e("s_lshl_b32 s47, s3, 9", f"s_add_u32 s{sJ}, s{sT}, s47", f"s_mov_b32 s{sJP}, s{sT}", f"s_sub_u32 s{sJQ}, 512, s{sT}",
            f"s_cmp_lg_u32 s{sT}, 0", f"s_cbranch_scc1 {Lr}",
            f"s_mov_b32 s{sJQ}, 256", "s_lshl_b32 s47, s3, 2", "s_lshr_b32 s46, 0x3120, s47", "s_and_b32 s46, s46, 15", f"s_lshl_b32 s{sJ}, s46, 8")
        a.label(Lr)
        a.e(f"s_sub_u32 s{sJM}, 2048, s{sJ}", f"s_and_b32 s{sJM}, s{sJM}, 2047",
            f"s_mul_i32 s{sJ}, s{sJ}, 1026", f"s_mul_i32 s{sJM}, s{sJM}, 1026")
        a.e(f"s_or_b32 s75, s{sT}, s3")
    def wstage():
        a.e("v_lshlrev_b32 v243, 4, v1", "s_lshl_b32 s46, s3, 12", f"s_add_u32 s46, s46, {LW}")
        w_dma(a, SWR, SWI, sJ, sJM, 46, 243)
        pf_loads(a, SWR, SWI, sJ, sJM, PF, 244)
        if not OPT["spec2"]: wstage2()
    def wstage2():
        Ln = newlbl("now2")
        a.e("s_cmp_lg_u32 s75, 0", f"s_cbranch_scc1 {Ln}")
        a.e("v_lshlrev_b32 v243, 4, v1", f"s_mov_b32 s47, {1024*1026}", f"s_mov_b32 s46, {LW2}")
        w_dma(a, SWR, SWI, 47, 47, 46, 243)
        pf_loads(a, SWR, SWI, 47, 47, PF2, 244)
        a.label(Ln)
    if OPT["pairx"]:
        a.e(f"s_and_b32 s48, s{sCU}, 7", "s_lshl_b32 s48, s48, 4", f"s_lshr_b32 s49, s{sCU}, 4", "s_add_u32 s48, s48, s49",
            "s_sub_u32 s49, 256, s48", "s_cmp_eq_u32 s48, 0", "s_cselect_b32 s49, 128, s49",
            f"s_bitcmp1_b32 s{sCU}, 3", f"s_cselect_b32 s{sT}, s49, s48")
    else:
        a.e(f"s_mov_b32 s{sT}, s{sCU}")
    stamp(a, 0, True); stamp(a, 1)
    Lp1 = newlbl("nop1")
    if OPT["pA1a"] >= 0: a.e(f"s_setprio {OPT['pA1a']}")
    srd(a, SX, P_X, P_X+1, 4*MB)
    a.e(f"s_lshr_b32 s48, s{sCU}, 3", f"s_and_b32 s49, s{sCU}, 7", f"s_lshr_b32 s{sSA}, s48, 2", "s_bfe_u32 s50, s48, 0x10001",
        "s_lshl_b32 s50, s50, 3", "s_add_u32 s50, s50, s49", "s_lshl_b32 s50, s50, 1", "s_and_b32 s51, s48, 1", f"s_add_u32 s{sCB}, s50, s51")
    f256_loads(a, SX, sSA, sCB, NT() if OPT["ntx"] else "")
    stamp(a, 12)
    f256_setup(a)
    rows()
    wstage2()
    f256_run(a, SI1, 0)
    stamp(a, 4)
    if OPT["cearly"]:
        a.e("s_nop 1")
        a2_consts(a, sT)
    a.e(f"s_lshl_b32 s48, s{sCU}, {FA()}", f"s_add_u32 s48, s48, {SY_A1}")
    fin_epoch(a)
    signal(a, 48, 240)
    a.label(Lp1)
    pair_pubA(a)
    if OPT["pA1i"] >= 0 or OPT["pA1a"] >= 0: a.e(f"s_setprio {OPT['prioA']}")
    stamp(a, 5)
    if OPT["wlate"] == 2: wstage()
    srd(a, SI2, P_WS, P_WS+1, 4*MB, add=WS_I2)
    if not OPT["cearly"]: a2_consts(a, sT)
    a.e(f"v_lshl_add_u32 v{TMP}, v{G_}, 7, v{IDX}",
        "s_lshl_b32 s48, s3, 12", f"s_add_u32 s48, s48, {LW}",
        f"v_lshl_add_u32 v{VW}, v{TMP}, 1, s48",
        f"v_sub_u32 v{TMP+1}, {1023-32*27}, v{TMP}", f"s_add_u32 s49, s48, 2048", f"v_lshl_add_u32 v{VW+1}, v{TMP+1}, 1, s49")
    a.e(f"v_lshlrev_b32 v{VG}, 12, v{G_}", f"v_lshl_add_u32 v{VG}, v{IDX}, 2, v{VG}",
        "s_lshl_b32 s49, s3, 9",
        f"s_lshl_b32 s52, s{sJP}, 13", "s_add_u32 s52, s52, s49",
        f"s_lshl_b32 s53, s{sJQ}, 13", "s_add_u32 s53, s53, s49")
    a.e(f"s_lshl_b32 s54, s{sT}, 14", "s_add_u32 s54, s54, s49", f"s_sub_u32 s55, 256, s{sT}", "s_and_b32 s55, s55, 255", "s_lshl_b32 s55, s55, 14", "s_add_u32 s55, s55, s49",
        "s_add_u32 s56, s54, 8192", "s_add_u32 s57, s55, 8192")
    a.e(f"v_lshlrev_b32 v{VGW}, 12, v{G_}", f"v_lshl_add_u32 v{VGW}, v{IDX}, 3, v{VGW}", "s_lshl_b32 s50, s3, 10", f"v_add_u32 v{VGW}, s50, v{VGW}",
        f"v_lshlrev_b32 v{VRR}, 9, v{G_}", f"v_lshl_add_u32 v{VRR}, v{IDX}, 2, v{VRR}", "s_lshl_b32 s51, s3, 12", f"v_add_u32 v{VRR}, s51, v{VRR}")
    for t in range(1, 4): a.e(f"v_add_u32 v{VRR+t}, {1024*t}, v{VRR}")
    a.e(f"v_lshrrev_b32 v{TMP}, 4, v1", f"v_and_b32 v{TMP+1}, 1, v{TMP}", f"v_lshlrev_b32 v{VHR}, 13, v{TMP+1}",
        f"v_lshrrev_b32 v{TMP+1}, 1, v{TMP}", f"v_lshl_add_u32 v{VHR}, v{TMP+1}, 7, v{VHR}",
        f"v_and_b32 v{TMP+1}, 15, v1", f"v_lshl_add_u32 v{VHR}, v{TMP+1}, 3, v{VHR}", f"v_add_u32 v{VHR}, s50, v{VHR}")
    a.e(f"v_and_b32 v{TMP+2}, 1, v{TMP+1}", f"v_mov_b32 v{TMP+3}, s52", f"v_mov_b32 v{TMP+4}, s53",
        f"v_cmp_eq_u32 vcc, 1, v{TMP+2}", f"v_cndmask_b32 v{VST}, v{TMP+3}, v{TMP+4}, vcc",
        f"v_bfe_u32 v{TMP+2}, v{TMP+1}, 1, 2", f"v_lshl_add_u32 v{VST}, v{TMP+2}, 11, v{VST}",
        f"v_lshrrev_b32 v{TMP+2}, 3, v{TMP+1}", f"v_lshl_add_u32 v{VST}, v{TMP+2}, 6, v{VST}",
        f"v_lshl_add_u32 v{VST}, v{TMP}, 4, v{VST}")
    a.e(f"v_lshlrev_b32 v{TMP}, {FA()}, v1", f"v_add_u32 v{TMP}, {SY_A1}, v{TMP}")
    stamp(a, 6)
    wait_flags(a, TMP, 4, TMP+1, 48)
    if OPT["yieldB"] == 1: a_state(a, sCU, 1, TMP)
    stamp(a, 7)
    def gfrag(u, ks): return (GB if u < 2 else DF) + 8*(u & 1) + 4*ks
    for u in range(4):
        for ks in range(2):
            for sl in range(2):
                for pq in range(2):
                    a.e(f"buffer_load_dword v{gfrag(u,ks)+2*sl+pq}, v{VG}, s[{SI1}:{SI1+3}], s{54+2*ks+pq} offen offset:{2048*sl+128*u} " + GLD())
    NWL = 0
    if OPT["wlate"] == 1:
        wstage(); NWL = 8
        if not OPT["spec2"]:
            Lsw = newlbl("spw")
            a.e("s_cmp_lg_u32 s75, 0", f"s_cbranch_scc1 {Lsw}", "s_waitcnt vmcnt(0)")
            a.label(Lsw)
    for rnd in range(2):
        a.e(f"s_waitcnt vmcnt({16-16*rnd+NWL})")
        if rnd == OPT.get("yat", 1) and OPT["yieldB"] == 3:
            a_state(a, sCU, 1, 240)
        for uu in range(2):
            u = 2*rnd+uu
            D = ARE if uu == 0 else AIM
            a.e(f"v_mfma_f32_32x32x16_bf16 {v(D,16)}, {v(GA,4)}, {v(gfrag(u,0),4)}, 0",
                f"v_mfma_f32_32x32x16_bf16 {v(D,16)}, {v(GA2,4)}, {v(gfrag(u,1),4)}, {v(D,16)}")
        for uu in range(2):
            u = 2*rnd+uu
            D = ARE if uu == 0 else AIM
            t = TMP+4*uu
            for h in range(2):
                a.e(f"v_cvt_pk_bf16_f32 v{t}, v{D+4*h}, v{D+4*h+1}", f"v_cvt_pk_bf16_f32 v{t+1}, v{D+4*h+2}, v{D+4*h+3}",
                    f"ds_write_b64 v{VGW}, {v(t,2)} offset:{256*u+8192*h}")
                t += 2
    a.e("s_waitcnt lgkmcnt(0)", "s_barrier")
    stamp(a, 8)
    if OPT["qA"] and not OPT["a3all"]:
        Lq = newlbl("noqA")
        a.e(f"s_cmp_lg_u32 s{sACT}, 0", f"s_cbranch_scc1 {Lq}")
        emit_B3_pre(a)
        a.label(Lq)
    for t in range(4):
        a.e(f"ds_read2_b32 {v(DF+4*t,2)}, v{VRR+t} offset0:0 offset1:32", f"ds_read2_b32 {v(DF+4*t+2,2)}, v{VRR+t} offset0:64 offset1:96")
    a.e("s_waitcnt lgkmcnt(0)")
    Lsp, Linv, Lfwd, Lpre = newlbl("special"), newlbl("inv"), newlbl("fwd"), newlbl("pre")
    sPASS = 45
    if OPT["spec2"]:
        a.e(f"s_mov_b32 s{sPASS}, 0", "s_cmp_lg_u32 s75, 0", f"s_cbranch_scc1 {Lpre}")
        for i in range(16): a.e(f"v_lshrrev_b32 v{GB+i}, 16, v{DF+i}", f"v_and_b32 v{DF+i}, 0xffff, v{DF+i}")
        a.label(Lpre)
    def wmid():
        Lk = newlbl("wskip")
        if OPT["spec2"]: a.e(f"s_cmp_lg_u32 s{sPASS}, 0", f"s_cbranch_scc1 {Lk}")
        if OPT["qA"] and not OPT["a3all"]:
            L1, L2 = newlbl("wa"), newlbl("wb")
            a.e(f"s_cmp_lg_u32 s{sACT}, 0", f"s_cbranch_scc1 {L1}", "s_waitcnt vmcnt(8)", f"s_branch {L2}")
            a.label(L1); a.e("s_waitcnt vmcnt(0)"); a.label(L2)
        else:
            a.e("s_waitcnt vmcnt(0)")
        w_lds_reads(a, VW, VW+1, WR, WI)
        a.label(Lk)
    if OPT["wlate"] == 1:
        a.label(Lfwd); a.e("s_nop 1")
        fft1024(a, mid=wmid)
    else:
        w_lds_reads(a, VW, VW+1, WR, WI)
        a.label(Lfwd); a.e("s_nop 1")
        fft1024(a)
    a.e("s_waitcnt lgkmcnt(0)")
    Lnf = newlbl("nofix")
    if OPT["spec2"]: a.e(f"s_cmp_lg_u32 s{sPASS}, 0", f"s_cbranch_scc1 {Lnf}")
    fix_w(a, WR, WI, PF)
    a.label(Lnf)
    a.e("s_cmp_eq_u32 s75, 0", f"s_cbranch_scc1 {Lsp}")
    for p in range(8):
        xr, xi, wr, wi = ARE+2*p, AIM+2*p, WR+2*p, WI+2*p
        t0 = TMP+4*(p & 1); t1 = t0+2
        n0 = " neg_lo:[1,0,0] neg_hi:[1,0,0]" if p < 4 else ""
        n1 = "" if p < 4 else " neg_lo:[1,0,0] neg_hi:[1,0,0]"
        a.e(f"v_pk_mul_f32 {v(t0,2)}, {v(xr,2)}, {v(wr,2)}", f"v_pk_mul_f32 {v(t1,2)}, {v(xi,2)}, {v(wr,2)}",
            f"v_pk_fma_f32 {v(t0,2)}, {v(xi,2)}, {v(wi,2)}, {v(t0,2)}{n0}",
            f"v_pk_fma_f32 {v(t1,2)}, {v(xr,2)}, {v(wi,2)}, {v(t1,2)}{n1}")
        for e in range(2):
            a.e(f"v_cvt_pk_bf16_f32 v{DF+2*p+e}, v{t0+e}, -v{t1+e}")
    a.label(Linv)
    a.e("s_nop 1")
    fft1024(a)
    for r in range(16):
        t = TMP + (r & 7)
        a.e(f"v_cvt_pk_bf16_f32 v{t}, v{ARE+r}, v{AIM+r}", f"ds_write_b32 v{VRR}, v{t} offset:{128*eidx(r)}")
    a.e("s_waitcnt lgkmcnt(0)", "s_barrier")
    if OPT["yieldB"]:
        Ly = newlbl("y0a")
        if OPT["y0"]: a.e(f"s_cmp_lg_u32 s{sT}, 0", f"s_cbranch_scc1 {Ly}")
        a_state(a, sCU, 2, TMP)
        a.label(Ly)
    stamp(a, 9)
    for u in range(4):
        for sl in range(2):
            a.e(f"ds_read_b64 {v(GB+4*u+2*sl,2)}, v{VHR} offset:{4096*sl+256*u}")
    a.e("s_lshl_b32 s49, s3, 9")
    for u in range(4):
        a.e(f"s_waitcnt lgkmcnt({6-2*u})")
        a.e(f"v_mfma_f32_16x16x32_bf16 {v(ARE+4*u,4)}, {v(GB+4*u,4)}, {v(HRE,4)}, 0",
            f"v_mfma_f32_16x16x32_bf16 {v(AIM+4*u,4)}, {v(GB+4*u,4)}, {v(HIM,4)}, 0")
    for u in range(4):
        for r in range(4):
            a.e(f"v_cvt_pk_bf16_f32 v{DF+4*u+r}, v{ARE+4*u+r}, v{AIM+4*u+r}")
        a.e(f"buffer_store_dwordx4 {v(DF+4*u,4)}, v{VST}, s[{SI2}:{SI2+3}], 0 offen offset:{128*u} sc1")
    dstamp(a, 6); dpublish(a, sT)
    a.e(f"s_lshl_b32 s48, s{sT}, {FA()}", f"s_add_u32 s48, s48, {SY_A2}")
    signal(a, 48, TMP)
    stamp(a, 10)
    Lb3 = newlbl("b3")
    if OPT["a3all"]:
        srd(a, SOUT, P_OUT, P_OUT+1, 8*MB)
        a.e(f"s_lshr_b32 s48, s{sCU}, 3", f"s_and_b32 s49, s{sCU}, 7", f"s_lshr_b32 s{sSA}, s48, 3", "s_bfe_u32 s50, s48, 0x10002",
            "s_lshl_b32 s50, s50, 3", "s_add_u32 s50, s50, s49", "s_lshl_b32 s50, s50, 2", "s_and_b32 s51, s48, 3", f"s_add_u32 s{sCB}, s50, s51")
        f8_addr(a, sSA, sCB, 4096, 16384)
        f8_consts(a)
        a.e(f"v_lshlrev_b32 v{F_TMP}, {FA()}, v1", f"v_add_u32 v{F_TMP}, {SY_A2}, v{F_TMP}")
        wait_flags(a, F_TMP, 4, F_TMP+1, 48, skip0=47 if OPT["t0late"] else None)
        stamp(a, 11)
        PHASE[0] = 3
        fstamp(a, 11)
        f8_run(a, SI2, SOUT, {0: "sc1", 1: "nt", 2: ""}[OPT["i2ld"]], NTO(), sT0=47 if OPT["t0late"] else None)
    else:
        a.e(f"s_cmp_eq_u32 s{sACT}, 0", f"s_cbranch_scc1 {Lb3}")
        srd(a, SOUT, P_OUT, P_OUT+1, 8*MB)
        fft512_addr(a, sSA, sCB)
        fft512_addr2(a, sSA, sCB, 4096, 16384)
        fft512_consts(a)
        a.e(f"v_lshlrev_b32 v{F_TMP}, {FA()}, v1", f"v_add_u32 v{F_TMP}, {SY_A2}, v{F_TMP}")
        wait_flags(a, F_TMP, 4, F_TMP+1, 48)
        stamp(a, 11)
        PHASE[0] = 3
        fstamp(a, 11)
        fft512_loads(a, SI2, "sc1")
        fstamp(a, 3)
        save = gen.PROF; gen.PROF = False
        fft512_compute(a, SOUT, True, 0, NTO(), 0)
        gen.PROF = save
    a.e("s_cmp_lg_u32 s75, 0", "s_cbranch_scc1 L_fin")
    Lb1, Lb2 = newlbl("bchk"), newlbl("bchkd")
    a.e("v_lshlrev_b32 v2, 6, v1", f"v_add_u32 v2, {SY_ID}, v2", f"s_lshl_b32 s49, s{S_TGT}, 4", "s_mov_b32 s48, 0")
    a.label(Lb1)
    NS = NMEM()*8//64
    for i in range(NS):
        a.e(f"s_mov_b32 s50, {4096*i}", f"buffer_load_dword v{4+i}, v2, s[{S_SYN}:{S_SYN+3}], s50 offen sc1")
    a.e("s_add_u32 s48, s48, 1", "s_waitcnt vmcnt(0)")
    for i in range(NS): a.e(f"v_xor_b32 v{4+i}, s49, v{4+i}")
    for i in range(1, NS): a.e(f"v_or_b32 v4, v4, v{4+i}")
    a.e("v_lshrrev_b32 v4, 4, v4", "v_cmp_ne_u32 vcc, 0, v4", f"s_cbranch_vccz {Lb2}", f"s_cmp_lt_u32 s48, {SPIN_LIMIT}", f"s_cbranch_scc1 {Lb1}")
    a.label(Lb2)
    dreduce(a)
    pair_sum(a)
    a.e(f"s_mov_b32 s48, {SY_E}")
    bump(a, 48, 2)
    a.e("s_branch L_fin")
    if not OPT["a3all"]:
        a.label(Lb3)
        if not OPT["qA"]: emit_B3_pre(a)
        emit_B3(a)
        a.e("s_branch L_fin")
    a.label(Lsp)
    if OPT["spec2"]:
        Lp1s = newlbl("sp1")
        NEG = " neg_lo:[1,0,0] neg_hi:[1,0,0]"
        a.e(f"s_cmp_lg_u32 s{sPASS}, 0", f"s_cbranch_scc1 {Lp1s}")
        a.e(f"v_lshl_add_u32 v{SP}, v{G_}, 7, v{IDX}", f"v_sub_u32 v{SP+1}, {1023-32*27}, v{SP}",
            f"s_mov_b32 s48, {LW2}", f"v_lshl_add_u32 v{SP+2}, v{SP}, 1, s48", f"s_mov_b32 s49, {LW2+2048}", f"v_lshl_add_u32 v{SP+3}, v{SP+1}, 1, s49")
        w_lds_reads(a, SP+2, SP+3, W2R, W2I)
        for p in range(8):
            xr, xi, wr, wi = ARE+2*p, AIM+2*p, WR+2*p, WI+2*p
            t0 = TMP+4*(p & 1); t1 = t0+2
            n0 = NEG if p < 4 else ""; n1 = "" if p < 4 else NEG
            a.e(f"v_pk_mul_f32 {v(t0,2)}, {v(xr,2)}, {v(wr,2)}", f"v_pk_mul_f32 {v(t1,2)}, {v(xi,2)}, {v(wr,2)}",
                f"v_pk_fma_f32 {v(wr,2)}, {v(xi,2)}, {v(wi,2)}, {v(t0,2)}{n0}",
                f"v_pk_fma_f32 {v(wi,2)}, {v(xr,2)}, {v(wi,2)}, {v(t1,2)}{n1}")
        for i in range(16): a.e(f"v_mov_b32 v{DF+i}, v{GB+i}")
        a.e(f"s_mov_b32 s{sPASS}, 1", f"s_branch {Lfwd}")
        a.label(Lp1s)
        fix_w(a, W2R, W2I, PF2)
        for p in range(8):
            xr, xi, br, bi, r1r, r1i = ARE+2*p, AIM+2*p, W2R+2*p, W2I+2*p, WR+2*p, WI+2*p
            t0 = TMP+4*(p & 1); t1 = t0+2
            n0 = NEG if p < 4 else ""; n1 = "" if p < 4 else NEG
            a.e(f"v_pk_mul_f32 {v(t0,2)}, {v(xr,2)}, {v(br,2)}", f"v_pk_mul_f32 {v(t1,2)}, {v(xi,2)}, {v(br,2)}",
                f"v_pk_fma_f32 {v(t0,2)}, {v(xi,2)}, {v(bi,2)}, {v(t0,2)}{n0}",
                f"v_pk_fma_f32 {v(t1,2)}, {v(xr,2)}, {v(bi,2)}, {v(t1,2)}{n1}",
                f"v_pk_add_f32 {v(t1,2)}, {v(r1r,2)}, {v(t1,2)} neg_lo:[0,1] neg_hi:[0,1]",
                f"v_pk_add_f32 {v(t0,2)}, {v(r1i,2)}, {v(t0,2)}")
            for e in range(2):
                a.e(f"v_cvt_pk_bf16_f32 v{DF+2*p+e}, v{t1+e}, -v{t0+e}")
        a.e(f"s_branch {Linv}")
        return
    a.e(f"v_lshl_add_u32 v{TMP}, v{G_}, 7, v{IDX}", f"v_sub_u32 v{TMP+1}, {1023-32*27}, v{TMP}",
        f"s_mov_b32 s48, {LW2}", f"v_lshl_add_u32 v{TMP+2}, v{TMP}, 1, s48", f"s_mov_b32 s49, {LW2+2048}", f"v_lshl_add_u32 v{TMP+3}, v{TMP+1}, 1, s49")
    w_lds_reads(a, TMP+2, TMP+3, W2R, W2I)
    a.e("s_waitcnt lgkmcnt(0)")
    fix_w(a, W2R, W2I, PF2)
    VS = SP; K0 = SP+1
    a.e(f"v_lshlrev_b32 v{VS}, 9, v{G_}", f"v_lshl_add_u32 v{VS}, v{IDX}, 2, v{VS}")
    for r in range(16):
        a.e(f"ds_write_b32 v{VS}, v{ARE+r} offset:{LSC+128*eidx(r)}", f"ds_write_b32 v{VS}, v{AIM+r} offset:{LSC+4096+128*eidx(r)}")
    a.e(f"v_lshl_add_u32 v{K0}, v{G_}, 7, v{IDX}", f"v_sub_u32 v{K0}, 1024, v{K0}", "s_waitcnt lgkmcnt(0)")
    for r in range(16):
        ad, rr, ri, ur, ui, vr, vi, o0, o1 = [SP+2+i for i in range(9)]
        a.e(f"v_subrev_u32 v{ad}, {32*eidx(r)}, v{K0}", f"v_and_b32 v{ad}, 1023, v{ad}", f"v_lshlrev_b32 v{ad}, 2, v{ad}",
            f"ds_read_b32 v{rr}, v{ad} offset:{LSC}", f"ds_read_b32 v{ri}, v{ad} offset:{LSC+4096}", "s_waitcnt lgkmcnt(0)")
        pr, pi_ = ARE+r, AIM+r
        a.e(f"v_add_f32 v{ur}, v{pr}, v{rr}", f"v_sub_f32 v{ui}, v{pi_}, v{ri}",
            f"v_sub_f32 v{vr}, v{pr}, v{rr}", f"v_add_f32 v{vi}, v{pi_}, v{ri}")
        sg = "-" if r < 8 else ""; ns = "" if r < 8 else "-"
        ar, ai, br, bi = WR+r, WI+r, W2R+r, W2I+r
        a.e(f"v_mul_f32 v{o0}, v{ur}, v{ar}", f"v_fma_f32 v{o0}, {sg}v{ui}, v{ai}, v{o0}",
            f"v_fma_f32 v{o0}, v{vr}, v{br}, v{o0}", f"v_fma_f32 v{o0}, {sg}v{vi}, v{bi}, v{o0}",
            f"v_mul_f32 v{o1}, v{ui}, v{ar}", f"v_fma_f32 v{o1}, {ns}v{ur}, v{ai}, v{o1}",
            f"v_fma_f32 v{o1}, v{vi}, v{br}, v{o1}", f"v_fma_f32 v{o1}, {ns}v{vr}, v{bi}, v{o1}",
            f"v_mul_f32 v{o0}, 0.5, v{o0}", f"v_mul_f32 v{o1}, 0.5, v{o1}",
            f"v_cvt_pk_bf16_f32 v{DF+r}, v{o0}, -v{o1}")
    a.e(f"s_branch {Linv}")

def h_dma(a, SH, sLB, sD4K):
    a.e("v_lshlrev_b32 v235, 4, v1")
    a.e(f"s_add_u32 s74, s{sLB}, 32", "s_mov_b32 m0, s74")
    for ch in range(4): a.e(f"buffer_load_dwordx4 v235, s[{SH}:{SH+3}], s{sD4K} offen offset:{1024*ch} lds" + (NT() if OPT["nth"] else ""))
    a.e(f"s_add_u32 s74, s{sLB}, 4192", f"s_add_u32 s75, s{sD4K}, 2", "s_mov_b32 m0, s74")
    for ch in range(4): a.e(f"buffer_load_dwordx4 v235, s[{SH}:{SH+3}], s75 offen offset:{1024*ch} lds" + (NT() if OPT["nth"] else ""))
    a.e("v_mov_b32 v233, 0x7ffffff0", f"v_mov_b32 v234, s{sD4K}", "v_cmp_eq_u32 vcc, 15, v1", "v_cndmask_b32 v233, v233, v234, vcc",
        f"buffer_load_short_d16_hi v230, v233, s[{SH}:{SH+3}], 0 offen")

def gen_B(a):
    ROLE[0] = 'B'
    SH, STT, SKVT = 80, 84, 32
    a.e(f"s_setprio {OPT['prioB']}") if OPT['prioB'] else None
    srd(a, SH, P_SSMK, P_SSMK+1, 4*MB); srd(a, STT, P_OUT, P_OUT+1, 8*MB)
    sCBK, sSUB, sD, sD4K, sLB, sDV, sF1, sF2, sMASK = 40, 41, 42, 43, 44, 45, 46, 47, 72
    a.e(f"s_and_b32 s{sCBK}, s2, 15",
        f"s_lshr_b32 s{sSUB}, s2, 4",
        f"s_lshl_b32 s{sD}, s{sCBK}, 4", f"s_add_u32 s{sD}, s{sD}, s{sSUB}", f"s_lshl_b32 s{sD}, s{sD}, 2", f"s_add_u32 s{sD}, s{sD}, s3",
        f"s_lshl_b32 s{sD4K}, s{sD}, 12", f"s_mul_i32 s{sLB}, s3, {LB_STRIDE}", f"s_mov_b32 s{sMASK}, 0xffff0000")
    sSB = 36
    if OPT["fullline"]:
        a.e(f"s_and_b32 s73, s{sD}, 3", "s_lshl_b32 s73, s73, 15", f"s_bfe_u32 s74, s{sD}, 0x30003", "s_lshl_b32 s74, s74, 12", "s_add_u32 s73, s73, s74",
            f"s_bfe_u32 s74, s{sD}, 0x10002", "s_lshl_b32 s74, s74, 6", "s_add_u32 s73, s73, s74",
            f"s_lshl_b32 s74, s{sCBK}, 7", "s_add_u32 s73, s73, s74", f"s_add_u32 s{sSB}, s73, 2048")
    else:
        a.e(f"s_and_b32 s73, s{sD}, 63", "s_lshl_b32 s73, s73, 13", f"s_lshl_b32 s74, s{sCBK}, 7", "s_add_u32 s73, s73, s74", f"s_add_u32 s{sSB}, s73, 2048")
    for i in range(1, 4): a.e(f"s_add_u32 s{sSB+i}, s{sSB}, {i*2*MB}")
    a.e(f"s_lshl_b32 s73, s{sCBK}, {4+FB()}", f"s_add_u32 s{sF1}, s73, {SY_B1}", f"s_lshl_b32 s74, s{sSUB}, {FB()}", "s_add_u32 s73, s73, s74", f"s_add_u32 s{sF2}, s73, {SY_B2}")
    a.e(f"s_and_b32 s73, s{sD}, 0xfffffffe", "s_lshl_b32 s73, s73, 1", f"s_load_dword s{sDV}, s[{P_SSMD}:{P_SSMD+1}], s73")
    stamp(a, 0, True); stamp(a, 1)
    Lidle, Lsetup = newlbl("bidle"), newlbl("bsetup")
    if OPT["pB1"]: a.e(f"s_setprio {OPT['pB1']}")
    if OPT["b1all"]:
        a.e(f"s_mov_b32 s{sCBKT}, s{sCBK}", f"s_mov_b32 s{sSUBT}, s{sSUB}")
        if OPT["hfirst"]:
            emit_B1(a, after_loads=lambda: h_dma(a, SH, sLB, sD4K), nyoung=9)
        elif OPT["hearly"] and not OPT["hlate"]:
            emit_B1(a, after_stores=lambda: h_dma(a, SH, sLB, sD4K), nafter=9)
        else:
            emit_B1(a)
            if not OPT["hlate"]: h_dma(a, SH, sLB, sD4K)
    else:
        a.e(f"s_cmp_lg_u32 s{sACT}, 0", f"s_cbranch_scc1 {Lidle}")
        if OPT["hearly"] and not OPT["hlate"]:
            emit_B1(a, after_stores=lambda: h_dma(a, SH, sLB, sD4K), nafter=9)
        else:
            emit_B1(a)
            if not OPT["hlate"]: h_dma(a, SH, sLB, sD4K)
        a.e(f"s_branch {Lsetup}")
        a.label(Lidle)
        if OPT["tlb"] or OPT["cpf"]: warm(a)
        fin_epoch(a)
        loc_publish(a)
        loc_issue(a, 10)
        loc_resolve(a, 10, barrier=False)
        if not OPT["hlate"]:
            for _ in range(OPT["hactdelay"]):
                a.e("v_and_b32 v12, 15, v1", f"v_lshlrev_b32 v12, {FB()}, v12", f"v_add_u32 v12, s{sF1}, v12",
                    f"buffer_load_dword v13, v12, s[{S_SYN}:{S_SYN+3}], 0 offen sc1", "s_waitcnt vmcnt(0)")
            h_dma(a, SH, sLB, sD4K)
    a.label(Lsetup)
    if OPT["pB1"]: a.e(f"s_setprio {OPT['prioB']}")
    stamp(a, 12)
    if OPT["yieldB"] >= 2 and OPT["yinit"]:
        a_state(a, sCU, 0, 233)
    LN16, B_, G4, VA, VB, VE, VS2, T = 2, 3, 4, 5, 9, 10, 11, 12
    a.e(f"v_lshlrev_b32 v{T}, 2, v1",
        f"v_add_u32 v{T+1}, {4160-32}, v{T}", "v_cmp_le_u32 vcc, 8, v1", f"v_cndmask_b32 v{T+3}, v{T}, v{T+1}, vcc",
        f"v_add_u32 v{T+1}, 8288, v{T}", "v_cmp_le_u32 vcc, 16, v1", f"v_cndmask_b32 v{T+3}, v{T+3}, v{T+1}, vcc",
        f"v_add_u32 v231, s{sLB}, v{T+3}")
    a.e(f"v_lshlrev_b32 v{T}, 3, v1", f"v_add_u32 v{T}, s{sLB}, v{T}", "v_mov_b32 v16, 0", "v_mov_b32 v17, 0", f"ds_write_b64 v{T}, v[16:17] offset:8288")
    a.e(f"v_and_b32 v{B_}, 15, v1", f"v_lshrrev_b32 v{G4}, 4, v1")
    a.e(f"v_and_b32 v{VA}, 1, v{B_}", f"v_xor_b32 v{VA}, 1, v{VA}", f"v_mul_u32_u24 v{VA}, 4160, v{VA}",
        f"v_add_u32 v{VA+1}, 1, v{B_}", f"v_lshrrev_b32 v{VA+1}, 1, v{VA+1}", f"v_lshl_add_u32 v{VA}, v{VA+1}, 2, v{VA}",
        f"v_lshlrev_b32 v{VA+1}, 4, v{G4}", f"v_sub_u32 v{VA}, v{VA}, v{VA+1}",
        f"s_add_u32 s73, s{sLB}, 16", f"v_add_u32 v{VA}, s73, v{VA}")
    for pp in range(1, 4): a.e(f"v_add_u32 v{VA+pp}, {1024*pp}, v{VA}")
    a.e(f"v_lshlrev_b32 v{VB}, 5, v{B_}", f"v_lshl_add_u32 v{VB}, v{G4}, 4, v{VB}",
        f"s_add_u32 s73, s{sLB}, {8800-480}", f"v_add_u32 v{VB}, s73, v{VB}")
    a.e(f"v_lshrrev_b32 v18, 1, v{G4}", f"v_lshlrev_b32 v19, 4, v18", f"v_lshl_add_u32 v19, v{B_}, 5, v19",
        f"v_and_b32 v18, 1, v{G4}", "v_xor_b32 v18, 1, v18", f"v_lshl_add_u32 v19, v18, 3, v19",
        f"s_add_u32 s73, s{sLB}, 8800", f"v_add_u32 v232, s73, v19")
    if OPT["fullline"]:
        a.e(f"v_lshrrev_b32 v18, 3, v{B_}", f"v_lshlrev_b32 v{VS2}, 19, v18", f"v_bfe_u32 v18, v{B_}, 1, 2", f"v_lshl_add_u32 v{VS2}, v18, 17, v{VS2}",
            f"v_and_b32 v18, 1, v{G4}", f"v_lshl_add_u32 v{VS2}, v18, 20, v{VS2}", f"v_and_b32 v18, 1, v{B_}", f"v_lshl_add_u32 v{VS2}, v18, 5, v{VS2}",
            f"v_lshrrev_b32 v18, 1, v{G4}", f"v_lshl_add_u32 v{VS2}, v18, 4, v{VS2}")
        a.e(f"v_lshlrev_b32 v{LN16}, 19, v{G4}", "v_bfe_u32 v18, v1, 2, 2", f"v_lshl_add_u32 v{LN16}, v18, 17, v{LN16}",
            "v_and_b32 v18, 3, v1", f"v_lshl_add_u32 v{LN16}, v18, 4, v{LN16}")
    else:
        a.e(f"v_lshrrev_b32 v18, 3, v{B_}", f"v_lshlrev_b32 v{VS2}, 19, v18", f"v_bfe_u32 v18, v{B_}, 2, 1", f"v_lshl_add_u32 v{VS2}, v18, 12, v{VS2}",
            f"v_and_b32 v18, 1, v{G4}", f"v_lshl_add_u32 v{VS2}, v18, 20, v{VS2}", f"v_and_b32 v18, 3, v{B_}", f"v_lshl_add_u32 v{VS2}, v18, 5, v{VS2}",
            f"v_lshrrev_b32 v18, 1, v{G4}", f"v_lshl_add_u32 v{VS2}, v18, 4, v{VS2}")
        a.e(f"v_lshlrev_b32 v{LN16}, 19, v{G4}", "v_bfe_u32 v18, v1, 3, 1", f"v_lshl_add_u32 v{LN16}, v18, 12, v{LN16}",
            "v_and_b32 v18, 7, v1", f"v_lshl_add_u32 v{LN16}, v18, 4, v{LN16}")
    a.e("v_lshlrev_b32 v18, 4, v1", f"s_add_u32 s73, s{sLB}, 8800", "v_add_u32 v19, s73, v18")
    a.e("s_waitcnt lgkmcnt(0)",
        f"s_and_b32 s73, s{sD}, 1", f"s_lshl_b32 s74, s{sDV}, 16", f"s_and_b32 s75, s{sDV}, 0xffff0000",
        "s_cmp_eq_u32 s73, 1", f"s_cselect_b32 s{sDV}, s75, s74")
    if OPT["twoflag"]:
        a.e(f"s_add_u32 s73, s{sF1}, {SY_B1B-SY_B1}", f"s_cmp_lg_u32 s{sLOC}, 0", f"s_cselect_b32 s{sF1}, s{sF1}, s73")
    a.e(f"v_and_b32 v{T}, 15, v1", f"v_lshlrev_b32 v{T}, {FB()}, v{T}", f"v_add_u32 v{T}, s{sF1}, v{T}")
    stamp(a, 5)
    wait_flags(a, T, 1, T+1, 73)
    loc_read(a, 12)
    stamp(a, 6)
    VE = 232
    ACC = 20
    SETS = [(52, 84), (116, 148)]
    U = SETS[1][1]
    for ch in range(4):
        a.e(f"buffer_load_dwordx4 {v(U+4*ch,4)}, v{LN16}, s[{STT}:{STT+3}], s{sSB+ch} offen" + LDL())
    def reads(rho, st):
        A, B = SETS[st]
        out = []
        for p in range(8):
            o = 8*rho + 128*(p & 1)
            out.append(f"ds_read2_b32 {v(A+4*p,2)}, v{VA+(p>>1)} offset0:{o} offset1:{o+1}")
            out.append(f"ds_read2_b32 {v(A+4*p+2,2)}, v{VA+(p>>1)} offset0:{o+2} offset1:{o+3}")
        outb = [f"ds_read_b128 {v(B+4*q,4)}, v{VB} offset:{512*q+32*(15-rho)}" for q in range(8)]
        return out, outb
    rhos = list(range(1, 16, 2))
    ra, rb = reads(rhos[0], 0)
    if OPT["hlate"]:
        h_dma(a, SH, sLB, sD4K)
        for ch in range(4):
            a.e(f"s_waitcnt vmcnt({3-ch+9})", f"ds_write_b128 v19, {v(U+4*ch,4)} offset:{1024*ch}")
        a.e("s_waitcnt vmcnt(0)", "ds_write_b32 v231, v230", "s_waitcnt lgkmcnt(0)")
        for r in ra: a.e(r)
    else:
        a.e("s_waitcnt vmcnt(4)", "ds_write_b32 v231, v230")
        a.e("s_waitcnt lgkmcnt(0)")
        for r in ra: a.e(r)
        for ch in range(4):
            a.e(f"s_waitcnt vmcnt({3-ch})", f"ds_write_b128 v19, {v(U+4*ch,4)} offset:{1024*ch}")
    a.e("s_waitcnt lgkmcnt(0)")
    for r in rb: a.e(r)
    if OPT["yieldB"]:
        Ly = newlbl("y0b")
        if OPT["y0"]: a.e("s_cmp_lg_u32 s2, 0", f"s_cbranch_scc1 {Ly}")
        if not (OPT["yieldB"] == 2 and OPT["ymid"]): b_yield(a, 233)
        a.label(Ly)
    Lnq = newlbl("noq")
    if OPT["a3all"]:
        a.e(f"s_mov_b32 s{sCBKT}, s{sCBK}", f"s_mov_b32 s{sSUBT}, s{sSUB}")
        if OPT["yieldB"] != 3 and not OPT["qlate"]: emit_B3_pre(a)
    else:
        a.e(f"s_cmp_lg_u32 s{sACT}, 0", f"s_cbranch_scc1 {Lnq}")
        emit_B3_pre(a)
        a.label(Lnq)
    stamp(a, 7)
    for ci, rho in enumerate(rhos):
        st = ci & 1
        A, B = SETS[st]
        if ci+1 < len(rhos):
            ra, rb = reads(rhos[ci+1], st ^ 1); nxt = ra[0:2] + rb + ra[2:]
        else:
            nxt = [f"ds_read_b64 {v(SETS[st^1][0]+2*j,2)}, v{VE} offset:{512*j}" for j in range(8)]
        if OPT["yieldB"] == 3: b_yield_step(a, 233, ci == len(rhos)-1)
        if OPT["yieldB"] == 2 and OPT["ymid"] and ci == OPT["ymid"]: b_yield(a, 233)
        a.e("s_waitcnt lgkmcnt(0)")
        n = 0
        for p in range(8):
            for q in range(8-p):
                j = p+q
                c = "0" if (ci == 0 and p == 0) else v(ACC+4*j, 4)
                a.e(f"v_mfma_f32_16x16x32_bf16 {v(ACC+4*j,4)}, {v(A+4*p,4)}, {v(B+4*q,4)}, {c}")
                if n < len(nxt): a.e(nxt[n])
                n += 1
    KVR = SETS[0][0]; TMv = 116
    if (OPT["yieldB"] == 3 or OPT["qlate"]) and OPT["a3all"]: emit_B3_pre(a)
    a.e("s_waitcnt lgkmcnt(0)")
    stamp(a, 8)
    sts = []
    for jp in range(4):
        base = TMv + 8*jp
        for hh in range(2):
            j = 2*jp+hh
            w0, w1 = KVR+2*j, KVR+2*j+1
            t = 172
            a.e(f"v_and_b32 v{t}, s{sMASK}, v{w1}", f"v_lshlrev_b32 v{t+1}, 16, v{w1}",
                f"v_and_b32 v{t+2}, s{sMASK}, v{w0}", f"v_lshlrev_b32 v{t+3}, 16, v{w0}")
            for r in range(4):
                a.e(f"v_fma_f32 v{t+r}, v{t+r}, s{sDV}, v{ACC+4*j+r}")
            a.e(f"v_cvt_pk_bf16_f32 v{base+2*hh}, v{t}, v{t+1}", f"v_cvt_pk_bf16_f32 v{base+2*hh+1}, v{t+2}, v{t+3}")
        a.e(f"v_permlane16_swap_b32 v{base}, v{base+2}", f"v_permlane16_swap_b32 v{base+1}, v{base+3}")
        sts.append(f"buffer_store_dwordx4 {v(base,4)}, v{VS2}, s[{STT}:{STT+3}], s{sSB+jp} offen")
    dual_store(a, sts)
    signal(a, sF2, 12, bloc=True)
    stamp(a, 9)
    if not OPT["a3all"]: a.e(f"s_cmp_lg_u32 s{sACT}, 0", "s_cbranch_scc1 L_fin")
    emit_B3(a)
    if OPT["wbl2"]:
        Lw = newlbl("wb")
        a.e("s_waitcnt vmcnt(0)", "s_cmp_lg_u32 s3, 0", f"s_cbranch_scc1 {Lw}")
        if OPT["wbl2"] == 1: a.e(f"s_cmp_lg_u32 s{sSUB}, 15", f"s_cbranch_scc1 {Lw}")
        if OPT["wbl2"] == 2: a.e(f"s_and_b32 s92, s{sSUB}, 3", "s_cmp_lg_u32 s92, 3", f"s_cbranch_scc1 {Lw}")
        a.e("buffer_wbl2 sc1")
        a.label(Lw)
    pair_chkB(a)
    a.e("s_branch L_fin")

SY_PA = 4096 + 163840
SY_PB = SY_PA + 16384
def hwid(a, dst):
    a.e(f"s_getreg_b32 s{dst}, hwreg(HW_REG_HW_ID)", f"s_lshr_b32 s{dst}, s{dst}, 8", f"s_and_b32 s{dst}, s{dst}, 0xff",
        "s_getreg_b32 s93, hwreg(HW_REG_XCC_ID)", "s_and_b32 s93, s93, 15", "s_lshl_b32 s93, s93, 8", f"s_or_b32 s{dst}, s{dst}, s93")
def pair_pubA(a):
    if not OPT.get("pair"): return
    L = newlbl("ppa")
    a.e("s_cmp_lg_u32 s3, 0", f"s_cbranch_scc1 {L}")
    hwid(a, 92)
    a.e(f"s_lshl_b32 s93, s{sCU}, 6", f"s_add_u32 s93, s93, {SY_PA}", "v_mov_b32 v240, s93", "v_mov_b32 v241, s92", "s_mov_b64 exec, 1",
        f"buffer_store_dword v241, v240, s[{S_SYN}:{S_SYN+3}], 0 offen sc1", "s_mov_b64 exec, -1")
    a.label(L)
def pair_chkB(a):
    if not OPT.get("pair"): return
    L = newlbl("ppb")
    a.e("s_cmp_lg_u32 s3, 0", f"s_cbranch_scc1 {L}")
    hwid(a, 92)
    a.e(f"s_lshl_b32 s93, s{sCU}, 6", f"s_add_u32 s93, s93, {SY_PA}", "v_mov_b32 v240, s93",
        f"buffer_load_dword v241, v240, s[{S_SYN}:{S_SYN+3}], 0 offen sc1", "s_waitcnt vmcnt(0)", "v_readfirstlane_b32 s93, v241",
        "s_cmp_lg_u32 s92, s93", "s_cselect_b32 s92, 1, 0", f"s_lshl_b32 s93, s{S_TGT}, 1", "s_or_b32 s92, s92, s93",
        f"s_lshl_b32 s93, s{sCU}, 6", f"s_add_u32 s93, s93, {SY_PB}", "v_mov_b32 v240, s93", "v_mov_b32 v241, s92", "s_mov_b64 exec, 1",
        f"buffer_store_dword v241, v240, s[{S_SYN}:{S_SYN+3}], 0 offen sc1", "s_mov_b64 exec, -1", "s_waitcnt vmcnt(0)")
    a.label(L)
def pair_sum(a):
    if not OPT.get("pair"): return
    L1, L2, L3 = newlbl("ps"), newlbl("psd"), newlbl("psp")
    a.e("v_lshlrev_b32 v2, 6, v1", f"v_add_u32 v2, {SY_PB}, v2", f"s_lshl_b32 s49, s{S_TGT}, 1", "s_mov_b32 s48, 0")
    a.label(L1)
    for i in range(4): a.e(f"s_mov_b32 s50, {4096*i}", f"buffer_load_dword v{4+i}, v2, s[{S_SYN}:{S_SYN+3}], s50 offen sc1")
    a.e("s_add_u32 s48, s48, 1", "s_waitcnt vmcnt(0)")
    for i in range(4): a.e(f"v_xor_b32 v{4+i}, s49, v{4+i}")
    a.e("v_or_b32 v8, v4, v5", "v_or_b32 v9, v6, v7", "v_or_b32 v8, v8, v9", "v_lshrrev_b32 v8, 1, v8", "v_cmp_ne_u32 vcc, 0, v8", f"s_cbranch_vccz {L2}",
        f"s_cmp_lt_u32 s48, {SPIN_LIMIT}", f"s_cbranch_scc1 {L1}")
    a.label(L2)
    a.e("s_mov_b32 s48, 0")
    for i in range(4): a.e(f"v_cmp_eq_u32 vcc, 1, v{4+i}", "s_bcnt1_i32_b64 s49, vcc", "s_add_u32 s48, s48, s49")
    a.e(f"s_mov_b32 s92, s{P_DBG}", f"s_mov_b32 s93, s{P_DBG+1}", "s_mov_b32 s94, 256", "s_mov_b32 s95, 0x00020000", "v_mov_b32 v4, 0", "v_mov_b32 v5, s48", "s_mov_b64 exec, 1",
        "buffer_store_dword v5, v4, s[92:95], 0 offen", "s_mov_b64 exec, -1")
    a.e("s_mul_i32 s48, s48, 10", "s_memrealtime s[50:51]", "s_waitcnt lgkmcnt(0)", "s_mov_b32 s49, s50")
    a.label(L3)
    a.e("s_memrealtime s[50:51]", "s_waitcnt lgkmcnt(0)", "s_sub_u32 s50, s50, s49", "s_cmp_lt_u32 s50, s48", f"s_cbranch_scc1 {L3}")

def warm(a):
    if OPT["tlb"]:
        L = newlbl("warm")
        a.e("s_cmp_lg_u32 s3, 3", f"s_cbranch_scc1 {L}")
        pages = [(P_WS, WS_I1), (P_WS, WS_I1+2*MB), (P_WS, WS_I2), (P_WS, WS_I2+2*MB), (P_WS, WS_SYNC+512*1024),
                 (P_OUT, 0), (P_OUT, 2*MB), (P_OUT, 4*MB), (P_OUT, 6*MB),
                 (P_WR, 0), (P_WR, 2*MB), (P_WI, 0), (P_WI, 2*MB), (P_SSMK, 0), (P_SSMK, 2*MB), (P_Q, 0), (P_Q, 2*MB)]
        a.e("v_mov_b32 v240, 0", "v_mov_b32 v241, 0")
        for i, (p, off) in enumerate(pages):
            a.e(f"s_add_u32 s92, s{p}, {off}", f"s_addc_u32 s93, s{p+1}, 0", f"v_writelane_b32 v240, s92, {i}", f"v_writelane_b32 v241, s93, {i}")
        a.e(f"s_mov_b64 exec, {(1 << len(pages)) - 1}", "global_load_dword v242, v[240:241], off", "s_mov_b64 exec, -1")
        a.label(L)
    if OPT["cpf"]:
        L = newlbl("warm")
        a.e("s_cmp_ge_u32 s3, 2", f"s_cbranch_scc1 {L}")
        a.e("s_getpc_b64 s[92:93]")
        a.e("s_lshr_b32 s96, s2, 4", "s_and_b32 s96, s96, 15", "s_lshl_b32 s96, s96, 1", "s_add_u32 s96, s96, s3", "s_min_u32 s96, s96, 25",
            "s_lshl_b32 s96, s96, 10", f"s_sub_u32 s92, s92, {OPT['cpf']}", "s_subb_u32 s93, s93, 0",
            "s_add_u32 s92, s92, s96", "s_addc_u32 s93, s93, 0", "v_lshlrev_b32 v240, 4, v1",
            "global_load_dwordx4 v[236:239], v240, s[92:93]")
        a.label(L)

def gen_kernel():
    a = Asm(); a.name = "p"
    a.e("s_cmp_ge_u32 s2, 512", "s_cbranch_scc1 L_exit")
    if OPT["swap"]: a.e("s_xor_b32 s2, s2, 256")
    if OPT.get("spinT") or OPT.get("span"): a.e("s_memrealtime s[94:95]")
    if OPT.get("spinC"): a.e("s_memtime s[94:95]")
    if gen.PROF: a.e("s_memrealtime s[98:99]", "s_waitcnt lgkmcnt(0)", "v_writelane_b32 v247, s98, 13")
    a.e(f"s_load_dwordx16 s[4:19], s[0:1], 0", f"s_load_dwordx8 s[20:27], s[0:1], 64")
    a.e("v_lshrrev_b32 v1, 6, v0", "v_readfirstlane_b32 s3, v1", "v_and_b32 v1, 63, v0", "s_waitcnt lgkmcnt(0)")
    srd(a, S_SYN, P_WS, P_WS+1, 1*MB, add=WS_SYNC)
    a.e(f"s_mov_b32 s48, {WS_SYNC+SY_E}", f"s_load_dword s{S_TGT}, s[{P_WS}:{P_WS+1}], s48")
    a.e(f"s_mov_b32 s98, {64<<FA()}", f"s_mov_b32 s99, {128<<FA()}", f"s_mov_b32 s100, {192<<FA()}")
    a.e(f"s_and_b32 s{sCU}, s2, 255", f"s_bitcmp0_b32 s2, 3", f"s_cselect_b32 s{sACT}, 1, 0",
        f"s_lshr_b32 s48, s{sCU}, 4", "s_lshl_b32 s48, s48, 3", f"s_and_b32 s49, s{sCU}, 7", "s_add_u32 s48, s48, s49",
        f"s_and_b32 s{sCBKT}, s48, 15", "s_lshr_b32 s48, s48, 4", "s_lshl_b32 s48, s48, 1", "s_lshr_b32 s49, s2, 8", f"s_add_u32 s{sSUBT}, s48, s49")
    a.e("s_cmp_ge_u32 s2, 256", "s_cbranch_scc1 L_A")
    gen_B(a)
    a.label("L_A")
    gen_A(a)
    a.label("L_fin")
    pass
    if gen.PROF:
        a.e("s_waitcnt vmcnt(0)")
        stamp(a, 14); stamp(a, 15, True)
        prof_dump(a)
    if OPT.get("span"):
        Ls = newlbl("span")
        a.e("s_cmp_lg_u32 s3, 0", f"s_cbranch_scc1 {Ls}", "s_waitcnt vmcnt(0)", "s_memrealtime s[92:93]",
            f"s_add_u32 s32, s{P_WS}, {gen.WS_PROF}", f"s_addc_u32 s33, s{P_WS+1}, 0", f"s_mov_b32 s34, {MB}", "s_mov_b32 s35, 0x00020000",
            "s_lshl_b32 s36, s2, 3", "s_waitcnt lgkmcnt(0)", "v_mov_b32 v2, s36", "v_mov_b32 v4, s94", "v_mov_b32 v5, s92", "s_mov_b64 exec, 1",
            "buffer_store_dwordx2 v[4:5], v2, s[32:35], 0 offen", "s_waitcnt vmcnt(0)")
        a.label(Ls)
    if OPT.get("spinC"):
        a.label("L_spinc")
        a.e("s_memtime s[92:93]", "s_waitcnt lgkmcnt(0)", "s_sub_u32 s92, s92, s94", f"s_cmp_lt_u32 s92, {OPT['spinC']}", "s_cbranch_scc1 L_spinc")
    if OPT.get("spinT"):
        a.label("L_spin")
        a.e("s_memrealtime s[92:93]", "s_waitcnt lgkmcnt(0)", "s_sub_u32 s92, s92, s94", f"s_cmp_lt_u32 s92, {OPT['spinT']}", "s_cbranch_scc1 L_spin")
    a.label("L_exit")
    a.e("s_endpgm")
    return a

def prof_dump(a):
    if OPT.get("dbgwg", -1) >= 0:
        L = newlbl("nodbg")
        a.e(f"s_cmp_lg_u32 s2, {OPT['dbgwg']}", f"s_cbranch_scc1 {L}", "s_cmp_lg_u32 s3, 0", f"s_cbranch_scc1 {L}")
        a.e("v_readlane_b32 s36, v247, 1", "v_readlane_b32 s37, v247, 13", "v_mov_b32 v250, s36", "v_mov_b32 v251, s37",
            "v_cmp_eq_u32 vcc, 0, v1", "v_cndmask_b32 v250, v250, v251, vcc", "v_cmp_eq_u32 vcc, 13, v1", "v_cndmask_b32 v250, v250, v251, vcc",
            "v_cmp_eq_u32 vcc, 15, v1", "v_cndmask_b32 v250, v250, v251, vcc", "v_sub_u32 v250, v247, v250",
            f"s_mov_b32 s32, s{P_DBG}", f"s_mov_b32 s33, s{P_DBG+1}", "s_mov_b32 s34, 256", "s_mov_b32 s35, 0x00020000",
            "v_lshlrev_b32 v251, 2, v1", "s_mov_b64 exec, 0xffff", "buffer_store_dword v250, v251, s[32:35], 0 offen", "s_waitcnt vmcnt(0)", "s_mov_b64 exec, -1")
        a.label(L)
        return

    a.e(f"s_add_u32 s32, s{P_WS}, {gen.WS_PROF}", f"s_addc_u32 s33, s{P_WS+1}, 0", f"s_mov_b32 s34, {MB}", "s_mov_b32 s35, 0x00020000")
    a.e("s_lshl_b32 s36, s2, 2", "s_add_u32 s36, s36, s3", "s_lshl_b32 s36, s36, 6",
        "v_lshlrev_b32 v250, 2, v1", "v_add_u32 v250, s36, v250", "s_mov_b64 exec, 0xffff",
        "buffer_store_dword v247, v250, s[32:35], 0 offen")
    if OPT.get("fine"):
        a.e("v_add_u32 v250, 0x40000, v250", "buffer_store_dword v246, v250, s[32:35], 0 offen")
    a.e("s_waitcnt vmcnt(0)")
PROFREGS = []

def build(path):
    a = gen_kernel()
    name = "concat_heads__spectral_gfnet__ssm_conv_h3__prompt_kernel"
    s = open("concat_heads__spectral_gfnet__ssm_conv_h3__prompt.s.ref").read().split("; Override")[0]
    s += f"; @launch grid=(512,1,1) block=(256,1,1) lds={LDS_BYTES}\n"
    s += '.amdgcn_target "amdgcn-amd-amdhsa--gfx950"\n' + gen.header(name) + a.text() + gen.descriptor(name, 256, 102)
    s = s.replace(" lds nt", " nt lds")
    open(path, "w").write(s)
    return s

if __name__ == "__main__":
    out = sys.argv[1] if len(sys.argv) > 1 else "pers.s"
    gen.PROF = "prof" in sys.argv[2:]
    for x in sys.argv[2:]:
        if "=" in x:
            k, val = x.split("="); OPT[k] = int(val)
    if OPT["wsend"]:
        base = OPT["wsend"]*MB
        WS_I1, WS_KVT, WS_I2, WS_TT, WS_SYNC = base, base+4*MB, base+8*MB, base+12*MB, base+20*MB
    s = build(out)
    print(out, len(s))
```

```python
import sys
from asmgen import *
import gen
from gen import srd, MB, WS_I1, WS_KVT, WS_I2, WS_TT, KA

PHASE = [1]
def dstamp(a, k, inv=False):
    if not OPT.get("dmax"): return
    a.e("s_memrealtime s[96:97]", "s_waitcnt lgkmcnt(0)", f"v_writelane_b32 v242, s96, {k}")
SY_DG = 4096 + 131072
def dpublish(a, sT):
    if not OPT.get("dmax"): return
    L = newlbl("dp")
    a.e("s_cmp_lg_u32 s3, 0", f"s_cbranch_scc1 {L}", f"s_lshl_b32 s92, s{sT}, 5", f"s_add_u32 s92, s92, {SY_DG}",
        "v_lshlrev_b32 v240, 2, v1", "v_add_u32 v240, s92, v240", "s_mov_b64 exec, 0xff",
        f"buffer_store_dword v242, v240, s[{S_SYN}:{S_SYN+3}], 0 offen sc1", "s_mov_b64 exec, -1")
    a.label(L)
def dreduce(a):
    if not OPT.get("dmax"): return
    a.e(f"s_mov_b32 s92, s{P_DBG}", f"s_mov_b32 s93, s{P_DBG+1}", "s_mov_b32 s94, 256", "s_mov_b32 s95, 0x00020000")
    a.e("v_lshlrev_b32 v2, 5, v1", f"v_add_u32 v2, {SY_DG}, v2")
    for k in range(7):
        for i in range(4):
            a.e(f"s_mov_b32 s50, {2048*i + 4*k}", f"buffer_load_dword v{10+i}, v2, s[{S_SYN}:{S_SYN+3}], s50 offen sc1")
        a.e("s_waitcnt vmcnt(0)")
        if k == 0:
            a.e("v_min_u32 v10, v10, v11", "v_min_u32 v12, v12, v13", "v_min_u32 v10, v10, v12", "s_mov_b32 s51, -1")
            for l in range(64): a.e(f"v_readlane_b32 s48, v10, {l}", "s_min_u32 s51, s51, s48")
            a.e("s_mov_b32 s45, s51")
            continue
        for i in range(4):
            a.e(f"v_subrev_u32 v{10+i}, s45, v{10+i}", f"v_lshlrev_b32 v{10+i}, 8, v{10+i}", f"v_add_u32 v14, {64*i}, v1", f"v_or_b32 v{10+i}, v{10+i}, v14")
        a.e("v_max_u32 v10, v10, v11", "v_max_u32 v12, v12, v13", "v_max_u32 v10, v10, v12", "s_mov_b32 s51, 0")
        for l in range(64): a.e(f"v_readlane_b32 s48, v10, {l}", "s_max_u32 s51, s51, s48")
        a.e("s_lshr_b32 s48, s51, 8", "s_and_b32 s49, s51, 255", "v_mov_b32 v14, s48", "v_mov_b32 v15, s49", f"v_mov_b32 v16, {8*(k-1)}", "s_mov_b64 exec, 1",
            "buffer_store_dwordx2 v[14:15], v16, s[92:95], 0 offen", "s_mov_b64 exec, -1")
DMAP_A = {1: 0, 5: 1, 6: 2, 7: 3, 8: 4, 9: 5}
DMAP_B = {}
ROLE = ["B"]
def fstamp(a, i):
    if OPT.get("fine") != PHASE[0]: return
    a.e('s_memtime s[96:97]', 's_waitcnt lgkmcnt(0)', f'v_writelane_b32 v246, s96, {i}')
def stamp(a, i, real=False):
    if OPT.get("dmax"):
        m = DMAP_A if ROLE[0] == "A" else DMAP_B
        if i in m and i != 14: dstamp(a, m[i])
        return
    if not gen.PROF: return
    a.e('s_memrealtime s[96:97]' if real else 's_memtime s[96:97]', 's_waitcnt lgkmcnt(0)', f'v_writelane_b32 v247, s96, {i}')

WBYTES = 2048*513*2
LB_STRIDE = 12896
LDS_BYTES = 53248
SPIN_LIMIT = 400000
OPT = dict(prioA=0, prioB=0, sleep=0, nt=1, wsend=0, ntout=1, ntw=1, wlate=1, hlate=1, qA=1, fsa=6, fsb=6, shrink=0, loc=1, forceloc=-1, ldloc=1, bdelay=0, earlypub=1, wpos=1, optst=1, locflag=1, hearly=1, twoflag=1, pA1i=-1, pB1=0, ntscr=0, a3all=1, ntk=1, ntv=1, ntx=1, nth=1, hactdelay=0, b1all=1, bactwait=1, pA1a=-1, grp=1, yieldB=0, ylim=40, tlb=0, cpf=0, spec2=1, y0=0, yinit=1, ymid=0, swap=0, a1all=1, cearly=1, fullline=1, qlate=0, hfirst=0, pairx=0, gld=0, t0late=0, i2ld=0, outB=-1, b3w=0, wbl2=0, fast=0)
def NTOB(): return NTO() if OPT['outB'] < 0 else {0: '', 1: ' nt', 2: ' sc1', 3: ' sc1 nt'}[OPT['outB']]
def GLD(): return {0: 'sc1', 1: 'nt', 2: ''}[OPT['gld']]
def NMEM(): return 32 if OPT['b1all'] else 48
def LDL(): return {0: ' sc1', 1: ' nt', 2: ' sc1 nt'}[OPT['ldloc']]
def FA(): return OPT['fsa']
def FB(): return OPT['fsb']
def NT(): return ' nt' if OPT['nt'] else ''
def NTO(): return {0: '', 1: ' nt', 2: ' sc1', 3: ' sc1 nt'}[OPT['ntout']]

P_X, P_WR, P_WI, P_Q, P_K, P_V, P_SHK, P_SSMK, P_SSMD, P_OUT, P_DBG, P_WS = 4, 6, 8, 10, 12, 14, 16, 18, 20, 22, 24, 26
S_DBG = 28
def eidx(r): return (r & 3) + 8*(r >> 2)

_lbl = [0]
def newlbl(p):
    _lbl[0] += 1
    return f"L_{p}_{_lbl[0]}"

WS_SYNC = 20*MB
S_SYN = 28
S_TGT = 101
SY_E, SY_A1, SY_A2, SY_B1, SY_B2 = 0, 4096, 4096+16384, 4096+32768, 4096+49152
sACT, sCBKT, sSUBT, sCU = 88, 89, 90, 91
sLOC, sXEXP = 79, 0
S_DBG = 12
def signal(a, s_off, vt, nafter=0, bloc=False):
    L = newlbl("sig")
    a.e(f"s_waitcnt vmcnt({nafter})", "s_barrier", "s_cmp_lg_u32 s3, 0", f"s_cbranch_scc1 {L}",
        f"v_mov_b32 v{vt}, s{s_off}", f"v_mov_b32 v{vt+1}, s{S_TGT}", "s_mov_b64 exec, 1")
    st = f"buffer_store_dword v{vt+1}, v{vt}, s[{S_SYN}:{S_SYN+3}], 0 offen"
    if bloc and OPT["locflag"]:
        dual_store(a, [st])
    else:
        a.e(st + " sc1")
    a.e("s_mov_b64 exec, -1")
    if OPT.get("flagwait"): a.e("s_waitcnt vmcnt(0)")
    a.label(L)

def wait_flags(a, vaddr, nload, vt, s_cnt, pre_barrier=None, solo=False, skip0=None):
    L = newlbl("poll"); Ls = newlbl("pdone"); Lr = newlbl("prest")
    if not solo: a.e("s_cmp_lg_u32 s3, 0", f"s_cbranch_scc1 {Ls}")
    a.e(f"s_mov_b32 s{s_cnt}, 0")
    a.label(L)
    offs = ["0", "s98", "s99", "s100"]
    for i in range(nload):
        a.e(f"buffer_load_dword v{vt+i}, v{vaddr}, s[{S_SYN}:{S_SYN+3}], {offs[i]} offen sc1")
    a.e(f"s_add_u32 s{s_cnt}, s{s_cnt}, 1", "s_waitcnt vmcnt(0)")
    for i in range(nload):
        a.e(f"v_xor_b32 v{vt+i}, s{S_TGT}, v{vt+i}")
    if skip0 is not None:
        a.e(f"v_readfirstlane_b32 s{skip0}, v{vt}", f"v_writelane_b32 v{vt}, 0, 0")
    for i in range(1, nload):
        a.e(f"v_or_b32 v{vt}, v{vt}, v{vt+i}")
    if OPT["shrink"]:
        a.e(f"v_cmp_ne_u32 vcc, 0, v{vt}", "s_and_b64 exec, exec, vcc", f"s_cbranch_execz {Lr}")
    else:
        a.e(f"v_cmp_ne_u32 vcc, 0, v{vt}", f"s_cbranch_vccz {Lr}")
    if OPT["sleep"]: a.e(f"s_sleep {OPT['sleep']}")
    a.e(f"s_cmp_lt_u32 s{s_cnt}, {SPIN_LIMIT}", f"s_cbranch_scc1 {L}")
    a.label(Lr)
    if OPT["shrink"]: a.e("s_mov_b64 exec, -1")
    a.label(Ls)
    if pre_barrier: a.e(pre_barrier)
    if not solo: a.e("s_barrier")

SY_ID = 4096 + 65536
SY_B1B = 4096 + 98304
SY_AS = 4096 + 114688
LOCW = 53244
def loc_publish(a):
    L = newlbl("pub")
    a.e("s_getreg_b32 s92, hwreg(HW_REG_XCC_ID)", "s_and_b32 s92, s92, 15", f"s_lshl_b32 s{sXEXP}, s{S_TGT}, 4", f"s_or_b32 s{sXEXP}, s{sXEXP}, s92")
    a.e("s_cmp_lg_u32 s3, 0", f"s_cbranch_scc1 {L}")
    if OPT["b1all"] and OPT["grp"]:
        a.e("s_and_b32 s92, s2, 15", "s_lshl_b32 s92, s92, 4", "s_lshr_b32 s93, s2, 4", "s_add_u32 s92, s92, s93", "s_lshl_b32 s92, s92, 6", f"s_add_u32 s92, s92, {SY_ID}")
    else:
        a.e("s_lshr_b32 s92, s2, 3", f"s_lshr_b32 s93, s{sCU}, 4", "s_add_u32 s93, s93, 32", "s_cmp_ge_u32 s2, 256", "s_cselect_b32 s92, s93, s92",
            "s_and_b32 s93, s2, 7", f"s_mul_i32 s93, s93, {NMEM()}", "s_add_u32 s92, s92, s93", "s_lshl_b32 s92, s92, 6", f"s_add_u32 s92, s92, {SY_ID}")
    a.e(
        "v_mov_b32 v10, s92", f"v_mov_b32 v11, s{sXEXP}", "s_mov_b64 exec, 1",
        f"buffer_store_dword v11, v10, s[{S_SYN}:{S_SYN+3}], 0 offen sc1", "s_mov_b64 exec, -1")
    a.label(L)

def loc_issue(a, vt):
    if OPT["b1all"] and OPT["grp"]:
        a.e(f"v_min_u32 v{vt}, 15, v1", "s_and_b32 s93, s2, 15", "s_lshl_b32 s93, s93, 4")
    else:
        a.e(f"v_min_u32 v{vt}, {NMEM()-1}, v1", "s_and_b32 s93, s2, 7", f"s_mul_i32 s93, s93, {NMEM()}")
    a.e(f"v_add_u32 v{vt}, s93, v{vt}",
        f"v_lshlrev_b32 v{vt}, 6, v{vt}", f"v_add_u32 v{vt}, {SY_ID}, v{vt}")
    L = newlbl("li")
    a.e("s_cmp_lg_u32 s3, 0", f"s_cbranch_scc1 {L}")
    a.e(f"buffer_load_dword v{vt+1}, v{vt}, s[{S_SYN}:{S_SYN+3}], 0 offen sc1")
    a.label(L)

def loc_resolve(a, vt, barrier=True, nafter=0):
    L, Ld, Ls = newlbl("locp"), newlbl("locd"), newlbl("locs")
    a.e("s_cmp_lg_u32 s3, 0", f"s_cbranch_scc1 {Ls}")
    if OPT["forceloc"] >= 0:
        a.e(f"s_waitcnt vmcnt({nafter})", f"s_mov_b32 s93, {OPT['forceloc']}")
    else:
        a.e("s_mov_b32 s92, 0", f"s_waitcnt vmcnt({nafter})")
        a.label(L)
        a.e(f"v_xor_b32 v{vt+2}, s{sXEXP}, v{vt+1}", f"v_lshrrev_b32 v{vt+3}, 4, v{vt+2}", "s_add_u32 s92, s92, 1",
            f"v_cmp_ne_u32 vcc, 0, v{vt+3}", f"s_cbranch_vccz {Ld}",
            f"s_cmp_ge_u32 s92, {SPIN_LIMIT}", f"s_cbranch_scc1 {Ld}",
            f"buffer_load_dword v{vt+1}, v{vt}, s[{S_SYN}:{S_SYN+3}], 0 offen sc1", "s_waitcnt vmcnt(0)", f"s_branch {L}")
        a.label(Ld)
        a.e(f"v_cmp_ne_u32 vcc, 0, v{vt+2}", "s_cmp_eq_u64 vcc, 0", "s_cselect_b32 s93, 1, 0")
    a.e(f"s_mov_b32 s{sLOC}, s93", f"v_mov_b32 v{vt+2}, {LOCW}", f"v_mov_b32 v{vt+3}, s93", f"ds_write_b32 v{vt+2}, v{vt+3}", "s_waitcnt lgkmcnt(0)")
    a.label(Ls)
    if barrier:
        a.e("s_barrier")
        loc_read(a, vt)

def loc_read(a, vt):
    a.e(f"v_mov_b32 v{vt+2}, {LOCW}", f"ds_read_b32 v{vt+3}, v{vt+2}", "s_waitcnt lgkmcnt(0)", f"v_readfirstlane_b32 s{sLOC}, v{vt+3}")

def dual_store(a, lines):
    L1, L2 = newlbl("stg"), newlbl("stl")
    a.e(f"s_cmp_eq_u32 s{sLOC}, 0", f"s_cbranch_scc1 {L1}")
    for l in lines: a.e(l)
    a.e(f"s_branch {L2}")
    a.label(L1)
    for l in lines: a.e(l + " sc1" if "buffer_store" in l else l)
    a.label(L2)

def a_state(a, sT, st, vt):
    L = newlbl("ast")
    a.e("s_cmp_lg_u32 s3, 0", f"s_cbranch_scc1 {L}", f"s_lshl_b32 s92, s{sT}, 6", f"s_add_u32 s92, s92, {SY_AS}",
        f"s_lshl_b32 s93, s{S_TGT}, 2", f"s_or_b32 s93, s93, {st}", f"v_mov_b32 v{vt}, s92", f"v_mov_b32 v{vt+1}, s93", "s_mov_b64 exec, 1",
        f"buffer_store_dword v{vt+1}, v{vt}, s[{S_SYN}:{S_SYN+3}], 0 offen", "s_mov_b64 exec, -1")
    a.label(L)

def y_ld(vt): return f"buffer_load_dword v{vt+1}, v{vt}, s[{S_SYN}:{S_SYN+3}], 0 offen " + ("sc1" if OPT.get("ysc", 1) else "nt")
def b_yield(a, vt):
    L, Ld = newlbl("yl"), newlbl("yd")
    a.e(f"s_lshl_b32 s92, s{sCU}, 6", f"s_add_u32 s92, s92, {SY_AS}", f"v_mov_b32 v{vt}, s92", f"s_lshl_b32 s75, s{S_TGT}, 2", "s_mov_b32 s92, 0")
    a.e(f"s_or_b32 s75, s75, {2 if OPT['yieldB'] == 2 else 1}")
    if OPT["yieldB"] == 3:
        a.e(y_ld(vt)); return
    a.label(L)
    a.e(y_ld(vt), "s_add_u32 s92, s92, 1", "s_waitcnt vmcnt(0)",
        f"v_readfirstlane_b32 s93, v{vt+1}", "s_cmp_lg_u32 s93, s75" if OPT["yieldB"] == 1 else "s_cmp_eq_u32 s93, s75", f"s_cbranch_scc1 {Ld}",
        f"s_cmp_lt_u32 s92, {OPT['ylim']}", f"s_cbranch_scc1 {L}")
    a.label(Ld)

def b_yield_step(a, vt, last):
    L, Ld = newlbl("ys"), newlbl("ysd")
    a.label(L)
    a.e("s_waitcnt vmcnt(0)", f"v_readfirstlane_b32 s93, v{vt+1}", "s_cmp_lg_u32 s93, s75", f"s_cbranch_scc1 {Ld}",
        f"s_cmp_ge_u32 s92, {OPT['ylim']}", f"s_cbranch_scc1 {Ld}", "s_add_u32 s92, s92, 1", y_ld(vt), f"s_branch {L}")
    a.label(Ld)
    if not last: a.e(y_ld(vt))

def fin_epoch(a):
    a.e("s_waitcnt lgkmcnt(0)", f"s_add_u32 s{S_TGT}, s{S_TGT}, 1")

def bump(a, s_off, vt):
    a.e(f"v_mov_b32 v{vt}, s{s_off}", f"v_mov_b32 v{vt+1}, s{S_TGT}", "s_mov_b64 exec, 1",
        f"buffer_store_dword v{vt+1}, v{vt}, s[{S_SYN}:{S_SYN+3}], 0 offen sc1", "s_mov_b64 exec, -1")

F_M, F_G, F_IN0, F_IN1, F_OUTOFF, F_WR, F_RD0, F_RD1, F_MM = 2, 3, 4, 5, 6, 7, 8, 9, 10
F_T = 11
F_IN, F16RE, F16IM, F_TWC, F_TWS, F_DRE, F_DIM, F_P, F_TMP, F32RE, F32IM = 16, 48, 52, 56, 88, 120, 136, 152, 168, 176, 192
SI_OFF, SO_OFF = 52, 68
SO_LIST = [68, 69, 70, 71, 76, 77, 78, 79]

def fft512_addr(a, s_sa, s_cb):
    a.e(f"v_and_b32 v{F_M}, 15, v1", f"v_lshrrev_b32 v{F_G}, 4, v1")
    a.e(f"v_lshlrev_b32 v{F_IN0}, 20, v{F_G}", f"v_lshl_add_u32 v{F_IN0}, v{F_M}, 2, v{F_IN0}", f"v_add_u32 v{F_IN1}, {4*8192}, v{F_IN0}")
    a.e(f"s_lshl_b32 s48, s{s_sa}, 11", f"s_lshl_b32 s49, s{s_cb}, 6", "s_add_u32 s48, s48, s49",
        "s_lshl_b32 s50, s3, 16", "s_add_u32 s48, s48, s50")
    for aa in range(4):
        for i in range(4):
            a.e(f"s_add_u32 s{SI_OFF+4*aa+i}, s48, {(32*i+aa)*8192}")

def fft512_loads(a, SIN, mod=""):
    for hh in range(2):
        for aa in range(4):
            for i in range(4):
                a.e(f"buffer_load_dword v{F_IN+16*hh+4*aa+i}, v{F_IN0+hh}, s[{SIN}:{SIN+3}], s{SI_OFF+4*aa+i} offen {mod}")

def fft512_addr2(a, s_sa, s_cb, orow, ostr):
    a.e(f"s_mov_b32 s51, {16*ostr}", f"v_mul_lo_u32 v{F_OUTOFF}, v{F_M}, s51", f"v_lshl_add_u32 v{F_OUTOFF}, v{F_G}, 4, v{F_OUTOFF}")
    a.e(f"s_mul_i32 s48, s{s_sa}, {orow}", f"s_lshl_b32 s49, s{s_cb}, 6", "s_add_u32 s48, s48, s49",
        f"s_mul_i32 s50, s3, {4*ostr}", "s_add_u32 s48, s48, s50")
    for b in range(4):
        for h in range(2):
            a.e(f"s_add_u32 s{SO_LIST[2*b+h]}, s48, {(b+256*h)*ostr}")
    a.e(f"v_and_b32 v{F_T}, 7, v{F_M}", "s_lshl_b32 s50, s3, 1", f"v_xor_b32 v{F_T+1}, s50, v{F_T}",
        f"v_lshlrev_b32 v{F_WR}, 4, v{F_T+1}", f"v_lshl_add_u32 v{F_WR}, v{F_M}, 7, v{F_WR}",
        f"v_lshl_add_u32 v{F_WR}, v{F_G}, 13, v{F_WR}")
    a.e(f"v_xor_b32 v{F_T+1}, v{F_G}, v{F_T}", f"v_lshlrev_b32 v{F_RD0}, 4, v{F_T+1}",
        f"v_lshl_add_u32 v{F_RD0}, v{F_M}, 7, v{F_RD0}", "s_lshl_b32 s50, s3, 13",
        f"v_add_u32 v{F_RD0}, s50, v{F_RD0}", f"v_xor_b32 v{F_RD1}, 64, v{F_RD0}")

def fft512_consts(a):
    T, TMP = F_T, F_TMP
    XS, XB = T, T+1
    a.e(f"v_cvt_f32_u32 v{XS}, v{F_M}", f"v_mul_f32 v{XS}, {f32hex(1/32)}, v{XS}",
        f"v_cvt_f32_u32 v{T+2}, v{F_G}", f"v_mul_f32 v{T+2}, 4.0, v{T+2}",
        f"v_mul_f32 v{XB}, v{T+2}, v{XS}")
    a.e(f"v_and_b32 v{F_MM}, 1, v{F_M}", f"v_mul_u32_u24 v{F_MM}, 0x8000, v{F_MM}",
        f"v_lshl_or_b32 v{F_MM}, v{F_MM}, 16, v{F_MM}", "s_mov_b32 s50, 0x80008000")
    for i in range(4):
        x = TMP; cs = TMP+1; sn = TMP+2; x2 = TMP+3; cs2 = TMP+4; sn2 = TMP+5
        a.e(f"v_fmamk_f32 v{x}, v{XS}, {f32hex(float(i))}, v{XB}" if i else f"v_mov_b32 v{x}, v{XB}")
        a.e(f"v_add_f32 v{x2}, v{x}, v{x}")
        a.e(f"v_cos_f32 v{cs}, v{x}", f"v_sin_f32 v{sn}, v{x}", f"v_cos_f32 v{cs2}, v{x2}", f"v_sin_f32 v{sn2}, v{x2}")
        a.e(f"v_cvt_pk_bf16_f32 v{F32RE+i}, v{cs}, v{sn}", f"v_cvt_pk_bf16_f32 v{F32IM+i}, -v{sn}, v{cs}",
            f"v_cvt_pk_bf16_f32 v{F16RE+i}, v{cs2}, v{sn2}", f"v_cvt_pk_bf16_f32 v{F16IM+i}, -v{sn2}, v{cs2}")
    for base in (F32RE, F32IM):
        for i in range(4):
            a.e(f"v_xor_b32 v{base+4+i}, v{F_MM}, v{base+i}")
        for t in range(2):
            for i in range(4):
                src = base+4*t+i
                if i & 1: a.e(f"v_xor_b32 v{base+8+4*t+i}, s50, v{src}")
                else:     a.e(f"v_mov_b32 v{base+8+4*t+i}, v{src}")
    a.e(f"v_cvt_f32_u32 v{TMP}, s3", f"v_mul_f32 v{TMP}, {f32hex(8/512)}, v{TMP}")
    for r in range(4):
        a.e(f"v_add_f32 v{TMP+4+r}, {f32hex(float(r)) if r else 0}, v{T+2}")
    for aa in range(8):
        a.e(f"v_add_f32 v{TMP+1}, {f32hex(aa/512) if aa else 0}, v{TMP}")
        for r in range(4):
            a.e(f"v_mul_f32 v{T+3+(r&1)}, v{TMP+1}, v{TMP+4+r}",
                f"v_cos_f32 v{F_TWC+4*aa+r}, v{T+3+(r&1)}", f"v_sin_f32 v{F_TWS+4*aa+r}, v{T+3+(r&1)}")

def fft512_compute(a, SOUT, neg_im, nafter, stmod, st0, fs=0, hook=None):
    TMP = F_TMP
    stamp(a, st0)
    for hh in range(2):
        fstamp(a, fs+5*hh)
        for aa in range(4):
            a.e(f"s_waitcnt vmcnt({28-16*hh-4*aa+nafter})")
            a.e(f"v_mfma_f32_16x16x32_bf16 {v(F_DRE+4*aa,4)}, {v(F16RE,4)}, {v(F_IN+16*hh+4*aa,4)}, 0",
                f"v_mfma_f32_16x16x32_bf16 {v(F_DIM+4*aa,4)}, {v(F16IM,4)}, {v(F_IN+16*hh+4*aa,4)}, 0")
        if hh == 1:
            stamp(a, st0+1)
            if hook: hook()
        fstamp(a, fs+5*hh+1)
        for aa in range(4):
            for p in range(2):
                re, im = F_DRE+4*aa+2*p, F_DIM+4*aa+2*p
                tc, ts = F_TWC+16*hh+4*aa+2*p, F_TWS+16*hh+4*aa+2*p
                t0, t1 = TMP+4*p, TMP+4*p+2
                a.e(f"v_pk_mul_f32 {v(t0,2)}, {v(re,2)}, {v(tc,2)}",
                    f"v_pk_mul_f32 {v(t1,2)}, {v(im,2)}, {v(tc,2)}",
                    f"v_pk_fma_f32 {v(t0,2)}, {v(im,2)}, {v(ts,2)}, {v(t0,2)}",
                    f"v_pk_fma_f32 {v(t1,2)}, {v(re,2)}, {v(ts,2)}, {v(t1,2)} neg_lo:[1,0,0] neg_hi:[1,0,0]")
                for e in range(2):
                    r = 2*p+e
                    a.e(f"v_cvt_pk_bf16_f32 v{F_P+4*r+aa}, v{t0+e}, v{t1+e}")
        fstamp(a, fs+5*hh+2)
        if hh == 1: a.e(f"v_xor_b32 v{F_WR}, 16, v{F_WR}")
        for r in range(4):
            a.e(f"ds_write_b128 v{F_WR}, {v(F_P+4*r,4)} offset:{r*2048}")
    a.e("s_waitcnt lgkmcnt(0)")
    fstamp(a, fs+8)
    a.e("s_barrier")
    fstamp(a, fs+9)
    for b in range(4):
        a.e(f"ds_read_b128 {v(F_IN+8*b,4)}, v{F_RD0} offset:{b*2048}",
            f"ds_read_b128 {v(F_IN+8*b+4,4)}, v{F_RD1} offset:{b*2048}")
    sg = "-" if neg_im else ""
    def mf(bb):
        D0 = [F_DRE, F_DIM] if bb == 0 else [F_TWC, F_TWC+16]
        for bl in range(2):
            b = 2*bb+bl
            a.e(f"s_waitcnt lgkmcnt({6-2*b})")
            for t in range(2):
                for h in range(2):
                    for (D_, F_) in ((D0[0], F32RE), (D0[1], F32IM)):
                        d = D_+8*bl+4*h
                        c = "0" if t == 0 else v(d, 4)
                        a.e(f"v_mfma_f32_16x16x32_bf16 {v(d,4)}, {v(F_IN+8*b+4*t,4)}, {v(F_+8*h+4*t,4)}, {c}")
    def st(bb):
        D0 = [F_DRE, F_DIM] if bb == 0 else [F_TWC, F_TWC+16]
        PB = F_P if bb == 0 else F_TWS
        out = []
        for bl in range(2):
            b = 2*bb+bl
            for h in range(2):
                idx = 8*bl+4*h
                for r in range(4):
                    out.append(f"v_cvt_pk_bf16_f32 v{PB+idx+r}, v{D0[0]+idx+r}, {sg}v{D0[1]+idx+r}")
                out.append(f"buffer_store_dwordx4 {v(PB+idx,4)}, v{F_OUTOFF}, s[{SOUT}:{SOUT+3}], s{SO_LIST[2*b+h]} offen {stmod}")
        return out
    mf(0)
    n0 = len(a.lines)
    mf(1)
    m1 = a.lines[n0:]; del a.lines[n0:]
    s0 = st(0)
    k = 0
    seen = 0
    for l in m1:
        a.lines.append(l)
        if "v_mfma" in l:
            seen += 1
            if seen > 4:
                for _ in range(2):
                    if k < len(s0): a.e(s0[k]); k += 1
    while k < len(s0): a.e(s0[k]); k += 1
    fstamp(a, fs+10)
    for l in st(1): a.e(l)

def f8_addr(a, s_sa, s_cb, orow, ostr):
    a.e(f"v_and_b32 v{F_M}, 15, v1", f"v_lshrrev_b32 v{F_G}, 4, v1")
    a.e(f"v_and_b32 v{F_T}, 7, v1", f"v_bfe_u32 v{F_T+1}, v1, 3, 1",
        f"v_lshlrev_b32 v{F_IN0}, 20, v{F_G}", f"v_lshl_add_u32 v{F_IN0}, v{F_T+1}, 15, v{F_IN0}",
        f"v_lshl_add_u32 v{F_IN0}, v{F_T}, 2, v{F_IN0}")
    a.e(f"s_lshl_b32 s48, s{s_sa}, 11", f"s_lshl_b32 s49, s{s_cb}, 5", "s_add_u32 s48, s48, s49",
        "s_lshl_b32 s50, s3, 16", "s_add_u32 s48, s48, s50")
    for aa in range(4):
        for i in range(4):
            a.e(f"s_add_u32 s{SI_OFF+4*aa+i}, s48, {(32*i+aa)*8192}")
    a.e(f"v_lshrrev_b32 v{F_T+2}, 1, v{F_G}", f"v_lshl_add_u32 v{F_T+2}, v{F_M}, 4, v{F_T+2}",
        f"s_mov_b32 s51, {ostr}", f"v_mul_lo_u32 v{F_OUTOFF}, v{F_T+2}, s51",
        f"v_and_b32 v{F_T+2}, 1, v{F_G}", f"v_lshl_add_u32 v{F_OUTOFF}, v{F_T+2}, 4, v{F_OUTOFF}")
    a.e(f"s_mul_i32 s48, s{s_sa}, {orow}", f"s_lshl_b32 s49, s{s_cb}, 5", "s_add_u32 s48, s48, s49",
        f"s_mul_i32 s50, s3, {4*ostr}", "s_add_u32 s48, s48, s50")
    for b in range(2):
        for h in range(2):
            a.e(f"s_add_u32 s{SO_LIST[2*b+h]}, s48, {(2*b+256*h)*ostr}")
    a.e("s_lshl_b32 s50, s3, 1", f"v_add_u32 v{F_T+2}, s50, v{F_T+1}", f"v_xor_b32 v{F_T+2}, v{F_T+2}, v{F_T}",
        f"v_lshlrev_b32 v{F_WR}, 4, v{F_T+2}", f"v_lshl_add_u32 v{F_WR}, v{F_T}, 7, v{F_WR}", f"v_lshl_add_u32 v{F_WR}, v{F_G}, 12, v{F_WR}")
    a.e(f"v_xor_b32 v{F_T+2}, v{F_G}, v{F_T}", f"v_lshlrev_b32 v{F_RD0}, 4, v{F_T+2}",
        f"v_lshl_add_u32 v{F_RD0}, v{F_T}, 7, v{F_RD0}", f"v_lshl_add_u32 v{F_RD0}, v{F_T+1}, 10, v{F_RD0}",
        "s_lshl_b32 s50, s3, 12", f"v_add_u32 v{F_RD0}, s50, v{F_RD0}", f"v_xor_b32 v{F_RD1}, 64, v{F_RD0}")

def f8_consts(a):
    T, TMP = F_T, F_TMP
    XS, XB = T, T+1
    a.e(f"v_cvt_f32_u32 v{XS}, v{F_M}", f"v_mul_f32 v{XS}, {f32hex(1/32)}, v{XS}",
        f"v_cvt_f32_u32 v{T+2}, v{F_G}", f"v_mul_f32 v{T+2}, 4.0, v{T+2}",
        f"v_mul_f32 v{XB}, v{T+2}, v{XS}")
    a.e(f"v_and_b32 v{F_MM}, 1, v{F_M}", f"v_mul_u32_u24 v{F_MM}, 0x8000, v{F_MM}",
        f"v_lshl_or_b32 v{F_MM}, v{F_MM}, 16, v{F_MM}", "s_mov_b32 s50, 0x80008000")
    for i in range(4):
        x = TMP; cs = TMP+1; sn = TMP+2; x2 = TMP+3; cs2 = TMP+4; sn2 = TMP+5
        a.e(f"v_fmamk_f32 v{x}, v{XS}, {f32hex(float(i))}, v{XB}" if i else f"v_mov_b32 v{x}, v{XB}")
        a.e(f"v_add_f32 v{x2}, v{x}, v{x}")
        a.e(f"v_cos_f32 v{cs}, v{x}", f"v_sin_f32 v{sn}, v{x}", f"v_cos_f32 v{cs2}, v{x2}", f"v_sin_f32 v{sn2}, v{x2}")
        a.e(f"v_cvt_pk_bf16_f32 v{F32RE+i}, v{cs}, v{sn}", f"v_cvt_pk_bf16_f32 v{F32IM+i}, -v{sn}, v{cs}",
            f"v_cvt_pk_bf16_f32 v{F16RE+i}, v{cs2}, v{sn2}", f"v_cvt_pk_bf16_f32 v{F16IM+i}, -v{sn2}, v{cs2}")
    for base in (F32RE, F32IM):
        for i in range(4):
            a.e(f"v_xor_b32 v{base+4+i}, v{F_MM}, v{base+i}")
        for t in range(2):
            for i in range(4):
                src = base+4*t+i
                if i & 1: a.e(f"v_xor_b32 v{base+8+4*t+i}, s50, v{src}")
                else:     a.e(f"v_mov_b32 v{base+8+4*t+i}, v{src}")
    a.e(f"v_bfe_u32 v{TMP}, v1, 3, 1", "s_lshl_b32 s50, s3, 1", f"v_add_u32 v{TMP}, s50, v{TMP}",
        f"v_cvt_f32_u32 v{TMP}, v{TMP}", f"v_mul_f32 v{TMP}, {f32hex(4/512)}, v{TMP}")
    for r in range(4):
        a.e(f"v_add_f32 v{TMP+4+r}, {f32hex(float(r)) if r else 0}, v{T+2}")
    for aa in range(4):
        a.e(f"v_add_f32 v{TMP+1}, {f32hex(aa/512) if aa else 0}, v{TMP}")
        for r in range(4):
            a.e(f"v_mul_f32 v{T+3+(r&1)}, v{TMP+1}, v{TMP+4+r}",
                f"v_cos_f32 v{F_TWC+4*aa+r}, v{T+3+(r&1)}", f"v_sin_f32 v{F_TWS+4*aa+r}, v{T+3+(r&1)}")

def f8_run(a, SIN, SOUT, ldmod, stmod, sT0=None):
    TMP = F_TMP
    ld = lambda aa, i: f"buffer_load_dword v{F_IN+4*aa+i}, v{F_IN0}, s[{SIN}:{SIN+3}], s{SI_OFF+4*aa+i} offen {ldmod}"
    order = [0, 1, 2, 3]
    if sT0 is None:
        for aa in range(4):
            for i in range(4): a.e(ld(aa, i))
    else:
        order = [1, 2, 3, 0]
        for aa in (1, 2, 3):
            for i in range(4): a.e(ld(aa, i))
        for i in (1, 2, 3): a.e(ld(0, i))
        L, Ld = newlbl("t0p"), newlbl("t0d")
        a.e("s_cmp_lg_u32 s3, 0", f"s_cbranch_scc1 {Ld}", f"s_cmp_eq_u32 s{sT0}, 0", f"s_cbranch_scc1 {Ld}",
            f"v_mov_b32 v{TMP}, {SY_A2}", "s_mov_b32 s48, 0")
        a.label(L)
        a.e(f"buffer_load_dword v{TMP+1}, v{TMP}, s[{S_SYN}:{S_SYN+3}], 0 offen sc1", "s_add_u32 s48, s48, 1", "s_waitcnt vmcnt(0)",
            f"v_readfirstlane_b32 s49, v{TMP+1}", f"s_cmp_eq_u32 s49, s{S_TGT}", f"s_cbranch_scc1 {Ld}",
            f"s_cmp_lt_u32 s48, {SPIN_LIMIT}", f"s_cbranch_scc1 {L}")
        a.label(Ld)
        a.e(ld(0, 0))
    fstamp(a, 3)
    for n_, aa in enumerate(order):
        a.e(f"s_waitcnt vmcnt({12-4*n_})")
        a.e(f"v_mfma_f32_16x16x32_bf16 {v(F_DRE+4*aa,4)}, {v(F16RE,4)}, {v(F_IN+4*aa,4)}, 0",
            f"v_mfma_f32_16x16x32_bf16 {v(F_DIM+4*aa,4)}, {v(F16IM,4)}, {v(F_IN+4*aa,4)}, 0")
    fstamp(a, 1)
    for aa in range(4):
        for p in range(2):
            re, im = F_DRE+4*aa+2*p, F_DIM+4*aa+2*p
            tc, ts = F_TWC+4*aa+2*p, F_TWS+4*aa+2*p
            t0, t1 = TMP+4*p, TMP+4*p+2
            a.e(f"v_pk_mul_f32 {v(t0,2)}, {v(re,2)}, {v(tc,2)}",
                f"v_pk_mul_f32 {v(t1,2)}, {v(im,2)}, {v(tc,2)}",
                f"v_pk_fma_f32 {v(t0,2)}, {v(im,2)}, {v(ts,2)}, {v(t0,2)}",
                f"v_pk_fma_f32 {v(t1,2)}, {v(re,2)}, {v(ts,2)}, {v(t1,2)} neg_lo:[1,0,0] neg_hi:[1,0,0]")
            for e in range(2):
                r = 2*p+e
                a.e(f"v_cvt_pk_bf16_f32 v{F_P+4*r+aa}, v{t0+e}, v{t1+e}")
    for r in range(4):
        a.e(f"ds_write_b128 v{F_WR}, {v(F_P+4*r,4)} offset:{r*1024}")
    a.e("s_waitcnt lgkmcnt(0)")
    fstamp(a, 8)
    a.e("s_barrier")
    fstamp(a, 9)
    for b in range(2):
        a.e(f"ds_read_b128 {v(F_IN+8*b,4)}, v{F_RD0} offset:{b*2048}",
            f"ds_read_b128 {v(F_IN+8*b+4,4)}, v{F_RD1} offset:{b*2048}")
    for b in range(2):
        a.e(f"s_waitcnt lgkmcnt({2-2*b})")
        for t in range(2):
            for h in range(2):
                for (D_, F_) in ((F_DRE, F32RE), (F_DIM, F32IM)):
                    d = D_+8*b+4*h
                    c = "0" if t == 0 else v(d, 4)
                    a.e(f"v_mfma_f32_16x16x32_bf16 {v(d,4)}, {v(F_IN+8*b+4*t,4)}, {v(F_+8*h+4*t,4)}, {c}")
    fstamp(a, 10)
    for b in range(2):
        for h in range(2):
            idx = 8*b+4*h
            for r in range(4):
                a.e(f"v_cvt_pk_bf16_f32 v{F_P+idx+r}, v{F_DRE+idx+r}, -v{F_DIM+idx+r}")
            a.e(f"buffer_store_dwordx4 {v(F_P+idx,4)}, v{F_OUTOFF}, s[{SOUT}:{SOUT+3}], s{SO_LIST[2*b+h]} offen {stmod}")

def f256_loads(a, SX, s_sa, s_cb, mod):
    a.e(f"v_and_b32 v{F_M}, 15, v1", f"v_lshrrev_b32 v{F_G}, 4, v1",
        f"v_lshlrev_b32 v{F_IN0}, 20, v{F_G}", f"v_lshl_add_u32 v{F_IN0}, v{F_M}, 2, v{F_IN0}")
    a.e(f"s_lshl_b32 s48, s{s_sa}, 11", f"s_lshl_b32 s49, s{s_cb}, 6", "s_add_u32 s48, s48, s49",
        "s_lshl_b32 s50, s3, 16", "s_add_u32 s50, s50, s48")
    for aa in range(4):
        for i in range(4):
            a.e(f"s_add_u32 s{SI_OFF+4*aa+i}, s50, {(16*i+aa)*16384}",
                f"buffer_load_dword v{F_IN+4*aa+i}, v{F_IN0}, s[{SX}:{SX+3}], s{SI_OFF+4*aa+i} offen {mod}")

def f256_setup(a):
    T, TMP = F_T, F_TMP
    a.e(f"v_lshlrev_b32 v{F_OUTOFF}, 18, v{F_M}", f"v_lshl_add_u32 v{F_OUTOFF}, v{F_G}, 4, v{F_OUTOFF}",
        "s_lshl_b32 s50, s3, 16", "s_add_u32 s50, s50, s48")
    for b in range(4): a.e(f"s_add_u32 s{SO_LIST[b]}, s50, {b*16384}")
    a.e(f"v_bfe_u32 v{T}, v{F_M}, 1, 2", f"v_xor_b32 v{T+1}, s3, v{T}", f"v_lshlrev_b32 v{F_WR}, 4, v{T+1}",
        f"v_lshl_add_u32 v{F_WR}, v{F_M}, 6, v{F_WR}", f"v_lshl_add_u32 v{F_WR}, v{F_G}, 12, v{F_WR}",
        f"v_xor_b32 v{T+1}, v{F_G}, v{T}", f"v_lshlrev_b32 v{F_RD0}, 4, v{T+1}", f"v_lshl_add_u32 v{F_RD0}, v{F_M}, 6, v{F_RD0}",
        "s_lshl_b32 s50, s3, 12", f"v_add_u32 v{F_RD0}, s50, v{F_RD0}")
    XS, XB = T, T+1
    a.e(f"v_cvt_f32_u32 v{XS}, v{F_M}", f"v_mul_f32 v{XS}, {f32hex(1/16)}, v{XS}",
        f"v_cvt_f32_u32 v{T+2}, v{F_G}", f"v_mul_f32 v{T+2}, 4.0, v{T+2}", f"v_mul_f32 v{XB}, v{T+2}, v{XS}")
    for i in range(4):
        x = TMP+3*(i & 1)
        a.e(f"v_fmamk_f32 v{x}, v{XS}, {f32hex(float(i))}, v{XB}" if i else f"v_mov_b32 v{x}, v{XB}")
        a.e(f"v_cos_f32 v{x+1}, v{x}", f"v_sin_f32 v{x+2}, v{x}")
        a.e(f"v_cvt_pk_bf16_f32 v{F16RE+i}, v{x+1}, v{x+2}", f"v_cvt_pk_bf16_f32 v{F16IM+i}, -v{x+2}, v{x+1}")
    a.e(f"v_cvt_f32_u32 v{TMP}, s3", f"v_mul_f32 v{TMP}, {f32hex(4/256)}, v{TMP}")
    for r in range(4): a.e(f"v_add_f32 v{TMP+4+r}, {f32hex(float(r)) if r else 0}, v{T+2}")
    for aa in range(4):
        a.e(f"v_add_f32 v{TMP+1}, {f32hex(aa/256) if aa else 0}, v{TMP}")
        for r in range(4):
            a.e(f"v_mul_f32 v{T+3+(r&1)}, v{TMP+1}, v{TMP+4+r}",
                f"v_cos_f32 v{F_TWC+4*aa+r}, v{T+3+(r&1)}", f"v_sin_f32 v{F_TWS+4*aa+r}, v{T+3+(r&1)}")

def f256_run(a, SOUT, nafter):
    TMP = F_TMP
    stamp(a, 2)
    for aa in range(4):
        a.e(f"s_waitcnt vmcnt({12-4*aa+nafter})")
        a.e(f"v_mfma_f32_16x16x32_bf16 {v(F_DRE+4*aa,4)}, {v(F16RE,4)}, {v(F_IN+4*aa,4)}, 0",
            f"v_mfma_f32_16x16x32_bf16 {v(F_DIM+4*aa,4)}, {v(F16IM,4)}, {v(F_IN+4*aa,4)}, 0")
    stamp(a, 3)
    for aa in range(4):
        for p in range(2):
            re, im = F_DRE+4*aa+2*p, F_DIM+4*aa+2*p
            tc, ts = F_TWC+4*aa+2*p, F_TWS+4*aa+2*p
            t0, t1 = TMP+4*p, TMP+4*p+2
            a.e(f"v_pk_mul_f32 {v(t0,2)}, {v(re,2)}, {v(tc,2)}",
                f"v_pk_mul_f32 {v(t1,2)}, {v(im,2)}, {v(tc,2)}",
                f"v_pk_fma_f32 {v(t0,2)}, {v(im,2)}, {v(ts,2)}, {v(t0,2)}",
                f"v_pk_fma_f32 {v(t1,2)}, {v(re,2)}, {v(ts,2)}, {v(t1,2)} neg_lo:[1,0,0] neg_hi:[1,0,0]")
            for e in range(2):
                r = 2*p+e
                a.e(f"v_cvt_pk_bf16_f32 v{F_P+4*r+aa}, v{t0+e}, v{t1+e}")
    for r in range(4):
        a.e(f"ds_write_b128 v{F_WR}, {v(F_P+4*r,4)} offset:{r*1024}")
    a.e("s_waitcnt lgkmcnt(0)", "s_barrier")
    for b in range(4):
        a.e(f"ds_read_b128 {v(F_IN+4*b,4)}, v{F_RD0} offset:{b*1024}")
    for b in range(4):
        a.e(f"s_waitcnt lgkmcnt({3-b})")
        a.e(f"v_mfma_f32_16x16x32_bf16 {v(F_DRE+4*b,4)}, {v(F_IN+4*b,4)}, {v(F16RE,4)}, 0",
            f"v_mfma_f32_16x16x32_bf16 {v(F_DIM+4*b,4)}, {v(F_IN+4*b,4)}, {v(F16IM,4)}, 0")
    for b in range(4):
        for r in range(4):
            a.e(f"v_cvt_pk_bf16_f32 v{F_P+4*b+r}, v{F_DRE+4*b+r}, v{F_DIM+4*b+r}")
        a.e(f"buffer_store_dwordx4 {v(F_P+4*b,4)}, v{F_OUTOFF}, s[{SOUT}:{SOUT+3}], s{SO_LIST[b]} offen sc1")

IDX, G_, VG, VGW, VRR, VHR, VST, VW = 2, 3, 6, 7, 8, 12, 13, 14
CRE, CIM, TWC, TWS, WR, WI, ARE, AIM, DF, GA, HRE, HIM, GB, TMP = 16, 32, 48, 64, 80, 96, 112, 128, 144, 160, 164, 168, 172, 188
W2R, W2I, SP, PF, PF2 = 204, 220, 236, 248, 252
GA2 = 204
LW = 32768; LSC = 16384; LW2 = 49152

def w_dma(a, SWR, SWI, s_rowoff, s_mirroff, s_ldsbase, vlane16):
    a.e(f"s_mov_b32 m0, s{s_ldsbase}", f"buffer_load_dwordx4 v{vlane16}, s[{SWR}:{SWR+3}], s{s_rowoff} offen lds" + NT())
    a.e(f"s_add_u32 s93, s{s_ldsbase}, 1024", "s_mov_b32 m0, s93", f"buffer_load_dwordx4 v{vlane16}, s[{SWI}:{SWI+3}], s{s_rowoff} offen lds" + NT())
    a.e(f"s_add_u32 s92, s{s_mirroff}, 2")
    a.e(f"s_add_u32 s93, s{s_ldsbase}, 2048", "s_mov_b32 m0, s93", f"buffer_load_dwordx4 v{vlane16}, s[{SWR}:{SWR+3}], s92 offen lds" + NT())
    a.e(f"s_add_u32 s93, s{s_ldsbase}, 3072", "s_mov_b32 m0, s93", f"buffer_load_dwordx4 v{vlane16}, s[{SWI}:{SWI+3}], s92 offen lds" + NT())

def pf_loads(a, SWR, SWI, s_rowoff, s_mirroff, dst, vt):
    a.e(f"v_mov_b32 v{vt}, s{s_mirroff}", f"v_mov_b32 v{vt+1}, s{s_rowoff}", f"v_add_u32 v{vt+1}, 1024, v{vt+1}")
    a.e(f"buffer_load_short_d16_hi v{dst}, v{vt}, s[{SWR}:{SWR+3}], 0 offen",
        f"buffer_load_short_d16_hi v{dst+1}, v{vt}, s[{SWI}:{SWI+3}], 0 offen",
        f"buffer_load_short_d16_hi v{dst+2}, v{vt+1}, s[{SWR}:{SWR+3}], 0 offen",
        f"buffer_load_short_d16_hi v{dst+3}, v{vt+1}, s[{SWI}:{SWI+3}], 0 offen")

def w_lds_reads(a, vlo, vhi, dr, di):
    for (dst, o) in ((dr, 0), (di, 1024)):
        for r in range(16):
            e = eidx(r)
            if r < 8: a.e(f"ds_read_u16_d16_hi v{dst+r}, v{vlo} offset:{o+64*e}")
            else:     a.e(f"ds_read_u16_d16_hi v{dst+r}, v{vhi} offset:{o+64*(27-e)}")

def fix_w(a, dr, di, pf):
    a.e("v_cmp_eq_u32 vcc, 0, v1")
    for (r, o) in ((0, 0), (8, 2)):
        a.e(f"v_add_f32 v{TMP}, v{dr+r}, v{pf+o}", f"v_mul_f32 v{TMP}, 0.5, v{TMP}",
            f"v_sub_f32 v{TMP+1}, v{di+r}, v{pf+o+1}", f"v_mul_f32 v{TMP+1}, 0.5, v{TMP+1}",
            f"v_cndmask_b32 v{dr+r}, v{dr+r}, v{TMP}, vcc", f"v_cndmask_b32 v{di+r}, v{di+r}, v{TMP+1}, vcc")

def fft1024(a, mid=None):
    for t in range(4):
        c0 = "0" if t == 0 else v(ARE, 16); c1 = "0" if t == 0 else v(AIM, 16)
        a.e(f"v_mfma_f32_32x32x16_bf16 {v(ARE,16)}, {v(DF+4*t,4)}, {v(CRE+4*t,4)}, {c0}",
            f"v_mfma_f32_32x32x16_bf16 {v(AIM,16)}, {v(DF+4*t,4)}, {v(CIM+4*t,4)}, {c1}")
    for p in range(8):
        re, im, tc, ts = ARE+2*p, AIM+2*p, TWC+2*p, TWS+2*p
        t0 = TMP+4*(p & 1); t1 = t0+2
        a.e(f"v_pk_mul_f32 {v(t0,2)}, {v(re,2)}, {v(tc,2)}",
            f"v_pk_mul_f32 {v(t1,2)}, {v(im,2)}, {v(tc,2)}",
            f"v_pk_fma_f32 {v(t0,2)}, {v(im,2)}, {v(ts,2)}, {v(t0,2)}",
            f"v_pk_fma_f32 {v(t1,2)}, {v(re,2)}, {v(ts,2)}, {v(t1,2)} neg_lo:[1,0,0] neg_hi:[1,0,0]")
        for e in range(2):
            a.e(f"v_cvt_pk_bf16_f32 v{DF+2*p+e}, v{t0+e}, v{t1+e}")
    for t in range(4):
        if mid and t == 1: mid()
        c0 = "0" if t == 0 else v(ARE, 16); c1 = "0" if t == 0 else v(AIM, 16)
        a.e(f"v_mfma_f32_32x32x16_bf16 {v(ARE,16)}, {v(CRE+4*t,4)}, {v(DF+4*t,4)}, {c0}",
            f"v_mfma_f32_32x32x16_bf16 {v(AIM,16)}, {v(CIM+4*t,4)}, {v(DF+4*t,4)}, {c1}")

def a2_consts(a, sT):
    a.e(f"v_and_b32 v{IDX}, 31, v1", f"v_lshrrev_b32 v{G_}, 5, v1")
    XS, XB = TMP, TMP+1
    a.e(f"v_cvt_f32_u32 v{TMP+2}, v{IDX}", f"v_cvt_f32_u32 v{TMP+3}, v{G_}", f"v_mul_f32 v{TMP+3}, 4.0, v{TMP+3}",
        f"v_mul_f32 v{XS}, {f32hex(1/32)}, v{TMP+2}", f"v_mul_f32 v{XB}, v{TMP+3}, v{XS}")
    a.e(f"v_and_b32 v{TMP+4}, 1, v{IDX}", f"v_mul_u32_u24 v{TMP+4}, 0x8000, v{TMP+4}", f"v_lshl_or_b32 v{TMP+4}, v{TMP+4}, 16, v{TMP+4}")
    for t in range(2):
        for i in range(4):
            c = float(8*t+i); x = TMP+5+3*(i & 1)
            a.e(f"v_fmamk_f32 v{x}, v{XS}, {f32hex(c)}, v{XB}" if c else f"v_mov_b32 v{x}, v{XB}")
            a.e(f"v_cos_f32 v{x+1}, v{x}", f"v_sin_f32 v{x+2}, v{x}")
            a.e(f"v_cvt_pk_bf16_f32 v{CRE+4*t+i}, v{x+1}, v{x+2}", f"v_cvt_pk_bf16_f32 v{CIM+4*t+i}, -v{x+2}, v{x+1}")
    for base in (CRE, CIM):
        for i in range(8):
            a.e(f"v_xor_b32 v{base+8+i}, v{TMP+4}, v{base+i}")
    a.e(f"v_mul_f32 v{XS}, {f32hex(1/1024)}, v{TMP+2}", f"v_mul_f32 v{XB}, v{TMP+3}, v{XS}")
    for r in range(16):
        c = float(eidx(r)); x = TMP+5+(r & 1)
        a.e(f"v_fmamk_f32 v{x}, v{XS}, {f32hex(c)}, v{XB}" if c else f"v_mov_b32 v{x}, v{XB}")
        a.e(f"v_cos_f32 v{TWC+r}, v{x}", f"v_sin_f32 v{TWS+r}, v{x}")
    LO, HI, Q, AV, XA0, XA1, E0, E1 = TMP, TMP+1, TMP+2, TMP+3, TMP+4, TMP+5, TMP+6, TMP+7
    JF, KEY, T2, PO, PAR, N16, G4, CS = [TMP+8+i for i in range(8)]
    Lspec, Ldone = newlbl("ghspec"), newlbl("ghdone")
    a.e(f"v_and_b32 v{LO}, 3, v{IDX}", f"v_bfe_u32 v{HI}, v{IDX}, 2, 2")
    a.e(f"v_and_b32 v{N16}, 15, v1", f"v_lshrrev_b32 v{G4}, 4, v1")
    a.e(f"s_cmp_eq_u32 s{sT}, 0", f"s_cbranch_scc1 {Lspec}")
    a.e(f"v_cvt_f32_u32 v{T2}, s{sT}", f"v_cvt_f32_u32 v{JF}, v{HI}", f"v_fmamk_f32 v{JF}, v{JF}, {f32hex(512.0)}, v{T2}",
        f"v_mul_f32 v{JF}, {f32hex(1/2048)}, v{JF}",
        f"v_lshlrev_b32 v{Q}, 3, v{LO}", "s_mov_b32 s50, 0x4631914C", f"v_lshrrev_b32 v{Q}, v{Q}, s50",
        f"v_mov_b32 v{AV}, 0.5", f"v_cmp_gt_u32 vcc, 16, v{IDX}", f"v_cndmask_b32 v{AV}, 0, v{AV}, vcc")
    for ks, Gd in ((0, GA), (1, GA2)):
        a.e(f"v_cvt_f32_u32 v{XA0}, v{G_}", f"v_add_f32 v{XA0}, v{XA0}, v{XA0}")
        if ks: a.e(f"v_add_f32 v{XA0}, 4.0, v{XA0}")
        a.e(f"v_add_f32 v{XA1}, 1.0, v{XA0}", f"v_mul_f32 v{XA0}, v{XA0}, v{JF}", f"v_mul_f32 v{XA1}, v{XA1}, v{JF}")
        for jj2 in range(4):
            for e in range(2):
                jj = 2*jj2+e
                xa = XA1 if jj >> 2 else XA0
                a.e(f"v_bfe_u32 v{E0+e}, v{Q}, {2*(jj&3)}, 2", f"v_cvt_f32_u32 v{E0+e}, v{E0+e}",
                    f"v_fmamk_f32 v{E0+e}, v{E0+e}, {f32hex(0.25)}, v{xa}", f"v_cos_f32 v{E0+e}, v{E0+e}",
                    f"v_mul_f32 v{E0+e}, v{E0+e}, v{AV}")
            a.e(f"v_cvt_pk_bf16_f32 v{Gd+jj2}, v{E0}, v{E1}")
    a.e(f"v_bfe_u32 v{HI}, v{N16}, 1, 2", f"v_cvt_f32_u32 v{KEY}, v{HI}", f"v_mul_f32 v{KEY}, {f32hex(1/2048)}, v{KEY}",
        f"v_and_b32 v{JF}, 1, v{G4}", f"v_cvt_f32_u32 v{JF}, v{JF}", f"v_fmamk_f32 v{JF}, v{JF}, {f32hex(1024.0)}, v{T2}",
        f"v_add_f32 v{XA1}, {f32hex(512.0)}, v{JF}", f"v_mul_f32 v{XA0}, v{JF}, v{KEY}", f"v_mul_f32 v{XA1}, v{XA1}, v{KEY}",
        f"v_lshrrev_b32 v{CS}, 1, v{G4}", f"v_lshrrev_b32 v{AV}, 3, v{N16}", f"v_cmp_eq_u32 vcc, v{CS}, v{AV}",
        f"v_mov_b32 v{AV}, {f32hex(2.0**-21)}", f"v_cndmask_b32 v{AV}, 0, v{AV}, vcc",
        f"v_and_b32 v{PO}, 1, v{N16}")
    for part, Hd in ((0, HRE), (1, HIM)):
        w0, w1 = (0x1C, 0xBC) if part == 0 else (0x61, 0x6B)
        a.e(f"v_mov_b32 v{Q}, {w0}", f"v_mov_b32 v{PAR}, {w1}", f"v_cmp_eq_u32 vcc, 1, v{PO}", f"v_cndmask_b32 v{Q}, v{Q}, v{PAR}, vcc")
        for jj2 in range(4):
            for e in range(2):
                jj = 2*jj2+e
                xa = XA1 if jj >> 2 else XA0
                a.e(f"v_bfe_u32 v{E0+e}, v{Q}, {2*(jj&3)}, 2", f"v_cvt_f32_u32 v{E0+e}, v{E0+e}",
                    f"v_fmamk_f32 v{E0+e}, v{E0+e}, {f32hex(0.25)}, v{xa}", f"v_cos_f32 v{E0+e}, v{E0+e}",
                    f"v_mul_f32 v{E0+e}, v{E0+e}, v{AV}")
            a.e(f"v_cvt_pk_bf16_f32 v{Hd+jj2}, v{E0}, v{E1}")
    a.e(f"s_branch {Ldone}")
    a.label(Lspec)
    a.e(f"v_and_b32 v{PO}, 1, v{LO}", f"v_lshrrev_b32 v{PAR}, 1, v{LO}")
    a.e(f"v_lshlrev_b32 v{JF}, 2, v{HI}", "s_mov_b32 s50, 0x3120", f"v_lshrrev_b32 v{JF}, v{JF}, s50", f"v_and_b32 v{JF}, 15, v{JF}",
        f"v_lshlrev_b32 v{JF}, 8, v{JF}", f"v_lshlrev_b32 v{T2}, 10, v{PO}",
        f"v_cmp_eq_u32 vcc, 0, v{HI}", f"v_cndmask_b32 v{JF}, v{JF}, v{T2}, vcc", f"v_mov_b32 v{T2}, 0",
        f"v_cndmask_b32 v{Q}, v{PO}, v{T2}, vcc",
        f"v_cvt_f32_u32 v{JF}, v{JF}", f"v_mul_f32 v{JF}, {f32hex(1/2048)}, v{JF}",
        f"v_cvt_f32_u32 v{Q}, v{Q}", f"v_mul_f32 v{Q}, {f32hex(0.25)}, v{Q}",
        f"v_lshrrev_b32 v{T2}, 4, v{IDX}", f"v_lshl_add_u32 v{KEY}, v{T2}, 2, v{PAR}", f"v_mov_b32 v{T2}, 0")
    for ks, Gd in ((0, GA), (1, GA2)):
        a.e(f"v_cvt_f32_u32 v{XA0}, v{G_}", f"v_add_f32 v{XA0}, v{XA0}, v{XA0}")
        if ks: a.e(f"v_add_f32 v{XA0}, 4.0, v{XA0}")
        a.e(f"v_add_f32 v{XA1}, 1.0, v{XA0}",
            f"v_fma_f32 v{XA0}, v{XA0}, v{JF}, v{Q}", f"v_fma_f32 v{XA1}, v{XA1}, v{JF}, v{Q}",
            f"v_cos_f32 v{XA0}, v{XA0}", f"v_cos_f32 v{XA1}, v{XA1}")
        for jj2 in range(4):
            for e in range(2):
                jj = 2*jj2+e
                xa = XA1 if jj >> 2 else XA0
                a.e(f"v_cmp_eq_u32 vcc, {jj&3}, v{KEY}", f"v_cndmask_b32 v{E0+e}, v{T2}, v{xa}, vcc")
            a.e(f"v_cvt_pk_bf16_f32 v{Gd+jj2}, v{E0}, v{E1}")
    SAF, GS = JF, PAR
    a.e(f"v_bfe_u32 v{HI}, v{N16}, 1, 2", f"v_cvt_f32_u32 v{SAF}, v{HI}", f"v_mul_f32 v{SAF}, {f32hex(1/2048)}, v{SAF}",
        f"v_and_b32 v{GS}, 1, v{G4}", f"v_and_b32 v{PO}, 1, v{N16}",
        f"v_lshrrev_b32 v{CS}, 1, v{G4}", f"v_lshrrev_b32 v{T2}, 3, v{N16}",
        f"v_cmp_eq_u32 s[44:45], v{CS}, v{T2}", f"v_cmp_eq_u32 s[46:47], v{GS}, v{PO}", "s_and_b64 s[44:45], s[44:45], s[46:47]",
        f"v_cmp_eq_u32 s[46:47], 0, v{GS}")
    for part, Hd in ((0, HRE), (1, HIM)):
        for jj in range(8):
            sl, par, pi = jj >> 2, (jj >> 1) & 1, jj & 1
            e = E0 + (jj & 1)
            if par != part:
                a.e(f"v_mov_b32 v{e}, 0")
            else:
                if sl == 0:
                    j0, q0, a0 = 1024.0*pi, 0.5*pi, 2.0**-21
                    j1, q1, a1 = 256.0, 0.75*pi, 2.0**-20
                else:
                    j0, q0, a0 = 512.0, 0.75*pi, 2.0**-20
                    j1, q1, a1 = 768.0, 0.75*pi, 2.0**-20
                def sel(dst, x0, x1):
                    a.e(f"v_mov_b32 v{dst}, {f32hex(x1)}", f"v_mov_b32 v{AV}, {f32hex(x0)}", f"v_cndmask_b32 v{dst}, v{dst}, v{AV}, s[46:47]")
                sel(XA0, j0, j1); sel(XA1, q0 + 0.5*part, q1 + 0.5*part)
                a.e(f"v_fma_f32 v{XA0}, v{XA0}, v{SAF}, v{XA1}", f"v_cos_f32 v{XA0}, v{XA0}")
                sel(XA1, a0, a1)
                a.e(f"v_mul_f32 v{XA0}, v{XA0}, v{XA1}", f"v_mov_b32 v{XA1}, 0", f"v_cndmask_b32 v{e}, v{XA1}, v{XA0}, s[44:45]")
            if jj & 1: a.e(f"v_cvt_pk_bf16_f32 v{Hd+(jj>>1)}, v{E0}, v{E1}")
    a.label(Ldone)
    a.e("s_nop 1")


BT_S0, BT_S1, BT_S2, BT_S3 = 52, 56, 60, 64
BT_SOFF = ["0", "s68", "s69", "s70", "s71", "s76", "s77", "s78"]
BT_ROW, BT_CH, BT_MASK = 48, 49, 50
def bt_setup(a):
    a.e(f"s_lshl_b32 s{BT_ROW}, s{sSUBT}, 7", "s_lshl_b32 s51, s3, 5", f"s_add_u32 s{BT_ROW}, s{BT_ROW}, s51", f"s_lshl_b32 s{BT_CH}, s{sCBKT}, 6")
    for i in range(1, 8): a.e(f"s_mov_b32 {BT_SOFF[i]}, {4096*i}")
    a.e(f"s_mov_b32 s{BT_MASK}, 0xffff0000")

def scratch_addr(a, vdst, vcg, vrg):
    if OPT["fullline"]:
        a.e(f"s_lshl_b32 s51, s{sSUBT}, 7", "s_lshl_b32 s92, s3, 5", "s_add_u32 s51, s51, s92", "s_lshl_b32 s51, s51, 12",
            f"s_lshl_b32 s92, s{sCBKT}, 7", "s_add_u32 s51, s51, s92", "s_add_u32 s51, s51, 2048",
            f"v_lshrrev_b32 v{vdst}, 1, v{vcg}", f"v_lshlrev_b32 v{vdst}, 12, v{vdst}", f"v_lshl_add_u32 v{vdst}, v{vrg}, 4, v{vdst}",
            f"v_and_b32 v{vcg}, 1, v{vcg}", f"v_lshl_add_u32 v{vdst}, v{vcg}, 6, v{vdst}", f"v_add_u32 v{vdst}, s51, v{vdst}",
            "s_mov_b32 s32, 32768", "s_mov_b32 s33, 65536", "s_mov_b32 s34, 98304")
        return
    a.e(f"s_lshl_b32 s51, s{sSUBT}, 7", "s_lshr_b32 s92, s3, 1", "s_add_u32 s51, s51, s92", "s_lshl_b32 s51, s51, 12",
        f"s_lshl_b32 s92, s{sCBKT}, 7", "s_add_u32 s51, s51, s92", "s_and_b32 s92, s3, 1", "s_lshl_b32 s92, s92, 6", "s_add_u32 s51, s51, s92",
        "s_add_u32 s51, s51, 2048",
        f"v_lshlrev_b32 v{vdst}, 15, v{vcg}", f"v_lshl_add_u32 v{vdst}, v{vrg}, 4, v{vdst}", f"v_add_u32 v{vdst}, s51, v{vdst}")
def SCR(c):
    return ["0", "s32", "s33", "s34"][c] if OPT["fullline"] else ["0", "s69", "s71", "s77"][c]

def emit_B1(a, shadow=None, hook=None, post_mode=None, after_stores=None, nafter=0, after_loads=None, nyoung=0):
    SK, SV, SSH, SKVT = BT_S0, BT_S1, BT_S2, BT_S3
    soff = BT_SOFF; M = BT_MASK
    CG, RG, S0, CH0, VOFF, VH, VST, VSH = 2, 3, 4, 5, 6, 7, 8, 9
    KR, VR, SHR, KF, SHF, KV, TM, PK = 16, 38, 54, 64, 108, 124, 156, 16
    FAST = OPT["fast"]
    def kld():
        for i in range(3):
            a.e(f"buffer_load_dwordx2 {v(KR+2*i,2)}, v{VH}, s[{SK}:{SK+3}], {soff[i>>1]} offen" + (" offset:2048" if i & 1 else "") + (NT() if OPT["ntk"] else ""))
        for i in range(8):
            a.e(f"buffer_load_dwordx2 {v(KR+6+2*i,2)}, v{VOFF}, s[{SK}:{SK+3}], {soff[i>>1]} offen" + (" offset:2048" if i & 1 else "") + (NT() if OPT["ntk"] else ""))
    def shld():
        a.e(f"buffer_load_dwordx4 {v(SHR,4)}, v{VSH}, s[{SSH}:{SSH+3}], 0 offen",
            f"buffer_load_dwordx4 {v(SHR+4,4)}, v{VSH}, s[{SSH}:{SSH+3}], 0 offen offset:16")
    def vld():
        for i in range(8):
            a.e(f"buffer_load_dwordx2 {v(VR+2*i,2)}, v{VOFF}, s[{SV}:{SV+3}], {soff[i>>1]} offen" + (" offset:2048" if i & 1 else "") + NT())
    if FAST:
        a.e(f"s_lshl_b32 s{BT_ROW}, s{sSUBT}, 7", "s_lshl_b32 s51, s3, 5", f"s_add_u32 s{BT_ROW}, s{BT_ROW}, s51", f"s_lshl_b32 s{BT_CH}, s{sCBKT}, 6")
        srd(a, SK, P_K, P_K+1, 4*MB)
        a.e(f"v_and_b32 v{CG}, 15, v1", f"v_lshrrev_b32 v{RG}, 4, v1",
            f"v_lshl_add_u32 v{S0}, v{RG}, 3, s{BT_ROW}", f"v_lshl_add_u32 v{CH0}, v{CG}, 2, s{BT_CH}",
            f"v_lshlrev_b32 v{VOFF}, 11, v{S0}", f"v_lshl_add_u32 v{VOFF}, v{CH0}, 1, v{VOFF}",
            f"v_subrev_u32 v{VH}, 6144, v{VOFF}")
        for i in range(1, 4): a.e(f"s_mov_b32 {BT_SOFF[i]}, {4096*i}")
        kld()
        srd(a, SSH, P_SHK, P_SHK+1, 8192); srd(a, SV, P_V, P_V+1, 4*MB)
        a.e(f"v_lshlrev_b32 v{VSH}, 3, v{CH0}")
        shld(); vld()
        srd(a, SKVT, P_OUT, P_OUT+1, 8*MB)
        for i in range(4, 8): a.e(f"s_mov_b32 {BT_SOFF[i]}, {4096*i}")
        a.e(f"s_mov_b32 s{BT_MASK}, 0xffff0000")
        scratch_addr(a, VST, CG, RG)
    else:
        srd(a, SK, P_K, P_K+1, 4*MB); srd(a, SV, P_V, P_V+1, 4*MB); srd(a, SSH, P_SHK, P_SHK+1, 8192); srd(a, SKVT, P_OUT, P_OUT+1, 8*MB)
        bt_setup(a)
        a.e(f"v_and_b32 v{CG}, 15, v1", f"v_lshrrev_b32 v{RG}, 4, v1",
            f"v_lshl_add_u32 v{S0}, v{RG}, 3, s{BT_ROW}", f"v_lshl_add_u32 v{CH0}, v{CG}, 2, s{BT_CH}",
            f"v_lshlrev_b32 v{VOFF}, 11, v{S0}", f"v_lshl_add_u32 v{VOFF}, v{CH0}, 1, v{VOFF}",
            f"v_subrev_u32 v{VH}, 6144, v{VOFF}",
            f"v_lshlrev_b32 v{VSH}, 3, v{CH0}")
        scratch_addr(a, VST, CG, RG)
        if OPT["bactwait"] and OPT["b1all"]:
            Lw = newlbl("bw")
            a.e(f"s_cmp_eq_u32 s{sACT}, 0", f"s_cbranch_scc1 {Lw}", "s_waitcnt lgkmcnt(0)")
            a.label(Lw)
        if OPT["earlypub"]:
            Lp = newlbl("epub")
            a.e("s_cmp_lg_u32 s3, 0", f"s_cbranch_scc1 {Lp}")
            fin_epoch(a); loc_publish(a)
            a.label(Lp)
        shld(); kld(); vld()
    if OPT["fast"] >= 2: common_rest(a)
    if after_loads: after_loads()
    stamp(a, 2)
    if OPT["earlypub"]:
        Lq = newlbl("epub2")
        a.e("s_cmp_eq_u32 s3, 0", f"s_cbranch_scc1 {Lq}")
        fin_epoch(a)
        a.label(Lq)
    else:
        fin_epoch(a)
        loc_publish(a)
    if shadow: shadow()
    def wv(n, extra):
        n += nyoung
        if extra and not OPT["earlypub"]:
            L = newlbl("wv")
            a.e(f"s_cbranch_scc1 {L}", f"s_waitcnt vmcnt({n})")
            a.label(L)
            a.e(f"s_waitcnt vmcnt({n+extra})")
        elif extra == 2 and OPT["earlypub"]:
            L = newlbl("wv")
            a.e(f"s_cbranch_scc1 {L}", f"s_waitcnt vmcnt({n})")
            a.label(L)
            a.e(f"s_waitcnt vmcnt({n+1})")
        else:
            a.e(f"s_waitcnt vmcnt({n})")
    a.e("s_cmp_eq_u32 s3, 0")
    def unsh():
        for ch in range(4):
            for j in range(4):
                src = SHR + 2*ch + (j >> 1)
                if j & 1: a.e(f"v_and_b32 v{SHF+4*j+ch}, s{M}, v{src}")
                else:     a.e(f"v_lshlrev_b32 v{SHF+4*j+ch}, 16, v{src}")
    if not FAST:
        wv(19, 1); unsh()
    for i in range(11):
        wv((20-i) if FAST else (18-i), 1)
        for hf in range(2):
            a.e(f"v_lshlrev_b32 v{KF+4*i+2*hf}, 16, v{KR+2*i+hf}", f"v_and_b32 v{KF+4*i+2*hf+1}, s{M}, v{KR+2*i+hf}")
    if FAST:
        wv(8, 1); unsh()
    loc_issue(a, 10)
    a.e("s_cmp_eq_u32 s3, 0")
    for i in range(8):
        wv(7-i, 2)
        if i == 7 and hook: hook()
        for hf in range(2):
            a.e(f"v_lshlrev_b32 v{TM+2*hf}, 16, v{VR+2*i+hf}", f"v_and_b32 v{TM+2*hf+1}, s{M}, v{VR+2*i+hf}")
        for hf in range(2):
            acc = KV+4*i+2*hf
            a.e(f"v_pk_mul_f32 {v(acc,2)}, {v(KF+4*(i+3)+2*hf,2)}, {v(SHF+2*hf,2)}")
            for j in range(1, 4):
                a.e(f"v_pk_fma_f32 {v(acc,2)}, {v(KF+4*(i+3-j)+2*hf,2)}, {v(SHF+4*j+2*hf,2)}, {v(acc,2)}")
            a.e(f"v_pk_mul_f32 {v(acc,2)}, {v(acc,2)}, {v(TM+2*hf,2)}")
    stamp(a, 3)
    for ch in range(4):
        for m in range(4):
            a.e(f"v_cvt_pk_bf16_f32 v{PK+4*ch+m}, v{KV+4*(7-2*m)+ch}, v{KV+4*(6-2*m)+ch}")
    sts = [f"buffer_store_dwordx4 {v(PK+4*ch,4)}, v{VST}, s[{SKVT}:{SKVT+3}], {SCR(ch)} offen" for ch in range(4)]
    if OPT["twoflag"]:
        for l in sts: a.e(l + (" nt" if OPT["ntscr"] else ""))
        stamp(a, 4)
        a.e(f"s_lshl_b32 s51, s{sCBKT}, 4", f"s_add_u32 s51, s51, s{sSUBT}", f"s_lshl_b32 s51, s51, {FB()}", f"s_add_u32 s92, s51, {SY_B1}")
        La = newlbl("siga")
        a.e("s_waitcnt vmcnt(0)", "s_barrier", "s_cmp_lg_u32 s3, 0", f"s_cbranch_scc1 {La}",
            "v_mov_b32 v14, s92", f"v_mov_b32 v15, s{S_TGT}", "s_mov_b64 exec, 1",
            f"buffer_store_dword v15, v14, s[{S_SYN}:{S_SYN+3}], 0 offen", "s_mov_b64 exec, -1")
        a.label(La)
        if after_stores: after_stores()
        loc_resolve(a, 10, nafter=nafter + 1 if after_stores else 1)
        Lo = newlbl("opt")
        a.e(f"s_cmp_lg_u32 s{sLOC}, 0", f"s_cbranch_scc1 {Lo}", "s_waitcnt vmcnt(0)")
        for l in sts: a.e(l + " sc1")
        a.e(f"s_add_u32 s51, s51, {SY_B1B}")
        signal(a, 51, 14)
        a.label(Lo)
        return
    if OPT["optst"]:
        for l in sts: a.e(l)
        if after_stores: after_stores()
        loc_resolve(a, 10, nafter=nafter)
        Lo = newlbl("opt")
        a.e(f"s_cmp_lg_u32 s{sLOC}, 0", f"s_cbranch_scc1 {Lo}", "s_waitcnt vmcnt(0)")
        for l in sts: a.e(l + " sc1")
        a.e("s_waitcnt vmcnt(0)")
        a.label(Lo)
    else:
        loc_resolve(a, 10)
        dual_store(a, sts)
    stamp(a, 4)
    a.e(f"s_lshl_b32 s51, s{sCBKT}, 4", f"s_add_u32 s51, s51, s{sSUBT}", f"s_lshl_b32 s51, s51, {FB()}", f"s_add_u32 s51, s51, {SY_B1}")
    signal(a, 51, 14, nafter=nafter, bloc=True)

B3_QR, B3_VQ, B3_VT, B3_VO = 208, 224, 225, 226
def emit_B3_pre_n(a):
    SQ, STT, SOUT = BT_S0, BT_S1, BT_S2
    srd(a, SQ, P_Q, P_Q+1, 4*MB); srd(a, SOUT, P_OUT, P_OUT+1, 8*MB)
    bt_setup(a)
    t = 227
    a.e(f"v_and_b32 v{t}, 15, v1", f"v_lshrrev_b32 v{t+1}, 4, v1",
        f"v_lshl_add_u32 v{t+1}, v{t+1}, 3, s{BT_ROW}", f"v_lshl_add_u32 v{t}, v{t}, 2, s{BT_CH}",
        f"v_lshlrev_b32 v{B3_VQ}, 11, v{t+1}", f"v_lshl_add_u32 v{B3_VQ}, v{t}, 1, v{B3_VQ}",
        f"v_lshlrev_b32 v{B3_VO}, 12, v{t+1}", f"v_lshl_add_u32 v{B3_VO}, v{t}, 1, v{B3_VO}", f"v_add_u32 v{B3_VO}, 2048, v{B3_VO}")
    a.e(f"v_and_b32 v{t}, 15, v1", f"v_lshrrev_b32 v{t+1}, 4, v1")
    scratch_addr(a, B3_VT, t, t+1)
    for i in range(8):
        a.e(f"buffer_load_dwordx2 {v(B3_QR+2*i,2)}, v{B3_VQ}, s[{SQ}:{SQ+3}], {BT_SOFF[i>>1]} offen" + (" offset:2048" if i & 1 else "") + NT())

def emit_B3_n(a):
    SQ, STT, SOUT = BT_S0, BT_S1, BT_S2
    soff = BT_SOFF; M = BT_MASK
    TR, TF, QF = 16, 48, 80
    a.e(f"s_mov_b32 s{M}, 0xffff0000")
    a.e(f"s_lshl_b32 s51, s{sCBKT}, {4+FB()}", f"s_add_u32 s51, s51, {SY_B2}",
        "v_and_b32 v12, 15, v1", f"v_lshlrev_b32 v12, {FB()}, v12", "v_add_u32 v12, s51, v12")
    a.e("s_waitcnt vmcnt(0)")
    for e in range(8):
        qf = QF + 4*e
        for hf in range(2):
            a.e(f"v_lshlrev_b32 v{qf+2*hf}, 16, v{B3_QR+2*e+hf}", f"v_and_b32 v{qf+2*hf+1}, s{M}, v{B3_QR+2*e+hf}")
    wait_flags(a, 12, 1, 13, 51)
    stamp(a, 10)
    for ch in range(4):
        a.e(f"buffer_load_dwordx4 {v(TR+4*ch,4)}, v{B3_VT}, s[{SOUT}:{SOUT+3}], {SCR(ch)} offen" + LDL())
    for ch in range(4):
        a.e(f"s_waitcnt vmcnt({3-ch})")
        for e in range(8):
            src = TR+4*ch+(e >> 1)
            if e & 1: a.e(f"v_and_b32 v{TF+4*e+ch}, s{M}, v{src}")
            else:     a.e(f"v_lshlrev_b32 v{TF+4*e+ch}, 16, v{src}")
    a.e("s_barrier")
    for e in range(8):
        qf = QF + 4*e
        for hf in range(2):
            a.e(f"v_pk_mul_f32 {v(qf+2*hf,2)}, {v(qf+2*hf,2)}, {v(TF+4*e+2*hf,2)}")
        pk = 112+2*e
        for hf in range(2):
            a.e(f"v_cvt_pk_bf16_f32 v{pk+hf}, v{qf+2*hf}, v{qf+2*hf+1}")
        a.e(f"buffer_store_dwordx2 {v(pk,2)}, v{B3_VO}, s[{SOUT}:{SOUT+3}], {soff[e]} offen" + NTOB())

def emit_B3_pre_w(a):
    SQ, STT, SOUT = BT_S0, BT_S1, BT_S2
    srd(a, SQ, P_Q, P_Q+1, 4*MB); srd(a, SOUT, P_OUT, P_OUT+1, 8*MB)
    bt_setup(a)
    t = 227
    a.e(f"v_and_b32 v{t}, 7, v1", f"v_lshrrev_b32 v{t+1}, 3, v1")
    a.e(f"s_lshl_b32 s51, s{sSUBT}, 7", "s_lshl_b32 s92, s3, 5", "s_add_u32 s51, s51, s92", "s_lshl_b32 s51, s51, 12",
        f"s_lshl_b32 s92, s{sCBKT}, 7", "s_add_u32 s51, s51, s92", "s_add_u32 s51, s51, 2048",
        f"v_lshlrev_b32 v{B3_VT}, 12, v{t}", f"v_lshl_add_u32 v{B3_VT}, v{t+1}, 3, v{B3_VT}", f"v_add_u32 v{B3_VT}, s51, v{B3_VT}",
        "s_mov_b32 s32, 32768", "s_mov_b32 s33, 65536", "s_mov_b32 s34, 98304")
    a.e(f"v_lshl_add_u32 v{t+1}, v{t+1}, 2, s{BT_ROW}", f"v_lshl_add_u32 v{t}, v{t}, 3, s{BT_CH}",
        f"v_lshlrev_b32 v{B3_VQ}, 11, v{t+1}", f"v_lshl_add_u32 v{B3_VQ}, v{t}, 1, v{B3_VQ}",
        f"v_lshlrev_b32 v{B3_VO}, 12, v{t+1}", f"v_lshl_add_u32 v{B3_VO}, v{t}, 1, v{B3_VO}", f"v_add_u32 v{B3_VO}, 2048, v{B3_VO}")
    for e in range(4):
        a.e(f"buffer_load_dwordx4 {v(B3_QR+4*e,4)}, v{B3_VQ}, s[{SQ}:{SQ+3}], {BT_SOFF[e>>1]} offen" + (" offset:2048" if e & 1 else "") + NT())

def emit_B3_w(a):
    SQ, STT, SOUT = BT_S0, BT_S1, BT_S2
    soff = BT_SOFF; M = BT_MASK
    TR, TF, QF = 16, 48, 80
    a.e(f"s_mov_b32 s{M}, 0xffff0000")
    a.e(f"s_lshl_b32 s51, s{sCBKT}, {4+FB()}", f"s_add_u32 s51, s51, {SY_B2}",
        "v_and_b32 v12, 15, v1", f"v_lshlrev_b32 v12, {FB()}, v12", "v_add_u32 v12, s51, v12")
    a.e("s_waitcnt vmcnt(0)")
    for e in range(4):
        for d in range(4):
            a.e(f"v_lshlrev_b32 v{QF+8*e+2*d}, 16, v{B3_QR+4*e+d}", f"v_and_b32 v{QF+8*e+2*d+1}, s{M}, v{B3_QR+4*e+d}")
    wait_flags(a, 12, 1, 13, 51)
    stamp(a, 10)
    for c in range(8):
        a.e(f"buffer_load_dwordx2 {v(TR+2*c,2)}, v{B3_VT}, s[{SOUT}:{SOUT+3}], {SCR(c & 3)} offen" + (" offset:64" if c >> 2 else "") + LDL())
    for c in range(8):
        a.e(f"s_waitcnt vmcnt({7-c})")
        for e in range(4):
            src = TR+2*c+(e >> 1)
            if e & 1: a.e(f"v_and_b32 v{TF+8*e+c}, s{M}, v{src}")
            else:     a.e(f"v_lshlrev_b32 v{TF+8*e+c}, 16, v{src}")
    a.e("s_barrier")
    for e in range(4):
        for d in range(4):
            a.e(f"v_pk_mul_f32 {v(QF+8*e+2*d,2)}, {v(QF+8*e+2*d,2)}, {v(TF+8*e+2*d,2)}")
        pk = 112+4*e
        for d in range(4):
            a.e(f"v_cvt_pk_bf16_f32 v{pk+d}, v{QF+8*e+2*d}, v{QF+8*e+2*d+1}")
        a.e(f"buffer_store_dwordx4 {v(pk,4)}, v{B3_VO}, s[{SOUT}:{SOUT+3}], {soff[e]} offen" + NTOB())

def emit_B3_pre(a): (emit_B3_pre_w if OPT["b3w"] else emit_B3_pre_n)(a)
def emit_B3(a): (emit_B3_w if OPT["b3w"] else emit_B3_n)(a)

def gen_A(a):
    ROLE[0] = 'A'
    SX, SI1, SWR, SWI, SI2, SOUT = 32, 36, 80, 84, 32, 36
    a.e(f"s_setprio {OPT['prioA']}") if OPT['prioA'] else None
    sT, sSA, sCB, sJ, sJM, sJP, sJQ, sTL = 40, 41, 42, 43, 72, 73, 74, 44
    def rows():
        srd(a, SI1, P_WS, P_WS+1, 4*MB, add=WS_I1)
        srd(a, SWR, P_WR, P_WR+1, WBYTES); srd(a, SWI, P_WI, P_WI+1, WBYTES)
        Lr = newlbl("reg")
        a.e("s_lshl_b32 s47, s3, 9", f"s_add_u32 s{sJ}, s{sT}, s47", f"s_mov_b32 s{sJP}, s{sT}", f"s_sub_u32 s{sJQ}, 512, s{sT}",
            f"s_cmp_lg_u32 s{sT}, 0", f"s_cbranch_scc1 {Lr}",
            f"s_mov_b32 s{sJQ}, 256", "s_lshl_b32 s47, s3, 2", "s_lshr_b32 s46, 0x3120, s47", "s_and_b32 s46, s46, 15", f"s_lshl_b32 s{sJ}, s46, 8")
        a.label(Lr)
        a.e(f"s_sub_u32 s{sJM}, 2048, s{sJ}", f"s_and_b32 s{sJM}, s{sJM}, 2047",
            f"s_mul_i32 s{sJ}, s{sJ}, 1026", f"s_mul_i32 s{sJM}, s{sJM}, 1026")
        a.e(f"s_or_b32 s75, s{sT}, s3")
    def wstage():
        a.e("v_lshlrev_b32 v243, 4, v1", "s_lshl_b32 s46, s3, 12", f"s_add_u32 s46, s46, {LW}")
        w_dma(a, SWR, SWI, sJ, sJM, 46, 243)
        pf_loads(a, SWR, SWI, sJ, sJM, PF, 244)
        if not OPT["spec2"]: wstage2()
    def wstage2():
        Ln = newlbl("now2")
        a.e("s_cmp_lg_u32 s75, 0", f"s_cbranch_scc1 {Ln}")
        a.e("v_lshlrev_b32 v243, 4, v1", f"s_mov_b32 s47, {1024*1026}", f"s_mov_b32 s46, {LW2}")
        w_dma(a, SWR, SWI, 47, 47, 46, 243)
        pf_loads(a, SWR, SWI, 47, 47, PF2, 244)
        a.label(Ln)
    if OPT["pairx"]:
        a.e(f"s_and_b32 s48, s{sCU}, 7", "s_lshl_b32 s48, s48, 4", f"s_lshr_b32 s49, s{sCU}, 4", "s_add_u32 s48, s48, s49",
            "s_sub_u32 s49, 256, s48", "s_cmp_eq_u32 s48, 0", "s_cselect_b32 s49, 128, s49",
            f"s_bitcmp1_b32 s{sCU}, 3", f"s_cselect_b32 s{sT}, s49, s48")
    else:
        a.e(f"s_mov_b32 s{sT}, s{sCU}")
    stamp(a, 0, True); stamp(a, 1)
    Lp1 = newlbl("nop1")
    if OPT["pA1a"] >= 0: a.e(f"s_setprio {OPT['pA1a']}")
    srd(a, SX, P_X, P_X+1, 4*MB)
    a.e(f"s_lshr_b32 s48, s{sCU}, 3", f"s_and_b32 s49, s{sCU}, 7", f"s_lshr_b32 s{sSA}, s48, 2", "s_bfe_u32 s50, s48, 0x10001",
        "s_lshl_b32 s50, s50, 3", "s_add_u32 s50, s50, s49", "s_lshl_b32 s50, s50, 1", "s_and_b32 s51, s48, 1", f"s_add_u32 s{sCB}, s50, s51")
    f256_loads(a, SX, sSA, sCB, NT() if OPT["ntx"] else "")
    if OPT["fast"] >= 2:
        a.e("s_mov_b32 s45, s48")
        common_rest(a)
    stamp(a, 12)
    f256_setup(a)
    rows()
    wstage2()
    f256_run(a, SI1, 0)
    stamp(a, 4)
    if OPT["cearly"]:
        a.e("s_nop 1")
        a2_consts(a, sT)
    a.e(f"s_lshl_b32 s48, s{sCU}, {FA()}", f"s_add_u32 s48, s48, {SY_A1}")
    fin_epoch(a)
    signal(a, 48, 240)
    a.label(Lp1)
    pair_pubA(a)
    if OPT["pA1i"] >= 0 or OPT["pA1a"] >= 0: a.e(f"s_setprio {OPT['prioA']}")
    stamp(a, 5)
    if OPT["wlate"] == 2: wstage()
    srd(a, SI2, P_WS, P_WS+1, 4*MB, add=WS_I2)
    if not OPT["cearly"]: a2_consts(a, sT)
    a.e(f"v_lshl_add_u32 v{TMP}, v{G_}, 7, v{IDX}",
        "s_lshl_b32 s48, s3, 12", f"s_add_u32 s48, s48, {LW}",
        f"v_lshl_add_u32 v{VW}, v{TMP}, 1, s48",
        f"v_sub_u32 v{TMP+1}, {1023-32*27}, v{TMP}", f"s_add_u32 s49, s48, 2048", f"v_lshl_add_u32 v{VW+1}, v{TMP+1}, 1, s49")
    a.e(f"v_lshlrev_b32 v{VG}, 12, v{G_}", f"v_lshl_add_u32 v{VG}, v{IDX}, 2, v{VG}",
        "s_lshl_b32 s49, s3, 9",
        f"s_lshl_b32 s52, s{sJP}, 13", "s_add_u32 s52, s52, s49",
        f"s_lshl_b32 s53, s{sJQ}, 13", "s_add_u32 s53, s53, s49")
    a.e(f"s_lshl_b32 s54, s{sT}, 14", "s_add_u32 s54, s54, s49", f"s_sub_u32 s55, 256, s{sT}", "s_and_b32 s55, s55, 255", "s_lshl_b32 s55, s55, 14", "s_add_u32 s55, s55, s49",
        "s_add_u32 s56, s54, 8192", "s_add_u32 s57, s55, 8192")
    a.e(f"v_lshlrev_b32 v{VGW}, 12, v{G_}", f"v_lshl_add_u32 v{VGW}, v{IDX}, 3, v{VGW}", "s_lshl_b32 s50, s3, 10", f"v_add_u32 v{VGW}, s50, v{VGW}",
        f"v_lshlrev_b32 v{VRR}, 9, v{G_}", f"v_lshl_add_u32 v{VRR}, v{IDX}, 2, v{VRR}", "s_lshl_b32 s51, s3, 12", f"v_add_u32 v{VRR}, s51, v{VRR}")
    for t in range(1, 4): a.e(f"v_add_u32 v{VRR+t}, {1024*t}, v{VRR}")
    a.e(f"v_lshrrev_b32 v{TMP}, 4, v1", f"v_and_b32 v{TMP+1}, 1, v{TMP}", f"v_lshlrev_b32 v{VHR}, 13, v{TMP+1}",
        f"v_lshrrev_b32 v{TMP+1}, 1, v{TMP}", f"v_lshl_add_u32 v{VHR}, v{TMP+1}, 7, v{VHR}",
        f"v_and_b32 v{TMP+1}, 15, v1", f"v_lshl_add_u32 v{VHR}, v{TMP+1}, 3, v{VHR}", f"v_add_u32 v{VHR}, s50, v{VHR}")
    a.e(f"v_and_b32 v{TMP+2}, 1, v{TMP+1}", f"v_mov_b32 v{TMP+3}, s52", f"v_mov_b32 v{TMP+4}, s53",
        f"v_cmp_eq_u32 vcc, 1, v{TMP+2}", f"v_cndmask_b32 v{VST}, v{TMP+3}, v{TMP+4}, vcc",
        f"v_bfe_u32 v{TMP+2}, v{TMP+1}, 1, 2", f"v_lshl_add_u32 v{VST}, v{TMP+2}, 11, v{VST}",
        f"v_lshrrev_b32 v{TMP+2}, 3, v{TMP+1}", f"v_lshl_add_u32 v{VST}, v{TMP+2}, 6, v{VST}",
        f"v_lshl_add_u32 v{VST}, v{TMP}, 4, v{VST}")
    a.e(f"v_lshlrev_b32 v{TMP}, {FA()}, v1", f"v_add_u32 v{TMP}, {SY_A1}, v{TMP}")
    stamp(a, 6)
    wait_flags(a, TMP, 4, TMP+1, 48)
    if OPT["yieldB"] == 1: a_state(a, sCU, 1, TMP)
    stamp(a, 7)
    def gfrag(u, ks): return (GB if u < 2 else DF) + 8*(u & 1) + 4*ks
    for u in range(4):
        for ks in range(2):
            for sl in range(2):
                for pq in range(2):
                    a.e(f"buffer_load_dword v{gfrag(u,ks)+2*sl+pq}, v{VG}, s[{SI1}:{SI1+3}], s{54+2*ks+pq} offen offset:{2048*sl+128*u} " + GLD())
    NWL = 0
    if OPT["wlate"] == 1:
        wstage(); NWL = 8
        if not OPT["spec2"]:
            Lsw = newlbl("spw")
            a.e("s_cmp_lg_u32 s75, 0", f"s_cbranch_scc1 {Lsw}", "s_waitcnt vmcnt(0)")
            a.label(Lsw)
    for rnd in range(2):
        a.e(f"s_waitcnt vmcnt({16-16*rnd+NWL})")
        if rnd == OPT.get("yat", 1) and OPT["yieldB"] == 3:
            a_state(a, sCU, 1, 240)
        for uu in range(2):
            u = 2*rnd+uu
            D = ARE if uu == 0 else AIM
            a.e(f"v_mfma_f32_32x32x16_bf16 {v(D,16)}, {v(GA,4)}, {v(gfrag(u,0),4)}, 0",
                f"v_mfma_f32_32x32x16_bf16 {v(D,16)}, {v(GA2,4)}, {v(gfrag(u,1),4)}, {v(D,16)}")
        for uu in range(2):
            u = 2*rnd+uu
            D = ARE if uu == 0 else AIM
            t = TMP+4*uu
            for h in range(2):
                a.e(f"v_cvt_pk_bf16_f32 v{t}, v{D+4*h}, v{D+4*h+1}", f"v_cvt_pk_bf16_f32 v{t+1}, v{D+4*h+2}, v{D+4*h+3}",
                    f"ds_write_b64 v{VGW}, {v(t,2)} offset:{256*u+8192*h}")
                t += 2
    a.e("s_waitcnt lgkmcnt(0)", "s_barrier")
    stamp(a, 8)
    if OPT["qA"] and not OPT["a3all"]:
        Lq = newlbl("noqA")
        a.e(f"s_cmp_lg_u32 s{sACT}, 0", f"s_cbranch_scc1 {Lq}")
        emit_B3_pre(a)
        a.label(Lq)
    for t in range(4):
        a.e(f"ds_read2_b32 {v(DF+4*t,2)}, v{VRR+t} offset0:0 offset1:32", f"ds_read2_b32 {v(DF+4*t+2,2)}, v{VRR+t} offset0:64 offset1:96")
    a.e("s_waitcnt lgkmcnt(0)")
    Lsp, Linv, Lfwd, Lpre = newlbl("special"), newlbl("inv"), newlbl("fwd"), newlbl("pre")
    sPASS = 45
    if OPT["spec2"]:
        a.e(f"s_mov_b32 s{sPASS}, 0", "s_cmp_lg_u32 s75, 0", f"s_cbranch_scc1 {Lpre}")
        for i in range(16): a.e(f"v_lshrrev_b32 v{GB+i}, 16, v{DF+i}", f"v_and_b32 v{DF+i}, 0xffff, v{DF+i}")
        a.label(Lpre)
    def wmid():
        Lk = newlbl("wskip")
        if OPT["spec2"]: a.e(f"s_cmp_lg_u32 s{sPASS}, 0", f"s_cbranch_scc1 {Lk}")
        if OPT["qA"] and not OPT["a3all"]:
            L1, L2 = newlbl("wa"), newlbl("wb")
            a.e(f"s_cmp_lg_u32 s{sACT}, 0", f"s_cbranch_scc1 {L1}", "s_waitcnt vmcnt(8)", f"s_branch {L2}")
            a.label(L1); a.e("s_waitcnt vmcnt(0)"); a.label(L2)
        else:
            a.e("s_waitcnt vmcnt(0)")
        w_lds_reads(a, VW, VW+1, WR, WI)
        a.label(Lk)
    if OPT["wlate"] == 1:
        a.label(Lfwd); a.e("s_nop 1")
        fft1024(a, mid=wmid)
    else:
        w_lds_reads(a, VW, VW+1, WR, WI)
        a.label(Lfwd); a.e("s_nop 1")
        fft1024(a)
    a.e("s_waitcnt lgkmcnt(0)")
    Lnf = newlbl("nofix")
    if OPT["spec2"]: a.e(f"s_cmp_lg_u32 s{sPASS}, 0", f"s_cbranch_scc1 {Lnf}")
    fix_w(a, WR, WI, PF)
    a.label(Lnf)
    a.e("s_cmp_eq_u32 s75, 0", f"s_cbranch_scc1 {Lsp}")
    for p in range(8):
        xr, xi, wr, wi = ARE+2*p, AIM+2*p, WR+2*p, WI+2*p
        t0 = TMP+4*(p & 1); t1 = t0+2
        n0 = " neg_lo:[1,0,0] neg_hi:[1,0,0]" if p < 4 else ""
        n1 = "" if p < 4 else " neg_lo:[1,0,0] neg_hi:[1,0,0]"
        a.e(f"v_pk_mul_f32 {v(t0,2)}, {v(xr,2)}, {v(wr,2)}", f"v_pk_mul_f32 {v(t1,2)}, {v(xi,2)}, {v(wr,2)}",
            f"v_pk_fma_f32 {v(t0,2)}, {v(xi,2)}, {v(wi,2)}, {v(t0,2)}{n0}",
            f"v_pk_fma_f32 {v(t1,2)}, {v(xr,2)}, {v(wi,2)}, {v(t1,2)}{n1}")
        for e in range(2):
            a.e(f"v_cvt_pk_bf16_f32 v{DF+2*p+e}, v{t0+e}, -v{t1+e}")
    a.label(Linv)
    a.e("s_nop 1")
    fft1024(a)
    for r in range(16):
        t = TMP + (r & 7)
        a.e(f"v_cvt_pk_bf16_f32 v{t}, v{ARE+r}, v{AIM+r}", f"ds_write_b32 v{VRR}, v{t} offset:{128*eidx(r)}")
    a.e("s_waitcnt lgkmcnt(0)", "s_barrier")
    if OPT["yieldB"]:
        Ly = newlbl("y0a")
        if OPT["y0"]: a.e(f"s_cmp_lg_u32 s{sT}, 0", f"s_cbranch_scc1 {Ly}")
        a_state(a, sCU, 2, TMP)
        a.label(Ly)
    stamp(a, 9)
    for u in range(4):
        for sl in range(2):
            a.e(f"ds_read_b64 {v(GB+4*u+2*sl,2)}, v{VHR} offset:{4096*sl+256*u}")
    a.e("s_lshl_b32 s49, s3, 9")
    for u in range(4):
        a.e(f"s_waitcnt lgkmcnt({6-2*u})")
        a.e(f"v_mfma_f32_16x16x32_bf16 {v(ARE+4*u,4)}, {v(GB+4*u,4)}, {v(HRE,4)}, 0",
            f"v_mfma_f32_16x16x32_bf16 {v(AIM+4*u,4)}, {v(GB+4*u,4)}, {v(HIM,4)}, 0")
    for u in range(4):
        for r in range(4):
            a.e(f"v_cvt_pk_bf16_f32 v{DF+4*u+r}, v{ARE+4*u+r}, v{AIM+4*u+r}")
        a.e(f"buffer_store_dwordx4 {v(DF+4*u,4)}, v{VST}, s[{SI2}:{SI2+3}], 0 offen offset:{128*u} sc1")
    dstamp(a, 6); dpublish(a, sT)
    a.e(f"s_lshl_b32 s48, s{sT}, {FA()}", f"s_add_u32 s48, s48, {SY_A2}")
    signal(a, 48, TMP)
    stamp(a, 10)
    Lb3 = newlbl("b3")
    if OPT["a3all"]:
        srd(a, SOUT, P_OUT, P_OUT+1, 8*MB)
        a.e(f"s_lshr_b32 s48, s{sCU}, 3", f"s_and_b32 s49, s{sCU}, 7", f"s_lshr_b32 s{sSA}, s48, 3", "s_bfe_u32 s50, s48, 0x10002",
            "s_lshl_b32 s50, s50, 3", "s_add_u32 s50, s50, s49", "s_lshl_b32 s50, s50, 2", "s_and_b32 s51, s48, 3", f"s_add_u32 s{sCB}, s50, s51")
        f8_addr(a, sSA, sCB, 4096, 16384)
        f8_consts(a)
        a.e(f"v_lshlrev_b32 v{F_TMP}, {FA()}, v1", f"v_add_u32 v{F_TMP}, {SY_A2}, v{F_TMP}")
        wait_flags(a, F_TMP, 4, F_TMP+1, 48, skip0=47 if OPT["t0late"] else None)
        stamp(a, 11)
        PHASE[0] = 3
        fstamp(a, 11)
        f8_run(a, SI2, SOUT, {0: "sc1", 1: "nt", 2: ""}[OPT["i2ld"]], NTO(), sT0=47 if OPT["t0late"] else None)
    else:
        a.e(f"s_cmp_eq_u32 s{sACT}, 0", f"s_cbranch_scc1 {Lb3}")
        srd(a, SOUT, P_OUT, P_OUT+1, 8*MB)
        fft512_addr(a, sSA, sCB)
        fft512_addr2(a, sSA, sCB, 4096, 16384)
        fft512_consts(a)
        a.e(f"v_lshlrev_b32 v{F_TMP}, {FA()}, v1", f"v_add_u32 v{F_TMP}, {SY_A2}, v{F_TMP}")
        wait_flags(a, F_TMP, 4, F_TMP+1, 48)
        stamp(a, 11)
        PHASE[0] = 3
        fstamp(a, 11)
        fft512_loads(a, SI2, "sc1")
        fstamp(a, 3)
        save = gen.PROF; gen.PROF = False
        fft512_compute(a, SOUT, True, 0, NTO(), 0)
        gen.PROF = save
    a.e("s_cmp_lg_u32 s75, 0", "s_cbranch_scc1 L_fin")
    Lb1, Lb2 = newlbl("bchk"), newlbl("bchkd")
    a.e("v_lshlrev_b32 v2, 6, v1", f"v_add_u32 v2, {SY_ID}, v2", f"s_lshl_b32 s49, s{S_TGT}, 4", "s_mov_b32 s48, 0")
    a.label(Lb1)
    NS = NMEM()*8//64
    for i in range(NS):
        a.e(f"s_mov_b32 s50, {4096*i}", f"buffer_load_dword v{4+i}, v2, s[{S_SYN}:{S_SYN+3}], s50 offen sc1")
    a.e("s_add_u32 s48, s48, 1", "s_waitcnt vmcnt(0)")
    for i in range(NS): a.e(f"v_xor_b32 v{4+i}, s49, v{4+i}")
    for i in range(1, NS): a.e(f"v_or_b32 v4, v4, v{4+i}")
    a.e("v_lshrrev_b32 v4, 4, v4", "v_cmp_ne_u32 vcc, 0, v4", f"s_cbranch_vccz {Lb2}", f"s_cmp_lt_u32 s48, {SPIN_LIMIT}", f"s_cbranch_scc1 {Lb1}")
    a.label(Lb2)
    dreduce(a)
    pair_sum(a)
    a.e(f"s_mov_b32 s48, {SY_E}")
    bump(a, 48, 2)
    a.e("s_branch L_fin")
    if not OPT["a3all"]:
        a.label(Lb3)
        if not OPT["qA"]: emit_B3_pre(a)
        emit_B3(a)
        a.e("s_branch L_fin")
    a.label(Lsp)
    if OPT["spec2"]:
        Lp1s = newlbl("sp1")
        NEG = " neg_lo:[1,0,0] neg_hi:[1,0,0]"
        a.e(f"s_cmp_lg_u32 s{sPASS}, 0", f"s_cbranch_scc1 {Lp1s}")
        a.e(f"v_lshl_add_u32 v{SP}, v{G_}, 7, v{IDX}", f"v_sub_u32 v{SP+1}, {1023-32*27}, v{SP}",
            f"s_mov_b32 s48, {LW2}", f"v_lshl_add_u32 v{SP+2}, v{SP}, 1, s48", f"s_mov_b32 s49, {LW2+2048}", f"v_lshl_add_u32 v{SP+3}, v{SP+1}, 1, s49")
        w_lds_reads(a, SP+2, SP+3, W2R, W2I)
        for p in range(8):
            xr, xi, wr, wi = ARE+2*p, AIM+2*p, WR+2*p, WI+2*p
            t0 = TMP+4*(p & 1); t1 = t0+2
            n0 = NEG if p < 4 else ""; n1 = "" if p < 4 else NEG
            a.e(f"v_pk_mul_f32 {v(t0,2)}, {v(xr,2)}, {v(wr,2)}", f"v_pk_mul_f32 {v(t1,2)}, {v(xi,2)}, {v(wr,2)}",
                f"v_pk_fma_f32 {v(wr,2)}, {v(xi,2)}, {v(wi,2)}, {v(t0,2)}{n0}",
                f"v_pk_fma_f32 {v(wi,2)}, {v(xr,2)}, {v(wi,2)}, {v(t1,2)}{n1}")
        for i in range(16): a.e(f"v_mov_b32 v{DF+i}, v{GB+i}")
        a.e(f"s_mov_b32 s{sPASS}, 1", f"s_branch {Lfwd}")
        a.label(Lp1s)
        fix_w(a, W2R, W2I, PF2)
        for p in range(8):
            xr, xi, br, bi, r1r, r1i = ARE+2*p, AIM+2*p, W2R+2*p, W2I+2*p, WR+2*p, WI+2*p
            t0 = TMP+4*(p & 1); t1 = t0+2
            n0 = NEG if p < 4 else ""; n1 = "" if p < 4 else NEG
            a.e(f"v_pk_mul_f32 {v(t0,2)}, {v(xr,2)}, {v(br,2)}", f"v_pk_mul_f32 {v(t1,2)}, {v(xi,2)}, {v(br,2)}",
                f"v_pk_fma_f32 {v(t0,2)}, {v(xi,2)}, {v(bi,2)}, {v(t0,2)}{n0}",
                f"v_pk_fma_f32 {v(t1,2)}, {v(xr,2)}, {v(bi,2)}, {v(t1,2)}{n1}",
                f"v_pk_add_f32 {v(t1,2)}, {v(r1r,2)}, {v(t1,2)} neg_lo:[0,1] neg_hi:[0,1]",
                f"v_pk_add_f32 {v(t0,2)}, {v(r1i,2)}, {v(t0,2)}")
            for e in range(2):
                a.e(f"v_cvt_pk_bf16_f32 v{DF+2*p+e}, v{t1+e}, -v{t0+e}")
        a.e(f"s_branch {Linv}")
        return
    a.e(f"v_lshl_add_u32 v{TMP}, v{G_}, 7, v{IDX}", f"v_sub_u32 v{TMP+1}, {1023-32*27}, v{TMP}",
        f"s_mov_b32 s48, {LW2}", f"v_lshl_add_u32 v{TMP+2}, v{TMP}, 1, s48", f"s_mov_b32 s49, {LW2+2048}", f"v_lshl_add_u32 v{TMP+3}, v{TMP+1}, 1, s49")
    w_lds_reads(a, TMP+2, TMP+3, W2R, W2I)
    a.e("s_waitcnt lgkmcnt(0)")
    fix_w(a, W2R, W2I, PF2)
    VS = SP; K0 = SP+1
    a.e(f"v_lshlrev_b32 v{VS}, 9, v{G_}", f"v_lshl_add_u32 v{VS}, v{IDX}, 2, v{VS}")
    for r in range(16):
        a.e(f"ds_write_b32 v{VS}, v{ARE+r} offset:{LSC+128*eidx(r)}", f"ds_write_b32 v{VS}, v{AIM+r} offset:{LSC+4096+128*eidx(r)}")
    a.e(f"v_lshl_add_u32 v{K0}, v{G_}, 7, v{IDX}", f"v_sub_u32 v{K0}, 1024, v{K0}", "s_waitcnt lgkmcnt(0)")
    for r in range(16):
        ad, rr, ri, ur, ui, vr, vi, o0, o1 = [SP+2+i for i in range(9)]
        a.e(f"v_subrev_u32 v{ad}, {32*eidx(r)}, v{K0}", f"v_and_b32 v{ad}, 1023, v{ad}", f"v_lshlrev_b32 v{ad}, 2, v{ad}",
            f"ds_read_b32 v{rr}, v{ad} offset:{LSC}", f"ds_read_b32 v{ri}, v{ad} offset:{LSC+4096}", "s_waitcnt lgkmcnt(0)")
        pr, pi_ = ARE+r, AIM+r
        a.e(f"v_add_f32 v{ur}, v{pr}, v{rr}", f"v_sub_f32 v{ui}, v{pi_}, v{ri}",
            f"v_sub_f32 v{vr}, v{pr}, v{rr}", f"v_add_f32 v{vi}, v{pi_}, v{ri}")
        sg = "-" if r < 8 else ""; ns = "" if r < 8 else "-"
        ar, ai, br, bi = WR+r, WI+r, W2R+r, W2I+r
        a.e(f"v_mul_f32 v{o0}, v{ur}, v{ar}", f"v_fma_f32 v{o0}, {sg}v{ui}, v{ai}, v{o0}",
            f"v_fma_f32 v{o0}, v{vr}, v{br}, v{o0}", f"v_fma_f32 v{o0}, {sg}v{vi}, v{bi}, v{o0}",
            f"v_mul_f32 v{o1}, v{ui}, v{ar}", f"v_fma_f32 v{o1}, {ns}v{ur}, v{ai}, v{o1}",
            f"v_fma_f32 v{o1}, v{vi}, v{br}, v{o1}", f"v_fma_f32 v{o1}, {ns}v{vr}, v{bi}, v{o1}",
            f"v_mul_f32 v{o0}, 0.5, v{o0}", f"v_mul_f32 v{o1}, 0.5, v{o1}",
            f"v_cvt_pk_bf16_f32 v{DF+r}, v{o0}, -v{o1}")
    a.e(f"s_branch {Linv}")

def h_dma(a, SH, sLB, sD4K):
    a.e("v_lshlrev_b32 v235, 4, v1")
    a.e(f"s_add_u32 s74, s{sLB}, 32", "s_mov_b32 m0, s74")
    for ch in range(4): a.e(f"buffer_load_dwordx4 v235, s[{SH}:{SH+3}], s{sD4K} offen offset:{1024*ch} lds" + (NT() if OPT["nth"] else ""))
    a.e(f"s_add_u32 s74, s{sLB}, 4192", f"s_add_u32 s75, s{sD4K}, 2", "s_mov_b32 m0, s74")
    for ch in range(4): a.e(f"buffer_load_dwordx4 v235, s[{SH}:{SH+3}], s75 offen offset:{1024*ch} lds" + (NT() if OPT["nth"] else ""))
    a.e("v_mov_b32 v233, 0x7ffffff0", f"v_mov_b32 v234, s{sD4K}", "v_cmp_eq_u32 vcc, 15, v1", "v_cndmask_b32 v233, v233, v234, vcc",
        f"buffer_load_short_d16_hi v230, v233, s[{SH}:{SH+3}], 0 offen")

def gen_B(a):
    ROLE[0] = 'B'
    SH, STT, SKVT = 80, 84, 32
    sCBK, sSUB, sD, sD4K, sLB, sDV, sF1, sF2, sMASK = 40, 41, 42, 43, 44, 45, 46, 47, 72
    sSB = 36
    def b_setup():
        a.e(f"s_setprio {OPT['prioB']}") if OPT['prioB'] else None
        srd(a, SH, P_SSMK, P_SSMK+1, 4*MB); srd(a, STT, P_OUT, P_OUT+1, 8*MB)
        a.e(f"s_and_b32 s{sCBK}, s2, 15",
            f"s_lshr_b32 s{sSUB}, s2, 4",
            f"s_lshl_b32 s{sD}, s{sCBK}, 4", f"s_add_u32 s{sD}, s{sD}, s{sSUB}", f"s_lshl_b32 s{sD}, s{sD}, 2", f"s_add_u32 s{sD}, s{sD}, s3",
            f"s_lshl_b32 s{sD4K}, s{sD}, 12", f"s_mul_i32 s{sLB}, s3, {LB_STRIDE}", f"s_mov_b32 s{sMASK}, 0xffff0000")
        if OPT["fullline"]:
            a.e(f"s_and_b32 s73, s{sD}, 3", "s_lshl_b32 s73, s73, 15", f"s_bfe_u32 s74, s{sD}, 0x30003", "s_lshl_b32 s74, s74, 12", "s_add_u32 s73, s73, s74",
                f"s_bfe_u32 s74, s{sD}, 0x10002", "s_lshl_b32 s74, s74, 6", "s_add_u32 s73, s73, s74",
                f"s_lshl_b32 s74, s{sCBK}, 7", "s_add_u32 s73, s73, s74", f"s_add_u32 s{sSB}, s73, 2048")
        else:
            a.e(f"s_and_b32 s73, s{sD}, 63", "s_lshl_b32 s73, s73, 13", f"s_lshl_b32 s74, s{sCBK}, 7", "s_add_u32 s73, s73, s74", f"s_add_u32 s{sSB}, s73, 2048")
        for i in range(1, 4): a.e(f"s_add_u32 s{sSB+i}, s{sSB}, {i*2*MB}")
        a.e(f"s_lshl_b32 s73, s{sCBK}, {4+FB()}", f"s_add_u32 s{sF1}, s73, {SY_B1}", f"s_lshl_b32 s74, s{sSUB}, {FB()}", "s_add_u32 s73, s73, s74", f"s_add_u32 s{sF2}, s73, {SY_B2}")
        a.e(f"s_and_b32 s73, s{sD}, 0xfffffffe", "s_lshl_b32 s73, s73, 1", f"s_load_dword s{sDV}, s[{P_SSMD}:{P_SSMD+1}], s73")

    if OPT["fast"]:
        a.e(f"s_setprio {OPT['pB1']}") if OPT["pB1"] else None
        a.e(f"s_and_b32 s{sCBK}, s2, 15", f"s_lshr_b32 s{sSUB}, s2, 4")
    else:
        b_setup()
    stamp(a, 0, True); stamp(a, 1)
    Lidle, Lsetup = newlbl("bidle"), newlbl("bsetup")
    if OPT["pB1"]: a.e(f"s_setprio {OPT['pB1']}")
    if OPT["b1all"]:
        a.e(f"s_mov_b32 s{sCBKT}, s{sCBK}", f"s_mov_b32 s{sSUBT}, s{sSUB}")
        sh = b_setup if OPT["fast"] else None
        if OPT["hfirst"]:
            emit_B1(a, after_loads=lambda: h_dma(a, SH, sLB, sD4K), nyoung=9)
        elif OPT["hearly"] and not OPT["hlate"]:
            emit_B1(a, shadow=sh, after_stores=lambda: h_dma(a, SH, sLB, sD4K), nafter=9)
        else:
            emit_B1(a, shadow=sh)
            if not OPT["hlate"]: h_dma(a, SH, sLB, sD4K)
    else:
        a.e(f"s_cmp_lg_u32 s{sACT}, 0", f"s_cbranch_scc1 {Lidle}")
        if OPT["hearly"] and not OPT["hlate"]:
            emit_B1(a, after_stores=lambda: h_dma(a, SH, sLB, sD4K), nafter=9)
        else:
            emit_B1(a)
            if not OPT["hlate"]: h_dma(a, SH, sLB, sD4K)
        a.e(f"s_branch {Lsetup}")
        a.label(Lidle)
        if OPT["tlb"] or OPT["cpf"]: warm(a)
        fin_epoch(a)
        loc_publish(a)
        loc_issue(a, 10)
        loc_resolve(a, 10, barrier=False)
        if not OPT["hlate"]:
            for _ in range(OPT["hactdelay"]):
                a.e("v_and_b32 v12, 15, v1", f"v_lshlrev_b32 v12, {FB()}, v12", f"v_add_u32 v12, s{sF1}, v12",
                    f"buffer_load_dword v13, v12, s[{S_SYN}:{S_SYN+3}], 0 offen sc1", "s_waitcnt vmcnt(0)")
            h_dma(a, SH, sLB, sD4K)
    a.label(Lsetup)
    if OPT["pB1"]: a.e(f"s_setprio {OPT['prioB']}")
    stamp(a, 12)
    if OPT["yieldB"] >= 2 and OPT["yinit"]:
        a_state(a, sCU, 0, 233)
    LN16, B_, G4, VA, VB, VE, VS2, T = 2, 3, 4, 5, 9, 10, 11, 12
    a.e(f"v_lshlrev_b32 v{T}, 2, v1",
        f"v_add_u32 v{T+1}, {4160-32}, v{T}", "v_cmp_le_u32 vcc, 8, v1", f"v_cndmask_b32 v{T+3}, v{T}, v{T+1}, vcc",
        f"v_add_u32 v{T+1}, 8288, v{T}", "v_cmp_le_u32 vcc, 16, v1", f"v_cndmask_b32 v{T+3}, v{T+3}, v{T+1}, vcc",
        f"v_add_u32 v231, s{sLB}, v{T+3}")
    a.e(f"v_lshlrev_b32 v{T}, 3, v1", f"v_add_u32 v{T}, s{sLB}, v{T}", "v_mov_b32 v16, 0", "v_mov_b32 v17, 0", f"ds_write_b64 v{T}, v[16:17] offset:8288")
    a.e(f"v_and_b32 v{B_}, 15, v1", f"v_lshrrev_b32 v{G4}, 4, v1")
    a.e(f"v_and_b32 v{VA}, 1, v{B_}", f"v_xor_b32 v{VA}, 1, v{VA}", f"v_mul_u32_u24 v{VA}, 4160, v{VA}",
        f"v_add_u32 v{VA+1}, 1, v{B_}", f"v_lshrrev_b32 v{VA+1}, 1, v{VA+1}", f"v_lshl_add_u32 v{VA}, v{VA+1}, 2, v{VA}",
        f"v_lshlrev_b32 v{VA+1}, 4, v{G4}", f"v_sub_u32 v{VA}, v{VA}, v{VA+1}",
        f"s_add_u32 s73, s{sLB}, 16", f"v_add_u32 v{VA}, s73, v{VA}")
    for pp in range(1, 4): a.e(f"v_add_u32 v{VA+pp}, {1024*pp}, v{VA}")
    a.e(f"v_lshlrev_b32 v{VB}, 5, v{B_}", f"v_lshl_add_u32 v{VB}, v{G4}, 4, v{VB}",
        f"s_add_u32 s73, s{sLB}, {8800-480}", f"v_add_u32 v{VB}, s73, v{VB}")
    a.e(f"v_lshrrev_b32 v18, 1, v{G4}", f"v_lshlrev_b32 v19, 4, v18", f"v_lshl_add_u32 v19, v{B_}, 5, v19",
        f"v_and_b32 v18, 1, v{G4}", "v_xor_b32 v18, 1, v18", f"v_lshl_add_u32 v19, v18, 3, v19",
        f"s_add_u32 s73, s{sLB}, 8800", f"v_add_u32 v232, s73, v19")
    if OPT["fullline"]:
        a.e(f"v_lshrrev_b32 v18, 3, v{B_}", f"v_lshlrev_b32 v{VS2}, 19, v18", f"v_bfe_u32 v18, v{B_}, 1, 2", f"v_lshl_add_u32 v{VS2}, v18, 17, v{VS2}",
            f"v_and_b32 v18, 1, v{G4}", f"v_lshl_add_u32 v{VS2}, v18, 20, v{VS2}", f"v_and_b32 v18, 1, v{B_}", f"v_lshl_add_u32 v{VS2}, v18, 5, v{VS2}",
            f"v_lshrrev_b32 v18, 1, v{G4}", f"v_lshl_add_u32 v{VS2}, v18, 4, v{VS2}")
        a.e(f"v_lshlrev_b32 v{LN16}, 19, v{G4}", "v_bfe_u32 v18, v1, 2, 2", f"v_lshl_add_u32 v{LN16}, v18, 17, v{LN16}",
            "v_and_b32 v18, 3, v1", f"v_lshl_add_u32 v{LN16}, v18, 4, v{LN16}")
    else:
        a.e(f"v_lshrrev_b32 v18, 3, v{B_}", f"v_lshlrev_b32 v{VS2}, 19, v18", f"v_bfe_u32 v18, v{B_}, 2, 1", f"v_lshl_add_u32 v{VS2}, v18, 12, v{VS2}",
            f"v_and_b32 v18, 1, v{G4}", f"v_lshl_add_u32 v{VS2}, v18, 20, v{VS2}", f"v_and_b32 v18, 3, v{B_}", f"v_lshl_add_u32 v{VS2}, v18, 5, v{VS2}",
            f"v_lshrrev_b32 v18, 1, v{G4}", f"v_lshl_add_u32 v{VS2}, v18, 4, v{VS2}")
        a.e(f"v_lshlrev_b32 v{LN16}, 19, v{G4}", "v_bfe_u32 v18, v1, 3, 1", f"v_lshl_add_u32 v{LN16}, v18, 12, v{LN16}",
            "v_and_b32 v18, 7, v1", f"v_lshl_add_u32 v{LN16}, v18, 4, v{LN16}")
    a.e("v_lshlrev_b32 v18, 4, v1", f"s_add_u32 s73, s{sLB}, 8800", "v_add_u32 v19, s73, v18")
    a.e("s_waitcnt lgkmcnt(0)",
        f"s_and_b32 s73, s{sD}, 1", f"s_lshl_b32 s74, s{sDV}, 16", f"s_and_b32 s75, s{sDV}, 0xffff0000",
        "s_cmp_eq_u32 s73, 1", f"s_cselect_b32 s{sDV}, s75, s74")
    if OPT["twoflag"]:
        a.e(f"s_add_u32 s73, s{sF1}, {SY_B1B-SY_B1}", f"s_cmp_lg_u32 s{sLOC}, 0", f"s_cselect_b32 s{sF1}, s{sF1}, s73")
    a.e(f"v_and_b32 v{T}, 15, v1", f"v_lshlrev_b32 v{T}, {FB()}, v{T}", f"v_add_u32 v{T}, s{sF1}, v{T}")
    stamp(a, 5)
    wait_flags(a, T, 1, T+1, 73)
    loc_read(a, 12)
    stamp(a, 6)
    VE = 232
    ACC = 20
    SETS = [(52, 84), (116, 148)]
    U = SETS[1][1]
    for ch in range(4):
        a.e(f"buffer_load_dwordx4 {v(U+4*ch,4)}, v{LN16}, s[{STT}:{STT+3}], s{sSB+ch} offen" + LDL())
    def reads(rho, st):
        A, B = SETS[st]
        out = []
        for p in range(8):
            o = 8*rho + 128*(p & 1)
            out.append(f"ds_read2_b32 {v(A+4*p,2)}, v{VA+(p>>1)} offset0:{o} offset1:{o+1}")
            out.append(f"ds_read2_b32 {v(A+4*p+2,2)}, v{VA+(p>>1)} offset0:{o+2} offset1:{o+3}")
        outb = [f"ds_read_b128 {v(B+4*q,4)}, v{VB} offset:{512*q+32*(15-rho)}" for q in range(8)]
        return out, outb
    rhos = list(range(1, 16, 2))
    ra, rb = reads(rhos[0], 0)
    if OPT["hlate"]:
        h_dma(a, SH, sLB, sD4K)
        for ch in range(4):
            a.e(f"s_waitcnt vmcnt({3-ch+9})", f"ds_write_b128 v19, {v(U+4*ch,4)} offset:{1024*ch}")
        a.e("s_waitcnt vmcnt(0)", "ds_write_b32 v231, v230", "s_waitcnt lgkmcnt(0)")
        for r in ra: a.e(r)
    else:
        a.e("s_waitcnt vmcnt(4)", "ds_write_b32 v231, v230")
        a.e("s_waitcnt lgkmcnt(0)")
        for r in ra: a.e(r)
        for ch in range(4):
            a.e(f"s_waitcnt vmcnt({3-ch})", f"ds_write_b128 v19, {v(U+4*ch,4)} offset:{1024*ch}")
    a.e("s_waitcnt lgkmcnt(0)")
    for r in rb: a.e(r)
    if OPT["yieldB"]:
        Ly = newlbl("y0b")
        if OPT["y0"]: a.e("s_cmp_lg_u32 s2, 0", f"s_cbranch_scc1 {Ly}")
        if not (OPT["yieldB"] == 2 and OPT["ymid"]): b_yield(a, 233)
        a.label(Ly)
    Lnq = newlbl("noq")
    if OPT["a3all"]:
        a.e(f"s_mov_b32 s{sCBKT}, s{sCBK}", f"s_mov_b32 s{sSUBT}, s{sSUB}")
        if OPT["yieldB"] != 3 and not OPT["qlate"]: emit_B3_pre(a)
    else:
        a.e(f"s_cmp_lg_u32 s{sACT}, 0", f"s_cbranch_scc1 {Lnq}")
        emit_B3_pre(a)
        a.label(Lnq)
    stamp(a, 7)
    for ci, rho in enumerate(rhos):
        st = ci & 1
        A, B = SETS[st]
        if ci+1 < len(rhos):
            ra, rb = reads(rhos[ci+1], st ^ 1); nxt = ra[0:2] + rb + ra[2:]
        else:
            nxt = [f"ds_read_b64 {v(SETS[st^1][0]+2*j,2)}, v{VE} offset:{512*j}" for j in range(8)]
        if OPT["yieldB"] == 3: b_yield_step(a, 233, ci == len(rhos)-1)
        if OPT["yieldB"] == 2 and OPT["ymid"] and ci == OPT["ymid"]: b_yield(a, 233)
        a.e("s_waitcnt lgkmcnt(0)")
        n = 0
        for p in range(8):
            for q in range(8-p):
                j = p+q
                c = "0" if (ci == 0 and p == 0) else v(ACC+4*j, 4)
                a.e(f"v_mfma_f32_16x16x32_bf16 {v(ACC+4*j,4)}, {v(A+4*p,4)}, {v(B+4*q,4)}, {c}")
                if n < len(nxt): a.e(nxt[n])
                n += 1
    KVR = SETS[0][0]; TMv = 116
    if (OPT["yieldB"] == 3 or OPT["qlate"]) and OPT["a3all"]: emit_B3_pre(a)
    a.e("s_waitcnt lgkmcnt(0)")
    stamp(a, 8)
    sts = []
    for jp in range(4):
        base = TMv + 8*jp
        for hh in range(2):
            j = 2*jp+hh
            w0, w1 = KVR+2*j, KVR+2*j+1
            t = 172
            a.e(f"v_and_b32 v{t}, s{sMASK}, v{w1}", f"v_lshlrev_b32 v{t+1}, 16, v{w1}",
                f"v_and_b32 v{t+2}, s{sMASK}, v{w0}", f"v_lshlrev_b32 v{t+3}, 16, v{w0}")
            for r in range(4):
                a.e(f"v_fma_f32 v{t+r}, v{t+r}, s{sDV}, v{ACC+4*j+r}")
            a.e(f"v_cvt_pk_bf16_f32 v{base+2*hh}, v{t}, v{t+1}", f"v_cvt_pk_bf16_f32 v{base+2*hh+1}, v{t+2}, v{t+3}")
        a.e(f"v_permlane16_swap_b32 v{base}, v{base+2}", f"v_permlane16_swap_b32 v{base+1}, v{base+3}")
        sts.append(f"buffer_store_dwordx4 {v(base,4)}, v{VS2}, s[{STT}:{STT+3}], s{sSB+jp} offen")
    dual_store(a, sts)
    signal(a, sF2, 12, bloc=True)
    stamp(a, 9)
    if not OPT["a3all"]: a.e(f"s_cmp_lg_u32 s{sACT}, 0", "s_cbranch_scc1 L_fin")
    emit_B3(a)
    if OPT["wbl2"]:
        Lw = newlbl("wb")
        a.e("s_waitcnt vmcnt(0)", "s_cmp_lg_u32 s3, 0", f"s_cbranch_scc1 {Lw}")
        if OPT["wbl2"] == 1: a.e(f"s_cmp_lg_u32 s{sSUB}, 15", f"s_cbranch_scc1 {Lw}")
        if OPT["wbl2"] == 2: a.e(f"s_and_b32 s92, s{sSUB}, 3", "s_cmp_lg_u32 s92, 3", f"s_cbranch_scc1 {Lw}")
        a.e("buffer_wbl2 sc1")
        a.label(Lw)
    pair_chkB(a)
    a.e("s_branch L_fin")

SY_PA = 4096 + 163840
SY_PB = SY_PA + 16384
def hwid(a, dst):
    a.e(f"s_getreg_b32 s{dst}, hwreg(HW_REG_HW_ID)", f"s_lshr_b32 s{dst}, s{dst}, 8", f"s_and_b32 s{dst}, s{dst}, 0xff",
        "s_getreg_b32 s93, hwreg(HW_REG_XCC_ID)", "s_and_b32 s93, s93, 15", "s_lshl_b32 s93, s93, 8", f"s_or_b32 s{dst}, s{dst}, s93")
def pair_pubA(a):
    if not OPT.get("pair"): return
    L = newlbl("ppa")
    a.e("s_cmp_lg_u32 s3, 0", f"s_cbranch_scc1 {L}")
    hwid(a, 92)
    a.e(f"s_lshl_b32 s93, s{sCU}, 6", f"s_add_u32 s93, s93, {SY_PA}", "v_mov_b32 v240, s93", "v_mov_b32 v241, s92", "s_mov_b64 exec, 1",
        f"buffer_store_dword v241, v240, s[{S_SYN}:{S_SYN+3}], 0 offen sc1", "s_mov_b64 exec, -1")
    a.label(L)
def pair_chkB(a):
    if not OPT.get("pair"): return
    L = newlbl("ppb")
    a.e("s_cmp_lg_u32 s3, 0", f"s_cbranch_scc1 {L}")
    hwid(a, 92)
    a.e(f"s_lshl_b32 s93, s{sCU}, 6", f"s_add_u32 s93, s93, {SY_PA}", "v_mov_b32 v240, s93",
        f"buffer_load_dword v241, v240, s[{S_SYN}:{S_SYN+3}], 0 offen sc1", "s_waitcnt vmcnt(0)", "v_readfirstlane_b32 s93, v241",
        "s_cmp_lg_u32 s92, s93", "s_cselect_b32 s92, 1, 0", f"s_lshl_b32 s93, s{S_TGT}, 1", "s_or_b32 s92, s92, s93",
        f"s_lshl_b32 s93, s{sCU}, 6", f"s_add_u32 s93, s93, {SY_PB}", "v_mov_b32 v240, s93", "v_mov_b32 v241, s92", "s_mov_b64 exec, 1",
        f"buffer_store_dword v241, v240, s[{S_SYN}:{S_SYN+3}], 0 offen sc1", "s_mov_b64 exec, -1", "s_waitcnt vmcnt(0)")
    a.label(L)
def pair_sum(a):
    if not OPT.get("pair"): return
    L1, L2, L3 = newlbl("ps"), newlbl("psd"), newlbl("psp")
    a.e("v_lshlrev_b32 v2, 6, v1", f"v_add_u32 v2, {SY_PB}, v2", f"s_lshl_b32 s49, s{S_TGT}, 1", "s_mov_b32 s48, 0")
    a.label(L1)
    for i in range(4): a.e(f"s_mov_b32 s50, {4096*i}", f"buffer_load_dword v{4+i}, v2, s[{S_SYN}:{S_SYN+3}], s50 offen sc1")
    a.e("s_add_u32 s48, s48, 1", "s_waitcnt vmcnt(0)")
    for i in range(4): a.e(f"v_xor_b32 v{4+i}, s49, v{4+i}")
    a.e("v_or_b32 v8, v4, v5", "v_or_b32 v9, v6, v7", "v_or_b32 v8, v8, v9", "v_lshrrev_b32 v8, 1, v8", "v_cmp_ne_u32 vcc, 0, v8", f"s_cbranch_vccz {L2}",
        f"s_cmp_lt_u32 s48, {SPIN_LIMIT}", f"s_cbranch_scc1 {L1}")
    a.label(L2)
    a.e("s_mov_b32 s48, 0")
    for i in range(4): a.e(f"v_cmp_eq_u32 vcc, 1, v{4+i}", "s_bcnt1_i32_b64 s49, vcc", "s_add_u32 s48, s48, s49")
    a.e(f"s_mov_b32 s92, s{P_DBG}", f"s_mov_b32 s93, s{P_DBG+1}", "s_mov_b32 s94, 256", "s_mov_b32 s95, 0x00020000", "v_mov_b32 v4, 0", "v_mov_b32 v5, s48", "s_mov_b64 exec, 1",
        "buffer_store_dword v5, v4, s[92:95], 0 offen", "s_mov_b64 exec, -1")
    a.e("s_mul_i32 s48, s48, 10", "s_memrealtime s[50:51]", "s_waitcnt lgkmcnt(0)", "s_mov_b32 s49, s50")
    a.label(L3)
    a.e("s_memrealtime s[50:51]", "s_waitcnt lgkmcnt(0)", "s_sub_u32 s50, s50, s49", "s_cmp_lt_u32 s50, s48", f"s_cbranch_scc1 {L3}")

def warm(a):
    if OPT["tlb"]:
        L = newlbl("warm")
        a.e("s_cmp_lg_u32 s3, 3", f"s_cbranch_scc1 {L}")
        pages = [(P_WS, WS_I1), (P_WS, WS_I1+2*MB), (P_WS, WS_I2), (P_WS, WS_I2+2*MB), (P_WS, WS_SYNC+512*1024),
                 (P_OUT, 0), (P_OUT, 2*MB), (P_OUT, 4*MB), (P_OUT, 6*MB),
                 (P_WR, 0), (P_WR, 2*MB), (P_WI, 0), (P_WI, 2*MB), (P_SSMK, 0), (P_SSMK, 2*MB), (P_Q, 0), (P_Q, 2*MB)]
        a.e("v_mov_b32 v240, 0", "v_mov_b32 v241, 0")
        for i, (p, off) in enumerate(pages):
            a.e(f"s_add_u32 s92, s{p}, {off}", f"s_addc_u32 s93, s{p+1}, 0", f"v_writelane_b32 v240, s92, {i}", f"v_writelane_b32 v241, s93, {i}")
        a.e(f"s_mov_b64 exec, {(1 << len(pages)) - 1}", "global_load_dword v242, v[240:241], off", "s_mov_b64 exec, -1")
        a.label(L)
    if OPT["cpf"]:
        L = newlbl("warm")
        a.e("s_cmp_ge_u32 s3, 2", f"s_cbranch_scc1 {L}")
        a.e("s_getpc_b64 s[92:93]")
        a.e("s_lshr_b32 s96, s2, 4", "s_and_b32 s96, s96, 15", "s_lshl_b32 s96, s96, 1", "s_add_u32 s96, s96, s3", "s_min_u32 s96, s96, 25",
            "s_lshl_b32 s96, s96, 10", f"s_sub_u32 s92, s92, {OPT['cpf']}", "s_subb_u32 s93, s93, 0",
            "s_add_u32 s92, s92, s96", "s_addc_u32 s93, s93, 0", "v_lshlrev_b32 v240, 4, v1",
            "global_load_dwordx4 v[236:239], v240, s[92:93]")
        a.label(L)

def common_rest(a):
    srd(a, S_SYN, P_WS, P_WS+1, 1*MB, add=WS_SYNC)
    a.e(f"s_mov_b32 s92, {WS_SYNC+SY_E}", f"s_load_dword s{S_TGT}, s[{P_WS}:{P_WS+1}], s92")
    a.e(f"s_mov_b32 s98, {64<<FA()}", f"s_mov_b32 s99, {128<<FA()}", f"s_mov_b32 s100, {192<<FA()}")
    if OPT["fast"] >= 2: return
    a.e(f"s_and_b32 s{sCU}, s2, 255", f"s_bitcmp0_b32 s2, 3", f"s_cselect_b32 s{sACT}, 1, 0",
        f"s_lshr_b32 s48, s{sCU}, 4", "s_lshl_b32 s48, s48, 3", f"s_and_b32 s49, s{sCU}, 7", "s_add_u32 s48, s48, s49",
        f"s_and_b32 s{sCBKT}, s48, 15", "s_lshr_b32 s48, s48, 4", "s_lshl_b32 s48, s48, 1", "s_lshr_b32 s49, s2, 8", f"s_add_u32 s{sSUBT}, s48, s49")

def gen_kernel():
    a = Asm(); a.name = "p"
    a.e("s_cmp_ge_u32 s2, 512", "s_cbranch_scc1 L_exit")
    if OPT["swap"]: a.e("s_xor_b32 s2, s2, 256")
    if OPT.get("spinT") or OPT.get("span"): a.e("s_memrealtime s[94:95]")
    if OPT.get("spinC"): a.e("s_memtime s[94:95]")
    if gen.PROF: a.e("s_memrealtime s[98:99]", "s_waitcnt lgkmcnt(0)", "v_writelane_b32 v247, s98, 13")
    a.e(f"s_load_dwordx16 s[4:19], s[0:1], 0", f"s_load_dwordx8 s[20:27], s[0:1], 64")
    a.e("v_lshrrev_b32 v1, 6, v0", "v_readfirstlane_b32 s3, v1", "v_and_b32 v1, 63, v0", "s_waitcnt lgkmcnt(0)")
    if OPT["fast"] >= 2:
        a.e(f"s_and_b32 s{sCU}, s2, 255")
    else:
        common_rest(a)
    a.e("s_cmp_ge_u32 s2, 256", "s_cbranch_scc1 L_A")
    gen_B(a)
    a.label("L_A")
    gen_A(a)
    a.label("L_fin")
    pass
    if gen.PROF:
        a.e("s_waitcnt vmcnt(0)")
        stamp(a, 14); stamp(a, 15, True)
        prof_dump(a)
    if OPT.get("span"):
        Ls = newlbl("span")
        a.e("s_cmp_lg_u32 s3, 0", f"s_cbranch_scc1 {Ls}", "s_waitcnt vmcnt(0)", "s_memrealtime s[92:93]",
            f"s_add_u32 s32, s{P_WS}, {gen.WS_PROF}", f"s_addc_u32 s33, s{P_WS+1}, 0", f"s_mov_b32 s34, {MB}", "s_mov_b32 s35, 0x00020000",
            "s_lshl_b32 s36, s2, 3", "s_waitcnt lgkmcnt(0)", "v_mov_b32 v2, s36", "v_mov_b32 v4, s94", "v_mov_b32 v5, s92", "s_mov_b64 exec, 1",
            "buffer_store_dwordx2 v[4:5], v2, s[32:35], 0 offen", "s_waitcnt vmcnt(0)")
        a.label(Ls)
    if OPT.get("spinC"):
        a.label("L_spinc")
        a.e("s_memtime s[92:93]", "s_waitcnt lgkmcnt(0)", "s_sub_u32 s92, s92, s94", f"s_cmp_lt_u32 s92, {OPT['spinC']}", "s_cbranch_scc1 L_spinc")
    if OPT.get("spinT"):
        a.label("L_spin")
        a.e("s_memrealtime s[92:93]", "s_waitcnt lgkmcnt(0)", "s_sub_u32 s92, s92, s94", f"s_cmp_lt_u32 s92, {OPT['spinT']}", "s_cbranch_scc1 L_spin")
    a.label("L_exit")
    a.e("s_endpgm")
    return a

def prof_dump(a):
    if OPT.get("dbgwg", -1) >= 0:
        L = newlbl("nodbg")
        a.e(f"s_cmp_lg_u32 s2, {OPT['dbgwg']}", f"s_cbranch_scc1 {L}", "s_cmp_lg_u32 s3, 0", f"s_cbranch_scc1 {L}")
        a.e("v_readlane_b32 s36, v247, 1", "v_readlane_b32 s37, v247, 13", "v_mov_b32 v250, s36", "v_mov_b32 v251, s37",
            "v_cmp_eq_u32 vcc, 0, v1", "v_cndmask_b32 v250, v250, v251, vcc", "v_cmp_eq_u32 vcc, 13, v1", "v_cndmask_b32 v250, v250, v251, vcc",
            "v_cmp_eq_u32 vcc, 15, v1", "v_cndmask_b32 v250, v250, v251, vcc", "v_sub_u32 v250, v247, v250",
            f"s_mov_b32 s32, s{P_DBG}", f"s_mov_b32 s33, s{P_DBG+1}", "s_mov_b32 s34, 256", "s_mov_b32 s35, 0x00020000",
            "v_lshlrev_b32 v251, 2, v1", "s_mov_b64 exec, 0xffff", "buffer_store_dword v250, v251, s[32:35], 0 offen", "s_waitcnt vmcnt(0)", "s_mov_b64 exec, -1")
        a.label(L)
        return

    a.e(f"s_add_u32 s32, s{P_WS}, {gen.WS_PROF}", f"s_addc_u32 s33, s{P_WS+1}, 0", f"s_mov_b32 s34, {MB}", "s_mov_b32 s35, 0x00020000")
    a.e("s_lshl_b32 s36, s2, 2", "s_add_u32 s36, s36, s3", "s_lshl_b32 s36, s36, 6",
        "v_lshlrev_b32 v250, 2, v1", "v_add_u32 v250, s36, v250", "s_mov_b64 exec, 0xffff",
        "buffer_store_dword v247, v250, s[32:35], 0 offen")
    if OPT.get("fine"):
        a.e("v_add_u32 v250, 0x40000, v250", "buffer_store_dword v246, v250, s[32:35], 0 offen")
    a.e("s_waitcnt vmcnt(0)")
PROFREGS = []

def build(path):
    a = gen_kernel()
    name = "concat_heads__spectral_gfnet__ssm_conv_h3__prompt_kernel"
    s = open("concat_heads__spectral_gfnet__ssm_conv_h3__prompt.s.ref").read().split("; Override")[0]
    s += f"; @launch grid=(512,1,1) block=(256,1,1) lds={LDS_BYTES}\n"
    s += '.amdgcn_target "amdgcn-amd-amdhsa--gfx950"\n' + gen.header(name) + a.text() + gen.descriptor(name, 256, 102)
    s = s.replace(" lds nt", " nt lds")
    open(path, "w").write(s)
    return s

if __name__ == "__main__":
    out = sys.argv[1] if len(sys.argv) > 1 else "pers.s"
    gen.PROF = "prof" in sys.argv[2:]
    for x in sys.argv[2:]:
        if "=" in x:
            k, val = x.split("="); OPT[k] = int(val)
    if OPT["wsend"]:
        base = OPT["wsend"]*MB
        WS_I1, WS_KVT, WS_I2, WS_TT, WS_SYNC = base, base+4*MB, base+8*MB, base+12*MB, base+20*MB
    s = build(out)
    print(out, len(s))
```

```python
import sys
from asmgen import *
import gen
from gen import srd, MB, WS_I1, WS_KVT, WS_I2, WS_TT, KA

PHASE = [1]
def dstamp(a, k, inv=False):
    if not OPT.get("dmax"): return
    a.e("s_memrealtime s[96:97]", "s_waitcnt lgkmcnt(0)", f"v_writelane_b32 v242, s96, {k}")
SY_DG = 4096 + 131072
def dpublish(a, sT):
    if not OPT.get("dmax"): return
    L = newlbl("dp")
    a.e("s_cmp_lg_u32 s3, 0", f"s_cbranch_scc1 {L}", f"s_lshl_b32 s92, s{sT}, 5", f"s_add_u32 s92, s92, {SY_DG}",
        "v_lshlrev_b32 v240, 2, v1", "v_add_u32 v240, s92, v240", "s_mov_b64 exec, 0xff",
        f"buffer_store_dword v242, v240, s[{S_SYN}:{S_SYN+3}], 0 offen sc1", "s_mov_b64 exec, -1")
    a.label(L)
def dreduce(a):
    if not OPT.get("dmax"): return
    a.e(f"s_mov_b32 s92, s{P_DBG}", f"s_mov_b32 s93, s{P_DBG+1}", "s_mov_b32 s94, 256", "s_mov_b32 s95, 0x00020000")
    a.e("v_lshlrev_b32 v2, 5, v1", f"v_add_u32 v2, {SY_DG}, v2")
    for k in range(7):
        for i in range(4):
            a.e(f"s_mov_b32 s50, {2048*i + 4*k}", f"buffer_load_dword v{10+i}, v2, s[{S_SYN}:{S_SYN+3}], s50 offen sc1")
        a.e("s_waitcnt vmcnt(0)")
        if k == 0:
            a.e("v_min_u32 v10, v10, v11", "v_min_u32 v12, v12, v13", "v_min_u32 v10, v10, v12", "s_mov_b32 s51, -1")
            for l in range(64): a.e(f"v_readlane_b32 s48, v10, {l}", "s_min_u32 s51, s51, s48")
            a.e("s_mov_b32 s45, s51")
            continue
        for i in range(4):
            a.e(f"v_subrev_u32 v{10+i}, s45, v{10+i}", f"v_lshlrev_b32 v{10+i}, 8, v{10+i}", f"v_add_u32 v14, {64*i}, v1", f"v_or_b32 v{10+i}, v{10+i}, v14")
        a.e("v_max_u32 v10, v10, v11", "v_max_u32 v12, v12, v13", "v_max_u32 v10, v10, v12", "s_mov_b32 s51, 0")
        for l in range(64): a.e(f"v_readlane_b32 s48, v10, {l}", "s_max_u32 s51, s51, s48")
        a.e("s_lshr_b32 s48, s51, 8", "s_and_b32 s49, s51, 255", "v_mov_b32 v14, s48", "v_mov_b32 v15, s49", f"v_mov_b32 v16, {8*(k-1)}", "s_mov_b64 exec, 1",
            "buffer_store_dwordx2 v[14:15], v16, s[92:95], 0 offen", "s_mov_b64 exec, -1")
DMAP_A = {1: 0, 5: 1, 6: 2, 7: 3, 8: 4, 9: 5}
DMAP_B = {}
ROLE = ["B"]
def fstamp(a, i):
    if OPT.get("fine") != PHASE[0]: return
    a.e('s_memtime s[96:97]', 's_waitcnt lgkmcnt(0)', f'v_writelane_b32 v246, s96, {i}')
def stamp(a, i, real=False):
    if OPT.get("dmax"):
        m = DMAP_A if ROLE[0] == "A" else DMAP_B
        if i in m and i != 14: dstamp(a, m[i])
        return
    if not gen.PROF: return
    a.e('s_memrealtime s[96:97]' if real else 's_memtime s[96:97]', 's_waitcnt lgkmcnt(0)', f'v_writelane_b32 v247, s96, {i}')

WBYTES = 2048*513*2
LB_STRIDE = 12896
LDS_BYTES = 53248
SPIN_LIMIT = 400000
OPT = dict(prioA=0, prioB=0, sleep=0, nt=1, wsend=0, ntout=1, ntw=1, wlate=1, hlate=1, qA=1, fsa=6, fsb=6, shrink=0, loc=1, forceloc=-1, ldloc=1, bdelay=0, earlypub=1, wpos=1, optst=1, locflag=1, hearly=1, twoflag=1, pA1i=-1, pB1=0, ntscr=0, a3all=1, ntk=1, ntv=1, ntx=1, nth=1, hactdelay=0, b1all=1, bactwait=1, pA1a=-1, grp=1, yieldB=0, ylim=40, tlb=0, cpf=0, spec2=1, y0=0, yinit=1, ymid=0, swap=0, a1all=1, cearly=1, fullline=1, qlate=0, hfirst=0, pairx=0, gld=0, t0late=0, i2ld=0, outB=-1, b3w=0, wbl2=0, fast=0, latem=0, ilv=0, wpoll=0)
def NTOB(): return NTO() if OPT['outB'] < 0 else {0: '', 1: ' nt', 2: ' sc1', 3: ' sc1 nt'}[OPT['outB']]
def GLD(): return {0: 'sc1', 1: 'nt', 2: ''}[OPT['gld']]
def NMEM(): return 32 if OPT['b1all'] else 48
def LDL(): return {0: ' sc1', 1: ' nt', 2: ' sc1 nt'}[OPT['ldloc']]
def FA(): return OPT['fsa']
def FB(): return OPT['fsb']
def NT(): return ' nt' if OPT['nt'] else ''
def NTO(): return {0: '', 1: ' nt', 2: ' sc1', 3: ' sc1 nt'}[OPT['ntout']]

P_X, P_WR, P_WI, P_Q, P_K, P_V, P_SHK, P_SSMK, P_SSMD, P_OUT, P_DBG, P_WS = 4, 6, 8, 10, 12, 14, 16, 18, 20, 22, 24, 26
S_DBG = 28
def eidx(r): return (r & 3) + 8*(r >> 2)

_lbl = [0]
def newlbl(p):
    _lbl[0] += 1
    return f"L_{p}_{_lbl[0]}"

WS_SYNC = 20*MB
S_SYN = 28
S_TGT = 101
SY_E, SY_A1, SY_A2, SY_B1, SY_B2 = 0, 4096, 4096+16384, 4096+32768, 4096+49152
sACT, sCBKT, sSUBT, sCU = 88, 89, 90, 91
sLOC, sXEXP = 79, 0
S_DBG = 12
def signal(a, s_off, vt, nafter=0, bloc=False):
    L = newlbl("sig")
    a.e(f"s_waitcnt vmcnt({nafter})", "s_barrier", "s_cmp_lg_u32 s3, 0", f"s_cbranch_scc1 {L}",
        f"v_mov_b32 v{vt}, s{s_off}", f"v_mov_b32 v{vt+1}, s{S_TGT}", "s_mov_b64 exec, 1")
    st = f"buffer_store_dword v{vt+1}, v{vt}, s[{S_SYN}:{S_SYN+3}], 0 offen"
    if bloc and OPT["locflag"]:
        dual_store(a, [st])
    else:
        a.e(st + " sc1")
    a.e("s_mov_b64 exec, -1")
    if OPT.get("flagwait"): a.e("s_waitcnt vmcnt(0)")
    a.label(L)

def wait_flags(a, vaddr, nload, vt, s_cnt, pre_barrier=None, solo=False, skip0=None):
    L = newlbl("poll"); Ls = newlbl("pdone"); Lr = newlbl("prest")
    if not solo: a.e("s_cmp_lg_u32 s3, 0", f"s_cbranch_scc1 {Ls}")
    a.e(f"s_mov_b32 s{s_cnt}, 0")
    a.label(L)
    offs = ["0", "s98", "s99", "s100"]
    for i in range(nload):
        a.e(f"buffer_load_dword v{vt+i}, v{vaddr}, s[{S_SYN}:{S_SYN+3}], {offs[i]} offen sc1")
    a.e(f"s_add_u32 s{s_cnt}, s{s_cnt}, 1", "s_waitcnt vmcnt(0)")
    for i in range(nload):
        a.e(f"v_xor_b32 v{vt+i}, s{S_TGT}, v{vt+i}")
    if skip0 is not None:
        a.e(f"v_readfirstlane_b32 s{skip0}, v{vt}", f"v_writelane_b32 v{vt}, 0, 0")
    for i in range(1, nload):
        a.e(f"v_or_b32 v{vt}, v{vt}, v{vt+i}")
    if OPT["shrink"]:
        a.e(f"v_cmp_ne_u32 vcc, 0, v{vt}", "s_and_b64 exec, exec, vcc", f"s_cbranch_execz {Lr}")
    else:
        a.e(f"v_cmp_ne_u32 vcc, 0, v{vt}", f"s_cbranch_vccz {Lr}")
    if OPT["sleep"]: a.e(f"s_sleep {OPT['sleep']}")
    a.e(f"s_cmp_lt_u32 s{s_cnt}, {SPIN_LIMIT}", f"s_cbranch_scc1 {L}")
    a.label(Lr)
    if OPT["shrink"]: a.e("s_mov_b64 exec, -1")
    a.label(Ls)
    if pre_barrier: a.e(pre_barrier)
    if not solo: a.e("s_barrier")

SY_ID = 4096 + 65536
SY_B1B = 4096 + 98304
SY_AS = 4096 + 114688
LOCW = 53244
def loc_publish(a):
    L = newlbl("pub")
    a.e("s_getreg_b32 s92, hwreg(HW_REG_XCC_ID)", "s_and_b32 s92, s92, 15", f"s_lshl_b32 s{sXEXP}, s{S_TGT}, 4", f"s_or_b32 s{sXEXP}, s{sXEXP}, s92")
    a.e("s_cmp_lg_u32 s3, 0", f"s_cbranch_scc1 {L}")
    if OPT["b1all"] and OPT["grp"]:
        a.e("s_and_b32 s92, s2, 15", "s_lshl_b32 s92, s92, 4", "s_lshr_b32 s93, s2, 4", "s_add_u32 s92, s92, s93", "s_lshl_b32 s92, s92, 6", f"s_add_u32 s92, s92, {SY_ID}")
    else:
        a.e("s_lshr_b32 s92, s2, 3", f"s_lshr_b32 s93, s{sCU}, 4", "s_add_u32 s93, s93, 32", "s_cmp_ge_u32 s2, 256", "s_cselect_b32 s92, s93, s92",
            "s_and_b32 s93, s2, 7", f"s_mul_i32 s93, s93, {NMEM()}", "s_add_u32 s92, s92, s93", "s_lshl_b32 s92, s92, 6", f"s_add_u32 s92, s92, {SY_ID}")
    a.e(
        "v_mov_b32 v10, s92", f"v_mov_b32 v11, s{sXEXP}", "s_mov_b64 exec, 1",
        f"buffer_store_dword v11, v10, s[{S_SYN}:{S_SYN+3}], 0 offen sc1", "s_mov_b64 exec, -1")
    a.label(L)

def loc_issue(a, vt):
    if OPT["b1all"] and OPT["grp"]:
        a.e(f"v_min_u32 v{vt}, 15, v1", "s_and_b32 s93, s2, 15", "s_lshl_b32 s93, s93, 4")
    else:
        a.e(f"v_min_u32 v{vt}, {NMEM()-1}, v1", "s_and_b32 s93, s2, 7", f"s_mul_i32 s93, s93, {NMEM()}")
    a.e(f"v_add_u32 v{vt}, s93, v{vt}",
        f"v_lshlrev_b32 v{vt}, 6, v{vt}", f"v_add_u32 v{vt}, {SY_ID}, v{vt}")
    L = newlbl("li")
    a.e("s_cmp_lg_u32 s3, 0", f"s_cbranch_scc1 {L}")
    a.e(f"buffer_load_dword v{vt+1}, v{vt}, s[{S_SYN}:{S_SYN+3}], 0 offen sc1")
    a.label(L)

def loc_resolve(a, vt, barrier=True, nafter=0):
    L, Ld, Ls = newlbl("locp"), newlbl("locd"), newlbl("locs")
    a.e("s_cmp_lg_u32 s3, 0", f"s_cbranch_scc1 {Ls}")
    if OPT["forceloc"] >= 0:
        a.e(f"s_waitcnt vmcnt({nafter})", f"s_mov_b32 s93, {OPT['forceloc']}")
    else:
        a.e("s_mov_b32 s92, 0", f"s_waitcnt vmcnt({nafter})")
        a.label(L)
        a.e(f"v_xor_b32 v{vt+2}, s{sXEXP}, v{vt+1}", f"v_lshrrev_b32 v{vt+3}, 4, v{vt+2}", "s_add_u32 s92, s92, 1",
            f"v_cmp_ne_u32 vcc, 0, v{vt+3}", f"s_cbranch_vccz {Ld}",
            f"s_cmp_ge_u32 s92, {SPIN_LIMIT}", f"s_cbranch_scc1 {Ld}",
            f"buffer_load_dword v{vt+1}, v{vt}, s[{S_SYN}:{S_SYN+3}], 0 offen sc1", "s_waitcnt vmcnt(0)", f"s_branch {L}")
        a.label(Ld)
        a.e(f"v_cmp_ne_u32 vcc, 0, v{vt+2}", "s_cmp_eq_u64 vcc, 0", "s_cselect_b32 s93, 1, 0")
    a.e(f"s_mov_b32 s{sLOC}, s93", f"v_mov_b32 v{vt+2}, {LOCW}", f"v_mov_b32 v{vt+3}, s93", f"ds_write_b32 v{vt+2}, v{vt+3}", "s_waitcnt lgkmcnt(0)")
    a.label(Ls)
    if barrier:
        a.e("s_barrier")
        loc_read(a, vt)

def loc_read(a, vt):
    a.e(f"v_mov_b32 v{vt+2}, {LOCW}", f"ds_read_b32 v{vt+3}, v{vt+2}", "s_waitcnt lgkmcnt(0)", f"v_readfirstlane_b32 s{sLOC}, v{vt+3}")

def dual_store(a, lines):
    L1, L2 = newlbl("stg"), newlbl("stl")
    a.e(f"s_cmp_eq_u32 s{sLOC}, 0", f"s_cbranch_scc1 {L1}")
    for l in lines: a.e(l)
    a.e(f"s_branch {L2}")
    a.label(L1)
    for l in lines: a.e(l + " sc1" if "buffer_store" in l else l)
    a.label(L2)

def a_state(a, sT, st, vt):
    L = newlbl("ast")
    a.e("s_cmp_lg_u32 s3, 0", f"s_cbranch_scc1 {L}", f"s_lshl_b32 s92, s{sT}, 6", f"s_add_u32 s92, s92, {SY_AS}",
        f"s_lshl_b32 s93, s{S_TGT}, 2", f"s_or_b32 s93, s93, {st}", f"v_mov_b32 v{vt}, s92", f"v_mov_b32 v{vt+1}, s93", "s_mov_b64 exec, 1",
        f"buffer_store_dword v{vt+1}, v{vt}, s[{S_SYN}:{S_SYN+3}], 0 offen", "s_mov_b64 exec, -1")
    a.label(L)

def y_ld(vt): return f"buffer_load_dword v{vt+1}, v{vt}, s[{S_SYN}:{S_SYN+3}], 0 offen " + ("sc1" if OPT.get("ysc", 1) else "nt")
def b_yield(a, vt):
    L, Ld = newlbl("yl"), newlbl("yd")
    a.e(f"s_lshl_b32 s92, s{sCU}, 6", f"s_add_u32 s92, s92, {SY_AS}", f"v_mov_b32 v{vt}, s92", f"s_lshl_b32 s75, s{S_TGT}, 2", "s_mov_b32 s92, 0")
    a.e(f"s_or_b32 s75, s75, {2 if OPT['yieldB'] == 2 else 1}")
    if OPT["yieldB"] == 3:
        a.e(y_ld(vt)); return
    a.label(L)
    a.e(y_ld(vt), "s_add_u32 s92, s92, 1", "s_waitcnt vmcnt(0)",
        f"v_readfirstlane_b32 s93, v{vt+1}", "s_cmp_lg_u32 s93, s75" if OPT["yieldB"] == 1 else "s_cmp_eq_u32 s93, s75", f"s_cbranch_scc1 {Ld}",
        f"s_cmp_lt_u32 s92, {OPT['ylim']}", f"s_cbranch_scc1 {L}")
    a.label(Ld)

def b_yield_step(a, vt, last):
    L, Ld = newlbl("ys"), newlbl("ysd")
    a.label(L)
    a.e("s_waitcnt vmcnt(0)", f"v_readfirstlane_b32 s93, v{vt+1}", "s_cmp_lg_u32 s93, s75", f"s_cbranch_scc1 {Ld}",
        f"s_cmp_ge_u32 s92, {OPT['ylim']}", f"s_cbranch_scc1 {Ld}", "s_add_u32 s92, s92, 1", y_ld(vt), f"s_branch {L}")
    a.label(Ld)
    if not last: a.e(y_ld(vt))

def fin_epoch(a):
    a.e("s_waitcnt lgkmcnt(0)", f"s_add_u32 s{S_TGT}, s{S_TGT}, 1")

def bump(a, s_off, vt):
    a.e(f"v_mov_b32 v{vt}, s{s_off}", f"v_mov_b32 v{vt+1}, s{S_TGT}", "s_mov_b64 exec, 1",
        f"buffer_store_dword v{vt+1}, v{vt}, s[{S_SYN}:{S_SYN+3}], 0 offen sc1", "s_mov_b64 exec, -1")

F_M, F_G, F_IN0, F_IN1, F_OUTOFF, F_WR, F_RD0, F_RD1, F_MM = 2, 3, 4, 5, 6, 7, 8, 9, 10
F_T = 11
F_IN, F16RE, F16IM, F_TWC, F_TWS, F_DRE, F_DIM, F_P, F_TMP, F32RE, F32IM = 16, 48, 52, 56, 88, 120, 136, 152, 168, 176, 192
SI_OFF, SO_OFF = 52, 68
SO_LIST = [68, 69, 70, 71, 76, 77, 78, 79]

def fft512_addr(a, s_sa, s_cb):
    a.e(f"v_and_b32 v{F_M}, 15, v1", f"v_lshrrev_b32 v{F_G}, 4, v1")
    a.e(f"v_lshlrev_b32 v{F_IN0}, 20, v{F_G}", f"v_lshl_add_u32 v{F_IN0}, v{F_M}, 2, v{F_IN0}", f"v_add_u32 v{F_IN1}, {4*8192}, v{F_IN0}")
    a.e(f"s_lshl_b32 s48, s{s_sa}, 11", f"s_lshl_b32 s49, s{s_cb}, 6", "s_add_u32 s48, s48, s49",
        "s_lshl_b32 s50, s3, 16", "s_add_u32 s48, s48, s50")
    for aa in range(4):
        for i in range(4):
            a.e(f"s_add_u32 s{SI_OFF+4*aa+i}, s48, {(32*i+aa)*8192}")

def fft512_loads(a, SIN, mod=""):
    for hh in range(2):
        for aa in range(4):
            for i in range(4):
                a.e(f"buffer_load_dword v{F_IN+16*hh+4*aa+i}, v{F_IN0+hh}, s[{SIN}:{SIN+3}], s{SI_OFF+4*aa+i} offen {mod}")

def fft512_addr2(a, s_sa, s_cb, orow, ostr):
    a.e(f"s_mov_b32 s51, {16*ostr}", f"v_mul_lo_u32 v{F_OUTOFF}, v{F_M}, s51", f"v_lshl_add_u32 v{F_OUTOFF}, v{F_G}, 4, v{F_OUTOFF}")
    a.e(f"s_mul_i32 s48, s{s_sa}, {orow}", f"s_lshl_b32 s49, s{s_cb}, 6", "s_add_u32 s48, s48, s49",
        f"s_mul_i32 s50, s3, {4*ostr}", "s_add_u32 s48, s48, s50")
    for b in range(4):
        for h in range(2):
            a.e(f"s_add_u32 s{SO_LIST[2*b+h]}, s48, {(b+256*h)*ostr}")
    a.e(f"v_and_b32 v{F_T}, 7, v{F_M}", "s_lshl_b32 s50, s3, 1", f"v_xor_b32 v{F_T+1}, s50, v{F_T}",
        f"v_lshlrev_b32 v{F_WR}, 4, v{F_T+1}", f"v_lshl_add_u32 v{F_WR}, v{F_M}, 7, v{F_WR}",
        f"v_lshl_add_u32 v{F_WR}, v{F_G}, 13, v{F_WR}")
    a.e(f"v_xor_b32 v{F_T+1}, v{F_G}, v{F_T}", f"v_lshlrev_b32 v{F_RD0}, 4, v{F_T+1}",
        f"v_lshl_add_u32 v{F_RD0}, v{F_M}, 7, v{F_RD0}", "s_lshl_b32 s50, s3, 13",
        f"v_add_u32 v{F_RD0}, s50, v{F_RD0}", f"v_xor_b32 v{F_RD1}, 64, v{F_RD0}")

def fft512_consts(a):
    T, TMP = F_T, F_TMP
    XS, XB = T, T+1
    a.e(f"v_cvt_f32_u32 v{XS}, v{F_M}", f"v_mul_f32 v{XS}, {f32hex(1/32)}, v{XS}",
        f"v_cvt_f32_u32 v{T+2}, v{F_G}", f"v_mul_f32 v{T+2}, 4.0, v{T+2}",
        f"v_mul_f32 v{XB}, v{T+2}, v{XS}")
    a.e(f"v_and_b32 v{F_MM}, 1, v{F_M}", f"v_mul_u32_u24 v{F_MM}, 0x8000, v{F_MM}",
        f"v_lshl_or_b32 v{F_MM}, v{F_MM}, 16, v{F_MM}", "s_mov_b32 s50, 0x80008000")
    for i in range(4):
        x = TMP; cs = TMP+1; sn = TMP+2; x2 = TMP+3; cs2 = TMP+4; sn2 = TMP+5
        a.e(f"v_fmamk_f32 v{x}, v{XS}, {f32hex(float(i))}, v{XB}" if i else f"v_mov_b32 v{x}, v{XB}")
        a.e(f"v_add_f32 v{x2}, v{x}, v{x}")
        a.e(f"v_cos_f32 v{cs}, v{x}", f"v_sin_f32 v{sn}, v{x}", f"v_cos_f32 v{cs2}, v{x2}", f"v_sin_f32 v{sn2}, v{x2}")
        a.e(f"v_cvt_pk_bf16_f32 v{F32RE+i}, v{cs}, v{sn}", f"v_cvt_pk_bf16_f32 v{F32IM+i}, -v{sn}, v{cs}",
            f"v_cvt_pk_bf16_f32 v{F16RE+i}, v{cs2}, v{sn2}", f"v_cvt_pk_bf16_f32 v{F16IM+i}, -v{sn2}, v{cs2}")
    for base in (F32RE, F32IM):
        for i in range(4):
            a.e(f"v_xor_b32 v{base+4+i}, v{F_MM}, v{base+i}")
        for t in range(2):
            for i in range(4):
                src = base+4*t+i
                if i & 1: a.e(f"v_xor_b32 v{base+8+4*t+i}, s50, v{src}")
                else:     a.e(f"v_mov_b32 v{base+8+4*t+i}, v{src}")
    a.e(f"v_cvt_f32_u32 v{TMP}, s3", f"v_mul_f32 v{TMP}, {f32hex(8/512)}, v{TMP}")
    for r in range(4):
        a.e(f"v_add_f32 v{TMP+4+r}, {f32hex(float(r)) if r else 0}, v{T+2}")
    for aa in range(8):
        a.e(f"v_add_f32 v{TMP+1}, {f32hex(aa/512) if aa else 0}, v{TMP}")
        for r in range(4):
            a.e(f"v_mul_f32 v{T+3+(r&1)}, v{TMP+1}, v{TMP+4+r}",
                f"v_cos_f32 v{F_TWC+4*aa+r}, v{T+3+(r&1)}", f"v_sin_f32 v{F_TWS+4*aa+r}, v{T+3+(r&1)}")

def fft512_compute(a, SOUT, neg_im, nafter, stmod, st0, fs=0, hook=None):
    TMP = F_TMP
    stamp(a, st0)
    for hh in range(2):
        fstamp(a, fs+5*hh)
        for aa in range(4):
            a.e(f"s_waitcnt vmcnt({28-16*hh-4*aa+nafter})")
            a.e(f"v_mfma_f32_16x16x32_bf16 {v(F_DRE+4*aa,4)}, {v(F16RE,4)}, {v(F_IN+16*hh+4*aa,4)}, 0",
                f"v_mfma_f32_16x16x32_bf16 {v(F_DIM+4*aa,4)}, {v(F16IM,4)}, {v(F_IN+16*hh+4*aa,4)}, 0")
        if hh == 1:
            stamp(a, st0+1)
            if hook: hook()
        fstamp(a, fs+5*hh+1)
        for aa in range(4):
            for p in range(2):
                re, im = F_DRE+4*aa+2*p, F_DIM+4*aa+2*p
                tc, ts = F_TWC+16*hh+4*aa+2*p, F_TWS+16*hh+4*aa+2*p
                t0, t1 = TMP+4*p, TMP+4*p+2
                a.e(f"v_pk_mul_f32 {v(t0,2)}, {v(re,2)}, {v(tc,2)}",
                    f"v_pk_mul_f32 {v(t1,2)}, {v(im,2)}, {v(tc,2)}",
                    f"v_pk_fma_f32 {v(t0,2)}, {v(im,2)}, {v(ts,2)}, {v(t0,2)}",
                    f"v_pk_fma_f32 {v(t1,2)}, {v(re,2)}, {v(ts,2)}, {v(t1,2)} neg_lo:[1,0,0] neg_hi:[1,0,0]")
                for e in range(2):
                    r = 2*p+e
                    a.e(f"v_cvt_pk_bf16_f32 v{F_P+4*r+aa}, v{t0+e}, v{t1+e}")
        fstamp(a, fs+5*hh+2)
        if hh == 1: a.e(f"v_xor_b32 v{F_WR}, 16, v{F_WR}")
        for r in range(4):
            a.e(f"ds_write_b128 v{F_WR}, {v(F_P+4*r,4)} offset:{r*2048}")
    a.e("s_waitcnt lgkmcnt(0)")
    fstamp(a, fs+8)
    a.e("s_barrier")
    fstamp(a, fs+9)
    for b in range(4):
        a.e(f"ds_read_b128 {v(F_IN+8*b,4)}, v{F_RD0} offset:{b*2048}",
            f"ds_read_b128 {v(F_IN+8*b+4,4)}, v{F_RD1} offset:{b*2048}")
    sg = "-" if neg_im else ""
    def mf(bb):
        D0 = [F_DRE, F_DIM] if bb == 0 else [F_TWC, F_TWC+16]
        for bl in range(2):
            b = 2*bb+bl
            a.e(f"s_waitcnt lgkmcnt({6-2*b})")
            for t in range(2):
                for h in range(2):
                    for (D_, F_) in ((D0[0], F32RE), (D0[1], F32IM)):
                        d = D_+8*bl+4*h
                        c = "0" if t == 0 else v(d, 4)
                        a.e(f"v_mfma_f32_16x16x32_bf16 {v(d,4)}, {v(F_IN+8*b+4*t,4)}, {v(F_+8*h+4*t,4)}, {c}")
    def st(bb):
        D0 = [F_DRE, F_DIM] if bb == 0 else [F_TWC, F_TWC+16]
        PB = F_P if bb == 0 else F_TWS
        out = []
        for bl in range(2):
            b = 2*bb+bl
            for h in range(2):
                idx = 8*bl+4*h
                for r in range(4):
                    out.append(f"v_cvt_pk_bf16_f32 v{PB+idx+r}, v{D0[0]+idx+r}, {sg}v{D0[1]+idx+r}")
                out.append(f"buffer_store_dwordx4 {v(PB+idx,4)}, v{F_OUTOFF}, s[{SOUT}:{SOUT+3}], s{SO_LIST[2*b+h]} offen {stmod}")
        return out
    mf(0)
    n0 = len(a.lines)
    mf(1)
    m1 = a.lines[n0:]; del a.lines[n0:]
    s0 = st(0)
    k = 0
    seen = 0
    for l in m1:
        a.lines.append(l)
        if "v_mfma" in l:
            seen += 1
            if seen > 4:
                for _ in range(2):
                    if k < len(s0): a.e(s0[k]); k += 1
    while k < len(s0): a.e(s0[k]); k += 1
    fstamp(a, fs+10)
    for l in st(1): a.e(l)

def f8_addr(a, s_sa, s_cb, orow, ostr):
    a.e(f"v_and_b32 v{F_M}, 15, v1", f"v_lshrrev_b32 v{F_G}, 4, v1")
    a.e(f"v_and_b32 v{F_T}, 7, v1", f"v_bfe_u32 v{F_T+1}, v1, 3, 1",
        f"v_lshlrev_b32 v{F_IN0}, 20, v{F_G}", f"v_lshl_add_u32 v{F_IN0}, v{F_T+1}, 15, v{F_IN0}",
        f"v_lshl_add_u32 v{F_IN0}, v{F_T}, 2, v{F_IN0}")
    a.e(f"s_lshl_b32 s48, s{s_sa}, 11", f"s_lshl_b32 s49, s{s_cb}, 5", "s_add_u32 s48, s48, s49",
        "s_lshl_b32 s50, s3, 16", "s_add_u32 s48, s48, s50")
    for aa in range(4):
        for i in range(4):
            a.e(f"s_add_u32 s{SI_OFF+4*aa+i}, s48, {(32*i+aa)*8192}")
    a.e(f"v_lshrrev_b32 v{F_T+2}, 1, v{F_G}", f"v_lshl_add_u32 v{F_T+2}, v{F_M}, 4, v{F_T+2}",
        f"s_mov_b32 s51, {ostr}", f"v_mul_lo_u32 v{F_OUTOFF}, v{F_T+2}, s51",
        f"v_and_b32 v{F_T+2}, 1, v{F_G}", f"v_lshl_add_u32 v{F_OUTOFF}, v{F_T+2}, 4, v{F_OUTOFF}")
    a.e(f"s_mul_i32 s48, s{s_sa}, {orow}", f"s_lshl_b32 s49, s{s_cb}, 5", "s_add_u32 s48, s48, s49",
        f"s_mul_i32 s50, s3, {4*ostr}", "s_add_u32 s48, s48, s50")
    for b in range(2):
        for h in range(2):
            a.e(f"s_add_u32 s{SO_LIST[2*b+h]}, s48, {(2*b+256*h)*ostr}")
    a.e("s_lshl_b32 s50, s3, 1", f"v_add_u32 v{F_T+2}, s50, v{F_T+1}", f"v_xor_b32 v{F_T+2}, v{F_T+2}, v{F_T}",
        f"v_lshlrev_b32 v{F_WR}, 4, v{F_T+2}", f"v_lshl_add_u32 v{F_WR}, v{F_T}, 7, v{F_WR}", f"v_lshl_add_u32 v{F_WR}, v{F_G}, 12, v{F_WR}")
    a.e(f"v_xor_b32 v{F_T+2}, v{F_G}, v{F_T}", f"v_lshlrev_b32 v{F_RD0}, 4, v{F_T+2}",
        f"v_lshl_add_u32 v{F_RD0}, v{F_T}, 7, v{F_RD0}", f"v_lshl_add_u32 v{F_RD0}, v{F_T+1}, 10, v{F_RD0}",
        "s_lshl_b32 s50, s3, 12", f"v_add_u32 v{F_RD0}, s50, v{F_RD0}", f"v_xor_b32 v{F_RD1}, 64, v{F_RD0}")

def f8_consts(a):
    T, TMP = F_T, F_TMP
    XS, XB = T, T+1
    a.e(f"v_cvt_f32_u32 v{XS}, v{F_M}", f"v_mul_f32 v{XS}, {f32hex(1/32)}, v{XS}",
        f"v_cvt_f32_u32 v{T+2}, v{F_G}", f"v_mul_f32 v{T+2}, 4.0, v{T+2}",
        f"v_mul_f32 v{XB}, v{T+2}, v{XS}")
    a.e(f"v_and_b32 v{F_MM}, 1, v{F_M}", f"v_mul_u32_u24 v{F_MM}, 0x8000, v{F_MM}",
        f"v_lshl_or_b32 v{F_MM}, v{F_MM}, 16, v{F_MM}", "s_mov_b32 s50, 0x80008000")
    for i in range(4):
        x = TMP; cs = TMP+1; sn = TMP+2; x2 = TMP+3; cs2 = TMP+4; sn2 = TMP+5
        a.e(f"v_fmamk_f32 v{x}, v{XS}, {f32hex(float(i))}, v{XB}" if i else f"v_mov_b32 v{x}, v{XB}")
        a.e(f"v_add_f32 v{x2}, v{x}, v{x}")
        a.e(f"v_cos_f32 v{cs}, v{x}", f"v_sin_f32 v{sn}, v{x}", f"v_cos_f32 v{cs2}, v{x2}", f"v_sin_f32 v{sn2}, v{x2}")
        a.e(f"v_cvt_pk_bf16_f32 v{F32RE+i}, v{cs}, v{sn}", f"v_cvt_pk_bf16_f32 v{F32IM+i}, -v{sn}, v{cs}",
            f"v_cvt_pk_bf16_f32 v{F16RE+i}, v{cs2}, v{sn2}", f"v_cvt_pk_bf16_f32 v{F16IM+i}, -v{sn2}, v{cs2}")
    for base in (F32RE, F32IM):
        for i in range(4):
            a.e(f"v_xor_b32 v{base+4+i}, v{F_MM}, v{base+i}")
        for t in range(2):
            for i in range(4):
                src = base+4*t+i
                if i & 1: a.e(f"v_xor_b32 v{base+8+4*t+i}, s50, v{src}")
                else:     a.e(f"v_mov_b32 v{base+8+4*t+i}, v{src}")
    a.e(f"v_bfe_u32 v{TMP}, v1, 3, 1", "s_lshl_b32 s50, s3, 1", f"v_add_u32 v{TMP}, s50, v{TMP}",
        f"v_cvt_f32_u32 v{TMP}, v{TMP}", f"v_mul_f32 v{TMP}, {f32hex(4/512)}, v{TMP}")
    for r in range(4):
        a.e(f"v_add_f32 v{TMP+4+r}, {f32hex(float(r)) if r else 0}, v{T+2}")
    for aa in range(4):
        a.e(f"v_add_f32 v{TMP+1}, {f32hex(aa/512) if aa else 0}, v{TMP}")
        for r in range(4):
            a.e(f"v_mul_f32 v{T+3+(r&1)}, v{TMP+1}, v{TMP+4+r}",
                f"v_cos_f32 v{F_TWC+4*aa+r}, v{T+3+(r&1)}", f"v_sin_f32 v{F_TWS+4*aa+r}, v{T+3+(r&1)}")

def f8_run(a, SIN, SOUT, ldmod, stmod, sT0=None):
    TMP = F_TMP
    ld = lambda aa, i: f"buffer_load_dword v{F_IN+4*aa+i}, v{F_IN0}, s[{SIN}:{SIN+3}], s{SI_OFF+4*aa+i} offen {ldmod}"
    order = [0, 1, 2, 3]
    if sT0 is None:
        for aa in range(4):
            for i in range(4): a.e(ld(aa, i))
    else:
        order = [1, 2, 3, 0]
        for aa in (1, 2, 3):
            for i in range(4): a.e(ld(aa, i))
        for i in (1, 2, 3): a.e(ld(0, i))
        L, Ld = newlbl("t0p"), newlbl("t0d")
        a.e("s_cmp_lg_u32 s3, 0", f"s_cbranch_scc1 {Ld}", f"s_cmp_eq_u32 s{sT0}, 0", f"s_cbranch_scc1 {Ld}",
            f"v_mov_b32 v{TMP}, {SY_A2}", "s_mov_b32 s48, 0")
        a.label(L)
        a.e(f"buffer_load_dword v{TMP+1}, v{TMP}, s[{S_SYN}:{S_SYN+3}], 0 offen sc1", "s_add_u32 s48, s48, 1", "s_waitcnt vmcnt(0)",
            f"v_readfirstlane_b32 s49, v{TMP+1}", f"s_cmp_eq_u32 s49, s{S_TGT}", f"s_cbranch_scc1 {Ld}",
            f"s_cmp_lt_u32 s48, {SPIN_LIMIT}", f"s_cbranch_scc1 {L}")
        a.label(Ld)
        a.e(ld(0, 0))
    fstamp(a, 3)
    for n_, aa in enumerate(order):
        a.e(f"s_waitcnt vmcnt({12-4*n_})")
        a.e(f"v_mfma_f32_16x16x32_bf16 {v(F_DRE+4*aa,4)}, {v(F16RE,4)}, {v(F_IN+4*aa,4)}, 0",
            f"v_mfma_f32_16x16x32_bf16 {v(F_DIM+4*aa,4)}, {v(F16IM,4)}, {v(F_IN+4*aa,4)}, 0")
    fstamp(a, 1)
    for aa in range(4):
        for p in range(2):
            re, im = F_DRE+4*aa+2*p, F_DIM+4*aa+2*p
            tc, ts = F_TWC+4*aa+2*p, F_TWS+4*aa+2*p
            t0, t1 = TMP+4*p, TMP+4*p+2
            a.e(f"v_pk_mul_f32 {v(t0,2)}, {v(re,2)}, {v(tc,2)}",
                f"v_pk_mul_f32 {v(t1,2)}, {v(im,2)}, {v(tc,2)}",
                f"v_pk_fma_f32 {v(t0,2)}, {v(im,2)}, {v(ts,2)}, {v(t0,2)}",
                f"v_pk_fma_f32 {v(t1,2)}, {v(re,2)}, {v(ts,2)}, {v(t1,2)} neg_lo:[1,0,0] neg_hi:[1,0,0]")
            for e in range(2):
                r = 2*p+e
                a.e(f"v_cvt_pk_bf16_f32 v{F_P+4*r+aa}, v{t0+e}, v{t1+e}")
    for r in range(4):
        a.e(f"ds_write_b128 v{F_WR}, {v(F_P+4*r,4)} offset:{r*1024}")
    a.e("s_waitcnt lgkmcnt(0)")
    fstamp(a, 8)
    a.e("s_barrier")
    fstamp(a, 9)
    for b in range(2):
        a.e(f"ds_read_b128 {v(F_IN+8*b,4)}, v{F_RD0} offset:{b*2048}",
            f"ds_read_b128 {v(F_IN+8*b+4,4)}, v{F_RD1} offset:{b*2048}")
    for b in range(2):
        a.e(f"s_waitcnt lgkmcnt({2-2*b})")
        for t in range(2):
            for h in range(2):
                for (D_, F_) in ((F_DRE, F32RE), (F_DIM, F32IM)):
                    d = D_+8*b+4*h
                    c = "0" if t == 0 else v(d, 4)
                    a.e(f"v_mfma_f32_16x16x32_bf16 {v(d,4)}, {v(F_IN+8*b+4*t,4)}, {v(F_+8*h+4*t,4)}, {c}")
    fstamp(a, 10)
    for b in range(2):
        for h in range(2):
            idx = 8*b+4*h
            for r in range(4):
                a.e(f"v_cvt_pk_bf16_f32 v{F_P+idx+r}, v{F_DRE+idx+r}, -v{F_DIM+idx+r}")
            a.e(f"buffer_store_dwordx4 {v(F_P+idx,4)}, v{F_OUTOFF}, s[{SOUT}:{SOUT+3}], s{SO_LIST[2*b+h]} offen {stmod}")

def f256_loads(a, SX, s_sa, s_cb, mod):
    a.e(f"v_and_b32 v{F_M}, 15, v1", f"v_lshrrev_b32 v{F_G}, 4, v1",
        f"v_lshlrev_b32 v{F_IN0}, 20, v{F_G}", f"v_lshl_add_u32 v{F_IN0}, v{F_M}, 2, v{F_IN0}")
    a.e(f"s_lshl_b32 s48, s{s_sa}, 11", f"s_lshl_b32 s49, s{s_cb}, 6", "s_add_u32 s48, s48, s49",
        "s_lshl_b32 s50, s3, 16", "s_add_u32 s50, s50, s48")
    for aa in range(4):
        for i in range(4):
            a.e(f"s_add_u32 s{SI_OFF+4*aa+i}, s50, {(16*i+aa)*16384}",
                f"buffer_load_dword v{F_IN+4*aa+i}, v{F_IN0}, s[{SX}:{SX+3}], s{SI_OFF+4*aa+i} offen {mod}")

def f256_setup(a):
    T, TMP = F_T, F_TMP
    a.e(f"v_lshlrev_b32 v{F_OUTOFF}, 18, v{F_M}", f"v_lshl_add_u32 v{F_OUTOFF}, v{F_G}, 4, v{F_OUTOFF}",
        "s_lshl_b32 s50, s3, 16", "s_add_u32 s50, s50, s48")
    for b in range(4): a.e(f"s_add_u32 s{SO_LIST[b]}, s50, {b*16384}")
    a.e(f"v_bfe_u32 v{T}, v{F_M}, 1, 2", f"v_xor_b32 v{T+1}, s3, v{T}", f"v_lshlrev_b32 v{F_WR}, 4, v{T+1}",
        f"v_lshl_add_u32 v{F_WR}, v{F_M}, 6, v{F_WR}", f"v_lshl_add_u32 v{F_WR}, v{F_G}, 12, v{F_WR}",
        f"v_xor_b32 v{T+1}, v{F_G}, v{T}", f"v_lshlrev_b32 v{F_RD0}, 4, v{T+1}", f"v_lshl_add_u32 v{F_RD0}, v{F_M}, 6, v{F_RD0}",
        "s_lshl_b32 s50, s3, 12", f"v_add_u32 v{F_RD0}, s50, v{F_RD0}")
    XS, XB = T, T+1
    a.e(f"v_cvt_f32_u32 v{XS}, v{F_M}", f"v_mul_f32 v{XS}, {f32hex(1/16)}, v{XS}",
        f"v_cvt_f32_u32 v{T+2}, v{F_G}", f"v_mul_f32 v{T+2}, 4.0, v{T+2}", f"v_mul_f32 v{XB}, v{T+2}, v{XS}")
    for i in range(4):
        x = TMP+3*(i & 1)
        a.e(f"v_fmamk_f32 v{x}, v{XS}, {f32hex(float(i))}, v{XB}" if i else f"v_mov_b32 v{x}, v{XB}")
        a.e(f"v_cos_f32 v{x+1}, v{x}", f"v_sin_f32 v{x+2}, v{x}")
        a.e(f"v_cvt_pk_bf16_f32 v{F16RE+i}, v{x+1}, v{x+2}", f"v_cvt_pk_bf16_f32 v{F16IM+i}, -v{x+2}, v{x+1}")
    a.e(f"v_cvt_f32_u32 v{TMP}, s3", f"v_mul_f32 v{TMP}, {f32hex(4/256)}, v{TMP}")
    for r in range(4): a.e(f"v_add_f32 v{TMP+4+r}, {f32hex(float(r)) if r else 0}, v{T+2}")
    for aa in range(4):
        a.e(f"v_add_f32 v{TMP+1}, {f32hex(aa/256) if aa else 0}, v{TMP}")
        for r in range(4):
            a.e(f"v_mul_f32 v{T+3+(r&1)}, v{TMP+1}, v{TMP+4+r}",
                f"v_cos_f32 v{F_TWC+4*aa+r}, v{T+3+(r&1)}", f"v_sin_f32 v{F_TWS+4*aa+r}, v{T+3+(r&1)}")

def f256_run(a, SOUT, nafter):
    TMP = F_TMP
    stamp(a, 2)
    for aa in range(4):
        a.e(f"s_waitcnt vmcnt({12-4*aa+nafter})")
        a.e(f"v_mfma_f32_16x16x32_bf16 {v(F_DRE+4*aa,4)}, {v(F16RE,4)}, {v(F_IN+4*aa,4)}, 0",
            f"v_mfma_f32_16x16x32_bf16 {v(F_DIM+4*aa,4)}, {v(F16IM,4)}, {v(F_IN+4*aa,4)}, 0")
    stamp(a, 3)
    for aa in range(4):
        for p in range(2):
            re, im = F_DRE+4*aa+2*p, F_DIM+4*aa+2*p
            tc, ts = F_TWC+4*aa+2*p, F_TWS+4*aa+2*p
            t0, t1 = TMP+4*p, TMP+4*p+2
            a.e(f"v_pk_mul_f32 {v(t0,2)}, {v(re,2)}, {v(tc,2)}",
                f"v_pk_mul_f32 {v(t1,2)}, {v(im,2)}, {v(tc,2)}",
                f"v_pk_fma_f32 {v(t0,2)}, {v(im,2)}, {v(ts,2)}, {v(t0,2)}",
                f"v_pk_fma_f32 {v(t1,2)}, {v(re,2)}, {v(ts,2)}, {v(t1,2)} neg_lo:[1,0,0] neg_hi:[1,0,0]")
            for e in range(2):
                r = 2*p+e
                a.e(f"v_cvt_pk_bf16_f32 v{F_P+4*r+aa}, v{t0+e}, v{t1+e}")
    for r in range(4):
        a.e(f"ds_write_b128 v{F_WR}, {v(F_P+4*r,4)} offset:{r*1024}")
    a.e("s_waitcnt lgkmcnt(0)", "s_barrier")
    for b in range(4):
        a.e(f"ds_read_b128 {v(F_IN+4*b,4)}, v{F_RD0} offset:{b*1024}")
    for b in range(4):
        a.e(f"s_waitcnt lgkmcnt({3-b})")
        a.e(f"v_mfma_f32_16x16x32_bf16 {v(F_DRE+4*b,4)}, {v(F_IN+4*b,4)}, {v(F16RE,4)}, 0",
            f"v_mfma_f32_16x16x32_bf16 {v(F_DIM+4*b,4)}, {v(F_IN+4*b,4)}, {v(F16IM,4)}, 0")
    for b in range(4):
        for r in range(4):
            a.e(f"v_cvt_pk_bf16_f32 v{F_P+4*b+r}, v{F_DRE+4*b+r}, v{F_DIM+4*b+r}")
        a.e(f"buffer_store_dwordx4 {v(F_P+4*b,4)}, v{F_OUTOFF}, s[{SOUT}:{SOUT+3}], s{SO_LIST[b]} offen sc1")

IDX, G_, VG, VGW, VRR, VHR, VST, VW = 2, 3, 6, 7, 8, 12, 13, 14
CRE, CIM, TWC, TWS, WR, WI, ARE, AIM, DF, GA, HRE, HIM, GB, TMP = 16, 32, 48, 64, 80, 96, 112, 128, 144, 160, 164, 168, 172, 188
W2R, W2I, SP, PF, PF2 = 204, 220, 236, 248, 252
GA2 = 204
LW = 32768; LSC = 16384; LW2 = 49152

def w_dma(a, SWR, SWI, s_rowoff, s_mirroff, s_ldsbase, vlane16):
    a.e(f"s_mov_b32 m0, s{s_ldsbase}", f"buffer_load_dwordx4 v{vlane16}, s[{SWR}:{SWR+3}], s{s_rowoff} offen lds" + NT())
    a.e(f"s_add_u32 s93, s{s_ldsbase}, 1024", "s_mov_b32 m0, s93", f"buffer_load_dwordx4 v{vlane16}, s[{SWI}:{SWI+3}], s{s_rowoff} offen lds" + NT())
    a.e(f"s_add_u32 s92, s{s_mirroff}, 2")
    a.e(f"s_add_u32 s93, s{s_ldsbase}, 2048", "s_mov_b32 m0, s93", f"buffer_load_dwordx4 v{vlane16}, s[{SWR}:{SWR+3}], s92 offen lds" + NT())
    a.e(f"s_add_u32 s93, s{s_ldsbase}, 3072", "s_mov_b32 m0, s93", f"buffer_load_dwordx4 v{vlane16}, s[{SWI}:{SWI+3}], s92 offen lds" + NT())

def pf_loads(a, SWR, SWI, s_rowoff, s_mirroff, dst, vt):
    a.e(f"v_mov_b32 v{vt}, s{s_mirroff}", f"v_mov_b32 v{vt+1}, s{s_rowoff}", f"v_add_u32 v{vt+1}, 1024, v{vt+1}")
    a.e(f"buffer_load_short_d16_hi v{dst}, v{vt}, s[{SWR}:{SWR+3}], 0 offen",
        f"buffer_load_short_d16_hi v{dst+1}, v{vt}, s[{SWI}:{SWI+3}], 0 offen",
        f"buffer_load_short_d16_hi v{dst+2}, v{vt+1}, s[{SWR}:{SWR+3}], 0 offen",
        f"buffer_load_short_d16_hi v{dst+3}, v{vt+1}, s[{SWI}:{SWI+3}], 0 offen")

def w_lds_reads(a, vlo, vhi, dr, di):
    for (dst, o) in ((dr, 0), (di, 1024)):
        for r in range(16):
            e = eidx(r)
            if r < 8: a.e(f"ds_read_u16_d16_hi v{dst+r}, v{vlo} offset:{o+64*e}")
            else:     a.e(f"ds_read_u16_d16_hi v{dst+r}, v{vhi} offset:{o+64*(27-e)}")

def fix_w(a, dr, di, pf):
    a.e("v_cmp_eq_u32 vcc, 0, v1")
    for (r, o) in ((0, 0), (8, 2)):
        a.e(f"v_add_f32 v{TMP}, v{dr+r}, v{pf+o}", f"v_mul_f32 v{TMP}, 0.5, v{TMP}",
            f"v_sub_f32 v{TMP+1}, v{di+r}, v{pf+o+1}", f"v_mul_f32 v{TMP+1}, 0.5, v{TMP+1}",
            f"v_cndmask_b32 v{dr+r}, v{dr+r}, v{TMP}, vcc", f"v_cndmask_b32 v{di+r}, v{di+r}, v{TMP+1}, vcc")

def fft1024(a, mid=None):
    for t in range(4):
        c0 = "0" if t == 0 else v(ARE, 16); c1 = "0" if t == 0 else v(AIM, 16)
        a.e(f"v_mfma_f32_32x32x16_bf16 {v(ARE,16)}, {v(DF+4*t,4)}, {v(CRE+4*t,4)}, {c0}",
            f"v_mfma_f32_32x32x16_bf16 {v(AIM,16)}, {v(DF+4*t,4)}, {v(CIM+4*t,4)}, {c1}")
    for p in range(8):
        re, im, tc, ts = ARE+2*p, AIM+2*p, TWC+2*p, TWS+2*p
        t0 = TMP+4*(p & 1); t1 = t0+2
        a.e(f"v_pk_mul_f32 {v(t0,2)}, {v(re,2)}, {v(tc,2)}",
            f"v_pk_mul_f32 {v(t1,2)}, {v(im,2)}, {v(tc,2)}",
            f"v_pk_fma_f32 {v(t0,2)}, {v(im,2)}, {v(ts,2)}, {v(t0,2)}",
            f"v_pk_fma_f32 {v(t1,2)}, {v(re,2)}, {v(ts,2)}, {v(t1,2)} neg_lo:[1,0,0] neg_hi:[1,0,0]")
        for e in range(2):
            a.e(f"v_cvt_pk_bf16_f32 v{DF+2*p+e}, v{t0+e}, v{t1+e}")
    for t in range(4):
        if mid and t == 1: mid()
        c0 = "0" if t == 0 else v(ARE, 16); c1 = "0" if t == 0 else v(AIM, 16)
        a.e(f"v_mfma_f32_32x32x16_bf16 {v(ARE,16)}, {v(CRE+4*t,4)}, {v(DF+4*t,4)}, {c0}",
            f"v_mfma_f32_32x32x16_bf16 {v(AIM,16)}, {v(CIM+4*t,4)}, {v(DF+4*t,4)}, {c1}")

ARE2, AIM2 = 204, 220
def row_ilv(a):
    NEG = " neg_lo:[1,0,0] neg_hi:[1,0,0]"
    def mf(dre, dim, t, data_is_a):
        c0 = "0" if t == 0 else v(dre, 16); c1 = "0" if t == 0 else v(dim, 16)
        if data_is_a:
            a.e(f"v_mfma_f32_32x32x16_bf16 {v(dre,16)}, {v(DF+4*t,4)}, {v(CRE+4*t,4)}, {c0}",
                f"v_mfma_f32_32x32x16_bf16 {v(dim,16)}, {v(DF+4*t,4)}, {v(CIM+4*t,4)}, {c1}")
        else:
            a.e(f"v_mfma_f32_32x32x16_bf16 {v(dre,16)}, {v(CRE+4*t,4)}, {v(DF+4*t,4)}, {c0}",
                f"v_mfma_f32_32x32x16_bf16 {v(dim,16)}, {v(CIM+4*t,4)}, {v(DF+4*t,4)}, {c1}")
    def tw(sre, sim, p):
        re, im, tc, ts = sre+2*p, sim+2*p, TWC+2*p, TWS+2*p
        t0 = TMP+4*(p & 1); t1 = t0+2
        a.e(f"v_pk_mul_f32 {v(t0,2)}, {v(re,2)}, {v(tc,2)}", f"v_pk_mul_f32 {v(t1,2)}, {v(im,2)}, {v(tc,2)}",
            f"v_pk_fma_f32 {v(t0,2)}, {v(im,2)}, {v(ts,2)}, {v(t0,2)}",
            f"v_pk_fma_f32 {v(t1,2)}, {v(re,2)}, {v(ts,2)}, {v(t1,2)}{NEG}")
        for e in range(2): a.e(f"v_cvt_pk_bf16_f32 v{DF+2*p+e}, v{t0+e}, v{t1+e}")
    def mul(sre, sim, p):
        xr, xi, wr, wi = sre+2*p, sim+2*p, WR+2*p, WI+2*p
        t0 = TMP+4*(p & 1); t1 = t0+2
        n0 = NEG if p < 4 else ""; n1 = "" if p < 4 else NEG
        a.e(f"v_pk_mul_f32 {v(t0,2)}, {v(xr,2)}, {v(wr,2)}", f"v_pk_mul_f32 {v(t1,2)}, {v(xi,2)}, {v(wr,2)}",
            f"v_pk_fma_f32 {v(t0,2)}, {v(xi,2)}, {v(wi,2)}, {v(t0,2)}{n0}",
            f"v_pk_fma_f32 {v(t1,2)}, {v(xr,2)}, {v(wi,2)}, {v(t1,2)}{n1}")
        for e in range(2): a.e(f"v_cvt_pk_bf16_f32 v{DF+2*p+e}, v{t0+e}, -v{t1+e}")
    for t in range(4): mf(ARE, AIM, t, True)
    a.e("s_waitcnt lgkmcnt(0)")
    fix_w(a, WR, WI, PF)
    for (src, dst, op, da) in (((ARE, AIM), (ARE2, AIM2), tw, False), ((ARE2, AIM2), (ARE, AIM), mul, True), ((ARE, AIM), (ARE2, AIM2), tw, False)):
        for t in range(4):
            op(src[0], src[1], 2*t); op(src[0], src[1], 2*t+1)
            mf(dst[0], dst[1], t, da)
    for r in range(16):
        t = TMP + (r & 7)
        a.e(f"v_cvt_pk_bf16_f32 v{t}, v{ARE2+r}, v{AIM2+r}", f"ds_write_b32 v{VRR}, v{t} offset:{128*eidx(r)}")

def a2_consts(a, sT):
    a.e(f"v_and_b32 v{IDX}, 31, v1", f"v_lshrrev_b32 v{G_}, 5, v1")
    XS, XB = TMP, TMP+1
    a.e(f"v_cvt_f32_u32 v{TMP+2}, v{IDX}", f"v_cvt_f32_u32 v{TMP+3}, v{G_}", f"v_mul_f32 v{TMP+3}, 4.0, v{TMP+3}",
        f"v_mul_f32 v{XS}, {f32hex(1/32)}, v{TMP+2}", f"v_mul_f32 v{XB}, v{TMP+3}, v{XS}")
    a.e(f"v_and_b32 v{TMP+4}, 1, v{IDX}", f"v_mul_u32_u24 v{TMP+4}, 0x8000, v{TMP+4}", f"v_lshl_or_b32 v{TMP+4}, v{TMP+4}, 16, v{TMP+4}")
    for t in range(2):
        for i in range(4):
            c = float(8*t+i); x = TMP+5+3*(i & 1)
            a.e(f"v_fmamk_f32 v{x}, v{XS}, {f32hex(c)}, v{XB}" if c else f"v_mov_b32 v{x}, v{XB}")
            a.e(f"v_cos_f32 v{x+1}, v{x}", f"v_sin_f32 v{x+2}, v{x}")
            a.e(f"v_cvt_pk_bf16_f32 v{CRE+4*t+i}, v{x+1}, v{x+2}", f"v_cvt_pk_bf16_f32 v{CIM+4*t+i}, -v{x+2}, v{x+1}")
    for base in (CRE, CIM):
        for i in range(8):
            a.e(f"v_xor_b32 v{base+8+i}, v{TMP+4}, v{base+i}")
    a.e(f"v_mul_f32 v{XS}, {f32hex(1/1024)}, v{TMP+2}", f"v_mul_f32 v{XB}, v{TMP+3}, v{XS}")
    for r in range(16):
        c = float(eidx(r)); x = TMP+5+(r & 1)
        a.e(f"v_fmamk_f32 v{x}, v{XS}, {f32hex(c)}, v{XB}" if c else f"v_mov_b32 v{x}, v{XB}")
        a.e(f"v_cos_f32 v{TWC+r}, v{x}", f"v_sin_f32 v{TWS+r}, v{x}")
    LO, HI, Q, AV, XA0, XA1, E0, E1 = TMP, TMP+1, TMP+2, TMP+3, TMP+4, TMP+5, TMP+6, TMP+7
    JF, KEY, T2, PO, PAR, N16, G4, CS = [TMP+8+i for i in range(8)]
    Lspec, Ldone = newlbl("ghspec"), newlbl("ghdone")
    a.e(f"v_and_b32 v{LO}, 3, v{IDX}", f"v_bfe_u32 v{HI}, v{IDX}, 2, 2")
    a.e(f"v_and_b32 v{N16}, 15, v1", f"v_lshrrev_b32 v{G4}, 4, v1")
    a.e(f"s_cmp_eq_u32 s{sT}, 0", f"s_cbranch_scc1 {Lspec}")
    a.e(f"v_cvt_f32_u32 v{T2}, s{sT}", f"v_cvt_f32_u32 v{JF}, v{HI}", f"v_fmamk_f32 v{JF}, v{JF}, {f32hex(512.0)}, v{T2}",
        f"v_mul_f32 v{JF}, {f32hex(1/2048)}, v{JF}",
        f"v_lshlrev_b32 v{Q}, 3, v{LO}", "s_mov_b32 s50, 0x4631914C", f"v_lshrrev_b32 v{Q}, v{Q}, s50",
        f"v_mov_b32 v{AV}, 0.5", f"v_cmp_gt_u32 vcc, 16, v{IDX}", f"v_cndmask_b32 v{AV}, 0, v{AV}, vcc")
    for ks, Gd in ((0, GA), (1, GA2)):
        a.e(f"v_cvt_f32_u32 v{XA0}, v{G_}", f"v_add_f32 v{XA0}, v{XA0}, v{XA0}")
        if ks: a.e(f"v_add_f32 v{XA0}, 4.0, v{XA0}")
        a.e(f"v_add_f32 v{XA1}, 1.0, v{XA0}", f"v_mul_f32 v{XA0}, v{XA0}, v{JF}", f"v_mul_f32 v{XA1}, v{XA1}, v{JF}")
        for jj2 in range(4):
            for e in range(2):
                jj = 2*jj2+e
                xa = XA1 if jj >> 2 else XA0
                a.e(f"v_bfe_u32 v{E0+e}, v{Q}, {2*(jj&3)}, 2", f"v_cvt_f32_u32 v{E0+e}, v{E0+e}",
                    f"v_fmamk_f32 v{E0+e}, v{E0+e}, {f32hex(0.25)}, v{xa}", f"v_cos_f32 v{E0+e}, v{E0+e}",
                    f"v_mul_f32 v{E0+e}, v{E0+e}, v{AV}")
            a.e(f"v_cvt_pk_bf16_f32 v{Gd+jj2}, v{E0}, v{E1}")
    a.e(f"v_bfe_u32 v{HI}, v{N16}, 1, 2", f"v_cvt_f32_u32 v{KEY}, v{HI}", f"v_mul_f32 v{KEY}, {f32hex(1/2048)}, v{KEY}",
        f"v_and_b32 v{JF}, 1, v{G4}", f"v_cvt_f32_u32 v{JF}, v{JF}", f"v_fmamk_f32 v{JF}, v{JF}, {f32hex(1024.0)}, v{T2}",
        f"v_add_f32 v{XA1}, {f32hex(512.0)}, v{JF}", f"v_mul_f32 v{XA0}, v{JF}, v{KEY}", f"v_mul_f32 v{XA1}, v{XA1}, v{KEY}",
        f"v_lshrrev_b32 v{CS}, 1, v{G4}", f"v_lshrrev_b32 v{AV}, 3, v{N16}", f"v_cmp_eq_u32 vcc, v{CS}, v{AV}",
        f"v_mov_b32 v{AV}, {f32hex(2.0**-21)}", f"v_cndmask_b32 v{AV}, 0, v{AV}, vcc",
        f"v_and_b32 v{PO}, 1, v{N16}")
    for part, Hd in ((0, HRE), (1, HIM)):
        w0, w1 = (0x1C, 0xBC) if part == 0 else (0x61, 0x6B)
        a.e(f"v_mov_b32 v{Q}, {w0}", f"v_mov_b32 v{PAR}, {w1}", f"v_cmp_eq_u32 vcc, 1, v{PO}", f"v_cndmask_b32 v{Q}, v{Q}, v{PAR}, vcc")
        for jj2 in range(4):
            for e in range(2):
                jj = 2*jj2+e
                xa = XA1 if jj >> 2 else XA0
                a.e(f"v_bfe_u32 v{E0+e}, v{Q}, {2*(jj&3)}, 2", f"v_cvt_f32_u32 v{E0+e}, v{E0+e}",
                    f"v_fmamk_f32 v{E0+e}, v{E0+e}, {f32hex(0.25)}, v{xa}", f"v_cos_f32 v{E0+e}, v{E0+e}",
                    f"v_mul_f32 v{E0+e}, v{E0+e}, v{AV}")
            a.e(f"v_cvt_pk_bf16_f32 v{Hd+jj2}, v{E0}, v{E1}")
    a.e(f"s_branch {Ldone}")
    a.label(Lspec)
    a.e(f"v_and_b32 v{PO}, 1, v{LO}", f"v_lshrrev_b32 v{PAR}, 1, v{LO}")
    a.e(f"v_lshlrev_b32 v{JF}, 2, v{HI}", "s_mov_b32 s50, 0x3120", f"v_lshrrev_b32 v{JF}, v{JF}, s50", f"v_and_b32 v{JF}, 15, v{JF}",
        f"v_lshlrev_b32 v{JF}, 8, v{JF}", f"v_lshlrev_b32 v{T2}, 10, v{PO}",
        f"v_cmp_eq_u32 vcc, 0, v{HI}", f"v_cndmask_b32 v{JF}, v{JF}, v{T2}, vcc", f"v_mov_b32 v{T2}, 0",
        f"v_cndmask_b32 v{Q}, v{PO}, v{T2}, vcc",
        f"v_cvt_f32_u32 v{JF}, v{JF}", f"v_mul_f32 v{JF}, {f32hex(1/2048)}, v{JF}",
        f"v_cvt_f32_u32 v{Q}, v{Q}", f"v_mul_f32 v{Q}, {f32hex(0.25)}, v{Q}",
        f"v_lshrrev_b32 v{T2}, 4, v{IDX}", f"v_lshl_add_u32 v{KEY}, v{T2}, 2, v{PAR}", f"v_mov_b32 v{T2}, 0")
    for ks, Gd in ((0, GA), (1, GA2)):
        a.e(f"v_cvt_f32_u32 v{XA0}, v{G_}", f"v_add_f32 v{XA0}, v{XA0}, v{XA0}")
        if ks: a.e(f"v_add_f32 v{XA0}, 4.0, v{XA0}")
        a.e(f"v_add_f32 v{XA1}, 1.0, v{XA0}",
            f"v_fma_f32 v{XA0}, v{XA0}, v{JF}, v{Q}", f"v_fma_f32 v{XA1}, v{XA1}, v{JF}, v{Q}",
            f"v_cos_f32 v{XA0}, v{XA0}", f"v_cos_f32 v{XA1}, v{XA1}")
        for jj2 in range(4):
            for e in range(2):
                jj = 2*jj2+e
                xa = XA1 if jj >> 2 else XA0
                a.e(f"v_cmp_eq_u32 vcc, {jj&3}, v{KEY}", f"v_cndmask_b32 v{E0+e}, v{T2}, v{xa}, vcc")
            a.e(f"v_cvt_pk_bf16_f32 v{Gd+jj2}, v{E0}, v{E1}")
    SAF, GS = JF, PAR
    a.e(f"v_bfe_u32 v{HI}, v{N16}, 1, 2", f"v_cvt_f32_u32 v{SAF}, v{HI}", f"v_mul_f32 v{SAF}, {f32hex(1/2048)}, v{SAF}",
        f"v_and_b32 v{GS}, 1, v{G4}", f"v_and_b32 v{PO}, 1, v{N16}",
        f"v_lshrrev_b32 v{CS}, 1, v{G4}", f"v_lshrrev_b32 v{T2}, 3, v{N16}",
        f"v_cmp_eq_u32 s[44:45], v{CS}, v{T2}", f"v_cmp_eq_u32 s[46:47], v{GS}, v{PO}", "s_and_b64 s[44:45], s[44:45], s[46:47]",
        f"v_cmp_eq_u32 s[46:47], 0, v{GS}")
    for part, Hd in ((0, HRE), (1, HIM)):
        for jj in range(8):
            sl, par, pi = jj >> 2, (jj >> 1) & 1, jj & 1
            e = E0 + (jj & 1)
            if par != part:
                a.e(f"v_mov_b32 v{e}, 0")
            else:
                if sl == 0:
                    j0, q0, a0 = 1024.0*pi, 0.5*pi, 2.0**-21
                    j1, q1, a1 = 256.0, 0.75*pi, 2.0**-20
                else:
                    j0, q0, a0 = 512.0, 0.75*pi, 2.0**-20
                    j1, q1, a1 = 768.0, 0.75*pi, 2.0**-20
                def sel(dst, x0, x1):
                    a.e(f"v_mov_b32 v{dst}, {f32hex(x1)}", f"v_mov_b32 v{AV}, {f32hex(x0)}", f"v_cndmask_b32 v{dst}, v{dst}, v{AV}, s[46:47]")
                sel(XA0, j0, j1); sel(XA1, q0 + 0.5*part, q1 + 0.5*part)
                a.e(f"v_fma_f32 v{XA0}, v{XA0}, v{SAF}, v{XA1}", f"v_cos_f32 v{XA0}, v{XA0}")
                sel(XA1, a0, a1)
                a.e(f"v_mul_f32 v{XA0}, v{XA0}, v{XA1}", f"v_mov_b32 v{XA1}, 0", f"v_cndmask_b32 v{e}, v{XA1}, v{XA0}, s[44:45]")
            if jj & 1: a.e(f"v_cvt_pk_bf16_f32 v{Hd+(jj>>1)}, v{E0}, v{E1}")
    a.label(Ldone)
    a.e("s_nop 1")


BT_S0, BT_S1, BT_S2, BT_S3 = 52, 56, 60, 64
BT_SOFF = ["0", "s68", "s69", "s70", "s71", "s76", "s77", "s78"]
BT_ROW, BT_CH, BT_MASK = 48, 49, 50
def bt_setup(a):
    a.e(f"s_lshl_b32 s{BT_ROW}, s{sSUBT}, 7", "s_lshl_b32 s51, s3, 5", f"s_add_u32 s{BT_ROW}, s{BT_ROW}, s51", f"s_lshl_b32 s{BT_CH}, s{sCBKT}, 6")
    for i in range(1, 8): a.e(f"s_mov_b32 {BT_SOFF[i]}, {4096*i}")
    a.e(f"s_mov_b32 s{BT_MASK}, 0xffff0000")

def scratch_addr(a, vdst, vcg, vrg):
    if OPT["fullline"]:
        a.e(f"s_lshl_b32 s51, s{sSUBT}, 7", "s_lshl_b32 s92, s3, 5", "s_add_u32 s51, s51, s92", "s_lshl_b32 s51, s51, 12",
            f"s_lshl_b32 s92, s{sCBKT}, 7", "s_add_u32 s51, s51, s92", "s_add_u32 s51, s51, 2048",
            f"v_lshrrev_b32 v{vdst}, 1, v{vcg}", f"v_lshlrev_b32 v{vdst}, 12, v{vdst}", f"v_lshl_add_u32 v{vdst}, v{vrg}, 4, v{vdst}",
            f"v_and_b32 v{vcg}, 1, v{vcg}", f"v_lshl_add_u32 v{vdst}, v{vcg}, 6, v{vdst}", f"v_add_u32 v{vdst}, s51, v{vdst}",
            "s_mov_b32 s32, 32768", "s_mov_b32 s33, 65536", "s_mov_b32 s34, 98304")
        return
    a.e(f"s_lshl_b32 s51, s{sSUBT}, 7", "s_lshr_b32 s92, s3, 1", "s_add_u32 s51, s51, s92", "s_lshl_b32 s51, s51, 12",
        f"s_lshl_b32 s92, s{sCBKT}, 7", "s_add_u32 s51, s51, s92", "s_and_b32 s92, s3, 1", "s_lshl_b32 s92, s92, 6", "s_add_u32 s51, s51, s92",
        "s_add_u32 s51, s51, 2048",
        f"v_lshlrev_b32 v{vdst}, 15, v{vcg}", f"v_lshl_add_u32 v{vdst}, v{vrg}, 4, v{vdst}", f"v_add_u32 v{vdst}, s51, v{vdst}")
def SCR(c):
    return ["0", "s32", "s33", "s34"][c] if OPT["fullline"] else ["0", "s69", "s71", "s77"][c]

def emit_B1(a, shadow=None, hook=None, post_mode=None, after_stores=None, nafter=0, after_loads=None, nyoung=0):
    SK, SV, SSH, SKVT = BT_S0, BT_S1, BT_S2, BT_S3
    soff = BT_SOFF; M = BT_MASK
    CG, RG, S0, CH0, VOFF, VH, VST, VSH = 2, 3, 4, 5, 6, 7, 8, 9
    KR, VR, SHR, KF, SHF, KV, TM, PK = 16, 38, 54, 64, 108, 124, 156, 16
    FAST = OPT["fast"]
    def kld():
        for i in range(3):
            a.e(f"buffer_load_dwordx2 {v(KR+2*i,2)}, v{VH}, s[{SK}:{SK+3}], {soff[i>>1]} offen" + (" offset:2048" if i & 1 else "") + (NT() if OPT["ntk"] else ""))
        for i in range(8):
            a.e(f"buffer_load_dwordx2 {v(KR+6+2*i,2)}, v{VOFF}, s[{SK}:{SK+3}], {soff[i>>1]} offen" + (" offset:2048" if i & 1 else "") + (NT() if OPT["ntk"] else ""))
    def shld():
        a.e(f"buffer_load_dwordx4 {v(SHR,4)}, v{VSH}, s[{SSH}:{SSH+3}], 0 offen",
            f"buffer_load_dwordx4 {v(SHR+4,4)}, v{VSH}, s[{SSH}:{SSH+3}], 0 offen offset:16")
    def vld():
        for i in range(8):
            a.e(f"buffer_load_dwordx2 {v(VR+2*i,2)}, v{VOFF}, s[{SV}:{SV+3}], {soff[i>>1]} offen" + (" offset:2048" if i & 1 else "") + NT())
    if FAST:
        a.e(f"s_lshl_b32 s{BT_ROW}, s{sSUBT}, 7", "s_lshl_b32 s51, s3, 5", f"s_add_u32 s{BT_ROW}, s{BT_ROW}, s51", f"s_lshl_b32 s{BT_CH}, s{sCBKT}, 6")
        srd(a, SK, P_K, P_K+1, 4*MB)
        a.e(f"v_and_b32 v{CG}, 15, v1", f"v_lshrrev_b32 v{RG}, 4, v1",
            f"v_lshl_add_u32 v{S0}, v{RG}, 3, s{BT_ROW}", f"v_lshl_add_u32 v{CH0}, v{CG}, 2, s{BT_CH}",
            f"v_lshlrev_b32 v{VOFF}, 11, v{S0}", f"v_lshl_add_u32 v{VOFF}, v{CH0}, 1, v{VOFF}",
            f"v_subrev_u32 v{VH}, 6144, v{VOFF}")
        for i in range(1, 4): a.e(f"s_mov_b32 {BT_SOFF[i]}, {4096*i}")
        kld()
        srd(a, SSH, P_SHK, P_SHK+1, 8192); srd(a, SV, P_V, P_V+1, 4*MB)
        a.e(f"v_lshlrev_b32 v{VSH}, 3, v{CH0}")
        shld(); vld()
        srd(a, SKVT, P_OUT, P_OUT+1, 8*MB)
        for i in range(4, 8): a.e(f"s_mov_b32 {BT_SOFF[i]}, {4096*i}")
        a.e(f"s_mov_b32 s{BT_MASK}, 0xffff0000")
        scratch_addr(a, VST, CG, RG)
    else:
        srd(a, SK, P_K, P_K+1, 4*MB); srd(a, SV, P_V, P_V+1, 4*MB); srd(a, SSH, P_SHK, P_SHK+1, 8192); srd(a, SKVT, P_OUT, P_OUT+1, 8*MB)
        bt_setup(a)
        a.e(f"v_and_b32 v{CG}, 15, v1", f"v_lshrrev_b32 v{RG}, 4, v1",
            f"v_lshl_add_u32 v{S0}, v{RG}, 3, s{BT_ROW}", f"v_lshl_add_u32 v{CH0}, v{CG}, 2, s{BT_CH}",
            f"v_lshlrev_b32 v{VOFF}, 11, v{S0}", f"v_lshl_add_u32 v{VOFF}, v{CH0}, 1, v{VOFF}",
            f"v_subrev_u32 v{VH}, 6144, v{VOFF}",
            f"v_lshlrev_b32 v{VSH}, 3, v{CH0}")
        scratch_addr(a, VST, CG, RG)
        if OPT["bactwait"] and OPT["b1all"]:
            Lw = newlbl("bw")
            a.e(f"s_cmp_eq_u32 s{sACT}, 0", f"s_cbranch_scc1 {Lw}", "s_waitcnt lgkmcnt(0)")
            a.label(Lw)
        if OPT["earlypub"]:
            Lp = newlbl("epub")
            a.e("s_cmp_lg_u32 s3, 0", f"s_cbranch_scc1 {Lp}")
            fin_epoch(a); loc_publish(a)
            a.label(Lp)
        shld(); kld(); vld()
    if OPT["fast"] >= 2: common_rest(a)
    if after_loads: after_loads()
    stamp(a, 2)
    if OPT["earlypub"]:
        Lq = newlbl("epub2")
        a.e("s_cmp_eq_u32 s3, 0", f"s_cbranch_scc1 {Lq}")
        fin_epoch(a)
        a.label(Lq)
    else:
        fin_epoch(a)
        loc_publish(a)
    if shadow: shadow()
    def wv(n, extra):
        n += nyoung
        if extra and not OPT["earlypub"]:
            L = newlbl("wv")
            a.e(f"s_cbranch_scc1 {L}", f"s_waitcnt vmcnt({n})")
            a.label(L)
            a.e(f"s_waitcnt vmcnt({n+extra})")
        elif extra == 2 and OPT["earlypub"]:
            L = newlbl("wv")
            a.e(f"s_cbranch_scc1 {L}", f"s_waitcnt vmcnt({n})")
            a.label(L)
            a.e(f"s_waitcnt vmcnt({n+1})")
        else:
            a.e(f"s_waitcnt vmcnt({n})")
    a.e("s_cmp_eq_u32 s3, 0")
    def unsh():
        for ch in range(4):
            for j in range(4):
                src = SHR + 2*ch + (j >> 1)
                if j & 1: a.e(f"v_and_b32 v{SHF+4*j+ch}, s{M}, v{src}")
                else:     a.e(f"v_lshlrev_b32 v{SHF+4*j+ch}, 16, v{src}")
    if not FAST:
        wv(19, 1); unsh()
    for i in range(11):
        wv((20-i) if FAST else (18-i), 1)
        for hf in range(2):
            a.e(f"v_lshlrev_b32 v{KF+4*i+2*hf}, 16, v{KR+2*i+hf}", f"v_and_b32 v{KF+4*i+2*hf+1}, s{M}, v{KR+2*i+hf}")
    if FAST:
        wv(8, 1); unsh()
    loc_issue(a, 10)
    a.e("s_cmp_eq_u32 s3, 0")
    for i in range(8):
        wv(7-i, 2)
        if i == 7 and hook: hook()
        for hf in range(2):
            a.e(f"v_lshlrev_b32 v{TM+2*hf}, 16, v{VR+2*i+hf}", f"v_and_b32 v{TM+2*hf+1}, s{M}, v{VR+2*i+hf}")
        for hf in range(2):
            acc = KV+4*i+2*hf
            a.e(f"v_pk_mul_f32 {v(acc,2)}, {v(KF+4*(i+3)+2*hf,2)}, {v(SHF+2*hf,2)}")
            for j in range(1, 4):
                a.e(f"v_pk_fma_f32 {v(acc,2)}, {v(KF+4*(i+3-j)+2*hf,2)}, {v(SHF+4*j+2*hf,2)}, {v(acc,2)}")
            a.e(f"v_pk_mul_f32 {v(acc,2)}, {v(acc,2)}, {v(TM+2*hf,2)}")
    stamp(a, 3)
    for ch in range(4):
        for m in range(4):
            a.e(f"v_cvt_pk_bf16_f32 v{PK+4*ch+m}, v{KV+4*(7-2*m)+ch}, v{KV+4*(6-2*m)+ch}")
    sts = [f"buffer_store_dwordx4 {v(PK+4*ch,4)}, v{VST}, s[{SKVT}:{SKVT+3}], {SCR(ch)} offen" for ch in range(4)]
    if OPT["twoflag"]:
        for l in sts: a.e(l + (" nt" if OPT["ntscr"] else ""))
        stamp(a, 4)
        a.e(f"s_lshl_b32 s51, s{sCBKT}, 4", f"s_add_u32 s51, s51, s{sSUBT}", f"s_lshl_b32 s51, s51, {FB()}", f"s_add_u32 s92, s51, {SY_B1}")
        La = newlbl("siga")
        a.e("s_waitcnt vmcnt(0)", "s_barrier", "s_cmp_lg_u32 s3, 0", f"s_cbranch_scc1 {La}",
            "v_mov_b32 v14, s92", f"v_mov_b32 v15, s{S_TGT}", "s_mov_b64 exec, 1",
            f"buffer_store_dword v15, v14, s[{S_SYN}:{S_SYN+3}], 0 offen", "s_mov_b64 exec, -1")
        a.label(La)
        if after_stores: after_stores()
        loc_resolve(a, 10, nafter=nafter + 1 if after_stores else 1)
        Lo = newlbl("opt")
        a.e(f"s_cmp_lg_u32 s{sLOC}, 0", f"s_cbranch_scc1 {Lo}", "s_waitcnt vmcnt(0)")
        for l in sts: a.e(l + " sc1")
        a.e(f"s_add_u32 s51, s51, {SY_B1B}")
        signal(a, 51, 14)
        a.label(Lo)
        return
    if OPT["optst"]:
        for l in sts: a.e(l)
        if after_stores: after_stores()
        loc_resolve(a, 10, nafter=nafter)
        Lo = newlbl("opt")
        a.e(f"s_cmp_lg_u32 s{sLOC}, 0", f"s_cbranch_scc1 {Lo}", "s_waitcnt vmcnt(0)")
        for l in sts: a.e(l + " sc1")
        a.e("s_waitcnt vmcnt(0)")
        a.label(Lo)
    else:
        loc_resolve(a, 10)
        dual_store(a, sts)
    stamp(a, 4)
    a.e(f"s_lshl_b32 s51, s{sCBKT}, 4", f"s_add_u32 s51, s51, s{sSUBT}", f"s_lshl_b32 s51, s51, {FB()}", f"s_add_u32 s51, s51, {SY_B1}")
    signal(a, 51, 14, nafter=nafter, bloc=True)

B3_QR, B3_VQ, B3_VT, B3_VO = 208, 224, 225, 226
def emit_B3_pre_n(a):
    SQ, STT, SOUT = BT_S0, BT_S1, BT_S2
    srd(a, SQ, P_Q, P_Q+1, 4*MB); srd(a, SOUT, P_OUT, P_OUT+1, 8*MB)
    bt_setup(a)
    t = 227
    a.e(f"v_and_b32 v{t}, 15, v1", f"v_lshrrev_b32 v{t+1}, 4, v1",
        f"v_lshl_add_u32 v{t+1}, v{t+1}, 3, s{BT_ROW}", f"v_lshl_add_u32 v{t}, v{t}, 2, s{BT_CH}",
        f"v_lshlrev_b32 v{B3_VQ}, 11, v{t+1}", f"v_lshl_add_u32 v{B3_VQ}, v{t}, 1, v{B3_VQ}",
        f"v_lshlrev_b32 v{B3_VO}, 12, v{t+1}", f"v_lshl_add_u32 v{B3_VO}, v{t}, 1, v{B3_VO}", f"v_add_u32 v{B3_VO}, 2048, v{B3_VO}")
    a.e(f"v_and_b32 v{t}, 15, v1", f"v_lshrrev_b32 v{t+1}, 4, v1")
    scratch_addr(a, B3_VT, t, t+1)
    for i in range(8):
        a.e(f"buffer_load_dwordx2 {v(B3_QR+2*i,2)}, v{B3_VQ}, s[{SQ}:{SQ+3}], {BT_SOFF[i>>1]} offen" + (" offset:2048" if i & 1 else "") + NT())

def emit_B3_n(a):
    SQ, STT, SOUT = BT_S0, BT_S1, BT_S2
    soff = BT_SOFF; M = BT_MASK
    TR, TF, QF = 16, 48, 80
    a.e(f"s_mov_b32 s{M}, 0xffff0000")
    a.e(f"s_lshl_b32 s51, s{sCBKT}, {4+FB()}", f"s_add_u32 s51, s51, {SY_B2}",
        "v_and_b32 v12, 15, v1", f"v_lshlrev_b32 v12, {FB()}, v12", "v_add_u32 v12, s51, v12")
    a.e("s_waitcnt vmcnt(0)")
    for e in range(8):
        qf = QF + 4*e
        for hf in range(2):
            a.e(f"v_lshlrev_b32 v{qf+2*hf}, 16, v{B3_QR+2*e+hf}", f"v_and_b32 v{qf+2*hf+1}, s{M}, v{B3_QR+2*e+hf}")
    wait_flags(a, 12, 1, 13, 51)
    stamp(a, 10)
    for ch in range(4):
        a.e(f"buffer_load_dwordx4 {v(TR+4*ch,4)}, v{B3_VT}, s[{SOUT}:{SOUT+3}], {SCR(ch)} offen" + LDL())
    for ch in range(4):
        a.e(f"s_waitcnt vmcnt({3-ch})")
        for e in range(8):
            src = TR+4*ch+(e >> 1)
            if e & 1: a.e(f"v_and_b32 v{TF+4*e+ch}, s{M}, v{src}")
            else:     a.e(f"v_lshlrev_b32 v{TF+4*e+ch}, 16, v{src}")
    a.e("s_barrier")
    for e in range(8):
        qf = QF + 4*e
        for hf in range(2):
            a.e(f"v_pk_mul_f32 {v(qf+2*hf,2)}, {v(qf+2*hf,2)}, {v(TF+4*e+2*hf,2)}")
        pk = 112+2*e
        for hf in range(2):
            a.e(f"v_cvt_pk_bf16_f32 v{pk+hf}, v{qf+2*hf}, v{qf+2*hf+1}")
        a.e(f"buffer_store_dwordx2 {v(pk,2)}, v{B3_VO}, s[{SOUT}:{SOUT+3}], {soff[e]} offen" + NTOB())

def emit_B3_pre_w(a):
    SQ, STT, SOUT = BT_S0, BT_S1, BT_S2
    srd(a, SQ, P_Q, P_Q+1, 4*MB); srd(a, SOUT, P_OUT, P_OUT+1, 8*MB)
    bt_setup(a)
    t = 227
    a.e(f"v_and_b32 v{t}, 7, v1", f"v_lshrrev_b32 v{t+1}, 3, v1")
    a.e(f"s_lshl_b32 s51, s{sSUBT}, 7", "s_lshl_b32 s92, s3, 5", "s_add_u32 s51, s51, s92", "s_lshl_b32 s51, s51, 12",
        f"s_lshl_b32 s92, s{sCBKT}, 7", "s_add_u32 s51, s51, s92", "s_add_u32 s51, s51, 2048",
        f"v_lshlrev_b32 v{B3_VT}, 12, v{t}", f"v_lshl_add_u32 v{B3_VT}, v{t+1}, 3, v{B3_VT}", f"v_add_u32 v{B3_VT}, s51, v{B3_VT}",
        "s_mov_b32 s32, 32768", "s_mov_b32 s33, 65536", "s_mov_b32 s34, 98304")
    a.e(f"v_lshl_add_u32 v{t+1}, v{t+1}, 2, s{BT_ROW}", f"v_lshl_add_u32 v{t}, v{t}, 3, s{BT_CH}",
        f"v_lshlrev_b32 v{B3_VQ}, 11, v{t+1}", f"v_lshl_add_u32 v{B3_VQ}, v{t}, 1, v{B3_VQ}",
        f"v_lshlrev_b32 v{B3_VO}, 12, v{t+1}", f"v_lshl_add_u32 v{B3_VO}, v{t}, 1, v{B3_VO}", f"v_add_u32 v{B3_VO}, 2048, v{B3_VO}")
    for e in range(4):
        a.e(f"buffer_load_dwordx4 {v(B3_QR+4*e,4)}, v{B3_VQ}, s[{SQ}:{SQ+3}], {BT_SOFF[e>>1]} offen" + (" offset:2048" if e & 1 else "") + NT())

def emit_B3_w(a):
    SQ, STT, SOUT = BT_S0, BT_S1, BT_S2
    soff = BT_SOFF; M = BT_MASK
    TR, TF, QF = 16, 48, 80
    a.e(f"s_mov_b32 s{M}, 0xffff0000")
    a.e(f"s_lshl_b32 s51, s{sCBKT}, {4+FB()}", f"s_add_u32 s51, s51, {SY_B2}",
        "v_and_b32 v12, 15, v1", f"v_lshlrev_b32 v12, {FB()}, v12", "v_add_u32 v12, s51, v12")
    a.e("s_waitcnt vmcnt(0)")
    for e in range(4):
        for d in range(4):
            a.e(f"v_lshlrev_b32 v{QF+8*e+2*d}, 16, v{B3_QR+4*e+d}", f"v_and_b32 v{QF+8*e+2*d+1}, s{M}, v{B3_QR+4*e+d}")
    wait_flags(a, 12, 1, 13, 51)
    stamp(a, 10)
    for c in range(8):
        a.e(f"buffer_load_dwordx2 {v(TR+2*c,2)}, v{B3_VT}, s[{SOUT}:{SOUT+3}], {SCR(c & 3)} offen" + (" offset:64" if c >> 2 else "") + LDL())
    for c in range(8):
        a.e(f"s_waitcnt vmcnt({7-c})")
        for e in range(4):
            src = TR+2*c+(e >> 1)
            if e & 1: a.e(f"v_and_b32 v{TF+8*e+c}, s{M}, v{src}")
            else:     a.e(f"v_lshlrev_b32 v{TF+8*e+c}, 16, v{src}")
    a.e("s_barrier")
    for e in range(4):
        for d in range(4):
            a.e(f"v_pk_mul_f32 {v(QF+8*e+2*d,2)}, {v(QF+8*e+2*d,2)}, {v(TF+8*e+2*d,2)}")
        pk = 112+4*e
        for d in range(4):
            a.e(f"v_cvt_pk_bf16_f32 v{pk+d}, v{QF+8*e+2*d}, v{QF+8*e+2*d+1}")
        a.e(f"buffer_store_dwordx4 {v(pk,4)}, v{B3_VO}, s[{SOUT}:{SOUT+3}], {soff[e]} offen" + NTOB())

def emit_B3_pre(a): (emit_B3_pre_w if OPT["b3w"] else emit_B3_pre_n)(a)
def emit_B3(a): (emit_B3_w if OPT["b3w"] else emit_B3_n)(a)

def gen_A(a):
    ROLE[0] = 'A'
    SX, SI1, SWR, SWI, SI2, SOUT = 32, 36, 80, 84, 32, 36
    a.e(f"s_setprio {OPT['prioA']}") if OPT['prioA'] else None
    sT, sSA, sCB, sJ, sJM, sJP, sJQ, sTL = 40, 41, 42, 43, 72, 73, 74, 44
    def rows():
        srd(a, SI1, P_WS, P_WS+1, 4*MB, add=WS_I1)
        srd(a, SWR, P_WR, P_WR+1, WBYTES); srd(a, SWI, P_WI, P_WI+1, WBYTES)
        Lr = newlbl("reg")
        a.e("s_lshl_b32 s47, s3, 9", f"s_add_u32 s{sJ}, s{sT}, s47", f"s_mov_b32 s{sJP}, s{sT}", f"s_sub_u32 s{sJQ}, 512, s{sT}",
            f"s_cmp_lg_u32 s{sT}, 0", f"s_cbranch_scc1 {Lr}",
            f"s_mov_b32 s{sJQ}, 256", "s_lshl_b32 s47, s3, 2", "s_lshr_b32 s46, 0x3120, s47", "s_and_b32 s46, s46, 15", f"s_lshl_b32 s{sJ}, s46, 8")
        a.label(Lr)
        a.e(f"s_sub_u32 s{sJM}, 2048, s{sJ}", f"s_and_b32 s{sJM}, s{sJM}, 2047",
            f"s_mul_i32 s{sJ}, s{sJ}, 1026", f"s_mul_i32 s{sJM}, s{sJM}, 1026")
        a.e(f"s_or_b32 s75, s{sT}, s3")
    def wstage():
        a.e("v_lshlrev_b32 v243, 4, v1", "s_lshl_b32 s46, s3, 12", f"s_add_u32 s46, s46, {LW}")
        w_dma(a, SWR, SWI, sJ, sJM, 46, 243)
        pf_loads(a, SWR, SWI, sJ, sJM, PF, 244)
        if not OPT["spec2"]: wstage2()
    def wstage2():
        Ln = newlbl("now2")
        a.e("s_cmp_lg_u32 s75, 0", f"s_cbranch_scc1 {Ln}")
        a.e("v_lshlrev_b32 v243, 4, v1", f"s_mov_b32 s47, {1024*1026}", f"s_mov_b32 s46, {LW2}")
        w_dma(a, SWR, SWI, 47, 47, 46, 243)
        pf_loads(a, SWR, SWI, 47, 47, PF2, 244)
        a.label(Ln)
    if OPT["pairx"]:
        a.e(f"s_and_b32 s48, s{sCU}, 7", "s_lshl_b32 s48, s48, 4", f"s_lshr_b32 s49, s{sCU}, 4", "s_add_u32 s48, s48, s49",
            "s_sub_u32 s49, 256, s48", "s_cmp_eq_u32 s48, 0", "s_cselect_b32 s49, 128, s49",
            f"s_bitcmp1_b32 s{sCU}, 3", f"s_cselect_b32 s{sT}, s49, s48")
    else:
        a.e(f"s_mov_b32 s{sT}, s{sCU}")
    stamp(a, 0, True); stamp(a, 1)
    Lp1 = newlbl("nop1")
    if OPT["pA1a"] >= 0:
        if OPT["latem"]:
            Lm = newlbl("lateA")
            a.e("s_and_b32 s92, s2, 7", f"s_lshr_b32 s92, {OPT['latem']}, s92", "s_bitcmp1_b32 s92, 0", f"s_cbranch_scc1 {Lm}", f"s_setprio {OPT['pA1a']}")
            a.label(Lm)
        else:
            a.e(f"s_setprio {OPT['pA1a']}")
    srd(a, SX, P_X, P_X+1, 4*MB)
    a.e(f"s_lshr_b32 s48, s{sCU}, 3", f"s_and_b32 s49, s{sCU}, 7", f"s_lshr_b32 s{sSA}, s48, 2", "s_bfe_u32 s50, s48, 0x10001",
        "s_lshl_b32 s50, s50, 3", "s_add_u32 s50, s50, s49", "s_lshl_b32 s50, s50, 1", "s_and_b32 s51, s48, 1", f"s_add_u32 s{sCB}, s50, s51")
    f256_loads(a, SX, sSA, sCB, NT() if OPT["ntx"] else "")
    if OPT["fast"] >= 2:
        a.e("s_mov_b32 s45, s48")
        common_rest(a)
    stamp(a, 12)
    f256_setup(a)
    rows()
    wstage2()
    f256_run(a, SI1, 0)
    stamp(a, 4)
    if OPT["cearly"]:
        a.e("s_nop 1")
        a2_consts(a, sT)
    if OPT["wpoll"]:
        a.e(f"s_lshl_b32 s48, s{sCB}, 3", f"s_add_u32 s48, s48, s{sSA}", f"s_lshl_b32 s48, s48, {FA()}", f"s_add_u32 s48, s48, {SY_A1}")
    else:
        a.e(f"s_lshl_b32 s48, s{sCU}, {FA()}", f"s_add_u32 s48, s48, {SY_A1}")
    fin_epoch(a)
    signal(a, 48, 240)
    a.label(Lp1)
    pair_pubA(a)
    if OPT["pA1i"] >= 0 or OPT["pA1a"] >= 0: a.e(f"s_setprio {OPT['prioA']}")
    stamp(a, 5)
    if OPT["wlate"] == 2: wstage()
    srd(a, SI2, P_WS, P_WS+1, 4*MB, add=WS_I2)
    if not OPT["cearly"]: a2_consts(a, sT)
    a.e(f"v_lshl_add_u32 v{TMP}, v{G_}, 7, v{IDX}",
        "s_lshl_b32 s48, s3, 12", f"s_add_u32 s48, s48, {LW}",
        f"v_lshl_add_u32 v{VW}, v{TMP}, 1, s48",
        f"v_sub_u32 v{TMP+1}, {1023-32*27}, v{TMP}", f"s_add_u32 s49, s48, 2048", f"v_lshl_add_u32 v{VW+1}, v{TMP+1}, 1, s49")
    a.e(f"v_lshlrev_b32 v{VG}, 12, v{G_}", f"v_lshl_add_u32 v{VG}, v{IDX}, 2, v{VG}",
        "s_lshl_b32 s49, s3, 9",
        f"s_lshl_b32 s52, s{sJP}, 13", "s_add_u32 s52, s52, s49",
        f"s_lshl_b32 s53, s{sJQ}, 13", "s_add_u32 s53, s53, s49")
    a.e(f"s_lshl_b32 s54, s{sT}, 14", "s_add_u32 s54, s54, s49", f"s_sub_u32 s55, 256, s{sT}", "s_and_b32 s55, s55, 255", "s_lshl_b32 s55, s55, 14", "s_add_u32 s55, s55, s49",
        "s_add_u32 s56, s54, 8192", "s_add_u32 s57, s55, 8192")
    a.e(f"v_lshlrev_b32 v{VGW}, 12, v{G_}", f"v_lshl_add_u32 v{VGW}, v{IDX}, 3, v{VGW}", "s_lshl_b32 s50, s3, 10", f"v_add_u32 v{VGW}, s50, v{VGW}",
        f"v_lshlrev_b32 v{VRR}, 9, v{G_}", f"v_lshl_add_u32 v{VRR}, v{IDX}, 2, v{VRR}", "s_lshl_b32 s51, s3, 12", f"v_add_u32 v{VRR}, s51, v{VRR}")
    for t in range(1, 4): a.e(f"v_add_u32 v{VRR+t}, {1024*t}, v{VRR}")
    a.e(f"v_lshrrev_b32 v{TMP}, 4, v1", f"v_and_b32 v{TMP+1}, 1, v{TMP}", f"v_lshlrev_b32 v{VHR}, 13, v{TMP+1}",
        f"v_lshrrev_b32 v{TMP+1}, 1, v{TMP}", f"v_lshl_add_u32 v{VHR}, v{TMP+1}, 7, v{VHR}",
        f"v_and_b32 v{TMP+1}, 15, v1", f"v_lshl_add_u32 v{VHR}, v{TMP+1}, 3, v{VHR}", f"v_add_u32 v{VHR}, s50, v{VHR}")
    a.e(f"v_and_b32 v{TMP+2}, 1, v{TMP+1}", f"v_mov_b32 v{TMP+3}, s52", f"v_mov_b32 v{TMP+4}, s53",
        f"v_cmp_eq_u32 vcc, 1, v{TMP+2}", f"v_cndmask_b32 v{VST}, v{TMP+3}, v{TMP+4}, vcc",
        f"v_bfe_u32 v{TMP+2}, v{TMP+1}, 1, 2", f"v_lshl_add_u32 v{VST}, v{TMP+2}, 11, v{VST}",
        f"v_lshrrev_b32 v{TMP+2}, 3, v{TMP+1}", f"v_lshl_add_u32 v{VST}, v{TMP+2}, 6, v{VST}",
        f"v_lshl_add_u32 v{VST}, v{TMP}, 4, v{VST}")
    a.e(f"v_lshlrev_b32 v{TMP}, {FA()}, v1", f"v_add_u32 v{TMP}, {SY_A1}, v{TMP}")
    stamp(a, 6)
    if OPT["wpoll"]:
        a.e(f"s_lshl_b32 s48, s3, {6+FA()}", f"v_add_u32 v{TMP}, s48, v{TMP}")
        wait_flags(a, TMP, 1, TMP+1, 48, solo=True)
    else:
        wait_flags(a, TMP, 4, TMP+1, 48)
    if OPT["yieldB"] == 1: a_state(a, sCU, 1, TMP)
    stamp(a, 7)
    def gfrag(u, ks): return (GB if u < 2 else DF) + 8*(u & 1) + 4*ks
    for u in range(4):
        for ks in range(2):
            for sl in range(2):
                for pq in range(2):
                    a.e(f"buffer_load_dword v{gfrag(u,ks)+2*sl+pq}, v{VG}, s[{SI1}:{SI1+3}], s{54+2*ks+pq} offen offset:{2048*sl+128*u} " + GLD())
    NWL = 0
    if OPT["wlate"] == 1:
        wstage(); NWL = 8
        if not OPT["spec2"]:
            Lsw = newlbl("spw")
            a.e("s_cmp_lg_u32 s75, 0", f"s_cbranch_scc1 {Lsw}", "s_waitcnt vmcnt(0)")
            a.label(Lsw)
    for rnd in range(2):
        a.e(f"s_waitcnt vmcnt({16-16*rnd+NWL})")
        if rnd == OPT.get("yat", 1) and OPT["yieldB"] == 3:
            a_state(a, sCU, 1, 240)
        for uu in range(2):
            u = 2*rnd+uu
            D = ARE if uu == 0 else AIM
            a.e(f"v_mfma_f32_32x32x16_bf16 {v(D,16)}, {v(GA,4)}, {v(gfrag(u,0),4)}, 0",
                f"v_mfma_f32_32x32x16_bf16 {v(D,16)}, {v(GA2,4)}, {v(gfrag(u,1),4)}, {v(D,16)}")
        for uu in range(2):
            u = 2*rnd+uu
            D = ARE if uu == 0 else AIM
            t = TMP+4*uu
            for h in range(2):
                a.e(f"v_cvt_pk_bf16_f32 v{t}, v{D+4*h}, v{D+4*h+1}", f"v_cvt_pk_bf16_f32 v{t+1}, v{D+4*h+2}, v{D+4*h+3}",
                    f"ds_write_b64 v{VGW}, {v(t,2)} offset:{256*u+8192*h}")
                t += 2
    a.e("s_waitcnt lgkmcnt(0)", "s_barrier")
    stamp(a, 8)
    if OPT["qA"] and not OPT["a3all"]:
        Lq = newlbl("noqA")
        a.e(f"s_cmp_lg_u32 s{sACT}, 0", f"s_cbranch_scc1 {Lq}")
        emit_B3_pre(a)
        a.label(Lq)
    for t in range(4):
        a.e(f"ds_read2_b32 {v(DF+4*t,2)}, v{VRR+t} offset0:0 offset1:32", f"ds_read2_b32 {v(DF+4*t+2,2)}, v{VRR+t} offset0:64 offset1:96")
    a.e("s_waitcnt lgkmcnt(0)")
    Lsp, Linv, Lfwd, Lpre = newlbl("special"), newlbl("inv"), newlbl("fwd"), newlbl("pre")
    sPASS = 45
    Ljoin = newlbl("join")
    if OPT["ilv"]:
        assert OPT["wlate"] == 2 and OPT["spec2"]
        Lold = newlbl("old")
        w_lds_reads(a, VW, VW+1, WR, WI)
        a.e("s_cmp_eq_u32 s75, 0", f"s_cbranch_scc1 {Lold}")
        row_ilv(a)
        a.e(f"s_branch {Ljoin}")
        a.label(Lold)
    if OPT["spec2"]:
        a.e(f"s_mov_b32 s{sPASS}, 0", "s_cmp_lg_u32 s75, 0", f"s_cbranch_scc1 {Lpre}")
        for i in range(16): a.e(f"v_lshrrev_b32 v{GB+i}, 16, v{DF+i}", f"v_and_b32 v{DF+i}, 0xffff, v{DF+i}")
        a.label(Lpre)
    def wmid():
        Lk = newlbl("wskip")
        if OPT["spec2"]: a.e(f"s_cmp_lg_u32 s{sPASS}, 0", f"s_cbranch_scc1 {Lk}")
        if OPT["qA"] and not OPT["a3all"]:
            L1, L2 = newlbl("wa"), newlbl("wb")
            a.e(f"s_cmp_lg_u32 s{sACT}, 0", f"s_cbranch_scc1 {L1}", "s_waitcnt vmcnt(8)", f"s_branch {L2}")
            a.label(L1); a.e("s_waitcnt vmcnt(0)"); a.label(L2)
        else:
            a.e("s_waitcnt vmcnt(0)")
        w_lds_reads(a, VW, VW+1, WR, WI)
        a.label(Lk)
    if OPT["wlate"] == 1:
        a.label(Lfwd); a.e("s_nop 1")
        fft1024(a, mid=wmid)
    else:
        if not OPT["ilv"]: w_lds_reads(a, VW, VW+1, WR, WI)
        a.label(Lfwd); a.e("s_nop 1")
        fft1024(a)
    a.e("s_waitcnt lgkmcnt(0)")
    Lnf = newlbl("nofix")
    if OPT["spec2"]: a.e(f"s_cmp_lg_u32 s{sPASS}, 0", f"s_cbranch_scc1 {Lnf}")
    fix_w(a, WR, WI, PF)
    a.label(Lnf)
    a.e("s_cmp_eq_u32 s75, 0", f"s_cbranch_scc1 {Lsp}")
    for p in range(8):
        xr, xi, wr, wi = ARE+2*p, AIM+2*p, WR+2*p, WI+2*p
        t0 = TMP+4*(p & 1); t1 = t0+2
        n0 = " neg_lo:[1,0,0] neg_hi:[1,0,0]" if p < 4 else ""
        n1 = "" if p < 4 else " neg_lo:[1,0,0] neg_hi:[1,0,0]"
        a.e(f"v_pk_mul_f32 {v(t0,2)}, {v(xr,2)}, {v(wr,2)}", f"v_pk_mul_f32 {v(t1,2)}, {v(xi,2)}, {v(wr,2)}",
            f"v_pk_fma_f32 {v(t0,2)}, {v(xi,2)}, {v(wi,2)}, {v(t0,2)}{n0}",
            f"v_pk_fma_f32 {v(t1,2)}, {v(xr,2)}, {v(wi,2)}, {v(t1,2)}{n1}")
        for e in range(2):
            a.e(f"v_cvt_pk_bf16_f32 v{DF+2*p+e}, v{t0+e}, -v{t1+e}")
    a.label(Linv)
    a.e("s_nop 1")
    fft1024(a)
    for r in range(16):
        t = TMP + (r & 7)
        a.e(f"v_cvt_pk_bf16_f32 v{t}, v{ARE+r}, v{AIM+r}", f"ds_write_b32 v{VRR}, v{t} offset:{128*eidx(r)}")
    a.label(Ljoin)
    a.e("s_waitcnt lgkmcnt(0)", "s_barrier")
    if OPT["yieldB"]:
        Ly = newlbl("y0a")
        if OPT["y0"]: a.e(f"s_cmp_lg_u32 s{sT}, 0", f"s_cbranch_scc1 {Ly}")
        a_state(a, sCU, 2, TMP)
        a.label(Ly)
    stamp(a, 9)
    for u in range(4):
        for sl in range(2):
            a.e(f"ds_read_b64 {v(GB+4*u+2*sl,2)}, v{VHR} offset:{4096*sl+256*u}")
    a.e("s_lshl_b32 s49, s3, 9")
    for u in range(4):
        a.e(f"s_waitcnt lgkmcnt({6-2*u})")
        a.e(f"v_mfma_f32_16x16x32_bf16 {v(ARE+4*u,4)}, {v(GB+4*u,4)}, {v(HRE,4)}, 0",
            f"v_mfma_f32_16x16x32_bf16 {v(AIM+4*u,4)}, {v(GB+4*u,4)}, {v(HIM,4)}, 0")
    for u in range(4):
        for r in range(4):
            a.e(f"v_cvt_pk_bf16_f32 v{DF+4*u+r}, v{ARE+4*u+r}, v{AIM+4*u+r}")
        a.e(f"buffer_store_dwordx4 {v(DF+4*u,4)}, v{VST}, s[{SI2}:{SI2+3}], 0 offen offset:{128*u} sc1")
    dstamp(a, 6); dpublish(a, sT)
    a.e(f"s_lshl_b32 s48, s{sT}, {FA()}", f"s_add_u32 s48, s48, {SY_A2}")
    signal(a, 48, TMP)
    stamp(a, 10)
    Lb3 = newlbl("b3")
    if OPT["a3all"]:
        srd(a, SOUT, P_OUT, P_OUT+1, 8*MB)
        a.e(f"s_lshr_b32 s48, s{sCU}, 3", f"s_and_b32 s49, s{sCU}, 7", f"s_lshr_b32 s{sSA}, s48, 3", "s_bfe_u32 s50, s48, 0x10002",
            "s_lshl_b32 s50, s50, 3", "s_add_u32 s50, s50, s49", "s_lshl_b32 s50, s50, 2", "s_and_b32 s51, s48, 3", f"s_add_u32 s{sCB}, s50, s51")
        f8_addr(a, sSA, sCB, 4096, 16384)
        f8_consts(a)
        a.e(f"v_lshlrev_b32 v{F_TMP}, {FA()}, v1", f"v_add_u32 v{F_TMP}, {SY_A2}, v{F_TMP}")
        wait_flags(a, F_TMP, 4, F_TMP+1, 48, skip0=47 if OPT["t0late"] else None)
        stamp(a, 11)
        PHASE[0] = 3
        fstamp(a, 11)
        f8_run(a, SI2, SOUT, {0: "sc1", 1: "nt", 2: ""}[OPT["i2ld"]], NTO(), sT0=47 if OPT["t0late"] else None)
    else:
        a.e(f"s_cmp_eq_u32 s{sACT}, 0", f"s_cbranch_scc1 {Lb3}")
        srd(a, SOUT, P_OUT, P_OUT+1, 8*MB)
        fft512_addr(a, sSA, sCB)
        fft512_addr2(a, sSA, sCB, 4096, 16384)
        fft512_consts(a)
        a.e(f"v_lshlrev_b32 v{F_TMP}, {FA()}, v1", f"v_add_u32 v{F_TMP}, {SY_A2}, v{F_TMP}")
        wait_flags(a, F_TMP, 4, F_TMP+1, 48)
        stamp(a, 11)
        PHASE[0] = 3
        fstamp(a, 11)
        fft512_loads(a, SI2, "sc1")
        fstamp(a, 3)
        save = gen.PROF; gen.PROF = False
        fft512_compute(a, SOUT, True, 0, NTO(), 0)
        gen.PROF = save
    a.e("s_cmp_lg_u32 s75, 0", "s_cbranch_scc1 L_fin")
    Lb1, Lb2 = newlbl("bchk"), newlbl("bchkd")
    a.e("v_lshlrev_b32 v2, 6, v1", f"v_add_u32 v2, {SY_ID}, v2", f"s_lshl_b32 s49, s{S_TGT}, 4", "s_mov_b32 s48, 0")
    a.label(Lb1)
    NS = NMEM()*8//64
    for i in range(NS):
        a.e(f"s_mov_b32 s50, {4096*i}", f"buffer_load_dword v{4+i}, v2, s[{S_SYN}:{S_SYN+3}], s50 offen sc1")
    a.e("s_add_u32 s48, s48, 1", "s_waitcnt vmcnt(0)")
    for i in range(NS): a.e(f"v_xor_b32 v{4+i}, s49, v{4+i}")
    for i in range(1, NS): a.e(f"v_or_b32 v4, v4, v{4+i}")
    a.e("v_lshrrev_b32 v4, 4, v4", "v_cmp_ne_u32 vcc, 0, v4", f"s_cbranch_vccz {Lb2}", f"s_cmp_lt_u32 s48, {SPIN_LIMIT}", f"s_cbranch_scc1 {Lb1}")
    a.label(Lb2)
    dreduce(a)
    pair_sum(a)
    a.e(f"s_mov_b32 s48, {SY_E}")
    bump(a, 48, 2)
    a.e("s_branch L_fin")
    if not OPT["a3all"]:
        a.label(Lb3)
        if not OPT["qA"]: emit_B3_pre(a)
        emit_B3(a)
        a.e("s_branch L_fin")
    a.label(Lsp)
    if OPT["spec2"]:
        Lp1s = newlbl("sp1")
        NEG = " neg_lo:[1,0,0] neg_hi:[1,0,0]"
        a.e(f"s_cmp_lg_u32 s{sPASS}, 0", f"s_cbranch_scc1 {Lp1s}")
        a.e(f"v_lshl_add_u32 v{SP}, v{G_}, 7, v{IDX}", f"v_sub_u32 v{SP+1}, {1023-32*27}, v{SP}",
            f"s_mov_b32 s48, {LW2}", f"v_lshl_add_u32 v{SP+2}, v{SP}, 1, s48", f"s_mov_b32 s49, {LW2+2048}", f"v_lshl_add_u32 v{SP+3}, v{SP+1}, 1, s49")
        w_lds_reads(a, SP+2, SP+3, W2R, W2I)
        for p in range(8):
            xr, xi, wr, wi = ARE+2*p, AIM+2*p, WR+2*p, WI+2*p
            t0 = TMP+4*(p & 1); t1 = t0+2
            n0 = NEG if p < 4 else ""; n1 = "" if p < 4 else NEG
            a.e(f"v_pk_mul_f32 {v(t0,2)}, {v(xr,2)}, {v(wr,2)}", f"v_pk_mul_f32 {v(t1,2)}, {v(xi,2)}, {v(wr,2)}",
                f"v_pk_fma_f32 {v(wr,2)}, {v(xi,2)}, {v(wi,2)}, {v(t0,2)}{n0}",
                f"v_pk_fma_f32 {v(wi,2)}, {v(xr,2)}, {v(wi,2)}, {v(t1,2)}{n1}")
        for i in range(16): a.e(f"v_mov_b32 v{DF+i}, v{GB+i}")
        a.e(f"s_mov_b32 s{sPASS}, 1", f"s_branch {Lfwd}")
        a.label(Lp1s)
        fix_w(a, W2R, W2I, PF2)
        for p in range(8):
            xr, xi, br, bi, r1r, r1i = ARE+2*p, AIM+2*p, W2R+2*p, W2I+2*p, WR+2*p, WI+2*p
            t0 = TMP+4*(p & 1); t1 = t0+2
            n0 = NEG if p < 4 else ""; n1 = "" if p < 4 else NEG
            a.e(f"v_pk_mul_f32 {v(t0,2)}, {v(xr,2)}, {v(br,2)}", f"v_pk_mul_f32 {v(t1,2)}, {v(xi,2)}, {v(br,2)}",
                f"v_pk_fma_f32 {v(t0,2)}, {v(xi,2)}, {v(bi,2)}, {v(t0,2)}{n0}",
                f"v_pk_fma_f32 {v(t1,2)}, {v(xr,2)}, {v(bi,2)}, {v(t1,2)}{n1}",
                f"v_pk_add_f32 {v(t1,2)}, {v(r1r,2)}, {v(t1,2)} neg_lo:[0,1] neg_hi:[0,1]",
                f"v_pk_add_f32 {v(t0,2)}, {v(r1i,2)}, {v(t0,2)}")
            for e in range(2):
                a.e(f"v_cvt_pk_bf16_f32 v{DF+2*p+e}, v{t1+e}, -v{t0+e}")
        a.e(f"s_branch {Linv}")
        return
    a.e(f"v_lshl_add_u32 v{TMP}, v{G_}, 7, v{IDX}", f"v_sub_u32 v{TMP+1}, {1023-32*27}, v{TMP}",
        f"s_mov_b32 s48, {LW2}", f"v_lshl_add_u32 v{TMP+2}, v{TMP}, 1, s48", f"s_mov_b32 s49, {LW2+2048}", f"v_lshl_add_u32 v{TMP+3}, v{TMP+1}, 1, s49")
    w_lds_reads(a, TMP+2, TMP+3, W2R, W2I)
    a.e("s_waitcnt lgkmcnt(0)")
    fix_w(a, W2R, W2I, PF2)
    VS = SP; K0 = SP+1
    a.e(f"v_lshlrev_b32 v{VS}, 9, v{G_}", f"v_lshl_add_u32 v{VS}, v{IDX}, 2, v{VS}")
    for r in range(16):
        a.e(f"ds_write_b32 v{VS}, v{ARE+r} offset:{LSC+128*eidx(r)}", f"ds_write_b32 v{VS}, v{AIM+r} offset:{LSC+4096+128*eidx(r)}")
    a.e(f"v_lshl_add_u32 v{K0}, v{G_}, 7, v{IDX}", f"v_sub_u32 v{K0}, 1024, v{K0}", "s_waitcnt lgkmcnt(0)")
    for r in range(16):
        ad, rr, ri, ur, ui, vr, vi, o0, o1 = [SP+2+i for i in range(9)]
        a.e(f"v_subrev_u32 v{ad}, {32*eidx(r)}, v{K0}", f"v_and_b32 v{ad}, 1023, v{ad}", f"v_lshlrev_b32 v{ad}, 2, v{ad}",
            f"ds_read_b32 v{rr}, v{ad} offset:{LSC}", f"ds_read_b32 v{ri}, v{ad} offset:{LSC+4096}", "s_waitcnt lgkmcnt(0)")
        pr, pi_ = ARE+r, AIM+r
        a.e(f"v_add_f32 v{ur}, v{pr}, v{rr}", f"v_sub_f32 v{ui}, v{pi_}, v{ri}",
            f"v_sub_f32 v{vr}, v{pr}, v{rr}", f"v_add_f32 v{vi}, v{pi_}, v{ri}")
        sg = "-" if r < 8 else ""; ns = "" if r < 8 else "-"
        ar, ai, br, bi = WR+r, WI+r, W2R+r, W2I+r
        a.e(f"v_mul_f32 v{o0}, v{ur}, v{ar}", f"v_fma_f32 v{o0}, {sg}v{ui}, v{ai}, v{o0}",
            f"v_fma_f32 v{o0}, v{vr}, v{br}, v{o0}", f"v_fma_f32 v{o0}, {sg}v{vi}, v{bi}, v{o0}",
            f"v_mul_f32 v{o1}, v{ui}, v{ar}", f"v_fma_f32 v{o1}, {ns}v{ur}, v{ai}, v{o1}",
            f"v_fma_f32 v{o1}, v{vi}, v{br}, v{o1}", f"v_fma_f32 v{o1}, {ns}v{vr}, v{bi}, v{o1}",
            f"v_mul_f32 v{o0}, 0.5, v{o0}", f"v_mul_f32 v{o1}, 0.5, v{o1}",
            f"v_cvt_pk_bf16_f32 v{DF+r}, v{o0}, -v{o1}")
    a.e(f"s_branch {Linv}")

def h_dma(a, SH, sLB, sD4K):
    a.e("v_lshlrev_b32 v235, 4, v1")
    a.e(f"s_add_u32 s74, s{sLB}, 32", "s_mov_b32 m0, s74")
    for ch in range(4): a.e(f"buffer_load_dwordx4 v235, s[{SH}:{SH+3}], s{sD4K} offen offset:{1024*ch} lds" + (NT() if OPT["nth"] else ""))
    a.e(f"s_add_u32 s74, s{sLB}, 4192", f"s_add_u32 s75, s{sD4K}, 2", "s_mov_b32 m0, s74")
    for ch in range(4): a.e(f"buffer_load_dwordx4 v235, s[{SH}:{SH+3}], s75 offen offset:{1024*ch} lds" + (NT() if OPT["nth"] else ""))
    a.e("v_mov_b32 v233, 0x7ffffff0", f"v_mov_b32 v234, s{sD4K}", "v_cmp_eq_u32 vcc, 15, v1", "v_cndmask_b32 v233, v233, v234, vcc",
        f"buffer_load_short_d16_hi v230, v233, s[{SH}:{SH+3}], 0 offen")

def b1_prio(a):
    if not OPT["pB1"]: return
    if OPT["latem"]:
        Lm = newlbl("lateB")
        a.e("s_and_b32 s92, s2, 7", f"s_lshr_b32 s92, {OPT['latem']}, s92", "s_bitcmp1_b32 s92, 0", f"s_cbranch_scc1 {Lm}", f"s_setprio {OPT['pB1']}")
        a.label(Lm)
    else:
        a.e(f"s_setprio {OPT['pB1']}")

def gen_B(a):
    ROLE[0] = 'B'
    SH, STT, SKVT = 80, 84, 32
    sCBK, sSUB, sD, sD4K, sLB, sDV, sF1, sF2, sMASK = 40, 41, 42, 43, 44, 45, 46, 47, 72
    sSB = 36
    def b_setup():
        a.e(f"s_setprio {OPT['prioB']}") if OPT['prioB'] else None
        srd(a, SH, P_SSMK, P_SSMK+1, 4*MB); srd(a, STT, P_OUT, P_OUT+1, 8*MB)
        a.e(f"s_and_b32 s{sCBK}, s2, 15",
            f"s_lshr_b32 s{sSUB}, s2, 4",
            f"s_lshl_b32 s{sD}, s{sCBK}, 4", f"s_add_u32 s{sD}, s{sD}, s{sSUB}", f"s_lshl_b32 s{sD}, s{sD}, 2", f"s_add_u32 s{sD}, s{sD}, s3",
            f"s_lshl_b32 s{sD4K}, s{sD}, 12", f"s_mul_i32 s{sLB}, s3, {LB_STRIDE}", f"s_mov_b32 s{sMASK}, 0xffff0000")
        if OPT["fullline"]:
            a.e(f"s_and_b32 s73, s{sD}, 3", "s_lshl_b32 s73, s73, 15", f"s_bfe_u32 s74, s{sD}, 0x30003", "s_lshl_b32 s74, s74, 12", "s_add_u32 s73, s73, s74",
                f"s_bfe_u32 s74, s{sD}, 0x10002", "s_lshl_b32 s74, s74, 6", "s_add_u32 s73, s73, s74",
                f"s_lshl_b32 s74, s{sCBK}, 7", "s_add_u32 s73, s73, s74", f"s_add_u32 s{sSB}, s73, 2048")
        else:
            a.e(f"s_and_b32 s73, s{sD}, 63", "s_lshl_b32 s73, s73, 13", f"s_lshl_b32 s74, s{sCBK}, 7", "s_add_u32 s73, s73, s74", f"s_add_u32 s{sSB}, s73, 2048")
        for i in range(1, 4): a.e(f"s_add_u32 s{sSB+i}, s{sSB}, {i*2*MB}")
        a.e(f"s_lshl_b32 s73, s{sCBK}, {4+FB()}", f"s_add_u32 s{sF1}, s73, {SY_B1}", f"s_lshl_b32 s74, s{sSUB}, {FB()}", "s_add_u32 s73, s73, s74", f"s_add_u32 s{sF2}, s73, {SY_B2}")
        a.e(f"s_and_b32 s73, s{sD}, 0xfffffffe", "s_lshl_b32 s73, s73, 1", f"s_load_dword s{sDV}, s[{P_SSMD}:{P_SSMD+1}], s73")

    if OPT["fast"]:
        b1_prio(a)
        a.e(f"s_and_b32 s{sCBK}, s2, 15", f"s_lshr_b32 s{sSUB}, s2, 4")
    else:
        b_setup()
    stamp(a, 0, True); stamp(a, 1)
    Lidle, Lsetup = newlbl("bidle"), newlbl("bsetup")
    if not OPT["fast"]: b1_prio(a)
    if OPT["b1all"]:
        a.e(f"s_mov_b32 s{sCBKT}, s{sCBK}", f"s_mov_b32 s{sSUBT}, s{sSUB}")
        sh = b_setup if OPT["fast"] else None
        if OPT["hfirst"]:
            emit_B1(a, after_loads=lambda: h_dma(a, SH, sLB, sD4K), nyoung=9)
        elif OPT["hearly"] and not OPT["hlate"]:
            emit_B1(a, shadow=sh, after_stores=lambda: h_dma(a, SH, sLB, sD4K), nafter=9)
        else:
            emit_B1(a, shadow=sh)
            if not OPT["hlate"]: h_dma(a, SH, sLB, sD4K)
    else:
        a.e(f"s_cmp_lg_u32 s{sACT}, 0", f"s_cbranch_scc1 {Lidle}")
        if OPT["hearly"] and not OPT["hlate"]:
            emit_B1(a, after_stores=lambda: h_dma(a, SH, sLB, sD4K), nafter=9)
        else:
            emit_B1(a)
            if not OPT["hlate"]: h_dma(a, SH, sLB, sD4K)
        a.e(f"s_branch {Lsetup}")
        a.label(Lidle)
        if OPT["tlb"] or OPT["cpf"]: warm(a)
        fin_epoch(a)
        loc_publish(a)
        loc_issue(a, 10)
        loc_resolve(a, 10, barrier=False)
        if not OPT["hlate"]:
            for _ in range(OPT["hactdelay"]):
                a.e("v_and_b32 v12, 15, v1", f"v_lshlrev_b32 v12, {FB()}, v12", f"v_add_u32 v12, s{sF1}, v12",
                    f"buffer_load_dword v13, v12, s[{S_SYN}:{S_SYN+3}], 0 offen sc1", "s_waitcnt vmcnt(0)")
            h_dma(a, SH, sLB, sD4K)
    a.label(Lsetup)
    if OPT["pB1"]: a.e(f"s_setprio {OPT['prioB']}")
    stamp(a, 12)
    if OPT["yieldB"] >= 2 and OPT["yinit"]:
        a_state(a, sCU, 0, 233)
    LN16, B_, G4, VA, VB, VE, VS2, T = 2, 3, 4, 5, 9, 10, 11, 12
    a.e(f"v_lshlrev_b32 v{T}, 2, v1",
        f"v_add_u32 v{T+1}, {4160-32}, v{T}", "v_cmp_le_u32 vcc, 8, v1", f"v_cndmask_b32 v{T+3}, v{T}, v{T+1}, vcc",
        f"v_add_u32 v{T+1}, 8288, v{T}", "v_cmp_le_u32 vcc, 16, v1", f"v_cndmask_b32 v{T+3}, v{T+3}, v{T+1}, vcc",
        f"v_add_u32 v231, s{sLB}, v{T+3}")
    a.e(f"v_lshlrev_b32 v{T}, 3, v1", f"v_add_u32 v{T}, s{sLB}, v{T}", "v_mov_b32 v16, 0", "v_mov_b32 v17, 0", f"ds_write_b64 v{T}, v[16:17] offset:8288")
    a.e(f"v_and_b32 v{B_}, 15, v1", f"v_lshrrev_b32 v{G4}, 4, v1")
    a.e(f"v_and_b32 v{VA}, 1, v{B_}", f"v_xor_b32 v{VA}, 1, v{VA}", f"v_mul_u32_u24 v{VA}, 4160, v{VA}",
        f"v_add_u32 v{VA+1}, 1, v{B_}", f"v_lshrrev_b32 v{VA+1}, 1, v{VA+1}", f"v_lshl_add_u32 v{VA}, v{VA+1}, 2, v{VA}",
        f"v_lshlrev_b32 v{VA+1}, 4, v{G4}", f"v_sub_u32 v{VA}, v{VA}, v{VA+1}",
        f"s_add_u32 s73, s{sLB}, 16", f"v_add_u32 v{VA}, s73, v{VA}")
    for pp in range(1, 4): a.e(f"v_add_u32 v{VA+pp}, {1024*pp}, v{VA}")
    a.e(f"v_lshlrev_b32 v{VB}, 5, v{B_}", f"v_lshl_add_u32 v{VB}, v{G4}, 4, v{VB}",
        f"s_add_u32 s73, s{sLB}, {8800-480}", f"v_add_u32 v{VB}, s73, v{VB}")
    a.e(f"v_lshrrev_b32 v18, 1, v{G4}", f"v_lshlrev_b32 v19, 4, v18", f"v_lshl_add_u32 v19, v{B_}, 5, v19",
        f"v_and_b32 v18, 1, v{G4}", "v_xor_b32 v18, 1, v18", f"v_lshl_add_u32 v19, v18, 3, v19",
        f"s_add_u32 s73, s{sLB}, 8800", f"v_add_u32 v232, s73, v19")
    if OPT["fullline"]:
        a.e(f"v_lshrrev_b32 v18, 3, v{B_}", f"v_lshlrev_b32 v{VS2}, 19, v18", f"v_bfe_u32 v18, v{B_}, 1, 2", f"v_lshl_add_u32 v{VS2}, v18, 17, v{VS2}",
            f"v_and_b32 v18, 1, v{G4}", f"v_lshl_add_u32 v{VS2}, v18, 20, v{VS2}", f"v_and_b32 v18, 1, v{B_}", f"v_lshl_add_u32 v{VS2}, v18, 5, v{VS2}",
            f"v_lshrrev_b32 v18, 1, v{G4}", f"v_lshl_add_u32 v{VS2}, v18, 4, v{VS2}")
        a.e(f"v_lshlrev_b32 v{LN16}, 19, v{G4}", "v_bfe_u32 v18, v1, 2, 2", f"v_lshl_add_u32 v{LN16}, v18, 17, v{LN16}",
            "v_and_b32 v18, 3, v1", f"v_lshl_add_u32 v{LN16}, v18, 4, v{LN16}")
    else:
        a.e(f"v_lshrrev_b32 v18, 3, v{B_}", f"v_lshlrev_b32 v{VS2}, 19, v18", f"v_bfe_u32 v18, v{B_}, 2, 1", f"v_lshl_add_u32 v{VS2}, v18, 12, v{VS2}",
            f"v_and_b32 v18, 1, v{G4}", f"v_lshl_add_u32 v{VS2}, v18, 20, v{VS2}", f"v_and_b32 v18, 3, v{B_}", f"v_lshl_add_u32 v{VS2}, v18, 5, v{VS2}",
            f"v_lshrrev_b32 v18, 1, v{G4}", f"v_lshl_add_u32 v{VS2}, v18, 4, v{VS2}")
        a.e(f"v_lshlrev_b32 v{LN16}, 19, v{G4}", "v_bfe_u32 v18, v1, 3, 1", f"v_lshl_add_u32 v{LN16}, v18, 12, v{LN16}",
            "v_and_b32 v18, 7, v1", f"v_lshl_add_u32 v{LN16}, v18, 4, v{LN16}")
    a.e("v_lshlrev_b32 v18, 4, v1", f"s_add_u32 s73, s{sLB}, 8800", "v_add_u32 v19, s73, v18")
    a.e("s_waitcnt lgkmcnt(0)",
        f"s_and_b32 s73, s{sD}, 1", f"s_lshl_b32 s74, s{sDV}, 16", f"s_and_b32 s75, s{sDV}, 0xffff0000",
        "s_cmp_eq_u32 s73, 1", f"s_cselect_b32 s{sDV}, s75, s74")
    if OPT["twoflag"]:
        a.e(f"s_add_u32 s73, s{sF1}, {SY_B1B-SY_B1}", f"s_cmp_lg_u32 s{sLOC}, 0", f"s_cselect_b32 s{sF1}, s{sF1}, s73")
    a.e(f"v_and_b32 v{T}, 15, v1", f"v_lshlrev_b32 v{T}, {FB()}, v{T}", f"v_add_u32 v{T}, s{sF1}, v{T}")
    stamp(a, 5)
    wait_flags(a, T, 1, T+1, 73)
    loc_read(a, 12)
    stamp(a, 6)
    VE = 232
    ACC = 20
    SETS = [(52, 84), (116, 148)]
    U = SETS[1][1]
    for ch in range(4):
        a.e(f"buffer_load_dwordx4 {v(U+4*ch,4)}, v{LN16}, s[{STT}:{STT+3}], s{sSB+ch} offen" + LDL())
    def reads(rho, st):
        A, B = SETS[st]
        out = []
        for p in range(8):
            o = 8*rho + 128*(p & 1)
            out.append(f"ds_read2_b32 {v(A+4*p,2)}, v{VA+(p>>1)} offset0:{o} offset1:{o+1}")
            out.append(f"ds_read2_b32 {v(A+4*p+2,2)}, v{VA+(p>>1)} offset0:{o+2} offset1:{o+3}")
        outb = [f"ds_read_b128 {v(B+4*q,4)}, v{VB} offset:{512*q+32*(15-rho)}" for q in range(8)]
        return out, outb
    rhos = list(range(1, 16, 2))
    ra, rb = reads(rhos[0], 0)
    if OPT["hlate"]:
        h_dma(a, SH, sLB, sD4K)
        for ch in range(4):
            a.e(f"s_waitcnt vmcnt({3-ch+9})", f"ds_write_b128 v19, {v(U+4*ch,4)} offset:{1024*ch}")
        a.e("s_waitcnt vmcnt(0)", "ds_write_b32 v231, v230", "s_waitcnt lgkmcnt(0)")
        for r in ra: a.e(r)
    else:
        a.e("s_waitcnt vmcnt(4)", "ds_write_b32 v231, v230")
        a.e("s_waitcnt lgkmcnt(0)")
        for r in ra: a.e(r)
        for ch in range(4):
            a.e(f"s_waitcnt vmcnt({3-ch})", f"ds_write_b128 v19, {v(U+4*ch,4)} offset:{1024*ch}")
    a.e("s_waitcnt lgkmcnt(0)")
    for r in rb: a.e(r)
    if OPT["yieldB"]:
        Ly = newlbl("y0b")
        if OPT["y0"]: a.e("s_cmp_lg_u32 s2, 0", f"s_cbranch_scc1 {Ly}")
        if not (OPT["yieldB"] == 2 and OPT["ymid"]): b_yield(a, 233)
        a.label(Ly)
    Lnq = newlbl("noq")
    if OPT["a3all"]:
        a.e(f"s_mov_b32 s{sCBKT}, s{sCBK}", f"s_mov_b32 s{sSUBT}, s{sSUB}")
        if OPT["yieldB"] != 3 and not OPT["qlate"]: emit_B3_pre(a)
    else:
        a.e(f"s_cmp_lg_u32 s{sACT}, 0", f"s_cbranch_scc1 {Lnq}")
        emit_B3_pre(a)
        a.label(Lnq)
    stamp(a, 7)
    for ci, rho in enumerate(rhos):
        st = ci & 1
        A, B = SETS[st]
        if ci+1 < len(rhos):
            ra, rb = reads(rhos[ci+1], st ^ 1); nxt = ra[0:2] + rb + ra[2:]
        else:
            nxt = [f"ds_read_b64 {v(SETS[st^1][0]+2*j,2)}, v{VE} offset:{512*j}" for j in range(8)]
        if OPT["yieldB"] == 3: b_yield_step(a, 233, ci == len(rhos)-1)
        if OPT["yieldB"] == 2 and OPT["ymid"] and ci == OPT["ymid"]: b_yield(a, 233)
        a.e("s_waitcnt lgkmcnt(0)")
        n = 0
        for p in range(8):
            for q in range(8-p):
                j = p+q
                c = "0" if (ci == 0 and p == 0) else v(ACC+4*j, 4)
                a.e(f"v_mfma_f32_16x16x32_bf16 {v(ACC+4*j,4)}, {v(A+4*p,4)}, {v(B+4*q,4)}, {c}")
                if n < len(nxt): a.e(nxt[n])
                n += 1
    KVR = SETS[0][0]; TMv = 116
    if (OPT["yieldB"] == 3 or OPT["qlate"]) and OPT["a3all"]: emit_B3_pre(a)
    a.e("s_waitcnt lgkmcnt(0)")
    stamp(a, 8)
    sts = []
    for jp in range(4):
        base = TMv + 8*jp
        for hh in range(2):
            j = 2*jp+hh
            w0, w1 = KVR+2*j, KVR+2*j+1
            t = 172
            a.e(f"v_and_b32 v{t}, s{sMASK}, v{w1}", f"v_lshlrev_b32 v{t+1}, 16, v{w1}",
                f"v_and_b32 v{t+2}, s{sMASK}, v{w0}", f"v_lshlrev_b32 v{t+3}, 16, v{w0}")
            for r in range(4):
                a.e(f"v_fma_f32 v{t+r}, v{t+r}, s{sDV}, v{ACC+4*j+r}")
            a.e(f"v_cvt_pk_bf16_f32 v{base+2*hh}, v{t}, v{t+1}", f"v_cvt_pk_bf16_f32 v{base+2*hh+1}, v{t+2}, v{t+3}")
        a.e(f"v_permlane16_swap_b32 v{base}, v{base+2}", f"v_permlane16_swap_b32 v{base+1}, v{base+3}")
        sts.append(f"buffer_store_dwordx4 {v(base,4)}, v{VS2}, s[{STT}:{STT+3}], s{sSB+jp} offen")
    dual_store(a, sts)
    signal(a, sF2, 12, bloc=True)
    stamp(a, 9)
    if not OPT["a3all"]: a.e(f"s_cmp_lg_u32 s{sACT}, 0", "s_cbranch_scc1 L_fin")
    emit_B3(a)
    if OPT["wbl2"]:
        Lw = newlbl("wb")
        a.e("s_waitcnt vmcnt(0)", "s_cmp_lg_u32 s3, 0", f"s_cbranch_scc1 {Lw}")
        if OPT["wbl2"] == 1: a.e(f"s_cmp_lg_u32 s{sSUB}, 15", f"s_cbranch_scc1 {Lw}")
        if OPT["wbl2"] == 2: a.e(f"s_and_b32 s92, s{sSUB}, 3", "s_cmp_lg_u32 s92, 3", f"s_cbranch_scc1 {Lw}")
        a.e("buffer_wbl2 sc1")
        a.label(Lw)
    pair_chkB(a)
    a.e("s_branch L_fin")

SY_PA = 4096 + 163840
SY_PB = SY_PA + 16384
def hwid(a, dst):
    a.e(f"s_getreg_b32 s{dst}, hwreg(HW_REG_HW_ID)", f"s_lshr_b32 s{dst}, s{dst}, 8", f"s_and_b32 s{dst}, s{dst}, 0xff",
        "s_getreg_b32 s93, hwreg(HW_REG_XCC_ID)", "s_and_b32 s93, s93, 15", "s_lshl_b32 s93, s93, 8", f"s_or_b32 s{dst}, s{dst}, s93")
def pair_pubA(a):
    if not OPT.get("pair"): return
    L = newlbl("ppa")
    a.e("s_cmp_lg_u32 s3, 0", f"s_cbranch_scc1 {L}")
    hwid(a, 92)
    a.e(f"s_lshl_b32 s93, s{sCU}, 6", f"s_add_u32 s93, s93, {SY_PA}", "v_mov_b32 v240, s93", "v_mov_b32 v241, s92", "s_mov_b64 exec, 1",
        f"buffer_store_dword v241, v240, s[{S_SYN}:{S_SYN+3}], 0 offen sc1", "s_mov_b64 exec, -1")
    a.label(L)
def pair_chkB(a):
    if not OPT.get("pair"): return
    L = newlbl("ppb")
    a.e("s_cmp_lg_u32 s3, 0", f"s_cbranch_scc1 {L}")
    hwid(a, 92)
    a.e(f"s_lshl_b32 s93, s{sCU}, 6", f"s_add_u32 s93, s93, {SY_PA}", "v_mov_b32 v240, s93",
        f"buffer_load_dword v241, v240, s[{S_SYN}:{S_SYN+3}], 0 offen sc1", "s_waitcnt vmcnt(0)", "v_readfirstlane_b32 s93, v241",
        "s_cmp_lg_u32 s92, s93", "s_cselect_b32 s92, 1, 0", f"s_lshl_b32 s93, s{S_TGT}, 1", "s_or_b32 s92, s92, s93",
        f"s_lshl_b32 s93, s{sCU}, 6", f"s_add_u32 s93, s93, {SY_PB}", "v_mov_b32 v240, s93", "v_mov_b32 v241, s92", "s_mov_b64 exec, 1",
        f"buffer_store_dword v241, v240, s[{S_SYN}:{S_SYN+3}], 0 offen sc1", "s_mov_b64 exec, -1", "s_waitcnt vmcnt(0)")
    a.label(L)
def pair_sum(a):
    if not OPT.get("pair"): return
    L1, L2, L3 = newlbl("ps"), newlbl("psd"), newlbl("psp")
    a.e("v_lshlrev_b32 v2, 6, v1", f"v_add_u32 v2, {SY_PB}, v2", f"s_lshl_b32 s49, s{S_TGT}, 1", "s_mov_b32 s48, 0")
    a.label(L1)
    for i in range(4): a.e(f"s_mov_b32 s50, {4096*i}", f"buffer_load_dword v{4+i}, v2, s[{S_SYN}:{S_SYN+3}], s50 offen sc1")
    a.e("s_add_u32 s48, s48, 1", "s_waitcnt vmcnt(0)")
    for i in range(4): a.e(f"v_xor_b32 v{4+i}, s49, v{4+i}")
    a.e("v_or_b32 v8, v4, v5", "v_or_b32 v9, v6, v7", "v_or_b32 v8, v8, v9", "v_lshrrev_b32 v8, 1, v8", "v_cmp_ne_u32 vcc, 0, v8", f"s_cbranch_vccz {L2}",
        f"s_cmp_lt_u32 s48, {SPIN_LIMIT}", f"s_cbranch_scc1 {L1}")
    a.label(L2)
    a.e("s_mov_b32 s48, 0")
    for i in range(4): a.e(f"v_cmp_eq_u32 vcc, 1, v{4+i}", "s_bcnt1_i32_b64 s49, vcc", "s_add_u32 s48, s48, s49")
    a.e(f"s_mov_b32 s92, s{P_DBG}", f"s_mov_b32 s93, s{P_DBG+1}", "s_mov_b32 s94, 256", "s_mov_b32 s95, 0x00020000", "v_mov_b32 v4, 0", "v_mov_b32 v5, s48", "s_mov_b64 exec, 1",
        "buffer_store_dword v5, v4, s[92:95], 0 offen", "s_mov_b64 exec, -1")
    a.e("s_mul_i32 s48, s48, 10", "s_memrealtime s[50:51]", "s_waitcnt lgkmcnt(0)", "s_mov_b32 s49, s50")
    a.label(L3)
    a.e("s_memrealtime s[50:51]", "s_waitcnt lgkmcnt(0)", "s_sub_u32 s50, s50, s49", "s_cmp_lt_u32 s50, s48", f"s_cbranch_scc1 {L3}")

def warm(a):
    if OPT["tlb"]:
        L = newlbl("warm")
        a.e("s_cmp_lg_u32 s3, 3", f"s_cbranch_scc1 {L}")
        pages = [(P_WS, WS_I1), (P_WS, WS_I1+2*MB), (P_WS, WS_I2), (P_WS, WS_I2+2*MB), (P_WS, WS_SYNC+512*1024),
                 (P_OUT, 0), (P_OUT, 2*MB), (P_OUT, 4*MB), (P_OUT, 6*MB),
                 (P_WR, 0), (P_WR, 2*MB), (P_WI, 0), (P_WI, 2*MB), (P_SSMK, 0), (P_SSMK, 2*MB), (P_Q, 0), (P_Q, 2*MB)]
        a.e("v_mov_b32 v240, 0", "v_mov_b32 v241, 0")
        for i, (p, off) in enumerate(pages):
            a.e(f"s_add_u32 s92, s{p}, {off}", f"s_addc_u32 s93, s{p+1}, 0", f"v_writelane_b32 v240, s92, {i}", f"v_writelane_b32 v241, s93, {i}")
        a.e(f"s_mov_b64 exec, {(1 << len(pages)) - 1}", "global_load_dword v242, v[240:241], off", "s_mov_b64 exec, -1")
        a.label(L)
    if OPT["cpf"]:
        L = newlbl("warm")
        a.e("s_cmp_ge_u32 s3, 2", f"s_cbranch_scc1 {L}")
        a.e("s_getpc_b64 s[92:93]")
        a.e("s_lshr_b32 s96, s2, 4", "s_and_b32 s96, s96, 15", "s_lshl_b32 s96, s96, 1", "s_add_u32 s96, s96, s3", "s_min_u32 s96, s96, 25",
            "s_lshl_b32 s96, s96, 10", f"s_sub_u32 s92, s92, {OPT['cpf']}", "s_subb_u32 s93, s93, 0",
            "s_add_u32 s92, s92, s96", "s_addc_u32 s93, s93, 0", "v_lshlrev_b32 v240, 4, v1",
            "global_load_dwordx4 v[236:239], v240, s[92:93]")
        a.label(L)

def common_rest(a):
    srd(a, S_SYN, P_WS, P_WS+1, 1*MB, add=WS_SYNC)
    a.e(f"s_mov_b32 s92, {WS_SYNC+SY_E}", f"s_load_dword s{S_TGT}, s[{P_WS}:{P_WS+1}], s92")
    a.e(f"s_mov_b32 s98, {64<<FA()}", f"s_mov_b32 s99, {128<<FA()}", f"s_mov_b32 s100, {192<<FA()}")
    if OPT["fast"] >= 2: return
    a.e(f"s_and_b32 s{sCU}, s2, 255", f"s_bitcmp0_b32 s2, 3", f"s_cselect_b32 s{sACT}, 1, 0",
        f"s_lshr_b32 s48, s{sCU}, 4", "s_lshl_b32 s48, s48, 3", f"s_and_b32 s49, s{sCU}, 7", "s_add_u32 s48, s48, s49",
        f"s_and_b32 s{sCBKT}, s48, 15", "s_lshr_b32 s48, s48, 4", "s_lshl_b32 s48, s48, 1", "s_lshr_b32 s49, s2, 8", f"s_add_u32 s{sSUBT}, s48, s49")

def gen_kernel():
    a = Asm(); a.name = "p"
    a.e("s_cmp_ge_u32 s2, 512", "s_cbranch_scc1 L_exit")
    if OPT["swap"]: a.e("s_xor_b32 s2, s2, 256")
    if OPT.get("spinT") or OPT.get("span"): a.e("s_memrealtime s[94:95]")
    if OPT.get("spinC"): a.e("s_memtime s[94:95]")
    if gen.PROF: a.e("s_memrealtime s[98:99]", "s_waitcnt lgkmcnt(0)", "v_writelane_b32 v247, s98, 13")
    a.e(f"s_load_dwordx16 s[4:19], s[0:1], 0", f"s_load_dwordx8 s[20:27], s[0:1], 64")
    a.e("v_lshrrev_b32 v1, 6, v0", "v_readfirstlane_b32 s3, v1", "v_and_b32 v1, 63, v0", "s_waitcnt lgkmcnt(0)")
    if OPT["fast"] >= 2:
        a.e(f"s_and_b32 s{sCU}, s2, 255")
    else:
        common_rest(a)
    a.e("s_cmp_ge_u32 s2, 256", "s_cbranch_scc1 L_A")
    gen_B(a)
    a.label("L_A")
    gen_A(a)
    a.label("L_fin")
    pass
    if gen.PROF:
        a.e("s_waitcnt vmcnt(0)")
        stamp(a, 14); stamp(a, 15, True)
        prof_dump(a)
    if OPT.get("span"):
        Ls = newlbl("span")
        a.e("s_cmp_lg_u32 s3, 0", f"s_cbranch_scc1 {Ls}", "s_waitcnt vmcnt(0)", "s_memrealtime s[92:93]",
            f"s_add_u32 s32, s{P_WS}, {gen.WS_PROF}", f"s_addc_u32 s33, s{P_WS+1}, 0", f"s_mov_b32 s34, {MB}", "s_mov_b32 s35, 0x00020000",
            "s_lshl_b32 s36, s2, 3", "s_waitcnt lgkmcnt(0)", "v_mov_b32 v2, s36", "v_mov_b32 v4, s94", "v_mov_b32 v5, s92", "s_mov_b64 exec, 1",
            "buffer_store_dwordx2 v[4:5], v2, s[32:35], 0 offen", "s_waitcnt vmcnt(0)")
        a.label(Ls)
    if OPT.get("spinC"):
        a.label("L_spinc")
        a.e("s_memtime s[92:93]", "s_waitcnt lgkmcnt(0)", "s_sub_u32 s92, s92, s94", f"s_cmp_lt_u32 s92, {OPT['spinC']}", "s_cbranch_scc1 L_spinc")
    if OPT.get("spinT"):
        a.label("L_spin")
        a.e("s_memrealtime s[92:93]", "s_waitcnt lgkmcnt(0)", "s_sub_u32 s92, s92, s94", f"s_cmp_lt_u32 s92, {OPT['spinT']}", "s_cbranch_scc1 L_spin")
    a.label("L_exit")
    a.e("s_endpgm")
    return a

def prof_dump(a):
    if OPT.get("dbgwg", -1) >= 0:
        L = newlbl("nodbg")
        a.e(f"s_cmp_lg_u32 s2, {OPT['dbgwg']}", f"s_cbranch_scc1 {L}", "s_cmp_lg_u32 s3, 0", f"s_cbranch_scc1 {L}")
        a.e("v_readlane_b32 s36, v247, 1", "v_readlane_b32 s37, v247, 13", "v_mov_b32 v250, s36", "v_mov_b32 v251, s37",
            "v_cmp_eq_u32 vcc, 0, v1", "v_cndmask_b32 v250, v250, v251, vcc", "v_cmp_eq_u32 vcc, 13, v1", "v_cndmask_b32 v250, v250, v251, vcc",
            "v_cmp_eq_u32 vcc, 15, v1", "v_cndmask_b32 v250, v250, v251, vcc", "v_sub_u32 v250, v247, v250",
            f"s_mov_b32 s32, s{P_DBG}", f"s_mov_b32 s33, s{P_DBG+1}", "s_mov_b32 s34, 256", "s_mov_b32 s35, 0x00020000",
            "v_lshlrev_b32 v251, 2, v1", "s_mov_b64 exec, 0xffff", "buffer_store_dword v250, v251, s[32:35], 0 offen", "s_waitcnt vmcnt(0)", "s_mov_b64 exec, -1")
        a.label(L)
        return

    a.e(f"s_add_u32 s32, s{P_WS}, {gen.WS_PROF}", f"s_addc_u32 s33, s{P_WS+1}, 0", f"s_mov_b32 s34, {MB}", "s_mov_b32 s35, 0x00020000")
    a.e("s_lshl_b32 s36, s2, 2", "s_add_u32 s36, s36, s3", "s_lshl_b32 s36, s36, 6",
        "v_lshlrev_b32 v250, 2, v1", "v_add_u32 v250, s36, v250", "s_mov_b64 exec, 0xffff",
        "buffer_store_dword v247, v250, s[32:35], 0 offen")
    if OPT.get("fine"):
        a.e("v_add_u32 v250, 0x40000, v250", "buffer_store_dword v246, v250, s[32:35], 0 offen")
    a.e("s_waitcnt vmcnt(0)")
PROFREGS = []

def build(path):
    a = gen_kernel()
    name = "concat_heads__spectral_gfnet__ssm_conv_h3__prompt_kernel"
    s = open("concat_heads__spectral_gfnet__ssm_conv_h3__prompt.s.ref").read().split("; Override")[0]
    s += f"; @launch grid=(512,1,1) block=(256,1,1) lds={LDS_BYTES}\n"
    s += '.amdgcn_target "amdgcn-amd-amdhsa--gfx950"\n' + gen.header(name) + a.text() + gen.descriptor(name, 256, 102)
    s = s.replace(" lds nt", " nt lds")
    open(path, "w").write(s)
    return s

if __name__ == "__main__":
    out = sys.argv[1] if len(sys.argv) > 1 else "pers.s"
    gen.PROF = "prof" in sys.argv[2:]
    for x in sys.argv[2:]:
        if "=" in x:
            k, val = x.split("="); OPT[k] = int(val)
    if OPT["wsend"]:
        base = OPT["wsend"]*MB
        WS_I1, WS_KVT, WS_I2, WS_TT, WS_SYNC = base, base+4*MB, base+8*MB, base+12*MB, base+20*MB
    s = build(out)
    print(out, len(s))
```

```python
import sys
from asmgen import *
import gen
from gen import srd, MB, WS_I1, WS_KVT, WS_I2, WS_TT, KA

PHASE = [1]
def dstamp(a, k, inv=False):
    if not OPT.get("dmax"): return
    a.e("s_memrealtime s[96:97]", "s_waitcnt lgkmcnt(0)", f"v_writelane_b32 v242, s96, {k}")
SY_DG = 4096 + 131072
def dpublish(a, sT):
    if not OPT.get("dmax"): return
    L = newlbl("dp")
    a.e("s_cmp_lg_u32 s3, 0", f"s_cbranch_scc1 {L}", f"s_lshl_b32 s92, s{sT}, 5", f"s_add_u32 s92, s92, {SY_DG}",
        "v_lshlrev_b32 v240, 2, v1", "v_add_u32 v240, s92, v240", "s_mov_b64 exec, 0xff",
        f"buffer_store_dword v242, v240, s[{S_SYN}:{S_SYN+3}], 0 offen sc1", "s_mov_b64 exec, -1")
    a.label(L)
def dreduce(a):
    if not OPT.get("dmax"): return
    a.e(f"s_mov_b32 s92, s{P_DBG}", f"s_mov_b32 s93, s{P_DBG+1}", "s_mov_b32 s94, 256", "s_mov_b32 s95, 0x00020000")
    a.e("v_lshlrev_b32 v2, 5, v1", f"v_add_u32 v2, {SY_DG}, v2")
    for k in range(7):
        for i in range(4):
            a.e(f"s_mov_b32 s50, {2048*i + 4*k}", f"buffer_load_dword v{10+i}, v2, s[{S_SYN}:{S_SYN+3}], s50 offen sc1")
        a.e("s_waitcnt vmcnt(0)")
        if k == 0:
            a.e("v_min_u32 v10, v10, v11", "v_min_u32 v12, v12, v13", "v_min_u32 v10, v10, v12", "s_mov_b32 s51, -1")
            for l in range(64): a.e(f"v_readlane_b32 s48, v10, {l}", "s_min_u32 s51, s51, s48")
            a.e("s_mov_b32 s45, s51")
            continue
        for i in range(4):
            a.e(f"v_subrev_u32 v{10+i}, s45, v{10+i}", f"v_lshlrev_b32 v{10+i}, 8, v{10+i}", f"v_add_u32 v14, {64*i}, v1", f"v_or_b32 v{10+i}, v{10+i}, v14")
        a.e("v_max_u32 v10, v10, v11", "v_max_u32 v12, v12, v13", "v_max_u32 v10, v10, v12", "s_mov_b32 s51, 0")
        for l in range(64): a.e(f"v_readlane_b32 s48, v10, {l}", "s_max_u32 s51, s51, s48")
        a.e("s_lshr_b32 s48, s51, 8", "s_and_b32 s49, s51, 255", "v_mov_b32 v14, s48", "v_mov_b32 v15, s49", f"v_mov_b32 v16, {8*(k-1)}", "s_mov_b64 exec, 1",
            "buffer_store_dwordx2 v[14:15], v16, s[92:95], 0 offen", "s_mov_b64 exec, -1")
DMAP_A = {1: 0, 5: 1, 6: 2, 7: 3, 8: 4, 9: 5}
DMAP_B = {}
ROLE = ["B"]
def fstamp(a, i):
    if OPT.get("fine") != PHASE[0]: return
    a.e('s_memtime s[96:97]', 's_waitcnt lgkmcnt(0)', f'v_writelane_b32 v246, s96, {i}')
def stamp(a, i, real=False):
    if OPT.get("dmax"):
        m = DMAP_A if ROLE[0] == "A" else DMAP_B
        if i in m and i != 14: dstamp(a, m[i])
        return
    if not gen.PROF: return
    a.e('s_memrealtime s[96:97]' if real else 's_memtime s[96:97]', 's_waitcnt lgkmcnt(0)', f'v_writelane_b32 v247, s96, {i}')

WBYTES = 2048*513*2
LB_STRIDE = 12896
LDS_BYTES = 53248
SPIN_LIMIT = 400000
OPT = dict(prioA=0, prioB=0, sleep=0, nt=1, wsend=0, ntout=1, ntw=1, wlate=1, hlate=1, qA=1, fsa=6, fsb=6, shrink=0, loc=1, forceloc=-1, ldloc=1, bdelay=0, earlypub=1, wpos=1, optst=1, locflag=1, hearly=1, twoflag=1, pA1i=-1, pB1=0, ntscr=0, a3all=1, ntk=1, ntv=1, ntx=1, nth=1, hactdelay=0, b1all=1, bactwait=1, pA1a=-1, grp=1, yieldB=0, ylim=40, tlb=0, cpf=0, spec2=1, y0=0, yinit=1, ymid=0, swap=0, a1all=1, cearly=1, fullline=1, qlate=0, hfirst=0, pairx=0, gld=0, t0late=0, i2ld=0, outB=-1, b3w=0, wbl2=0, fast=0, latem=0, ilv=0, wpoll=0, ylate=0, pflip=0, hwait=0, bearly=0, wpoll2=0)
def NTOB(): return NTO() if OPT['outB'] < 0 else {0: '', 1: ' nt', 2: ' sc1', 3: ' sc1 nt'}[OPT['outB']]
def GLD(): return {0: 'sc1', 1: 'nt', 2: ''}[OPT['gld']]
def NMEM(): return 32 if OPT['b1all'] else 48
def LDL(): return {0: ' sc1', 1: ' nt', 2: ' sc1 nt'}[OPT['ldloc']]
def FA(): return OPT['fsa']
def FB(): return OPT['fsb']
def NT(): return ' nt' if OPT['nt'] else ''
def NTO(): return {0: '', 1: ' nt', 2: ' sc1', 3: ' sc1 nt'}[OPT['ntout']]

P_X, P_WR, P_WI, P_Q, P_K, P_V, P_SHK, P_SSMK, P_SSMD, P_OUT, P_DBG, P_WS = 4, 6, 8, 10, 12, 14, 16, 18, 20, 22, 24, 26
S_DBG = 28
def eidx(r): return (r & 3) + 8*(r >> 2)

_lbl = [0]
def newlbl(p):
    _lbl[0] += 1
    return f"L_{p}_{_lbl[0]}"

WS_SYNC = 20*MB
S_SYN = 28
S_TGT = 101
SY_E, SY_A1, SY_A2, SY_B1, SY_B2 = 0, 4096, 4096+16384, 4096+32768, 4096+49152
sACT, sCBKT, sSUBT, sCU = 88, 89, 90, 91
sLOC, sXEXP = 79, 0
S_DBG = 12
def signal(a, s_off, vt, nafter=0, bloc=False):
    L = newlbl("sig")
    a.e(f"s_waitcnt vmcnt({nafter})", "s_barrier", "s_cmp_lg_u32 s3, 0", f"s_cbranch_scc1 {L}",
        f"v_mov_b32 v{vt}, s{s_off}", f"v_mov_b32 v{vt+1}, s{S_TGT}", "s_mov_b64 exec, 1")
    st = f"buffer_store_dword v{vt+1}, v{vt}, s[{S_SYN}:{S_SYN+3}], 0 offen"
    if bloc and OPT["locflag"]:
        dual_store(a, [st])
    else:
        a.e(st + " sc1")
    a.e("s_mov_b64 exec, -1")
    if OPT.get("flagwait"): a.e("s_waitcnt vmcnt(0)")
    a.label(L)

def wait_flags(a, vaddr, nload, vt, s_cnt, pre_barrier=None, solo=False, skip0=None):
    L = newlbl("poll"); Ls = newlbl("pdone"); Lr = newlbl("prest")
    if not solo: a.e("s_cmp_lg_u32 s3, 0", f"s_cbranch_scc1 {Ls}")
    a.e(f"s_mov_b32 s{s_cnt}, 0")
    a.label(L)
    offs = ["0", "s98", "s99", "s100"]
    for i in range(nload):
        a.e(f"buffer_load_dword v{vt+i}, v{vaddr}, s[{S_SYN}:{S_SYN+3}], {offs[i]} offen sc1")
    a.e(f"s_add_u32 s{s_cnt}, s{s_cnt}, 1", "s_waitcnt vmcnt(0)")
    for i in range(nload):
        a.e(f"v_xor_b32 v{vt+i}, s{S_TGT}, v{vt+i}")
    if skip0 is not None:
        a.e(f"v_readfirstlane_b32 s{skip0}, v{vt}", f"v_writelane_b32 v{vt}, 0, 0")
    for i in range(1, nload):
        a.e(f"v_or_b32 v{vt}, v{vt}, v{vt+i}")
    if OPT["shrink"]:
        a.e(f"v_cmp_ne_u32 vcc, 0, v{vt}", "s_and_b64 exec, exec, vcc", f"s_cbranch_execz {Lr}")
    else:
        a.e(f"v_cmp_ne_u32 vcc, 0, v{vt}", f"s_cbranch_vccz {Lr}")
    if OPT["sleep"]: a.e(f"s_sleep {OPT['sleep']}")
    a.e(f"s_cmp_lt_u32 s{s_cnt}, {SPIN_LIMIT}", f"s_cbranch_scc1 {L}")
    a.label(Lr)
    if OPT["shrink"]: a.e("s_mov_b64 exec, -1")
    a.label(Ls)
    if pre_barrier: a.e(pre_barrier)
    if not solo: a.e("s_barrier")

SY_ID = 4096 + 65536
SY_B1B = 4096 + 98304
SY_AS = 4096 + 114688
LOCW = 53244
def loc_publish(a):
    L = newlbl("pub")
    a.e("s_getreg_b32 s92, hwreg(HW_REG_XCC_ID)", "s_and_b32 s92, s92, 15", f"s_lshl_b32 s{sXEXP}, s{S_TGT}, 4", f"s_or_b32 s{sXEXP}, s{sXEXP}, s92")
    a.e("s_cmp_lg_u32 s3, 0", f"s_cbranch_scc1 {L}")
    if OPT["b1all"] and OPT["grp"]:
        a.e("s_and_b32 s92, s2, 15", "s_lshl_b32 s92, s92, 4", "s_lshr_b32 s93, s2, 4", "s_add_u32 s92, s92, s93", "s_lshl_b32 s92, s92, 6", f"s_add_u32 s92, s92, {SY_ID}")
    else:
        a.e("s_lshr_b32 s92, s2, 3", f"s_lshr_b32 s93, s{sCU}, 4", "s_add_u32 s93, s93, 32", "s_cmp_ge_u32 s2, 256", "s_cselect_b32 s92, s93, s92",
            "s_and_b32 s93, s2, 7", f"s_mul_i32 s93, s93, {NMEM()}", "s_add_u32 s92, s92, s93", "s_lshl_b32 s92, s92, 6", f"s_add_u32 s92, s92, {SY_ID}")
    a.e(
        "v_mov_b32 v10, s92", f"v_mov_b32 v11, s{sXEXP}", "s_mov_b64 exec, 1",
        f"buffer_store_dword v11, v10, s[{S_SYN}:{S_SYN+3}], 0 offen sc1", "s_mov_b64 exec, -1")
    a.label(L)

def loc_issue(a, vt):
    if OPT["b1all"] and OPT["grp"]:
        a.e(f"v_min_u32 v{vt}, 15, v1", "s_and_b32 s93, s2, 15", "s_lshl_b32 s93, s93, 4")
    else:
        a.e(f"v_min_u32 v{vt}, {NMEM()-1}, v1", "s_and_b32 s93, s2, 7", f"s_mul_i32 s93, s93, {NMEM()}")
    a.e(f"v_add_u32 v{vt}, s93, v{vt}",
        f"v_lshlrev_b32 v{vt}, 6, v{vt}", f"v_add_u32 v{vt}, {SY_ID}, v{vt}")
    L = newlbl("li")
    a.e("s_cmp_lg_u32 s3, 0", f"s_cbranch_scc1 {L}")
    a.e(f"buffer_load_dword v{vt+1}, v{vt}, s[{S_SYN}:{S_SYN+3}], 0 offen sc1")
    a.label(L)

def loc_resolve(a, vt, barrier=True, nafter=0):
    L, Ld, Ls = newlbl("locp"), newlbl("locd"), newlbl("locs")
    a.e("s_cmp_lg_u32 s3, 0", f"s_cbranch_scc1 {Ls}")
    if OPT["forceloc"] >= 0:
        a.e(f"s_waitcnt vmcnt({nafter})", f"s_mov_b32 s93, {OPT['forceloc']}")
    else:
        a.e("s_mov_b32 s92, 0", f"s_waitcnt vmcnt({nafter})")
        a.label(L)
        a.e(f"v_xor_b32 v{vt+2}, s{sXEXP}, v{vt+1}", f"v_lshrrev_b32 v{vt+3}, 4, v{vt+2}", "s_add_u32 s92, s92, 1",
            f"v_cmp_ne_u32 vcc, 0, v{vt+3}", f"s_cbranch_vccz {Ld}",
            f"s_cmp_ge_u32 s92, {SPIN_LIMIT}", f"s_cbranch_scc1 {Ld}",
            f"buffer_load_dword v{vt+1}, v{vt}, s[{S_SYN}:{S_SYN+3}], 0 offen sc1", "s_waitcnt vmcnt(0)", f"s_branch {L}")
        a.label(Ld)
        a.e(f"v_cmp_ne_u32 vcc, 0, v{vt+2}", "s_cmp_eq_u64 vcc, 0", "s_cselect_b32 s93, 1, 0")
    a.e(f"s_mov_b32 s{sLOC}, s93", f"v_mov_b32 v{vt+2}, {LOCW}", f"v_mov_b32 v{vt+3}, s93", f"ds_write_b32 v{vt+2}, v{vt+3}", "s_waitcnt lgkmcnt(0)")
    a.label(Ls)
    if barrier:
        a.e("s_barrier")
        loc_read(a, vt)

def loc_read(a, vt):
    a.e(f"v_mov_b32 v{vt+2}, {LOCW}", f"ds_read_b32 v{vt+3}, v{vt+2}", "s_waitcnt lgkmcnt(0)", f"v_readfirstlane_b32 s{sLOC}, v{vt+3}")

def dual_store(a, lines):
    L1, L2 = newlbl("stg"), newlbl("stl")
    a.e(f"s_cmp_eq_u32 s{sLOC}, 0", f"s_cbranch_scc1 {L1}")
    for l in lines: a.e(l)
    a.e(f"s_branch {L2}")
    a.label(L1)
    for l in lines: a.e(l + " sc1" if "buffer_store" in l else l)
    a.label(L2)

def a_state(a, sT, st, vt):
    L = newlbl("ast")
    a.e("s_cmp_lg_u32 s3, 0", f"s_cbranch_scc1 {L}", f"s_lshl_b32 s92, s{sT}, 6", f"s_add_u32 s92, s92, {SY_AS}",
        f"s_lshl_b32 s93, s{S_TGT}, 2", f"s_or_b32 s93, s93, {st}", f"v_mov_b32 v{vt}, s92", f"v_mov_b32 v{vt+1}, s93", "s_mov_b64 exec, 1",
        f"buffer_store_dword v{vt+1}, v{vt}, s[{S_SYN}:{S_SYN+3}], 0 offen", "s_mov_b64 exec, -1")
    a.label(L)

def y_ld(vt): return f"buffer_load_dword v{vt+1}, v{vt}, s[{S_SYN}:{S_SYN+3}], 0 offen " + ("sc1" if OPT.get("ysc", 1) else "nt")
def b_yield(a, vt):
    L, Ld = newlbl("yl"), newlbl("yd")
    a.e(f"s_lshl_b32 s92, s{sCU}, 6", f"s_add_u32 s92, s92, {SY_AS}", f"v_mov_b32 v{vt}, s92", f"s_lshl_b32 s75, s{S_TGT}, 2", "s_mov_b32 s92, 0")
    a.e(f"s_or_b32 s75, s75, {2 if OPT['yieldB'] == 2 else 1}")
    if OPT["yieldB"] == 3:
        a.e(y_ld(vt)); return
    a.label(L)
    a.e(y_ld(vt), "s_add_u32 s92, s92, 1", "s_waitcnt vmcnt(0)",
        f"v_readfirstlane_b32 s93, v{vt+1}", "s_cmp_lg_u32 s93, s75" if OPT["yieldB"] == 1 else "s_cmp_eq_u32 s93, s75", f"s_cbranch_scc1 {Ld}",
        f"s_cmp_lt_u32 s92, {OPT['ylim']}", f"s_cbranch_scc1 {L}")
    a.label(Ld)

def b_wait_state(a, vt, st, lim):
    L, Ld = newlbl("hw"), newlbl("hwd")
    a.e(f"s_and_b32 s92, s2, 255", "s_lshl_b32 s92, s92, 6", f"s_add_u32 s92, s92, {SY_AS}", f"v_mov_b32 v{vt}, s92", f"s_lshl_b32 s75, s{S_TGT}, 2", f"s_or_b32 s75, s75, {st}", "s_mov_b32 s92, 0")
    a.label(L)
    a.e(y_ld(vt), "s_add_u32 s92, s92, 1", "s_waitcnt vmcnt(0)", f"v_readfirstlane_b32 s93, v{vt+1}", "s_cmp_eq_u32 s93, s75", f"s_cbranch_scc1 {Ld}",
        f"s_cmp_lt_u32 s92, {lim}", f"s_cbranch_scc1 {L}")
    a.label(Ld)

def b_yield_step(a, vt, last):
    L, Ld = newlbl("ys"), newlbl("ysd")
    a.label(L)
    a.e("s_waitcnt vmcnt(0)", f"v_readfirstlane_b32 s93, v{vt+1}", "s_cmp_lg_u32 s93, s75", f"s_cbranch_scc1 {Ld}",
        f"s_cmp_ge_u32 s92, {OPT['ylim']}", f"s_cbranch_scc1 {Ld}", "s_add_u32 s92, s92, 1", y_ld(vt), f"s_branch {L}")
    a.label(Ld)
    if not last: a.e(y_ld(vt))

def wait_flags_mid(a, vaddr, vt, s_cnt, mid, nmid):
    L0, L, Ls, Lr = newlbl("pm0"), newlbl("pml"), newlbl("pms"), newlbl("pmr")
    ld = f"buffer_load_dword v{vt}, v{vaddr}, s[{S_SYN}:{S_SYN+3}], 0 offen sc1"
    a.e("s_cmp_lg_u32 s3, 0", f"s_cbranch_scc1 {L0}", ld)
    a.label(L0)
    mid()
    a.e("s_cmp_lg_u32 s3, 0", f"s_cbranch_scc1 {Ls}", f"s_mov_b32 s{s_cnt}, 0", f"s_waitcnt vmcnt({nmid})")
    a.label(L)
    a.e(f"v_xor_b32 v{vt}, s{S_TGT}, v{vt}", f"v_cmp_ne_u32 vcc, 0, v{vt}", f"s_cbranch_vccz {Ls}",
        f"s_add_u32 s{s_cnt}, s{s_cnt}, 1", f"s_cmp_ge_u32 s{s_cnt}, {SPIN_LIMIT}", f"s_cbranch_scc1 {Ls}", ld, "s_waitcnt vmcnt(0)", f"s_branch {L}")
    a.label(Ls)
    a.e("s_barrier")

def wait_two(a, va, vb, vt, s_cnt, skip0):
    L, Lr, Ln = newlbl("w2"), newlbl("w2r"), newlbl("w2n")
    a.e(f"s_mov_b32 s{s_cnt}, 0")
    a.label(L)
    a.e(f"buffer_load_dword v{vt}, v{va}, s[{S_SYN}:{S_SYN+3}], 0 offen sc1", f"buffer_load_dword v{vt+1}, v{vb}, s[{S_SYN}:{S_SYN+3}], 0 offen sc1",
        f"s_add_u32 s{s_cnt}, s{s_cnt}, 1", "s_waitcnt vmcnt(0)",
        f"v_xor_b32 v{vt}, s{S_TGT}, v{vt}", f"v_xor_b32 v{vt+1}, s{S_TGT}, v{vt+1}", f"v_or_b32 v{vt}, v{vt}, v{vt+1}")
    a.e("s_cmp_lg_u32 s3, 0", f"s_cbranch_scc1 {Ln}", f"v_readfirstlane_b32 s{skip0}, v{vt}", f"v_writelane_b32 v{vt}, 0, 0")
    a.label(Ln)
    a.e(f"v_cmp_ne_u32 vcc, 0, v{vt}", f"s_cbranch_vccz {Lr}", f"s_cmp_lt_u32 s{s_cnt}, {SPIN_LIMIT}", f"s_cbranch_scc1 {L}")
    a.label(Lr)

def fin_epoch(a):
    a.e("s_waitcnt lgkmcnt(0)", f"s_add_u32 s{S_TGT}, s{S_TGT}, 1")

def bump(a, s_off, vt):
    a.e(f"v_mov_b32 v{vt}, s{s_off}", f"v_mov_b32 v{vt+1}, s{S_TGT}", "s_mov_b64 exec, 1",
        f"buffer_store_dword v{vt+1}, v{vt}, s[{S_SYN}:{S_SYN+3}], 0 offen sc1", "s_mov_b64 exec, -1")

F_M, F_G, F_IN0, F_IN1, F_OUTOFF, F_WR, F_RD0, F_RD1, F_MM = 2, 3, 4, 5, 6, 7, 8, 9, 10
F_T = 11
F_IN, F16RE, F16IM, F_TWC, F_TWS, F_DRE, F_DIM, F_P, F_TMP, F32RE, F32IM = 16, 48, 52, 56, 88, 120, 136, 152, 168, 176, 192
SI_OFF, SO_OFF = 52, 68
SO_LIST = [68, 69, 70, 71, 76, 77, 78, 79]

def fft512_addr(a, s_sa, s_cb):
    a.e(f"v_and_b32 v{F_M}, 15, v1", f"v_lshrrev_b32 v{F_G}, 4, v1")
    a.e(f"v_lshlrev_b32 v{F_IN0}, 20, v{F_G}", f"v_lshl_add_u32 v{F_IN0}, v{F_M}, 2, v{F_IN0}", f"v_add_u32 v{F_IN1}, {4*8192}, v{F_IN0}")
    a.e(f"s_lshl_b32 s48, s{s_sa}, 11", f"s_lshl_b32 s49, s{s_cb}, 6", "s_add_u32 s48, s48, s49",
        "s_lshl_b32 s50, s3, 16", "s_add_u32 s48, s48, s50")
    for aa in range(4):
        for i in range(4):
            a.e(f"s_add_u32 s{SI_OFF+4*aa+i}, s48, {(32*i+aa)*8192}")

def fft512_loads(a, SIN, mod=""):
    for hh in range(2):
        for aa in range(4):
            for i in range(4):
                a.e(f"buffer_load_dword v{F_IN+16*hh+4*aa+i}, v{F_IN0+hh}, s[{SIN}:{SIN+3}], s{SI_OFF+4*aa+i} offen {mod}")

def fft512_addr2(a, s_sa, s_cb, orow, ostr):
    a.e(f"s_mov_b32 s51, {16*ostr}", f"v_mul_lo_u32 v{F_OUTOFF}, v{F_M}, s51", f"v_lshl_add_u32 v{F_OUTOFF}, v{F_G}, 4, v{F_OUTOFF}")
    a.e(f"s_mul_i32 s48, s{s_sa}, {orow}", f"s_lshl_b32 s49, s{s_cb}, 6", "s_add_u32 s48, s48, s49",
        f"s_mul_i32 s50, s3, {4*ostr}", "s_add_u32 s48, s48, s50")
    for b in range(4):
        for h in range(2):
            a.e(f"s_add_u32 s{SO_LIST[2*b+h]}, s48, {(b+256*h)*ostr}")
    a.e(f"v_and_b32 v{F_T}, 7, v{F_M}", "s_lshl_b32 s50, s3, 1", f"v_xor_b32 v{F_T+1}, s50, v{F_T}",
        f"v_lshlrev_b32 v{F_WR}, 4, v{F_T+1}", f"v_lshl_add_u32 v{F_WR}, v{F_M}, 7, v{F_WR}",
        f"v_lshl_add_u32 v{F_WR}, v{F_G}, 13, v{F_WR}")
    a.e(f"v_xor_b32 v{F_T+1}, v{F_G}, v{F_T}", f"v_lshlrev_b32 v{F_RD0}, 4, v{F_T+1}",
        f"v_lshl_add_u32 v{F_RD0}, v{F_M}, 7, v{F_RD0}", "s_lshl_b32 s50, s3, 13",
        f"v_add_u32 v{F_RD0}, s50, v{F_RD0}", f"v_xor_b32 v{F_RD1}, 64, v{F_RD0}")

def fft512_consts(a):
    T, TMP = F_T, F_TMP
    XS, XB = T, T+1
    a.e(f"v_cvt_f32_u32 v{XS}, v{F_M}", f"v_mul_f32 v{XS}, {f32hex(1/32)}, v{XS}",
        f"v_cvt_f32_u32 v{T+2}, v{F_G}", f"v_mul_f32 v{T+2}, 4.0, v{T+2}",
        f"v_mul_f32 v{XB}, v{T+2}, v{XS}")
    a.e(f"v_and_b32 v{F_MM}, 1, v{F_M}", f"v_mul_u32_u24 v{F_MM}, 0x8000, v{F_MM}",
        f"v_lshl_or_b32 v{F_MM}, v{F_MM}, 16, v{F_MM}", "s_mov_b32 s50, 0x80008000")
    for i in range(4):
        x = TMP; cs = TMP+1; sn = TMP+2; x2 = TMP+3; cs2 = TMP+4; sn2 = TMP+5
        a.e(f"v_fmamk_f32 v{x}, v{XS}, {f32hex(float(i))}, v{XB}" if i else f"v_mov_b32 v{x}, v{XB}")
        a.e(f"v_add_f32 v{x2}, v{x}, v{x}")
        a.e(f"v_cos_f32 v{cs}, v{x}", f"v_sin_f32 v{sn}, v{x}", f"v_cos_f32 v{cs2}, v{x2}", f"v_sin_f32 v{sn2}, v{x2}")
        a.e(f"v_cvt_pk_bf16_f32 v{F32RE+i}, v{cs}, v{sn}", f"v_cvt_pk_bf16_f32 v{F32IM+i}, -v{sn}, v{cs}",
            f"v_cvt_pk_bf16_f32 v{F16RE+i}, v{cs2}, v{sn2}", f"v_cvt_pk_bf16_f32 v{F16IM+i}, -v{sn2}, v{cs2}")
    for base in (F32RE, F32IM):
        for i in range(4):
            a.e(f"v_xor_b32 v{base+4+i}, v{F_MM}, v{base+i}")
        for t in range(2):
            for i in range(4):
                src = base+4*t+i
                if i & 1: a.e(f"v_xor_b32 v{base+8+4*t+i}, s50, v{src}")
                else:     a.e(f"v_mov_b32 v{base+8+4*t+i}, v{src}")
    a.e(f"v_cvt_f32_u32 v{TMP}, s3", f"v_mul_f32 v{TMP}, {f32hex(8/512)}, v{TMP}")
    for r in range(4):
        a.e(f"v_add_f32 v{TMP+4+r}, {f32hex(float(r)) if r else 0}, v{T+2}")
    for aa in range(8):
        a.e(f"v_add_f32 v{TMP+1}, {f32hex(aa/512) if aa else 0}, v{TMP}")
        for r in range(4):
            a.e(f"v_mul_f32 v{T+3+(r&1)}, v{TMP+1}, v{TMP+4+r}",
                f"v_cos_f32 v{F_TWC+4*aa+r}, v{T+3+(r&1)}", f"v_sin_f32 v{F_TWS+4*aa+r}, v{T+3+(r&1)}")

def fft512_compute(a, SOUT, neg_im, nafter, stmod, st0, fs=0, hook=None):
    TMP = F_TMP
    stamp(a, st0)
    for hh in range(2):
        fstamp(a, fs+5*hh)
        for aa in range(4):
            a.e(f"s_waitcnt vmcnt({28-16*hh-4*aa+nafter})")
            a.e(f"v_mfma_f32_16x16x32_bf16 {v(F_DRE+4*aa,4)}, {v(F16RE,4)}, {v(F_IN+16*hh+4*aa,4)}, 0",
                f"v_mfma_f32_16x16x32_bf16 {v(F_DIM+4*aa,4)}, {v(F16IM,4)}, {v(F_IN+16*hh+4*aa,4)}, 0")
        if hh == 1:
            stamp(a, st0+1)
            if hook: hook()
        fstamp(a, fs+5*hh+1)
        for aa in range(4):
            for p in range(2):
                re, im = F_DRE+4*aa+2*p, F_DIM+4*aa+2*p
                tc, ts = F_TWC+16*hh+4*aa+2*p, F_TWS+16*hh+4*aa+2*p
                t0, t1 = TMP+4*p, TMP+4*p+2
                a.e(f"v_pk_mul_f32 {v(t0,2)}, {v(re,2)}, {v(tc,2)}",
                    f"v_pk_mul_f32 {v(t1,2)}, {v(im,2)}, {v(tc,2)}",
                    f"v_pk_fma_f32 {v(t0,2)}, {v(im,2)}, {v(ts,2)}, {v(t0,2)}",
                    f"v_pk_fma_f32 {v(t1,2)}, {v(re,2)}, {v(ts,2)}, {v(t1,2)} neg_lo:[1,0,0] neg_hi:[1,0,0]")
                for e in range(2):
                    r = 2*p+e
                    a.e(f"v_cvt_pk_bf16_f32 v{F_P+4*r+aa}, v{t0+e}, v{t1+e}")
        fstamp(a, fs+5*hh+2)
        if hh == 1: a.e(f"v_xor_b32 v{F_WR}, 16, v{F_WR}")
        for r in range(4):
            a.e(f"ds_write_b128 v{F_WR}, {v(F_P+4*r,4)} offset:{r*2048}")
    a.e("s_waitcnt lgkmcnt(0)")
    fstamp(a, fs+8)
    a.e("s_barrier")
    fstamp(a, fs+9)
    for b in range(4):
        a.e(f"ds_read_b128 {v(F_IN+8*b,4)}, v{F_RD0} offset:{b*2048}",
            f"ds_read_b128 {v(F_IN+8*b+4,4)}, v{F_RD1} offset:{b*2048}")
    sg = "-" if neg_im else ""
    def mf(bb):
        D0 = [F_DRE, F_DIM] if bb == 0 else [F_TWC, F_TWC+16]
        for bl in range(2):
            b = 2*bb+bl
            a.e(f"s_waitcnt lgkmcnt({6-2*b})")
            for t in range(2):
                for h in range(2):
                    for (D_, F_) in ((D0[0], F32RE), (D0[1], F32IM)):
                        d = D_+8*bl+4*h
                        c = "0" if t == 0 else v(d, 4)
                        a.e(f"v_mfma_f32_16x16x32_bf16 {v(d,4)}, {v(F_IN+8*b+4*t,4)}, {v(F_+8*h+4*t,4)}, {c}")
    def st(bb):
        D0 = [F_DRE, F_DIM] if bb == 0 else [F_TWC, F_TWC+16]
        PB = F_P if bb == 0 else F_TWS
        out = []
        for bl in range(2):
            b = 2*bb+bl
            for h in range(2):
                idx = 8*bl+4*h
                for r in range(4):
                    out.append(f"v_cvt_pk_bf16_f32 v{PB+idx+r}, v{D0[0]+idx+r}, {sg}v{D0[1]+idx+r}")
                out.append(f"buffer_store_dwordx4 {v(PB+idx,4)}, v{F_OUTOFF}, s[{SOUT}:{SOUT+3}], s{SO_LIST[2*b+h]} offen {stmod}")
        return out
    mf(0)
    n0 = len(a.lines)
    mf(1)
    m1 = a.lines[n0:]; del a.lines[n0:]
    s0 = st(0)
    k = 0
    seen = 0
    for l in m1:
        a.lines.append(l)
        if "v_mfma" in l:
            seen += 1
            if seen > 4:
                for _ in range(2):
                    if k < len(s0): a.e(s0[k]); k += 1
    while k < len(s0): a.e(s0[k]); k += 1
    fstamp(a, fs+10)
    for l in st(1): a.e(l)

def f8_addr(a, s_sa, s_cb, orow, ostr):
    a.e(f"v_and_b32 v{F_M}, 15, v1", f"v_lshrrev_b32 v{F_G}, 4, v1")
    a.e(f"v_and_b32 v{F_T}, 7, v1", f"v_bfe_u32 v{F_T+1}, v1, 3, 1",
        f"v_lshlrev_b32 v{F_IN0}, 20, v{F_G}", f"v_lshl_add_u32 v{F_IN0}, v{F_T+1}, 15, v{F_IN0}",
        f"v_lshl_add_u32 v{F_IN0}, v{F_T}, 2, v{F_IN0}")
    a.e(f"s_lshl_b32 s48, s{s_sa}, 11", f"s_lshl_b32 s49, s{s_cb}, 5", "s_add_u32 s48, s48, s49",
        "s_lshl_b32 s50, s3, 16", "s_add_u32 s48, s48, s50")
    for aa in range(4):
        for i in range(4):
            a.e(f"s_add_u32 s{SI_OFF+4*aa+i}, s48, {(32*i+aa)*8192}")
    a.e(f"v_lshrrev_b32 v{F_T+2}, 1, v{F_G}", f"v_lshl_add_u32 v{F_T+2}, v{F_M}, 4, v{F_T+2}",
        f"s_mov_b32 s51, {ostr}", f"v_mul_lo_u32 v{F_OUTOFF}, v{F_T+2}, s51",
        f"v_and_b32 v{F_T+2}, 1, v{F_G}", f"v_lshl_add_u32 v{F_OUTOFF}, v{F_T+2}, 4, v{F_OUTOFF}")
    a.e(f"s_mul_i32 s48, s{s_sa}, {orow}", f"s_lshl_b32 s49, s{s_cb}, 5", "s_add_u32 s48, s48, s49",
        f"s_mul_i32 s50, s3, {4*ostr}", "s_add_u32 s48, s48, s50")
    for b in range(2):
        for h in range(2):
            a.e(f"s_add_u32 s{SO_LIST[2*b+h]}, s48, {(2*b+256*h)*ostr}")
    a.e("s_lshl_b32 s50, s3, 1", f"v_add_u32 v{F_T+2}, s50, v{F_T+1}", f"v_xor_b32 v{F_T+2}, v{F_T+2}, v{F_T}",
        f"v_lshlrev_b32 v{F_WR}, 4, v{F_T+2}", f"v_lshl_add_u32 v{F_WR}, v{F_T}, 7, v{F_WR}", f"v_lshl_add_u32 v{F_WR}, v{F_G}, 12, v{F_WR}")
    a.e(f"v_xor_b32 v{F_T+2}, v{F_G}, v{F_T}", f"v_lshlrev_b32 v{F_RD0}, 4, v{F_T+2}",
        f"v_lshl_add_u32 v{F_RD0}, v{F_T}, 7, v{F_RD0}", f"v_lshl_add_u32 v{F_RD0}, v{F_T+1}, 10, v{F_RD0}",
        "s_lshl_b32 s50, s3, 12", f"v_add_u32 v{F_RD0}, s50, v{F_RD0}", f"v_xor_b32 v{F_RD1}, 64, v{F_RD0}")

def f8_consts(a):
    T, TMP = F_T, F_TMP
    XS, XB = T, T+1
    a.e(f"v_cvt_f32_u32 v{XS}, v{F_M}", f"v_mul_f32 v{XS}, {f32hex(1/32)}, v{XS}",
        f"v_cvt_f32_u32 v{T+2}, v{F_G}", f"v_mul_f32 v{T+2}, 4.0, v{T+2}",
        f"v_mul_f32 v{XB}, v{T+2}, v{XS}")
    a.e(f"v_and_b32 v{F_MM}, 1, v{F_M}", f"v_mul_u32_u24 v{F_MM}, 0x8000, v{F_MM}",
        f"v_lshl_or_b32 v{F_MM}, v{F_MM}, 16, v{F_MM}", "s_mov_b32 s50, 0x80008000")
    for i in range(4):
        x = TMP; cs = TMP+1; sn = TMP+2; x2 = TMP+3; cs2 = TMP+4; sn2 = TMP+5
        a.e(f"v_fmamk_f32 v{x}, v{XS}, {f32hex(float(i))}, v{XB}" if i else f"v_mov_b32 v{x}, v{XB}")
        a.e(f"v_add_f32 v{x2}, v{x}, v{x}")
        a.e(f"v_cos_f32 v{cs}, v{x}", f"v_sin_f32 v{sn}, v{x}", f"v_cos_f32 v{cs2}, v{x2}", f"v_sin_f32 v{sn2}, v{x2}")
        a.e(f"v_cvt_pk_bf16_f32 v{F32RE+i}, v{cs}, v{sn}", f"v_cvt_pk_bf16_f32 v{F32IM+i}, -v{sn}, v{cs}",
            f"v_cvt_pk_bf16_f32 v{F16RE+i}, v{cs2}, v{sn2}", f"v_cvt_pk_bf16_f32 v{F16IM+i}, -v{sn2}, v{cs2}")
    for base in (F32RE, F32IM):
        for i in range(4):
            a.e(f"v_xor_b32 v{base+4+i}, v{F_MM}, v{base+i}")
        for t in range(2):
            for i in range(4):
                src = base+4*t+i
                if i & 1: a.e(f"v_xor_b32 v{base+8+4*t+i}, s50, v{src}")
                else:     a.e(f"v_mov_b32 v{base+8+4*t+i}, v{src}")
    a.e(f"v_bfe_u32 v{TMP}, v1, 3, 1", "s_lshl_b32 s50, s3, 1", f"v_add_u32 v{TMP}, s50, v{TMP}",
        f"v_cvt_f32_u32 v{TMP}, v{TMP}", f"v_mul_f32 v{TMP}, {f32hex(4/512)}, v{TMP}")
    for r in range(4):
        a.e(f"v_add_f32 v{TMP+4+r}, {f32hex(float(r)) if r else 0}, v{T+2}")
    for aa in range(4):
        a.e(f"v_add_f32 v{TMP+1}, {f32hex(aa/512) if aa else 0}, v{TMP}")
        for r in range(4):
            a.e(f"v_mul_f32 v{T+3+(r&1)}, v{TMP+1}, v{TMP+4+r}",
                f"v_cos_f32 v{F_TWC+4*aa+r}, v{T+3+(r&1)}", f"v_sin_f32 v{F_TWS+4*aa+r}, v{T+3+(r&1)}")

def f8_run(a, SIN, SOUT, ldmod, stmod, sT0=None):
    TMP = F_TMP
    ld = lambda aa, i: f"buffer_load_dword v{F_IN+4*aa+i}, v{F_IN0}, s[{SIN}:{SIN+3}], s{SI_OFF+4*aa+i} offen {ldmod}"
    order = [0, 1, 2, 3]
    if sT0 is None:
        for aa in range(4):
            for i in range(4): a.e(ld(aa, i))
    else:
        order = [1, 2, 3, 0]
        for aa in (1, 2, 3):
            for i in range(4): a.e(ld(aa, i))
        for i in (1, 2, 3): a.e(ld(0, i))
        L, Ld = newlbl("t0p"), newlbl("t0d")
        a.e("s_cmp_lg_u32 s3, 0", f"s_cbranch_scc1 {Ld}", f"s_cmp_eq_u32 s{sT0}, 0", f"s_cbranch_scc1 {Ld}",
            f"v_mov_b32 v{TMP}, {SY_A2}", "s_mov_b32 s48, 0")
        a.label(L)
        a.e(f"buffer_load_dword v{TMP+1}, v{TMP}, s[{S_SYN}:{S_SYN+3}], 0 offen sc1", "s_add_u32 s48, s48, 1", "s_waitcnt vmcnt(0)",
            f"v_readfirstlane_b32 s49, v{TMP+1}", f"s_cmp_eq_u32 s49, s{S_TGT}", f"s_cbranch_scc1 {Ld}",
            f"s_cmp_lt_u32 s48, {SPIN_LIMIT}", f"s_cbranch_scc1 {L}")
        a.label(Ld)
        a.e(ld(0, 0))
    fstamp(a, 3)
    for n_, aa in enumerate(order):
        a.e(f"s_waitcnt vmcnt({12-4*n_})")
        a.e(f"v_mfma_f32_16x16x32_bf16 {v(F_DRE+4*aa,4)}, {v(F16RE,4)}, {v(F_IN+4*aa,4)}, 0",
            f"v_mfma_f32_16x16x32_bf16 {v(F_DIM+4*aa,4)}, {v(F16IM,4)}, {v(F_IN+4*aa,4)}, 0")
    fstamp(a, 1)
    for aa in range(4):
        for p in range(2):
            re, im = F_DRE+4*aa+2*p, F_DIM+4*aa+2*p
            tc, ts = F_TWC+4*aa+2*p, F_TWS+4*aa+2*p
            t0, t1 = TMP+4*p, TMP+4*p+2
            a.e(f"v_pk_mul_f32 {v(t0,2)}, {v(re,2)}, {v(tc,2)}",
                f"v_pk_mul_f32 {v(t1,2)}, {v(im,2)}, {v(tc,2)}",
                f"v_pk_fma_f32 {v(t0,2)}, {v(im,2)}, {v(ts,2)}, {v(t0,2)}",
                f"v_pk_fma_f32 {v(t1,2)}, {v(re,2)}, {v(ts,2)}, {v(t1,2)} neg_lo:[1,0,0] neg_hi:[1,0,0]")
            for e in range(2):
                r = 2*p+e
                a.e(f"v_cvt_pk_bf16_f32 v{F_P+4*r+aa}, v{t0+e}, v{t1+e}")
    for r in range(4):
        a.e(f"ds_write_b128 v{F_WR}, {v(F_P+4*r,4)} offset:{r*1024}")
    a.e("s_waitcnt lgkmcnt(0)")
    fstamp(a, 8)
    a.e("s_barrier")
    fstamp(a, 9)
    for b in range(2):
        a.e(f"ds_read_b128 {v(F_IN+8*b,4)}, v{F_RD0} offset:{b*2048}",
            f"ds_read_b128 {v(F_IN+8*b+4,4)}, v{F_RD1} offset:{b*2048}")
    for b in range(2):
        a.e(f"s_waitcnt lgkmcnt({2-2*b})")
        for t in range(2):
            for h in range(2):
                for (D_, F_) in ((F_DRE, F32RE), (F_DIM, F32IM)):
                    d = D_+8*b+4*h
                    c = "0" if t == 0 else v(d, 4)
                    a.e(f"v_mfma_f32_16x16x32_bf16 {v(d,4)}, {v(F_IN+8*b+4*t,4)}, {v(F_+8*h+4*t,4)}, {c}")
    fstamp(a, 10)
    for b in range(2):
        for h in range(2):
            idx = 8*b+4*h
            for r in range(4):
                a.e(f"v_cvt_pk_bf16_f32 v{F_P+idx+r}, v{F_DRE+idx+r}, -v{F_DIM+idx+r}")
            a.e(f"buffer_store_dwordx4 {v(F_P+idx,4)}, v{F_OUTOFF}, s[{SOUT}:{SOUT+3}], s{SO_LIST[2*b+h]} offen {stmod}")

def f256_loads(a, SX, s_sa, s_cb, mod):
    a.e(f"v_and_b32 v{F_M}, 15, v1", f"v_lshrrev_b32 v{F_G}, 4, v1",
        f"v_lshlrev_b32 v{F_IN0}, 20, v{F_G}", f"v_lshl_add_u32 v{F_IN0}, v{F_M}, 2, v{F_IN0}")
    a.e(f"s_lshl_b32 s48, s{s_sa}, 11", f"s_lshl_b32 s49, s{s_cb}, 6", "s_add_u32 s48, s48, s49",
        "s_lshl_b32 s50, s3, 16", "s_add_u32 s50, s50, s48")
    for aa in range(4):
        for i in range(4):
            a.e(f"s_add_u32 s{SI_OFF+4*aa+i}, s50, {(16*i+aa)*16384}",
                f"buffer_load_dword v{F_IN+4*aa+i}, v{F_IN0}, s[{SX}:{SX+3}], s{SI_OFF+4*aa+i} offen {mod}")

def f256_setup(a):
    T, TMP = F_T, F_TMP
    a.e(f"v_lshlrev_b32 v{F_OUTOFF}, 18, v{F_M}", f"v_lshl_add_u32 v{F_OUTOFF}, v{F_G}, 4, v{F_OUTOFF}",
        "s_lshl_b32 s50, s3, 16", "s_add_u32 s50, s50, s48")
    for b in range(4): a.e(f"s_add_u32 s{SO_LIST[b]}, s50, {b*16384}")
    a.e(f"v_bfe_u32 v{T}, v{F_M}, 1, 2", f"v_xor_b32 v{T+1}, s3, v{T}", f"v_lshlrev_b32 v{F_WR}, 4, v{T+1}",
        f"v_lshl_add_u32 v{F_WR}, v{F_M}, 6, v{F_WR}", f"v_lshl_add_u32 v{F_WR}, v{F_G}, 12, v{F_WR}",
        f"v_xor_b32 v{T+1}, v{F_G}, v{T}", f"v_lshlrev_b32 v{F_RD0}, 4, v{T+1}", f"v_lshl_add_u32 v{F_RD0}, v{F_M}, 6, v{F_RD0}",
        "s_lshl_b32 s50, s3, 12", f"v_add_u32 v{F_RD0}, s50, v{F_RD0}")
    XS, XB = T, T+1
    a.e(f"v_cvt_f32_u32 v{XS}, v{F_M}", f"v_mul_f32 v{XS}, {f32hex(1/16)}, v{XS}",
        f"v_cvt_f32_u32 v{T+2}, v{F_G}", f"v_mul_f32 v{T+2}, 4.0, v{T+2}", f"v_mul_f32 v{XB}, v{T+2}, v{XS}")
    for i in range(4):
        x = TMP+3*(i & 1)
        a.e(f"v_fmamk_f32 v{x}, v{XS}, {f32hex(float(i))}, v{XB}" if i else f"v_mov_b32 v{x}, v{XB}")
        a.e(f"v_cos_f32 v{x+1}, v{x}", f"v_sin_f32 v{x+2}, v{x}")
        a.e(f"v_cvt_pk_bf16_f32 v{F16RE+i}, v{x+1}, v{x+2}", f"v_cvt_pk_bf16_f32 v{F16IM+i}, -v{x+2}, v{x+1}")
    a.e(f"v_cvt_f32_u32 v{TMP}, s3", f"v_mul_f32 v{TMP}, {f32hex(4/256)}, v{TMP}")
    for r in range(4): a.e(f"v_add_f32 v{TMP+4+r}, {f32hex(float(r)) if r else 0}, v{T+2}")
    for aa in range(4):
        a.e(f"v_add_f32 v{TMP+1}, {f32hex(aa/256) if aa else 0}, v{TMP}")
        for r in range(4):
            a.e(f"v_mul_f32 v{T+3+(r&1)}, v{TMP+1}, v{TMP+4+r}",
                f"v_cos_f32 v{F_TWC+4*aa+r}, v{T+3+(r&1)}", f"v_sin_f32 v{F_TWS+4*aa+r}, v{T+3+(r&1)}")

def f256_run(a, SOUT, nafter):
    TMP = F_TMP
    stamp(a, 2)
    for aa in range(4):
        a.e(f"s_waitcnt vmcnt({12-4*aa+nafter})")
        a.e(f"v_mfma_f32_16x16x32_bf16 {v(F_DRE+4*aa,4)}, {v(F16RE,4)}, {v(F_IN+4*aa,4)}, 0",
            f"v_mfma_f32_16x16x32_bf16 {v(F_DIM+4*aa,4)}, {v(F16IM,4)}, {v(F_IN+4*aa,4)}, 0")
    if OPT["pflip"] & 2: a.e(f"s_setprio {OPT['prioA']}")
    stamp(a, 3)
    fstamp(a, 1)
    for aa in range(4):
        for p in range(2):
            re, im = F_DRE+4*aa+2*p, F_DIM+4*aa+2*p
            tc, ts = F_TWC+4*aa+2*p, F_TWS+4*aa+2*p
            t0, t1 = TMP+4*p, TMP+4*p+2
            a.e(f"v_pk_mul_f32 {v(t0,2)}, {v(re,2)}, {v(tc,2)}",
                f"v_pk_mul_f32 {v(t1,2)}, {v(im,2)}, {v(tc,2)}",
                f"v_pk_fma_f32 {v(t0,2)}, {v(im,2)}, {v(ts,2)}, {v(t0,2)}",
                f"v_pk_fma_f32 {v(t1,2)}, {v(re,2)}, {v(ts,2)}, {v(t1,2)} neg_lo:[1,0,0] neg_hi:[1,0,0]")
            for e in range(2):
                r = 2*p+e
                a.e(f"v_cvt_pk_bf16_f32 v{F_P+4*r+aa}, v{t0+e}, v{t1+e}")
    for r in range(4):
        a.e(f"ds_write_b128 v{F_WR}, {v(F_P+4*r,4)} offset:{r*1024}")
    a.e("s_waitcnt lgkmcnt(0)")
    fstamp(a, 8)
    a.e("s_barrier")
    fstamp(a, 9)
    for b in range(4):
        a.e(f"ds_read_b128 {v(F_IN+4*b,4)}, v{F_RD0} offset:{b*1024}")
    for b in range(4):
        a.e(f"s_waitcnt lgkmcnt({3-b})")
        a.e(f"v_mfma_f32_16x16x32_bf16 {v(F_DRE+4*b,4)}, {v(F_IN+4*b,4)}, {v(F16RE,4)}, 0",
            f"v_mfma_f32_16x16x32_bf16 {v(F_DIM+4*b,4)}, {v(F_IN+4*b,4)}, {v(F16IM,4)}, 0")
    fstamp(a, 10)
    for b in range(4):
        for r in range(4):
            a.e(f"v_cvt_pk_bf16_f32 v{F_P+4*b+r}, v{F_DRE+4*b+r}, v{F_DIM+4*b+r}")
        a.e(f"buffer_store_dwordx4 {v(F_P+4*b,4)}, v{F_OUTOFF}, s[{SOUT}:{SOUT+3}], s{SO_LIST[b]} offen sc1")

IDX, G_, VG, VGW, VRR, VHR, VST, VW = 2, 3, 6, 7, 8, 12, 13, 14
CRE, CIM, TWC, TWS, WR, WI, ARE, AIM, DF, GA, HRE, HIM, GB, TMP = 16, 32, 48, 64, 80, 96, 112, 128, 144, 160, 164, 168, 172, 188
W2R, W2I, SP, PF, PF2 = 204, 220, 236, 248, 252
GA2 = 204
LW = 32768; LSC = 16384; LW2 = 49152

def w_dma(a, SWR, SWI, s_rowoff, s_mirroff, s_ldsbase, vlane16):
    a.e(f"s_mov_b32 m0, s{s_ldsbase}", f"buffer_load_dwordx4 v{vlane16}, s[{SWR}:{SWR+3}], s{s_rowoff} offen lds" + NT())
    a.e(f"s_add_u32 s93, s{s_ldsbase}, 1024", "s_mov_b32 m0, s93", f"buffer_load_dwordx4 v{vlane16}, s[{SWI}:{SWI+3}], s{s_rowoff} offen lds" + NT())
    a.e(f"s_add_u32 s92, s{s_mirroff}, 2")
    a.e(f"s_add_u32 s93, s{s_ldsbase}, 2048", "s_mov_b32 m0, s93", f"buffer_load_dwordx4 v{vlane16}, s[{SWR}:{SWR+3}], s92 offen lds" + NT())
    a.e(f"s_add_u32 s93, s{s_ldsbase}, 3072", "s_mov_b32 m0, s93", f"buffer_load_dwordx4 v{vlane16}, s[{SWI}:{SWI+3}], s92 offen lds" + NT())

def pf_loads(a, SWR, SWI, s_rowoff, s_mirroff, dst, vt):
    a.e(f"v_mov_b32 v{vt}, s{s_mirroff}", f"v_mov_b32 v{vt+1}, s{s_rowoff}", f"v_add_u32 v{vt+1}, 1024, v{vt+1}")
    a.e(f"buffer_load_short_d16_hi v{dst}, v{vt}, s[{SWR}:{SWR+3}], 0 offen",
        f"buffer_load_short_d16_hi v{dst+1}, v{vt}, s[{SWI}:{SWI+3}], 0 offen",
        f"buffer_load_short_d16_hi v{dst+2}, v{vt+1}, s[{SWR}:{SWR+3}], 0 offen",
        f"buffer_load_short_d16_hi v{dst+3}, v{vt+1}, s[{SWI}:{SWI+3}], 0 offen")

def w_lds_reads(a, vlo, vhi, dr, di):
    for (dst, o) in ((dr, 0), (di, 1024)):
        for r in range(16):
            e = eidx(r)
            if r < 8: a.e(f"ds_read_u16_d16_hi v{dst+r}, v{vlo} offset:{o+64*e}")
            else:     a.e(f"ds_read_u16_d16_hi v{dst+r}, v{vhi} offset:{o+64*(27-e)}")

def fix_w(a, dr, di, pf):
    a.e("v_cmp_eq_u32 vcc, 0, v1")
    for (r, o) in ((0, 0), (8, 2)):
        a.e(f"v_add_f32 v{TMP}, v{dr+r}, v{pf+o}", f"v_mul_f32 v{TMP}, 0.5, v{TMP}",
            f"v_sub_f32 v{TMP+1}, v{di+r}, v{pf+o+1}", f"v_mul_f32 v{TMP+1}, 0.5, v{TMP+1}",
            f"v_cndmask_b32 v{dr+r}, v{dr+r}, v{TMP}, vcc", f"v_cndmask_b32 v{di+r}, v{di+r}, v{TMP+1}, vcc")

def fft1024(a, mid=None):
    for t in range(4):
        c0 = "0" if t == 0 else v(ARE, 16); c1 = "0" if t == 0 else v(AIM, 16)
        a.e(f"v_mfma_f32_32x32x16_bf16 {v(ARE,16)}, {v(DF+4*t,4)}, {v(CRE+4*t,4)}, {c0}",
            f"v_mfma_f32_32x32x16_bf16 {v(AIM,16)}, {v(DF+4*t,4)}, {v(CIM+4*t,4)}, {c1}")
    for p in range(8):
        re, im, tc, ts = ARE+2*p, AIM+2*p, TWC+2*p, TWS+2*p
        t0 = TMP+4*(p & 1); t1 = t0+2
        a.e(f"v_pk_mul_f32 {v(t0,2)}, {v(re,2)}, {v(tc,2)}",
            f"v_pk_mul_f32 {v(t1,2)}, {v(im,2)}, {v(tc,2)}",
            f"v_pk_fma_f32 {v(t0,2)}, {v(im,2)}, {v(ts,2)}, {v(t0,2)}",
            f"v_pk_fma_f32 {v(t1,2)}, {v(re,2)}, {v(ts,2)}, {v(t1,2)} neg_lo:[1,0,0] neg_hi:[1,0,0]")
        for e in range(2):
            a.e(f"v_cvt_pk_bf16_f32 v{DF+2*p+e}, v{t0+e}, v{t1+e}")
    for t in range(4):
        if mid and t == 1: mid()
        c0 = "0" if t == 0 else v(ARE, 16); c1 = "0" if t == 0 else v(AIM, 16)
        a.e(f"v_mfma_f32_32x32x16_bf16 {v(ARE,16)}, {v(CRE+4*t,4)}, {v(DF+4*t,4)}, {c0}",
            f"v_mfma_f32_32x32x16_bf16 {v(AIM,16)}, {v(CIM+4*t,4)}, {v(DF+4*t,4)}, {c1}")

ARE2, AIM2 = 204, 220
def row_ilv(a):
    NEG = " neg_lo:[1,0,0] neg_hi:[1,0,0]"
    def mf(dre, dim, t, data_is_a):
        c0 = "0" if t == 0 else v(dre, 16); c1 = "0" if t == 0 else v(dim, 16)
        if data_is_a:
            a.e(f"v_mfma_f32_32x32x16_bf16 {v(dre,16)}, {v(DF+4*t,4)}, {v(CRE+4*t,4)}, {c0}",
                f"v_mfma_f32_32x32x16_bf16 {v(dim,16)}, {v(DF+4*t,4)}, {v(CIM+4*t,4)}, {c1}")
        else:
            a.e(f"v_mfma_f32_32x32x16_bf16 {v(dre,16)}, {v(CRE+4*t,4)}, {v(DF+4*t,4)}, {c0}",
                f"v_mfma_f32_32x32x16_bf16 {v(dim,16)}, {v(CIM+4*t,4)}, {v(DF+4*t,4)}, {c1}")
    def tw(sre, sim, p):
        re, im, tc, ts = sre+2*p, sim+2*p, TWC+2*p, TWS+2*p
        t0 = TMP+4*(p & 1); t1 = t0+2
        a.e(f"v_pk_mul_f32 {v(t0,2)}, {v(re,2)}, {v(tc,2)}", f"v_pk_mul_f32 {v(t1,2)}, {v(im,2)}, {v(tc,2)}",
            f"v_pk_fma_f32 {v(t0,2)}, {v(im,2)}, {v(ts,2)}, {v(t0,2)}",
            f"v_pk_fma_f32 {v(t1,2)}, {v(re,2)}, {v(ts,2)}, {v(t1,2)}{NEG}")
        for e in range(2): a.e(f"v_cvt_pk_bf16_f32 v{DF+2*p+e}, v{t0+e}, v{t1+e}")
    def mul(sre, sim, p):
        xr, xi, wr, wi = sre+2*p, sim+2*p, WR+2*p, WI+2*p
        t0 = TMP+4*(p & 1); t1 = t0+2
        n0 = NEG if p < 4 else ""; n1 = "" if p < 4 else NEG
        a.e(f"v_pk_mul_f32 {v(t0,2)}, {v(xr,2)}, {v(wr,2)}", f"v_pk_mul_f32 {v(t1,2)}, {v(xi,2)}, {v(wr,2)}",
            f"v_pk_fma_f32 {v(t0,2)}, {v(xi,2)}, {v(wi,2)}, {v(t0,2)}{n0}",
            f"v_pk_fma_f32 {v(t1,2)}, {v(xr,2)}, {v(wi,2)}, {v(t1,2)}{n1}")
        for e in range(2): a.e(f"v_cvt_pk_bf16_f32 v{DF+2*p+e}, v{t0+e}, -v{t1+e}")
    for t in range(4): mf(ARE, AIM, t, True)
    a.e("s_waitcnt lgkmcnt(0)")
    fix_w(a, WR, WI, PF)
    for (src, dst, op, da) in (((ARE, AIM), (ARE2, AIM2), tw, False), ((ARE2, AIM2), (ARE, AIM), mul, True), ((ARE, AIM), (ARE2, AIM2), tw, False)):
        for t in range(4):
            op(src[0], src[1], 2*t); op(src[0], src[1], 2*t+1)
            mf(dst[0], dst[1], t, da)
    for r in range(16):
        t = TMP + (r & 7)
        a.e(f"v_cvt_pk_bf16_f32 v{t}, v{ARE2+r}, v{AIM2+r}", f"ds_write_b32 v{VRR}, v{t} offset:{128*eidx(r)}")

def a2_consts(a, sT):
    a.e(f"v_and_b32 v{IDX}, 31, v1", f"v_lshrrev_b32 v{G_}, 5, v1")
    XS, XB = TMP, TMP+1
    a.e(f"v_cvt_f32_u32 v{TMP+2}, v{IDX}", f"v_cvt_f32_u32 v{TMP+3}, v{G_}", f"v_mul_f32 v{TMP+3}, 4.0, v{TMP+3}",
        f"v_mul_f32 v{XS}, {f32hex(1/32)}, v{TMP+2}", f"v_mul_f32 v{XB}, v{TMP+3}, v{XS}")
    a.e(f"v_and_b32 v{TMP+4}, 1, v{IDX}", f"v_mul_u32_u24 v{TMP+4}, 0x8000, v{TMP+4}", f"v_lshl_or_b32 v{TMP+4}, v{TMP+4}, 16, v{TMP+4}")
    for t in range(2):
        for i in range(4):
            c = float(8*t+i); x = TMP+5+3*(i & 1)
            a.e(f"v_fmamk_f32 v{x}, v{XS}, {f32hex(c)}, v{XB}" if c else f"v_mov_b32 v{x}, v{XB}")
            a.e(f"v_cos_f32 v{x+1}, v{x}", f"v_sin_f32 v{x+2}, v{x}")
            a.e(f"v_cvt_pk_bf16_f32 v{CRE+4*t+i}, v{x+1}, v{x+2}", f"v_cvt_pk_bf16_f32 v{CIM+4*t+i}, -v{x+2}, v{x+1}")
    for base in (CRE, CIM):
        for i in range(8):
            a.e(f"v_xor_b32 v{base+8+i}, v{TMP+4}, v{base+i}")
    a.e(f"v_mul_f32 v{XS}, {f32hex(1/1024)}, v{TMP+2}", f"v_mul_f32 v{XB}, v{TMP+3}, v{XS}")
    for r in range(16):
        c = float(eidx(r)); x = TMP+5+(r & 1)
        a.e(f"v_fmamk_f32 v{x}, v{XS}, {f32hex(c)}, v{XB}" if c else f"v_mov_b32 v{x}, v{XB}")
        a.e(f"v_cos_f32 v{TWC+r}, v{x}", f"v_sin_f32 v{TWS+r}, v{x}")
    LO, HI, Q, AV, XA0, XA1, E0, E1 = TMP, TMP+1, TMP+2, TMP+3, TMP+4, TMP+5, TMP+6, TMP+7
    JF, KEY, T2, PO, PAR, N16, G4, CS = [TMP+8+i for i in range(8)]
    Lspec, Ldone = newlbl("ghspec"), newlbl("ghdone")
    a.e(f"v_and_b32 v{LO}, 3, v{IDX}", f"v_bfe_u32 v{HI}, v{IDX}, 2, 2")
    a.e(f"v_and_b32 v{N16}, 15, v1", f"v_lshrrev_b32 v{G4}, 4, v1")
    a.e(f"s_cmp_eq_u32 s{sT}, 0", f"s_cbranch_scc1 {Lspec}")
    a.e(f"v_cvt_f32_u32 v{T2}, s{sT}", f"v_cvt_f32_u32 v{JF}, v{HI}", f"v_fmamk_f32 v{JF}, v{JF}, {f32hex(512.0)}, v{T2}",
        f"v_mul_f32 v{JF}, {f32hex(1/2048)}, v{JF}",
        f"v_lshlrev_b32 v{Q}, 3, v{LO}", "s_mov_b32 s50, 0x4631914C", f"v_lshrrev_b32 v{Q}, v{Q}, s50",
        f"v_mov_b32 v{AV}, 0.5", f"v_cmp_gt_u32 vcc, 16, v{IDX}", f"v_cndmask_b32 v{AV}, 0, v{AV}, vcc")
    for ks, Gd in ((0, GA), (1, GA2)):
        a.e(f"v_cvt_f32_u32 v{XA0}, v{G_}", f"v_add_f32 v{XA0}, v{XA0}, v{XA0}")
        if ks: a.e(f"v_add_f32 v{XA0}, 4.0, v{XA0}")
        a.e(f"v_add_f32 v{XA1}, 1.0, v{XA0}", f"v_mul_f32 v{XA0}, v{XA0}, v{JF}", f"v_mul_f32 v{XA1}, v{XA1}, v{JF}")
        for jj2 in range(4):
            for e in range(2):
                jj = 2*jj2+e
                xa = XA1 if jj >> 2 else XA0
                a.e(f"v_bfe_u32 v{E0+e}, v{Q}, {2*(jj&3)}, 2", f"v_cvt_f32_u32 v{E0+e}, v{E0+e}",
                    f"v_fmamk_f32 v{E0+e}, v{E0+e}, {f32hex(0.25)}, v{xa}", f"v_cos_f32 v{E0+e}, v{E0+e}",
                    f"v_mul_f32 v{E0+e}, v{E0+e}, v{AV}")
            a.e(f"v_cvt_pk_bf16_f32 v{Gd+jj2}, v{E0}, v{E1}")
    a.e(f"v_bfe_u32 v{HI}, v{N16}, 1, 2", f"v_cvt_f32_u32 v{KEY}, v{HI}", f"v_mul_f32 v{KEY}, {f32hex(1/2048)}, v{KEY}",
        f"v_and_b32 v{JF}, 1, v{G4}", f"v_cvt_f32_u32 v{JF}, v{JF}", f"v_fmamk_f32 v{JF}, v{JF}, {f32hex(1024.0)}, v{T2}",
        f"v_add_f32 v{XA1}, {f32hex(512.0)}, v{JF}", f"v_mul_f32 v{XA0}, v{JF}, v{KEY}", f"v_mul_f32 v{XA1}, v{XA1}, v{KEY}",
        f"v_lshrrev_b32 v{CS}, 1, v{G4}", f"v_lshrrev_b32 v{AV}, 3, v{N16}", f"v_cmp_eq_u32 vcc, v{CS}, v{AV}",
        f"v_mov_b32 v{AV}, {f32hex(2.0**-21)}", f"v_cndmask_b32 v{AV}, 0, v{AV}, vcc",
        f"v_and_b32 v{PO}, 1, v{N16}")
    for part, Hd in ((0, HRE), (1, HIM)):
        w0, w1 = (0x1C, 0xBC) if part == 0 else (0x61, 0x6B)
        a.e(f"v_mov_b32 v{Q}, {w0}", f"v_mov_b32 v{PAR}, {w1}", f"v_cmp_eq_u32 vcc, 1, v{PO}", f"v_cndmask_b32 v{Q}, v{Q}, v{PAR}, vcc")
        for jj2 in range(4):
            for e in range(2):
                jj = 2*jj2+e
                xa = XA1 if jj >> 2 else XA0
                a.e(f"v_bfe_u32 v{E0+e}, v{Q}, {2*(jj&3)}, 2", f"v_cvt_f32_u32 v{E0+e}, v{E0+e}",
                    f"v_fmamk_f32 v{E0+e}, v{E0+e}, {f32hex(0.25)}, v{xa}", f"v_cos_f32 v{E0+e}, v{E0+e}",
                    f"v_mul_f32 v{E0+e}, v{E0+e}, v{AV}")
            a.e(f"v_cvt_pk_bf16_f32 v{Hd+jj2}, v{E0}, v{E1}")
    a.e(f"s_branch {Ldone}")
    a.label(Lspec)
    a.e(f"v_and_b32 v{PO}, 1, v{LO}", f"v_lshrrev_b32 v{PAR}, 1, v{LO}")
    a.e(f"v_lshlrev_b32 v{JF}, 2, v{HI}", "s_mov_b32 s50, 0x3120", f"v_lshrrev_b32 v{JF}, v{JF}, s50", f"v_and_b32 v{JF}, 15, v{JF}",
        f"v_lshlrev_b32 v{JF}, 8, v{JF}", f"v_lshlrev_b32 v{T2}, 10, v{PO}",
        f"v_cmp_eq_u32 vcc, 0, v{HI}", f"v_cndmask_b32 v{JF}, v{JF}, v{T2}, vcc", f"v_mov_b32 v{T2}, 0",
        f"v_cndmask_b32 v{Q}, v{PO}, v{T2}, vcc",
        f"v_cvt_f32_u32 v{JF}, v{JF}", f"v_mul_f32 v{JF}, {f32hex(1/2048)}, v{JF}",
        f"v_cvt_f32_u32 v{Q}, v{Q}", f"v_mul_f32 v{Q}, {f32hex(0.25)}, v{Q}",
        f"v_lshrrev_b32 v{T2}, 4, v{IDX}", f"v_lshl_add_u32 v{KEY}, v{T2}, 2, v{PAR}", f"v_mov_b32 v{T2}, 0")
    for ks, Gd in ((0, GA), (1, GA2)):
        a.e(f"v_cvt_f32_u32 v{XA0}, v{G_}", f"v_add_f32 v{XA0}, v{XA0}, v{XA0}")
        if ks: a.e(f"v_add_f32 v{XA0}, 4.0, v{XA0}")
        a.e(f"v_add_f32 v{XA1}, 1.0, v{XA0}",
            f"v_fma_f32 v{XA0}, v{XA0}, v{JF}, v{Q}", f"v_fma_f32 v{XA1}, v{XA1}, v{JF}, v{Q}",
            f"v_cos_f32 v{XA0}, v{XA0}", f"v_cos_f32 v{XA1}, v{XA1}")
        for jj2 in range(4):
            for e in range(2):
                jj = 2*jj2+e
                xa = XA1 if jj >> 2 else XA0
                a.e(f"v_cmp_eq_u32 vcc, {jj&3}, v{KEY}", f"v_cndmask_b32 v{E0+e}, v{T2}, v{xa}, vcc")
            a.e(f"v_cvt_pk_bf16_f32 v{Gd+jj2}, v{E0}, v{E1}")
    SAF, GS = JF, PAR
    a.e(f"v_bfe_u32 v{HI}, v{N16}, 1, 2", f"v_cvt_f32_u32 v{SAF}, v{HI}", f"v_mul_f32 v{SAF}, {f32hex(1/2048)}, v{SAF}",
        f"v_and_b32 v{GS}, 1, v{G4}", f"v_and_b32 v{PO}, 1, v{N16}",
        f"v_lshrrev_b32 v{CS}, 1, v{G4}", f"v_lshrrev_b32 v{T2}, 3, v{N16}",
        f"v_cmp_eq_u32 s[44:45], v{CS}, v{T2}", f"v_cmp_eq_u32 s[46:47], v{GS}, v{PO}", "s_and_b64 s[44:45], s[44:45], s[46:47]",
        f"v_cmp_eq_u32 s[46:47], 0, v{GS}")
    for part, Hd in ((0, HRE), (1, HIM)):
        for jj in range(8):
            sl, par, pi = jj >> 2, (jj >> 1) & 1, jj & 1
            e = E0 + (jj & 1)
            if par != part:
                a.e(f"v_mov_b32 v{e}, 0")
            else:
                if sl == 0:
                    j0, q0, a0 = 1024.0*pi, 0.5*pi, 2.0**-21
                    j1, q1, a1 = 256.0, 0.75*pi, 2.0**-20
                else:
                    j0, q0, a0 = 512.0, 0.75*pi, 2.0**-20
                    j1, q1, a1 = 768.0, 0.75*pi, 2.0**-20
                def sel(dst, x0, x1):
                    a.e(f"v_mov_b32 v{dst}, {f32hex(x1)}", f"v_mov_b32 v{AV}, {f32hex(x0)}", f"v_cndmask_b32 v{dst}, v{dst}, v{AV}, s[46:47]")
                sel(XA0, j0, j1); sel(XA1, q0 + 0.5*part, q1 + 0.5*part)
                a.e(f"v_fma_f32 v{XA0}, v{XA0}, v{SAF}, v{XA1}", f"v_cos_f32 v{XA0}, v{XA0}")
                sel(XA1, a0, a1)
                a.e(f"v_mul_f32 v{XA0}, v{XA0}, v{XA1}", f"v_mov_b32 v{XA1}, 0", f"v_cndmask_b32 v{e}, v{XA1}, v{XA0}, s[44:45]")
            if jj & 1: a.e(f"v_cvt_pk_bf16_f32 v{Hd+(jj>>1)}, v{E0}, v{E1}")
    a.label(Ldone)
    a.e("s_nop 1")


BT_S0, BT_S1, BT_S2, BT_S3 = 52, 56, 60, 64
BT_SOFF = ["0", "s68", "s69", "s70", "s71", "s76", "s77", "s78"]
BT_ROW, BT_CH, BT_MASK = 48, 49, 50
def bt_setup(a):
    a.e(f"s_lshl_b32 s{BT_ROW}, s{sSUBT}, 7", "s_lshl_b32 s51, s3, 5", f"s_add_u32 s{BT_ROW}, s{BT_ROW}, s51", f"s_lshl_b32 s{BT_CH}, s{sCBKT}, 6")
    for i in range(1, 8): a.e(f"s_mov_b32 {BT_SOFF[i]}, {4096*i}")
    a.e(f"s_mov_b32 s{BT_MASK}, 0xffff0000")

def scratch_addr(a, vdst, vcg, vrg):
    if OPT["fullline"]:
        a.e(f"s_lshl_b32 s51, s{sSUBT}, 7", "s_lshl_b32 s92, s3, 5", "s_add_u32 s51, s51, s92", "s_lshl_b32 s51, s51, 12",
            f"s_lshl_b32 s92, s{sCBKT}, 7", "s_add_u32 s51, s51, s92", "s_add_u32 s51, s51, 2048",
            f"v_lshrrev_b32 v{vdst}, 1, v{vcg}", f"v_lshlrev_b32 v{vdst}, 12, v{vdst}", f"v_lshl_add_u32 v{vdst}, v{vrg}, 4, v{vdst}",
            f"v_and_b32 v{vcg}, 1, v{vcg}", f"v_lshl_add_u32 v{vdst}, v{vcg}, 6, v{vdst}", f"v_add_u32 v{vdst}, s51, v{vdst}",
            "s_mov_b32 s32, 32768", "s_mov_b32 s33, 65536", "s_mov_b32 s34, 98304")
        return
    a.e(f"s_lshl_b32 s51, s{sSUBT}, 7", "s_lshr_b32 s92, s3, 1", "s_add_u32 s51, s51, s92", "s_lshl_b32 s51, s51, 12",
        f"s_lshl_b32 s92, s{sCBKT}, 7", "s_add_u32 s51, s51, s92", "s_and_b32 s92, s3, 1", "s_lshl_b32 s92, s92, 6", "s_add_u32 s51, s51, s92",
        "s_add_u32 s51, s51, 2048",
        f"v_lshlrev_b32 v{vdst}, 15, v{vcg}", f"v_lshl_add_u32 v{vdst}, v{vrg}, 4, v{vdst}", f"v_add_u32 v{vdst}, s51, v{vdst}")
def SCR(c):
    return ["0", "s32", "s33", "s34"][c] if OPT["fullline"] else ["0", "s69", "s71", "s77"][c]

def emit_B1(a, shadow=None, hook=None, post_mode=None, after_stores=None, nafter=0, after_loads=None, nyoung=0):
    SK, SV, SSH, SKVT = BT_S0, BT_S1, BT_S2, BT_S3
    soff = BT_SOFF; M = BT_MASK
    CG, RG, S0, CH0, VOFF, VH, VST, VSH = 2, 3, 4, 5, 6, 7, 8, 9
    KR, VR, SHR, KF, SHF, KV, TM, PK = 16, 38, 54, 64, 108, 124, 156, 16
    FAST = OPT["fast"]
    def kld():
        for i in range(3):
            a.e(f"buffer_load_dwordx2 {v(KR+2*i,2)}, v{VH}, s[{SK}:{SK+3}], {soff[i>>1]} offen" + (" offset:2048" if i & 1 else "") + (NT() if OPT["ntk"] else ""))
        for i in range(8):
            a.e(f"buffer_load_dwordx2 {v(KR+6+2*i,2)}, v{VOFF}, s[{SK}:{SK+3}], {soff[i>>1]} offen" + (" offset:2048" if i & 1 else "") + (NT() if OPT["ntk"] else ""))
    def shld():
        a.e(f"buffer_load_dwordx4 {v(SHR,4)}, v{VSH}, s[{SSH}:{SSH+3}], 0 offen",
            f"buffer_load_dwordx4 {v(SHR+4,4)}, v{VSH}, s[{SSH}:{SSH+3}], 0 offen offset:16")
    def vld():
        for i in range(8):
            a.e(f"buffer_load_dwordx2 {v(VR+2*i,2)}, v{VOFF}, s[{SV}:{SV+3}], {soff[i>>1]} offen" + (" offset:2048" if i & 1 else "") + NT())
    if FAST:
        a.e(f"s_lshl_b32 s{BT_ROW}, s{sSUBT}, 7", "s_lshl_b32 s51, s3, 5", f"s_add_u32 s{BT_ROW}, s{BT_ROW}, s51", f"s_lshl_b32 s{BT_CH}, s{sCBKT}, 6")
        srd(a, SK, P_K, P_K+1, 4*MB)
        a.e(f"v_and_b32 v{CG}, 15, v1", f"v_lshrrev_b32 v{RG}, 4, v1",
            f"v_lshl_add_u32 v{S0}, v{RG}, 3, s{BT_ROW}", f"v_lshl_add_u32 v{CH0}, v{CG}, 2, s{BT_CH}",
            f"v_lshlrev_b32 v{VOFF}, 11, v{S0}", f"v_lshl_add_u32 v{VOFF}, v{CH0}, 1, v{VOFF}",
            f"v_subrev_u32 v{VH}, 6144, v{VOFF}")
        for i in range(1, 4): a.e(f"s_mov_b32 {BT_SOFF[i]}, {4096*i}")
        kld()
        srd(a, SSH, P_SHK, P_SHK+1, 8192); srd(a, SV, P_V, P_V+1, 4*MB)
        a.e(f"v_lshlrev_b32 v{VSH}, 3, v{CH0}")
        shld(); vld()
        srd(a, SKVT, P_OUT, P_OUT+1, 8*MB)
        for i in range(4, 8): a.e(f"s_mov_b32 {BT_SOFF[i]}, {4096*i}")
        a.e(f"s_mov_b32 s{BT_MASK}, 0xffff0000")
        scratch_addr(a, VST, CG, RG)
    else:
        srd(a, SK, P_K, P_K+1, 4*MB); srd(a, SV, P_V, P_V+1, 4*MB); srd(a, SSH, P_SHK, P_SHK+1, 8192); srd(a, SKVT, P_OUT, P_OUT+1, 8*MB)
        bt_setup(a)
        a.e(f"v_and_b32 v{CG}, 15, v1", f"v_lshrrev_b32 v{RG}, 4, v1",
            f"v_lshl_add_u32 v{S0}, v{RG}, 3, s{BT_ROW}", f"v_lshl_add_u32 v{CH0}, v{CG}, 2, s{BT_CH}",
            f"v_lshlrev_b32 v{VOFF}, 11, v{S0}", f"v_lshl_add_u32 v{VOFF}, v{CH0}, 1, v{VOFF}",
            f"v_subrev_u32 v{VH}, 6144, v{VOFF}",
            f"v_lshlrev_b32 v{VSH}, 3, v{CH0}")
        scratch_addr(a, VST, CG, RG)
        if OPT["bactwait"] and OPT["b1all"]:
            Lw = newlbl("bw")
            a.e(f"s_cmp_eq_u32 s{sACT}, 0", f"s_cbranch_scc1 {Lw}", "s_waitcnt lgkmcnt(0)")
            a.label(Lw)
        if OPT["earlypub"]:
            Lp = newlbl("epub")
            a.e("s_cmp_lg_u32 s3, 0", f"s_cbranch_scc1 {Lp}")
            fin_epoch(a); loc_publish(a)
            a.label(Lp)
        shld(); kld(); vld()
    if OPT["pflip"] & 1: a.e(f"s_setprio {OPT['prioB']}")
    if OPT["fast"] >= 2: common_rest(a)
    if after_loads: after_loads()
    stamp(a, 2)
    if OPT["earlypub"]:
        Lq = newlbl("epub2")
        a.e("s_cmp_eq_u32 s3, 0", f"s_cbranch_scc1 {Lq}")
        fin_epoch(a)
        a.label(Lq)
    else:
        fin_epoch(a)
        loc_publish(a)
    if shadow: shadow()
    def wv(n, extra):
        n += nyoung
        if extra and not OPT["earlypub"]:
            L = newlbl("wv")
            a.e(f"s_cbranch_scc1 {L}", f"s_waitcnt vmcnt({n})")
            a.label(L)
            a.e(f"s_waitcnt vmcnt({n+extra})")
        elif extra == 2 and OPT["earlypub"]:
            L = newlbl("wv")
            a.e(f"s_cbranch_scc1 {L}", f"s_waitcnt vmcnt({n})")
            a.label(L)
            a.e(f"s_waitcnt vmcnt({n+1})")
        else:
            a.e(f"s_waitcnt vmcnt({n})")
    a.e("s_cmp_eq_u32 s3, 0")
    def unsh():
        for ch in range(4):
            for j in range(4):
                src = SHR + 2*ch + (j >> 1)
                if j & 1: a.e(f"v_and_b32 v{SHF+4*j+ch}, s{M}, v{src}")
                else:     a.e(f"v_lshlrev_b32 v{SHF+4*j+ch}, 16, v{src}")
    if not FAST:
        wv(19, 1); unsh()
    for i in range(11):
        wv((20-i) if FAST else (18-i), 1)
        for hf in range(2):
            a.e(f"v_lshlrev_b32 v{KF+4*i+2*hf}, 16, v{KR+2*i+hf}", f"v_and_b32 v{KF+4*i+2*hf+1}, s{M}, v{KR+2*i+hf}")
    if FAST:
        wv(8, 1); unsh()
    loc_issue(a, 10)
    a.e("s_cmp_eq_u32 s3, 0")
    for i in range(8):
        wv(7-i, 2)
        if i == 7 and hook: hook()
        for hf in range(2):
            a.e(f"v_lshlrev_b32 v{TM+2*hf}, 16, v{VR+2*i+hf}", f"v_and_b32 v{TM+2*hf+1}, s{M}, v{VR+2*i+hf}")
        for hf in range(2):
            acc = KV+4*i+2*hf
            a.e(f"v_pk_mul_f32 {v(acc,2)}, {v(KF+4*(i+3)+2*hf,2)}, {v(SHF+2*hf,2)}")
            for j in range(1, 4):
                a.e(f"v_pk_fma_f32 {v(acc,2)}, {v(KF+4*(i+3-j)+2*hf,2)}, {v(SHF+4*j+2*hf,2)}, {v(acc,2)}")
            a.e(f"v_pk_mul_f32 {v(acc,2)}, {v(acc,2)}, {v(TM+2*hf,2)}")
    stamp(a, 3)
    for ch in range(4):
        for m in range(4):
            a.e(f"v_cvt_pk_bf16_f32 v{PK+4*ch+m}, v{KV+4*(7-2*m)+ch}, v{KV+4*(6-2*m)+ch}")
    sts = [f"buffer_store_dwordx4 {v(PK+4*ch,4)}, v{VST}, s[{SKVT}:{SKVT+3}], {SCR(ch)} offen" for ch in range(4)]
    if OPT["twoflag"]:
        for l in sts: a.e(l + (" nt" if OPT["ntscr"] else ""))
        stamp(a, 4)
        a.e(f"s_lshl_b32 s51, s{sCBKT}, 4", f"s_add_u32 s51, s51, s{sSUBT}", f"s_lshl_b32 s51, s51, {FB()}", f"s_add_u32 s92, s51, {SY_B1}")
        La = newlbl("siga")
        a.e("s_waitcnt vmcnt(0)", "s_barrier", "s_cmp_lg_u32 s3, 0", f"s_cbranch_scc1 {La}",
            "v_mov_b32 v14, s92", f"v_mov_b32 v15, s{S_TGT}", "s_mov_b64 exec, 1",
            f"buffer_store_dword v15, v14, s[{S_SYN}:{S_SYN+3}], 0 offen", "s_mov_b64 exec, -1")
        a.label(La)
        if after_stores: after_stores()
        loc_resolve(a, 10, nafter=nafter + 1 if after_stores else 1)
        Lo = newlbl("opt")
        a.e(f"s_cmp_lg_u32 s{sLOC}, 0", f"s_cbranch_scc1 {Lo}", "s_waitcnt vmcnt(0)")
        for l in sts: a.e(l + " sc1")
        a.e(f"s_add_u32 s51, s51, {SY_B1B}")
        signal(a, 51, 14)
        a.label(Lo)
        return
    if OPT["optst"]:
        for l in sts: a.e(l)
        if after_stores: after_stores()
        loc_resolve(a, 10, nafter=nafter)
        Lo = newlbl("opt")
        a.e(f"s_cmp_lg_u32 s{sLOC}, 0", f"s_cbranch_scc1 {Lo}", "s_waitcnt vmcnt(0)")
        for l in sts: a.e(l + " sc1")
        a.e("s_waitcnt vmcnt(0)")
        a.label(Lo)
    else:
        loc_resolve(a, 10)
        dual_store(a, sts)
    stamp(a, 4)
    a.e(f"s_lshl_b32 s51, s{sCBKT}, 4", f"s_add_u32 s51, s51, s{sSUBT}", f"s_lshl_b32 s51, s51, {FB()}", f"s_add_u32 s51, s51, {SY_B1}")
    signal(a, 51, 14, nafter=nafter, bloc=True)

B3_QR, B3_VQ, B3_VT, B3_VO = 208, 224, 225, 226
def emit_B3_pre_n(a):
    SQ, STT, SOUT = BT_S0, BT_S1, BT_S2
    srd(a, SQ, P_Q, P_Q+1, 4*MB); srd(a, SOUT, P_OUT, P_OUT+1, 8*MB)
    bt_setup(a)
    t = 227
    a.e(f"v_and_b32 v{t}, 15, v1", f"v_lshrrev_b32 v{t+1}, 4, v1",
        f"v_lshl_add_u32 v{t+1}, v{t+1}, 3, s{BT_ROW}", f"v_lshl_add_u32 v{t}, v{t}, 2, s{BT_CH}",
        f"v_lshlrev_b32 v{B3_VQ}, 11, v{t+1}", f"v_lshl_add_u32 v{B3_VQ}, v{t}, 1, v{B3_VQ}",
        f"v_lshlrev_b32 v{B3_VO}, 12, v{t+1}", f"v_lshl_add_u32 v{B3_VO}, v{t}, 1, v{B3_VO}", f"v_add_u32 v{B3_VO}, 2048, v{B3_VO}")
    a.e(f"v_and_b32 v{t}, 15, v1", f"v_lshrrev_b32 v{t+1}, 4, v1")
    scratch_addr(a, B3_VT, t, t+1)
    for i in range(8):
        a.e(f"buffer_load_dwordx2 {v(B3_QR+2*i,2)}, v{B3_VQ}, s[{SQ}:{SQ+3}], {BT_SOFF[i>>1]} offen" + (" offset:2048" if i & 1 else "") + NT())

def emit_B3_n(a):
    SQ, STT, SOUT = BT_S0, BT_S1, BT_S2
    soff = BT_SOFF; M = BT_MASK
    TR, TF, QF = 16, 48, 80
    a.e(f"s_mov_b32 s{M}, 0xffff0000")
    a.e(f"s_lshl_b32 s51, s{sCBKT}, {4+FB()}", f"s_add_u32 s51, s51, {SY_B2}",
        "v_and_b32 v12, 15, v1", f"v_lshlrev_b32 v12, {FB()}, v12", "v_add_u32 v12, s51, v12")
    a.e("s_waitcnt vmcnt(0)")
    for e in range(8):
        qf = QF + 4*e
        for hf in range(2):
            a.e(f"v_lshlrev_b32 v{qf+2*hf}, 16, v{B3_QR+2*e+hf}", f"v_and_b32 v{qf+2*hf+1}, s{M}, v{B3_QR+2*e+hf}")
    wait_flags(a, 12, 1, 13, 51)
    stamp(a, 10)
    for ch in range(4):
        a.e(f"buffer_load_dwordx4 {v(TR+4*ch,4)}, v{B3_VT}, s[{SOUT}:{SOUT+3}], {SCR(ch)} offen" + LDL())
    for ch in range(4):
        a.e(f"s_waitcnt vmcnt({3-ch})")
        for e in range(8):
            src = TR+4*ch+(e >> 1)
            if e & 1: a.e(f"v_and_b32 v{TF+4*e+ch}, s{M}, v{src}")
            else:     a.e(f"v_lshlrev_b32 v{TF+4*e+ch}, 16, v{src}")
    a.e("s_barrier")
    for e in range(8):
        qf = QF + 4*e
        for hf in range(2):
            a.e(f"v_pk_mul_f32 {v(qf+2*hf,2)}, {v(qf+2*hf,2)}, {v(TF+4*e+2*hf,2)}")
        pk = 112+2*e
        for hf in range(2):
            a.e(f"v_cvt_pk_bf16_f32 v{pk+hf}, v{qf+2*hf}, v{qf+2*hf+1}")
        a.e(f"buffer_store_dwordx2 {v(pk,2)}, v{B3_VO}, s[{SOUT}:{SOUT+3}], {soff[e]} offen" + NTOB())

def emit_B3_pre_w(a):
    SQ, STT, SOUT = BT_S0, BT_S1, BT_S2
    srd(a, SQ, P_Q, P_Q+1, 4*MB); srd(a, SOUT, P_OUT, P_OUT+1, 8*MB)
    bt_setup(a)
    t = 227
    a.e(f"v_and_b32 v{t}, 7, v1", f"v_lshrrev_b32 v{t+1}, 3, v1")
    a.e(f"s_lshl_b32 s51, s{sSUBT}, 7", "s_lshl_b32 s92, s3, 5", "s_add_u32 s51, s51, s92", "s_lshl_b32 s51, s51, 12",
        f"s_lshl_b32 s92, s{sCBKT}, 7", "s_add_u32 s51, s51, s92", "s_add_u32 s51, s51, 2048",
        f"v_lshlrev_b32 v{B3_VT}, 12, v{t}", f"v_lshl_add_u32 v{B3_VT}, v{t+1}, 3, v{B3_VT}", f"v_add_u32 v{B3_VT}, s51, v{B3_VT}",
        "s_mov_b32 s32, 32768", "s_mov_b32 s33, 65536", "s_mov_b32 s34, 98304")
    a.e(f"v_lshl_add_u32 v{t+1}, v{t+1}, 2, s{BT_ROW}", f"v_lshl_add_u32 v{t}, v{t}, 3, s{BT_CH}",
        f"v_lshlrev_b32 v{B3_VQ}, 11, v{t+1}", f"v_lshl_add_u32 v{B3_VQ}, v{t}, 1, v{B3_VQ}",
        f"v_lshlrev_b32 v{B3_VO}, 12, v{t+1}", f"v_lshl_add_u32 v{B3_VO}, v{t}, 1, v{B3_VO}", f"v_add_u32 v{B3_VO}, 2048, v{B3_VO}")
    for e in range(4):
        a.e(f"buffer_load_dwordx4 {v(B3_QR+4*e,4)}, v{B3_VQ}, s[{SQ}:{SQ+3}], {BT_SOFF[e>>1]} offen" + (" offset:2048" if e & 1 else "") + NT())

def emit_B3_w(a):
    SQ, STT, SOUT = BT_S0, BT_S1, BT_S2
    soff = BT_SOFF; M = BT_MASK
    TR, TF, QF = 16, 48, 80
    a.e(f"s_mov_b32 s{M}, 0xffff0000")
    a.e(f"s_lshl_b32 s51, s{sCBKT}, {4+FB()}", f"s_add_u32 s51, s51, {SY_B2}",
        "v_and_b32 v12, 15, v1", f"v_lshlrev_b32 v12, {FB()}, v12", "v_add_u32 v12, s51, v12")
    a.e("s_waitcnt vmcnt(0)")
    for e in range(4):
        for d in range(4):
            a.e(f"v_lshlrev_b32 v{QF+8*e+2*d}, 16, v{B3_QR+4*e+d}", f"v_and_b32 v{QF+8*e+2*d+1}, s{M}, v{B3_QR+4*e+d}")
    wait_flags(a, 12, 1, 13, 51)
    stamp(a, 10)
    for c in range(8):
        a.e(f"buffer_load_dwordx2 {v(TR+2*c,2)}, v{B3_VT}, s[{SOUT}:{SOUT+3}], {SCR(c & 3)} offen" + (" offset:64" if c >> 2 else "") + LDL())
    for c in range(8):
        a.e(f"s_waitcnt vmcnt({7-c})")
        for e in range(4):
            src = TR+2*c+(e >> 1)
            if e & 1: a.e(f"v_and_b32 v{TF+8*e+c}, s{M}, v{src}")
            else:     a.e(f"v_lshlrev_b32 v{TF+8*e+c}, 16, v{src}")
    a.e("s_barrier")
    for e in range(4):
        for d in range(4):
            a.e(f"v_pk_mul_f32 {v(QF+8*e+2*d,2)}, {v(QF+8*e+2*d,2)}, {v(TF+8*e+2*d,2)}")
        pk = 112+4*e
        for d in range(4):
            a.e(f"v_cvt_pk_bf16_f32 v{pk+d}, v{QF+8*e+2*d}, v{QF+8*e+2*d+1}")
        a.e(f"buffer_store_dwordx4 {v(pk,4)}, v{B3_VO}, s[{SOUT}:{SOUT+3}], {soff[e]} offen" + NTOB())

def emit_B3_pre(a): (emit_B3_pre_w if OPT["b3w"] else emit_B3_pre_n)(a)
def emit_B3(a): (emit_B3_w if OPT["b3w"] else emit_B3_n)(a)

def gen_A(a):
    ROLE[0] = 'A'
    SX, SI1, SWR, SWI, SI2, SOUT = 32, 36, 80, 84, 32, 36
    a.e(f"s_setprio {OPT['prioA']}") if OPT['prioA'] else None
    sT, sSA, sCB, sJ, sJM, sJP, sJQ, sTL = 40, 41, 42, 43, 72, 73, 74, 44
    def rows():
        srd(a, SI1, P_WS, P_WS+1, 4*MB, add=WS_I1)
        srd(a, SWR, P_WR, P_WR+1, WBYTES); srd(a, SWI, P_WI, P_WI+1, WBYTES)
        Lr = newlbl("reg")
        a.e("s_lshl_b32 s47, s3, 9", f"s_add_u32 s{sJ}, s{sT}, s47", f"s_mov_b32 s{sJP}, s{sT}", f"s_sub_u32 s{sJQ}, 512, s{sT}",
            f"s_cmp_lg_u32 s{sT}, 0", f"s_cbranch_scc1 {Lr}",
            f"s_mov_b32 s{sJQ}, 256", "s_lshl_b32 s47, s3, 2", "s_lshr_b32 s46, 0x3120, s47", "s_and_b32 s46, s46, 15", f"s_lshl_b32 s{sJ}, s46, 8")
        a.label(Lr)
        a.e(f"s_sub_u32 s{sJM}, 2048, s{sJ}", f"s_and_b32 s{sJM}, s{sJM}, 2047",
            f"s_mul_i32 s{sJ}, s{sJ}, 1026", f"s_mul_i32 s{sJM}, s{sJM}, 1026")
        a.e(f"s_or_b32 s75, s{sT}, s3")
    def wstage():
        a.e("v_lshlrev_b32 v243, 4, v1", "s_lshl_b32 s46, s3, 12", f"s_add_u32 s46, s46, {LW}")
        w_dma(a, SWR, SWI, sJ, sJM, 46, 243)
        pf_loads(a, SWR, SWI, sJ, sJM, PF, 244)
        if not OPT["spec2"]: wstage2()
    def wstage2():
        Ln = newlbl("now2")
        a.e("s_cmp_lg_u32 s75, 0", f"s_cbranch_scc1 {Ln}")
        a.e("v_lshlrev_b32 v243, 4, v1", f"s_mov_b32 s47, {1024*1026}", f"s_mov_b32 s46, {LW2}")
        w_dma(a, SWR, SWI, 47, 47, 46, 243)
        pf_loads(a, SWR, SWI, 47, 47, PF2, 244)
        a.label(Ln)
    if OPT["pairx"]:
        a.e(f"s_and_b32 s48, s{sCU}, 7", "s_lshl_b32 s48, s48, 4", f"s_lshr_b32 s49, s{sCU}, 4", "s_add_u32 s48, s48, s49",
            "s_sub_u32 s49, 256, s48", "s_cmp_eq_u32 s48, 0", "s_cselect_b32 s49, 128, s49",
            f"s_bitcmp1_b32 s{sCU}, 3", f"s_cselect_b32 s{sT}, s49, s48")
    else:
        a.e(f"s_mov_b32 s{sT}, s{sCU}")
    stamp(a, 0, True); stamp(a, 1)
    Lp1 = newlbl("nop1")
    if OPT["pA1a"] >= 0:
        if OPT["latem"]:
            Lm = newlbl("lateA")
            a.e("s_and_b32 s92, s2, 7", f"s_lshr_b32 s92, {OPT['latem']}, s92", "s_bitcmp1_b32 s92, 0", f"s_cbranch_scc1 {Lm}", f"s_setprio {OPT['pA1a']}")
            a.label(Lm)
        else:
            a.e(f"s_setprio {OPT['pA1a']}")
    srd(a, SX, P_X, P_X+1, 4*MB)
    a.e(f"s_lshr_b32 s48, s{sCU}, 3", f"s_and_b32 s49, s{sCU}, 7", f"s_lshr_b32 s{sSA}, s48, 2", "s_bfe_u32 s50, s48, 0x10001",
        "s_lshl_b32 s50, s50, 3", "s_add_u32 s50, s50, s49", "s_lshl_b32 s50, s50, 1", "s_and_b32 s51, s48, 1", f"s_add_u32 s{sCB}, s50, s51")
    if OPT["pflip"] & 4: a.e("s_setprio 3")
    f256_loads(a, SX, sSA, sCB, NT() if OPT["ntx"] else "")
    if OPT["pflip"] & 4: a.e(f"s_setprio {max(OPT['pA1a'], 0)}")
    if OPT["fast"] >= 2:
        a.e("s_mov_b32 s45, s48")
        common_rest(a)
    stamp(a, 12)
    f256_setup(a)
    rows()
    wstage2()
    f256_run(a, SI1, 0)
    stamp(a, 4)
    if OPT["cearly"]:
        a.e("s_nop 1")
        a2_consts(a, sT)
    if OPT["wpoll"]:
        a.e(f"s_lshl_b32 s48, s{sCB}, 3", f"s_add_u32 s48, s48, s{sSA}", f"s_lshl_b32 s48, s48, {FA()}", f"s_add_u32 s48, s48, {SY_A1}")
    else:
        a.e(f"s_lshl_b32 s48, s{sCU}, {FA()}", f"s_add_u32 s48, s48, {SY_A1}")
    fin_epoch(a)
    signal(a, 48, 240)
    if OPT["hwait"]: a_state(a, sCU, 3, 240)
    a.label(Lp1)
    pair_pubA(a)
    if OPT["pA1i"] >= 0 or OPT["pA1a"] >= 0: a.e(f"s_setprio {OPT['prioA']}")
    stamp(a, 5)
    if OPT["wlate"] == 2: wstage()
    srd(a, SI2, P_WS, P_WS+1, 4*MB, add=WS_I2)
    if not OPT["cearly"]: a2_consts(a, sT)
    a.e(f"v_lshl_add_u32 v{TMP}, v{G_}, 7, v{IDX}",
        "s_lshl_b32 s48, s3, 12", f"s_add_u32 s48, s48, {LW}",
        f"v_lshl_add_u32 v{VW}, v{TMP}, 1, s48",
        f"v_sub_u32 v{TMP+1}, {1023-32*27}, v{TMP}", f"s_add_u32 s49, s48, 2048", f"v_lshl_add_u32 v{VW+1}, v{TMP+1}, 1, s49")
    a.e(f"v_lshlrev_b32 v{VG}, 12, v{G_}", f"v_lshl_add_u32 v{VG}, v{IDX}, 2, v{VG}",
        "s_lshl_b32 s49, s3, 9",
        f"s_lshl_b32 s52, s{sJP}, 13", "s_add_u32 s52, s52, s49",
        f"s_lshl_b32 s53, s{sJQ}, 13", "s_add_u32 s53, s53, s49")
    a.e(f"s_lshl_b32 s54, s{sT}, 14", "s_add_u32 s54, s54, s49", f"s_sub_u32 s55, 256, s{sT}", "s_and_b32 s55, s55, 255", "s_lshl_b32 s55, s55, 14", "s_add_u32 s55, s55, s49",
        "s_add_u32 s56, s54, 8192", "s_add_u32 s57, s55, 8192")
    a.e(f"v_lshlrev_b32 v{VGW}, 12, v{G_}", f"v_lshl_add_u32 v{VGW}, v{IDX}, 3, v{VGW}", "s_lshl_b32 s50, s3, 10", f"v_add_u32 v{VGW}, s50, v{VGW}",
        f"v_lshlrev_b32 v{VRR}, 9, v{G_}", f"v_lshl_add_u32 v{VRR}, v{IDX}, 2, v{VRR}", "s_lshl_b32 s51, s3, 12", f"v_add_u32 v{VRR}, s51, v{VRR}")
    for t in range(1, 4): a.e(f"v_add_u32 v{VRR+t}, {1024*t}, v{VRR}")
    a.e(f"v_lshrrev_b32 v{TMP}, 4, v1", f"v_and_b32 v{TMP+1}, 1, v{TMP}", f"v_lshlrev_b32 v{VHR}, 13, v{TMP+1}",
        f"v_lshrrev_b32 v{TMP+1}, 1, v{TMP}", f"v_lshl_add_u32 v{VHR}, v{TMP+1}, 7, v{VHR}",
        f"v_and_b32 v{TMP+1}, 15, v1", f"v_lshl_add_u32 v{VHR}, v{TMP+1}, 3, v{VHR}", f"v_add_u32 v{VHR}, s50, v{VHR}")
    a.e(f"v_and_b32 v{TMP+2}, 1, v{TMP+1}", f"v_mov_b32 v{TMP+3}, s52", f"v_mov_b32 v{TMP+4}, s53",
        f"v_cmp_eq_u32 vcc, 1, v{TMP+2}", f"v_cndmask_b32 v{VST}, v{TMP+3}, v{TMP+4}, vcc",
        f"v_bfe_u32 v{TMP+2}, v{TMP+1}, 1, 2", f"v_lshl_add_u32 v{VST}, v{TMP+2}, 11, v{VST}",
        f"v_lshrrev_b32 v{TMP+2}, 3, v{TMP+1}", f"v_lshl_add_u32 v{VST}, v{TMP+2}, 6, v{VST}",
        f"v_lshl_add_u32 v{VST}, v{TMP}, 4, v{VST}")
    a.e(f"v_lshlrev_b32 v{TMP}, {FA()}, v1", f"v_add_u32 v{TMP}, {SY_A1}, v{TMP}")
    stamp(a, 6)
    if OPT["wpoll"]:
        a.e(f"s_lshl_b32 s48, s3, {6+FA()}", f"v_add_u32 v{TMP}, s48, v{TMP}")
        wait_flags(a, TMP, 1, TMP+1, 48, solo=True)
    else:
        wait_flags(a, TMP, 4, TMP+1, 48)
    if OPT["yieldB"] == 1: a_state(a, sCU, 1, TMP)
    stamp(a, 7)
    def gfrag(u, ks): return (GB if u < 2 else DF) + 8*(u & 1) + 4*ks
    for u in range(4):
        for ks in range(2):
            for sl in range(2):
                for pq in range(2):
                    a.e(f"buffer_load_dword v{gfrag(u,ks)+2*sl+pq}, v{VG}, s[{SI1}:{SI1+3}], s{54+2*ks+pq} offen offset:{2048*sl+128*u} " + GLD())
    NWL = 0
    if OPT["wlate"] == 1:
        wstage(); NWL = 8
        if not OPT["spec2"]:
            Lsw = newlbl("spw")
            a.e("s_cmp_lg_u32 s75, 0", f"s_cbranch_scc1 {Lsw}", "s_waitcnt vmcnt(0)")
            a.label(Lsw)
    for rnd in range(2):
        a.e(f"s_waitcnt vmcnt({16-16*rnd+NWL})")
        if rnd == OPT.get("yat", 1) and OPT["yieldB"] == 3:
            a_state(a, sCU, 1, 240)
        for uu in range(2):
            u = 2*rnd+uu
            D = ARE if uu == 0 else AIM
            a.e(f"v_mfma_f32_32x32x16_bf16 {v(D,16)}, {v(GA,4)}, {v(gfrag(u,0),4)}, 0",
                f"v_mfma_f32_32x32x16_bf16 {v(D,16)}, {v(GA2,4)}, {v(gfrag(u,1),4)}, {v(D,16)}")
        for uu in range(2):
            u = 2*rnd+uu
            D = ARE if uu == 0 else AIM
            t = TMP+4*uu
            for h in range(2):
                a.e(f"v_cvt_pk_bf16_f32 v{t}, v{D+4*h}, v{D+4*h+1}", f"v_cvt_pk_bf16_f32 v{t+1}, v{D+4*h+2}, v{D+4*h+3}",
                    f"ds_write_b64 v{VGW}, {v(t,2)} offset:{256*u+8192*h}")
                t += 2
    a.e("s_waitcnt lgkmcnt(0)", "s_barrier")
    stamp(a, 8)
    if OPT["qA"] and not OPT["a3all"]:
        Lq = newlbl("noqA")
        a.e(f"s_cmp_lg_u32 s{sACT}, 0", f"s_cbranch_scc1 {Lq}")
        emit_B3_pre(a)
        a.label(Lq)
    for t in range(4):
        a.e(f"ds_read2_b32 {v(DF+4*t,2)}, v{VRR+t} offset0:0 offset1:32", f"ds_read2_b32 {v(DF+4*t+2,2)}, v{VRR+t} offset0:64 offset1:96")
    a.e("s_waitcnt lgkmcnt(0)")
    Lsp, Linv, Lfwd, Lpre = newlbl("special"), newlbl("inv"), newlbl("fwd"), newlbl("pre")
    sPASS = 45
    Ljoin = newlbl("join")
    if OPT["ilv"]:
        assert OPT["wlate"] == 2 and OPT["spec2"]
        Lold = newlbl("old")
        w_lds_reads(a, VW, VW+1, WR, WI)
        a.e("s_cmp_eq_u32 s75, 0", f"s_cbranch_scc1 {Lold}")
        row_ilv(a)
        a.e(f"s_branch {Ljoin}")
        a.label(Lold)
    if OPT["spec2"]:
        a.e(f"s_mov_b32 s{sPASS}, 0", "s_cmp_lg_u32 s75, 0", f"s_cbranch_scc1 {Lpre}")
        for i in range(16): a.e(f"v_lshrrev_b32 v{GB+i}, 16, v{DF+i}", f"v_and_b32 v{DF+i}, 0xffff, v{DF+i}")
        a.label(Lpre)
    def wmid():
        Lk = newlbl("wskip")
        if OPT["spec2"]: a.e(f"s_cmp_lg_u32 s{sPASS}, 0", f"s_cbranch_scc1 {Lk}")
        if OPT["qA"] and not OPT["a3all"]:
            L1, L2 = newlbl("wa"), newlbl("wb")
            a.e(f"s_cmp_lg_u32 s{sACT}, 0", f"s_cbranch_scc1 {L1}", "s_waitcnt vmcnt(8)", f"s_branch {L2}")
            a.label(L1); a.e("s_waitcnt vmcnt(0)"); a.label(L2)
        else:
            a.e("s_waitcnt vmcnt(0)")
        w_lds_reads(a, VW, VW+1, WR, WI)
        a.label(Lk)
    if OPT["wlate"] == 1:
        a.label(Lfwd); a.e("s_nop 1")
        fft1024(a, mid=wmid)
    else:
        if not OPT["ilv"]: w_lds_reads(a, VW, VW+1, WR, WI)
        a.label(Lfwd); a.e("s_nop 1")
        fft1024(a)
    a.e("s_waitcnt lgkmcnt(0)")
    Lnf = newlbl("nofix")
    if OPT["spec2"]: a.e(f"s_cmp_lg_u32 s{sPASS}, 0", f"s_cbranch_scc1 {Lnf}")
    fix_w(a, WR, WI, PF)
    a.label(Lnf)
    a.e("s_cmp_eq_u32 s75, 0", f"s_cbranch_scc1 {Lsp}")
    for p in range(8):
        xr, xi, wr, wi = ARE+2*p, AIM+2*p, WR+2*p, WI+2*p
        t0 = TMP+4*(p & 1); t1 = t0+2
        n0 = " neg_lo:[1,0,0] neg_hi:[1,0,0]" if p < 4 else ""
        n1 = "" if p < 4 else " neg_lo:[1,0,0] neg_hi:[1,0,0]"
        a.e(f"v_pk_mul_f32 {v(t0,2)}, {v(xr,2)}, {v(wr,2)}", f"v_pk_mul_f32 {v(t1,2)}, {v(xi,2)}, {v(wr,2)}",
            f"v_pk_fma_f32 {v(t0,2)}, {v(xi,2)}, {v(wi,2)}, {v(t0,2)}{n0}",
            f"v_pk_fma_f32 {v(t1,2)}, {v(xr,2)}, {v(wi,2)}, {v(t1,2)}{n1}")
        for e in range(2):
            a.e(f"v_cvt_pk_bf16_f32 v{DF+2*p+e}, v{t0+e}, -v{t1+e}")
    a.label(Linv)
    a.e("s_nop 1")
    fft1024(a)
    for r in range(16):
        t = TMP + (r & 7)
        a.e(f"v_cvt_pk_bf16_f32 v{t}, v{ARE+r}, v{AIM+r}", f"ds_write_b32 v{VRR}, v{t} offset:{128*eidx(r)}")
    a.label(Ljoin)
    a.e("s_waitcnt lgkmcnt(0)", "s_barrier")
    if OPT["yieldB"]:
        Ly = newlbl("y0a")
        if OPT["y0"]: a.e(f"s_cmp_lg_u32 s{sT}, 0", f"s_cbranch_scc1 {Ly}")
        a_state(a, sCU, 2, TMP)
        a.label(Ly)
    stamp(a, 9)
    for u in range(4):
        for sl in range(2):
            a.e(f"ds_read_b64 {v(GB+4*u+2*sl,2)}, v{VHR} offset:{4096*sl+256*u}")
    a.e("s_lshl_b32 s49, s3, 9")
    for u in range(4):
        a.e(f"s_waitcnt lgkmcnt({6-2*u})")
        a.e(f"v_mfma_f32_16x16x32_bf16 {v(ARE+4*u,4)}, {v(GB+4*u,4)}, {v(HRE,4)}, 0",
            f"v_mfma_f32_16x16x32_bf16 {v(AIM+4*u,4)}, {v(GB+4*u,4)}, {v(HIM,4)}, 0")
    for u in range(4):
        for r in range(4):
            a.e(f"v_cvt_pk_bf16_f32 v{DF+4*u+r}, v{ARE+4*u+r}, v{AIM+4*u+r}")
        a.e(f"buffer_store_dwordx4 {v(DF+4*u,4)}, v{VST}, s[{SI2}:{SI2+3}], 0 offen offset:{128*u} sc1")
    dstamp(a, 6); dpublish(a, sT)
    a.e(f"s_lshl_b32 s48, s{sT}, {FA()}", f"s_add_u32 s48, s48, {SY_A2}")
    signal(a, 48, TMP)
    stamp(a, 10)
    Lb3 = newlbl("b3")
    if OPT["a3all"]:
        srd(a, SOUT, P_OUT, P_OUT+1, 8*MB)
        a.e(f"s_lshr_b32 s48, s{sCU}, 3", f"s_and_b32 s49, s{sCU}, 7", f"s_lshr_b32 s{sSA}, s48, 3", "s_bfe_u32 s50, s48, 0x10002",
            "s_lshl_b32 s50, s50, 3", "s_add_u32 s50, s50, s49", "s_lshl_b32 s50, s50, 2", "s_and_b32 s51, s48, 3", f"s_add_u32 s{sCB}, s50, s51")
        f8_addr(a, sSA, sCB, 4096, 16384)
        f8_consts(a)
        if OPT["wpoll2"]:
            assert OPT["t0late"]
            W0, W1 = F_TMP, F_TMP+1
            a.e(f"v_lshrrev_b32 v{W0}, 3, v1", f"v_lshlrev_b32 v{W0}, 5, v{W0}", f"v_and_b32 v{W1}, 7, v1", f"v_add_u32 v{W0}, v{W0}, v{W1}",
                "s_lshl_b32 s48, s3, 3", f"v_add_u32 v{W0}, s48, v{W0}",
                f"v_sub_u32 v{W1}, 256, v{W0}", f"v_and_b32 v{W1}, 255, v{W1}",
                f"v_lshlrev_b32 v{W0}, {FA()}, v{W0}", f"v_add_u32 v{W0}, {SY_A2}, v{W0}",
                f"v_lshlrev_b32 v{W1}, {FA()}, v{W1}", f"v_add_u32 v{W1}, {SY_A2}, v{W1}")
            wait_two(a, W0, W1, F_TMP+2, 48, 47)
        else:
            a.e(f"v_lshlrev_b32 v{F_TMP}, {FA()}, v1", f"v_add_u32 v{F_TMP}, {SY_A2}, v{F_TMP}")
            wait_flags(a, F_TMP, 4, F_TMP+1, 48, skip0=47 if OPT["t0late"] else None)
        stamp(a, 11)
        PHASE[0] = 3
        fstamp(a, 11)
        f8_run(a, SI2, SOUT, {0: "sc1", 1: "nt", 2: ""}[OPT["i2ld"]], NTO(), sT0=47 if OPT["t0late"] else None)
    else:
        a.e(f"s_cmp_eq_u32 s{sACT}, 0", f"s_cbranch_scc1 {Lb3}")
        srd(a, SOUT, P_OUT, P_OUT+1, 8*MB)
        fft512_addr(a, sSA, sCB)
        fft512_addr2(a, sSA, sCB, 4096, 16384)
        fft512_consts(a)
        a.e(f"v_lshlrev_b32 v{F_TMP}, {FA()}, v1", f"v_add_u32 v{F_TMP}, {SY_A2}, v{F_TMP}")
        wait_flags(a, F_TMP, 4, F_TMP+1, 48)
        stamp(a, 11)
        PHASE[0] = 3
        fstamp(a, 11)
        fft512_loads(a, SI2, "sc1")
        fstamp(a, 3)
        save = gen.PROF; gen.PROF = False
        fft512_compute(a, SOUT, True, 0, NTO(), 0)
        gen.PROF = save
    a.e("s_cmp_lg_u32 s75, 0", "s_cbranch_scc1 L_fin")
    Lb1, Lb2 = newlbl("bchk"), newlbl("bchkd")
    a.e("v_lshlrev_b32 v2, 6, v1", f"v_add_u32 v2, {SY_ID}, v2", f"s_lshl_b32 s49, s{S_TGT}, 4", "s_mov_b32 s48, 0")
    a.label(Lb1)
    NS = NMEM()*8//64
    for i in range(NS):
        a.e(f"s_mov_b32 s50, {4096*i}", f"buffer_load_dword v{4+i}, v2, s[{S_SYN}:{S_SYN+3}], s50 offen sc1")
    a.e("s_add_u32 s48, s48, 1", "s_waitcnt vmcnt(0)")
    for i in range(NS): a.e(f"v_xor_b32 v{4+i}, s49, v{4+i}")
    for i in range(1, NS): a.e(f"v_or_b32 v4, v4, v{4+i}")
    a.e("v_lshrrev_b32 v4, 4, v4", "v_cmp_ne_u32 vcc, 0, v4", f"s_cbranch_vccz {Lb2}", f"s_cmp_lt_u32 s48, {SPIN_LIMIT}", f"s_cbranch_scc1 {Lb1}")
    a.label(Lb2)
    dreduce(a)
    pair_sum(a)
    a.e(f"s_mov_b32 s48, {SY_E}")
    bump(a, 48, 2)
    a.e("s_branch L_fin")
    if not OPT["a3all"]:
        a.label(Lb3)
        if not OPT["qA"]: emit_B3_pre(a)
        emit_B3(a)
        a.e("s_branch L_fin")
    a.label(Lsp)
    if OPT["spec2"]:
        Lp1s = newlbl("sp1")
        NEG = " neg_lo:[1,0,0] neg_hi:[1,0,0]"
        a.e(f"s_cmp_lg_u32 s{sPASS}, 0", f"s_cbranch_scc1 {Lp1s}")
        a.e(f"v_lshl_add_u32 v{SP}, v{G_}, 7, v{IDX}", f"v_sub_u32 v{SP+1}, {1023-32*27}, v{SP}",
            f"s_mov_b32 s48, {LW2}", f"v_lshl_add_u32 v{SP+2}, v{SP}, 1, s48", f"s_mov_b32 s49, {LW2+2048}", f"v_lshl_add_u32 v{SP+3}, v{SP+1}, 1, s49")
        w_lds_reads(a, SP+2, SP+3, W2R, W2I)
        for p in range(8):
            xr, xi, wr, wi = ARE+2*p, AIM+2*p, WR+2*p, WI+2*p
            t0 = TMP+4*(p & 1); t1 = t0+2
            n0 = NEG if p < 4 else ""; n1 = "" if p < 4 else NEG
            a.e(f"v_pk_mul_f32 {v(t0,2)}, {v(xr,2)}, {v(wr,2)}", f"v_pk_mul_f32 {v(t1,2)}, {v(xi,2)}, {v(wr,2)}",
                f"v_pk_fma_f32 {v(wr,2)}, {v(xi,2)}, {v(wi,2)}, {v(t0,2)}{n0}",
                f"v_pk_fma_f32 {v(wi,2)}, {v(xr,2)}, {v(wi,2)}, {v(t1,2)}{n1}")
        for i in range(16): a.e(f"v_mov_b32 v{DF+i}, v{GB+i}")
        a.e(f"s_mov_b32 s{sPASS}, 1", f"s_branch {Lfwd}")
        a.label(Lp1s)
        fix_w(a, W2R, W2I, PF2)
        for p in range(8):
            xr, xi, br, bi, r1r, r1i = ARE+2*p, AIM+2*p, W2R+2*p, W2I+2*p, WR+2*p, WI+2*p
            t0 = TMP+4*(p & 1); t1 = t0+2
            n0 = NEG if p < 4 else ""; n1 = "" if p < 4 else NEG
            a.e(f"v_pk_mul_f32 {v(t0,2)}, {v(xr,2)}, {v(br,2)}", f"v_pk_mul_f32 {v(t1,2)}, {v(xi,2)}, {v(br,2)}",
                f"v_pk_fma_f32 {v(t0,2)}, {v(xi,2)}, {v(bi,2)}, {v(t0,2)}{n0}",
                f"v_pk_fma_f32 {v(t1,2)}, {v(xr,2)}, {v(bi,2)}, {v(t1,2)}{n1}",
                f"v_pk_add_f32 {v(t1,2)}, {v(r1r,2)}, {v(t1,2)} neg_lo:[0,1] neg_hi:[0,1]",
                f"v_pk_add_f32 {v(t0,2)}, {v(r1i,2)}, {v(t0,2)}")
            for e in range(2):
                a.e(f"v_cvt_pk_bf16_f32 v{DF+2*p+e}, v{t1+e}, -v{t0+e}")
        a.e(f"s_branch {Linv}")
        return
    a.e(f"v_lshl_add_u32 v{TMP}, v{G_}, 7, v{IDX}", f"v_sub_u32 v{TMP+1}, {1023-32*27}, v{TMP}",
        f"s_mov_b32 s48, {LW2}", f"v_lshl_add_u32 v{TMP+2}, v{TMP}, 1, s48", f"s_mov_b32 s49, {LW2+2048}", f"v_lshl_add_u32 v{TMP+3}, v{TMP+1}, 1, s49")
    w_lds_reads(a, TMP+2, TMP+3, W2R, W2I)
    a.e("s_waitcnt lgkmcnt(0)")
    fix_w(a, W2R, W2I, PF2)
    VS = SP; K0 = SP+1
    a.e(f"v_lshlrev_b32 v{VS}, 9, v{G_}", f"v_lshl_add_u32 v{VS}, v{IDX}, 2, v{VS}")
    for r in range(16):
        a.e(f"ds_write_b32 v{VS}, v{ARE+r} offset:{LSC+128*eidx(r)}", f"ds_write_b32 v{VS}, v{AIM+r} offset:{LSC+4096+128*eidx(r)}")
    a.e(f"v_lshl_add_u32 v{K0}, v{G_}, 7, v{IDX}", f"v_sub_u32 v{K0}, 1024, v{K0}", "s_waitcnt lgkmcnt(0)")
    for r in range(16):
        ad, rr, ri, ur, ui, vr, vi, o0, o1 = [SP+2+i for i in range(9)]
        a.e(f"v_subrev_u32 v{ad}, {32*eidx(r)}, v{K0}", f"v_and_b32 v{ad}, 1023, v{ad}", f"v_lshlrev_b32 v{ad}, 2, v{ad}",
            f"ds_read_b32 v{rr}, v{ad} offset:{LSC}", f"ds_read_b32 v{ri}, v{ad} offset:{LSC+4096}", "s_waitcnt lgkmcnt(0)")
        pr, pi_ = ARE+r, AIM+r
        a.e(f"v_add_f32 v{ur}, v{pr}, v{rr}", f"v_sub_f32 v{ui}, v{pi_}, v{ri}",
            f"v_sub_f32 v{vr}, v{pr}, v{rr}", f"v_add_f32 v{vi}, v{pi_}, v{ri}")
        sg = "-" if r < 8 else ""; ns = "" if r < 8 else "-"
        ar, ai, br, bi = WR+r, WI+r, W2R+r, W2I+r
        a.e(f"v_mul_f32 v{o0}, v{ur}, v{ar}", f"v_fma_f32 v{o0}, {sg}v{ui}, v{ai}, v{o0}",
            f"v_fma_f32 v{o0}, v{vr}, v{br}, v{o0}", f"v_fma_f32 v{o0}, {sg}v{vi}, v{bi}, v{o0}",
            f"v_mul_f32 v{o1}, v{ui}, v{ar}", f"v_fma_f32 v{o1}, {ns}v{ur}, v{ai}, v{o1}",
            f"v_fma_f32 v{o1}, v{vi}, v{br}, v{o1}", f"v_fma_f32 v{o1}, {ns}v{vr}, v{bi}, v{o1}",
            f"v_mul_f32 v{o0}, 0.5, v{o0}", f"v_mul_f32 v{o1}, 0.5, v{o1}",
            f"v_cvt_pk_bf16_f32 v{DF+r}, v{o0}, -v{o1}")
    a.e(f"s_branch {Linv}")

def h_dma(a, SH, sLB, sD4K):
    a.e("v_lshlrev_b32 v235, 4, v1")
    a.e(f"s_add_u32 s74, s{sLB}, 32", "s_mov_b32 m0, s74")
    for ch in range(4): a.e(f"buffer_load_dwordx4 v235, s[{SH}:{SH+3}], s{sD4K} offen offset:{1024*ch} lds" + (NT() if OPT["nth"] else ""))
    a.e(f"s_add_u32 s74, s{sLB}, 4192", f"s_add_u32 s75, s{sD4K}, 2", "s_mov_b32 m0, s74")
    for ch in range(4): a.e(f"buffer_load_dwordx4 v235, s[{SH}:{SH+3}], s75 offen offset:{1024*ch} lds" + (NT() if OPT["nth"] else ""))
    a.e("v_mov_b32 v233, 0x7ffffff0", f"v_mov_b32 v234, s{sD4K}", "v_cmp_eq_u32 vcc, 15, v1", "v_cndmask_b32 v233, v233, v234, vcc",
        f"buffer_load_short_d16_hi v230, v233, s[{SH}:{SH+3}], 0 offen")

def b1_prio(a):
    if not OPT["pB1"]: return
    if OPT["latem"]:
        Lm = newlbl("lateB")
        a.e("s_and_b32 s92, s2, 7", f"s_lshr_b32 s92, {OPT['latem']}, s92", "s_bitcmp1_b32 s92, 0", f"s_cbranch_scc1 {Lm}", f"s_setprio {OPT['pB1']}")
        a.label(Lm)
    else:
        a.e(f"s_setprio {OPT['pB1']}")

def gen_B(a):
    ROLE[0] = 'B'
    SH, STT, SKVT = 80, 84, 32
    sCBK, sSUB, sD, sD4K, sLB, sDV, sF1, sF2, sMASK = 40, 41, 42, 43, 44, 45, 46, 47, 72
    sSB = 36
    def b_setup():
        a.e(f"s_setprio {OPT['prioB']}") if OPT['prioB'] else None
        srd(a, SH, P_SSMK, P_SSMK+1, 4*MB); srd(a, STT, P_OUT, P_OUT+1, 8*MB)
        a.e(f"s_and_b32 s{sCBK}, s2, 15",
            f"s_lshr_b32 s{sSUB}, s2, 4",
            f"s_lshl_b32 s{sD}, s{sCBK}, 4", f"s_add_u32 s{sD}, s{sD}, s{sSUB}", f"s_lshl_b32 s{sD}, s{sD}, 2", f"s_add_u32 s{sD}, s{sD}, s3",
            f"s_lshl_b32 s{sD4K}, s{sD}, 12", f"s_mul_i32 s{sLB}, s3, {LB_STRIDE}", f"s_mov_b32 s{sMASK}, 0xffff0000")
        if OPT["fullline"]:
            a.e(f"s_and_b32 s73, s{sD}, 3", "s_lshl_b32 s73, s73, 15", f"s_bfe_u32 s74, s{sD}, 0x30003", "s_lshl_b32 s74, s74, 12", "s_add_u32 s73, s73, s74",
                f"s_bfe_u32 s74, s{sD}, 0x10002", "s_lshl_b32 s74, s74, 6", "s_add_u32 s73, s73, s74",
                f"s_lshl_b32 s74, s{sCBK}, 7", "s_add_u32 s73, s73, s74", f"s_add_u32 s{sSB}, s73, 2048")
        else:
            a.e(f"s_and_b32 s73, s{sD}, 63", "s_lshl_b32 s73, s73, 13", f"s_lshl_b32 s74, s{sCBK}, 7", "s_add_u32 s73, s73, s74", f"s_add_u32 s{sSB}, s73, 2048")
        for i in range(1, 4): a.e(f"s_add_u32 s{sSB+i}, s{sSB}, {i*2*MB}")
        a.e(f"s_lshl_b32 s73, s{sCBK}, {4+FB()}", f"s_add_u32 s{sF1}, s73, {SY_B1}", f"s_lshl_b32 s74, s{sSUB}, {FB()}", "s_add_u32 s73, s73, s74", f"s_add_u32 s{sF2}, s73, {SY_B2}")
        a.e(f"s_and_b32 s73, s{sD}, 0xfffffffe", "s_lshl_b32 s73, s73, 1", f"s_load_dword s{sDV}, s[{P_SSMD}:{P_SSMD+1}], s73")

    if OPT["fast"]:
        b1_prio(a)
        a.e(f"s_and_b32 s{sCBK}, s2, 15", f"s_lshr_b32 s{sSUB}, s2, 4")
    else:
        b_setup()
    if OPT["bearly"]:
        LN16, B_, G4, VA, VB, VE, VS2, T, TT, UL, Z0 = 242, 244, 245, 236, 240, 10, 241, 12, 227, 243, 228
    else:
        LN16, B_, G4, VA, VB, VE, VS2, T, TT, UL, Z0 = 2, 3, 4, 5, 9, 10, 11, 12, 18, 19, 16
    def b2_setup():
        a.e(f"v_lshlrev_b32 v{T}, 2, v1",
            f"v_add_u32 v{T+1}, {4160-32}, v{T}", "v_cmp_le_u32 vcc, 8, v1", f"v_cndmask_b32 v{T+3}, v{T}, v{T+1}, vcc",
            f"v_add_u32 v{T+1}, 8288, v{T}", "v_cmp_le_u32 vcc, 16, v1", f"v_cndmask_b32 v{T+3}, v{T+3}, v{T+1}, vcc",
            f"v_add_u32 v231, s{sLB}, v{T+3}")
        a.e(f"v_lshlrev_b32 v{T}, 3, v1", f"v_add_u32 v{T}, s{sLB}, v{T}", f"v_mov_b32 v{Z0}, 0", f"v_mov_b32 v{Z0+1}, 0", f"ds_write_b64 v{T}, v[{Z0}:{Z0+1}] offset:8288")
        a.e(f"v_and_b32 v{B_}, 15, v1", f"v_lshrrev_b32 v{G4}, 4, v1")
        a.e(f"v_and_b32 v{VA}, 1, v{B_}", f"v_xor_b32 v{VA}, 1, v{VA}", f"v_mul_u32_u24 v{VA}, 4160, v{VA}",
            f"v_add_u32 v{VA+1}, 1, v{B_}", f"v_lshrrev_b32 v{VA+1}, 1, v{VA+1}", f"v_lshl_add_u32 v{VA}, v{VA+1}, 2, v{VA}",
            f"v_lshlrev_b32 v{VA+1}, 4, v{G4}", f"v_sub_u32 v{VA}, v{VA}, v{VA+1}",
            f"s_add_u32 s73, s{sLB}, 16", f"v_add_u32 v{VA}, s73, v{VA}")
        for pp in range(1, 4): a.e(f"v_add_u32 v{VA+pp}, {1024*pp}, v{VA}")
        a.e(f"v_lshlrev_b32 v{VB}, 5, v{B_}", f"v_lshl_add_u32 v{VB}, v{G4}, 4, v{VB}",
            f"s_add_u32 s73, s{sLB}, {8800-480}", f"v_add_u32 v{VB}, s73, v{VB}")
        a.e(f"v_lshrrev_b32 v{TT}, 1, v{G4}", f"v_lshlrev_b32 v{UL}, 4, v{TT}", f"v_lshl_add_u32 v{UL}, v{B_}, 5, v{UL}",
            f"v_and_b32 v{TT}, 1, v{G4}", f"v_xor_b32 v{TT}, 1, v{TT}", f"v_lshl_add_u32 v{UL}, v{TT}, 3, v{UL}",
            f"s_add_u32 s73, s{sLB}, 8800", f"v_add_u32 v232, s73, v{UL}")
        if OPT["fullline"]:
            a.e(f"v_lshrrev_b32 v{TT}, 3, v{B_}", f"v_lshlrev_b32 v{VS2}, 19, v{TT}", f"v_bfe_u32 v{TT}, v{B_}, 1, 2", f"v_lshl_add_u32 v{VS2}, v{TT}, 17, v{VS2}",
                f"v_and_b32 v{TT}, 1, v{G4}", f"v_lshl_add_u32 v{VS2}, v{TT}, 20, v{VS2}", f"v_and_b32 v{TT}, 1, v{B_}", f"v_lshl_add_u32 v{VS2}, v{TT}, 5, v{VS2}",
                f"v_lshrrev_b32 v{TT}, 1, v{G4}", f"v_lshl_add_u32 v{VS2}, v{TT}, 4, v{VS2}")
            a.e(f"v_lshlrev_b32 v{LN16}, 19, v{G4}", f"v_bfe_u32 v{TT}, v1, 2, 2", f"v_lshl_add_u32 v{LN16}, v{TT}, 17, v{LN16}",
                f"v_and_b32 v{TT}, 3, v1", f"v_lshl_add_u32 v{LN16}, v{TT}, 4, v{LN16}")
        else:
            a.e(f"v_lshrrev_b32 v{TT}, 3, v{B_}", f"v_lshlrev_b32 v{VS2}, 19, v{TT}", f"v_bfe_u32 v{TT}, v{B_}, 2, 1", f"v_lshl_add_u32 v{VS2}, v{TT}, 12, v{VS2}",
                f"v_and_b32 v{TT}, 1, v{G4}", f"v_lshl_add_u32 v{VS2}, v{TT}, 20, v{VS2}", f"v_and_b32 v{TT}, 3, v{B_}", f"v_lshl_add_u32 v{VS2}, v{TT}, 5, v{VS2}",
                f"v_lshrrev_b32 v{TT}, 1, v{G4}", f"v_lshl_add_u32 v{VS2}, v{TT}, 4, v{VS2}")
            a.e(f"v_lshlrev_b32 v{LN16}, 19, v{G4}", f"v_bfe_u32 v{TT}, v1, 3, 1", f"v_lshl_add_u32 v{LN16}, v{TT}, 12, v{LN16}",
                f"v_and_b32 v{TT}, 7, v1", f"v_lshl_add_u32 v{LN16}, v{TT}, 4, v{LN16}")
        a.e(f"v_lshlrev_b32 v{TT}, 4, v1", f"s_add_u32 s73, s{sLB}, 8800", f"v_add_u32 v{UL}, s73, v{TT}")

    stamp(a, 0, True); stamp(a, 1)
    Lidle, Lsetup = newlbl("bidle"), newlbl("bsetup")
    if not OPT["fast"]: b1_prio(a)
    if OPT["b1all"]:
        a.e(f"s_mov_b32 s{sCBKT}, s{sCBK}", f"s_mov_b32 s{sSUBT}, s{sSUB}")
        sh = b_setup if OPT["fast"] else None
        if OPT["bearly"]:
            assert OPT["fast"] and OPT["twoflag"] and not OPT["hlate"]
            sh = lambda: (b_setup(), b2_setup())
        if OPT["hfirst"]:
            emit_B1(a, after_loads=lambda: h_dma(a, SH, sLB, sD4K), nyoung=9)
        elif OPT["bearly"]:
            emit_B1(a, shadow=sh)
        elif OPT["hearly"] and not OPT["hlate"]:
            emit_B1(a, shadow=sh, after_stores=lambda: ((b_wait_state(a, 233, 3, OPT["hwait"]) if OPT["hwait"] else None), h_dma(a, SH, sLB, sD4K)), nafter=9)
        else:
            emit_B1(a, shadow=sh)
            if not OPT["hlate"]: h_dma(a, SH, sLB, sD4K)
    else:
        a.e(f"s_cmp_lg_u32 s{sACT}, 0", f"s_cbranch_scc1 {Lidle}")
        if OPT["hearly"] and not OPT["hlate"]:
            emit_B1(a, after_stores=lambda: h_dma(a, SH, sLB, sD4K), nafter=9)
        else:
            emit_B1(a)
            if not OPT["hlate"]: h_dma(a, SH, sLB, sD4K)
        a.e(f"s_branch {Lsetup}")
        a.label(Lidle)
        if OPT["tlb"] or OPT["cpf"]: warm(a)
        fin_epoch(a)
        loc_publish(a)
        loc_issue(a, 10)
        loc_resolve(a, 10, barrier=False)
        if not OPT["hlate"]:
            for _ in range(OPT["hactdelay"]):
                a.e("v_and_b32 v12, 15, v1", f"v_lshlrev_b32 v12, {FB()}, v12", f"v_add_u32 v12, s{sF1}, v12",
                    f"buffer_load_dword v13, v12, s[{S_SYN}:{S_SYN+3}], 0 offen sc1", "s_waitcnt vmcnt(0)")
            h_dma(a, SH, sLB, sD4K)
    a.label(Lsetup)
    if OPT["pB1"]: a.e(f"s_setprio {OPT['prioB']}")
    stamp(a, 12)
    if OPT["yieldB"] >= 2 and OPT["yinit"]:
        a_state(a, sCU, 0, 233)
    if not OPT["bearly"]: b2_setup()
    def dsel():
        a.e("s_waitcnt lgkmcnt(0)",
            f"s_and_b32 s73, s{sD}, 1", f"s_lshl_b32 s74, s{sDV}, 16", f"s_and_b32 s75, s{sDV}, 0xffff0000",
            "s_cmp_eq_u32 s73, 1", f"s_cselect_b32 s{sDV}, s75, s74")
    if not OPT["bearly"]: dsel()
    if OPT["twoflag"]:
        a.e(f"s_add_u32 s73, s{sF1}, {SY_B1B-SY_B1}", f"s_cmp_lg_u32 s{sLOC}, 0", f"s_cselect_b32 s{sF1}, s{sF1}, s73")
    a.e(f"v_and_b32 v{T}, 15, v1", f"v_lshlrev_b32 v{T}, {FB()}, v{T}", f"v_add_u32 v{T}, s{sF1}, v{T}")
    stamp(a, 5)
    if OPT["bearly"]:
        wait_flags_mid(a, T, T+1, 73, lambda: h_dma(a, SH, sLB, sD4K), 9)
        dsel()
    else:
        wait_flags(a, T, 1, T+1, 73)
    loc_read(a, 12)
    stamp(a, 6)
    VE = 232
    ACC = 20
    SETS = [(52, 84), (116, 148)]
    U = SETS[1][1]
    for ch in range(4):
        a.e(f"buffer_load_dwordx4 {v(U+4*ch,4)}, v{LN16}, s[{STT}:{STT+3}], s{sSB+ch} offen" + LDL())
    def reads(rho, st):
        A, B = SETS[st]
        out = []
        for p in range(8):
            o = 8*rho + 128*(p & 1)
            out.append(f"ds_read2_b32 {v(A+4*p,2)}, v{VA+(p>>1)} offset0:{o} offset1:{o+1}")
            out.append(f"ds_read2_b32 {v(A+4*p+2,2)}, v{VA+(p>>1)} offset0:{o+2} offset1:{o+3}")
        outb = [f"ds_read_b128 {v(B+4*q,4)}, v{VB} offset:{512*q+32*(15-rho)}" for q in range(8)]
        return out, outb
    rhos = list(range(1, 16, 2))
    ra, rb = reads(rhos[0], 0)
    if OPT["hlate"]:
        h_dma(a, SH, sLB, sD4K)
        for ch in range(4):
            a.e(f"s_waitcnt vmcnt({3-ch+9})", f"ds_write_b128 v{UL}, {v(U+4*ch,4)} offset:{1024*ch}")
        a.e("s_waitcnt vmcnt(0)", "ds_write_b32 v231, v230", "s_waitcnt lgkmcnt(0)")
        for r in ra: a.e(r)
    else:
        a.e("s_waitcnt vmcnt(4)", "ds_write_b32 v231, v230")
        a.e("s_waitcnt lgkmcnt(0)")
        for r in ra: a.e(r)
        for ch in range(4):
            a.e(f"s_waitcnt vmcnt({3-ch})", f"ds_write_b128 v{UL}, {v(U+4*ch,4)} offset:{1024*ch}")
    a.e("s_waitcnt lgkmcnt(0)")
    for r in rb: a.e(r)
    if OPT["yieldB"]:
        Ly = newlbl("y0b")
        if OPT["y0"]: a.e("s_cmp_lg_u32 s2, 0", f"s_cbranch_scc1 {Ly}")
        if OPT["ylate"]: a.e("s_and_b32 s92, s2, 7", f"s_lshr_b32 s92, {OPT['latem']}, s92", "s_bitcmp0_b32 s92, 0", f"s_cbranch_scc1 {Ly}")
        if not (OPT["yieldB"] == 2 and OPT["ymid"]): b_yield(a, 233)
        a.label(Ly)
    Lnq = newlbl("noq")
    if OPT["a3all"]:
        a.e(f"s_mov_b32 s{sCBKT}, s{sCBK}", f"s_mov_b32 s{sSUBT}, s{sSUB}")
        if OPT["yieldB"] != 3 and not OPT["qlate"]: emit_B3_pre(a)
    else:
        a.e(f"s_cmp_lg_u32 s{sACT}, 0", f"s_cbranch_scc1 {Lnq}")
        emit_B3_pre(a)
        a.label(Lnq)
    stamp(a, 7)
    for ci, rho in enumerate(rhos):
        st = ci & 1
        A, B = SETS[st]
        if ci+1 < len(rhos):
            ra, rb = reads(rhos[ci+1], st ^ 1); nxt = ra[0:2] + rb + ra[2:]
        else:
            nxt = [f"ds_read_b64 {v(SETS[st^1][0]+2*j,2)}, v{VE} offset:{512*j}" for j in range(8)]
        if OPT["yieldB"] == 3: b_yield_step(a, 233, ci == len(rhos)-1)
        if OPT["yieldB"] == 2 and OPT["ymid"] and ci == OPT["ymid"]:
            Lym = newlbl("ym")
            if OPT["ylate"]: a.e("s_and_b32 s92, s2, 7", f"s_lshr_b32 s92, {OPT['latem']}, s92", "s_bitcmp0_b32 s92, 0", f"s_cbranch_scc1 {Lym}")
            b_yield(a, 233)
            a.label(Lym)
        a.e("s_waitcnt lgkmcnt(0)")
        n = 0
        for p in range(8):
            for q in range(8-p):
                j = p+q
                c = "0" if (ci == 0 and p == 0) else v(ACC+4*j, 4)
                a.e(f"v_mfma_f32_16x16x32_bf16 {v(ACC+4*j,4)}, {v(A+4*p,4)}, {v(B+4*q,4)}, {c}")
                if n < len(nxt): a.e(nxt[n])
                n += 1
    KVR = SETS[0][0]; TMv = 116
    if (OPT["yieldB"] == 3 or OPT["qlate"]) and OPT["a3all"]: emit_B3_pre(a)
    a.e("s_waitcnt lgkmcnt(0)")
    stamp(a, 8)
    sts = []
    for jp in range(4):
        base = TMv + 8*jp
        for hh in range(2):
            j = 2*jp+hh
            w0, w1 = KVR+2*j, KVR+2*j+1
            t = 172
            a.e(f"v_and_b32 v{t}, s{sMASK}, v{w1}", f"v_lshlrev_b32 v{t+1}, 16, v{w1}",
                f"v_and_b32 v{t+2}, s{sMASK}, v{w0}", f"v_lshlrev_b32 v{t+3}, 16, v{w0}")
            for r in range(4):
                a.e(f"v_fma_f32 v{t+r}, v{t+r}, s{sDV}, v{ACC+4*j+r}")
            a.e(f"v_cvt_pk_bf16_f32 v{base+2*hh}, v{t}, v{t+1}", f"v_cvt_pk_bf16_f32 v{base+2*hh+1}, v{t+2}, v{t+3}")
        a.e(f"v_permlane16_swap_b32 v{base}, v{base+2}", f"v_permlane16_swap_b32 v{base+1}, v{base+3}")
        sts.append(f"buffer_store_dwordx4 {v(base,4)}, v{VS2}, s[{STT}:{STT+3}], s{sSB+jp} offen")
    dual_store(a, sts)
    signal(a, sF2, 12, bloc=True)
    stamp(a, 9)
    if not OPT["a3all"]: a.e(f"s_cmp_lg_u32 s{sACT}, 0", "s_cbranch_scc1 L_fin")
    emit_B3(a)
    if OPT["wbl2"]:
        Lw = newlbl("wb")
        a.e("s_waitcnt vmcnt(0)", "s_cmp_lg_u32 s3, 0", f"s_cbranch_scc1 {Lw}")
        if OPT["wbl2"] == 1: a.e(f"s_cmp_lg_u32 s{sSUB}, 15", f"s_cbranch_scc1 {Lw}")
        if OPT["wbl2"] == 2: a.e(f"s_and_b32 s92, s{sSUB}, 3", "s_cmp_lg_u32 s92, 3", f"s_cbranch_scc1 {Lw}")
        a.e("buffer_wbl2 sc1")
        a.label(Lw)
    pair_chkB(a)
    a.e("s_branch L_fin")

SY_PA = 4096 + 163840
SY_PB = SY_PA + 16384
def hwid(a, dst):
    a.e(f"s_getreg_b32 s{dst}, hwreg(HW_REG_HW_ID)", f"s_lshr_b32 s{dst}, s{dst}, 8", f"s_and_b32 s{dst}, s{dst}, 0xff",
        "s_getreg_b32 s93, hwreg(HW_REG_XCC_ID)", "s_and_b32 s93, s93, 15", "s_lshl_b32 s93, s93, 8", f"s_or_b32 s{dst}, s{dst}, s93")
def pair_pubA(a):
    if not OPT.get("pair"): return
    L = newlbl("ppa")
    a.e("s_cmp_lg_u32 s3, 0", f"s_cbranch_scc1 {L}")
    hwid(a, 92)
    a.e(f"s_lshl_b32 s93, s{sCU}, 6", f"s_add_u32 s93, s93, {SY_PA}", "v_mov_b32 v240, s93", "v_mov_b32 v241, s92", "s_mov_b64 exec, 1",
        f"buffer_store_dword v241, v240, s[{S_SYN}:{S_SYN+3}], 0 offen sc1", "s_mov_b64 exec, -1")
    a.label(L)
def pair_chkB(a):
    if not OPT.get("pair"): return
    L = newlbl("ppb")
    a.e("s_cmp_lg_u32 s3, 0", f"s_cbranch_scc1 {L}")
    hwid(a, 92)
    a.e(f"s_lshl_b32 s93, s{sCU}, 6", f"s_add_u32 s93, s93, {SY_PA}", "v_mov_b32 v240, s93",
        f"buffer_load_dword v241, v240, s[{S_SYN}:{S_SYN+3}], 0 offen sc1", "s_waitcnt vmcnt(0)", "v_readfirstlane_b32 s93, v241",
        "s_cmp_lg_u32 s92, s93", "s_cselect_b32 s92, 1, 0", f"s_lshl_b32 s93, s{S_TGT}, 1", "s_or_b32 s92, s92, s93",
        f"s_lshl_b32 s93, s{sCU}, 6", f"s_add_u32 s93, s93, {SY_PB}", "v_mov_b32 v240, s93", "v_mov_b32 v241, s92", "s_mov_b64 exec, 1",
        f"buffer_store_dword v241, v240, s[{S_SYN}:{S_SYN+3}], 0 offen sc1", "s_mov_b64 exec, -1", "s_waitcnt vmcnt(0)")
    a.label(L)
def pair_sum(a):
    if not OPT.get("pair"): return
    L1, L2, L3 = newlbl("ps"), newlbl("psd"), newlbl("psp")
    a.e("v_lshlrev_b32 v2, 6, v1", f"v_add_u32 v2, {SY_PB}, v2", f"s_lshl_b32 s49, s{S_TGT}, 1", "s_mov_b32 s48, 0")
    a.label(L1)
    for i in range(4): a.e(f"s_mov_b32 s50, {4096*i}", f"buffer_load_dword v{4+i}, v2, s[{S_SYN}:{S_SYN+3}], s50 offen sc1")
    a.e("s_add_u32 s48, s48, 1", "s_waitcnt vmcnt(0)")
    for i in range(4): a.e(f"v_xor_b32 v{4+i}, s49, v{4+i}")
    a.e("v_or_b32 v8, v4, v5", "v_or_b32 v9, v6, v7", "v_or_b32 v8, v8, v9", "v_lshrrev_b32 v8, 1, v8", "v_cmp_ne_u32 vcc, 0, v8", f"s_cbranch_vccz {L2}",
        f"s_cmp_lt_u32 s48, {SPIN_LIMIT}", f"s_cbranch_scc1 {L1}")
    a.label(L2)
    a.e("s_mov_b32 s48, 0")
    for i in range(4): a.e(f"v_cmp_eq_u32 vcc, 1, v{4+i}", "s_bcnt1_i32_b64 s49, vcc", "s_add_u32 s48, s48, s49")
    a.e(f"s_mov_b32 s92, s{P_DBG}", f"s_mov_b32 s93, s{P_DBG+1}", "s_mov_b32 s94, 256", "s_mov_b32 s95, 0x00020000", "v_mov_b32 v4, 0", "v_mov_b32 v5, s48", "s_mov_b64 exec, 1",
        "buffer_store_dword v5, v4, s[92:95], 0 offen", "s_mov_b64 exec, -1")
    a.e("s_mul_i32 s48, s48, 10", "s_memrealtime s[50:51]", "s_waitcnt lgkmcnt(0)", "s_mov_b32 s49, s50")
    a.label(L3)
    a.e("s_memrealtime s[50:51]", "s_waitcnt lgkmcnt(0)", "s_sub_u32 s50, s50, s49", "s_cmp_lt_u32 s50, s48", f"s_cbranch_scc1 {L3}")

def warm(a):
    if OPT["tlb"]:
        L = newlbl("warm")
        a.e("s_cmp_lg_u32 s3, 3", f"s_cbranch_scc1 {L}")
        pages = [(P_WS, WS_I1), (P_WS, WS_I1+2*MB), (P_WS, WS_I2), (P_WS, WS_I2+2*MB), (P_WS, WS_SYNC+512*1024),
                 (P_OUT, 0), (P_OUT, 2*MB), (P_OUT, 4*MB), (P_OUT, 6*MB),
                 (P_WR, 0), (P_WR, 2*MB), (P_WI, 0), (P_WI, 2*MB), (P_SSMK, 0), (P_SSMK, 2*MB), (P_Q, 0), (P_Q, 2*MB)]
        a.e("v_mov_b32 v240, 0", "v_mov_b32 v241, 0")
        for i, (p, off) in enumerate(pages):
            a.e(f"s_add_u32 s92, s{p}, {off}", f"s_addc_u32 s93, s{p+1}, 0", f"v_writelane_b32 v240, s92, {i}", f"v_writelane_b32 v241, s93, {i}")
        a.e(f"s_mov_b64 exec, {(1 << len(pages)) - 1}", "global_load_dword v242, v[240:241], off", "s_mov_b64 exec, -1")
        a.label(L)
    if OPT["cpf"]:
        L = newlbl("warm")
        a.e("s_cmp_ge_u32 s3, 2", f"s_cbranch_scc1 {L}")
        a.e("s_getpc_b64 s[92:93]")
        a.e("s_lshr_b32 s96, s2, 4", "s_and_b32 s96, s96, 15", "s_lshl_b32 s96, s96, 1", "s_add_u32 s96, s96, s3", "s_min_u32 s96, s96, 25",
            "s_lshl_b32 s96, s96, 10", f"s_sub_u32 s92, s92, {OPT['cpf']}", "s_subb_u32 s93, s93, 0",
            "s_add_u32 s92, s92, s96", "s_addc_u32 s93, s93, 0", "v_lshlrev_b32 v240, 4, v1",
            "global_load_dwordx4 v[236:239], v240, s[92:93]")
        a.label(L)

def common_rest(a):
    srd(a, S_SYN, P_WS, P_WS+1, 1*MB, add=WS_SYNC)
    a.e(f"s_mov_b32 s92, {WS_SYNC+SY_E}", f"s_load_dword s{S_TGT}, s[{P_WS}:{P_WS+1}], s92")
    a.e(f"s_mov_b32 s98, {64<<FA()}", f"s_mov_b32 s99, {128<<FA()}", f"s_mov_b32 s100, {192<<FA()}")
    if OPT["fast"] >= 2: return
    a.e(f"s_and_b32 s{sCU}, s2, 255", f"s_bitcmp0_b32 s2, 3", f"s_cselect_b32 s{sACT}, 1, 0",
        f"s_lshr_b32 s48, s{sCU}, 4", "s_lshl_b32 s48, s48, 3", f"s_and_b32 s49, s{sCU}, 7", "s_add_u32 s48, s48, s49",
        f"s_and_b32 s{sCBKT}, s48, 15", "s_lshr_b32 s48, s48, 4", "s_lshl_b32 s48, s48, 1", "s_lshr_b32 s49, s2, 8", f"s_add_u32 s{sSUBT}, s48, s49")

def gen_kernel():
    a = Asm(); a.name = "p"
    a.e("s_cmp_ge_u32 s2, 512", "s_cbranch_scc1 L_exit")
    if OPT["swap"]: a.e("s_xor_b32 s2, s2, 256")
    if OPT.get("spinT") or OPT.get("span"): a.e("s_memrealtime s[94:95]")
    if OPT.get("spinC"): a.e("s_memtime s[94:95]")
    if gen.PROF: a.e("s_memrealtime s[98:99]", "s_waitcnt lgkmcnt(0)", "v_writelane_b32 v247, s98, 13")
    a.e(f"s_load_dwordx16 s[4:19], s[0:1], 0", f"s_load_dwordx8 s[20:27], s[0:1], 64")
    a.e("v_lshrrev_b32 v1, 6, v0", "v_readfirstlane_b32 s3, v1", "v_and_b32 v1, 63, v0", "s_waitcnt lgkmcnt(0)")
    if OPT["fast"] >= 2:
        a.e(f"s_and_b32 s{sCU}, s2, 255")
    else:
        common_rest(a)
    a.e("s_cmp_ge_u32 s2, 256", "s_cbranch_scc1 L_A")
    gen_B(a)
    a.label("L_A")
    gen_A(a)
    a.label("L_fin")
    pass
    if gen.PROF:
        a.e("s_waitcnt vmcnt(0)")
        stamp(a, 14); stamp(a, 15, True)
        prof_dump(a)
    if OPT.get("span"):
        Ls = newlbl("span")
        a.e("s_cmp_lg_u32 s3, 0", f"s_cbranch_scc1 {Ls}", "s_waitcnt vmcnt(0)", "s_memrealtime s[92:93]",
            f"s_add_u32 s32, s{P_WS}, {gen.WS_PROF}", f"s_addc_u32 s33, s{P_WS+1}, 0", f"s_mov_b32 s34, {MB}", "s_mov_b32 s35, 0x00020000",
            "s_lshl_b32 s36, s2, 3", "s_waitcnt lgkmcnt(0)", "v_mov_b32 v2, s36", "v_mov_b32 v4, s94", "v_mov_b32 v5, s92", "s_mov_b64 exec, 1",
            "buffer_store_dwordx2 v[4:5], v2, s[32:35], 0 offen", "s_waitcnt vmcnt(0)")
        a.label(Ls)
    if OPT.get("spinC"):
        a.label("L_spinc")
        a.e("s_memtime s[92:93]", "s_waitcnt lgkmcnt(0)", "s_sub_u32 s92, s92, s94", f"s_cmp_lt_u32 s92, {OPT['spinC']}", "s_cbranch_scc1 L_spinc")
    if OPT.get("spinT"):
        a.label("L_spin")
        a.e("s_memrealtime s[92:93]", "s_waitcnt lgkmcnt(0)", "s_sub_u32 s92, s92, s94", f"s_cmp_lt_u32 s92, {OPT['spinT']}", "s_cbranch_scc1 L_spin")
    a.label("L_exit")
    a.e("s_endpgm")
    return a

def prof_dump(a):
    if OPT.get("dbgwg", -1) >= 0:
        L = newlbl("nodbg")
        a.e(f"s_cmp_lg_u32 s2, {OPT['dbgwg']}", f"s_cbranch_scc1 {L}", "s_cmp_lg_u32 s3, 0", f"s_cbranch_scc1 {L}")
        a.e("v_readlane_b32 s36, v247, 1", "v_readlane_b32 s37, v247, 13", "v_mov_b32 v250, s36", "v_mov_b32 v251, s37",
            "v_cmp_eq_u32 vcc, 0, v1", "v_cndmask_b32 v250, v250, v251, vcc", "v_cmp_eq_u32 vcc, 13, v1", "v_cndmask_b32 v250, v250, v251, vcc",
            "v_cmp_eq_u32 vcc, 15, v1", "v_cndmask_b32 v250, v250, v251, vcc", "v_sub_u32 v250, v247, v250",
            f"s_mov_b32 s32, s{P_DBG}", f"s_mov_b32 s33, s{P_DBG+1}", "s_mov_b32 s34, 256", "s_mov_b32 s35, 0x00020000",
            "v_lshlrev_b32 v251, 2, v1", "s_mov_b64 exec, 0xffff", "buffer_store_dword v250, v251, s[32:35], 0 offen", "s_waitcnt vmcnt(0)", "s_mov_b64 exec, -1")
        a.label(L)
        return

    a.e(f"s_add_u32 s32, s{P_WS}, {gen.WS_PROF}", f"s_addc_u32 s33, s{P_WS+1}, 0", f"s_mov_b32 s34, {MB}", "s_mov_b32 s35, 0x00020000")
    a.e("s_lshl_b32 s36, s2, 2", "s_add_u32 s36, s36, s3", "s_lshl_b32 s36, s36, 6",
        "v_lshlrev_b32 v250, 2, v1", "v_add_u32 v250, s36, v250", "s_mov_b64 exec, 0xffff",
        "buffer_store_dword v247, v250, s[32:35], 0 offen")
    if OPT.get("fine"):
        a.e("v_add_u32 v250, 0x40000, v250", "buffer_store_dword v246, v250, s[32:35], 0 offen")
    a.e("s_waitcnt vmcnt(0)")
PROFREGS = []

DOC = """;
"""

def build(path):
    a = gen_kernel()
    name = "concat_heads__spectral_gfnet__ssm_conv_h3__prompt_kernel"
    s = open("concat_heads__spectral_gfnet__ssm_conv_h3__prompt.s.ref").read().split("; Override")[0]
    s += f"; @launch grid=(512,1,1) block=(256,1,1) lds={LDS_BYTES}\n"
    s += DOC
    s += '.amdgcn_target "amdgcn-amd-amdhsa--gfx950"\n' + gen.header(name) + a.text() + gen.descriptor(name, 256, 102)
    s = s.replace(" lds nt", " nt lds")
    open(path, "w").write(s)
    return s

if __name__ == "__main__":
    out = sys.argv[1] if len(sys.argv) > 1 else "pers.s"
    gen.PROF = "prof" in sys.argv[2:]
    for x in sys.argv[2:]:
        if "=" in x:
            k, val = x.split("="); OPT[k] = int(val)
    if OPT["wsend"]:
        base = OPT["wsend"]*MB
        WS_I1, WS_KVT, WS_I2, WS_TT, WS_SYNC = base, base+4*MB, base+8*MB, base+12*MB, base+20*MB
    s = build(out)
    print(out, len(s))
```

```python
import sys
from asmgen import *
import gen
from gen import srd, MB, WS_I1, WS_KVT, WS_I2, WS_TT, KA

PHASE = [1]
def dstamp(a, k, inv=False):
    if not OPT.get("dmax"): return
    a.e("s_memrealtime s[96:97]", "s_waitcnt lgkmcnt(0)", f"v_writelane_b32 v242, s96, {k}")
SY_DG = 4096 + 131072
def dpublish(a, sT):
    if not OPT.get("dmax"): return
    L = newlbl("dp")
    a.e("s_cmp_lg_u32 s3, 0", f"s_cbranch_scc1 {L}", f"s_lshl_b32 s92, s{sT}, 5", f"s_add_u32 s92, s92, {SY_DG}",
        "v_lshlrev_b32 v240, 2, v1", "v_add_u32 v240, s92, v240", "s_mov_b64 exec, 0xff",
        f"buffer_store_dword v242, v240, s[{S_SYN}:{S_SYN+3}], 0 offen sc1", "s_mov_b64 exec, -1")
    a.label(L)
def dreduce(a):
    if not OPT.get("dmax"): return
    a.e(f"s_mov_b32 s92, s{P_DBG}", f"s_mov_b32 s93, s{P_DBG+1}", "s_mov_b32 s94, 256", "s_mov_b32 s95, 0x00020000")
    a.e("v_lshlrev_b32 v2, 5, v1", f"v_add_u32 v2, {SY_DG}, v2")
    for k in range(7):
        for i in range(4):
            a.e(f"s_mov_b32 s50, {2048*i + 4*k}", f"buffer_load_dword v{10+i}, v2, s[{S_SYN}:{S_SYN+3}], s50 offen sc1")
        a.e("s_waitcnt vmcnt(0)")
        if k == 0:
            a.e("v_min_u32 v10, v10, v11", "v_min_u32 v12, v12, v13", "v_min_u32 v10, v10, v12", "s_mov_b32 s51, -1")
            for l in range(64): a.e(f"v_readlane_b32 s48, v10, {l}", "s_min_u32 s51, s51, s48")
            a.e("s_mov_b32 s45, s51")
            continue
        for i in range(4):
            a.e(f"v_subrev_u32 v{10+i}, s45, v{10+i}", f"v_lshlrev_b32 v{10+i}, 8, v{10+i}", f"v_add_u32 v14, {64*i}, v1", f"v_or_b32 v{10+i}, v{10+i}, v14")
        a.e("v_max_u32 v10, v10, v11", "v_max_u32 v12, v12, v13", "v_max_u32 v10, v10, v12", "s_mov_b32 s51, 0")
        for l in range(64): a.e(f"v_readlane_b32 s48, v10, {l}", "s_max_u32 s51, s51, s48")
        a.e("s_lshr_b32 s48, s51, 8", "s_and_b32 s49, s51, 255", "v_mov_b32 v14, s48", "v_mov_b32 v15, s49", f"v_mov_b32 v16, {8*(k-1)}", "s_mov_b64 exec, 1",
            "buffer_store_dwordx2 v[14:15], v16, s[92:95], 0 offen", "s_mov_b64 exec, -1")
DMAP_A = {1: 0, 5: 1, 6: 2, 7: 3, 8: 4, 9: 5}
DMAP_B = {}
ROLE = ["B"]
def fstamp(a, i):
    if OPT.get("fine") != PHASE[0]: return
    a.e('s_memtime s[96:97]', 's_waitcnt lgkmcnt(0)', f'v_writelane_b32 v246, s96, {i}')
def stamp(a, i, real=False):
    if OPT.get("dmax"):
        m = DMAP_A if ROLE[0] == "A" else DMAP_B
        if i in m and i != 14: dstamp(a, m[i])
        return
    if not gen.PROF: return
    a.e('s_memrealtime s[96:97]' if real else 's_memtime s[96:97]', 's_waitcnt lgkmcnt(0)', f'v_writelane_b32 v247, s96, {i}')

WBYTES = 2048*513*2
LB_STRIDE = 12896
LDS_BYTES = 53248
SPIN_LIMIT = 400000
OPT = dict(prioA=0, prioB=0, sleep=0, nt=1, wsend=0, ntout=1, ntw=1, wlate=1, hlate=1, qA=1, fsa=6, fsb=6, shrink=0, loc=1, forceloc=-1, ldloc=1, bdelay=0, earlypub=1, wpos=1, optst=1, locflag=1, hearly=1, twoflag=1, pA1i=-1, pB1=0, ntscr=0, a3all=1, ntk=1, ntv=1, ntx=1, nth=1, hactdelay=0, b1all=1, bactwait=1, pA1a=-1, grp=1, yieldB=0, ylim=40, tlb=0, cpf=0, spec2=1, y0=0, yinit=1, ymid=0, swap=0, a1all=1, cearly=1, fullline=1, qlate=0, hfirst=0, pairx=0, gld=0, t0late=0, i2ld=0, outB=-1, b3w=0, wbl2=0, fast=0, latem=0, ilv=0, wpoll=0, ylate=0, pflip=0, hwait=0, bearly=0, wpoll2=0, hcopy=0)
def NTOB(): return NTO() if OPT['outB'] < 0 else {0: '', 1: ' nt', 2: ' sc1', 3: ' sc1 nt'}[OPT['outB']]
def GLD(): return {0: 'sc1', 1: 'nt', 2: ''}[OPT['gld']]
def NMEM(): return 32 if OPT['b1all'] else 48
def LDL(): return {0: ' sc1', 1: ' nt', 2: ' sc1 nt'}[OPT['ldloc']]
def FA(): return OPT['fsa']
def FB(): return OPT['fsb']
def NT(): return ' nt' if OPT['nt'] else ''
def NTO(): return {0: '', 1: ' nt', 2: ' sc1', 3: ' sc1 nt'}[OPT['ntout']]

P_X, P_WR, P_WI, P_Q, P_K, P_V, P_SHK, P_SSMK, P_SSMD, P_OUT, P_DBG, P_WS = 4, 6, 8, 10, 12, 14, 16, 18, 20, 22, 24, 26
S_DBG = 28
def eidx(r): return (r & 3) + 8*(r >> 2)

_lbl = [0]
def newlbl(p):
    _lbl[0] += 1
    return f"L_{p}_{_lbl[0]}"

WS_SYNC = 20*MB
S_SYN = 28
S_TGT = 101
SY_E, SY_A1, SY_A2, SY_B1, SY_B2 = 0, 4096, 4096+16384, 4096+32768, 4096+49152
sACT, sCBKT, sSUBT, sCU = 88, 89, 90, 91
sLOC, sXEXP = 79, 0
S_DBG = 12
def signal(a, s_off, vt, nafter=0, bloc=False):
    L = newlbl("sig")
    a.e(f"s_waitcnt vmcnt({nafter})", "s_barrier", "s_cmp_lg_u32 s3, 0", f"s_cbranch_scc1 {L}",
        f"v_mov_b32 v{vt}, s{s_off}", f"v_mov_b32 v{vt+1}, s{S_TGT}", "s_mov_b64 exec, 1")
    st = f"buffer_store_dword v{vt+1}, v{vt}, s[{S_SYN}:{S_SYN+3}], 0 offen"
    if bloc and OPT["locflag"]:
        dual_store(a, [st])
    else:
        a.e(st + " sc1")
    a.e("s_mov_b64 exec, -1")
    if OPT.get("flagwait"): a.e("s_waitcnt vmcnt(0)")
    a.label(L)

def wait_flags(a, vaddr, nload, vt, s_cnt, pre_barrier=None, solo=False, skip0=None):
    L = newlbl("poll"); Ls = newlbl("pdone"); Lr = newlbl("prest")
    if not solo: a.e("s_cmp_lg_u32 s3, 0", f"s_cbranch_scc1 {Ls}")
    a.e(f"s_mov_b32 s{s_cnt}, 0")
    a.label(L)
    offs = ["0", "s98", "s99", "s100"]
    for i in range(nload):
        a.e(f"buffer_load_dword v{vt+i}, v{vaddr}, s[{S_SYN}:{S_SYN+3}], {offs[i]} offen sc1")
    a.e(f"s_add_u32 s{s_cnt}, s{s_cnt}, 1", "s_waitcnt vmcnt(0)")
    for i in range(nload):
        a.e(f"v_xor_b32 v{vt+i}, s{S_TGT}, v{vt+i}")
    if skip0 is not None:
        a.e(f"v_readfirstlane_b32 s{skip0}, v{vt}", f"v_writelane_b32 v{vt}, 0, 0")
    for i in range(1, nload):
        a.e(f"v_or_b32 v{vt}, v{vt}, v{vt+i}")
    if OPT["shrink"]:
        a.e(f"v_cmp_ne_u32 vcc, 0, v{vt}", "s_and_b64 exec, exec, vcc", f"s_cbranch_execz {Lr}")
    else:
        a.e(f"v_cmp_ne_u32 vcc, 0, v{vt}", f"s_cbranch_vccz {Lr}")
    if OPT["sleep"]: a.e(f"s_sleep {OPT['sleep']}")
    a.e(f"s_cmp_lt_u32 s{s_cnt}, {SPIN_LIMIT}", f"s_cbranch_scc1 {L}")
    a.label(Lr)
    if OPT["shrink"]: a.e("s_mov_b64 exec, -1")
    a.label(Ls)
    if pre_barrier: a.e(pre_barrier)
    if not solo: a.e("s_barrier")

SY_ID = 4096 + 65536
SY_B1B = 4096 + 98304
SY_AS = 4096 + 114688
LOCW = 53244
def loc_publish(a):
    L = newlbl("pub")
    a.e("s_getreg_b32 s92, hwreg(HW_REG_XCC_ID)", "s_and_b32 s92, s92, 15", f"s_lshl_b32 s{sXEXP}, s{S_TGT}, 4", f"s_or_b32 s{sXEXP}, s{sXEXP}, s92")
    a.e("s_cmp_lg_u32 s3, 0", f"s_cbranch_scc1 {L}")
    if OPT["b1all"] and OPT["grp"]:
        a.e("s_and_b32 s92, s2, 15", "s_lshl_b32 s92, s92, 4", "s_lshr_b32 s93, s2, 4", "s_add_u32 s92, s92, s93", "s_lshl_b32 s92, s92, 6", f"s_add_u32 s92, s92, {SY_ID}")
    else:
        a.e("s_lshr_b32 s92, s2, 3", f"s_lshr_b32 s93, s{sCU}, 4", "s_add_u32 s93, s93, 32", "s_cmp_ge_u32 s2, 256", "s_cselect_b32 s92, s93, s92",
            "s_and_b32 s93, s2, 7", f"s_mul_i32 s93, s93, {NMEM()}", "s_add_u32 s92, s92, s93", "s_lshl_b32 s92, s92, 6", f"s_add_u32 s92, s92, {SY_ID}")
    a.e(
        "v_mov_b32 v10, s92", f"v_mov_b32 v11, s{sXEXP}", "s_mov_b64 exec, 1",
        f"buffer_store_dword v11, v10, s[{S_SYN}:{S_SYN+3}], 0 offen sc1", "s_mov_b64 exec, -1")
    a.label(L)

def loc_issue(a, vt):
    if OPT["b1all"] and OPT["grp"]:
        a.e(f"v_min_u32 v{vt}, 15, v1", "s_and_b32 s93, s2, 15", "s_lshl_b32 s93, s93, 4")
    else:
        a.e(f"v_min_u32 v{vt}, {NMEM()-1}, v1", "s_and_b32 s93, s2, 7", f"s_mul_i32 s93, s93, {NMEM()}")
    a.e(f"v_add_u32 v{vt}, s93, v{vt}",
        f"v_lshlrev_b32 v{vt}, 6, v{vt}", f"v_add_u32 v{vt}, {SY_ID}, v{vt}")
    L = newlbl("li")
    a.e("s_cmp_lg_u32 s3, 0", f"s_cbranch_scc1 {L}")
    a.e(f"buffer_load_dword v{vt+1}, v{vt}, s[{S_SYN}:{S_SYN+3}], 0 offen sc1")
    a.label(L)

def loc_resolve(a, vt, barrier=True, nafter=0):
    L, Ld, Ls = newlbl("locp"), newlbl("locd"), newlbl("locs")
    a.e("s_cmp_lg_u32 s3, 0", f"s_cbranch_scc1 {Ls}")
    if OPT["forceloc"] >= 0:
        a.e(f"s_waitcnt vmcnt({nafter})", f"s_mov_b32 s93, {OPT['forceloc']}")
    else:
        a.e("s_mov_b32 s92, 0", f"s_waitcnt vmcnt({nafter})")
        a.label(L)
        a.e(f"v_xor_b32 v{vt+2}, s{sXEXP}, v{vt+1}", f"v_lshrrev_b32 v{vt+3}, 4, v{vt+2}", "s_add_u32 s92, s92, 1",
            f"v_cmp_ne_u32 vcc, 0, v{vt+3}", f"s_cbranch_vccz {Ld}",
            f"s_cmp_ge_u32 s92, {SPIN_LIMIT}", f"s_cbranch_scc1 {Ld}",
            f"buffer_load_dword v{vt+1}, v{vt}, s[{S_SYN}:{S_SYN+3}], 0 offen sc1", "s_waitcnt vmcnt(0)", f"s_branch {L}")
        a.label(Ld)
        a.e(f"v_cmp_ne_u32 vcc, 0, v{vt+2}", "s_cmp_eq_u64 vcc, 0", "s_cselect_b32 s93, 1, 0")
    a.e(f"s_mov_b32 s{sLOC}, s93", f"v_mov_b32 v{vt+2}, {LOCW}", f"v_mov_b32 v{vt+3}, s93", f"ds_write_b32 v{vt+2}, v{vt+3}", "s_waitcnt lgkmcnt(0)")
    a.label(Ls)
    if barrier:
        a.e("s_barrier")
        loc_read(a, vt)

def loc_read(a, vt):
    a.e(f"v_mov_b32 v{vt+2}, {LOCW}", f"ds_read_b32 v{vt+3}, v{vt+2}", "s_waitcnt lgkmcnt(0)", f"v_readfirstlane_b32 s{sLOC}, v{vt+3}")

def dual_store(a, lines):
    L1, L2 = newlbl("stg"), newlbl("stl")
    a.e(f"s_cmp_eq_u32 s{sLOC}, 0", f"s_cbranch_scc1 {L1}")
    for l in lines: a.e(l)
    a.e(f"s_branch {L2}")
    a.label(L1)
    for l in lines: a.e(l + " sc1" if "buffer_store" in l else l)
    a.label(L2)

def a_state(a, sT, st, vt):
    L = newlbl("ast")
    a.e("s_cmp_lg_u32 s3, 0", f"s_cbranch_scc1 {L}", f"s_lshl_b32 s92, s{sT}, 6", f"s_add_u32 s92, s92, {SY_AS}",
        f"s_lshl_b32 s93, s{S_TGT}, 2", f"s_or_b32 s93, s93, {st}", f"v_mov_b32 v{vt}, s92", f"v_mov_b32 v{vt+1}, s93", "s_mov_b64 exec, 1",
        f"buffer_store_dword v{vt+1}, v{vt}, s[{S_SYN}:{S_SYN+3}], 0 offen", "s_mov_b64 exec, -1")
    a.label(L)

def y_ld(vt): return f"buffer_load_dword v{vt+1}, v{vt}, s[{S_SYN}:{S_SYN+3}], 0 offen " + ("sc1" if OPT.get("ysc", 1) else "nt")
def b_yield(a, vt):
    L, Ld = newlbl("yl"), newlbl("yd")
    a.e(f"s_lshl_b32 s92, s{sCU}, 6", f"s_add_u32 s92, s92, {SY_AS}", f"v_mov_b32 v{vt}, s92", f"s_lshl_b32 s75, s{S_TGT}, 2", "s_mov_b32 s92, 0")
    a.e(f"s_or_b32 s75, s75, {2 if OPT['yieldB'] == 2 else 1}")
    if OPT["yieldB"] == 3:
        a.e(y_ld(vt)); return
    a.label(L)
    a.e(y_ld(vt), "s_add_u32 s92, s92, 1", "s_waitcnt vmcnt(0)",
        f"v_readfirstlane_b32 s93, v{vt+1}", "s_cmp_lg_u32 s93, s75" if OPT["yieldB"] == 1 else "s_cmp_eq_u32 s93, s75", f"s_cbranch_scc1 {Ld}",
        f"s_cmp_lt_u32 s92, {OPT['ylim']}", f"s_cbranch_scc1 {L}")
    a.label(Ld)

def b_wait_state(a, vt, st, lim):
    L, Ld = newlbl("hw"), newlbl("hwd")
    a.e(f"s_and_b32 s92, s2, 255", "s_lshl_b32 s92, s92, 6", f"s_add_u32 s92, s92, {SY_AS}", f"v_mov_b32 v{vt}, s92", f"s_lshl_b32 s75, s{S_TGT}, 2", f"s_or_b32 s75, s75, {st}", "s_mov_b32 s92, 0")
    a.label(L)
    a.e(y_ld(vt), "s_add_u32 s92, s92, 1", "s_waitcnt vmcnt(0)", f"v_readfirstlane_b32 s93, v{vt+1}", "s_cmp_eq_u32 s93, s75", f"s_cbranch_scc1 {Ld}",
        f"s_cmp_lt_u32 s92, {lim}", f"s_cbranch_scc1 {L}")
    a.label(Ld)

def b_yield_step(a, vt, last):
    L, Ld = newlbl("ys"), newlbl("ysd")
    a.label(L)
    a.e("s_waitcnt vmcnt(0)", f"v_readfirstlane_b32 s93, v{vt+1}", "s_cmp_lg_u32 s93, s75", f"s_cbranch_scc1 {Ld}",
        f"s_cmp_ge_u32 s92, {OPT['ylim']}", f"s_cbranch_scc1 {Ld}", "s_add_u32 s92, s92, 1", y_ld(vt), f"s_branch {L}")
    a.label(Ld)
    if not last: a.e(y_ld(vt))

def wait_flags_mid(a, vaddr, vt, s_cnt, mid, nmid):
    L0, L, Ls, Lr = newlbl("pm0"), newlbl("pml"), newlbl("pms"), newlbl("pmr")
    ld = f"buffer_load_dword v{vt}, v{vaddr}, s[{S_SYN}:{S_SYN+3}], 0 offen sc1"
    a.e("s_cmp_lg_u32 s3, 0", f"s_cbranch_scc1 {L0}", ld)
    a.label(L0)
    mid()
    a.e("s_cmp_lg_u32 s3, 0", f"s_cbranch_scc1 {Ls}", f"s_mov_b32 s{s_cnt}, 0", f"s_waitcnt vmcnt({nmid})")
    a.label(L)
    a.e(f"v_xor_b32 v{vt}, s{S_TGT}, v{vt}", f"v_cmp_ne_u32 vcc, 0, v{vt}", f"s_cbranch_vccz {Ls}",
        f"s_add_u32 s{s_cnt}, s{s_cnt}, 1", f"s_cmp_ge_u32 s{s_cnt}, {SPIN_LIMIT}", f"s_cbranch_scc1 {Ls}", ld, "s_waitcnt vmcnt(0)", f"s_branch {L}")
    a.label(Ls)
    a.e("s_barrier")

def wait_two(a, va, vb, vt, s_cnt, skip0):
    L, Lr, Ln = newlbl("w2"), newlbl("w2r"), newlbl("w2n")
    a.e(f"s_mov_b32 s{s_cnt}, 0")
    a.label(L)
    a.e(f"buffer_load_dword v{vt}, v{va}, s[{S_SYN}:{S_SYN+3}], 0 offen sc1", f"buffer_load_dword v{vt+1}, v{vb}, s[{S_SYN}:{S_SYN+3}], 0 offen sc1",
        f"s_add_u32 s{s_cnt}, s{s_cnt}, 1", "s_waitcnt vmcnt(0)",
        f"v_xor_b32 v{vt}, s{S_TGT}, v{vt}", f"v_xor_b32 v{vt+1}, s{S_TGT}, v{vt+1}", f"v_or_b32 v{vt}, v{vt}, v{vt+1}")
    a.e("s_cmp_lg_u32 s3, 0", f"s_cbranch_scc1 {Ln}", f"v_readfirstlane_b32 s{skip0}, v{vt}", f"v_writelane_b32 v{vt}, 0, 0")
    a.label(Ln)
    a.e(f"v_cmp_ne_u32 vcc, 0, v{vt}", f"s_cbranch_vccz {Lr}", f"s_cmp_lt_u32 s{s_cnt}, {SPIN_LIMIT}", f"s_cbranch_scc1 {L}")
    a.label(Lr)

def fin_epoch(a):
    a.e("s_waitcnt lgkmcnt(0)", f"s_add_u32 s{S_TGT}, s{S_TGT}, 1")

def bump(a, s_off, vt):
    a.e(f"v_mov_b32 v{vt}, s{s_off}", f"v_mov_b32 v{vt+1}, s{S_TGT}", "s_mov_b64 exec, 1",
        f"buffer_store_dword v{vt+1}, v{vt}, s[{S_SYN}:{S_SYN+3}], 0 offen sc1", "s_mov_b64 exec, -1")

F_M, F_G, F_IN0, F_IN1, F_OUTOFF, F_WR, F_RD0, F_RD1, F_MM = 2, 3, 4, 5, 6, 7, 8, 9, 10
F_T = 11
F_IN, F16RE, F16IM, F_TWC, F_TWS, F_DRE, F_DIM, F_P, F_TMP, F32RE, F32IM = 16, 48, 52, 56, 88, 120, 136, 152, 168, 176, 192
SI_OFF, SO_OFF = 52, 68
SO_LIST = [68, 69, 70, 71, 76, 77, 78, 79]

def fft512_addr(a, s_sa, s_cb):
    a.e(f"v_and_b32 v{F_M}, 15, v1", f"v_lshrrev_b32 v{F_G}, 4, v1")
    a.e(f"v_lshlrev_b32 v{F_IN0}, 20, v{F_G}", f"v_lshl_add_u32 v{F_IN0}, v{F_M}, 2, v{F_IN0}", f"v_add_u32 v{F_IN1}, {4*8192}, v{F_IN0}")
    a.e(f"s_lshl_b32 s48, s{s_sa}, 11", f"s_lshl_b32 s49, s{s_cb}, 6", "s_add_u32 s48, s48, s49",
        "s_lshl_b32 s50, s3, 16", "s_add_u32 s48, s48, s50")
    for aa in range(4):
        for i in range(4):
            a.e(f"s_add_u32 s{SI_OFF+4*aa+i}, s48, {(32*i+aa)*8192}")

def fft512_loads(a, SIN, mod=""):
    for hh in range(2):
        for aa in range(4):
            for i in range(4):
                a.e(f"buffer_load_dword v{F_IN+16*hh+4*aa+i}, v{F_IN0+hh}, s[{SIN}:{SIN+3}], s{SI_OFF+4*aa+i} offen {mod}")

def fft512_addr2(a, s_sa, s_cb, orow, ostr):
    a.e(f"s_mov_b32 s51, {16*ostr}", f"v_mul_lo_u32 v{F_OUTOFF}, v{F_M}, s51", f"v_lshl_add_u32 v{F_OUTOFF}, v{F_G}, 4, v{F_OUTOFF}")
    a.e(f"s_mul_i32 s48, s{s_sa}, {orow}", f"s_lshl_b32 s49, s{s_cb}, 6", "s_add_u32 s48, s48, s49",
        f"s_mul_i32 s50, s3, {4*ostr}", "s_add_u32 s48, s48, s50")
    for b in range(4):
        for h in range(2):
            a.e(f"s_add_u32 s{SO_LIST[2*b+h]}, s48, {(b+256*h)*ostr}")
    a.e(f"v_and_b32 v{F_T}, 7, v{F_M}", "s_lshl_b32 s50, s3, 1", f"v_xor_b32 v{F_T+1}, s50, v{F_T}",
        f"v_lshlrev_b32 v{F_WR}, 4, v{F_T+1}", f"v_lshl_add_u32 v{F_WR}, v{F_M}, 7, v{F_WR}",
        f"v_lshl_add_u32 v{F_WR}, v{F_G}, 13, v{F_WR}")
    a.e(f"v_xor_b32 v{F_T+1}, v{F_G}, v{F_T}", f"v_lshlrev_b32 v{F_RD0}, 4, v{F_T+1}",
        f"v_lshl_add_u32 v{F_RD0}, v{F_M}, 7, v{F_RD0}", "s_lshl_b32 s50, s3, 13",
        f"v_add_u32 v{F_RD0}, s50, v{F_RD0}", f"v_xor_b32 v{F_RD1}, 64, v{F_RD0}")

def fft512_consts(a):
    T, TMP = F_T, F_TMP
    XS, XB = T, T+1
    a.e(f"v_cvt_f32_u32 v{XS}, v{F_M}", f"v_mul_f32 v{XS}, {f32hex(1/32)}, v{XS}",
        f"v_cvt_f32_u32 v{T+2}, v{F_G}", f"v_mul_f32 v{T+2}, 4.0, v{T+2}",
        f"v_mul_f32 v{XB}, v{T+2}, v{XS}")
    a.e(f"v_and_b32 v{F_MM}, 1, v{F_M}", f"v_mul_u32_u24 v{F_MM}, 0x8000, v{F_MM}",
        f"v_lshl_or_b32 v{F_MM}, v{F_MM}, 16, v{F_MM}", "s_mov_b32 s50, 0x80008000")
    for i in range(4):
        x = TMP; cs = TMP+1; sn = TMP+2; x2 = TMP+3; cs2 = TMP+4; sn2 = TMP+5
        a.e(f"v_fmamk_f32 v{x}, v{XS}, {f32hex(float(i))}, v{XB}" if i else f"v_mov_b32 v{x}, v{XB}")
        a.e(f"v_add_f32 v{x2}, v{x}, v{x}")
        a.e(f"v_cos_f32 v{cs}, v{x}", f"v_sin_f32 v{sn}, v{x}", f"v_cos_f32 v{cs2}, v{x2}", f"v_sin_f32 v{sn2}, v{x2}")
        a.e(f"v_cvt_pk_bf16_f32 v{F32RE+i}, v{cs}, v{sn}", f"v_cvt_pk_bf16_f32 v{F32IM+i}, -v{sn}, v{cs}",
            f"v_cvt_pk_bf16_f32 v{F16RE+i}, v{cs2}, v{sn2}", f"v_cvt_pk_bf16_f32 v{F16IM+i}, -v{sn2}, v{cs2}")
    for base in (F32RE, F32IM):
        for i in range(4):
            a.e(f"v_xor_b32 v{base+4+i}, v{F_MM}, v{base+i}")
        for t in range(2):
            for i in range(4):
                src = base+4*t+i
                if i & 1: a.e(f"v_xor_b32 v{base+8+4*t+i}, s50, v{src}")
                else:     a.e(f"v_mov_b32 v{base+8+4*t+i}, v{src}")
    a.e(f"v_cvt_f32_u32 v{TMP}, s3", f"v_mul_f32 v{TMP}, {f32hex(8/512)}, v{TMP}")
    for r in range(4):
        a.e(f"v_add_f32 v{TMP+4+r}, {f32hex(float(r)) if r else 0}, v{T+2}")
    for aa in range(8):
        a.e(f"v_add_f32 v{TMP+1}, {f32hex(aa/512) if aa else 0}, v{TMP}")
        for r in range(4):
            a.e(f"v_mul_f32 v{T+3+(r&1)}, v{TMP+1}, v{TMP+4+r}",
                f"v_cos_f32 v{F_TWC+4*aa+r}, v{T+3+(r&1)}", f"v_sin_f32 v{F_TWS+4*aa+r}, v{T+3+(r&1)}")

def fft512_compute(a, SOUT, neg_im, nafter, stmod, st0, fs=0, hook=None):
    TMP = F_TMP
    stamp(a, st0)
    for hh in range(2):
        fstamp(a, fs+5*hh)
        for aa in range(4):
            a.e(f"s_waitcnt vmcnt({28-16*hh-4*aa+nafter})")
            a.e(f"v_mfma_f32_16x16x32_bf16 {v(F_DRE+4*aa,4)}, {v(F16RE,4)}, {v(F_IN+16*hh+4*aa,4)}, 0",
                f"v_mfma_f32_16x16x32_bf16 {v(F_DIM+4*aa,4)}, {v(F16IM,4)}, {v(F_IN+16*hh+4*aa,4)}, 0")
        if hh == 1:
            stamp(a, st0+1)
            if hook: hook()
        fstamp(a, fs+5*hh+1)
        for aa in range(4):
            for p in range(2):
                re, im = F_DRE+4*aa+2*p, F_DIM+4*aa+2*p
                tc, ts = F_TWC+16*hh+4*aa+2*p, F_TWS+16*hh+4*aa+2*p
                t0, t1 = TMP+4*p, TMP+4*p+2
                a.e(f"v_pk_mul_f32 {v(t0,2)}, {v(re,2)}, {v(tc,2)}",
                    f"v_pk_mul_f32 {v(t1,2)}, {v(im,2)}, {v(tc,2)}",
                    f"v_pk_fma_f32 {v(t0,2)}, {v(im,2)}, {v(ts,2)}, {v(t0,2)}",
                    f"v_pk_fma_f32 {v(t1,2)}, {v(re,2)}, {v(ts,2)}, {v(t1,2)} neg_lo:[1,0,0] neg_hi:[1,0,0]")
                for e in range(2):
                    r = 2*p+e
                    a.e(f"v_cvt_pk_bf16_f32 v{F_P+4*r+aa}, v{t0+e}, v{t1+e}")
        fstamp(a, fs+5*hh+2)
        if hh == 1: a.e(f"v_xor_b32 v{F_WR}, 16, v{F_WR}")
        for r in range(4):
            a.e(f"ds_write_b128 v{F_WR}, {v(F_P+4*r,4)} offset:{r*2048}")
    a.e("s_waitcnt lgkmcnt(0)")
    fstamp(a, fs+8)
    a.e("s_barrier")
    fstamp(a, fs+9)
    for b in range(4):
        a.e(f"ds_read_b128 {v(F_IN+8*b,4)}, v{F_RD0} offset:{b*2048}",
            f"ds_read_b128 {v(F_IN+8*b+4,4)}, v{F_RD1} offset:{b*2048}")
    sg = "-" if neg_im else ""
    def mf(bb):
        D0 = [F_DRE, F_DIM] if bb == 0 else [F_TWC, F_TWC+16]
        for bl in range(2):
            b = 2*bb+bl
            a.e(f"s_waitcnt lgkmcnt({6-2*b})")
            for t in range(2):
                for h in range(2):
                    for (D_, F_) in ((D0[0], F32RE), (D0[1], F32IM)):
                        d = D_+8*bl+4*h
                        c = "0" if t == 0 else v(d, 4)
                        a.e(f"v_mfma_f32_16x16x32_bf16 {v(d,4)}, {v(F_IN+8*b+4*t,4)}, {v(F_+8*h+4*t,4)}, {c}")
    def st(bb):
        D0 = [F_DRE, F_DIM] if bb == 0 else [F_TWC, F_TWC+16]
        PB = F_P if bb == 0 else F_TWS
        out = []
        for bl in range(2):
            b = 2*bb+bl
            for h in range(2):
                idx = 8*bl+4*h
                for r in range(4):
                    out.append(f"v_cvt_pk_bf16_f32 v{PB+idx+r}, v{D0[0]+idx+r}, {sg}v{D0[1]+idx+r}")
                out.append(f"buffer_store_dwordx4 {v(PB+idx,4)}, v{F_OUTOFF}, s[{SOUT}:{SOUT+3}], s{SO_LIST[2*b+h]} offen {stmod}")
        return out
    mf(0)
    n0 = len(a.lines)
    mf(1)
    m1 = a.lines[n0:]; del a.lines[n0:]
    s0 = st(0)
    k = 0
    seen = 0
    for l in m1:
        a.lines.append(l)
        if "v_mfma" in l:
            seen += 1
            if seen > 4:
                for _ in range(2):
                    if k < len(s0): a.e(s0[k]); k += 1
    while k < len(s0): a.e(s0[k]); k += 1
    fstamp(a, fs+10)
    for l in st(1): a.e(l)

def f8_addr(a, s_sa, s_cb, orow, ostr):
    a.e(f"v_and_b32 v{F_M}, 15, v1", f"v_lshrrev_b32 v{F_G}, 4, v1")
    a.e(f"v_and_b32 v{F_T}, 7, v1", f"v_bfe_u32 v{F_T+1}, v1, 3, 1",
        f"v_lshlrev_b32 v{F_IN0}, 20, v{F_G}", f"v_lshl_add_u32 v{F_IN0}, v{F_T+1}, 15, v{F_IN0}",
        f"v_lshl_add_u32 v{F_IN0}, v{F_T}, 2, v{F_IN0}")
    a.e(f"s_lshl_b32 s48, s{s_sa}, 11", f"s_lshl_b32 s49, s{s_cb}, 5", "s_add_u32 s48, s48, s49",
        "s_lshl_b32 s50, s3, 16", "s_add_u32 s48, s48, s50")
    for aa in range(4):
        for i in range(4):
            a.e(f"s_add_u32 s{SI_OFF+4*aa+i}, s48, {(32*i+aa)*8192}")
    a.e(f"v_lshrrev_b32 v{F_T+2}, 1, v{F_G}", f"v_lshl_add_u32 v{F_T+2}, v{F_M}, 4, v{F_T+2}",
        f"s_mov_b32 s51, {ostr}", f"v_mul_lo_u32 v{F_OUTOFF}, v{F_T+2}, s51",
        f"v_and_b32 v{F_T+2}, 1, v{F_G}", f"v_lshl_add_u32 v{F_OUTOFF}, v{F_T+2}, 4, v{F_OUTOFF}")
    a.e(f"s_mul_i32 s48, s{s_sa}, {orow}", f"s_lshl_b32 s49, s{s_cb}, 5", "s_add_u32 s48, s48, s49",
        f"s_mul_i32 s50, s3, {4*ostr}", "s_add_u32 s48, s48, s50")
    for b in range(2):
        for h in range(2):
            a.e(f"s_add_u32 s{SO_LIST[2*b+h]}, s48, {(2*b+256*h)*ostr}")
    a.e("s_lshl_b32 s50, s3, 1", f"v_add_u32 v{F_T+2}, s50, v{F_T+1}", f"v_xor_b32 v{F_T+2}, v{F_T+2}, v{F_T}",
        f"v_lshlrev_b32 v{F_WR}, 4, v{F_T+2}", f"v_lshl_add_u32 v{F_WR}, v{F_T}, 7, v{F_WR}", f"v_lshl_add_u32 v{F_WR}, v{F_G}, 12, v{F_WR}")
    a.e(f"v_xor_b32 v{F_T+2}, v{F_G}, v{F_T}", f"v_lshlrev_b32 v{F_RD0}, 4, v{F_T+2}",
        f"v_lshl_add_u32 v{F_RD0}, v{F_T}, 7, v{F_RD0}", f"v_lshl_add_u32 v{F_RD0}, v{F_T+1}, 10, v{F_RD0}",
        "s_lshl_b32 s50, s3, 12", f"v_add_u32 v{F_RD0}, s50, v{F_RD0}", f"v_xor_b32 v{F_RD1}, 64, v{F_RD0}")

def f8_consts(a):
    T, TMP = F_T, F_TMP
    XS, XB = T, T+1
    a.e(f"v_cvt_f32_u32 v{XS}, v{F_M}", f"v_mul_f32 v{XS}, {f32hex(1/32)}, v{XS}",
        f"v_cvt_f32_u32 v{T+2}, v{F_G}", f"v_mul_f32 v{T+2}, 4.0, v{T+2}",
        f"v_mul_f32 v{XB}, v{T+2}, v{XS}")
    a.e(f"v_and_b32 v{F_MM}, 1, v{F_M}", f"v_mul_u32_u24 v{F_MM}, 0x8000, v{F_MM}",
        f"v_lshl_or_b32 v{F_MM}, v{F_MM}, 16, v{F_MM}", "s_mov_b32 s50, 0x80008000")
    for i in range(4):
        x = TMP; cs = TMP+1; sn = TMP+2; x2 = TMP+3; cs2 = TMP+4; sn2 = TMP+5
        a.e(f"v_fmamk_f32 v{x}, v{XS}, {f32hex(float(i))}, v{XB}" if i else f"v_mov_b32 v{x}, v{XB}")
        a.e(f"v_add_f32 v{x2}, v{x}, v{x}")
        a.e(f"v_cos_f32 v{cs}, v{x}", f"v_sin_f32 v{sn}, v{x}", f"v_cos_f32 v{cs2}, v{x2}", f"v_sin_f32 v{sn2}, v{x2}")
        a.e(f"v_cvt_pk_bf16_f32 v{F32RE+i}, v{cs}, v{sn}", f"v_cvt_pk_bf16_f32 v{F32IM+i}, -v{sn}, v{cs}",
            f"v_cvt_pk_bf16_f32 v{F16RE+i}, v{cs2}, v{sn2}", f"v_cvt_pk_bf16_f32 v{F16IM+i}, -v{sn2}, v{cs2}")
    for base in (F32RE, F32IM):
        for i in range(4):
            a.e(f"v_xor_b32 v{base+4+i}, v{F_MM}, v{base+i}")
        for t in range(2):
            for i in range(4):
                src = base+4*t+i
                if i & 1: a.e(f"v_xor_b32 v{base+8+4*t+i}, s50, v{src}")
                else:     a.e(f"v_mov_b32 v{base+8+4*t+i}, v{src}")
    a.e(f"v_bfe_u32 v{TMP}, v1, 3, 1", "s_lshl_b32 s50, s3, 1", f"v_add_u32 v{TMP}, s50, v{TMP}",
        f"v_cvt_f32_u32 v{TMP}, v{TMP}", f"v_mul_f32 v{TMP}, {f32hex(4/512)}, v{TMP}")
    for r in range(4):
        a.e(f"v_add_f32 v{TMP+4+r}, {f32hex(float(r)) if r else 0}, v{T+2}")
    for aa in range(4):
        a.e(f"v_add_f32 v{TMP+1}, {f32hex(aa/512) if aa else 0}, v{TMP}")
        for r in range(4):
            a.e(f"v_mul_f32 v{T+3+(r&1)}, v{TMP+1}, v{TMP+4+r}",
                f"v_cos_f32 v{F_TWC+4*aa+r}, v{T+3+(r&1)}", f"v_sin_f32 v{F_TWS+4*aa+r}, v{T+3+(r&1)}")

def f8_run(a, SIN, SOUT, ldmod, stmod, sT0=None):
    TMP = F_TMP
    ld = lambda aa, i: f"buffer_load_dword v{F_IN+4*aa+i}, v{F_IN0}, s[{SIN}:{SIN+3}], s{SI_OFF+4*aa+i} offen {ldmod}"
    order = [0, 1, 2, 3]
    if sT0 is None:
        for aa in range(4):
            for i in range(4): a.e(ld(aa, i))
    else:
        order = [1, 2, 3, 0]
        for aa in (1, 2, 3):
            for i in range(4): a.e(ld(aa, i))
        for i in (1, 2, 3): a.e(ld(0, i))
        L, Ld = newlbl("t0p"), newlbl("t0d")
        a.e("s_cmp_lg_u32 s3, 0", f"s_cbranch_scc1 {Ld}", f"s_cmp_eq_u32 s{sT0}, 0", f"s_cbranch_scc1 {Ld}",
            f"v_mov_b32 v{TMP}, {SY_A2}", "s_mov_b32 s48, 0")
        a.label(L)
        a.e(f"buffer_load_dword v{TMP+1}, v{TMP}, s[{S_SYN}:{S_SYN+3}], 0 offen sc1", "s_add_u32 s48, s48, 1", "s_waitcnt vmcnt(0)",
            f"v_readfirstlane_b32 s49, v{TMP+1}", f"s_cmp_eq_u32 s49, s{S_TGT}", f"s_cbranch_scc1 {Ld}",
            f"s_cmp_lt_u32 s48, {SPIN_LIMIT}", f"s_cbranch_scc1 {L}")
        a.label(Ld)
        a.e(ld(0, 0))
    fstamp(a, 3)
    for n_, aa in enumerate(order):
        a.e(f"s_waitcnt vmcnt({12-4*n_})")
        a.e(f"v_mfma_f32_16x16x32_bf16 {v(F_DRE+4*aa,4)}, {v(F16RE,4)}, {v(F_IN+4*aa,4)}, 0",
            f"v_mfma_f32_16x16x32_bf16 {v(F_DIM+4*aa,4)}, {v(F16IM,4)}, {v(F_IN+4*aa,4)}, 0")
    fstamp(a, 1)
    for aa in range(4):
        for p in range(2):
            re, im = F_DRE+4*aa+2*p, F_DIM+4*aa+2*p
            tc, ts = F_TWC+4*aa+2*p, F_TWS+4*aa+2*p
            t0, t1 = TMP+4*p, TMP+4*p+2
            a.e(f"v_pk_mul_f32 {v(t0,2)}, {v(re,2)}, {v(tc,2)}",
                f"v_pk_mul_f32 {v(t1,2)}, {v(im,2)}, {v(tc,2)}",
                f"v_pk_fma_f32 {v(t0,2)}, {v(im,2)}, {v(ts,2)}, {v(t0,2)}",
                f"v_pk_fma_f32 {v(t1,2)}, {v(re,2)}, {v(ts,2)}, {v(t1,2)} neg_lo:[1,0,0] neg_hi:[1,0,0]")
            for e in range(2):
                r = 2*p+e
                a.e(f"v_cvt_pk_bf16_f32 v{F_P+4*r+aa}, v{t0+e}, v{t1+e}")
    for r in range(4):
        a.e(f"ds_write_b128 v{F_WR}, {v(F_P+4*r,4)} offset:{r*1024}")
    a.e("s_waitcnt lgkmcnt(0)")
    fstamp(a, 8)
    a.e("s_barrier")
    fstamp(a, 9)
    for b in range(2):
        a.e(f"ds_read_b128 {v(F_IN+8*b,4)}, v{F_RD0} offset:{b*2048}",
            f"ds_read_b128 {v(F_IN+8*b+4,4)}, v{F_RD1} offset:{b*2048}")
    for b in range(2):
        a.e(f"s_waitcnt lgkmcnt({2-2*b})")
        for t in range(2):
            for h in range(2):
                for (D_, F_) in ((F_DRE, F32RE), (F_DIM, F32IM)):
                    d = D_+8*b+4*h
                    c = "0" if t == 0 else v(d, 4)
                    a.e(f"v_mfma_f32_16x16x32_bf16 {v(d,4)}, {v(F_IN+8*b+4*t,4)}, {v(F_+8*h+4*t,4)}, {c}")
    fstamp(a, 10)
    for b in range(2):
        for h in range(2):
            idx = 8*b+4*h
            for r in range(4):
                a.e(f"v_cvt_pk_bf16_f32 v{F_P+idx+r}, v{F_DRE+idx+r}, -v{F_DIM+idx+r}")
            a.e(f"buffer_store_dwordx4 {v(F_P+idx,4)}, v{F_OUTOFF}, s[{SOUT}:{SOUT+3}], s{SO_LIST[2*b+h]} offen {stmod}")

def f256_loads(a, SX, s_sa, s_cb, mod):
    a.e(f"v_and_b32 v{F_M}, 15, v1", f"v_lshrrev_b32 v{F_G}, 4, v1",
        f"v_lshlrev_b32 v{F_IN0}, 20, v{F_G}", f"v_lshl_add_u32 v{F_IN0}, v{F_M}, 2, v{F_IN0}")
    a.e(f"s_lshl_b32 s48, s{s_sa}, 11", f"s_lshl_b32 s49, s{s_cb}, 6", "s_add_u32 s48, s48, s49",
        "s_lshl_b32 s50, s3, 16", "s_add_u32 s50, s50, s48")
    for aa in range(4):
        for i in range(4):
            a.e(f"s_add_u32 s{SI_OFF+4*aa+i}, s50, {(16*i+aa)*16384}",
                f"buffer_load_dword v{F_IN+4*aa+i}, v{F_IN0}, s[{SX}:{SX+3}], s{SI_OFF+4*aa+i} offen {mod}")

def f256_setup(a):
    T, TMP = F_T, F_TMP
    a.e(f"v_lshlrev_b32 v{F_OUTOFF}, 18, v{F_M}", f"v_lshl_add_u32 v{F_OUTOFF}, v{F_G}, 4, v{F_OUTOFF}",
        "s_lshl_b32 s50, s3, 16", "s_add_u32 s50, s50, s48")
    for b in range(4): a.e(f"s_add_u32 s{SO_LIST[b]}, s50, {b*16384}")
    a.e(f"v_bfe_u32 v{T}, v{F_M}, 1, 2", f"v_xor_b32 v{T+1}, s3, v{T}", f"v_lshlrev_b32 v{F_WR}, 4, v{T+1}",
        f"v_lshl_add_u32 v{F_WR}, v{F_M}, 6, v{F_WR}", f"v_lshl_add_u32 v{F_WR}, v{F_G}, 12, v{F_WR}",
        f"v_xor_b32 v{T+1}, v{F_G}, v{T}", f"v_lshlrev_b32 v{F_RD0}, 4, v{T+1}", f"v_lshl_add_u32 v{F_RD0}, v{F_M}, 6, v{F_RD0}",
        "s_lshl_b32 s50, s3, 12", f"v_add_u32 v{F_RD0}, s50, v{F_RD0}")
    XS, XB = T, T+1
    a.e(f"v_cvt_f32_u32 v{XS}, v{F_M}", f"v_mul_f32 v{XS}, {f32hex(1/16)}, v{XS}",
        f"v_cvt_f32_u32 v{T+2}, v{F_G}", f"v_mul_f32 v{T+2}, 4.0, v{T+2}", f"v_mul_f32 v{XB}, v{T+2}, v{XS}")
    for i in range(4):
        x = TMP+3*(i & 1)
        a.e(f"v_fmamk_f32 v{x}, v{XS}, {f32hex(float(i))}, v{XB}" if i else f"v_mov_b32 v{x}, v{XB}")
        a.e(f"v_cos_f32 v{x+1}, v{x}", f"v_sin_f32 v{x+2}, v{x}")
        a.e(f"v_cvt_pk_bf16_f32 v{F16RE+i}, v{x+1}, v{x+2}", f"v_cvt_pk_bf16_f32 v{F16IM+i}, -v{x+2}, v{x+1}")
    a.e(f"v_cvt_f32_u32 v{TMP}, s3", f"v_mul_f32 v{TMP}, {f32hex(4/256)}, v{TMP}")
    for r in range(4): a.e(f"v_add_f32 v{TMP+4+r}, {f32hex(float(r)) if r else 0}, v{T+2}")
    for aa in range(4):
        a.e(f"v_add_f32 v{TMP+1}, {f32hex(aa/256) if aa else 0}, v{TMP}")
        for r in range(4):
            a.e(f"v_mul_f32 v{T+3+(r&1)}, v{TMP+1}, v{TMP+4+r}",
                f"v_cos_f32 v{F_TWC+4*aa+r}, v{T+3+(r&1)}", f"v_sin_f32 v{F_TWS+4*aa+r}, v{T+3+(r&1)}")

def f256_run(a, SOUT, nafter):
    TMP = F_TMP
    stamp(a, 2)
    for aa in range(4):
        a.e(f"s_waitcnt vmcnt({12-4*aa+nafter})")
        a.e(f"v_mfma_f32_16x16x32_bf16 {v(F_DRE+4*aa,4)}, {v(F16RE,4)}, {v(F_IN+4*aa,4)}, 0",
            f"v_mfma_f32_16x16x32_bf16 {v(F_DIM+4*aa,4)}, {v(F16IM,4)}, {v(F_IN+4*aa,4)}, 0")
    if OPT["pflip"] & 2: a.e(f"s_setprio {OPT['prioA']}")
    stamp(a, 3)
    fstamp(a, 1)
    for aa in range(4):
        for p in range(2):
            re, im = F_DRE+4*aa+2*p, F_DIM+4*aa+2*p
            tc, ts = F_TWC+4*aa+2*p, F_TWS+4*aa+2*p
            t0, t1 = TMP+4*p, TMP+4*p+2
            a.e(f"v_pk_mul_f32 {v(t0,2)}, {v(re,2)}, {v(tc,2)}",
                f"v_pk_mul_f32 {v(t1,2)}, {v(im,2)}, {v(tc,2)}",
                f"v_pk_fma_f32 {v(t0,2)}, {v(im,2)}, {v(ts,2)}, {v(t0,2)}",
                f"v_pk_fma_f32 {v(t1,2)}, {v(re,2)}, {v(ts,2)}, {v(t1,2)} neg_lo:[1,0,0] neg_hi:[1,0,0]")
            for e in range(2):
                r = 2*p+e
                a.e(f"v_cvt_pk_bf16_f32 v{F_P+4*r+aa}, v{t0+e}, v{t1+e}")
    for r in range(4):
        a.e(f"ds_write_b128 v{F_WR}, {v(F_P+4*r,4)} offset:{r*1024}")
    a.e("s_waitcnt lgkmcnt(0)")
    fstamp(a, 8)
    a.e("s_barrier")
    fstamp(a, 9)
    for b in range(4):
        a.e(f"ds_read_b128 {v(F_IN+4*b,4)}, v{F_RD0} offset:{b*1024}")
    for b in range(4):
        a.e(f"s_waitcnt lgkmcnt({3-b})")
        a.e(f"v_mfma_f32_16x16x32_bf16 {v(F_DRE+4*b,4)}, {v(F_IN+4*b,4)}, {v(F16RE,4)}, 0",
            f"v_mfma_f32_16x16x32_bf16 {v(F_DIM+4*b,4)}, {v(F_IN+4*b,4)}, {v(F16IM,4)}, 0")
    fstamp(a, 10)
    for b in range(4):
        for r in range(4):
            a.e(f"v_cvt_pk_bf16_f32 v{F_P+4*b+r}, v{F_DRE+4*b+r}, v{F_DIM+4*b+r}")
        a.e(f"buffer_store_dwordx4 {v(F_P+4*b,4)}, v{F_OUTOFF}, s[{SOUT}:{SOUT+3}], s{SO_LIST[b]} offen sc1")

IDX, G_, VG, VGW, VRR, VHR, VST, VW = 2, 3, 6, 7, 8, 12, 13, 14
CRE, CIM, TWC, TWS, WR, WI, ARE, AIM, DF, GA, HRE, HIM, GB, TMP = 16, 32, 48, 64, 80, 96, 112, 128, 144, 160, 164, 168, 172, 188
W2R, W2I, SP, PF, PF2 = 204, 220, 236, 248, 252
GA2 = 204
LW = 32768; LSC = 16384; LW2 = 49152

def w_dma(a, SWR, SWI, s_rowoff, s_mirroff, s_ldsbase, vlane16):
    a.e(f"s_mov_b32 m0, s{s_ldsbase}", f"buffer_load_dwordx4 v{vlane16}, s[{SWR}:{SWR+3}], s{s_rowoff} offen lds" + NT())
    a.e(f"s_add_u32 s93, s{s_ldsbase}, 1024", "s_mov_b32 m0, s93", f"buffer_load_dwordx4 v{vlane16}, s[{SWI}:{SWI+3}], s{s_rowoff} offen lds" + NT())
    a.e(f"s_add_u32 s92, s{s_mirroff}, 2")
    a.e(f"s_add_u32 s93, s{s_ldsbase}, 2048", "s_mov_b32 m0, s93", f"buffer_load_dwordx4 v{vlane16}, s[{SWR}:{SWR+3}], s92 offen lds" + NT())
    a.e(f"s_add_u32 s93, s{s_ldsbase}, 3072", "s_mov_b32 m0, s93", f"buffer_load_dwordx4 v{vlane16}, s[{SWI}:{SWI+3}], s92 offen lds" + NT())

def pf_loads(a, SWR, SWI, s_rowoff, s_mirroff, dst, vt):
    a.e(f"v_mov_b32 v{vt}, s{s_mirroff}", f"v_mov_b32 v{vt+1}, s{s_rowoff}", f"v_add_u32 v{vt+1}, 1024, v{vt+1}")
    a.e(f"buffer_load_short_d16_hi v{dst}, v{vt}, s[{SWR}:{SWR+3}], 0 offen",
        f"buffer_load_short_d16_hi v{dst+1}, v{vt}, s[{SWI}:{SWI+3}], 0 offen",
        f"buffer_load_short_d16_hi v{dst+2}, v{vt+1}, s[{SWR}:{SWR+3}], 0 offen",
        f"buffer_load_short_d16_hi v{dst+3}, v{vt+1}, s[{SWI}:{SWI+3}], 0 offen")

def w_lds_reads(a, vlo, vhi, dr, di):
    for (dst, o) in ((dr, 0), (di, 1024)):
        for r in range(16):
            e = eidx(r)
            if r < 8: a.e(f"ds_read_u16_d16_hi v{dst+r}, v{vlo} offset:{o+64*e}")
            else:     a.e(f"ds_read_u16_d16_hi v{dst+r}, v{vhi} offset:{o+64*(27-e)}")

def fix_w(a, dr, di, pf):
    a.e("v_cmp_eq_u32 vcc, 0, v1")
    for (r, o) in ((0, 0), (8, 2)):
        a.e(f"v_add_f32 v{TMP}, v{dr+r}, v{pf+o}", f"v_mul_f32 v{TMP}, 0.5, v{TMP}",
            f"v_sub_f32 v{TMP+1}, v{di+r}, v{pf+o+1}", f"v_mul_f32 v{TMP+1}, 0.5, v{TMP+1}",
            f"v_cndmask_b32 v{dr+r}, v{dr+r}, v{TMP}, vcc", f"v_cndmask_b32 v{di+r}, v{di+r}, v{TMP+1}, vcc")

def fft1024(a, mid=None):
    for t in range(4):
        c0 = "0" if t == 0 else v(ARE, 16); c1 = "0" if t == 0 else v(AIM, 16)
        a.e(f"v_mfma_f32_32x32x16_bf16 {v(ARE,16)}, {v(DF+4*t,4)}, {v(CRE+4*t,4)}, {c0}",
            f"v_mfma_f32_32x32x16_bf16 {v(AIM,16)}, {v(DF+4*t,4)}, {v(CIM+4*t,4)}, {c1}")
    for p in range(8):
        re, im, tc, ts = ARE+2*p, AIM+2*p, TWC+2*p, TWS+2*p
        t0 = TMP+4*(p & 1); t1 = t0+2
        a.e(f"v_pk_mul_f32 {v(t0,2)}, {v(re,2)}, {v(tc,2)}",
            f"v_pk_mul_f32 {v(t1,2)}, {v(im,2)}, {v(tc,2)}",
            f"v_pk_fma_f32 {v(t0,2)}, {v(im,2)}, {v(ts,2)}, {v(t0,2)}",
            f"v_pk_fma_f32 {v(t1,2)}, {v(re,2)}, {v(ts,2)}, {v(t1,2)} neg_lo:[1,0,0] neg_hi:[1,0,0]")
        for e in range(2):
            a.e(f"v_cvt_pk_bf16_f32 v{DF+2*p+e}, v{t0+e}, v{t1+e}")
    for t in range(4):
        if mid and t == 1: mid()
        c0 = "0" if t == 0 else v(ARE, 16); c1 = "0" if t == 0 else v(AIM, 16)
        a.e(f"v_mfma_f32_32x32x16_bf16 {v(ARE,16)}, {v(CRE+4*t,4)}, {v(DF+4*t,4)}, {c0}",
            f"v_mfma_f32_32x32x16_bf16 {v(AIM,16)}, {v(CIM+4*t,4)}, {v(DF+4*t,4)}, {c1}")

ARE2, AIM2 = 204, 220
def row_ilv(a):
    NEG = " neg_lo:[1,0,0] neg_hi:[1,0,0]"
    def mf(dre, dim, t, data_is_a):
        c0 = "0" if t == 0 else v(dre, 16); c1 = "0" if t == 0 else v(dim, 16)
        if data_is_a:
            a.e(f"v_mfma_f32_32x32x16_bf16 {v(dre,16)}, {v(DF+4*t,4)}, {v(CRE+4*t,4)}, {c0}",
                f"v_mfma_f32_32x32x16_bf16 {v(dim,16)}, {v(DF+4*t,4)}, {v(CIM+4*t,4)}, {c1}")
        else:
            a.e(f"v_mfma_f32_32x32x16_bf16 {v(dre,16)}, {v(CRE+4*t,4)}, {v(DF+4*t,4)}, {c0}",
                f"v_mfma_f32_32x32x16_bf16 {v(dim,16)}, {v(CIM+4*t,4)}, {v(DF+4*t,4)}, {c1}")
    def tw(sre, sim, p):
        re, im, tc, ts = sre+2*p, sim+2*p, TWC+2*p, TWS+2*p
        t0 = TMP+4*(p & 1); t1 = t0+2
        a.e(f"v_pk_mul_f32 {v(t0,2)}, {v(re,2)}, {v(tc,2)}", f"v_pk_mul_f32 {v(t1,2)}, {v(im,2)}, {v(tc,2)}",
            f"v_pk_fma_f32 {v(t0,2)}, {v(im,2)}, {v(ts,2)}, {v(t0,2)}",
            f"v_pk_fma_f32 {v(t1,2)}, {v(re,2)}, {v(ts,2)}, {v(t1,2)}{NEG}")
        for e in range(2): a.e(f"v_cvt_pk_bf16_f32 v{DF+2*p+e}, v{t0+e}, v{t1+e}")
    def mul(sre, sim, p):
        xr, xi, wr, wi = sre+2*p, sim+2*p, WR+2*p, WI+2*p
        t0 = TMP+4*(p & 1); t1 = t0+2
        n0 = NEG if p < 4 else ""; n1 = "" if p < 4 else NEG
        a.e(f"v_pk_mul_f32 {v(t0,2)}, {v(xr,2)}, {v(wr,2)}", f"v_pk_mul_f32 {v(t1,2)}, {v(xi,2)}, {v(wr,2)}",
            f"v_pk_fma_f32 {v(t0,2)}, {v(xi,2)}, {v(wi,2)}, {v(t0,2)}{n0}",
            f"v_pk_fma_f32 {v(t1,2)}, {v(xr,2)}, {v(wi,2)}, {v(t1,2)}{n1}")
        for e in range(2): a.e(f"v_cvt_pk_bf16_f32 v{DF+2*p+e}, v{t0+e}, -v{t1+e}")
    for t in range(4): mf(ARE, AIM, t, True)
    a.e("s_waitcnt lgkmcnt(0)")
    fix_w(a, WR, WI, PF)
    for (src, dst, op, da) in (((ARE, AIM), (ARE2, AIM2), tw, False), ((ARE2, AIM2), (ARE, AIM), mul, True), ((ARE, AIM), (ARE2, AIM2), tw, False)):
        for t in range(4):
            op(src[0], src[1], 2*t); op(src[0], src[1], 2*t+1)
            mf(dst[0], dst[1], t, da)
    for r in range(16):
        t = TMP + (r & 7)
        a.e(f"v_cvt_pk_bf16_f32 v{t}, v{ARE2+r}, v{AIM2+r}", f"ds_write_b32 v{VRR}, v{t} offset:{128*eidx(r)}")

def a2_consts(a, sT):
    a.e(f"v_and_b32 v{IDX}, 31, v1", f"v_lshrrev_b32 v{G_}, 5, v1")
    XS, XB = TMP, TMP+1
    a.e(f"v_cvt_f32_u32 v{TMP+2}, v{IDX}", f"v_cvt_f32_u32 v{TMP+3}, v{G_}", f"v_mul_f32 v{TMP+3}, 4.0, v{TMP+3}",
        f"v_mul_f32 v{XS}, {f32hex(1/32)}, v{TMP+2}", f"v_mul_f32 v{XB}, v{TMP+3}, v{XS}")
    a.e(f"v_and_b32 v{TMP+4}, 1, v{IDX}", f"v_mul_u32_u24 v{TMP+4}, 0x8000, v{TMP+4}", f"v_lshl_or_b32 v{TMP+4}, v{TMP+4}, 16, v{TMP+4}")
    for t in range(2):
        for i in range(4):
            c = float(8*t+i); x = TMP+5+3*(i & 1)
            a.e(f"v_fmamk_f32 v{x}, v{XS}, {f32hex(c)}, v{XB}" if c else f"v_mov_b32 v{x}, v{XB}")
            a.e(f"v_cos_f32 v{x+1}, v{x}", f"v_sin_f32 v{x+2}, v{x}")
            a.e(f"v_cvt_pk_bf16_f32 v{CRE+4*t+i}, v{x+1}, v{x+2}", f"v_cvt_pk_bf16_f32 v{CIM+4*t+i}, -v{x+2}, v{x+1}")
    for base in (CRE, CIM):
        for i in range(8):
            a.e(f"v_xor_b32 v{base+8+i}, v{TMP+4}, v{base+i}")
    a.e(f"v_mul_f32 v{XS}, {f32hex(1/1024)}, v{TMP+2}", f"v_mul_f32 v{XB}, v{TMP+3}, v{XS}")
    for r in range(16):
        c = float(eidx(r)); x = TMP+5+(r & 1)
        a.e(f"v_fmamk_f32 v{x}, v{XS}, {f32hex(c)}, v{XB}" if c else f"v_mov_b32 v{x}, v{XB}")
        a.e(f"v_cos_f32 v{TWC+r}, v{x}", f"v_sin_f32 v{TWS+r}, v{x}")
    LO, HI, Q, AV, XA0, XA1, E0, E1 = TMP, TMP+1, TMP+2, TMP+3, TMP+4, TMP+5, TMP+6, TMP+7
    JF, KEY, T2, PO, PAR, N16, G4, CS = [TMP+8+i for i in range(8)]
    Lspec, Ldone = newlbl("ghspec"), newlbl("ghdone")
    a.e(f"v_and_b32 v{LO}, 3, v{IDX}", f"v_bfe_u32 v{HI}, v{IDX}, 2, 2")
    a.e(f"v_and_b32 v{N16}, 15, v1", f"v_lshrrev_b32 v{G4}, 4, v1")
    a.e(f"s_cmp_eq_u32 s{sT}, 0", f"s_cbranch_scc1 {Lspec}")
    a.e(f"v_cvt_f32_u32 v{T2}, s{sT}", f"v_cvt_f32_u32 v{JF}, v{HI}", f"v_fmamk_f32 v{JF}, v{JF}, {f32hex(512.0)}, v{T2}",
        f"v_mul_f32 v{JF}, {f32hex(1/2048)}, v{JF}",
        f"v_lshlrev_b32 v{Q}, 3, v{LO}", "s_mov_b32 s50, 0x4631914C", f"v_lshrrev_b32 v{Q}, v{Q}, s50",
        f"v_mov_b32 v{AV}, 0.5", f"v_cmp_gt_u32 vcc, 16, v{IDX}", f"v_cndmask_b32 v{AV}, 0, v{AV}, vcc")
    for ks, Gd in ((0, GA), (1, GA2)):
        a.e(f"v_cvt_f32_u32 v{XA0}, v{G_}", f"v_add_f32 v{XA0}, v{XA0}, v{XA0}")
        if ks: a.e(f"v_add_f32 v{XA0}, 4.0, v{XA0}")
        a.e(f"v_add_f32 v{XA1}, 1.0, v{XA0}", f"v_mul_f32 v{XA0}, v{XA0}, v{JF}", f"v_mul_f32 v{XA1}, v{XA1}, v{JF}")
        for jj2 in range(4):
            for e in range(2):
                jj = 2*jj2+e
                xa = XA1 if jj >> 2 else XA0
                a.e(f"v_bfe_u32 v{E0+e}, v{Q}, {2*(jj&3)}, 2", f"v_cvt_f32_u32 v{E0+e}, v{E0+e}",
                    f"v_fmamk_f32 v{E0+e}, v{E0+e}, {f32hex(0.25)}, v{xa}", f"v_cos_f32 v{E0+e}, v{E0+e}",
                    f"v_mul_f32 v{E0+e}, v{E0+e}, v{AV}")
            a.e(f"v_cvt_pk_bf16_f32 v{Gd+jj2}, v{E0}, v{E1}")
    a.e(f"v_bfe_u32 v{HI}, v{N16}, 1, 2", f"v_cvt_f32_u32 v{KEY}, v{HI}", f"v_mul_f32 v{KEY}, {f32hex(1/2048)}, v{KEY}",
        f"v_and_b32 v{JF}, 1, v{G4}", f"v_cvt_f32_u32 v{JF}, v{JF}", f"v_fmamk_f32 v{JF}, v{JF}, {f32hex(1024.0)}, v{T2}",
        f"v_add_f32 v{XA1}, {f32hex(512.0)}, v{JF}", f"v_mul_f32 v{XA0}, v{JF}, v{KEY}", f"v_mul_f32 v{XA1}, v{XA1}, v{KEY}",
        f"v_lshrrev_b32 v{CS}, 1, v{G4}", f"v_lshrrev_b32 v{AV}, 3, v{N16}", f"v_cmp_eq_u32 vcc, v{CS}, v{AV}",
        f"v_mov_b32 v{AV}, {f32hex(2.0**-21)}", f"v_cndmask_b32 v{AV}, 0, v{AV}, vcc",
        f"v_and_b32 v{PO}, 1, v{N16}")
    for part, Hd in ((0, HRE), (1, HIM)):
        w0, w1 = (0x1C, 0xBC) if part == 0 else (0x61, 0x6B)
        a.e(f"v_mov_b32 v{Q}, {w0}", f"v_mov_b32 v{PAR}, {w1}", f"v_cmp_eq_u32 vcc, 1, v{PO}", f"v_cndmask_b32 v{Q}, v{Q}, v{PAR}, vcc")
        for jj2 in range(4):
            for e in range(2):
                jj = 2*jj2+e
                xa = XA1 if jj >> 2 else XA0
                a.e(f"v_bfe_u32 v{E0+e}, v{Q}, {2*(jj&3)}, 2", f"v_cvt_f32_u32 v{E0+e}, v{E0+e}",
                    f"v_fmamk_f32 v{E0+e}, v{E0+e}, {f32hex(0.25)}, v{xa}", f"v_cos_f32 v{E0+e}, v{E0+e}",
                    f"v_mul_f32 v{E0+e}, v{E0+e}, v{AV}")
            a.e(f"v_cvt_pk_bf16_f32 v{Hd+jj2}, v{E0}, v{E1}")
    a.e(f"s_branch {Ldone}")
    a.label(Lspec)
    a.e(f"v_and_b32 v{PO}, 1, v{LO}", f"v_lshrrev_b32 v{PAR}, 1, v{LO}")
    a.e(f"v_lshlrev_b32 v{JF}, 2, v{HI}", "s_mov_b32 s50, 0x3120", f"v_lshrrev_b32 v{JF}, v{JF}, s50", f"v_and_b32 v{JF}, 15, v{JF}",
        f"v_lshlrev_b32 v{JF}, 8, v{JF}", f"v_lshlrev_b32 v{T2}, 10, v{PO}",
        f"v_cmp_eq_u32 vcc, 0, v{HI}", f"v_cndmask_b32 v{JF}, v{JF}, v{T2}, vcc", f"v_mov_b32 v{T2}, 0",
        f"v_cndmask_b32 v{Q}, v{PO}, v{T2}, vcc",
        f"v_cvt_f32_u32 v{JF}, v{JF}", f"v_mul_f32 v{JF}, {f32hex(1/2048)}, v{JF}",
        f"v_cvt_f32_u32 v{Q}, v{Q}", f"v_mul_f32 v{Q}, {f32hex(0.25)}, v{Q}",
        f"v_lshrrev_b32 v{T2}, 4, v{IDX}", f"v_lshl_add_u32 v{KEY}, v{T2}, 2, v{PAR}", f"v_mov_b32 v{T2}, 0")
    for ks, Gd in ((0, GA), (1, GA2)):
        a.e(f"v_cvt_f32_u32 v{XA0}, v{G_}", f"v_add_f32 v{XA0}, v{XA0}, v{XA0}")
        if ks: a.e(f"v_add_f32 v{XA0}, 4.0, v{XA0}")
        a.e(f"v_add_f32 v{XA1}, 1.0, v{XA0}",
            f"v_fma_f32 v{XA0}, v{XA0}, v{JF}, v{Q}", f"v_fma_f32 v{XA1}, v{XA1}, v{JF}, v{Q}",
            f"v_cos_f32 v{XA0}, v{XA0}", f"v_cos_f32 v{XA1}, v{XA1}")
        for jj2 in range(4):
            for e in range(2):
                jj = 2*jj2+e
                xa = XA1 if jj >> 2 else XA0
                a.e(f"v_cmp_eq_u32 vcc, {jj&3}, v{KEY}", f"v_cndmask_b32 v{E0+e}, v{T2}, v{xa}, vcc")
            a.e(f"v_cvt_pk_bf16_f32 v{Gd+jj2}, v{E0}, v{E1}")
    SAF, GS = JF, PAR
    a.e(f"v_bfe_u32 v{HI}, v{N16}, 1, 2", f"v_cvt_f32_u32 v{SAF}, v{HI}", f"v_mul_f32 v{SAF}, {f32hex(1/2048)}, v{SAF}",
        f"v_and_b32 v{GS}, 1, v{G4}", f"v_and_b32 v{PO}, 1, v{N16}",
        f"v_lshrrev_b32 v{CS}, 1, v{G4}", f"v_lshrrev_b32 v{T2}, 3, v{N16}",
        f"v_cmp_eq_u32 s[44:45], v{CS}, v{T2}", f"v_cmp_eq_u32 s[46:47], v{GS}, v{PO}", "s_and_b64 s[44:45], s[44:45], s[46:47]",
        f"v_cmp_eq_u32 s[46:47], 0, v{GS}")
    for part, Hd in ((0, HRE), (1, HIM)):
        for jj in range(8):
            sl, par, pi = jj >> 2, (jj >> 1) & 1, jj & 1
            e = E0 + (jj & 1)
            if par != part:
                a.e(f"v_mov_b32 v{e}, 0")
            else:
                if sl == 0:
                    j0, q0, a0 = 1024.0*pi, 0.5*pi, 2.0**-21
                    j1, q1, a1 = 256.0, 0.75*pi, 2.0**-20
                else:
                    j0, q0, a0 = 512.0, 0.75*pi, 2.0**-20
                    j1, q1, a1 = 768.0, 0.75*pi, 2.0**-20
                def sel(dst, x0, x1):
                    a.e(f"v_mov_b32 v{dst}, {f32hex(x1)}", f"v_mov_b32 v{AV}, {f32hex(x0)}", f"v_cndmask_b32 v{dst}, v{dst}, v{AV}, s[46:47]")
                sel(XA0, j0, j1); sel(XA1, q0 + 0.5*part, q1 + 0.5*part)
                a.e(f"v_fma_f32 v{XA0}, v{XA0}, v{SAF}, v{XA1}", f"v_cos_f32 v{XA0}, v{XA0}")
                sel(XA1, a0, a1)
                a.e(f"v_mul_f32 v{XA0}, v{XA0}, v{XA1}", f"v_mov_b32 v{XA1}, 0", f"v_cndmask_b32 v{e}, v{XA1}, v{XA0}, s[44:45]")
            if jj & 1: a.e(f"v_cvt_pk_bf16_f32 v{Hd+(jj>>1)}, v{E0}, v{E1}")
    a.label(Ldone)
    a.e("s_nop 1")


BT_S0, BT_S1, BT_S2, BT_S3 = 52, 56, 60, 64
BT_SOFF = ["0", "s68", "s69", "s70", "s71", "s76", "s77", "s78"]
BT_ROW, BT_CH, BT_MASK = 48, 49, 50
def bt_setup(a):
    a.e(f"s_lshl_b32 s{BT_ROW}, s{sSUBT}, 7", "s_lshl_b32 s51, s3, 5", f"s_add_u32 s{BT_ROW}, s{BT_ROW}, s51", f"s_lshl_b32 s{BT_CH}, s{sCBKT}, 6")
    for i in range(1, 8): a.e(f"s_mov_b32 {BT_SOFF[i]}, {4096*i}")
    a.e(f"s_mov_b32 s{BT_MASK}, 0xffff0000")

def scratch_addr(a, vdst, vcg, vrg):
    if OPT["fullline"]:
        a.e(f"s_lshl_b32 s51, s{sSUBT}, 7", "s_lshl_b32 s92, s3, 5", "s_add_u32 s51, s51, s92", "s_lshl_b32 s51, s51, 12",
            f"s_lshl_b32 s92, s{sCBKT}, 7", "s_add_u32 s51, s51, s92", "s_add_u32 s51, s51, 2048",
            f"v_lshrrev_b32 v{vdst}, 1, v{vcg}", f"v_lshlrev_b32 v{vdst}, 12, v{vdst}", f"v_lshl_add_u32 v{vdst}, v{vrg}, 4, v{vdst}",
            f"v_and_b32 v{vcg}, 1, v{vcg}", f"v_lshl_add_u32 v{vdst}, v{vcg}, 6, v{vdst}", f"v_add_u32 v{vdst}, s51, v{vdst}",
            "s_mov_b32 s32, 32768", "s_mov_b32 s33, 65536", "s_mov_b32 s34, 98304")
        return
    a.e(f"s_lshl_b32 s51, s{sSUBT}, 7", "s_lshr_b32 s92, s3, 1", "s_add_u32 s51, s51, s92", "s_lshl_b32 s51, s51, 12",
        f"s_lshl_b32 s92, s{sCBKT}, 7", "s_add_u32 s51, s51, s92", "s_and_b32 s92, s3, 1", "s_lshl_b32 s92, s92, 6", "s_add_u32 s51, s51, s92",
        "s_add_u32 s51, s51, 2048",
        f"v_lshlrev_b32 v{vdst}, 15, v{vcg}", f"v_lshl_add_u32 v{vdst}, v{vrg}, 4, v{vdst}", f"v_add_u32 v{vdst}, s51, v{vdst}")
def SCR(c):
    return ["0", "s32", "s33", "s34"][c] if OPT["fullline"] else ["0", "s69", "s71", "s77"][c]

def emit_B1(a, shadow=None, hook=None, post_mode=None, after_stores=None, nafter=0, after_loads=None, nyoung=0):
    SK, SV, SSH, SKVT = BT_S0, BT_S1, BT_S2, BT_S3
    soff = BT_SOFF; M = BT_MASK
    CG, RG, S0, CH0, VOFF, VH, VST, VSH = 2, 3, 4, 5, 6, 7, 8, 9
    KR, VR, SHR, KF, SHF, KV, TM, PK = 16, 38, 54, 64, 108, 124, 156, 16
    FAST = OPT["fast"]
    def kld():
        for i in range(3):
            a.e(f"buffer_load_dwordx2 {v(KR+2*i,2)}, v{VH}, s[{SK}:{SK+3}], {soff[i>>1]} offen" + (" offset:2048" if i & 1 else "") + (NT() if OPT["ntk"] else ""))
        for i in range(8):
            a.e(f"buffer_load_dwordx2 {v(KR+6+2*i,2)}, v{VOFF}, s[{SK}:{SK+3}], {soff[i>>1]} offen" + (" offset:2048" if i & 1 else "") + (NT() if OPT["ntk"] else ""))
    def shld():
        a.e(f"buffer_load_dwordx4 {v(SHR,4)}, v{VSH}, s[{SSH}:{SSH+3}], 0 offen",
            f"buffer_load_dwordx4 {v(SHR+4,4)}, v{VSH}, s[{SSH}:{SSH+3}], 0 offen offset:16")
    def vld():
        for i in range(8):
            a.e(f"buffer_load_dwordx2 {v(VR+2*i,2)}, v{VOFF}, s[{SV}:{SV+3}], {soff[i>>1]} offen" + (" offset:2048" if i & 1 else "") + NT())
    if FAST:
        a.e(f"s_lshl_b32 s{BT_ROW}, s{sSUBT}, 7", "s_lshl_b32 s51, s3, 5", f"s_add_u32 s{BT_ROW}, s{BT_ROW}, s51", f"s_lshl_b32 s{BT_CH}, s{sCBKT}, 6")
        srd(a, SK, P_K, P_K+1, 4*MB)
        a.e(f"v_and_b32 v{CG}, 15, v1", f"v_lshrrev_b32 v{RG}, 4, v1",
            f"v_lshl_add_u32 v{S0}, v{RG}, 3, s{BT_ROW}", f"v_lshl_add_u32 v{CH0}, v{CG}, 2, s{BT_CH}",
            f"v_lshlrev_b32 v{VOFF}, 11, v{S0}", f"v_lshl_add_u32 v{VOFF}, v{CH0}, 1, v{VOFF}",
            f"v_subrev_u32 v{VH}, 6144, v{VOFF}")
        for i in range(1, 4): a.e(f"s_mov_b32 {BT_SOFF[i]}, {4096*i}")
        kld()
        srd(a, SSH, P_SHK, P_SHK+1, 8192); srd(a, SV, P_V, P_V+1, 4*MB)
        a.e(f"v_lshlrev_b32 v{VSH}, 3, v{CH0}")
        shld(); vld()
        srd(a, SKVT, P_OUT, P_OUT+1, 8*MB)
        for i in range(4, 8): a.e(f"s_mov_b32 {BT_SOFF[i]}, {4096*i}")
        a.e(f"s_mov_b32 s{BT_MASK}, 0xffff0000")
        scratch_addr(a, VST, CG, RG)
    else:
        srd(a, SK, P_K, P_K+1, 4*MB); srd(a, SV, P_V, P_V+1, 4*MB); srd(a, SSH, P_SHK, P_SHK+1, 8192); srd(a, SKVT, P_OUT, P_OUT+1, 8*MB)
        bt_setup(a)
        a.e(f"v_and_b32 v{CG}, 15, v1", f"v_lshrrev_b32 v{RG}, 4, v1",
            f"v_lshl_add_u32 v{S0}, v{RG}, 3, s{BT_ROW}", f"v_lshl_add_u32 v{CH0}, v{CG}, 2, s{BT_CH}",
            f"v_lshlrev_b32 v{VOFF}, 11, v{S0}", f"v_lshl_add_u32 v{VOFF}, v{CH0}, 1, v{VOFF}",
            f"v_subrev_u32 v{VH}, 6144, v{VOFF}",
            f"v_lshlrev_b32 v{VSH}, 3, v{CH0}")
        scratch_addr(a, VST, CG, RG)
        if OPT["bactwait"] and OPT["b1all"]:
            Lw = newlbl("bw")
            a.e(f"s_cmp_eq_u32 s{sACT}, 0", f"s_cbranch_scc1 {Lw}", "s_waitcnt lgkmcnt(0)")
            a.label(Lw)
        if OPT["earlypub"]:
            Lp = newlbl("epub")
            a.e("s_cmp_lg_u32 s3, 0", f"s_cbranch_scc1 {Lp}")
            fin_epoch(a); loc_publish(a)
            a.label(Lp)
        shld(); kld(); vld()
    if OPT["pflip"] & 1: a.e(f"s_setprio {OPT['prioB']}")
    if OPT["fast"] >= 2: common_rest(a)
    if after_loads: after_loads()
    stamp(a, 2)
    if OPT["earlypub"]:
        Lq = newlbl("epub2")
        a.e("s_cmp_eq_u32 s3, 0", f"s_cbranch_scc1 {Lq}")
        fin_epoch(a)
        a.label(Lq)
    else:
        fin_epoch(a)
        loc_publish(a)
    if shadow: shadow()
    def wv(n, extra):
        n += nyoung
        if extra and not OPT["earlypub"]:
            L = newlbl("wv")
            a.e(f"s_cbranch_scc1 {L}", f"s_waitcnt vmcnt({n})")
            a.label(L)
            a.e(f"s_waitcnt vmcnt({n+extra})")
        elif extra == 2 and OPT["earlypub"]:
            L = newlbl("wv")
            a.e(f"s_cbranch_scc1 {L}", f"s_waitcnt vmcnt({n})")
            a.label(L)
            a.e(f"s_waitcnt vmcnt({n+1})")
        else:
            a.e(f"s_waitcnt vmcnt({n})")
    a.e("s_cmp_eq_u32 s3, 0")
    def unsh():
        for ch in range(4):
            for j in range(4):
                src = SHR + 2*ch + (j >> 1)
                if j & 1: a.e(f"v_and_b32 v{SHF+4*j+ch}, s{M}, v{src}")
                else:     a.e(f"v_lshlrev_b32 v{SHF+4*j+ch}, 16, v{src}")
    if not FAST:
        wv(19, 1); unsh()
    for i in range(11):
        wv((20-i) if FAST else (18-i), 1)
        for hf in range(2):
            a.e(f"v_lshlrev_b32 v{KF+4*i+2*hf}, 16, v{KR+2*i+hf}", f"v_and_b32 v{KF+4*i+2*hf+1}, s{M}, v{KR+2*i+hf}")
    if FAST:
        wv(8, 1); unsh()
    loc_issue(a, 10)
    a.e("s_cmp_eq_u32 s3, 0")
    for i in range(8):
        wv(7-i, 2)
        if i == 7 and hook: hook()
        for hf in range(2):
            a.e(f"v_lshlrev_b32 v{TM+2*hf}, 16, v{VR+2*i+hf}", f"v_and_b32 v{TM+2*hf+1}, s{M}, v{VR+2*i+hf}")
        for hf in range(2):
            acc = KV+4*i+2*hf
            a.e(f"v_pk_mul_f32 {v(acc,2)}, {v(KF+4*(i+3)+2*hf,2)}, {v(SHF+2*hf,2)}")
            for j in range(1, 4):
                a.e(f"v_pk_fma_f32 {v(acc,2)}, {v(KF+4*(i+3-j)+2*hf,2)}, {v(SHF+4*j+2*hf,2)}, {v(acc,2)}")
            a.e(f"v_pk_mul_f32 {v(acc,2)}, {v(acc,2)}, {v(TM+2*hf,2)}")
    stamp(a, 3)
    for ch in range(4):
        for m in range(4):
            a.e(f"v_cvt_pk_bf16_f32 v{PK+4*ch+m}, v{KV+4*(7-2*m)+ch}, v{KV+4*(6-2*m)+ch}")
    sts = [f"buffer_store_dwordx4 {v(PK+4*ch,4)}, v{VST}, s[{SKVT}:{SKVT+3}], {SCR(ch)} offen" for ch in range(4)]
    if OPT["twoflag"]:
        for l in sts: a.e(l + (" nt" if OPT["ntscr"] else ""))
        stamp(a, 4)
        a.e(f"s_lshl_b32 s51, s{sCBKT}, 4", f"s_add_u32 s51, s51, s{sSUBT}", f"s_lshl_b32 s51, s51, {FB()}", f"s_add_u32 s92, s51, {SY_B1}")
        La = newlbl("siga")
        a.e("s_waitcnt vmcnt(0)", "s_barrier", "s_cmp_lg_u32 s3, 0", f"s_cbranch_scc1 {La}",
            "v_mov_b32 v14, s92", f"v_mov_b32 v15, s{S_TGT}", "s_mov_b64 exec, 1",
            f"buffer_store_dword v15, v14, s[{S_SYN}:{S_SYN+3}], 0 offen", "s_mov_b64 exec, -1")
        a.label(La)
        if after_stores: after_stores()
        loc_resolve(a, 10, nafter=nafter + 1 if after_stores else 1)
        Lo = newlbl("opt")
        a.e(f"s_cmp_lg_u32 s{sLOC}, 0", f"s_cbranch_scc1 {Lo}", "s_waitcnt vmcnt(0)")
        for l in sts: a.e(l + " sc1")
        a.e(f"s_add_u32 s51, s51, {SY_B1B}")
        signal(a, 51, 14)
        a.label(Lo)
        return
    if OPT["optst"]:
        for l in sts: a.e(l)
        if after_stores: after_stores()
        loc_resolve(a, 10, nafter=nafter)
        Lo = newlbl("opt")
        a.e(f"s_cmp_lg_u32 s{sLOC}, 0", f"s_cbranch_scc1 {Lo}", "s_waitcnt vmcnt(0)")
        for l in sts: a.e(l + " sc1")
        a.e("s_waitcnt vmcnt(0)")
        a.label(Lo)
    else:
        loc_resolve(a, 10)
        dual_store(a, sts)
    stamp(a, 4)
    a.e(f"s_lshl_b32 s51, s{sCBKT}, 4", f"s_add_u32 s51, s51, s{sSUBT}", f"s_lshl_b32 s51, s51, {FB()}", f"s_add_u32 s51, s51, {SY_B1}")
    signal(a, 51, 14, nafter=nafter, bloc=True)

B3_QR, B3_VQ, B3_VT, B3_VO = 208, 224, 225, 226
def emit_B3_pre_n(a):
    SQ, STT, SOUT = BT_S0, BT_S1, BT_S2
    srd(a, SQ, P_Q, P_Q+1, 4*MB); srd(a, SOUT, P_OUT, P_OUT+1, 8*MB)
    bt_setup(a)
    t = 227
    a.e(f"v_and_b32 v{t}, 15, v1", f"v_lshrrev_b32 v{t+1}, 4, v1",
        f"v_lshl_add_u32 v{t+1}, v{t+1}, 3, s{BT_ROW}", f"v_lshl_add_u32 v{t}, v{t}, 2, s{BT_CH}",
        f"v_lshlrev_b32 v{B3_VQ}, 11, v{t+1}", f"v_lshl_add_u32 v{B3_VQ}, v{t}, 1, v{B3_VQ}",
        f"v_lshlrev_b32 v{B3_VO}, 12, v{t+1}", f"v_lshl_add_u32 v{B3_VO}, v{t}, 1, v{B3_VO}", f"v_add_u32 v{B3_VO}, 2048, v{B3_VO}")
    a.e(f"v_and_b32 v{t}, 15, v1", f"v_lshrrev_b32 v{t+1}, 4, v1")
    scratch_addr(a, B3_VT, t, t+1)
    for i in range(8):
        a.e(f"buffer_load_dwordx2 {v(B3_QR+2*i,2)}, v{B3_VQ}, s[{SQ}:{SQ+3}], {BT_SOFF[i>>1]} offen" + (" offset:2048" if i & 1 else "") + NT())

def emit_B3_n(a):
    SQ, STT, SOUT = BT_S0, BT_S1, BT_S2
    soff = BT_SOFF; M = BT_MASK
    TR, TF, QF = 16, 48, 80
    a.e(f"s_mov_b32 s{M}, 0xffff0000")
    a.e(f"s_lshl_b32 s51, s{sCBKT}, {4+FB()}", f"s_add_u32 s51, s51, {SY_B2}",
        "v_and_b32 v12, 15, v1", f"v_lshlrev_b32 v12, {FB()}, v12", "v_add_u32 v12, s51, v12")
    a.e("s_waitcnt vmcnt(0)")
    for e in range(8):
        qf = QF + 4*e
        for hf in range(2):
            a.e(f"v_lshlrev_b32 v{qf+2*hf}, 16, v{B3_QR+2*e+hf}", f"v_and_b32 v{qf+2*hf+1}, s{M}, v{B3_QR+2*e+hf}")
    wait_flags(a, 12, 1, 13, 51)
    stamp(a, 10)
    for ch in range(4):
        a.e(f"buffer_load_dwordx4 {v(TR+4*ch,4)}, v{B3_VT}, s[{SOUT}:{SOUT+3}], {SCR(ch)} offen" + LDL())
    for ch in range(4):
        a.e(f"s_waitcnt vmcnt({3-ch})")
        for e in range(8):
            src = TR+4*ch+(e >> 1)
            if e & 1: a.e(f"v_and_b32 v{TF+4*e+ch}, s{M}, v{src}")
            else:     a.e(f"v_lshlrev_b32 v{TF+4*e+ch}, 16, v{src}")
    a.e("s_barrier")
    for e in range(8):
        qf = QF + 4*e
        for hf in range(2):
            a.e(f"v_pk_mul_f32 {v(qf+2*hf,2)}, {v(qf+2*hf,2)}, {v(TF+4*e+2*hf,2)}")
        pk = 112+2*e
        for hf in range(2):
            a.e(f"v_cvt_pk_bf16_f32 v{pk+hf}, v{qf+2*hf}, v{qf+2*hf+1}")
        a.e(f"buffer_store_dwordx2 {v(pk,2)}, v{B3_VO}, s[{SOUT}:{SOUT+3}], {soff[e]} offen" + NTOB())

def emit_B3_pre_w(a):
    SQ, STT, SOUT = BT_S0, BT_S1, BT_S2
    srd(a, SQ, P_Q, P_Q+1, 4*MB); srd(a, SOUT, P_OUT, P_OUT+1, 8*MB)
    bt_setup(a)
    t = 227
    a.e(f"v_and_b32 v{t}, 7, v1", f"v_lshrrev_b32 v{t+1}, 3, v1")
    a.e(f"s_lshl_b32 s51, s{sSUBT}, 7", "s_lshl_b32 s92, s3, 5", "s_add_u32 s51, s51, s92", "s_lshl_b32 s51, s51, 12",
        f"s_lshl_b32 s92, s{sCBKT}, 7", "s_add_u32 s51, s51, s92", "s_add_u32 s51, s51, 2048",
        f"v_lshlrev_b32 v{B3_VT}, 12, v{t}", f"v_lshl_add_u32 v{B3_VT}, v{t+1}, 3, v{B3_VT}", f"v_add_u32 v{B3_VT}, s51, v{B3_VT}",
        "s_mov_b32 s32, 32768", "s_mov_b32 s33, 65536", "s_mov_b32 s34, 98304")
    a.e(f"v_lshl_add_u32 v{t+1}, v{t+1}, 2, s{BT_ROW}", f"v_lshl_add_u32 v{t}, v{t}, 3, s{BT_CH}",
        f"v_lshlrev_b32 v{B3_VQ}, 11, v{t+1}", f"v_lshl_add_u32 v{B3_VQ}, v{t}, 1, v{B3_VQ}",
        f"v_lshlrev_b32 v{B3_VO}, 12, v{t+1}", f"v_lshl_add_u32 v{B3_VO}, v{t}, 1, v{B3_VO}", f"v_add_u32 v{B3_VO}, 2048, v{B3_VO}")
    for e in range(4):
        a.e(f"buffer_load_dwordx4 {v(B3_QR+4*e,4)}, v{B3_VQ}, s[{SQ}:{SQ+3}], {BT_SOFF[e>>1]} offen" + (" offset:2048" if e & 1 else "") + NT())

def emit_B3_w(a):
    SQ, STT, SOUT = BT_S0, BT_S1, BT_S2
    soff = BT_SOFF; M = BT_MASK
    TR, TF, QF = 16, 48, 80
    a.e(f"s_mov_b32 s{M}, 0xffff0000")
    a.e(f"s_lshl_b32 s51, s{sCBKT}, {4+FB()}", f"s_add_u32 s51, s51, {SY_B2}",
        "v_and_b32 v12, 15, v1", f"v_lshlrev_b32 v12, {FB()}, v12", "v_add_u32 v12, s51, v12")
    a.e("s_waitcnt vmcnt(0)")
    for e in range(4):
        for d in range(4):
            a.e(f"v_lshlrev_b32 v{QF+8*e+2*d}, 16, v{B3_QR+4*e+d}", f"v_and_b32 v{QF+8*e+2*d+1}, s{M}, v{B3_QR+4*e+d}")
    wait_flags(a, 12, 1, 13, 51)
    stamp(a, 10)
    for c in range(8):
        a.e(f"buffer_load_dwordx2 {v(TR+2*c,2)}, v{B3_VT}, s[{SOUT}:{SOUT+3}], {SCR(c & 3)} offen" + (" offset:64" if c >> 2 else "") + LDL())
    for c in range(8):
        a.e(f"s_waitcnt vmcnt({7-c})")
        for e in range(4):
            src = TR+2*c+(e >> 1)
            if e & 1: a.e(f"v_and_b32 v{TF+8*e+c}, s{M}, v{src}")
            else:     a.e(f"v_lshlrev_b32 v{TF+8*e+c}, 16, v{src}")
    a.e("s_barrier")
    for e in range(4):
        for d in range(4):
            a.e(f"v_pk_mul_f32 {v(QF+8*e+2*d,2)}, {v(QF+8*e+2*d,2)}, {v(TF+8*e+2*d,2)}")
        pk = 112+4*e
        for d in range(4):
            a.e(f"v_cvt_pk_bf16_f32 v{pk+d}, v{QF+8*e+2*d}, v{QF+8*e+2*d+1}")
        a.e(f"buffer_store_dwordx4 {v(pk,4)}, v{B3_VO}, s[{SOUT}:{SOUT+3}], {soff[e]} offen" + NTOB())

def emit_B3_pre(a): (emit_B3_pre_w if OPT["b3w"] else emit_B3_pre_n)(a)
def emit_B3(a): (emit_B3_w if OPT["b3w"] else emit_B3_n)(a)

def gen_A(a):
    ROLE[0] = 'A'
    SX, SI1, SWR, SWI, SI2, SOUT = 32, 36, 80, 84, 32, 36
    a.e(f"s_setprio {OPT['prioA']}") if OPT['prioA'] else None
    sT, sSA, sCB, sJ, sJM, sJP, sJQ, sTL = 40, 41, 42, 43, 72, 73, 74, 44
    def rows():
        srd(a, SI1, P_WS, P_WS+1, 4*MB, add=WS_I1)
        srd(a, SWR, P_WR, P_WR+1, WBYTES); srd(a, SWI, P_WI, P_WI+1, WBYTES)
        Lr = newlbl("reg")
        a.e("s_lshl_b32 s47, s3, 9", f"s_add_u32 s{sJ}, s{sT}, s47", f"s_mov_b32 s{sJP}, s{sT}", f"s_sub_u32 s{sJQ}, 512, s{sT}",
            f"s_cmp_lg_u32 s{sT}, 0", f"s_cbranch_scc1 {Lr}",
            f"s_mov_b32 s{sJQ}, 256", "s_lshl_b32 s47, s3, 2", "s_lshr_b32 s46, 0x3120, s47", "s_and_b32 s46, s46, 15", f"s_lshl_b32 s{sJ}, s46, 8")
        a.label(Lr)
        a.e(f"s_sub_u32 s{sJM}, 2048, s{sJ}", f"s_and_b32 s{sJM}, s{sJM}, 2047",
            f"s_mul_i32 s{sJ}, s{sJ}, 1026", f"s_mul_i32 s{sJM}, s{sJM}, 1026")
        a.e(f"s_or_b32 s75, s{sT}, s3")
    def wstage():
        a.e("v_lshlrev_b32 v243, 4, v1", "s_lshl_b32 s46, s3, 12", f"s_add_u32 s46, s46, {LW}")
        w_dma(a, SWR, SWI, sJ, sJM, 46, 243)
        pf_loads(a, SWR, SWI, sJ, sJM, PF, 244)
        if not OPT["spec2"]: wstage2()
    def wstage2():
        Ln = newlbl("now2")
        a.e("s_cmp_lg_u32 s75, 0", f"s_cbranch_scc1 {Ln}")
        a.e("v_lshlrev_b32 v243, 4, v1", f"s_mov_b32 s47, {1024*1026}", f"s_mov_b32 s46, {LW2}")
        w_dma(a, SWR, SWI, 47, 47, 46, 243)
        pf_loads(a, SWR, SWI, 47, 47, PF2, 244)
        a.label(Ln)
    if OPT["pairx"]:
        a.e(f"s_and_b32 s48, s{sCU}, 7", "s_lshl_b32 s48, s48, 4", f"s_lshr_b32 s49, s{sCU}, 4", "s_add_u32 s48, s48, s49",
            "s_sub_u32 s49, 256, s48", "s_cmp_eq_u32 s48, 0", "s_cselect_b32 s49, 128, s49",
            f"s_bitcmp1_b32 s{sCU}, 3", f"s_cselect_b32 s{sT}, s49, s48")
    else:
        a.e(f"s_mov_b32 s{sT}, s{sCU}")
    stamp(a, 0, True); stamp(a, 1)
    Lp1 = newlbl("nop1")
    if OPT["pA1a"] >= 0:
        if OPT["latem"]:
            Lm = newlbl("lateA")
            a.e("s_and_b32 s92, s2, 7", f"s_lshr_b32 s92, {OPT['latem']}, s92", "s_bitcmp1_b32 s92, 0", f"s_cbranch_scc1 {Lm}", f"s_setprio {OPT['pA1a']}")
            a.label(Lm)
        else:
            a.e(f"s_setprio {OPT['pA1a']}")
    srd(a, SX, P_X, P_X+1, 4*MB)
    a.e(f"s_lshr_b32 s48, s{sCU}, 3", f"s_and_b32 s49, s{sCU}, 7", f"s_lshr_b32 s{sSA}, s48, 2", "s_bfe_u32 s50, s48, 0x10001",
        "s_lshl_b32 s50, s50, 3", "s_add_u32 s50, s50, s49", "s_lshl_b32 s50, s50, 1", "s_and_b32 s51, s48, 1", f"s_add_u32 s{sCB}, s50, s51")
    if OPT["pflip"] & 4: a.e("s_setprio 3")
    f256_loads(a, SX, sSA, sCB, NT() if OPT["ntx"] else "")
    if OPT["pflip"] & 4: a.e(f"s_setprio {max(OPT['pA1a'], 0)}")
    if OPT["fast"] >= 2:
        a.e("s_mov_b32 s45, s48")
        common_rest(a)
    stamp(a, 12)
    f256_setup(a)
    rows()
    wstage2()
    f256_run(a, SI1, 0)
    stamp(a, 4)
    if OPT["cearly"]:
        a.e("s_nop 1")
        a2_consts(a, sT)
    if OPT["wpoll"]:
        a.e(f"s_lshl_b32 s48, s{sCB}, 3", f"s_add_u32 s48, s48, s{sSA}", f"s_lshl_b32 s48, s48, {FA()}", f"s_add_u32 s48, s48, {SY_A1}")
    else:
        a.e(f"s_lshl_b32 s48, s{sCU}, {FA()}", f"s_add_u32 s48, s48, {SY_A1}")
    fin_epoch(a)
    signal(a, 48, 240)
    if OPT["hwait"]: a_state(a, sCU, 3, 240)
    a.label(Lp1)
    pair_pubA(a)
    if OPT["pA1i"] >= 0 or OPT["pA1a"] >= 0: a.e(f"s_setprio {OPT['prioA']}")
    stamp(a, 5)
    if OPT["wlate"] == 2: wstage()
    srd(a, SI2, P_WS, P_WS+1, 4*MB, add=WS_I2)
    if not OPT["cearly"]: a2_consts(a, sT)
    a.e(f"v_lshl_add_u32 v{TMP}, v{G_}, 7, v{IDX}",
        "s_lshl_b32 s48, s3, 12", f"s_add_u32 s48, s48, {LW}",
        f"v_lshl_add_u32 v{VW}, v{TMP}, 1, s48",
        f"v_sub_u32 v{TMP+1}, {1023-32*27}, v{TMP}", f"s_add_u32 s49, s48, 2048", f"v_lshl_add_u32 v{VW+1}, v{TMP+1}, 1, s49")
    a.e(f"v_lshlrev_b32 v{VG}, 12, v{G_}", f"v_lshl_add_u32 v{VG}, v{IDX}, 2, v{VG}",
        "s_lshl_b32 s49, s3, 9",
        f"s_lshl_b32 s52, s{sJP}, 13", "s_add_u32 s52, s52, s49",
        f"s_lshl_b32 s53, s{sJQ}, 13", "s_add_u32 s53, s53, s49")
    a.e(f"s_lshl_b32 s54, s{sT}, 14", "s_add_u32 s54, s54, s49", f"s_sub_u32 s55, 256, s{sT}", "s_and_b32 s55, s55, 255", "s_lshl_b32 s55, s55, 14", "s_add_u32 s55, s55, s49",
        "s_add_u32 s56, s54, 8192", "s_add_u32 s57, s55, 8192")
    a.e(f"v_lshlrev_b32 v{VGW}, 12, v{G_}", f"v_lshl_add_u32 v{VGW}, v{IDX}, 3, v{VGW}", "s_lshl_b32 s50, s3, 10", f"v_add_u32 v{VGW}, s50, v{VGW}",
        f"v_lshlrev_b32 v{VRR}, 9, v{G_}", f"v_lshl_add_u32 v{VRR}, v{IDX}, 2, v{VRR}", "s_lshl_b32 s51, s3, 12", f"v_add_u32 v{VRR}, s51, v{VRR}")
    for t in range(1, 4): a.e(f"v_add_u32 v{VRR+t}, {1024*t}, v{VRR}")
    a.e(f"v_lshrrev_b32 v{TMP}, 4, v1", f"v_and_b32 v{TMP+1}, 1, v{TMP}", f"v_lshlrev_b32 v{VHR}, 13, v{TMP+1}",
        f"v_lshrrev_b32 v{TMP+1}, 1, v{TMP}", f"v_lshl_add_u32 v{VHR}, v{TMP+1}, 7, v{VHR}",
        f"v_and_b32 v{TMP+1}, 15, v1", f"v_lshl_add_u32 v{VHR}, v{TMP+1}, 3, v{VHR}", f"v_add_u32 v{VHR}, s50, v{VHR}")
    a.e(f"v_and_b32 v{TMP+2}, 1, v{TMP+1}", f"v_mov_b32 v{TMP+3}, s52", f"v_mov_b32 v{TMP+4}, s53",
        f"v_cmp_eq_u32 vcc, 1, v{TMP+2}", f"v_cndmask_b32 v{VST}, v{TMP+3}, v{TMP+4}, vcc",
        f"v_bfe_u32 v{TMP+2}, v{TMP+1}, 1, 2", f"v_lshl_add_u32 v{VST}, v{TMP+2}, 11, v{VST}",
        f"v_lshrrev_b32 v{TMP+2}, 3, v{TMP+1}", f"v_lshl_add_u32 v{VST}, v{TMP+2}, 6, v{VST}",
        f"v_lshl_add_u32 v{VST}, v{TMP}, 4, v{VST}")
    a.e(f"v_lshlrev_b32 v{TMP}, {FA()}, v1", f"v_add_u32 v{TMP}, {SY_A1}, v{TMP}")
    stamp(a, 6)
    if OPT["wpoll"]:
        a.e(f"s_lshl_b32 s48, s3, {6+FA()}", f"v_add_u32 v{TMP}, s48, v{TMP}")
        wait_flags(a, TMP, 1, TMP+1, 48, solo=True)
    else:
        wait_flags(a, TMP, 4, TMP+1, 48)
    if OPT["yieldB"] == 1: a_state(a, sCU, 1, TMP)
    stamp(a, 7)
    def gfrag(u, ks): return (GB if u < 2 else DF) + 8*(u & 1) + 4*ks
    for u in range(4):
        for ks in range(2):
            for sl in range(2):
                for pq in range(2):
                    a.e(f"buffer_load_dword v{gfrag(u,ks)+2*sl+pq}, v{VG}, s[{SI1}:{SI1+3}], s{54+2*ks+pq} offen offset:{2048*sl+128*u} " + GLD())
    NWL = 0
    if OPT["wlate"] == 1:
        wstage(); NWL = 8
        if not OPT["spec2"]:
            Lsw = newlbl("spw")
            a.e("s_cmp_lg_u32 s75, 0", f"s_cbranch_scc1 {Lsw}", "s_waitcnt vmcnt(0)")
            a.label(Lsw)
    for rnd in range(2):
        a.e(f"s_waitcnt vmcnt({16-16*rnd+NWL})")
        if rnd == OPT.get("yat", 1) and OPT["yieldB"] == 3:
            a_state(a, sCU, 1, 240)
        for uu in range(2):
            u = 2*rnd+uu
            D = ARE if uu == 0 else AIM
            a.e(f"v_mfma_f32_32x32x16_bf16 {v(D,16)}, {v(GA,4)}, {v(gfrag(u,0),4)}, 0",
                f"v_mfma_f32_32x32x16_bf16 {v(D,16)}, {v(GA2,4)}, {v(gfrag(u,1),4)}, {v(D,16)}")
        for uu in range(2):
            u = 2*rnd+uu
            D = ARE if uu == 0 else AIM
            t = TMP+4*uu
            for h in range(2):
                a.e(f"v_cvt_pk_bf16_f32 v{t}, v{D+4*h}, v{D+4*h+1}", f"v_cvt_pk_bf16_f32 v{t+1}, v{D+4*h+2}, v{D+4*h+3}",
                    f"ds_write_b64 v{VGW}, {v(t,2)} offset:{256*u+8192*h}")
                t += 2
    a.e("s_waitcnt lgkmcnt(0)", "s_barrier")
    stamp(a, 8)
    if OPT["qA"] and not OPT["a3all"]:
        Lq = newlbl("noqA")
        a.e(f"s_cmp_lg_u32 s{sACT}, 0", f"s_cbranch_scc1 {Lq}")
        emit_B3_pre(a)
        a.label(Lq)
    for t in range(4):
        a.e(f"ds_read2_b32 {v(DF+4*t,2)}, v{VRR+t} offset0:0 offset1:32", f"ds_read2_b32 {v(DF+4*t+2,2)}, v{VRR+t} offset0:64 offset1:96")
    a.e("s_waitcnt lgkmcnt(0)")
    Lsp, Linv, Lfwd, Lpre = newlbl("special"), newlbl("inv"), newlbl("fwd"), newlbl("pre")
    sPASS = 45
    Ljoin = newlbl("join")
    if OPT["ilv"]:
        assert OPT["wlate"] == 2 and OPT["spec2"]
        Lold = newlbl("old")
        w_lds_reads(a, VW, VW+1, WR, WI)
        a.e("s_cmp_eq_u32 s75, 0", f"s_cbranch_scc1 {Lold}")
        row_ilv(a)
        a.e(f"s_branch {Ljoin}")
        a.label(Lold)
    if OPT["spec2"]:
        a.e(f"s_mov_b32 s{sPASS}, 0", "s_cmp_lg_u32 s75, 0", f"s_cbranch_scc1 {Lpre}")
        for i in range(16): a.e(f"v_lshrrev_b32 v{GB+i}, 16, v{DF+i}", f"v_and_b32 v{DF+i}, 0xffff, v{DF+i}")
        a.label(Lpre)
    def wmid():
        Lk = newlbl("wskip")
        if OPT["spec2"]: a.e(f"s_cmp_lg_u32 s{sPASS}, 0", f"s_cbranch_scc1 {Lk}")
        if OPT["qA"] and not OPT["a3all"]:
            L1, L2 = newlbl("wa"), newlbl("wb")
            a.e(f"s_cmp_lg_u32 s{sACT}, 0", f"s_cbranch_scc1 {L1}", "s_waitcnt vmcnt(8)", f"s_branch {L2}")
            a.label(L1); a.e("s_waitcnt vmcnt(0)"); a.label(L2)
        else:
            a.e("s_waitcnt vmcnt(0)")
        w_lds_reads(a, VW, VW+1, WR, WI)
        a.label(Lk)
    if OPT["wlate"] == 1:
        a.label(Lfwd); a.e("s_nop 1")
        fft1024(a, mid=wmid)
    else:
        if not OPT["ilv"]: w_lds_reads(a, VW, VW+1, WR, WI)
        a.label(Lfwd); a.e("s_nop 1")
        fft1024(a)
    a.e("s_waitcnt lgkmcnt(0)")
    Lnf = newlbl("nofix")
    if OPT["spec2"]: a.e(f"s_cmp_lg_u32 s{sPASS}, 0", f"s_cbranch_scc1 {Lnf}")
    fix_w(a, WR, WI, PF)
    a.label(Lnf)
    a.e("s_cmp_eq_u32 s75, 0", f"s_cbranch_scc1 {Lsp}")
    for p in range(8):
        xr, xi, wr, wi = ARE+2*p, AIM+2*p, WR+2*p, WI+2*p
        t0 = TMP+4*(p & 1); t1 = t0+2
        n0 = " neg_lo:[1,0,0] neg_hi:[1,0,0]" if p < 4 else ""
        n1 = "" if p < 4 else " neg_lo:[1,0,0] neg_hi:[1,0,0]"
        a.e(f"v_pk_mul_f32 {v(t0,2)}, {v(xr,2)}, {v(wr,2)}", f"v_pk_mul_f32 {v(t1,2)}, {v(xi,2)}, {v(wr,2)}",
            f"v_pk_fma_f32 {v(t0,2)}, {v(xi,2)}, {v(wi,2)}, {v(t0,2)}{n0}",
            f"v_pk_fma_f32 {v(t1,2)}, {v(xr,2)}, {v(wi,2)}, {v(t1,2)}{n1}")
        for e in range(2):
            a.e(f"v_cvt_pk_bf16_f32 v{DF+2*p+e}, v{t0+e}, -v{t1+e}")
    a.label(Linv)
    a.e("s_nop 1")
    fft1024(a)
    for r in range(16):
        t = TMP + (r & 7)
        a.e(f"v_cvt_pk_bf16_f32 v{t}, v{ARE+r}, v{AIM+r}", f"ds_write_b32 v{VRR}, v{t} offset:{128*eidx(r)}")
    a.label(Ljoin)
    a.e("s_waitcnt lgkmcnt(0)", "s_barrier")
    if OPT["yieldB"]:
        Ly = newlbl("y0a")
        if OPT["y0"]: a.e(f"s_cmp_lg_u32 s{sT}, 0", f"s_cbranch_scc1 {Ly}")
        a_state(a, sCU, 2, TMP)
        a.label(Ly)
    stamp(a, 9)
    for u in range(4):
        for sl in range(2):
            a.e(f"ds_read_b64 {v(GB+4*u+2*sl,2)}, v{VHR} offset:{4096*sl+256*u}")
    a.e("s_lshl_b32 s49, s3, 9")
    for u in range(4):
        a.e(f"s_waitcnt lgkmcnt({6-2*u})")
        a.e(f"v_mfma_f32_16x16x32_bf16 {v(ARE+4*u,4)}, {v(GB+4*u,4)}, {v(HRE,4)}, 0",
            f"v_mfma_f32_16x16x32_bf16 {v(AIM+4*u,4)}, {v(GB+4*u,4)}, {v(HIM,4)}, 0")
    for u in range(4):
        for r in range(4):
            a.e(f"v_cvt_pk_bf16_f32 v{DF+4*u+r}, v{ARE+4*u+r}, v{AIM+4*u+r}")
        a.e(f"buffer_store_dwordx4 {v(DF+4*u,4)}, v{VST}, s[{SI2}:{SI2+3}], 0 offen offset:{128*u} sc1")
    dstamp(a, 6); dpublish(a, sT)
    a.e(f"s_lshl_b32 s48, s{sT}, {FA()}", f"s_add_u32 s48, s48, {SY_A2}")
    signal(a, 48, TMP)
    stamp(a, 10)
    Lb3 = newlbl("b3")
    if OPT["a3all"]:
        srd(a, SOUT, P_OUT, P_OUT+1, 8*MB)
        a.e(f"s_lshr_b32 s48, s{sCU}, 3", f"s_and_b32 s49, s{sCU}, 7", f"s_lshr_b32 s{sSA}, s48, 3", "s_bfe_u32 s50, s48, 0x10002",
            "s_lshl_b32 s50, s50, 3", "s_add_u32 s50, s50, s49", "s_lshl_b32 s50, s50, 2", "s_and_b32 s51, s48, 3", f"s_add_u32 s{sCB}, s50, s51")
        f8_addr(a, sSA, sCB, 4096, 16384)
        f8_consts(a)
        if OPT["wpoll2"]:
            assert OPT["t0late"]
            W0, W1 = F_TMP, F_TMP+1
            a.e(f"v_lshrrev_b32 v{W0}, 3, v1", f"v_lshlrev_b32 v{W0}, 5, v{W0}", f"v_and_b32 v{W1}, 7, v1", f"v_add_u32 v{W0}, v{W0}, v{W1}",
                "s_lshl_b32 s48, s3, 3", f"v_add_u32 v{W0}, s48, v{W0}",
                f"v_sub_u32 v{W1}, 256, v{W0}", f"v_and_b32 v{W1}, 255, v{W1}",
                f"v_lshlrev_b32 v{W0}, {FA()}, v{W0}", f"v_add_u32 v{W0}, {SY_A2}, v{W0}",
                f"v_lshlrev_b32 v{W1}, {FA()}, v{W1}", f"v_add_u32 v{W1}, {SY_A2}, v{W1}")
            wait_two(a, W0, W1, F_TMP+2, 48, 47)
        else:
            a.e(f"v_lshlrev_b32 v{F_TMP}, {FA()}, v1", f"v_add_u32 v{F_TMP}, {SY_A2}, v{F_TMP}")
            wait_flags(a, F_TMP, 4, F_TMP+1, 48, skip0=47 if OPT["t0late"] else None)
        stamp(a, 11)
        PHASE[0] = 3
        fstamp(a, 11)
        f8_run(a, SI2, SOUT, {0: "sc1", 1: "nt", 2: ""}[OPT["i2ld"]], NTO(), sT0=47 if OPT["t0late"] else None)
    else:
        a.e(f"s_cmp_eq_u32 s{sACT}, 0", f"s_cbranch_scc1 {Lb3}")
        srd(a, SOUT, P_OUT, P_OUT+1, 8*MB)
        fft512_addr(a, sSA, sCB)
        fft512_addr2(a, sSA, sCB, 4096, 16384)
        fft512_consts(a)
        a.e(f"v_lshlrev_b32 v{F_TMP}, {FA()}, v1", f"v_add_u32 v{F_TMP}, {SY_A2}, v{F_TMP}")
        wait_flags(a, F_TMP, 4, F_TMP+1, 48)
        stamp(a, 11)
        PHASE[0] = 3
        fstamp(a, 11)
        fft512_loads(a, SI2, "sc1")
        fstamp(a, 3)
        save = gen.PROF; gen.PROF = False
        fft512_compute(a, SOUT, True, 0, NTO(), 0)
        gen.PROF = save
    a.e("s_cmp_lg_u32 s75, 0", "s_cbranch_scc1 L_fin")
    Lb1, Lb2 = newlbl("bchk"), newlbl("bchkd")
    a.e("v_lshlrev_b32 v2, 6, v1", f"v_add_u32 v2, {SY_ID}, v2", f"s_lshl_b32 s49, s{S_TGT}, 4", "s_mov_b32 s48, 0")
    a.label(Lb1)
    NS = NMEM()*8//64
    for i in range(NS):
        a.e(f"s_mov_b32 s50, {4096*i}", f"buffer_load_dword v{4+i}, v2, s[{S_SYN}:{S_SYN+3}], s50 offen sc1")
    a.e("s_add_u32 s48, s48, 1", "s_waitcnt vmcnt(0)")
    for i in range(NS): a.e(f"v_xor_b32 v{4+i}, s49, v{4+i}")
    for i in range(1, NS): a.e(f"v_or_b32 v4, v4, v{4+i}")
    a.e("v_lshrrev_b32 v4, 4, v4", "v_cmp_ne_u32 vcc, 0, v4", f"s_cbranch_vccz {Lb2}", f"s_cmp_lt_u32 s48, {SPIN_LIMIT}", f"s_cbranch_scc1 {Lb1}")
    a.label(Lb2)
    dreduce(a)
    pair_sum(a)
    a.e(f"s_mov_b32 s48, {SY_E}")
    bump(a, 48, 2)
    a.e("s_branch L_fin")
    if not OPT["a3all"]:
        a.label(Lb3)
        if not OPT["qA"]: emit_B3_pre(a)
        emit_B3(a)
        a.e("s_branch L_fin")
    a.label(Lsp)
    if OPT["spec2"]:
        Lp1s = newlbl("sp1")
        NEG = " neg_lo:[1,0,0] neg_hi:[1,0,0]"
        a.e(f"s_cmp_lg_u32 s{sPASS}, 0", f"s_cbranch_scc1 {Lp1s}")
        a.e(f"v_lshl_add_u32 v{SP}, v{G_}, 7, v{IDX}", f"v_sub_u32 v{SP+1}, {1023-32*27}, v{SP}",
            f"s_mov_b32 s48, {LW2}", f"v_lshl_add_u32 v{SP+2}, v{SP}, 1, s48", f"s_mov_b32 s49, {LW2+2048}", f"v_lshl_add_u32 v{SP+3}, v{SP+1}, 1, s49")
        w_lds_reads(a, SP+2, SP+3, W2R, W2I)
        for p in range(8):
            xr, xi, wr, wi = ARE+2*p, AIM+2*p, WR+2*p, WI+2*p
            t0 = TMP+4*(p & 1); t1 = t0+2
            n0 = NEG if p < 4 else ""; n1 = "" if p < 4 else NEG
            a.e(f"v_pk_mul_f32 {v(t0,2)}, {v(xr,2)}, {v(wr,2)}", f"v_pk_mul_f32 {v(t1,2)}, {v(xi,2)}, {v(wr,2)}",
                f"v_pk_fma_f32 {v(wr,2)}, {v(xi,2)}, {v(wi,2)}, {v(t0,2)}{n0}",
                f"v_pk_fma_f32 {v(wi,2)}, {v(xr,2)}, {v(wi,2)}, {v(t1,2)}{n1}")
        for i in range(16): a.e(f"v_mov_b32 v{DF+i}, v{GB+i}")
        a.e(f"s_mov_b32 s{sPASS}, 1", f"s_branch {Lfwd}")
        a.label(Lp1s)
        fix_w(a, W2R, W2I, PF2)
        for p in range(8):
            xr, xi, br, bi, r1r, r1i = ARE+2*p, AIM+2*p, W2R+2*p, W2I+2*p, WR+2*p, WI+2*p
            t0 = TMP+4*(p & 1); t1 = t0+2
            n0 = NEG if p < 4 else ""; n1 = "" if p < 4 else NEG
            a.e(f"v_pk_mul_f32 {v(t0,2)}, {v(xr,2)}, {v(br,2)}", f"v_pk_mul_f32 {v(t1,2)}, {v(xi,2)}, {v(br,2)}",
                f"v_pk_fma_f32 {v(t0,2)}, {v(xi,2)}, {v(bi,2)}, {v(t0,2)}{n0}",
                f"v_pk_fma_f32 {v(t1,2)}, {v(xr,2)}, {v(bi,2)}, {v(t1,2)}{n1}",
                f"v_pk_add_f32 {v(t1,2)}, {v(r1r,2)}, {v(t1,2)} neg_lo:[0,1] neg_hi:[0,1]",
                f"v_pk_add_f32 {v(t0,2)}, {v(r1i,2)}, {v(t0,2)}")
            for e in range(2):
                a.e(f"v_cvt_pk_bf16_f32 v{DF+2*p+e}, v{t1+e}, -v{t0+e}")
        a.e(f"s_branch {Linv}")
        return
    a.e(f"v_lshl_add_u32 v{TMP}, v{G_}, 7, v{IDX}", f"v_sub_u32 v{TMP+1}, {1023-32*27}, v{TMP}",
        f"s_mov_b32 s48, {LW2}", f"v_lshl_add_u32 v{TMP+2}, v{TMP}, 1, s48", f"s_mov_b32 s49, {LW2+2048}", f"v_lshl_add_u32 v{TMP+3}, v{TMP+1}, 1, s49")
    w_lds_reads(a, TMP+2, TMP+3, W2R, W2I)
    a.e("s_waitcnt lgkmcnt(0)")
    fix_w(a, W2R, W2I, PF2)
    VS = SP; K0 = SP+1
    a.e(f"v_lshlrev_b32 v{VS}, 9, v{G_}", f"v_lshl_add_u32 v{VS}, v{IDX}, 2, v{VS}")
    for r in range(16):
        a.e(f"ds_write_b32 v{VS}, v{ARE+r} offset:{LSC+128*eidx(r)}", f"ds_write_b32 v{VS}, v{AIM+r} offset:{LSC+4096+128*eidx(r)}")
    a.e(f"v_lshl_add_u32 v{K0}, v{G_}, 7, v{IDX}", f"v_sub_u32 v{K0}, 1024, v{K0}", "s_waitcnt lgkmcnt(0)")
    for r in range(16):
        ad, rr, ri, ur, ui, vr, vi, o0, o1 = [SP+2+i for i in range(9)]
        a.e(f"v_subrev_u32 v{ad}, {32*eidx(r)}, v{K0}", f"v_and_b32 v{ad}, 1023, v{ad}", f"v_lshlrev_b32 v{ad}, 2, v{ad}",
            f"ds_read_b32 v{rr}, v{ad} offset:{LSC}", f"ds_read_b32 v{ri}, v{ad} offset:{LSC+4096}", "s_waitcnt lgkmcnt(0)")
        pr, pi_ = ARE+r, AIM+r
        a.e(f"v_add_f32 v{ur}, v{pr}, v{rr}", f"v_sub_f32 v{ui}, v{pi_}, v{ri}",
            f"v_sub_f32 v{vr}, v{pr}, v{rr}", f"v_add_f32 v{vi}, v{pi_}, v{ri}")
        sg = "-" if r < 8 else ""; ns = "" if r < 8 else "-"
        ar, ai, br, bi = WR+r, WI+r, W2R+r, W2I+r
        a.e(f"v_mul_f32 v{o0}, v{ur}, v{ar}", f"v_fma_f32 v{o0}, {sg}v{ui}, v{ai}, v{o0}",
            f"v_fma_f32 v{o0}, v{vr}, v{br}, v{o0}", f"v_fma_f32 v{o0}, {sg}v{vi}, v{bi}, v{o0}",
            f"v_mul_f32 v{o1}, v{ui}, v{ar}", f"v_fma_f32 v{o1}, {ns}v{ur}, v{ai}, v{o1}",
            f"v_fma_f32 v{o1}, v{vi}, v{br}, v{o1}", f"v_fma_f32 v{o1}, {ns}v{vr}, v{bi}, v{o1}",
            f"v_mul_f32 v{o0}, 0.5, v{o0}", f"v_mul_f32 v{o1}, 0.5, v{o1}",
            f"v_cvt_pk_bf16_f32 v{DF+r}, v{o0}, -v{o1}")
    a.e(f"s_branch {Linv}")

def h_dma(a, SH, sLB, sD4K):
    a.e("v_lshlrev_b32 v235, 4, v1")
    a.e(f"s_add_u32 s74, s{sLB}, 32", "s_mov_b32 m0, s74")
    for ch in range(4): a.e(f"buffer_load_dwordx4 v235, s[{SH}:{SH+3}], s{sD4K} offen offset:{1024*ch} lds" + (NT() if OPT["nth"] else ""))
    if OPT["hcopy"]: return
    a.e(f"s_add_u32 s74, s{sLB}, 4192", f"s_add_u32 s75, s{sD4K}, 2", "s_mov_b32 m0, s74")
    for ch in range(4): a.e(f"buffer_load_dwordx4 v235, s[{SH}:{SH+3}], s75 offen offset:{1024*ch} lds" + (NT() if OPT["nth"] else ""))
    a.e("v_mov_b32 v233, 0x7ffffff0", f"v_mov_b32 v234, s{sD4K}", "v_cmp_eq_u32 vcc, 15, v1", "v_cndmask_b32 v233, v233, v234, vcc",
        f"buffer_load_short_d16_hi v230, v233, s[{SH}:{SH+3}], 0 offen")
def NH(): return 4 if OPT["hcopy"] else 9

def h_shift(a, sLB, R):
    ad = 233
    a.e(f"v_lshlrev_b32 v{ad}, 4, v1", f"v_add_u32 v{ad}, s{sLB}, v{ad}")
    for ch in range(4):
        a.e(f"ds_read_b128 {v(R+4*ch,4)}, v{ad} offset:{32+1024*ch}", f"ds_read_b32 v{R+16+ch}, v{ad} offset:{32+1024*ch+16}")
    a.e(f"v_mov_b32 v234, s{sLB}", f"ds_read_b32 v230, v234 offset:32")
    a.e("s_waitcnt lgkmcnt(0)")
    for ch in range(4):
        e = [R+4*ch+i for i in range(4)] + [R+16+ch]
        for i in range(4): a.e(f"v_alignbit_b32 v{e[i]}, v{e[i+1]}, v{e[i]}, 16")
        a.e(f"ds_write_b128 v{ad}, {v(R+4*ch,4)} offset:{4192+1024*ch}")
    a.e("v_lshlrev_b32 v230, 16, v230", "v_mov_b32 v234, 0", "v_cmp_eq_u32 vcc, 15, v1", "v_cndmask_b32 v230, v234, v230, vcc")

def b1_prio(a):
    if not OPT["pB1"]: return
    if OPT["latem"]:
        Lm = newlbl("lateB")
        a.e("s_and_b32 s92, s2, 7", f"s_lshr_b32 s92, {OPT['latem']}, s92", "s_bitcmp1_b32 s92, 0", f"s_cbranch_scc1 {Lm}", f"s_setprio {OPT['pB1']}")
        a.label(Lm)
    else:
        a.e(f"s_setprio {OPT['pB1']}")

def gen_B(a):
    ROLE[0] = 'B'
    SH, STT, SKVT = 80, 84, 32
    sCBK, sSUB, sD, sD4K, sLB, sDV, sF1, sF2, sMASK = 40, 41, 42, 43, 44, 45, 46, 47, 72
    sSB = 36
    def b_setup():
        a.e(f"s_setprio {OPT['prioB']}") if OPT['prioB'] else None
        srd(a, SH, P_SSMK, P_SSMK+1, 4*MB); srd(a, STT, P_OUT, P_OUT+1, 8*MB)
        a.e(f"s_and_b32 s{sCBK}, s2, 15",
            f"s_lshr_b32 s{sSUB}, s2, 4",
            f"s_lshl_b32 s{sD}, s{sCBK}, 4", f"s_add_u32 s{sD}, s{sD}, s{sSUB}", f"s_lshl_b32 s{sD}, s{sD}, 2", f"s_add_u32 s{sD}, s{sD}, s3",
            f"s_lshl_b32 s{sD4K}, s{sD}, 12", f"s_mul_i32 s{sLB}, s3, {LB_STRIDE}", f"s_mov_b32 s{sMASK}, 0xffff0000")
        if OPT["fullline"]:
            a.e(f"s_and_b32 s73, s{sD}, 3", "s_lshl_b32 s73, s73, 15", f"s_bfe_u32 s74, s{sD}, 0x30003", "s_lshl_b32 s74, s74, 12", "s_add_u32 s73, s73, s74",
                f"s_bfe_u32 s74, s{sD}, 0x10002", "s_lshl_b32 s74, s74, 6", "s_add_u32 s73, s73, s74",
                f"s_lshl_b32 s74, s{sCBK}, 7", "s_add_u32 s73, s73, s74", f"s_add_u32 s{sSB}, s73, 2048")
        else:
            a.e(f"s_and_b32 s73, s{sD}, 63", "s_lshl_b32 s73, s73, 13", f"s_lshl_b32 s74, s{sCBK}, 7", "s_add_u32 s73, s73, s74", f"s_add_u32 s{sSB}, s73, 2048")
        for i in range(1, 4): a.e(f"s_add_u32 s{sSB+i}, s{sSB}, {i*2*MB}")
        a.e(f"s_lshl_b32 s73, s{sCBK}, {4+FB()}", f"s_add_u32 s{sF1}, s73, {SY_B1}", f"s_lshl_b32 s74, s{sSUB}, {FB()}", "s_add_u32 s73, s73, s74", f"s_add_u32 s{sF2}, s73, {SY_B2}")
        a.e(f"s_and_b32 s73, s{sD}, 0xfffffffe", "s_lshl_b32 s73, s73, 1", f"s_load_dword s{sDV}, s[{P_SSMD}:{P_SSMD+1}], s73")

    if OPT["fast"]:
        b1_prio(a)
        a.e(f"s_and_b32 s{sCBK}, s2, 15", f"s_lshr_b32 s{sSUB}, s2, 4")
    else:
        b_setup()
    if OPT["bearly"]:
        LN16, B_, G4, VA, VB, VE, VS2, T, TT, UL, Z0 = 242, 244, 245, 236, 240, 10, 241, 12, 227, 243, 228
    else:
        LN16, B_, G4, VA, VB, VE, VS2, T, TT, UL, Z0 = 2, 3, 4, 5, 9, 10, 11, 12, 18, 19, 16
    def b2_setup():
        a.e(f"v_lshlrev_b32 v{T}, 2, v1",
            f"v_add_u32 v{T+1}, {4160-32}, v{T}", "v_cmp_le_u32 vcc, 8, v1", f"v_cndmask_b32 v{T+3}, v{T}, v{T+1}, vcc",
            f"v_add_u32 v{T+1}, 8288, v{T}", "v_cmp_le_u32 vcc, 16, v1", f"v_cndmask_b32 v{T+3}, v{T+3}, v{T+1}, vcc",
            f"v_add_u32 v231, s{sLB}, v{T+3}")
        a.e(f"v_lshlrev_b32 v{T}, 3, v1", f"v_add_u32 v{T}, s{sLB}, v{T}", f"v_mov_b32 v{Z0}, 0", f"v_mov_b32 v{Z0+1}, 0", f"ds_write_b64 v{T}, v[{Z0}:{Z0+1}] offset:8288")
        a.e(f"v_and_b32 v{B_}, 15, v1", f"v_lshrrev_b32 v{G4}, 4, v1")
        a.e(f"v_and_b32 v{VA}, 1, v{B_}", f"v_xor_b32 v{VA}, 1, v{VA}", f"v_mul_u32_u24 v{VA}, 4160, v{VA}",
            f"v_add_u32 v{VA+1}, 1, v{B_}", f"v_lshrrev_b32 v{VA+1}, 1, v{VA+1}", f"v_lshl_add_u32 v{VA}, v{VA+1}, 2, v{VA}",
            f"v_lshlrev_b32 v{VA+1}, 4, v{G4}", f"v_sub_u32 v{VA}, v{VA}, v{VA+1}",
            f"s_add_u32 s73, s{sLB}, 16", f"v_add_u32 v{VA}, s73, v{VA}")
        for pp in range(1, 4): a.e(f"v_add_u32 v{VA+pp}, {1024*pp}, v{VA}")
        a.e(f"v_lshlrev_b32 v{VB}, 5, v{B_}", f"v_lshl_add_u32 v{VB}, v{G4}, 4, v{VB}",
            f"s_add_u32 s73, s{sLB}, {8800-480}", f"v_add_u32 v{VB}, s73, v{VB}")
        a.e(f"v_lshrrev_b32 v{TT}, 1, v{G4}", f"v_lshlrev_b32 v{UL}, 4, v{TT}", f"v_lshl_add_u32 v{UL}, v{B_}, 5, v{UL}",
            f"v_and_b32 v{TT}, 1, v{G4}", f"v_xor_b32 v{TT}, 1, v{TT}", f"v_lshl_add_u32 v{UL}, v{TT}, 3, v{UL}",
            f"s_add_u32 s73, s{sLB}, 8800", f"v_add_u32 v232, s73, v{UL}")
        if OPT["fullline"]:
            a.e(f"v_lshrrev_b32 v{TT}, 3, v{B_}", f"v_lshlrev_b32 v{VS2}, 19, v{TT}", f"v_bfe_u32 v{TT}, v{B_}, 1, 2", f"v_lshl_add_u32 v{VS2}, v{TT}, 17, v{VS2}",
                f"v_and_b32 v{TT}, 1, v{G4}", f"v_lshl_add_u32 v{VS2}, v{TT}, 20, v{VS2}", f"v_and_b32 v{TT}, 1, v{B_}", f"v_lshl_add_u32 v{VS2}, v{TT}, 5, v{VS2}",
                f"v_lshrrev_b32 v{TT}, 1, v{G4}", f"v_lshl_add_u32 v{VS2}, v{TT}, 4, v{VS2}")
            a.e(f"v_lshlrev_b32 v{LN16}, 19, v{G4}", f"v_bfe_u32 v{TT}, v1, 2, 2", f"v_lshl_add_u32 v{LN16}, v{TT}, 17, v{LN16}",
                f"v_and_b32 v{TT}, 3, v1", f"v_lshl_add_u32 v{LN16}, v{TT}, 4, v{LN16}")
        else:
            a.e(f"v_lshrrev_b32 v{TT}, 3, v{B_}", f"v_lshlrev_b32 v{VS2}, 19, v{TT}", f"v_bfe_u32 v{TT}, v{B_}, 2, 1", f"v_lshl_add_u32 v{VS2}, v{TT}, 12, v{VS2}",
                f"v_and_b32 v{TT}, 1, v{G4}", f"v_lshl_add_u32 v{VS2}, v{TT}, 20, v{VS2}", f"v_and_b32 v{TT}, 3, v{B_}", f"v_lshl_add_u32 v{VS2}, v{TT}, 5, v{VS2}",
                f"v_lshrrev_b32 v{TT}, 1, v{G4}", f"v_lshl_add_u32 v{VS2}, v{TT}, 4, v{VS2}")
            a.e(f"v_lshlrev_b32 v{LN16}, 19, v{G4}", f"v_bfe_u32 v{TT}, v1, 3, 1", f"v_lshl_add_u32 v{LN16}, v{TT}, 12, v{LN16}",
                f"v_and_b32 v{TT}, 7, v1", f"v_lshl_add_u32 v{LN16}, v{TT}, 4, v{LN16}")
        a.e(f"v_lshlrev_b32 v{TT}, 4, v1", f"s_add_u32 s73, s{sLB}, 8800", f"v_add_u32 v{UL}, s73, v{TT}")

    stamp(a, 0, True); stamp(a, 1)
    Lidle, Lsetup = newlbl("bidle"), newlbl("bsetup")
    if not OPT["fast"]: b1_prio(a)
    if OPT["b1all"]:
        a.e(f"s_mov_b32 s{sCBKT}, s{sCBK}", f"s_mov_b32 s{sSUBT}, s{sSUB}")
        sh = b_setup if OPT["fast"] else None
        if OPT["bearly"]:
            assert OPT["fast"] and OPT["twoflag"] and not OPT["hlate"]
            sh = lambda: (b_setup(), b2_setup())
        if OPT["hfirst"]:
            emit_B1(a, after_loads=lambda: h_dma(a, SH, sLB, sD4K), nyoung=9)
        elif OPT["bearly"]:
            emit_B1(a, shadow=sh)
        elif OPT["hearly"] and not OPT["hlate"]:
            emit_B1(a, shadow=sh, after_stores=lambda: ((b_wait_state(a, 233, 3, OPT["hwait"]) if OPT["hwait"] else None), h_dma(a, SH, sLB, sD4K)), nafter=NH())
        else:
            emit_B1(a, shadow=sh)
            if not OPT["hlate"]: h_dma(a, SH, sLB, sD4K)
    else:
        a.e(f"s_cmp_lg_u32 s{sACT}, 0", f"s_cbranch_scc1 {Lidle}")
        if OPT["hearly"] and not OPT["hlate"]:
            emit_B1(a, after_stores=lambda: h_dma(a, SH, sLB, sD4K), nafter=9)
        else:
            emit_B1(a)
            if not OPT["hlate"]: h_dma(a, SH, sLB, sD4K)
        a.e(f"s_branch {Lsetup}")
        a.label(Lidle)
        if OPT["tlb"] or OPT["cpf"]: warm(a)
        fin_epoch(a)
        loc_publish(a)
        loc_issue(a, 10)
        loc_resolve(a, 10, barrier=False)
        if not OPT["hlate"]:
            for _ in range(OPT["hactdelay"]):
                a.e("v_and_b32 v12, 15, v1", f"v_lshlrev_b32 v12, {FB()}, v12", f"v_add_u32 v12, s{sF1}, v12",
                    f"buffer_load_dword v13, v12, s[{S_SYN}:{S_SYN+3}], 0 offen sc1", "s_waitcnt vmcnt(0)")
            h_dma(a, SH, sLB, sD4K)
    a.label(Lsetup)
    if OPT["pB1"]: a.e(f"s_setprio {OPT['prioB']}")
    stamp(a, 12)
    if OPT["yieldB"] >= 2 and OPT["yinit"]:
        a_state(a, sCU, 0, 233)
    if not OPT["bearly"]: b2_setup()
    def dsel():
        a.e("s_waitcnt lgkmcnt(0)",
            f"s_and_b32 s73, s{sD}, 1", f"s_lshl_b32 s74, s{sDV}, 16", f"s_and_b32 s75, s{sDV}, 0xffff0000",
            "s_cmp_eq_u32 s73, 1", f"s_cselect_b32 s{sDV}, s75, s74")
    if not OPT["bearly"]: dsel()
    if OPT["twoflag"]:
        a.e(f"s_add_u32 s73, s{sF1}, {SY_B1B-SY_B1}", f"s_cmp_lg_u32 s{sLOC}, 0", f"s_cselect_b32 s{sF1}, s{sF1}, s73")
    a.e(f"v_and_b32 v{T}, 15, v1", f"v_lshlrev_b32 v{T}, {FB()}, v{T}", f"v_add_u32 v{T}, s{sF1}, v{T}")
    stamp(a, 5)
    if OPT["bearly"]:
        wait_flags_mid(a, T, T+1, 73, lambda: h_dma(a, SH, sLB, sD4K), NH())
        dsel()
    else:
        wait_flags(a, T, 1, T+1, 73)
    loc_read(a, 12)
    stamp(a, 6)
    VE = 232
    ACC = 20
    SETS = [(52, 84), (116, 148)]
    U = SETS[1][1]
    for ch in range(4):
        a.e(f"buffer_load_dwordx4 {v(U+4*ch,4)}, v{LN16}, s[{STT}:{STT+3}], s{sSB+ch} offen" + LDL())
    def reads(rho, st):
        A, B = SETS[st]
        out = []
        for p in range(8):
            o = 8*rho + 128*(p & 1)
            out.append(f"ds_read2_b32 {v(A+4*p,2)}, v{VA+(p>>1)} offset0:{o} offset1:{o+1}")
            out.append(f"ds_read2_b32 {v(A+4*p+2,2)}, v{VA+(p>>1)} offset0:{o+2} offset1:{o+3}")
        outb = [f"ds_read_b128 {v(B+4*q,4)}, v{VB} offset:{512*q+32*(15-rho)}" for q in range(8)]
        return out, outb
    rhos = list(range(1, 16, 2))
    ra, rb = reads(rhos[0], 0)
    if OPT["hlate"]:
        h_dma(a, SH, sLB, sD4K)
        for ch in range(4):
            a.e(f"s_waitcnt vmcnt({3-ch+9})", f"ds_write_b128 v{UL}, {v(U+4*ch,4)} offset:{1024*ch}")
        a.e("s_waitcnt vmcnt(0)", "ds_write_b32 v231, v230", "s_waitcnt lgkmcnt(0)")
        for r in ra: a.e(r)
    else:
        a.e("s_waitcnt vmcnt(4)")
        if OPT["hcopy"]: h_shift(a, sLB, 20)
        a.e("ds_write_b32 v231, v230")
        a.e("s_waitcnt lgkmcnt(0)")
        for r in ra: a.e(r)
        for ch in range(4):
            a.e(f"s_waitcnt vmcnt({3-ch})", f"ds_write_b128 v{UL}, {v(U+4*ch,4)} offset:{1024*ch}")
    a.e("s_waitcnt lgkmcnt(0)")
    for r in rb: a.e(r)
    if OPT["yieldB"]:
        Ly = newlbl("y0b")
        if OPT["y0"]: a.e("s_cmp_lg_u32 s2, 0", f"s_cbranch_scc1 {Ly}")
        if OPT["ylate"]: a.e("s_and_b32 s92, s2, 7", f"s_lshr_b32 s92, {OPT['latem']}, s92", "s_bitcmp0_b32 s92, 0", f"s_cbranch_scc1 {Ly}")
        if not (OPT["yieldB"] == 2 and OPT["ymid"]): b_yield(a, 233)
        a.label(Ly)
    Lnq = newlbl("noq")
    if OPT["a3all"]:
        a.e(f"s_mov_b32 s{sCBKT}, s{sCBK}", f"s_mov_b32 s{sSUBT}, s{sSUB}")
        if OPT["yieldB"] != 3 and not OPT["qlate"]: emit_B3_pre(a)
    else:
        a.e(f"s_cmp_lg_u32 s{sACT}, 0", f"s_cbranch_scc1 {Lnq}")
        emit_B3_pre(a)
        a.label(Lnq)
    stamp(a, 7)
    for ci, rho in enumerate(rhos):
        st = ci & 1
        A, B = SETS[st]
        if ci+1 < len(rhos):
            ra, rb = reads(rhos[ci+1], st ^ 1); nxt = ra[0:2] + rb + ra[2:]
        else:
            nxt = [f"ds_read_b64 {v(SETS[st^1][0]+2*j,2)}, v{VE} offset:{512*j}" for j in range(8)]
        if OPT["yieldB"] == 3: b_yield_step(a, 233, ci == len(rhos)-1)
        if OPT["yieldB"] == 2 and OPT["ymid"] and ci == OPT["ymid"]:
            Lym = newlbl("ym")
            if OPT["ylate"]: a.e("s_and_b32 s92, s2, 7", f"s_lshr_b32 s92, {OPT['latem']}, s92", "s_bitcmp0_b32 s92, 0", f"s_cbranch_scc1 {Lym}")
            b_yield(a, 233)
            a.label(Lym)
        a.e("s_waitcnt lgkmcnt(0)")
        n = 0
        for p in range(8):
            for q in range(8-p):
                j = p+q
                c = "0" if (ci == 0 and p == 0) else v(ACC+4*j, 4)
                a.e(f"v_mfma_f32_16x16x32_bf16 {v(ACC+4*j,4)}, {v(A+4*p,4)}, {v(B+4*q,4)}, {c}")
                if n < len(nxt): a.e(nxt[n])
                n += 1
    KVR = SETS[0][0]; TMv = 116
    if (OPT["yieldB"] == 3 or OPT["qlate"]) and OPT["a3all"]: emit_B3_pre(a)
    a.e("s_waitcnt lgkmcnt(0)")
    stamp(a, 8)
    sts = []
    for jp in range(4):
        base = TMv + 8*jp
        for hh in range(2):
            j = 2*jp+hh
            w0, w1 = KVR+2*j, KVR+2*j+1
            t = 172
            a.e(f"v_and_b32 v{t}, s{sMASK}, v{w1}", f"v_lshlrev_b32 v{t+1}, 16, v{w1}",
                f"v_and_b32 v{t+2}, s{sMASK}, v{w0}", f"v_lshlrev_b32 v{t+3}, 16, v{w0}")
            for r in range(4):
                a.e(f"v_fma_f32 v{t+r}, v{t+r}, s{sDV}, v{ACC+4*j+r}")
            a.e(f"v_cvt_pk_bf16_f32 v{base+2*hh}, v{t}, v{t+1}", f"v_cvt_pk_bf16_f32 v{base+2*hh+1}, v{t+2}, v{t+3}")
        a.e(f"v_permlane16_swap_b32 v{base}, v{base+2}", f"v_permlane16_swap_b32 v{base+1}, v{base+3}")
        sts.append(f"buffer_store_dwordx4 {v(base,4)}, v{VS2}, s[{STT}:{STT+3}], s{sSB+jp} offen")
    dual_store(a, sts)
    signal(a, sF2, 12, bloc=True)
    stamp(a, 9)
    if not OPT["a3all"]: a.e(f"s_cmp_lg_u32 s{sACT}, 0", "s_cbranch_scc1 L_fin")
    emit_B3(a)
    if OPT["wbl2"]:
        Lw = newlbl("wb")
        a.e("s_waitcnt vmcnt(0)", "s_cmp_lg_u32 s3, 0", f"s_cbranch_scc1 {Lw}")
        if OPT["wbl2"] == 1: a.e(f"s_cmp_lg_u32 s{sSUB}, 15", f"s_cbranch_scc1 {Lw}")
        if OPT["wbl2"] == 2: a.e(f"s_and_b32 s92, s{sSUB}, 3", "s_cmp_lg_u32 s92, 3", f"s_cbranch_scc1 {Lw}")
        a.e("buffer_wbl2 sc1")
        a.label(Lw)
    pair_chkB(a)
    a.e("s_branch L_fin")

SY_PA = 4096 + 163840
SY_PB = SY_PA + 16384
def hwid(a, dst):
    a.e(f"s_getreg_b32 s{dst}, hwreg(HW_REG_HW_ID)", f"s_lshr_b32 s{dst}, s{dst}, 8", f"s_and_b32 s{dst}, s{dst}, 0xff",
        "s_getreg_b32 s93, hwreg(HW_REG_XCC_ID)", "s_and_b32 s93, s93, 15", "s_lshl_b32 s93, s93, 8", f"s_or_b32 s{dst}, s{dst}, s93")
def pair_pubA(a):
    if not OPT.get("pair"): return
    L = newlbl("ppa")
    a.e("s_cmp_lg_u32 s3, 0", f"s_cbranch_scc1 {L}")
    hwid(a, 92)
    a.e(f"s_lshl_b32 s93, s{sCU}, 6", f"s_add_u32 s93, s93, {SY_PA}", "v_mov_b32 v240, s93", "v_mov_b32 v241, s92", "s_mov_b64 exec, 1",
        f"buffer_store_dword v241, v240, s[{S_SYN}:{S_SYN+3}], 0 offen sc1", "s_mov_b64 exec, -1")
    a.label(L)
def pair_chkB(a):
    if not OPT.get("pair"): return
    L = newlbl("ppb")
    a.e("s_cmp_lg_u32 s3, 0", f"s_cbranch_scc1 {L}")
    hwid(a, 92)
    a.e(f"s_lshl_b32 s93, s{sCU}, 6", f"s_add_u32 s93, s93, {SY_PA}", "v_mov_b32 v240, s93",
        f"buffer_load_dword v241, v240, s[{S_SYN}:{S_SYN+3}], 0 offen sc1", "s_waitcnt vmcnt(0)", "v_readfirstlane_b32 s93, v241",
        "s_cmp_lg_u32 s92, s93", "s_cselect_b32 s92, 1, 0", f"s_lshl_b32 s93, s{S_TGT}, 1", "s_or_b32 s92, s92, s93",
        f"s_lshl_b32 s93, s{sCU}, 6", f"s_add_u32 s93, s93, {SY_PB}", "v_mov_b32 v240, s93", "v_mov_b32 v241, s92", "s_mov_b64 exec, 1",
        f"buffer_store_dword v241, v240, s[{S_SYN}:{S_SYN+3}], 0 offen sc1", "s_mov_b64 exec, -1", "s_waitcnt vmcnt(0)")
    a.label(L)
def pair_sum(a):
    if not OPT.get("pair"): return
    L1, L2, L3 = newlbl("ps"), newlbl("psd"), newlbl("psp")
    a.e("v_lshlrev_b32 v2, 6, v1", f"v_add_u32 v2, {SY_PB}, v2", f"s_lshl_b32 s49, s{S_TGT}, 1", "s_mov_b32 s48, 0")
    a.label(L1)
    for i in range(4): a.e(f"s_mov_b32 s50, {4096*i}", f"buffer_load_dword v{4+i}, v2, s[{S_SYN}:{S_SYN+3}], s50 offen sc1")
    a.e("s_add_u32 s48, s48, 1", "s_waitcnt vmcnt(0)")
    for i in range(4): a.e(f"v_xor_b32 v{4+i}, s49, v{4+i}")
    a.e("v_or_b32 v8, v4, v5", "v_or_b32 v9, v6, v7", "v_or_b32 v8, v8, v9", "v_lshrrev_b32 v8, 1, v8", "v_cmp_ne_u32 vcc, 0, v8", f"s_cbranch_vccz {L2}",
        f"s_cmp_lt_u32 s48, {SPIN_LIMIT}", f"s_cbranch_scc1 {L1}")
    a.label(L2)
    a.e("s_mov_b32 s48, 0")
    for i in range(4): a.e(f"v_cmp_eq_u32 vcc, 1, v{4+i}", "s_bcnt1_i32_b64 s49, vcc", "s_add_u32 s48, s48, s49")
    a.e(f"s_mov_b32 s92, s{P_DBG}", f"s_mov_b32 s93, s{P_DBG+1}", "s_mov_b32 s94, 256", "s_mov_b32 s95, 0x00020000", "v_mov_b32 v4, 0", "v_mov_b32 v5, s48", "s_mov_b64 exec, 1",
        "buffer_store_dword v5, v4, s[92:95], 0 offen", "s_mov_b64 exec, -1")
    a.e("s_mul_i32 s48, s48, 10", "s_memrealtime s[50:51]", "s_waitcnt lgkmcnt(0)", "s_mov_b32 s49, s50")
    a.label(L3)
    a.e("s_memrealtime s[50:51]", "s_waitcnt lgkmcnt(0)", "s_sub_u32 s50, s50, s49", "s_cmp_lt_u32 s50, s48", f"s_cbranch_scc1 {L3}")

def warm(a):
    if OPT["tlb"]:
        L = newlbl("warm")
        a.e("s_cmp_lg_u32 s3, 3", f"s_cbranch_scc1 {L}")
        pages = [(P_WS, WS_I1), (P_WS, WS_I1+2*MB), (P_WS, WS_I2), (P_WS, WS_I2+2*MB), (P_WS, WS_SYNC+512*1024),
                 (P_OUT, 0), (P_OUT, 2*MB), (P_OUT, 4*MB), (P_OUT, 6*MB),
                 (P_WR, 0), (P_WR, 2*MB), (P_WI, 0), (P_WI, 2*MB), (P_SSMK, 0), (P_SSMK, 2*MB), (P_Q, 0), (P_Q, 2*MB)]
        a.e("v_mov_b32 v240, 0", "v_mov_b32 v241, 0")
        for i, (p, off) in enumerate(pages):
            a.e(f"s_add_u32 s92, s{p}, {off}", f"s_addc_u32 s93, s{p+1}, 0", f"v_writelane_b32 v240, s92, {i}", f"v_writelane_b32 v241, s93, {i}")
        a.e(f"s_mov_b64 exec, {(1 << len(pages)) - 1}", "global_load_dword v242, v[240:241], off", "s_mov_b64 exec, -1")
        a.label(L)
    if OPT["cpf"]:
        L = newlbl("warm")
        a.e("s_cmp_ge_u32 s3, 2", f"s_cbranch_scc1 {L}")
        a.e("s_getpc_b64 s[92:93]")
        a.e("s_lshr_b32 s96, s2, 4", "s_and_b32 s96, s96, 15", "s_lshl_b32 s96, s96, 1", "s_add_u32 s96, s96, s3", "s_min_u32 s96, s96, 25",
            "s_lshl_b32 s96, s96, 10", f"s_sub_u32 s92, s92, {OPT['cpf']}", "s_subb_u32 s93, s93, 0",
            "s_add_u32 s92, s92, s96", "s_addc_u32 s93, s93, 0", "v_lshlrev_b32 v240, 4, v1",
            "global_load_dwordx4 v[236:239], v240, s[92:93]")
        a.label(L)

def common_rest(a):
    srd(a, S_SYN, P_WS, P_WS+1, 1*MB, add=WS_SYNC)
    a.e(f"s_mov_b32 s92, {WS_SYNC+SY_E}", f"s_load_dword s{S_TGT}, s[{P_WS}:{P_WS+1}], s92")
    a.e(f"s_mov_b32 s98, {64<<FA()}", f"s_mov_b32 s99, {128<<FA()}", f"s_mov_b32 s100, {192<<FA()}")
    if OPT["fast"] >= 2: return
    a.e(f"s_and_b32 s{sCU}, s2, 255", f"s_bitcmp0_b32 s2, 3", f"s_cselect_b32 s{sACT}, 1, 0",
        f"s_lshr_b32 s48, s{sCU}, 4", "s_lshl_b32 s48, s48, 3", f"s_and_b32 s49, s{sCU}, 7", "s_add_u32 s48, s48, s49",
        f"s_and_b32 s{sCBKT}, s48, 15", "s_lshr_b32 s48, s48, 4", "s_lshl_b32 s48, s48, 1", "s_lshr_b32 s49, s2, 8", f"s_add_u32 s{sSUBT}, s48, s49")

def gen_kernel():
    a = Asm(); a.name = "p"
    a.e("s_cmp_ge_u32 s2, 512", "s_cbranch_scc1 L_exit")
    if OPT["swap"]: a.e("s_xor_b32 s2, s2, 256")
    if OPT.get("spinT") or OPT.get("span"): a.e("s_memrealtime s[94:95]")
    if OPT.get("spinC"): a.e("s_memtime s[94:95]")
    if gen.PROF: a.e("s_memrealtime s[98:99]", "s_waitcnt lgkmcnt(0)", "v_writelane_b32 v247, s98, 13")
    a.e(f"s_load_dwordx16 s[4:19], s[0:1], 0", f"s_load_dwordx8 s[20:27], s[0:1], 64")
    a.e("v_lshrrev_b32 v1, 6, v0", "v_readfirstlane_b32 s3, v1", "v_and_b32 v1, 63, v0", "s_waitcnt lgkmcnt(0)")
    if OPT["fast"] >= 2:
        a.e(f"s_and_b32 s{sCU}, s2, 255")
    else:
        common_rest(a)
    a.e("s_cmp_ge_u32 s2, 256", "s_cbranch_scc1 L_A")
    gen_B(a)
    a.label("L_A")
    gen_A(a)
    a.label("L_fin")
    pass
    if gen.PROF:
        a.e("s_waitcnt vmcnt(0)")
        stamp(a, 14); stamp(a, 15, True)
        prof_dump(a)
    if OPT.get("span"):
        Ls = newlbl("span")
        a.e("s_cmp_lg_u32 s3, 0", f"s_cbranch_scc1 {Ls}", "s_waitcnt vmcnt(0)", "s_memrealtime s[92:93]",
            f"s_add_u32 s32, s{P_WS}, {gen.WS_PROF}", f"s_addc_u32 s33, s{P_WS+1}, 0", f"s_mov_b32 s34, {MB}", "s_mov_b32 s35, 0x00020000",
            "s_lshl_b32 s36, s2, 3", "s_waitcnt lgkmcnt(0)", "v_mov_b32 v2, s36", "v_mov_b32 v4, s94", "v_mov_b32 v5, s92", "s_mov_b64 exec, 1",
            "buffer_store_dwordx2 v[4:5], v2, s[32:35], 0 offen", "s_waitcnt vmcnt(0)")
        a.label(Ls)
    if OPT.get("spinC"):
        a.label("L_spinc")
        a.e("s_memtime s[92:93]", "s_waitcnt lgkmcnt(0)", "s_sub_u32 s92, s92, s94", f"s_cmp_lt_u32 s92, {OPT['spinC']}", "s_cbranch_scc1 L_spinc")
    if OPT.get("spinT"):
        a.label("L_spin")
        a.e("s_memrealtime s[92:93]", "s_waitcnt lgkmcnt(0)", "s_sub_u32 s92, s92, s94", f"s_cmp_lt_u32 s92, {OPT['spinT']}", "s_cbranch_scc1 L_spin")
    a.label("L_exit")
    a.e("s_endpgm")
    return a

def prof_dump(a):
    if OPT.get("dbgwg", -1) >= 0:
        L = newlbl("nodbg")
        a.e(f"s_cmp_lg_u32 s2, {OPT['dbgwg']}", f"s_cbranch_scc1 {L}", "s_cmp_lg_u32 s3, 0", f"s_cbranch_scc1 {L}")
        a.e("v_readlane_b32 s36, v247, 1", "v_readlane_b32 s37, v247, 13", "v_mov_b32 v250, s36", "v_mov_b32 v251, s37",
            "v_cmp_eq_u32 vcc, 0, v1", "v_cndmask_b32 v250, v250, v251, vcc", "v_cmp_eq_u32 vcc, 13, v1", "v_cndmask_b32 v250, v250, v251, vcc",
            "v_cmp_eq_u32 vcc, 15, v1", "v_cndmask_b32 v250, v250, v251, vcc", "v_sub_u32 v250, v247, v250",
            f"s_mov_b32 s32, s{P_DBG}", f"s_mov_b32 s33, s{P_DBG+1}", "s_mov_b32 s34, 256", "s_mov_b32 s35, 0x00020000",
            "v_lshlrev_b32 v251, 2, v1", "s_mov_b64 exec, 0xffff", "buffer_store_dword v250, v251, s[32:35], 0 offen", "s_waitcnt vmcnt(0)", "s_mov_b64 exec, -1")
        a.label(L)
        return

    a.e(f"s_add_u32 s32, s{P_WS}, {gen.WS_PROF}", f"s_addc_u32 s33, s{P_WS+1}, 0", f"s_mov_b32 s34, {MB}", "s_mov_b32 s35, 0x00020000")
    a.e("s_lshl_b32 s36, s2, 2", "s_add_u32 s36, s36, s3", "s_lshl_b32 s36, s36, 6",
        "v_lshlrev_b32 v250, 2, v1", "v_add_u32 v250, s36, v250", "s_mov_b64 exec, 0xffff",
        "buffer_store_dword v247, v250, s[32:35], 0 offen")
    if OPT.get("fine"):
        a.e("v_add_u32 v250, 0x40000, v250", "buffer_store_dword v246, v250, s[32:35], 0 offen")
    a.e("s_waitcnt vmcnt(0)")
PROFREGS = []

DOC = """;
"""

def build(path):
    a = gen_kernel()
    name = "concat_heads__spectral_gfnet__ssm_conv_h3__prompt_kernel"
    s = open("concat_heads__spectral_gfnet__ssm_conv_h3__prompt.s.ref").read().split("; Override")[0]
    s += f"; @launch grid=(512,1,1) block=(256,1,1) lds={LDS_BYTES}\n"
    s += DOC
    s += '.amdgcn_target "amdgcn-amd-amdhsa--gfx950"\n' + gen.header(name) + a.text() + gen.descriptor(name, 256, 102)
    s = s.replace(" lds nt", " nt lds")
    open(path, "w").write(s)
    return s

if __name__ == "__main__":
    out = sys.argv[1] if len(sys.argv) > 1 else "pers.s"
    gen.PROF = "prof" in sys.argv[2:]
    for x in sys.argv[2:]:
        if "=" in x:
            k, val = x.split("="); OPT[k] = int(val)
    if OPT["wsend"]:
        base = OPT["wsend"]*MB
        WS_I1, WS_KVT, WS_I2, WS_TT, WS_SYNC = base, base+4*MB, base+8*MB, base+12*MB, base+20*MB
    s = build(out)
    print(out, len(s))
```
